```python
import torch

def _softmax(x, axis=-1):
    return torch.softmax(x, dim=axis)

def _gelu(x):
    return torch.nn.functional.gelu(x, approximate='tanh')

def _silu(x):
    return torch.nn.functional.silu(x)

def _sigmoid(x):
    return torch.sigmoid(x)

def _layernorm(x, axis=-1, eps=1e-05):
    m = x.mean(dim=axis, keepdim=True)
    v = x.var(dim=axis, keepdim=True, unbiased=False)
    return (x - m) / torch.sqrt(v + eps)

def _scatter_add(tgt, idx, src, axis=0):
    return tgt.clone().index_add_(axis, idx, src)

def _segment_sum(src, seg, n):
    out = torch.zeros((n,) + src.shape[1:], dtype=src.dtype)
    return out.index_add_(0, seg, src)

def _pad(x, pw):
    flat = tuple((v for pair in reversed(pw) for v in pair))
    return torch.nn.functional.pad(x, flat)
kernel_name = 'adaLN_cond__mha_block_cached__glu_gated_swiglu__decode'

def setup_inputs():

    _w = lambda a: (lambda t: t.to(torch.bfloat16) if t.is_floating_point() else t)(torch.as_tensor(a))

    def _A_setup():
        B, Sq, D = (1, 1, 512)
        H, Sk, Dh = (32, 4096, 128)
        return {'x': _w((lambda *s: torch.randn(*s, dtype=torch.bfloat16) * 0.05)(B, Sq, D)), 'k_cache': _w((lambda *s: torch.randn(*s, dtype=torch.bfloat16) * 3.2)(B, H, Sk, Dh)), 'v_cache': _w((lambda *s: torch.randn(*s, dtype=torch.bfloat16) * 3.2)(B, H, Sk, Dh)), 'wq': _w((lambda *s: torch.randn(*s, dtype=torch.bfloat16) * 3.2)(D, H * Dh) * D ** (-0.5)), 'wo': _w((lambda *s: torch.randn(*s, dtype=torch.bfloat16) * 3.2)(H * Dh, D) * (H * Dh) ** (-0.5))}
    _A_in = _A_setup()

    def _B_setup():
        B, S, D, F = (1, 1, 512, 1376)
        return {'x': _w((lambda *s: torch.randn(*s, dtype=torch.bfloat16) * 0.05)(B, S, D)), 'w1': _w((lambda *s: torch.randn(*s, dtype=torch.bfloat16) * 1.6)(D, F) * (2.0 / D) ** 0.5), 'w3': _w((lambda *s: torch.randn(*s, dtype=torch.bfloat16) * 1.6)(D, F) * (2.0 / D) ** 0.5), 'w2': _w((lambda *s: torch.randn(*s, dtype=torch.bfloat16) * 1.6)(F, D) * (2.0 / F) ** 0.5)}
    _B_in = _B_setup()
    return {'A_x': _A_in['x'], 'A_k_cache': _A_in['k_cache'], 'A_v_cache': _A_in['v_cache'], 'A_wq': _A_in['wq'], 'A_wo': _A_in['wo'], 'B_x': _B_in['x'], 'B_w1': _B_in['w1'], 'B_w3': _B_in['w3'], 'B_w2': _B_in['w2'], 'c': _w((lambda *s: torch.randn(*s, dtype=torch.bfloat16) * 0.2)(1, 512) * 8.0), 'w_mod': _w((lambda *s: torch.randn(*s, dtype=torch.bfloat16) * 0.2)(512, 6 * 512) * 512 ** (-0.5) * 8.0)}

def reference(A_x, A_k_cache, A_v_cache, A_wq, A_wo, B_x, B_w1, B_w3, B_w2, c, w_mod):

    def _A_ref(x, k_cache, v_cache, wq, wo):
        B, Sq, D = x.shape
        H, Dh = (32, 128)
        q = (lambda x, *d: x.permute(*d))((x @ wq).reshape(B, Sq, H, Dh), 0, 2, 1, 3)
        scores = torch.einsum('bhqd,bhkd->bhqk', q, k_cache) * Dh ** (-0.5)
        p = _softmax(scores, axis=-1)
        o = torch.einsum('bhqk,bhkd->bhqd', p, v_cache)
        return (lambda x, *d: x.permute(*d))(o, 0, 2, 1, 3).reshape(B, Sq, H * Dh) @ wo

    def _B_ref(x, w1, w3, w2):
        gate = torch.einsum('bsd,df->bsf', x, w1)
        up = torch.einsum('bsd,df->bsf', x, w3)
        h = _silu(gate) * up
        out = torch.einsum('bsf,fd->bsd', h, w2)
        return out
    x = A_x
    mod = (_silu(c) @ w_mod).reshape(c.shape[0], 6, 1, -1)
    sa, ca, ga, sb, cb, gb = (mod[:, 0].clone(), mod[:, 1].clone(), mod[:, 2].clone(), mod[:, 3].clone(), mod[:, 4].clone(), mod[:, 5].clone())
    h = _layernorm(x, axis=-1) * (1 + ca) + sa
    x = x + ga * _A_ref(h, A_k_cache, A_v_cache, A_wq, A_wo)
    h = _layernorm(x, axis=-1) * (1 + cb) + sb
    x = x + gb * _B_ref(h, B_w1, B_w3, B_w2)
    return x
```

```python
import re

TRANS = ('v_exp_f32', 'v_log_f32', 'v_rcp_f32', 'v_rsq_f32', 'v_sqrt_f32', 'v_sin_f32', 'v_cos_f32', 'v_rcp_iflag_f32')

def regs_of(tok):
    tok = tok.strip()
    neg = tok.lstrip('-|').rstrip('|')
    m = re.fullmatch(r'abs\((.*)\)', neg)
    if m: neg = m.group(1)
    m = re.fullmatch(r'([vsa])(\d+)', neg)
    if m: return {m.group(1) + m.group(2)}
    m = re.fullmatch(r'([vsa])\[(\d+):(\d+)\]', neg)
    if m: return {m.group(1) + str(i) for i in range(int(m.group(2)), int(m.group(3)) + 1)}
    if neg in ('vcc', 'vcc_lo', 'vcc_hi'): return {'vcc'}
    if neg in ('exec', 'exec_lo', 'exec_hi'): return {'exec'}
    if neg == 'm0': return {'m0'}
    return set()

class Ins:
    def __init__(self, text):
        self.text = text
        t = text.split(';')[0].strip()
        self.label = None
        self.op = ''
        self.dst = set(); self.src = set(); self.srcc = set(); self.srcab = set(); self.sdata = set()
        self.kind = 'other'
        if t.endswith(':'):
            self.label = t[:-1]; self.kind = 'label'; return
        if not t or t.startswith('.'):
            self.kind = 'directive'; return
        parts = t.split(None, 1)
        op = self.op = parts[0]
        rest = parts[1] if len(parts) > 1 else ''
        ops = []; depth = 0; cur = ''
        for ch in rest:
            if ch in '[(': depth += 1
            if ch in '])': depth -= 1
            if ch == ',' and depth == 0: ops.append(cur.strip()); cur = ''
            else: cur += ch
        if cur.strip(): ops.append(cur.strip())
        mods = ''
        if ops:
            l = ops[-1].split(None, 1)
            ops[-1] = l[0]
            if len(l) > 1: mods = l[1]
        self.ops = ops; self.mods = mods
        R = [regs_of(o) for o in ops]
        self.dpp = ('_dpp' in op) or any(k in mods for k in ('quad_perm', 'row_shl', 'row_shr', 'row_ror', 'row_mirror', 'row_half_mirror', 'row_bcast', 'row_newbcast'))
        if op.startswith('v_mfma'):
            self.kind = 'mfma'; self.dst = R[0]; self.srcab = R[1] | R[2]; self.srcc = R[3]; self.src = self.srcab | self.srcc
            self.passes = 8 if '32x32' in op else 4
        elif op.startswith('v_'):
            self.kind = 'valu'
            base = op.replace('_e32', '').replace('_e64', '').replace('_dpp', '').replace('_sdwa', '')
            self.base = base
            if base.startswith('v_cmp'):
                self.dst = R[0]; self.src = set().union(*R[1:])
            elif base in ('v_permlane32_swap_b32', 'v_permlane16_swap_b32'):
                self.dst = R[0] | R[1]; self.src = R[0] | R[1]
            elif base in ('v_add_co_u32', 'v_sub_co_u32', 'v_addc_co_u32', 'v_subb_co_u32'):
                self.dst = R[0] | R[1]; self.src = set().union(*R[2:])
            else:
                self.dst = R[0]; self.src = set().union(*R[1:]) if len(R) > 1 else set()
                if base in ('v_fmac_f32', 'v_writelane_b32', 'v_pk_fmac_f16') or self.dpp: self.src |= R[0]
                if base == 'v_cndmask_b32' and len(ops) == 3: self.src |= {'vcc'}
        elif op.startswith('buffer_') or op.startswith('global_'):
            self.kind = 'vmem'
            self.lds = ' lds' in (' ' + mods) or 'load_lds' in op
            if 'load' in op and not self.lds:
                self.dst = R[0]; self.src = set().union(*R[1:])
            elif self.lds:
                self.src = set().union(*R) | {'m0'}
            else:
                self.src = set().union(*R)
                if op.startswith('buffer_store'): self.sdata = R[0]
                elif op.startswith('global_store'): self.sdata = R[1]
                self.wide = op.endswith('x3') or op.endswith('x4')
        elif op.startswith('ds_'):
            self.kind = 'ds'
            if op.startswith('ds_read') or 'bpermute' in op or 'swizzle' in op or op.startswith('ds_permute'):
                self.dst = R[0]; self.src = set().union(*R[1:])
            else:
                self.src = set().union(*R)
        elif op.startswith('s_'):
            self.kind = 'salu'
            if op in ('s_nop',): self.kind = 'nop'
            elif op.startswith('s_load') or op.startswith('s_buffer_load') or op.startswith('s_memtime') or op.startswith('s_memrealtime'):
                self.kind = 'smem'; self.dst = R[0]; self.src = set().union(*R[1:]) if len(R) > 1 else set()
            elif op.startswith('s_atomic'):
                self.kind = 'smem'; self.dst = R[0]; self.src = set().union(*R)
            elif op.startswith('s_cmp') or op.startswith('s_cbranch') or op in ('s_branch', 's_waitcnt', 's_barrier', 's_endpgm', 's_sleep', 's_setprio', 's_bitcmp1_b32', 's_bitcmp0_b32'):
                self.src = set().union(*R) if R else set()
            elif 'saveexec' in op:
                self.dst = R[0] | {'exec'}; self.src = R[1] | {'exec'}
            else:
                self.dst = R[0]; self.src = set().union(*R[1:]) if len(R) > 1 else set()
    def states(self):
        if self.kind in ('label', 'directive'): return 0
        if self.kind == 'nop': return int(self.ops[0], 0) + 1
        return 1

def isv(r): return r[0] in 'va' and r not in ('vcc',)
def iss(r): return (r[0] == 's') or r in ('vcc',)

def need(p, c):
    n = 0
    pv = {r for r in p.dst if isv(r)}
    ps = {r for r in p.dst if iss(r)}
    if p.kind == 'valu':
        if c.kind == 'valu':
            if c.dpp and pv & c.src: n = max(n, 2)
            if c.base in ('v_readlane_b32', 'v_readfirstlane_b32') and pv & c.src: n = max(n, 1)
            if c.base in ('v_permlane32_swap_b32', 'v_permlane16_swap_b32') and pv & c.src: n = max(n, 2)
            if ps & c.src:
                n = max(n, 2)
                if c.base in ('v_readlane_b32', 'v_writelane_b32') and ps & regs_of(c.ops[2]): n = max(n, 4)
            if p.base in TRANS and c.base not in TRANS and pv & c.src: n = max(n, 1)
            if p.base in TRANS and c.base in TRANS and pv & c.src: n = max(n, 1)
            if 'exec' in p.dst: n = max(n, 5 if c.dpp else 4)
        if c.kind == 'mfma':
            if pv & c.src: n = max(n, 2)
            if 'exec' in p.dst: n = max(n, 4)
        if c.kind == 'vmem' and ps & c.src: n = max(n, 5)
        if c.kind == 'salu' and ps & c.src: n = max(n, 1)
    if p.kind == 'mfma':
        big = {4: 8, 8: 12}[p.passes]; part = {4: 6, 8: 10}[p.passes]; war = {4: 3, 8: 7}[p.passes]
        if c.kind == 'mfma':
            if pv & c.srcab: n = max(n, big)
            if pv & c.srcc and not (c.srcc == pv and c.passes == p.passes): n = max(n, part)
            if pv & c.dst and not (c.dst == pv): n = max(n, part)
            if pv & c.dst and c.dst == pv and not c.srcc: n = max(n, part)
        elif c.kind in ('valu', 'vmem', 'ds'):
            if pv & (c.src | c.dst): n = max(n, big)
            if c.kind == 'valu' and p.srcc & c.dst: n = max(n, war)
    if p.kind == 'salu' and 'm0' in p.dst and c.kind == 'vmem' and getattr(c, 'lds', False): n = max(n, 1)
    if p.kind == 'vmem' and getattr(p, 'wide', False) and p.sdata:
        if c.kind == 'valu' and p.sdata & c.dst: n = max(n, 2)
        elif c.kind in ('vmem', 'ds', 'mfma') and p.sdata & c.dst: n = max(n, 1)
    return n

class Prog:
    def __init__(self):
        self.L = []
    def __call__(self, text):
        for line in text.split('\n'):
            if line.strip(): self.L.append(Ins(line.strip()))
    def fix(self, window=24):
        out = []
        for c in self.L:
            if c.kind not in ('label', 'directive'):
                req = 0; dist = 0
                for p in reversed(out):
                    if p.kind in ('label', 'directive'): continue
                    if p.op in ('s_branch', 's_endpgm'): break
                    r = need(p, c) - dist
                    req = max(req, r)
                    dist += p.states()
                    if dist >= window: break
                if req > 0:
                    out.append(Ins(f's_nop {req-1}'))
            out.append(c)
        self.L = out
        labels = {i.label: k for k, i in enumerate(out) if i.label}
        probs = []
        for k, b in enumerate(out):
            if b.op.startswith('s_cbranch') or b.op == 's_branch':
                tgt = b.ops[0]
                if tgt not in labels: continue
                j = labels[tgt]; d0 = 0
                heads = []
                while j < len(out) and d0 < window:
                    if out[j].kind not in ('label', 'directive'):
                        heads.append((out[j], d0)); d0 += out[j].states()
                        if out[j].op in ('s_branch', 's_endpgm'): break
                    j += 1
                dist = 1
                for p in reversed(out[:k]):
                    if p.kind in ('label', 'directive'): continue
                    if p.op in ('s_branch', 's_endpgm'): break
                    for c, d in heads:
                        if need(p, c) > dist + d: probs.append((p.text, b.text, c.text, need(p, c), dist + d))
                    dist += p.states()
                    if dist >= window: break
        return probs
    def text(self):
        return '\n'.join(('' if i.kind == 'label' else '    ') + i.text for i in self.L)
```

```python
import sys, struct
from asmdsl import Prog

NAME = 'adaLN_cond__mha_block_cached__glu_gated_swiglu__decode'

def f2u(x): return struct.unpack('<I', struct.pack('<f', x))[0]
LOG2E = hex(f2u(1.4426950408889634))
SCALE = hex(f2u(128 ** -0.5))
EPS = hex(f2u(1e-5))

X1, X2, X3, X4 = 0x1000, 0x21000, 0x61000, 0x62000
XA, XB, XC, XD = 0x82000, 0xC2000, 0xE2000, 0xE3000
DIAG = 0x180000
WS_BYTES = 0x200000
L_P, L_OP, L_Q, L_FLAG = 0x20000, 0x20800, 0x21000, 0x21100
L_ST, L_U = 0x0, 0x1000
LDS_BYTES = 0x21200
NM = 43
TAGX = hex(sum(1 << (a*4+b*2+c) for a in (0,1) for b in (0,1) for c in (0,1) if (a ^ b) | c))

class Cfg:
    depth = 8
    diag = False
    kpol = 'nt'
    vpol = 'nt'
    wpol = 'nt'
    sleep1 = 0
    sleep2 = 0
    spin = 1 << 15

def v(a, n=1): return f'v{a}' if n == 1 else f'v[{a}:{a+n-1}]'
def s(a, n=1): return f's{a}' if n == 1 else f's[{a}:{a+n-1}]'

sB, sW = 2, 3
sKP, sVP = 4, 6
SRD_K, SRD_V, SRD_WS, SRD_A, SRD_B, SRD_C = 8, 12, 16, 20, 24, 28
sH, sJ, sX, sKK = 36, 37, 38, 39
sWSP = 40
sTAG, sIM, sR = 42, 43, 44
sT0, sT1, sT2 = 45, 46, 47
pWQ, pWO, pW1, pW3, pW2, pC, pWM, pX, pOUT = 48, 50, 54, 56, 58, 60, 62, 64, 66
sSPIN = 68
sO0, sO1, sO2, sO3 = 69, 70, 71, 72
sMASK = 74
sG = 76
sDIAG = 84
vL = 0
vT = 1
vM = 4

def gen(cfg=Cfg):
    P = Prog()
    D = cfg.depth
    stamps = {}
    def stamp(name):
        if cfg.diag and name in cfg.diag:
            grp = name.split('_')[0]
            same = [n for n in cfg.diag if n.split('_')[0] == grp]
            if name == 'start': i = 0
            elif grp == 'M': i = 8 - same.index(name)
            else: i = 1 + same.index(name)
            assert 0 <= i <= 8
            stamps[name] = i
            P(f's_memrealtime {s(sDIAG + 2*i, 2)}')
    def srd(r, ptr, nbytes):
        P(f's_mov_b32 {s(r)}, {s(ptr)}\ns_mov_b32 {s(r+1)}, {s(ptr+1)}\ns_mov_b32 {s(r+2)}, {hex(nbytes)}\ns_mov_b32 {s(r+3)}, 0x20000')
    def S(r): return s(r, 4)
    def setexec(mask):
        lo, hi = mask & 0xffffffff, mask >> 32
        if mask == (1 << 64) - 1: P('s_mov_b64 exec, -1')
        else: P(f's_mov_b32 exec_lo, {hex(lo)}\ns_mov_b32 exec_hi, {hex(hi)}')
    uid = [0]
    def lab(p):
        uid[0] += 1; return f'L_{p}{uid[0]}'
    def tagcheck_loop(issue, tagregs, name):
        top = lab(name)
        P(f's_mov_b32 {s(sSPIN)}, 0')
        P(f'{top}:')
        issue()
        P(f's_add_u32 {s(sSPIN)}, {s(sSPIN)}, 1\ns_cmp_gt_u32 {s(sSPIN)}, {cfg.spin}\ns_cbranch_scc1 L_END')
        P('s_waitcnt vmcnt(0)')
        P(f'v_xor_b32 {v(vT)}, {s(sTAG)}, {v(tagregs[0])}')
        if len(tagregs) > 1: P(f'v_xor_b32 {v(vT+1)}, {s(sTAG)}, {v(tagregs[1])}')
        for k, r in enumerate(tagregs[2:]):
            P(f'v_bitop3_b32 {v(vT + (k & 1))}, {v(r)}, {s(sTAG)}, {v(vT + (k & 1))} bitop3:{TAGX}')
        if len(tagregs) > 1: P(f'v_or_b32 {v(vT)}, {v(vT)}, {v(vT+1)}')
        P(f'v_cmp_ne_u32 vcc, 0, {v(vT)}')
        P(f's_cbranch_vccnz {top}')
    def afrag(dst, src, dpp=''):
        for w in range(4):
            if dpp: P(f'v_and_b32_dpp {v(dst+w)}, {v(src)}, {v(vM+w)} {dpp} row_mask:0xf bank_mask:0xf')
            else: P(f'v_and_b32 {v(dst+w)}, {v(src)}, {v(vM+w)}')
    def mfma(d, a, b, first=False):
        P(f'v_mfma_f32_16x16x32_bf16 {v(d,4)}, {v(a,4)}, {v(b,4)}, {"0" if first else v(d,4)}')
    def chain(d, n, bregs, srcs, areg):
        afrag(areg, *srcs[0])
        for i in range(n):
            if i + 1 < n: afrag(areg + 4*((i+1) & 1), *srcs[i+1])
            mfma(d, areg + 4*(i & 1), bregs[i], first=(i == 0))
    def finish2(d, t, o):
        for r in range(4): P(f'v_mov_b32 {v(t+r)}, {v(d+r)}')
        for r in range(4): P(f'v_permlane32_swap_b32 {v(d+r)}, {v(t+r)}')
        for r in range(4): P(f'v_add_f32_dpp {v(o+2*r)}, {v(t+r)}, {v(d+r)} row_ror:8 row_mask:0xf bank_mask:0xf')
    def settags(o):
        for r in range(4): P(f'v_mov_b32 {v(o+1+2*r)}, {s(sTAG)}')
    def publish8(o, vaddr, soff, mask):
        setexec(mask)
        P(f'buffer_store_dwordx4 {v(o,4)}, {v(vaddr)}, {S(SRD_WS)}, {s(soff)} offen sc1')
        P(f'buffer_store_dwordx4 {v(o+4,4)}, {v(vaddr)}, {S(SRD_WS)}, {s(soff)} offen offset:16 sc1')
        setexec((1 << 64) - 1)
    def wave_reduce(op, regs):
        for mod in ('quad_perm:[1,0,3,2] row_mask:0xf', 'quad_perm:[2,3,0,1] row_mask:0xf', 'row_ror:4 row_mask:0xf', 'row_ror:8 row_mask:0xf',
                    'row_bcast:15 row_mask:0xa', 'row_bcast:31 row_mask:0xc'):
            for r in regs: P(f'{op}_dpp {v(r)}, {v(r)}, {v(r)} {mod} bank_mask:0xf')
    def unpack(lo, hi, src):
        P(f'v_lshlrev_b32 {v(lo)}, 16, {v(src)}\nv_and_b32 {v(hi)}, 0xffff0000, {v(src)}')
    def silu(r, t):
        P(f'v_mul_f32 {v(t)}, {hex(f2u(-1.4426950408889634))}, {v(r)}\nv_exp_f32 {v(t)}, {v(t)}\nv_add_f32 {v(t)}, 1.0, {v(t)}\nv_rcp_f32 {v(t)}, {v(t)}\nv_mul_f32 {v(r)}, {v(r)}, {v(t)}')
    def silu_multi(rs, ts):
        c = hex(f2u(-1.4426950408889634))
        for r, t in zip(rs, ts): P(f'v_mul_f32 {v(t)}, {c}, {v(r)}')
        for r, t in zip(rs, ts): P(f'v_exp_f32 {v(t)}, {v(t)}')
        for r, t in zip(rs, ts): P(f'v_add_f32 {v(t)}, 1.0, {v(t)}')
        for r, t in zip(rs, ts): P(f'v_rcp_f32 {v(t)}, {v(t)}')
        for r, t in zip(rs, ts): P(f'v_mul_f32 {v(r)}, {v(r)}, {v(t)}')

    P(f's_cmp_ge_u32 {s(sB)}, 256\ns_cbranch_scc1 L_END')
    if cfg.diag:
        for i in range(9): P(f's_mov_b32 {s(sDIAG+2*i)}, 0')
    stamp('start')
    P(f's_load_dwordx4 {s(sKP,4)}, s[0:1], 8')
    P(f's_load_dwordx2 {s(sWSP,2)}, s[0:1], 104')
    P(f's_load_dwordx16 {s(pWQ,16)}, s[0:1], 24')
    P(f's_load_dwordx2 {s(pX,2)}, s[0:1], 0')
    P(f's_load_dwordx2 {s(pOUT,2)}, s[0:1], 88')
    P(f'v_lshrrev_b32 {v(vT)}, 6, v0\nv_and_b32 {v(vL)}, 63, v0')
    P(f'v_readfirstlane_b32 {s(sW)}, {v(vT)}')
    P(f'v_and_b32 {v(vT)}, 3, {v(vL)}\nv_lshlrev_b32 {v(vT)}, 2, {v(vT)}\nv_add_u32 {v(vT)}, {hex(L_FLAG)}, {v(vT)}\nv_mov_b32 {v(vT+1)}, 0')
    P(f'ds_write_b32 {v(vT)}, {v(vT+1)}')
    P(f'v_and_b32 {v(vT)}, 1, {v(vL)}\nv_lshlrev_b32 {v(vT)}, 4, {v(vT)}\nv_mov_b32 {v(vT+1)}, 0xffff\nv_lshlrev_b32 {v(vT+1)}, {v(vT)}, {v(vT+1)}')
    P(f'v_bfe_u32 {v(vT)}, {v(vL)}, 1, 2')
    for w in range(4):
        P(f'v_cmp_eq_u32 {s(sMASK,2)}, {w}, {v(vT)}\nv_cndmask_b32 {v(vM+w)}, 0, {v(vT+1)}, {s(sMASK,2)}')
    P(f's_and_b32 {s(sH)}, {s(sB)}, 31\ns_lshr_b32 {s(sJ)}, {s(sB)}, 5\ns_and_b32 {s(sX)}, {s(sB)}, 7\ns_lshr_b32 {s(sKK)}, {s(sB)}, 3')
    vKA, vVA = 8, 12
    P(f'v_lshrrev_b32 {v(vT)}, 4, {v(vL)}\nv_and_b32 {v(vT+1)}, 15, {v(vL)}')
    P(f'v_lshlrev_b32 {v(vVA)}, 10, {v(vT)}\nv_lshl_add_u32 {v(vVA)}, {v(vT+1)}, 4, {v(vVA)}')
    P(f'v_xor_b32 {v(vT+1)}, {v(vT+1)}, {v(vT)}\nv_lshlrev_b32 {v(vT+1)}, 4, {v(vT+1)}\nv_lshl_add_u32 {v(vKA)}, {v(vT)}, 8, {v(vT+1)}')
    for i in range(1, 4): P(f'v_xor_b32 {v(vKA+i)}, {64*i}, {v(vKA)}')
    P(f's_lshl_b32 {s(sO0)}, {s(sH)}, 20\ns_lshl_b32 {s(sT0)}, {s(sJ)}, 2\ns_add_u32 {s(sT0)}, {s(sT0)}, {s(sW)}\ns_lshl_b32 {s(sT0)}, {s(sT0)}, 12\ns_add_u32 {s(sO0)}, {s(sO0)}, {s(sT0)}')
    P('s_waitcnt lgkmcnt(0)')
    P('s_barrier')
    P(f's_load_dword {s(sTAG)}, {s(sWSP,2)}, 0')
    srd(SRD_WS, sWSP, WS_BYTES)
    P(f's_mul_i32 {s(sIM)}, {s(sX)}, 6\ns_add_u32 {s(sIM)}, {s(sIM)}, {s(sKK)}\ns_cmp_lt_u32 {s(sKK)}, 6\ns_cselect_b32 {s(sIM)}, {s(sIM)}, 255')
    P(f's_lshl_b32 {s(sR)}, {s(sX)}, 3\ns_add_u32 {s(sR)}, {s(sR)}, {s(sKK)}\ns_sub_u32 {s(sR)}, {s(sR)}, 8\ns_sub_u32 {s(sT0)}, {s(sKK)}, 8\ns_cmp_lt_u32 {s(sT0)}, 8\ns_cselect_b32 {s(sR)}, {s(sR)}, 255')
    P(f's_cmp_ge_u32 {s(sW)}, 4\ns_cbranch_scc1 L_CW')

    srd(SRD_K, sKP, 32 << 20); srd(SRD_V, sVP, 32 << 20)
    P(f's_lshl_b32 {s(sT0)}, {s(sW)}, 15\ns_mov_b32 m0, {s(sT0)}\ns_mov_b32 {s(sO1)}, {s(sO0)}\ns_mov_b32 {s(sT1)}, 0')
    P('L_KLOOP:')
    for i in range(4):
        P(f's_waitcnt vmcnt({D-1})')
        P(f'buffer_load_dwordx4 {v(vKA+i)}, {S(SRD_K)}, {s(sO1)} offen offset:{1024*i} {cfg.kpol} lds')
    P(f's_add_u32 {s(sO1)}, {s(sO1)}, 0x20000\ns_add_u32 {s(sT0)}, {s(sT0)}, 4096\ns_mov_b32 m0, {s(sT0)}\ns_add_u32 {s(sT1)}, {s(sT1)}, 1\ns_cmp_lt_u32 {s(sT1)}, 8\ns_cbranch_scc1 L_KLOOP')
    stamp('L_kissued')
    vV = 128
    P(f's_lshl_b32 {s(sT0)}, {s(sW)}, 2\ns_add_u32 {s(sT0)}, {s(sT0)}, {hex(L_FLAG)}\nv_mov_b32 {v(vT)}, {s(sT0)}\nv_mov_b32 {v(vT+1)}, 1')
    for idx in range(32):
        t, i = idx >> 2, idx & 3
        P(f's_waitcnt vmcnt({D-1})')
        if idx == D - 1:
            P(f'ds_write_b32 {v(vT)}, {v(vT+1)}')
            stamp('L_klanded')
        P(f'buffer_load_dwordx4 {v(vV+4*idx,4)}, {v(vVA)}, {S(SRD_V)}, {s(sO0)} offen offset:{256*i} {cfg.vpol}')
        if i == 3 and t < 7: P(f's_add_u32 {s(sO0)}, {s(sO0)}, 0x20000')
    stamp('L_vissued')
    vPA, vP, vA, vD = 13, 16, 48, 56
    P(f'v_lshrrev_b32 {v(vT)}, 4, {v(vL)}\nv_lshlrev_b32 {v(vT)}, 4, {v(vT)}\ns_lshl_b32 {s(sT0)}, {s(sW)}, 9\ns_add_u32 {s(sT0)}, {s(sT0)}, {hex(L_P)}\nv_add_u32 {v(vPA)}, {s(sT0)}, {v(vT)}')
    vOA = 14
    P(f'v_and_b32 {v(vT+1)}, 15, {v(vL)}\nv_lshl_add_u32 {v(vT)}, {v(vT+1)}, 5, {v(vT)}\ns_add_u32 {s(sT0)}, {s(sT0)}, {hex(L_OP - L_P)}\nv_add_u32 {v(vOA)}, {s(sT0)}, {v(vT)}')
    P('s_waitcnt lgkmcnt(0)')
    P(f's_add_u32 {s(sTAG)}, {s(sTAG)}, 1')
    P('s_barrier')
    stamp('L_b1')
    for t in range(8): P(f'ds_read_b128 {v(vP+4*t,4)}, {v(vPA)} offset:{64*t}')
    P('s_waitcnt lgkmcnt(7)')
    afrag(vA, vP)
    for idx in range(32):
        if idx + 1 < 32:
            if (idx + 1) % 4 == 0: P(f's_waitcnt lgkmcnt({7 - (idx+1)//4})')
            afrag(vA + 4*((idx+1) & 1), vP + idx + 1)
        P(f's_waitcnt vmcnt({31-idx})')
        mfma(vD, vA + 4*(idx & 1), vV + 4*idx, first=(idx == 0))
    stamp('L_pv')
    setexec(0xffffffff)
    P(f'ds_write_b128 {v(vOA)}, {v(vD,4)}')
    setexec((1 << 64) - 1)
    P('s_waitcnt lgkmcnt(0)')
    P('s_barrier')
    P(f's_cmp_lt_u32 {s(sIM)}, {NM}\ns_cbranch_scc1 L_MLP')
    P('s_branch L_END')

    P('L_CW:')
    P(f's_cmp_eq_u32 {s(sW)}, 4\ns_cbranch_scc0 L_C123')
    vG, vC8 = 8, 9
    vCc, vT1, vXF, vXS, vD0, vTT, vO, vAA = 10, 12, 28, 32, 36, 40, 44, 52
    vAD = 60
    vWQ, vGA = 64, 128
    srd(SRD_A, pC, 1024); srd(SRD_B, pWM, 512*6144); srd(SRD_C, pWQ, 4 << 20)
    P(f'v_lshrrev_b32 {v(vG)}, 3, {v(vL)}\nv_and_b32 {v(vC8)}, 7, {v(vL)}')
    P(f's_lshr_b32 {s(sT0)}, {s(sKK)}, 1\ns_and_b32 {s(sT1)}, {s(sKK)}, 1')
    P(f'v_lshlrev_b32 {v(vAD)}, 3, {v(vG)}\ns_lshl_b32 {s(sO0)}, {s(sT0)}, 6')
    P(f'buffer_load_dwordx2 {v(vCc,2)}, {v(vAD)}, {S(SRD_A)}, {s(sO0)} offen')
    P(f'v_mul_u32_u24 {v(vAD+1)}, 24576, {v(vG)}\nv_lshl_add_u32 {v(vAD+1)}, {v(vC8)}, 4, {v(vAD+1)}')
    P(f's_mul_i32 {s(sO0)}, {s(sT0)}, {32*6144}\ns_lshl_b32 {s(sT1)}, {s(sT1)}, 10\ns_add_u32 {s(sO0)}, {s(sO0)}, {s(sT1)}\ns_lshl_b32 {s(sT1)}, {s(sX)}, 7\ns_add_u32 {s(sO0)}, {s(sO0)}, {s(sT1)}')
    for i in range(4):
        P(f'buffer_load_dwordx4 {v(vT1+4*i,4)}, {v(vAD+1)}, {S(SRD_B)}, {s(sO0)} offen {cfg.wpol}')
        if i < 3: P(f's_add_u32 {s(sO0)}, {s(sO0)}, 6144')
    srd(SRD_A, pX, 1024)
    P(f'v_lshlrev_b32 {v(vAD)}, 4, {v(vL)}')
    P(f'buffer_load_dwordx4 {v(vXF,4)}, {v(vAD)}, {S(SRD_A)}, 0 offen')
    P(f'v_lshrrev_b32 {v(vAD+2)}, 4, {v(vL)}\nv_and_b32 {v(vAD+3)}, 1, {v(vL)}\nv_lshlrev_b32 {v(vAD+3)}, 2, {v(vAD+3)}\nv_lshl_add_u32 {v(vAD+3)}, {v(vAD+2)}, 3, {v(vAD+3)}\ns_lshl_b32 {s(sO0)}, {s(sJ)}, 7')
    for g in range(4): P(f'buffer_load_dword {v(vXS+g)}, {v(vAD+3)}, {S(SRD_A)}, {s(sO0)} offen offset:{32*g}')
    P(f'v_lshlrev_b32 {v(vAD+2)}, 15, {v(vAD+2)}\nv_and_b32 {v(vAD+3)}, 15, {v(vL)}\nv_lshl_add_u32 {v(vAD+2)}, {v(vAD+3)}, 4, {v(vAD+2)}')
    P(f's_lshl_b32 {s(sO0)}, {s(sJ)}, 19\ns_lshl_b32 {s(sT0)}, {s(sH)}, 8\ns_add_u32 {s(sO0)}, {s(sO0)}, {s(sT0)}')
    for g in range(4):
        for k in range(4):
            P(f'buffer_load_dwordx4 {v(vWQ+16*g+4*k,4)}, {v(vAD+2)}, {S(SRD_C)}, {s(sO0)} offen {cfg.wpol}')
            if (g, k) != (3, 3): P(f's_add_u32 {s(sO0)}, {s(sO0)}, {8192 if k < 3 else 8192*13}')
    P('s_waitcnt lgkmcnt(0)')
    P(f's_add_u32 {s(sTAG)}, {s(sTAG)}, 1')
    settags(vO)
    vPUB = 61
    P(f'v_and_b32 {v(vT)}, 15, {v(vL)}\nv_lshlrev_b32 {v(vT)}, 6, {v(vT)}\nv_lshrrev_b32 {v(vPUB)}, 4, {v(vL)}')
    P('s_waitcnt vmcnt(25)')
    P(f'v_lshl_add_u32 {v(vPUB)}, {v(vPUB)}, 5, {v(vT)}')
    vS = 192
    unpack(vS, vS+1, vCc); unpack(vS+2, vS+3, vCc+1)
    silu_multi([vS, vS+1, vS+2, vS+3], [vTT, vTT+1, vTT+2, vTT+3])
    for i in range(4): P(f'v_cvt_pk_bf16_f32 {v(vS+i)}, {v(vS+i)}, {v(vS+i)}')
    P('s_waitcnt vmcnt(21)')
    stamp('C0_t1')
    chain(vD0, 4, [vT1+4*i for i in range(4)], [(vS+i, '') for i in range(4)], vAA)
    finish2(vD0, vTT, vO)
    P(f's_lshl_b32 {s(sO0)}, {s(sX)}, 5\ns_add_u32 {s(sO0)}, {s(sO0)}, {s(sKK)}\ns_lshl_b32 {s(sO0)}, {s(sO0)}, 9\ns_add_u32 {s(sO0)}, {s(sO0)}, {hex(X1)}')
    publish8(vO, vPUB, sO0, 0x00ff00ff)
    stamp('C0_x1pub')
    vx = 12
    P('s_waitcnt vmcnt(18)')
    for k in range(4): unpack(vx+2*k, vx+2*k+1, vXF+k)
    P(f'v_add_f32 {v(20)}, {v(vx)}, {v(vx+1)}\nv_add_f32 {v(21)}, {v(vx+2)}, {v(vx+3)}\nv_add_f32 {v(22)}, {v(vx+4)}, {v(vx+5)}\nv_add_f32 {v(23)}, {v(vx+6)}, {v(vx+7)}')
    P(f'v_add_f32 {v(20)}, {v(20)}, {v(21)}\nv_add_f32 {v(22)}, {v(22)}, {v(23)}\nv_add_f32 {v(20)}, {v(20)}, {v(22)}')
    wave_reduce('v_add_f32', [20])
    P(f'v_mul_f32 {v(20)}, {hex(f2u(1/512))}, {v(20)}\nv_readlane_b32 {s(sT0)}, {v(20)}, 63')
    for k in range(8): P(f'v_subrev_f32 {v(vx+k)}, {s(sT0)}, {v(vx+k)}')
    P(f'v_mul_f32 {v(21)}, {v(vx)}, {v(vx)}')
    for k in range(1, 8): P(f'v_fmac_f32 {v(21)}, {v(vx+k)}, {v(vx+k)}')
    wave_reduce('v_add_f32', [21])
    P(f'v_mul_f32 {v(21)}, {hex(f2u(1/512))}, {v(21)}')
    P(f'v_cvt_pk_bf16_f32 {v(22)}, {v(20)}, {v(21)}')
    P(f'v_and_b32 {v(21)}, 0xffff0000, {v(22)}\nv_lshlrev_b32 {v(20)}, 16, {v(22)}\nv_add_f32 {v(21)}, {EPS}, {v(21)}')
    P(f'v_cvt_pk_bf16_f32 {v(21)}, {v(21)}, {v(21)}\nv_and_b32 {v(21)}, 0xffff0000, {v(21)}\nv_sqrt_f32 {v(21)}, {v(21)}')
    P(f'v_cvt_pk_bf16_f32 {v(21)}, {v(21)}, {v(21)}\nv_and_b32 {v(21)}, 0xffff0000, {v(21)}\nv_rcp_f32 {v(22)}, {v(21)}')
    P(f'v_readlane_b32 {s(sT0)}, {v(20)}, 63\nv_readlane_b32 {s(sT1)}, {v(21)}, 63\nv_readlane_b32 {s(sT2)}, {v(22)}, 63')
    vLN = 12
    P('s_waitcnt vmcnt(18)')
    for g in range(4):
        unpack(vLN+2*g, vLN+2*g+1, vXS+g)
    for k in range(8): P(f'v_subrev_f32 {v(vLN+k)}, {s(sT0)}, {v(vLN+k)}')
    for g in range(4): P(f'v_cvt_pk_bf16_f32 {v(20+g)}, {v(vLN+2*g)}, {v(vLN+2*g+1)}')
    for g in range(4): unpack(vLN+2*g, vLN+2*g+1, 20+g)
    for k in range(8): P(f'v_mul_f32 {v(20+k)}, {s(sT2)}, {v(vLN+k)}')
    for k in range(8): P(f'v_fma_f32 {v(vLN+k)}, -{v(20+k)}, {s(sT1)}, {v(vLN+k)}')
    for k in range(8): P(f'v_fma_f32 {v(vLN+k)}, {v(vLN+k)}, {s(sT2)}, {v(20+k)}')
    for g in range(4): P(f'v_cvt_pk_bf16_f32 {v(20+g)}, {v(vLN+2*g)}, {v(vLN+2*g+1)}')
    for g in range(4): unpack(vLN+2*g, vLN+2*g+1, 20+g)
    P(f'v_bfe_u32 {v(vAD)}, {v(vL)}, 1, 3\nv_lshlrev_b32 {v(vAD)}, 9, {v(vAD)}\nv_lshrrev_b32 {v(vT)}, 4, {v(vL)}\nv_lshl_add_u32 {v(vAD)}, {v(vT)}, 5, {v(vAD)}\nv_and_b32 {v(vT)}, 1, {v(vL)}\nv_lshl_add_u32 {v(vAD)}, {v(vT)}, 4, {v(vAD)}')
    P(f's_lshl_b32 {s(sO0)}, {s(sJ)}, 14\ns_add_u32 {s(sO0)}, {s(sO0)}, {hex(X1)}\ns_add_u32 {s(sO1)}, {s(sO0)}, 4096\ns_add_u32 {s(sO2)}, {s(sO0)}, 8192\ns_add_u32 {s(sO3)}, {s(sO0)}, 12288')
    if cfg.sleep1: P(f's_sleep {cfg.sleep1}')
    def issue():
        for g in range(4):
            for k in range(4):
                P(f'buffer_load_dwordx4 {v(vGA+16*g+4*k,4)}, {v(vAD)}, {S(SRD_WS)}, {s(sO0+k)} offen offset:{128*g} sc1')
    tagcheck_loop(issue, [vGA+4*k+1 for k in range(16)], 'h1')
    stamp('C0_h1')
    vH = 20
    for g in range(4):
        b = vGA + 16*g
        P(f'v_add_f32 {v(b)}, {v(b)}, {v(b+4)}\nv_add_f32 {v(b+2)}, {v(b+2)}, {v(b+6)}\nv_add_f32 {v(b+8)}, {v(b+8)}, {v(b+12)}\nv_add_f32 {v(b+10)}, {v(b+10)}, {v(b+14)}')
        P(f'v_add_f32 {v(b)}, {v(b)}, {v(b+8)}\nv_add_f32 {v(b+2)}, {v(b+2)}, {v(b+10)}')
    for mod in ('row_ror:4', 'row_ror:8'):
        for g in range(4):
            b = vGA + 16*g
            for e in (0, 2): P(f'v_add_f32_dpp {v(b+e)}, {v(b+e)}, {v(b+e)} {mod} row_mask:0xf bank_mask:0xf')
    for g in range(4):
        b = vGA + 16*g
        P(f'v_cvt_pk_bf16_f32 {v(b+1)}, {v(b)}, {v(b+2)}')
    for g in range(4):
        b = vGA + 16*g
        P(f'v_mov_b32_dpp {v(b+4)}, {v(b+1)} quad_perm:[0,1,0,1] row_mask:0xf bank_mask:0xf')
        P(f'v_mov_b32_dpp {v(b+5)}, {v(b+1)} quad_perm:[2,3,2,3] row_mask:0xf bank_mask:0xf')
    for g in range(4):
        b = vGA + 16*g
        unpack(b+6, b+7, b+5)
        P(f'v_add_f32 {v(b+6)}, 1.0, {v(b+6)}\nv_add_f32 {v(b+7)}, 1.0, {v(b+7)}\nv_cvt_pk_bf16_f32 {v(b+5)}, {v(b+6)}, {v(b+7)}')
        unpack(b+6, b+7, b+5)
        P(f'v_mul_f32 {v(b+6)}, {v(b+6)}, {v(vLN+2*g)}\nv_mul_f32 {v(b+7)}, {v(b+7)}, {v(vLN+2*g+1)}\nv_cvt_pk_bf16_f32 {v(b+5)}, {v(b+6)}, {v(b+7)}')
        unpack(b+6, b+7, b+5); unpack(b+8, b+9, b+4)
        P(f'v_add_f32 {v(b+6)}, {v(b+6)}, {v(b+8)}\nv_add_f32 {v(b+7)}, {v(b+7)}, {v(b+9)}')
        P(f'v_cvt_pk_bf16_f32 {v(vH+2*g)}, {v(b+6)}, {v(b+6)}\nv_cvt_pk_bf16_f32 {v(vH+2*g+1)}, {v(b+7)}, {v(b+7)}')
    srcs = []
    for g in range(4):
        for k in range(4):
            a = k >> 1
            srcs.append((vH + 2*g + (k & 1), f'quad_perm:[{a},{a},{a},{a}]'))
    chain(vD0, 16, [vWQ+4*i for i in range(16)], srcs, vAA)
    P(f's_lshl_b32 {s(sO1)}, {s(sH)}, 13\ns_add_u32 {s(sO1)}, {s(sO1)}, {hex(X2)}\ns_lshl_b32 {s(sO0)}, {s(sJ)}, 10\ns_add_u32 {s(sO0)}, {s(sO0)}, {s(sO1)}')
    for r in range(4): P(f'v_mov_b32 {v(vO+2*r)}, {v(vD0+r)}')
    publish8(vO, vPUB, sO0, 0xffffffff)
    stamp('C0_x2pub')
    P(f'v_lshlrev_b32 {v(vAD)}, 4, {v(vL)}\ns_add_u32 {s(sO2)}, {s(sO1)}, 4096')
    vKR = 8
    P(f'v_and_b32 {v(vT)}, 15, {v(vL)}\nv_lshrrev_b32 {v(vT+1)}, 4, {v(vL)}\nv_xor_b32 {v(vT+1)}, {v(vT+1)}, {v(vT)}\nv_lshlrev_b32 {v(vT+1)}, 4, {v(vT+1)}\nv_lshl_add_u32 {v(vKR)}, {v(vT)}, 8, {v(vT+1)}')
    for q in range(1, 4): P(f'v_xor_b32 {v(vKR+q)}, {64*q}, {v(vKR)}')
    if cfg.sleep2: P(f's_sleep {cfg.sleep2}')
    def gather8(base_lo, base_hi):
        def issue():
            for k in range(8):
                P(f'buffer_load_dwordx4 {v(vGA+4*k,4)}, {v(vAD)}, {S(SRD_WS)}, {s(base_lo if k < 4 else base_hi)} offen offset:{1024*(k & 3)} sc1')
        return issue
    def sum8():
        for e in (0, 2):
            for a, b in ((0, 1), (2, 3), (4, 5), (6, 7), (0, 2), (4, 6), (0, 4)):
                P(f'v_add_f32 {v(vGA+4*a+e)}, {v(vGA+4*a+e)}, {v(vGA+4*b+e)}')
    tagcheck_loop(gather8(sO1, sO2), [vGA+4*k+1 for k in range(8)], 'q')
    stamp('C0_q')
    sum8()
    P(f'v_cvt_pk_bf16_f32 {v(vT)}, {v(vGA)}, {v(vGA+2)}\nv_lshlrev_b32 {v(vT+1)}, 2, {v(vL)}\nv_add_u32 {v(vT+1)}, {hex(L_Q)}, {v(vT+1)}')
    P(f'ds_write_b32 {v(vT+1)}, {v(vT)}')
    vQ = 12
    P(f'v_lshrrev_b32 {v(vT+2)}, 4, {v(vL)}\nv_lshlrev_b32 {v(vT+2)}, 4, {v(vT+2)}\nv_add_u32 {v(vT+2)}, {hex(L_Q)}, {v(vT+2)}')
    P('s_waitcnt lgkmcnt(0)')
    for q in range(4): P(f'ds_read_b128 {v(vQ+4*q,4)}, {v(vT+2)} offset:{64*q}')
    P(f'v_mov_b32 {v(vT+2)}, {hex(L_FLAG)}\ns_mov_b32 {s(sSPIN)}, 0')
    P('L_KW:')
    P(f'ds_read_b128 {v(28,4)}, {v(vT+2)}')
    P(f's_add_u32 {s(sSPIN)}, {s(sSPIN)}, 1\ns_cmp_gt_u32 {s(sSPIN)}, {cfg.spin*8}\ns_cbranch_scc1 L_END')
    P('s_waitcnt lgkmcnt(0)')
    P(f'v_and_b32 {v(28)}, {v(28)}, {v(29)}\nv_and_b32 {v(30)}, {v(30)}, {v(31)}\nv_and_b32 {v(28)}, {v(28)}, {v(30)}\nv_cmp_eq_u32 vcc, 0, {v(28)}\ns_cbranch_vccnz L_KW')
    stamp('C0_kready')
    vKB, vDQ, vS8 = 128, 28, 36
    def kread(t):
        for q in range(4): P(f'ds_read_b128 {v(vKB+16*(t & 1)+4*q,4)}, {v(vKR+q)} offset:{4096*(t & 15)}')
    P(f's_mov_b32 {s(sMASK)}, 0x00010001\ns_mov_b32 {s(sMASK+1)}, 0x00010001')
    kread(0)
    for t in range(32):
        if t == 15:
            for q in range(4): P(f'v_add_u32 {v(vKR+q)}, 0x10000, {v(vKR+q)}')
        if t + 1 < 32:
            kread(t + 1); P('s_waitcnt lgkmcnt(4)')
        else: P('s_waitcnt lgkmcnt(0)')
        for q in range(4): mfma(vDQ + 4*(t & 1), vKB + 16*(t & 1) + 4*q, vQ + 4*q, first=(q == 0))
        if t >= 1:
            u = t - 1
            for r in range(4): P(f'v_cndmask_b32 {v(vS8+4*(u >> 4)+r)}, {v(vS8+4*(u >> 4)+r)}, {v(vDQ+4*(u & 1)+r)}, {s(sMASK,2)}')
            if (u & 15) == 15: P(f's_mov_b32 {s(sMASK)}, 0x00010001\ns_mov_b32 {s(sMASK+1)}, 0x00010001')
            else: P(f's_lshl_b64 {s(sMASK,2)}, {s(sMASK,2)}, 1')
    for r in range(4): P(f'v_cndmask_b32 {v(vS8+4+r)}, {v(vS8+4+r)}, {v(vDQ+4+r)}, {s(sMASK,2)}')
    stamp('C0_qk')
    vE = 200
    for k in range(4): P(f'v_cvt_pk_bf16_f32 {v(vE+k)}, {v(vS8+2*k)}, {v(vS8+2*k+1)}')
    for k in range(4): unpack(vS8+2*k, vS8+2*k+1, vE+k)
    for k in range(8): P(f'v_mul_f32 {v(vS8+k)}, {SCALE}, {v(vS8+k)}')
    for k in range(4): P(f'v_cvt_pk_bf16_f32 {v(vE+k)}, {v(vS8+2*k)}, {v(vS8+2*k+1)}')
    for k in range(4): unpack(vS8+2*k, vS8+2*k+1, vE+k)
    vML = 52
    P(f'v_max3_f32 {v(vML)}, {v(vS8)}, {v(vS8+1)}, {v(vS8+2)}\nv_max3_f32 {v(vML+1)}, {v(vS8+3)}, {v(vS8+4)}, {v(vS8+5)}\nv_max3_f32 {v(vML)}, {v(vML)}, {v(vS8+6)}, {v(vS8+7)}\nv_max_f32 {v(vML)}, {v(vML)}, {v(vML+1)}')
    wave_reduce('v_max_f32', [vML])
    P(f'v_readlane_b32 {s(sT0)}, {v(vML)}, 63\nv_mov_b32 {v(vML+2)}, {s(sTAG)}\nv_mov_b32 {v(vML+3)}, {s(sTAG)}')
    def exps(dst):
        for k in range(8): P(f'v_subrev_f32 {v(dst+k)}, {s(sT0)}, {v(vS8+k)}')
        for k in range(8): P(f'v_mul_f32 {v(dst+k)}, {LOG2E}, {v(dst+k)}')
        for k in range(8): P(f'v_exp_f32 {v(dst+k)}, {v(dst+k)}')
    exps(vE)
    for a, b in ((0, 1), (2, 3), (4, 5), (6, 7), (0, 2), (4, 6)): P(f'v_add_f32 {v(vE+a)}, {v(vE+a)}, {v(vE+b)}')
    P(f'v_add_f32 {v(vML+1)}, {v(vE)}, {v(vE+4)}')
    wave_reduce('v_add_f32', [vML+1])
    P(f's_lshl_b32 {s(sO1)}, {s(sH)}, 7\ns_add_u32 {s(sO1)}, {s(sO1)}, {hex(X3)}\ns_lshl_b32 {s(sO0)}, {s(sJ)}, 4\ns_add_u32 {s(sO0)}, {s(sO0)}, {s(sO1)}\nv_mov_b32 {v(vT)}, 0')
    setexec(1 << 63)
    P(f'buffer_store_dwordx4 {v(vML,4)}, {v(vT)}, {S(SRD_WS)}, {s(sO0)} offen sc1')
    setexec((1 << 64) - 1)
    stamp('C0_x3pub')
    sGA = 8
    P(f's_add_u32 {s(sMASK)}, {s(sWSP)}, {s(sO1)}\ns_addc_u32 {s(sMASK+1)}, {s(sWSP+1)}, 0\ns_mov_b32 {s(sSPIN)}, 0')
    gl = [20, 24, 28, 32, 8, 12, 76, 80]
    P('L_MLW:')
    P(f's_load_dwordx16 s[20:35], {s(sMASK,2)}, 0 glc\ns_load_dwordx8 s[8:15], {s(sMASK,2)}, 64 glc\ns_load_dwordx8 s[76:83], {s(sMASK,2)}, 96 glc')
    P(f's_add_u32 {s(sSPIN)}, {s(sSPIN)}, 1\ns_cmp_gt_u32 {s(sSPIN)}, {cfg.spin}\ns_cbranch_scc1 L_END')
    P('s_waitcnt lgkmcnt(0)')
    P(f's_xor_b32 {s(sT0)}, {s(gl[0]+2)}, {s(sTAG)}')
    for g in gl[1:]: P(f's_xor_b32 {s(sT1)}, {s(g+2)}, {s(sTAG)}\ns_or_b32 {s(sT0)}, {s(sT0)}, {s(sT1)}')
    P('s_cbranch_scc1 L_MLW')
    stamp('C0_ml')
    vMx, vLs = 52, 53
    P(f'v_mov_b32 {v(vMx)}, {s(gl[0])}')
    for g in gl[1:]: P(f'v_max_f32 {v(vMx)}, {s(g)}, {v(vMx)}')
    for k, g in enumerate(gl): P(f'v_sub_f32 {v(vE+k)}, {s(g)}, {v(vMx)}')
    for k in range(8): P(f'v_mul_f32 {v(vE+k)}, {LOG2E}, {v(vE+k)}')
    for k in range(8): P(f'v_exp_f32 {v(vE+k)}, {v(vE+k)}')
    P(f'v_mul_f32 {v(vLs)}, {s(gl[0]+1)}, {v(vE)}')
    for k, g in enumerate(gl[1:]): P(f'v_fmac_f32 {v(vLs)}, {s(g+1)}, {v(vE+k+1)}')
    P(f'v_rcp_f32 {v(vLs+1)}, {v(vLs)}\nv_readfirstlane_b32 {s(sT0)}, {v(vMx)}')
    P(f'v_fma_f32 {v(vLs)}, -{v(vLs)}, {v(vLs+1)}, 1.0\nv_fma_f32 {v(vLs)}, {v(vLs)}, {v(vLs+1)}, {v(vLs+1)}')
    exps(vE)
    for k in range(8): P(f'v_mul_f32 {v(vE+k)}, {v(vE+k)}, {v(vLs)}')
    for k in range(8): P(f'v_cvt_pk_bf16_f32 {v(vE+k)}, {v(vE+k)}, {v(vE+k)}')
    P(f'v_and_b32 {v(vT)}, 15, {v(vL)}\nv_lshlrev_b32 {v(vT)}, 6, {v(vT)}\nv_lshrrev_b32 {v(vT+1)}, 4, {v(vL)}\nv_lshl_add_u32 {v(vT)}, {v(vT+1)}, 4, {v(vT)}\nv_add_u32 {v(vT)}, {hex(L_P)}, {v(vT)}')
    P(f'ds_write_b128 {v(vT)}, {v(vE,4)}\nds_write_b128 {v(vT)}, {v(vE+4,4)} offset:1024')
    srd(SRD_A, pWO, 4 << 20)
    P(f'v_lshrrev_b32 {v(vT+1)}, 3, {v(vL)}\nv_lshlrev_b32 {v(vT+1)}, 14, {v(vT+1)}\nv_and_b32 {v(vT+2)}, 7, {v(vL)}\nv_lshl_add_u32 {v(vAD+2)}, {v(vT+2)}, 4, {v(vT+1)}')
    P(f's_lshl_b32 {s(sO0)}, {s(sH)}, 17\ns_lshl_b32 {s(sT0)}, {s(sJ)}, 7\ns_add_u32 {s(sO0)}, {s(sO0)}, {s(sT0)}')
    P('s_waitcnt lgkmcnt(0)')
    stamp('C0_p')
    P('s_barrier')
    vWO = 64
    for i in range(16):
        P(f'buffer_load_dwordx4 {v(vWO+4*i,4)}, {v(vAD+2)}, {S(SRD_A)}, {s(sO0)} offen offset:{1024*(i & 3)} {cfg.wpol}')
        if (i & 3) == 3 and i < 15: P(f's_add_u32 {s(sO0)}, {s(sO0)}, 4096')
    P(f'v_lshrrev_b32 {v(vT)}, 1, {v(vPUB)}\nv_add_u32 {v(vT)}, {hex(L_OP)}, {v(vT)}')
    P(f's_lshl_b32 {s(sO1)}, {s(sH)}, 13\ns_add_u32 {s(sO1)}, {s(sO1)}, {hex(XA)}\ns_lshl_b32 {s(sO0)}, {s(sJ)}, 10\ns_add_u32 {s(sO0)}, {s(sO0)}, {s(sO1)}\ns_add_u32 {s(sO2)}, {s(sO1)}, 4096')
    P(f's_lshl_b32 {s(sO3)}, {s(sJ)}, 5\ns_add_u32 {s(sO3)}, {s(sO3)}, {s(sH)}\ns_lshl_b32 {s(sO3)}, {s(sO3)}, 9\ns_add_u32 {s(sO3)}, {s(sO3)}, {hex(XB)}')
    P('s_barrier')
    stamp('C0_b2')
    for w in range(4): P(f'ds_read_b128 {v(12+4*w,4)}, {v(vT)} offset:{512*w}')
    P('s_waitcnt lgkmcnt(2)')
    for r in range(4): P(f'v_add_f32 {v(12+r)}, {v(12+r)}, {v(16+r)}')
    P('s_waitcnt lgkmcnt(0)')
    for r in range(4): P(f'v_add_f32 {v(20+r)}, {v(20+r)}, {v(24+r)}')
    for r in range(4): P(f'v_add_f32 {v(vO+2*r)}, {v(12+r)}, {v(20+r)}')
    publish8(vO, vPUB, sO0, 0xffffffff)
    stamp('C0_xapub')
    tagcheck_loop(gather8(sO1, sO2), [vGA+4*k+1 for k in range(8)], 'xa')
    stamp('C0_xa')
    sum8()
    vOd = 12
    P(f'v_cvt_pk_bf16_f32 {v(vOd)}, {v(vGA)}, {v(vGA)}\nv_cvt_pk_bf16_f32 {v(vOd+1)}, {v(vGA+2)}, {v(vGA+2)}')
    P(f'v_mov_b32 {v(vOd+2)}, {v(vOd)}\nv_mov_b32 {v(vOd+3)}, {v(vOd+1)}')
    for e in range(2): P(f'v_mov_b32_dpp {v(vOd+2+e)}, {v(vOd+e)} row_shl:4 row_mask:0xf bank_mask:0x5')
    for e in range(2): P(f'v_mov_b32_dpp {v(vOd+e)}, {v(vOd+e)} row_shr:4 row_mask:0xf bank_mask:0xa')
    srcs = []
    for i in range(16):
        u = i >> 1; a = u & 3
        srcs.append((vOd + (2 if u >= 4 else 0) + (i & 1), f'quad_perm:[{a},{a},{a},{a}]'))
    chain(vD0, 16, [vWO+4*i for i in range(16)], srcs, vAA)
    finish2(vD0, vTT, vO)
    publish8(vO, vPUB, sO3, 0x00ff00ff)
    stamp('C0_xbpub')
    P(f's_cmp_lt_u32 {s(sIM)}, {NM}\ns_cbranch_scc1 L_MLP')
    P('s_branch L_END')

    P('L_C123:')
    P(f's_cmp_eq_u32 {s(sW)}, 5\ns_cbranch_scc1 L_C1')
    P(f's_cmp_eq_u32 {s(sW)}, 6\ns_cbranch_scc0 L_C3')
    P(f's_getpc_b64 {s(20,2)}')
    P('L_PCREF:')
    P(f's_sub_u32 s20, s20, L_PCREF-{NAME}_kernel\ns_subb_u32 s21, s21, 0')
    P(f's_lshl_b32 {s(sT0)}, {s(sKK)}, 3\nv_and_b32 {v(vT)}, 7, {v(vL)}\nv_add_u32 {v(vT)}, {s(sT0)}, {v(vT)}\nv_lshlrev_b32 {v(vT)}, 7, {v(vT)}')
    P(f'v_min_u32 {v(vT)}, L_CODE_END-{NAME}_kernel-4, {v(vT)}')
    P(f'global_load_dword {v(240)}, {v(vT)}, s[20:21]')
    P('L_C3:')
    srd(SRD_A, pW1, 512*2752); srd(SRD_B, pW3, 512*2752); srd(SRD_C, pW2, 1376*1024)
    P(f'v_lshrrev_b32 {v(vT)}, 2, {v(vL)}\nv_mul_u32_u24 {v(10)}, 2752, {v(vT)}\nv_and_b32 {v(vT)}, 3, {v(vL)}\nv_lshlrev_b32 {v(vT)}, 7, {v(vT)}\nv_min_u32 {v(vT)}, 380, {v(vT)}\nv_add_u32 {v(10)}, {v(10)}, {v(vT)}')
    P(f's_mul_i32 {s(sO0)}, {s(sKK)}, {16*2752}\ns_mul_i32 {s(sT0)}, {s(sX)}, 384\ns_add_u32 {s(sO0)}, {s(sO0)}, {s(sT0)}')
    P(f'v_lshlrev_b32 {v(11)}, 7, {v(vL)}\ns_mul_i32 {s(sO1)}, {s(sX)}, {192*1024}\ns_mul_i32 {s(sT0)}, {s(sKK)}, 6144\ns_add_u32 {s(sO1)}, {s(sO1)}, {s(sT0)}')
    P('s_waitcnt lgkmcnt(0)')
    P(f's_add_u32 {s(sTAG)}, {s(sTAG)}, 1')
    P('s_barrier')
    P(f's_cmp_eq_u32 {s(sW)}, 6\ns_cbranch_scc0 L_C3B')
    P(f'buffer_load_dword {v(241)}, {v(10)}, {S(SRD_A)}, {s(sO0)} offen {cfg.wpol}')
    P(f'buffer_load_dword {v(242)}, {v(10)}, {S(SRD_B)}, {s(sO0)} offen {cfg.wpol}')
    setexec((1 << 48) - 1)
    P(f'buffer_load_dword {v(243)}, {v(11)}, {S(SRD_C)}, {s(sO1)} offen {cfg.wpol}')
    setexec((1 << 64) - 1)
    P('L_C3B:')
    P('s_barrier')
    P(f's_cmp_lt_u32 {s(sIM)}, {NM}\ns_cbranch_scc1 L_MLP')
    P('s_branch L_END')

    P('L_C1:')
    vCc, vT2 = 12, 64
    srd(SRD_A, pC, 1024); srd(SRD_B, pWM, 512*6144)
    P(f'v_lshrrev_b32 {v(vG)}, 3, {v(vL)}\nv_and_b32 {v(vC8)}, 7, {v(vL)}')
    P(f'v_lshlrev_b32 {v(vAD)}, 4, {v(vG)}\ns_lshl_b32 {s(sO0)}, {s(sJ)}, 7')
    P(f'buffer_load_dwordx4 {v(vCc,4)}, {v(vAD)}, {S(SRD_A)}, {s(sO0)} offen')
    P(f'v_mul_u32_u24 {v(vAD+1)}, {8*6144}, {v(vG)}\nv_lshl_add_u32 {v(vAD+1)}, {v(vC8)}, 4, {v(vAD+1)}')
    P(f's_mul_i32 {s(sO0)}, {s(sJ)}, {64*6144}\ns_lshl_b32 {s(sT0)}, {s(sH)}, 7\ns_add_u32 {s(sO0)}, {s(sO0)}, {s(sT0)}\ns_add_u32 {s(sO0)}, {s(sO0)}, 2048')
    for i in range(8):
        P(f'buffer_load_dwordx4 {v(vT2+4*i,4)}, {v(vAD+1)}, {S(SRD_B)}, {s(sO0)} offen {cfg.wpol}')
        if i < 7: P(f's_add_u32 {s(sO0)}, {s(sO0)}, 6144')
    P('s_waitcnt lgkmcnt(0)')
    P(f's_add_u32 {s(sTAG)}, {s(sTAG)}, 1')
    settags(vO)
    P(f'v_and_b32 {v(vT)}, 15, {v(vL)}\nv_lshlrev_b32 {v(vT)}, 6, {v(vT)}\nv_lshrrev_b32 {v(vPUB)}, 4, {v(vL)}\nv_lshl_add_u32 {v(vPUB)}, {v(vPUB)}, 5, {v(vT)}')
    P('s_waitcnt vmcnt(8)')
    vS = 16
    for k in range(4): unpack(vS+2*k, vS+2*k+1, vCc+k)
    silu_multi([vS+k for k in range(8)], [24+k for k in range(8)])
    for i in range(8): P(f'v_cvt_pk_bf16_f32 {v(vS+i)}, {v(vS+i)}, {v(vS+i)}')
    P('s_waitcnt vmcnt(0)')
    chain(vD0, 8, [vT2+4*i for i in range(8)], [(vS+i, '') for i in range(8)], vAA)
    finish2(vD0, vTT, vO)
    P(f's_lshl_b32 {s(sO0)}, {s(sH)}, 3\ns_add_u32 {s(sO0)}, {s(sO0)}, {s(sJ)}\ns_lshl_b32 {s(sO0)}, {s(sO0)}, 9\ns_add_u32 {s(sO0)}, {s(sO0)}, {hex(X4)}')
    publish8(vO, vPUB, sO0, 0x00ff00ff)
    P(f's_cmp_lt_u32 {s(sR)}, 64\ns_cbranch_scc1 L_RED')
    P('s_barrier\ns_barrier')
    P(f's_cmp_lt_u32 {s(sIM)}, {NM}\ns_cbranch_scc1 L_MLP')
    P('s_branch L_END')
    P('L_RED:')
    vg = 64
    srd(SRD_A, pX, 1024); srd(SRD_B, pOUT, 1024)
    vXv, vGAv, vGBv, vCBp, vSBp = 12, 13, 14, 15, 16
    P(f'v_and_b32 {v(vT)}, 3, {v(vL)}\nv_lshlrev_b32 {v(vT)}, 2, {v(vT)}\nv_bfe_u32 {v(vT+1)}, {v(vL)}, 4, 1\nv_lshl_add_u32 {v(vT)}, {v(vT+1)}, 1, {v(vT)}\ns_lshl_b32 {s(sO0)}, {s(sR)}, 4')
    P(f'buffer_load_ushort {v(vXv)}, {v(vT)}, {S(SRD_A)}, {s(sO0)} offen')
    P(f'v_lshrrev_b32 {v(vAD)}, 5, {v(vL)}\nv_lshlrev_b32 {v(vAD)}, 15, {v(vAD)}\nv_bfe_u32 {v(vT)}, {v(vL)}, 2, 3\nv_lshl_add_u32 {v(vAD)}, {v(vT)}, 9, {v(vAD)}\nv_and_b32 {v(vT)}, 3, {v(vL)}\nv_lshl_add_u32 {v(vAD)}, {v(vT)}, 4, {v(vAD)}')
    P(f's_lshr_b32 {s(sT0)}, {s(sR)}, 3\ns_and_b32 {s(sT1)}, {s(sR)}, 7\ns_lshl_b32 {s(sT1)}, {s(sT1)}, 6\ns_lshl_b32 {s(sO0)}, {s(sT0)}, 12\ns_add_u32 {s(sO0)}, {s(sO0)}, {s(sT1)}\ns_add_u32 {s(sO0)}, {s(sO0)}, {hex(X4)}\ns_add_u32 {s(sO1)}, {s(sO0)}, 0x10000')
    P('s_sleep 64')
    def issue():
        for k in range(2): P(f'buffer_load_dwordx4 {v(vg+4*k,4)}, {v(vAD)}, {S(SRD_WS)}, {s(sO0+k)} offen sc1')
    tagcheck_loop(issue, [vg+1, vg+5], 'x4')
    for mod in ('row_ror:4', 'row_ror:8'):
        for r in (0, 2, 4, 6): P(f'v_add_f32_dpp {v(vg+r)}, {v(vg+r)}, {v(vg+r)} {mod} row_mask:0xf bank_mask:0xf')
    P(f'v_permlane16_swap_b32 {v(vg)}, {v(vg+2)}\nv_permlane16_swap_b32 {v(vg+4)}, {v(vg+6)}')
    P(f'v_add_f32 {v(vg)}, {v(vg)}, {v(vg+2)}\nv_add_f32 {v(vg+4)}, {v(vg+4)}, {v(vg+6)}')
    P(f'v_cvt_pk_bf16_f32 {v(vg)}, {v(vg)}, {v(vg+4)}')
    unpack(vg+2, vg+6, vg)
    P(f'v_mov_b32 {v(vg+3)}, {v(vg+2)}\nv_mov_b32 {v(vg+7)}, {v(vg+6)}')
    P(f'v_permlane32_swap_b32 {v(vg+2)}, {v(vg+3)}\nv_permlane32_swap_b32 {v(vg+6)}, {v(vg+7)}')
    P(f'v_mov_b32 {v(vGAv)}, {v(vg+2)}\nv_mov_b32 {v(vGBv)}, {v(vg+7)}\nv_add_f32 {v(vg+6)}, 1.0, {v(vg+6)}')
    P(f'v_mov_b32 {v(vg)}, {v(vg+3)}\nv_mov_b32 {v(vg+4)}, {v(vg+6)}')
    P(f'v_permlane16_swap_b32 {v(vg+3)}, {v(vg)}\nv_permlane16_swap_b32 {v(vg+6)}, {v(vg+4)}')
    vXC = 20
    P(f'v_cvt_pk_bf16_f32 {v(vXC+2)}, {v(vg+3)}, {v(vg)}\nv_cvt_pk_bf16_f32 {v(vXC+1)}, {v(vg+6)}, {v(vg+4)}\nv_mov_b32 {v(vXC+3)}, {s(sTAG)}')
    P(f'v_lshlrev_b32 {v(vXv)}, 16, {v(vXv)}')
    vBA, vDA, vU16 = 17, 18, 19
    P(f'v_and_b32 {v(vU16)}, 3, {v(vL)}\nv_lshlrev_b32 {v(vU16)}, 4, {v(vU16)}\nv_lshrrev_b32 {v(vT)}, 2, {v(vL)}\nv_lshl_add_u32 {v(vBA)}, {v(vT)}, 9, {v(vU16)}\nv_lshl_add_u32 {v(vDA)}, {v(vT)}, 12, {v(vU16)}')
    P(f's_lshl_b32 {s(sO0)}, {s(sT0)}, 14\ns_add_u32 {s(sO0)}, {s(sO0)}, {s(sT1)}\ns_add_u32 {s(sO0)}, {s(sO0)}, {hex(XB)}\ns_add_u32 {s(sO1)}, {s(sO0)}, 8192')
    P(f's_lshl_b32 {s(sO2)}, {s(sR)}, 6\ns_add_u32 {s(sO3)}, {s(sO2)}, {hex(XC)}')
    P('s_barrier\ns_barrier')
    stamp('R_b2')
    def issue():
        for k in range(2): P(f'buffer_load_dwordx4 {v(vg+4*k,4)}, {v(vBA)}, {S(SRD_WS)}, {s(sO0+k)} offen sc1')
    tagcheck_loop(issue, [vg+1, vg+5], 'xb')
    stamp('R_xb')
    def colsum():
        P(f'v_permlane16_swap_b32 {v(vg)}, {v(vg+2)}')
        P(f'v_add_f32 {v(vg)}, {v(vg)}, {v(vg+2)}')
        P(f'v_mov_b32 {v(vg+2)}, {v(vg)}')
        P(f'v_add_f32_dpp {v(vg)}, {v(vg)}, {v(vg)} row_ror:4 row_mask:0xf bank_mask:0xf')
        P(f'v_add_f32_dpp {v(vg+2)}, {v(vg+2)}, {v(vg+2)} row_ror:4 row_mask:0xf bank_mask:0xf')
        P(f'v_permlane32_swap_b32 {v(vg)}, {v(vg+2)}')
        P(f'v_add_f32 {v(vg)}, {v(vg)}, {v(vg+2)}')
        P(f'v_add_f32_dpp {v(vg)}, {v(vg)}, {v(vg)} row_ror:8 row_mask:0xf bank_mask:0xf')
    def rnd(r): P(f'v_cvt_pk_bf16_f32 {v(r)}, {v(r)}, {v(r)}\nv_and_b32 {v(r)}, 0xffff0000, {v(r)}')
    P(f'v_add_f32 {v(vg)}, {v(vg)}, {v(vg+4)}\nv_add_f32 {v(vg+2)}, {v(vg+2)}, {v(vg+6)}')
    colsum()
    rnd(vg)
    P(f'v_mul_f32 {v(vg)}, {v(vg)}, {v(vGAv)}'); rnd(vg)
    P(f'v_add_f32 {v(vg)}, {v(vg)}, {v(vXv)}\nv_mov_b32 {v(vg+2)}, {v(vg)}')
    P(f'v_permlane16_swap_b32 {v(vg)}, {v(vg+2)}')
    P(f'v_cvt_pk_bf16_f32 {v(vXC)}, {v(vg)}, {v(vg+2)}')
    setexec(0xf)
    P(f'buffer_store_dwordx4 {v(vXC,4)}, {v(vU16)}, {S(SRD_WS)}, {s(sO3)} offen sc1')
    setexec((1 << 64) - 1)
    stamp('R_xcpub')
    P(f'v_bfe_u32 {v(vT)}, {v(vL)}, 4, 1\nv_lshlrev_b32 {v(vT)}, 4, {v(vT)}\nv_lshrrev_b32 {v(vXv)}, {v(vT)}, {v(vXC)}\nv_lshlrev_b32 {v(vXv)}, 16, {v(vXv)}')
    for k in range(4): P(f'v_mov_b32 {v(vg+20+k)}, {0 if k % 2 == 0 else s(sTAG)}')
    P(f's_add_u32 {s(sO2)}, {s(sO2)}, {hex(XD)}')
    for k in range(6): P(f's_add_u32 {s(76+k)}, {s(sO2)}, {hex(65536*k)}')
    P(f'v_lshrrev_b32 {v(vBA)}, 2, {v(vU16)}\ns_lshl_b32 {s(sO0)}, {s(sR)}, 4')
    def issue():
        for k in range(5): P(f'buffer_load_dwordx4 {v(vg+4*k,4)}, {v(vDA)}, {S(SRD_WS)}, {s(76+k)} offen sc1')
        setexec((1 << 24) - 1)
        P(f'buffer_load_dwordx4 {v(vg+20,4)}, {v(vDA)}, {S(SRD_WS)}, {s(81)} offen sc1')
        setexec((1 << 64) - 1)
    tagcheck_loop(issue, [vg+4*k+1 for k in range(6)], 'xd')
    stamp('R_xd')
    for e in (0, 2):
        for a, b in ((0, 1), (2, 3), (4, 5), (0, 2), (0, 4)): P(f'v_add_f32 {v(vg+4*a+e)}, {v(vg+4*a+e)}, {v(vg+4*b+e)}')
    colsum()
    rnd(vg)
    P(f'v_mul_f32 {v(vg)}, {v(vg)}, {v(vGBv)}'); rnd(vg)
    P(f'v_add_f32 {v(vg)}, {v(vg)}, {v(vXv)}\nv_mov_b32 {v(vg+2)}, {v(vg)}')
    P(f'v_permlane16_swap_b32 {v(vg)}, {v(vg+2)}')
    P(f'v_cvt_pk_bf16_f32 {v(vg)}, {v(vg)}, {v(vg+2)}')
    setexec(0xf)
    P(f'buffer_store_dword {v(vg)}, {v(vBA)}, {S(SRD_B)}, {s(sO0)} offen')
    P(f's_cmp_eq_u32 {s(sR)}, 0\ns_cbranch_scc0 L_FIN')
    setexec(1)
    P(f'v_mov_b32 {v(vT)}, 0\nv_mov_b32 {v(vT+1)}, {s(sTAG)}')
    P(f'buffer_store_dword {v(vT+1)}, {v(vT)}, {S(SRD_WS)}, 0 offen sc1')
    P('L_FIN:')
    stamp('R_end')
    P('s_branch L_END')

    P('L_MLP:')
    vUP, vDN, vCG = 64, 96, 112
    vAP = 8
    srd(SRD_A, pW2, 1376*1024)
    P(f'v_lshrrev_b32 {v(vT)}, 3, {v(vL)}\nv_mul_u32_u24 {v(vT)}, {8*2752}, {v(vT)}\nv_and_b32 {v(vT+1)}, 3, {v(vL)}\nv_lshl_add_u32 {v(vT)}, {v(vT+1)}, 4, {v(vT)}')
    P(f's_mul_i32 {s(sT0)}, {s(sW)}, {64*2752}\ns_lshl_b32 {s(sT1)}, {s(sIM)}, 6\ns_add_u32 {s(sT0)}, {s(sT0)}, {s(sT1)}\nv_add_u32 {v(vT)}, {s(sT0)}, {v(vT)}')
    P(f's_mov_b32 {s(sMASK)}, 0xf0f0f0f0\ns_mov_b32 {s(sMASK+1)}, 0xf0f0f0f0')
    P(f'v_mov_b32 {v(vAP)}, {s(pW1)}\nv_mov_b32 {v(vAP+1)}, {s(pW1+1)}\nv_mov_b32 {v(vT+1)}, {s(pW3)}\nv_mov_b32 {v(vT+2)}, {s(pW3+1)}')
    P(f'v_cndmask_b32 {v(vAP)}, {v(vAP)}, {v(vT+1)}, {s(sMASK,2)}\nv_cndmask_b32 {v(vAP+1)}, {v(vAP+1)}, {v(vT+2)}, {s(sMASK,2)}')
    P(f'v_add_co_u32 {v(vAP)}, vcc, {v(vAP)}, {v(vT)}\nv_addc_co_u32 {v(vAP+1)}, vcc, 0, {v(vAP+1)}, vcc')
    vDNA, vCA, vUW, vUR, vPB = 10, 11, 12, 13, 14
    P(f'v_lshrrev_b32 {v(vT)}, 4, {v(vL)}\nv_and_b32 {v(vT+1)}, 15, {v(vL)}\nv_lshlrev_b32 {v(vDNA)}, 12, {v(vT)}\nv_lshl_add_u32 {v(vDNA)}, {v(vT+1)}, 4, {v(vDNA)}')
    P(f'v_lshlrev_b32 {v(vPB)}, 6, {v(vT+1)}\nv_lshl_add_u32 {v(vPB)}, {v(vT)}, 5, {v(vPB)}')
    P(f's_lshr_b32 {s(sT0)}, {s(sW)}, 2\ns_and_b32 {s(sT1)}, {s(sW)}, 3')
    P(f's_lshl_b32 {s(sO0)}, {s(sIM)}, 15\ns_lshl_b32 {s(sT2)}, {s(sT0)}, 14\ns_add_u32 {s(sO0)}, {s(sO0)}, {s(sT2)}\ns_lshl_b32 {s(sT2)}, {s(sT1)}, 8\ns_add_u32 {s(sO0)}, {s(sO0)}, {s(sT2)}')
    P(f's_lshl_b32 {s(sO3)}, {s(sIM)}, 1\ns_add_u32 {s(sO3)}, {s(sO3)}, {s(sT0)}\ns_lshl_b32 {s(sO3)}, {s(sO3)}, 12\ns_lshl_b32 {s(sT2)}, {s(sT1)}, 10\ns_add_u32 {s(sO3)}, {s(sO3)}, {s(sT2)}\ns_add_u32 {s(sO3)}, {s(sO3)}, {hex(XD)}')
    P(f'v_and_b32 {v(vT+2)}, 3, {v(vL)}\nv_lshlrev_b32 {v(vUW)}, 6, {v(vT+2)}\nv_bfe_u32 {v(vT+2)}, {v(vL)}, 2, 1\nv_lshl_add_u32 {v(vUW)}, {v(vT+2)}, 5, {v(vUW)}')
    P(f'v_bfe_u32 {v(vT+2)}, {v(vL)}, 4, 1\nv_lshl_add_u32 {v(vUW)}, {v(vT+2)}, 4, {v(vUW)}\nv_bfe_u32 {v(vT+2)}, {v(vL)}, 5, 1\nv_lshl_add_u32 {v(vUW)}, {v(vT+2)}, 8, {v(vUW)}')
    P(f's_lshl_b32 {s(sT2)}, {s(sW)}, 9\ns_lshl_b32 {s(sO1)}, {s(sT0)}, 6\ns_add_u32 {s(sT2)}, {s(sT2)}, {s(sO1)}\ns_add_u32 {s(sT2)}, {s(sT2)}, {hex(L_U)}\nv_add_u32 {v(vUW)}, {s(sT2)}, {v(vUW)}')
    P(f'v_and_b32 {v(vT+2)}, 7, {v(vL)}\nv_lshlrev_b32 {v(vUR)}, 2, {v(vT+2)}\nv_bfe_u32 {v(vT+2)}, {v(vL)}, 2, 1\nv_lshl_add_u32 {v(vUR)}, {v(vT+2)}, 4, {v(vUR)}')
    P(f'v_bfe_u32 {v(vT+2)}, {v(vL)}, 4, 1\nv_lshl_add_u32 {v(vUR)}, {v(vT+2)}, 4, {v(vUR)}\nv_bfe_u32 {v(vT+2)}, {v(vL)}, 5, 1\nv_lshl_add_u32 {v(vUR)}, {v(vT+2)}, 6, {v(vUR)}')
    P(f'v_bfe_u32 {v(vT+2)}, {v(vL)}, 3, 1\nv_mul_u32_u24 {v(vT+2)}, {2048+64}, {v(vT+2)}\nv_add_u32 {v(vUR)}, {v(vUR)}, {v(vT+2)}\ns_lshl_b32 {s(sT2)}, {s(sT0)}, 7\ns_add_u32 {s(sT2)}, {s(sT2)}, {hex(L_U)}\nv_add_u32 {v(vUR)}, {s(sT2)}, {v(vUR)}')
    P(f'v_lshrrev_b32 {v(vT)}, 3, {v(vL)}\nv_lshlrev_b32 {v(vT)}, 6, {v(vT)}\nv_and_b32 {v(vT+1)}, 3, {v(vL)}\nv_lshl_add_u32 {v(vCA)}, {v(vT+1)}, 4, {v(vT)}\nv_mov_b32 {v(15)}, 0')
    P(f's_lshl_b32 {s(sO1)}, {s(sW)}, 9\ns_add_u32 {s(sO1)}, {s(sO1)}, {hex(XC)}\ns_mov_b32 {s(sO2)}, {hex(XC)}')
    settags(vO)
    P('s_barrier')
    P(f's_mov_b32 {s(sMASK)}, 2752*2\ns_mov_b32 {s(sMASK+1)}, 0')
    for i in range(8):
        P(f'global_load_dwordx4 {v(vUP+4*i,4)}, {v(vAP,2)}, off offset:{2752*(i & 1)} {cfg.wpol}')
        if i & 1 and i < 7: P(f'v_lshl_add_u64 {v(vAP,2)}, {v(vAP,2)}, 0, {s(sMASK,2)}')
    for i in range(4): P(f'buffer_load_dwordx4 {v(vDN+4*i,4)}, {v(vDNA)}, {S(SRD_A)}, {s(sO0)} offen offset:{1024*i} {cfg.wpol}')
    def issue():
        P(f'buffer_load_dwordx4 {v(vCG,4)}, {v(vCA)}, {S(SRD_WS)}, {s(sO1)} offen sc1')
        P(f'buffer_load_dwordx4 {v(vCG+4,4)}, {v(15)}, {S(SRD_WS)}, {s(sO2)} offen sc1')
    tagcheck_loop(issue, [vCG+3, vCG+7], 'xc')
    stamp('M_xc')
    vx, vsh = 16, 18
    unpack(vx, vx+1, vCG)
    P(f'v_lshlrev_b32 {v(vsh)}, 16, {v(vCG+4)}')
    P(f'v_sub_f32 {v(20)}, {v(vx)}, {v(vsh)}\nv_sub_f32 {v(21)}, {v(vx+1)}, {v(vsh)}')
    P(f'v_add_f32 {v(22)}, {v(20)}, {v(21)}\nv_mul_f32 {v(23)}, {v(20)}, {v(20)}\nv_fmac_f32 {v(23)}, {v(21)}, {v(21)}')
    for mod in ('quad_perm:[1,0,3,2] row_mask:0xf', 'quad_perm:[2,3,0,1] row_mask:0xf', 'row_ror:8 row_mask:0xf', 'row_bcast:15 row_mask:0xa', 'row_bcast:31 row_mask:0xc'):
        for r in (22, 23): P(f'v_add_f32_dpp {v(r)}, {v(r)}, {v(r)} {mod} bank_mask:0xf')
    P(f's_lshl_b32 {s(sT2)}, {s(sW)}, 3\ns_add_u32 {s(sT2)}, {s(sT2)}, {hex(L_ST)}\nv_mov_b32 {v(vT)}, {s(sT2)}')
    P(f'v_and_b32 {v(vT+1)}, 7, {v(vL)}\nv_lshlrev_b32 {v(vT+1)}, 3, {v(vT+1)}')
    if L_ST: P(f'v_add_u32 {v(vT+1)}, {hex(L_ST)}, {v(vT+1)}')
    setexec(1 << 63)
    P(f'ds_write_b64 {v(vT)}, {v(22,2)}')
    setexec((1 << 64) - 1)
    P('s_waitcnt lgkmcnt(0)')
    P('s_barrier')
    P(f'ds_read_b64 {v(22,2)}, {v(vT+1)}')
    vcb, vsb = 24, 26
    unpack(vcb, vcb+1, vCG+1); unpack(vsb, vsb+1, vCG+2)
    P('s_waitcnt lgkmcnt(0)')
    for mod in ('quad_perm:[1,0,3,2]', 'quad_perm:[2,3,0,1]', 'row_half_mirror'):
        for r in (22, 23): P(f'v_add_f32_dpp {v(r)}, {v(r)}, {v(r)} {mod} row_mask:0xf bank_mask:0xf')
    P(f'v_mul_f32 {v(22)}, {hex(f2u(1/512))}, {v(22)}\nv_mul_f32 {v(23)}, {hex(f2u(1/512))}, {v(23)}')
    P(f'v_fma_f32 {v(23)}, -{v(22)}, {v(22)}, {v(23)}\nv_add_f32 {v(22)}, {v(22)}, {v(vsh)}\nv_max_f32 {v(23)}, 0, {v(23)}')
    P(f'v_cvt_pk_bf16_f32 {v(22)}, {v(22)}, {v(23)}')
    P(f'v_and_b32 {v(23)}, 0xffff0000, {v(22)}\nv_lshlrev_b32 {v(22)}, 16, {v(22)}\nv_add_f32 {v(23)}, {EPS}, {v(23)}')
    P(f'v_sub_f32 {v(20)}, {v(vx)}, {v(22)}\nv_sub_f32 {v(21)}, {v(vx+1)}, {v(22)}')
    P(f'v_cvt_pk_bf16_f32 {v(23)}, {v(23)}, {v(23)}\nv_cvt_pk_bf16_f32 {v(20)}, {v(20)}, {v(21)}\nv_and_b32 {v(23)}, 0xffff0000, {v(23)}\nv_sqrt_f32 {v(23)}, {v(23)}')
    unpack(vx, vx+1, 20)
    P(f'v_cvt_pk_bf16_f32 {v(23)}, {v(23)}, {v(23)}\nv_and_b32 {v(23)}, 0xffff0000, {v(23)}\nv_rcp_f32 {v(22)}, {v(23)}')
    P(f'v_mul_f32 {v(20)}, {v(vx)}, {v(22)}\nv_mul_f32 {v(21)}, {v(vx+1)}, {v(22)}')
    P(f'v_fma_f32 {v(vx)}, -{v(20)}, {v(23)}, {v(vx)}\nv_fma_f32 {v(vx+1)}, -{v(21)}, {v(23)}, {v(vx+1)}')
    P(f'v_fma_f32 {v(20)}, {v(vx)}, {v(22)}, {v(20)}\nv_fma_f32 {v(21)}, {v(vx+1)}, {v(22)}, {v(21)}')
    P(f'v_cvt_pk_bf16_f32 {v(20)}, {v(20)}, {v(21)}')
    unpack(vx, vx+1, 20)
    P(f'v_mul_f32 {v(vx)}, {v(vx)}, {v(vcb)}\nv_mul_f32 {v(vx+1)}, {v(vx+1)}, {v(vcb+1)}\nv_cvt_pk_bf16_f32 {v(20)}, {v(vx)}, {v(vx+1)}')
    unpack(vx, vx+1, 20)
    P(f'v_add_f32 {v(vx)}, {v(vx)}, {v(vsb)}\nv_add_f32 {v(vx+1)}, {v(vx+1)}, {v(vsb+1)}')
    P(f'v_cvt_pk_bf16_f32 {v(20)}, {v(vx)}, {v(vx)}\nv_cvt_pk_bf16_f32 {v(21)}, {v(vx+1)}, {v(vx+1)}')
    srcs = [(20 + (i & 1), f'quad_perm:[{i >> 1},{i >> 1},{i >> 1},{i >> 1}]') for i in range(8)]
    chain(vD0, 8, [vUP+4*i for i in range(8)], srcs, vAA)
    setexec(0xff00ff00_00ff00ff)
    P(f'ds_write_b128 {v(vUW)}, {v(vD0,4)}')
    setexec((1 << 64) - 1)
    P('s_waitcnt lgkmcnt(0)')
    P('s_barrier')
    stamp('M_up')
    for t in range(8): P(f'ds_read_b32 {v(16+t)}, {v(vUR)} offset:{256*t}')
    P('s_waitcnt lgkmcnt(4)')
    P(f'v_add_f32 {v(16)}, {v(16)}, {v(17)}\nv_add_f32 {v(18)}, {v(18)}, {v(19)}')
    P('s_waitcnt lgkmcnt(0)')
    P(f'v_add_f32 {v(20)}, {v(20)}, {v(21)}\nv_add_f32 {v(22)}, {v(22)}, {v(23)}\nv_add_f32 {v(16)}, {v(16)}, {v(18)}\nv_add_f32 {v(20)}, {v(20)}, {v(22)}\nv_add_f32 {v(16)}, {v(16)}, {v(20)}')
    P(f'v_add_f32_dpp {v(16)}, {v(16)}, {v(16)} row_ror:8 row_mask:0xf bank_mask:0xf')
    rnd(16)
    P(f'v_mov_b32_dpp {v(17)}, {v(16)} row_ror:4 row_mask:0xf bank_mask:0xf')
    silu(16, 18)
    rnd(16)
    P(f'v_mul_f32 {v(16)}, {v(16)}, {v(17)}\nv_cvt_pk_bf16_f32 {v(16)}, {v(16)}, {v(16)}')
    chain(vD0, 4, [vDN+4*i for i in range(4)], [(16, f'row_newbcast:{i}') for i in range(4)], vAA)
    for r in range(4): P(f'v_mov_b32 {v(vO+2*r)}, {v(vD0+r)}')
    publish8(vO, vPB, sO3, 0xffffffff)
    stamp('M_end')

    P('L_END:')
    if cfg.diag:
        P('s_waitcnt lgkmcnt(0)')
        P(f's_cmp_ge_u32 {s(sB)}, 256\ns_cbranch_scc1 L_END2')
        P(f's_lshl_b32 {s(sT0)}, {s(sB)}, 3\ns_add_u32 {s(sT0)}, {s(sT0)}, {s(sW)}\ns_lshl_b32 {s(sT0)}, {s(sT0)}, 7\ns_add_u32 {s(sT0)}, {s(sT0)}, {hex(DIAG)}')
        P('s_mov_b64 exec, 1\nv_mov_b32 v1, 0')
        for i in range(9): P(f'v_mov_b32 v2, {s(sDIAG+2*i)}\nbuffer_store_dword v2, v1, {S(SRD_WS)}, {s(sT0)} offen offset:{4*i}')
        P('L_END2:')
    P('s_endpgm')
    P('L_CODE_END:')
    probs = P.fix()
    for p in probs: print('HAZARD across branch:', p, file=sys.stderr)
    head = open(f'cdna_kernels/{NAME}.s.ref').read().split('; Override launch')[0]
    txt = head
    txt += f'; Single persistent launch: 256 workgroups (one per CU) x 8 waves. Generated by gen/gen_kernel.py (hand-written generator).\n'
    txt += f'; @launch grid=(256,1,1) block=(512,1,1) lds={LDS_BYTES}\n'
    txt += f'.amdgcn_target "amdgcn-amd-amdhsa--gfx950"\n.text\n.globl {NAME}_kernel\n.p2align 8\n.type {NAME}_kernel,@function\n{NAME}_kernel:\n'
    txt += P.text() + '\n'
    txt += f'''.section .rodata,"a"
.p2align 6
.amdhsa_kernel {NAME}_kernel
  .amdhsa_next_free_vgpr 256
  .amdhsa_next_free_sgpr 102
  .amdhsa_accum_offset 256
  .amdhsa_group_segment_fixed_size 0
  .amdhsa_kernarg_size 112
  .amdhsa_user_sgpr_count 2
  .amdhsa_user_sgpr_kernarg_segment_ptr 1
  .amdhsa_system_sgpr_workgroup_id_x 1
  .amdhsa_float_denorm_mode_32 3
.end_amdhsa_kernel
'''
    return txt, stamps

if __name__ == '__main__':
    out = sys.argv[1] if len(sys.argv) > 1 else f'cdna_kernels/{NAME}.s'
    class C(Cfg): pass
    for a in sys.argv[2:]:
        k, val = a.split('=')
        setattr(C, k, eval(val))
    txt, stamps = gen(C)
    open(out, 'w').write(txt)
    print('written', out, len(txt), 'bytes', stamps)
```

```python
import sys, struct
from asmdsl import Prog

NAME = 'adaLN_cond__mha_block_cached__glu_gated_swiglu__decode'

def f2u(x): return struct.unpack('<I', struct.pack('<f', x))[0]
LOG2E = hex(f2u(1.4426950408889634))
SCALE = hex(f2u(128 ** -0.5))
EPS = hex(f2u(1e-5))

X1, X2, X3, X4 = 0x1000, 0x21000, 0x61000, 0x62000
XA, XB, XC, XD = 0x82000, 0xC2000, 0xE2000, 0xE3000
DIAG = 0x180000
WS_BYTES = 0x200000
L_P, L_OP, L_Q, L_FLAG = 0x20000, 0x20800, 0x21000, 0x21100
L_ST, L_U = 0x0, 0x1000
LDS_BYTES = 0x21200
NM = 43
TAGX = hex(sum(1 << (a*4+b*2+c) for a in (0,1) for b in (0,1) for c in (0,1) if (a ^ b) | c))

class Cfg:
    depth = 8
    diag = False
    kpol = 'nt'
    vpol = 'nt'
    wpol = 'nt'
    sleep1 = 0
    sleep2 = 0
    spin = 1 << 15
    probe = None

def v(a, n=1): return f'v{a}' if n == 1 else f'v[{a}:{a+n-1}]'
def s(a, n=1): return f's{a}' if n == 1 else f's[{a}:{a+n-1}]'

sB, sW = 2, 3
sKP, sVP = 4, 6
SRD_K, SRD_V, SRD_WS, SRD_A, SRD_B, SRD_C = 8, 12, 16, 20, 24, 28
sH, sJ, sX, sKK = 36, 37, 38, 39
sWSP = 40
sTAG, sIM, sR = 42, 43, 44
sT0, sT1, sT2 = 45, 46, 47
pWQ, pWO, pW1, pW3, pW2, pC, pWM, pX, pOUT = 48, 50, 54, 56, 58, 60, 62, 64, 66
sSPIN = 68
sO0, sO1, sO2, sO3 = 69, 70, 71, 72
sMASK = 74
sG = 76
sDIAG = 84
vL = 0
vT = 1
vM = 4

def gen(cfg=Cfg):
    P = Prog()
    D = cfg.depth
    stamps = {}
    def stamp(name):
        if cfg.diag and name in cfg.diag:
            grp = name.split('_')[0]
            same = [n for n in cfg.diag if n.split('_')[0] == grp]
            if name == 'start': i = 0
            elif grp == 'M': i = 8 - same.index(name)
            else: i = 1 + same.index(name)
            assert 0 <= i <= 8
            stamps[name] = i
            P(f's_memrealtime {s(sDIAG + 2*i, 2)}')
    def srd(r, ptr, nbytes):
        P(f's_mov_b32 {s(r)}, {s(ptr)}\ns_mov_b32 {s(r+1)}, {s(ptr+1)}\ns_mov_b32 {s(r+2)}, {hex(nbytes)}\ns_mov_b32 {s(r+3)}, 0x20000')
    def S(r): return s(r, 4)
    def setexec(mask):
        lo, hi = mask & 0xffffffff, mask >> 32
        if mask == (1 << 64) - 1: P('s_mov_b64 exec, -1')
        else: P(f's_mov_b32 exec_lo, {hex(lo)}\ns_mov_b32 exec_hi, {hex(hi)}')
    uid = [0]
    def lab(p):
        uid[0] += 1; return f'L_{p}{uid[0]}'
    def tagcheck_loop(issue, tagregs, name):
        top = lab(name)
        P(f's_mov_b32 {s(sSPIN)}, 0')
        P(f'{top}:')
        issue()
        P(f's_add_u32 {s(sSPIN)}, {s(sSPIN)}, 1\ns_cmp_gt_u32 {s(sSPIN)}, {cfg.spin}\ns_cbranch_scc1 L_END')
        P('s_waitcnt vmcnt(0)')
        P(f'v_xor_b32 {v(vT)}, {s(sTAG)}, {v(tagregs[0])}')
        if len(tagregs) > 1: P(f'v_xor_b32 {v(vT+1)}, {s(sTAG)}, {v(tagregs[1])}')
        for k, r in enumerate(tagregs[2:]):
            P(f'v_bitop3_b32 {v(vT + (k & 1))}, {v(r)}, {s(sTAG)}, {v(vT + (k & 1))} bitop3:{TAGX}')
        if len(tagregs) > 1: P(f'v_or_b32 {v(vT)}, {v(vT)}, {v(vT+1)}')
        P(f'v_cmp_ne_u32 vcc, 0, {v(vT)}')
        P(f's_cbranch_vccnz {top}')
    def afrag(dst, src, dpp=''):
        for w in range(4):
            if dpp: P(f'v_and_b32_dpp {v(dst+w)}, {v(src)}, {v(vM+w)} {dpp} row_mask:0xf bank_mask:0xf')
            else: P(f'v_and_b32 {v(dst+w)}, {v(src)}, {v(vM+w)}')
    def mfma(d, a, b, first=False):
        P(f'v_mfma_f32_16x16x32_bf16 {v(d,4)}, {v(a,4)}, {v(b,4)}, {"0" if first else v(d,4)}')
    def chain(d, n, bregs, srcs, areg):
        afrag(areg, *srcs[0])
        for i in range(n):
            if i + 1 < n: afrag(areg + 4*((i+1) & 1), *srcs[i+1])
            mfma(d, areg + 4*(i & 1), bregs[i], first=(i == 0))
    def finish2(d, t, o):
        for r in range(4): P(f'v_mov_b32 {v(t+r)}, {v(d+r)}')
        for r in range(4): P(f'v_permlane32_swap_b32 {v(d+r)}, {v(t+r)}')
        for r in range(4): P(f'v_add_f32_dpp {v(o+2*r)}, {v(t+r)}, {v(d+r)} row_ror:8 row_mask:0xf bank_mask:0xf')
    def settags(o):
        for r in range(4): P(f'v_mov_b32 {v(o+1+2*r)}, {s(sTAG)}')
    def publish8(o, vaddr, soff, mask):
        setexec(mask)
        P(f'buffer_store_dwordx4 {v(o,4)}, {v(vaddr)}, {S(SRD_WS)}, {s(soff)} offen sc1')
        P(f'buffer_store_dwordx4 {v(o+4,4)}, {v(vaddr)}, {S(SRD_WS)}, {s(soff)} offen offset:16 sc1')
        setexec((1 << 64) - 1)
    def wave_reduce(op, regs):
        for mod in ('quad_perm:[1,0,3,2] row_mask:0xf', 'quad_perm:[2,3,0,1] row_mask:0xf', 'row_ror:4 row_mask:0xf', 'row_ror:8 row_mask:0xf',
                    'row_bcast:15 row_mask:0xa', 'row_bcast:31 row_mask:0xc'):
            for r in regs: P(f'{op}_dpp {v(r)}, {v(r)}, {v(r)} {mod} bank_mask:0xf')
    def unpack(lo, hi, src):
        P(f'v_lshlrev_b32 {v(lo)}, 16, {v(src)}\nv_and_b32 {v(hi)}, 0xffff0000, {v(src)}')
    def silu(r, t):
        P(f'v_mul_f32 {v(t)}, {hex(f2u(-1.4426950408889634))}, {v(r)}\nv_exp_f32 {v(t)}, {v(t)}\nv_add_f32 {v(t)}, 1.0, {v(t)}\nv_rcp_f32 {v(t)}, {v(t)}\nv_mul_f32 {v(r)}, {v(r)}, {v(t)}')
    def silu_multi(rs, ts):
        c = hex(f2u(-1.4426950408889634))
        for r, t in zip(rs, ts): P(f'v_mul_f32 {v(t)}, {c}, {v(r)}')
        for r, t in zip(rs, ts): P(f'v_exp_f32 {v(t)}, {v(t)}')
        for r, t in zip(rs, ts): P(f'v_add_f32 {v(t)}, 1.0, {v(t)}')
        for r, t in zip(rs, ts): P(f'v_rcp_f32 {v(t)}, {v(t)}')
        for r, t in zip(rs, ts): P(f'v_mul_f32 {v(r)}, {v(r)}, {v(t)}')

    P(f's_cmp_ge_u32 {s(sB)}, 256\ns_cbranch_scc1 L_END')
    if cfg.diag:
        for i in range(9): P(f's_mov_b32 {s(sDIAG+2*i)}, 0')
    stamp('start')
    P(f's_load_dwordx4 {s(sKP,4)}, s[0:1], 8')
    P(f's_load_dwordx2 {s(sWSP,2)}, s[0:1], 104')
    P(f's_load_dwordx16 {s(pWQ,16)}, s[0:1], 24')
    P(f's_load_dwordx2 {s(pX,2)}, s[0:1], 0')
    P(f's_load_dwordx2 {s(pOUT,2)}, s[0:1], 88')
    P(f'v_lshrrev_b32 {v(vT)}, 6, v0\nv_and_b32 {v(vL)}, 63, v0')
    P(f'v_readfirstlane_b32 {s(sW)}, {v(vT)}')
    P(f'v_and_b32 {v(vT)}, 3, {v(vL)}\nv_lshlrev_b32 {v(vT)}, 2, {v(vT)}\nv_add_u32 {v(vT)}, {hex(L_FLAG)}, {v(vT)}\nv_mov_b32 {v(vT+1)}, 0')
    P(f'ds_write_b32 {v(vT)}, {v(vT+1)}')
    P(f'v_and_b32 {v(vT)}, 1, {v(vL)}\nv_lshlrev_b32 {v(vT)}, 4, {v(vT)}\nv_mov_b32 {v(vT+1)}, 0xffff\nv_lshlrev_b32 {v(vT+1)}, {v(vT)}, {v(vT+1)}')
    P(f'v_bfe_u32 {v(vT)}, {v(vL)}, 1, 2')
    for w in range(4):
        P(f'v_cmp_eq_u32 {s(sMASK,2)}, {w}, {v(vT)}\nv_cndmask_b32 {v(vM+w)}, 0, {v(vT+1)}, {s(sMASK,2)}')
    P(f's_and_b32 {s(sH)}, {s(sB)}, 31\ns_lshr_b32 {s(sJ)}, {s(sB)}, 5\ns_and_b32 {s(sX)}, {s(sB)}, 7\ns_lshr_b32 {s(sKK)}, {s(sB)}, 3')
    vKA, vVA = 8, 12
    P(f'v_lshrrev_b32 {v(vT)}, 4, {v(vL)}\nv_and_b32 {v(vT+1)}, 15, {v(vL)}')
    P(f'v_lshlrev_b32 {v(vVA)}, 10, {v(vT)}\nv_lshl_add_u32 {v(vVA)}, {v(vT+1)}, 4, {v(vVA)}')
    P(f'v_xor_b32 {v(vT+1)}, {v(vT+1)}, {v(vT)}\nv_lshlrev_b32 {v(vT+1)}, 4, {v(vT+1)}\nv_lshl_add_u32 {v(vKA)}, {v(vT)}, 8, {v(vT+1)}')
    for i in range(1, 4): P(f'v_xor_b32 {v(vKA+i)}, {64*i}, {v(vKA)}')
    P(f's_lshl_b32 {s(sO0)}, {s(sH)}, 20\ns_lshl_b32 {s(sT0)}, {s(sJ)}, 2\ns_add_u32 {s(sT0)}, {s(sT0)}, {s(sW)}\ns_lshl_b32 {s(sT0)}, {s(sT0)}, 12\ns_add_u32 {s(sO0)}, {s(sO0)}, {s(sT0)}')
    P('s_waitcnt lgkmcnt(0)')
    P('s_barrier')
    P(f's_load_dword {s(sTAG)}, {s(sWSP,2)}, 0')
    srd(SRD_WS, sWSP, WS_BYTES)
    P(f's_mul_i32 {s(sIM)}, {s(sX)}, 6\ns_add_u32 {s(sIM)}, {s(sIM)}, {s(sKK)}\ns_cmp_lt_u32 {s(sKK)}, 6\ns_cselect_b32 {s(sIM)}, {s(sIM)}, 255')
    P(f's_lshl_b32 {s(sR)}, {s(sX)}, 3\ns_add_u32 {s(sR)}, {s(sR)}, {s(sKK)}\ns_sub_u32 {s(sR)}, {s(sR)}, 8\ns_sub_u32 {s(sT0)}, {s(sKK)}, 8\ns_cmp_lt_u32 {s(sT0)}, 8\ns_cselect_b32 {s(sR)}, {s(sR)}, 255')
    P(f's_cmp_ge_u32 {s(sW)}, 4\ns_cbranch_scc1 L_CW')

    srd(SRD_K, sKP, 32 << 20); srd(SRD_V, sVP, 32 << 20)
    P(f's_lshl_b32 {s(sT0)}, {s(sW)}, 15\ns_mov_b32 m0, {s(sT0)}\ns_mov_b32 {s(sO1)}, {s(sO0)}\ns_mov_b32 {s(sT1)}, 0')
    P('L_KLOOP:')
    for i in range(4):
        P(f's_waitcnt vmcnt({D-1})')
        P(f'buffer_load_dwordx4 {v(vKA+i)}, {S(SRD_K)}, {s(sO1)} offen offset:{1024*i} {cfg.kpol} lds')
    P(f's_add_u32 {s(sO1)}, {s(sO1)}, 0x20000\ns_add_u32 {s(sT0)}, {s(sT0)}, 4096\ns_mov_b32 m0, {s(sT0)}\ns_add_u32 {s(sT1)}, {s(sT1)}, 1\ns_cmp_lt_u32 {s(sT1)}, 8\ns_cbranch_scc1 L_KLOOP')
    stamp('L_kissued')
    vV = 128
    P(f's_lshl_b32 {s(sT0)}, {s(sW)}, 2\ns_add_u32 {s(sT0)}, {s(sT0)}, {hex(L_FLAG)}\nv_mov_b32 {v(vT)}, {s(sT0)}\nv_mov_b32 {v(vT+1)}, 1')
    for idx in range(32):
        t, i = idx >> 2, idx & 3
        P(f's_waitcnt vmcnt({D-1})')
        if idx == D - 1:
            P(f'ds_write_b32 {v(vT)}, {v(vT+1)}')
            stamp('L_klanded')
        P(f'buffer_load_dwordx4 {v(vV+4*idx,4)}, {v(vVA)}, {S(SRD_V)}, {s(sO0)} offen offset:{256*i} {cfg.vpol}')
        if i == 3 and t < 7: P(f's_add_u32 {s(sO0)}, {s(sO0)}, 0x20000')
    stamp('L_vissued')
    vPA, vP, vA, vD = 13, 16, 48, 56
    P(f'v_lshrrev_b32 {v(vT)}, 4, {v(vL)}\nv_lshlrev_b32 {v(vT)}, 4, {v(vT)}\ns_lshl_b32 {s(sT0)}, {s(sW)}, 9\ns_add_u32 {s(sT0)}, {s(sT0)}, {hex(L_P)}\nv_add_u32 {v(vPA)}, {s(sT0)}, {v(vT)}')
    vOA = 14
    P(f'v_and_b32 {v(vT+1)}, 15, {v(vL)}\nv_lshl_add_u32 {v(vT)}, {v(vT+1)}, 5, {v(vT)}\ns_add_u32 {s(sT0)}, {s(sT0)}, {hex(L_OP - L_P)}\nv_add_u32 {v(vOA)}, {s(sT0)}, {v(vT)}')
    P('s_waitcnt lgkmcnt(0)')
    P(f's_add_u32 {s(sTAG)}, {s(sTAG)}, 1')
    P('s_barrier')
    stamp('L_b1')
    for t in range(8): P(f'ds_read_b128 {v(vP+4*t,4)}, {v(vPA)} offset:{64*t}')
    P('s_waitcnt lgkmcnt(7)')
    afrag(vA, vP)
    for idx in range(32):
        if idx + 1 < 32:
            if (idx + 1) % 4 == 0: P(f's_waitcnt lgkmcnt({7 - (idx+1)//4})')
            afrag(vA + 4*((idx+1) & 1), vP + idx + 1)
        P(f's_waitcnt vmcnt({31-idx})')
        mfma(vD, vA + 4*(idx & 1), vV + 4*idx, first=(idx == 0))
    stamp('L_pv')
    setexec(0xffffffff)
    P(f'ds_write_b128 {v(vOA)}, {v(vD,4)}')
    setexec((1 << 64) - 1)
    P('s_waitcnt lgkmcnt(0)')
    P('s_barrier')
    P(f's_cmp_lt_u32 {s(sIM)}, {NM}\ns_cbranch_scc1 L_MLP')
    P('s_branch L_END')

    P('L_CW:')
    P(f's_cmp_eq_u32 {s(sW)}, 4\ns_cbranch_scc0 L_C123')
    vG, vC8 = 8, 9
    vCc, vT1, vXF, vXS, vD0, vTT, vO, vAA = 10, 12, 28, 32, 36, 40, 44, 52
    vAD = 60
    vWQ, vGA = 64, 128
    srd(SRD_A, pC, 1024); srd(SRD_B, pWM, 512*6144); srd(SRD_C, pWQ, 4 << 20)
    P(f'v_lshrrev_b32 {v(vG)}, 3, {v(vL)}\nv_and_b32 {v(vC8)}, 7, {v(vL)}')
    P(f's_lshr_b32 {s(sT0)}, {s(sKK)}, 1\ns_and_b32 {s(sT1)}, {s(sKK)}, 1')
    P(f'v_lshlrev_b32 {v(vAD)}, 3, {v(vG)}\ns_lshl_b32 {s(sO0)}, {s(sT0)}, 6')
    P(f'buffer_load_dwordx2 {v(vCc,2)}, {v(vAD)}, {S(SRD_A)}, {s(sO0)} offen')
    P(f'v_mul_u32_u24 {v(vAD+1)}, 24576, {v(vG)}\nv_lshl_add_u32 {v(vAD+1)}, {v(vC8)}, 4, {v(vAD+1)}')
    P(f's_mul_i32 {s(sO0)}, {s(sT0)}, {32*6144}\ns_lshl_b32 {s(sT1)}, {s(sT1)}, 10\ns_add_u32 {s(sO0)}, {s(sO0)}, {s(sT1)}\ns_lshl_b32 {s(sT1)}, {s(sX)}, 7\ns_add_u32 {s(sO0)}, {s(sO0)}, {s(sT1)}')
    for i in range(4):
        P(f'buffer_load_dwordx4 {v(vT1+4*i,4)}, {v(vAD+1)}, {S(SRD_B)}, {s(sO0)} offen {cfg.wpol}')
        if i < 3: P(f's_add_u32 {s(sO0)}, {s(sO0)}, 6144')
    srd(SRD_A, pX, 1024)
    P(f'v_lshlrev_b32 {v(vAD)}, 4, {v(vL)}')
    P(f'buffer_load_dwordx4 {v(vXF,4)}, {v(vAD)}, {S(SRD_A)}, 0 offen')
    P(f'v_lshrrev_b32 {v(vAD+2)}, 4, {v(vL)}\nv_and_b32 {v(vAD+3)}, 1, {v(vL)}\nv_lshlrev_b32 {v(vAD+3)}, 2, {v(vAD+3)}\nv_lshl_add_u32 {v(vAD+3)}, {v(vAD+2)}, 3, {v(vAD+3)}\ns_lshl_b32 {s(sO0)}, {s(sJ)}, 7')
    for g in range(4): P(f'buffer_load_dword {v(vXS+g)}, {v(vAD+3)}, {S(SRD_A)}, {s(sO0)} offen offset:{32*g}')
    P(f'v_lshlrev_b32 {v(vAD+2)}, 15, {v(vAD+2)}\nv_and_b32 {v(vAD+3)}, 15, {v(vL)}\nv_lshl_add_u32 {v(vAD+2)}, {v(vAD+3)}, 4, {v(vAD+2)}')
    P(f's_lshl_b32 {s(sO0)}, {s(sJ)}, 19\ns_lshl_b32 {s(sT0)}, {s(sH)}, 8\ns_add_u32 {s(sO0)}, {s(sO0)}, {s(sT0)}')
    for g in range(4):
        for k in range(4):
            P(f'buffer_load_dwordx4 {v(vWQ+16*g+4*k,4)}, {v(vAD+2)}, {S(SRD_C)}, {s(sO0)} offen {cfg.wpol}')
            if (g, k) != (3, 3): P(f's_add_u32 {s(sO0)}, {s(sO0)}, {8192 if k < 3 else 8192*13}')
    P('s_waitcnt lgkmcnt(0)')
    P(f's_add_u32 {s(sTAG)}, {s(sTAG)}, 1')
    settags(vO)
    vPUB = 61
    P(f'v_and_b32 {v(vT)}, 15, {v(vL)}\nv_lshlrev_b32 {v(vT)}, 6, {v(vT)}\nv_lshrrev_b32 {v(vPUB)}, 4, {v(vL)}')
    P('s_waitcnt vmcnt(25)')
    P(f'v_lshl_add_u32 {v(vPUB)}, {v(vPUB)}, 5, {v(vT)}')
    vS = 192
    unpack(vS, vS+1, vCc); unpack(vS+2, vS+3, vCc+1)
    silu_multi([vS, vS+1, vS+2, vS+3], [vTT, vTT+1, vTT+2, vTT+3])
    for i in range(4): P(f'v_cvt_pk_bf16_f32 {v(vS+i)}, {v(vS+i)}, {v(vS+i)}')
    P('s_waitcnt vmcnt(21)')
    stamp('C0_t1')
    chain(vD0, 4, [vT1+4*i for i in range(4)], [(vS+i, '') for i in range(4)], vAA)
    finish2(vD0, vTT, vO)
    P(f's_lshl_b32 {s(sO0)}, {s(sX)}, 5\ns_add_u32 {s(sO0)}, {s(sO0)}, {s(sKK)}\ns_lshl_b32 {s(sO0)}, {s(sO0)}, 9\ns_add_u32 {s(sO0)}, {s(sO0)}, {hex(X1)}')
    publish8(vO, vPUB, sO0, 0x00ff00ff)
    stamp('C0_x1pub')
    vx = 12
    P('s_waitcnt vmcnt(18)')
    for k in range(4): unpack(vx+2*k, vx+2*k+1, vXF+k)
    P(f'v_add_f32 {v(20)}, {v(vx)}, {v(vx+1)}\nv_add_f32 {v(21)}, {v(vx+2)}, {v(vx+3)}\nv_add_f32 {v(22)}, {v(vx+4)}, {v(vx+5)}\nv_add_f32 {v(23)}, {v(vx+6)}, {v(vx+7)}')
    P(f'v_add_f32 {v(20)}, {v(20)}, {v(21)}\nv_add_f32 {v(22)}, {v(22)}, {v(23)}\nv_add_f32 {v(20)}, {v(20)}, {v(22)}')
    wave_reduce('v_add_f32', [20])
    P(f'v_mul_f32 {v(20)}, {hex(f2u(1/512))}, {v(20)}\nv_readlane_b32 {s(sT0)}, {v(20)}, 63')
    for k in range(8): P(f'v_subrev_f32 {v(vx+k)}, {s(sT0)}, {v(vx+k)}')
    P(f'v_mul_f32 {v(21)}, {v(vx)}, {v(vx)}')
    for k in range(1, 8): P(f'v_fmac_f32 {v(21)}, {v(vx+k)}, {v(vx+k)}')
    wave_reduce('v_add_f32', [21])
    P(f'v_mul_f32 {v(21)}, {hex(f2u(1/512))}, {v(21)}')
    P(f'v_cvt_pk_bf16_f32 {v(22)}, {v(20)}, {v(21)}')
    P(f'v_and_b32 {v(21)}, 0xffff0000, {v(22)}\nv_lshlrev_b32 {v(20)}, 16, {v(22)}\nv_add_f32 {v(21)}, {EPS}, {v(21)}')
    P(f'v_cvt_pk_bf16_f32 {v(21)}, {v(21)}, {v(21)}\nv_and_b32 {v(21)}, 0xffff0000, {v(21)}\nv_sqrt_f32 {v(21)}, {v(21)}')
    P(f'v_cvt_pk_bf16_f32 {v(21)}, {v(21)}, {v(21)}\nv_and_b32 {v(21)}, 0xffff0000, {v(21)}\nv_rcp_f32 {v(22)}, {v(21)}')
    P(f'v_readlane_b32 {s(sT0)}, {v(20)}, 63\nv_readlane_b32 {s(sT1)}, {v(21)}, 63\nv_readlane_b32 {s(sT2)}, {v(22)}, 63')
    vLN = 12
    P('s_waitcnt vmcnt(18)')
    for g in range(4):
        unpack(vLN+2*g, vLN+2*g+1, vXS+g)
    for k in range(8): P(f'v_subrev_f32 {v(vLN+k)}, {s(sT0)}, {v(vLN+k)}')
    for g in range(4): P(f'v_cvt_pk_bf16_f32 {v(20+g)}, {v(vLN+2*g)}, {v(vLN+2*g+1)}')
    for g in range(4): unpack(vLN+2*g, vLN+2*g+1, 20+g)
    for k in range(8): P(f'v_mul_f32 {v(20+k)}, {s(sT2)}, {v(vLN+k)}')
    for k in range(8): P(f'v_fma_f32 {v(vLN+k)}, -{v(20+k)}, {s(sT1)}, {v(vLN+k)}')
    for k in range(8): P(f'v_fma_f32 {v(vLN+k)}, {v(vLN+k)}, {s(sT2)}, {v(20+k)}')
    for g in range(4): P(f'v_cvt_pk_bf16_f32 {v(20+g)}, {v(vLN+2*g)}, {v(vLN+2*g+1)}')
    for g in range(4): unpack(vLN+2*g, vLN+2*g+1, 20+g)
    P(f'v_bfe_u32 {v(vAD)}, {v(vL)}, 1, 3\nv_lshlrev_b32 {v(vAD)}, 9, {v(vAD)}\nv_lshrrev_b32 {v(vT)}, 4, {v(vL)}\nv_lshl_add_u32 {v(vAD)}, {v(vT)}, 5, {v(vAD)}\nv_and_b32 {v(vT)}, 1, {v(vL)}\nv_lshl_add_u32 {v(vAD)}, {v(vT)}, 4, {v(vAD)}')
    P(f's_lshl_b32 {s(sO0)}, {s(sJ)}, 14\ns_add_u32 {s(sO0)}, {s(sO0)}, {hex(X1)}\ns_add_u32 {s(sO1)}, {s(sO0)}, 4096\ns_add_u32 {s(sO2)}, {s(sO0)}, 8192\ns_add_u32 {s(sO3)}, {s(sO0)}, 12288')
    if cfg.sleep1: P(f's_sleep {cfg.sleep1}')
    def issue():
        for g in range(4):
            for k in range(4):
                P(f'buffer_load_dwordx4 {v(vGA+16*g+4*k,4)}, {v(vAD)}, {S(SRD_WS)}, {s(sO0+k)} offen offset:{128*g} sc1')
    tagcheck_loop(issue, [vGA+4*k+1 for k in range(16)], 'h1')
    stamp('C0_h1')
    vH = 20
    for g in range(4):
        b = vGA + 16*g
        P(f'v_add_f32 {v(b)}, {v(b)}, {v(b+4)}\nv_add_f32 {v(b+2)}, {v(b+2)}, {v(b+6)}\nv_add_f32 {v(b+8)}, {v(b+8)}, {v(b+12)}\nv_add_f32 {v(b+10)}, {v(b+10)}, {v(b+14)}')
        P(f'v_add_f32 {v(b)}, {v(b)}, {v(b+8)}\nv_add_f32 {v(b+2)}, {v(b+2)}, {v(b+10)}')
    for mod in ('row_ror:4', 'row_ror:8'):
        for g in range(4):
            b = vGA + 16*g
            for e in (0, 2): P(f'v_add_f32_dpp {v(b+e)}, {v(b+e)}, {v(b+e)} {mod} row_mask:0xf bank_mask:0xf')
    for g in range(4):
        b = vGA + 16*g
        P(f'v_cvt_pk_bf16_f32 {v(b+1)}, {v(b)}, {v(b+2)}')
    for g in range(4):
        b = vGA + 16*g
        P(f'v_mov_b32_dpp {v(b+4)}, {v(b+1)} quad_perm:[0,1,0,1] row_mask:0xf bank_mask:0xf')
        P(f'v_mov_b32_dpp {v(b+5)}, {v(b+1)} quad_perm:[2,3,2,3] row_mask:0xf bank_mask:0xf')
    for g in range(4):
        b = vGA + 16*g
        unpack(b+6, b+7, b+5)
        P(f'v_add_f32 {v(b+6)}, 1.0, {v(b+6)}\nv_add_f32 {v(b+7)}, 1.0, {v(b+7)}\nv_cvt_pk_bf16_f32 {v(b+5)}, {v(b+6)}, {v(b+7)}')
        unpack(b+6, b+7, b+5)
        P(f'v_mul_f32 {v(b+6)}, {v(b+6)}, {v(vLN+2*g)}\nv_mul_f32 {v(b+7)}, {v(b+7)}, {v(vLN+2*g+1)}\nv_cvt_pk_bf16_f32 {v(b+5)}, {v(b+6)}, {v(b+7)}')
        unpack(b+6, b+7, b+5); unpack(b+8, b+9, b+4)
        P(f'v_add_f32 {v(b+6)}, {v(b+6)}, {v(b+8)}\nv_add_f32 {v(b+7)}, {v(b+7)}, {v(b+9)}')
        P(f'v_cvt_pk_bf16_f32 {v(vH+2*g)}, {v(b+6)}, {v(b+6)}\nv_cvt_pk_bf16_f32 {v(vH+2*g+1)}, {v(b+7)}, {v(b+7)}')
    srcs = []
    for g in range(4):
        for k in range(4):
            a = k >> 1
            srcs.append((vH + 2*g + (k & 1), f'quad_perm:[{a},{a},{a},{a}]'))
    chain(vD0, 16, [vWQ+4*i for i in range(16)], srcs, vAA)
    P(f's_lshl_b32 {s(sO1)}, {s(sH)}, 13\ns_add_u32 {s(sO1)}, {s(sO1)}, {hex(X2)}\ns_lshl_b32 {s(sO0)}, {s(sJ)}, 10\ns_add_u32 {s(sO0)}, {s(sO0)}, {s(sO1)}')
    for r in range(4): P(f'v_mov_b32 {v(vO+2*r)}, {v(vD0+r)}')
    publish8(vO, vPUB, sO0, 0xffffffff)
    stamp('C0_x2pub')
    P(f'v_lshlrev_b32 {v(vAD)}, 4, {v(vL)}\ns_add_u32 {s(sO2)}, {s(sO1)}, 4096')
    vKR = 8
    P(f'v_and_b32 {v(vT)}, 15, {v(vL)}\nv_lshrrev_b32 {v(vT+1)}, 4, {v(vL)}\nv_xor_b32 {v(vT+1)}, {v(vT+1)}, {v(vT)}\nv_lshlrev_b32 {v(vT+1)}, 4, {v(vT+1)}\nv_lshl_add_u32 {v(vKR)}, {v(vT)}, 8, {v(vT+1)}')
    for q in range(1, 4): P(f'v_xor_b32 {v(vKR+q)}, {64*q}, {v(vKR)}')
    if cfg.sleep2: P(f's_sleep {cfg.sleep2}')
    def gather8(base_lo, base_hi):
        def issue():
            for k in range(8):
                P(f'buffer_load_dwordx4 {v(vGA+4*k,4)}, {v(vAD)}, {S(SRD_WS)}, {s(base_lo if k < 4 else base_hi)} offen offset:{1024*(k & 3)} sc1')
        return issue
    def sum8():
        for e in (0, 2):
            for a, b in ((0, 1), (2, 3), (4, 5), (6, 7), (0, 2), (4, 6), (0, 4)):
                P(f'v_add_f32 {v(vGA+4*a+e)}, {v(vGA+4*a+e)}, {v(vGA+4*b+e)}')
    tagcheck_loop(gather8(sO1, sO2), [vGA+4*k+1 for k in range(8)], 'q')
    stamp('C0_q')
    sum8()
    P(f'v_cvt_pk_bf16_f32 {v(vT)}, {v(vGA)}, {v(vGA+2)}\nv_lshlrev_b32 {v(vT+1)}, 2, {v(vL)}\nv_add_u32 {v(vT+1)}, {hex(L_Q)}, {v(vT+1)}')
    P(f'ds_write_b32 {v(vT+1)}, {v(vT)}')
    vQ = 12
    P(f'v_lshrrev_b32 {v(vT+2)}, 4, {v(vL)}\nv_lshlrev_b32 {v(vT+2)}, 4, {v(vT+2)}\nv_add_u32 {v(vT+2)}, {hex(L_Q)}, {v(vT+2)}')
    P('s_waitcnt lgkmcnt(0)')
    for q in range(4): P(f'ds_read_b128 {v(vQ+4*q,4)}, {v(vT+2)} offset:{64*q}')
    P(f'v_mov_b32 {v(vT+2)}, {hex(L_FLAG)}\ns_mov_b32 {s(sSPIN)}, 0')
    P('L_KW:')
    P(f'ds_read_b128 {v(28,4)}, {v(vT+2)}')
    P(f's_add_u32 {s(sSPIN)}, {s(sSPIN)}, 1\ns_cmp_gt_u32 {s(sSPIN)}, {cfg.spin*8}\ns_cbranch_scc1 L_END')
    P('s_waitcnt lgkmcnt(0)')
    P(f'v_and_b32 {v(28)}, {v(28)}, {v(29)}\nv_and_b32 {v(30)}, {v(30)}, {v(31)}\nv_and_b32 {v(28)}, {v(28)}, {v(30)}\nv_cmp_eq_u32 vcc, 0, {v(28)}\ns_cbranch_vccnz L_KW')
    stamp('C0_kready')
    vKB, vDQ, vS8 = 128, 28, 36
    def kread(t):
        for q in range(4): P(f'ds_read_b128 {v(vKB+16*(t & 1)+4*q,4)}, {v(vKR+q)} offset:{4096*(t & 15)}')
    P(f's_mov_b32 {s(sMASK)}, 0x00010001\ns_mov_b32 {s(sMASK+1)}, 0x00010001')
    kread(0)
    for t in range(32):
        if t == 15:
            for q in range(4): P(f'v_add_u32 {v(vKR+q)}, 0x10000, {v(vKR+q)}')
        if t + 1 < 32:
            kread(t + 1); P('s_waitcnt lgkmcnt(4)')
        else: P('s_waitcnt lgkmcnt(0)')
        for q in range(4): mfma(vDQ + 4*(t & 1), vKB + 16*(t & 1) + 4*q, vQ + 4*q, first=(q == 0))
        if t >= 1:
            u = t - 1
            for r in range(4): P(f'v_cndmask_b32 {v(vS8+4*(u >> 4)+r)}, {v(vS8+4*(u >> 4)+r)}, {v(vDQ+4*(u & 1)+r)}, {s(sMASK,2)}')
            if (u & 15) == 15: P(f's_mov_b32 {s(sMASK)}, 0x00010001\ns_mov_b32 {s(sMASK+1)}, 0x00010001')
            else: P(f's_lshl_b64 {s(sMASK,2)}, {s(sMASK,2)}, 1')
    for r in range(4): P(f'v_cndmask_b32 {v(vS8+4+r)}, {v(vS8+4+r)}, {v(vDQ+4+r)}, {s(sMASK,2)}')
    stamp('C0_qk')
    vE = 200
    for k in range(4): P(f'v_cvt_pk_bf16_f32 {v(vE+k)}, {v(vS8+2*k)}, {v(vS8+2*k+1)}')
    for k in range(4): unpack(vS8+2*k, vS8+2*k+1, vE+k)
    for k in range(8): P(f'v_mul_f32 {v(vS8+k)}, {SCALE}, {v(vS8+k)}')
    for k in range(4): P(f'v_cvt_pk_bf16_f32 {v(vE+k)}, {v(vS8+2*k)}, {v(vS8+2*k+1)}')
    for k in range(4): unpack(vS8+2*k, vS8+2*k+1, vE+k)
    vML = 52
    P(f'v_max3_f32 {v(vML)}, {v(vS8)}, {v(vS8+1)}, {v(vS8+2)}\nv_max3_f32 {v(vML+1)}, {v(vS8+3)}, {v(vS8+4)}, {v(vS8+5)}\nv_max3_f32 {v(vML)}, {v(vML)}, {v(vS8+6)}, {v(vS8+7)}\nv_max_f32 {v(vML)}, {v(vML)}, {v(vML+1)}')
    wave_reduce('v_max_f32', [vML])
    P(f'v_readlane_b32 {s(sT0)}, {v(vML)}, 63\nv_mov_b32 {v(vML+2)}, {s(sTAG)}\nv_mov_b32 {v(vML+3)}, {s(sTAG)}')
    def exps(dst):
        for k in range(8): P(f'v_subrev_f32 {v(dst+k)}, {s(sT0)}, {v(vS8+k)}')
        for k in range(8): P(f'v_mul_f32 {v(dst+k)}, {LOG2E}, {v(dst+k)}')
        for k in range(8): P(f'v_exp_f32 {v(dst+k)}, {v(dst+k)}')
    exps(vE)
    for a, b in ((0, 1), (2, 3), (4, 5), (6, 7), (0, 2), (4, 6)): P(f'v_add_f32 {v(vE+a)}, {v(vE+a)}, {v(vE+b)}')
    P(f'v_add_f32 {v(vML+1)}, {v(vE)}, {v(vE+4)}')
    wave_reduce('v_add_f32', [vML+1])
    P(f's_lshl_b32 {s(sO1)}, {s(sH)}, 7\ns_add_u32 {s(sO1)}, {s(sO1)}, {hex(X3)}\ns_lshl_b32 {s(sO0)}, {s(sJ)}, 4\ns_add_u32 {s(sO0)}, {s(sO0)}, {s(sO1)}\nv_mov_b32 {v(vT)}, 0')
    setexec(1 << 63)
    P(f'buffer_store_dwordx4 {v(vML,4)}, {v(vT)}, {S(SRD_WS)}, {s(sO0)} offen sc1')
    setexec((1 << 64) - 1)
    stamp('C0_x3pub')
    sGA = 8
    P(f's_add_u32 {s(sMASK)}, {s(sWSP)}, {s(sO1)}\ns_addc_u32 {s(sMASK+1)}, {s(sWSP+1)}, 0\ns_mov_b32 {s(sSPIN)}, 0')
    gl = [20, 24, 28, 32, 8, 12, 76, 80]
    P('L_MLW:')
    P(f's_load_dwordx16 s[20:35], {s(sMASK,2)}, 0 glc\ns_load_dwordx8 s[8:15], {s(sMASK,2)}, 64 glc\ns_load_dwordx8 s[76:83], {s(sMASK,2)}, 96 glc')
    P(f's_add_u32 {s(sSPIN)}, {s(sSPIN)}, 1\ns_cmp_gt_u32 {s(sSPIN)}, {cfg.spin}\ns_cbranch_scc1 L_END')
    P('s_waitcnt lgkmcnt(0)')
    P(f's_xor_b32 {s(sT0)}, {s(gl[0]+2)}, {s(sTAG)}')
    for g in gl[1:]: P(f's_xor_b32 {s(sT1)}, {s(g+2)}, {s(sTAG)}\ns_or_b32 {s(sT0)}, {s(sT0)}, {s(sT1)}')
    P('s_cbranch_scc1 L_MLW')
    stamp('C0_ml')
    vMx, vLs = 52, 53
    P(f'v_mov_b32 {v(vMx)}, {s(gl[0])}')
    for g in gl[1:]: P(f'v_max_f32 {v(vMx)}, {s(g)}, {v(vMx)}')
    for k, g in enumerate(gl): P(f'v_sub_f32 {v(vE+k)}, {s(g)}, {v(vMx)}')
    for k in range(8): P(f'v_mul_f32 {v(vE+k)}, {LOG2E}, {v(vE+k)}')
    for k in range(8): P(f'v_exp_f32 {v(vE+k)}, {v(vE+k)}')
    P(f'v_mul_f32 {v(vLs)}, {s(gl[0]+1)}, {v(vE)}')
    for k, g in enumerate(gl[1:]): P(f'v_fmac_f32 {v(vLs)}, {s(g+1)}, {v(vE+k+1)}')
    P(f'v_rcp_f32 {v(vLs+1)}, {v(vLs)}\nv_readfirstlane_b32 {s(sT0)}, {v(vMx)}')
    P(f'v_fma_f32 {v(vLs)}, -{v(vLs)}, {v(vLs+1)}, 1.0\nv_fma_f32 {v(vLs)}, {v(vLs)}, {v(vLs+1)}, {v(vLs+1)}')
    exps(vE)
    for k in range(8): P(f'v_mul_f32 {v(vE+k)}, {v(vE+k)}, {v(vLs)}')
    for k in range(8): P(f'v_cvt_pk_bf16_f32 {v(vE+k)}, {v(vE+k)}, {v(vE+k)}')
    P(f'v_and_b32 {v(vT)}, 15, {v(vL)}\nv_lshlrev_b32 {v(vT)}, 6, {v(vT)}\nv_lshrrev_b32 {v(vT+1)}, 4, {v(vL)}\nv_lshl_add_u32 {v(vT)}, {v(vT+1)}, 4, {v(vT)}\nv_add_u32 {v(vT)}, {hex(L_P)}, {v(vT)}')
    P(f'ds_write_b128 {v(vT)}, {v(vE,4)}\nds_write_b128 {v(vT)}, {v(vE+4,4)} offset:1024')
    srd(SRD_A, pWO, 4 << 20)
    P(f'v_lshrrev_b32 {v(vT+1)}, 3, {v(vL)}\nv_lshlrev_b32 {v(vT+1)}, 14, {v(vT+1)}\nv_and_b32 {v(vT+2)}, 7, {v(vL)}\nv_lshl_add_u32 {v(vAD+2)}, {v(vT+2)}, 4, {v(vT+1)}')
    P(f's_lshl_b32 {s(sO0)}, {s(sH)}, 17\ns_lshl_b32 {s(sT0)}, {s(sJ)}, 7\ns_add_u32 {s(sO0)}, {s(sO0)}, {s(sT0)}')
    P('s_waitcnt lgkmcnt(0)')
    stamp('C0_p')
    P('s_barrier')
    vWO = 64
    for i in range(16):
        P(f'buffer_load_dwordx4 {v(vWO+4*i,4)}, {v(vAD+2)}, {S(SRD_A)}, {s(sO0)} offen offset:{1024*(i & 3)} {cfg.wpol}')
        if (i & 3) == 3 and i < 15: P(f's_add_u32 {s(sO0)}, {s(sO0)}, 4096')
    P(f'v_lshrrev_b32 {v(vT)}, 1, {v(vPUB)}\nv_add_u32 {v(vT)}, {hex(L_OP)}, {v(vT)}')
    P(f's_lshl_b32 {s(sO1)}, {s(sH)}, 13\ns_add_u32 {s(sO1)}, {s(sO1)}, {hex(XA)}\ns_lshl_b32 {s(sO0)}, {s(sJ)}, 10\ns_add_u32 {s(sO0)}, {s(sO0)}, {s(sO1)}\ns_add_u32 {s(sO2)}, {s(sO1)}, 4096')
    P(f's_lshl_b32 {s(sO3)}, {s(sJ)}, 5\ns_add_u32 {s(sO3)}, {s(sO3)}, {s(sH)}\ns_lshl_b32 {s(sO3)}, {s(sO3)}, 9\ns_add_u32 {s(sO3)}, {s(sO3)}, {hex(XB)}')
    P('s_barrier')
    stamp('C0_b2')
    for w in range(4): P(f'ds_read_b128 {v(12+4*w,4)}, {v(vT)} offset:{512*w}')
    P('s_waitcnt lgkmcnt(2)')
    for r in range(4): P(f'v_add_f32 {v(12+r)}, {v(12+r)}, {v(16+r)}')
    P('s_waitcnt lgkmcnt(0)')
    for r in range(4): P(f'v_add_f32 {v(20+r)}, {v(20+r)}, {v(24+r)}')
    for r in range(4): P(f'v_add_f32 {v(vO+2*r)}, {v(12+r)}, {v(20+r)}')
    publish8(vO, vPUB, sO0, 0xffffffff)
    stamp('C0_xapub')
    tagcheck_loop(gather8(sO1, sO2), [vGA+4*k+1 for k in range(8)], 'xa')
    stamp('C0_xa')
    sum8()
    vOd = 12
    P(f'v_cvt_pk_bf16_f32 {v(vOd)}, {v(vGA)}, {v(vGA)}\nv_cvt_pk_bf16_f32 {v(vOd+1)}, {v(vGA+2)}, {v(vGA+2)}')
    P(f'v_mov_b32 {v(vOd+2)}, {v(vOd)}\nv_mov_b32 {v(vOd+3)}, {v(vOd+1)}')
    for e in range(2): P(f'v_mov_b32_dpp {v(vOd+2+e)}, {v(vOd+e)} row_shl:4 row_mask:0xf bank_mask:0x5')
    for e in range(2): P(f'v_mov_b32_dpp {v(vOd+e)}, {v(vOd+e)} row_shr:4 row_mask:0xf bank_mask:0xa')
    srcs = []
    for i in range(16):
        u = i >> 1; a = u & 3
        srcs.append((vOd + (2 if u >= 4 else 0) + (i & 1), f'quad_perm:[{a},{a},{a},{a}]'))
    chain(vD0, 16, [vWO+4*i for i in range(16)], srcs, vAA)
    finish2(vD0, vTT, vO)
    publish8(vO, vPUB, sO3, 0x00ff00ff)
    stamp('C0_xbpub')
    P(f's_cmp_lt_u32 {s(sIM)}, {NM}\ns_cbranch_scc1 L_MLP')
    P('s_branch L_END')

    P('L_C123:')
    P(f's_cmp_eq_u32 {s(sW)}, 5\ns_cbranch_scc1 L_C1')
    P(f's_cmp_eq_u32 {s(sW)}, 6\ns_cbranch_scc0 L_C3')
    P(f's_getpc_b64 {s(20,2)}')
    P('L_PCREF:')
    P(f's_sub_u32 s20, s20, L_PCREF-{NAME}_kernel\ns_subb_u32 s21, s21, 0')
    P(f's_lshl_b32 {s(sT0)}, {s(sKK)}, 3\nv_and_b32 {v(vT)}, 7, {v(vL)}\nv_add_u32 {v(vT)}, {s(sT0)}, {v(vT)}\nv_lshlrev_b32 {v(vT)}, 7, {v(vT)}')
    P(f'v_min_u32 {v(vT)}, L_CODE_END-{NAME}_kernel-4, {v(vT)}')
    P(f'global_load_dword {v(240)}, {v(vT)}, s[20:21]')
    P('L_C3:')
    srd(SRD_A, pW1, 512*2752); srd(SRD_B, pW3, 512*2752); srd(SRD_C, pW2, 1376*1024)
    P(f'v_lshrrev_b32 {v(vT)}, 2, {v(vL)}\nv_mul_u32_u24 {v(10)}, 2752, {v(vT)}\nv_and_b32 {v(vT)}, 3, {v(vL)}\nv_lshlrev_b32 {v(vT)}, 7, {v(vT)}\nv_min_u32 {v(vT)}, 380, {v(vT)}\nv_add_u32 {v(10)}, {v(10)}, {v(vT)}')
    P(f's_mul_i32 {s(sO0)}, {s(sKK)}, {16*2752}\ns_mul_i32 {s(sT0)}, {s(sX)}, 384\ns_add_u32 {s(sO0)}, {s(sO0)}, {s(sT0)}')
    P(f'v_lshlrev_b32 {v(11)}, 7, {v(vL)}\ns_mul_i32 {s(sO1)}, {s(sX)}, {192*1024}\ns_mul_i32 {s(sT0)}, {s(sKK)}, 6144\ns_add_u32 {s(sO1)}, {s(sO1)}, {s(sT0)}')
    P('s_waitcnt lgkmcnt(0)')
    P(f's_add_u32 {s(sTAG)}, {s(sTAG)}, 1')
    P('s_barrier')
    P(f's_cmp_eq_u32 {s(sW)}, 6\ns_cbranch_scc0 L_C3B')
    P(f'buffer_load_dword {v(241)}, {v(10)}, {S(SRD_A)}, {s(sO0)} offen {cfg.wpol}')
    P(f'buffer_load_dword {v(242)}, {v(10)}, {S(SRD_B)}, {s(sO0)} offen {cfg.wpol}')
    setexec((1 << 48) - 1)
    P(f'buffer_load_dword {v(243)}, {v(11)}, {S(SRD_C)}, {s(sO1)} offen {cfg.wpol}')
    setexec((1 << 64) - 1)
    P('L_C3B:')
    P('s_barrier')
    P(f's_cmp_lt_u32 {s(sIM)}, {NM}\ns_cbranch_scc1 L_MLP')
    P('s_branch L_END')

    P('L_C1:')
    vCc, vT2 = 12, 64
    srd(SRD_A, pC, 1024); srd(SRD_B, pWM, 512*6144)
    P(f'v_lshrrev_b32 {v(vG)}, 3, {v(vL)}\nv_and_b32 {v(vC8)}, 7, {v(vL)}')
    P(f'v_lshlrev_b32 {v(vAD)}, 4, {v(vG)}\ns_lshl_b32 {s(sO0)}, {s(sJ)}, 7')
    P(f'buffer_load_dwordx4 {v(vCc,4)}, {v(vAD)}, {S(SRD_A)}, {s(sO0)} offen')
    P(f'v_mul_u32_u24 {v(vAD+1)}, {8*6144}, {v(vG)}\nv_lshl_add_u32 {v(vAD+1)}, {v(vC8)}, 4, {v(vAD+1)}')
    P(f's_mul_i32 {s(sO0)}, {s(sJ)}, {64*6144}\ns_lshl_b32 {s(sT0)}, {s(sH)}, 7\ns_add_u32 {s(sO0)}, {s(sO0)}, {s(sT0)}\ns_add_u32 {s(sO0)}, {s(sO0)}, 2048')
    for i in range(8):
        P(f'buffer_load_dwordx4 {v(vT2+4*i,4)}, {v(vAD+1)}, {S(SRD_B)}, {s(sO0)} offen {cfg.wpol}')
        if i < 7: P(f's_add_u32 {s(sO0)}, {s(sO0)}, 6144')
    P('s_waitcnt lgkmcnt(0)')
    P(f's_add_u32 {s(sTAG)}, {s(sTAG)}, 1')
    settags(vO)
    P(f'v_and_b32 {v(vT)}, 15, {v(vL)}\nv_lshlrev_b32 {v(vT)}, 6, {v(vT)}\nv_lshrrev_b32 {v(vPUB)}, 4, {v(vL)}\nv_lshl_add_u32 {v(vPUB)}, {v(vPUB)}, 5, {v(vT)}')
    P('s_waitcnt vmcnt(8)')
    vS = 16
    for k in range(4): unpack(vS+2*k, vS+2*k+1, vCc+k)
    silu_multi([vS+k for k in range(8)], [24+k for k in range(8)])
    for i in range(8): P(f'v_cvt_pk_bf16_f32 {v(vS+i)}, {v(vS+i)}, {v(vS+i)}')
    P('s_waitcnt vmcnt(0)')
    chain(vD0, 8, [vT2+4*i for i in range(8)], [(vS+i, '') for i in range(8)], vAA)
    finish2(vD0, vTT, vO)
    P(f's_lshl_b32 {s(sO0)}, {s(sH)}, 3\ns_add_u32 {s(sO0)}, {s(sO0)}, {s(sJ)}\ns_lshl_b32 {s(sO0)}, {s(sO0)}, 9\ns_add_u32 {s(sO0)}, {s(sO0)}, {hex(X4)}')
    publish8(vO, vPUB, sO0, 0x00ff00ff)
    P(f's_cmp_lt_u32 {s(sR)}, 64\ns_cbranch_scc1 L_RED')
    P('s_barrier\ns_barrier')
    P(f's_cmp_lt_u32 {s(sIM)}, {NM}\ns_cbranch_scc1 L_MLP')
    P('s_branch L_END')
    P('L_RED:')
    vg = 64
    srd(SRD_A, pX, 1024); srd(SRD_B, pOUT, 1024)
    vXv, vGAv, vGBv, vCBp, vSBp = 12, 13, 14, 15, 16
    P(f'v_and_b32 {v(vT)}, 3, {v(vL)}\nv_lshlrev_b32 {v(vT)}, 2, {v(vT)}\nv_bfe_u32 {v(vT+1)}, {v(vL)}, 4, 1\nv_lshl_add_u32 {v(vT)}, {v(vT+1)}, 1, {v(vT)}\ns_lshl_b32 {s(sO0)}, {s(sR)}, 4')
    P(f'buffer_load_ushort {v(vXv)}, {v(vT)}, {S(SRD_A)}, {s(sO0)} offen')
    P(f'v_lshrrev_b32 {v(vAD)}, 5, {v(vL)}\nv_lshlrev_b32 {v(vAD)}, 15, {v(vAD)}\nv_bfe_u32 {v(vT)}, {v(vL)}, 2, 3\nv_lshl_add_u32 {v(vAD)}, {v(vT)}, 9, {v(vAD)}\nv_and_b32 {v(vT)}, 3, {v(vL)}\nv_lshl_add_u32 {v(vAD)}, {v(vT)}, 4, {v(vAD)}')
    P(f's_lshr_b32 {s(sT0)}, {s(sR)}, 3\ns_and_b32 {s(sT1)}, {s(sR)}, 7\ns_lshl_b32 {s(sT1)}, {s(sT1)}, 6\ns_lshl_b32 {s(sO0)}, {s(sT0)}, 12\ns_add_u32 {s(sO0)}, {s(sO0)}, {s(sT1)}\ns_add_u32 {s(sO0)}, {s(sO0)}, {hex(X4)}\ns_add_u32 {s(sO1)}, {s(sO0)}, 0x10000')
    P('s_sleep 64')
    def issue():
        for k in range(2): P(f'buffer_load_dwordx4 {v(vg+4*k,4)}, {v(vAD)}, {S(SRD_WS)}, {s(sO0+k)} offen sc1')
    tagcheck_loop(issue, [vg+1, vg+5], 'x4')
    for mod in ('row_ror:4', 'row_ror:8'):
        for r in (0, 2, 4, 6): P(f'v_add_f32_dpp {v(vg+r)}, {v(vg+r)}, {v(vg+r)} {mod} row_mask:0xf bank_mask:0xf')
    P(f'v_permlane16_swap_b32 {v(vg)}, {v(vg+2)}\nv_permlane16_swap_b32 {v(vg+4)}, {v(vg+6)}')
    P(f'v_add_f32 {v(vg)}, {v(vg)}, {v(vg+2)}\nv_add_f32 {v(vg+4)}, {v(vg+4)}, {v(vg+6)}')
    P(f'v_cvt_pk_bf16_f32 {v(vg)}, {v(vg)}, {v(vg+4)}')
    unpack(vg+2, vg+6, vg)
    P(f'v_mov_b32 {v(vg+3)}, {v(vg+2)}\nv_mov_b32 {v(vg+7)}, {v(vg+6)}')
    P(f'v_permlane32_swap_b32 {v(vg+2)}, {v(vg+3)}\nv_permlane32_swap_b32 {v(vg+6)}, {v(vg+7)}')
    P(f'v_mov_b32 {v(vGAv)}, {v(vg+2)}\nv_mov_b32 {v(vGBv)}, {v(vg+7)}\nv_add_f32 {v(vg+6)}, 1.0, {v(vg+6)}')
    P(f'v_mov_b32 {v(vg)}, {v(vg+3)}\nv_mov_b32 {v(vg+4)}, {v(vg+6)}')
    P(f'v_permlane16_swap_b32 {v(vg+3)}, {v(vg)}\nv_permlane16_swap_b32 {v(vg+6)}, {v(vg+4)}')
    vXC = 20
    P(f'v_cvt_pk_bf16_f32 {v(vXC+2)}, {v(vg+3)}, {v(vg)}\nv_cvt_pk_bf16_f32 {v(vXC+1)}, {v(vg+6)}, {v(vg+4)}\nv_mov_b32 {v(vXC+3)}, {s(sTAG)}')
    P(f'v_lshlrev_b32 {v(vXv)}, 16, {v(vXv)}')
    vBA, vDA, vU16 = 17, 18, 19
    P(f'v_and_b32 {v(vU16)}, 3, {v(vL)}\nv_lshlrev_b32 {v(vU16)}, 4, {v(vU16)}\nv_lshrrev_b32 {v(vT)}, 2, {v(vL)}\nv_lshl_add_u32 {v(vBA)}, {v(vT)}, 9, {v(vU16)}\nv_lshl_add_u32 {v(vDA)}, {v(vT)}, 12, {v(vU16)}')
    P(f's_lshl_b32 {s(sO0)}, {s(sT0)}, 14\ns_add_u32 {s(sO0)}, {s(sO0)}, {s(sT1)}\ns_add_u32 {s(sO0)}, {s(sO0)}, {hex(XB)}\ns_add_u32 {s(sO1)}, {s(sO0)}, 8192')
    P(f's_lshl_b32 {s(sO2)}, {s(sR)}, 6\ns_add_u32 {s(sO3)}, {s(sO2)}, {hex(XC)}')
    P('s_barrier\ns_barrier')
    stamp('R_b2')
    def issue():
        for k in range(2): P(f'buffer_load_dwordx4 {v(vg+4*k,4)}, {v(vBA)}, {S(SRD_WS)}, {s(sO0+k)} offen sc1')
    tagcheck_loop(issue, [vg+1, vg+5], 'xb')
    stamp('R_xb')
    def colsum():
        P(f'v_permlane16_swap_b32 {v(vg)}, {v(vg+2)}')
        P(f'v_add_f32 {v(vg)}, {v(vg)}, {v(vg+2)}')
        P(f'v_mov_b32 {v(vg+2)}, {v(vg)}')
        P(f'v_add_f32_dpp {v(vg)}, {v(vg)}, {v(vg)} row_ror:4 row_mask:0xf bank_mask:0xf')
        P(f'v_add_f32_dpp {v(vg+2)}, {v(vg+2)}, {v(vg+2)} row_ror:4 row_mask:0xf bank_mask:0xf')
        P(f'v_permlane32_swap_b32 {v(vg)}, {v(vg+2)}')
        P(f'v_add_f32 {v(vg)}, {v(vg)}, {v(vg+2)}')
        P(f'v_add_f32_dpp {v(vg)}, {v(vg)}, {v(vg)} row_ror:8 row_mask:0xf bank_mask:0xf')
    def rnd(r): P(f'v_cvt_pk_bf16_f32 {v(r)}, {v(r)}, {v(r)}\nv_and_b32 {v(r)}, 0xffff0000, {v(r)}')
    P(f'v_add_f32 {v(vg)}, {v(vg)}, {v(vg+4)}\nv_add_f32 {v(vg+2)}, {v(vg+2)}, {v(vg+6)}')
    colsum()
    rnd(vg)
    P(f'v_mul_f32 {v(vg)}, {v(vg)}, {v(vGAv)}'); rnd(vg)
    P(f'v_add_f32 {v(vg)}, {v(vg)}, {v(vXv)}\nv_mov_b32 {v(vg+2)}, {v(vg)}')
    P(f'v_permlane16_swap_b32 {v(vg)}, {v(vg+2)}')
    P(f'v_cvt_pk_bf16_f32 {v(vXC)}, {v(vg)}, {v(vg+2)}')
    setexec(0xf)
    P(f'buffer_store_dwordx4 {v(vXC,4)}, {v(vU16)}, {S(SRD_WS)}, {s(sO3)} offen sc1')
    setexec((1 << 64) - 1)
    stamp('R_xcpub')
    P(f'v_bfe_u32 {v(vT)}, {v(vL)}, 4, 1\nv_lshlrev_b32 {v(vT)}, 4, {v(vT)}\nv_lshrrev_b32 {v(vXv)}, {v(vT)}, {v(vXC)}\nv_lshlrev_b32 {v(vXv)}, 16, {v(vXv)}')
    for k in range(4): P(f'v_mov_b32 {v(vg+20+k)}, {0 if k % 2 == 0 else s(sTAG)}')
    P(f's_add_u32 {s(sO2)}, {s(sO2)}, {hex(XD)}')
    for k in range(6): P(f's_add_u32 {s(76+k)}, {s(sO2)}, {hex(65536*k)}')
    P(f'v_lshrrev_b32 {v(vBA)}, 2, {v(vU16)}\ns_lshl_b32 {s(sO0)}, {s(sR)}, 4')
    def issue():
        for k in range(5): P(f'buffer_load_dwordx4 {v(vg+4*k,4)}, {v(vDA)}, {S(SRD_WS)}, {s(76+k)} offen sc1')
        setexec((1 << 24) - 1)
        P(f'buffer_load_dwordx4 {v(vg+20,4)}, {v(vDA)}, {S(SRD_WS)}, {s(81)} offen sc1')
        setexec((1 << 64) - 1)
    tagcheck_loop(issue, [vg+4*k+1 for k in range(6)], 'xd')
    stamp('R_xd')
    for e in (0, 2):
        for a, b in ((0, 1), (2, 3), (4, 5), (0, 2), (0, 4)): P(f'v_add_f32 {v(vg+4*a+e)}, {v(vg+4*a+e)}, {v(vg+4*b+e)}')
    colsum()
    rnd(vg)
    P(f'v_mul_f32 {v(vg)}, {v(vg)}, {v(vGBv)}'); rnd(vg)
    P(f'v_add_f32 {v(vg)}, {v(vg)}, {v(vXv)}\nv_mov_b32 {v(vg+2)}, {v(vg)}')
    P(f'v_permlane16_swap_b32 {v(vg)}, {v(vg+2)}')
    P(f'v_cvt_pk_bf16_f32 {v(vg)}, {v(vg)}, {v(vg+2)}')
    setexec(0xf)
    P(f'buffer_store_dword {v(vg)}, {v(vBA)}, {S(SRD_B)}, {s(sO0)} offen')
    stamp('R_end')
    P(f's_cmp_eq_u32 {s(sR)}, 0\ns_cbranch_scc0 L_FIN')
    setexec(1)
    P(f'v_mov_b32 {v(vT)}, 0\nv_mov_b32 {v(vT+1)}, {s(sTAG)}')
    P(f'buffer_store_dword {v(vT+1)}, {v(vT)}, {S(SRD_WS)}, 0 offen sc1')
    if cfg.probe:
        i = stamps[cfg.probe]
        P(f's_waitcnt lgkmcnt(0)\ns_sub_u32 {s(sT0)}, {s(sDIAG+2*i)}, {s(sDIAG)}\ns_memrealtime s[76:77]\ns_waitcnt lgkmcnt(0)\ns_add_u32 {s(sT0)}, {s(sT0)}, s76')
        P(f'L_PROBE:\ns_memrealtime s[76:77]\ns_waitcnt lgkmcnt(0)\ns_sub_u32 {s(sT1)}, s76, {s(sT0)}\ns_cmp_lt_i32 {s(sT1)}, 0\ns_cbranch_scc1 L_PROBE')
    P('L_FIN:')
    P('s_branch L_END')

    P('L_MLP:')
    vUP, vDN, vCG = 64, 96, 112
    vAP = 8
    srd(SRD_A, pW2, 1376*1024)
    P(f'v_lshrrev_b32 {v(vT)}, 3, {v(vL)}\nv_mul_u32_u24 {v(vT)}, {8*2752}, {v(vT)}\nv_and_b32 {v(vT+1)}, 3, {v(vL)}\nv_lshl_add_u32 {v(vT)}, {v(vT+1)}, 4, {v(vT)}')
    P(f's_mul_i32 {s(sT0)}, {s(sW)}, {64*2752}\ns_lshl_b32 {s(sT1)}, {s(sIM)}, 6\ns_add_u32 {s(sT0)}, {s(sT0)}, {s(sT1)}\nv_add_u32 {v(vT)}, {s(sT0)}, {v(vT)}')
    P(f's_mov_b32 {s(sMASK)}, 0xf0f0f0f0\ns_mov_b32 {s(sMASK+1)}, 0xf0f0f0f0')
    P(f'v_mov_b32 {v(vAP)}, {s(pW1)}\nv_mov_b32 {v(vAP+1)}, {s(pW1+1)}\nv_mov_b32 {v(vT+1)}, {s(pW3)}\nv_mov_b32 {v(vT+2)}, {s(pW3+1)}')
    P(f'v_cndmask_b32 {v(vAP)}, {v(vAP)}, {v(vT+1)}, {s(sMASK,2)}\nv_cndmask_b32 {v(vAP+1)}, {v(vAP+1)}, {v(vT+2)}, {s(sMASK,2)}')
    P(f'v_add_co_u32 {v(vAP)}, vcc, {v(vAP)}, {v(vT)}\nv_addc_co_u32 {v(vAP+1)}, vcc, 0, {v(vAP+1)}, vcc')
    vDNA, vCA, vUW, vUR, vPB = 10, 11, 12, 13, 14
    P(f'v_lshrrev_b32 {v(vT)}, 4, {v(vL)}\nv_and_b32 {v(vT+1)}, 15, {v(vL)}\nv_lshlrev_b32 {v(vDNA)}, 12, {v(vT)}\nv_lshl_add_u32 {v(vDNA)}, {v(vT+1)}, 4, {v(vDNA)}')
    P(f'v_lshlrev_b32 {v(vPB)}, 6, {v(vT+1)}\nv_lshl_add_u32 {v(vPB)}, {v(vT)}, 5, {v(vPB)}')
    P(f's_lshr_b32 {s(sT0)}, {s(sW)}, 2\ns_and_b32 {s(sT1)}, {s(sW)}, 3')
    P(f's_lshl_b32 {s(sO0)}, {s(sIM)}, 15\ns_lshl_b32 {s(sT2)}, {s(sT0)}, 14\ns_add_u32 {s(sO0)}, {s(sO0)}, {s(sT2)}\ns_lshl_b32 {s(sT2)}, {s(sT1)}, 8\ns_add_u32 {s(sO0)}, {s(sO0)}, {s(sT2)}')
    P(f's_lshl_b32 {s(sO3)}, {s(sIM)}, 1\ns_add_u32 {s(sO3)}, {s(sO3)}, {s(sT0)}\ns_lshl_b32 {s(sO3)}, {s(sO3)}, 12\ns_lshl_b32 {s(sT2)}, {s(sT1)}, 10\ns_add_u32 {s(sO3)}, {s(sO3)}, {s(sT2)}\ns_add_u32 {s(sO3)}, {s(sO3)}, {hex(XD)}')
    P(f'v_and_b32 {v(vT+2)}, 3, {v(vL)}\nv_lshlrev_b32 {v(vUW)}, 6, {v(vT+2)}\nv_bfe_u32 {v(vT+2)}, {v(vL)}, 2, 1\nv_lshl_add_u32 {v(vUW)}, {v(vT+2)}, 5, {v(vUW)}')
    P(f'v_bfe_u32 {v(vT+2)}, {v(vL)}, 4, 1\nv_lshl_add_u32 {v(vUW)}, {v(vT+2)}, 4, {v(vUW)}\nv_bfe_u32 {v(vT+2)}, {v(vL)}, 5, 1\nv_lshl_add_u32 {v(vUW)}, {v(vT+2)}, 8, {v(vUW)}')
    P(f's_lshl_b32 {s(sT2)}, {s(sW)}, 9\ns_lshl_b32 {s(sO1)}, {s(sT0)}, 6\ns_add_u32 {s(sT2)}, {s(sT2)}, {s(sO1)}\ns_add_u32 {s(sT2)}, {s(sT2)}, {hex(L_U)}\nv_add_u32 {v(vUW)}, {s(sT2)}, {v(vUW)}')
    P(f'v_and_b32 {v(vT+2)}, 7, {v(vL)}\nv_lshlrev_b32 {v(vUR)}, 2, {v(vT+2)}\nv_bfe_u32 {v(vT+2)}, {v(vL)}, 2, 1\nv_lshl_add_u32 {v(vUR)}, {v(vT+2)}, 4, {v(vUR)}')
    P(f'v_bfe_u32 {v(vT+2)}, {v(vL)}, 4, 1\nv_lshl_add_u32 {v(vUR)}, {v(vT+2)}, 4, {v(vUR)}\nv_bfe_u32 {v(vT+2)}, {v(vL)}, 5, 1\nv_lshl_add_u32 {v(vUR)}, {v(vT+2)}, 6, {v(vUR)}')
    P(f'v_bfe_u32 {v(vT+2)}, {v(vL)}, 3, 1\nv_mul_u32_u24 {v(vT+2)}, {2048+64}, {v(vT+2)}\nv_add_u32 {v(vUR)}, {v(vUR)}, {v(vT+2)}\ns_lshl_b32 {s(sT2)}, {s(sT0)}, 7\ns_add_u32 {s(sT2)}, {s(sT2)}, {hex(L_U)}\nv_add_u32 {v(vUR)}, {s(sT2)}, {v(vUR)}')
    P(f'v_lshrrev_b32 {v(vT)}, 3, {v(vL)}\nv_lshlrev_b32 {v(vT)}, 6, {v(vT)}\nv_and_b32 {v(vT+1)}, 3, {v(vL)}\nv_lshl_add_u32 {v(vCA)}, {v(vT+1)}, 4, {v(vT)}\nv_mov_b32 {v(15)}, 0')
    P(f's_lshl_b32 {s(sO1)}, {s(sW)}, 9\ns_add_u32 {s(sO1)}, {s(sO1)}, {hex(XC)}\ns_mov_b32 {s(sO2)}, {hex(XC)}')
    settags(vO)
    P('s_barrier')
    P(f's_mov_b32 {s(sMASK)}, 2752*2\ns_mov_b32 {s(sMASK+1)}, 0')
    for i in range(8):
        P(f'global_load_dwordx4 {v(vUP+4*i,4)}, {v(vAP,2)}, off offset:{2752*(i & 1)} {cfg.wpol}')
        if i & 1 and i < 7: P(f'v_lshl_add_u64 {v(vAP,2)}, {v(vAP,2)}, 0, {s(sMASK,2)}')
    for i in range(4): P(f'buffer_load_dwordx4 {v(vDN+4*i,4)}, {v(vDNA)}, {S(SRD_A)}, {s(sO0)} offen offset:{1024*i} {cfg.wpol}')
    def issue():
        P(f'buffer_load_dwordx4 {v(vCG,4)}, {v(vCA)}, {S(SRD_WS)}, {s(sO1)} offen sc1')
        P(f'buffer_load_dwordx4 {v(vCG+4,4)}, {v(15)}, {S(SRD_WS)}, {s(sO2)} offen sc1')
    tagcheck_loop(issue, [vCG+3, vCG+7], 'xc')
    stamp('M_xc')
    vx, vsh = 16, 18
    unpack(vx, vx+1, vCG)
    P(f'v_lshlrev_b32 {v(vsh)}, 16, {v(vCG+4)}')
    P(f'v_sub_f32 {v(20)}, {v(vx)}, {v(vsh)}\nv_sub_f32 {v(21)}, {v(vx+1)}, {v(vsh)}')
    P(f'v_add_f32 {v(22)}, {v(20)}, {v(21)}\nv_mul_f32 {v(23)}, {v(20)}, {v(20)}\nv_fmac_f32 {v(23)}, {v(21)}, {v(21)}')
    for mod in ('quad_perm:[1,0,3,2] row_mask:0xf', 'quad_perm:[2,3,0,1] row_mask:0xf', 'row_ror:8 row_mask:0xf', 'row_bcast:15 row_mask:0xa', 'row_bcast:31 row_mask:0xc'):
        for r in (22, 23): P(f'v_add_f32_dpp {v(r)}, {v(r)}, {v(r)} {mod} bank_mask:0xf')
    P(f's_lshl_b32 {s(sT2)}, {s(sW)}, 3\ns_add_u32 {s(sT2)}, {s(sT2)}, {hex(L_ST)}\nv_mov_b32 {v(vT)}, {s(sT2)}')
    P(f'v_and_b32 {v(vT+1)}, 7, {v(vL)}\nv_lshlrev_b32 {v(vT+1)}, 3, {v(vT+1)}')
    if L_ST: P(f'v_add_u32 {v(vT+1)}, {hex(L_ST)}, {v(vT+1)}')
    setexec(1 << 63)
    P(f'ds_write_b64 {v(vT)}, {v(22,2)}')
    setexec((1 << 64) - 1)
    P('s_waitcnt lgkmcnt(0)')
    P('s_barrier')
    P(f'ds_read_b64 {v(22,2)}, {v(vT+1)}')
    vcb, vsb = 24, 26
    unpack(vcb, vcb+1, vCG+1); unpack(vsb, vsb+1, vCG+2)
    P('s_waitcnt lgkmcnt(0)')
    for mod in ('quad_perm:[1,0,3,2]', 'quad_perm:[2,3,0,1]', 'row_half_mirror'):
        for r in (22, 23): P(f'v_add_f32_dpp {v(r)}, {v(r)}, {v(r)} {mod} row_mask:0xf bank_mask:0xf')
    P(f'v_mul_f32 {v(22)}, {hex(f2u(1/512))}, {v(22)}\nv_mul_f32 {v(23)}, {hex(f2u(1/512))}, {v(23)}')
    P(f'v_fma_f32 {v(23)}, -{v(22)}, {v(22)}, {v(23)}\nv_add_f32 {v(22)}, {v(22)}, {v(vsh)}\nv_max_f32 {v(23)}, 0, {v(23)}')
    P(f'v_cvt_pk_bf16_f32 {v(22)}, {v(22)}, {v(23)}')
    P(f'v_and_b32 {v(23)}, 0xffff0000, {v(22)}\nv_lshlrev_b32 {v(22)}, 16, {v(22)}\nv_add_f32 {v(23)}, {EPS}, {v(23)}')
    P(f'v_sub_f32 {v(20)}, {v(vx)}, {v(22)}\nv_sub_f32 {v(21)}, {v(vx+1)}, {v(22)}')
    P(f'v_cvt_pk_bf16_f32 {v(23)}, {v(23)}, {v(23)}\nv_cvt_pk_bf16_f32 {v(20)}, {v(20)}, {v(21)}\nv_and_b32 {v(23)}, 0xffff0000, {v(23)}\nv_sqrt_f32 {v(23)}, {v(23)}')
    unpack(vx, vx+1, 20)
    P(f'v_cvt_pk_bf16_f32 {v(23)}, {v(23)}, {v(23)}\nv_and_b32 {v(23)}, 0xffff0000, {v(23)}\nv_rcp_f32 {v(22)}, {v(23)}')
    P(f'v_mul_f32 {v(20)}, {v(vx)}, {v(22)}\nv_mul_f32 {v(21)}, {v(vx+1)}, {v(22)}')
    P(f'v_fma_f32 {v(vx)}, -{v(20)}, {v(23)}, {v(vx)}\nv_fma_f32 {v(vx+1)}, -{v(21)}, {v(23)}, {v(vx+1)}')
    P(f'v_fma_f32 {v(20)}, {v(vx)}, {v(22)}, {v(20)}\nv_fma_f32 {v(21)}, {v(vx+1)}, {v(22)}, {v(21)}')
    P(f'v_cvt_pk_bf16_f32 {v(20)}, {v(20)}, {v(21)}')
    unpack(vx, vx+1, 20)
    P(f'v_mul_f32 {v(vx)}, {v(vx)}, {v(vcb)}\nv_mul_f32 {v(vx+1)}, {v(vx+1)}, {v(vcb+1)}\nv_cvt_pk_bf16_f32 {v(20)}, {v(vx)}, {v(vx+1)}')
    unpack(vx, vx+1, 20)
    P(f'v_add_f32 {v(vx)}, {v(vx)}, {v(vsb)}\nv_add_f32 {v(vx+1)}, {v(vx+1)}, {v(vsb+1)}')
    P(f'v_cvt_pk_bf16_f32 {v(20)}, {v(vx)}, {v(vx)}\nv_cvt_pk_bf16_f32 {v(21)}, {v(vx+1)}, {v(vx+1)}')
    srcs = [(20 + (i & 1), f'quad_perm:[{i >> 1},{i >> 1},{i >> 1},{i >> 1}]') for i in range(8)]
    chain(vD0, 8, [vUP+4*i for i in range(8)], srcs, vAA)
    setexec(0xff00ff00_00ff00ff)
    P(f'ds_write_b128 {v(vUW)}, {v(vD0,4)}')
    setexec((1 << 64) - 1)
    P('s_waitcnt lgkmcnt(0)')
    P('s_barrier')
    stamp('M_up')
    for t in range(8): P(f'ds_read_b32 {v(16+t)}, {v(vUR)} offset:{256*t}')
    P('s_waitcnt lgkmcnt(4)')
    P(f'v_add_f32 {v(16)}, {v(16)}, {v(17)}\nv_add_f32 {v(18)}, {v(18)}, {v(19)}')
    P('s_waitcnt lgkmcnt(0)')
    P(f'v_add_f32 {v(20)}, {v(20)}, {v(21)}\nv_add_f32 {v(22)}, {v(22)}, {v(23)}\nv_add_f32 {v(16)}, {v(16)}, {v(18)}\nv_add_f32 {v(20)}, {v(20)}, {v(22)}\nv_add_f32 {v(16)}, {v(16)}, {v(20)}')
    P(f'v_add_f32_dpp {v(16)}, {v(16)}, {v(16)} row_ror:8 row_mask:0xf bank_mask:0xf')
    rnd(16)
    P(f'v_mov_b32_dpp {v(17)}, {v(16)} row_ror:4 row_mask:0xf bank_mask:0xf')
    silu(16, 18)
    rnd(16)
    P(f'v_mul_f32 {v(16)}, {v(16)}, {v(17)}\nv_cvt_pk_bf16_f32 {v(16)}, {v(16)}, {v(16)}')
    chain(vD0, 4, [vDN+4*i for i in range(4)], [(16, f'row_newbcast:{i}') for i in range(4)], vAA)
    for r in range(4): P(f'v_mov_b32 {v(vO+2*r)}, {v(vD0+r)}')
    publish8(vO, vPB, sO3, 0xffffffff)
    stamp('M_end')

    P('L_END:')
    if cfg.diag and not cfg.probe:
        P('s_waitcnt lgkmcnt(0)')
        P(f's_cmp_ge_u32 {s(sB)}, 256\ns_cbranch_scc1 L_END2')
        P(f's_lshl_b32 {s(sT0)}, {s(sB)}, 3\ns_add_u32 {s(sT0)}, {s(sT0)}, {s(sW)}\ns_lshl_b32 {s(sT0)}, {s(sT0)}, 7\ns_add_u32 {s(sT0)}, {s(sT0)}, {hex(DIAG)}')
        P('s_mov_b64 exec, 1\nv_mov_b32 v1, 0')
        for i in range(9): P(f'v_mov_b32 v2, {s(sDIAG+2*i)}\nbuffer_store_dword v2, v1, {S(SRD_WS)}, {s(sT0)} offen offset:{4*i}')
        P('L_END2:')
    P('s_endpgm')
    P('L_CODE_END:')
    probs = P.fix()
    for p in probs: print('HAZARD across branch:', p, file=sys.stderr)
    head = open(f'cdna_kernels/{NAME}.s.ref').read().split('; Override launch')[0]
    txt = head
    txt += f'; Single persistent launch: 256 workgroups (one per CU) x 8 waves. Generated by gen/gen_kernel.py (hand-written generator).\n'
    txt += f'; @launch grid=(256,1,1) block=(512,1,1) lds={LDS_BYTES}\n'
    txt += f'.amdgcn_target "amdgcn-amd-amdhsa--gfx950"\n.text\n.globl {NAME}_kernel\n.p2align 8\n.type {NAME}_kernel,@function\n{NAME}_kernel:\n'
    txt += P.text() + '\n'
    txt += f'''.section .rodata,"a"
.p2align 6
.amdhsa_kernel {NAME}_kernel
  .amdhsa_next_free_vgpr 256
  .amdhsa_next_free_sgpr 102
  .amdhsa_accum_offset 256
  .amdhsa_group_segment_fixed_size 0
  .amdhsa_kernarg_size 112
  .amdhsa_user_sgpr_count 2
  .amdhsa_user_sgpr_kernarg_segment_ptr 1
  .amdhsa_system_sgpr_workgroup_id_x 1
  .amdhsa_float_denorm_mode_32 3
.end_amdhsa_kernel
'''
    return txt, stamps

if __name__ == '__main__':
    out = sys.argv[1] if len(sys.argv) > 1 else f'cdna_kernels/{NAME}.s'
    class C(Cfg): pass
    for a in sys.argv[2:]:
        k, val = a.split('=')
        setattr(C, k, eval(val))
    txt, stamps = gen(C)
    open(out, 'w').write(txt)
    print('written', out, len(txt), 'bytes', stamps)
```

```python
import sys, struct
from asmdsl import Prog

NAME = 'adaLN_cond__mha_block_cached__glu_gated_swiglu__decode'

def f2u(x): return struct.unpack('<I', struct.pack('<f', x))[0]
LOG2E = hex(f2u(1.4426950408889634))
NLOG2E = hex(f2u(-1.4426950408889634))
SCALE = hex(f2u(128 ** -0.5))
EPS = hex(f2u(1e-5))
R512 = hex(f2u(1/512))
ALL = (1 << 64) - 1

X1 = 0x1000
X4 = 0x9000
X3 = 0x19000
X1F = 0x1b000
X0 = 0x1d000
X0B = 0x1e000
X2F = 0x1c000
XC = 0x110000
X2 = 0x20000
XA = 0x60000
XB = 0xa0000
XD = 0xc0000
XE = 0x100000
DIAG = 0x180000
WS_BYTES = 0x200000
L_P, L_OP, L_Q, L_FLAG = 0x20000, 0x20800, 0x21000, 0x21100
L_ST, L_U = 0x0, 0x1000
L_MS, L_ML = L_FLAG + 64, L_FLAG + 128
LDS_BYTES = 0x21200
NM = 43
TAGX = hex(sum(1 << (a*4+b*2+c) for a in (0,1) for b in (0,1) for c in (0,1) if (a ^ b) | c))

class Cfg:
    depth = 8
    diag = False
    probe = None
    kpol = 'nt'
    vpol = 'nt'
    wpol = 'nt'
    ppol = ''
    sleep1 = 0
    sleep2 = 0
    sleep3 = 4
    sleep4 = 40
    prio = 3
    hint = 1
    hsleep = 3
    lsleep = 1
    pf = 'post'
    wq0 = 1
    dsched = (6, 12, 9)
    rot = 5
    npf = 8
    local = 1
    pipe = 1
    psleep = dict()
    xcrep = 1
    spin = 1 << 15

def v(a, n=1): return f'v{a}' if n == 1 else f'v[{a}:{a+n-1}]'
def s(a, n=1): return f's{a}' if n == 1 else f's[{a}:{a+n-1}]'

sB, sW = 2, 3
sKP, sVP = 4, 6
SRD_K, SRD_V, SRD_WS, SRD_A, SRD_B, SRD_C = 8, 12, 16, 20, 24, 28
sH, sJ, sX, sKK = 36, 37, 38, 39
sWSP = 40
sTAG, sIM, sR = 42, 43, 44
sT0, sT1, sT2 = 45, 46, 47
pWQ, pWO, pW1, pW3, pW2, pC, pWM, pX, pOUT = 48, 50, 54, 56, 58, 60, 62, 64, 66
sSPIN = 68
sO0, sO1, sO2, sO3 = 69, 70, 71, 72
sMASK = 74
sLOC = 73
sG = 76
sDIAG = 84
vL = 0
vT = 1
vM = 4

def gen(cfg=Cfg):
    P = Prog()
    D = cfg.depth
    stamps = {}
    def stamp(name):
        if cfg.diag and name in cfg.diag:
            grp = name.split('_')[0]
            same = [n for n in cfg.diag if n.split('_')[0] == grp]
            if name == 'start': i = 0
            elif grp == 'M': i = 8 - same.index(name)
            else: i = 1 + same.index(name)
            assert 0 <= i <= 8
            stamps[name] = i
            P(f's_memrealtime {s(sDIAG + 2*i, 2)}')
    def srd(r, ptr, nbytes):
        P(f's_mov_b32 {s(r)}, {s(ptr)}\ns_mov_b32 {s(r+1)}, {s(ptr+1)}\ns_mov_b32 {s(r+2)}, {hex(nbytes)}\ns_mov_b32 {s(r+3)}, 0x20000')
    def S(r): return s(r, 4)
    def setexec(mask):
        lo, hi = mask & 0xffffffff, mask >> 32
        if mask == ALL: P('s_mov_b64 exec, -1')
        elif mask <= 64: P(f's_mov_b64 exec, {mask}')
        else: P(f's_mov_b32 exec_lo, {hex(lo)}\ns_mov_b32 exec_hi, {hex(hi)}')
    uid = [0]
    def lab(p):
        uid[0] += 1; return f'L_{p}{uid[0]}'
    def tagcheck_loop(issue, tagregs, name):
        top = lab(name)
        P(f's_mov_b32 {s(sSPIN)}, 0')
        P(f'{top}:')
        issue()
        P(f's_add_u32 {s(sSPIN)}, {s(sSPIN)}, 1\ns_cmp_gt_u32 {s(sSPIN)}, {cfg.spin}\ns_cbranch_scc1 L_END')
        P('s_waitcnt vmcnt(0)')
        if len(tagregs) == 1:
            P(f'v_cmp_ne_u32 vcc, {s(sTAG)}, {v(tagregs[0])}')
        else:
            P(f'v_xor_b32 {v(vT)}, {s(sTAG)}, {v(tagregs[0])}\nv_xor_b32 {v(vT+1)}, {s(sTAG)}, {v(tagregs[1])}')
            for k, r in enumerate(tagregs[2:]):
                P(f'v_bitop3_b32 {v(vT + (k & 1))}, {v(r)}, {s(sTAG)}, {v(vT + (k & 1))} bitop3:{TAGX}')
            P(f'v_or_b32 {v(vT)}, {v(vT)}, {v(vT+1)}\nv_cmp_ne_u32 vcc, 0, {v(vT)}')
        P(f's_cbranch_vccnz {top}')
    def poll(name, issue, nl, base, stride, tagoff, done):
        NS = cfg.pipe
        top, join = lab(name), lab(name + 'j')
        ex = [lab(name + 'x') for _ in range(NS)]
        P(f's_mov_b32 {s(sSPIN)}, 0')
        for i in range(NS - 1): issue(base + i*stride)
        P(f'{top}:')
        for i in range(NS):
            issue(base + ((i + NS - 1) % NS)*stride)
            if i == 0: P(f's_add_u32 {s(sSPIN)}, {s(sSPIN)}, 1\ns_cmp_gt_u32 {s(sSPIN)}, {cfg.spin}\ns_cbranch_scc1 L_END')
            P(f's_waitcnt vmcnt({(NS-1)*nl})')
            tr = [base + i*stride + t for t in tagoff]
            if len(tr) == 1:
                P(f'v_cmp_ne_u32 vcc, {s(sTAG)}, {v(tr[0])}')
            else:
                P(f'v_xor_b32 {v(vT)}, {s(sTAG)}, {v(tr[0])}\nv_xor_b32 {v(vT+1)}, {s(sTAG)}, {v(tr[1])}')
                for k, r in enumerate(tr[2:]):
                    P(f'v_bitop3_b32 {v(vT + (k & 1))}, {v(r)}, {s(sTAG)}, {v(vT + (k & 1))} bitop3:{TAGX}')
                P(f'v_or_b32 {v(vT)}, {v(vT)}, {v(vT+1)}\nv_cmp_ne_u32 vcc, 0, {v(vT)}')
            ps = cfg.psleep.get(name, 0)
            if ps:
                P(f's_cbranch_vccz {ex[i]}\ns_sleep {ps}')
                if i + 1 == NS: P(f's_branch {top}')
            else: P(f's_cbranch_vccz {ex[i]}' if i + 1 < NS else f's_cbranch_vccnz {top}')
        for i in reversed(range(NS)):
            P(f'{ex[i]}:')
            done(base + i*stride)
            if i > 0: P(f's_branch {join}')
        P(f'{join}:')
    def publish_loc(d, vaddr, soff, mask=None, flag=sLOC):
        if not cfg.local: return publish(d, vaddr, soff, mask)
        far, j2 = lab('far'), lab('pb')
        if mask: setexec(mask)
        P(f's_cmp_eq_u32 {s(flag)}, 1\ns_cbranch_scc0 {far}')
        P(f'buffer_store_dwordx4 {v(d,4)}, {v(vaddr)}, {S(SRD_WS)}, {s(soff)} offen')
        P(f's_branch {j2}\n{far}:')
        publish(d, vaddr, soff)
        P(f'{j2}:')
        if mask: setexec(ALL)
    def afrag(dst, src, dpp=''):
        for w in range(4):
            if dpp: P(f'v_and_b32_dpp {v(dst+w)}, {v(src)}, {v(vM+w)} {dpp} row_mask:0xf bank_mask:0xf')
            else: P(f'v_and_b32 {v(dst+w)}, {v(src)}, {v(vM+w)}')
    def mfma(d, a, b, first=False):
        P(f'v_mfma_f32_16x16x32_bf16 {v(d,4)}, {v(a,4)}, {v(b,4)}, {"0" if first else v(d,4)}')
    def chain(d, n, bregs, srcs, areg):
        afrag(areg, *srcs[0])
        for i in range(n):
            if i + 1 < n: afrag(areg + 4*((i+1) & 1), *srcs[i+1])
            mfma(d, areg + 4*(i & 1), bregs[i], first=(i == 0))
    def finish2(d):
        P(f'v_permlane32_swap_b32 {v(d)}, {v(d+2)}\nv_permlane32_swap_b32 {v(d+1)}, {v(d+3)}')
        P(f'v_add_f32_dpp {v(d)}, {v(d+2)}, {v(d)} row_ror:8 row_mask:0xf bank_mask:0xf')
        P(f'v_add_f32_dpp {v(d+1)}, {v(d+3)}, {v(d+1)} row_ror:8 row_mask:0xf bank_mask:0xf')
        P(f'v_mov_b32 {v(d+2)}, {s(sTAG)}')
    def finish1(d):
        P(f'v_permlane32_swap_b32 {v(d)}, {v(d+2)}\nv_permlane32_swap_b32 {v(d+1)}, {v(d+3)}')
        P(f'v_mov_b32 {v(d+2)}, {s(sTAG)}')
    def publish(d, vaddr, soff, mask=None):
        if mask: setexec(mask)
        P(f'buffer_store_dwordx4 {v(d,4)}, {v(vaddr)}, {S(SRD_WS)}, {s(soff)} offen sc1')
        if mask: setexec(ALL)
    M2SET = 0x00ff00ff00ff00ff
    def lohi(r):
        P(f'v_mov_b32 {v(r+2)}, {v(r)}\nv_mov_b32 {v(r+3)}, {v(r+1)}')
        for e in range(2): P(f'v_mov_b32_dpp {v(r+2+e)}, {v(r+e)} row_shl:4 row_mask:0xf bank_mask:0x5')
        for e in range(2): P(f'v_mov_b32_dpp {v(r+e)}, {v(r+e)} row_shr:4 row_mask:0xf bank_mask:0xa')
    def lohi_srcs(r):
        out = []
        for i in range(16):
            u = i >> 1; a = u & 3
            out.append((r + (2 if u >= 4 else 0) + (i & 1), f'quad_perm:[{a},{a},{a},{a}]'))
        return out
    def lds_wait(name, vaddr, n, dst, chk, sleep=0):
        top = lab(name)
        op = {1: 'ds_read_b32', 2: 'ds_read_b64', 4: 'ds_read_b128'}[n]
        P(f's_mov_b32 {s(sSPIN)}, 0')
        P(f'{top}:')
        P(f'{op} {v(dst,n)}, {v(vaddr)}')
        P(f's_add_u32 {s(sSPIN)}, {s(sSPIN)}, 1\ns_cmp_gt_u32 {s(sSPIN)}, {cfg.spin*8}\ns_cbranch_scc1 L_END')
        P('s_waitcnt lgkmcnt(0)')
        if len(chk) == 2:
            P(f'v_and_b32 {v(vT)}, {v(chk[0])}, {v(chk[1])}\nv_cmp_eq_u32 vcc, 0, {v(vT)}')
        else: P(f'v_cmp_eq_u32 vcc, 0, {v(chk[0])}')
        if sleep:
            done = lab(name + 'd')
            P(f's_cbranch_vccz {done}\ns_sleep {sleep}\ns_branch {top}\n{done}:')
        else: P(f's_cbranch_vccnz {top}')
    def hint_wait(name, soff):
        top = lab(name)
        P(f's_add_u32 {s(sMASK)}, {s(sWSP)}, {s(soff)}\ns_addc_u32 {s(sMASK+1)}, {s(sWSP+1)}, 0\ns_mov_b32 {s(sSPIN)}, 0')
        P(f'{top}:')
        P(f's_load_dwordx8 {s(sG,8)}, {s(sMASK,2)}, 0 glc')
        P(f's_add_u32 {s(sSPIN)}, {s(sSPIN)}, 1\ns_cmp_gt_u32 {s(sSPIN)}, {cfg.spin}\ns_cbranch_scc1 L_END')
        P('s_waitcnt lgkmcnt(0)')
        P(f's_xor_b32 {s(sG)}, {s(sG)}, {s(sTAG)}')
        for k in range(1, 8): P(f's_xor_b32 {s(sG+k)}, {s(sG+k)}, {s(sTAG)}\ns_or_b32 {s(sG)}, {s(sG)}, {s(sG+k)}')
        done = lab(name + 'd')
        P(f's_cbranch_scc0 {done}')
        if cfg.hsleep: P(f's_sleep {cfg.hsleep}')
        P(f's_branch {top}\n{done}:')
    def wave_reduce(op, regs):
        for mod in ('quad_perm:[1,0,3,2] row_mask:0xf', 'quad_perm:[2,3,0,1] row_mask:0xf', 'row_ror:4 row_mask:0xf', 'row_ror:8 row_mask:0xf',
                    'row_bcast:15 row_mask:0xa', 'row_bcast:31 row_mask:0xc'):
            for r in regs: P(f'{op}_dpp {v(r)}, {v(r)}, {v(r)} {mod} bank_mask:0xf')
    def unpack(lo, hi, src):
        if lo == src: P(f'v_and_b32 {v(hi)}, 0xffff0000, {v(src)}\nv_lshlrev_b32 {v(lo)}, 16, {v(src)}')
        else: P(f'v_lshlrev_b32 {v(lo)}, 16, {v(src)}\nv_and_b32 {v(hi)}, 0xffff0000, {v(src)}')
    def silu_multi(rs, ts):
        for r, t in zip(rs, ts): P(f'v_mul_f32 {v(t)}, {NLOG2E}, {v(r)}')
        for r, t in zip(rs, ts): P(f'v_exp_f32 {v(t)}, {v(t)}')
        for r, t in zip(rs, ts): P(f'v_add_f32 {v(t)}, 1.0, {v(t)}')
        for r, t in zip(rs, ts): P(f'v_rcp_f32 {v(t)}, {v(t)}')
        for r, t in zip(rs, ts): P(f'v_mul_f32 {v(r)}, {v(r)}, {v(t)}')
    def rnd(r): P(f'v_cvt_pk_bf16_f32 {v(r)}, {v(r)}, {v(r)}\nv_and_b32 {v(r)}, 0xffff0000, {v(r)}')

    vMA, vMB, vMC, vPUB = 16, 17, 18, 19
    vMT, vD0, vAA, vS4 = 64, 36, 52, 40
    def modtile_issue(sRB, sCOL):
        srd(SRD_A, pC, 1024); srd(SRD_B, pWM, 512*6144)
        P(f's_lshl_b32 {s(sO1)}, {s(sRB)}, 8')
        P(f'buffer_load_dword {v(vMC)}, {v(vMA)}, {S(SRD_A)}, {s(sO1)} offen')
        P(f's_mul_i32 {s(sO1)}, {s(sRB)}, {128*6144}\ns_add_u32 {s(sO1)}, {s(sO1)}, {s(sCOL)}')
        for i in range(16):
            P(f'buffer_load_dwordx4 {v(vMT+4*i,4)}, {v(vMB)}, {S(SRD_B)}, {s(sO1)} offen {cfg.wpol}')
            if i < 15: P(f's_add_u32 {s(sO1)}, {s(sO1)}, 6144')
    def modtile_compute(nafter, soff):
        P(f's_waitcnt vmcnt({16+nafter})')
        unpack(vS4, vS4+1, vMC)
        silu_multi([vS4, vS4+1], [vS4+2, vS4+3])
        for e in range(2): P(f'v_cvt_pk_bf16_f32 {v(vS4+e)}, {v(vS4+e)}, {v(vS4+e)}')
        lohi(vS4)
        P(f's_waitcnt vmcnt({nafter})')
        chain(vD0, 16, [vMT+4*i for i in range(16)], lohi_srcs(vS4), vAA)
        finish2(vD0)
        publish(vD0, vPUB, soff, M2SET)

    P(f's_cmp_ge_u32 {s(sB)}, 256\ns_cbranch_scc1 L_END')
    if cfg.diag:
        for i in range(9): P(f's_mov_b32 {s(sDIAG+2*i)}, 0')
    stamp('start')
    P(f's_load_dwordx4 {s(sKP,4)}, s[0:1], 8')
    P(f's_load_dwordx16 {s(pWQ,16)}, s[0:1], 24')
    P(f's_load_dwordx2 {s(sWSP,2)}, s[0:1], 104')
    P(f's_load_dwordx2 {s(pX,2)}, s[0:1], 0')
    P(f's_load_dwordx2 {s(pOUT,2)}, s[0:1], 88')
    P(f'v_lshrrev_b32 {v(vT)}, 6, v0\nv_and_b32 {v(vL)}, 63, v0')
    P(f'v_readfirstlane_b32 {s(sW)}, {v(vT)}')
    P(f'v_lshlrev_b32 {v(vT)}, 2, {v(vL)}\nv_add_u32 {v(vT)}, {hex(L_FLAG)}, {v(vT)}\nv_mov_b32 {v(vT+1)}, 0')
    P(f'ds_write_b32 {v(vT)}, {v(vT+1)}')
    P(f's_and_b32 {s(sH)}, {s(sB)}, 31\ns_lshr_b32 {s(sJ)}, {s(sB)}, 5\ns_and_b32 {s(sX)}, {s(sB)}, 7\ns_lshr_b32 {s(sKK)}, {s(sB)}, 3')
    vKA, vVA = 8, 12
    P(f'v_lshrrev_b32 {v(vT)}, 4, {v(vL)}\nv_and_b32 {v(vT+1)}, 15, {v(vL)}')
    P(f'v_lshlrev_b32 {v(vVA)}, 10, {v(vT)}\nv_lshl_add_u32 {v(vVA)}, {v(vT+1)}, 4, {v(vVA)}')
    P(f'v_xor_b32 {v(vT+1)}, {v(vT+1)}, {v(vT)}\nv_lshlrev_b32 {v(vT+1)}, 4, {v(vT+1)}\nv_lshl_add_u32 {v(vKA)}, {v(vT)}, 8, {v(vT+1)}')
    for i in range(1, 4): P(f'v_xor_b32 {v(vKA+i)}, {64*i}, {v(vKA)}')
    P(f's_lshl_b32 {s(sO0)}, {s(sH)}, 20\ns_lshl_b32 {s(sO3)}, {s(sJ)}, 2\ns_add_u32 {s(sO3)}, {s(sO3)}, {s(sW)}\ns_lshl_b32 {s(sO3)}, {s(sO3)}, 12')
    P(f'v_lshlrev_b32 {v(vMA)}, 2, {v(vL)}\nv_lshrrev_b32 {v(vT)}, 3, {v(vL)}\nv_mul_u32_u24 {v(vMB)}, {16*6144}, {v(vT)}\nv_and_b32 {v(vT+1)}, 7, {v(vL)}\nv_lshl_add_u32 {v(vMB)}, {v(vT+1)}, 4, {v(vMB)}')
    P(f'v_lshrrev_b32 {v(vT)}, 4, {v(vL)}\nv_lshlrev_b32 {v(vT)}, 7, {v(vT)}\nv_lshl_add_u32 {v(vPUB)}, {v(vT+1)}, 4, {v(vT)}')
    vXF, vXS, vL16, vWA, vXA = 28, 32, 60, 62, 33
    P(f'v_lshlrev_b32 {v(vL16)}, 4, {v(vL)}')
    P(f'v_bfe_u32 {v(vT)}, {v(vL)}, 4, 1\nv_lshrrev_b32 {v(vT+2)}, 5, {v(vL)}\nv_lshl_add_u32 {v(vT)}, {v(vT)}, 1, {v(vT+2)}')
    P(f'v_lshl_add_u32 {v(vXA)}, {v(vT+1)}, 2, {v(vT)}\nv_lshlrev_b32 {v(vXA)}, 2, {v(vXA)}\nv_lshlrev_b32 {v(vWA)}, 14, {v(vT)}')
    P(f'v_and_b32 {v(vT+1)}, 15, {v(vL)}\nv_lshl_add_u32 {v(vWA)}, {v(vT+1)}, 4, {v(vWA)}')
    P(f's_sub_u32 {s(sT2)}, {s(sKK)}, 16')
    P(f's_and_b32 {s(sT0)}, {s(sT2)}, 1\ns_lshl_b32 {s(sT0)}, {s(sT0)}, 10\ns_lshl_b32 {s(sT1)}, {s(sX)}, 7\ns_add_u32 {s(sT1)}, {s(sT1)}, {s(sT0)}\ns_lshr_b32 {s(sT0)}, {s(sT2)}, 1\ns_lshl_b32 {s(sO2)}, {s(sJ)}, 7')
    P('s_waitcnt lgkmcnt(0)')
    P(f's_cmp_eq_u32 {s(sW)}, 4\ns_cbranch_scc0 L_B0')
    P(f's_cmp_lt_u32 {s(sT2)}, 8\ns_cbranch_scc0 L_XLD')
    modtile_issue(sT0, sT1)
    P('L_XLD:')
    srd(SRD_C, pX, 1024)
    P(f'buffer_load_dwordx4 {v(vXF,4)}, {v(vL16)}, {S(SRD_C)}, 0 offen')
    P(f'buffer_load_dword {v(vXS)}, {v(vXA)}, {S(SRD_C)}, {s(sO2)} offen')
    vWQ = 128
    def wq_issue():
        srd(SRD_C, pWQ, 4 << 20)
        P(f's_lshl_b32 {s(sO2)}, {s(sJ)}, 19\ns_lshl_b32 {s(sT0)}, {s(sH)}, 8\ns_add_u32 {s(sO2)}, {s(sO2)}, {s(sT0)}')
        for i in range(16):
            P(f'buffer_load_dwordx4 {v(vWQ+4*i,4)}, {v(vWA)}, {S(SRD_C)}, {s(sO2)} offen {cfg.wpol}')
            if i < 15: P(f's_add_u32 {s(sO2)}, {s(sO2)}, {8192 if (i & 1) == 0 else 8192*7}')
    if cfg.wq0: wq_issue()
    P('L_B0:')
    P('s_barrier')
    P(f's_cmp_ge_u32 {s(sW)}, 4\ns_cbranch_scc1 L_CW')

    srd(SRD_K, sKP, 32 << 20)
    P(f's_lshl_b32 {s(sT0)}, {s(sW)}, 15\ns_mov_b32 m0, {s(sT0)}\ns_mov_b32 {s(sO2)}, {s(sO0)}\ns_mov_b32 {s(sG)}, {s(sO3)}\ns_add_u32 {s(sO1)}, {s(sO0)}, {s(sO3)}\ns_mov_b32 {s(sT1)}, 0')
    def nexttile(base, res, dst):
        P(f's_add_u32 {s(base)}, {s(base)}, 0x20000\ns_add_u32 {s(res)}, {s(res)}, {cfg.rot << 12}\ns_and_b32 {s(res)}, {s(res)}, 0x1f000\ns_add_u32 {s(dst)}, {s(base)}, {s(res)}')
    P('L_KLOOP:')
    DK = cfg.dsched[0] if cfg.dsched else D
    def DV(idx): return D if not cfg.dsched else (cfg.dsched[0] if idx < cfg.dsched[1] else cfg.dsched[2])
    for i in range(4):
        P(f's_waitcnt vmcnt({DK-1})')
        P(f'buffer_load_dwordx4 {v(vKA+i)}, {S(SRD_K)}, {s(sO1)} offen offset:{1024*i} {cfg.kpol} lds')
    nexttile(sO2, sG, sO1)
    P(f's_add_u32 {s(sT0)}, {s(sT0)}, 4096\ns_mov_b32 m0, {s(sT0)}\ns_add_u32 {s(sT1)}, {s(sT1)}, 1\ns_cmp_lt_u32 {s(sT1)}, 8\ns_cbranch_scc1 L_KLOOP')
    stamp('L_kissued')
    vV = 128
    srd(SRD_V, sVP, 32 << 20)
    P(f's_add_u32 {s(sO1)}, {s(sO0)}, {s(sO3)}')
    P(f's_lshl_b32 {s(sT0)}, {s(sW)}, 3\ns_add_u32 {s(sT0)}, {s(sT0)}, {hex(L_FLAG)}\nv_mov_b32 {v(vT)}, {s(sT0)}\nv_mov_b32 {v(vT+1)}, 1')
    for idx in range(32):
        t, i = idx >> 2, idx & 3
        P(f's_waitcnt vmcnt({DV(idx)-1})')
        if idx == DK - 1:
            P(f'ds_write_b32 {v(vT)}, {v(vT+1)}')
            stamp('L_klanded')
        P(f'buffer_load_dwordx4 {v(vV+4*idx,4)}, {v(vVA)}, {S(SRD_V)}, {s(sO1)} offen offset:{256*i} {cfg.vpol}')
        if i == 3 and t < 7: nexttile(sO0, sO3, sO1)
    stamp('L_vissued')
    def masks():
        P(f'v_and_b32 {v(vT)}, 1, {v(vL)}\nv_lshlrev_b32 {v(vT)}, 4, {v(vT)}\nv_mov_b32 {v(vT+1)}, 0xffff\nv_lshlrev_b32 {v(vT+1)}, {v(vT)}, {v(vT+1)}')
        P(f'v_bfe_u32 {v(vT)}, {v(vL)}, 1, 2')
        for w in range(4):
            P(f'v_cmp_eq_u32 vcc, {w}, {v(vT)}\nv_cndmask_b32 {v(vM+w)}, 0, {v(vT+1)}, vcc')
    def common_setup():
        P(f's_load_dword {s(sTAG)}, {s(sWSP,2)}, 0')
        srd(SRD_WS, sWSP, WS_BYTES)
        masks()
    masks()
    vPA, vOA, vP, vA, vD = 13, 14, 16, 48, 56
    P(f'v_lshrrev_b32 {v(vT)}, 4, {v(vL)}\nv_lshlrev_b32 {v(vT)}, 4, {v(vT)}\ns_lshl_b32 {s(sT0)}, {s(sW)}, 9\ns_add_u32 {s(sT0)}, {s(sT0)}, {hex(L_P)}\nv_add_u32 {v(vPA)}, {s(sT0)}, {v(vT)}')
    P(f's_add_u32 {s(sT0)}, {s(sT0)}, {hex(L_OP - L_P)}\nv_lshlrev_b32 {v(vT)}, 3, {v(vL)}\nv_add_u32 {v(vOA)}, {s(sT0)}, {v(vT)}')
    P('s_waitcnt lgkmcnt(0)')
    P('s_barrier')
    stamp('L_b1')
    for t in range(8): P(f'ds_read_b128 {v(vP+4*t,4)}, {v(vPA)} offset:{64*t}')
    P('s_waitcnt lgkmcnt(7)')
    afrag(vA, vP)
    for idx in range(32):
        if idx + 1 < 32:
            if (idx + 1) % 4 == 0: P(f's_waitcnt lgkmcnt({7 - (idx+1)//4})')
            afrag(vA + 4*((idx+1) & 1), vP + idx + 1)
        P(f's_waitcnt vmcnt({31-idx})')
        mfma(vD, vA + 4*(idx & 1), vV + 4*idx, first=(idx == 0))
    stamp('L_pv')
    P(f'v_permlane32_swap_b32 {v(vD)}, {v(vD+2)}\nv_permlane32_swap_b32 {v(vD+1)}, {v(vD+3)}')
    P(f'ds_write_b64 {v(vOA)}, {v(vD,2)}')
    P('s_waitcnt lgkmcnt(0)')
    P('s_barrier')
    P('s_endpgm' if not cfg.diag else 's_branch L_END')

    P('L_CW:')
    if cfg.prio: P(f's_setprio {cfg.prio}')
    P(f's_cmp_eq_u32 {s(sW)}, 4\ns_cbranch_scc0 L_C123')
    vGA = 192
    common_setup()
    P('s_waitcnt lgkmcnt(0)')
    P(f's_add_u32 {s(sTAG)}, {s(sTAG)}, 1')
    if cfg.local:
        P(f's_getreg_b32 {s(sLOC)}, hwreg(HW_REG_XCC_ID, 0, 3)\ns_lshl_b32 {s(sT0)}, {s(sTAG)}, 3\ns_or_b32 {s(sLOC)}, {s(sLOC)}, {s(sT0)}')
        P(f's_lshl_b32 {s(sO3)}, {s(sH)}, 7\ns_add_u32 {s(sO3)}, {s(sO3)}, {hex(X0)}\ns_lshl_b32 {s(sT0)}, {s(sJ)}, 2\ns_add_u32 {s(sT0)}, {s(sT0)}, {s(sO3)}\nv_mov_b32 {v(vT)}, {s(sT0)}\nv_mov_b32 {v(vT+1)}, {s(sLOC)}')
        P(f's_lshl_b32 {s(sR)}, {s(sX)}, 3\ns_lshr_b32 {s(sT0)}, {s(sKK)}, 2\ns_add_u32 {s(sR)}, {s(sR)}, {s(sT0)}\ns_lshl_b32 {s(sR)}, {s(sR)}, 7\ns_add_u32 {s(sR)}, {s(sR)}, {hex(X0B)}')
        P(f's_and_b32 {s(sT0)}, {s(sKK)}, 3\ns_lshl_b32 {s(sT0)}, {s(sT0)}, 2\ns_add_u32 {s(sT0)}, {s(sT0)}, {s(sR)}\nv_writelane_b32 {v(vT)}, {s(sT0)}, 1')
        setexec(3)
        P(f'buffer_store_dword {v(vT+1)}, {v(vT)}, {S(SRD_WS)}, 0 offen sc1')
        setexec(ALL)
    P(f's_cmp_lt_u32 {s(sT2)}, 8\ns_cbranch_scc0 L_NOT1')
    P(f's_lshl_b32 {s(sO2)}, {s(sX)}, 3\ns_add_u32 {s(sO2)}, {s(sO2)}, {s(sT2)}\ns_lshl_b32 {s(sO2)}, {s(sO2)}, 9\ns_add_u32 {s(sO2)}, {s(sO2)}, {hex(X1)}')
    modtile_compute((18 if cfg.wq0 else 2) + cfg.local, sO2)
    if cfg.hint:
        P(f's_lshl_b32 {s(sO2)}, {s(sX)}, 9\ns_lshl_b32 {s(sT0)}, {s(sT2)}, 2\ns_add_u32 {s(sO2)}, {s(sO2)}, {s(sT0)}\ns_add_u32 {s(sO2)}, {s(sO2)}, {hex(X1F)}\nv_lshlrev_b32 {v(vT)}, 7, {v(vL)}')
        setexec(0xf)
        P(f'buffer_store_dword {v(vD0+2)}, {v(vT)}, {S(SRD_WS)}, {s(sO2)} offen sc1')
        setexec(ALL)
    stamp('C0_x1pub')
    if not cfg.wq0: wq_issue()
    P('s_branch L_T1D')
    P('L_NOT1:')
    if not cfg.wq0: wq_issue()
    P('L_T1D:')
    vx = 64
    P(f's_waitcnt vmcnt({16 + (cfg.local if cfg.wq0 else 0)})')
    for k in range(4): unpack(vx+2*k, vx+2*k+1, vXF+k)
    P(f'v_add_f32 {v(20)}, {v(vx)}, {v(vx+1)}\nv_add_f32 {v(21)}, {v(vx+2)}, {v(vx+3)}\nv_add_f32 {v(22)}, {v(vx+4)}, {v(vx+5)}\nv_add_f32 {v(23)}, {v(vx+6)}, {v(vx+7)}')
    P(f'v_add_f32 {v(20)}, {v(20)}, {v(21)}\nv_add_f32 {v(22)}, {v(22)}, {v(23)}\nv_add_f32 {v(20)}, {v(20)}, {v(22)}')
    wave_reduce('v_add_f32', [20])
    P(f'v_mul_f32 {v(20)}, {R512}, {v(20)}\nv_readlane_b32 {s(sT0)}, {v(20)}, 63')
    for k in range(8): P(f'v_subrev_f32 {v(vx+k)}, {s(sT0)}, {v(vx+k)}')
    P(f'v_mul_f32 {v(21)}, {v(vx)}, {v(vx)}')
    for k in range(1, 8): P(f'v_fmac_f32 {v(21)}, {v(vx+k)}, {v(vx+k)}')
    wave_reduce('v_add_f32', [21])
    P(f'v_mul_f32 {v(21)}, {R512}, {v(21)}')
    P(f'v_cvt_pk_bf16_f32 {v(22)}, {v(20)}, {v(21)}')
    P(f'v_and_b32 {v(21)}, 0xffff0000, {v(22)}\nv_lshlrev_b32 {v(20)}, 16, {v(22)}\nv_add_f32 {v(21)}, {EPS}, {v(21)}')
    rnd(21); P(f'v_sqrt_f32 {v(21)}, {v(21)}'); rnd(21); P(f'v_rcp_f32 {v(22)}, {v(21)}')
    P(f'v_readlane_b32 {s(sT0)}, {v(20)}, 63\nv_readlane_b32 {s(sT1)}, {v(21)}, 63\nv_readlane_b32 {s(sT2)}, {v(22)}, 63')
    vLN = 24
    unpack(vLN, vLN+1, vXS)
    for e in range(2): P(f'v_subrev_f32 {v(vLN+e)}, {s(sT0)}, {v(vLN+e)}')
    P(f'v_cvt_pk_bf16_f32 {v(20)}, {v(vLN)}, {v(vLN+1)}'); unpack(vLN, vLN+1, 20)
    for e in range(2): P(f'v_mul_f32 {v(20+e)}, {s(sT2)}, {v(vLN+e)}')
    for e in range(2): P(f'v_fma_f32 {v(vLN+e)}, -{v(20+e)}, {s(sT1)}, {v(vLN+e)}')
    for e in range(2): P(f'v_fma_f32 {v(vLN+e)}, {v(vLN+e)}, {s(sT2)}, {v(20+e)}')
    P(f'v_cvt_pk_bf16_f32 {v(20)}, {v(vLN)}, {v(vLN+1)}'); unpack(vLN, vLN+1, 20)
    P(f'v_bfe_u32 {v(vT)}, {v(vL)}, 3, 1\nv_lshlrev_b32 {v(vT)}, 9, {v(vT)}\nv_add_u32 {v(26)}, {v(vPUB)}, {v(vT)}')
    P(f's_lshl_b32 {s(sO0)}, {s(sJ)}, 12\ns_add_u32 {s(sO0)}, {s(sO0)}, {hex(X1)}')
    if cfg.hint:
        P(f's_lshl_b32 {s(sT0)}, {s(sJ)}, 2\ns_and_b32 {s(sT1)}, {s(sH)}, 3\ns_add_u32 {s(sT0)}, {s(sT0)}, {s(sT1)}\ns_lshl_b32 {s(sT0)}, {s(sT0)}, 7\ns_add_u32 {s(sT0)}, {s(sT0)}, {hex(X1F)}')
        hint_wait('h1h', sT0)
    else: P('s_waitcnt vmcnt(0)')
    if cfg.local:
        P(f's_add_u32 {s(sMASK)}, {s(sWSP)}, {s(sO3)}\ns_addc_u32 {s(sMASK+1)}, {s(sWSP+1)}, 0')
        P(f's_load_dwordx8 {s(sG,8)}, {s(sMASK,2)}, 0 glc')
        P(f's_load_dwordx4 s[8:11], {s(sWSP,2)}, {s(sR)} glc')
    stamp('C0_wq')
    if cfg.sleep1: P(f's_sleep {cfg.sleep1}')
    def issue():
        for k in range(4): P(f'buffer_load_dwordx4 {v(vGA+4*k,4)}, {v(26)}, {S(SRD_WS)}, {s(sO0)} offen offset:{1024*k} sc1')
    tagcheck_loop(issue, [vGA+4*k+2 for k in range(4)], 'h1')
    stamp('C0_h1')
    if cfg.local:
        P('s_waitcnt lgkmcnt(0)')
        P(f's_xor_b32 {s(sG)}, {s(sG)}, {s(sLOC)}')
        for k in range(1, 8): P(f's_xor_b32 {s(sG+k)}, {s(sG+k)}, {s(sLOC)}\ns_or_b32 {s(sG)}, {s(sG)}, {s(sG+k)}')
        P(f's_cselect_b32 {s(sT0)}, 0, 1')
        P(f's_xor_b32 s8, s8, {s(sLOC)}')
        for k in range(1, 4): P(f's_xor_b32 {s(8+k)}, {s(8+k)}, {s(sLOC)}\ns_or_b32 s8, s8, {s(8+k)}')
        P(f's_cselect_b32 {s(sR)}, 0, 1\ns_mov_b32 {s(sLOC)}, {s(sT0)}')
    b = vGA
    for e in range(2): P(f'v_add_f32 {v(b+e)}, {v(b+e)}, {v(b+4+e)}\nv_add_f32 {v(b+8+e)}, {v(b+8+e)}, {v(b+12+e)}')
    for e in range(2): P(f'v_add_f32 {v(b+e)}, {v(b+e)}, {v(b+8+e)}')
    P(f'v_cvt_pk_bf16_f32 {v(b+4)}, {v(b)}, {v(b+1)}\nv_mov_b32 {v(b+5)}, {v(b+4)}')
    P(f'v_mov_b32_dpp {v(b+4)}, {v(b+5)} row_ror:8 row_mask:0xf bank_mask:0xc')
    P(f'v_mov_b32_dpp {v(b+5)}, {v(b+5)} row_ror:8 row_mask:0xf bank_mask:0x3')
    unpack(b+8, b+9, b+4); unpack(b+6, b+7, b+5)
    P(f'v_add_f32 {v(b+6)}, 1.0, {v(b+6)}\nv_add_f32 {v(b+7)}, 1.0, {v(b+7)}\nv_cvt_pk_bf16_f32 {v(b+5)}, {v(b+6)}, {v(b+7)}')
    unpack(b+6, b+7, b+5)
    P(f'v_mul_f32 {v(b+6)}, {v(b+6)}, {v(vLN)}\nv_mul_f32 {v(b+7)}, {v(b+7)}, {v(vLN+1)}\nv_cvt_pk_bf16_f32 {v(b+5)}, {v(b+6)}, {v(b+7)}')
    unpack(b+6, b+7, b+5)
    P(f'v_add_f32 {v(b+6)}, {v(b+6)}, {v(b+8)}\nv_add_f32 {v(b+7)}, {v(b+7)}, {v(b+9)}')
    vH = 20
    P(f'v_cvt_pk_bf16_f32 {v(vH)}, {v(b+6)}, {v(b+6)}\nv_cvt_pk_bf16_f32 {v(vH+1)}, {v(b+7)}, {v(b+7)}')
    P(f's_lshl_b32 {s(sO1)}, {s(sH)}, 13\ns_add_u32 {s(sO1)}, {s(sO1)}, {hex(X2)}\ns_lshl_b32 {s(sO0)}, {s(sJ)}, 10\ns_add_u32 {s(sO0)}, {s(sO0)}, {s(sO1)}\ns_add_u32 {s(sO2)}, {s(sO1)}, 4096')
    chain(vD0, 16, [vWQ+4*i for i in range(16)], [(vH + (i & 1), f'row_newbcast:{i >> 1}') for i in range(16)], vAA)
    finish1(vD0)
    publish_loc(vD0, vL16, sO0)
    if cfg.hint:
        P(f's_lshl_b32 {s(sO3)}, {s(sH)}, 7\ns_add_u32 {s(sO3)}, {s(sO3)}, {hex(X2F)}\nv_mov_b32 {v(vT)}, 0\ns_lshl_b32 {s(sT0)}, {s(sJ)}, 2\ns_add_u32 {s(sT0)}, {s(sT0)}, {s(sO3)}')
        setexec(1)
        P(f'buffer_store_dword {v(vD0+2)}, {v(vT)}, {S(SRD_WS)}, {s(sT0)} offen sc1')
        setexec(ALL)
    stamp('C0_x2pub')
    P(f'v_bfe_u32 {v(vT)}, {v(vL)}, 4, 1\nv_lshrrev_b32 {v(vT+1)}, 5, {v(vL)}\nv_lshl_add_u32 {v(vT)}, {v(vT)}, 1, {v(vT+1)}\nv_and_b32 {v(vT+1)}, 15, {v(vL)}\nv_lshl_add_u32 {v(vT)}, {v(vT+1)}, 2, {v(vT)}')
    P(f'v_lshlrev_b32 {v(vT)}, 2, {v(vT)}\nv_add_u32 {v(26)}, {hex(L_Q)}, {v(vT)}')
    P(f'v_and_b32 {v(27)}, 3, {v(vL)}\nv_lshlrev_b32 {v(27)}, 3, {v(27)}\nv_add_u32 {v(27)}, {hex(L_FLAG + 4)}, {v(27)}\nv_mov_b32 {v(25)}, 1')
    if cfg.hint: hint_wait('qh', sO3)
    stamp('C0_qh')
    if cfg.sleep2: P(f's_sleep {cfg.sleep2}')
    def gather8(base_lo, base_hi):
        def issue():
            for k in range(8):
                P(f'buffer_load_dwordx4 {v(vGA+4*k,4)}, {v(vL16)}, {S(SRD_WS)}, {s(base_lo if k < 4 else base_hi)} offen offset:{1024*(k & 3)} sc1')
        return issue
    def sum8():
        for a, b2 in ((0, 1), (2, 3), (4, 5), (6, 7), (0, 2), (4, 6), (0, 4)):
            for e in (0, 1): P(f'v_add_f32 {v(vGA+4*a+e)}, {v(vGA+4*a+e)}, {v(vGA+4*b2+e)}')
    tagcheck_loop(gather8(sO1, sO2), [vGA+4*k+2 for k in range(8)], 'q')
    stamp('C0_q')
    sum8()
    P(f'v_cvt_pk_bf16_f32 {v(vT)}, {v(vGA)}, {v(vGA+1)}')
    P(f'ds_write_b32 {v(26)}, {v(vT)}')
    P(f'ds_write_b32 {v(27)}, {v(25)}')
    P('L_QKP:')
    vKR, vQ, vKB, vDQ, vS2, vE, vML = 8, 128, 144, 28, 208, 210, 216
    sM2 = sG
    P(f's_sub_u32 {s(sT2)}, {s(sW)}, 4\ns_lshl_b32 {s(sT0)}, {s(sT2)}, 3\ns_add_u32 {s(sT0)}, {s(sT0)}, {hex(L_FLAG)}\nv_mov_b32 {v(vT+2)}, {s(sT0)}')
    P(f'v_and_b32 {v(vT)}, 15, {v(vL)}\nv_lshrrev_b32 {v(vT+1)}, 4, {v(vL)}\nv_lshlrev_b32 {v(26)}, 4, {v(vT+1)}\nv_xor_b32 {v(vT+1)}, {v(vT+1)}, {v(vT)}\nv_lshlrev_b32 {v(vT+1)}, 4, {v(vT+1)}\nv_lshl_add_u32 {v(vKR)}, {v(vT)}, 8, {v(vT+1)}')
    P(f's_lshl_b32 {s(sT0)}, {s(sT2)}, 15\nv_add_u32 {v(vKR)}, {s(sT0)}, {v(vKR)}')
    for q in range(1, 4): P(f'v_xor_b32 {v(vKR+q)}, {64*q}, {v(vKR)}')
    P(f'v_and_b32 {v(27)}, 7, {v(vL)}\nv_lshl_add_u32 {v(27)}, {v(27)}, 6, {v(26)}\nv_bfe_u32 {v(vT)}, {v(vL)}, 3, 1\nv_lshl_add_u32 {v(27)}, {v(vT)}, 3, {v(27)}')
    P(f's_lshl_b32 {s(sT0)}, {s(sT2)}, 9\ns_add_u32 {s(sT0)}, {s(sT0)}, {hex(L_P)}\nv_add_u32 {v(27)}, {s(sT0)}, {v(27)}\nv_add_u32 {v(26)}, {hex(L_Q)}, {v(26)}')
    P(f's_lshl_b32 {s(sT0)}, {s(sT2)}, 4\ns_add_u32 {s(sT0)}, {s(sT0)}, {hex(L_MS)}\nv_mov_b32 {v(25)}, {s(sT0)}\nv_mov_b32 {v(vML+2)}, 1\nv_mov_b32 {v(vML+3)}, 1')
    P(f's_mov_b32 {s(sMASK)}, 0x00010001\ns_mov_b32 {s(sMASK+1)}, 0x00010001\ns_mov_b32 {s(sM2)}, 0x01000100\ns_mov_b32 {s(sM2+1)}, 0x01000100')
    lds_wait('kq', vT+2, 2, 28, [28, 29], cfg.lsleep)
    stamp('C0_kready')
    for q in range(4): P(f'ds_read_b128 {v(vQ+4*q,4)}, {v(26)} offset:{64*q}')
    NB = 3; PD = NB - 1; NT = 8
    def kread(t, q): P(f'ds_read_b128 {v(vKB+16*(t % NB)+4*q,4)}, {v(vKR+q)} offset:{4096*t}')
    for t in range(PD):
        for q in range(4): kread(t, q)
    for t in range(NT + 1):
        u = t - 1
        for q in range(4):
            if t < NT:
                if q in (0, 2): P(f's_waitcnt lgkmcnt({min(4*PD - 2, 4*(NT - t) - 2 - q)})')
                mfma(vDQ + 4*(t & 1), vKB + 16*(t % NB) + 4*q, vQ + 4*q, first=(q == 0))
                if t + PD < NT: kread(t + PD, q)
            if t >= 1 and q >= 2:
                mk = sMASK if q == 2 else sM2
                for e in range(2):
                    P(f'v_cndmask_b32 {v(vS2+e)}, {v(vS2+e)}, {v(vDQ+4*(u & 1)+2*(q-2)+e)}, {s(mk,2)}')
        if t >= 1 and t < NT: P(f's_lshl_b64 {s(sMASK,2)}, {s(sMASK,2)}, 1\ns_lshl_b64 {s(sM2,2)}, {s(sM2,2)}, 1')
    stamp('C0_qk')
    P(f'v_cvt_pk_bf16_f32 {v(vE)}, {v(vS2)}, {v(vS2+1)}'); unpack(vS2, vS2+1, vE)
    for e in range(2): P(f'v_mul_f32 {v(vS2+e)}, {SCALE}, {v(vS2+e)}')
    P(f'v_cvt_pk_bf16_f32 {v(vE)}, {v(vS2)}, {v(vS2+1)}'); unpack(vS2, vS2+1, vE)
    P(f'v_max_f32 {v(vML)}, {v(vS2)}, {v(vS2+1)}')
    wave_reduce('v_max_f32', [vML])
    P(f'v_readlane_b32 {s(sT0)}, {v(vML)}, 63')
    for e in range(2): P(f'v_subrev_f32 {v(vE+e)}, {s(sT0)}, {v(vS2+e)}')
    for e in range(2): P(f'v_mul_f32 {v(vE+e)}, {LOG2E}, {v(vE+e)}')
    for e in range(2): P(f'v_exp_f32 {v(vE+e)}, {v(vE+e)}')
    P(f'v_add_f32 {v(vML+1)}, {v(vE)}, {v(vE+1)}')
    wave_reduce('v_add_f32', [vML+1])
    setexec(1 << 63)
    P(f'ds_write_b128 {v(25)}, {v(vML,4)}')
    setexec(ALL)
    P(f's_cmp_eq_u32 {s(sW)}, 4\ns_cbranch_scc1 L_C0ML')
    P(f's_cmp_eq_u32 {s(sW)}, 5\ns_cbranch_scc0 L_MLWAIT\ns_cmp_eq_u32 {s(sR)}, 99\ns_cbranch_scc0 L_MLWAIT')
    modtile_compute(0, sO2)
    P('L_MLWAIT:')
    P(f'v_mov_b32 {v(vT+2)}, {hex(L_ML)}')
    lds_wait('mlw', vT+2, 4, vML, [vML+2], cfg.lsleep)
    P('s_branch L_PCALC')
    P('L_C0ML:')
    P(f'v_and_b32 {v(vT+2)}, 3, {v(vL)}\nv_lshlrev_b32 {v(vT+2)}, 4, {v(vT+2)}\nv_add_u32 {v(vT+2)}, {hex(L_MS)}, {v(vT+2)}')
    P(f's_lshl_b32 {s(sO1)}, {s(sH)}, 7\ns_add_u32 {s(sO1)}, {s(sO1)}, {hex(X3)}\ns_lshl_b32 {s(sO0)}, {s(sJ)}, 4\ns_add_u32 {s(sO0)}, {s(sO0)}, {s(sO1)}')
    lds_wait('msw', vT+2, 4, 220, [222])
    P(f'v_max_f32_dpp {v(vML)}, {v(220)}, {v(220)} quad_perm:[1,0,3,2] row_mask:0xf bank_mask:0xf\nv_mov_b32 {v(vML+2)}, {s(sTAG)}\nv_mov_b32 {v(vML+3)}, {s(sTAG)}')
    P(f'v_max_f32_dpp {v(vML)}, {v(vML)}, {v(vML)} quad_perm:[2,3,0,1] row_mask:0xf bank_mask:0xf')
    P(f'v_sub_f32 {v(220)}, {v(220)}, {v(vML)}\nv_mul_f32 {v(220)}, {LOG2E}, {v(220)}\nv_exp_f32 {v(220)}, {v(220)}\nv_mov_b32 {v(vT)}, 0\nv_mul_f32 {v(vML+1)}, {v(220)}, {v(221)}')
    for mod in ('quad_perm:[1,0,3,2]', 'quad_perm:[2,3,0,1]'): P(f'v_add_f32_dpp {v(vML+1)}, {v(vML+1)}, {v(vML+1)} {mod} row_mask:0xf bank_mask:0xf')
    publish(vML, vT, sO0, 1)
    stamp('C0_x3pub')
    P(f's_add_u32 {s(sMASK)}, {s(sWSP)}, {s(sO1)}\ns_addc_u32 {s(sMASK+1)}, {s(sWSP+1)}, 0\ns_mov_b32 {s(sSPIN)}, 0')
    gl = [4 + 4*k for k in range(8)]
    P('L_MLW:')
    if cfg.sleep3: P(f's_sleep {cfg.sleep3}')
    P(f's_load_dwordx16 s[4:19], {s(sMASK,2)}, 0 glc\ns_load_dwordx16 s[20:35], {s(sMASK,2)}, 64 glc')
    P(f's_add_u32 {s(sSPIN)}, {s(sSPIN)}, 1\ns_cmp_gt_u32 {s(sSPIN)}, {cfg.spin}\ns_cbranch_scc1 L_END')
    P('s_waitcnt lgkmcnt(0)')
    P(f's_xor_b32 {s(sT0)}, {s(gl[0]+2)}, {s(sTAG)}')
    for g in gl[1:]: P(f's_xor_b32 {s(sT1)}, {s(g+2)}, {s(sTAG)}\ns_or_b32 {s(sT0)}, {s(sT0)}, {s(sT1)}')
    P('s_cbranch_scc1 L_MLW')
    stamp('C0_ml')
    vG8 = 220
    P(f'v_mov_b32 {v(vML)}, {s(gl[0])}')
    for g in gl[1:]: P(f'v_max_f32 {v(vML)}, {s(g)}, {v(vML)}')
    for k, g in enumerate(gl): P(f'v_sub_f32 {v(vG8+k)}, {s(g)}, {v(vML)}')
    for k in range(8): P(f'v_mul_f32 {v(vG8+k)}, {LOG2E}, {v(vG8+k)}')
    for k in range(8): P(f'v_exp_f32 {v(vG8+k)}, {v(vG8+k)}')
    P(f'v_mul_f32 {v(vE)}, {s(gl[0]+1)}, {v(vG8)}')
    for k, g in enumerate(gl[1:]): P(f'v_fmac_f32 {v(vE)}, {s(g+1)}, {v(vG8+k+1)}')
    P(f'v_rcp_f32 {v(vE+1)}, {v(vE)}\nv_mov_b32 {v(vT+2)}, {hex(L_ML)}\nv_mov_b32 {v(vML+2)}, 1')
    P(f'v_fma_f32 {v(vE)}, -{v(vE)}, {v(vE+1)}, 1.0\nv_fma_f32 {v(vML+1)}, {v(vE)}, {v(vE+1)}, {v(vE+1)}')
    setexec(1)
    P(f'ds_write_b128 {v(vT+2)}, {v(vML,4)}')
    setexec(ALL)
    P('L_PCALC:')
    for e in range(2): P(f'v_sub_f32 {v(vE+e)}, {v(vS2+e)}, {v(vML)}')
    for e in range(2): P(f'v_mul_f32 {v(vE+e)}, {LOG2E}, {v(vE+e)}')
    for e in range(2): P(f'v_exp_f32 {v(vE+e)}, {v(vE+e)}')
    for e in range(2): P(f'v_mul_f32 {v(vE+e)}, {v(vE+e)}, {v(vML+1)}')
    for e in range(2): P(f'v_cvt_pk_bf16_f32 {v(vE+e)}, {v(vE+e)}, {v(vE+e)}')
    P(f'ds_write_b64 {v(27)}, {v(vE,2)}')
    srd(SRD_WS, sWSP, WS_BYTES)
    P(f's_cmp_eq_u32 {s(sW)}, 4\ns_cbranch_scc1 L_C0B1')
    P('s_waitcnt lgkmcnt(0)')
    P('s_barrier')
    P(f's_cmp_eq_u32 {s(sW)}, 5\ns_cbranch_scc1 L_C1B1')
    P('s_branch L_C23B1')
    P('L_C0B1:')
    srd(SRD_A, pWO, 4 << 20)
    P(f'v_bfe_u32 {v(vT)}, {v(vL)}, 3, 1\nv_lshlrev_b32 {v(vT)}, 16, {v(vT)}\nv_bfe_u32 {v(vT+1)}, {v(vL)}, 4, 1\nv_lshl_add_u32 {v(vT)}, {v(vT+1)}, 12, {v(vT)}\nv_lshrrev_b32 {v(vT+1)}, 5, {v(vL)}\nv_lshl_add_u32 {v(vT)}, {v(vT+1)}, 11, {v(vT)}')
    P(f'v_and_b32 {v(vT+1)}, 7, {v(vL)}\nv_lshl_add_u32 {v(vWA)}, {v(vT+1)}, 4, {v(vT)}')
    P(f's_lshl_b32 {s(sO0)}, {s(sH)}, 17\ns_lshl_b32 {s(sT0)}, {s(sJ)}, 7\ns_add_u32 {s(sO0)}, {s(sO0)}, {s(sT0)}')
    P('s_waitcnt lgkmcnt(0)')
    stamp('C0_p')
    P('s_barrier')
    vWO = 64
    for i in range(16):
        P(f'buffer_load_dwordx4 {v(vWO+4*i,4)}, {v(vWA)}, {S(SRD_A)}, {s(sO0)} offen offset:{1024*(i & 1)} {cfg.wpol}')
        if (i & 1) == 1 and i < 15: P(f's_add_u32 {s(sO0)}, {s(sO0)}, 8192')
    P(f'v_lshrrev_b32 {v(vT+2)}, 1, {v(vL16)}\nv_add_u32 {v(vT+2)}, {hex(L_OP)}, {v(vT+2)}')
    P(f's_lshl_b32 {s(sO1)}, {s(sH)}, 13\ns_add_u32 {s(sO1)}, {s(sO1)}, {hex(XA)}\ns_lshl_b32 {s(sO0)}, {s(sJ)}, 10\ns_add_u32 {s(sO0)}, {s(sO0)}, {s(sO1)}\ns_add_u32 {s(sO2)}, {s(sO1)}, 4096')
    P(f's_lshl_b32 {s(sO3)}, {s(sJ)}, 5\ns_add_u32 {s(sO3)}, {s(sO3)}, {s(sH)}\ns_lshl_b32 {s(sO3)}, {s(sO3)}, 9\ns_add_u32 {s(sO3)}, {s(sO3)}, {hex(XB)}')
    P(f'v_mov_b32 {v(22)}, {s(sTAG)}')
    vAP, vDNA, vCA, vEA = 8, 10, 11, 12
    sQ, sW2, sDN, sEP, sEG, sDP, sC0 = 4, 6, 8, 9, 10, 11, 12
    P(f's_sub_u32 {s(sT0)}, {s(sKK)}, 8\ns_cmp_lt_u32 {s(sKK)}, 8\ns_cselect_b32 {s(sT1)}, {s(sKK)}, {s(sT0)}\ns_and_b32 {s(sQ)}, {s(sT1)}, 3\ns_lshr_b32 {s(sT1)}, {s(sT1)}, 2')
    P(f's_mul_i32 {s(sIM)}, {s(sX)}, 6\ns_add_u32 {s(sIM)}, {s(sIM)}, {s(sT1)}\ns_cmp_lt_u32 {s(sT0)}, 8\ns_cselect_b32 {s(sIM)}, 255, {s(sIM)}')
    srd(SRD_B, pW2, 1376*1024)
    P(f'v_lshrrev_b32 {v(vT)}, 3, {v(vL)}\nv_mul_u32_u24 {v(vT)}, {16*2752}, {v(vT)}\nv_and_b32 {v(vT+1)}, 3, {v(vL)}\nv_lshl_add_u32 {v(vT)}, {v(vT+1)}, 4, {v(vT)}')
    P(f's_mul_i32 {s(sT0)}, {s(sQ)}, {128*2752}\ns_min_u32 {s(sT1)}, {s(sIM)}, {NM-1}\ns_lshl_b32 {s(sT1)}, {s(sT1)}, 6\ns_add_u32 {s(sT0)}, {s(sT0)}, {s(sT1)}\nv_add_u32 {v(vT)}, {s(sT0)}, {v(vT)}')
    P(f's_mov_b32 {s(sMASK)}, 0xf0f0f0f0\ns_mov_b32 {s(sMASK+1)}, 0xf0f0f0f0\ns_mov_b32 {s(sW2)}, 2752*2\ns_mov_b32 {s(sW2+1)}, 0')
    P(f'v_mov_b32 {v(vAP)}, {s(pW1)}\nv_mov_b32 {v(vAP+1)}, {s(pW1+1)}\nv_mov_b32 {v(vT+1)}, {s(pW3)}\nv_mov_b32 {v(vCA)}, {s(pW3+1)}')
    P(f'v_cndmask_b32 {v(vAP)}, {v(vAP)}, {v(vT+1)}, {s(sMASK,2)}\nv_cndmask_b32 {v(vAP+1)}, {v(vAP+1)}, {v(vCA)}, {s(sMASK,2)}')
    P(f'v_add_co_u32 {v(vAP)}, vcc, {v(vAP)}, {v(vT)}\nv_addc_co_u32 {v(vAP+1)}, vcc, 0, {v(vAP+1)}, vcc')
    P(f'v_bfe_u32 {v(vT)}, {v(vL)}, 4, 1\nv_lshlrev_b32 {v(vDNA)}, 12, {v(vT)}\nv_lshrrev_b32 {v(vT)}, 5, {v(vL)}\nv_lshl_add_u32 {v(vDNA)}, {v(vT)}, 11, {v(vDNA)}\nv_and_b32 {v(vT)}, 15, {v(vL)}\nv_lshl_add_u32 {v(vDNA)}, {v(vT)}, 4, {v(vDNA)}')
    P(f's_lshl_b32 {s(sDN)}, {s(sIM)}, 15\ns_lshl_b32 {s(sT0)}, {s(sQ)}, 8\ns_add_u32 {s(sDN)}, {s(sDN)}, {s(sT0)}')
    P(f's_lshl_b32 {s(sEG)}, {s(sIM)}, 11\ns_add_u32 {s(sEG)}, {s(sEG)}, {hex(XE)}\ns_lshl_b32 {s(sT0)}, {s(sQ)}, 9\ns_add_u32 {s(sEP)}, {s(sEG)}, {s(sT0)}')
    P(f's_lshl_b32 {s(sDP)}, {s(sIM)}, 12\ns_lshl_b32 {s(sT0)}, {s(sQ)}, 10\ns_add_u32 {s(sDP)}, {s(sDP)}, {s(sT0)}\ns_add_u32 {s(sDP)}, {s(sDP)}, {hex(XD)}')
    P(f's_lshl_b32 {s(sT1)}, {s(sX)}, 12\ns_add_u32 {s(sT1)}, {s(sT1)}, {hex(XC)}' if cfg.xcrep else f's_mov_b32 {s(sT1)}, {hex(XC)}')
    for k in range(4): P(f's_add_u32 {s(sT0)}, {s(sQ)}, {k}\ns_and_b32 {s(sT0)}, {s(sT0)}, 3\ns_lshl_b32 {s(sT0)}, {s(sT0)}, 10\ns_add_u32 {s(sC0+k)}, {s(sT0)}, {s(sT1)}')
    P(f'v_lshrrev_b32 {v(vT)}, 5, {v(vL)}\nv_lshlrev_b32 {v(vCA)}, 9, {v(vT)}\nv_bfe_u32 {v(vT)}, {v(vL)}, 1, 1\nv_lshl_add_u32 {v(vCA)}, {v(vT)}, 7, {v(vCA)}\nv_and_b32 {v(vT)}, 1, {v(vL)}\nv_lshl_add_u32 {v(vCA)}, {v(vT)}, 8, {v(vCA)}')
    P(f'v_bfe_u32 {v(vT)}, {v(vL)}, 4, 1\nv_lshl_add_u32 {v(vCA)}, {v(vT)}, 6, {v(vCA)}\nv_bfe_u32 {v(vT)}, {v(vL)}, 2, 2\nv_lshl_add_u32 {v(vCA)}, {v(vT)}, 4, {v(vCA)}')
    P(f'v_bfe_u32 {v(vT)}, {v(vL)}, 3, 1\nv_lshlrev_b32 {v(vT)}, 9, {v(vT)}\nv_add_u32 {v(vEA)}, {v(vPUB)}, {v(vT)}')
    P('s_barrier')
    stamp('C0_b2')
    for w in range(4): P(f'ds_read_b64 {v(24+2*w,2)}, {v(vT+2)} offset:{512*w}')
    P('s_waitcnt lgkmcnt(2)')
    for e in range(2): P(f'v_add_f32 {v(24+e)}, {v(24+e)}, {v(26+e)}')
    P('s_waitcnt lgkmcnt(0)')
    for e in range(2): P(f'v_add_f32 {v(28+e)}, {v(28+e)}, {v(30+e)}')
    for e in range(2): P(f'v_add_f32 {v(20+e)}, {v(24+e)}, {v(28+e)}')
    publish_loc(20, vL16, sO0)
    stamp('C0_xapub')
    vOd = 40
    def issue(b):
        for k in range(8):
            P(f'buffer_load_dwordx4 {v(b+4*k,4)}, {v(vL16)}, {S(SRD_WS)}, {s(sO1 if k < 4 else sO2)} offen offset:{1024*(k & 3)} sc1')
    def done(b):
        for a, b2 in ((0, 1), (2, 3), (4, 5), (6, 7), (0, 2), (4, 6), (0, 4)):
            for e in (0, 1): P(f'v_add_f32 {v(b+4*a+e)}, {v(b+4*a+e)}, {v(b+4*b2+e)}')
        P(f'v_cvt_pk_bf16_f32 {v(vOd)}, {v(b)}, {v(b)}\nv_cvt_pk_bf16_f32 {v(vOd+1)}, {v(b+1)}, {v(b+1)}')
    poll('xa', issue, 8, 128, 32, [4*k+2 for k in range(8)], done)
    stamp('C0_xa')
    lohi(vOd)
    chain(vD0, 16, [vWO+4*i for i in range(16)], lohi_srcs(vOd), vAA)
    finish2(vD0)
    publish(vD0, vPUB, sO3, M2SET)
    stamp('C0_xbpub')
    P(f's_cmp_lt_u32 {s(sIM)}, {NM}\ns_cbranch_scc0 L_END')
    vUP, vDN, vCG, vEG = 128, 192, 64, 80
    for i in range(16):
        P(f'global_load_dwordx4 {v(vUP+4*i,4)}, {v(vAP,2)}, off offset:{2752*(i & 1)} {cfg.wpol}')
        if i & 1 and i < 15: P(f'v_lshl_add_u64 {v(vAP,2)}, {v(vAP,2)}, 0, {s(sW2,2)}')
    for i in range(8):
        P(f'buffer_load_dwordx4 {v(vDN+4*i,4)}, {v(vDNA)}, {S(SRD_B)}, {s(sDN)} offen offset:{1024*(i & 1)} {cfg.wpol}')
        if i & 1 and i < 7: P(f's_add_u32 {s(sDN)}, {s(sDN)}, 8192')
    if cfg.diag and 'M_w' in cfg.diag:
        P('s_waitcnt vmcnt(0)'); stamp('M_w')
    def issue():
        for k in range(4): P(f'buffer_load_dwordx4 {v(vCG+4*k,4)}, {v(vCA)}, {S(SRD_WS)}, {s(sC0+k)} offen sc1')
    tagcheck_loop(issue, [vCG+4*k+3 for k in range(4)], 'xc')
    stamp('M_xc')
    vx = 88
    for k in range(4): unpack(vx+2*k, vx+2*k+1, vCG+4*k)
    P(f'v_readfirstlane_b32 {s(sT0)}, {v(vx)}')
    vcb, vsb = 24, 26
    unpack(vcb, vcb+1, vCG+1); unpack(vsb, vsb+1, vCG+2)
    for k in range(8): P(f'v_subrev_f32 {v(96+k)}, {s(sT0)}, {v(vx+k)}')
    P(f'v_pk_add_f32 {v(20,2)}, {v(96,2)}, {v(98,2)}\nv_pk_add_f32 {v(22,2)}, {v(100,2)}, {v(102,2)}\nv_pk_mul_f32 {v(28,2)}, {v(96,2)}, {v(96,2)}\nv_pk_mul_f32 {v(30,2)}, {v(100,2)}, {v(100,2)}')
    P(f'v_pk_add_f32 {v(20,2)}, {v(20,2)}, {v(22,2)}\nv_pk_fma_f32 {v(28,2)}, {v(98,2)}, {v(98,2)}, {v(28,2)}\nv_pk_fma_f32 {v(30,2)}, {v(102,2)}, {v(102,2)}, {v(30,2)}')
    P(f'v_add_f32 {v(22)}, {v(20)}, {v(21)}\nv_pk_add_f32 {v(28,2)}, {v(28,2)}, {v(30,2)}\nv_add_f32 {v(23)}, {v(28)}, {v(29)}')
    for mod in ('quad_perm:[1,0,3,2]', 'quad_perm:[2,3,0,1]', 'row_ror:4', 'row_ror:8'):
        for r in (22, 23): P(f'v_add_f32_dpp {v(r)}, {v(r)}, {v(r)} {mod} row_mask:0xf bank_mask:0xf')
    P(f'v_permlane16_swap_b32 {v(22)}, {v(23)}\nv_add_f32 {v(22)}, {v(22)}, {v(23)}\nv_mov_b32 {v(23)}, {v(22)}')
    P(f'v_permlane32_swap_b32 {v(22)}, {v(23)}\nv_add_f32 {v(22)}, {v(22)}, {v(23)}\nv_mul_f32 {v(22)}, {R512}, {v(22)}')
    P(f'v_readlane_b32 {s(sT1)}, {v(22)}, 0\nv_readlane_b32 {s(sT2)}, {v(22)}, 16')
    P(f'v_mov_b32 {v(22)}, {s(sT1)}\nv_mov_b32 {v(23)}, {s(sT2)}')
    P(f'v_fma_f32 {v(23)}, -{v(22)}, {v(22)}, {v(23)}\nv_add_f32 {v(22)}, {s(sT0)}, {v(22)}\nv_max_f32 {v(23)}, 0, {v(23)}')
    P(f'v_cvt_pk_bf16_f32 {v(22)}, {v(22)}, {v(23)}')
    P(f'v_and_b32 {v(23)}, 0xffff0000, {v(22)}\nv_lshlrev_b32 {v(22)}, 16, {v(22)}\nv_add_f32 {v(23)}, {EPS}, {v(23)}')
    P(f'v_sub_f32 {v(20)}, {v(vx)}, {v(22)}\nv_sub_f32 {v(21)}, {v(vx+1)}, {v(22)}')
    P(f'v_cvt_pk_bf16_f32 {v(23)}, {v(23)}, {v(23)}\nv_cvt_pk_bf16_f32 {v(20)}, {v(20)}, {v(21)}\nv_and_b32 {v(23)}, 0xffff0000, {v(23)}\nv_sqrt_f32 {v(23)}, {v(23)}')
    unpack(vx, vx+1, 20)
    P(f'v_cvt_pk_bf16_f32 {v(23)}, {v(23)}, {v(23)}\nv_and_b32 {v(23)}, 0xffff0000, {v(23)}\nv_rcp_f32 {v(22)}, {v(23)}')
    P(f'v_mul_f32 {v(20)}, {v(vx)}, {v(22)}\nv_mul_f32 {v(21)}, {v(vx+1)}, {v(22)}')
    P(f'v_fma_f32 {v(vx)}, -{v(20)}, {v(23)}, {v(vx)}\nv_fma_f32 {v(vx+1)}, -{v(21)}, {v(23)}, {v(vx+1)}')
    P(f'v_fma_f32 {v(20)}, {v(vx)}, {v(22)}, {v(20)}\nv_fma_f32 {v(21)}, {v(vx+1)}, {v(22)}, {v(21)}')
    P(f'v_cvt_pk_bf16_f32 {v(20)}, {v(20)}, {v(21)}')
    unpack(vx, vx+1, 20)
    P(f'v_mul_f32 {v(vx)}, {v(vx)}, {v(vcb)}\nv_mul_f32 {v(vx+1)}, {v(vx+1)}, {v(vcb+1)}\nv_cvt_pk_bf16_f32 {v(20)}, {v(vx)}, {v(vx+1)}')
    unpack(vx, vx+1, 20)
    P(f'v_add_f32 {v(vx)}, {v(vx)}, {v(vsb)}\nv_add_f32 {v(vx+1)}, {v(vx+1)}, {v(vsb+1)}')
    P(f'v_cvt_pk_bf16_f32 {v(vOd)}, {v(vx)}, {v(vx)}\nv_cvt_pk_bf16_f32 {v(vOd+1)}, {v(vx+1)}, {v(vx+1)}')
    lohi(vOd)
    stamp('M_h2')
    chain(vD0, 16, [vUP+4*i for i in range(16)], lohi_srcs(vOd), vAA)
    finish2(vD0)
    publish_loc(vD0, vPUB, sEP, M2SET, sR)
    stamp('M_up')
    def issue():
        for k in range(2): P(f'buffer_load_dwordx4 {v(vEG+4*k,4)}, {v(vEA)}, {S(SRD_WS)}, {s(sEG)} offen offset:{1024*k} sc1')
    tagcheck_loop(issue, [vEG+2, vEG+6], 'xe')
    stamp('M_xe')
    for e in range(2): P(f'v_add_f32 {v(20+e)}, {v(vEG+e)}, {v(vEG+4+e)}')
    for e in range(2): P(f'v_add_f32_dpp {v(20+e)}, {v(20+e)}, {v(20+e)} row_ror:8 row_mask:0xf bank_mask:0xf')
    P(f'v_cvt_pk_bf16_f32 {v(22)}, {v(20)}, {v(21)}')
    unpack(20, 21, 22)
    P(f'v_mov_b32_dpp {v(24)}, {v(22)} row_shl:4 row_mask:0xf bank_mask:0xf')
    silu_multi([20, 21], [22, 23])
    unpack(26, 27, 24)
    P(f'v_cvt_pk_bf16_f32 {v(22)}, {v(20)}, {v(21)}')
    unpack(20, 21, 22)
    P(f'v_mul_f32 {v(20)}, {v(20)}, {v(26)}\nv_mul_f32 {v(21)}, {v(21)}, {v(27)}')
    for e in range(2): P(f'v_cvt_pk_bf16_f32 {v(20+e)}, {v(20+e)}, {v(20+e)}')
    stamp('M_act')
    chain(vD0, 8, [vDN+4*i for i in range(8)], [(20 + (i & 1), f'row_newbcast:{i >> 1}') for i in range(8)], vAA)
    finish1(vD0)
    publish(vD0, vL16, sDP)
    stamp('M_end')
    P('s_branch L_END')

    P('L_C123:')
    common_setup()
    P(f's_cmp_eq_u32 {s(sW)}, 5\ns_cbranch_scc1 L_C1')
    P(f's_cmp_eq_u32 {s(sW)}, 6\ns_cbranch_scc0 L_C3')
    P(f's_getpc_b64 {s(20,2)}')
    P('L_PCREF:')
    P(f's_sub_u32 s20, s20, L_PCREF-{NAME}_kernel\ns_subb_u32 s21, s21, 0')
    P(f's_lshl_b32 {s(sT0)}, {s(sKK)}, 3\nv_and_b32 {v(vT)}, 7, {v(vL)}\nv_add_u32 {v(vT)}, {s(sT0)}, {v(vT)}\nv_lshlrev_b32 {v(vT)}, 7, {v(vT)}')
    P(f'v_min_u32 {v(vT)}, L_CODE_END-{NAME}_kernel-4, {v(vT)}')
    P(f'global_load_dword {v(240)}, {v(vT)}, s[20:21]')
    P('L_C3:')
    P('s_waitcnt lgkmcnt(0)')
    P(f's_add_u32 {s(sTAG)}, {s(sTAG)}, 1')
    P('s_branch L_QKP')
    P('L_C23B1:')
    P('s_barrier')
    P('s_branch L_END')

    P('L_C1:')
    P('s_waitcnt lgkmcnt(0)')
    P(f's_add_u32 {s(sTAG)}, {s(sTAG)}, 1')
    P(f's_mov_b32 {s(sR)}, 0\ns_sub_u32 {s(sT0)}, {s(sKK)}, 8\ns_cmp_lt_u32 {s(sT0)}, 16\ns_cbranch_scc1 L_QKP')
    P(f'v_mov_b32 {v(vT+2)}, {hex(L_FLAG + 8)}')
    lds_wait('k1', vT+2, 1, 28, [28], 8)
    P(f's_and_b32 {s(sT0)}, {s(sKK)}, 7\ns_lshr_b32 {s(sT1)}, {s(sKK)}, 4\ns_lshl_b32 {s(sT1)}, {s(sT1)}, 3\ns_add_u32 {s(sT0)}, {s(sT0)}, {s(sT1)}')
    P(f's_lshl_b32 {s(sT0)}, {s(sT0)}, 3\ns_add_u32 {s(sT0)}, {s(sT0)}, {s(sX)}\ns_and_b32 {s(sT1)}, {s(sT0)}, 31\ns_lshr_b32 {s(sT0)}, {s(sT0)}, 5')
    P(f's_lshl_b32 {s(sO2)}, {s(sT1)}, 2\ns_add_u32 {s(sO2)}, {s(sO2)}, {s(sT0)}\ns_lshl_b32 {s(sO2)}, {s(sO2)}, 9\ns_add_u32 {s(sO2)}, {s(sO2)}, {hex(X4)}')
    P(f's_lshl_b32 {s(sT1)}, {s(sT1)}, 7\ns_add_u32 {s(sT1)}, {s(sT1)}, 2048')
    modtile_issue(sT0, sT1)
    P(f's_mov_b32 {s(sR)}, 99\ns_branch L_QKP')
    P('L_C1B1:')
    P(f's_sub_u32 {s(sT0)}, {s(sKK)}, 8\ns_cmp_lt_u32 {s(sT0)}, 8\ns_cbranch_scc1 L_RED')
    P('s_barrier')
    P('s_branch L_END')
    P('L_RED:')
    vg = 64
    srd(SRD_A, pX, 1024); srd(SRD_B, pOUT, 1024)
    vXv, vGAv, vGBv, vU16, vBA, vDA, vXC = 12, 13, 14, 15, 16, 17, 20
    sR8, sG64 = sG, sG+1
    P(f's_mov_b32 {s(sR8)}, {s(sT0)}\ns_lshl_b32 {s(sG64)}, {s(sT0)}, 6\ns_lshl_b32 {s(sR)}, {s(sX)}, 3\ns_add_u32 {s(sR)}, {s(sR)}, {s(sT0)}')
    P(f's_lshl_b32 {s(sO0)}, {s(sX)}, 7\ns_and_b32 {s(sT1)}, {s(sR8)}, 1\ns_lshl_b32 {s(sT1)}, {s(sT1)}, 6\ns_add_u32 {s(sO0)}, {s(sO0)}, {s(sT1)}')
    P(f's_and_b32 {s(sT1)}, {s(sR8)}, 2\ns_lshl_b32 {s(sT1)}, {s(sT1)}, 2\ns_add_u32 {s(sO0)}, {s(sO0)}, {s(sT1)}\ns_and_b32 {s(sT1)}, {s(sR8)}, 4\ns_add_u32 {s(sG+2)}, {s(sO0)}, {s(sT1)}')
    P(f'v_and_b32 {v(vU16)}, 3, {v(vL)}\nv_lshlrev_b32 {v(vU16)}, 4, {v(vU16)}\nv_bfe_u32 {v(vT+1)}, {v(vL)}, 4, 1\nv_lshl_add_u32 {v(vT)}, {v(vT+1)}, 1, {v(vU16)}')
    P(f'buffer_load_ushort {v(vXv)}, {v(vT)}, {S(SRD_A)}, {s(sG+2)} offen')
    P(f'v_lshrrev_b32 {v(vT)}, 4, {v(vL)}\nv_lshlrev_b32 {v(vT)}, 14, {v(vT)}\nv_bfe_u32 {v(vT+1)}, {v(vL)}, 2, 2\nv_lshl_add_u32 {v(vT)}, {v(vT+1)}, 9, {v(vT)}\nv_add_u32 {v(vBA)}, {v(vT)}, {v(vU16)}')
    P(f's_lshl_b32 {s(sO0)}, {s(sX)}, 11\ns_add_u32 {s(sO0)}, {s(sO0)}, {s(sG64)}\ns_add_u32 {s(sO0)}, {s(sO0)}, {hex(X4)}')
    P('s_barrier')
    stamp('R_b2')
    tagcheck_loop(lambda: P(f'buffer_load_dwordx4 {v(vg,4)}, {v(vBA)}, {S(SRD_WS)}, {s(sO0)} offen sc1'), [vg+2], 'x4')
    for mod in ('row_ror:4', 'row_ror:8'):
        for e in range(2): P(f'v_add_f32_dpp {v(vg+e)}, {v(vg+e)}, {v(vg+e)} {mod} row_mask:0xf bank_mask:0xf')
    P(f'v_cvt_pk_bf16_f32 {v(vg)}, {v(vg)}, {v(vg+1)}')
    P(f'v_lshrrev_b32 {v(vT)}, 2, {v(vU16)}')
    P(f'ds_bpermute_b32 {v(vGAv)}, {v(vT)}, {v(vg)}\nds_bpermute_b32 {v(vXC+2)}, {v(vT)}, {v(vg)} offset:64\nds_bpermute_b32 {v(vXC+1)}, {v(vT)}, {v(vg)} offset:128\nds_bpermute_b32 {v(vGBv)}, {v(vT)}, {v(vg)} offset:192')
    P(f'v_bfe_u32 {v(vT+2)}, {v(vL)}, 4, 1\nv_lshlrev_b32 {v(vT+2)}, 4, {v(vT+2)}\nv_lshlrev_b32 {v(vXv)}, 16, {v(vXv)}\nv_mov_b32 {v(vXC+3)}, {s(sTAG)}')
    P('s_waitcnt lgkmcnt(0)')
    for r in (vGAv, vGBv): P(f'v_lshrrev_b32 {v(r)}, {v(vT+2)}, {v(r)}\nv_lshlrev_b32 {v(r)}, 16, {v(r)}')
    unpack(vg, vg+1, vXC+1)
    P(f'v_add_f32 {v(vg)}, 1.0, {v(vg)}\nv_add_f32 {v(vg+1)}, 1.0, {v(vg+1)}\nv_cvt_pk_bf16_f32 {v(vXC+1)}, {v(vg)}, {v(vg+1)}')
    P(f'v_lshrrev_b32 {v(vT)}, 2, {v(vL)}\nv_lshl_add_u32 {v(vBA)}, {v(vT)}, 9, {v(vU16)}\nv_lshl_add_u32 {v(vDA)}, {v(vT)}, 12, {v(vU16)}')
    P(f's_lshl_b32 {s(sO0)}, {s(sX)}, 14\ns_add_u32 {s(sO0)}, {s(sO0)}, {s(sG64)}\ns_add_u32 {s(sO0)}, {s(sO0)}, {hex(XB)}\ns_add_u32 {s(sO1)}, {s(sO0)}, 8192')
    P(f's_lshl_b32 {s(sO3)}, {s(sR)}, 6\ns_add_u32 {s(sO3)}, {s(sO3)}, {hex(XC)}')
    P(f's_lshr_b32 {s(sO2)}, {s(sX)}, 1\ns_lshl_b32 {s(sO2)}, {s(sO2)}, 10\ns_and_b32 {s(sT1)}, {s(sX)}, 1\ns_lshl_b32 {s(sT1)}, {s(sT1)}, 7\ns_add_u32 {s(sO2)}, {s(sO2)}, {s(sT1)}')
    P(f's_and_b32 {s(sT1)}, {s(sR8)}, 1\ns_lshl_b32 {s(sT1)}, {s(sT1)}, 6\ns_add_u32 {s(sO2)}, {s(sO2)}, {s(sT1)}\ns_lshr_b32 {s(sT1)}, {s(sR8)}, 1\ns_lshl_b32 {s(sT1)}, {s(sT1)}, 8\ns_add_u32 {s(sO2)}, {s(sO2)}, {s(sT1)}\ns_add_u32 {s(sO2)}, {s(sO2)}, {hex(XD)}')
    sD = 8
    for k in range(3): P(f's_add_u32 {s(sD+k)}, {s(sO2)}, {hex(65536*k)}')
    for i in range(cfg.pipe):
        for k in range(3): P(f'v_mov_b32 {v(128+12*i+8+k)}, {s(sTAG) if k == 2 else 0}')
    stamp('R_x4')
    def issue(b):
        for k in range(2): P(f'buffer_load_dwordx4 {v(b+4*k,4)}, {v(vBA)}, {S(SRD_WS)}, {s(sO0+k)} offen sc1')
    def done(b):
        for e in range(2): P(f'v_add_f32 {v(vg+e)}, {v(b+e)}, {v(b+4+e)}')
    poll('xb', issue, 2, 68, 8, [2, 6], done)
    stamp('R_xb')
    def colsum():
        P(f'v_permlane16_swap_b32 {v(vg)}, {v(vg+1)}')
        P(f'v_add_f32 {v(vg)}, {v(vg)}, {v(vg+1)}')
        P(f'v_add_f32_dpp {v(vg)}, {v(vg)}, {v(vg)} row_ror:4 row_mask:0xf bank_mask:0xf')
        P(f'v_add_f32_dpp {v(vg)}, {v(vg)}, {v(vg)} row_ror:8 row_mask:0xf bank_mask:0xf')
        P(f'v_mov_b32 {v(vg+1)}, {v(vg)}')
        P(f'v_permlane32_swap_b32 {v(vg)}, {v(vg+1)}')
        P(f'v_add_f32 {v(vg)}, {v(vg)}, {v(vg+1)}')
    colsum()
    rnd(vg)
    P(f'v_mul_f32 {v(vg)}, {v(vg)}, {v(vGAv)}'); rnd(vg)
    P(f'v_add_f32 {v(vg)}, {v(vg)}, {v(vXv)}\nv_mov_b32 {v(vg+1)}, {v(vg)}')
    P(f'v_permlane16_swap_b32 {v(vg)}, {v(vg+1)}')
    P(f'v_cvt_pk_bf16_f32 {v(vXC)}, {v(vg)}, {v(vg+1)}')
    publish(vXC, vDA, sO3, 0xffffffff if cfg.xcrep else 0xf)
    stamp('R_xcpub')
    P(f'v_lshrrev_b32 {v(vXv)}, {v(vT+2)}, {v(vXC)}\nv_lshlrev_b32 {v(vXv)}, 16, {v(vXv)}')
    def issue(b):
        for k in range(2): P(f'buffer_load_dwordx4 {v(b+4*k,4)}, {v(vDA)}, {S(SRD_WS)}, {s(sD+k)} offen sc1')
        setexec((1 << 44) - 1)
        P(f'buffer_load_dwordx4 {v(b+8,4)}, {v(vDA)}, {S(SRD_WS)}, {s(sD+2)} offen sc1')
        setexec(ALL)
    def done(b):
        for e in range(2): P(f'v_add_f32 {v(b+e)}, {v(b+e)}, {v(b+4+e)}')
        for e in range(2): P(f'v_add_f32 {v(vg+e)}, {v(b+e)}, {v(b+8+e)}')
    poll('xd', issue, 3, 128, 12, [2, 6, 10], done)
    stamp('R_xd')
    colsum()
    rnd(vg)
    P(f'v_mul_f32 {v(vg)}, {v(vg)}, {v(vGBv)}'); rnd(vg)
    P(f'v_add_f32 {v(vg)}, {v(vg)}, {v(vXv)}\nv_mov_b32 {v(vg+1)}, {v(vg)}')
    P(f'v_permlane16_swap_b32 {v(vg)}, {v(vg+1)}')
    P(f'v_cvt_pk_bf16_f32 {v(vg)}, {v(vg)}, {v(vg+1)}')
    setexec(0xf)
    P(f'buffer_store_dword {v(vg)}, {v(vU16)}, {S(SRD_B)}, {s(sG+2)} offen')
    stamp('R_end')
    P(f's_cmp_eq_u32 {s(sR)}, 0\ns_cbranch_scc0 L_END')
    setexec(1)
    P(f'v_mov_b32 {v(vT)}, 0\nv_mov_b32 {v(vT+1)}, {s(sTAG)}')
    P(f'buffer_store_dword {v(vT+1)}, {v(vT)}, {S(SRD_WS)}, 0 offen sc1')
    if cfg.probe:
        i = stamps[cfg.probe]
        P(f's_waitcnt lgkmcnt(0)\ns_sub_u32 {s(sT0)}, {s(sDIAG+2*i)}, {s(sDIAG)}\ns_memrealtime s[76:77]\ns_waitcnt lgkmcnt(0)\ns_add_u32 {s(sT0)}, {s(sT0)}, s76')
        P(f'L_PROBE:\ns_memrealtime s[76:77]\ns_waitcnt lgkmcnt(0)\ns_sub_u32 {s(sT1)}, s76, {s(sT0)}\ns_cmp_lt_i32 {s(sT1)}, 0\ns_cbranch_scc1 L_PROBE')
    P('s_branch L_END')

    P('L_END:')
    if cfg.diag and not cfg.probe:
        P('s_waitcnt lgkmcnt(0)')
        P(f's_cmp_ge_u32 {s(sB)}, 256\ns_cbranch_scc1 L_END2')
        srd(SRD_WS, sWSP, WS_BYTES)
        P(f's_lshl_b32 {s(sT0)}, {s(sB)}, 3\ns_add_u32 {s(sT0)}, {s(sT0)}, {s(sW)}\ns_lshl_b32 {s(sT0)}, {s(sT0)}, 7\ns_add_u32 {s(sT0)}, {s(sT0)}, {hex(DIAG)}')
        P('s_mov_b64 exec, 1\nv_mov_b32 v1, 0')
        for i in range(9): P(f'v_mov_b32 v2, {s(sDIAG+2*i)}\nbuffer_store_dword v2, v1, {S(SRD_WS)}, {s(sT0)} offen offset:{4*i}')
        P('L_END2:')
    P('s_endpgm')
    P('L_CODE_END:')
    probs = P.fix()
    for p in probs: print('HAZARD across branch:', p, file=sys.stderr)
    head = open(f'cdna_kernels/{NAME}.s.ref').read().split('; Override launch')[0]
    txt = head
    txt += f'; Single persistent launch: 256 workgroups (one per CU) x 8 waves. Generated by gen/gen_kernel.py (hand-written generator).\n'
    txt += f'; @launch grid=(256,1,1) block=(512,1,1) lds={LDS_BYTES}\n'
    txt += f'.amdgcn_target "amdgcn-amd-amdhsa--gfx950"\n.text\n.globl {NAME}_kernel\n.p2align 8\n.type {NAME}_kernel,@function\n{NAME}_kernel:\n'
    txt += P.text() + '\n'
    txt += f'''.section .rodata,"a"
.p2align 6
.amdhsa_kernel {NAME}_kernel
  .amdhsa_next_free_vgpr 256
  .amdhsa_next_free_sgpr 102
  .amdhsa_accum_offset 256
  .amdhsa_group_segment_fixed_size 0
  .amdhsa_kernarg_size 112
  .amdhsa_user_sgpr_count 2
  .amdhsa_user_sgpr_kernarg_segment_ptr 1
  .amdhsa_system_sgpr_workgroup_id_x 1
  .amdhsa_float_denorm_mode_32 3
.end_amdhsa_kernel
'''
    return txt, stamps

if __name__ == '__main__':
    out = sys.argv[1] if len(sys.argv) > 1 else f'cdna_kernels/{NAME}.s'
    class C(Cfg): pass
    for a in sys.argv[2:]:
        k, val = a.split('=', 1)
        setattr(C, k, eval(val))
    txt, stamps = gen(C)
    open(out, 'w').write(txt)
    print('written', out, len(txt), 'bytes', stamps)
```

```python
import sys, struct
from asmdsl import Prog

NAME = 'adaLN_cond__mha_block_cached__glu_gated_swiglu__decode'

def f2u(x): return struct.unpack('<I', struct.pack('<f', x))[0]
LOG2E = hex(f2u(1.4426950408889634))
NLOG2E = hex(f2u(-1.4426950408889634))
SCALE = hex(f2u(128 ** -0.5))
EPS = hex(f2u(1e-5))
R512 = hex(f2u(1/512))
ALL = (1 << 64) - 1

X1 = 0x1000
X4 = 0x9000
X3 = 0x19000
X1F = 0x1b000
X0 = 0x1d000
X0B = 0x1e000
X2F = 0x1c000
XC = 0x120000
X2 = 0x20000
XA = 0x60000
XB = 0xa0000
XD = 0xc0000
XE = 0x100000
DIAG = 0x180000
WS_BYTES = 0x200000
L_P, L_OP, L_Q, L_FLAG = 0x20000, 0x20800, 0x21000, 0x21100
L_ST, L_U = 0x0, 0x1000
L_MS, L_ML = L_FLAG + 64, L_FLAG + 128
LDS_BYTES = 0x21200
NM = 43
TAGX = hex(sum(1 << (a*4+b*2+c) for a in (0,1) for b in (0,1) for c in (0,1) if (a ^ b) | c))

class Cfg:
    depth = 8
    diag = False
    probe = None
    kpol = 'nt'
    vpol = 'nt'
    wpol = 'nt'
    ppol = ''
    sleep1 = 0
    sleep2 = 0
    sleep3 = 4
    sleep4 = 40
    prio = 3
    hint = 1
    hsleep = 3
    lsleep = 1
    pf = 'post'
    wq0 = 1
    dsched = (6, 12, 9)
    rot = 5
    npf = 8
    local = 1
    pipe = dict()
    psleep = dict()
    xcrep = 1
    xcline = 0
    nodpp = 0
    b0late = 0
    xcsleep = 0
    dnlate = 1
    uppol = 'nt'
    spin = 1 << 15

def v(a, n=1): return f'v{a}' if n == 1 else f'v[{a}:{a+n-1}]'
def s(a, n=1): return f's{a}' if n == 1 else f's[{a}:{a+n-1}]'

sB, sW = 2, 3
sKP, sVP = 4, 6
SRD_K, SRD_V, SRD_WS, SRD_A, SRD_B, SRD_C = 8, 12, 16, 20, 24, 28
sH, sJ, sX, sKK = 36, 37, 38, 39
sWSP = 40
sTAG, sIM, sR = 42, 43, 44
sT0, sT1, sT2 = 45, 46, 47
pWQ, pWO, pW1, pW3, pW2, pC, pWM, pX, pOUT = 48, 50, 54, 56, 58, 60, 62, 64, 66
sSPIN = 68
sO0, sO1, sO2, sO3 = 69, 70, 71, 72
sMASK = 74
sLOC = 73
sG = 76
sDIAG = 84
vL = 0
vT = 1
vM = 4

def gen(cfg=Cfg):
    P = Prog()
    D = cfg.depth
    stamps = {}
    def stamp(name):
        if cfg.diag and name in cfg.diag:
            grp = name.split('_')[0]
            same = [n for n in cfg.diag if n.split('_')[0] == grp]
            if name == 'start': i = 0
            elif grp == 'M': i = 8 - same.index(name)
            else: i = 1 + same.index(name)
            assert 0 <= i <= 8
            stamps[name] = i
            P(f's_memrealtime {s(sDIAG + 2*i, 2)}')
    def srd(r, ptr, nbytes):
        P(f's_mov_b32 {s(r)}, {s(ptr)}\ns_mov_b32 {s(r+1)}, {s(ptr+1)}\ns_mov_b32 {s(r+2)}, {hex(nbytes)}\ns_mov_b32 {s(r+3)}, 0x20000')
    def S(r): return s(r, 4)
    def setexec(mask):
        lo, hi = mask & 0xffffffff, mask >> 32
        if mask == ALL: P('s_mov_b64 exec, -1')
        elif mask <= 64: P(f's_mov_b64 exec, {mask}')
        else: P(f's_mov_b32 exec_lo, {hex(lo)}\ns_mov_b32 exec_hi, {hex(hi)}')
    uid = [0]
    def lab(p):
        uid[0] += 1; return f'L_{p}{uid[0]}'
    def tagcheck_loop(issue, tagregs, name, sleep=0):
        top = lab(name)
        P(f's_mov_b32 {s(sSPIN)}, 0')
        P(f'{top}:')
        issue()
        P(f's_add_u32 {s(sSPIN)}, {s(sSPIN)}, 1\ns_cmp_gt_u32 {s(sSPIN)}, {cfg.spin}\ns_cbranch_scc1 L_END')
        P('s_waitcnt vmcnt(0)')
        if len(tagregs) == 1:
            P(f'v_cmp_ne_u32 vcc, {s(sTAG)}, {v(tagregs[0])}')
        else:
            P(f'v_xor_b32 {v(vT)}, {s(sTAG)}, {v(tagregs[0])}\nv_xor_b32 {v(vT+1)}, {s(sTAG)}, {v(tagregs[1])}')
            for k, r in enumerate(tagregs[2:]):
                P(f'v_bitop3_b32 {v(vT + (k & 1))}, {v(r)}, {s(sTAG)}, {v(vT + (k & 1))} bitop3:{TAGX}')
            P(f'v_or_b32 {v(vT)}, {v(vT)}, {v(vT+1)}\nv_cmp_ne_u32 vcc, 0, {v(vT)}')
        if sleep:
            dn = lab(name + 'd')
            P(f's_cbranch_vccz {dn}\ns_sleep {sleep}\ns_branch {top}\n{dn}:')
        else: P(f's_cbranch_vccnz {top}')
    def poll(name, issue, nl, base, stride, tagoff, done):
        NS = cfg.pipe.get(name, 1)
        top, join = lab(name), lab(name + 'j')
        ex = [lab(name + 'x') for _ in range(NS)]
        P(f's_mov_b32 {s(sSPIN)}, 0')
        for i in range(NS - 1): issue(base + i*stride)
        P(f'{top}:')
        for i in range(NS):
            issue(base + ((i + NS - 1) % NS)*stride)
            if i == 0: P(f's_add_u32 {s(sSPIN)}, {s(sSPIN)}, 1\ns_cmp_gt_u32 {s(sSPIN)}, {cfg.spin}\ns_cbranch_scc1 L_END')
            P(f's_waitcnt vmcnt({(NS-1)*nl})')
            tr = [base + i*stride + t for t in tagoff]
            if len(tr) == 1:
                P(f'v_cmp_ne_u32 vcc, {s(sTAG)}, {v(tr[0])}')
            else:
                P(f'v_xor_b32 {v(vT)}, {s(sTAG)}, {v(tr[0])}\nv_xor_b32 {v(vT+1)}, {s(sTAG)}, {v(tr[1])}')
                for k, r in enumerate(tr[2:]):
                    P(f'v_bitop3_b32 {v(vT + (k & 1))}, {v(r)}, {s(sTAG)}, {v(vT + (k & 1))} bitop3:{TAGX}')
                P(f'v_or_b32 {v(vT)}, {v(vT)}, {v(vT+1)}\nv_cmp_ne_u32 vcc, 0, {v(vT)}')
            ps = cfg.psleep.get(name, 0)
            if ps:
                P(f's_cbranch_vccz {ex[i]}\ns_sleep {ps}')
                if i + 1 == NS: P(f's_branch {top}')
            else: P(f's_cbranch_vccz {ex[i]}' if i + 1 < NS else f's_cbranch_vccnz {top}')
        for i in reversed(range(NS)):
            P(f'{ex[i]}:')
            done(base + i*stride)
            if i > 0: P(f's_branch {join}')
        P(f'{join}:')
    def publish_loc(d, vaddr, soff, mask=None, flag=sLOC):
        if not cfg.local: return publish(d, vaddr, soff, mask)
        far, j2 = lab('far'), lab('pb')
        if mask: setexec(mask)
        P(f's_cmp_eq_u32 {s(flag)}, 1\ns_cbranch_scc0 {far}')
        P(f'buffer_store_dwordx4 {v(d,4)}, {v(vaddr)}, {S(SRD_WS)}, {s(soff)} offen')
        P(f's_branch {j2}\n{far}:')
        publish(d, vaddr, soff)
        P(f'{j2}:')
        if mask: setexec(ALL)
    def afrag(dst, src, dpp=''):
        for w in range(4):
            if dpp: P(f'v_and_b32_dpp {v(dst+w)}, {v(src)}, {v(vM+w)} {dpp} row_mask:0xf bank_mask:0xf')
            else: P(f'v_and_b32 {v(dst+w)}, {v(src)}, {v(vM+w)}')
    def mfma(d, a, b, first=False):
        P(f'v_mfma_f32_16x16x32_bf16 {v(d,4)}, {v(a,4)}, {v(b,4)}, {"0" if first else v(d,4)}')
    def chain(d, n, bregs, srcs, areg):
        if cfg.nodpp and srcs[0][1]:
            bc = 224
            for i in range(n): P(f'v_mov_b32_dpp {v(bc+i)}, {v(srcs[i][0])} {srcs[i][1]} row_mask:0xf bank_mask:0xf')
            srcs = [(bc+i, '') for i in range(n)]
        afrag(areg, *srcs[0])
        for i in range(n):
            if i + 1 < n: afrag(areg + 4*((i+1) & 1), *srcs[i+1])
            mfma(d, areg + 4*(i & 1), bregs[i], first=(i == 0))
    def finish2(d):
        P(f'v_permlane32_swap_b32 {v(d)}, {v(d+2)}\nv_permlane32_swap_b32 {v(d+1)}, {v(d+3)}')
        P(f'v_add_f32_dpp {v(d)}, {v(d+2)}, {v(d)} row_ror:8 row_mask:0xf bank_mask:0xf')
        P(f'v_add_f32_dpp {v(d+1)}, {v(d+3)}, {v(d+1)} row_ror:8 row_mask:0xf bank_mask:0xf')
        P(f'v_mov_b32 {v(d+2)}, {s(sTAG)}')
    def finish1(d):
        P(f'v_permlane32_swap_b32 {v(d)}, {v(d+2)}\nv_permlane32_swap_b32 {v(d+1)}, {v(d+3)}')
        P(f'v_mov_b32 {v(d+2)}, {s(sTAG)}')
    def publish(d, vaddr, soff, mask=None):
        if mask: setexec(mask)
        P(f'buffer_store_dwordx4 {v(d,4)}, {v(vaddr)}, {S(SRD_WS)}, {s(soff)} offen sc1')
        if mask: setexec(ALL)
    M2SET = 0x00ff00ff00ff00ff
    def lohi(r):
        P(f'v_mov_b32 {v(r+2)}, {v(r)}\nv_mov_b32 {v(r+3)}, {v(r+1)}')
        for e in range(2): P(f'v_mov_b32_dpp {v(r+2+e)}, {v(r+e)} row_shl:4 row_mask:0xf bank_mask:0x5')
        for e in range(2): P(f'v_mov_b32_dpp {v(r+e)}, {v(r+e)} row_shr:4 row_mask:0xf bank_mask:0xa')
    def lohi_srcs(r):
        out = []
        for i in range(16):
            u = i >> 1; a = u & 3
            out.append((r + (2 if u >= 4 else 0) + (i & 1), f'quad_perm:[{a},{a},{a},{a}]'))
        return out
    def lds_wait(name, vaddr, n, dst, chk, sleep=0):
        top = lab(name)
        op = {1: 'ds_read_b32', 2: 'ds_read_b64', 4: 'ds_read_b128'}[n]
        P(f's_mov_b32 {s(sSPIN)}, 0')
        P(f'{top}:')
        P(f'{op} {v(dst,n)}, {v(vaddr)}')
        P(f's_add_u32 {s(sSPIN)}, {s(sSPIN)}, 1\ns_cmp_gt_u32 {s(sSPIN)}, {cfg.spin*8}\ns_cbranch_scc1 L_END')
        P('s_waitcnt lgkmcnt(0)')
        if len(chk) == 2:
            P(f'v_and_b32 {v(vT)}, {v(chk[0])}, {v(chk[1])}\nv_cmp_eq_u32 vcc, 0, {v(vT)}')
        else: P(f'v_cmp_eq_u32 vcc, 0, {v(chk[0])}')
        if sleep:
            done = lab(name + 'd')
            P(f's_cbranch_vccz {done}\ns_sleep {sleep}\ns_branch {top}\n{done}:')
        else: P(f's_cbranch_vccnz {top}')
    def hint_wait(name, soff):
        top = lab(name)
        P(f's_add_u32 {s(sMASK)}, {s(sWSP)}, {s(soff)}\ns_addc_u32 {s(sMASK+1)}, {s(sWSP+1)}, 0\ns_mov_b32 {s(sSPIN)}, 0')
        P(f'{top}:')
        P(f's_load_dwordx8 {s(sG,8)}, {s(sMASK,2)}, 0 glc')
        P(f's_add_u32 {s(sSPIN)}, {s(sSPIN)}, 1\ns_cmp_gt_u32 {s(sSPIN)}, {cfg.spin}\ns_cbranch_scc1 L_END')
        P('s_waitcnt lgkmcnt(0)')
        P(f's_xor_b32 {s(sG)}, {s(sG)}, {s(sTAG)}')
        for k in range(1, 8): P(f's_xor_b32 {s(sG+k)}, {s(sG+k)}, {s(sTAG)}\ns_or_b32 {s(sG)}, {s(sG)}, {s(sG+k)}')
        done = lab(name + 'd')
        P(f's_cbranch_scc0 {done}')
        if cfg.hsleep: P(f's_sleep {cfg.hsleep}')
        P(f's_branch {top}\n{done}:')
    def wave_reduce(op, regs):
        for mod in ('quad_perm:[1,0,3,2] row_mask:0xf', 'quad_perm:[2,3,0,1] row_mask:0xf', 'row_ror:4 row_mask:0xf', 'row_ror:8 row_mask:0xf',
                    'row_bcast:15 row_mask:0xa', 'row_bcast:31 row_mask:0xc'):
            for r in regs: P(f'{op}_dpp {v(r)}, {v(r)}, {v(r)} {mod} bank_mask:0xf')
    def unpack(lo, hi, src):
        if lo == src: P(f'v_and_b32 {v(hi)}, 0xffff0000, {v(src)}\nv_lshlrev_b32 {v(lo)}, 16, {v(src)}')
        else: P(f'v_lshlrev_b32 {v(lo)}, 16, {v(src)}\nv_and_b32 {v(hi)}, 0xffff0000, {v(src)}')
    def silu_multi(rs, ts):
        for r, t in zip(rs, ts): P(f'v_mul_f32 {v(t)}, {NLOG2E}, {v(r)}')
        for r, t in zip(rs, ts): P(f'v_exp_f32 {v(t)}, {v(t)}')
        for r, t in zip(rs, ts): P(f'v_add_f32 {v(t)}, 1.0, {v(t)}')
        for r, t in zip(rs, ts): P(f'v_rcp_f32 {v(t)}, {v(t)}')
        for r, t in zip(rs, ts): P(f'v_mul_f32 {v(r)}, {v(r)}, {v(t)}')
    def rnd(r): P(f'v_cvt_pk_bf16_f32 {v(r)}, {v(r)}, {v(r)}\nv_and_b32 {v(r)}, 0xffff0000, {v(r)}')

    vMA, vMB, vMC, vPUB = 16, 17, 18, 19
    vMT, vD0, vAA, vS4 = 64, 36, 52, 40
    def modtile_issue(sRB, sCOL):
        srd(SRD_A, pC, 1024); srd(SRD_B, pWM, 512*6144)
        P(f's_lshl_b32 {s(sO1)}, {s(sRB)}, 8')
        P(f'buffer_load_dword {v(vMC)}, {v(vMA)}, {S(SRD_A)}, {s(sO1)} offen')
        P(f's_mul_i32 {s(sO1)}, {s(sRB)}, {128*6144}\ns_add_u32 {s(sO1)}, {s(sO1)}, {s(sCOL)}')
        for i in range(16):
            P(f'buffer_load_dwordx4 {v(vMT+4*i,4)}, {v(vMB)}, {S(SRD_B)}, {s(sO1)} offen {cfg.wpol}')
            if i < 15: P(f's_add_u32 {s(sO1)}, {s(sO1)}, 6144')
    def modtile_compute(nafter, soff):
        P(f's_waitcnt vmcnt({16+nafter})')
        unpack(vS4, vS4+1, vMC)
        silu_multi([vS4, vS4+1], [vS4+2, vS4+3])
        for e in range(2): P(f'v_cvt_pk_bf16_f32 {v(vS4+e)}, {v(vS4+e)}, {v(vS4+e)}')
        lohi(vS4)
        P(f's_waitcnt vmcnt({nafter})')
        chain(vD0, 16, [vMT+4*i for i in range(16)], lohi_srcs(vS4), vAA)
        finish2(vD0)
        publish(vD0, vPUB, soff, M2SET)

    P(f's_cmp_ge_u32 {s(sB)}, 256\ns_cbranch_scc1 L_END')
    if cfg.diag:
        for i in range(9): P(f's_mov_b32 {s(sDIAG+2*i)}, 0')
    stamp('start')
    P(f's_load_dwordx4 {s(sKP,4)}, s[0:1], 8')
    P(f's_load_dwordx16 {s(pWQ,16)}, s[0:1], 24')
    P(f's_load_dwordx2 {s(sWSP,2)}, s[0:1], 104')
    P(f's_load_dwordx2 {s(pX,2)}, s[0:1], 0')
    P(f's_load_dwordx2 {s(pOUT,2)}, s[0:1], 88')
    P(f'v_lshrrev_b32 {v(vT)}, 6, v0\nv_and_b32 {v(vL)}, 63, v0')
    P(f'v_readfirstlane_b32 {s(sW)}, {v(vT)}')
    P(f'v_lshlrev_b32 {v(vT)}, 2, {v(vL)}\nv_add_u32 {v(vT)}, {hex(L_FLAG)}, {v(vT)}\nv_mov_b32 {v(vT+1)}, 0')
    P(f'ds_write_b32 {v(vT)}, {v(vT+1)}')
    P(f's_and_b32 {s(sH)}, {s(sB)}, 31\ns_lshr_b32 {s(sJ)}, {s(sB)}, 5\ns_and_b32 {s(sX)}, {s(sB)}, 7\ns_lshr_b32 {s(sKK)}, {s(sB)}, 3')
    vKA, vVA = 8, 12
    P(f'v_lshrrev_b32 {v(vT)}, 4, {v(vL)}\nv_and_b32 {v(vT+1)}, 15, {v(vL)}')
    P(f'v_lshlrev_b32 {v(vVA)}, 10, {v(vT)}\nv_lshl_add_u32 {v(vVA)}, {v(vT+1)}, 4, {v(vVA)}')
    P(f'v_xor_b32 {v(vT+1)}, {v(vT+1)}, {v(vT)}\nv_lshlrev_b32 {v(vT+1)}, 4, {v(vT+1)}\nv_lshl_add_u32 {v(vKA)}, {v(vT)}, 8, {v(vT+1)}')
    for i in range(1, 4): P(f'v_xor_b32 {v(vKA+i)}, {64*i}, {v(vKA)}')
    P(f's_lshl_b32 {s(sO0)}, {s(sH)}, 20\ns_lshl_b32 {s(sO3)}, {s(sJ)}, 2\ns_add_u32 {s(sO3)}, {s(sO3)}, {s(sW)}\ns_lshl_b32 {s(sO3)}, {s(sO3)}, 12')
    P(f'v_lshlrev_b32 {v(vMA)}, 2, {v(vL)}\nv_lshrrev_b32 {v(vT)}, 3, {v(vL)}\nv_mul_u32_u24 {v(vMB)}, {16*6144}, {v(vT)}\nv_and_b32 {v(vT+1)}, 7, {v(vL)}\nv_lshl_add_u32 {v(vMB)}, {v(vT+1)}, 4, {v(vMB)}')
    P(f'v_lshrrev_b32 {v(vT)}, 4, {v(vL)}\nv_lshlrev_b32 {v(vT)}, 7, {v(vT)}\nv_lshl_add_u32 {v(vPUB)}, {v(vT+1)}, 4, {v(vT)}')
    vXF, vXS, vL16, vWA, vXA = 28, 32, 60, 62, 33
    P(f'v_lshlrev_b32 {v(vL16)}, 4, {v(vL)}')
    P(f'v_bfe_u32 {v(vT)}, {v(vL)}, 4, 1\nv_lshrrev_b32 {v(vT+2)}, 5, {v(vL)}\nv_lshl_add_u32 {v(vT)}, {v(vT)}, 1, {v(vT+2)}')
    P(f'v_lshl_add_u32 {v(vXA)}, {v(vT+1)}, 2, {v(vT)}\nv_lshlrev_b32 {v(vXA)}, 2, {v(vXA)}\nv_lshlrev_b32 {v(vWA)}, 14, {v(vT)}')
    P(f'v_and_b32 {v(vT+1)}, 15, {v(vL)}\nv_lshl_add_u32 {v(vWA)}, {v(vT+1)}, 4, {v(vWA)}')
    P(f's_sub_u32 {s(sT2)}, {s(sKK)}, 16')
    P(f's_and_b32 {s(sT0)}, {s(sT2)}, 1\ns_lshl_b32 {s(sT0)}, {s(sT0)}, 10\ns_lshl_b32 {s(sT1)}, {s(sX)}, 7\ns_add_u32 {s(sT1)}, {s(sT1)}, {s(sT0)}\ns_lshr_b32 {s(sT0)}, {s(sT2)}, 1\ns_lshl_b32 {s(sO2)}, {s(sJ)}, 7')
    P('s_waitcnt lgkmcnt(0)')
    P(f's_cmp_eq_u32 {s(sW)}, 4\ns_cbranch_scc0 L_B0')
    if cfg.b0late: P('s_setprio 3')
    P(f's_cmp_lt_u32 {s(sT2)}, 8\ns_cbranch_scc0 L_XLD')
    modtile_issue(sT0, sT1)
    P('L_XLD:')
    srd(SRD_C, pX, 1024)
    P(f'buffer_load_dwordx4 {v(vXF,4)}, {v(vL16)}, {S(SRD_C)}, 0 offen')
    P(f'buffer_load_dword {v(vXS)}, {v(vXA)}, {S(SRD_C)}, {s(sO2)} offen')
    vWQ = 128
    def wq_issue():
        srd(SRD_C, pWQ, 4 << 20)
        P(f's_lshl_b32 {s(sO2)}, {s(sJ)}, 19\ns_lshl_b32 {s(sT0)}, {s(sH)}, 8\ns_add_u32 {s(sO2)}, {s(sO2)}, {s(sT0)}')
        for i in range(16):
            P(f'buffer_load_dwordx4 {v(vWQ+4*i,4)}, {v(vWA)}, {S(SRD_C)}, {s(sO2)} offen {cfg.wpol}')
            if i < 15: P(f's_add_u32 {s(sO2)}, {s(sO2)}, {8192 if (i & 1) == 0 else 8192*7}')
    if cfg.wq0: wq_issue()
    P('L_B0:')
    if not cfg.b0late: P('s_barrier')
    P(f's_cmp_ge_u32 {s(sW)}, 4\ns_cbranch_scc1 L_CW')

    srd(SRD_K, sKP, 32 << 20)
    P(f's_lshl_b32 {s(sT0)}, {s(sW)}, 15\ns_mov_b32 m0, {s(sT0)}\ns_mov_b32 {s(sO2)}, {s(sO0)}\ns_mov_b32 {s(sG)}, {s(sO3)}\ns_add_u32 {s(sO1)}, {s(sO0)}, {s(sO3)}\ns_mov_b32 {s(sT1)}, 0')
    def nexttile(base, res, dst):
        P(f's_add_u32 {s(base)}, {s(base)}, 0x20000\ns_add_u32 {s(res)}, {s(res)}, {cfg.rot << 12}\ns_and_b32 {s(res)}, {s(res)}, 0x1f000\ns_add_u32 {s(dst)}, {s(base)}, {s(res)}')
    P('L_KLOOP:')
    DK = cfg.dsched[0] if cfg.dsched else D
    def DV(idx): return D if not cfg.dsched else (cfg.dsched[0] if idx < cfg.dsched[1] else cfg.dsched[2])
    for i in range(4):
        P(f's_waitcnt vmcnt({DK-1})')
        P(f'buffer_load_dwordx4 {v(vKA+i)}, {S(SRD_K)}, {s(sO1)} offen offset:{1024*i} {cfg.kpol} lds')
    if cfg.b0late: P(f's_cmp_eq_u32 {s(sT1)}, 0\ns_cbranch_scc0 L_KL2\ns_barrier\nL_KL2:')
    nexttile(sO2, sG, sO1)
    P(f's_add_u32 {s(sT0)}, {s(sT0)}, 4096\ns_mov_b32 m0, {s(sT0)}\ns_add_u32 {s(sT1)}, {s(sT1)}, 1\ns_cmp_lt_u32 {s(sT1)}, 8\ns_cbranch_scc1 L_KLOOP')
    stamp('L_kissued')
    vV = 128
    srd(SRD_V, sVP, 32 << 20)
    P(f's_add_u32 {s(sO1)}, {s(sO0)}, {s(sO3)}')
    P(f's_lshl_b32 {s(sT0)}, {s(sW)}, 3\ns_add_u32 {s(sT0)}, {s(sT0)}, {hex(L_FLAG)}\nv_mov_b32 {v(vT)}, {s(sT0)}\nv_mov_b32 {v(vT+1)}, 1')
    for idx in range(32):
        t, i = idx >> 2, idx & 3
        P(f's_waitcnt vmcnt({DV(idx)-1})')
        if idx == DK - 1:
            P(f'ds_write_b32 {v(vT)}, {v(vT+1)}')
            stamp('L_klanded')
        P(f'buffer_load_dwordx4 {v(vV+4*idx,4)}, {v(vVA)}, {S(SRD_V)}, {s(sO1)} offen offset:{256*i} {cfg.vpol}')
        if i == 3 and t < 7: nexttile(sO0, sO3, sO1)
    stamp('L_vissued')
    def masks():
        P(f'v_and_b32 {v(vT)}, 1, {v(vL)}\nv_lshlrev_b32 {v(vT)}, 4, {v(vT)}\nv_mov_b32 {v(vT+1)}, 0xffff\nv_lshlrev_b32 {v(vT+1)}, {v(vT)}, {v(vT+1)}')
        P(f'v_bfe_u32 {v(vT)}, {v(vL)}, 1, 2')
        for w in range(4):
            P(f'v_cmp_eq_u32 vcc, {w}, {v(vT)}\nv_cndmask_b32 {v(vM+w)}, 0, {v(vT+1)}, vcc')
    def common_setup():
        P(f's_load_dword {s(sTAG)}, {s(sWSP,2)}, 0')
        srd(SRD_WS, sWSP, WS_BYTES)
        masks()
    masks()
    vPA, vOA, vP, vA, vD = 13, 14, 16, 48, 56
    P(f'v_lshrrev_b32 {v(vT)}, 4, {v(vL)}\nv_lshlrev_b32 {v(vT)}, 4, {v(vT)}\ns_lshl_b32 {s(sT0)}, {s(sW)}, 9\ns_add_u32 {s(sT0)}, {s(sT0)}, {hex(L_P)}\nv_add_u32 {v(vPA)}, {s(sT0)}, {v(vT)}')
    P(f's_add_u32 {s(sT0)}, {s(sT0)}, {hex(L_OP - L_P)}\nv_lshlrev_b32 {v(vT)}, 3, {v(vL)}\nv_add_u32 {v(vOA)}, {s(sT0)}, {v(vT)}')
    P('s_waitcnt lgkmcnt(0)')
    P('s_barrier')
    stamp('L_b1')
    for t in range(8): P(f'ds_read_b128 {v(vP+4*t,4)}, {v(vPA)} offset:{64*t}')
    P('s_waitcnt lgkmcnt(7)')
    afrag(vA, vP)
    for idx in range(32):
        if idx + 1 < 32:
            if (idx + 1) % 4 == 0: P(f's_waitcnt lgkmcnt({7 - (idx+1)//4})')
            afrag(vA + 4*((idx+1) & 1), vP + idx + 1)
        P(f's_waitcnt vmcnt({31-idx})')
        mfma(vD, vA + 4*(idx & 1), vV + 4*idx, first=(idx == 0))
    stamp('L_pv')
    P(f'v_permlane32_swap_b32 {v(vD)}, {v(vD+2)}\nv_permlane32_swap_b32 {v(vD+1)}, {v(vD+3)}')
    P(f'ds_write_b64 {v(vOA)}, {v(vD,2)}')
    P('s_waitcnt lgkmcnt(0)')
    P('s_barrier')
    P('s_endpgm' if not cfg.diag else 's_branch L_END')

    P('L_CW:')
    if cfg.b0late: P('s_barrier')
    if cfg.prio: P(f's_setprio {cfg.prio}')
    P(f's_cmp_eq_u32 {s(sW)}, 4\ns_cbranch_scc0 L_C123')
    vGA = 192
    common_setup()
    P('s_waitcnt lgkmcnt(0)')
    P(f's_add_u32 {s(sTAG)}, {s(sTAG)}, 1')
    if cfg.local:
        P(f's_getreg_b32 {s(sLOC)}, hwreg(HW_REG_XCC_ID, 0, 3)\ns_lshl_b32 {s(sT0)}, {s(sTAG)}, 3\ns_or_b32 {s(sLOC)}, {s(sLOC)}, {s(sT0)}')
        P(f's_lshl_b32 {s(sO3)}, {s(sH)}, 7\ns_add_u32 {s(sO3)}, {s(sO3)}, {hex(X0)}\ns_lshl_b32 {s(sT0)}, {s(sJ)}, 2\ns_add_u32 {s(sT0)}, {s(sT0)}, {s(sO3)}\nv_mov_b32 {v(vT)}, {s(sT0)}\nv_mov_b32 {v(vT+1)}, {s(sLOC)}')
        P(f's_lshl_b32 {s(sR)}, {s(sX)}, 3\ns_lshr_b32 {s(sT0)}, {s(sKK)}, 2\ns_add_u32 {s(sR)}, {s(sR)}, {s(sT0)}\ns_lshl_b32 {s(sR)}, {s(sR)}, 7\ns_add_u32 {s(sR)}, {s(sR)}, {hex(X0B)}')
        P(f's_and_b32 {s(sT0)}, {s(sKK)}, 3\ns_lshl_b32 {s(sT0)}, {s(sT0)}, 2\ns_add_u32 {s(sT0)}, {s(sT0)}, {s(sR)}\nv_writelane_b32 {v(vT)}, {s(sT0)}, 1')
        setexec(3)
        P(f'buffer_store_dword {v(vT+1)}, {v(vT)}, {S(SRD_WS)}, 0 offen sc1')
        setexec(ALL)
    P(f's_cmp_lt_u32 {s(sT2)}, 8\ns_cbranch_scc0 L_NOT1')
    P(f's_lshl_b32 {s(sO2)}, {s(sX)}, 3\ns_add_u32 {s(sO2)}, {s(sO2)}, {s(sT2)}\ns_lshl_b32 {s(sO2)}, {s(sO2)}, 9\ns_add_u32 {s(sO2)}, {s(sO2)}, {hex(X1)}')
    modtile_compute((18 if cfg.wq0 else 2) + cfg.local, sO2)
    if cfg.hint:
        P(f's_lshl_b32 {s(sO2)}, {s(sX)}, 9\ns_lshl_b32 {s(sT0)}, {s(sT2)}, 2\ns_add_u32 {s(sO2)}, {s(sO2)}, {s(sT0)}\ns_add_u32 {s(sO2)}, {s(sO2)}, {hex(X1F)}\nv_lshlrev_b32 {v(vT)}, 7, {v(vL)}')
        setexec(0xf)
        P(f'buffer_store_dword {v(vD0+2)}, {v(vT)}, {S(SRD_WS)}, {s(sO2)} offen sc1')
        setexec(ALL)
    stamp('C0_x1pub')
    if not cfg.wq0: wq_issue()
    P('s_branch L_T1D')
    P('L_NOT1:')
    if not cfg.wq0: wq_issue()
    P('L_T1D:')
    vx = 64
    P(f's_waitcnt vmcnt({16 + (cfg.local if cfg.wq0 else 0)})')
    for k in range(4): unpack(vx+2*k, vx+2*k+1, vXF+k)
    P(f'v_add_f32 {v(20)}, {v(vx)}, {v(vx+1)}\nv_add_f32 {v(21)}, {v(vx+2)}, {v(vx+3)}\nv_add_f32 {v(22)}, {v(vx+4)}, {v(vx+5)}\nv_add_f32 {v(23)}, {v(vx+6)}, {v(vx+7)}')
    P(f'v_add_f32 {v(20)}, {v(20)}, {v(21)}\nv_add_f32 {v(22)}, {v(22)}, {v(23)}\nv_add_f32 {v(20)}, {v(20)}, {v(22)}')
    wave_reduce('v_add_f32', [20])
    P(f'v_mul_f32 {v(20)}, {R512}, {v(20)}\nv_readlane_b32 {s(sT0)}, {v(20)}, 63')
    for k in range(8): P(f'v_subrev_f32 {v(vx+k)}, {s(sT0)}, {v(vx+k)}')
    P(f'v_mul_f32 {v(21)}, {v(vx)}, {v(vx)}')
    for k in range(1, 8): P(f'v_fmac_f32 {v(21)}, {v(vx+k)}, {v(vx+k)}')
    wave_reduce('v_add_f32', [21])
    P(f'v_mul_f32 {v(21)}, {R512}, {v(21)}')
    P(f'v_cvt_pk_bf16_f32 {v(22)}, {v(20)}, {v(21)}')
    P(f'v_and_b32 {v(21)}, 0xffff0000, {v(22)}\nv_lshlrev_b32 {v(20)}, 16, {v(22)}\nv_add_f32 {v(21)}, {EPS}, {v(21)}')
    rnd(21); P(f'v_sqrt_f32 {v(21)}, {v(21)}'); rnd(21); P(f'v_rcp_f32 {v(22)}, {v(21)}')
    P(f'v_readlane_b32 {s(sT0)}, {v(20)}, 63\nv_readlane_b32 {s(sT1)}, {v(21)}, 63\nv_readlane_b32 {s(sT2)}, {v(22)}, 63')
    vLN = 24
    unpack(vLN, vLN+1, vXS)
    for e in range(2): P(f'v_subrev_f32 {v(vLN+e)}, {s(sT0)}, {v(vLN+e)}')
    P(f'v_cvt_pk_bf16_f32 {v(20)}, {v(vLN)}, {v(vLN+1)}'); unpack(vLN, vLN+1, 20)
    for e in range(2): P(f'v_mul_f32 {v(20+e)}, {s(sT2)}, {v(vLN+e)}')
    for e in range(2): P(f'v_fma_f32 {v(vLN+e)}, -{v(20+e)}, {s(sT1)}, {v(vLN+e)}')
    for e in range(2): P(f'v_fma_f32 {v(vLN+e)}, {v(vLN+e)}, {s(sT2)}, {v(20+e)}')
    P(f'v_cvt_pk_bf16_f32 {v(20)}, {v(vLN)}, {v(vLN+1)}'); unpack(vLN, vLN+1, 20)
    P(f'v_bfe_u32 {v(vT)}, {v(vL)}, 3, 1\nv_lshlrev_b32 {v(vT)}, 9, {v(vT)}\nv_add_u32 {v(26)}, {v(vPUB)}, {v(vT)}')
    P(f's_lshl_b32 {s(sO0)}, {s(sJ)}, 12\ns_add_u32 {s(sO0)}, {s(sO0)}, {hex(X1)}')
    if cfg.hint:
        P(f's_lshl_b32 {s(sT0)}, {s(sJ)}, 2\ns_and_b32 {s(sT1)}, {s(sH)}, 3\ns_add_u32 {s(sT0)}, {s(sT0)}, {s(sT1)}\ns_lshl_b32 {s(sT0)}, {s(sT0)}, 7\ns_add_u32 {s(sT0)}, {s(sT0)}, {hex(X1F)}')
        hint_wait('h1h', sT0)
    else: P('s_waitcnt vmcnt(0)')
    if cfg.local:
        P(f's_add_u32 {s(sMASK)}, {s(sWSP)}, {s(sO3)}\ns_addc_u32 {s(sMASK+1)}, {s(sWSP+1)}, 0')
        P(f's_load_dwordx8 {s(sG,8)}, {s(sMASK,2)}, 0 glc')
        P(f's_load_dwordx4 s[8:11], {s(sWSP,2)}, {s(sR)} glc')
    stamp('C0_wq')
    if cfg.sleep1: P(f's_sleep {cfg.sleep1}')
    def issue():
        for k in range(4): P(f'buffer_load_dwordx4 {v(vGA+4*k,4)}, {v(26)}, {S(SRD_WS)}, {s(sO0)} offen offset:{1024*k} sc1')
    tagcheck_loop(issue, [vGA+4*k+2 for k in range(4)], 'h1')
    stamp('C0_h1')
    if cfg.local:
        P('s_waitcnt lgkmcnt(0)')
        P(f's_xor_b32 {s(sG)}, {s(sG)}, {s(sLOC)}')
        for k in range(1, 8): P(f's_xor_b32 {s(sG+k)}, {s(sG+k)}, {s(sLOC)}\ns_or_b32 {s(sG)}, {s(sG)}, {s(sG+k)}')
        P(f's_cselect_b32 {s(sT0)}, 0, 1')
        P(f's_xor_b32 s8, s8, {s(sLOC)}')
        for k in range(1, 4): P(f's_xor_b32 {s(8+k)}, {s(8+k)}, {s(sLOC)}\ns_or_b32 s8, s8, {s(8+k)}')
        P(f's_cselect_b32 {s(sR)}, 0, 1\ns_mov_b32 {s(sLOC)}, {s(sT0)}')
    b = vGA
    for e in range(2): P(f'v_add_f32 {v(b+e)}, {v(b+e)}, {v(b+4+e)}\nv_add_f32 {v(b+8+e)}, {v(b+8+e)}, {v(b+12+e)}')
    for e in range(2): P(f'v_add_f32 {v(b+e)}, {v(b+e)}, {v(b+8+e)}')
    P(f'v_cvt_pk_bf16_f32 {v(b+4)}, {v(b)}, {v(b+1)}\nv_mov_b32 {v(b+5)}, {v(b+4)}')
    P(f'v_mov_b32_dpp {v(b+4)}, {v(b+5)} row_ror:8 row_mask:0xf bank_mask:0xc')
    P(f'v_mov_b32_dpp {v(b+5)}, {v(b+5)} row_ror:8 row_mask:0xf bank_mask:0x3')
    unpack(b+8, b+9, b+4); unpack(b+6, b+7, b+5)
    P(f'v_add_f32 {v(b+6)}, 1.0, {v(b+6)}\nv_add_f32 {v(b+7)}, 1.0, {v(b+7)}\nv_cvt_pk_bf16_f32 {v(b+5)}, {v(b+6)}, {v(b+7)}')
    unpack(b+6, b+7, b+5)
    P(f'v_mul_f32 {v(b+6)}, {v(b+6)}, {v(vLN)}\nv_mul_f32 {v(b+7)}, {v(b+7)}, {v(vLN+1)}\nv_cvt_pk_bf16_f32 {v(b+5)}, {v(b+6)}, {v(b+7)}')
    unpack(b+6, b+7, b+5)
    P(f'v_add_f32 {v(b+6)}, {v(b+6)}, {v(b+8)}\nv_add_f32 {v(b+7)}, {v(b+7)}, {v(b+9)}')
    vH = 20
    P(f'v_cvt_pk_bf16_f32 {v(vH)}, {v(b+6)}, {v(b+6)}\nv_cvt_pk_bf16_f32 {v(vH+1)}, {v(b+7)}, {v(b+7)}')
    P(f's_lshl_b32 {s(sO1)}, {s(sH)}, 13\ns_add_u32 {s(sO1)}, {s(sO1)}, {hex(X2)}\ns_lshl_b32 {s(sO0)}, {s(sJ)}, 10\ns_add_u32 {s(sO0)}, {s(sO0)}, {s(sO1)}\ns_add_u32 {s(sO2)}, {s(sO1)}, 4096')
    chain(vD0, 16, [vWQ+4*i for i in range(16)], [(vH + (i & 1), f'row_newbcast:{i >> 1}') for i in range(16)], vAA)
    finish1(vD0)
    publish_loc(vD0, vL16, sO0)
    if cfg.hint:
        P(f's_lshl_b32 {s(sO3)}, {s(sH)}, 7\ns_add_u32 {s(sO3)}, {s(sO3)}, {hex(X2F)}\nv_mov_b32 {v(vT)}, 0\ns_lshl_b32 {s(sT0)}, {s(sJ)}, 2\ns_add_u32 {s(sT0)}, {s(sT0)}, {s(sO3)}')
        setexec(1)
        P(f'buffer_store_dword {v(vD0+2)}, {v(vT)}, {S(SRD_WS)}, {s(sT0)} offen sc1')
        setexec(ALL)
    stamp('C0_x2pub')
    P(f'v_bfe_u32 {v(vT)}, {v(vL)}, 4, 1\nv_lshrrev_b32 {v(vT+1)}, 5, {v(vL)}\nv_lshl_add_u32 {v(vT)}, {v(vT)}, 1, {v(vT+1)}\nv_and_b32 {v(vT+1)}, 15, {v(vL)}\nv_lshl_add_u32 {v(vT)}, {v(vT+1)}, 2, {v(vT)}')
    P(f'v_lshlrev_b32 {v(vT)}, 2, {v(vT)}\nv_add_u32 {v(26)}, {hex(L_Q)}, {v(vT)}')
    P(f'v_and_b32 {v(27)}, 3, {v(vL)}\nv_lshlrev_b32 {v(27)}, 3, {v(27)}\nv_add_u32 {v(27)}, {hex(L_FLAG + 4)}, {v(27)}\nv_mov_b32 {v(25)}, 1')
    if cfg.hint: hint_wait('qh', sO3)
    stamp('C0_qh')
    if cfg.sleep2: P(f's_sleep {cfg.sleep2}')
    def gather8(base_lo, base_hi):
        def issue():
            for k in range(8):
                P(f'buffer_load_dwordx4 {v(vGA+4*k,4)}, {v(vL16)}, {S(SRD_WS)}, {s(base_lo if k < 4 else base_hi)} offen offset:{1024*(k & 3)} sc1')
        return issue
    def sum8():
        for a, b2 in ((0, 1), (2, 3), (4, 5), (6, 7), (0, 2), (4, 6), (0, 4)):
            for e in (0, 1): P(f'v_add_f32 {v(vGA+4*a+e)}, {v(vGA+4*a+e)}, {v(vGA+4*b2+e)}')
    tagcheck_loop(gather8(sO1, sO2), [vGA+4*k+2 for k in range(8)], 'q')
    stamp('C0_q')
    sum8()
    P(f'v_cvt_pk_bf16_f32 {v(vT)}, {v(vGA)}, {v(vGA+1)}')
    P(f'ds_write_b32 {v(26)}, {v(vT)}')
    P(f'ds_write_b32 {v(27)}, {v(25)}')
    P('L_QKP:')
    vKR, vQ, vKB, vDQ, vS2, vE, vML = 8, 128, 144, 28, 208, 210, 216
    sM2 = sG
    P(f's_sub_u32 {s(sT2)}, {s(sW)}, 4\ns_lshl_b32 {s(sT0)}, {s(sT2)}, 3\ns_add_u32 {s(sT0)}, {s(sT0)}, {hex(L_FLAG)}\nv_mov_b32 {v(vT+2)}, {s(sT0)}')
    P(f'v_and_b32 {v(vT)}, 15, {v(vL)}\nv_lshrrev_b32 {v(vT+1)}, 4, {v(vL)}\nv_lshlrev_b32 {v(26)}, 4, {v(vT+1)}\nv_xor_b32 {v(vT+1)}, {v(vT+1)}, {v(vT)}\nv_lshlrev_b32 {v(vT+1)}, 4, {v(vT+1)}\nv_lshl_add_u32 {v(vKR)}, {v(vT)}, 8, {v(vT+1)}')
    P(f's_lshl_b32 {s(sT0)}, {s(sT2)}, 15\nv_add_u32 {v(vKR)}, {s(sT0)}, {v(vKR)}')
    for q in range(1, 4): P(f'v_xor_b32 {v(vKR+q)}, {64*q}, {v(vKR)}')
    P(f'v_and_b32 {v(27)}, 7, {v(vL)}\nv_lshl_add_u32 {v(27)}, {v(27)}, 6, {v(26)}\nv_bfe_u32 {v(vT)}, {v(vL)}, 3, 1\nv_lshl_add_u32 {v(27)}, {v(vT)}, 3, {v(27)}')
    P(f's_lshl_b32 {s(sT0)}, {s(sT2)}, 9\ns_add_u32 {s(sT0)}, {s(sT0)}, {hex(L_P)}\nv_add_u32 {v(27)}, {s(sT0)}, {v(27)}\nv_add_u32 {v(26)}, {hex(L_Q)}, {v(26)}')
    P(f's_lshl_b32 {s(sT0)}, {s(sT2)}, 4\ns_add_u32 {s(sT0)}, {s(sT0)}, {hex(L_MS)}\nv_mov_b32 {v(25)}, {s(sT0)}\nv_mov_b32 {v(vML+2)}, 1\nv_mov_b32 {v(vML+3)}, 1')
    P(f's_mov_b32 {s(sMASK)}, 0x00010001\ns_mov_b32 {s(sMASK+1)}, 0x00010001\ns_mov_b32 {s(sM2)}, 0x01000100\ns_mov_b32 {s(sM2+1)}, 0x01000100')
    lds_wait('kq', vT+2, 2, 28, [28, 29], cfg.lsleep)
    stamp('C0_kready')
    for q in range(4): P(f'ds_read_b128 {v(vQ+4*q,4)}, {v(26)} offset:{64*q}')
    NB = 3; PD = NB - 1; NT = 8
    def kread(t, q): P(f'ds_read_b128 {v(vKB+16*(t % NB)+4*q,4)}, {v(vKR+q)} offset:{4096*t}')
    for t in range(PD):
        for q in range(4): kread(t, q)
    for t in range(NT + 1):
        u = t - 1
        for q in range(4):
            if t < NT:
                if q in (0, 2): P(f's_waitcnt lgkmcnt({min(4*PD - 2, 4*(NT - t) - 2 - q)})')
                mfma(vDQ + 4*(t & 1), vKB + 16*(t % NB) + 4*q, vQ + 4*q, first=(q == 0))
                if t + PD < NT: kread(t + PD, q)
            if t >= 1 and q >= 2:
                mk = sMASK if q == 2 else sM2
                for e in range(2):
                    P(f'v_cndmask_b32 {v(vS2+e)}, {v(vS2+e)}, {v(vDQ+4*(u & 1)+2*(q-2)+e)}, {s(mk,2)}')
        if t >= 1 and t < NT: P(f's_lshl_b64 {s(sMASK,2)}, {s(sMASK,2)}, 1\ns_lshl_b64 {s(sM2,2)}, {s(sM2,2)}, 1')
    stamp('C0_qk')
    P(f'v_cvt_pk_bf16_f32 {v(vE)}, {v(vS2)}, {v(vS2+1)}'); unpack(vS2, vS2+1, vE)
    for e in range(2): P(f'v_mul_f32 {v(vS2+e)}, {SCALE}, {v(vS2+e)}')
    P(f'v_cvt_pk_bf16_f32 {v(vE)}, {v(vS2)}, {v(vS2+1)}'); unpack(vS2, vS2+1, vE)
    P(f'v_max_f32 {v(vML)}, {v(vS2)}, {v(vS2+1)}')
    wave_reduce('v_max_f32', [vML])
    P(f'v_readlane_b32 {s(sT0)}, {v(vML)}, 63')
    for e in range(2): P(f'v_subrev_f32 {v(vE+e)}, {s(sT0)}, {v(vS2+e)}')
    for e in range(2): P(f'v_mul_f32 {v(vE+e)}, {LOG2E}, {v(vE+e)}')
    for e in range(2): P(f'v_exp_f32 {v(vE+e)}, {v(vE+e)}')
    P(f'v_add_f32 {v(vML+1)}, {v(vE)}, {v(vE+1)}')
    wave_reduce('v_add_f32', [vML+1])
    setexec(1 << 63)
    P(f'ds_write_b128 {v(25)}, {v(vML,4)}')
    setexec(ALL)
    P(f's_cmp_eq_u32 {s(sW)}, 4\ns_cbranch_scc1 L_C0ML')
    P(f's_cmp_eq_u32 {s(sW)}, 5\ns_cbranch_scc0 L_MLWAIT\ns_cmp_eq_u32 {s(sR)}, 99\ns_cbranch_scc0 L_MLWAIT')
    modtile_compute(0, sO2)
    P('L_MLWAIT:')
    P(f'v_mov_b32 {v(vT+2)}, {hex(L_ML)}')
    lds_wait('mlw', vT+2, 4, vML, [vML+2], cfg.lsleep)
    P('s_branch L_PCALC')
    P('L_C0ML:')
    P(f'v_and_b32 {v(vT+2)}, 3, {v(vL)}\nv_lshlrev_b32 {v(vT+2)}, 4, {v(vT+2)}\nv_add_u32 {v(vT+2)}, {hex(L_MS)}, {v(vT+2)}')
    P(f's_lshl_b32 {s(sO1)}, {s(sH)}, 7\ns_add_u32 {s(sO1)}, {s(sO1)}, {hex(X3)}\ns_lshl_b32 {s(sO0)}, {s(sJ)}, 4\ns_add_u32 {s(sO0)}, {s(sO0)}, {s(sO1)}')
    lds_wait('msw', vT+2, 4, 220, [222])
    P(f'v_max_f32_dpp {v(vML)}, {v(220)}, {v(220)} quad_perm:[1,0,3,2] row_mask:0xf bank_mask:0xf\nv_mov_b32 {v(vML+2)}, {s(sTAG)}\nv_mov_b32 {v(vML+3)}, {s(sTAG)}')
    P(f'v_max_f32_dpp {v(vML)}, {v(vML)}, {v(vML)} quad_perm:[2,3,0,1] row_mask:0xf bank_mask:0xf')
    P(f'v_sub_f32 {v(220)}, {v(220)}, {v(vML)}\nv_mul_f32 {v(220)}, {LOG2E}, {v(220)}\nv_exp_f32 {v(220)}, {v(220)}\nv_mov_b32 {v(vT)}, 0\nv_mul_f32 {v(vML+1)}, {v(220)}, {v(221)}')
    for mod in ('quad_perm:[1,0,3,2]', 'quad_perm:[2,3,0,1]'): P(f'v_add_f32_dpp {v(vML+1)}, {v(vML+1)}, {v(vML+1)} {mod} row_mask:0xf bank_mask:0xf')
    publish(vML, vT, sO0, 1)
    stamp('C0_x3pub')
    P(f's_add_u32 {s(sMASK)}, {s(sWSP)}, {s(sO1)}\ns_addc_u32 {s(sMASK+1)}, {s(sWSP+1)}, 0\ns_mov_b32 {s(sSPIN)}, 0')
    gl = [4 + 4*k for k in range(8)]
    P('L_MLW:')
    if cfg.sleep3: P(f's_sleep {cfg.sleep3}')
    P(f's_load_dwordx16 s[4:19], {s(sMASK,2)}, 0 glc\ns_load_dwordx16 s[20:35], {s(sMASK,2)}, 64 glc')
    P(f's_add_u32 {s(sSPIN)}, {s(sSPIN)}, 1\ns_cmp_gt_u32 {s(sSPIN)}, {cfg.spin}\ns_cbranch_scc1 L_END')
    P('s_waitcnt lgkmcnt(0)')
    P(f's_xor_b32 {s(sT0)}, {s(gl[0]+2)}, {s(sTAG)}')
    for g in gl[1:]: P(f's_xor_b32 {s(sT1)}, {s(g+2)}, {s(sTAG)}\ns_or_b32 {s(sT0)}, {s(sT0)}, {s(sT1)}')
    P('s_cbranch_scc1 L_MLW')
    stamp('C0_ml')
    vG8 = 220
    P(f'v_mov_b32 {v(vML)}, {s(gl[0])}')
    for g in gl[1:]: P(f'v_max_f32 {v(vML)}, {s(g)}, {v(vML)}')
    for k, g in enumerate(gl): P(f'v_sub_f32 {v(vG8+k)}, {s(g)}, {v(vML)}')
    for k in range(8): P(f'v_mul_f32 {v(vG8+k)}, {LOG2E}, {v(vG8+k)}')
    for k in range(8): P(f'v_exp_f32 {v(vG8+k)}, {v(vG8+k)}')
    P(f'v_mul_f32 {v(vE)}, {s(gl[0]+1)}, {v(vG8)}')
    for k, g in enumerate(gl[1:]): P(f'v_fmac_f32 {v(vE)}, {s(g+1)}, {v(vG8+k+1)}')
    P(f'v_rcp_f32 {v(vE+1)}, {v(vE)}\nv_mov_b32 {v(vT+2)}, {hex(L_ML)}\nv_mov_b32 {v(vML+2)}, 1')
    P(f'v_fma_f32 {v(vE)}, -{v(vE)}, {v(vE+1)}, 1.0\nv_fma_f32 {v(vML+1)}, {v(vE)}, {v(vE+1)}, {v(vE+1)}')
    setexec(1)
    P(f'ds_write_b128 {v(vT+2)}, {v(vML,4)}')
    setexec(ALL)
    P('L_PCALC:')
    for e in range(2): P(f'v_sub_f32 {v(vE+e)}, {v(vS2+e)}, {v(vML)}')
    for e in range(2): P(f'v_mul_f32 {v(vE+e)}, {LOG2E}, {v(vE+e)}')
    for e in range(2): P(f'v_exp_f32 {v(vE+e)}, {v(vE+e)}')
    for e in range(2): P(f'v_mul_f32 {v(vE+e)}, {v(vE+e)}, {v(vML+1)}')
    for e in range(2): P(f'v_cvt_pk_bf16_f32 {v(vE+e)}, {v(vE+e)}, {v(vE+e)}')
    P(f'ds_write_b64 {v(27)}, {v(vE,2)}')
    srd(SRD_WS, sWSP, WS_BYTES)
    P(f's_cmp_eq_u32 {s(sW)}, 4\ns_cbranch_scc1 L_C0B1')
    P('s_waitcnt lgkmcnt(0)')
    P('s_barrier')
    P(f's_cmp_eq_u32 {s(sW)}, 5\ns_cbranch_scc1 L_C1B1')
    P('s_branch L_C23B1')
    P('L_C0B1:')
    srd(SRD_A, pWO, 4 << 20)
    P(f'v_bfe_u32 {v(vT)}, {v(vL)}, 3, 1\nv_lshlrev_b32 {v(vT)}, 16, {v(vT)}\nv_bfe_u32 {v(vT+1)}, {v(vL)}, 4, 1\nv_lshl_add_u32 {v(vT)}, {v(vT+1)}, 12, {v(vT)}\nv_lshrrev_b32 {v(vT+1)}, 5, {v(vL)}\nv_lshl_add_u32 {v(vT)}, {v(vT+1)}, 11, {v(vT)}')
    P(f'v_and_b32 {v(vT+1)}, 7, {v(vL)}\nv_lshl_add_u32 {v(vWA)}, {v(vT+1)}, 4, {v(vT)}')
    P(f's_lshl_b32 {s(sO0)}, {s(sH)}, 17\ns_lshl_b32 {s(sT0)}, {s(sJ)}, 7\ns_add_u32 {s(sO0)}, {s(sO0)}, {s(sT0)}')
    P('s_waitcnt lgkmcnt(0)')
    stamp('C0_p')
    P('s_barrier')
    vWO = 64
    for i in range(16):
        P(f'buffer_load_dwordx4 {v(vWO+4*i,4)}, {v(vWA)}, {S(SRD_A)}, {s(sO0)} offen offset:{1024*(i & 1)} {cfg.wpol}')
        if (i & 1) == 1 and i < 15: P(f's_add_u32 {s(sO0)}, {s(sO0)}, 8192')
    P(f'v_lshrrev_b32 {v(vT+2)}, 1, {v(vL16)}\nv_add_u32 {v(vT+2)}, {hex(L_OP)}, {v(vT+2)}')
    P(f's_lshl_b32 {s(sO1)}, {s(sH)}, 13\ns_add_u32 {s(sO1)}, {s(sO1)}, {hex(XA)}\ns_lshl_b32 {s(sO0)}, {s(sJ)}, 10\ns_add_u32 {s(sO0)}, {s(sO0)}, {s(sO1)}\ns_add_u32 {s(sO2)}, {s(sO1)}, 4096')
    P(f's_lshl_b32 {s(sO3)}, {s(sJ)}, 5\ns_add_u32 {s(sO3)}, {s(sO3)}, {s(sH)}\ns_lshl_b32 {s(sO3)}, {s(sO3)}, 9\ns_add_u32 {s(sO3)}, {s(sO3)}, {hex(XB)}')
    P(f'v_mov_b32 {v(22)}, {s(sTAG)}')
    vAP, vDNA, vCA, vEA = 8, 10, 11, 12
    sQ, sW2, sDN, sEP, sEG, sDP, sC0 = 4, 6, 8, 9, 10, 11, 12
    P(f's_sub_u32 {s(sT0)}, {s(sKK)}, 8\ns_cmp_lt_u32 {s(sKK)}, 8\ns_cselect_b32 {s(sT1)}, {s(sKK)}, {s(sT0)}\ns_and_b32 {s(sQ)}, {s(sT1)}, 3\ns_lshr_b32 {s(sT1)}, {s(sT1)}, 2')
    P(f's_mul_i32 {s(sIM)}, {s(sX)}, 6\ns_add_u32 {s(sIM)}, {s(sIM)}, {s(sT1)}\ns_cmp_lt_u32 {s(sT0)}, 8\ns_cselect_b32 {s(sIM)}, 255, {s(sIM)}')
    srd(SRD_B, pW2, 1376*1024)
    P(f'v_lshrrev_b32 {v(vT)}, 3, {v(vL)}\nv_mul_u32_u24 {v(vT)}, {16*2752}, {v(vT)}\nv_and_b32 {v(vT+1)}, 3, {v(vL)}\nv_lshl_add_u32 {v(vT)}, {v(vT+1)}, 4, {v(vT)}')
    P(f's_mul_i32 {s(sT0)}, {s(sQ)}, {128*2752}\ns_min_u32 {s(sT1)}, {s(sIM)}, {NM-1}\ns_lshl_b32 {s(sT1)}, {s(sT1)}, 6\ns_add_u32 {s(sT0)}, {s(sT0)}, {s(sT1)}\nv_add_u32 {v(vT)}, {s(sT0)}, {v(vT)}')
    P(f's_mov_b32 {s(sMASK)}, 0xf0f0f0f0\ns_mov_b32 {s(sMASK+1)}, 0xf0f0f0f0\ns_mov_b32 {s(sW2)}, 2752*2\ns_mov_b32 {s(sW2+1)}, 0')
    P(f'v_mov_b32 {v(vAP)}, {s(pW1)}\nv_mov_b32 {v(vAP+1)}, {s(pW1+1)}\nv_mov_b32 {v(vT+1)}, {s(pW3)}\nv_mov_b32 {v(vCA)}, {s(pW3+1)}')
    P(f'v_cndmask_b32 {v(vAP)}, {v(vAP)}, {v(vT+1)}, {s(sMASK,2)}\nv_cndmask_b32 {v(vAP+1)}, {v(vAP+1)}, {v(vCA)}, {s(sMASK,2)}')
    P(f'v_add_co_u32 {v(vAP)}, vcc, {v(vAP)}, {v(vT)}\nv_addc_co_u32 {v(vAP+1)}, vcc, 0, {v(vAP+1)}, vcc')
    P(f'v_bfe_u32 {v(vT)}, {v(vL)}, 4, 1\nv_lshlrev_b32 {v(vDNA)}, 12, {v(vT)}\nv_lshrrev_b32 {v(vT)}, 5, {v(vL)}\nv_lshl_add_u32 {v(vDNA)}, {v(vT)}, 11, {v(vDNA)}\nv_and_b32 {v(vT)}, 15, {v(vL)}\nv_lshl_add_u32 {v(vDNA)}, {v(vT)}, 4, {v(vDNA)}')
    P(f's_lshl_b32 {s(sDN)}, {s(sIM)}, 15\ns_lshl_b32 {s(sT0)}, {s(sQ)}, 8\ns_add_u32 {s(sDN)}, {s(sDN)}, {s(sT0)}')
    P(f's_lshl_b32 {s(sEG)}, {s(sIM)}, 11\ns_add_u32 {s(sEG)}, {s(sEG)}, {hex(XE)}\ns_lshl_b32 {s(sT0)}, {s(sQ)}, 9\ns_add_u32 {s(sEP)}, {s(sEG)}, {s(sT0)}')
    P(f's_lshl_b32 {s(sDP)}, {s(sIM)}, 12\ns_lshl_b32 {s(sT0)}, {s(sQ)}, 10\ns_add_u32 {s(sDP)}, {s(sDP)}, {s(sT0)}\ns_add_u32 {s(sDP)}, {s(sDP)}, {hex(XD)}')
    P(f's_lshl_b32 {s(sT1)}, {s(sX)}, {12 + cfg.xcline}\ns_add_u32 {s(sT1)}, {s(sT1)}, {hex(XC)}' if cfg.xcrep else f's_mov_b32 {s(sT1)}, {hex(XC)}')
    for k in range(4): P(f's_add_u32 {s(sT0)}, {s(sQ)}, {k}\ns_and_b32 {s(sT0)}, {s(sT0)}, 3\ns_lshl_b32 {s(sT0)}, {s(sT0)}, {10 + cfg.xcline}\ns_add_u32 {s(sC0+k)}, {s(sT0)}, {s(sT1)}')
    P(f'v_lshrrev_b32 {v(vT)}, 5, {v(vL)}\nv_lshlrev_b32 {v(vCA)}, {9 + cfg.xcline}, {v(vT)}\nv_bfe_u32 {v(vT)}, {v(vL)}, 1, 1\nv_lshl_add_u32 {v(vCA)}, {v(vT)}, {7 + cfg.xcline}, {v(vCA)}\nv_and_b32 {v(vT)}, 1, {v(vL)}\nv_lshl_add_u32 {v(vCA)}, {v(vT)}, {8 + cfg.xcline}, {v(vCA)}')
    P(f'v_bfe_u32 {v(vT)}, {v(vL)}, 4, 1\nv_lshl_add_u32 {v(vCA)}, {v(vT)}, {6 + cfg.xcline}, {v(vCA)}\nv_bfe_u32 {v(vT)}, {v(vL)}, 2, 2\nv_lshl_add_u32 {v(vCA)}, {v(vT)}, 4, {v(vCA)}')
    P(f'v_bfe_u32 {v(vT)}, {v(vL)}, 3, 1\nv_lshlrev_b32 {v(vT)}, 9, {v(vT)}\nv_add_u32 {v(vEA)}, {v(vPUB)}, {v(vT)}')
    P('s_barrier')
    stamp('C0_b2')
    for w in range(4): P(f'ds_read_b64 {v(24+2*w,2)}, {v(vT+2)} offset:{512*w}')
    P('s_waitcnt lgkmcnt(2)')
    for e in range(2): P(f'v_add_f32 {v(24+e)}, {v(24+e)}, {v(26+e)}')
    P('s_waitcnt lgkmcnt(0)')
    for e in range(2): P(f'v_add_f32 {v(28+e)}, {v(28+e)}, {v(30+e)}')
    for e in range(2): P(f'v_add_f32 {v(20+e)}, {v(24+e)}, {v(28+e)}')
    publish_loc(20, vL16, sO0)
    stamp('C0_xapub')
    vOd = 40
    def issue(b):
        for k in range(8):
            P(f'buffer_load_dwordx4 {v(b+4*k,4)}, {v(vL16)}, {S(SRD_WS)}, {s(sO1 if k < 4 else sO2)} offen offset:{1024*(k & 3)} sc1')
    def done(b):
        for a, b2 in ((0, 1), (2, 3), (4, 5), (6, 7), (0, 2), (4, 6), (0, 4)):
            for e in (0, 1): P(f'v_add_f32 {v(b+4*a+e)}, {v(b+4*a+e)}, {v(b+4*b2+e)}')
        P(f'v_cvt_pk_bf16_f32 {v(vOd)}, {v(b)}, {v(b)}\nv_cvt_pk_bf16_f32 {v(vOd+1)}, {v(b+1)}, {v(b+1)}')
    poll('xa', issue, 8, 128, 32, [4*k+2 for k in range(8)], done)
    stamp('C0_xa')
    lohi(vOd)
    chain(vD0, 16, [vWO+4*i for i in range(16)], lohi_srcs(vOd), vAA)
    finish2(vD0)
    publish(vD0, vPUB, sO3, M2SET)
    stamp('C0_xbpub')
    P(f's_cmp_lt_u32 {s(sIM)}, {NM}\ns_cbranch_scc0 L_END')
    vUP, vDN, vCG, vEG = 128, 192, 64, 80
    for i in range(16):
        P(f'global_load_dwordx4 {v(vUP+4*i,4)}, {v(vAP,2)}, off offset:{2752*(i & 1)} {cfg.uppol}')
        if i & 1 and i < 15: P(f'v_lshl_add_u64 {v(vAP,2)}, {v(vAP,2)}, 0, {s(sW2,2)}')
    def dn_issue():
        for i in range(8):
            P(f'buffer_load_dwordx4 {v(vDN+4*i,4)}, {v(vDNA)}, {S(SRD_B)}, {s(sDN)} offen offset:{1024*(i & 1)} {cfg.wpol}')
            if i & 1 and i < 7: P(f's_add_u32 {s(sDN)}, {s(sDN)}, 8192')
    if not cfg.dnlate: dn_issue()
    if cfg.diag and 'M_w' in cfg.diag:
        P('s_waitcnt vmcnt(0)'); stamp('M_w')
    vx, vcb, vsb = 88, 24, 26
    def issue(b):
        for k in range(4): P(f'buffer_load_dwordx4 {v(b+4*k,4)}, {v(vCA)}, {S(SRD_WS)}, {s(sC0+k)} offen sc1')
    def done(b):
        for k in range(4): unpack(vx+2*k, vx+2*k+1, b+4*k)
        unpack(vcb, vcb+1, b+1); unpack(vsb, vsb+1, b+2)
    poll('xc', issue, 4, 64 if cfg.pipe.get('xc', 1) == 1 else 104, 16 if cfg.pipe.get('xc', 1) != 2 else -40, [4*k+3 for k in range(4)], done)
    stamp('M_xc')
    if cfg.dnlate == 1: dn_issue()
    P(f'v_readfirstlane_b32 {s(sT0)}, {v(vx)}')
    for k in range(8): P(f'v_subrev_f32 {v(96+k)}, {s(sT0)}, {v(vx+k)}')
    P(f'v_pk_add_f32 {v(20,2)}, {v(96,2)}, {v(98,2)}\nv_pk_add_f32 {v(22,2)}, {v(100,2)}, {v(102,2)}\nv_pk_mul_f32 {v(28,2)}, {v(96,2)}, {v(96,2)}\nv_pk_mul_f32 {v(30,2)}, {v(100,2)}, {v(100,2)}')
    P(f'v_pk_add_f32 {v(20,2)}, {v(20,2)}, {v(22,2)}\nv_pk_fma_f32 {v(28,2)}, {v(98,2)}, {v(98,2)}, {v(28,2)}\nv_pk_fma_f32 {v(30,2)}, {v(102,2)}, {v(102,2)}, {v(30,2)}')
    P(f'v_add_f32 {v(22)}, {v(20)}, {v(21)}\nv_pk_add_f32 {v(28,2)}, {v(28,2)}, {v(30,2)}\nv_add_f32 {v(23)}, {v(28)}, {v(29)}')
    for mod in ('quad_perm:[1,0,3,2]', 'quad_perm:[2,3,0,1]', 'row_ror:4', 'row_ror:8'):
        for r in (22, 23): P(f'v_add_f32_dpp {v(r)}, {v(r)}, {v(r)} {mod} row_mask:0xf bank_mask:0xf')
    P(f'v_permlane16_swap_b32 {v(22)}, {v(23)}\nv_add_f32 {v(22)}, {v(22)}, {v(23)}\nv_mov_b32 {v(23)}, {v(22)}')
    P(f'v_permlane32_swap_b32 {v(22)}, {v(23)}\nv_add_f32 {v(22)}, {v(22)}, {v(23)}\nv_mul_f32 {v(22)}, {R512}, {v(22)}')
    P(f'v_readlane_b32 {s(sT1)}, {v(22)}, 0\nv_readlane_b32 {s(sT2)}, {v(22)}, 16')
    P(f'v_mov_b32 {v(22)}, {s(sT1)}\nv_mov_b32 {v(23)}, {s(sT2)}')
    P(f'v_fma_f32 {v(23)}, -{v(22)}, {v(22)}, {v(23)}\nv_add_f32 {v(22)}, {s(sT0)}, {v(22)}\nv_max_f32 {v(23)}, 0, {v(23)}')
    P(f'v_cvt_pk_bf16_f32 {v(22)}, {v(22)}, {v(23)}')
    P(f'v_and_b32 {v(23)}, 0xffff0000, {v(22)}\nv_lshlrev_b32 {v(22)}, 16, {v(22)}\nv_add_f32 {v(23)}, {EPS}, {v(23)}')
    P(f'v_sub_f32 {v(20)}, {v(vx)}, {v(22)}\nv_sub_f32 {v(21)}, {v(vx+1)}, {v(22)}')
    P(f'v_cvt_pk_bf16_f32 {v(23)}, {v(23)}, {v(23)}\nv_cvt_pk_bf16_f32 {v(20)}, {v(20)}, {v(21)}\nv_and_b32 {v(23)}, 0xffff0000, {v(23)}\nv_sqrt_f32 {v(23)}, {v(23)}')
    unpack(vx, vx+1, 20)
    P(f'v_cvt_pk_bf16_f32 {v(23)}, {v(23)}, {v(23)}\nv_and_b32 {v(23)}, 0xffff0000, {v(23)}\nv_rcp_f32 {v(22)}, {v(23)}')
    P(f'v_mul_f32 {v(20)}, {v(vx)}, {v(22)}\nv_mul_f32 {v(21)}, {v(vx+1)}, {v(22)}')
    P(f'v_fma_f32 {v(vx)}, -{v(20)}, {v(23)}, {v(vx)}\nv_fma_f32 {v(vx+1)}, -{v(21)}, {v(23)}, {v(vx+1)}')
    P(f'v_fma_f32 {v(20)}, {v(vx)}, {v(22)}, {v(20)}\nv_fma_f32 {v(21)}, {v(vx+1)}, {v(22)}, {v(21)}')
    P(f'v_cvt_pk_bf16_f32 {v(20)}, {v(20)}, {v(21)}')
    unpack(vx, vx+1, 20)
    P(f'v_mul_f32 {v(vx)}, {v(vx)}, {v(vcb)}\nv_mul_f32 {v(vx+1)}, {v(vx+1)}, {v(vcb+1)}\nv_cvt_pk_bf16_f32 {v(20)}, {v(vx)}, {v(vx+1)}')
    unpack(vx, vx+1, 20)
    P(f'v_add_f32 {v(vx)}, {v(vx)}, {v(vsb)}\nv_add_f32 {v(vx+1)}, {v(vx+1)}, {v(vsb+1)}')
    P(f'v_cvt_pk_bf16_f32 {v(vOd)}, {v(vx)}, {v(vx)}\nv_cvt_pk_bf16_f32 {v(vOd+1)}, {v(vx+1)}, {v(vx+1)}')
    lohi(vOd)
    stamp('M_h2')
    if cfg.dnlate == 2: dn_issue()
    chain(vD0, 16, [vUP+4*i for i in range(16)], lohi_srcs(vOd), vAA)
    finish2(vD0)
    publish_loc(vD0, vPUB, sEP, M2SET, sR)
    stamp('M_up')
    def issue(b):
        for k in range(2): P(f'buffer_load_dwordx4 {v(b+4*k,4)}, {v(vEA)}, {S(SRD_WS)}, {s(sEG)} offen offset:{1024*k} sc1')
    def done(b):
        for e in range(2): P(f'v_add_f32 {v(20+e)}, {v(b+e)}, {v(b+4+e)}')
    poll('xe', issue, 2, 128, 8, [2, 6], done)
    stamp('M_xe')
    for e in range(2): P(f'v_add_f32_dpp {v(20+e)}, {v(20+e)}, {v(20+e)} row_ror:8 row_mask:0xf bank_mask:0xf')
    P(f'v_cvt_pk_bf16_f32 {v(22)}, {v(20)}, {v(21)}')
    unpack(20, 21, 22)
    P(f'v_mov_b32_dpp {v(24)}, {v(22)} row_shl:4 row_mask:0xf bank_mask:0xf')
    silu_multi([20, 21], [22, 23])
    unpack(26, 27, 24)
    P(f'v_cvt_pk_bf16_f32 {v(22)}, {v(20)}, {v(21)}')
    unpack(20, 21, 22)
    P(f'v_mul_f32 {v(20)}, {v(20)}, {v(26)}\nv_mul_f32 {v(21)}, {v(21)}, {v(27)}')
    for e in range(2): P(f'v_cvt_pk_bf16_f32 {v(20+e)}, {v(20+e)}, {v(20+e)}')
    stamp('M_act')
    chain(vD0, 8, [vDN+4*i for i in range(8)], [(20 + (i & 1), f'row_newbcast:{i >> 1}') for i in range(8)], vAA)
    finish1(vD0)
    publish(vD0, vL16, sDP)
    stamp('M_end')
    P('s_branch L_END')

    P('L_C123:')
    common_setup()
    P(f's_cmp_eq_u32 {s(sW)}, 5\ns_cbranch_scc1 L_C1')
    P(f's_cmp_eq_u32 {s(sW)}, 6\ns_cbranch_scc0 L_C3')
    P(f's_getpc_b64 {s(20,2)}')
    P('L_PCREF:')
    P(f's_sub_u32 s20, s20, L_PCREF-{NAME}_kernel\ns_subb_u32 s21, s21, 0')
    P(f's_lshl_b32 {s(sT0)}, {s(sKK)}, 3\nv_and_b32 {v(vT)}, 7, {v(vL)}\nv_add_u32 {v(vT)}, {s(sT0)}, {v(vT)}\nv_lshlrev_b32 {v(vT)}, 7, {v(vT)}')
    P(f'v_min_u32 {v(vT)}, L_CODE_END-{NAME}_kernel-4, {v(vT)}')
    P(f'global_load_dword {v(240)}, {v(vT)}, s[20:21]')
    P('L_C3:')
    P('s_waitcnt lgkmcnt(0)')
    P(f's_add_u32 {s(sTAG)}, {s(sTAG)}, 1')
    P('s_branch L_QKP')
    P('L_C23B1:')
    P('s_barrier')
    P('s_branch L_END')

    P('L_C1:')
    P('s_waitcnt lgkmcnt(0)')
    P(f's_add_u32 {s(sTAG)}, {s(sTAG)}, 1')
    P(f's_mov_b32 {s(sR)}, 0\ns_sub_u32 {s(sT0)}, {s(sKK)}, 8\ns_cmp_lt_u32 {s(sT0)}, 16\ns_cbranch_scc1 L_QKP')
    P(f'v_mov_b32 {v(vT+2)}, {hex(L_FLAG + 8)}')
    lds_wait('k1', vT+2, 1, 28, [28], 8)
    P(f's_and_b32 {s(sT0)}, {s(sKK)}, 7\ns_lshr_b32 {s(sT1)}, {s(sKK)}, 4\ns_lshl_b32 {s(sT1)}, {s(sT1)}, 3\ns_add_u32 {s(sT0)}, {s(sT0)}, {s(sT1)}')
    P(f's_lshl_b32 {s(sT0)}, {s(sT0)}, 3\ns_add_u32 {s(sT0)}, {s(sT0)}, {s(sX)}\ns_and_b32 {s(sT1)}, {s(sT0)}, 31\ns_lshr_b32 {s(sT0)}, {s(sT0)}, 5')
    P(f's_lshl_b32 {s(sO2)}, {s(sT1)}, 2\ns_add_u32 {s(sO2)}, {s(sO2)}, {s(sT0)}\ns_lshl_b32 {s(sO2)}, {s(sO2)}, 9\ns_add_u32 {s(sO2)}, {s(sO2)}, {hex(X4)}')
    P(f's_lshl_b32 {s(sT1)}, {s(sT1)}, 7\ns_add_u32 {s(sT1)}, {s(sT1)}, 2048')
    modtile_issue(sT0, sT1)
    P(f's_mov_b32 {s(sR)}, 99\ns_branch L_QKP')
    P('L_C1B1:')
    P(f's_sub_u32 {s(sT0)}, {s(sKK)}, 8\ns_cmp_lt_u32 {s(sT0)}, 8\ns_cbranch_scc1 L_RED')
    P('s_barrier')
    P('s_branch L_END')
    P('L_RED:')
    vg = 64
    srd(SRD_A, pX, 1024); srd(SRD_B, pOUT, 1024)
    vXv, vGAv, vGBv, vU16, vBA, vDA, vXC = 12, 13, 14, 15, 16, 17, 20
    sR8, sG64 = sG, sG+1
    P(f's_mov_b32 {s(sR8)}, {s(sT0)}\ns_lshl_b32 {s(sG64)}, {s(sT0)}, 6\ns_lshl_b32 {s(sR)}, {s(sX)}, 3\ns_add_u32 {s(sR)}, {s(sR)}, {s(sT0)}')
    P(f's_lshl_b32 {s(sO0)}, {s(sX)}, 7\ns_and_b32 {s(sT1)}, {s(sR8)}, 1\ns_lshl_b32 {s(sT1)}, {s(sT1)}, 6\ns_add_u32 {s(sO0)}, {s(sO0)}, {s(sT1)}')
    P(f's_and_b32 {s(sT1)}, {s(sR8)}, 2\ns_lshl_b32 {s(sT1)}, {s(sT1)}, 2\ns_add_u32 {s(sO0)}, {s(sO0)}, {s(sT1)}\ns_and_b32 {s(sT1)}, {s(sR8)}, 4\ns_add_u32 {s(sG+2)}, {s(sO0)}, {s(sT1)}')
    P(f'v_and_b32 {v(vU16)}, 3, {v(vL)}\nv_lshlrev_b32 {v(vU16)}, 4, {v(vU16)}\nv_bfe_u32 {v(vT+1)}, {v(vL)}, 4, 1\nv_lshl_add_u32 {v(vT)}, {v(vT+1)}, 1, {v(vU16)}')
    P(f'buffer_load_ushort {v(vXv)}, {v(vT)}, {S(SRD_A)}, {s(sG+2)} offen')
    P(f'v_lshrrev_b32 {v(vT)}, 4, {v(vL)}\nv_lshlrev_b32 {v(vT)}, 14, {v(vT)}\nv_bfe_u32 {v(vT+1)}, {v(vL)}, 2, 2\nv_lshl_add_u32 {v(vT)}, {v(vT+1)}, 9, {v(vT)}\nv_add_u32 {v(vBA)}, {v(vT)}, {v(vU16)}')
    P(f's_lshl_b32 {s(sO0)}, {s(sX)}, 11\ns_add_u32 {s(sO0)}, {s(sO0)}, {s(sG64)}\ns_add_u32 {s(sO0)}, {s(sO0)}, {hex(X4)}')
    P('s_barrier')
    stamp('R_b2')
    tagcheck_loop(lambda: P(f'buffer_load_dwordx4 {v(vg,4)}, {v(vBA)}, {S(SRD_WS)}, {s(sO0)} offen sc1'), [vg+2], 'x4')
    for mod in ('row_ror:4', 'row_ror:8'):
        for e in range(2): P(f'v_add_f32_dpp {v(vg+e)}, {v(vg+e)}, {v(vg+e)} {mod} row_mask:0xf bank_mask:0xf')
    P(f'v_cvt_pk_bf16_f32 {v(vg)}, {v(vg)}, {v(vg+1)}')
    P(f'v_lshrrev_b32 {v(vT)}, 2, {v(vU16)}')
    P(f'ds_bpermute_b32 {v(vGAv)}, {v(vT)}, {v(vg)}\nds_bpermute_b32 {v(vXC+2)}, {v(vT)}, {v(vg)} offset:64\nds_bpermute_b32 {v(vXC+1)}, {v(vT)}, {v(vg)} offset:128\nds_bpermute_b32 {v(vGBv)}, {v(vT)}, {v(vg)} offset:192')
    P(f'v_bfe_u32 {v(vT+2)}, {v(vL)}, 4, 1\nv_lshlrev_b32 {v(vT+2)}, 4, {v(vT+2)}\nv_lshlrev_b32 {v(vXv)}, 16, {v(vXv)}\nv_mov_b32 {v(vXC+3)}, {s(sTAG)}')
    P('s_waitcnt lgkmcnt(0)')
    for r in (vGAv, vGBv): P(f'v_lshrrev_b32 {v(r)}, {v(vT+2)}, {v(r)}\nv_lshlrev_b32 {v(r)}, 16, {v(r)}')
    unpack(vg, vg+1, vXC+1)
    P(f'v_add_f32 {v(vg)}, 1.0, {v(vg)}\nv_add_f32 {v(vg+1)}, 1.0, {v(vg+1)}\nv_cvt_pk_bf16_f32 {v(vXC+1)}, {v(vg)}, {v(vg+1)}')
    P(f'v_lshrrev_b32 {v(vT)}, 2, {v(vL)}\nv_lshl_add_u32 {v(vBA)}, {v(vT)}, 9, {v(vU16)}\nv_lshl_add_u32 {v(vDA)}, {v(vT)}, 12, {v(vU16)}')
    P(f's_lshl_b32 {s(sO0)}, {s(sX)}, 14\ns_add_u32 {s(sO0)}, {s(sO0)}, {s(sG64)}\ns_add_u32 {s(sO0)}, {s(sO0)}, {hex(XB)}\ns_add_u32 {s(sO1)}, {s(sO0)}, 8192')
    P(f's_lshl_b32 {s(sO3)}, {s(sR)}, {6 + cfg.xcline}\ns_add_u32 {s(sO3)}, {s(sO3)}, {hex(XC)}')
    vXA2 = 18
    P(f'v_lshrrev_b32 {v(vT)}, 2, {v(vL)}\nv_lshl_add_u32 {v(vXA2)}, {v(vT)}, {12 + cfg.xcline}, {v(vU16)}')
    P(f's_lshr_b32 {s(sO2)}, {s(sX)}, 1\ns_lshl_b32 {s(sO2)}, {s(sO2)}, 10\ns_and_b32 {s(sT1)}, {s(sX)}, 1\ns_lshl_b32 {s(sT1)}, {s(sT1)}, 7\ns_add_u32 {s(sO2)}, {s(sO2)}, {s(sT1)}')
    P(f's_and_b32 {s(sT1)}, {s(sR8)}, 1\ns_lshl_b32 {s(sT1)}, {s(sT1)}, 6\ns_add_u32 {s(sO2)}, {s(sO2)}, {s(sT1)}\ns_lshr_b32 {s(sT1)}, {s(sR8)}, 1\ns_lshl_b32 {s(sT1)}, {s(sT1)}, 8\ns_add_u32 {s(sO2)}, {s(sO2)}, {s(sT1)}\ns_add_u32 {s(sO2)}, {s(sO2)}, {hex(XD)}')
    sD = 8
    for k in range(3): P(f's_add_u32 {s(sD+k)}, {s(sO2)}, {hex(65536*k)}')
    for i in range(cfg.pipe.get('xd', 1)):
        for k in range(3): P(f'v_mov_b32 {v(128+12*i+8+k)}, {s(sTAG) if k == 2 else 0}')
    stamp('R_x4')
    def issue(b):
        for k in range(2): P(f'buffer_load_dwordx4 {v(b+4*k,4)}, {v(vBA)}, {S(SRD_WS)}, {s(sO0+k)} offen sc1')
    def done(b):
        for e in range(2): P(f'v_add_f32 {v(vg+e)}, {v(b+e)}, {v(b+4+e)}')
    poll('xb', issue, 2, 68, 8, [2, 6], done)
    stamp('R_xb')
    def colsum():
        P(f'v_permlane16_swap_b32 {v(vg)}, {v(vg+1)}')
        P(f'v_add_f32 {v(vg)}, {v(vg)}, {v(vg+1)}')
        P(f'v_add_f32_dpp {v(vg)}, {v(vg)}, {v(vg)} row_ror:4 row_mask:0xf bank_mask:0xf')
        P(f'v_add_f32_dpp {v(vg)}, {v(vg)}, {v(vg)} row_ror:8 row_mask:0xf bank_mask:0xf')
        P(f'v_mov_b32 {v(vg+1)}, {v(vg)}')
        P(f'v_permlane32_swap_b32 {v(vg)}, {v(vg+1)}')
        P(f'v_add_f32 {v(vg)}, {v(vg)}, {v(vg+1)}')
    colsum()
    rnd(vg)
    P(f'v_mul_f32 {v(vg)}, {v(vg)}, {v(vGAv)}'); rnd(vg)
    P(f'v_add_f32 {v(vg)}, {v(vg)}, {v(vXv)}\nv_mov_b32 {v(vg+1)}, {v(vg)}')
    P(f'v_permlane16_swap_b32 {v(vg)}, {v(vg+1)}')
    P(f'v_cvt_pk_bf16_f32 {v(vXC)}, {v(vg)}, {v(vg+1)}')
    publish(vXC, vXA2, sO3, 0xffffffff if cfg.xcrep else 0xf)
    stamp('R_xcpub')
    P(f'v_lshrrev_b32 {v(vXv)}, {v(vT+2)}, {v(vXC)}\nv_lshlrev_b32 {v(vXv)}, 16, {v(vXv)}')
    def issue(b):
        for k in range(2): P(f'buffer_load_dwordx4 {v(b+4*k,4)}, {v(vDA)}, {S(SRD_WS)}, {s(sD+k)} offen sc1')
        setexec((1 << 44) - 1)
        P(f'buffer_load_dwordx4 {v(b+8,4)}, {v(vDA)}, {S(SRD_WS)}, {s(sD+2)} offen sc1')
        setexec(ALL)
    def done(b):
        for e in range(2): P(f'v_add_f32 {v(b+e)}, {v(b+e)}, {v(b+4+e)}')
        for e in range(2): P(f'v_add_f32 {v(vg+e)}, {v(b+e)}, {v(b+8+e)}')
    poll('xd', issue, 3, 128, 12, [2, 6, 10], done)
    stamp('R_xd')
    colsum()
    rnd(vg)
    P(f'v_mul_f32 {v(vg)}, {v(vg)}, {v(vGBv)}'); rnd(vg)
    P(f'v_add_f32 {v(vg)}, {v(vg)}, {v(vXv)}\nv_mov_b32 {v(vg+1)}, {v(vg)}')
    P(f'v_permlane16_swap_b32 {v(vg)}, {v(vg+1)}')
    P(f'v_cvt_pk_bf16_f32 {v(vg)}, {v(vg)}, {v(vg+1)}')
    setexec(0xf)
    P(f'buffer_store_dword {v(vg)}, {v(vU16)}, {S(SRD_B)}, {s(sG+2)} offen')
    stamp('R_end')
    P(f's_cmp_eq_u32 {s(sR)}, 0\ns_cbranch_scc0 L_END')
    setexec(1)
    P(f'v_mov_b32 {v(vT)}, 0\nv_mov_b32 {v(vT+1)}, {s(sTAG)}')
    P(f'buffer_store_dword {v(vT+1)}, {v(vT)}, {S(SRD_WS)}, 0 offen sc1')
    if cfg.probe:
        i = stamps[cfg.probe]
        P(f's_waitcnt lgkmcnt(0)\ns_sub_u32 {s(sT0)}, {s(sDIAG+2*i)}, {s(sDIAG)}\ns_memrealtime s[76:77]\ns_waitcnt lgkmcnt(0)\ns_add_u32 {s(sT0)}, {s(sT0)}, s76')
        P(f'L_PROBE:\ns_memrealtime s[76:77]\ns_waitcnt lgkmcnt(0)\ns_sub_u32 {s(sT1)}, s76, {s(sT0)}\ns_cmp_lt_i32 {s(sT1)}, 0\ns_cbranch_scc1 L_PROBE')
    P('s_branch L_END')

    P('L_END:')
    if cfg.diag and not cfg.probe:
        P('s_waitcnt lgkmcnt(0)')
        P(f's_cmp_ge_u32 {s(sB)}, 256\ns_cbranch_scc1 L_END2')
        srd(SRD_WS, sWSP, WS_BYTES)
        P(f's_lshl_b32 {s(sT0)}, {s(sB)}, 3\ns_add_u32 {s(sT0)}, {s(sT0)}, {s(sW)}\ns_lshl_b32 {s(sT0)}, {s(sT0)}, 7\ns_add_u32 {s(sT0)}, {s(sT0)}, {hex(DIAG)}')
        P('s_mov_b64 exec, 1\nv_mov_b32 v1, 0')
        for i in range(9): P(f'v_mov_b32 v2, {s(sDIAG+2*i)}\nbuffer_store_dword v2, v1, {S(SRD_WS)}, {s(sT0)} offen offset:{4*i}')
        P('L_END2:')
    P('s_endpgm')
    P('L_CODE_END:')
    probs = P.fix()
    for p in probs: print('HAZARD across branch:', p, file=sys.stderr)
    head = open(f'cdna_kernels/{NAME}.s.ref').read().split('; Override launch')[0]
    txt = head
    txt += f'; Single persistent launch: 256 workgroups (one per CU) x 8 waves. Generated by gen/gen_kernel.py (hand-written generator).\n'
    txt += f'; @launch grid=(256,1,1) block=(512,1,1) lds={LDS_BYTES}\n'
    txt += f'.amdgcn_target "amdgcn-amd-amdhsa--gfx950"\n.text\n.globl {NAME}_kernel\n.p2align 8\n.type {NAME}_kernel,@function\n{NAME}_kernel:\n'
    txt += P.text() + '\n'
    txt += f'''.section .rodata,"a"
.p2align 6
.amdhsa_kernel {NAME}_kernel
  .amdhsa_next_free_vgpr 256
  .amdhsa_next_free_sgpr 102
  .amdhsa_accum_offset 256
  .amdhsa_group_segment_fixed_size 0
  .amdhsa_kernarg_size 112
  .amdhsa_user_sgpr_count 2
  .amdhsa_user_sgpr_kernarg_segment_ptr 1
  .amdhsa_system_sgpr_workgroup_id_x 1
  .amdhsa_float_denorm_mode_32 3
.end_amdhsa_kernel
'''
    return txt, stamps

if __name__ == '__main__':
    out = sys.argv[1] if len(sys.argv) > 1 else f'cdna_kernels/{NAME}.s'
    class C(Cfg): pass
    for a in sys.argv[2:]:
        k, val = a.split('=', 1)
        setattr(C, k, eval(val))
    txt, stamps = gen(C)
    open(out, 'w').write(txt)
    print('written', out, len(txt), 'bytes', stamps)
```

```python
import sys, struct
from asmdsl import Prog

NAME = 'adaLN_cond__mha_block_cached__glu_gated_swiglu__decode'

def f2u(x): return struct.unpack('<I', struct.pack('<f', x))[0]
LOG2E = hex(f2u(1.4426950408889634))
NLOG2E = hex(f2u(-1.4426950408889634))
SCALE = hex(f2u(128 ** -0.5))
EPS = hex(f2u(1e-5))
R512 = hex(f2u(1/512))
ALL = (1 << 64) - 1

X1 = 0x1000
X4 = 0x9000
X3 = 0x19000
X1F = 0x1b000
X0 = 0x1d000
X0B = 0x1e000
X2F = 0x1c000
XC = 0x120000
X2 = 0x20000
XA = 0x60000
XB = 0x200000
XD = 0xc0000
XE = 0x100000
X0C = 0x1a000
DIAG = 0x180000
WS_BYTES = 0x300000
L_P, L_OP, L_Q, L_FLAG = 0x20000, 0x20800, 0x21000, 0x21100
L_ST, L_U = 0x0, 0x1000
L_MS, L_ML = L_FLAG + 64, L_FLAG + 128
LDS_BYTES = 0x21200
NM = 43
TAGX = hex(sum(1 << (a*4+b*2+c) for a in (0,1) for b in (0,1) for c in (0,1) if (a ^ b) | c))

class Cfg:
    depth = 8
    diag = False
    probe = None
    kpol = 'nt'
    vpol = 'nt'
    wpol = 'nt'
    ppol = ''
    sleep1 = 0
    sleep2 = 0
    sleep3 = 4
    sleep4 = 40
    prio = 3
    hint = 1
    hsleep = 3
    lsleep = 1
    pf = 'post'
    wq0 = 1
    dsched = (6, 12, 9)
    rot = 5
    npf = 8
    local = 1
    pipe = dict()
    psleep = dict()
    xcrep = 1
    xcline = 0
    nodpp = 0
    b0late = 1
    xcsleep = 0
    dnlate = 0
    xbrep = 0
    rwait = 1
    xbgrp = 0
    rsleep = 0
    dsleep = 0
    wob2 = 0
    epearly = 1
    ksplit = 0
    th = 0
    cpf = 1
    fakehalf = 0
    dodd = None
    dvar = None
    outpol = ''
    uppol = 'nt'
    spin = 1 << 18

def v(a, n=1): return f'v{a}' if n == 1 else f'v[{a}:{a+n-1}]'
def s(a, n=1): return f's{a}' if n == 1 else f's[{a}:{a+n-1}]'

sB, sW = 2, 3
sKP, sVP = 4, 6
SRD_K, SRD_V, SRD_WS, SRD_A, SRD_B, SRD_C = 8, 12, 16, 20, 24, 28
sH, sJ, sX, sKK = 36, 37, 38, 39
sWSP = 40
sTAG, sIM, sR = 42, 43, 44
sT0, sT1, sT2 = 45, 46, 47
pWQ, pWO, pW1, pW3, pW2, pC, pWM, pX, pOUT = 48, 50, 54, 56, 58, 60, 62, 64, 66
sSPIN = 68
sO0, sO1, sO2, sO3 = 69, 70, 71, 72
sMASK = 74
sLOC = 73
sG = 76
sDIAG = 84
vL = 0
vT = 1
vM = 4

def gen(cfg=Cfg):
    P = Prog()
    D = cfg.depth
    stamps = {}
    def stamp(name):
        if cfg.diag and name in cfg.diag:
            grp = name.split('_')[0]
            same = [n for n in cfg.diag if n.split('_')[0] == grp]
            if name == 'start': i = 0
            elif grp == 'M': i = 8 - same.index(name)
            else: i = 1 + same.index(name)
            assert 0 <= i <= 8
            stamps[name] = i
            P(f's_memrealtime {s(sDIAG + 2*i, 2)}')
    def srd(r, ptr, nbytes):
        P(f's_mov_b32 {s(r)}, {s(ptr)}\ns_mov_b32 {s(r+1)}, {s(ptr+1)}\ns_mov_b32 {s(r+2)}, {hex(nbytes)}\ns_mov_b32 {s(r+3)}, 0x20000')
    def S(r): return s(r, 4)
    def setexec(mask):
        lo, hi = mask & 0xffffffff, mask >> 32
        if mask == ALL: P('s_mov_b64 exec, -1')
        elif mask <= 64: P(f's_mov_b64 exec, {mask}')
        else: P(f's_mov_b32 exec_lo, {hex(lo)}\ns_mov_b32 exec_hi, {hex(hi)}')
    uid = [0]
    def lab(p):
        uid[0] += 1; return f'L_{p}{uid[0]}'
    def tagcheck_loop(issue, tagregs, name, sleep=0, after=None, nafter=0):
        top = lab(name)
        P(f's_mov_b32 {s(sSPIN)}, 0')
        P(f'{top}:')
        issue()
        if after: after()
        P(f's_add_u32 {s(sSPIN)}, {s(sSPIN)}, 1\ns_cmp_gt_u32 {s(sSPIN)}, {cfg.spin}\ns_cbranch_scc1 L_END')
        P(f's_waitcnt vmcnt({nafter if after else 0})')
        if len(tagregs) == 1:
            P(f'v_cmp_ne_u32 vcc, {s(sTAG)}, {v(tagregs[0])}')
        else:
            P(f'v_xor_b32 {v(vT)}, {s(sTAG)}, {v(tagregs[0])}\nv_xor_b32 {v(vT+1)}, {s(sTAG)}, {v(tagregs[1])}')
            for k, r in enumerate(tagregs[2:]):
                P(f'v_bitop3_b32 {v(vT + (k & 1))}, {v(r)}, {s(sTAG)}, {v(vT + (k & 1))} bitop3:{TAGX}')
            P(f'v_or_b32 {v(vT)}, {v(vT)}, {v(vT+1)}\nv_cmp_ne_u32 vcc, 0, {v(vT)}')
        if sleep:
            dn = lab(name + 'd')
            P(f's_cbranch_vccz {dn}\ns_sleep {sleep}\ns_branch {top}\n{dn}:')
        else: P(f's_cbranch_vccnz {top}')
    def poll(name, issue, nl, base, stride, tagoff, done, issued=False):
        NS = cfg.pipe.get(name, 1)
        top, join = lab(name), lab(name + 'j')
        ex = [lab(name + 'x') for _ in range(NS)]
        P(f's_mov_b32 {s(sSPIN)}, 0')
        for i in range(NS - 1): issue(base + i*stride)
        if issued:
            assert NS == 1
            sk = lab(name + 's'); P(f's_branch {sk}')
        P(f'{top}:')
        for i in range(NS):
            issue(base + ((i + NS - 1) % NS)*stride)
            if issued: P(f'{sk}:')
            if i == 0: P(f's_add_u32 {s(sSPIN)}, {s(sSPIN)}, 1\ns_cmp_gt_u32 {s(sSPIN)}, {cfg.spin}\ns_cbranch_scc1 L_END')
            P(f's_waitcnt vmcnt({(NS-1)*nl})')
            tr = [base + i*stride + t for t in tagoff]
            if len(tr) == 1:
                P(f'v_cmp_ne_u32 vcc, {s(sTAG)}, {v(tr[0])}')
            else:
                P(f'v_xor_b32 {v(vT)}, {s(sTAG)}, {v(tr[0])}\nv_xor_b32 {v(vT+1)}, {s(sTAG)}, {v(tr[1])}')
                for k, r in enumerate(tr[2:]):
                    P(f'v_bitop3_b32 {v(vT + (k & 1))}, {v(r)}, {s(sTAG)}, {v(vT + (k & 1))} bitop3:{TAGX}')
                P(f'v_or_b32 {v(vT)}, {v(vT)}, {v(vT+1)}\nv_cmp_ne_u32 vcc, 0, {v(vT)}')
            ps = cfg.psleep.get(name, 0)
            if ps:
                P(f's_cbranch_vccz {ex[i]}\ns_sleep {ps}')
                if i + 1 == NS: P(f's_branch {top}')
            else: P(f's_cbranch_vccz {ex[i]}' if i + 1 < NS else f's_cbranch_vccnz {top}')
        for i in reversed(range(NS)):
            P(f'{ex[i]}:')
            done(base + i*stride)
            if i > 0: P(f's_branch {join}')
        P(f'{join}:')
    def poll_groups(name, groups):
        top = lab(name)
        P(f's_mov_b32 {s(sSPIN)}, 0\ns_mov_b32 {s(sT0)}, {(1 << len(groups)) - 1}')
        P(f'{top}:')
        for g, (issue, tr) in enumerate(groups):
            sk = lab(name + 'i')
            P(f's_bitcmp1_b32 {s(sT0)}, {g}\ns_cbranch_scc0 {sk}')
            issue()
            P(f'{sk}:')
        P(f's_add_u32 {s(sSPIN)}, {s(sSPIN)}, 1\ns_cmp_gt_u32 {s(sSPIN)}, {cfg.spin}\ns_cbranch_scc1 L_END')
        P('s_waitcnt vmcnt(0)')
        for g, (issue, tr) in enumerate(groups):
            P(f'v_xor_b32 {v(vT + (g & 1))}, {s(sTAG)}, {v(tr[0])}')
            for r in tr[1:]: P(f'v_bitop3_b32 {v(vT + (g & 1))}, {v(r)}, {s(sTAG)}, {v(vT + (g & 1))} bitop3:{TAGX}')
            P(f'v_cmp_ne_u32 {s(sG+4+2*(g & 1),2)}, 0, {v(vT + (g & 1))}')
            P(f's_cmp_lg_u64 {s(sG+4+2*(g & 1),2)}, 0\ns_cselect_b32 {s(sT1)}, {1 << g}, 0')
            P(f's_or_b32 {s(sT0)}, {s(sT1)}, {s(sT0) if g else s(sT1)}')
        P(f's_cbranch_scc1 {top}')
    def publish_loc(d, vaddr, soff, mask=None, flag=sLOC):
        if not cfg.local: return publish(d, vaddr, soff, mask)
        far, j2 = lab('far'), lab('pb')
        if mask: setexec(mask)
        P(f's_cmp_eq_u32 {s(flag)}, 1\ns_cbranch_scc0 {far}')
        P(f'buffer_store_dwordx4 {v(d,4)}, {v(vaddr)}, {S(SRD_WS)}, {s(soff)} offen')
        P(f's_branch {j2}\n{far}:')
        publish(d, vaddr, soff)
        P(f'{j2}:')
        if mask: setexec(ALL)
    def afrag(dst, src, dpp=''):
        for w in range(4):
            if dpp: P(f'v_and_b32_dpp {v(dst+w)}, {v(src)}, {v(vM+w)} {dpp} row_mask:0xf bank_mask:0xf')
            else: P(f'v_and_b32 {v(dst+w)}, {v(src)}, {v(vM+w)}')
    def mfma(d, a, b, first=False):
        P(f'v_mfma_f32_16x16x32_bf16 {v(d,4)}, {v(a,4)}, {v(b,4)}, {"0" if first else v(d,4)}')
    def chain(d, n, bregs, srcs, areg):
        if cfg.nodpp and srcs[0][1]:
            bc = 224
            for i in range(n): P(f'v_mov_b32_dpp {v(bc+i)}, {v(srcs[i][0])} {srcs[i][1]} row_mask:0xf bank_mask:0xf')
            srcs = [(bc+i, '') for i in range(n)]
        afrag(areg, *srcs[0])
        for i in range(n):
            if i + 1 < n: afrag(areg + 4*((i+1) & 1), *srcs[i+1])
            mfma(d, areg + 4*(i & 1), bregs[i], first=(i == 0))
    def finish2(d):
        P(f'v_permlane32_swap_b32 {v(d)}, {v(d+2)}\nv_permlane32_swap_b32 {v(d+1)}, {v(d+3)}')
        P(f'v_add_f32_dpp {v(d)}, {v(d+2)}, {v(d)} row_ror:8 row_mask:0xf bank_mask:0xf')
        P(f'v_add_f32_dpp {v(d+1)}, {v(d+3)}, {v(d+1)} row_ror:8 row_mask:0xf bank_mask:0xf')
        P(f'v_mov_b32 {v(d+2)}, {s(sTAG)}')
    def finish1(d):
        P(f'v_permlane32_swap_b32 {v(d)}, {v(d+2)}\nv_permlane32_swap_b32 {v(d+1)}, {v(d+3)}')
        P(f'v_mov_b32 {v(d+2)}, {s(sTAG)}')
    def publish(d, vaddr, soff, mask=None):
        if mask: setexec(mask)
        P(f'buffer_store_dwordx4 {v(d,4)}, {v(vaddr)}, {S(SRD_WS)}, {s(soff)} offen sc1')
        if mask: setexec(ALL)
    M2SET = 0x00ff00ff00ff00ff
    def lohi(r):
        P(f'v_mov_b32 {v(r+2)}, {v(r)}\nv_mov_b32 {v(r+3)}, {v(r+1)}')
        for e in range(2): P(f'v_mov_b32_dpp {v(r+2+e)}, {v(r+e)} row_shl:4 row_mask:0xf bank_mask:0x5')
        for e in range(2): P(f'v_mov_b32_dpp {v(r+e)}, {v(r+e)} row_shr:4 row_mask:0xf bank_mask:0xa')
    def lohi_srcs(r):
        out = []
        for i in range(16):
            u = i >> 1; a = u & 3
            out.append((r + (2 if u >= 4 else 0) + (i & 1), f'quad_perm:[{a},{a},{a},{a}]'))
        return out
    def lds_wait(name, vaddr, n, dst, chk, sleep=0):
        top = lab(name)
        op = {1: 'ds_read_b32', 2: 'ds_read_b64', 4: 'ds_read_b128'}[n]
        P(f's_mov_b32 {s(sSPIN)}, 0')
        P(f'{top}:')
        P(f'{op} {v(dst,n)}, {v(vaddr)}')
        P(f's_add_u32 {s(sSPIN)}, {s(sSPIN)}, 1\ns_cmp_gt_u32 {s(sSPIN)}, {cfg.spin*8}\ns_cbranch_scc1 L_END')
        P('s_waitcnt lgkmcnt(0)')
        if len(chk) == 2:
            P(f'v_and_b32 {v(vT)}, {v(chk[0])}, {v(chk[1])}\nv_cmp_eq_u32 vcc, 0, {v(vT)}')
        else: P(f'v_cmp_eq_u32 vcc, 0, {v(chk[0])}')
        if sleep:
            done = lab(name + 'd')
            P(f's_cbranch_vccz {done}\ns_sleep {sleep}\ns_branch {top}\n{done}:')
        else: P(f's_cbranch_vccnz {top}')
    def hint_wait(name, soff):
        top = lab(name)
        P(f's_add_u32 {s(sMASK)}, {s(sWSP)}, {s(soff)}\ns_addc_u32 {s(sMASK+1)}, {s(sWSP+1)}, 0\ns_mov_b32 {s(sSPIN)}, 0')
        P(f'{top}:')
        P(f's_load_dwordx8 {s(sG,8)}, {s(sMASK,2)}, 0 glc')
        P(f's_add_u32 {s(sSPIN)}, {s(sSPIN)}, 1\ns_cmp_gt_u32 {s(sSPIN)}, {cfg.spin}\ns_cbranch_scc1 L_END')
        P('s_waitcnt lgkmcnt(0)')
        P(f's_xor_b32 {s(sG)}, {s(sG)}, {s(sTAG)}')
        for k in range(1, 8): P(f's_xor_b32 {s(sG+k)}, {s(sG+k)}, {s(sTAG)}\ns_or_b32 {s(sG)}, {s(sG)}, {s(sG+k)}')
        done = lab(name + 'd')
        P(f's_cbranch_scc0 {done}')
        if cfg.hsleep: P(f's_sleep {cfg.hsleep}')
        P(f's_branch {top}\n{done}:')
    def wave_reduce(op, regs):
        for mod in ('quad_perm:[1,0,3,2] row_mask:0xf', 'quad_perm:[2,3,0,1] row_mask:0xf', 'row_ror:4 row_mask:0xf', 'row_ror:8 row_mask:0xf',
                    'row_bcast:15 row_mask:0xa', 'row_bcast:31 row_mask:0xc'):
            for r in regs: P(f'{op}_dpp {v(r)}, {v(r)}, {v(r)} {mod} bank_mask:0xf')
    def unpack(lo, hi, src):
        if lo == src: P(f'v_and_b32 {v(hi)}, 0xffff0000, {v(src)}\nv_lshlrev_b32 {v(lo)}, 16, {v(src)}')
        else: P(f'v_lshlrev_b32 {v(lo)}, 16, {v(src)}\nv_and_b32 {v(hi)}, 0xffff0000, {v(src)}')
    def silu_multi(rs, ts):
        for r, t in zip(rs, ts): P(f'v_mul_f32 {v(t)}, {NLOG2E}, {v(r)}')
        for r, t in zip(rs, ts): P(f'v_exp_f32 {v(t)}, {v(t)}')
        for r, t in zip(rs, ts): P(f'v_add_f32 {v(t)}, 1.0, {v(t)}')
        for r, t in zip(rs, ts): P(f'v_rcp_f32 {v(t)}, {v(t)}')
        for r, t in zip(rs, ts): P(f'v_mul_f32 {v(r)}, {v(r)}, {v(t)}')
    def rnd(r): P(f'v_cvt_pk_bf16_f32 {v(r)}, {v(r)}, {v(r)}\nv_and_b32 {v(r)}, 0xffff0000, {v(r)}')

    vMA, vMB, vMC, vPUB = 16, 17, 18, 19
    vMT, vD0, vAA, vS4 = 64, 36, 52, 40
    def modtile_issue(sRB, sCOL):
        srd(SRD_A, pC, 1024); srd(SRD_B, pWM, 512*6144)
        P(f's_lshl_b32 {s(sO1)}, {s(sRB)}, 8')
        P(f'buffer_load_dword {v(vMC)}, {v(vMA)}, {S(SRD_A)}, {s(sO1)} offen')
        P(f's_mul_i32 {s(sO1)}, {s(sRB)}, {128*6144}\ns_add_u32 {s(sO1)}, {s(sO1)}, {s(sCOL)}')
        for i in range(16):
            P(f'buffer_load_dwordx4 {v(vMT+4*i,4)}, {v(vMB)}, {S(SRD_B)}, {s(sO1)} offen {cfg.wpol}')
            if i < 15: P(f's_add_u32 {s(sO1)}, {s(sO1)}, 6144')
    def modtile_compute(nafter, soff):
        P(f's_waitcnt vmcnt({16+nafter})')
        unpack(vS4, vS4+1, vMC)
        silu_multi([vS4, vS4+1], [vS4+2, vS4+3])
        for e in range(2): P(f'v_cvt_pk_bf16_f32 {v(vS4+e)}, {v(vS4+e)}, {v(vS4+e)}')
        lohi(vS4)
        P(f's_waitcnt vmcnt({nafter})')
        chain(vD0, 16, [vMT+4*i for i in range(16)], lohi_srcs(vS4), vAA)
        finish2(vD0)
        publish(vD0, vPUB, soff, M2SET)

    P(f's_cmp_ge_u32 {s(sB)}, 256\ns_cbranch_scc1 L_END')
    if cfg.diag:
        for i in range(9): P(f's_mov_b32 {s(sDIAG+2*i)}, 0')
    stamp('start')
    P(f's_load_dwordx4 {s(sKP,4)}, s[0:1], 8')
    P(f's_load_dwordx16 {s(pWQ,16)}, s[0:1], 24')
    P(f's_load_dwordx2 {s(sWSP,2)}, s[0:1], 104')
    P(f's_load_dwordx2 {s(pX,2)}, s[0:1], 0')
    P(f's_load_dwordx2 {s(pOUT,2)}, s[0:1], 88')
    P(f'v_lshrrev_b32 {v(vT)}, 6, v0\nv_and_b32 {v(vL)}, 63, v0')
    P(f'v_readfirstlane_b32 {s(sW)}, {v(vT)}')
    P(f'v_lshlrev_b32 {v(vT)}, 2, {v(vL)}\nv_add_u32 {v(vT)}, {hex(L_FLAG)}, {v(vT)}\nv_mov_b32 {v(vT+1)}, 0')
    P(f'ds_write_b32 {v(vT)}, {v(vT+1)}')
    P(f's_and_b32 {s(sH)}, {s(sB)}, 31\ns_lshr_b32 {s(sJ)}, {s(sB)}, 5\ns_and_b32 {s(sX)}, {s(sB)}, 7\ns_lshr_b32 {s(sKK)}, {s(sB)}, 3')
    vKA, vVA = 8, 12
    P(f'v_lshrrev_b32 {v(vT)}, 4, {v(vL)}\nv_and_b32 {v(vT+1)}, 15, {v(vL)}')
    P(f'v_lshlrev_b32 {v(vVA)}, 10, {v(vT)}\nv_lshl_add_u32 {v(vVA)}, {v(vT+1)}, 4, {v(vVA)}')
    if cfg.ksplit:
        P(f'v_lshlrev_b32 {v(vT+2)}, 2, {v(vT)}\nv_xor_b32 {v(vT+1)}, {v(vT+1)}, {v(vT+2)}\nv_lshlrev_b32 {v(vT+1)}, 4, {v(vT+1)}\nv_lshl_add_u32 {v(vKA)}, {v(vT)}, 10, {v(vT+1)}')
        for i in range(1, 4): P(f'v_xor_b32 {v(vKA+i)}, {16*i}, {v(vKA)}')
    else:
        P(f'v_xor_b32 {v(vT+1)}, {v(vT+1)}, {v(vT)}\nv_lshlrev_b32 {v(vT+1)}, 4, {v(vT+1)}\nv_lshl_add_u32 {v(vKA)}, {v(vT)}, 8, {v(vT+1)}')
        for i in range(1, 4): P(f'v_xor_b32 {v(vKA+i)}, {64*i}, {v(vKA)}')
    P(f's_lshl_b32 {s(sO0)}, {s(sH)}, 20\ns_lshl_b32 {s(sO3)}, {s(sJ)}, 2\ns_add_u32 {s(sO3)}, {s(sO3)}, {s(sW)}\ns_lshl_b32 {s(sO3)}, {s(sO3)}, 12')
    P(f'v_lshlrev_b32 {v(vMA)}, 2, {v(vL)}\nv_lshrrev_b32 {v(vT)}, 3, {v(vL)}\nv_mul_u32_u24 {v(vMB)}, {16*6144}, {v(vT)}\nv_and_b32 {v(vT+1)}, 7, {v(vL)}\nv_lshl_add_u32 {v(vMB)}, {v(vT+1)}, 4, {v(vMB)}')
    P(f'v_lshrrev_b32 {v(vT)}, 4, {v(vL)}\nv_lshlrev_b32 {v(vT)}, 7, {v(vT)}\nv_lshl_add_u32 {v(vPUB)}, {v(vT+1)}, 4, {v(vT)}')
    vXF, vXS, vL16, vWA, vXA = 28, 32, 60, 62, 33
    P(f'v_lshlrev_b32 {v(vL16)}, 4, {v(vL)}')
    P(f'v_bfe_u32 {v(vT)}, {v(vL)}, 4, 1\nv_lshrrev_b32 {v(vT+2)}, 5, {v(vL)}\nv_lshl_add_u32 {v(vT)}, {v(vT)}, 1, {v(vT+2)}')
    P(f'v_lshl_add_u32 {v(vXA)}, {v(vT+1)}, 2, {v(vT)}\nv_lshlrev_b32 {v(vXA)}, 2, {v(vXA)}\nv_lshlrev_b32 {v(vWA)}, 14, {v(vT)}')
    P(f'v_and_b32 {v(vT+1)}, 15, {v(vL)}\nv_lshl_add_u32 {v(vWA)}, {v(vT+1)}, 4, {v(vWA)}')
    P(f's_sub_u32 {s(sT2)}, {s(sKK)}, 16')
    P(f's_and_b32 {s(sT0)}, {s(sT2)}, 1\ns_lshl_b32 {s(sT0)}, {s(sT0)}, 10\ns_lshl_b32 {s(sT1)}, {s(sX)}, 7\ns_add_u32 {s(sT1)}, {s(sT1)}, {s(sT0)}\ns_lshr_b32 {s(sT0)}, {s(sT2)}, 1\ns_lshl_b32 {s(sO2)}, {s(sJ)}, 7')
    P('s_waitcnt lgkmcnt(0)')
    P(f's_cmp_eq_u32 {s(sW)}, 4\ns_cbranch_scc0 L_B0')
    if cfg.b0late: P('s_setprio 3')
    P(f's_cmp_lt_u32 {s(sT2)}, 8\ns_cbranch_scc0 L_XLD')
    modtile_issue(sT0, sT1)
    P('L_XLD:')
    srd(SRD_C, pX, 1024)
    P(f'buffer_load_dwordx4 {v(vXF,4)}, {v(vL16)}, {S(SRD_C)}, 0 offen')
    P(f'buffer_load_dword {v(vXS)}, {v(vXA)}, {S(SRD_C)}, {s(sO2)} offen')
    vWQ = 128
    def wq_issue():
        srd(SRD_C, pWQ, 4 << 20)
        P(f's_lshl_b32 {s(sO2)}, {s(sJ)}, 19\ns_lshl_b32 {s(sT0)}, {s(sH)}, 8\ns_add_u32 {s(sO2)}, {s(sO2)}, {s(sT0)}')
        for i in range(16):
            P(f'buffer_load_dwordx4 {v(vWQ+4*i,4)}, {v(vWA)}, {S(SRD_C)}, {s(sO2)} offen {cfg.wpol}')
            if i < 15: P(f's_add_u32 {s(sO2)}, {s(sO2)}, {8192 if (i & 1) == 0 else 8192*7}')
    if cfg.wq0: wq_issue()
    P('L_B0:')
    if not cfg.b0late: P('s_barrier')
    P(f's_cmp_ge_u32 {s(sW)}, 4\ns_cbranch_scc1 L_CW')

    srd(SRD_K, sKP, 32 << 20)
    sTL, sRS, sTL0 = sG, sG+1, sG+2
    P(f's_mul_i32 {s(sTL0)}, {s(sH)}, {cfg.th}\ns_and_b32 {s(sTL0)}, {s(sTL0)}, 7\ns_lshl_b32 {s(sTL0)}, {s(sTL0)}, 17')
    def firsttile():
        P(f's_mov_b32 {s(sTL)}, {s(sTL0)}\ns_mov_b32 {s(sRS)}, {s(sO3)}\ns_add_u32 {s(sO1)}, {s(sO0)}, {s(sTL)}\ns_add_u32 {s(sO1)}, {s(sO1)}, {s(sRS)}')
    def nexttile():
        P(f's_add_u32 {s(sTL)}, {s(sTL)}, 0x20000\ns_and_b32 {s(sTL)}, {s(sTL)}, 0xe0000\ns_add_u32 {s(sRS)}, {s(sRS)}, {cfg.rot << 12}\ns_and_b32 {s(sRS)}, {s(sRS)}, 0x1f000\ns_add_u32 {s(sO1)}, {s(sO0)}, {s(sTL)}\ns_add_u32 {s(sO1)}, {s(sO1)}, {s(sRS)}')
    firsttile()
    P(f's_lshl_b32 {s(sT0)}, {s(sW)}, 15\ns_mov_b32 m0, {s(sT0)}\ns_mov_b32 {s(sT1)}, 0')
    stamp('L_k0')
    vV = 128
    def stream(ds, sfx):
        DK = ds[0]
        def DV(idx): return ds[0] if idx < ds[1] else ds[2]
        P(f'L_KLOOP{sfx}:')
        for i in range(4):
            if cfg.ksplit and i: P(f's_add_u32 m0, {s(sT0)}, {768*i}')
            P(f's_waitcnt vmcnt({DK-1})')
            P(f'buffer_load_dwordx4 {v(vKA+i)}, {S(SRD_K)}, {s(sO1)} offen offset:{(256 if cfg.ksplit else 1024)*i} {cfg.kpol} lds')
        if cfg.b0late: P(f's_cmp_eq_u32 {s(sT1)}, 0\ns_cbranch_scc0 L_KL2{sfx}\ns_barrier\nL_KL2{sfx}:')
        nexttile()
        P(f's_add_u32 {s(sT0)}, {s(sT0)}, 4096\ns_mov_b32 m0, {s(sT0)}\ns_add_u32 {s(sT1)}, {s(sT1)}, 1\ns_cmp_lt_u32 {s(sT1)}, 8\ns_cbranch_scc1 L_KLOOP{sfx}')
        stamp('L_kissued')
        srd(SRD_V, sVP, 32 << 20)
        firsttile()
        P(f's_lshl_b32 {s(sT0)}, {s(sW)}, 3\ns_add_u32 {s(sT0)}, {s(sT0)}, {hex(L_FLAG)}\nv_mov_b32 {v(vT)}, {s(sT0)}\nv_mov_b32 {v(vT+1)}, 1')
        for idx in range(32):
            t, i = idx >> 2, idx & 3
            P(f's_waitcnt vmcnt({DV(idx)-1})')
            if idx == DK - 1:
                P(f'ds_write_b32 {v(vT)}, {v(vT+1)}')
                stamp('L_klanded')
            P(f'buffer_load_dwordx4 {v(vV+4*idx,4)}, {v(vVA)}, {S(SRD_V)}, {s(sO1)} offen offset:{256*i} {cfg.vpol}')
            if i == 3 and t < 7: nexttile()
    if cfg.dvar:
        P(f's_getreg_b32 {s(sT2)}, hwreg(HW_REG_XCC_ID, 0, 3)')
        P(f's_bitcmp1_b32 {s(sT2)}, 2\ns_cbranch_scc1 L_STH')
        P(f's_bitcmp1_b32 {s(sT2)}, 0\ns_cbranch_scc1 L_ST1')
        stream(cfg.dvar[0], 'a'); P('s_branch L_STD\nL_ST1:')
        stream(cfg.dvar[1], 'b'); P('s_branch L_STD\nL_STH:')
        P(f's_bitcmp1_b32 {s(sT2)}, 0\ns_cbranch_scc1 L_ST3')
        stream(cfg.dvar[2], 'c'); P('s_branch L_STD\nL_ST3:')
        stream(cfg.dvar[3], 'd')
        P('L_STD:')
    elif cfg.dodd:
        P(f's_getreg_b32 {s(sT2)}, hwreg(HW_REG_XCC_ID, 0, 1)\ns_cmp_eq_u32 {s(sT2)}, 1\ns_cbranch_scc1 L_STO')
        stream(cfg.dsched, 'a'); P('s_branch L_STD\nL_STO:')
        stream(cfg.dodd, 'b')
        P('L_STD:')
    else: stream(cfg.dsched, '')
    stamp('L_vissued')
    def masks():
        P(f'v_and_b32 {v(vT)}, 1, {v(vL)}\nv_lshlrev_b32 {v(vT)}, 4, {v(vT)}\nv_mov_b32 {v(vT+1)}, 0xffff\nv_lshlrev_b32 {v(vT+1)}, {v(vT)}, {v(vT+1)}')
        P(f'v_bfe_u32 {v(vT)}, {v(vL)}, 1, 2')
        for w in range(4):
            P(f'v_cmp_eq_u32 vcc, {w}, {v(vT)}\nv_cndmask_b32 {v(vM+w)}, 0, {v(vT+1)}, vcc')
    def common_setup():
        P(f's_load_dword {s(sTAG)}, {s(sWSP,2)}, 0')
        srd(SRD_WS, sWSP, WS_BYTES)
        masks()
    masks()
    vPA, vOA, vP, vA, vD = 13, 14, 16, 48, 56
    P(f'v_lshrrev_b32 {v(vT)}, 4, {v(vL)}\nv_lshlrev_b32 {v(vT)}, 4, {v(vT)}\ns_lshl_b32 {s(sT0)}, {s(sW)}, 9\ns_add_u32 {s(sT0)}, {s(sT0)}, {hex(L_P)}\nv_add_u32 {v(vPA)}, {s(sT0)}, {v(vT)}')
    P(f's_add_u32 {s(sT0)}, {s(sT0)}, {hex(L_OP - L_P)}\nv_lshlrev_b32 {v(vT)}, 3, {v(vL)}\nv_add_u32 {v(vOA)}, {s(sT0)}, {v(vT)}')
    P('s_waitcnt lgkmcnt(0)')
    P('s_barrier')
    stamp('L_b1')
    for t in range(8): P(f'ds_read_b128 {v(vP+4*t,4)}, {v(vPA)} offset:{64*t}')
    P('s_waitcnt lgkmcnt(7)')
    afrag(vA, vP)
    for idx in range(32):
        if idx + 1 < 32:
            if (idx + 1) % 4 == 0: P(f's_waitcnt lgkmcnt({7 - (idx+1)//4})')
            afrag(vA + 4*((idx+1) & 1), vP + idx + 1)
        P(f's_waitcnt vmcnt({31-idx})')
        mfma(vD, vA + 4*(idx & 1), vV + 4*idx, first=(idx == 0))
    stamp('L_pv')
    P(f'v_permlane32_swap_b32 {v(vD)}, {v(vD+2)}\nv_permlane32_swap_b32 {v(vD+1)}, {v(vD+3)}')
    P(f'ds_write_b64 {v(vOA)}, {v(vD,2)}')
    P('s_waitcnt lgkmcnt(0)')
    P('s_barrier')
    P('s_endpgm' if not cfg.diag else 's_branch L_END')

    P('L_CW:')
    if cfg.b0late: P('s_barrier')
    if cfg.prio: P(f's_setprio {cfg.prio}')
    P(f's_cmp_eq_u32 {s(sW)}, 4\ns_cbranch_scc0 L_C123')
    vGA = 192
    common_setup()
    P('s_waitcnt lgkmcnt(0)')
    P(f's_add_u32 {s(sTAG)}, {s(sTAG)}, 1')
    if cfg.local:
        P(f's_getreg_b32 {s(sLOC)}, hwreg(HW_REG_XCC_ID, 0, 3)\ns_lshl_b32 {s(sT0)}, {s(sTAG)}, 3\ns_or_b32 {s(sLOC)}, {s(sLOC)}, {s(sT0)}')
        P(f's_lshl_b32 {s(sO3)}, {s(sH)}, 7\ns_add_u32 {s(sO3)}, {s(sO3)}, {hex(X0)}\ns_lshl_b32 {s(sT0)}, {s(sJ)}, 2\ns_add_u32 {s(sT0)}, {s(sT0)}, {s(sO3)}\nv_mov_b32 {v(vT)}, {s(sT0)}\nv_mov_b32 {v(vT+1)}, {s(sLOC)}')
        P(f's_lshl_b32 {s(sR)}, {s(sX)}, 3\ns_lshr_b32 {s(sT0)}, {s(sKK)}, 2\ns_add_u32 {s(sR)}, {s(sR)}, {s(sT0)}\ns_lshl_b32 {s(sR)}, {s(sR)}, 7\ns_add_u32 {s(sR)}, {s(sR)}, {hex(X0B)}')
        P(f's_and_b32 {s(sT0)}, {s(sKK)}, 3\ns_lshl_b32 {s(sT0)}, {s(sT0)}, 2\ns_add_u32 {s(sT0)}, {s(sT0)}, {s(sR)}\nv_writelane_b32 {v(vT)}, {s(sT0)}, 1')
        P(f's_lshl_b32 {s(sT0)}, {s(sX)}, 7\ns_lshl_b32 {s(sO2)}, {s(sKK)}, 2\ns_add_u32 {s(sT0)}, {s(sT0)}, {s(sO2)}\ns_add_u32 {s(sT0)}, {s(sT0)}, {hex(X0C)}\nv_writelane_b32 {v(vT)}, {s(sT0)}, 2')
        setexec(7)
        P(f'buffer_store_dword {v(vT+1)}, {v(vT)}, {S(SRD_WS)}, 0 offen sc1')
        setexec(ALL)
    P(f's_cmp_lt_u32 {s(sT2)}, 8\ns_cbranch_scc0 L_NOT1')
    P(f's_lshl_b32 {s(sO2)}, {s(sX)}, 3\ns_add_u32 {s(sO2)}, {s(sO2)}, {s(sT2)}\ns_lshl_b32 {s(sO2)}, {s(sO2)}, 9\ns_add_u32 {s(sO2)}, {s(sO2)}, {hex(X1)}')
    modtile_compute((18 if cfg.wq0 else 2) + cfg.local, sO2)
    if cfg.hint:
        P(f's_lshl_b32 {s(sO2)}, {s(sX)}, 9\ns_lshl_b32 {s(sT0)}, {s(sT2)}, 2\ns_add_u32 {s(sO2)}, {s(sO2)}, {s(sT0)}\ns_add_u32 {s(sO2)}, {s(sO2)}, {hex(X1F)}\nv_lshlrev_b32 {v(vT)}, 7, {v(vL)}')
        setexec(0xf)
        P(f'buffer_store_dword {v(vD0+2)}, {v(vT)}, {S(SRD_WS)}, {s(sO2)} offen sc1')
        setexec(ALL)
    stamp('C0_x1pub')
    if not cfg.wq0: wq_issue()
    P('s_branch L_T1D')
    P('L_NOT1:')
    if not cfg.wq0: wq_issue()
    P('L_T1D:')
    vx = 64
    P(f's_waitcnt vmcnt({16 + (cfg.local if cfg.wq0 else 0)})')
    for k in range(4): unpack(vx+2*k, vx+2*k+1, vXF+k)
    P(f'v_add_f32 {v(20)}, {v(vx)}, {v(vx+1)}\nv_add_f32 {v(21)}, {v(vx+2)}, {v(vx+3)}\nv_add_f32 {v(22)}, {v(vx+4)}, {v(vx+5)}\nv_add_f32 {v(23)}, {v(vx+6)}, {v(vx+7)}')
    P(f'v_add_f32 {v(20)}, {v(20)}, {v(21)}\nv_add_f32 {v(22)}, {v(22)}, {v(23)}\nv_add_f32 {v(20)}, {v(20)}, {v(22)}')
    wave_reduce('v_add_f32', [20])
    P(f'v_mul_f32 {v(20)}, {R512}, {v(20)}\nv_readlane_b32 {s(sT0)}, {v(20)}, 63')
    for k in range(8): P(f'v_subrev_f32 {v(vx+k)}, {s(sT0)}, {v(vx+k)}')
    P(f'v_mul_f32 {v(21)}, {v(vx)}, {v(vx)}')
    for k in range(1, 8): P(f'v_fmac_f32 {v(21)}, {v(vx+k)}, {v(vx+k)}')
    wave_reduce('v_add_f32', [21])
    P(f'v_mul_f32 {v(21)}, {R512}, {v(21)}')
    P(f'v_cvt_pk_bf16_f32 {v(22)}, {v(20)}, {v(21)}')
    P(f'v_and_b32 {v(21)}, 0xffff0000, {v(22)}\nv_lshlrev_b32 {v(20)}, 16, {v(22)}\nv_add_f32 {v(21)}, {EPS}, {v(21)}')
    rnd(21); P(f'v_sqrt_f32 {v(21)}, {v(21)}'); rnd(21); P(f'v_rcp_f32 {v(22)}, {v(21)}')
    P(f'v_readlane_b32 {s(sT0)}, {v(20)}, 63\nv_readlane_b32 {s(sT1)}, {v(21)}, 63\nv_readlane_b32 {s(sT2)}, {v(22)}, 63')
    vLN = 24
    unpack(vLN, vLN+1, vXS)
    for e in range(2): P(f'v_subrev_f32 {v(vLN+e)}, {s(sT0)}, {v(vLN+e)}')
    P(f'v_cvt_pk_bf16_f32 {v(20)}, {v(vLN)}, {v(vLN+1)}'); unpack(vLN, vLN+1, 20)
    for e in range(2): P(f'v_mul_f32 {v(20+e)}, {s(sT2)}, {v(vLN+e)}')
    for e in range(2): P(f'v_fma_f32 {v(vLN+e)}, -{v(20+e)}, {s(sT1)}, {v(vLN+e)}')
    for e in range(2): P(f'v_fma_f32 {v(vLN+e)}, {v(vLN+e)}, {s(sT2)}, {v(20+e)}')
    P(f'v_cvt_pk_bf16_f32 {v(20)}, {v(vLN)}, {v(vLN+1)}'); unpack(vLN, vLN+1, 20)
    P(f'v_bfe_u32 {v(vT)}, {v(vL)}, 3, 1\nv_lshlrev_b32 {v(vT)}, 9, {v(vT)}\nv_add_u32 {v(26)}, {v(vPUB)}, {v(vT)}')
    P(f's_lshl_b32 {s(sO0)}, {s(sJ)}, 12\ns_add_u32 {s(sO0)}, {s(sO0)}, {hex(X1)}')
    if cfg.hint:
        P(f's_lshl_b32 {s(sT0)}, {s(sJ)}, 2\ns_and_b32 {s(sT1)}, {s(sH)}, 3\ns_add_u32 {s(sT0)}, {s(sT0)}, {s(sT1)}\ns_lshl_b32 {s(sT0)}, {s(sT0)}, 7\ns_add_u32 {s(sT0)}, {s(sT0)}, {hex(X1F)}')
        hint_wait('h1h', sT0)
    else: P('s_waitcnt vmcnt(0)')
    if cfg.local:
        P(f's_add_u32 {s(sMASK)}, {s(sWSP)}, {s(sO3)}\ns_addc_u32 {s(sMASK+1)}, {s(sWSP+1)}, 0')
        P(f's_load_dwordx8 {s(sG,8)}, {s(sMASK,2)}, 0 glc')
        P(f's_load_dwordx4 s[8:11], {s(sWSP,2)}, {s(sR)} glc')
    stamp('C0_wq')
    if cfg.sleep1: P(f's_sleep {cfg.sleep1}')
    def issue():
        for k in range(4): P(f'buffer_load_dwordx4 {v(vGA+4*k,4)}, {v(26)}, {S(SRD_WS)}, {s(sO0)} offen offset:{1024*k} sc1')
    tagcheck_loop(issue, [vGA+4*k+2 for k in range(4)], 'h1')
    stamp('C0_h1')
    if cfg.local:
        P('s_waitcnt lgkmcnt(0)')
        P(f's_xor_b32 {s(sG)}, {s(sG)}, {s(sLOC)}')
        for k in range(1, 8): P(f's_xor_b32 {s(sG+k)}, {s(sG+k)}, {s(sLOC)}\ns_or_b32 {s(sG)}, {s(sG)}, {s(sG+k)}')
        P(f's_cselect_b32 {s(sT0)}, 0, 1')
        P(f's_xor_b32 s8, s8, {s(sLOC)}')
        for k in range(1, 4): P(f's_xor_b32 {s(8+k)}, {s(8+k)}, {s(sLOC)}\ns_or_b32 s8, s8, {s(8+k)}')
        P(f's_cselect_b32 {s(sR)}, 0, 1\ns_mov_b32 {s(sLOC)}, {s(sT0)}')
    b = vGA
    for e in range(2): P(f'v_add_f32 {v(b+e)}, {v(b+e)}, {v(b+4+e)}\nv_add_f32 {v(b+8+e)}, {v(b+8+e)}, {v(b+12+e)}')
    for e in range(2): P(f'v_add_f32 {v(b+e)}, {v(b+e)}, {v(b+8+e)}')
    P(f'v_cvt_pk_bf16_f32 {v(b+4)}, {v(b)}, {v(b+1)}\nv_mov_b32 {v(b+5)}, {v(b+4)}')
    P(f'v_mov_b32_dpp {v(b+4)}, {v(b+5)} row_ror:8 row_mask:0xf bank_mask:0xc')
    P(f'v_mov_b32_dpp {v(b+5)}, {v(b+5)} row_ror:8 row_mask:0xf bank_mask:0x3')
    unpack(b+8, b+9, b+4); unpack(b+6, b+7, b+5)
    P(f'v_add_f32 {v(b+6)}, 1.0, {v(b+6)}\nv_add_f32 {v(b+7)}, 1.0, {v(b+7)}\nv_cvt_pk_bf16_f32 {v(b+5)}, {v(b+6)}, {v(b+7)}')
    unpack(b+6, b+7, b+5)
    P(f'v_mul_f32 {v(b+6)}, {v(b+6)}, {v(vLN)}\nv_mul_f32 {v(b+7)}, {v(b+7)}, {v(vLN+1)}\nv_cvt_pk_bf16_f32 {v(b+5)}, {v(b+6)}, {v(b+7)}')
    unpack(b+6, b+7, b+5)
    P(f'v_add_f32 {v(b+6)}, {v(b+6)}, {v(b+8)}\nv_add_f32 {v(b+7)}, {v(b+7)}, {v(b+9)}')
    vH = 20
    P(f'v_cvt_pk_bf16_f32 {v(vH)}, {v(b+6)}, {v(b+6)}\nv_cvt_pk_bf16_f32 {v(vH+1)}, {v(b+7)}, {v(b+7)}')
    P(f's_lshl_b32 {s(sO1)}, {s(sH)}, 13\ns_add_u32 {s(sO1)}, {s(sO1)}, {hex(X2)}\ns_lshl_b32 {s(sO0)}, {s(sJ)}, 10\ns_add_u32 {s(sO0)}, {s(sO0)}, {s(sO1)}\ns_add_u32 {s(sO2)}, {s(sO1)}, 4096')
    chain(vD0, 16, [vWQ+4*i for i in range(16)], [(vH + (i & 1), f'row_newbcast:{i >> 1}') for i in range(16)], vAA)
    finish1(vD0)
    publish_loc(vD0, vL16, sO0)
    if cfg.hint:
        P(f's_lshl_b32 {s(sO3)}, {s(sH)}, 7\ns_add_u32 {s(sO3)}, {s(sO3)}, {hex(X2F)}\nv_mov_b32 {v(vT)}, 0\ns_lshl_b32 {s(sT0)}, {s(sJ)}, 2\ns_add_u32 {s(sT0)}, {s(sT0)}, {s(sO3)}')
        setexec(1)
        P(f'buffer_store_dword {v(vD0+2)}, {v(vT)}, {S(SRD_WS)}, {s(sT0)} offen sc1')
        setexec(ALL)
    stamp('C0_x2pub')
    P(f'v_bfe_u32 {v(vT)}, {v(vL)}, 4, 1\nv_lshrrev_b32 {v(vT+1)}, 5, {v(vL)}\nv_lshl_add_u32 {v(vT)}, {v(vT)}, 1, {v(vT+1)}\nv_and_b32 {v(vT+1)}, 15, {v(vL)}\nv_lshl_add_u32 {v(vT)}, {v(vT+1)}, 2, {v(vT)}')
    P(f'v_lshlrev_b32 {v(vT)}, 2, {v(vT)}\nv_add_u32 {v(26)}, {hex(L_Q)}, {v(vT)}')
    P(f'v_and_b32 {v(27)}, 3, {v(vL)}\nv_lshlrev_b32 {v(27)}, 3, {v(27)}\nv_add_u32 {v(27)}, {hex(L_FLAG + 4)}, {v(27)}\nv_mov_b32 {v(25)}, 1')
    if cfg.hint: hint_wait('qh', sO3)
    stamp('C0_qh')
    if cfg.sleep2: P(f's_sleep {cfg.sleep2}')
    def gather8(base_lo, base_hi):
        def issue():
            for k in range(8):
                P(f'buffer_load_dwordx4 {v(vGA+4*k,4)}, {v(vL16)}, {S(SRD_WS)}, {s(base_lo if k < 4 else base_hi)} offen offset:{1024*(k & 3)} sc1')
        return issue
    def sum8():
        for a, b2 in ((0, 1), (2, 3), (4, 5), (6, 7), (0, 2), (4, 6), (0, 4)):
            for e in (0, 1): P(f'v_add_f32 {v(vGA+4*a+e)}, {v(vGA+4*a+e)}, {v(vGA+4*b2+e)}')
    tagcheck_loop(gather8(sO1, sO2), [vGA+4*k+2 for k in range(8)], 'q')
    stamp('C0_q')
    sum8()
    P(f'v_cvt_pk_bf16_f32 {v(vT)}, {v(vGA)}, {v(vGA+1)}')
    P(f'ds_write_b32 {v(26)}, {v(vT)}')
    P(f'ds_write_b32 {v(27)}, {v(25)}')
    P('L_QKP:')
    vKR, vQ, vKB, vDQ, vS2, vE, vML = 8, 128, 144, 28, 208, 210, 216
    sM2 = sG
    P(f's_sub_u32 {s(sT2)}, {s(sW)}, 4\ns_lshl_b32 {s(sT0)}, {s(sT2)}, 3\ns_add_u32 {s(sT0)}, {s(sT0)}, {hex(L_FLAG)}\nv_mov_b32 {v(vT+2)}, {s(sT0)}')
    P(f'v_and_b32 {v(vT)}, 15, {v(vL)}\nv_lshrrev_b32 {v(vT+1)}, 4, {v(vL)}\nv_lshlrev_b32 {v(26)}, 4, {v(vT+1)}\nv_xor_b32 {v(vT+1)}, {v(vT+1)}, {v(vT)}\nv_lshlrev_b32 {v(vT+1)}, 4, {v(vT+1)}')
    if cfg.ksplit:
        P(f'v_and_b32 {v(vKR)}, 3, {v(vL)}\nv_lshlrev_b32 {v(vKR)}, 10, {v(vKR)}\nv_lshrrev_b32 {v(vT)}, 2, {v(vT)}\nv_lshl_add_u32 {v(vKR)}, {v(vT)}, 8, {v(vKR)}\nv_add_u32 {v(vKR)}, {v(vKR)}, {v(vT+1)}')
    else: P(f'v_lshl_add_u32 {v(vKR)}, {v(vT)}, 8, {v(vT+1)}')
    P(f's_lshl_b32 {s(sT0)}, {s(sT2)}, 15\nv_add_u32 {v(vKR)}, {s(sT0)}, {v(vKR)}')
    for q in range(1, 4): P(f'v_xor_b32 {v(vKR+q)}, {64*q}, {v(vKR)}')
    P(f'v_and_b32 {v(27)}, 7, {v(vL)}\nv_lshl_add_u32 {v(27)}, {v(27)}, 6, {v(26)}\nv_bfe_u32 {v(vT)}, {v(vL)}, 3, 1\nv_lshl_add_u32 {v(27)}, {v(vT)}, 3, {v(27)}')
    P(f's_lshl_b32 {s(sT0)}, {s(sT2)}, 9\ns_add_u32 {s(sT0)}, {s(sT0)}, {hex(L_P)}\nv_add_u32 {v(27)}, {s(sT0)}, {v(27)}\nv_add_u32 {v(26)}, {hex(L_Q)}, {v(26)}')
    P(f's_lshl_b32 {s(sT0)}, {s(sT2)}, 4\ns_add_u32 {s(sT0)}, {s(sT0)}, {hex(L_MS)}\nv_mov_b32 {v(25)}, {s(sT0)}\nv_mov_b32 {v(vML+2)}, 1\nv_mov_b32 {v(vML+3)}, 1')
    P(f's_mov_b32 {s(sMASK)}, 0x00010001\ns_mov_b32 {s(sMASK+1)}, 0x00010001\ns_mov_b32 {s(sM2)}, 0x01000100\ns_mov_b32 {s(sM2+1)}, 0x01000100')
    lds_wait('kq', vT+2, 2, 28, [28, 29], cfg.lsleep)
    stamp('C0_kready')
    for q in range(4): P(f'ds_read_b128 {v(vQ+4*q,4)}, {v(26)} offset:{64*q}')
    NB = 3; PD = NB - 1; NT = 8
    def kread(t, q): P(f'ds_read_b128 {v(vKB+16*(t % NB)+4*q,4)}, {v(vKR+q)} offset:{4096*t}')
    for t in range(PD):
        for q in range(4): kread(t, q)
    for t in range(NT + 1):
        u = t - 1
        for q in range(4):
            if t < NT:
                if q in (0, 2): P(f's_waitcnt lgkmcnt({min(4*PD - 2, 4*(NT - t) - 2 - q)})')
                mfma(vDQ + 4*(t & 1), vKB + 16*(t % NB) + 4*q, vQ + 4*q, first=(q == 0))
                if t + PD < NT: kread(t + PD, q)
            if t >= 1 and q >= 2:
                mk = sMASK if q == 2 else sM2
                for e in range(2):
                    P(f'v_cndmask_b32 {v(vS2+e)}, {v(vS2+e)}, {v(vDQ+4*(u & 1)+2*(q-2)+e)}, {s(mk,2)}')
        if t >= 1 and t < NT: P(f's_lshl_b64 {s(sMASK,2)}, {s(sMASK,2)}, 1\ns_lshl_b64 {s(sM2,2)}, {s(sM2,2)}, 1')
    stamp('C0_qk')
    P(f'v_cvt_pk_bf16_f32 {v(vE)}, {v(vS2)}, {v(vS2+1)}'); unpack(vS2, vS2+1, vE)
    for e in range(2): P(f'v_mul_f32 {v(vS2+e)}, {SCALE}, {v(vS2+e)}')
    P(f'v_cvt_pk_bf16_f32 {v(vE)}, {v(vS2)}, {v(vS2+1)}'); unpack(vS2, vS2+1, vE)
    P(f'v_max_f32 {v(vML)}, {v(vS2)}, {v(vS2+1)}')
    wave_reduce('v_max_f32', [vML])
    P(f'v_readlane_b32 {s(sT0)}, {v(vML)}, 63')
    for e in range(2): P(f'v_subrev_f32 {v(vE+e)}, {s(sT0)}, {v(vS2+e)}')
    for e in range(2): P(f'v_mul_f32 {v(vE+e)}, {LOG2E}, {v(vE+e)}')
    for e in range(2): P(f'v_exp_f32 {v(vE+e)}, {v(vE+e)}')
    P(f'v_add_f32 {v(vML+1)}, {v(vE)}, {v(vE+1)}')
    wave_reduce('v_add_f32', [vML+1])
    setexec(1 << 63)
    P(f'ds_write_b128 {v(25)}, {v(vML,4)}')
    setexec(ALL)
    P(f's_cmp_eq_u32 {s(sW)}, 4\ns_cbranch_scc1 L_C0ML')
    P(f's_cmp_eq_u32 {s(sW)}, 5\ns_cbranch_scc0 L_MLWAIT\ns_cmp_eq_u32 {s(sR)}, 99\ns_cbranch_scc0 L_MLWAIT')
    modtile_compute(0, sO2)
    P('L_MLWAIT:')
    P(f'v_mov_b32 {v(vT+2)}, {hex(L_ML)}')
    lds_wait('mlw', vT+2, 4, vML, [vML+2], cfg.lsleep)
    P('s_branch L_PCALC')
    P('L_C0ML:')
    P(f'v_and_b32 {v(vT+2)}, 3, {v(vL)}\nv_lshlrev_b32 {v(vT+2)}, 4, {v(vT+2)}\nv_add_u32 {v(vT+2)}, {hex(L_MS)}, {v(vT+2)}')
    P(f's_lshl_b32 {s(sO1)}, {s(sH)}, 7\ns_add_u32 {s(sO1)}, {s(sO1)}, {hex(X3)}\ns_lshl_b32 {s(sO0)}, {s(sJ)}, 4\ns_add_u32 {s(sO0)}, {s(sO0)}, {s(sO1)}')
    lds_wait('msw', vT+2, 4, 220, [222])
    P(f'v_max_f32_dpp {v(vML)}, {v(220)}, {v(220)} quad_perm:[1,0,3,2] row_mask:0xf bank_mask:0xf\nv_mov_b32 {v(vML+2)}, {s(sTAG)}\nv_mov_b32 {v(vML+3)}, {s(sTAG)}')
    P(f'v_max_f32_dpp {v(vML)}, {v(vML)}, {v(vML)} quad_perm:[2,3,0,1] row_mask:0xf bank_mask:0xf')
    P(f'v_sub_f32 {v(220)}, {v(220)}, {v(vML)}\nv_mul_f32 {v(220)}, {LOG2E}, {v(220)}\nv_exp_f32 {v(220)}, {v(220)}\nv_mov_b32 {v(vT)}, 0\nv_mul_f32 {v(vML+1)}, {v(220)}, {v(221)}')
    for mod in ('quad_perm:[1,0,3,2]', 'quad_perm:[2,3,0,1]'): P(f'v_add_f32_dpp {v(vML+1)}, {v(vML+1)}, {v(vML+1)} {mod} row_mask:0xf bank_mask:0xf')
    publish(vML, vT, sO0, 1)
    stamp('C0_x3pub')
    P(f's_add_u32 {s(sMASK)}, {s(sWSP)}, {s(sO1)}\ns_addc_u32 {s(sMASK+1)}, {s(sWSP+1)}, 0\ns_mov_b32 {s(sSPIN)}, 0')
    gl = [4 + 4*k for k in range(8)]
    P('L_MLW:')
    if cfg.sleep3: P(f's_sleep {cfg.sleep3}')
    P(f's_load_dwordx16 s[4:19], {s(sMASK,2)}, 0 glc\ns_load_dwordx16 s[20:35], {s(sMASK,2)}, 64 glc')
    P(f's_add_u32 {s(sSPIN)}, {s(sSPIN)}, 1\ns_cmp_gt_u32 {s(sSPIN)}, {cfg.spin}\ns_cbranch_scc1 L_END')
    P('s_waitcnt lgkmcnt(0)')
    P(f's_xor_b32 {s(sT0)}, {s(gl[0]+2)}, {s(sTAG)}')
    for g in gl[1:]: P(f's_xor_b32 {s(sT1)}, {s(g+2)}, {s(sTAG)}\ns_or_b32 {s(sT0)}, {s(sT0)}, {s(sT1)}')
    P('s_cbranch_scc1 L_MLW')
    stamp('C0_ml')
    vG8 = 220
    P(f'v_mov_b32 {v(vML)}, {s(gl[0])}')
    for g in gl[1:]: P(f'v_max_f32 {v(vML)}, {s(g)}, {v(vML)}')
    for k, g in enumerate(gl): P(f'v_sub_f32 {v(vG8+k)}, {s(g)}, {v(vML)}')
    for k in range(8): P(f'v_mul_f32 {v(vG8+k)}, {LOG2E}, {v(vG8+k)}')
    for k in range(8): P(f'v_exp_f32 {v(vG8+k)}, {v(vG8+k)}')
    P(f'v_mul_f32 {v(vE)}, {s(gl[0]+1)}, {v(vG8)}')
    for k, g in enumerate(gl[1:]): P(f'v_fmac_f32 {v(vE)}, {s(g+1)}, {v(vG8+k+1)}')
    P(f'v_rcp_f32 {v(vE+1)}, {v(vE)}\nv_mov_b32 {v(vT+2)}, {hex(L_ML)}\nv_mov_b32 {v(vML+2)}, 1')
    P(f'v_fma_f32 {v(vE)}, -{v(vE)}, {v(vE+1)}, 1.0\nv_fma_f32 {v(vML+1)}, {v(vE)}, {v(vE+1)}, {v(vE+1)}')
    setexec(1)
    P(f'ds_write_b128 {v(vT+2)}, {v(vML,4)}')
    setexec(ALL)
    P('L_PCALC:')
    for e in range(2): P(f'v_sub_f32 {v(vE+e)}, {v(vS2+e)}, {v(vML)}')
    for e in range(2): P(f'v_mul_f32 {v(vE+e)}, {LOG2E}, {v(vE+e)}')
    for e in range(2): P(f'v_exp_f32 {v(vE+e)}, {v(vE+e)}')
    for e in range(2): P(f'v_mul_f32 {v(vE+e)}, {v(vE+e)}, {v(vML+1)}')
    for e in range(2): P(f'v_cvt_pk_bf16_f32 {v(vE+e)}, {v(vE+e)}, {v(vE+e)}')
    P(f'ds_write_b64 {v(27)}, {v(vE,2)}')
    srd(SRD_WS, sWSP, WS_BYTES)
    P(f's_cmp_eq_u32 {s(sW)}, 4\ns_cbranch_scc1 L_C0B1')
    P('s_waitcnt lgkmcnt(0)')
    P('s_barrier')
    P(f's_cmp_eq_u32 {s(sW)}, 5\ns_cbranch_scc1 L_C1B1')
    P('s_branch L_C23B1')
    P('L_C0B1:')
    srd(SRD_A, pWO, 4 << 20)
    P(f'v_bfe_u32 {v(vT)}, {v(vL)}, 3, 1\nv_lshlrev_b32 {v(vT)}, 16, {v(vT)}\nv_bfe_u32 {v(vT+1)}, {v(vL)}, 4, 1\nv_lshl_add_u32 {v(vT)}, {v(vT+1)}, 12, {v(vT)}\nv_lshrrev_b32 {v(vT+1)}, 5, {v(vL)}\nv_lshl_add_u32 {v(vT)}, {v(vT+1)}, 11, {v(vT)}')
    P(f'v_and_b32 {v(vT+1)}, 7, {v(vL)}\nv_lshl_add_u32 {v(vWA)}, {v(vT+1)}, 4, {v(vT)}')
    P(f's_lshl_b32 {s(sO0)}, {s(sH)}, 17\ns_lshl_b32 {s(sT0)}, {s(sJ)}, 7\ns_add_u32 {s(sO0)}, {s(sO0)}, {s(sT0)}')
    P('s_waitcnt lgkmcnt(0)')
    stamp('C0_p')
    P('s_barrier')
    vWO = 64
    def wo_issue(sreg):
        for i in range(16):
            P(f'buffer_load_dwordx4 {v(vWO+4*i,4)}, {v(vWA)}, {S(SRD_A)}, {s(sreg)} offen offset:{1024*(i & 1)} {cfg.wpol}')
            if (i & 1) == 1 and i < 15: P(f's_add_u32 {s(sreg)}, {s(sreg)}, 8192')
    if not cfg.wob2: wo_issue(sO0)
    else: P(f's_mov_b32 {s(sG)}, {s(sO0)}')
    P(f'v_lshrrev_b32 {v(vT+2)}, 1, {v(vL16)}\nv_add_u32 {v(vT+2)}, {hex(L_OP)}, {v(vT+2)}')
    P(f's_lshl_b32 {s(sO1)}, {s(sH)}, 13\ns_add_u32 {s(sO1)}, {s(sO1)}, {hex(XA)}\ns_lshl_b32 {s(sO0)}, {s(sJ)}, 10\ns_add_u32 {s(sO0)}, {s(sO0)}, {s(sO1)}\ns_add_u32 {s(sO2)}, {s(sO1)}, 4096')
    P(f's_lshl_b32 {s(sO3)}, {s(sJ)}, 5\ns_add_u32 {s(sO3)}, {s(sO3)}, {s(sH)}\ns_lshl_b32 {s(sO3)}, {s(sO3)}, 9\ns_add_u32 {s(sO3)}, {s(sO3)}, {hex(XB)}')
    P(f'v_mov_b32 {v(22)}, {s(sTAG)}')
    vAP, vDNA, vCA, vEA, vXBA = 8, 10, 11, 12, 13
    P(f'v_mov_b32 {v(14)}, {hex(L_FLAG + 160)}')
    P(f'v_bfe_u32 {v(vT)}, {v(vL)}, 3, 1\nv_lshl_add_u32 {v(vXBA)}, {v(vT)}, 17, {v(vPUB)}')
    sQ, sW2, sDN, sEP, sEG, sDP, sC0 = 4, 6, 8, 9, 10, 11, 12
    P(f's_sub_u32 {s(sT0)}, {s(sKK)}, 8\ns_cmp_lt_u32 {s(sKK)}, 8\ns_cselect_b32 {s(sT1)}, {s(sKK)}, {s(sT0)}\ns_and_b32 {s(sQ)}, {s(sT1)}, 3\ns_lshr_b32 {s(sT1)}, {s(sT1)}, 2')
    P(f's_mul_i32 {s(sIM)}, {s(sX)}, 6\ns_add_u32 {s(sIM)}, {s(sIM)}, {s(sT1)}\ns_cmp_lt_u32 {s(sT0)}, 8\ns_cselect_b32 {s(sIM)}, 255, {s(sIM)}')
    srd(SRD_B, pW2, 1376*1024)
    P(f'v_lshrrev_b32 {v(vT)}, 3, {v(vL)}\nv_mul_u32_u24 {v(vT)}, {16*2752}, {v(vT)}\nv_and_b32 {v(vT+1)}, 3, {v(vL)}\nv_lshl_add_u32 {v(vT)}, {v(vT+1)}, 4, {v(vT)}')
    P(f's_mul_i32 {s(sT0)}, {s(sQ)}, {128*2752}\ns_min_u32 {s(sT1)}, {s(sIM)}, {NM-1}\ns_lshl_b32 {s(sT1)}, {s(sT1)}, 6\ns_add_u32 {s(sT0)}, {s(sT0)}, {s(sT1)}\nv_add_u32 {v(vT)}, {s(sT0)}, {v(vT)}')
    P(f's_mov_b32 {s(sMASK)}, 0xf0f0f0f0\ns_mov_b32 {s(sMASK+1)}, 0xf0f0f0f0\ns_mov_b32 {s(sW2)}, 2752*2\ns_mov_b32 {s(sW2+1)}, 0')
    P(f'v_mov_b32 {v(vAP)}, {s(pW1)}\nv_mov_b32 {v(vAP+1)}, {s(pW1+1)}\nv_mov_b32 {v(vT+1)}, {s(pW3)}\nv_mov_b32 {v(vCA)}, {s(pW3+1)}')
    P(f'v_cndmask_b32 {v(vAP)}, {v(vAP)}, {v(vT+1)}, {s(sMASK,2)}\nv_cndmask_b32 {v(vAP+1)}, {v(vAP+1)}, {v(vCA)}, {s(sMASK,2)}')
    P(f'v_add_co_u32 {v(vAP)}, vcc, {v(vAP)}, {v(vT)}\nv_addc_co_u32 {v(vAP+1)}, vcc, 0, {v(vAP+1)}, vcc')
    P(f'v_bfe_u32 {v(vT)}, {v(vL)}, 4, 1\nv_lshlrev_b32 {v(vDNA)}, 12, {v(vT)}\nv_lshrrev_b32 {v(vT)}, 5, {v(vL)}\nv_lshl_add_u32 {v(vDNA)}, {v(vT)}, 11, {v(vDNA)}\nv_and_b32 {v(vT)}, 15, {v(vL)}\nv_lshl_add_u32 {v(vDNA)}, {v(vT)}, 4, {v(vDNA)}')
    P(f's_lshl_b32 {s(sDN)}, {s(sIM)}, 15\ns_lshl_b32 {s(sT0)}, {s(sQ)}, 8\ns_add_u32 {s(sDN)}, {s(sDN)}, {s(sT0)}')
    P(f's_lshl_b32 {s(sEG)}, {s(sIM)}, 11\ns_add_u32 {s(sEG)}, {s(sEG)}, {hex(XE)}\ns_lshl_b32 {s(sT0)}, {s(sQ)}, 9\ns_add_u32 {s(sEP)}, {s(sEG)}, {s(sT0)}')
    P(f's_lshl_b32 {s(sDP)}, {s(sIM)}, 12\ns_lshl_b32 {s(sT0)}, {s(sQ)}, 10\ns_add_u32 {s(sDP)}, {s(sDP)}, {s(sT0)}\ns_add_u32 {s(sDP)}, {s(sDP)}, {hex(XD)}')
    P(f's_lshl_b32 {s(sT1)}, {s(sX)}, 12\ns_add_u32 {s(sT1)}, {s(sT1)}, {hex(XC)}')
    for k in range(4): P(f's_add_u32 {s(sT0)}, {s(sQ)}, {k}\ns_and_b32 {s(sT0)}, {s(sT0)}, 3\ns_lshl_b32 {s(sT0)}, {s(sT0)}, 10\ns_add_u32 {s(sC0+k)}, {s(sT0)}, {s(sT1)}')
    P(f'v_lshrrev_b32 {v(vT)}, 5, {v(vL)}\nv_lshlrev_b32 {v(vCA)}, 9, {v(vT)}\nv_bfe_u32 {v(vT)}, {v(vL)}, 1, 1\nv_lshl_add_u32 {v(vCA)}, {v(vT)}, 7, {v(vCA)}\nv_and_b32 {v(vT)}, 1, {v(vL)}\nv_lshl_add_u32 {v(vCA)}, {v(vT)}, 8, {v(vCA)}')
    P(f'v_bfe_u32 {v(vT)}, {v(vL)}, 2, 3\nv_lshl_add_u32 {v(vCA)}, {v(vT)}, 4, {v(vCA)}')
    P(f'v_bfe_u32 {v(vT)}, {v(vL)}, 3, 1\nv_lshlrev_b32 {v(vT)}, 9, {v(vT)}\nv_add_u32 {v(vEA)}, {v(vPUB)}, {v(vT)}')
    P('s_barrier')
    stamp('C0_b2')
    for w in range(4): P(f'ds_read_b64 {v(24+2*w,2)}, {v(vT+2)} offset:{512*w}')
    P('s_waitcnt lgkmcnt(2)')
    for e in range(2): P(f'v_add_f32 {v(24+e)}, {v(24+e)}, {v(26+e)}')
    P('s_waitcnt lgkmcnt(0)')
    for e in range(2): P(f'v_add_f32 {v(28+e)}, {v(28+e)}, {v(30+e)}')
    for e in range(2): P(f'v_add_f32 {v(20+e)}, {v(24+e)}, {v(28+e)}')
    publish_loc(20, vL16, sO0)
    stamp('C0_xapub')
    if cfg.wob2 == 1: wo_issue(sG)
    vOd = 40
    def issue(b):
        for k in range(0, 8, 2 if cfg.fakehalf & 2 else 1):
            P(f'buffer_load_dwordx4 {v(b+4*k,4)}, {v(vL16)}, {S(SRD_WS)}, {s(sO1 if k < 4 else sO2)} offen offset:{1024*(k & 3)} sc1')
    def done(b):
        for a, b2 in ((0, 1), (2, 3), (4, 5), (6, 7), (0, 2), (4, 6), (0, 4)):
            for e in (0, 1): P(f'v_add_f32 {v(b+4*a+e)}, {v(b+4*a+e)}, {v(b+4*b2+e)}')
        P(f'v_cvt_pk_bf16_f32 {v(vOd)}, {v(b)}, {v(b)}\nv_cvt_pk_bf16_f32 {v(vOd+1)}, {v(b+1)}, {v(b+1)}')
    poll('xa', issue, 8, 128, 32, [4*k+2 for k in range(0, 8, 2 if cfg.fakehalf & 2 else 1)], done)
    stamp('C0_xa')
    lohi(vOd)
    chain(vD0, 16, [vWO+4*i for i in range(16)], lohi_srcs(vOd), vAA)
    finish2(vD0)
    if cfg.xbrep:
        for e in range(2): P(f'v_mov_b32_dpp {v(vD0+e)}, {v(vD0+e)} row_ror:8 row_mask:0xf bank_mask:0xc')
        for i in range(4):
            P(f'buffer_store_dwordx4 {v(vD0,4)}, {v(vXBA)}, {S(SRD_WS)}, {s(sO3)} offen sc1')
            if i < 3: P(f's_add_u32 {s(sO3)}, {s(sO3)}, 0x40000')
    else: publish(vD0, vPUB, sO3, M2SET)
    if cfg.rwait: P(f'ds_write_b32 {v(14)}, {v(14)}')
    stamp('C0_xbpub')
    P(f's_cmp_lt_u32 {s(sIM)}, {NM}\ns_cbranch_scc0 L_END')
    vUP, vDN, vCG, vEG = 128, 192, 64, 80
    for i in range(16):
        P(f'global_load_dwordx4 {v(vUP+4*i,4)}, {v(vAP,2)}, off offset:{2752*(i & 1)} {cfg.uppol}')
        if i & 1 and i < 15: P(f'v_lshl_add_u64 {v(vAP,2)}, {v(vAP,2)}, 0, {s(sW2,2)}')
    def dn_issue():
        for i in range(8):
            P(f'buffer_load_dwordx4 {v(vDN+4*i,4)}, {v(vDNA)}, {S(SRD_B)}, {s(sDN)} offen offset:{1024*(i & 1)} {cfg.wpol}')
            if i & 1 and i < 7: P(f's_add_u32 {s(sDN)}, {s(sDN)}, 8192')
    if not cfg.dnlate: dn_issue()
    if cfg.diag and 'M_w' in cfg.diag:
        P('s_waitcnt vmcnt(0)'); stamp('M_w')
    vx, vcb, vsb = 88, 24, 26
    def issue(b):
        for k in range(4): P(f'buffer_load_dwordx4 {v(b+4*k,4)}, {v(vCA)}, {S(SRD_WS)}, {s(sC0+k)} offen sc1')
    def done(b):
        for k in range(4): unpack(vx+2*k, vx+2*k+1, b+4*k)
        unpack(vcb, vcb+1, b+1); unpack(vsb, vsb+1, b+2)
    poll('xc', issue, 4, 64 if cfg.pipe.get('xc', 1) == 1 else 104, 16 if cfg.pipe.get('xc', 1) != 2 else -40, [4*k+3 for k in range(4)], done)
    stamp('M_xc')
    if cfg.dnlate == 1: dn_issue()
    P(f'v_readfirstlane_b32 {s(sT0)}, {v(vx)}')
    for k in range(8): P(f'v_subrev_f32 {v(96+k)}, {s(sT0)}, {v(vx+k)}')
    P(f'v_pk_add_f32 {v(20,2)}, {v(96,2)}, {v(98,2)}\nv_pk_add_f32 {v(22,2)}, {v(100,2)}, {v(102,2)}\nv_pk_mul_f32 {v(28,2)}, {v(96,2)}, {v(96,2)}\nv_pk_mul_f32 {v(30,2)}, {v(100,2)}, {v(100,2)}')
    P(f'v_pk_add_f32 {v(20,2)}, {v(20,2)}, {v(22,2)}\nv_pk_fma_f32 {v(28,2)}, {v(98,2)}, {v(98,2)}, {v(28,2)}\nv_pk_fma_f32 {v(30,2)}, {v(102,2)}, {v(102,2)}, {v(30,2)}')
    P(f'v_add_f32 {v(22)}, {v(20)}, {v(21)}\nv_pk_add_f32 {v(28,2)}, {v(28,2)}, {v(30,2)}\nv_add_f32 {v(23)}, {v(28)}, {v(29)}')
    for mod in ('quad_perm:[1,0,3,2]', 'quad_perm:[2,3,0,1]', 'row_ror:4', 'row_ror:8'):
        for r in (22, 23): P(f'v_add_f32_dpp {v(r)}, {v(r)}, {v(r)} {mod} row_mask:0xf bank_mask:0xf')
    P(f'v_permlane16_swap_b32 {v(22)}, {v(23)}\nv_add_f32 {v(22)}, {v(22)}, {v(23)}\nv_mov_b32 {v(23)}, {v(22)}')
    P(f'v_permlane32_swap_b32 {v(22)}, {v(23)}\nv_add_f32 {v(22)}, {v(22)}, {v(23)}\nv_mul_f32 {v(22)}, {R512}, {v(22)}')
    P(f'v_readlane_b32 {s(sT1)}, {v(22)}, 0\nv_readlane_b32 {s(sT2)}, {v(22)}, 16')
    P(f'v_mov_b32 {v(22)}, {s(sT1)}\nv_mov_b32 {v(23)}, {s(sT2)}')
    P(f'v_fma_f32 {v(23)}, -{v(22)}, {v(22)}, {v(23)}\nv_add_f32 {v(22)}, {s(sT0)}, {v(22)}\nv_max_f32 {v(23)}, 0, {v(23)}')
    P(f'v_cvt_pk_bf16_f32 {v(22)}, {v(22)}, {v(23)}')
    P(f'v_and_b32 {v(23)}, 0xffff0000, {v(22)}\nv_lshlrev_b32 {v(22)}, 16, {v(22)}\nv_add_f32 {v(23)}, {EPS}, {v(23)}')
    P(f'v_sub_f32 {v(20)}, {v(vx)}, {v(22)}\nv_sub_f32 {v(21)}, {v(vx+1)}, {v(22)}')
    P(f'v_cvt_pk_bf16_f32 {v(23)}, {v(23)}, {v(23)}\nv_cvt_pk_bf16_f32 {v(20)}, {v(20)}, {v(21)}\nv_and_b32 {v(23)}, 0xffff0000, {v(23)}\nv_sqrt_f32 {v(23)}, {v(23)}')
    unpack(vx, vx+1, 20)
    P(f'v_cvt_pk_bf16_f32 {v(23)}, {v(23)}, {v(23)}\nv_and_b32 {v(23)}, 0xffff0000, {v(23)}\nv_rcp_f32 {v(22)}, {v(23)}')
    P(f'v_mul_f32 {v(20)}, {v(vx)}, {v(22)}\nv_mul_f32 {v(21)}, {v(vx+1)}, {v(22)}')
    P(f'v_fma_f32 {v(vx)}, -{v(20)}, {v(23)}, {v(vx)}\nv_fma_f32 {v(vx+1)}, -{v(21)}, {v(23)}, {v(vx+1)}')
    P(f'v_fma_f32 {v(20)}, {v(vx)}, {v(22)}, {v(20)}\nv_fma_f32 {v(21)}, {v(vx+1)}, {v(22)}, {v(21)}')
    P(f'v_cvt_pk_bf16_f32 {v(20)}, {v(20)}, {v(21)}')
    unpack(vx, vx+1, 20)
    P(f'v_mul_f32 {v(vx)}, {v(vx)}, {v(vcb)}\nv_mul_f32 {v(vx+1)}, {v(vx+1)}, {v(vcb+1)}\nv_cvt_pk_bf16_f32 {v(20)}, {v(vx)}, {v(vx+1)}')
    unpack(vx, vx+1, 20)
    P(f'v_add_f32 {v(vx)}, {v(vx)}, {v(vsb)}\nv_add_f32 {v(vx+1)}, {v(vx+1)}, {v(vsb+1)}')
    P(f'v_cvt_pk_bf16_f32 {v(vOd)}, {v(vx)}, {v(vx)}\nv_cvt_pk_bf16_f32 {v(vOd+1)}, {v(vx+1)}, {v(vx+1)}')
    lohi(vOd)
    stamp('M_h2')
    if cfg.dnlate == 2: dn_issue()
    chain(vD0, 16, [vUP+4*i for i in range(16)], lohi_srcs(vOd), vAA)
    finish2(vD0)
    publish_loc(vD0, vPUB, sEP, M2SET, sR)
    stamp('M_up')
    def issue(b):
        for k in range(2): P(f'buffer_load_dwordx4 {v(b+4*k,4)}, {v(vEA)}, {S(SRD_WS)}, {s(sEG)} offen offset:{1024*k} sc1')
    def done(b):
        for e in range(2): P(f'v_add_f32 {v(20+e)}, {v(b+e)}, {v(b+4+e)}')
    poll('xe', issue, 2, 128, 8, [2, 6], done)
    stamp('M_xe')
    for e in range(2): P(f'v_add_f32_dpp {v(20+e)}, {v(20+e)}, {v(20+e)} row_ror:8 row_mask:0xf bank_mask:0xf')
    P(f'v_cvt_pk_bf16_f32 {v(22)}, {v(20)}, {v(21)}')
    unpack(20, 21, 22)
    P(f'v_mov_b32_dpp {v(24)}, {v(22)} row_shl:4 row_mask:0xf bank_mask:0xf')
    silu_multi([20, 21], [22, 23])
    unpack(26, 27, 24)
    P(f'v_cvt_pk_bf16_f32 {v(22)}, {v(20)}, {v(21)}')
    unpack(20, 21, 22)
    P(f'v_mul_f32 {v(20)}, {v(20)}, {v(26)}\nv_mul_f32 {v(21)}, {v(21)}, {v(27)}')
    for e in range(2): P(f'v_cvt_pk_bf16_f32 {v(20+e)}, {v(20+e)}, {v(20+e)}')
    stamp('M_act')
    chain(vD0, 8, [vDN+4*i for i in range(8)], [(20 + (i & 1), f'row_newbcast:{i >> 1}') for i in range(8)], vAA)
    finish1(vD0)
    publish(vD0, vL16, sDP)
    stamp('M_end')
    P('s_branch L_END')

    P('L_C123:')
    common_setup()
    P(f's_cmp_eq_u32 {s(sW)}, 5\ns_cbranch_scc1 L_C1')
    P(f's_cmp_eq_u32 {s(sW)}, 6\ns_cbranch_scc0 L_C3')
    P(f's_getpc_b64 {s(20,2)}')
    P('L_PCREF:')
    P(f's_sub_u32 s20, s20, L_PCREF-{NAME}_kernel\ns_subb_u32 s21, s21, 0')
    P(f's_lshl_b32 {s(sT0)}, {s(sKK)}, 3\nv_and_b32 {v(vT)}, 7, {v(vL)}\nv_add_u32 {v(vT)}, {s(sT0)}, {v(vT)}\nv_lshlrev_b32 {v(vT)}, 7, {v(vT)}')
    P(f'v_min_u32 {v(vT)}, L_CODE_END-{NAME}_kernel-4, {v(vT)}')
    if cfg.cpf: P(f'global_load_dword {v(240)}, {v(vT)}, s[20:21]')
    P('L_C3:')
    P('s_waitcnt lgkmcnt(0)')
    P(f's_add_u32 {s(sTAG)}, {s(sTAG)}, 1')
    P('s_branch L_QKP')
    P('L_C23B1:')
    P('s_barrier')
    P('s_branch L_END')

    P('L_C1:')
    P('s_waitcnt lgkmcnt(0)')
    P(f's_add_u32 {s(sTAG)}, {s(sTAG)}, 1')
    P(f's_mov_b32 {s(sR)}, 0\ns_sub_u32 {s(sT0)}, {s(sKK)}, 8\ns_cmp_lt_u32 {s(sT0)}, 16\ns_cbranch_scc1 L_QKP')
    P(f'v_mov_b32 {v(vT+2)}, {hex(L_FLAG + 8)}')
    lds_wait('k1', vT+2, 1, 28, [28], 8)
    P(f's_and_b32 {s(sT0)}, {s(sKK)}, 7\ns_lshr_b32 {s(sT1)}, {s(sKK)}, 4\ns_lshl_b32 {s(sT1)}, {s(sT1)}, 3\ns_add_u32 {s(sT0)}, {s(sT0)}, {s(sT1)}')
    P(f's_lshl_b32 {s(sT0)}, {s(sT0)}, 3\ns_add_u32 {s(sT0)}, {s(sT0)}, {s(sX)}\ns_and_b32 {s(sT1)}, {s(sT0)}, 31\ns_lshr_b32 {s(sT0)}, {s(sT0)}, 5')
    P(f's_lshl_b32 {s(sO2)}, {s(sT1)}, 2\ns_add_u32 {s(sO2)}, {s(sO2)}, {s(sT0)}\ns_lshl_b32 {s(sO2)}, {s(sO2)}, 9\ns_add_u32 {s(sO2)}, {s(sO2)}, {hex(X4)}')
    P(f's_lshl_b32 {s(sT1)}, {s(sT1)}, 7\ns_add_u32 {s(sT1)}, {s(sT1)}, 2048')
    modtile_issue(sT0, sT1)
    P(f's_mov_b32 {s(sR)}, 99\ns_branch L_QKP')
    P('L_C1B1:')
    P(f's_sub_u32 {s(sT0)}, {s(sKK)}, 8\ns_cmp_lt_u32 {s(sT0)}, 8\ns_cbranch_scc1 L_RED')
    P('s_barrier')
    P('s_branch L_END')
    P('L_RED:')
    vg = 64
    vXv, vGAv, vGBv, vU16, vDA, vXC, vL16r, vBP = 12, 13, 14, 15, 17, 20, 16, 18
    sJJ = sG
    P(f's_mov_b32 {s(sJJ)}, {s(sT0)}\ns_lshl_b32 {s(sR)}, {s(sX)}, 3\ns_add_u32 {s(sR)}, {s(sR)}, {s(sT0)}')
    if cfg.local:
        P(f's_lshl_b32 {s(sT1)}, {s(sX)}, 7\ns_add_u32 {s(sT1)}, {s(sT1)}, {hex(X0C)}\ns_add_u32 {s(sMASK)}, {s(sWSP)}, {s(sT1)}\ns_addc_u32 {s(sMASK+1)}, {s(sWSP+1)}, 0')
        P(f's_load_dwordx16 s[4:19], {s(sMASK,2)}, 0 glc\ns_load_dwordx16 s[20:35], {s(sMASK,2)}, 64 glc')
        P(f's_getreg_b32 {s(sLOC)}, hwreg(HW_REG_XCC_ID, 0, 3)\ns_lshl_b32 {s(sT1)}, {s(sTAG)}, 3\ns_or_b32 {s(sLOC)}, {s(sLOC)}, {s(sT1)}')
    P(f'v_lshlrev_b32 {v(vL16r)}, 4, {v(vL)}\nv_and_b32 {v(vU16)}, 3, {v(vL)}\nv_lshlrev_b32 {v(vU16)}, 4, {v(vU16)}')
    P(f'v_and_b32 {v(vT)}, 7, {v(vL)}\nv_lshlrev_b32 {v(vT)}, 4, {v(vT)}\nv_bfe_u32 {v(vT+1)}, {v(vL)}, 3, 1\nv_lshl_add_u32 {v(vT)}, {v(vT+1)}, 3, {v(vT)}\nv_bfe_u32 {v(vT+1)}, {v(vL)}, 4, 1\nv_lshl_add_u32 {v(vT)}, {v(vT+1)}, 2, {v(vT)}\nv_lshrrev_b32 {v(vT+1)}, 5, {v(vL)}\nv_lshl_add_u32 {v(vT+2)}, {v(vT+1)}, 1, {v(vT)}')
    P(f'v_bfe_u32 {v(vT)}, {v(vL)}, 4, 1\nv_lshlrev_b32 {v(vT)}, 7, {v(vT)}\nv_lshrrev_b32 {v(vT+1)}, 2, {v(vU16)}\nv_add_u32 {v(vBP)}, {v(vT)}, {v(vT+1)}\ns_lshl_b32 {s(sT1)}, {s(sX)}, 4\nv_add_u32 {v(vBP)}, {s(sT1)}, {v(vBP)}')
    P(f'v_lshrrev_b32 {v(vT)}, 2, {v(vL)}\nv_lshl_add_u32 {v(vDA)}, {v(vT)}, 12, {v(vU16)}')
    if cfg.local:
        P('s_waitcnt lgkmcnt(0)')
        P(f's_xor_b32 s4, s4, {s(sLOC)}')
        for k in range(5, 36): P(f's_xor_b32 {s(k)}, {s(k)}, {s(sLOC)}\ns_or_b32 s4, s4, {s(k)}')
        P(f's_cselect_b32 {s(sLOC)}, 0, 1')
        srd(SRD_WS, sWSP, WS_BYTES)
    srd(SRD_A, pX, 1024); srd(SRD_B, pOUT, 1024)
    P(f's_lshl_b32 {s(sT1)}, {s(sJJ)}, 7')
    P(f'buffer_load_ushort {v(vXv)}, {v(vT+2)}, {S(SRD_A)}, {s(sT1)} offen')
    P(f's_and_b32 {s(sT2)}, {s(sX)}, 1\ns_lshl_b32 {s(sT2)}, {s(sT2)}, 6\ns_add_u32 {s(sT1)}, {s(sT1)}, {s(sT2)}\ns_and_b32 {s(sT2)}, {s(sX)}, 2\ns_lshl_b32 {s(sT2)}, {s(sT2)}, 2\ns_add_u32 {s(sT1)}, {s(sT1)}, {s(sT2)}\ns_and_b32 {s(sT2)}, {s(sX)}, 4\ns_add_u32 {s(sG+2)}, {s(sT1)}, {s(sT2)}')
    sP = 4
    for p_ in range(4): P(f's_lshl_b32 {s(sP+p_)}, {s(sJJ)}, 11\ns_add_u32 {s(sP+p_)}, {s(sP+p_)}, {hex(X4 + p_*16384)}')
    P(f's_lshl_b32 {s(sO0)}, {s(sJJ)}, 14\ns_add_u32 {s(sO0)}, {s(sO0)}, {hex(XB)}')
    if cfg.xbrep: P(f's_lshl_b32 {s(sT1)}, {s(sX)}, 17\ns_add_u32 {s(sO0)}, {s(sO0)}, {s(sT1)}')
    sB4 = 12
    for k in range(4): P(f's_add_u32 {s(sB4+k)}, {s(sO0)}, {4096*k}')
    P(f's_lshl_b32 {s(sO3)}, {s(sX)}, 12\ns_lshl_b32 {s(sT1)}, {s(sJJ)}, 9\ns_add_u32 {s(sO3)}, {s(sO3)}, {s(sT1)}\ns_add_u32 {s(sO3)}, {s(sO3)}, {hex(XC)}')
    P(f's_lshr_b32 {s(sO2)}, {s(sJJ)}, 1\ns_lshl_b32 {s(sO2)}, {s(sO2)}, 10\ns_and_b32 {s(sT1)}, {s(sJJ)}, 1\ns_lshl_b32 {s(sT1)}, {s(sT1)}, 7\ns_add_u32 {s(sO2)}, {s(sO2)}, {s(sT1)}')
    P(f's_and_b32 {s(sT1)}, {s(sX)}, 1\ns_lshl_b32 {s(sT1)}, {s(sT1)}, 6\ns_add_u32 {s(sO2)}, {s(sO2)}, {s(sT1)}\ns_lshr_b32 {s(sT1)}, {s(sX)}, 1\ns_lshl_b32 {s(sT1)}, {s(sT1)}, 8\ns_add_u32 {s(sO2)}, {s(sO2)}, {s(sT1)}\ns_add_u32 {s(sO2)}, {s(sO2)}, {hex(XD)}')
    sD = 8
    for k in range(3): P(f's_add_u32 {s(sD+k)}, {s(sO2)}, {hex(65536*k)}')
    for i in range(cfg.pipe.get('xd', 1)):
        for k in range(3): P(f'v_mov_b32 {v(192+12*i+8+k)}, {s(sTAG) if k == 2 else 0}')
    def xb_issue(b):
        for k in range(0, 16, 2 if cfg.fakehalf & 1 else 1): P(f'buffer_load_dwordx4 {v(b+4*k,4)}, {v(vL16r)}, {S(SRD_WS)}, {s(sB4 + (k >> 2))} offen offset:{1024*(k & 3)} sc1')
    def issue():
        for k in range(8): P(f'buffer_load_dwordx4 {v(vg+4*k,4)}, {v(vL16r)}, {S(SRD_WS)}, {s(sP + (k >> 1))} offen offset:{1024*(k & 1)} sc1')
    def rw(name):
        P(f'v_mov_b32 {v(vT+2)}, {hex(L_FLAG + 160)}')
        lds_wait(name, vT+2, 1, 28, [28], cfg.lsleep)
    if cfg.rwait == 3:
        issue()
        P('s_barrier')
        stamp('R_b2')
        P(f's_mov_b32 {s(sT2)}, 0\ns_branch L_X4CHK\nL_X4RETRY:')
        rw('rw0')
        issue()
        P(f's_add_u32 {s(sT2)}, {s(sT2)}, 1\ns_cmp_gt_u32 {s(sT2)}, {cfg.spin}\ns_cbranch_scc1 L_END\nL_X4CHK:')
        P('s_waitcnt vmcnt(0)')
        tr = [vg+4*k+2 for k in range(8)]
        P(f'v_xor_b32 {v(vT)}, {s(sTAG)}, {v(tr[0])}\nv_xor_b32 {v(vT+1)}, {s(sTAG)}, {v(tr[1])}')
        for k, r in enumerate(tr[2:]): P(f'v_bitop3_b32 {v(vT + (k & 1))}, {v(r)}, {s(sTAG)}, {v(vT + (k & 1))} bitop3:{TAGX}')
        P(f'v_or_b32 {v(vT)}, {v(vT)}, {v(vT+1)}\nv_cmp_ne_u32 vcc, 0, {v(vT)}\ns_cbranch_vccnz L_X4RETRY')
    else:
        P('s_barrier')
        stamp('R_b2')
        if cfg.rwait: rw('rw')
        tagcheck_loop(issue, [vg+4*k+2 for k in range(8)], 'x4', after=(lambda: xb_issue(128)) if cfg.rwait == 2 else None, nafter=16)
    for p_ in range(4):
        for e in range(2): P(f'v_add_f32 {v(vg+8*p_+e)}, {v(vg+8*p_+e)}, {v(vg+8*p_+4+e)}')
    for p_ in range(4): P(f'v_permlane32_swap_b32 {v(vg+8*p_)}, {v(vg+8*p_+1)}')
    for p_ in range(4): P(f'v_add_f32 {v(vg+8*p_)}, {v(vg+8*p_)}, {v(vg+8*p_+1)}')
    for p_ in range(4): rnd(vg+8*p_)
    P(f'v_mov_b32 {v(vGAv)}, {v(vg)}\nv_add_f32 {v(vg+16)}, 1.0, {v(vg+16)}\nv_mov_b32 {v(vg+9)}, {v(vg+8)}\nv_mov_b32 {v(vg+17)}, {v(vg+16)}')
    P(f'ds_bpermute_b32 {v(vGBv)}, {v(vBP)}, {v(vg+24)}')
    P(f'v_permlane32_swap_b32 {v(vg+8)}, {v(vg+9)}\nv_permlane32_swap_b32 {v(vg+16)}, {v(vg+17)}')
    P(f'v_cvt_pk_bf16_f32 {v(vXC+2)}, {v(vg+8)}, {v(vg+9)}\nv_cvt_pk_bf16_f32 {v(vXC+1)}, {v(vg+16)}, {v(vg+17)}\nv_mov_b32 {v(vXC+3)}, {s(sTAG)}\nv_lshlrev_b32 {v(vXv)}, 16, {v(vXv)}')
    stamp('R_x4')
    if cfg.rwait == 3: rw('rw1')
    def done(b):
        st = 1
        while st < 16:
            for a in range(0, 16, 2*st):
                for e in range(2): P(f'v_add_f32 {v(b+4*a+e)}, {v(b+4*a+e)}, {v(b+4*(a+st)+e)}')
            st *= 2
    if cfg.rsleep: P(f's_sleep {cfg.rsleep}')
    if cfg.xbgrp:
        n = 16 // cfg.xbgrp
        def mk(g):
            def issue():
                for k in range(g*n, g*n + n): P(f'buffer_load_dwordx4 {v(128+4*k,4)}, {v(vL16r)}, {S(SRD_WS)}, {s(sB4 + (k >> 2))} offen offset:{1024*(k & 3)} sc1')
            return (issue, [128+4*k+2 for k in range(g*n, g*n + n)])
        poll_groups('xb', [mk(g) for g in range(cfg.xbgrp)])
        done(128)
    else: poll('xb', xb_issue, 16, 128, 64, [4*k+2 for k in range(0, 16, 2 if cfg.fakehalf & 1 else 1)], done, issued=(cfg.rwait == 2))
    stamp('R_xb')
    P(f'v_permlane32_swap_b32 {v(128)}, {v(129)}\nv_add_f32 {v(vg)}, {v(128)}, {v(129)}')
    rnd(vg)
    P(f'v_mul_f32 {v(vg)}, {v(vg)}, {v(vGAv)}'); rnd(vg)
    P(f'v_add_f32 {v(vg)}, {v(vg)}, {v(vXv)}\nv_mov_b32 {v(vg+1)}, {v(vg)}')
    P(f'v_permlane32_swap_b32 {v(vg)}, {v(vg+1)}')
    P(f'v_cvt_pk_bf16_f32 {v(vXC)}, {v(vg)}, {v(vg+1)}')
    publish_loc(vXC, vL16r, sO3, 0xffffffff)
    stamp('R_xcpub')
    if cfg.epearly:
        P(f's_cmp_eq_u32 {s(sR)}, 0\ns_cbranch_scc0 L_NOEP')
        setexec(1)
        P(f'v_mov_b32 {v(vT)}, 0\nv_mov_b32 {v(vT+1)}, {s(sTAG)}')
        P(f'buffer_store_dword {v(vT+1)}, {v(vT)}, {S(SRD_WS)}, 0 offen sc1')
        setexec(ALL)
        P('L_NOEP:')
    P(f'v_lshrrev_b32 {v(vT+2)}, 1, {v(vL)}\nv_and_b32 {v(vT+2)}, 16, {v(vT+2)}\nv_lshrrev_b32 {v(vXv)}, {v(vT+2)}, {v(vXC)}\nv_lshlrev_b32 {v(vXv)}, 16, {v(vXv)}')
    P(f'ds_bpermute_b32 {v(vXv)}, {v(vBP)}, {v(vXv)}')
    def colsum():
        P(f'v_permlane16_swap_b32 {v(vg)}, {v(vg+1)}')
        P(f'v_add_f32 {v(vg)}, {v(vg)}, {v(vg+1)}')
        P(f'v_add_f32_dpp {v(vg)}, {v(vg)}, {v(vg)} row_ror:4 row_mask:0xf bank_mask:0xf')
        P(f'v_add_f32_dpp {v(vg)}, {v(vg)}, {v(vg)} row_ror:8 row_mask:0xf bank_mask:0xf')
        P(f'v_mov_b32 {v(vg+1)}, {v(vg)}')
        P(f'v_permlane32_swap_b32 {v(vg)}, {v(vg+1)}')
        P(f'v_add_f32 {v(vg)}, {v(vg)}, {v(vg+1)}')
    P('s_waitcnt lgkmcnt(0)')
    def issue(b):
        for k in range(2): P(f'buffer_load_dwordx4 {v(b+4*k,4)}, {v(vDA)}, {S(SRD_WS)}, {s(sD+k)} offen sc1')
        setexec((1 << 44) - 1)
        P(f'buffer_load_dwordx4 {v(b+8,4)}, {v(vDA)}, {S(SRD_WS)}, {s(sD+2)} offen sc1')
        setexec(ALL)
    def done(b):
        for e in range(2): P(f'v_add_f32 {v(b+e)}, {v(b+e)}, {v(b+4+e)}')
        for e in range(2): P(f'v_add_f32 {v(vg+e)}, {v(b+e)}, {v(b+8+e)}')
    if cfg.dsleep: P(f's_sleep {cfg.dsleep}')
    poll('xd', issue, 3, 192, 12, [2, 6, 10], done)
    stamp('R_xd')
    colsum()
    rnd(vg)
    P(f'v_mul_f32 {v(vg)}, {v(vg)}, {v(vGBv)}'); rnd(vg)
    P(f'v_add_f32 {v(vg)}, {v(vg)}, {v(vXv)}\nv_mov_b32 {v(vg+1)}, {v(vg)}')
    P(f'v_permlane16_swap_b32 {v(vg)}, {v(vg+1)}')
    P(f'v_cvt_pk_bf16_f32 {v(vg)}, {v(vg)}, {v(vg+1)}')
    setexec(0xf)
    P(f'buffer_store_dword {v(vg)}, {v(vU16)}, {S(SRD_B)}, {s(sG+2)} offen {cfg.outpol}')
    stamp('R_end')
    def epoch(skip):
        P(f's_cmp_eq_u32 {s(sR)}, 0\ns_cbranch_scc0 {skip}')
        setexec(1)
        P(f'v_mov_b32 {v(vT)}, 0\nv_mov_b32 {v(vT+1)}, {s(sTAG)}')
        P(f'buffer_store_dword {v(vT+1)}, {v(vT)}, {S(SRD_WS)}, 0 offen sc1')
    if not cfg.epearly: epoch('L_END')
    if cfg.probe:
        i = stamps[cfg.probe]
        P(f's_waitcnt lgkmcnt(0)\ns_sub_u32 {s(sT0)}, {s(sDIAG+2*i)}, {s(sDIAG)}\ns_memrealtime s[76:77]\ns_waitcnt lgkmcnt(0)\ns_add_u32 {s(sT0)}, {s(sT0)}, s76')
        P(f'L_PROBE:\ns_memrealtime s[76:77]\ns_waitcnt lgkmcnt(0)\ns_sub_u32 {s(sT1)}, s76, {s(sT0)}\ns_cmp_lt_i32 {s(sT1)}, 0\ns_cbranch_scc1 L_PROBE')
    P('s_branch L_END')

    P('L_END:')
    if cfg.diag and not cfg.probe:
        P('s_waitcnt lgkmcnt(0)')
        P(f's_cmp_ge_u32 {s(sB)}, 256\ns_cbranch_scc1 L_END2')
        srd(SRD_WS, sWSP, WS_BYTES)
        P(f's_lshl_b32 {s(sT0)}, {s(sB)}, 3\ns_add_u32 {s(sT0)}, {s(sT0)}, {s(sW)}\ns_lshl_b32 {s(sT0)}, {s(sT0)}, 7\ns_add_u32 {s(sT0)}, {s(sT0)}, {hex(DIAG)}')
        P('s_mov_b64 exec, 1\nv_mov_b32 v1, 0')
        for i in range(9): P(f'v_mov_b32 v2, {s(sDIAG+2*i)}\nbuffer_store_dword v2, v1, {S(SRD_WS)}, {s(sT0)} offen offset:{4*i}')
        P('L_END2:')
    P('s_endpgm')
    P('L_CODE_END:')
    probs = P.fix()
    for p in probs: print('HAZARD across branch:', p, file=sys.stderr)
    head = open(f'cdna_kernels/{NAME}.s.ref').read().split('; Override launch')[0]
    txt = head
    txt += f'; Single persistent launch: 256 workgroups (one per CU) x 8 waves. Generated by gen/gen_kernel.py (hand-written generator).\n'
    txt += f'; @launch grid=(256,1,1) block=(512,1,1) lds={LDS_BYTES}\n'
    txt += f'.amdgcn_target "amdgcn-amd-amdhsa--gfx950"\n.text\n.globl {NAME}_kernel\n.p2align 8\n.type {NAME}_kernel,@function\n{NAME}_kernel:\n'
    txt += P.text() + '\n'
    txt += f'''.section .rodata,"a"
.p2align 6
.amdhsa_kernel {NAME}_kernel
  .amdhsa_next_free_vgpr 256
  .amdhsa_next_free_sgpr 102
  .amdhsa_accum_offset 256
  .amdhsa_group_segment_fixed_size 0
  .amdhsa_kernarg_size 112
  .amdhsa_user_sgpr_count 2
  .amdhsa_user_sgpr_kernarg_segment_ptr 1
  .amdhsa_system_sgpr_workgroup_id_x 1
  .amdhsa_float_denorm_mode_32 3
.end_amdhsa_kernel
'''
    return txt, stamps

if __name__ == '__main__':
    out = sys.argv[1] if len(sys.argv) > 1 else f'cdna_kernels/{NAME}.s'
    class C(Cfg): pass
    for a in sys.argv[2:]:
        k, val = a.split('=', 1)
        setattr(C, k, eval(val))
    txt, stamps = gen(C)
    open(out, 'w').write(txt)
    print('written', out, len(txt), 'bytes', stamps)
```

```python
import sys, struct
from asmdsl import Prog

NAME = 'adaLN_cond__mha_block_cached__glu_gated_swiglu__decode'

def f2u(x): return struct.unpack('<I', struct.pack('<f', x))[0]
LOG2E = hex(f2u(1.4426950408889634))
NLOG2E = hex(f2u(-1.4426950408889634))
SCALE = hex(f2u(128 ** -0.5))
EPS = hex(f2u(1e-5))
R512 = hex(f2u(1/512))
ALL = (1 << 64) - 1

X1 = 0x1000
X4 = 0x9000
X3 = 0x19000
X1F = 0x1b000
X0 = 0x1d000
X0B = 0x1e000
X2F = 0x1c000
XC = 0x120000
X2 = 0x20000
XA = 0x60000
XB = 0xa0000
XD = 0xc0000
XE = 0x100000
DIAG = 0x180000
WS_BYTES = 0x200000
L_P, L_OP, L_Q, L_FLAG = 0x20000, 0x20800, 0x21000, 0x21100
L_ST, L_U = 0x0, 0x1000
L_MS, L_ML = L_FLAG + 64, L_FLAG + 128
LDS_BYTES = 0x21200
NM = 43
TAGX = hex(sum(1 << (a*4+b*2+c) for a in (0,1) for b in (0,1) for c in (0,1) if (a ^ b) | c))

class Cfg:
    depth = 8
    diag = False
    probe = None
    kpol = 'nt'
    vpol = 'nt'
    wpol = 'nt'
    ppol = ''
    sleep1 = 0
    sleep2 = 0
    sleep3 = 4
    sleep4 = 40
    prio = 3
    hint = 1
    hsleep = 3
    lsleep = 1
    pf = 'post'
    wq0 = 1
    dsched = (6, 12, 9)
    rot = 5
    npf = 8
    local = 1
    pipe = 1
    psleep = dict()
    xcrep = 1
    spin = 1 << 15

def v(a, n=1): return f'v{a}' if n == 1 else f'v[{a}:{a+n-1}]'
def s(a, n=1): return f's{a}' if n == 1 else f's[{a}:{a+n-1}]'

sB, sW = 2, 3
sKP, sVP = 4, 6
SRD_K, SRD_V, SRD_WS, SRD_A, SRD_B, SRD_C = 8, 12, 16, 20, 24, 28
sH, sJ, sX, sKK = 36, 37, 38, 39
sWSP = 40
sTAG, sIM, sR = 42, 43, 44
sT0, sT1, sT2 = 45, 46, 47
pWQ, pWO, pW1, pW3, pW2, pC, pWM, pX, pOUT = 48, 50, 54, 56, 58, 60, 62, 64, 66
sSPIN = 68
sO0, sO1, sO2, sO3 = 69, 70, 71, 72
sMASK = 74
sLOC = 73
sG = 76
sDIAG = 84
vL = 0
vT = 1
vM = 4

def gen(cfg=Cfg):
    P = Prog()
    D = cfg.depth
    stamps = {}
    def stamp(name):
        if cfg.diag and name in cfg.diag:
            grp = name.split('_')[0]
            same = [n for n in cfg.diag if n.split('_')[0] == grp]
            if name == 'start': i = 0
            elif grp == 'M': i = 8 - same.index(name)
            else: i = 1 + same.index(name)
            assert 0 <= i <= 8
            stamps[name] = i
            P(f's_memrealtime {s(sDIAG + 2*i, 2)}')
    def srd(r, ptr, nbytes):
        P(f's_mov_b32 {s(r)}, {s(ptr)}\ns_mov_b32 {s(r+1)}, {s(ptr+1)}\ns_mov_b32 {s(r+2)}, {hex(nbytes)}\ns_mov_b32 {s(r+3)}, 0x20000')
    def S(r): return s(r, 4)
    def setexec(mask):
        lo, hi = mask & 0xffffffff, mask >> 32
        if mask == ALL: P('s_mov_b64 exec, -1')
        elif mask <= 64: P(f's_mov_b64 exec, {mask}')
        else: P(f's_mov_b32 exec_lo, {hex(lo)}\ns_mov_b32 exec_hi, {hex(hi)}')
    uid = [0]
    def lab(p):
        uid[0] += 1; return f'L_{p}{uid[0]}'
    def tagcheck_loop(issue, tagregs, name):
        top = lab(name)
        P(f's_mov_b32 {s(sSPIN)}, 0')
        P(f'{top}:')
        issue()
        P(f's_add_u32 {s(sSPIN)}, {s(sSPIN)}, 1\ns_cmp_gt_u32 {s(sSPIN)}, {cfg.spin}\ns_cbranch_scc1 L_END')
        P('s_waitcnt vmcnt(0)')
        if len(tagregs) == 1:
            P(f'v_cmp_ne_u32 vcc, {s(sTAG)}, {v(tagregs[0])}')
        else:
            P(f'v_xor_b32 {v(vT)}, {s(sTAG)}, {v(tagregs[0])}\nv_xor_b32 {v(vT+1)}, {s(sTAG)}, {v(tagregs[1])}')
            for k, r in enumerate(tagregs[2:]):
                P(f'v_bitop3_b32 {v(vT + (k & 1))}, {v(r)}, {s(sTAG)}, {v(vT + (k & 1))} bitop3:{TAGX}')
            P(f'v_or_b32 {v(vT)}, {v(vT)}, {v(vT+1)}\nv_cmp_ne_u32 vcc, 0, {v(vT)}')
        P(f's_cbranch_vccnz {top}')
    def poll(name, issue, nl, base, stride, tagoff, done):
        NS = cfg.pipe
        top, join = lab(name), lab(name + 'j')
        ex = [lab(name + 'x') for _ in range(NS)]
        P(f's_mov_b32 {s(sSPIN)}, 0')
        for i in range(NS - 1): issue(base + i*stride)
        P(f'{top}:')
        for i in range(NS):
            issue(base + ((i + NS - 1) % NS)*stride)
            if i == 0: P(f's_add_u32 {s(sSPIN)}, {s(sSPIN)}, 1\ns_cmp_gt_u32 {s(sSPIN)}, {cfg.spin}\ns_cbranch_scc1 L_END')
            P(f's_waitcnt vmcnt({(NS-1)*nl})')
            tr = [base + i*stride + t for t in tagoff]
            if len(tr) == 1:
                P(f'v_cmp_ne_u32 vcc, {s(sTAG)}, {v(tr[0])}')
            else:
                P(f'v_xor_b32 {v(vT)}, {s(sTAG)}, {v(tr[0])}\nv_xor_b32 {v(vT+1)}, {s(sTAG)}, {v(tr[1])}')
                for k, r in enumerate(tr[2:]):
                    P(f'v_bitop3_b32 {v(vT + (k & 1))}, {v(r)}, {s(sTAG)}, {v(vT + (k & 1))} bitop3:{TAGX}')
                P(f'v_or_b32 {v(vT)}, {v(vT)}, {v(vT+1)}\nv_cmp_ne_u32 vcc, 0, {v(vT)}')
            ps = cfg.psleep.get(name, 0)
            if ps:
                P(f's_cbranch_vccz {ex[i]}\ns_sleep {ps}')
                if i + 1 == NS: P(f's_branch {top}')
            else: P(f's_cbranch_vccz {ex[i]}' if i + 1 < NS else f's_cbranch_vccnz {top}')
        for i in reversed(range(NS)):
            P(f'{ex[i]}:')
            done(base + i*stride)
            if i > 0: P(f's_branch {join}')
        P(f'{join}:')
    def publish_loc(d, vaddr, soff, mask=None, flag=sLOC):
        if not cfg.local: return publish(d, vaddr, soff, mask)
        far, j2 = lab('far'), lab('pb')
        if mask: setexec(mask)
        P(f's_cmp_eq_u32 {s(flag)}, 1\ns_cbranch_scc0 {far}')
        P(f'buffer_store_dwordx4 {v(d,4)}, {v(vaddr)}, {S(SRD_WS)}, {s(soff)} offen')
        P(f's_branch {j2}\n{far}:')
        publish(d, vaddr, soff)
        P(f'{j2}:')
        if mask: setexec(ALL)
    def afrag(dst, src, dpp=''):
        for w in range(4):
            if dpp: P(f'v_and_b32_dpp {v(dst+w)}, {v(src)}, {v(vM+w)} {dpp} row_mask:0xf bank_mask:0xf')
            else: P(f'v_and_b32 {v(dst+w)}, {v(src)}, {v(vM+w)}')
    def mfma(d, a, b, first=False):
        P(f'v_mfma_f32_16x16x32_bf16 {v(d,4)}, {v(a,4)}, {v(b,4)}, {"0" if first else v(d,4)}')
    def chain(d, n, bregs, srcs, areg):
        afrag(areg, *srcs[0])
        for i in range(n):
            if i + 1 < n: afrag(areg + 4*((i+1) & 1), *srcs[i+1])
            mfma(d, areg + 4*(i & 1), bregs[i], first=(i == 0))
    def finish2(d):
        P(f'v_permlane32_swap_b32 {v(d)}, {v(d+2)}\nv_permlane32_swap_b32 {v(d+1)}, {v(d+3)}')
        P(f'v_add_f32_dpp {v(d)}, {v(d+2)}, {v(d)} row_ror:8 row_mask:0xf bank_mask:0xf')
        P(f'v_add_f32_dpp {v(d+1)}, {v(d+3)}, {v(d+1)} row_ror:8 row_mask:0xf bank_mask:0xf')
        P(f'v_mov_b32 {v(d+2)}, {s(sTAG)}')
    def finish1(d):
        P(f'v_permlane32_swap_b32 {v(d)}, {v(d+2)}\nv_permlane32_swap_b32 {v(d+1)}, {v(d+3)}')
        P(f'v_mov_b32 {v(d+2)}, {s(sTAG)}')
    def publish(d, vaddr, soff, mask=None):
        if mask: setexec(mask)
        P(f'buffer_store_dwordx4 {v(d,4)}, {v(vaddr)}, {S(SRD_WS)}, {s(soff)} offen sc1')
        if mask: setexec(ALL)
    M2SET = 0x00ff00ff00ff00ff
    def lohi(r):
        P(f'v_mov_b32 {v(r+2)}, {v(r)}\nv_mov_b32 {v(r+3)}, {v(r+1)}')
        for e in range(2): P(f'v_mov_b32_dpp {v(r+2+e)}, {v(r+e)} row_shl:4 row_mask:0xf bank_mask:0x5')
        for e in range(2): P(f'v_mov_b32_dpp {v(r+e)}, {v(r+e)} row_shr:4 row_mask:0xf bank_mask:0xa')
    def lohi_srcs(r):
        out = []
        for i in range(16):
            u = i >> 1; a = u & 3
            out.append((r + (2 if u >= 4 else 0) + (i & 1), f'quad_perm:[{a},{a},{a},{a}]'))
        return out
    def lds_wait(name, vaddr, n, dst, chk, sleep=0):
        top = lab(name)
        op = {1: 'ds_read_b32', 2: 'ds_read_b64', 4: 'ds_read_b128'}[n]
        P(f's_mov_b32 {s(sSPIN)}, 0')
        P(f'{top}:')
        P(f'{op} {v(dst,n)}, {v(vaddr)}')
        P(f's_add_u32 {s(sSPIN)}, {s(sSPIN)}, 1\ns_cmp_gt_u32 {s(sSPIN)}, {cfg.spin*8}\ns_cbranch_scc1 L_END')
        P('s_waitcnt lgkmcnt(0)')
        if len(chk) == 2:
            P(f'v_and_b32 {v(vT)}, {v(chk[0])}, {v(chk[1])}\nv_cmp_eq_u32 vcc, 0, {v(vT)}')
        else: P(f'v_cmp_eq_u32 vcc, 0, {v(chk[0])}')
        if sleep:
            done = lab(name + 'd')
            P(f's_cbranch_vccz {done}\ns_sleep {sleep}\ns_branch {top}\n{done}:')
        else: P(f's_cbranch_vccnz {top}')
    def hint_wait(name, soff):
        top = lab(name)
        P(f's_add_u32 {s(sMASK)}, {s(sWSP)}, {s(soff)}\ns_addc_u32 {s(sMASK+1)}, {s(sWSP+1)}, 0\ns_mov_b32 {s(sSPIN)}, 0')
        P(f'{top}:')
        P(f's_load_dwordx8 {s(sG,8)}, {s(sMASK,2)}, 0 glc')
        P(f's_add_u32 {s(sSPIN)}, {s(sSPIN)}, 1\ns_cmp_gt_u32 {s(sSPIN)}, {cfg.spin}\ns_cbranch_scc1 L_END')
        P('s_waitcnt lgkmcnt(0)')
        P(f's_xor_b32 {s(sG)}, {s(sG)}, {s(sTAG)}')
        for k in range(1, 8): P(f's_xor_b32 {s(sG+k)}, {s(sG+k)}, {s(sTAG)}\ns_or_b32 {s(sG)}, {s(sG)}, {s(sG+k)}')
        done = lab(name + 'd')
        P(f's_cbranch_scc0 {done}')
        if cfg.hsleep: P(f's_sleep {cfg.hsleep}')
        P(f's_branch {top}\n{done}:')
    def wave_reduce(op, regs):
        for mod in ('quad_perm:[1,0,3,2] row_mask:0xf', 'quad_perm:[2,3,0,1] row_mask:0xf', 'row_ror:4 row_mask:0xf', 'row_ror:8 row_mask:0xf',
                    'row_bcast:15 row_mask:0xa', 'row_bcast:31 row_mask:0xc'):
            for r in regs: P(f'{op}_dpp {v(r)}, {v(r)}, {v(r)} {mod} bank_mask:0xf')
    def unpack(lo, hi, src):
        if lo == src: P(f'v_and_b32 {v(hi)}, 0xffff0000, {v(src)}\nv_lshlrev_b32 {v(lo)}, 16, {v(src)}')
        else: P(f'v_lshlrev_b32 {v(lo)}, 16, {v(src)}\nv_and_b32 {v(hi)}, 0xffff0000, {v(src)}')
    def silu_multi(rs, ts):
        for r, t in zip(rs, ts): P(f'v_mul_f32 {v(t)}, {NLOG2E}, {v(r)}')
        for r, t in zip(rs, ts): P(f'v_exp_f32 {v(t)}, {v(t)}')
        for r, t in zip(rs, ts): P(f'v_add_f32 {v(t)}, 1.0, {v(t)}')
        for r, t in zip(rs, ts): P(f'v_rcp_f32 {v(t)}, {v(t)}')
        for r, t in zip(rs, ts): P(f'v_mul_f32 {v(r)}, {v(r)}, {v(t)}')
    def rnd(r): P(f'v_cvt_pk_bf16_f32 {v(r)}, {v(r)}, {v(r)}\nv_and_b32 {v(r)}, 0xffff0000, {v(r)}')

    vMA, vMB, vMC, vPUB = 16, 17, 18, 19
    vMT, vD0, vAA, vS4 = 64, 36, 52, 40
    def modtile_issue(sRB, sCOL):
        srd(SRD_A, pC, 1024); srd(SRD_B, pWM, 512*6144)
        P(f's_lshl_b32 {s(sO1)}, {s(sRB)}, 8')
        P(f'buffer_load_dword {v(vMC)}, {v(vMA)}, {S(SRD_A)}, {s(sO1)} offen')
        P(f's_mul_i32 {s(sO1)}, {s(sRB)}, {128*6144}\ns_add_u32 {s(sO1)}, {s(sO1)}, {s(sCOL)}')
        for i in range(16):
            P(f'buffer_load_dwordx4 {v(vMT+4*i,4)}, {v(vMB)}, {S(SRD_B)}, {s(sO1)} offen {cfg.wpol}')
            if i < 15: P(f's_add_u32 {s(sO1)}, {s(sO1)}, 6144')
    def modtile_compute(nafter, soff):
        P(f's_waitcnt vmcnt({16+nafter})')
        unpack(vS4, vS4+1, vMC)
        silu_multi([vS4, vS4+1], [vS4+2, vS4+3])
        for e in range(2): P(f'v_cvt_pk_bf16_f32 {v(vS4+e)}, {v(vS4+e)}, {v(vS4+e)}')
        lohi(vS4)
        P(f's_waitcnt vmcnt({nafter})')
        chain(vD0, 16, [vMT+4*i for i in range(16)], lohi_srcs(vS4), vAA)
        finish2(vD0)
        publish(vD0, vPUB, soff, M2SET)

    P(f's_cmp_ge_u32 {s(sB)}, 256\ns_cbranch_scc1 L_END')
    if cfg.diag:
        for i in range(9): P(f's_mov_b32 {s(sDIAG+2*i)}, 0')
    stamp('start')
    P(f's_load_dwordx4 {s(sKP,4)}, s[0:1], 8')
    P(f's_load_dwordx16 {s(pWQ,16)}, s[0:1], 24')
    P(f's_load_dwordx2 {s(sWSP,2)}, s[0:1], 104')
    P(f's_load_dwordx2 {s(pX,2)}, s[0:1], 0')
    P(f's_load_dwordx2 {s(pOUT,2)}, s[0:1], 88')
    P(f'v_lshrrev_b32 {v(vT)}, 6, v0\nv_and_b32 {v(vL)}, 63, v0')
    P(f'v_readfirstlane_b32 {s(sW)}, {v(vT)}')
    P(f'v_lshlrev_b32 {v(vT)}, 2, {v(vL)}\nv_add_u32 {v(vT)}, {hex(L_FLAG)}, {v(vT)}\nv_mov_b32 {v(vT+1)}, 0')
    P(f'ds_write_b32 {v(vT)}, {v(vT+1)}')
    P(f's_and_b32 {s(sH)}, {s(sB)}, 31\ns_lshr_b32 {s(sJ)}, {s(sB)}, 5\ns_and_b32 {s(sX)}, {s(sB)}, 7\ns_lshr_b32 {s(sKK)}, {s(sB)}, 3')
    vKA, vVA = 8, 12
    P(f'v_lshrrev_b32 {v(vT)}, 4, {v(vL)}\nv_and_b32 {v(vT+1)}, 15, {v(vL)}')
    P(f'v_lshlrev_b32 {v(vVA)}, 10, {v(vT)}\nv_lshl_add_u32 {v(vVA)}, {v(vT+1)}, 4, {v(vVA)}')
    P(f'v_xor_b32 {v(vT+1)}, {v(vT+1)}, {v(vT)}\nv_lshlrev_b32 {v(vT+1)}, 4, {v(vT+1)}\nv_lshl_add_u32 {v(vKA)}, {v(vT)}, 8, {v(vT+1)}')
    for i in range(1, 4): P(f'v_xor_b32 {v(vKA+i)}, {64*i}, {v(vKA)}')
    P(f's_lshl_b32 {s(sO0)}, {s(sH)}, 20\ns_lshl_b32 {s(sO3)}, {s(sJ)}, 2\ns_add_u32 {s(sO3)}, {s(sO3)}, {s(sW)}\ns_lshl_b32 {s(sO3)}, {s(sO3)}, 12')
    P(f'v_lshlrev_b32 {v(vMA)}, 2, {v(vL)}\nv_lshrrev_b32 {v(vT)}, 3, {v(vL)}\nv_mul_u32_u24 {v(vMB)}, {16*6144}, {v(vT)}\nv_and_b32 {v(vT+1)}, 7, {v(vL)}\nv_lshl_add_u32 {v(vMB)}, {v(vT+1)}, 4, {v(vMB)}')
    P(f'v_lshrrev_b32 {v(vT)}, 4, {v(vL)}\nv_lshlrev_b32 {v(vT)}, 7, {v(vT)}\nv_lshl_add_u32 {v(vPUB)}, {v(vT+1)}, 4, {v(vT)}')
    vXF, vXS, vL16, vWA, vXA = 28, 32, 60, 62, 33
    P(f'v_lshlrev_b32 {v(vL16)}, 4, {v(vL)}')
    P(f'v_bfe_u32 {v(vT)}, {v(vL)}, 4, 1\nv_lshrrev_b32 {v(vT+2)}, 5, {v(vL)}\nv_lshl_add_u32 {v(vT)}, {v(vT)}, 1, {v(vT+2)}')
    P(f'v_lshl_add_u32 {v(vXA)}, {v(vT+1)}, 2, {v(vT)}\nv_lshlrev_b32 {v(vXA)}, 2, {v(vXA)}\nv_lshlrev_b32 {v(vWA)}, 14, {v(vT)}')
    P(f'v_and_b32 {v(vT+1)}, 15, {v(vL)}\nv_lshl_add_u32 {v(vWA)}, {v(vT+1)}, 4, {v(vWA)}')
    P(f's_sub_u32 {s(sT2)}, {s(sKK)}, 16')
    P(f's_and_b32 {s(sT0)}, {s(sT2)}, 1\ns_lshl_b32 {s(sT0)}, {s(sT0)}, 10\ns_lshl_b32 {s(sT1)}, {s(sX)}, 7\ns_add_u32 {s(sT1)}, {s(sT1)}, {s(sT0)}\ns_lshr_b32 {s(sT0)}, {s(sT2)}, 1\ns_lshl_b32 {s(sO2)}, {s(sJ)}, 7')
    P('s_waitcnt lgkmcnt(0)')
    P(f's_cmp_eq_u32 {s(sW)}, 4\ns_cbranch_scc0 L_B0')
    P(f's_cmp_lt_u32 {s(sT2)}, 8\ns_cbranch_scc0 L_XLD')
    modtile_issue(sT0, sT1)
    P('L_XLD:')
    srd(SRD_C, pX, 1024)
    P(f'buffer_load_dwordx4 {v(vXF,4)}, {v(vL16)}, {S(SRD_C)}, 0 offen')
    P(f'buffer_load_dword {v(vXS)}, {v(vXA)}, {S(SRD_C)}, {s(sO2)} offen')
    vWQ = 128
    def wq_issue():
        srd(SRD_C, pWQ, 4 << 20)
        P(f's_lshl_b32 {s(sO2)}, {s(sJ)}, 19\ns_lshl_b32 {s(sT0)}, {s(sH)}, 8\ns_add_u32 {s(sO2)}, {s(sO2)}, {s(sT0)}')
        for i in range(16):
            P(f'buffer_load_dwordx4 {v(vWQ+4*i,4)}, {v(vWA)}, {S(SRD_C)}, {s(sO2)} offen {cfg.wpol}')
            if i < 15: P(f's_add_u32 {s(sO2)}, {s(sO2)}, {8192 if (i & 1) == 0 else 8192*7}')
    if cfg.wq0: wq_issue()
    P('L_B0:')
    P('s_barrier')
    P(f's_cmp_ge_u32 {s(sW)}, 4\ns_cbranch_scc1 L_CW')

    srd(SRD_K, sKP, 32 << 20)
    P(f's_lshl_b32 {s(sT0)}, {s(sW)}, 15\ns_mov_b32 m0, {s(sT0)}\ns_mov_b32 {s(sO2)}, {s(sO0)}\ns_mov_b32 {s(sG)}, {s(sO3)}\ns_add_u32 {s(sO1)}, {s(sO0)}, {s(sO3)}\ns_mov_b32 {s(sT1)}, 0')
    def nexttile(base, res, dst):
        P(f's_add_u32 {s(base)}, {s(base)}, 0x20000\ns_add_u32 {s(res)}, {s(res)}, {cfg.rot << 12}\ns_and_b32 {s(res)}, {s(res)}, 0x1f000\ns_add_u32 {s(dst)}, {s(base)}, {s(res)}')
    P('L_KLOOP:')
    DK = cfg.dsched[0] if cfg.dsched else D
    def DV(idx): return D if not cfg.dsched else (cfg.dsched[0] if idx < cfg.dsched[1] else cfg.dsched[2])
    for i in range(4):
        P(f's_waitcnt vmcnt({DK-1})')
        P(f'buffer_load_dwordx4 {v(vKA+i)}, {S(SRD_K)}, {s(sO1)} offen offset:{1024*i} {cfg.kpol} lds')
    nexttile(sO2, sG, sO1)
    P(f's_add_u32 {s(sT0)}, {s(sT0)}, 4096\ns_mov_b32 m0, {s(sT0)}\ns_add_u32 {s(sT1)}, {s(sT1)}, 1\ns_cmp_lt_u32 {s(sT1)}, 8\ns_cbranch_scc1 L_KLOOP')
    stamp('L_kissued')
    vV = 128
    srd(SRD_V, sVP, 32 << 20)
    P(f's_add_u32 {s(sO1)}, {s(sO0)}, {s(sO3)}')
    P(f's_lshl_b32 {s(sT0)}, {s(sW)}, 3\ns_add_u32 {s(sT0)}, {s(sT0)}, {hex(L_FLAG)}\nv_mov_b32 {v(vT)}, {s(sT0)}\nv_mov_b32 {v(vT+1)}, 1')
    for idx in range(32):
        t, i = idx >> 2, idx & 3
        P(f's_waitcnt vmcnt({DV(idx)-1})')
        if idx == DK - 1:
            P(f'ds_write_b32 {v(vT)}, {v(vT+1)}')
            stamp('L_klanded')
        P(f'buffer_load_dwordx4 {v(vV+4*idx,4)}, {v(vVA)}, {S(SRD_V)}, {s(sO1)} offen offset:{256*i} {cfg.vpol}')
        if i == 3 and t < 7: nexttile(sO0, sO3, sO1)
    stamp('L_vissued')
    def masks():
        P(f'v_and_b32 {v(vT)}, 1, {v(vL)}\nv_lshlrev_b32 {v(vT)}, 4, {v(vT)}\nv_mov_b32 {v(vT+1)}, 0xffff\nv_lshlrev_b32 {v(vT+1)}, {v(vT)}, {v(vT+1)}')
        P(f'v_bfe_u32 {v(vT)}, {v(vL)}, 1, 2')
        for w in range(4):
            P(f'v_cmp_eq_u32 vcc, {w}, {v(vT)}\nv_cndmask_b32 {v(vM+w)}, 0, {v(vT+1)}, vcc')
    def common_setup():
        P(f's_load_dword {s(sTAG)}, {s(sWSP,2)}, 0')
        srd(SRD_WS, sWSP, WS_BYTES)
        masks()
    masks()
    vPA, vOA, vP, vA, vD = 13, 14, 16, 48, 56
    P(f'v_lshrrev_b32 {v(vT)}, 4, {v(vL)}\nv_lshlrev_b32 {v(vT)}, 4, {v(vT)}\ns_lshl_b32 {s(sT0)}, {s(sW)}, 9\ns_add_u32 {s(sT0)}, {s(sT0)}, {hex(L_P)}\nv_add_u32 {v(vPA)}, {s(sT0)}, {v(vT)}')
    P(f's_add_u32 {s(sT0)}, {s(sT0)}, {hex(L_OP - L_P)}\nv_lshlrev_b32 {v(vT)}, 3, {v(vL)}\nv_add_u32 {v(vOA)}, {s(sT0)}, {v(vT)}')
    P('s_waitcnt lgkmcnt(0)')
    P('s_barrier')
    stamp('L_b1')
    for t in range(8): P(f'ds_read_b128 {v(vP+4*t,4)}, {v(vPA)} offset:{64*t}')
    P('s_waitcnt lgkmcnt(7)')
    afrag(vA, vP)
    for idx in range(32):
        if idx + 1 < 32:
            if (idx + 1) % 4 == 0: P(f's_waitcnt lgkmcnt({7 - (idx+1)//4})')
            afrag(vA + 4*((idx+1) & 1), vP + idx + 1)
        P(f's_waitcnt vmcnt({31-idx})')
        mfma(vD, vA + 4*(idx & 1), vV + 4*idx, first=(idx == 0))
    stamp('L_pv')
    P(f'v_permlane32_swap_b32 {v(vD)}, {v(vD+2)}\nv_permlane32_swap_b32 {v(vD+1)}, {v(vD+3)}')
    P(f'ds_write_b64 {v(vOA)}, {v(vD,2)}')
    P('s_waitcnt lgkmcnt(0)')
    P('s_barrier')
    P('s_endpgm' if not cfg.diag else 's_branch L_END')

    P('L_CW:')
    if cfg.prio: P(f's_setprio {cfg.prio}')
    P(f's_cmp_eq_u32 {s(sW)}, 4\ns_cbranch_scc0 L_C123')
    vGA = 192
    common_setup()
    P('s_waitcnt lgkmcnt(0)')
    P(f's_add_u32 {s(sTAG)}, {s(sTAG)}, 1')
    if cfg.local:
        P(f's_getreg_b32 {s(sLOC)}, hwreg(HW_REG_XCC_ID, 0, 3)\ns_lshl_b32 {s(sT0)}, {s(sTAG)}, 3\ns_or_b32 {s(sLOC)}, {s(sLOC)}, {s(sT0)}')
        P(f's_lshl_b32 {s(sO3)}, {s(sH)}, 7\ns_add_u32 {s(sO3)}, {s(sO3)}, {hex(X0)}\ns_lshl_b32 {s(sT0)}, {s(sJ)}, 2\ns_add_u32 {s(sT0)}, {s(sT0)}, {s(sO3)}\nv_mov_b32 {v(vT)}, {s(sT0)}\nv_mov_b32 {v(vT+1)}, {s(sLOC)}')
        P(f's_lshl_b32 {s(sR)}, {s(sX)}, 3\ns_lshr_b32 {s(sT0)}, {s(sKK)}, 2\ns_add_u32 {s(sR)}, {s(sR)}, {s(sT0)}\ns_lshl_b32 {s(sR)}, {s(sR)}, 7\ns_add_u32 {s(sR)}, {s(sR)}, {hex(X0B)}')
        P(f's_and_b32 {s(sT0)}, {s(sKK)}, 3\ns_lshl_b32 {s(sT0)}, {s(sT0)}, 2\ns_add_u32 {s(sT0)}, {s(sT0)}, {s(sR)}\nv_writelane_b32 {v(vT)}, {s(sT0)}, 1')
        setexec(3)
        P(f'buffer_store_dword {v(vT+1)}, {v(vT)}, {S(SRD_WS)}, 0 offen sc1')
        setexec(ALL)
    P(f's_cmp_lt_u32 {s(sT2)}, 8\ns_cbranch_scc0 L_NOT1')
    P(f's_lshl_b32 {s(sO2)}, {s(sX)}, 3\ns_add_u32 {s(sO2)}, {s(sO2)}, {s(sT2)}\ns_lshl_b32 {s(sO2)}, {s(sO2)}, 9\ns_add_u32 {s(sO2)}, {s(sO2)}, {hex(X1)}')
    modtile_compute((18 if cfg.wq0 else 2) + cfg.local, sO2)
    if cfg.hint:
        P(f's_lshl_b32 {s(sO2)}, {s(sX)}, 9\ns_lshl_b32 {s(sT0)}, {s(sT2)}, 2\ns_add_u32 {s(sO2)}, {s(sO2)}, {s(sT0)}\ns_add_u32 {s(sO2)}, {s(sO2)}, {hex(X1F)}\nv_lshlrev_b32 {v(vT)}, 7, {v(vL)}')
        setexec(0xf)
        P(f'buffer_store_dword {v(vD0+2)}, {v(vT)}, {S(SRD_WS)}, {s(sO2)} offen sc1')
        setexec(ALL)
    stamp('C0_x1pub')
    if not cfg.wq0: wq_issue()
    P('s_branch L_T1D')
    P('L_NOT1:')
    if not cfg.wq0: wq_issue()
    P('L_T1D:')
    vx = 64
    P(f's_waitcnt vmcnt({16 + (cfg.local if cfg.wq0 else 0)})')
    for k in range(4): unpack(vx+2*k, vx+2*k+1, vXF+k)
    P(f'v_add_f32 {v(20)}, {v(vx)}, {v(vx+1)}\nv_add_f32 {v(21)}, {v(vx+2)}, {v(vx+3)}\nv_add_f32 {v(22)}, {v(vx+4)}, {v(vx+5)}\nv_add_f32 {v(23)}, {v(vx+6)}, {v(vx+7)}')
    P(f'v_add_f32 {v(20)}, {v(20)}, {v(21)}\nv_add_f32 {v(22)}, {v(22)}, {v(23)}\nv_add_f32 {v(20)}, {v(20)}, {v(22)}')
    wave_reduce('v_add_f32', [20])
    P(f'v_mul_f32 {v(20)}, {R512}, {v(20)}\nv_readlane_b32 {s(sT0)}, {v(20)}, 63')
    for k in range(8): P(f'v_subrev_f32 {v(vx+k)}, {s(sT0)}, {v(vx+k)}')
    P(f'v_mul_f32 {v(21)}, {v(vx)}, {v(vx)}')
    for k in range(1, 8): P(f'v_fmac_f32 {v(21)}, {v(vx+k)}, {v(vx+k)}')
    wave_reduce('v_add_f32', [21])
    P(f'v_mul_f32 {v(21)}, {R512}, {v(21)}')
    P(f'v_cvt_pk_bf16_f32 {v(22)}, {v(20)}, {v(21)}')
    P(f'v_and_b32 {v(21)}, 0xffff0000, {v(22)}\nv_lshlrev_b32 {v(20)}, 16, {v(22)}\nv_add_f32 {v(21)}, {EPS}, {v(21)}')
    rnd(21); P(f'v_sqrt_f32 {v(21)}, {v(21)}'); rnd(21); P(f'v_rcp_f32 {v(22)}, {v(21)}')
    P(f'v_readlane_b32 {s(sT0)}, {v(20)}, 63\nv_readlane_b32 {s(sT1)}, {v(21)}, 63\nv_readlane_b32 {s(sT2)}, {v(22)}, 63')
    vLN = 24
    unpack(vLN, vLN+1, vXS)
    for e in range(2): P(f'v_subrev_f32 {v(vLN+e)}, {s(sT0)}, {v(vLN+e)}')
    P(f'v_cvt_pk_bf16_f32 {v(20)}, {v(vLN)}, {v(vLN+1)}'); unpack(vLN, vLN+1, 20)
    for e in range(2): P(f'v_mul_f32 {v(20+e)}, {s(sT2)}, {v(vLN+e)}')
    for e in range(2): P(f'v_fma_f32 {v(vLN+e)}, -{v(20+e)}, {s(sT1)}, {v(vLN+e)}')
    for e in range(2): P(f'v_fma_f32 {v(vLN+e)}, {v(vLN+e)}, {s(sT2)}, {v(20+e)}')
    P(f'v_cvt_pk_bf16_f32 {v(20)}, {v(vLN)}, {v(vLN+1)}'); unpack(vLN, vLN+1, 20)
    P(f'v_bfe_u32 {v(vT)}, {v(vL)}, 3, 1\nv_lshlrev_b32 {v(vT)}, 9, {v(vT)}\nv_add_u32 {v(26)}, {v(vPUB)}, {v(vT)}')
    P(f's_lshl_b32 {s(sO0)}, {s(sJ)}, 12\ns_add_u32 {s(sO0)}, {s(sO0)}, {hex(X1)}')
    if cfg.hint:
        P(f's_lshl_b32 {s(sT0)}, {s(sJ)}, 2\ns_and_b32 {s(sT1)}, {s(sH)}, 3\ns_add_u32 {s(sT0)}, {s(sT0)}, {s(sT1)}\ns_lshl_b32 {s(sT0)}, {s(sT0)}, 7\ns_add_u32 {s(sT0)}, {s(sT0)}, {hex(X1F)}')
        hint_wait('h1h', sT0)
    else: P('s_waitcnt vmcnt(0)')
    if cfg.local:
        P(f's_add_u32 {s(sMASK)}, {s(sWSP)}, {s(sO3)}\ns_addc_u32 {s(sMASK+1)}, {s(sWSP+1)}, 0')
        P(f's_load_dwordx8 {s(sG,8)}, {s(sMASK,2)}, 0 glc')
        P(f's_load_dwordx4 s[8:11], {s(sWSP,2)}, {s(sR)} glc')
    stamp('C0_wq')
    if cfg.sleep1: P(f's_sleep {cfg.sleep1}')
    def issue():
        for k in range(4): P(f'buffer_load_dwordx4 {v(vGA+4*k,4)}, {v(26)}, {S(SRD_WS)}, {s(sO0)} offen offset:{1024*k} sc1')
    tagcheck_loop(issue, [vGA+4*k+2 for k in range(4)], 'h1')
    stamp('C0_h1')
    if cfg.local:
        P('s_waitcnt lgkmcnt(0)')
        P(f's_xor_b32 {s(sG)}, {s(sG)}, {s(sLOC)}')
        for k in range(1, 8): P(f's_xor_b32 {s(sG+k)}, {s(sG+k)}, {s(sLOC)}\ns_or_b32 {s(sG)}, {s(sG)}, {s(sG+k)}')
        P(f's_cselect_b32 {s(sT0)}, 0, 1')
        P(f's_xor_b32 s8, s8, {s(sLOC)}')
        for k in range(1, 4): P(f's_xor_b32 {s(8+k)}, {s(8+k)}, {s(sLOC)}\ns_or_b32 s8, s8, {s(8+k)}')
        P(f's_cselect_b32 {s(sR)}, 0, 1\ns_mov_b32 {s(sLOC)}, {s(sT0)}')
    b = vGA
    for e in range(2): P(f'v_add_f32 {v(b+e)}, {v(b+e)}, {v(b+4+e)}\nv_add_f32 {v(b+8+e)}, {v(b+8+e)}, {v(b+12+e)}')
    for e in range(2): P(f'v_add_f32 {v(b+e)}, {v(b+e)}, {v(b+8+e)}')
    P(f'v_cvt_pk_bf16_f32 {v(b+4)}, {v(b)}, {v(b+1)}\nv_mov_b32 {v(b+5)}, {v(b+4)}')
    P(f'v_mov_b32_dpp {v(b+4)}, {v(b+5)} row_ror:8 row_mask:0xf bank_mask:0xc')
    P(f'v_mov_b32_dpp {v(b+5)}, {v(b+5)} row_ror:8 row_mask:0xf bank_mask:0x3')
    unpack(b+8, b+9, b+4); unpack(b+6, b+7, b+5)
    P(f'v_add_f32 {v(b+6)}, 1.0, {v(b+6)}\nv_add_f32 {v(b+7)}, 1.0, {v(b+7)}\nv_cvt_pk_bf16_f32 {v(b+5)}, {v(b+6)}, {v(b+7)}')
    unpack(b+6, b+7, b+5)
    P(f'v_mul_f32 {v(b+6)}, {v(b+6)}, {v(vLN)}\nv_mul_f32 {v(b+7)}, {v(b+7)}, {v(vLN+1)}\nv_cvt_pk_bf16_f32 {v(b+5)}, {v(b+6)}, {v(b+7)}')
    unpack(b+6, b+7, b+5)
    P(f'v_add_f32 {v(b+6)}, {v(b+6)}, {v(b+8)}\nv_add_f32 {v(b+7)}, {v(b+7)}, {v(b+9)}')
    vH = 20
    P(f'v_cvt_pk_bf16_f32 {v(vH)}, {v(b+6)}, {v(b+6)}\nv_cvt_pk_bf16_f32 {v(vH+1)}, {v(b+7)}, {v(b+7)}')
    P(f's_lshl_b32 {s(sO1)}, {s(sH)}, 13\ns_add_u32 {s(sO1)}, {s(sO1)}, {hex(X2)}\ns_lshl_b32 {s(sO0)}, {s(sJ)}, 10\ns_add_u32 {s(sO0)}, {s(sO0)}, {s(sO1)}\ns_add_u32 {s(sO2)}, {s(sO1)}, 4096')
    chain(vD0, 16, [vWQ+4*i for i in range(16)], [(vH + (i & 1), f'row_newbcast:{i >> 1}') for i in range(16)], vAA)
    finish1(vD0)
    publish_loc(vD0, vL16, sO0)
    if cfg.hint:
        P(f's_lshl_b32 {s(sO3)}, {s(sH)}, 7\ns_add_u32 {s(sO3)}, {s(sO3)}, {hex(X2F)}\nv_mov_b32 {v(vT)}, 0\ns_lshl_b32 {s(sT0)}, {s(sJ)}, 2\ns_add_u32 {s(sT0)}, {s(sT0)}, {s(sO3)}')
        setexec(1)
        P(f'buffer_store_dword {v(vD0+2)}, {v(vT)}, {S(SRD_WS)}, {s(sT0)} offen sc1')
        setexec(ALL)
    stamp('C0_x2pub')
    P(f'v_bfe_u32 {v(vT)}, {v(vL)}, 4, 1\nv_lshrrev_b32 {v(vT+1)}, 5, {v(vL)}\nv_lshl_add_u32 {v(vT)}, {v(vT)}, 1, {v(vT+1)}\nv_and_b32 {v(vT+1)}, 15, {v(vL)}\nv_lshl_add_u32 {v(vT)}, {v(vT+1)}, 2, {v(vT)}')
    P(f'v_lshlrev_b32 {v(vT)}, 2, {v(vT)}\nv_add_u32 {v(26)}, {hex(L_Q)}, {v(vT)}')
    P(f'v_and_b32 {v(27)}, 3, {v(vL)}\nv_lshlrev_b32 {v(27)}, 3, {v(27)}\nv_add_u32 {v(27)}, {hex(L_FLAG + 4)}, {v(27)}\nv_mov_b32 {v(25)}, 1')
    if cfg.hint: hint_wait('qh', sO3)
    stamp('C0_qh')
    if cfg.sleep2: P(f's_sleep {cfg.sleep2}')
    def gather8(base_lo, base_hi):
        def issue():
            for k in range(8):
                P(f'buffer_load_dwordx4 {v(vGA+4*k,4)}, {v(vL16)}, {S(SRD_WS)}, {s(base_lo if k < 4 else base_hi)} offen offset:{1024*(k & 3)} sc1')
        return issue
    def sum8():
        for a, b2 in ((0, 1), (2, 3), (4, 5), (6, 7), (0, 2), (4, 6), (0, 4)):
            for e in (0, 1): P(f'v_add_f32 {v(vGA+4*a+e)}, {v(vGA+4*a+e)}, {v(vGA+4*b2+e)}')
    tagcheck_loop(gather8(sO1, sO2), [vGA+4*k+2 for k in range(8)], 'q')
    stamp('C0_q')
    sum8()
    P(f'v_cvt_pk_bf16_f32 {v(vT)}, {v(vGA)}, {v(vGA+1)}')
    P(f'ds_write_b32 {v(26)}, {v(vT)}')
    P(f'ds_write_b32 {v(27)}, {v(25)}')
    P('L_QKP:')
    vKR, vQ, vKB, vDQ, vS2, vE, vML = 8, 128, 144, 28, 208, 210, 216
    sM2 = sG
    P(f's_sub_u32 {s(sT2)}, {s(sW)}, 4\ns_lshl_b32 {s(sT0)}, {s(sT2)}, 3\ns_add_u32 {s(sT0)}, {s(sT0)}, {hex(L_FLAG)}\nv_mov_b32 {v(vT+2)}, {s(sT0)}')
    P(f'v_and_b32 {v(vT)}, 15, {v(vL)}\nv_lshrrev_b32 {v(vT+1)}, 4, {v(vL)}\nv_lshlrev_b32 {v(26)}, 4, {v(vT+1)}\nv_xor_b32 {v(vT+1)}, {v(vT+1)}, {v(vT)}\nv_lshlrev_b32 {v(vT+1)}, 4, {v(vT+1)}\nv_lshl_add_u32 {v(vKR)}, {v(vT)}, 8, {v(vT+1)}')
    P(f's_lshl_b32 {s(sT0)}, {s(sT2)}, 15\nv_add_u32 {v(vKR)}, {s(sT0)}, {v(vKR)}')
    for q in range(1, 4): P(f'v_xor_b32 {v(vKR+q)}, {64*q}, {v(vKR)}')
    P(f'v_and_b32 {v(27)}, 7, {v(vL)}\nv_lshl_add_u32 {v(27)}, {v(27)}, 6, {v(26)}\nv_bfe_u32 {v(vT)}, {v(vL)}, 3, 1\nv_lshl_add_u32 {v(27)}, {v(vT)}, 3, {v(27)}')
    P(f's_lshl_b32 {s(sT0)}, {s(sT2)}, 9\ns_add_u32 {s(sT0)}, {s(sT0)}, {hex(L_P)}\nv_add_u32 {v(27)}, {s(sT0)}, {v(27)}\nv_add_u32 {v(26)}, {hex(L_Q)}, {v(26)}')
    P(f's_lshl_b32 {s(sT0)}, {s(sT2)}, 4\ns_add_u32 {s(sT0)}, {s(sT0)}, {hex(L_MS)}\nv_mov_b32 {v(25)}, {s(sT0)}\nv_mov_b32 {v(vML+2)}, 1\nv_mov_b32 {v(vML+3)}, 1')
    P(f's_mov_b32 {s(sMASK)}, 0x00010001\ns_mov_b32 {s(sMASK+1)}, 0x00010001\ns_mov_b32 {s(sM2)}, 0x01000100\ns_mov_b32 {s(sM2+1)}, 0x01000100')
    lds_wait('kq', vT+2, 2, 28, [28, 29], cfg.lsleep)
    stamp('C0_kready')
    for q in range(4): P(f'ds_read_b128 {v(vQ+4*q,4)}, {v(26)} offset:{64*q}')
    NB = 3; PD = NB - 1; NT = 8
    def kread(t, q): P(f'ds_read_b128 {v(vKB+16*(t % NB)+4*q,4)}, {v(vKR+q)} offset:{4096*t}')
    for t in range(PD):
        for q in range(4): kread(t, q)
    for t in range(NT + 1):
        u = t - 1
        for q in range(4):
            if t < NT:
                if q in (0, 2): P(f's_waitcnt lgkmcnt({min(4*PD - 2, 4*(NT - t) - 2 - q)})')
                mfma(vDQ + 4*(t & 1), vKB + 16*(t % NB) + 4*q, vQ + 4*q, first=(q == 0))
                if t + PD < NT: kread(t + PD, q)
            if t >= 1 and q >= 2:
                mk = sMASK if q == 2 else sM2
                for e in range(2):
                    P(f'v_cndmask_b32 {v(vS2+e)}, {v(vS2+e)}, {v(vDQ+4*(u & 1)+2*(q-2)+e)}, {s(mk,2)}')
        if t >= 1 and t < NT: P(f's_lshl_b64 {s(sMASK,2)}, {s(sMASK,2)}, 1\ns_lshl_b64 {s(sM2,2)}, {s(sM2,2)}, 1')
    stamp('C0_qk')
    P(f'v_cvt_pk_bf16_f32 {v(vE)}, {v(vS2)}, {v(vS2+1)}'); unpack(vS2, vS2+1, vE)
    for e in range(2): P(f'v_mul_f32 {v(vS2+e)}, {SCALE}, {v(vS2+e)}')
    P(f'v_cvt_pk_bf16_f32 {v(vE)}, {v(vS2)}, {v(vS2+1)}'); unpack(vS2, vS2+1, vE)
    P(f'v_max_f32 {v(vML)}, {v(vS2)}, {v(vS2+1)}')
    wave_reduce('v_max_f32', [vML])
    P(f'v_readlane_b32 {s(sT0)}, {v(vML)}, 63')
    for e in range(2): P(f'v_subrev_f32 {v(vE+e)}, {s(sT0)}, {v(vS2+e)}')
    for e in range(2): P(f'v_mul_f32 {v(vE+e)}, {LOG2E}, {v(vE+e)}')
    for e in range(2): P(f'v_exp_f32 {v(vE+e)}, {v(vE+e)}')
    P(f'v_add_f32 {v(vML+1)}, {v(vE)}, {v(vE+1)}')
    wave_reduce('v_add_f32', [vML+1])
    setexec(1 << 63)
    P(f'ds_write_b128 {v(25)}, {v(vML,4)}')
    setexec(ALL)
    P(f's_cmp_eq_u32 {s(sW)}, 4\ns_cbranch_scc1 L_C0ML')
    P(f's_cmp_eq_u32 {s(sW)}, 5\ns_cbranch_scc0 L_MLWAIT\ns_cmp_eq_u32 {s(sR)}, 99\ns_cbranch_scc0 L_MLWAIT')
    modtile_compute(0, sO2)
    P('L_MLWAIT:')
    P(f'v_mov_b32 {v(vT+2)}, {hex(L_ML)}')
    lds_wait('mlw', vT+2, 4, vML, [vML+2], cfg.lsleep)
    P('s_branch L_PCALC')
    P('L_C0ML:')
    P(f'v_and_b32 {v(vT+2)}, 3, {v(vL)}\nv_lshlrev_b32 {v(vT+2)}, 4, {v(vT+2)}\nv_add_u32 {v(vT+2)}, {hex(L_MS)}, {v(vT+2)}')
    P(f's_lshl_b32 {s(sO1)}, {s(sH)}, 7\ns_add_u32 {s(sO1)}, {s(sO1)}, {hex(X3)}\ns_lshl_b32 {s(sO0)}, {s(sJ)}, 4\ns_add_u32 {s(sO0)}, {s(sO0)}, {s(sO1)}')
    lds_wait('msw', vT+2, 4, 220, [222])
    P(f'v_max_f32_dpp {v(vML)}, {v(220)}, {v(220)} quad_perm:[1,0,3,2] row_mask:0xf bank_mask:0xf\nv_mov_b32 {v(vML+2)}, {s(sTAG)}\nv_mov_b32 {v(vML+3)}, {s(sTAG)}')
    P(f'v_max_f32_dpp {v(vML)}, {v(vML)}, {v(vML)} quad_perm:[2,3,0,1] row_mask:0xf bank_mask:0xf')
    P(f'v_sub_f32 {v(220)}, {v(220)}, {v(vML)}\nv_mul_f32 {v(220)}, {LOG2E}, {v(220)}\nv_exp_f32 {v(220)}, {v(220)}\nv_mov_b32 {v(vT)}, 0\nv_mul_f32 {v(vML+1)}, {v(220)}, {v(221)}')
    for mod in ('quad_perm:[1,0,3,2]', 'quad_perm:[2,3,0,1]'): P(f'v_add_f32_dpp {v(vML+1)}, {v(vML+1)}, {v(vML+1)} {mod} row_mask:0xf bank_mask:0xf')
    publish(vML, vT, sO0, 1)
    stamp('C0_x3pub')
    P(f's_add_u32 {s(sMASK)}, {s(sWSP)}, {s(sO1)}\ns_addc_u32 {s(sMASK+1)}, {s(sWSP+1)}, 0\ns_mov_b32 {s(sSPIN)}, 0')
    gl = [4 + 4*k for k in range(8)]
    P('L_MLW:')
    if cfg.sleep3: P(f's_sleep {cfg.sleep3}')
    P(f's_load_dwordx16 s[4:19], {s(sMASK,2)}, 0 glc\ns_load_dwordx16 s[20:35], {s(sMASK,2)}, 64 glc')
    P(f's_add_u32 {s(sSPIN)}, {s(sSPIN)}, 1\ns_cmp_gt_u32 {s(sSPIN)}, {cfg.spin}\ns_cbranch_scc1 L_END')
    P('s_waitcnt lgkmcnt(0)')
    P(f's_xor_b32 {s(sT0)}, {s(gl[0]+2)}, {s(sTAG)}')
    for g in gl[1:]: P(f's_xor_b32 {s(sT1)}, {s(g+2)}, {s(sTAG)}\ns_or_b32 {s(sT0)}, {s(sT0)}, {s(sT1)}')
    P('s_cbranch_scc1 L_MLW')
    stamp('C0_ml')
    vG8 = 220
    P(f'v_mov_b32 {v(vML)}, {s(gl[0])}')
    for g in gl[1:]: P(f'v_max_f32 {v(vML)}, {s(g)}, {v(vML)}')
    for k, g in enumerate(gl): P(f'v_sub_f32 {v(vG8+k)}, {s(g)}, {v(vML)}')
    for k in range(8): P(f'v_mul_f32 {v(vG8+k)}, {LOG2E}, {v(vG8+k)}')
    for k in range(8): P(f'v_exp_f32 {v(vG8+k)}, {v(vG8+k)}')
    P(f'v_mul_f32 {v(vE)}, {s(gl[0]+1)}, {v(vG8)}')
    for k, g in enumerate(gl[1:]): P(f'v_fmac_f32 {v(vE)}, {s(g+1)}, {v(vG8+k+1)}')
    P(f'v_rcp_f32 {v(vE+1)}, {v(vE)}\nv_mov_b32 {v(vT+2)}, {hex(L_ML)}\nv_mov_b32 {v(vML+2)}, 1')
    P(f'v_fma_f32 {v(vE)}, -{v(vE)}, {v(vE+1)}, 1.0\nv_fma_f32 {v(vML+1)}, {v(vE)}, {v(vE+1)}, {v(vE+1)}')
    setexec(1)
    P(f'ds_write_b128 {v(vT+2)}, {v(vML,4)}')
    setexec(ALL)
    P('L_PCALC:')
    for e in range(2): P(f'v_sub_f32 {v(vE+e)}, {v(vS2+e)}, {v(vML)}')
    for e in range(2): P(f'v_mul_f32 {v(vE+e)}, {LOG2E}, {v(vE+e)}')
    for e in range(2): P(f'v_exp_f32 {v(vE+e)}, {v(vE+e)}')
    for e in range(2): P(f'v_mul_f32 {v(vE+e)}, {v(vE+e)}, {v(vML+1)}')
    for e in range(2): P(f'v_cvt_pk_bf16_f32 {v(vE+e)}, {v(vE+e)}, {v(vE+e)}')
    P(f'ds_write_b64 {v(27)}, {v(vE,2)}')
    srd(SRD_WS, sWSP, WS_BYTES)
    P(f's_cmp_eq_u32 {s(sW)}, 4\ns_cbranch_scc1 L_C0B1')
    P('s_waitcnt lgkmcnt(0)')
    P('s_barrier')
    P(f's_cmp_eq_u32 {s(sW)}, 5\ns_cbranch_scc1 L_C1B1')
    P('s_branch L_C23B1')
    P('L_C0B1:')
    srd(SRD_A, pWO, 4 << 20)
    P(f'v_bfe_u32 {v(vT)}, {v(vL)}, 3, 1\nv_lshlrev_b32 {v(vT)}, 16, {v(vT)}\nv_bfe_u32 {v(vT+1)}, {v(vL)}, 4, 1\nv_lshl_add_u32 {v(vT)}, {v(vT+1)}, 12, {v(vT)}\nv_lshrrev_b32 {v(vT+1)}, 5, {v(vL)}\nv_lshl_add_u32 {v(vT)}, {v(vT+1)}, 11, {v(vT)}')
    P(f'v_and_b32 {v(vT+1)}, 7, {v(vL)}\nv_lshl_add_u32 {v(vWA)}, {v(vT+1)}, 4, {v(vT)}')
    P(f's_lshl_b32 {s(sO0)}, {s(sH)}, 17\ns_lshl_b32 {s(sT0)}, {s(sJ)}, 7\ns_add_u32 {s(sO0)}, {s(sO0)}, {s(sT0)}')
    P('s_waitcnt lgkmcnt(0)')
    stamp('C0_p')
    P('s_barrier')
    vWO = 64
    for i in range(16):
        P(f'buffer_load_dwordx4 {v(vWO+4*i,4)}, {v(vWA)}, {S(SRD_A)}, {s(sO0)} offen offset:{1024*(i & 1)} {cfg.wpol}')
        if (i & 1) == 1 and i < 15: P(f's_add_u32 {s(sO0)}, {s(sO0)}, 8192')
    P(f'v_lshrrev_b32 {v(vT+2)}, 1, {v(vL16)}\nv_add_u32 {v(vT+2)}, {hex(L_OP)}, {v(vT+2)}')
    P(f's_lshl_b32 {s(sO1)}, {s(sH)}, 13\ns_add_u32 {s(sO1)}, {s(sO1)}, {hex(XA)}\ns_lshl_b32 {s(sO0)}, {s(sJ)}, 10\ns_add_u32 {s(sO0)}, {s(sO0)}, {s(sO1)}\ns_add_u32 {s(sO2)}, {s(sO1)}, 4096')
    P(f's_lshl_b32 {s(sO3)}, {s(sJ)}, 5\ns_add_u32 {s(sO3)}, {s(sO3)}, {s(sH)}\ns_lshl_b32 {s(sO3)}, {s(sO3)}, 9\ns_add_u32 {s(sO3)}, {s(sO3)}, {hex(XB)}')
    P(f'v_mov_b32 {v(22)}, {s(sTAG)}')
    vAP, vDNA, vCA, vEA = 8, 10, 11, 12
    sQ, sW2, sDN, sEP, sEG, sDP, sC0 = 4, 6, 8, 9, 10, 11, 12
    P(f's_sub_u32 {s(sT0)}, {s(sKK)}, 8\ns_cmp_lt_u32 {s(sKK)}, 8\ns_cselect_b32 {s(sT1)}, {s(sKK)}, {s(sT0)}\ns_and_b32 {s(sQ)}, {s(sT1)}, 3\ns_lshr_b32 {s(sT1)}, {s(sT1)}, 2')
    P(f's_mul_i32 {s(sIM)}, {s(sX)}, 6\ns_add_u32 {s(sIM)}, {s(sIM)}, {s(sT1)}\ns_cmp_lt_u32 {s(sT0)}, 8\ns_cselect_b32 {s(sIM)}, 255, {s(sIM)}')
    srd(SRD_B, pW2, 1376*1024)
    P(f'v_lshrrev_b32 {v(vT)}, 3, {v(vL)}\nv_mul_u32_u24 {v(vT)}, {16*2752}, {v(vT)}\nv_and_b32 {v(vT+1)}, 3, {v(vL)}\nv_lshl_add_u32 {v(vT)}, {v(vT+1)}, 4, {v(vT)}')
    P(f's_mul_i32 {s(sT0)}, {s(sQ)}, {128*2752}\ns_min_u32 {s(sT1)}, {s(sIM)}, {NM-1}\ns_lshl_b32 {s(sT1)}, {s(sT1)}, 6\ns_add_u32 {s(sT0)}, {s(sT0)}, {s(sT1)}\nv_add_u32 {v(vT)}, {s(sT0)}, {v(vT)}')
    P(f's_mov_b32 {s(sMASK)}, 0xf0f0f0f0\ns_mov_b32 {s(sMASK+1)}, 0xf0f0f0f0\ns_mov_b32 {s(sW2)}, 2752*2\ns_mov_b32 {s(sW2+1)}, 0')
    P(f'v_mov_b32 {v(vAP)}, {s(pW1)}\nv_mov_b32 {v(vAP+1)}, {s(pW1+1)}\nv_mov_b32 {v(vT+1)}, {s(pW3)}\nv_mov_b32 {v(vCA)}, {s(pW3+1)}')
    P(f'v_cndmask_b32 {v(vAP)}, {v(vAP)}, {v(vT+1)}, {s(sMASK,2)}\nv_cndmask_b32 {v(vAP+1)}, {v(vAP+1)}, {v(vCA)}, {s(sMASK,2)}')
    P(f'v_add_co_u32 {v(vAP)}, vcc, {v(vAP)}, {v(vT)}\nv_addc_co_u32 {v(vAP+1)}, vcc, 0, {v(vAP+1)}, vcc')
    P(f'v_bfe_u32 {v(vT)}, {v(vL)}, 4, 1\nv_lshlrev_b32 {v(vDNA)}, 12, {v(vT)}\nv_lshrrev_b32 {v(vT)}, 5, {v(vL)}\nv_lshl_add_u32 {v(vDNA)}, {v(vT)}, 11, {v(vDNA)}\nv_and_b32 {v(vT)}, 15, {v(vL)}\nv_lshl_add_u32 {v(vDNA)}, {v(vT)}, 4, {v(vDNA)}')
    P(f's_lshl_b32 {s(sDN)}, {s(sIM)}, 15\ns_lshl_b32 {s(sT0)}, {s(sQ)}, 8\ns_add_u32 {s(sDN)}, {s(sDN)}, {s(sT0)}')
    P(f's_lshl_b32 {s(sEG)}, {s(sIM)}, 11\ns_add_u32 {s(sEG)}, {s(sEG)}, {hex(XE)}\ns_lshl_b32 {s(sT0)}, {s(sQ)}, 9\ns_add_u32 {s(sEP)}, {s(sEG)}, {s(sT0)}')
    P(f's_lshl_b32 {s(sDP)}, {s(sIM)}, 12\ns_lshl_b32 {s(sT0)}, {s(sQ)}, 10\ns_add_u32 {s(sDP)}, {s(sDP)}, {s(sT0)}\ns_add_u32 {s(sDP)}, {s(sDP)}, {hex(XD)}')
    P(f's_lshl_b32 {s(sT1)}, {s(sX)}, 12\ns_add_u32 {s(sT1)}, {s(sT1)}, {hex(XC)}' if cfg.xcrep else f's_mov_b32 {s(sT1)}, {hex(XC)}')
    for k in range(4): P(f's_add_u32 {s(sT0)}, {s(sQ)}, {k}\ns_and_b32 {s(sT0)}, {s(sT0)}, 3\ns_lshl_b32 {s(sT0)}, {s(sT0)}, 10\ns_add_u32 {s(sC0+k)}, {s(sT0)}, {s(sT1)}')
    P(f'v_lshrrev_b32 {v(vT)}, 5, {v(vL)}\nv_lshlrev_b32 {v(vCA)}, 9, {v(vT)}\nv_bfe_u32 {v(vT)}, {v(vL)}, 1, 1\nv_lshl_add_u32 {v(vCA)}, {v(vT)}, 7, {v(vCA)}\nv_and_b32 {v(vT)}, 1, {v(vL)}\nv_lshl_add_u32 {v(vCA)}, {v(vT)}, 8, {v(vCA)}')
    P(f'v_bfe_u32 {v(vT)}, {v(vL)}, 4, 1\nv_lshl_add_u32 {v(vCA)}, {v(vT)}, 6, {v(vCA)}\nv_bfe_u32 {v(vT)}, {v(vL)}, 2, 2\nv_lshl_add_u32 {v(vCA)}, {v(vT)}, 4, {v(vCA)}')
    P(f'v_bfe_u32 {v(vT)}, {v(vL)}, 3, 1\nv_lshlrev_b32 {v(vT)}, 9, {v(vT)}\nv_add_u32 {v(vEA)}, {v(vPUB)}, {v(vT)}')
    P('s_barrier')
    stamp('C0_b2')
    for w in range(4): P(f'ds_read_b64 {v(24+2*w,2)}, {v(vT+2)} offset:{512*w}')
    P('s_waitcnt lgkmcnt(2)')
    for e in range(2): P(f'v_add_f32 {v(24+e)}, {v(24+e)}, {v(26+e)}')
    P('s_waitcnt lgkmcnt(0)')
    for e in range(2): P(f'v_add_f32 {v(28+e)}, {v(28+e)}, {v(30+e)}')
    for e in range(2): P(f'v_add_f32 {v(20+e)}, {v(24+e)}, {v(28+e)}')
    publish_loc(20, vL16, sO0)
    stamp('C0_xapub')
    vOd = 40
    def issue(b):
        for k in range(8):
            P(f'buffer_load_dwordx4 {v(b+4*k,4)}, {v(vL16)}, {S(SRD_WS)}, {s(sO1 if k < 4 else sO2)} offen offset:{1024*(k & 3)} sc1')
    def done(b):
        for a, b2 in ((0, 1), (2, 3), (4, 5), (6, 7), (0, 2), (4, 6), (0, 4)):
            for e in (0, 1): P(f'v_add_f32 {v(b+4*a+e)}, {v(b+4*a+e)}, {v(b+4*b2+e)}')
        P(f'v_cvt_pk_bf16_f32 {v(vOd)}, {v(b)}, {v(b)}\nv_cvt_pk_bf16_f32 {v(vOd+1)}, {v(b+1)}, {v(b+1)}')
    poll('xa', issue, 8, 128, 32, [4*k+2 for k in range(8)], done)
    stamp('C0_xa')
    lohi(vOd)
    chain(vD0, 16, [vWO+4*i for i in range(16)], lohi_srcs(vOd), vAA)
    finish2(vD0)
    publish(vD0, vPUB, sO3, M2SET)
    stamp('C0_xbpub')
    P(f's_cmp_lt_u32 {s(sIM)}, {NM}\ns_cbranch_scc0 L_END')
    vUP, vDN, vCG, vEG = 128, 192, 64, 80
    for i in range(16):
        P(f'global_load_dwordx4 {v(vUP+4*i,4)}, {v(vAP,2)}, off offset:{2752*(i & 1)} {cfg.wpol}')
        if i & 1 and i < 15: P(f'v_lshl_add_u64 {v(vAP,2)}, {v(vAP,2)}, 0, {s(sW2,2)}')
    for i in range(8):
        P(f'buffer_load_dwordx4 {v(vDN+4*i,4)}, {v(vDNA)}, {S(SRD_B)}, {s(sDN)} offen offset:{1024*(i & 1)} {cfg.wpol}')
        if i & 1 and i < 7: P(f's_add_u32 {s(sDN)}, {s(sDN)}, 8192')
    if cfg.diag and 'M_w' in cfg.diag:
        P('s_waitcnt vmcnt(0)'); stamp('M_w')
    def issue():
        for k in range(4): P(f'buffer_load_dwordx4 {v(vCG+4*k,4)}, {v(vCA)}, {S(SRD_WS)}, {s(sC0+k)} offen sc1')
    tagcheck_loop(issue, [vCG+4*k+3 for k in range(4)], 'xc')
    stamp('M_xc')
    vx = 88
    for k in range(4): unpack(vx+2*k, vx+2*k+1, vCG+4*k)
    P(f'v_readfirstlane_b32 {s(sT0)}, {v(vx)}')
    vcb, vsb = 24, 26
    unpack(vcb, vcb+1, vCG+1); unpack(vsb, vsb+1, vCG+2)
    for k in range(8): P(f'v_subrev_f32 {v(96+k)}, {s(sT0)}, {v(vx+k)}')
    P(f'v_pk_add_f32 {v(20,2)}, {v(96,2)}, {v(98,2)}\nv_pk_add_f32 {v(22,2)}, {v(100,2)}, {v(102,2)}\nv_pk_mul_f32 {v(28,2)}, {v(96,2)}, {v(96,2)}\nv_pk_mul_f32 {v(30,2)}, {v(100,2)}, {v(100,2)}')
    P(f'v_pk_add_f32 {v(20,2)}, {v(20,2)}, {v(22,2)}\nv_pk_fma_f32 {v(28,2)}, {v(98,2)}, {v(98,2)}, {v(28,2)}\nv_pk_fma_f32 {v(30,2)}, {v(102,2)}, {v(102,2)}, {v(30,2)}')
    P(f'v_add_f32 {v(22)}, {v(20)}, {v(21)}\nv_pk_add_f32 {v(28,2)}, {v(28,2)}, {v(30,2)}\nv_add_f32 {v(23)}, {v(28)}, {v(29)}')
    for mod in ('quad_perm:[1,0,3,2]', 'quad_perm:[2,3,0,1]', 'row_ror:4', 'row_ror:8'):
        for r in (22, 23): P(f'v_add_f32_dpp {v(r)}, {v(r)}, {v(r)} {mod} row_mask:0xf bank_mask:0xf')
    P(f'v_permlane16_swap_b32 {v(22)}, {v(23)}\nv_add_f32 {v(22)}, {v(22)}, {v(23)}\nv_mov_b32 {v(23)}, {v(22)}')
    P(f'v_permlane32_swap_b32 {v(22)}, {v(23)}\nv_add_f32 {v(22)}, {v(22)}, {v(23)}\nv_mul_f32 {v(22)}, {R512}, {v(22)}')
    P(f'v_readlane_b32 {s(sT1)}, {v(22)}, 0\nv_readlane_b32 {s(sT2)}, {v(22)}, 16')
    P(f'v_mov_b32 {v(22)}, {s(sT1)}\nv_mov_b32 {v(23)}, {s(sT2)}')
    P(f'v_fma_f32 {v(23)}, -{v(22)}, {v(22)}, {v(23)}\nv_add_f32 {v(22)}, {s(sT0)}, {v(22)}\nv_max_f32 {v(23)}, 0, {v(23)}')
    P(f'v_cvt_pk_bf16_f32 {v(22)}, {v(22)}, {v(23)}')
    P(f'v_and_b32 {v(23)}, 0xffff0000, {v(22)}\nv_lshlrev_b32 {v(22)}, 16, {v(22)}\nv_add_f32 {v(23)}, {EPS}, {v(23)}')
    P(f'v_sub_f32 {v(20)}, {v(vx)}, {v(22)}\nv_sub_f32 {v(21)}, {v(vx+1)}, {v(22)}')
    P(f'v_cvt_pk_bf16_f32 {v(23)}, {v(23)}, {v(23)}\nv_cvt_pk_bf16_f32 {v(20)}, {v(20)}, {v(21)}\nv_and_b32 {v(23)}, 0xffff0000, {v(23)}\nv_sqrt_f32 {v(23)}, {v(23)}')
    unpack(vx, vx+1, 20)
    P(f'v_cvt_pk_bf16_f32 {v(23)}, {v(23)}, {v(23)}\nv_and_b32 {v(23)}, 0xffff0000, {v(23)}\nv_rcp_f32 {v(22)}, {v(23)}')
    P(f'v_mul_f32 {v(20)}, {v(vx)}, {v(22)}\nv_mul_f32 {v(21)}, {v(vx+1)}, {v(22)}')
    P(f'v_fma_f32 {v(vx)}, -{v(20)}, {v(23)}, {v(vx)}\nv_fma_f32 {v(vx+1)}, -{v(21)}, {v(23)}, {v(vx+1)}')
    P(f'v_fma_f32 {v(20)}, {v(vx)}, {v(22)}, {v(20)}\nv_fma_f32 {v(21)}, {v(vx+1)}, {v(22)}, {v(21)}')
    P(f'v_cvt_pk_bf16_f32 {v(20)}, {v(20)}, {v(21)}')
    unpack(vx, vx+1, 20)
    P(f'v_mul_f32 {v(vx)}, {v(vx)}, {v(vcb)}\nv_mul_f32 {v(vx+1)}, {v(vx+1)}, {v(vcb+1)}\nv_cvt_pk_bf16_f32 {v(20)}, {v(vx)}, {v(vx+1)}')
    unpack(vx, vx+1, 20)
    P(f'v_add_f32 {v(vx)}, {v(vx)}, {v(vsb)}\nv_add_f32 {v(vx+1)}, {v(vx+1)}, {v(vsb+1)}')
    P(f'v_cvt_pk_bf16_f32 {v(vOd)}, {v(vx)}, {v(vx)}\nv_cvt_pk_bf16_f32 {v(vOd+1)}, {v(vx+1)}, {v(vx+1)}')
    lohi(vOd)
    stamp('M_h2')
    chain(vD0, 16, [vUP+4*i for i in range(16)], lohi_srcs(vOd), vAA)
    finish2(vD0)
    publish_loc(vD0, vPUB, sEP, M2SET, sR)
    stamp('M_up')
    def issue():
        for k in range(2): P(f'buffer_load_dwordx4 {v(vEG+4*k,4)}, {v(vEA)}, {S(SRD_WS)}, {s(sEG)} offen offset:{1024*k} sc1')
    tagcheck_loop(issue, [vEG+2, vEG+6], 'xe')
    stamp('M_xe')
    for e in range(2): P(f'v_add_f32 {v(20+e)}, {v(vEG+e)}, {v(vEG+4+e)}')
    for e in range(2): P(f'v_add_f32_dpp {v(20+e)}, {v(20+e)}, {v(20+e)} row_ror:8 row_mask:0xf bank_mask:0xf')
    P(f'v_cvt_pk_bf16_f32 {v(22)}, {v(20)}, {v(21)}')
    unpack(20, 21, 22)
    P(f'v_mov_b32_dpp {v(24)}, {v(22)} row_shl:4 row_mask:0xf bank_mask:0xf')
    silu_multi([20, 21], [22, 23])
    unpack(26, 27, 24)
    P(f'v_cvt_pk_bf16_f32 {v(22)}, {v(20)}, {v(21)}')
    unpack(20, 21, 22)
    P(f'v_mul_f32 {v(20)}, {v(20)}, {v(26)}\nv_mul_f32 {v(21)}, {v(21)}, {v(27)}')
    for e in range(2): P(f'v_cvt_pk_bf16_f32 {v(20+e)}, {v(20+e)}, {v(20+e)}')
    stamp('M_act')
    chain(vD0, 8, [vDN+4*i for i in range(8)], [(20 + (i & 1), f'row_newbcast:{i >> 1}') for i in range(8)], vAA)
    finish1(vD0)
    publish(vD0, vL16, sDP)
    stamp('M_end')
    P('s_branch L_END')

    P('L_C123:')
    common_setup()
    P(f's_cmp_eq_u32 {s(sW)}, 5\ns_cbranch_scc1 L_C1')
    P(f's_cmp_eq_u32 {s(sW)}, 6\ns_cbranch_scc0 L_C3')
    P(f's_getpc_b64 {s(20,2)}')
    P('L_PCREF:')
    P(f's_sub_u32 s20, s20, L_PCREF-{NAME}_kernel\ns_subb_u32 s21, s21, 0')
    P(f's_lshl_b32 {s(sT0)}, {s(sKK)}, 3\nv_and_b32 {v(vT)}, 7, {v(vL)}\nv_add_u32 {v(vT)}, {s(sT0)}, {v(vT)}\nv_lshlrev_b32 {v(vT)}, 7, {v(vT)}')
    P(f'v_min_u32 {v(vT)}, L_CODE_END-{NAME}_kernel-4, {v(vT)}')
    P(f'global_load_dword {v(240)}, {v(vT)}, s[20:21]')
    P('L_C3:')
    P('s_waitcnt lgkmcnt(0)')
    P(f's_add_u32 {s(sTAG)}, {s(sTAG)}, 1')
    P('s_branch L_QKP')
    P('L_C23B1:')
    P('s_barrier')
    P('s_branch L_END')

    P('L_C1:')
    P('s_waitcnt lgkmcnt(0)')
    P(f's_add_u32 {s(sTAG)}, {s(sTAG)}, 1')
    P(f's_mov_b32 {s(sR)}, 0\ns_sub_u32 {s(sT0)}, {s(sKK)}, 8\ns_cmp_lt_u32 {s(sT0)}, 16\ns_cbranch_scc1 L_QKP')
    P(f'v_mov_b32 {v(vT+2)}, {hex(L_FLAG + 8)}')
    lds_wait('k1', vT+2, 1, 28, [28], 8)
    P(f's_and_b32 {s(sT0)}, {s(sKK)}, 7\ns_lshr_b32 {s(sT1)}, {s(sKK)}, 4\ns_lshl_b32 {s(sT1)}, {s(sT1)}, 3\ns_add_u32 {s(sT0)}, {s(sT0)}, {s(sT1)}')
    P(f's_lshl_b32 {s(sT0)}, {s(sT0)}, 3\ns_add_u32 {s(sT0)}, {s(sT0)}, {s(sX)}\ns_and_b32 {s(sT1)}, {s(sT0)}, 31\ns_lshr_b32 {s(sT0)}, {s(sT0)}, 5')
    P(f's_lshl_b32 {s(sO2)}, {s(sT1)}, 2\ns_add_u32 {s(sO2)}, {s(sO2)}, {s(sT0)}\ns_lshl_b32 {s(sO2)}, {s(sO2)}, 9\ns_add_u32 {s(sO2)}, {s(sO2)}, {hex(X4)}')
    P(f's_lshl_b32 {s(sT1)}, {s(sT1)}, 7\ns_add_u32 {s(sT1)}, {s(sT1)}, 2048')
    modtile_issue(sT0, sT1)
    P(f's_mov_b32 {s(sR)}, 99\ns_branch L_QKP')
    P('L_C1B1:')
    P(f's_sub_u32 {s(sT0)}, {s(sKK)}, 8\ns_cmp_lt_u32 {s(sT0)}, 8\ns_cbranch_scc1 L_RED')
    P('s_barrier')
    P('s_branch L_END')
    P('L_RED:')
    vg = 64
    srd(SRD_A, pX, 1024); srd(SRD_B, pOUT, 1024)
    vXv, vGAv, vGBv, vU16, vBA, vDA, vXC = 12, 13, 14, 15, 16, 17, 20
    sR8, sG64 = sG, sG+1
    P(f's_mov_b32 {s(sR8)}, {s(sT0)}\ns_lshl_b32 {s(sG64)}, {s(sT0)}, 6\ns_lshl_b32 {s(sR)}, {s(sX)}, 3\ns_add_u32 {s(sR)}, {s(sR)}, {s(sT0)}')
    P(f's_lshl_b32 {s(sO0)}, {s(sX)}, 7\ns_and_b32 {s(sT1)}, {s(sR8)}, 1\ns_lshl_b32 {s(sT1)}, {s(sT1)}, 6\ns_add_u32 {s(sO0)}, {s(sO0)}, {s(sT1)}')
    P(f's_and_b32 {s(sT1)}, {s(sR8)}, 2\ns_lshl_b32 {s(sT1)}, {s(sT1)}, 2\ns_add_u32 {s(sO0)}, {s(sO0)}, {s(sT1)}\ns_and_b32 {s(sT1)}, {s(sR8)}, 4\ns_add_u32 {s(sG+2)}, {s(sO0)}, {s(sT1)}')
    P(f'v_and_b32 {v(vU16)}, 3, {v(vL)}\nv_lshlrev_b32 {v(vU16)}, 4, {v(vU16)}\nv_bfe_u32 {v(vT+1)}, {v(vL)}, 4, 1\nv_lshl_add_u32 {v(vT)}, {v(vT+1)}, 1, {v(vU16)}')
    P(f'buffer_load_ushort {v(vXv)}, {v(vT)}, {S(SRD_A)}, {s(sG+2)} offen')
    P(f'v_lshrrev_b32 {v(vT)}, 4, {v(vL)}\nv_lshlrev_b32 {v(vT)}, 14, {v(vT)}\nv_bfe_u32 {v(vT+1)}, {v(vL)}, 2, 2\nv_lshl_add_u32 {v(vT)}, {v(vT+1)}, 9, {v(vT)}\nv_add_u32 {v(vBA)}, {v(vT)}, {v(vU16)}')
    P(f's_lshl_b32 {s(sO0)}, {s(sX)}, 11\ns_add_u32 {s(sO0)}, {s(sO0)}, {s(sG64)}\ns_add_u32 {s(sO0)}, {s(sO0)}, {hex(X4)}')
    P('s_barrier')
    stamp('R_b2')
    tagcheck_loop(lambda: P(f'buffer_load_dwordx4 {v(vg,4)}, {v(vBA)}, {S(SRD_WS)}, {s(sO0)} offen sc1'), [vg+2], 'x4')
    for mod in ('row_ror:4', 'row_ror:8'):
        for e in range(2): P(f'v_add_f32_dpp {v(vg+e)}, {v(vg+e)}, {v(vg+e)} {mod} row_mask:0xf bank_mask:0xf')
    P(f'v_cvt_pk_bf16_f32 {v(vg)}, {v(vg)}, {v(vg+1)}')
    P(f'v_lshrrev_b32 {v(vT)}, 2, {v(vU16)}')
    P(f'ds_bpermute_b32 {v(vGAv)}, {v(vT)}, {v(vg)}\nds_bpermute_b32 {v(vXC+2)}, {v(vT)}, {v(vg)} offset:64\nds_bpermute_b32 {v(vXC+1)}, {v(vT)}, {v(vg)} offset:128\nds_bpermute_b32 {v(vGBv)}, {v(vT)}, {v(vg)} offset:192')
    P(f'v_bfe_u32 {v(vT+2)}, {v(vL)}, 4, 1\nv_lshlrev_b32 {v(vT+2)}, 4, {v(vT+2)}\nv_lshlrev_b32 {v(vXv)}, 16, {v(vXv)}\nv_mov_b32 {v(vXC+3)}, {s(sTAG)}')
    P('s_waitcnt lgkmcnt(0)')
    for r in (vGAv, vGBv): P(f'v_lshrrev_b32 {v(r)}, {v(vT+2)}, {v(r)}\nv_lshlrev_b32 {v(r)}, 16, {v(r)}')
    unpack(vg, vg+1, vXC+1)
    P(f'v_add_f32 {v(vg)}, 1.0, {v(vg)}\nv_add_f32 {v(vg+1)}, 1.0, {v(vg+1)}\nv_cvt_pk_bf16_f32 {v(vXC+1)}, {v(vg)}, {v(vg+1)}')
    P(f'v_lshrrev_b32 {v(vT)}, 2, {v(vL)}\nv_lshl_add_u32 {v(vBA)}, {v(vT)}, 9, {v(vU16)}\nv_lshl_add_u32 {v(vDA)}, {v(vT)}, 12, {v(vU16)}')
    P(f's_lshl_b32 {s(sO0)}, {s(sX)}, 14\ns_add_u32 {s(sO0)}, {s(sO0)}, {s(sG64)}\ns_add_u32 {s(sO0)}, {s(sO0)}, {hex(XB)}\ns_add_u32 {s(sO1)}, {s(sO0)}, 8192')
    P(f's_lshl_b32 {s(sO3)}, {s(sR)}, 6\ns_add_u32 {s(sO3)}, {s(sO3)}, {hex(XC)}')
    P(f's_lshr_b32 {s(sO2)}, {s(sX)}, 1\ns_lshl_b32 {s(sO2)}, {s(sO2)}, 10\ns_and_b32 {s(sT1)}, {s(sX)}, 1\ns_lshl_b32 {s(sT1)}, {s(sT1)}, 7\ns_add_u32 {s(sO2)}, {s(sO2)}, {s(sT1)}')
    P(f's_and_b32 {s(sT1)}, {s(sR8)}, 1\ns_lshl_b32 {s(sT1)}, {s(sT1)}, 6\ns_add_u32 {s(sO2)}, {s(sO2)}, {s(sT1)}\ns_lshr_b32 {s(sT1)}, {s(sR8)}, 1\ns_lshl_b32 {s(sT1)}, {s(sT1)}, 8\ns_add_u32 {s(sO2)}, {s(sO2)}, {s(sT1)}\ns_add_u32 {s(sO2)}, {s(sO2)}, {hex(XD)}')
    sD = 8
    for k in range(3): P(f's_add_u32 {s(sD+k)}, {s(sO2)}, {hex(65536*k)}')
    for i in range(cfg.pipe):
        for k in range(3): P(f'v_mov_b32 {v(128+12*i+8+k)}, {s(sTAG) if k == 2 else 0}')
    stamp('R_x4')
    def issue(b):
        for k in range(2): P(f'buffer_load_dwordx4 {v(b+4*k,4)}, {v(vBA)}, {S(SRD_WS)}, {s(sO0+k)} offen sc1')
    def done(b):
        for e in range(2): P(f'v_add_f32 {v(vg+e)}, {v(b+e)}, {v(b+4+e)}')
    poll('xb', issue, 2, 68, 8, [2, 6], done)
    stamp('R_xb')
    def colsum():
        P(f'v_permlane16_swap_b32 {v(vg)}, {v(vg+1)}')
        P(f'v_add_f32 {v(vg)}, {v(vg)}, {v(vg+1)}')
        P(f'v_add_f32_dpp {v(vg)}, {v(vg)}, {v(vg)} row_ror:4 row_mask:0xf bank_mask:0xf')
        P(f'v_add_f32_dpp {v(vg)}, {v(vg)}, {v(vg)} row_ror:8 row_mask:0xf bank_mask:0xf')
        P(f'v_mov_b32 {v(vg+1)}, {v(vg)}')
        P(f'v_permlane32_swap_b32 {v(vg)}, {v(vg+1)}')
        P(f'v_add_f32 {v(vg)}, {v(vg)}, {v(vg+1)}')
    colsum()
    rnd(vg)
    P(f'v_mul_f32 {v(vg)}, {v(vg)}, {v(vGAv)}'); rnd(vg)
    P(f'v_add_f32 {v(vg)}, {v(vg)}, {v(vXv)}\nv_mov_b32 {v(vg+1)}, {v(vg)}')
    P(f'v_permlane16_swap_b32 {v(vg)}, {v(vg+1)}')
    P(f'v_cvt_pk_bf16_f32 {v(vXC)}, {v(vg)}, {v(vg+1)}')
    publish(vXC, vDA, sO3, 0xffffffff if cfg.xcrep else 0xf)
    stamp('R_xcpub')
    P(f'v_lshrrev_b32 {v(vXv)}, {v(vT+2)}, {v(vXC)}\nv_lshlrev_b32 {v(vXv)}, 16, {v(vXv)}')
    def issue(b):
        for k in range(2): P(f'buffer_load_dwordx4 {v(b+4*k,4)}, {v(vDA)}, {S(SRD_WS)}, {s(sD+k)} offen sc1')
        setexec((1 << 44) - 1)
        P(f'buffer_load_dwordx4 {v(b+8,4)}, {v(vDA)}, {S(SRD_WS)}, {s(sD+2)} offen sc1')
        setexec(ALL)
    def done(b):
        for e in range(2): P(f'v_add_f32 {v(b+e)}, {v(b+e)}, {v(b+4+e)}')
        for e in range(2): P(f'v_add_f32 {v(vg+e)}, {v(b+e)}, {v(b+8+e)}')
    poll('xd', issue, 3, 128, 12, [2, 6, 10], done)
    stamp('R_xd')
    colsum()
    rnd(vg)
    P(f'v_mul_f32 {v(vg)}, {v(vg)}, {v(vGBv)}'); rnd(vg)
    P(f'v_add_f32 {v(vg)}, {v(vg)}, {v(vXv)}\nv_mov_b32 {v(vg+1)}, {v(vg)}')
    P(f'v_permlane16_swap_b32 {v(vg)}, {v(vg+1)}')
    P(f'v_cvt_pk_bf16_f32 {v(vg)}, {v(vg)}, {v(vg+1)}')
    setexec(0xf)
    P(f'buffer_store_dword {v(vg)}, {v(vU16)}, {S(SRD_B)}, {s(sG+2)} offen')
    stamp('R_end')
    P(f's_cmp_eq_u32 {s(sR)}, 0\ns_cbranch_scc0 L_END')
    setexec(1)
    P(f'v_mov_b32 {v(vT)}, 0\nv_mov_b32 {v(vT+1)}, {s(sTAG)}')
    P(f'buffer_store_dword {v(vT+1)}, {v(vT)}, {S(SRD_WS)}, 0 offen sc1')
    if cfg.probe:
        i = stamps[cfg.probe]
        P(f's_waitcnt lgkmcnt(0)\ns_sub_u32 {s(sT0)}, {s(sDIAG+2*i)}, {s(sDIAG)}\ns_min_u32 {s(sT0)}, {s(sT0)}, 5000\ns_memrealtime s[76:77]\ns_waitcnt lgkmcnt(0)\ns_add_u32 {s(sT0)}, {s(sT0)}, s76')
        P(f'L_PROBE:\ns_memrealtime s[76:77]\ns_waitcnt lgkmcnt(0)\ns_sub_u32 {s(sT1)}, s76, {s(sT0)}\ns_cmp_lt_i32 {s(sT1)}, 0\ns_cbranch_scc1 L_PROBE')
    P('s_branch L_END')

    P('L_END:')
    if cfg.diag and not cfg.probe:
        P('s_waitcnt lgkmcnt(0)')
        P(f's_cmp_ge_u32 {s(sB)}, 256\ns_cbranch_scc1 L_END2')
        srd(SRD_WS, sWSP, WS_BYTES)
        P(f's_lshl_b32 {s(sT0)}, {s(sB)}, 3\ns_add_u32 {s(sT0)}, {s(sT0)}, {s(sW)}\ns_lshl_b32 {s(sT0)}, {s(sT0)}, 7\ns_add_u32 {s(sT0)}, {s(sT0)}, {hex(DIAG)}')
        P('s_mov_b64 exec, 1\nv_mov_b32 v1, 0')
        for i in range(9): P(f'v_mov_b32 v2, {s(sDIAG+2*i)}\nbuffer_store_dword v2, v1, {S(SRD_WS)}, {s(sT0)} offen offset:{4*i}')
        P('L_END2:')
    P('s_endpgm')
    P('L_CODE_END:')
    probs = P.fix()
    for p in probs: print('HAZARD across branch:', p, file=sys.stderr)
    head = open(f'cdna_kernels/{NAME}.s.ref').read().split('; Override launch')[0]
    txt = head
    txt += f'; Single persistent launch: 256 workgroups (one per CU) x 8 waves. Generated by gen/gen_kernel.py (hand-written generator).\n'
    txt += f'; @launch grid=(256,1,1) block=(512,1,1) lds={LDS_BYTES}\n'
    txt += f'.amdgcn_target "amdgcn-amd-amdhsa--gfx950"\n.text\n.globl {NAME}_kernel\n.p2align 8\n.type {NAME}_kernel,@function\n{NAME}_kernel:\n'
    txt += P.text() + '\n'
    txt += f'''.section .rodata,"a"
.p2align 6
.amdhsa_kernel {NAME}_kernel
  .amdhsa_next_free_vgpr 256
  .amdhsa_next_free_sgpr 102
  .amdhsa_accum_offset 256
  .amdhsa_group_segment_fixed_size 0
  .amdhsa_kernarg_size 112
  .amdhsa_user_sgpr_count 2
  .amdhsa_user_sgpr_kernarg_segment_ptr 1
  .amdhsa_system_sgpr_workgroup_id_x 1
  .amdhsa_float_denorm_mode_32 3
.end_amdhsa_kernel
'''
    return txt, stamps

if __name__ == '__main__':
    out = sys.argv[1] if len(sys.argv) > 1 else f'cdna_kernels/{NAME}.s'
    class C(Cfg): pass
    for a in sys.argv[2:]:
        k, val = a.split('=', 1)
        setattr(C, k, eval(val))
    txt, stamps = gen(C)
    open(out, 'w').write(txt)
    print('written', out, len(txt), 'bytes', stamps)
```

```python
import sys, struct
from asmdsl import Prog

NAME = 'adaLN_cond__mha_block_cached__glu_gated_swiglu__decode'

def f2u(x): return struct.unpack('<I', struct.pack('<f', x))[0]
LOG2E = hex(f2u(1.4426950408889634))
NLOG2E = hex(f2u(-1.4426950408889634))
SCALE = hex(f2u(128 ** -0.5))
EPS = hex(f2u(1e-5))
R512 = hex(f2u(1/512))
ALL = (1 << 64) - 1

X1 = 0x1000
X4 = 0x9000
X3 = 0x19000
X1F = 0x1b000
X0 = 0x1d000
X0B = 0x1e000
X2F = 0x1c000
XC = 0x120000
X2 = 0x20000
XA = 0x60000
XB = 0x200000
XD = 0xc0000
XE = 0x100000
X0C = 0x1a000
DIAG = 0x180000
WS_BYTES = 0x300000
L_P, L_OP, L_Q, L_FLAG = 0x20000, 0x20800, 0x21000, 0x21100
L_ST, L_U = 0x0, 0x1000
L_MS, L_ML = L_FLAG + 64, L_FLAG + 128
LDS_BYTES = 0x21200
NM = 43
TAGX = hex(sum(1 << (a*4+b*2+c) for a in (0,1) for b in (0,1) for c in (0,1) if (a ^ b) | c))

class Cfg:
    depth = 8
    diag = False
    probe = None
    kpol = 'nt'
    vpol = 'nt'
    wpol = 'nt'
    ppol = ''
    sleep1 = 0
    sleep2 = 0
    sleep3 = 4
    sleep4 = 40
    prio = 3
    hint = 1
    hsleep = 3
    lsleep = 1
    pf = 'post'
    wq0 = 1
    dsched = (6, 12, 9)
    rot = 5
    npf = 8
    local = 1
    pipe = dict()
    psleep = dict()
    xcrep = 1
    xcline = 0
    nodpp = 0
    b0late = 1
    xcsleep = 0
    dnlate = 0
    xbrep = 0
    rwait = 1
    xbgrp = 0
    rsleep = 0
    dsleep = 0
    wob2 = 0
    epearly = 1
    ksplit = 0
    th = 0
    cpf = 1
    fakehalf = 0
    xdelay = 0
    gprobe = None
    dodd = None
    dvar = None
    outpol = ''
    uppol = 'nt'
    spin = 1 << 18

def v(a, n=1): return f'v{a}' if n == 1 else f'v[{a}:{a+n-1}]'
def s(a, n=1): return f's{a}' if n == 1 else f's[{a}:{a+n-1}]'

sB, sW = 2, 3
sKP, sVP = 4, 6
SRD_K, SRD_V, SRD_WS, SRD_A, SRD_B, SRD_C = 8, 12, 16, 20, 24, 28
sH, sJ, sX, sKK = 36, 37, 38, 39
sWSP = 40
sTAG, sIM, sR = 42, 43, 44
sT0, sT1, sT2 = 45, 46, 47
pWQ, pWO, pW1, pW3, pW2, pC, pWM, pX, pOUT = 48, 50, 54, 56, 58, 60, 62, 64, 66
sSPIN = 68
sO0, sO1, sO2, sO3 = 69, 70, 71, 72
sMASK = 74
sLOC = 73
sG = 76
sDIAG = 84
vL = 0
vT = 1
vM = 4

def gen(cfg=Cfg):
    P = Prog()
    D = cfg.depth
    stamps = {}
    def stamp(name):
        if cfg.diag and name in cfg.diag:
            grp = name.split('_')[0]
            same = [n for n in cfg.diag if n.split('_')[0] == grp]
            if name == 'start': i = 0
            elif grp == 'M': i = 8 - same.index(name)
            else: i = 1 + same.index(name)
            assert 0 <= i <= 8
            stamps[name] = i
            P(f's_memrealtime {s(sDIAG + 2*i, 2)}')
            if cfg.gprobe == name:
                P(f's_waitcnt lgkmcnt(0)\ns_mov_b32 s96, {s(sWSP)}\ns_mov_b32 s97, {s(sWSP+1)}\ns_mov_b32 s98, {hex(WS_BYTES)}\ns_mov_b32 s99, 0x20000')
                P(f's_lshl_b32 s100, {s(sB)}, 2\ns_and_b32 s101, {s(sW)}, 3\ns_add_u32 s100, s100, s101\ns_lshl_b32 s100, s100, 3\ns_add_u32 s100, s100, {hex(DIAG)}')
                P(f's_mov_b64 s[94:95], exec\ns_mov_b64 exec, 1\nv_mov_b32 v254, {s(sDIAG)}\nv_mov_b32 v255, {s(sDIAG+2*i)}\nv_mov_b32 v253, 0\nbuffer_store_dwordx2 v[254:255], v253, s[96:99], s100 offen sc1\ns_mov_b64 exec, s[94:95]')
    def srd(r, ptr, nbytes):
        P(f's_mov_b32 {s(r)}, {s(ptr)}\ns_mov_b32 {s(r+1)}, {s(ptr+1)}\ns_mov_b32 {s(r+2)}, {hex(nbytes)}\ns_mov_b32 {s(r+3)}, 0x20000')
    def S(r): return s(r, 4)
    def setexec(mask):
        lo, hi = mask & 0xffffffff, mask >> 32
        if mask == ALL: P('s_mov_b64 exec, -1')
        elif mask <= 64: P(f's_mov_b64 exec, {mask}')
        else: P(f's_mov_b32 exec_lo, {hex(lo)}\ns_mov_b32 exec_hi, {hex(hi)}')
    uid = [0]
    def lab(p):
        uid[0] += 1; return f'L_{p}{uid[0]}'
    def tagcheck_loop(issue, tagregs, name, sleep=0, after=None, nafter=0):
        top = lab(name)
        P(f's_mov_b32 {s(sSPIN)}, 0')
        P(f'{top}:')
        issue()
        if after: after()
        P(f's_add_u32 {s(sSPIN)}, {s(sSPIN)}, 1\ns_cmp_gt_u32 {s(sSPIN)}, {cfg.spin}\ns_cbranch_scc1 L_END')
        P(f's_waitcnt vmcnt({nafter if after else 0})')
        if len(tagregs) == 1:
            P(f'v_cmp_ne_u32 vcc, {s(sTAG)}, {v(tagregs[0])}')
        else:
            P(f'v_xor_b32 {v(vT)}, {s(sTAG)}, {v(tagregs[0])}\nv_xor_b32 {v(vT+1)}, {s(sTAG)}, {v(tagregs[1])}')
            for k, r in enumerate(tagregs[2:]):
                P(f'v_bitop3_b32 {v(vT + (k & 1))}, {v(r)}, {s(sTAG)}, {v(vT + (k & 1))} bitop3:{TAGX}')
            P(f'v_or_b32 {v(vT)}, {v(vT)}, {v(vT+1)}\nv_cmp_ne_u32 vcc, 0, {v(vT)}')
        if sleep:
            dn = lab(name + 'd')
            P(f's_cbranch_vccz {dn}\ns_sleep {sleep}\ns_branch {top}\n{dn}:')
        else: P(f's_cbranch_vccnz {top}')
    def poll(name, issue, nl, base, stride, tagoff, done, issued=False):
        NS = cfg.pipe.get(name, 1)
        top, join = lab(name), lab(name + 'j')
        ex = [lab(name + 'x') for _ in range(NS)]
        P(f's_mov_b32 {s(sSPIN)}, 0')
        for i in range(NS - 1): issue(base + i*stride)
        if issued:
            assert NS == 1
            sk = lab(name + 's'); P(f's_branch {sk}')
        P(f'{top}:')
        for i in range(NS):
            issue(base + ((i + NS - 1) % NS)*stride)
            if issued: P(f'{sk}:')
            if i == 0: P(f's_add_u32 {s(sSPIN)}, {s(sSPIN)}, 1\ns_cmp_gt_u32 {s(sSPIN)}, {cfg.spin}\ns_cbranch_scc1 L_END')
            P(f's_waitcnt vmcnt({(NS-1)*nl})')
            tr = [base + i*stride + t for t in tagoff]
            if len(tr) == 1:
                P(f'v_cmp_ne_u32 vcc, {s(sTAG)}, {v(tr[0])}')
            else:
                P(f'v_xor_b32 {v(vT)}, {s(sTAG)}, {v(tr[0])}\nv_xor_b32 {v(vT+1)}, {s(sTAG)}, {v(tr[1])}')
                for k, r in enumerate(tr[2:]):
                    P(f'v_bitop3_b32 {v(vT + (k & 1))}, {v(r)}, {s(sTAG)}, {v(vT + (k & 1))} bitop3:{TAGX}')
                P(f'v_or_b32 {v(vT)}, {v(vT)}, {v(vT+1)}\nv_cmp_ne_u32 vcc, 0, {v(vT)}')
            ps = cfg.psleep.get(name, 0)
            if ps:
                P(f's_cbranch_vccz {ex[i]}\ns_sleep {ps}')
                if i + 1 == NS: P(f's_branch {top}')
            else: P(f's_cbranch_vccz {ex[i]}' if i + 1 < NS else f's_cbranch_vccnz {top}')
        for i in reversed(range(NS)):
            P(f'{ex[i]}:')
            done(base + i*stride)
            if i > 0: P(f's_branch {join}')
        P(f'{join}:')
    def poll_groups(name, groups):
        top = lab(name)
        P(f's_mov_b32 {s(sSPIN)}, 0\ns_mov_b32 {s(sT0)}, {(1 << len(groups)) - 1}')
        P(f'{top}:')
        for g, (issue, tr) in enumerate(groups):
            sk = lab(name + 'i')
            P(f's_bitcmp1_b32 {s(sT0)}, {g}\ns_cbranch_scc0 {sk}')
            issue()
            P(f'{sk}:')
        P(f's_add_u32 {s(sSPIN)}, {s(sSPIN)}, 1\ns_cmp_gt_u32 {s(sSPIN)}, {cfg.spin}\ns_cbranch_scc1 L_END')
        P('s_waitcnt vmcnt(0)')
        for g, (issue, tr) in enumerate(groups):
            P(f'v_xor_b32 {v(vT + (g & 1))}, {s(sTAG)}, {v(tr[0])}')
            for r in tr[1:]: P(f'v_bitop3_b32 {v(vT + (g & 1))}, {v(r)}, {s(sTAG)}, {v(vT + (g & 1))} bitop3:{TAGX}')
            P(f'v_cmp_ne_u32 {s(sG+4+2*(g & 1),2)}, 0, {v(vT + (g & 1))}')
            P(f's_cmp_lg_u64 {s(sG+4+2*(g & 1),2)}, 0\ns_cselect_b32 {s(sT1)}, {1 << g}, 0')
            P(f's_or_b32 {s(sT0)}, {s(sT1)}, {s(sT0) if g else s(sT1)}')
        P(f's_cbranch_scc1 {top}')
    def publish_loc(d, vaddr, soff, mask=None, flag=sLOC):
        if not cfg.local: return publish(d, vaddr, soff, mask)
        far, j2 = lab('far'), lab('pb')
        if mask: setexec(mask)
        P(f's_cmp_eq_u32 {s(flag)}, 1\ns_cbranch_scc0 {far}')
        P(f'buffer_store_dwordx4 {v(d,4)}, {v(vaddr)}, {S(SRD_WS)}, {s(soff)} offen')
        P(f's_branch {j2}\n{far}:')
        publish(d, vaddr, soff)
        P(f'{j2}:')
        if mask: setexec(ALL)
    def afrag(dst, src, dpp=''):
        for w in range(4):
            if dpp: P(f'v_and_b32_dpp {v(dst+w)}, {v(src)}, {v(vM+w)} {dpp} row_mask:0xf bank_mask:0xf')
            else: P(f'v_and_b32 {v(dst+w)}, {v(src)}, {v(vM+w)}')
    def mfma(d, a, b, first=False):
        P(f'v_mfma_f32_16x16x32_bf16 {v(d,4)}, {v(a,4)}, {v(b,4)}, {"0" if first else v(d,4)}')
    def chain(d, n, bregs, srcs, areg):
        if cfg.nodpp and srcs[0][1]:
            bc = 224
            for i in range(n): P(f'v_mov_b32_dpp {v(bc+i)}, {v(srcs[i][0])} {srcs[i][1]} row_mask:0xf bank_mask:0xf')
            srcs = [(bc+i, '') for i in range(n)]
        afrag(areg, *srcs[0])
        for i in range(n):
            if i + 1 < n: afrag(areg + 4*((i+1) & 1), *srcs[i+1])
            mfma(d, areg + 4*(i & 1), bregs[i], first=(i == 0))
    def finish2(d):
        P(f'v_permlane32_swap_b32 {v(d)}, {v(d+2)}\nv_permlane32_swap_b32 {v(d+1)}, {v(d+3)}')
        P(f'v_add_f32_dpp {v(d)}, {v(d+2)}, {v(d)} row_ror:8 row_mask:0xf bank_mask:0xf')
        P(f'v_add_f32_dpp {v(d+1)}, {v(d+3)}, {v(d+1)} row_ror:8 row_mask:0xf bank_mask:0xf')
        P(f'v_mov_b32 {v(d+2)}, {s(sTAG)}')
    def finish1(d):
        P(f'v_permlane32_swap_b32 {v(d)}, {v(d+2)}\nv_permlane32_swap_b32 {v(d+1)}, {v(d+3)}')
        P(f'v_mov_b32 {v(d+2)}, {s(sTAG)}')
    def publish(d, vaddr, soff, mask=None):
        if mask: setexec(mask)
        P(f'buffer_store_dwordx4 {v(d,4)}, {v(vaddr)}, {S(SRD_WS)}, {s(soff)} offen sc1')
        if mask: setexec(ALL)
    M2SET = 0x00ff00ff00ff00ff
    def lohi(r):
        P(f'v_mov_b32 {v(r+2)}, {v(r)}\nv_mov_b32 {v(r+3)}, {v(r+1)}')
        for e in range(2): P(f'v_mov_b32_dpp {v(r+2+e)}, {v(r+e)} row_shl:4 row_mask:0xf bank_mask:0x5')
        for e in range(2): P(f'v_mov_b32_dpp {v(r+e)}, {v(r+e)} row_shr:4 row_mask:0xf bank_mask:0xa')
    def lohi_srcs(r):
        out = []
        for i in range(16):
            u = i >> 1; a = u & 3
            out.append((r + (2 if u >= 4 else 0) + (i & 1), f'quad_perm:[{a},{a},{a},{a}]'))
        return out
    def lds_wait(name, vaddr, n, dst, chk, sleep=0):
        top = lab(name)
        op = {1: 'ds_read_b32', 2: 'ds_read_b64', 4: 'ds_read_b128'}[n]
        P(f's_mov_b32 {s(sSPIN)}, 0')
        P(f'{top}:')
        P(f'{op} {v(dst,n)}, {v(vaddr)}')
        P(f's_add_u32 {s(sSPIN)}, {s(sSPIN)}, 1\ns_cmp_gt_u32 {s(sSPIN)}, {cfg.spin*8}\ns_cbranch_scc1 L_END')
        P('s_waitcnt lgkmcnt(0)')
        if len(chk) == 2:
            P(f'v_and_b32 {v(vT)}, {v(chk[0])}, {v(chk[1])}\nv_cmp_eq_u32 vcc, 0, {v(vT)}')
        else: P(f'v_cmp_eq_u32 vcc, 0, {v(chk[0])}')
        if sleep:
            done = lab(name + 'd')
            P(f's_cbranch_vccz {done}\ns_sleep {sleep}\ns_branch {top}\n{done}:')
        else: P(f's_cbranch_vccnz {top}')
    def hint_wait(name, soff):
        top = lab(name)
        P(f's_add_u32 {s(sMASK)}, {s(sWSP)}, {s(soff)}\ns_addc_u32 {s(sMASK+1)}, {s(sWSP+1)}, 0\ns_mov_b32 {s(sSPIN)}, 0')
        P(f'{top}:')
        P(f's_load_dwordx8 {s(sG,8)}, {s(sMASK,2)}, 0 glc')
        P(f's_add_u32 {s(sSPIN)}, {s(sSPIN)}, 1\ns_cmp_gt_u32 {s(sSPIN)}, {cfg.spin}\ns_cbranch_scc1 L_END')
        P('s_waitcnt lgkmcnt(0)')
        P(f's_xor_b32 {s(sG)}, {s(sG)}, {s(sTAG)}')
        for k in range(1, 8): P(f's_xor_b32 {s(sG+k)}, {s(sG+k)}, {s(sTAG)}\ns_or_b32 {s(sG)}, {s(sG)}, {s(sG+k)}')
        done = lab(name + 'd')
        P(f's_cbranch_scc0 {done}')
        if cfg.hsleep: P(f's_sleep {cfg.hsleep}')
        P(f's_branch {top}\n{done}:')
    def wave_reduce(op, regs):
        for mod in ('quad_perm:[1,0,3,2] row_mask:0xf', 'quad_perm:[2,3,0,1] row_mask:0xf', 'row_ror:4 row_mask:0xf', 'row_ror:8 row_mask:0xf',
                    'row_bcast:15 row_mask:0xa', 'row_bcast:31 row_mask:0xc'):
            for r in regs: P(f'{op}_dpp {v(r)}, {v(r)}, {v(r)} {mod} bank_mask:0xf')
    def unpack(lo, hi, src):
        if lo == src: P(f'v_and_b32 {v(hi)}, 0xffff0000, {v(src)}\nv_lshlrev_b32 {v(lo)}, 16, {v(src)}')
        else: P(f'v_lshlrev_b32 {v(lo)}, 16, {v(src)}\nv_and_b32 {v(hi)}, 0xffff0000, {v(src)}')
    def silu_multi(rs, ts):
        for r, t in zip(rs, ts): P(f'v_mul_f32 {v(t)}, {NLOG2E}, {v(r)}')
        for r, t in zip(rs, ts): P(f'v_exp_f32 {v(t)}, {v(t)}')
        for r, t in zip(rs, ts): P(f'v_add_f32 {v(t)}, 1.0, {v(t)}')
        for r, t in zip(rs, ts): P(f'v_rcp_f32 {v(t)}, {v(t)}')
        for r, t in zip(rs, ts): P(f'v_mul_f32 {v(r)}, {v(r)}, {v(t)}')
    def rnd(r): P(f'v_cvt_pk_bf16_f32 {v(r)}, {v(r)}, {v(r)}\nv_and_b32 {v(r)}, 0xffff0000, {v(r)}')

    vMA, vMB, vMC, vPUB = 16, 17, 18, 19
    vMT, vD0, vAA, vS4 = 64, 36, 52, 40
    def modtile_issue(sRB, sCOL):
        srd(SRD_A, pC, 1024); srd(SRD_B, pWM, 512*6144)
        P(f's_lshl_b32 {s(sO1)}, {s(sRB)}, 8')
        P(f'buffer_load_dword {v(vMC)}, {v(vMA)}, {S(SRD_A)}, {s(sO1)} offen')
        P(f's_mul_i32 {s(sO1)}, {s(sRB)}, {128*6144}\ns_add_u32 {s(sO1)}, {s(sO1)}, {s(sCOL)}')
        for i in range(16):
            P(f'buffer_load_dwordx4 {v(vMT+4*i,4)}, {v(vMB)}, {S(SRD_B)}, {s(sO1)} offen {cfg.wpol}')
            if i < 15: P(f's_add_u32 {s(sO1)}, {s(sO1)}, 6144')
    def modtile_compute(nafter, soff):
        P(f's_waitcnt vmcnt({16+nafter})')
        unpack(vS4, vS4+1, vMC)
        silu_multi([vS4, vS4+1], [vS4+2, vS4+3])
        for e in range(2): P(f'v_cvt_pk_bf16_f32 {v(vS4+e)}, {v(vS4+e)}, {v(vS4+e)}')
        lohi(vS4)
        P(f's_waitcnt vmcnt({nafter})')
        chain(vD0, 16, [vMT+4*i for i in range(16)], lohi_srcs(vS4), vAA)
        finish2(vD0)
        publish(vD0, vPUB, soff, M2SET)

    P(f's_cmp_ge_u32 {s(sB)}, 256\ns_cbranch_scc1 L_END')
    if cfg.diag:
        for i in range(9): P(f's_mov_b32 {s(sDIAG+2*i)}, 0')
    stamp('start')
    P(f's_load_dwordx4 {s(sKP,4)}, s[0:1], 8')
    P(f's_load_dwordx16 {s(pWQ,16)}, s[0:1], 24')
    P(f's_load_dwordx2 {s(sWSP,2)}, s[0:1], 104')
    P(f's_load_dwordx2 {s(pX,2)}, s[0:1], 0')
    P(f's_load_dwordx2 {s(pOUT,2)}, s[0:1], 88')
    P(f'v_lshrrev_b32 {v(vT)}, 6, v0\nv_and_b32 {v(vL)}, 63, v0')
    P(f'v_readfirstlane_b32 {s(sW)}, {v(vT)}')
    P(f'v_lshlrev_b32 {v(vT)}, 2, {v(vL)}\nv_add_u32 {v(vT)}, {hex(L_FLAG)}, {v(vT)}\nv_mov_b32 {v(vT+1)}, 0')
    P(f'ds_write_b32 {v(vT)}, {v(vT+1)}')
    P(f's_and_b32 {s(sH)}, {s(sB)}, 31\ns_lshr_b32 {s(sJ)}, {s(sB)}, 5\ns_and_b32 {s(sX)}, {s(sB)}, 7\ns_lshr_b32 {s(sKK)}, {s(sB)}, 3')
    vKA, vVA = 8, 12
    P(f'v_lshrrev_b32 {v(vT)}, 4, {v(vL)}\nv_and_b32 {v(vT+1)}, 15, {v(vL)}')
    P(f'v_lshlrev_b32 {v(vVA)}, 10, {v(vT)}\nv_lshl_add_u32 {v(vVA)}, {v(vT+1)}, 4, {v(vVA)}')
    if cfg.ksplit:
        P(f'v_lshlrev_b32 {v(vT+2)}, 2, {v(vT)}\nv_xor_b32 {v(vT+1)}, {v(vT+1)}, {v(vT+2)}\nv_lshlrev_b32 {v(vT+1)}, 4, {v(vT+1)}\nv_lshl_add_u32 {v(vKA)}, {v(vT)}, 10, {v(vT+1)}')
        for i in range(1, 4): P(f'v_xor_b32 {v(vKA+i)}, {16*i}, {v(vKA)}')
    else:
        P(f'v_xor_b32 {v(vT+1)}, {v(vT+1)}, {v(vT)}\nv_lshlrev_b32 {v(vT+1)}, 4, {v(vT+1)}\nv_lshl_add_u32 {v(vKA)}, {v(vT)}, 8, {v(vT+1)}')
        for i in range(1, 4): P(f'v_xor_b32 {v(vKA+i)}, {64*i}, {v(vKA)}')
    P(f's_lshl_b32 {s(sO0)}, {s(sH)}, 20\ns_lshl_b32 {s(sO3)}, {s(sJ)}, 2\ns_add_u32 {s(sO3)}, {s(sO3)}, {s(sW)}\ns_lshl_b32 {s(sO3)}, {s(sO3)}, 12')
    P(f'v_lshlrev_b32 {v(vMA)}, 2, {v(vL)}\nv_lshrrev_b32 {v(vT)}, 3, {v(vL)}\nv_mul_u32_u24 {v(vMB)}, {16*6144}, {v(vT)}\nv_and_b32 {v(vT+1)}, 7, {v(vL)}\nv_lshl_add_u32 {v(vMB)}, {v(vT+1)}, 4, {v(vMB)}')
    P(f'v_lshrrev_b32 {v(vT)}, 4, {v(vL)}\nv_lshlrev_b32 {v(vT)}, 7, {v(vT)}\nv_lshl_add_u32 {v(vPUB)}, {v(vT+1)}, 4, {v(vT)}')
    vXF, vXS, vL16, vWA, vXA = 28, 32, 60, 62, 33
    P(f'v_lshlrev_b32 {v(vL16)}, 4, {v(vL)}')
    P(f'v_bfe_u32 {v(vT)}, {v(vL)}, 4, 1\nv_lshrrev_b32 {v(vT+2)}, 5, {v(vL)}\nv_lshl_add_u32 {v(vT)}, {v(vT)}, 1, {v(vT+2)}')
    P(f'v_lshl_add_u32 {v(vXA)}, {v(vT+1)}, 2, {v(vT)}\nv_lshlrev_b32 {v(vXA)}, 2, {v(vXA)}\nv_lshlrev_b32 {v(vWA)}, 14, {v(vT)}')
    P(f'v_and_b32 {v(vT+1)}, 15, {v(vL)}\nv_lshl_add_u32 {v(vWA)}, {v(vT+1)}, 4, {v(vWA)}')
    P(f's_sub_u32 {s(sT2)}, {s(sKK)}, 16')
    P(f's_and_b32 {s(sT0)}, {s(sT2)}, 1\ns_lshl_b32 {s(sT0)}, {s(sT0)}, 10\ns_lshl_b32 {s(sT1)}, {s(sX)}, 7\ns_add_u32 {s(sT1)}, {s(sT1)}, {s(sT0)}\ns_lshr_b32 {s(sT0)}, {s(sT2)}, 1\ns_lshl_b32 {s(sO2)}, {s(sJ)}, 7')
    P('s_waitcnt lgkmcnt(0)')
    P(f's_cmp_eq_u32 {s(sW)}, 4\ns_cbranch_scc0 L_B0')
    if cfg.b0late: P('s_setprio 3')
    P(f's_cmp_lt_u32 {s(sT2)}, 8\ns_cbranch_scc0 L_XLD')
    modtile_issue(sT0, sT1)
    P('L_XLD:')
    srd(SRD_C, pX, 1024)
    P(f'buffer_load_dwordx4 {v(vXF,4)}, {v(vL16)}, {S(SRD_C)}, 0 offen')
    P(f'buffer_load_dword {v(vXS)}, {v(vXA)}, {S(SRD_C)}, {s(sO2)} offen')
    vWQ = 128
    def wq_issue():
        srd(SRD_C, pWQ, 4 << 20)
        P(f's_lshl_b32 {s(sO2)}, {s(sJ)}, 19\ns_lshl_b32 {s(sT0)}, {s(sH)}, 8\ns_add_u32 {s(sO2)}, {s(sO2)}, {s(sT0)}')
        for i in range(16):
            P(f'buffer_load_dwordx4 {v(vWQ+4*i,4)}, {v(vWA)}, {S(SRD_C)}, {s(sO2)} offen {cfg.wpol}')
            if i < 15: P(f's_add_u32 {s(sO2)}, {s(sO2)}, {8192 if (i & 1) == 0 else 8192*7}')
    if cfg.wq0: wq_issue()
    P('L_B0:')
    if not cfg.b0late: P('s_barrier')
    P(f's_cmp_ge_u32 {s(sW)}, 4\ns_cbranch_scc1 L_CW')

    srd(SRD_K, sKP, 32 << 20)
    sTL, sRS, sTL0 = sG, sG+1, sG+2
    P(f's_mul_i32 {s(sTL0)}, {s(sH)}, {cfg.th}\ns_and_b32 {s(sTL0)}, {s(sTL0)}, 7\ns_lshl_b32 {s(sTL0)}, {s(sTL0)}, 17')
    def firsttile():
        P(f's_mov_b32 {s(sTL)}, {s(sTL0)}\ns_mov_b32 {s(sRS)}, {s(sO3)}\ns_add_u32 {s(sO1)}, {s(sO0)}, {s(sTL)}\ns_add_u32 {s(sO1)}, {s(sO1)}, {s(sRS)}')
    def nexttile():
        P(f's_add_u32 {s(sTL)}, {s(sTL)}, 0x20000\ns_and_b32 {s(sTL)}, {s(sTL)}, 0xe0000\ns_add_u32 {s(sRS)}, {s(sRS)}, {cfg.rot << 12}\ns_and_b32 {s(sRS)}, {s(sRS)}, 0x1f000\ns_add_u32 {s(sO1)}, {s(sO0)}, {s(sTL)}\ns_add_u32 {s(sO1)}, {s(sO1)}, {s(sRS)}')
    firsttile()
    P(f's_lshl_b32 {s(sT0)}, {s(sW)}, 15\ns_mov_b32 m0, {s(sT0)}\ns_mov_b32 {s(sT1)}, 0')
    stamp('L_k0')
    vV = 128
    def stream(ds, sfx):
        DK = ds[0]
        def DV(idx): return ds[0] if idx < ds[1] else ds[2]
        P(f'L_KLOOP{sfx}:')
        for i in range(4):
            if cfg.ksplit and i: P(f's_add_u32 m0, {s(sT0)}, {768*i}')
            P(f's_waitcnt vmcnt({DK-1})')
            P(f'buffer_load_dwordx4 {v(vKA+i)}, {S(SRD_K)}, {s(sO1)} offen offset:{(256 if cfg.ksplit else 1024)*i} {cfg.kpol} lds')
        if cfg.b0late: P(f's_cmp_eq_u32 {s(sT1)}, 0\ns_cbranch_scc0 L_KL2{sfx}\ns_barrier\nL_KL2{sfx}:')
        nexttile()
        P(f's_add_u32 {s(sT0)}, {s(sT0)}, 4096\ns_mov_b32 m0, {s(sT0)}\ns_add_u32 {s(sT1)}, {s(sT1)}, 1\ns_cmp_lt_u32 {s(sT1)}, 8\ns_cbranch_scc1 L_KLOOP{sfx}')
        stamp('L_kissued')
        srd(SRD_V, sVP, 32 << 20)
        firsttile()
        P(f's_lshl_b32 {s(sT0)}, {s(sW)}, 3\ns_add_u32 {s(sT0)}, {s(sT0)}, {hex(L_FLAG)}\nv_mov_b32 {v(vT)}, {s(sT0)}\nv_mov_b32 {v(vT+1)}, 1')
        for idx in range(32):
            t, i = idx >> 2, idx & 3
            P(f's_waitcnt vmcnt({DV(idx)-1})')
            if idx == DK - 1:
                P(f'ds_write_b32 {v(vT)}, {v(vT+1)}')
                stamp('L_klanded')
            P(f'buffer_load_dwordx4 {v(vV+4*idx,4)}, {v(vVA)}, {S(SRD_V)}, {s(sO1)} offen offset:{256*i} {cfg.vpol}')
            if i == 3 and t < 7: nexttile()
    if cfg.dvar:
        P(f's_getreg_b32 {s(sT2)}, hwreg(HW_REG_XCC_ID, 0, 3)')
        P(f's_bitcmp1_b32 {s(sT2)}, 2\ns_cbranch_scc1 L_STH')
        P(f's_bitcmp1_b32 {s(sT2)}, 0\ns_cbranch_scc1 L_ST1')
        stream(cfg.dvar[0], 'a'); P('s_branch L_STD\nL_ST1:')
        stream(cfg.dvar[1], 'b'); P('s_branch L_STD\nL_STH:')
        P(f's_bitcmp1_b32 {s(sT2)}, 0\ns_cbranch_scc1 L_ST3')
        stream(cfg.dvar[2], 'c'); P('s_branch L_STD\nL_ST3:')
        stream(cfg.dvar[3], 'd')
        P('L_STD:')
    elif cfg.dodd:
        P(f's_getreg_b32 {s(sT2)}, hwreg(HW_REG_XCC_ID, 0, 1)\ns_cmp_eq_u32 {s(sT2)}, 1\ns_cbranch_scc1 L_STO')
        stream(cfg.dsched, 'a'); P('s_branch L_STD\nL_STO:')
        stream(cfg.dodd, 'b')
        P('L_STD:')
    else: stream(cfg.dsched, '')
    stamp('L_vissued')
    def masks():
        P(f'v_and_b32 {v(vT)}, 1, {v(vL)}\nv_lshlrev_b32 {v(vT)}, 4, {v(vT)}\nv_mov_b32 {v(vT+1)}, 0xffff\nv_lshlrev_b32 {v(vT+1)}, {v(vT)}, {v(vT+1)}')
        P(f'v_bfe_u32 {v(vT)}, {v(vL)}, 1, 2')
        for w in range(4):
            P(f'v_cmp_eq_u32 vcc, {w}, {v(vT)}\nv_cndmask_b32 {v(vM+w)}, 0, {v(vT+1)}, vcc')
    def common_setup():
        P(f's_load_dword {s(sTAG)}, {s(sWSP,2)}, 0')
        srd(SRD_WS, sWSP, WS_BYTES)
        masks()
    masks()
    vPA, vOA, vP, vA, vD = 13, 14, 16, 48, 56
    P(f'v_lshrrev_b32 {v(vT)}, 4, {v(vL)}\nv_lshlrev_b32 {v(vT)}, 4, {v(vT)}\ns_lshl_b32 {s(sT0)}, {s(sW)}, 9\ns_add_u32 {s(sT0)}, {s(sT0)}, {hex(L_P)}\nv_add_u32 {v(vPA)}, {s(sT0)}, {v(vT)}')
    P(f's_add_u32 {s(sT0)}, {s(sT0)}, {hex(L_OP - L_P)}\nv_lshlrev_b32 {v(vT)}, 3, {v(vL)}\nv_add_u32 {v(vOA)}, {s(sT0)}, {v(vT)}')
    P('s_waitcnt lgkmcnt(0)')
    P('s_barrier')
    stamp('L_b1')
    for t in range(8): P(f'ds_read_b128 {v(vP+4*t,4)}, {v(vPA)} offset:{64*t}')
    P('s_waitcnt lgkmcnt(7)')
    afrag(vA, vP)
    for idx in range(32):
        if idx + 1 < 32:
            if (idx + 1) % 4 == 0: P(f's_waitcnt lgkmcnt({7 - (idx+1)//4})')
            afrag(vA + 4*((idx+1) & 1), vP + idx + 1)
        P(f's_waitcnt vmcnt({31-idx})')
        mfma(vD, vA + 4*(idx & 1), vV + 4*idx, first=(idx == 0))
    stamp('L_pv')
    P(f'v_permlane32_swap_b32 {v(vD)}, {v(vD+2)}\nv_permlane32_swap_b32 {v(vD+1)}, {v(vD+3)}')
    P(f'ds_write_b64 {v(vOA)}, {v(vD,2)}')
    P('s_waitcnt lgkmcnt(0)')
    P('s_barrier')
    P('s_endpgm' if not cfg.diag else 's_branch L_END')

    P('L_CW:')
    if cfg.gprobe and cfg.gprobe[0] in 'MR':
        P(f's_waitcnt lgkmcnt(0)\ns_mov_b32 s96, {s(sWSP)}\ns_mov_b32 s97, {s(sWSP+1)}\ns_mov_b32 s98, {hex(WS_BYTES)}\ns_mov_b32 s99, 0x20000')
        P(f's_lshl_b32 s100, {s(sB)}, 2\ns_and_b32 s101, {s(sW)}, 3\ns_add_u32 s100, s100, s101\ns_lshl_b32 s100, s100, 3\ns_add_u32 s100, s100, {hex(DIAG)}')
        P(f's_mov_b64 exec, 1\nv_mov_b32 v254, {s(sDIAG)}\nv_mov_b32 v255, {s(sDIAG)}\nv_mov_b32 v253, 0\nbuffer_store_dwordx2 v[254:255], v253, s[96:99], s100 offen sc1\ns_mov_b64 exec, -1\ns_waitcnt vmcnt(0)')
    if cfg.b0late: P('s_barrier')
    if cfg.prio: P(f's_setprio {cfg.prio}')
    P(f's_cmp_eq_u32 {s(sW)}, 4\ns_cbranch_scc0 L_C123')
    vGA = 192
    common_setup()
    P('s_waitcnt lgkmcnt(0)')
    P(f's_add_u32 {s(sTAG)}, {s(sTAG)}, 1')
    if cfg.local:
        P(f's_getreg_b32 {s(sLOC)}, hwreg(HW_REG_XCC_ID, 0, 3)\ns_lshl_b32 {s(sT0)}, {s(sTAG)}, 3\ns_or_b32 {s(sLOC)}, {s(sLOC)}, {s(sT0)}')
        P(f's_lshl_b32 {s(sO3)}, {s(sH)}, 7\ns_add_u32 {s(sO3)}, {s(sO3)}, {hex(X0)}\ns_lshl_b32 {s(sT0)}, {s(sJ)}, 2\ns_add_u32 {s(sT0)}, {s(sT0)}, {s(sO3)}\nv_mov_b32 {v(vT)}, {s(sT0)}\nv_mov_b32 {v(vT+1)}, {s(sLOC)}')
        P(f's_lshl_b32 {s(sR)}, {s(sX)}, 3\ns_lshr_b32 {s(sT0)}, {s(sKK)}, 2\ns_add_u32 {s(sR)}, {s(sR)}, {s(sT0)}\ns_lshl_b32 {s(sR)}, {s(sR)}, 7\ns_add_u32 {s(sR)}, {s(sR)}, {hex(X0B)}')
        P(f's_and_b32 {s(sT0)}, {s(sKK)}, 3\ns_lshl_b32 {s(sT0)}, {s(sT0)}, 2\ns_add_u32 {s(sT0)}, {s(sT0)}, {s(sR)}\nv_writelane_b32 {v(vT)}, {s(sT0)}, 1')
        P(f's_lshl_b32 {s(sT0)}, {s(sX)}, 7\ns_lshl_b32 {s(sO2)}, {s(sKK)}, 2\ns_add_u32 {s(sT0)}, {s(sT0)}, {s(sO2)}\ns_add_u32 {s(sT0)}, {s(sT0)}, {hex(X0C)}\nv_writelane_b32 {v(vT)}, {s(sT0)}, 2')
        setexec(7)
        P(f'buffer_store_dword {v(vT+1)}, {v(vT)}, {S(SRD_WS)}, 0 offen sc1')
        setexec(ALL)
    P(f's_cmp_lt_u32 {s(sT2)}, 8\ns_cbranch_scc0 L_NOT1')
    P(f's_lshl_b32 {s(sO2)}, {s(sX)}, 3\ns_add_u32 {s(sO2)}, {s(sO2)}, {s(sT2)}\ns_lshl_b32 {s(sO2)}, {s(sO2)}, 9\ns_add_u32 {s(sO2)}, {s(sO2)}, {hex(X1)}')
    modtile_compute((18 if cfg.wq0 else 2) + cfg.local, sO2)
    if cfg.hint:
        P(f's_lshl_b32 {s(sO2)}, {s(sX)}, 9\ns_lshl_b32 {s(sT0)}, {s(sT2)}, 2\ns_add_u32 {s(sO2)}, {s(sO2)}, {s(sT0)}\ns_add_u32 {s(sO2)}, {s(sO2)}, {hex(X1F)}\nv_lshlrev_b32 {v(vT)}, 7, {v(vL)}')
        setexec(0xf)
        P(f'buffer_store_dword {v(vD0+2)}, {v(vT)}, {S(SRD_WS)}, {s(sO2)} offen sc1')
        setexec(ALL)
    stamp('C0_x1pub')
    if not cfg.wq0: wq_issue()
    P('s_branch L_T1D')
    P('L_NOT1:')
    if not cfg.wq0: wq_issue()
    P('L_T1D:')
    vx = 64
    P(f's_waitcnt vmcnt({16 + (cfg.local if cfg.wq0 else 0)})')
    for k in range(4): unpack(vx+2*k, vx+2*k+1, vXF+k)
    P(f'v_add_f32 {v(20)}, {v(vx)}, {v(vx+1)}\nv_add_f32 {v(21)}, {v(vx+2)}, {v(vx+3)}\nv_add_f32 {v(22)}, {v(vx+4)}, {v(vx+5)}\nv_add_f32 {v(23)}, {v(vx+6)}, {v(vx+7)}')
    P(f'v_add_f32 {v(20)}, {v(20)}, {v(21)}\nv_add_f32 {v(22)}, {v(22)}, {v(23)}\nv_add_f32 {v(20)}, {v(20)}, {v(22)}')
    wave_reduce('v_add_f32', [20])
    P(f'v_mul_f32 {v(20)}, {R512}, {v(20)}\nv_readlane_b32 {s(sT0)}, {v(20)}, 63')
    for k in range(8): P(f'v_subrev_f32 {v(vx+k)}, {s(sT0)}, {v(vx+k)}')
    P(f'v_mul_f32 {v(21)}, {v(vx)}, {v(vx)}')
    for k in range(1, 8): P(f'v_fmac_f32 {v(21)}, {v(vx+k)}, {v(vx+k)}')
    wave_reduce('v_add_f32', [21])
    P(f'v_mul_f32 {v(21)}, {R512}, {v(21)}')
    P(f'v_cvt_pk_bf16_f32 {v(22)}, {v(20)}, {v(21)}')
    P(f'v_and_b32 {v(21)}, 0xffff0000, {v(22)}\nv_lshlrev_b32 {v(20)}, 16, {v(22)}\nv_add_f32 {v(21)}, {EPS}, {v(21)}')
    rnd(21); P(f'v_sqrt_f32 {v(21)}, {v(21)}'); rnd(21); P(f'v_rcp_f32 {v(22)}, {v(21)}')
    P(f'v_readlane_b32 {s(sT0)}, {v(20)}, 63\nv_readlane_b32 {s(sT1)}, {v(21)}, 63\nv_readlane_b32 {s(sT2)}, {v(22)}, 63')
    vLN = 24
    unpack(vLN, vLN+1, vXS)
    for e in range(2): P(f'v_subrev_f32 {v(vLN+e)}, {s(sT0)}, {v(vLN+e)}')
    P(f'v_cvt_pk_bf16_f32 {v(20)}, {v(vLN)}, {v(vLN+1)}'); unpack(vLN, vLN+1, 20)
    for e in range(2): P(f'v_mul_f32 {v(20+e)}, {s(sT2)}, {v(vLN+e)}')
    for e in range(2): P(f'v_fma_f32 {v(vLN+e)}, -{v(20+e)}, {s(sT1)}, {v(vLN+e)}')
    for e in range(2): P(f'v_fma_f32 {v(vLN+e)}, {v(vLN+e)}, {s(sT2)}, {v(20+e)}')
    P(f'v_cvt_pk_bf16_f32 {v(20)}, {v(vLN)}, {v(vLN+1)}'); unpack(vLN, vLN+1, 20)
    P(f'v_bfe_u32 {v(vT)}, {v(vL)}, 3, 1\nv_lshlrev_b32 {v(vT)}, 9, {v(vT)}\nv_add_u32 {v(26)}, {v(vPUB)}, {v(vT)}')
    P(f's_lshl_b32 {s(sO0)}, {s(sJ)}, 12\ns_add_u32 {s(sO0)}, {s(sO0)}, {hex(X1)}')
    if cfg.hint:
        P(f's_lshl_b32 {s(sT0)}, {s(sJ)}, 2\ns_and_b32 {s(sT1)}, {s(sH)}, 3\ns_add_u32 {s(sT0)}, {s(sT0)}, {s(sT1)}\ns_lshl_b32 {s(sT0)}, {s(sT0)}, 7\ns_add_u32 {s(sT0)}, {s(sT0)}, {hex(X1F)}')
        hint_wait('h1h', sT0)
    else: P('s_waitcnt vmcnt(0)')
    if cfg.local:
        P(f's_add_u32 {s(sMASK)}, {s(sWSP)}, {s(sO3)}\ns_addc_u32 {s(sMASK+1)}, {s(sWSP+1)}, 0')
        P(f's_load_dwordx8 {s(sG,8)}, {s(sMASK,2)}, 0 glc')
        P(f's_load_dwordx4 s[8:11], {s(sWSP,2)}, {s(sR)} glc')
    stamp('C0_wq')
    if cfg.sleep1: P(f's_sleep {cfg.sleep1}')
    def issue():
        for k in range(4): P(f'buffer_load_dwordx4 {v(vGA+4*k,4)}, {v(26)}, {S(SRD_WS)}, {s(sO0)} offen offset:{1024*k} sc1')
    tagcheck_loop(issue, [vGA+4*k+2 for k in range(4)], 'h1')
    stamp('C0_h1')
    if cfg.local:
        P('s_waitcnt lgkmcnt(0)')
        P(f's_xor_b32 {s(sG)}, {s(sG)}, {s(sLOC)}')
        for k in range(1, 8): P(f's_xor_b32 {s(sG+k)}, {s(sG+k)}, {s(sLOC)}\ns_or_b32 {s(sG)}, {s(sG)}, {s(sG+k)}')
        P(f's_cselect_b32 {s(sT0)}, 0, 1')
        P(f's_xor_b32 s8, s8, {s(sLOC)}')
        for k in range(1, 4): P(f's_xor_b32 {s(8+k)}, {s(8+k)}, {s(sLOC)}\ns_or_b32 s8, s8, {s(8+k)}')
        P(f's_cselect_b32 {s(sR)}, 0, 1\ns_mov_b32 {s(sLOC)}, {s(sT0)}')
    b = vGA
    for e in range(2): P(f'v_add_f32 {v(b+e)}, {v(b+e)}, {v(b+4+e)}\nv_add_f32 {v(b+8+e)}, {v(b+8+e)}, {v(b+12+e)}')
    for e in range(2): P(f'v_add_f32 {v(b+e)}, {v(b+e)}, {v(b+8+e)}')
    P(f'v_cvt_pk_bf16_f32 {v(b+4)}, {v(b)}, {v(b+1)}\nv_mov_b32 {v(b+5)}, {v(b+4)}')
    P(f'v_mov_b32_dpp {v(b+4)}, {v(b+5)} row_ror:8 row_mask:0xf bank_mask:0xc')
    P(f'v_mov_b32_dpp {v(b+5)}, {v(b+5)} row_ror:8 row_mask:0xf bank_mask:0x3')
    unpack(b+8, b+9, b+4); unpack(b+6, b+7, b+5)
    P(f'v_add_f32 {v(b+6)}, 1.0, {v(b+6)}\nv_add_f32 {v(b+7)}, 1.0, {v(b+7)}\nv_cvt_pk_bf16_f32 {v(b+5)}, {v(b+6)}, {v(b+7)}')
    unpack(b+6, b+7, b+5)
    P(f'v_mul_f32 {v(b+6)}, {v(b+6)}, {v(vLN)}\nv_mul_f32 {v(b+7)}, {v(b+7)}, {v(vLN+1)}\nv_cvt_pk_bf16_f32 {v(b+5)}, {v(b+6)}, {v(b+7)}')
    unpack(b+6, b+7, b+5)
    P(f'v_add_f32 {v(b+6)}, {v(b+6)}, {v(b+8)}\nv_add_f32 {v(b+7)}, {v(b+7)}, {v(b+9)}')
    vH = 20
    P(f'v_cvt_pk_bf16_f32 {v(vH)}, {v(b+6)}, {v(b+6)}\nv_cvt_pk_bf16_f32 {v(vH+1)}, {v(b+7)}, {v(b+7)}')
    P(f's_lshl_b32 {s(sO1)}, {s(sH)}, 13\ns_add_u32 {s(sO1)}, {s(sO1)}, {hex(X2)}\ns_lshl_b32 {s(sO0)}, {s(sJ)}, 10\ns_add_u32 {s(sO0)}, {s(sO0)}, {s(sO1)}\ns_add_u32 {s(sO2)}, {s(sO1)}, 4096')
    chain(vD0, 16, [vWQ+4*i for i in range(16)], [(vH + (i & 1), f'row_newbcast:{i >> 1}') for i in range(16)], vAA)
    finish1(vD0)
    publish_loc(vD0, vL16, sO0)
    if cfg.hint:
        P(f's_lshl_b32 {s(sO3)}, {s(sH)}, 7\ns_add_u32 {s(sO3)}, {s(sO3)}, {hex(X2F)}\nv_mov_b32 {v(vT)}, 0\ns_lshl_b32 {s(sT0)}, {s(sJ)}, 2\ns_add_u32 {s(sT0)}, {s(sT0)}, {s(sO3)}')
        setexec(1)
        P(f'buffer_store_dword {v(vD0+2)}, {v(vT)}, {S(SRD_WS)}, {s(sT0)} offen sc1')
        setexec(ALL)
    stamp('C0_x2pub')
    P(f'v_bfe_u32 {v(vT)}, {v(vL)}, 4, 1\nv_lshrrev_b32 {v(vT+1)}, 5, {v(vL)}\nv_lshl_add_u32 {v(vT)}, {v(vT)}, 1, {v(vT+1)}\nv_and_b32 {v(vT+1)}, 15, {v(vL)}\nv_lshl_add_u32 {v(vT)}, {v(vT+1)}, 2, {v(vT)}')
    P(f'v_lshlrev_b32 {v(vT)}, 2, {v(vT)}\nv_add_u32 {v(26)}, {hex(L_Q)}, {v(vT)}')
    P(f'v_and_b32 {v(27)}, 3, {v(vL)}\nv_lshlrev_b32 {v(27)}, 3, {v(27)}\nv_add_u32 {v(27)}, {hex(L_FLAG + 4)}, {v(27)}\nv_mov_b32 {v(25)}, 1')
    if cfg.hint: hint_wait('qh', sO3)
    stamp('C0_qh')
    if cfg.sleep2: P(f's_sleep {cfg.sleep2}')
    def gather8(base_lo, base_hi):
        def issue():
            for k in range(8):
                P(f'buffer_load_dwordx4 {v(vGA+4*k,4)}, {v(vL16)}, {S(SRD_WS)}, {s(base_lo if k < 4 else base_hi)} offen offset:{1024*(k & 3)} sc1')
        return issue
    def sum8():
        for a, b2 in ((0, 1), (2, 3), (4, 5), (6, 7), (0, 2), (4, 6), (0, 4)):
            for e in (0, 1): P(f'v_add_f32 {v(vGA+4*a+e)}, {v(vGA+4*a+e)}, {v(vGA+4*b2+e)}')
    tagcheck_loop(gather8(sO1, sO2), [vGA+4*k+2 for k in range(8)], 'q')
    stamp('C0_q')
    sum8()
    P(f'v_cvt_pk_bf16_f32 {v(vT)}, {v(vGA)}, {v(vGA+1)}')
    P(f'ds_write_b32 {v(26)}, {v(vT)}')
    P(f'ds_write_b32 {v(27)}, {v(25)}')
    P('L_QKP:')
    vKR, vQ, vKB, vDQ, vS2, vE, vML = 8, 128, 144, 28, 208, 210, 216
    sM2 = sG
    P(f's_sub_u32 {s(sT2)}, {s(sW)}, 4\ns_lshl_b32 {s(sT0)}, {s(sT2)}, 3\ns_add_u32 {s(sT0)}, {s(sT0)}, {hex(L_FLAG)}\nv_mov_b32 {v(vT+2)}, {s(sT0)}')
    P(f'v_and_b32 {v(vT)}, 15, {v(vL)}\nv_lshrrev_b32 {v(vT+1)}, 4, {v(vL)}\nv_lshlrev_b32 {v(26)}, 4, {v(vT+1)}\nv_xor_b32 {v(vT+1)}, {v(vT+1)}, {v(vT)}\nv_lshlrev_b32 {v(vT+1)}, 4, {v(vT+1)}')
    if cfg.ksplit:
        P(f'v_and_b32 {v(vKR)}, 3, {v(vL)}\nv_lshlrev_b32 {v(vKR)}, 10, {v(vKR)}\nv_lshrrev_b32 {v(vT)}, 2, {v(vT)}\nv_lshl_add_u32 {v(vKR)}, {v(vT)}, 8, {v(vKR)}\nv_add_u32 {v(vKR)}, {v(vKR)}, {v(vT+1)}')
    else: P(f'v_lshl_add_u32 {v(vKR)}, {v(vT)}, 8, {v(vT+1)}')
    P(f's_lshl_b32 {s(sT0)}, {s(sT2)}, 15\nv_add_u32 {v(vKR)}, {s(sT0)}, {v(vKR)}')
    for q in range(1, 4): P(f'v_xor_b32 {v(vKR+q)}, {64*q}, {v(vKR)}')
    P(f'v_and_b32 {v(27)}, 7, {v(vL)}\nv_lshl_add_u32 {v(27)}, {v(27)}, 6, {v(26)}\nv_bfe_u32 {v(vT)}, {v(vL)}, 3, 1\nv_lshl_add_u32 {v(27)}, {v(vT)}, 3, {v(27)}')
    P(f's_lshl_b32 {s(sT0)}, {s(sT2)}, 9\ns_add_u32 {s(sT0)}, {s(sT0)}, {hex(L_P)}\nv_add_u32 {v(27)}, {s(sT0)}, {v(27)}\nv_add_u32 {v(26)}, {hex(L_Q)}, {v(26)}')
    P(f's_lshl_b32 {s(sT0)}, {s(sT2)}, 4\ns_add_u32 {s(sT0)}, {s(sT0)}, {hex(L_MS)}\nv_mov_b32 {v(25)}, {s(sT0)}\nv_mov_b32 {v(vML+2)}, 1\nv_mov_b32 {v(vML+3)}, 1')
    P(f's_mov_b32 {s(sMASK)}, 0x00010001\ns_mov_b32 {s(sMASK+1)}, 0x00010001\ns_mov_b32 {s(sM2)}, 0x01000100\ns_mov_b32 {s(sM2+1)}, 0x01000100')
    lds_wait('kq', vT+2, 2, 28, [28, 29], cfg.lsleep)
    stamp('C0_kready')
    for q in range(4): P(f'ds_read_b128 {v(vQ+4*q,4)}, {v(26)} offset:{64*q}')
    NB = 3; PD = NB - 1; NT = 8
    def kread(t, q): P(f'ds_read_b128 {v(vKB+16*(t % NB)+4*q,4)}, {v(vKR+q)} offset:{4096*t}')
    for t in range(PD):
        for q in range(4): kread(t, q)
    for t in range(NT + 1):
        u = t - 1
        for q in range(4):
            if t < NT:
                if q in (0, 2): P(f's_waitcnt lgkmcnt({min(4*PD - 2, 4*(NT - t) - 2 - q)})')
                mfma(vDQ + 4*(t & 1), vKB + 16*(t % NB) + 4*q, vQ + 4*q, first=(q == 0))
                if t + PD < NT: kread(t + PD, q)
            if t >= 1 and q >= 2:
                mk = sMASK if q == 2 else sM2
                for e in range(2):
                    P(f'v_cndmask_b32 {v(vS2+e)}, {v(vS2+e)}, {v(vDQ+4*(u & 1)+2*(q-2)+e)}, {s(mk,2)}')
        if t >= 1 and t < NT: P(f's_lshl_b64 {s(sMASK,2)}, {s(sMASK,2)}, 1\ns_lshl_b64 {s(sM2,2)}, {s(sM2,2)}, 1')
    stamp('C0_qk')
    P(f'v_cvt_pk_bf16_f32 {v(vE)}, {v(vS2)}, {v(vS2+1)}'); unpack(vS2, vS2+1, vE)
    for e in range(2): P(f'v_mul_f32 {v(vS2+e)}, {SCALE}, {v(vS2+e)}')
    P(f'v_cvt_pk_bf16_f32 {v(vE)}, {v(vS2)}, {v(vS2+1)}'); unpack(vS2, vS2+1, vE)
    P(f'v_max_f32 {v(vML)}, {v(vS2)}, {v(vS2+1)}')
    wave_reduce('v_max_f32', [vML])
    P(f'v_readlane_b32 {s(sT0)}, {v(vML)}, 63')
    for e in range(2): P(f'v_subrev_f32 {v(vE+e)}, {s(sT0)}, {v(vS2+e)}')
    for e in range(2): P(f'v_mul_f32 {v(vE+e)}, {LOG2E}, {v(vE+e)}')
    for e in range(2): P(f'v_exp_f32 {v(vE+e)}, {v(vE+e)}')
    P(f'v_add_f32 {v(vML+1)}, {v(vE)}, {v(vE+1)}')
    wave_reduce('v_add_f32', [vML+1])
    setexec(1 << 63)
    P(f'ds_write_b128 {v(25)}, {v(vML,4)}')
    setexec(ALL)
    P(f's_cmp_eq_u32 {s(sW)}, 4\ns_cbranch_scc1 L_C0ML')
    P(f's_cmp_eq_u32 {s(sW)}, 5\ns_cbranch_scc0 L_MLWAIT\ns_cmp_eq_u32 {s(sR)}, 99\ns_cbranch_scc0 L_MLWAIT')
    modtile_compute(0, sO2)
    P('L_MLWAIT:')
    P(f'v_mov_b32 {v(vT+2)}, {hex(L_ML)}')
    lds_wait('mlw', vT+2, 4, vML, [vML+2], cfg.lsleep)
    P('s_branch L_PCALC')
    P('L_C0ML:')
    P(f'v_and_b32 {v(vT+2)}, 3, {v(vL)}\nv_lshlrev_b32 {v(vT+2)}, 4, {v(vT+2)}\nv_add_u32 {v(vT+2)}, {hex(L_MS)}, {v(vT+2)}')
    P(f's_lshl_b32 {s(sO1)}, {s(sH)}, 7\ns_add_u32 {s(sO1)}, {s(sO1)}, {hex(X3)}\ns_lshl_b32 {s(sO0)}, {s(sJ)}, 4\ns_add_u32 {s(sO0)}, {s(sO0)}, {s(sO1)}')
    lds_wait('msw', vT+2, 4, 220, [222])
    P(f'v_max_f32_dpp {v(vML)}, {v(220)}, {v(220)} quad_perm:[1,0,3,2] row_mask:0xf bank_mask:0xf\nv_mov_b32 {v(vML+2)}, {s(sTAG)}\nv_mov_b32 {v(vML+3)}, {s(sTAG)}')
    P(f'v_max_f32_dpp {v(vML)}, {v(vML)}, {v(vML)} quad_perm:[2,3,0,1] row_mask:0xf bank_mask:0xf')
    P(f'v_sub_f32 {v(220)}, {v(220)}, {v(vML)}\nv_mul_f32 {v(220)}, {LOG2E}, {v(220)}\nv_exp_f32 {v(220)}, {v(220)}\nv_mov_b32 {v(vT)}, 0\nv_mul_f32 {v(vML+1)}, {v(220)}, {v(221)}')
    for mod in ('quad_perm:[1,0,3,2]', 'quad_perm:[2,3,0,1]'): P(f'v_add_f32_dpp {v(vML+1)}, {v(vML+1)}, {v(vML+1)} {mod} row_mask:0xf bank_mask:0xf')
    publish(vML, vT, sO0, 1)
    stamp('C0_x3pub')
    P(f's_add_u32 {s(sMASK)}, {s(sWSP)}, {s(sO1)}\ns_addc_u32 {s(sMASK+1)}, {s(sWSP+1)}, 0\ns_mov_b32 {s(sSPIN)}, 0')
    gl = [4 + 4*k for k in range(8)]
    P('L_MLW:')
    if cfg.sleep3: P(f's_sleep {cfg.sleep3}')
    P(f's_load_dwordx16 s[4:19], {s(sMASK,2)}, 0 glc\ns_load_dwordx16 s[20:35], {s(sMASK,2)}, 64 glc')
    P(f's_add_u32 {s(sSPIN)}, {s(sSPIN)}, 1\ns_cmp_gt_u32 {s(sSPIN)}, {cfg.spin}\ns_cbranch_scc1 L_END')
    P('s_waitcnt lgkmcnt(0)')
    P(f's_xor_b32 {s(sT0)}, {s(gl[0]+2)}, {s(sTAG)}')
    for g in gl[1:]: P(f's_xor_b32 {s(sT1)}, {s(g+2)}, {s(sTAG)}\ns_or_b32 {s(sT0)}, {s(sT0)}, {s(sT1)}')
    P('s_cbranch_scc1 L_MLW')
    stamp('C0_ml')
    vG8 = 220
    P(f'v_mov_b32 {v(vML)}, {s(gl[0])}')
    for g in gl[1:]: P(f'v_max_f32 {v(vML)}, {s(g)}, {v(vML)}')
    for k, g in enumerate(gl): P(f'v_sub_f32 {v(vG8+k)}, {s(g)}, {v(vML)}')
    for k in range(8): P(f'v_mul_f32 {v(vG8+k)}, {LOG2E}, {v(vG8+k)}')
    for k in range(8): P(f'v_exp_f32 {v(vG8+k)}, {v(vG8+k)}')
    P(f'v_mul_f32 {v(vE)}, {s(gl[0]+1)}, {v(vG8)}')
    for k, g in enumerate(gl[1:]): P(f'v_fmac_f32 {v(vE)}, {s(g+1)}, {v(vG8+k+1)}')
    P(f'v_rcp_f32 {v(vE+1)}, {v(vE)}\nv_mov_b32 {v(vT+2)}, {hex(L_ML)}\nv_mov_b32 {v(vML+2)}, 1')
    P(f'v_fma_f32 {v(vE)}, -{v(vE)}, {v(vE+1)}, 1.0\nv_fma_f32 {v(vML+1)}, {v(vE)}, {v(vE+1)}, {v(vE+1)}')
    setexec(1)
    P(f'ds_write_b128 {v(vT+2)}, {v(vML,4)}')
    setexec(ALL)
    P('L_PCALC:')
    for e in range(2): P(f'v_sub_f32 {v(vE+e)}, {v(vS2+e)}, {v(vML)}')
    for e in range(2): P(f'v_mul_f32 {v(vE+e)}, {LOG2E}, {v(vE+e)}')
    for e in range(2): P(f'v_exp_f32 {v(vE+e)}, {v(vE+e)}')
    for e in range(2): P(f'v_mul_f32 {v(vE+e)}, {v(vE+e)}, {v(vML+1)}')
    for e in range(2): P(f'v_cvt_pk_bf16_f32 {v(vE+e)}, {v(vE+e)}, {v(vE+e)}')
    P(f'ds_write_b64 {v(27)}, {v(vE,2)}')
    srd(SRD_WS, sWSP, WS_BYTES)
    P(f's_cmp_eq_u32 {s(sW)}, 4\ns_cbranch_scc1 L_C0B1')
    P('s_waitcnt lgkmcnt(0)')
    P('s_barrier')
    P(f's_cmp_eq_u32 {s(sW)}, 5\ns_cbranch_scc1 L_C1B1')
    P('s_branch L_C23B1')
    P('L_C0B1:')
    srd(SRD_A, pWO, 4 << 20)
    P(f'v_bfe_u32 {v(vT)}, {v(vL)}, 3, 1\nv_lshlrev_b32 {v(vT)}, 16, {v(vT)}\nv_bfe_u32 {v(vT+1)}, {v(vL)}, 4, 1\nv_lshl_add_u32 {v(vT)}, {v(vT+1)}, 12, {v(vT)}\nv_lshrrev_b32 {v(vT+1)}, 5, {v(vL)}\nv_lshl_add_u32 {v(vT)}, {v(vT+1)}, 11, {v(vT)}')
    P(f'v_and_b32 {v(vT+1)}, 7, {v(vL)}\nv_lshl_add_u32 {v(vWA)}, {v(vT+1)}, 4, {v(vT)}')
    P(f's_lshl_b32 {s(sO0)}, {s(sH)}, 17\ns_lshl_b32 {s(sT0)}, {s(sJ)}, 7\ns_add_u32 {s(sO0)}, {s(sO0)}, {s(sT0)}')
    P('s_waitcnt lgkmcnt(0)')
    stamp('C0_p')
    P('s_barrier')
    vWO = 64
    def wo_issue(sreg):
        for i in range(16):
            P(f'buffer_load_dwordx4 {v(vWO+4*i,4)}, {v(vWA)}, {S(SRD_A)}, {s(sreg)} offen offset:{1024*(i & 1)} {cfg.wpol}')
            if (i & 1) == 1 and i < 15: P(f's_add_u32 {s(sreg)}, {s(sreg)}, 8192')
    if not cfg.wob2: wo_issue(sO0)
    else: P(f's_mov_b32 {s(sG)}, {s(sO0)}')
    P(f'v_lshrrev_b32 {v(vT+2)}, 1, {v(vL16)}\nv_add_u32 {v(vT+2)}, {hex(L_OP)}, {v(vT+2)}')
    P(f's_lshl_b32 {s(sO1)}, {s(sH)}, 13\ns_add_u32 {s(sO1)}, {s(sO1)}, {hex(XA)}\ns_lshl_b32 {s(sO0)}, {s(sJ)}, 10\ns_add_u32 {s(sO0)}, {s(sO0)}, {s(sO1)}\ns_add_u32 {s(sO2)}, {s(sO1)}, 4096')
    P(f's_lshl_b32 {s(sO3)}, {s(sJ)}, 5\ns_add_u32 {s(sO3)}, {s(sO3)}, {s(sH)}\ns_lshl_b32 {s(sO3)}, {s(sO3)}, 9\ns_add_u32 {s(sO3)}, {s(sO3)}, {hex(XB)}')
    P(f'v_mov_b32 {v(22)}, {s(sTAG)}')
    vAP, vDNA, vCA, vEA, vXBA = 8, 10, 11, 12, 13
    P(f'v_mov_b32 {v(14)}, {hex(L_FLAG + 160)}')
    P(f'v_bfe_u32 {v(vT)}, {v(vL)}, 3, 1\nv_lshl_add_u32 {v(vXBA)}, {v(vT)}, 17, {v(vPUB)}')
    sQ, sW2, sDN, sEP, sEG, sDP, sC0 = 4, 6, 8, 9, 10, 11, 12
    P(f's_sub_u32 {s(sT0)}, {s(sKK)}, 8\ns_cmp_lt_u32 {s(sKK)}, 8\ns_cselect_b32 {s(sT1)}, {s(sKK)}, {s(sT0)}\ns_and_b32 {s(sQ)}, {s(sT1)}, 3\ns_lshr_b32 {s(sT1)}, {s(sT1)}, 2')
    P(f's_mul_i32 {s(sIM)}, {s(sX)}, 6\ns_add_u32 {s(sIM)}, {s(sIM)}, {s(sT1)}\ns_cmp_lt_u32 {s(sT0)}, 8\ns_cselect_b32 {s(sIM)}, 255, {s(sIM)}')
    srd(SRD_B, pW2, 1376*1024)
    P(f'v_lshrrev_b32 {v(vT)}, 3, {v(vL)}\nv_mul_u32_u24 {v(vT)}, {16*2752}, {v(vT)}\nv_and_b32 {v(vT+1)}, 3, {v(vL)}\nv_lshl_add_u32 {v(vT)}, {v(vT+1)}, 4, {v(vT)}')
    P(f's_mul_i32 {s(sT0)}, {s(sQ)}, {128*2752}\ns_min_u32 {s(sT1)}, {s(sIM)}, {NM-1}\ns_lshl_b32 {s(sT1)}, {s(sT1)}, 6\ns_add_u32 {s(sT0)}, {s(sT0)}, {s(sT1)}\nv_add_u32 {v(vT)}, {s(sT0)}, {v(vT)}')
    P(f's_mov_b32 {s(sMASK)}, 0xf0f0f0f0\ns_mov_b32 {s(sMASK+1)}, 0xf0f0f0f0\ns_mov_b32 {s(sW2)}, 2752*2\ns_mov_b32 {s(sW2+1)}, 0')
    P(f'v_mov_b32 {v(vAP)}, {s(pW1)}\nv_mov_b32 {v(vAP+1)}, {s(pW1+1)}\nv_mov_b32 {v(vT+1)}, {s(pW3)}\nv_mov_b32 {v(vCA)}, {s(pW3+1)}')
    P(f'v_cndmask_b32 {v(vAP)}, {v(vAP)}, {v(vT+1)}, {s(sMASK,2)}\nv_cndmask_b32 {v(vAP+1)}, {v(vAP+1)}, {v(vCA)}, {s(sMASK,2)}')
    P(f'v_add_co_u32 {v(vAP)}, vcc, {v(vAP)}, {v(vT)}\nv_addc_co_u32 {v(vAP+1)}, vcc, 0, {v(vAP+1)}, vcc')
    P(f'v_bfe_u32 {v(vT)}, {v(vL)}, 4, 1\nv_lshlrev_b32 {v(vDNA)}, 12, {v(vT)}\nv_lshrrev_b32 {v(vT)}, 5, {v(vL)}\nv_lshl_add_u32 {v(vDNA)}, {v(vT)}, 11, {v(vDNA)}\nv_and_b32 {v(vT)}, 15, {v(vL)}\nv_lshl_add_u32 {v(vDNA)}, {v(vT)}, 4, {v(vDNA)}')
    P(f's_lshl_b32 {s(sDN)}, {s(sIM)}, 15\ns_lshl_b32 {s(sT0)}, {s(sQ)}, 8\ns_add_u32 {s(sDN)}, {s(sDN)}, {s(sT0)}')
    P(f's_lshl_b32 {s(sEG)}, {s(sIM)}, 11\ns_add_u32 {s(sEG)}, {s(sEG)}, {hex(XE)}\ns_lshl_b32 {s(sT0)}, {s(sQ)}, 9\ns_add_u32 {s(sEP)}, {s(sEG)}, {s(sT0)}')
    P(f's_lshl_b32 {s(sDP)}, {s(sIM)}, 12\ns_lshl_b32 {s(sT0)}, {s(sQ)}, 10\ns_add_u32 {s(sDP)}, {s(sDP)}, {s(sT0)}\ns_add_u32 {s(sDP)}, {s(sDP)}, {hex(XD)}')
    P(f's_lshl_b32 {s(sT1)}, {s(sX)}, 12\ns_add_u32 {s(sT1)}, {s(sT1)}, {hex(XC)}')
    for k in range(4): P(f's_add_u32 {s(sT0)}, {s(sQ)}, {k}\ns_and_b32 {s(sT0)}, {s(sT0)}, 3\ns_lshl_b32 {s(sT0)}, {s(sT0)}, 10\ns_add_u32 {s(sC0+k)}, {s(sT0)}, {s(sT1)}')
    P(f'v_lshrrev_b32 {v(vT)}, 5, {v(vL)}\nv_lshlrev_b32 {v(vCA)}, 9, {v(vT)}\nv_bfe_u32 {v(vT)}, {v(vL)}, 1, 1\nv_lshl_add_u32 {v(vCA)}, {v(vT)}, 7, {v(vCA)}\nv_and_b32 {v(vT)}, 1, {v(vL)}\nv_lshl_add_u32 {v(vCA)}, {v(vT)}, 8, {v(vCA)}')
    P(f'v_bfe_u32 {v(vT)}, {v(vL)}, 2, 3\nv_lshl_add_u32 {v(vCA)}, {v(vT)}, 4, {v(vCA)}')
    P(f'v_bfe_u32 {v(vT)}, {v(vL)}, 3, 1\nv_lshlrev_b32 {v(vT)}, 9, {v(vT)}\nv_add_u32 {v(vEA)}, {v(vPUB)}, {v(vT)}')
    P('s_barrier')
    stamp('C0_b2')
    for w in range(4): P(f'ds_read_b64 {v(24+2*w,2)}, {v(vT+2)} offset:{512*w}')
    P('s_waitcnt lgkmcnt(2)')
    for e in range(2): P(f'v_add_f32 {v(24+e)}, {v(24+e)}, {v(26+e)}')
    P('s_waitcnt lgkmcnt(0)')
    for e in range(2): P(f'v_add_f32 {v(28+e)}, {v(28+e)}, {v(30+e)}')
    for e in range(2): P(f'v_add_f32 {v(20+e)}, {v(24+e)}, {v(28+e)}')
    publish_loc(20, vL16, sO0)
    stamp('C0_xapub')
    if cfg.wob2 == 1: wo_issue(sG)
    vOd = 40
    def issue(b):
        for k in range(0, 8, 2 if cfg.fakehalf & 2 else 1):
            P(f'buffer_load_dwordx4 {v(b+4*k,4)}, {v(vL16)}, {S(SRD_WS)}, {s(sO1 if k < 4 else sO2)} offen offset:{1024*(k & 3)} sc1')
    def done(b):
        for a, b2 in ((0, 1), (2, 3), (4, 5), (6, 7), (0, 2), (4, 6), (0, 4)):
            for e in (0, 1): P(f'v_add_f32 {v(b+4*a+e)}, {v(b+4*a+e)}, {v(b+4*b2+e)}')
        P(f'v_cvt_pk_bf16_f32 {v(vOd)}, {v(b)}, {v(b)}\nv_cvt_pk_bf16_f32 {v(vOd+1)}, {v(b+1)}, {v(b+1)}')
    poll('xa', issue, 8, 128, 32, [4*k+2 for k in range(0, 8, 2 if cfg.fakehalf & 2 else 1)], done)
    stamp('C0_xa')
    lohi(vOd)
    chain(vD0, 16, [vWO+4*i for i in range(16)], lohi_srcs(vOd), vAA)
    finish2(vD0)
    if cfg.xbrep:
        for e in range(2): P(f'v_mov_b32_dpp {v(vD0+e)}, {v(vD0+e)} row_ror:8 row_mask:0xf bank_mask:0xc')
        for i in range(4):
            P(f'buffer_store_dwordx4 {v(vD0,4)}, {v(vXBA)}, {S(SRD_WS)}, {s(sO3)} offen sc1')
            if i < 3: P(f's_add_u32 {s(sO3)}, {s(sO3)}, 0x40000')
    else: publish(vD0, vPUB, sO3, M2SET)
    if cfg.rwait: P(f'ds_write_b32 {v(14)}, {v(14)}')
    stamp('C0_xbpub')
    P(f's_cmp_lt_u32 {s(sIM)}, {NM}\ns_cbranch_scc0 L_END')
    vUP, vDN, vCG, vEG = 128, 192, 64, 80
    for i in range(16):
        P(f'global_load_dwordx4 {v(vUP+4*i,4)}, {v(vAP,2)}, off offset:{2752*(i & 1)} {cfg.uppol}')
        if i & 1 and i < 15: P(f'v_lshl_add_u64 {v(vAP,2)}, {v(vAP,2)}, 0, {s(sW2,2)}')
    def dn_issue():
        for i in range(8):
            P(f'buffer_load_dwordx4 {v(vDN+4*i,4)}, {v(vDNA)}, {S(SRD_B)}, {s(sDN)} offen offset:{1024*(i & 1)} {cfg.wpol}')
            if i & 1 and i < 7: P(f's_add_u32 {s(sDN)}, {s(sDN)}, 8192')
    if not cfg.dnlate: dn_issue()
    if cfg.diag and 'M_w' in cfg.diag:
        P('s_waitcnt vmcnt(0)'); stamp('M_w')
    vx, vcb, vsb = 88, 24, 26
    def issue(b):
        for k in range(4): P(f'buffer_load_dwordx4 {v(b+4*k,4)}, {v(vCA)}, {S(SRD_WS)}, {s(sC0+k)} offen sc1')
    def done(b):
        for k in range(4): unpack(vx+2*k, vx+2*k+1, b+4*k)
        unpack(vcb, vcb+1, b+1); unpack(vsb, vsb+1, b+2)
    poll('xc', issue, 4, 64 if cfg.pipe.get('xc', 1) == 1 else 104, 16 if cfg.pipe.get('xc', 1) != 2 else -40, [4*k+3 for k in range(4)], done)
    stamp('M_xc')
    if cfg.dnlate == 1: dn_issue()
    P(f'v_readfirstlane_b32 {s(sT0)}, {v(vx)}')
    for k in range(8): P(f'v_subrev_f32 {v(96+k)}, {s(sT0)}, {v(vx+k)}')
    P(f'v_pk_add_f32 {v(20,2)}, {v(96,2)}, {v(98,2)}\nv_pk_add_f32 {v(22,2)}, {v(100,2)}, {v(102,2)}\nv_pk_mul_f32 {v(28,2)}, {v(96,2)}, {v(96,2)}\nv_pk_mul_f32 {v(30,2)}, {v(100,2)}, {v(100,2)}')
    P(f'v_pk_add_f32 {v(20,2)}, {v(20,2)}, {v(22,2)}\nv_pk_fma_f32 {v(28,2)}, {v(98,2)}, {v(98,2)}, {v(28,2)}\nv_pk_fma_f32 {v(30,2)}, {v(102,2)}, {v(102,2)}, {v(30,2)}')
    P(f'v_add_f32 {v(22)}, {v(20)}, {v(21)}\nv_pk_add_f32 {v(28,2)}, {v(28,2)}, {v(30,2)}\nv_add_f32 {v(23)}, {v(28)}, {v(29)}')
    for mod in ('quad_perm:[1,0,3,2]', 'quad_perm:[2,3,0,1]', 'row_ror:4', 'row_ror:8'):
        for r in (22, 23): P(f'v_add_f32_dpp {v(r)}, {v(r)}, {v(r)} {mod} row_mask:0xf bank_mask:0xf')
    P(f'v_permlane16_swap_b32 {v(22)}, {v(23)}\nv_add_f32 {v(22)}, {v(22)}, {v(23)}\nv_mov_b32 {v(23)}, {v(22)}')
    P(f'v_permlane32_swap_b32 {v(22)}, {v(23)}\nv_add_f32 {v(22)}, {v(22)}, {v(23)}\nv_mul_f32 {v(22)}, {R512}, {v(22)}')
    P(f'v_readlane_b32 {s(sT1)}, {v(22)}, 0\nv_readlane_b32 {s(sT2)}, {v(22)}, 16')
    P(f'v_mov_b32 {v(22)}, {s(sT1)}\nv_mov_b32 {v(23)}, {s(sT2)}')
    P(f'v_fma_f32 {v(23)}, -{v(22)}, {v(22)}, {v(23)}\nv_add_f32 {v(22)}, {s(sT0)}, {v(22)}\nv_max_f32 {v(23)}, 0, {v(23)}')
    P(f'v_cvt_pk_bf16_f32 {v(22)}, {v(22)}, {v(23)}')
    P(f'v_and_b32 {v(23)}, 0xffff0000, {v(22)}\nv_lshlrev_b32 {v(22)}, 16, {v(22)}\nv_add_f32 {v(23)}, {EPS}, {v(23)}')
    P(f'v_sub_f32 {v(20)}, {v(vx)}, {v(22)}\nv_sub_f32 {v(21)}, {v(vx+1)}, {v(22)}')
    P(f'v_cvt_pk_bf16_f32 {v(23)}, {v(23)}, {v(23)}\nv_cvt_pk_bf16_f32 {v(20)}, {v(20)}, {v(21)}\nv_and_b32 {v(23)}, 0xffff0000, {v(23)}\nv_sqrt_f32 {v(23)}, {v(23)}')
    unpack(vx, vx+1, 20)
    P(f'v_cvt_pk_bf16_f32 {v(23)}, {v(23)}, {v(23)}\nv_and_b32 {v(23)}, 0xffff0000, {v(23)}\nv_rcp_f32 {v(22)}, {v(23)}')
    P(f'v_mul_f32 {v(20)}, {v(vx)}, {v(22)}\nv_mul_f32 {v(21)}, {v(vx+1)}, {v(22)}')
    P(f'v_fma_f32 {v(vx)}, -{v(20)}, {v(23)}, {v(vx)}\nv_fma_f32 {v(vx+1)}, -{v(21)}, {v(23)}, {v(vx+1)}')
    P(f'v_fma_f32 {v(20)}, {v(vx)}, {v(22)}, {v(20)}\nv_fma_f32 {v(21)}, {v(vx+1)}, {v(22)}, {v(21)}')
    P(f'v_cvt_pk_bf16_f32 {v(20)}, {v(20)}, {v(21)}')
    unpack(vx, vx+1, 20)
    P(f'v_mul_f32 {v(vx)}, {v(vx)}, {v(vcb)}\nv_mul_f32 {v(vx+1)}, {v(vx+1)}, {v(vcb+1)}\nv_cvt_pk_bf16_f32 {v(20)}, {v(vx)}, {v(vx+1)}')
    unpack(vx, vx+1, 20)
    P(f'v_add_f32 {v(vx)}, {v(vx)}, {v(vsb)}\nv_add_f32 {v(vx+1)}, {v(vx+1)}, {v(vsb+1)}')
    P(f'v_cvt_pk_bf16_f32 {v(vOd)}, {v(vx)}, {v(vx)}\nv_cvt_pk_bf16_f32 {v(vOd+1)}, {v(vx+1)}, {v(vx+1)}')
    lohi(vOd)
    stamp('M_h2')
    if cfg.dnlate == 2: dn_issue()
    chain(vD0, 16, [vUP+4*i for i in range(16)], lohi_srcs(vOd), vAA)
    finish2(vD0)
    publish_loc(vD0, vPUB, sEP, M2SET, sR)
    stamp('M_up')
    def issue(b):
        for k in range(2): P(f'buffer_load_dwordx4 {v(b+4*k,4)}, {v(vEA)}, {S(SRD_WS)}, {s(sEG)} offen offset:{1024*k} sc1')
    def done(b):
        for e in range(2): P(f'v_add_f32 {v(20+e)}, {v(b+e)}, {v(b+4+e)}')
    poll('xe', issue, 2, 128, 8, [2, 6], done)
    stamp('M_xe')
    for e in range(2): P(f'v_add_f32_dpp {v(20+e)}, {v(20+e)}, {v(20+e)} row_ror:8 row_mask:0xf bank_mask:0xf')
    P(f'v_cvt_pk_bf16_f32 {v(22)}, {v(20)}, {v(21)}')
    unpack(20, 21, 22)
    P(f'v_mov_b32_dpp {v(24)}, {v(22)} row_shl:4 row_mask:0xf bank_mask:0xf')
    silu_multi([20, 21], [22, 23])
    unpack(26, 27, 24)
    P(f'v_cvt_pk_bf16_f32 {v(22)}, {v(20)}, {v(21)}')
    unpack(20, 21, 22)
    P(f'v_mul_f32 {v(20)}, {v(20)}, {v(26)}\nv_mul_f32 {v(21)}, {v(21)}, {v(27)}')
    for e in range(2): P(f'v_cvt_pk_bf16_f32 {v(20+e)}, {v(20+e)}, {v(20+e)}')
    stamp('M_act')
    chain(vD0, 8, [vDN+4*i for i in range(8)], [(20 + (i & 1), f'row_newbcast:{i >> 1}') for i in range(8)], vAA)
    finish1(vD0)
    publish(vD0, vL16, sDP)
    stamp('M_end')
    P('s_branch L_END')

    P('L_C123:')
    common_setup()
    P(f's_cmp_eq_u32 {s(sW)}, 5\ns_cbranch_scc1 L_C1')
    P(f's_cmp_eq_u32 {s(sW)}, 6\ns_cbranch_scc0 L_C3')
    P(f's_getpc_b64 {s(20,2)}')
    P('L_PCREF:')
    P(f's_sub_u32 s20, s20, L_PCREF-{NAME}_kernel\ns_subb_u32 s21, s21, 0')
    P(f's_lshl_b32 {s(sT0)}, {s(sKK)}, 3\nv_and_b32 {v(vT)}, 7, {v(vL)}\nv_add_u32 {v(vT)}, {s(sT0)}, {v(vT)}\nv_lshlrev_b32 {v(vT)}, 7, {v(vT)}')
    P(f'v_min_u32 {v(vT)}, L_CODE_END-{NAME}_kernel-4, {v(vT)}')
    if cfg.cpf: P(f'global_load_dword {v(240)}, {v(vT)}, s[20:21]')
    P('L_C3:')
    P('s_waitcnt lgkmcnt(0)')
    P(f's_add_u32 {s(sTAG)}, {s(sTAG)}, 1')
    P('s_branch L_QKP')
    P('L_C23B1:')
    P('s_barrier')
    P('s_branch L_END')

    P('L_C1:')
    P('s_waitcnt lgkmcnt(0)')
    P(f's_add_u32 {s(sTAG)}, {s(sTAG)}, 1')
    P(f's_mov_b32 {s(sR)}, 0\ns_sub_u32 {s(sT0)}, {s(sKK)}, 8\ns_cmp_lt_u32 {s(sT0)}, 16\ns_cbranch_scc1 L_QKP')
    P(f'v_mov_b32 {v(vT+2)}, {hex(L_FLAG + 8)}')
    lds_wait('k1', vT+2, 1, 28, [28], 8)
    P(f's_and_b32 {s(sT0)}, {s(sKK)}, 7\ns_lshr_b32 {s(sT1)}, {s(sKK)}, 4\ns_lshl_b32 {s(sT1)}, {s(sT1)}, 3\ns_add_u32 {s(sT0)}, {s(sT0)}, {s(sT1)}')
    P(f's_lshl_b32 {s(sT0)}, {s(sT0)}, 3\ns_add_u32 {s(sT0)}, {s(sT0)}, {s(sX)}\ns_and_b32 {s(sT1)}, {s(sT0)}, 31\ns_lshr_b32 {s(sT0)}, {s(sT0)}, 5')
    P(f's_lshl_b32 {s(sO2)}, {s(sT1)}, 2\ns_add_u32 {s(sO2)}, {s(sO2)}, {s(sT0)}\ns_lshl_b32 {s(sO2)}, {s(sO2)}, 9\ns_add_u32 {s(sO2)}, {s(sO2)}, {hex(X4)}')
    P(f's_lshl_b32 {s(sT1)}, {s(sT1)}, 7\ns_add_u32 {s(sT1)}, {s(sT1)}, 2048')
    modtile_issue(sT0, sT1)
    P(f's_mov_b32 {s(sR)}, 99\ns_branch L_QKP')
    P('L_C1B1:')
    P(f's_sub_u32 {s(sT0)}, {s(sKK)}, 8\ns_cmp_lt_u32 {s(sT0)}, 8\ns_cbranch_scc1 L_RED')
    P('s_barrier')
    P('s_branch L_END')
    P('L_RED:')
    vg = 64
    vXv, vGAv, vGBv, vU16, vDA, vXC, vL16r, vBP = 12, 13, 14, 15, 17, 20, 16, 18
    sJJ = sG
    P(f's_mov_b32 {s(sJJ)}, {s(sT0)}\ns_lshl_b32 {s(sR)}, {s(sX)}, 3\ns_add_u32 {s(sR)}, {s(sR)}, {s(sT0)}')
    if cfg.local:
        P(f's_lshl_b32 {s(sT1)}, {s(sX)}, 7\ns_add_u32 {s(sT1)}, {s(sT1)}, {hex(X0C)}\ns_add_u32 {s(sMASK)}, {s(sWSP)}, {s(sT1)}\ns_addc_u32 {s(sMASK+1)}, {s(sWSP+1)}, 0')
        P(f's_load_dwordx16 s[4:19], {s(sMASK,2)}, 0 glc\ns_load_dwordx16 s[20:35], {s(sMASK,2)}, 64 glc')
        P(f's_getreg_b32 {s(sLOC)}, hwreg(HW_REG_XCC_ID, 0, 3)\ns_lshl_b32 {s(sT1)}, {s(sTAG)}, 3\ns_or_b32 {s(sLOC)}, {s(sLOC)}, {s(sT1)}')
    P(f'v_lshlrev_b32 {v(vL16r)}, 4, {v(vL)}\nv_and_b32 {v(vU16)}, 3, {v(vL)}\nv_lshlrev_b32 {v(vU16)}, 4, {v(vU16)}')
    P(f'v_and_b32 {v(vT)}, 7, {v(vL)}\nv_lshlrev_b32 {v(vT)}, 4, {v(vT)}\nv_bfe_u32 {v(vT+1)}, {v(vL)}, 3, 1\nv_lshl_add_u32 {v(vT)}, {v(vT+1)}, 3, {v(vT)}\nv_bfe_u32 {v(vT+1)}, {v(vL)}, 4, 1\nv_lshl_add_u32 {v(vT)}, {v(vT+1)}, 2, {v(vT)}\nv_lshrrev_b32 {v(vT+1)}, 5, {v(vL)}\nv_lshl_add_u32 {v(vT+2)}, {v(vT+1)}, 1, {v(vT)}')
    P(f'v_bfe_u32 {v(vT)}, {v(vL)}, 4, 1\nv_lshlrev_b32 {v(vT)}, 7, {v(vT)}\nv_lshrrev_b32 {v(vT+1)}, 2, {v(vU16)}\nv_add_u32 {v(vBP)}, {v(vT)}, {v(vT+1)}\ns_lshl_b32 {s(sT1)}, {s(sX)}, 4\nv_add_u32 {v(vBP)}, {s(sT1)}, {v(vBP)}')
    P(f'v_lshrrev_b32 {v(vT)}, 2, {v(vL)}\nv_lshl_add_u32 {v(vDA)}, {v(vT)}, 12, {v(vU16)}')
    if cfg.local:
        P('s_waitcnt lgkmcnt(0)')
        P(f's_xor_b32 s4, s4, {s(sLOC)}')
        for k in range(5, 36): P(f's_xor_b32 {s(k)}, {s(k)}, {s(sLOC)}\ns_or_b32 s4, s4, {s(k)}')
        P(f's_cselect_b32 {s(sLOC)}, 0, 1')
        srd(SRD_WS, sWSP, WS_BYTES)
    srd(SRD_A, pX, 1024); srd(SRD_B, pOUT, 1024)
    P(f's_lshl_b32 {s(sT1)}, {s(sJJ)}, 7')
    P(f'buffer_load_ushort {v(vXv)}, {v(vT+2)}, {S(SRD_A)}, {s(sT1)} offen')
    P(f's_and_b32 {s(sT2)}, {s(sX)}, 1\ns_lshl_b32 {s(sT2)}, {s(sT2)}, 6\ns_add_u32 {s(sT1)}, {s(sT1)}, {s(sT2)}\ns_and_b32 {s(sT2)}, {s(sX)}, 2\ns_lshl_b32 {s(sT2)}, {s(sT2)}, 2\ns_add_u32 {s(sT1)}, {s(sT1)}, {s(sT2)}\ns_and_b32 {s(sT2)}, {s(sX)}, 4\ns_add_u32 {s(sG+2)}, {s(sT1)}, {s(sT2)}')
    sP = 4
    for p_ in range(4): P(f's_lshl_b32 {s(sP+p_)}, {s(sJJ)}, 11\ns_add_u32 {s(sP+p_)}, {s(sP+p_)}, {hex(X4 + p_*16384)}')
    P(f's_lshl_b32 {s(sO0)}, {s(sJJ)}, 14\ns_add_u32 {s(sO0)}, {s(sO0)}, {hex(XB)}')
    if cfg.xbrep: P(f's_lshl_b32 {s(sT1)}, {s(sX)}, 17\ns_add_u32 {s(sO0)}, {s(sO0)}, {s(sT1)}')
    sB4 = 12
    for k in range(4): P(f's_add_u32 {s(sB4+k)}, {s(sO0)}, {4096*k}')
    P(f's_lshl_b32 {s(sO3)}, {s(sX)}, 12\ns_lshl_b32 {s(sT1)}, {s(sJJ)}, 9\ns_add_u32 {s(sO3)}, {s(sO3)}, {s(sT1)}\ns_add_u32 {s(sO3)}, {s(sO3)}, {hex(XC)}')
    P(f's_lshr_b32 {s(sO2)}, {s(sJJ)}, 1\ns_lshl_b32 {s(sO2)}, {s(sO2)}, 10\ns_and_b32 {s(sT1)}, {s(sJJ)}, 1\ns_lshl_b32 {s(sT1)}, {s(sT1)}, 7\ns_add_u32 {s(sO2)}, {s(sO2)}, {s(sT1)}')
    P(f's_and_b32 {s(sT1)}, {s(sX)}, 1\ns_lshl_b32 {s(sT1)}, {s(sT1)}, 6\ns_add_u32 {s(sO2)}, {s(sO2)}, {s(sT1)}\ns_lshr_b32 {s(sT1)}, {s(sX)}, 1\ns_lshl_b32 {s(sT1)}, {s(sT1)}, 8\ns_add_u32 {s(sO2)}, {s(sO2)}, {s(sT1)}\ns_add_u32 {s(sO2)}, {s(sO2)}, {hex(XD)}')
    sD = 8
    for k in range(3): P(f's_add_u32 {s(sD+k)}, {s(sO2)}, {hex(65536*k)}')
    for i in range(cfg.pipe.get('xd', 1)):
        for k in range(3): P(f'v_mov_b32 {v(192+12*i+8+k)}, {s(sTAG) if k == 2 else 0}')
    def xb_issue(b):
        for k in range(0, 16, 2 if cfg.fakehalf & 1 else 1): P(f'buffer_load_dwordx4 {v(b+4*k,4)}, {v(vL16r)}, {S(SRD_WS)}, {s(sB4 + (k >> 2))} offen offset:{1024*(k & 3)} sc1')
    def issue():
        for k in range(8): P(f'buffer_load_dwordx4 {v(vg+4*k,4)}, {v(vL16r)}, {S(SRD_WS)}, {s(sP + (k >> 1))} offen offset:{1024*(k & 1)} sc1')
    def rw(name):
        P(f'v_mov_b32 {v(vT+2)}, {hex(L_FLAG + 160)}')
        lds_wait(name, vT+2, 1, 28, [28], cfg.lsleep)
    if cfg.rwait == 3:
        issue()
        P('s_barrier')
        stamp('R_b2')
        P(f's_mov_b32 {s(sT2)}, 0\ns_branch L_X4CHK\nL_X4RETRY:')
        rw('rw0')
        issue()
        P(f's_add_u32 {s(sT2)}, {s(sT2)}, 1\ns_cmp_gt_u32 {s(sT2)}, {cfg.spin}\ns_cbranch_scc1 L_END\nL_X4CHK:')
        P('s_waitcnt vmcnt(0)')
        tr = [vg+4*k+2 for k in range(8)]
        P(f'v_xor_b32 {v(vT)}, {s(sTAG)}, {v(tr[0])}\nv_xor_b32 {v(vT+1)}, {s(sTAG)}, {v(tr[1])}')
        for k, r in enumerate(tr[2:]): P(f'v_bitop3_b32 {v(vT + (k & 1))}, {v(r)}, {s(sTAG)}, {v(vT + (k & 1))} bitop3:{TAGX}')
        P(f'v_or_b32 {v(vT)}, {v(vT)}, {v(vT+1)}\nv_cmp_ne_u32 vcc, 0, {v(vT)}\ns_cbranch_vccnz L_X4RETRY')
    else:
        P('s_barrier')
        stamp('R_b2')
        if cfg.rwait: rw('rw')
        tagcheck_loop(issue, [vg+4*k+2 for k in range(8)], 'x4', after=(lambda: xb_issue(128)) if cfg.rwait == 2 else None, nafter=16)
    for p_ in range(4):
        for e in range(2): P(f'v_add_f32 {v(vg+8*p_+e)}, {v(vg+8*p_+e)}, {v(vg+8*p_+4+e)}')
    for p_ in range(4): P(f'v_permlane32_swap_b32 {v(vg+8*p_)}, {v(vg+8*p_+1)}')
    for p_ in range(4): P(f'v_add_f32 {v(vg+8*p_)}, {v(vg+8*p_)}, {v(vg+8*p_+1)}')
    for p_ in range(4): rnd(vg+8*p_)
    P(f'v_mov_b32 {v(vGAv)}, {v(vg)}\nv_add_f32 {v(vg+16)}, 1.0, {v(vg+16)}\nv_mov_b32 {v(vg+9)}, {v(vg+8)}\nv_mov_b32 {v(vg+17)}, {v(vg+16)}')
    P(f'ds_bpermute_b32 {v(vGBv)}, {v(vBP)}, {v(vg+24)}')
    P(f'v_permlane32_swap_b32 {v(vg+8)}, {v(vg+9)}\nv_permlane32_swap_b32 {v(vg+16)}, {v(vg+17)}')
    P(f'v_cvt_pk_bf16_f32 {v(vXC+2)}, {v(vg+8)}, {v(vg+9)}\nv_cvt_pk_bf16_f32 {v(vXC+1)}, {v(vg+16)}, {v(vg+17)}\nv_mov_b32 {v(vXC+3)}, {s(sTAG)}\nv_lshlrev_b32 {v(vXv)}, 16, {v(vXv)}')
    stamp('R_x4')
    if cfg.rwait == 3: rw('rw1')
    def done(b):
        st = 1
        while st < 16:
            for a in range(0, 16, 2*st):
                for e in range(2): P(f'v_add_f32 {v(b+4*a+e)}, {v(b+4*a+e)}, {v(b+4*(a+st)+e)}')
            st *= 2
    if cfg.rsleep: P(f's_sleep {cfg.rsleep}')
    if cfg.xbgrp:
        n = 16 // cfg.xbgrp
        def mk(g):
            def issue():
                for k in range(g*n, g*n + n): P(f'buffer_load_dwordx4 {v(128+4*k,4)}, {v(vL16r)}, {S(SRD_WS)}, {s(sB4 + (k >> 2))} offen offset:{1024*(k & 3)} sc1')
            return (issue, [128+4*k+2 for k in range(g*n, g*n + n)])
        poll_groups('xb', [mk(g) for g in range(cfg.xbgrp)])
        done(128)
    else: poll('xb', xb_issue, 16, 128, 64, [4*k+2 for k in range(0, 16, 2 if cfg.fakehalf & 1 else 1)], done, issued=(cfg.rwait == 2))
    stamp('R_xb')
    P(f'v_permlane32_swap_b32 {v(128)}, {v(129)}\nv_add_f32 {v(vg)}, {v(128)}, {v(129)}')
    rnd(vg)
    P(f'v_mul_f32 {v(vg)}, {v(vg)}, {v(vGAv)}'); rnd(vg)
    P(f'v_add_f32 {v(vg)}, {v(vg)}, {v(vXv)}\nv_mov_b32 {v(vg+1)}, {v(vg)}')
    P(f'v_permlane32_swap_b32 {v(vg)}, {v(vg+1)}')
    P(f'v_cvt_pk_bf16_f32 {v(vXC)}, {v(vg)}, {v(vg+1)}')
    publish_loc(vXC, vL16r, sO3, 0xffffffff)
    stamp('R_xcpub')
    if cfg.epearly:
        P(f's_cmp_eq_u32 {s(sR)}, 0\ns_cbranch_scc0 L_NOEP')
        setexec(1)
        P(f'v_mov_b32 {v(vT)}, 0\nv_mov_b32 {v(vT+1)}, {s(sTAG)}')
        P(f'buffer_store_dword {v(vT+1)}, {v(vT)}, {S(SRD_WS)}, 0 offen sc1')
        setexec(ALL)
        P('L_NOEP:')
    P(f'v_lshrrev_b32 {v(vT+2)}, 1, {v(vL)}\nv_and_b32 {v(vT+2)}, 16, {v(vT+2)}\nv_lshrrev_b32 {v(vXv)}, {v(vT+2)}, {v(vXC)}\nv_lshlrev_b32 {v(vXv)}, 16, {v(vXv)}')
    P(f'ds_bpermute_b32 {v(vXv)}, {v(vBP)}, {v(vXv)}')
    def colsum():
        P(f'v_permlane16_swap_b32 {v(vg)}, {v(vg+1)}')
        P(f'v_add_f32 {v(vg)}, {v(vg)}, {v(vg+1)}')
        P(f'v_add_f32_dpp {v(vg)}, {v(vg)}, {v(vg)} row_ror:4 row_mask:0xf bank_mask:0xf')
        P(f'v_add_f32_dpp {v(vg)}, {v(vg)}, {v(vg)} row_ror:8 row_mask:0xf bank_mask:0xf')
        P(f'v_mov_b32 {v(vg+1)}, {v(vg)}')
        P(f'v_permlane32_swap_b32 {v(vg)}, {v(vg+1)}')
        P(f'v_add_f32 {v(vg)}, {v(vg)}, {v(vg+1)}')
    P('s_waitcnt lgkmcnt(0)')
    def issue(b):
        for k in range(2): P(f'buffer_load_dwordx4 {v(b+4*k,4)}, {v(vDA)}, {S(SRD_WS)}, {s(sD+k)} offen sc1')
        setexec((1 << 44) - 1)
        P(f'buffer_load_dwordx4 {v(b+8,4)}, {v(vDA)}, {S(SRD_WS)}, {s(sD+2)} offen sc1')
        setexec(ALL)
    def done(b):
        for e in range(2): P(f'v_add_f32 {v(b+e)}, {v(b+e)}, {v(b+4+e)}')
        for e in range(2): P(f'v_add_f32 {v(vg+e)}, {v(b+e)}, {v(b+8+e)}')
    if cfg.dsleep: P(f's_sleep {cfg.dsleep}')
    poll('xd', issue, 3, 192, 12, [2, 6, 10], done)
    stamp('R_xd')
    colsum()
    rnd(vg)
    P(f'v_mul_f32 {v(vg)}, {v(vg)}, {v(vGBv)}'); rnd(vg)
    P(f'v_add_f32 {v(vg)}, {v(vg)}, {v(vXv)}\nv_mov_b32 {v(vg+1)}, {v(vg)}')
    P(f'v_permlane16_swap_b32 {v(vg)}, {v(vg+1)}')
    P(f'v_cvt_pk_bf16_f32 {v(vg)}, {v(vg)}, {v(vg+1)}')
    setexec(0xf)
    P(f'buffer_store_dword {v(vg)}, {v(vU16)}, {S(SRD_B)}, {s(sG+2)} offen {cfg.outpol}')
    stamp('R_end')
    def epoch(skip):
        P(f's_cmp_eq_u32 {s(sR)}, 0\ns_cbranch_scc0 {skip}')
        setexec(1)
        P(f'v_mov_b32 {v(vT)}, 0\nv_mov_b32 {v(vT+1)}, {s(sTAG)}')
        P(f'buffer_store_dword {v(vT+1)}, {v(vT)}, {S(SRD_WS)}, 0 offen sc1')
    if not cfg.epearly: epoch('L_END')
    if cfg.xdelay:
        P(f's_cmp_eq_u32 {s(sR)}, 0\ns_cbranch_scc0 L_END\ns_memrealtime s[76:77]\ns_waitcnt lgkmcnt(0)\ns_add_u32 {s(sT0)}, s76, {cfg.xdelay}')
        P(f'L_XDL:\ns_memrealtime s[76:77]\ns_waitcnt lgkmcnt(0)\ns_sub_u32 {s(sT1)}, s76, {s(sT0)}\ns_cmp_lt_i32 {s(sT1)}, 0\ns_cbranch_scc1 L_XDL')
    if cfg.gprobe:
        P(f's_cmp_eq_u32 {s(sR)}, 0\ns_cbranch_scc0 L_END\ns_mov_b64 exec, -1\ns_mov_b32 {s(sT0)}, {hex(DIAG)}')
        nw = 4 if cfg.gprobe.startswith('L') else 1
        P(f'v_lshlrev_b32 v1, 5, v0')
        if cfg.gprobe[0] == 'R': P('v_add_u32 v1, 8, v1')
        if cfg.gprobe[0] in 'MR': P('s_sleep 40')
        regs = []
        for q in range(4):
            for w in range(nw):
                r = 128 + 2*(q*4 + w); regs.append(r)
                P(f'buffer_load_dwordx2 v[{r}:{r+1}], v1, {S(SRD_WS)}, {s(sT0)} offen offset:{8*w} sc1')
            P(f's_add_u32 {s(sT0)}, {s(sT0)}, 2048')
        P('s_waitcnt vmcnt(0)')
        P(f'v_subrev_u32 v2, {s(sDIAG)}, v{regs[0]}\nv_subrev_u32 v3, {s(sDIAG)}, v{regs[0]+1}')
        for r in regs[1:]:
            P(f'v_subrev_u32 v4, {s(sDIAG)}, v{r}\nv_min_i32 v2, v2, v4\nv_subrev_u32 v4, {s(sDIAG)}, v{r+1}\nv_max_i32 v3, v3, v4')
        wave_reduce('v_min_i32', [2]); wave_reduce('v_max_i32', [3])
        P(f'v_sub_u32 v2, v3, v2\nv_readlane_b32 {s(sT0)}, v2, 63\ns_memrealtime s[76:77]\ns_waitcnt lgkmcnt(0)\ns_add_u32 {s(sT0)}, {s(sT0)}, s76')
        P(f'L_GPR:\ns_memrealtime s[76:77]\ns_waitcnt lgkmcnt(0)\ns_sub_u32 {s(sT1)}, s76, {s(sT0)}\ns_cmp_lt_i32 {s(sT1)}, 0\ns_cbranch_scc1 L_GPR')
    if cfg.probe:
        P(f's_cmp_eq_u32 {s(sR)}, 0\ns_cbranch_scc0 L_END')
        i = stamps[cfg.probe]
        P(f's_waitcnt lgkmcnt(0)\ns_sub_u32 {s(sT0)}, {s(sDIAG+2*i)}, {s(sDIAG)}\ns_memrealtime s[76:77]\ns_waitcnt lgkmcnt(0)\ns_add_u32 {s(sT0)}, {s(sT0)}, s76')
        P(f'L_PROBE:\ns_memrealtime s[76:77]\ns_waitcnt lgkmcnt(0)\ns_sub_u32 {s(sT1)}, s76, {s(sT0)}\ns_cmp_lt_i32 {s(sT1)}, 0\ns_cbranch_scc1 L_PROBE')
    P('s_branch L_END')

    P('L_END:')
    if cfg.diag and not cfg.probe and not cfg.gprobe:
        P('s_waitcnt lgkmcnt(0)')
        P(f's_cmp_ge_u32 {s(sB)}, 256\ns_cbranch_scc1 L_END2')
        srd(SRD_WS, sWSP, WS_BYTES)
        P(f's_lshl_b32 {s(sT0)}, {s(sB)}, 3\ns_add_u32 {s(sT0)}, {s(sT0)}, {s(sW)}\ns_lshl_b32 {s(sT0)}, {s(sT0)}, 7\ns_add_u32 {s(sT0)}, {s(sT0)}, {hex(DIAG)}')
        P('s_mov_b64 exec, 1\nv_mov_b32 v1, 0')
        for i in range(9): P(f'v_mov_b32 v2, {s(sDIAG+2*i)}\nbuffer_store_dword v2, v1, {S(SRD_WS)}, {s(sT0)} offen offset:{4*i}')
        P('L_END2:')
    P('s_endpgm')
    P('L_CODE_END:')
    probs = P.fix()
    for p in probs: print('HAZARD across branch:', p, file=sys.stderr)
    head = open(f'cdna_kernels/{NAME}.s.ref').read().split('; Override launch')[0]
    txt = head
    txt += f'; Single persistent launch: 256 workgroups (one per CU) x 8 waves. Generated by gen/gen_kernel.py (hand-written generator).\n'
    txt += f'; @launch grid=(256,1,1) block=(512,1,1) lds={LDS_BYTES}\n'
    txt += f'.amdgcn_target "amdgcn-amd-amdhsa--gfx950"\n.text\n.globl {NAME}_kernel\n.p2align 8\n.type {NAME}_kernel,@function\n{NAME}_kernel:\n'
    txt += P.text() + '\n'
    txt += f'''.section .rodata,"a"
.p2align 6
.amdhsa_kernel {NAME}_kernel
  .amdhsa_next_free_vgpr 256
  .amdhsa_next_free_sgpr 102
  .amdhsa_accum_offset 256
  .amdhsa_group_segment_fixed_size 0
  .amdhsa_kernarg_size 112
  .amdhsa_user_sgpr_count 2
  .amdhsa_user_sgpr_kernarg_segment_ptr 1
  .amdhsa_system_sgpr_workgroup_id_x 1
  .amdhsa_float_denorm_mode_32 3
.end_amdhsa_kernel
'''
    return txt, stamps

if __name__ == '__main__':
    out = sys.argv[1] if len(sys.argv) > 1 else f'cdna_kernels/{NAME}.s'
    class C(Cfg): pass
    for a in sys.argv[2:]:
        k, val = a.split('=', 1)
        setattr(C, k, eval(val))
    txt, stamps = gen(C)
    open(out, 'w').write(txt)
    print('written', out, len(txt), 'bytes', stamps)
```

```python
import sys, struct
from asmdsl import Prog

NAME = 'adaLN_cond__mha_block_cached__glu_gated_swiglu__decode'

def f2u(x): return struct.unpack('<I', struct.pack('<f', x))[0]
LOG2E = hex(f2u(1.4426950408889634))
NLOG2E = hex(f2u(-1.4426950408889634))
SCALE = hex(f2u(128 ** -0.5))
EPS = hex(f2u(1e-5))
R512 = hex(f2u(1/512))
ALL = (1 << 64) - 1

X1 = 0x1000
X4 = 0x9000
X3 = 0x19000
X1F = 0x1b000
X0 = 0x1d000
X0B = 0x1e000
X2F = 0x1c000
XC = 0x120000
X2 = 0x20000
XA = 0x60000
XB = 0x200000
XD = 0xc0000
XE = 0x100000
XG = 0x130000
X0C = 0x1a000
DIAG = 0x180000
WS_BYTES = 0x300000
L_P, L_OP, L_Q, L_FLAG = 0x20000, 0x20800, 0x21000, 0x21100
L_ST, L_U = 0x0, 0x1000
L_MS, L_ML = L_FLAG + 64, L_FLAG + 128
LDS_BYTES = 0x21200
NM = 43
TAGX = hex(sum(1 << (a*4+b*2+c) for a in (0,1) for b in (0,1) for c in (0,1) if (a ^ b) | c))

class Cfg:
    depth = 8
    diag = False
    probe = None
    kpol = 'nt'
    vpol = 'nt'
    wpol = 'nt'
    ppol = ''
    sleep1 = 0
    sleep2 = 0
    sleep3 = 4
    sleep4 = 40
    prio = 3
    hint = 1
    hsleep = 3
    lsleep = 1
    pf = 'post'
    wq0 = 1
    dsched = (6, 12, 9)
    rot = 5
    npf = 8
    local = 1
    pipe = dict()
    psleep = dict()
    xcrep = 1
    xcline = 0
    nodpp = 0
    b0late = 1
    xcsleep = 0
    dnlate = 0
    xbrep = 0
    rwait = 1
    xbgrp = 0
    rsleep = 0
    dsleep = 0
    wob2 = 0
    epearly = 1
    ksplit = 0
    th = 0
    cpf = 1
    fakehalf = 0
    xdelay = 0
    gwait = 0
    tearly = 0
    pkand = 0
    acc2 = 0
    gthr = 32
    gprobe = None
    dodd = None
    dvar = None
    outpol = ''
    uppol = 'nt'
    spin = 1 << 18

def v(a, n=1): return f'v{a}' if n == 1 else f'v[{a}:{a+n-1}]'
def s(a, n=1): return f's{a}' if n == 1 else f's[{a}:{a+n-1}]'

sB, sW = 2, 3
sKP, sVP = 4, 6
SRD_K, SRD_V, SRD_WS, SRD_A, SRD_B, SRD_C = 8, 12, 16, 20, 24, 28
sH, sJ, sX, sKK = 36, 37, 38, 39
sWSP = 40
sTAG, sIM, sR = 42, 43, 44
sT0, sT1, sT2 = 45, 46, 47
pWQ, pWO, pW1, pW3, pW2, pC, pWM, pX, pOUT = 48, 50, 54, 56, 58, 60, 62, 64, 66
sSPIN = 68
sO0, sO1, sO2, sO3 = 69, 70, 71, 72
sMASK = 74
sT1B = 35
sLOC = 73
sG = 76
sDIAG = 84
vL = 0
vT = 1
vM = 4

def gen(cfg=Cfg):
    P = Prog()
    D = cfg.depth
    stamps = {}
    def stamp(name):
        if cfg.diag and name in cfg.diag:
            grp = name.split('_')[0]
            same = [n for n in cfg.diag if n.split('_')[0] == grp]
            if name == 'start': i = 0
            elif grp == 'M': i = 8 - same.index(name)
            else: i = 1 + same.index(name)
            assert 0 <= i <= 8
            stamps[name] = i
            P(f's_memrealtime {s(sDIAG + 2*i, 2)}')
            if cfg.gprobe == name:
                assert i < 5
                P(f's_waitcnt lgkmcnt(0)\ns_mov_b32 s96, {s(sWSP)}\ns_mov_b32 s97, {s(sWSP+1)}\ns_mov_b32 s98, {hex(WS_BYTES)}\ns_mov_b32 s99, 0x20000')
                P(f's_lshl_b32 s100, {s(sB)}, 2\ns_and_b32 s101, {s(sW)}, 3\ns_add_u32 s100, s100, s101\ns_lshl_b32 s100, s100, 3\ns_add_u32 s100, s100, {hex(DIAG)}')
                P(f's_mov_b64 s[94:95], exec\ns_mov_b64 exec, 1\nv_mov_b32 v254, {s(sDIAG)}\nv_mov_b32 v255, {s(sDIAG+2*i)}\nv_mov_b32 v253, 0\nbuffer_store_dwordx2 v[254:255], v253, s[96:99], s100 offen sc1\ns_mov_b64 exec, s[94:95]')
    def srd(r, ptr, nbytes):
        P(f's_mov_b32 {s(r)}, {s(ptr)}\ns_mov_b32 {s(r+1)}, {s(ptr+1)}\ns_mov_b32 {s(r+2)}, {hex(nbytes)}\ns_mov_b32 {s(r+3)}, 0x20000')
    def S(r): return s(r, 4)
    def setexec(mask):
        lo, hi = mask & 0xffffffff, mask >> 32
        if mask == ALL: P('s_mov_b64 exec, -1')
        elif mask <= 64: P(f's_mov_b64 exec, {mask}')
        else: P(f's_mov_b32 exec_lo, {hex(lo)}\ns_mov_b32 exec_hi, {hex(hi)}')
    uid = [0]
    def lab(p):
        uid[0] += 1; return f'L_{p}{uid[0]}'
    def tagcheck_loop(issue, tagregs, name, sleep=0, after=None, nafter=0):
        top = lab(name)
        P(f's_mov_b32 {s(sSPIN)}, 0')
        P(f'{top}:')
        issue()
        if after: after()
        P(f's_add_u32 {s(sSPIN)}, {s(sSPIN)}, 1\ns_cmp_gt_u32 {s(sSPIN)}, {cfg.spin}\ns_cbranch_scc1 L_END')
        P(f's_waitcnt vmcnt({nafter if after else 0})')
        if len(tagregs) == 1:
            P(f'v_cmp_ne_u32 vcc, {s(sTAG)}, {v(tagregs[0])}')
        else:
            P(f'v_xor_b32 {v(vT)}, {s(sTAG)}, {v(tagregs[0])}\nv_xor_b32 {v(vT+1)}, {s(sTAG)}, {v(tagregs[1])}')
            for k, r in enumerate(tagregs[2:]):
                P(f'v_bitop3_b32 {v(vT + (k & 1))}, {v(r)}, {s(sTAG)}, {v(vT + (k & 1))} bitop3:{TAGX}')
            P(f'v_or_b32 {v(vT)}, {v(vT)}, {v(vT+1)}\nv_cmp_ne_u32 vcc, 0, {v(vT)}')
        if sleep:
            dn = lab(name + 'd')
            P(f's_cbranch_vccz {dn}\ns_sleep {sleep}\ns_branch {top}\n{dn}:')
        else: P(f's_cbranch_vccnz {top}')
    def poll(name, issue, nl, base, stride, tagoff, done, issued=False):
        NS = cfg.pipe.get(name, 1)
        top, join = lab(name), lab(name + 'j')
        ex = [lab(name + 'x') for _ in range(NS)]
        P(f's_mov_b32 {s(sSPIN)}, 0')
        for i in range(NS - 1): issue(base + i*stride)
        if issued:
            assert NS == 1
            sk = lab(name + 's'); P(f's_branch {sk}')
        P(f'{top}:')
        for i in range(NS):
            issue(base + ((i + NS - 1) % NS)*stride)
            if issued: P(f'{sk}:')
            if i == 0: P(f's_add_u32 {s(sSPIN)}, {s(sSPIN)}, 1\ns_cmp_gt_u32 {s(sSPIN)}, {cfg.spin}\ns_cbranch_scc1 L_END')
            P(f's_waitcnt vmcnt({(NS-1)*nl})')
            tr = [base + i*stride + t for t in tagoff]
            if len(tr) == 1:
                P(f'v_cmp_ne_u32 vcc, {s(sTAG)}, {v(tr[0])}')
            else:
                P(f'v_xor_b32 {v(vT)}, {s(sTAG)}, {v(tr[0])}\nv_xor_b32 {v(vT+1)}, {s(sTAG)}, {v(tr[1])}')
                for k, r in enumerate(tr[2:]):
                    P(f'v_bitop3_b32 {v(vT + (k & 1))}, {v(r)}, {s(sTAG)}, {v(vT + (k & 1))} bitop3:{TAGX}')
                P(f'v_or_b32 {v(vT)}, {v(vT)}, {v(vT+1)}\nv_cmp_ne_u32 vcc, 0, {v(vT)}')
            ps = cfg.psleep.get(name, 0)
            if ps:
                P(f's_cbranch_vccz {ex[i]}\ns_sleep {ps}')
                if i + 1 == NS: P(f's_branch {top}')
            else: P(f's_cbranch_vccz {ex[i]}' if i + 1 < NS else f's_cbranch_vccnz {top}')
        for i in reversed(range(NS)):
            P(f'{ex[i]}:')
            done(base + i*stride)
            if i > 0: P(f's_branch {join}')
        P(f'{join}:')
    def poll_groups(name, groups):
        top = lab(name)
        P(f's_mov_b32 {s(sSPIN)}, 0\ns_mov_b32 {s(sT0)}, {(1 << len(groups)) - 1}')
        P(f'{top}:')
        for g, (issue, tr) in enumerate(groups):
            sk = lab(name + 'i')
            P(f's_bitcmp1_b32 {s(sT0)}, {g}\ns_cbranch_scc0 {sk}')
            issue()
            P(f'{sk}:')
        P(f's_add_u32 {s(sSPIN)}, {s(sSPIN)}, 1\ns_cmp_gt_u32 {s(sSPIN)}, {cfg.spin}\ns_cbranch_scc1 L_END')
        P('s_waitcnt vmcnt(0)')
        for g, (issue, tr) in enumerate(groups):
            P(f'v_xor_b32 {v(vT + (g & 1))}, {s(sTAG)}, {v(tr[0])}')
            for r in tr[1:]: P(f'v_bitop3_b32 {v(vT + (g & 1))}, {v(r)}, {s(sTAG)}, {v(vT + (g & 1))} bitop3:{TAGX}')
            P(f'v_cmp_ne_u32 {s(sG+4+2*(g & 1),2)}, 0, {v(vT + (g & 1))}')
            P(f's_cmp_lg_u64 {s(sG+4+2*(g & 1),2)}, 0\ns_cselect_b32 {s(sT1)}, {1 << g}, 0')
            P(f's_or_b32 {s(sT0)}, {s(sT1)}, {s(sT0) if g else s(sT1)}')
        P(f's_cbranch_scc1 {top}')
    def publish_loc(d, vaddr, soff, mask=None, flag=sLOC):
        if not cfg.local: return publish(d, vaddr, soff, mask)
        far, j2 = lab('far'), lab('pb')
        if mask: setexec(mask)
        P(f's_cmp_eq_u32 {s(flag)}, 1\ns_cbranch_scc0 {far}')
        P(f'buffer_store_dwordx4 {v(d,4)}, {v(vaddr)}, {S(SRD_WS)}, {s(soff)} offen')
        P(f's_branch {j2}\n{far}:')
        publish(d, vaddr, soff)
        P(f'{j2}:')
        if mask: setexec(ALL)
    def afrag(dst, src, dpp=''):
        for w in range(4):
            if dpp: P(f'v_and_b32_dpp {v(dst+w)}, {v(src)}, {v(vM+w)} {dpp} row_mask:0xf bank_mask:0xf')
            else: P(f'v_and_b32 {v(dst+w)}, {v(src)}, {v(vM+w)}')
    def mfma(d, a, b, first=False):
        P(f'v_mfma_f32_16x16x32_bf16 {v(d,4)}, {v(a,4)}, {v(b,4)}, {"0" if first else v(d,4)}')
    vF, vHM, vPP = 244, 248, 250
    def afrag_pk(dst, src, dpp, k):
        pp = vPP + 2*(k & 1)
        if dpp: P(f'v_and_b32_dpp {v(pp)}, {v(src)}, {v(vHM)} {dpp} row_mask:0xf bank_mask:0xf')
        else: P(f'v_and_b32 {v(pp)}, {v(src)}, {v(vHM)}')
        return [f'v_pk_mul_f32 {v(dst+2*w,2)}, {v(pp,2)}, {v(vF+2*w,2)} op_sel_hi:[0,1]' for w in range(2)]
    def chain(d, n, bregs, srcs, areg):
        if cfg.pkand:
            pend = afrag_pk(areg, *srcs[0], 0)
            for x in pend: P(x)
            if n > 1: pend = afrag_pk(areg + 4, *srcs[1], 1)
            for i in range(n):
                if i + 1 < n:
                    for x in pend: P(x)
                if i + 2 < n: pend = afrag_pk(areg + 4*(i & 1) + 8*(1 - 2*0)*0 if False else areg + 4*(i & 1), *srcs[i+2], i) if False else None
                mfma(d, areg + 4*(i & 1), bregs[i], first=(i == 0))
                if i + 2 < n: pend = afrag_pk(areg + 4*(i & 1), *srcs[i+2], i)
            return
        if cfg.nodpp and srcs[0][1]:
            bc = 224
            for i in range(n): P(f'v_mov_b32_dpp {v(bc+i)}, {v(srcs[i][0])} {srcs[i][1]} row_mask:0xf bank_mask:0xf')
            srcs = [(bc+i, '') for i in range(n)]
        afrag(areg, *srcs[0])
        d2 = 32
        for i in range(n):
            if i + 1 < n: afrag(areg + 4*((i+1) & 1), *srcs[i+1])
            if cfg.acc2 and n >= 8: mfma(d2 if i & 1 else d, areg + 4*(i & 1), bregs[i], first=(i < 2))
            else: mfma(d, areg + 4*(i & 1), bregs[i], first=(i == 0))
        if cfg.acc2 and n >= 8:
            for r in range(0, 4, 2): P(f'v_pk_add_f32 {v(d+r,2)}, {v(d+r,2)}, {v(d2+r,2)}')
    def finish2(d):
        P(f'v_permlane32_swap_b32 {v(d)}, {v(d+2)}\nv_permlane32_swap_b32 {v(d+1)}, {v(d+3)}')
        P(f'v_add_f32_dpp {v(d)}, {v(d+2)}, {v(d)} row_ror:8 row_mask:0xf bank_mask:0xf')
        P(f'v_add_f32_dpp {v(d+1)}, {v(d+3)}, {v(d+1)} row_ror:8 row_mask:0xf bank_mask:0xf')
        P(f'v_mov_b32 {v(d+2)}, {s(sTAG)}')
    def finish1(d):
        P(f'v_permlane32_swap_b32 {v(d)}, {v(d+2)}\nv_permlane32_swap_b32 {v(d+1)}, {v(d+3)}')
        P(f'v_mov_b32 {v(d+2)}, {s(sTAG)}')
    def publish(d, vaddr, soff, mask=None):
        if mask: setexec(mask)
        P(f'buffer_store_dwordx4 {v(d,4)}, {v(vaddr)}, {S(SRD_WS)}, {s(soff)} offen sc1')
        if mask: setexec(ALL)
    M2SET = 0x00ff00ff00ff00ff
    def lohi(r):
        P(f'v_mov_b32 {v(r+2)}, {v(r)}\nv_mov_b32 {v(r+3)}, {v(r+1)}')
        for e in range(2): P(f'v_mov_b32_dpp {v(r+2+e)}, {v(r+e)} row_shl:4 row_mask:0xf bank_mask:0x5')
        for e in range(2): P(f'v_mov_b32_dpp {v(r+e)}, {v(r+e)} row_shr:4 row_mask:0xf bank_mask:0xa')
    def lohi_srcs(r):
        out = []
        for i in range(16):
            u = i >> 1; a = u & 3
            out.append((r + (2 if u >= 4 else 0) + (i & 1), f'quad_perm:[{a},{a},{a},{a}]'))
        return out
    def lds_wait(name, vaddr, n, dst, chk, sleep=0):
        top = lab(name)
        op = {1: 'ds_read_b32', 2: 'ds_read_b64', 4: 'ds_read_b128'}[n]
        P(f's_mov_b32 {s(sSPIN)}, 0')
        P(f'{top}:')
        P(f'{op} {v(dst,n)}, {v(vaddr)}')
        P(f's_add_u32 {s(sSPIN)}, {s(sSPIN)}, 1\ns_cmp_gt_u32 {s(sSPIN)}, {cfg.spin*8}\ns_cbranch_scc1 L_END')
        P('s_waitcnt lgkmcnt(0)')
        if len(chk) == 2:
            P(f'v_and_b32 {v(vT)}, {v(chk[0])}, {v(chk[1])}\nv_cmp_eq_u32 vcc, 0, {v(vT)}')
        else: P(f'v_cmp_eq_u32 vcc, 0, {v(chk[0])}')
        if sleep:
            done = lab(name + 'd')
            P(f's_cbranch_vccz {done}\ns_sleep {sleep}\ns_branch {top}\n{done}:')
        else: P(f's_cbranch_vccnz {top}')
    def hint_wait(name, soff):
        top = lab(name)
        P(f's_add_u32 {s(sMASK)}, {s(sWSP)}, {s(soff)}\ns_addc_u32 {s(sMASK+1)}, {s(sWSP+1)}, 0\ns_mov_b32 {s(sSPIN)}, 0')
        P(f'{top}:')
        P(f's_load_dwordx8 {s(sG,8)}, {s(sMASK,2)}, 0 glc')
        P(f's_add_u32 {s(sSPIN)}, {s(sSPIN)}, 1\ns_cmp_gt_u32 {s(sSPIN)}, {cfg.spin}\ns_cbranch_scc1 L_END')
        P('s_waitcnt lgkmcnt(0)')
        P(f's_xor_b32 {s(sG)}, {s(sG)}, {s(sTAG)}')
        for k in range(1, 8): P(f's_xor_b32 {s(sG+k)}, {s(sG+k)}, {s(sTAG)}\ns_or_b32 {s(sG)}, {s(sG)}, {s(sG+k)}')
        done = lab(name + 'd')
        P(f's_cbranch_scc0 {done}')
        if cfg.hsleep: P(f's_sleep {cfg.hsleep}')
        P(f's_branch {top}\n{done}:')
    def wave_reduce(op, regs):
        for mod in ('quad_perm:[1,0,3,2] row_mask:0xf', 'quad_perm:[2,3,0,1] row_mask:0xf', 'row_ror:4 row_mask:0xf', 'row_ror:8 row_mask:0xf',
                    'row_bcast:15 row_mask:0xa', 'row_bcast:31 row_mask:0xc'):
            for r in regs: P(f'{op}_dpp {v(r)}, {v(r)}, {v(r)} {mod} bank_mask:0xf')
    def unpack(lo, hi, src):
        if lo == src: P(f'v_and_b32 {v(hi)}, 0xffff0000, {v(src)}\nv_lshlrev_b32 {v(lo)}, 16, {v(src)}')
        else: P(f'v_lshlrev_b32 {v(lo)}, 16, {v(src)}\nv_and_b32 {v(hi)}, 0xffff0000, {v(src)}')
    def silu_multi(rs, ts):
        for r, t in zip(rs, ts): P(f'v_mul_f32 {v(t)}, {NLOG2E}, {v(r)}')
        for r, t in zip(rs, ts): P(f'v_exp_f32 {v(t)}, {v(t)}')
        for r, t in zip(rs, ts): P(f'v_add_f32 {v(t)}, 1.0, {v(t)}')
        for r, t in zip(rs, ts): P(f'v_rcp_f32 {v(t)}, {v(t)}')
        for r, t in zip(rs, ts): P(f'v_mul_f32 {v(r)}, {v(r)}, {v(t)}')
    def rnd(r): P(f'v_cvt_pk_bf16_f32 {v(r)}, {v(r)}, {v(r)}\nv_and_b32 {v(r)}, 0xffff0000, {v(r)}')

    vMA, vMB, vMC, vPUB = 16, 17, 18, 19
    vMT, vD0, vAA, vS4 = 64, 36, 52, 40
    def modtile_issue(sRB, sCOL):
        srd(SRD_A, pC, 1024); srd(SRD_B, pWM, 512*6144)
        P(f's_lshl_b32 {s(sO1)}, {s(sRB)}, 8')
        P(f'buffer_load_dword {v(vMC)}, {v(vMA)}, {S(SRD_A)}, {s(sO1)} offen')
        P(f's_mul_i32 {s(sO1)}, {s(sRB)}, {128*6144}\ns_add_u32 {s(sO1)}, {s(sO1)}, {s(sCOL)}')
        for i in range(16):
            P(f'buffer_load_dwordx4 {v(vMT+4*i,4)}, {v(vMB)}, {S(SRD_B)}, {s(sO1)} offen {cfg.wpol}')
            if i < 15: P(f's_add_u32 {s(sO1)}, {s(sO1)}, 6144')
    def modtile_compute(nafter, soff):
        P(f's_waitcnt vmcnt({16+nafter})')
        unpack(vS4, vS4+1, vMC)
        silu_multi([vS4, vS4+1], [vS4+2, vS4+3])
        for e in range(2): P(f'v_cvt_pk_bf16_f32 {v(vS4+e)}, {v(vS4+e)}, {v(vS4+e)}')
        lohi(vS4)
        P(f's_waitcnt vmcnt({nafter})')
        chain(vD0, 16, [vMT+4*i for i in range(16)], lohi_srcs(vS4), vAA)
        finish2(vD0)
        publish(vD0, vPUB, soff, M2SET)

    P(f's_cmp_ge_u32 {s(sB)}, 256\ns_cbranch_scc1 L_END')
    if cfg.diag:
        for i in range(9): P(f's_mov_b32 {s(sDIAG+2*i)}, 0')
    stamp('start')
    P(f's_load_dwordx4 {s(sKP,4)}, s[0:1], 8')
    P(f's_load_dwordx16 {s(pWQ,16)}, s[0:1], 24')
    P(f's_load_dwordx2 {s(sWSP,2)}, s[0:1], 104')
    P(f's_load_dwordx2 {s(pX,2)}, s[0:1], 0')
    P(f's_load_dwordx2 {s(pOUT,2)}, s[0:1], 88')
    P(f'v_lshrrev_b32 {v(vT)}, 6, v0\nv_and_b32 {v(vL)}, 63, v0')
    P(f'v_readfirstlane_b32 {s(sW)}, {v(vT)}')
    P(f'v_lshlrev_b32 {v(vT)}, 2, {v(vL)}\nv_add_u32 {v(vT)}, {hex(L_FLAG)}, {v(vT)}\nv_mov_b32 {v(vT+1)}, 0')
    P(f'ds_write_b32 {v(vT)}, {v(vT+1)}')
    P(f's_and_b32 {s(sH)}, {s(sB)}, 31\ns_lshr_b32 {s(sJ)}, {s(sB)}, 5\ns_and_b32 {s(sX)}, {s(sB)}, 7\ns_lshr_b32 {s(sKK)}, {s(sB)}, 3')
    vKA, vVA = 8, 12
    P(f'v_lshrrev_b32 {v(vT)}, 4, {v(vL)}\nv_and_b32 {v(vT+1)}, 15, {v(vL)}')
    P(f'v_lshlrev_b32 {v(vVA)}, 10, {v(vT)}\nv_lshl_add_u32 {v(vVA)}, {v(vT+1)}, 4, {v(vVA)}')
    if cfg.ksplit:
        P(f'v_lshlrev_b32 {v(vT+2)}, 2, {v(vT)}\nv_xor_b32 {v(vT+1)}, {v(vT+1)}, {v(vT+2)}\nv_lshlrev_b32 {v(vT+1)}, 4, {v(vT+1)}\nv_lshl_add_u32 {v(vKA)}, {v(vT)}, 10, {v(vT+1)}')
        for i in range(1, 4): P(f'v_xor_b32 {v(vKA+i)}, {16*i}, {v(vKA)}')
    else:
        P(f'v_xor_b32 {v(vT+1)}, {v(vT+1)}, {v(vT)}\nv_lshlrev_b32 {v(vT+1)}, 4, {v(vT+1)}\nv_lshl_add_u32 {v(vKA)}, {v(vT)}, 8, {v(vT+1)}')
        for i in range(1, 4): P(f'v_xor_b32 {v(vKA+i)}, {64*i}, {v(vKA)}')
    P(f's_lshl_b32 {s(sO0)}, {s(sH)}, 20\ns_lshl_b32 {s(sO3)}, {s(sJ)}, 2\ns_add_u32 {s(sO3)}, {s(sO3)}, {s(sW)}\ns_lshl_b32 {s(sO3)}, {s(sO3)}, 12')
    P(f'v_lshlrev_b32 {v(vMA)}, 2, {v(vL)}\nv_lshrrev_b32 {v(vT)}, 3, {v(vL)}\nv_mul_u32_u24 {v(vMB)}, {16*6144}, {v(vT)}\nv_and_b32 {v(vT+1)}, 7, {v(vL)}\nv_lshl_add_u32 {v(vMB)}, {v(vT+1)}, 4, {v(vMB)}')
    P(f'v_lshrrev_b32 {v(vT)}, 4, {v(vL)}\nv_lshlrev_b32 {v(vT)}, 7, {v(vT)}\nv_lshl_add_u32 {v(vPUB)}, {v(vT+1)}, 4, {v(vT)}')
    vXF, vXS, vL16, vWA, vXA = 28, 32, 60, 62, 33
    P(f'v_lshlrev_b32 {v(vL16)}, 4, {v(vL)}')
    P(f'v_bfe_u32 {v(vT)}, {v(vL)}, 4, 1\nv_lshrrev_b32 {v(vT+2)}, 5, {v(vL)}\nv_lshl_add_u32 {v(vT)}, {v(vT)}, 1, {v(vT+2)}')
    P(f'v_lshl_add_u32 {v(vXA)}, {v(vT+1)}, 2, {v(vT)}\nv_lshlrev_b32 {v(vXA)}, 2, {v(vXA)}\nv_lshlrev_b32 {v(vWA)}, 14, {v(vT)}')
    P(f'v_and_b32 {v(vT+1)}, 15, {v(vL)}\nv_lshl_add_u32 {v(vWA)}, {v(vT+1)}, 4, {v(vWA)}')
    if cfg.tearly:
        P(f's_sub_u32 {s(sT2)}, {s(sKK)}, 16\ns_lshl_b32 {s(sT2)}, {s(sT2)}, 2\ns_add_u32 {s(sT2)}, {s(sT2)}, {s(sX)}\ns_lshr_b32 {s(sT1B)}, {s(sT2)}, 3\ns_and_b32 {s(sT2)}, {s(sT2)}, 7')
        P(f's_cmp_lt_u32 {s(sX)}, 4\ns_cselect_b32 {s(sT2)}, {s(sT2)}, 99\ns_cmp_ge_u32 {s(sKK)}, 16\ns_cselect_b32 {s(sT2)}, {s(sT2)}, 99')
    else:
        P(f's_sub_u32 {s(sT2)}, {s(sKK)}, 16\ns_mov_b32 {s(sT1B)}, {s(sX)}')
    P(f's_and_b32 {s(sT0)}, {s(sT2)}, 1\ns_lshl_b32 {s(sT0)}, {s(sT0)}, 10\ns_lshl_b32 {s(sT1)}, {s(sT1B)}, 7\ns_add_u32 {s(sT1)}, {s(sT1)}, {s(sT0)}\ns_lshr_b32 {s(sT0)}, {s(sT2)}, 1\ns_lshl_b32 {s(sO2)}, {s(sJ)}, 7')
    P('s_waitcnt lgkmcnt(0)')
    P(f's_cmp_eq_u32 {s(sW)}, 4\ns_cbranch_scc0 L_B0')
    if cfg.b0late: P('s_setprio 3')
    P(f's_cmp_lt_u32 {s(sT2)}, 8\ns_cbranch_scc0 L_XLD')
    modtile_issue(sT0, sT1)
    P('L_XLD:')
    srd(SRD_C, pX, 1024)
    P(f'buffer_load_dwordx4 {v(vXF,4)}, {v(vL16)}, {S(SRD_C)}, 0 offen')
    P(f'buffer_load_dword {v(vXS)}, {v(vXA)}, {S(SRD_C)}, {s(sO2)} offen')
    vWQ = 128
    def wq_issue():
        srd(SRD_C, pWQ, 4 << 20)
        P(f's_lshl_b32 {s(sO2)}, {s(sJ)}, 19\ns_lshl_b32 {s(sT0)}, {s(sH)}, 8\ns_add_u32 {s(sO2)}, {s(sO2)}, {s(sT0)}')
        for i in range(16):
            P(f'buffer_load_dwordx4 {v(vWQ+4*i,4)}, {v(vWA)}, {S(SRD_C)}, {s(sO2)} offen {cfg.wpol}')
            if i < 15: P(f's_add_u32 {s(sO2)}, {s(sO2)}, {8192 if (i & 1) == 0 else 8192*7}')
    if cfg.wq0: wq_issue()
    P('L_B0:')
    if not cfg.b0late: P('s_barrier')
    P(f's_cmp_ge_u32 {s(sW)}, 4\ns_cbranch_scc1 L_CW')

    srd(SRD_K, sKP, 32 << 20)
    sTL, sRS, sTL0 = sG, sG+1, sG+2
    P(f's_mul_i32 {s(sTL0)}, {s(sH)}, {cfg.th}\ns_and_b32 {s(sTL0)}, {s(sTL0)}, 7\ns_lshl_b32 {s(sTL0)}, {s(sTL0)}, 17')
    def firsttile():
        P(f's_mov_b32 {s(sTL)}, {s(sTL0)}\ns_mov_b32 {s(sRS)}, {s(sO3)}\ns_add_u32 {s(sO1)}, {s(sO0)}, {s(sTL)}\ns_add_u32 {s(sO1)}, {s(sO1)}, {s(sRS)}')
    def nexttile():
        P(f's_add_u32 {s(sTL)}, {s(sTL)}, 0x20000\ns_and_b32 {s(sTL)}, {s(sTL)}, 0xe0000\ns_add_u32 {s(sRS)}, {s(sRS)}, {cfg.rot << 12}\ns_and_b32 {s(sRS)}, {s(sRS)}, 0x1f000\ns_add_u32 {s(sO1)}, {s(sO0)}, {s(sTL)}\ns_add_u32 {s(sO1)}, {s(sO1)}, {s(sRS)}')
    firsttile()
    P(f's_lshl_b32 {s(sT0)}, {s(sW)}, 15\ns_mov_b32 m0, {s(sT0)}\ns_mov_b32 {s(sT1)}, 0')
    stamp('L_k0')
    vV = 128
    def stream(ds, sfx):
        DK = ds[0]
        def DV(idx): return ds[0] if idx < ds[1] else ds[2]
        P(f'L_KLOOP{sfx}:')
        for i in range(4):
            if cfg.ksplit and i: P(f's_add_u32 m0, {s(sT0)}, {768*i}')
            P(f's_waitcnt vmcnt({DK-1})')
            P(f'buffer_load_dwordx4 {v(vKA+i)}, {S(SRD_K)}, {s(sO1)} offen offset:{(256 if cfg.ksplit else 1024)*i} {cfg.kpol} lds')
        if cfg.b0late: P(f's_cmp_eq_u32 {s(sT1)}, 0\ns_cbranch_scc0 L_KL2{sfx}\ns_barrier\nL_KL2{sfx}:')
        nexttile()
        P(f's_add_u32 {s(sT0)}, {s(sT0)}, 4096\ns_mov_b32 m0, {s(sT0)}\ns_add_u32 {s(sT1)}, {s(sT1)}, 1\ns_cmp_lt_u32 {s(sT1)}, 8\ns_cbranch_scc1 L_KLOOP{sfx}')
        stamp('L_kissued')
        srd(SRD_V, sVP, 32 << 20)
        firsttile()
        P(f's_lshl_b32 {s(sT0)}, {s(sW)}, 3\ns_add_u32 {s(sT0)}, {s(sT0)}, {hex(L_FLAG)}\nv_mov_b32 {v(vT)}, {s(sT0)}\nv_mov_b32 {v(vT+1)}, 1')
        for idx in range(32):
            t, i = idx >> 2, idx & 3
            P(f's_waitcnt vmcnt({DV(idx)-1})')
            if idx == DK - 1:
                P(f'ds_write_b32 {v(vT)}, {v(vT+1)}')
                stamp('L_klanded')
            P(f'buffer_load_dwordx4 {v(vV+4*idx,4)}, {v(vVA)}, {S(SRD_V)}, {s(sO1)} offen offset:{256*i} {cfg.vpol}')
            if i == 3 and t < 7: nexttile()
    if cfg.dvar:
        P(f's_getreg_b32 {s(sT2)}, hwreg(HW_REG_XCC_ID, 0, 3)')
        P(f's_bitcmp1_b32 {s(sT2)}, 2\ns_cbranch_scc1 L_STH')
        P(f's_bitcmp1_b32 {s(sT2)}, 0\ns_cbranch_scc1 L_ST1')
        stream(cfg.dvar[0], 'a'); P('s_branch L_STD\nL_ST1:')
        stream(cfg.dvar[1], 'b'); P('s_branch L_STD\nL_STH:')
        P(f's_bitcmp1_b32 {s(sT2)}, 0\ns_cbranch_scc1 L_ST3')
        stream(cfg.dvar[2], 'c'); P('s_branch L_STD\nL_ST3:')
        stream(cfg.dvar[3], 'd')
        P('L_STD:')
    elif cfg.dodd:
        P(f's_getreg_b32 {s(sT2)}, hwreg(HW_REG_XCC_ID, 0, 1)\ns_cmp_eq_u32 {s(sT2)}, 1\ns_cbranch_scc1 L_STO')
        stream(cfg.dsched, 'a'); P('s_branch L_STD\nL_STO:')
        stream(cfg.dodd, 'b')
        P('L_STD:')
    else: stream(cfg.dsched, '')
    stamp('L_vissued')
    def masks(pk=False):
        P(f'v_and_b32 {v(vT)}, 1, {v(vL)}\nv_lshlrev_b32 {v(vT)}, 4, {v(vT)}\nv_mov_b32 {v(vT+1)}, 0xffff\nv_lshlrev_b32 {v(vT+1)}, {v(vT)}, {v(vT+1)}')
        P(f'v_bfe_u32 {v(vT)}, {v(vL)}, 1, 2')
        for w in range(4):
            P(f'v_cmp_eq_u32 vcc, {w}, {v(vT)}\nv_cndmask_b32 {v(vM+w)}, 0, {v(vT+1)}, vcc')
            if pk and cfg.pkand: P(f'v_cndmask_b32 {v(vF+w)}, 0, 1.0, vcc')
        if pk and cfg.pkand: P(f'v_mov_b32 {v(vHM)}, {v(vT+1)}')
    def common_setup():
        P(f's_load_dword {s(sTAG)}, {s(sWSP,2)}, 0')
        srd(SRD_WS, sWSP, WS_BYTES)
        masks(True)
    masks()
    vPA, vOA, vP, vA, vD = 13, 14, 16, 48, 56
    P(f'v_lshrrev_b32 {v(vT)}, 4, {v(vL)}\nv_lshlrev_b32 {v(vT)}, 4, {v(vT)}\ns_lshl_b32 {s(sT0)}, {s(sW)}, 9\ns_add_u32 {s(sT0)}, {s(sT0)}, {hex(L_P)}\nv_add_u32 {v(vPA)}, {s(sT0)}, {v(vT)}')
    P(f's_add_u32 {s(sT0)}, {s(sT0)}, {hex(L_OP - L_P)}\nv_lshlrev_b32 {v(vT)}, 3, {v(vL)}\nv_add_u32 {v(vOA)}, {s(sT0)}, {v(vT)}')
    P('s_waitcnt lgkmcnt(0)')
    P('s_barrier')
    stamp('L_b1')
    for t in range(8): P(f'ds_read_b128 {v(vP+4*t,4)}, {v(vPA)} offset:{64*t}')
    P('s_waitcnt lgkmcnt(7)')
    afrag(vA, vP)
    for idx in range(32):
        if idx + 1 < 32:
            if (idx + 1) % 4 == 0: P(f's_waitcnt lgkmcnt({7 - (idx+1)//4})')
            afrag(vA + 4*((idx+1) & 1), vP + idx + 1)
        P(f's_waitcnt vmcnt({31-idx})')
        mfma(vD, vA + 4*(idx & 1), vV + 4*idx, first=(idx == 0))
    stamp('L_pv')
    P(f'v_permlane32_swap_b32 {v(vD)}, {v(vD+2)}\nv_permlane32_swap_b32 {v(vD+1)}, {v(vD+3)}')
    P(f'ds_write_b64 {v(vOA)}, {v(vD,2)}')
    P('s_waitcnt lgkmcnt(0)')
    P('s_barrier')
    P('s_endpgm' if not cfg.diag else 's_branch L_END')

    P('L_CW:')
    if cfg.gprobe and cfg.gprobe[0] in 'MR':
        P(f's_waitcnt lgkmcnt(0)\ns_mov_b32 s96, {s(sWSP)}\ns_mov_b32 s97, {s(sWSP+1)}\ns_mov_b32 s98, {hex(WS_BYTES)}\ns_mov_b32 s99, 0x20000')
        P(f's_lshl_b32 s100, {s(sB)}, 2\ns_and_b32 s101, {s(sW)}, 3\ns_add_u32 s100, s100, s101\ns_lshl_b32 s100, s100, 3\ns_add_u32 s100, s100, {hex(DIAG)}')
        P(f's_mov_b64 exec, 1\nv_mov_b32 v254, {s(sDIAG)}\nv_mov_b32 v255, {s(sDIAG)}\nv_mov_b32 v253, 0\nbuffer_store_dwordx2 v[254:255], v253, s[96:99], s100 offen sc1\ns_mov_b64 exec, -1\ns_waitcnt vmcnt(0)')
    if cfg.b0late: P('s_barrier')
    if cfg.prio: P(f's_setprio {cfg.prio}')
    P(f's_cmp_eq_u32 {s(sW)}, 4\ns_cbranch_scc0 L_C123')
    vGA = 192
    common_setup()
    P('s_waitcnt lgkmcnt(0)')
    P(f's_add_u32 {s(sTAG)}, {s(sTAG)}, 1')
    if cfg.local:
        P(f's_getreg_b32 {s(sLOC)}, hwreg(HW_REG_XCC_ID, 0, 3)\ns_lshl_b32 {s(sT0)}, {s(sTAG)}, 3\ns_or_b32 {s(sLOC)}, {s(sLOC)}, {s(sT0)}')
        P(f's_lshl_b32 {s(sO3)}, {s(sH)}, 7\ns_add_u32 {s(sO3)}, {s(sO3)}, {hex(X0)}\ns_lshl_b32 {s(sT0)}, {s(sJ)}, 2\ns_add_u32 {s(sT0)}, {s(sT0)}, {s(sO3)}\nv_mov_b32 {v(vT)}, {s(sT0)}\nv_mov_b32 {v(vT+1)}, {s(sLOC)}')
        P(f's_lshl_b32 {s(sR)}, {s(sX)}, 3\ns_lshr_b32 {s(sT0)}, {s(sKK)}, 2\ns_add_u32 {s(sR)}, {s(sR)}, {s(sT0)}\ns_lshl_b32 {s(sR)}, {s(sR)}, 7\ns_add_u32 {s(sR)}, {s(sR)}, {hex(X0B)}')
        P(f's_and_b32 {s(sT0)}, {s(sKK)}, 3\ns_lshl_b32 {s(sT0)}, {s(sT0)}, 2\ns_add_u32 {s(sT0)}, {s(sT0)}, {s(sR)}\nv_writelane_b32 {v(vT)}, {s(sT0)}, 1')
        P(f's_lshl_b32 {s(sT0)}, {s(sX)}, 7\ns_lshl_b32 {s(sO2)}, {s(sKK)}, 2\ns_add_u32 {s(sT0)}, {s(sT0)}, {s(sO2)}\ns_add_u32 {s(sT0)}, {s(sT0)}, {hex(X0C)}\nv_writelane_b32 {v(vT)}, {s(sT0)}, 2')
        setexec(7)
        P(f'buffer_store_dword {v(vT+1)}, {v(vT)}, {S(SRD_WS)}, 0 offen sc1')
        setexec(ALL)
    P(f's_cmp_lt_u32 {s(sT2)}, 8\ns_cbranch_scc0 L_NOT1')
    P(f's_lshl_b32 {s(sO2)}, {s(sT1B)}, 3\ns_add_u32 {s(sO2)}, {s(sO2)}, {s(sT2)}\ns_lshl_b32 {s(sO2)}, {s(sO2)}, 9\ns_add_u32 {s(sO2)}, {s(sO2)}, {hex(X1)}')
    modtile_compute((18 if cfg.wq0 else 2) + cfg.local, sO2)
    if cfg.hint:
        P(f's_lshl_b32 {s(sO2)}, {s(sT1B)}, 9\ns_lshl_b32 {s(sT0)}, {s(sT2)}, 2\ns_add_u32 {s(sO2)}, {s(sO2)}, {s(sT0)}\ns_add_u32 {s(sO2)}, {s(sO2)}, {hex(X1F)}\nv_lshlrev_b32 {v(vT)}, 7, {v(vL)}')
        setexec(0xf)
        P(f'buffer_store_dword {v(vD0+2)}, {v(vT)}, {S(SRD_WS)}, {s(sO2)} offen sc1')
        setexec(ALL)
    stamp('C0_x1pub')
    if not cfg.wq0: wq_issue()
    P('s_branch L_T1D')
    P('L_NOT1:')
    if not cfg.wq0: wq_issue()
    P('L_T1D:')
    vx = 64
    P(f's_waitcnt vmcnt({16 + (cfg.local if cfg.wq0 else 0)})')
    for k in range(4): unpack(vx+2*k, vx+2*k+1, vXF+k)
    P(f'v_add_f32 {v(20)}, {v(vx)}, {v(vx+1)}\nv_add_f32 {v(21)}, {v(vx+2)}, {v(vx+3)}\nv_add_f32 {v(22)}, {v(vx+4)}, {v(vx+5)}\nv_add_f32 {v(23)}, {v(vx+6)}, {v(vx+7)}')
    P(f'v_add_f32 {v(20)}, {v(20)}, {v(21)}\nv_add_f32 {v(22)}, {v(22)}, {v(23)}\nv_add_f32 {v(20)}, {v(20)}, {v(22)}')
    wave_reduce('v_add_f32', [20])
    P(f'v_mul_f32 {v(20)}, {R512}, {v(20)}\nv_readlane_b32 {s(sT0)}, {v(20)}, 63')
    for k in range(8): P(f'v_subrev_f32 {v(vx+k)}, {s(sT0)}, {v(vx+k)}')
    P(f'v_mul_f32 {v(21)}, {v(vx)}, {v(vx)}')
    for k in range(1, 8): P(f'v_fmac_f32 {v(21)}, {v(vx+k)}, {v(vx+k)}')
    wave_reduce('v_add_f32', [21])
    P(f'v_mul_f32 {v(21)}, {R512}, {v(21)}')
    P(f'v_cvt_pk_bf16_f32 {v(22)}, {v(20)}, {v(21)}')
    P(f'v_and_b32 {v(21)}, 0xffff0000, {v(22)}\nv_lshlrev_b32 {v(20)}, 16, {v(22)}\nv_add_f32 {v(21)}, {EPS}, {v(21)}')
    rnd(21); P(f'v_sqrt_f32 {v(21)}, {v(21)}'); rnd(21); P(f'v_rcp_f32 {v(22)}, {v(21)}')
    P(f'v_readlane_b32 {s(sT0)}, {v(20)}, 63\nv_readlane_b32 {s(sT1)}, {v(21)}, 63\nv_readlane_b32 {s(sT2)}, {v(22)}, 63')
    vLN = 24
    unpack(vLN, vLN+1, vXS)
    for e in range(2): P(f'v_subrev_f32 {v(vLN+e)}, {s(sT0)}, {v(vLN+e)}')
    P(f'v_cvt_pk_bf16_f32 {v(20)}, {v(vLN)}, {v(vLN+1)}'); unpack(vLN, vLN+1, 20)
    for e in range(2): P(f'v_mul_f32 {v(20+e)}, {s(sT2)}, {v(vLN+e)}')
    for e in range(2): P(f'v_fma_f32 {v(vLN+e)}, -{v(20+e)}, {s(sT1)}, {v(vLN+e)}')
    for e in range(2): P(f'v_fma_f32 {v(vLN+e)}, {v(vLN+e)}, {s(sT2)}, {v(20+e)}')
    P(f'v_cvt_pk_bf16_f32 {v(20)}, {v(vLN)}, {v(vLN+1)}'); unpack(vLN, vLN+1, 20)
    P(f'v_bfe_u32 {v(vT)}, {v(vL)}, 3, 1\nv_lshlrev_b32 {v(vT)}, 9, {v(vT)}\nv_add_u32 {v(26)}, {v(vPUB)}, {v(vT)}')
    P(f's_lshl_b32 {s(sO0)}, {s(sJ)}, 12\ns_add_u32 {s(sO0)}, {s(sO0)}, {hex(X1)}')
    if cfg.hint:
        P(f's_lshl_b32 {s(sT0)}, {s(sJ)}, 2\ns_and_b32 {s(sT1)}, {s(sH)}, 3\ns_add_u32 {s(sT0)}, {s(sT0)}, {s(sT1)}\ns_lshl_b32 {s(sT0)}, {s(sT0)}, 7\ns_add_u32 {s(sT0)}, {s(sT0)}, {hex(X1F)}')
        hint_wait('h1h', sT0)
    else: P('s_waitcnt vmcnt(0)')
    if cfg.local:
        P(f's_add_u32 {s(sMASK)}, {s(sWSP)}, {s(sO3)}\ns_addc_u32 {s(sMASK+1)}, {s(sWSP+1)}, 0')
        P(f's_load_dwordx8 {s(sG,8)}, {s(sMASK,2)}, 0 glc')
        P(f's_load_dwordx4 s[8:11], {s(sWSP,2)}, {s(sR)} glc')
    stamp('C0_wq')
    if cfg.sleep1: P(f's_sleep {cfg.sleep1}')
    def issue():
        for k in range(4): P(f'buffer_load_dwordx4 {v(vGA+4*k,4)}, {v(26)}, {S(SRD_WS)}, {s(sO0)} offen offset:{1024*k} sc1')
    tagcheck_loop(issue, [vGA+4*k+2 for k in range(4)], 'h1')
    stamp('C0_h1')
    if cfg.local:
        P('s_waitcnt lgkmcnt(0)')
        P(f's_xor_b32 {s(sG)}, {s(sG)}, {s(sLOC)}')
        for k in range(1, 8): P(f's_xor_b32 {s(sG+k)}, {s(sG+k)}, {s(sLOC)}\ns_or_b32 {s(sG)}, {s(sG)}, {s(sG+k)}')
        P(f's_cselect_b32 {s(sT0)}, 0, 1')
        P(f's_xor_b32 s8, s8, {s(sLOC)}')
        for k in range(1, 4): P(f's_xor_b32 {s(8+k)}, {s(8+k)}, {s(sLOC)}\ns_or_b32 s8, s8, {s(8+k)}')
        P(f's_cselect_b32 {s(sR)}, 0, 1\ns_mov_b32 {s(sLOC)}, {s(sT0)}')
    b = vGA
    for e in range(2): P(f'v_add_f32 {v(b+e)}, {v(b+e)}, {v(b+4+e)}\nv_add_f32 {v(b+8+e)}, {v(b+8+e)}, {v(b+12+e)}')
    for e in range(2): P(f'v_add_f32 {v(b+e)}, {v(b+e)}, {v(b+8+e)}')
    P(f'v_cvt_pk_bf16_f32 {v(b+4)}, {v(b)}, {v(b+1)}\nv_mov_b32 {v(b+5)}, {v(b+4)}')
    P(f'v_mov_b32_dpp {v(b+4)}, {v(b+5)} row_ror:8 row_mask:0xf bank_mask:0xc')
    P(f'v_mov_b32_dpp {v(b+5)}, {v(b+5)} row_ror:8 row_mask:0xf bank_mask:0x3')
    unpack(b+8, b+9, b+4); unpack(b+6, b+7, b+5)
    P(f'v_add_f32 {v(b+6)}, 1.0, {v(b+6)}\nv_add_f32 {v(b+7)}, 1.0, {v(b+7)}\nv_cvt_pk_bf16_f32 {v(b+5)}, {v(b+6)}, {v(b+7)}')
    unpack(b+6, b+7, b+5)
    P(f'v_mul_f32 {v(b+6)}, {v(b+6)}, {v(vLN)}\nv_mul_f32 {v(b+7)}, {v(b+7)}, {v(vLN+1)}\nv_cvt_pk_bf16_f32 {v(b+5)}, {v(b+6)}, {v(b+7)}')
    unpack(b+6, b+7, b+5)
    P(f'v_add_f32 {v(b+6)}, {v(b+6)}, {v(b+8)}\nv_add_f32 {v(b+7)}, {v(b+7)}, {v(b+9)}')
    vH = 20
    P(f'v_cvt_pk_bf16_f32 {v(vH)}, {v(b+6)}, {v(b+6)}\nv_cvt_pk_bf16_f32 {v(vH+1)}, {v(b+7)}, {v(b+7)}')
    P(f's_lshl_b32 {s(sO1)}, {s(sH)}, 13\ns_add_u32 {s(sO1)}, {s(sO1)}, {hex(X2)}\ns_lshl_b32 {s(sO0)}, {s(sJ)}, 10\ns_add_u32 {s(sO0)}, {s(sO0)}, {s(sO1)}\ns_add_u32 {s(sO2)}, {s(sO1)}, 4096')
    chain(vD0, 16, [vWQ+4*i for i in range(16)], [(vH + (i & 1), f'row_newbcast:{i >> 1}') for i in range(16)], vAA)
    finish1(vD0)
    publish_loc(vD0, vL16, sO0)
    if cfg.hint:
        P(f's_lshl_b32 {s(sO3)}, {s(sH)}, 7\ns_add_u32 {s(sO3)}, {s(sO3)}, {hex(X2F)}\nv_mov_b32 {v(vT)}, 0\ns_lshl_b32 {s(sT0)}, {s(sJ)}, 2\ns_add_u32 {s(sT0)}, {s(sT0)}, {s(sO3)}')
        setexec(1)
        P(f'buffer_store_dword {v(vD0+2)}, {v(vT)}, {S(SRD_WS)}, {s(sT0)} offen sc1')
        setexec(ALL)
    stamp('C0_x2pub')
    P(f'v_bfe_u32 {v(vT)}, {v(vL)}, 4, 1\nv_lshrrev_b32 {v(vT+1)}, 5, {v(vL)}\nv_lshl_add_u32 {v(vT)}, {v(vT)}, 1, {v(vT+1)}\nv_and_b32 {v(vT+1)}, 15, {v(vL)}\nv_lshl_add_u32 {v(vT)}, {v(vT+1)}, 2, {v(vT)}')
    P(f'v_lshlrev_b32 {v(vT)}, 2, {v(vT)}\nv_add_u32 {v(26)}, {hex(L_Q)}, {v(vT)}')
    P(f'v_and_b32 {v(27)}, 3, {v(vL)}\nv_lshlrev_b32 {v(27)}, 3, {v(27)}\nv_add_u32 {v(27)}, {hex(L_FLAG + 4)}, {v(27)}\nv_mov_b32 {v(25)}, 1')
    if cfg.hint: hint_wait('qh', sO3)
    stamp('C0_qh')
    if cfg.sleep2: P(f's_sleep {cfg.sleep2}')
    def gather8(base_lo, base_hi):
        def issue():
            for k in range(8):
                P(f'buffer_load_dwordx4 {v(vGA+4*k,4)}, {v(vL16)}, {S(SRD_WS)}, {s(base_lo if k < 4 else base_hi)} offen offset:{1024*(k & 3)} sc1')
        return issue
    def sum8():
        for a, b2 in ((0, 1), (2, 3), (4, 5), (6, 7), (0, 2), (4, 6), (0, 4)):
            for e in (0, 1): P(f'v_add_f32 {v(vGA+4*a+e)}, {v(vGA+4*a+e)}, {v(vGA+4*b2+e)}')
    tagcheck_loop(gather8(sO1, sO2), [vGA+4*k+2 for k in range(8)], 'q')
    stamp('C0_q')
    sum8()
    P(f'v_cvt_pk_bf16_f32 {v(vT)}, {v(vGA)}, {v(vGA+1)}')
    P(f'ds_write_b32 {v(26)}, {v(vT)}')
    P(f'ds_write_b32 {v(27)}, {v(25)}')
    vg, vXv, vGAv, vGBv, vU16, vDA, vXC, vL16r, vBP, sJJ, sP, sB4, sD = 64, 12, 13, 14, 15, 17, 20, 16, 18, sG, 4, 12, 8
    def red_setup():
        P(f's_sub_u32 {s(sT0)}, {s(sKK)}, 8')
        P(f's_mov_b32 {s(sJJ)}, {s(sT0)}\ns_lshl_b32 {s(sR)}, {s(sX)}, 3\ns_add_u32 {s(sR)}, {s(sR)}, {s(sT0)}')
        if cfg.local:
            P(f's_lshl_b32 {s(sT1)}, {s(sX)}, 7\ns_add_u32 {s(sT1)}, {s(sT1)}, {hex(X0C)}\ns_add_u32 {s(sMASK)}, {s(sWSP)}, {s(sT1)}\ns_addc_u32 {s(sMASK+1)}, {s(sWSP+1)}, 0')
            P(f's_load_dwordx16 s[4:19], {s(sMASK,2)}, 0 glc\ns_load_dwordx16 s[20:35], {s(sMASK,2)}, 64 glc')
            P(f's_getreg_b32 {s(sLOC)}, hwreg(HW_REG_XCC_ID, 0, 3)\ns_lshl_b32 {s(sT1)}, {s(sTAG)}, 3\ns_or_b32 {s(sLOC)}, {s(sLOC)}, {s(sT1)}')
        P(f'v_lshlrev_b32 {v(vL16r)}, 4, {v(vL)}\nv_and_b32 {v(vU16)}, 3, {v(vL)}\nv_lshlrev_b32 {v(vU16)}, 4, {v(vU16)}')
        P(f'v_and_b32 {v(vT)}, 7, {v(vL)}\nv_lshlrev_b32 {v(vT)}, 4, {v(vT)}\nv_bfe_u32 {v(vT+1)}, {v(vL)}, 3, 1\nv_lshl_add_u32 {v(vT)}, {v(vT+1)}, 3, {v(vT)}\nv_bfe_u32 {v(vT+1)}, {v(vL)}, 4, 1\nv_lshl_add_u32 {v(vT)}, {v(vT+1)}, 2, {v(vT)}\nv_lshrrev_b32 {v(vT+1)}, 5, {v(vL)}\nv_lshl_add_u32 {v(vT+2)}, {v(vT+1)}, 1, {v(vT)}')
        P(f'v_bfe_u32 {v(vT)}, {v(vL)}, 4, 1\nv_lshlrev_b32 {v(vT)}, 7, {v(vT)}\nv_lshrrev_b32 {v(vT+1)}, 2, {v(vU16)}\nv_add_u32 {v(vBP)}, {v(vT)}, {v(vT+1)}\ns_lshl_b32 {s(sT1)}, {s(sX)}, 4\nv_add_u32 {v(vBP)}, {s(sT1)}, {v(vBP)}')
        P(f'v_lshrrev_b32 {v(vT)}, 2, {v(vL)}\nv_lshl_add_u32 {v(vDA)}, {v(vT)}, 12, {v(vU16)}')
        if cfg.local:
            P('s_waitcnt lgkmcnt(0)')
            P(f's_xor_b32 s4, s4, {s(sLOC)}')
            for k in range(5, 36): P(f's_xor_b32 {s(k)}, {s(k)}, {s(sLOC)}\ns_or_b32 s4, s4, {s(k)}')
            P(f's_cselect_b32 {s(sLOC)}, 0, 1')
            srd(SRD_WS, sWSP, WS_BYTES)
        srd(SRD_A, pX, 1024); srd(SRD_B, pOUT, 1024)
        P(f's_lshl_b32 {s(sT1)}, {s(sJJ)}, 7')
        P(f'buffer_load_ushort {v(vXv)}, {v(vT+2)}, {S(SRD_A)}, {s(sT1)} offen')
        P(f's_and_b32 {s(sT2)}, {s(sX)}, 1\ns_lshl_b32 {s(sT2)}, {s(sT2)}, 6\ns_add_u32 {s(sT1)}, {s(sT1)}, {s(sT2)}\ns_and_b32 {s(sT2)}, {s(sX)}, 2\ns_lshl_b32 {s(sT2)}, {s(sT2)}, 2\ns_add_u32 {s(sT1)}, {s(sT1)}, {s(sT2)}\ns_and_b32 {s(sT2)}, {s(sX)}, 4\ns_add_u32 {s(sG+2)}, {s(sT1)}, {s(sT2)}')
        for p_ in range(4): P(f's_lshl_b32 {s(sP+p_)}, {s(sJJ)}, 11\ns_add_u32 {s(sP+p_)}, {s(sP+p_)}, {hex(X4 + p_*16384)}')
        P(f's_lshl_b32 {s(sO0)}, {s(sJJ)}, 14\ns_add_u32 {s(sO0)}, {s(sO0)}, {hex(XB)}')
        if cfg.xbrep: P(f's_lshl_b32 {s(sT1)}, {s(sX)}, 17\ns_add_u32 {s(sO0)}, {s(sO0)}, {s(sT1)}')
        for k in range(4): P(f's_add_u32 {s(sB4+k)}, {s(sO0)}, {4096*k}')
        P(f's_lshl_b32 {s(sO3)}, {s(sX)}, 12\ns_lshl_b32 {s(sT1)}, {s(sJJ)}, 9\ns_add_u32 {s(sO3)}, {s(sO3)}, {s(sT1)}\ns_add_u32 {s(sO3)}, {s(sO3)}, {hex(XC)}')
        P(f's_lshr_b32 {s(sO2)}, {s(sJJ)}, 1\ns_lshl_b32 {s(sO2)}, {s(sO2)}, 10\ns_and_b32 {s(sT1)}, {s(sJJ)}, 1\ns_lshl_b32 {s(sT1)}, {s(sT1)}, 7\ns_add_u32 {s(sO2)}, {s(sO2)}, {s(sT1)}')
        P(f's_and_b32 {s(sT1)}, {s(sX)}, 1\ns_lshl_b32 {s(sT1)}, {s(sT1)}, 6\ns_add_u32 {s(sO2)}, {s(sO2)}, {s(sT1)}\ns_lshr_b32 {s(sT1)}, {s(sX)}, 1\ns_lshl_b32 {s(sT1)}, {s(sT1)}, 8\ns_add_u32 {s(sO2)}, {s(sO2)}, {s(sT1)}\ns_add_u32 {s(sO2)}, {s(sO2)}, {hex(XD)}')
        for k in range(3): P(f's_add_u32 {s(sD+k)}, {s(sO2)}, {hex(65536*k)}')
        for i in range(cfg.pipe.get('xd', 1)):
            for k in range(3): P(f'v_mov_b32 {v(192+12*i+8+k)}, {s(sTAG) if k == 2 else 0}')
    def x4_issue():
        for k in range(8): P(f'buffer_load_dwordx4 {v(vg+4*k,4)}, {v(vL16r)}, {S(SRD_WS)}, {s(sP + (k >> 1))} offen offset:{1024*(k & 1)} sc1')
    P('L_QKP:')
    vKR, vQ, vKB, vDQ, vS2, vE, vML = 8, 128, 144, 28, 208, 210, 216
    sM2 = sG
    P(f's_sub_u32 {s(sT2)}, {s(sW)}, 4\ns_lshl_b32 {s(sT0)}, {s(sT2)}, 3\ns_add_u32 {s(sT0)}, {s(sT0)}, {hex(L_FLAG)}\nv_mov_b32 {v(vT+2)}, {s(sT0)}')
    P(f'v_and_b32 {v(vT)}, 15, {v(vL)}\nv_lshrrev_b32 {v(vT+1)}, 4, {v(vL)}\nv_lshlrev_b32 {v(26)}, 4, {v(vT+1)}\nv_xor_b32 {v(vT+1)}, {v(vT+1)}, {v(vT)}\nv_lshlrev_b32 {v(vT+1)}, 4, {v(vT+1)}')
    if cfg.ksplit:
        P(f'v_and_b32 {v(vKR)}, 3, {v(vL)}\nv_lshlrev_b32 {v(vKR)}, 10, {v(vKR)}\nv_lshrrev_b32 {v(vT)}, 2, {v(vT)}\nv_lshl_add_u32 {v(vKR)}, {v(vT)}, 8, {v(vKR)}\nv_add_u32 {v(vKR)}, {v(vKR)}, {v(vT+1)}')
    else: P(f'v_lshl_add_u32 {v(vKR)}, {v(vT)}, 8, {v(vT+1)}')
    P(f's_lshl_b32 {s(sT0)}, {s(sT2)}, 15\nv_add_u32 {v(vKR)}, {s(sT0)}, {v(vKR)}')
    for q in range(1, 4): P(f'v_xor_b32 {v(vKR+q)}, {64*q}, {v(vKR)}')
    P(f'v_and_b32 {v(27)}, 7, {v(vL)}\nv_lshl_add_u32 {v(27)}, {v(27)}, 6, {v(26)}\nv_bfe_u32 {v(vT)}, {v(vL)}, 3, 1\nv_lshl_add_u32 {v(27)}, {v(vT)}, 3, {v(27)}')
    P(f's_lshl_b32 {s(sT0)}, {s(sT2)}, 9\ns_add_u32 {s(sT0)}, {s(sT0)}, {hex(L_P)}\nv_add_u32 {v(27)}, {s(sT0)}, {v(27)}\nv_add_u32 {v(26)}, {hex(L_Q)}, {v(26)}')
    P(f's_lshl_b32 {s(sT0)}, {s(sT2)}, 4\ns_add_u32 {s(sT0)}, {s(sT0)}, {hex(L_MS)}\nv_mov_b32 {v(25)}, {s(sT0)}\nv_mov_b32 {v(vML+2)}, 1\nv_mov_b32 {v(vML+3)}, 1')
    P(f's_mov_b32 {s(sMASK)}, 0x00010001\ns_mov_b32 {s(sMASK+1)}, 0x00010001\ns_mov_b32 {s(sM2)}, 0x01000100\ns_mov_b32 {s(sM2+1)}, 0x01000100')
    lds_wait('kq', vT+2, 2, 28, [28, 29], cfg.lsleep)
    stamp('C0_kready')
    for q in range(4): P(f'ds_read_b128 {v(vQ+4*q,4)}, {v(26)} offset:{64*q}')
    NB = 3; PD = NB - 1; NT = 8
    def kread(t, q): P(f'ds_read_b128 {v(vKB+16*(t % NB)+4*q,4)}, {v(vKR+q)} offset:{4096*t}')
    for t in range(PD):
        for q in range(4): kread(t, q)
    for t in range(NT + 1):
        u = t - 1
        for q in range(4):
            if t < NT:
                if q in (0, 2): P(f's_waitcnt lgkmcnt({min(4*PD - 2, 4*(NT - t) - 2 - q)})')
                mfma(vDQ + 4*(t & 1), vKB + 16*(t % NB) + 4*q, vQ + 4*q, first=(q == 0))
                if t + PD < NT: kread(t + PD, q)
            if t >= 1 and q >= 2:
                mk = sMASK if q == 2 else sM2
                for e in range(2):
                    P(f'v_cndmask_b32 {v(vS2+e)}, {v(vS2+e)}, {v(vDQ+4*(u & 1)+2*(q-2)+e)}, {s(mk,2)}')
        if t >= 1 and t < NT: P(f's_lshl_b64 {s(sMASK,2)}, {s(sMASK,2)}, 1\ns_lshl_b64 {s(sM2,2)}, {s(sM2,2)}, 1')
    stamp('C0_qk')
    P(f'v_cvt_pk_bf16_f32 {v(vE)}, {v(vS2)}, {v(vS2+1)}'); unpack(vS2, vS2+1, vE)
    for e in range(2): P(f'v_mul_f32 {v(vS2+e)}, {SCALE}, {v(vS2+e)}')
    P(f'v_cvt_pk_bf16_f32 {v(vE)}, {v(vS2)}, {v(vS2+1)}'); unpack(vS2, vS2+1, vE)
    P(f'v_max_f32 {v(vML)}, {v(vS2)}, {v(vS2+1)}')
    wave_reduce('v_max_f32', [vML])
    P(f'v_readlane_b32 {s(sT0)}, {v(vML)}, 63')
    for e in range(2): P(f'v_subrev_f32 {v(vE+e)}, {s(sT0)}, {v(vS2+e)}')
    for e in range(2): P(f'v_mul_f32 {v(vE+e)}, {LOG2E}, {v(vE+e)}')
    for e in range(2): P(f'v_exp_f32 {v(vE+e)}, {v(vE+e)}')
    P(f'v_add_f32 {v(vML+1)}, {v(vE)}, {v(vE+1)}')
    wave_reduce('v_add_f32', [vML+1])
    setexec(1 << 63)
    P(f'ds_write_b128 {v(25)}, {v(vML,4)}')
    setexec(ALL)
    P(f's_cmp_eq_u32 {s(sW)}, 4\ns_cbranch_scc1 L_C0ML')
    P(f's_cmp_eq_u32 {s(sW)}, 5\ns_cbranch_scc0 L_MLWAIT')
    if cfg.rwait == 4:
        P(f's_sub_u32 {s(sT0)}, {s(sKK)}, 8\ns_cmp_lt_u32 {s(sT0)}, 8\ns_cbranch_scc0 L_NORED')
        red_setup(); x4_issue()
        P('s_branch L_MLWAIT\nL_NORED:')
    P(f's_cmp_eq_u32 {s(sR)}, 99\ns_cbranch_scc0 L_MLWAIT')
    modtile_compute(0, sO2)
    P('L_MLWAIT:')
    P(f'v_mov_b32 {v(vT+2)}, {hex(L_ML)}')
    lds_wait('mlw', vT+2, 4, vML, [vML+2], cfg.lsleep)
    P('s_branch L_PCALC')
    P('L_C0ML:')
    P(f'v_and_b32 {v(vT+2)}, 3, {v(vL)}\nv_lshlrev_b32 {v(vT+2)}, 4, {v(vT+2)}\nv_add_u32 {v(vT+2)}, {hex(L_MS)}, {v(vT+2)}')
    P(f's_lshl_b32 {s(sO1)}, {s(sH)}, 7\ns_add_u32 {s(sO1)}, {s(sO1)}, {hex(X3)}\ns_lshl_b32 {s(sO0)}, {s(sJ)}, 4\ns_add_u32 {s(sO0)}, {s(sO0)}, {s(sO1)}')
    lds_wait('msw', vT+2, 4, 220, [222])
    P(f'v_max_f32_dpp {v(vML)}, {v(220)}, {v(220)} quad_perm:[1,0,3,2] row_mask:0xf bank_mask:0xf\nv_mov_b32 {v(vML+2)}, {s(sTAG)}\nv_mov_b32 {v(vML+3)}, {s(sTAG)}')
    P(f'v_max_f32_dpp {v(vML)}, {v(vML)}, {v(vML)} quad_perm:[2,3,0,1] row_mask:0xf bank_mask:0xf')
    P(f'v_sub_f32 {v(220)}, {v(220)}, {v(vML)}\nv_mul_f32 {v(220)}, {LOG2E}, {v(220)}\nv_exp_f32 {v(220)}, {v(220)}\nv_mov_b32 {v(vT)}, 0\nv_mul_f32 {v(vML+1)}, {v(220)}, {v(221)}')
    for mod in ('quad_perm:[1,0,3,2]', 'quad_perm:[2,3,0,1]'): P(f'v_add_f32_dpp {v(vML+1)}, {v(vML+1)}, {v(vML+1)} {mod} row_mask:0xf bank_mask:0xf')
    publish(vML, vT, sO0, 1)
    stamp('C0_x3pub')
    P(f's_add_u32 {s(sMASK)}, {s(sWSP)}, {s(sO1)}\ns_addc_u32 {s(sMASK+1)}, {s(sWSP+1)}, 0\ns_mov_b32 {s(sSPIN)}, 0')
    gl = [4 + 4*k for k in range(8)]
    P('L_MLW:')
    if cfg.sleep3: P(f's_sleep {cfg.sleep3}')
    P(f's_load_dwordx16 s[4:19], {s(sMASK,2)}, 0 glc\ns_load_dwordx16 s[20:35], {s(sMASK,2)}, 64 glc')
    P(f's_add_u32 {s(sSPIN)}, {s(sSPIN)}, 1\ns_cmp_gt_u32 {s(sSPIN)}, {cfg.spin}\ns_cbranch_scc1 L_END')
    P('s_waitcnt lgkmcnt(0)')
    P(f's_xor_b32 {s(sT0)}, {s(gl[0]+2)}, {s(sTAG)}')
    for g in gl[1:]: P(f's_xor_b32 {s(sT1)}, {s(g+2)}, {s(sTAG)}\ns_or_b32 {s(sT0)}, {s(sT0)}, {s(sT1)}')
    P('s_cbranch_scc1 L_MLW')
    stamp('C0_ml')
    vG8 = 220
    P(f'v_mov_b32 {v(vML)}, {s(gl[0])}')
    for g in gl[1:]: P(f'v_max_f32 {v(vML)}, {s(g)}, {v(vML)}')
    for k, g in enumerate(gl): P(f'v_sub_f32 {v(vG8+k)}, {s(g)}, {v(vML)}')
    for k in range(8): P(f'v_mul_f32 {v(vG8+k)}, {LOG2E}, {v(vG8+k)}')
    for k in range(8): P(f'v_exp_f32 {v(vG8+k)}, {v(vG8+k)}')
    P(f'v_mul_f32 {v(vE)}, {s(gl[0]+1)}, {v(vG8)}')
    for k, g in enumerate(gl[1:]): P(f'v_fmac_f32 {v(vE)}, {s(g+1)}, {v(vG8+k+1)}')
    P(f'v_rcp_f32 {v(vE+1)}, {v(vE)}\nv_mov_b32 {v(vT+2)}, {hex(L_ML)}\nv_mov_b32 {v(vML+2)}, 1')
    P(f'v_fma_f32 {v(vE)}, -{v(vE)}, {v(vE+1)}, 1.0\nv_fma_f32 {v(vML+1)}, {v(vE)}, {v(vE+1)}, {v(vE+1)}')
    setexec(1)
    P(f'ds_write_b128 {v(vT+2)}, {v(vML,4)}')
    setexec(ALL)
    P('L_PCALC:')
    for e in range(2): P(f'v_sub_f32 {v(vE+e)}, {v(vS2+e)}, {v(vML)}')
    for e in range(2): P(f'v_mul_f32 {v(vE+e)}, {LOG2E}, {v(vE+e)}')
    for e in range(2): P(f'v_exp_f32 {v(vE+e)}, {v(vE+e)}')
    for e in range(2): P(f'v_mul_f32 {v(vE+e)}, {v(vE+e)}, {v(vML+1)}')
    for e in range(2): P(f'v_cvt_pk_bf16_f32 {v(vE+e)}, {v(vE+e)}, {v(vE+e)}')
    P(f'ds_write_b64 {v(27)}, {v(vE,2)}')
    srd(SRD_WS, sWSP, WS_BYTES)
    P(f's_cmp_eq_u32 {s(sW)}, 4\ns_cbranch_scc1 L_C0B1')
    P('s_waitcnt lgkmcnt(0)')
    P('s_barrier')
    P(f's_cmp_eq_u32 {s(sW)}, 5\ns_cbranch_scc1 L_C1B1')
    P('s_branch L_C23B1')
    P('L_C0B1:')
    srd(SRD_A, pWO, 4 << 20)
    P(f'v_bfe_u32 {v(vT)}, {v(vL)}, 3, 1\nv_lshlrev_b32 {v(vT)}, 16, {v(vT)}\nv_bfe_u32 {v(vT+1)}, {v(vL)}, 4, 1\nv_lshl_add_u32 {v(vT)}, {v(vT+1)}, 12, {v(vT)}\nv_lshrrev_b32 {v(vT+1)}, 5, {v(vL)}\nv_lshl_add_u32 {v(vT)}, {v(vT+1)}, 11, {v(vT)}')
    P(f'v_and_b32 {v(vT+1)}, 7, {v(vL)}\nv_lshl_add_u32 {v(vWA)}, {v(vT+1)}, 4, {v(vT)}')
    P(f's_lshl_b32 {s(sO0)}, {s(sH)}, 17\ns_lshl_b32 {s(sT0)}, {s(sJ)}, 7\ns_add_u32 {s(sO0)}, {s(sO0)}, {s(sT0)}')
    P('s_waitcnt lgkmcnt(0)')
    stamp('C0_p')
    P('s_barrier')
    vWO = 64
    def wo_issue(sreg):
        for i in range(16):
            P(f'buffer_load_dwordx4 {v(vWO+4*i,4)}, {v(vWA)}, {S(SRD_A)}, {s(sreg)} offen offset:{1024*(i & 1)} {cfg.wpol}')
            if (i & 1) == 1 and i < 15: P(f's_add_u32 {s(sreg)}, {s(sreg)}, 8192')
    if not cfg.wob2: wo_issue(sO0)
    else: P(f's_mov_b32 {s(sG)}, {s(sO0)}')
    P(f'v_lshrrev_b32 {v(vT+2)}, 1, {v(vL16)}\nv_add_u32 {v(vT+2)}, {hex(L_OP)}, {v(vT+2)}')
    P(f's_lshl_b32 {s(sO1)}, {s(sH)}, 13\ns_add_u32 {s(sO1)}, {s(sO1)}, {hex(XA)}\ns_lshl_b32 {s(sO0)}, {s(sJ)}, 10\ns_add_u32 {s(sO0)}, {s(sO0)}, {s(sO1)}\ns_add_u32 {s(sO2)}, {s(sO1)}, 4096')
    P(f's_lshl_b32 {s(sO3)}, {s(sJ)}, 5\ns_add_u32 {s(sO3)}, {s(sO3)}, {s(sH)}\ns_lshl_b32 {s(sO3)}, {s(sO3)}, 9\ns_add_u32 {s(sO3)}, {s(sO3)}, {hex(XB)}')
    P(f'v_mov_b32 {v(22)}, {s(sTAG)}')
    vAP, vDNA, vCA, vEA, vXBA = 8, 10, 11, 12, 13
    P(f'v_mov_b32 {v(14)}, {hex(L_FLAG + 160)}')
    if cfg.gwait:
        P(f'v_and_b32 {v(16)}, 31, {v(vL)}\nv_lshlrev_b32 {v(16)}, 2, {v(16)}\ns_lshl_b32 {s(sG)}, {s(sX)}, 7\ns_add_u32 {s(sG)}, {s(sG)}, {hex(XG)}')
    P(f'v_bfe_u32 {v(vT)}, {v(vL)}, 3, 1\nv_lshl_add_u32 {v(vXBA)}, {v(vT)}, 17, {v(vPUB)}')
    sQ, sW2, sDN, sEP, sEG, sDP, sC0 = 4, 6, 8, 9, 10, 11, 12
    P(f's_sub_u32 {s(sT0)}, {s(sKK)}, 8\ns_cmp_lt_u32 {s(sKK)}, 8\ns_cselect_b32 {s(sT1)}, {s(sKK)}, {s(sT0)}\ns_and_b32 {s(sQ)}, {s(sT1)}, 3\ns_lshr_b32 {s(sT1)}, {s(sT1)}, 2')
    P(f's_mul_i32 {s(sIM)}, {s(sX)}, 6\ns_add_u32 {s(sIM)}, {s(sIM)}, {s(sT1)}\ns_cmp_lt_u32 {s(sT0)}, 8\ns_cselect_b32 {s(sIM)}, 255, {s(sIM)}')
    srd(SRD_B, pW2, 1376*1024)
    P(f'v_lshrrev_b32 {v(vT)}, 3, {v(vL)}\nv_mul_u32_u24 {v(vT)}, {16*2752}, {v(vT)}\nv_and_b32 {v(vT+1)}, 3, {v(vL)}\nv_lshl_add_u32 {v(vT)}, {v(vT+1)}, 4, {v(vT)}')
    P(f's_mul_i32 {s(sT0)}, {s(sQ)}, {128*2752}\ns_min_u32 {s(sT1)}, {s(sIM)}, {NM-1}\ns_lshl_b32 {s(sT1)}, {s(sT1)}, 6\ns_add_u32 {s(sT0)}, {s(sT0)}, {s(sT1)}\nv_add_u32 {v(vT)}, {s(sT0)}, {v(vT)}')
    P(f's_mov_b32 {s(sMASK)}, 0xf0f0f0f0\ns_mov_b32 {s(sMASK+1)}, 0xf0f0f0f0\ns_mov_b32 {s(sW2)}, 2752*2\ns_mov_b32 {s(sW2+1)}, 0')
    P(f'v_mov_b32 {v(vAP)}, {s(pW1)}\nv_mov_b32 {v(vAP+1)}, {s(pW1+1)}\nv_mov_b32 {v(vT+1)}, {s(pW3)}\nv_mov_b32 {v(vCA)}, {s(pW3+1)}')
    P(f'v_cndmask_b32 {v(vAP)}, {v(vAP)}, {v(vT+1)}, {s(sMASK,2)}\nv_cndmask_b32 {v(vAP+1)}, {v(vAP+1)}, {v(vCA)}, {s(sMASK,2)}')
    P(f'v_add_co_u32 {v(vAP)}, vcc, {v(vAP)}, {v(vT)}\nv_addc_co_u32 {v(vAP+1)}, vcc, 0, {v(vAP+1)}, vcc')
    P(f'v_bfe_u32 {v(vT)}, {v(vL)}, 4, 1\nv_lshlrev_b32 {v(vDNA)}, 12, {v(vT)}\nv_lshrrev_b32 {v(vT)}, 5, {v(vL)}\nv_lshl_add_u32 {v(vDNA)}, {v(vT)}, 11, {v(vDNA)}\nv_and_b32 {v(vT)}, 15, {v(vL)}\nv_lshl_add_u32 {v(vDNA)}, {v(vT)}, 4, {v(vDNA)}')
    P(f's_lshl_b32 {s(sDN)}, {s(sIM)}, 15\ns_lshl_b32 {s(sT0)}, {s(sQ)}, 8\ns_add_u32 {s(sDN)}, {s(sDN)}, {s(sT0)}')
    P(f's_lshl_b32 {s(sEG)}, {s(sIM)}, 11\ns_add_u32 {s(sEG)}, {s(sEG)}, {hex(XE)}\ns_lshl_b32 {s(sT0)}, {s(sQ)}, 9\ns_add_u32 {s(sEP)}, {s(sEG)}, {s(sT0)}')
    P(f's_lshl_b32 {s(sDP)}, {s(sIM)}, 12\ns_lshl_b32 {s(sT0)}, {s(sQ)}, 10\ns_add_u32 {s(sDP)}, {s(sDP)}, {s(sT0)}\ns_add_u32 {s(sDP)}, {s(sDP)}, {hex(XD)}')
    P(f's_lshl_b32 {s(sT1)}, {s(sX)}, 12\ns_add_u32 {s(sT1)}, {s(sT1)}, {hex(XC)}')
    for k in range(4): P(f's_add_u32 {s(sT0)}, {s(sQ)}, {k}\ns_and_b32 {s(sT0)}, {s(sT0)}, 3\ns_lshl_b32 {s(sT0)}, {s(sT0)}, 10\ns_add_u32 {s(sC0+k)}, {s(sT0)}, {s(sT1)}')
    P(f'v_lshrrev_b32 {v(vT)}, 5, {v(vL)}\nv_lshlrev_b32 {v(vCA)}, 9, {v(vT)}\nv_bfe_u32 {v(vT)}, {v(vL)}, 1, 1\nv_lshl_add_u32 {v(vCA)}, {v(vT)}, 7, {v(vCA)}\nv_and_b32 {v(vT)}, 1, {v(vL)}\nv_lshl_add_u32 {v(vCA)}, {v(vT)}, 8, {v(vCA)}')
    P(f'v_bfe_u32 {v(vT)}, {v(vL)}, 2, 3\nv_lshl_add_u32 {v(vCA)}, {v(vT)}, 4, {v(vCA)}')
    P(f'v_bfe_u32 {v(vT)}, {v(vL)}, 3, 1\nv_lshlrev_b32 {v(vT)}, 9, {v(vT)}\nv_add_u32 {v(vEA)}, {v(vPUB)}, {v(vT)}')
    P('s_barrier')
    stamp('C0_b2')
    for w in range(4): P(f'ds_read_b64 {v(24+2*w,2)}, {v(vT+2)} offset:{512*w}')
    P('s_waitcnt lgkmcnt(2)')
    for e in range(2): P(f'v_add_f32 {v(24+e)}, {v(24+e)}, {v(26+e)}')
    P('s_waitcnt lgkmcnt(0)')
    for e in range(2): P(f'v_add_f32 {v(28+e)}, {v(28+e)}, {v(30+e)}')
    for e in range(2): P(f'v_add_f32 {v(20+e)}, {v(24+e)}, {v(28+e)}')
    publish_loc(20, vL16, sO0)
    stamp('C0_xapub')
    if cfg.wob2 == 1: wo_issue(sG)
    vOd = 40
    def issue(b):
        for k in range(0, 8, 2 if cfg.fakehalf & 2 else 1):
            P(f'buffer_load_dwordx4 {v(b+4*k,4)}, {v(vL16)}, {S(SRD_WS)}, {s(sO1 if k < 4 else sO2)} offen offset:{1024*(k & 3)} sc1')
    def done(b):
        for a, b2 in ((0, 1), (2, 3), (4, 5), (6, 7), (0, 2), (4, 6), (0, 4)):
            for e in (0, 1): P(f'v_add_f32 {v(b+4*a+e)}, {v(b+4*a+e)}, {v(b+4*b2+e)}')
        P(f'v_cvt_pk_bf16_f32 {v(vOd)}, {v(b)}, {v(b)}\nv_cvt_pk_bf16_f32 {v(vOd+1)}, {v(b+1)}, {v(b+1)}')
    poll('xa', issue, 8, 128, 32, [4*k+2 for k in range(0, 8, 2 if cfg.fakehalf & 2 else 1)], done)
    stamp('C0_xa')
    vGW, vGA2 = 15, 16
    def g_issue(): P(f'buffer_load_dword {v(vGW)}, {v(vGA2)}, {S(SRD_WS)}, {s(sG)} offen sc1')
    if cfg.gwait: g_issue()
    lohi(vOd)
    chain(vD0, 16, [vWO+4*i for i in range(16)], lohi_srcs(vOd), vAA)
    finish2(vD0)
    if cfg.xbrep:
        for e in range(2): P(f'v_mov_b32_dpp {v(vD0+e)}, {v(vD0+e)} row_ror:8 row_mask:0xf bank_mask:0xc')
        for i in range(4):
            P(f'buffer_store_dwordx4 {v(vD0,4)}, {v(vXBA)}, {S(SRD_WS)}, {s(sO3)} offen sc1')
            if i < 3: P(f's_add_u32 {s(sO3)}, {s(sO3)}, 0x40000')
    else: publish(vD0, vPUB, sO3, M2SET)
    if cfg.rwait and cfg.rwait < 4: P(f'ds_write_b32 {v(14)}, {v(14)}')
    stamp('C0_xbpub')
    if cfg.rwait == 4:
        P(f's_cmp_lt_u32 {s(sIM)}, {NM}\ns_cbranch_scc1 L_MLP')
        P('s_waitcnt vmcnt(0)')
        P(f'ds_write_b32 {v(14)}, {v(14)}')
        P('s_branch L_END\nL_MLP:')
    else: P(f's_cmp_lt_u32 {s(sIM)}, {NM}\ns_cbranch_scc0 L_END')
    vUP, vDN, vCG, vEG = 128, 192, 64, 80
    if cfg.gwait:
        P(f's_mov_b32 {s(sSPIN)}, 0\ns_waitcnt vmcnt({4 if cfg.xbrep else 1})\ns_branch L_GCHK\nL_GTOP:')
        g_issue()
        P(f's_add_u32 {s(sSPIN)}, {s(sSPIN)}, 1\ns_cmp_gt_u32 {s(sSPIN)}, {cfg.spin}\ns_cbranch_scc1 L_END\ns_waitcnt vmcnt(0)\nL_GCHK:')
        P(f'v_cmp_eq_u32 vcc, {s(sTAG)}, {v(vGW)}\ns_bcnt1_i32_b64 {s(sT0)}, vcc\ns_cmp_lt_u32 {s(sT0)}, {2*cfg.gthr}\ns_cbranch_scc1 L_GTOP')
    for i in range(16):
        P(f'global_load_dwordx4 {v(vUP+4*i,4)}, {v(vAP,2)}, off offset:{2752*(i & 1)} {cfg.uppol}')
        if i & 1 and i < 15: P(f'v_lshl_add_u64 {v(vAP,2)}, {v(vAP,2)}, 0, {s(sW2,2)}')
    def dn_issue():
        for i in range(8):
            P(f'buffer_load_dwordx4 {v(vDN+4*i,4)}, {v(vDNA)}, {S(SRD_B)}, {s(sDN)} offen offset:{1024*(i & 1)} {cfg.wpol}')
            if i & 1 and i < 7: P(f's_add_u32 {s(sDN)}, {s(sDN)}, 8192')
    if not cfg.dnlate: dn_issue()
    if cfg.diag and 'M_w' in cfg.diag:
        P('s_waitcnt vmcnt(0)'); stamp('M_w')
    vx, vcb, vsb = 88, 24, 26
    def issue(b):
        for k in range(4): P(f'buffer_load_dwordx4 {v(b+4*k,4)}, {v(vCA)}, {S(SRD_WS)}, {s(sC0+k)} offen sc1')
    def done(b):
        for k in range(4): unpack(vx+2*k, vx+2*k+1, b+4*k)
        unpack(vcb, vcb+1, b+1); unpack(vsb, vsb+1, b+2)
    poll('xc', issue, 4, 64 if cfg.pipe.get('xc', 1) == 1 else 104, 16 if cfg.pipe.get('xc', 1) != 2 else -40, [4*k+3 for k in range(4)], done)
    stamp('M_xc')
    if cfg.dnlate == 1: dn_issue()
    P(f'v_readfirstlane_b32 {s(sT0)}, {v(vx)}')
    for k in range(8): P(f'v_subrev_f32 {v(96+k)}, {s(sT0)}, {v(vx+k)}')
    P(f'v_pk_add_f32 {v(20,2)}, {v(96,2)}, {v(98,2)}\nv_pk_add_f32 {v(22,2)}, {v(100,2)}, {v(102,2)}\nv_pk_mul_f32 {v(28,2)}, {v(96,2)}, {v(96,2)}\nv_pk_mul_f32 {v(30,2)}, {v(100,2)}, {v(100,2)}')
    P(f'v_pk_add_f32 {v(20,2)}, {v(20,2)}, {v(22,2)}\nv_pk_fma_f32 {v(28,2)}, {v(98,2)}, {v(98,2)}, {v(28,2)}\nv_pk_fma_f32 {v(30,2)}, {v(102,2)}, {v(102,2)}, {v(30,2)}')
    P(f'v_add_f32 {v(22)}, {v(20)}, {v(21)}\nv_pk_add_f32 {v(28,2)}, {v(28,2)}, {v(30,2)}\nv_add_f32 {v(23)}, {v(28)}, {v(29)}')
    for mod in ('quad_perm:[1,0,3,2]', 'quad_perm:[2,3,0,1]', 'row_ror:4', 'row_ror:8'):
        for r in (22, 23): P(f'v_add_f32_dpp {v(r)}, {v(r)}, {v(r)} {mod} row_mask:0xf bank_mask:0xf')
    P(f'v_permlane16_swap_b32 {v(22)}, {v(23)}\nv_add_f32 {v(22)}, {v(22)}, {v(23)}\nv_mov_b32 {v(23)}, {v(22)}')
    P(f'v_permlane32_swap_b32 {v(22)}, {v(23)}\nv_add_f32 {v(22)}, {v(22)}, {v(23)}\nv_mul_f32 {v(22)}, {R512}, {v(22)}')
    P(f'v_readlane_b32 {s(sT1)}, {v(22)}, 0\nv_readlane_b32 {s(sT2)}, {v(22)}, 16')
    P(f'v_mov_b32 {v(22)}, {s(sT1)}\nv_mov_b32 {v(23)}, {s(sT2)}')
    P(f'v_fma_f32 {v(23)}, -{v(22)}, {v(22)}, {v(23)}\nv_add_f32 {v(22)}, {s(sT0)}, {v(22)}\nv_max_f32 {v(23)}, 0, {v(23)}')
    P(f'v_cvt_pk_bf16_f32 {v(22)}, {v(22)}, {v(23)}')
    P(f'v_and_b32 {v(23)}, 0xffff0000, {v(22)}\nv_lshlrev_b32 {v(22)}, 16, {v(22)}\nv_add_f32 {v(23)}, {EPS}, {v(23)}')
    P(f'v_sub_f32 {v(20)}, {v(vx)}, {v(22)}\nv_sub_f32 {v(21)}, {v(vx+1)}, {v(22)}')
    P(f'v_cvt_pk_bf16_f32 {v(23)}, {v(23)}, {v(23)}\nv_cvt_pk_bf16_f32 {v(20)}, {v(20)}, {v(21)}\nv_and_b32 {v(23)}, 0xffff0000, {v(23)}\nv_sqrt_f32 {v(23)}, {v(23)}')
    unpack(vx, vx+1, 20)
    P(f'v_cvt_pk_bf16_f32 {v(23)}, {v(23)}, {v(23)}\nv_and_b32 {v(23)}, 0xffff0000, {v(23)}\nv_rcp_f32 {v(22)}, {v(23)}')
    P(f'v_mul_f32 {v(20)}, {v(vx)}, {v(22)}\nv_mul_f32 {v(21)}, {v(vx+1)}, {v(22)}')
    P(f'v_fma_f32 {v(vx)}, -{v(20)}, {v(23)}, {v(vx)}\nv_fma_f32 {v(vx+1)}, -{v(21)}, {v(23)}, {v(vx+1)}')
    P(f'v_fma_f32 {v(20)}, {v(vx)}, {v(22)}, {v(20)}\nv_fma_f32 {v(21)}, {v(vx+1)}, {v(22)}, {v(21)}')
    P(f'v_cvt_pk_bf16_f32 {v(20)}, {v(20)}, {v(21)}')
    unpack(vx, vx+1, 20)
    P(f'v_mul_f32 {v(vx)}, {v(vx)}, {v(vcb)}\nv_mul_f32 {v(vx+1)}, {v(vx+1)}, {v(vcb+1)}\nv_cvt_pk_bf16_f32 {v(20)}, {v(vx)}, {v(vx+1)}')
    unpack(vx, vx+1, 20)
    P(f'v_add_f32 {v(vx)}, {v(vx)}, {v(vsb)}\nv_add_f32 {v(vx+1)}, {v(vx+1)}, {v(vsb+1)}')
    P(f'v_cvt_pk_bf16_f32 {v(vOd)}, {v(vx)}, {v(vx)}\nv_cvt_pk_bf16_f32 {v(vOd+1)}, {v(vx+1)}, {v(vx+1)}')
    lohi(vOd)
    stamp('M_h2')
    if cfg.dnlate == 2: dn_issue()
    chain(vD0, 16, [vUP+4*i for i in range(16)], lohi_srcs(vOd), vAA)
    finish2(vD0)
    publish_loc(vD0, vPUB, sEP, M2SET, sR)
    stamp('M_up')
    def issue(b):
        for k in range(2): P(f'buffer_load_dwordx4 {v(b+4*k,4)}, {v(vEA)}, {S(SRD_WS)}, {s(sEG)} offen offset:{1024*k} sc1')
    def done(b):
        for e in range(2): P(f'v_add_f32 {v(20+e)}, {v(b+e)}, {v(b+4+e)}')
    poll('xe', issue, 2, 128, 8, [2, 6], done)
    stamp('M_xe')
    for e in range(2): P(f'v_add_f32_dpp {v(20+e)}, {v(20+e)}, {v(20+e)} row_ror:8 row_mask:0xf bank_mask:0xf')
    P(f'v_cvt_pk_bf16_f32 {v(22)}, {v(20)}, {v(21)}')
    unpack(20, 21, 22)
    P(f'v_mov_b32_dpp {v(24)}, {v(22)} row_shl:4 row_mask:0xf bank_mask:0xf')
    silu_multi([20, 21], [22, 23])
    unpack(26, 27, 24)
    P(f'v_cvt_pk_bf16_f32 {v(22)}, {v(20)}, {v(21)}')
    unpack(20, 21, 22)
    P(f'v_mul_f32 {v(20)}, {v(20)}, {v(26)}\nv_mul_f32 {v(21)}, {v(21)}, {v(27)}')
    for e in range(2): P(f'v_cvt_pk_bf16_f32 {v(20+e)}, {v(20+e)}, {v(20+e)}')
    stamp('M_act')
    chain(vD0, 8, [vDN+4*i for i in range(8)], [(20 + (i & 1), f'row_newbcast:{i >> 1}') for i in range(8)], vAA)
    finish1(vD0)
    publish(vD0, vL16, sDP)
    stamp('M_end')
    P('s_branch L_END')

    P('L_C123:')
    common_setup()
    P(f's_cmp_eq_u32 {s(sW)}, 5\ns_cbranch_scc1 L_C1')
    P(f's_cmp_eq_u32 {s(sW)}, 6\ns_cbranch_scc0 L_C3')
    P(f's_getpc_b64 {s(20,2)}')
    P('L_PCREF:')
    P(f's_sub_u32 s20, s20, L_PCREF-{NAME}_kernel\ns_subb_u32 s21, s21, 0')
    P(f's_lshl_b32 {s(sT0)}, {s(sKK)}, 3\nv_and_b32 {v(vT)}, 7, {v(vL)}\nv_add_u32 {v(vT)}, {s(sT0)}, {v(vT)}\nv_lshlrev_b32 {v(vT)}, 7, {v(vT)}')
    P(f'v_min_u32 {v(vT)}, L_CODE_END-{NAME}_kernel-4, {v(vT)}')
    if cfg.cpf: P(f'global_load_dword {v(240)}, {v(vT)}, s[20:21]')
    P('L_C3:')
    P('s_waitcnt lgkmcnt(0)')
    P(f's_add_u32 {s(sTAG)}, {s(sTAG)}, 1')
    P('s_branch L_QKP')
    P('L_C23B1:')
    if cfg.gwait:
        P(f'v_lshlrev_b32 {v(vT)}, 7, {v(vL)}\nv_mov_b32 {v(vT+1)}, {s(sTAG)}\ns_lshl_b32 {s(sT0)}, {s(sH)}, 2\ns_add_u32 {s(sT0)}, {s(sT0)}, {hex(XG)}')
    P('s_barrier')
    if cfg.gwait:
        P(f's_cmp_eq_u32 {s(sW)}, 6\ns_cbranch_scc0 L_END\ns_cmp_eq_u32 {s(sJ)}, 0\ns_cbranch_scc0 L_END')
        setexec(0xff)
        P(f'buffer_store_dword {v(vT+1)}, {v(vT)}, {S(SRD_WS)}, {s(sT0)} offen sc1')
    P('s_branch L_END')

    P('L_C1:')
    P('s_waitcnt lgkmcnt(0)')
    P(f's_add_u32 {s(sTAG)}, {s(sTAG)}, 1')
    if cfg.tearly: P(f's_mov_b32 {s(sR)}, 0\ns_cmp_ge_u32 {s(sX)}, 4\ns_cbranch_scc1 L_QKP')
    else: P(f's_mov_b32 {s(sR)}, 0\ns_sub_u32 {s(sT0)}, {s(sKK)}, 8\ns_cmp_lt_u32 {s(sT0)}, 16\ns_cbranch_scc1 L_QKP')
    P(f'v_mov_b32 {v(vT+2)}, {hex(L_FLAG + 8)}')
    lds_wait('k1', vT+2, 1, 28, [28], 8)
    if cfg.tearly:
        P(f's_lshl_b32 {s(sT0)}, {s(sKK)}, 2\ns_add_u32 {s(sT0)}, {s(sT0)}, {s(sX)}\ns_and_b32 {s(sT1)}, {s(sT0)}, 31\ns_lshr_b32 {s(sT0)}, {s(sT0)}, 5')
    else:
        P(f's_and_b32 {s(sT0)}, {s(sKK)}, 7\ns_lshr_b32 {s(sT1)}, {s(sKK)}, 4\ns_lshl_b32 {s(sT1)}, {s(sT1)}, 3\ns_add_u32 {s(sT0)}, {s(sT0)}, {s(sT1)}')
        P(f's_lshl_b32 {s(sT0)}, {s(sT0)}, 3\ns_add_u32 {s(sT0)}, {s(sT0)}, {s(sX)}\ns_and_b32 {s(sT1)}, {s(sT0)}, 31\ns_lshr_b32 {s(sT0)}, {s(sT0)}, 5')
    P(f's_lshl_b32 {s(sO2)}, {s(sT1)}, 2\ns_add_u32 {s(sO2)}, {s(sO2)}, {s(sT0)}\ns_lshl_b32 {s(sO2)}, {s(sO2)}, 9\ns_add_u32 {s(sO2)}, {s(sO2)}, {hex(X4)}')
    P(f's_lshl_b32 {s(sT1)}, {s(sT1)}, 7\ns_add_u32 {s(sT1)}, {s(sT1)}, 2048')
    modtile_issue(sT0, sT1)
    P(f's_mov_b32 {s(sR)}, 99\ns_branch L_QKP')
    P('L_C1B1:')
    P(f's_sub_u32 {s(sT0)}, {s(sKK)}, 8\ns_cmp_lt_u32 {s(sT0)}, 8\ns_cbranch_scc1 L_RED')
    P('s_barrier')
    P('s_branch L_END')
    P('L_RED:')
    if cfg.rwait != 4: red_setup()
    else:
        srd(SRD_B, pOUT, 1024)
        P(f'v_lshlrev_b32 {v(vL16r)}, 4, {v(vL)}\nv_and_b32 {v(vU16)}, 3, {v(vL)}\nv_lshlrev_b32 {v(vU16)}, 4, {v(vU16)}\nv_lshrrev_b32 {v(vT)}, 2, {v(vL)}\nv_lshl_add_u32 {v(vDA)}, {v(vT)}, 12, {v(vU16)}')
    def xb_issue(b):
        for k in range(0, 16, 2 if cfg.fakehalf & 1 else 1): P(f'buffer_load_dwordx4 {v(b+4*k,4)}, {v(vL16r)}, {S(SRD_WS)}, {s(sB4 + (k >> 2))} offen offset:{1024*(k & 3)} sc1')
    issue = x4_issue
    def rw(name):
        P(f'v_mov_b32 {v(vT+2)}, {hex(L_FLAG + 160)}')
        lds_wait(name, vT+2, 1, 28, [28], cfg.lsleep)
    if cfg.rwait >= 3:
        if cfg.rwait == 3: issue()
        P('s_barrier')
        stamp('R_b2')
        P(f's_mov_b32 {s(sT2)}, 0\ns_branch L_X4CHK\nL_X4RETRY:')
        rw('rw0')
        issue()
        P(f's_add_u32 {s(sT2)}, {s(sT2)}, 1\ns_cmp_gt_u32 {s(sT2)}, {cfg.spin}\ns_cbranch_scc1 L_END\nL_X4CHK:')
        P('s_waitcnt vmcnt(0)')
        tr = [vg+4*k+2 for k in range(8)]
        P(f'v_xor_b32 {v(vT)}, {s(sTAG)}, {v(tr[0])}\nv_xor_b32 {v(vT+1)}, {s(sTAG)}, {v(tr[1])}')
        for k, r in enumerate(tr[2:]): P(f'v_bitop3_b32 {v(vT + (k & 1))}, {v(r)}, {s(sTAG)}, {v(vT + (k & 1))} bitop3:{TAGX}')
        P(f'v_or_b32 {v(vT)}, {v(vT)}, {v(vT+1)}\nv_cmp_ne_u32 vcc, 0, {v(vT)}\ns_cbranch_vccnz L_X4RETRY')
    else:
        P('s_barrier')
        stamp('R_b2')
        if cfg.rwait: rw('rw')
        tagcheck_loop(issue, [vg+4*k+2 for k in range(8)], 'x4', after=(lambda: xb_issue(128)) if cfg.rwait == 2 else None, nafter=16)
    for p_ in range(4):
        for e in range(2): P(f'v_add_f32 {v(vg+8*p_+e)}, {v(vg+8*p_+e)}, {v(vg+8*p_+4+e)}')
    for p_ in range(4): P(f'v_permlane32_swap_b32 {v(vg+8*p_)}, {v(vg+8*p_+1)}')
    for p_ in range(4): P(f'v_add_f32 {v(vg+8*p_)}, {v(vg+8*p_)}, {v(vg+8*p_+1)}')
    for p_ in range(4): rnd(vg+8*p_)
    P(f'v_mov_b32 {v(vGAv)}, {v(vg)}\nv_add_f32 {v(vg+16)}, 1.0, {v(vg+16)}\nv_mov_b32 {v(vg+9)}, {v(vg+8)}\nv_mov_b32 {v(vg+17)}, {v(vg+16)}')
    P(f'ds_bpermute_b32 {v(vGBv)}, {v(vBP)}, {v(vg+24)}')
    P(f'v_permlane32_swap_b32 {v(vg+8)}, {v(vg+9)}\nv_permlane32_swap_b32 {v(vg+16)}, {v(vg+17)}')
    P(f'v_cvt_pk_bf16_f32 {v(vXC+2)}, {v(vg+8)}, {v(vg+9)}\nv_cvt_pk_bf16_f32 {v(vXC+1)}, {v(vg+16)}, {v(vg+17)}\nv_mov_b32 {v(vXC+3)}, {s(sTAG)}\nv_lshlrev_b32 {v(vXv)}, 16, {v(vXv)}')
    stamp('R_x4')
    if cfg.rwait >= 3: rw('rw1')
    def done(b):
        st = 1
        while st < 16:
            for a in range(0, 16, 2*st):
                for e in range(2): P(f'v_add_f32 {v(b+4*a+e)}, {v(b+4*a+e)}, {v(b+4*(a+st)+e)}')
            st *= 2
    if cfg.rsleep: P(f's_sleep {cfg.rsleep}')
    if cfg.xbgrp:
        n = 16 // cfg.xbgrp
        def mk(g):
            def issue():
                for k in range(g*n, g*n + n): P(f'buffer_load_dwordx4 {v(128+4*k,4)}, {v(vL16r)}, {S(SRD_WS)}, {s(sB4 + (k >> 2))} offen offset:{1024*(k & 3)} sc1')
            return (issue, [128+4*k+2 for k in range(g*n, g*n + n)])
        poll_groups('xb', [mk(g) for g in range(cfg.xbgrp)])
        done(128)
    else: poll('xb', xb_issue, 16, 128, 64, [4*k+2 for k in range(0, 16, 2 if cfg.fakehalf & 1 else 1)], done, issued=(cfg.rwait == 2))
    stamp('R_xb')
    P(f'v_permlane32_swap_b32 {v(128)}, {v(129)}\nv_add_f32 {v(vg)}, {v(128)}, {v(129)}')
    rnd(vg)
    P(f'v_mul_f32 {v(vg)}, {v(vg)}, {v(vGAv)}'); rnd(vg)
    P(f'v_add_f32 {v(vg)}, {v(vg)}, {v(vXv)}\nv_mov_b32 {v(vg+1)}, {v(vg)}')
    P(f'v_permlane32_swap_b32 {v(vg)}, {v(vg+1)}')
    P(f'v_cvt_pk_bf16_f32 {v(vXC)}, {v(vg)}, {v(vg+1)}')
    publish_loc(vXC, vL16r, sO3, 0xffffffff)
    stamp('R_xcpub')
    if cfg.epearly:
        P(f's_cmp_eq_u32 {s(sR)}, 0\ns_cbranch_scc0 L_NOEP')
        setexec(1)
        P(f'v_mov_b32 {v(vT)}, 0\nv_mov_b32 {v(vT+1)}, {s(sTAG)}')
        P(f'buffer_store_dword {v(vT+1)}, {v(vT)}, {S(SRD_WS)}, 0 offen sc1')
        setexec(ALL)
        P('L_NOEP:')
    P(f'v_lshrrev_b32 {v(vT+2)}, 1, {v(vL)}\nv_and_b32 {v(vT+2)}, 16, {v(vT+2)}\nv_lshrrev_b32 {v(vXv)}, {v(vT+2)}, {v(vXC)}\nv_lshlrev_b32 {v(vXv)}, 16, {v(vXv)}')
    P(f'ds_bpermute_b32 {v(vXv)}, {v(vBP)}, {v(vXv)}')
    def colsum():
        P(f'v_permlane16_swap_b32 {v(vg)}, {v(vg+1)}')
        P(f'v_add_f32 {v(vg)}, {v(vg)}, {v(vg+1)}')
        P(f'v_add_f32_dpp {v(vg)}, {v(vg)}, {v(vg)} row_ror:4 row_mask:0xf bank_mask:0xf')
        P(f'v_add_f32_dpp {v(vg)}, {v(vg)}, {v(vg)} row_ror:8 row_mask:0xf bank_mask:0xf')
        P(f'v_mov_b32 {v(vg+1)}, {v(vg)}')
        P(f'v_permlane32_swap_b32 {v(vg)}, {v(vg+1)}')
        P(f'v_add_f32 {v(vg)}, {v(vg)}, {v(vg+1)}')
    P('s_waitcnt lgkmcnt(0)')
    def issue(b):
        for k in range(2): P(f'buffer_load_dwordx4 {v(b+4*k,4)}, {v(vDA)}, {S(SRD_WS)}, {s(sD+k)} offen sc1')
        setexec((1 << 44) - 1)
        P(f'buffer_load_dwordx4 {v(b+8,4)}, {v(vDA)}, {S(SRD_WS)}, {s(sD+2)} offen sc1')
        setexec(ALL)
    def done(b):
        for e in range(2): P(f'v_add_f32 {v(b+e)}, {v(b+e)}, {v(b+4+e)}')
        for e in range(2): P(f'v_add_f32 {v(vg+e)}, {v(b+e)}, {v(b+8+e)}')
    if cfg.dsleep: P(f's_sleep {cfg.dsleep}')
    poll('xd', issue, 3, 192, 12, [2, 6, 10], done)
    stamp('R_xd')
    colsum()
    rnd(vg)
    P(f'v_mul_f32 {v(vg)}, {v(vg)}, {v(vGBv)}'); rnd(vg)
    P(f'v_add_f32 {v(vg)}, {v(vg)}, {v(vXv)}\nv_mov_b32 {v(vg+1)}, {v(vg)}')
    P(f'v_permlane16_swap_b32 {v(vg)}, {v(vg+1)}')
    P(f'v_cvt_pk_bf16_f32 {v(vg)}, {v(vg)}, {v(vg+1)}')
    setexec(0xf)
    P(f'buffer_store_dword {v(vg)}, {v(vU16)}, {S(SRD_B)}, {s(sG+2)} offen {cfg.outpol}')
    stamp('R_end')
    def epoch(skip):
        P(f's_cmp_eq_u32 {s(sR)}, 0\ns_cbranch_scc0 {skip}')
        setexec(1)
        P(f'v_mov_b32 {v(vT)}, 0\nv_mov_b32 {v(vT+1)}, {s(sTAG)}')
        P(f'buffer_store_dword {v(vT+1)}, {v(vT)}, {S(SRD_WS)}, 0 offen sc1')
    if not cfg.epearly: epoch('L_END')
    if cfg.xdelay:
        P(f's_cmp_eq_u32 {s(sR)}, 0\ns_cbranch_scc0 L_END\ns_memrealtime s[76:77]\ns_waitcnt lgkmcnt(0)\ns_add_u32 {s(sT0)}, s76, {cfg.xdelay}')
        P(f'L_XDL:\ns_memrealtime s[76:77]\ns_waitcnt lgkmcnt(0)\ns_sub_u32 {s(sT1)}, s76, {s(sT0)}\ns_cmp_lt_i32 {s(sT1)}, 0\ns_cbranch_scc1 L_XDL')
    if cfg.gprobe:
        P(f's_cmp_eq_u32 {s(sR)}, 0\ns_cbranch_scc0 L_END\ns_mov_b64 exec, -1\ns_mov_b32 {s(sT0)}, {hex(DIAG)}')
        nw = 4 if cfg.gprobe.startswith('L') else 1
        P(f'v_lshlrev_b32 v1, 5, v0')
        if cfg.gprobe[0] == 'R': P('v_add_u32 v1, 8, v1')
        if cfg.gprobe[0] in 'MR': P('s_sleep 40')
        regs = []
        for q in range(4):
            for w in range(nw):
                r = 128 + 2*(q*4 + w); regs.append(r)
                P(f'buffer_load_dwordx2 v[{r}:{r+1}], v1, {S(SRD_WS)}, {s(sT0)} offen offset:{8*w} sc1')
            P(f's_add_u32 {s(sT0)}, {s(sT0)}, 2048')
        P('s_waitcnt vmcnt(0)')
        P(f'v_subrev_u32 v2, {s(sDIAG)}, v{regs[0]}\nv_subrev_u32 v3, {s(sDIAG)}, v{regs[0]+1}')
        for r in regs[1:]:
            P(f'v_subrev_u32 v4, {s(sDIAG)}, v{r}\nv_min_i32 v2, v2, v4\nv_subrev_u32 v4, {s(sDIAG)}, v{r+1}\nv_max_i32 v3, v3, v4')
        wave_reduce('v_min_i32', [2]); wave_reduce('v_max_i32', [3])
        P(f'v_sub_u32 v2, v3, v2\nv_readlane_b32 {s(sT0)}, v2, 63\ns_nop 1\ns_min_u32 {s(sT0)}, {s(sT0)}, 5000\ns_memrealtime s[76:77]\ns_waitcnt lgkmcnt(0)\ns_add_u32 {s(sT0)}, {s(sT0)}, s76')
        P(f'L_GPR:\ns_memrealtime s[76:77]\ns_waitcnt lgkmcnt(0)\ns_sub_u32 {s(sT1)}, s76, {s(sT0)}\ns_cmp_lt_i32 {s(sT1)}, 0\ns_cbranch_scc1 L_GPR')
    if cfg.probe:
        P(f's_cmp_eq_u32 {s(sR)}, 0\ns_cbranch_scc0 L_END')
        i = stamps[cfg.probe]
        P(f's_waitcnt lgkmcnt(0)\ns_sub_u32 {s(sT0)}, {s(sDIAG+2*i)}, {s(sDIAG)}\ns_min_u32 {s(sT0)}, {s(sT0)}, 5000\ns_memrealtime s[76:77]\ns_waitcnt lgkmcnt(0)\ns_add_u32 {s(sT0)}, {s(sT0)}, s76')
        P(f'L_PROBE:\ns_memrealtime s[76:77]\ns_waitcnt lgkmcnt(0)\ns_sub_u32 {s(sT1)}, s76, {s(sT0)}\ns_cmp_lt_i32 {s(sT1)}, 0\ns_cbranch_scc1 L_PROBE')
    P('s_branch L_END')

    P('L_END:')
    if cfg.diag and not cfg.probe and not cfg.gprobe:
        P('s_waitcnt lgkmcnt(0)')
        P(f's_cmp_ge_u32 {s(sB)}, 256\ns_cbranch_scc1 L_END2')
        srd(SRD_WS, sWSP, WS_BYTES)
        P(f's_lshl_b32 {s(sT0)}, {s(sB)}, 3\ns_add_u32 {s(sT0)}, {s(sT0)}, {s(sW)}\ns_lshl_b32 {s(sT0)}, {s(sT0)}, 7\ns_add_u32 {s(sT0)}, {s(sT0)}, {hex(DIAG)}')
        P('s_mov_b64 exec, 1\nv_mov_b32 v1, 0')
        for i in range(9): P(f'v_mov_b32 v2, {s(sDIAG+2*i)}\nbuffer_store_dword v2, v1, {S(SRD_WS)}, {s(sT0)} offen offset:{4*i}')
        P('L_END2:')
    P('s_endpgm')
    P('L_CODE_END:')
    probs = P.fix()
    for p in probs: print('HAZARD across branch:', p, file=sys.stderr)
    head = open(f'cdna_kernels/{NAME}.s.ref').read().split('; Override launch')[0]
    txt = head
    txt += f'; Single persistent launch: 256 workgroups (one per CU) x 8 waves. Generated by gen/gen_kernel.py (hand-written generator).\n'
    txt += f'; @launch grid=(256,1,1) block=(512,1,1) lds={LDS_BYTES}\n'
    txt += f'.amdgcn_target "amdgcn-amd-amdhsa--gfx950"\n.text\n.globl {NAME}_kernel\n.p2align 8\n.type {NAME}_kernel,@function\n{NAME}_kernel:\n'
    txt += P.text() + '\n'
    txt += f'''.section .rodata,"a"
.p2align 6
.amdhsa_kernel {NAME}_kernel
  .amdhsa_next_free_vgpr 256
  .amdhsa_next_free_sgpr 102
  .amdhsa_accum_offset 256
  .amdhsa_group_segment_fixed_size 0
  .amdhsa_kernarg_size 112
  .amdhsa_user_sgpr_count 2
  .amdhsa_user_sgpr_kernarg_segment_ptr 1
  .amdhsa_system_sgpr_workgroup_id_x 1
  .amdhsa_float_denorm_mode_32 3
.end_amdhsa_kernel
'''
    return txt, stamps

if __name__ == '__main__':
    out = sys.argv[1] if len(sys.argv) > 1 else f'cdna_kernels/{NAME}.s'
    class C(Cfg): pass
    for a in sys.argv[2:]:
        k, val = a.split('=', 1)
        setattr(C, k, eval(val))
    txt, stamps = gen(C)
    open(out, 'w').write(txt)
    print('written', out, len(txt), 'bytes', stamps)
```

```python
import sys, struct
from asmdsl import Prog

NAME = 'adaLN_cond__mha_block_cached__glu_gated_swiglu__decode'

def f2u(x): return struct.unpack('<I', struct.pack('<f', x))[0]
LOG2E = hex(f2u(1.4426950408889634))
NLOG2E = hex(f2u(-1.4426950408889634))
SCALE = hex(f2u(128 ** -0.5))
EPS = hex(f2u(1e-5))
R512 = hex(f2u(1/512))
ALL = (1 << 64) - 1

X1 = 0x1000
X4 = 0x9000
X3 = 0x19000
X1F = 0x1b000
X0 = 0x1d000
X0B = 0x1e000
X2F = 0x1c000
XC = 0x120000
X2 = 0x20000
XA = 0x60000
XB = 0x200000
XD = 0xc0000
XE = 0x100000
XG = 0x130000
X0C = 0x1a000
DIAG = 0x180000
WS_BYTES = 0x300000
L_P, L_OP, L_Q, L_FLAG = 0x20000, 0x20800, 0x21000, 0x21100
L_ST, L_U = 0x0, 0x1000
L_MS, L_ML = L_FLAG + 64, L_FLAG + 128
LDS_BYTES = 0x21200
NM = 43
TAGX = hex(sum(1 << (a*4+b*2+c) for a in (0,1) for b in (0,1) for c in (0,1) if (a ^ b) | c))

class Cfg:
    depth = 8
    diag = False
    probe = None
    kpol = 'nt'
    vpol = 'nt'
    wpol = 'nt'
    ppol = ''
    sleep1 = 0
    sleep2 = 0
    sleep3 = 4
    sleep4 = 40
    prio = 3
    hint = 1
    hsleep = 3
    lsleep = 1
    pf = 'post'
    wq0 = 1
    dsched = (6, 12, 9)
    rot = 5
    npf = 8
    local = 1
    pipe = dict()
    psleep = dict()
    xcrep = 1
    xcline = 0
    nodpp = 0
    b0late = 1
    xcsleep = 0
    dnlate = 0
    xbrep = 0
    rwait = 1
    xbgrp = 0
    rsleep = 0
    dsleep = 0
    wob2 = 0
    epearly = 1
    ksplit = 0
    th = 0
    cpf = 1
    fakehalf = 0
    xdelay = 0
    gwait = 0
    tearly = 0
    pkand = 0
    acc2 = 0
    mlat = 0
    tlbw = 0
    gthr = 32
    gprobe = None
    dodd = None
    dvar = None
    outpol = ''
    uppol = 'nt'
    spin = 1 << 18

def v(a, n=1): return f'v{a}' if n == 1 else f'v[{a}:{a+n-1}]'
def s(a, n=1): return f's{a}' if n == 1 else f's[{a}:{a+n-1}]'

sB, sW = 2, 3
sKP, sVP = 4, 6
SRD_K, SRD_V, SRD_WS, SRD_A, SRD_B, SRD_C = 8, 12, 16, 20, 24, 28
sH, sJ, sX, sKK = 36, 37, 38, 39
sWSP = 40
sTAG, sIM, sR = 42, 43, 44
sT0, sT1, sT2 = 45, 46, 47
pWQ, pWO, pW1, pW3, pW2, pC, pWM, pX, pOUT = 48, 50, 54, 56, 58, 60, 62, 64, 66
sSPIN = 68
sO0, sO1, sO2, sO3 = 69, 70, 71, 72
sMASK = 74
sT1B = 35
sLOC = 73
sG = 76
sDIAG = 84
vL = 0
vT = 1
vM = 4

def gen(cfg=Cfg):
    P = Prog()
    D = cfg.depth
    stamps = {}
    def stamp(name):
        if cfg.diag and name in cfg.diag:
            grp = name.split('_')[0]
            same = [n for n in cfg.diag if n.split('_')[0] == grp]
            if name == 'start': i = 0
            elif grp == 'M': i = 8 - same.index(name)
            else: i = 1 + same.index(name)
            assert 0 <= i <= 8
            stamps[name] = i
            P(f's_memrealtime {s(sDIAG + 2*i, 2)}')
            if cfg.gprobe == name:
                assert i < 5
                P(f's_waitcnt lgkmcnt(0)\ns_mov_b32 s96, {s(sWSP)}\ns_mov_b32 s97, {s(sWSP+1)}\ns_mov_b32 s98, {hex(WS_BYTES)}\ns_mov_b32 s99, 0x20000')
                P(f's_lshl_b32 s100, {s(sB)}, 2\ns_and_b32 s101, {s(sW)}, 3\ns_add_u32 s100, s100, s101\ns_lshl_b32 s100, s100, 3\ns_add_u32 s100, s100, {hex(DIAG)}')
                P(f's_mov_b64 s[94:95], exec\ns_mov_b64 exec, 1\nv_mov_b32 v254, {s(sDIAG)}\nv_mov_b32 v255, {s(sDIAG+2*i)}\nv_mov_b32 v253, 0\nbuffer_store_dwordx2 v[254:255], v253, s[96:99], s100 offen sc1\ns_mov_b64 exec, s[94:95]')
    def srd(r, ptr, nbytes):
        P(f's_mov_b32 {s(r)}, {s(ptr)}\ns_mov_b32 {s(r+1)}, {s(ptr+1)}\ns_mov_b32 {s(r+2)}, {hex(nbytes)}\ns_mov_b32 {s(r+3)}, 0x20000')
    def S(r): return s(r, 4)
    def setexec(mask):
        lo, hi = mask & 0xffffffff, mask >> 32
        if mask == ALL: P('s_mov_b64 exec, -1')
        elif mask <= 64: P(f's_mov_b64 exec, {mask}')
        else: P(f's_mov_b32 exec_lo, {hex(lo)}\ns_mov_b32 exec_hi, {hex(hi)}')
    uid = [0]
    def lab(p):
        uid[0] += 1; return f'L_{p}{uid[0]}'
    def tagcheck_loop(issue, tagregs, name, sleep=0, after=None, nafter=0):
        top = lab(name)
        P(f's_mov_b32 {s(sSPIN)}, 0')
        P(f'{top}:')
        issue()
        if after: after()
        P(f's_add_u32 {s(sSPIN)}, {s(sSPIN)}, 1\ns_cmp_gt_u32 {s(sSPIN)}, {cfg.spin}\ns_cbranch_scc1 L_END')
        P(f's_waitcnt vmcnt({nafter if after else 0})')
        if len(tagregs) == 1:
            P(f'v_cmp_ne_u32 vcc, {s(sTAG)}, {v(tagregs[0])}')
        else:
            P(f'v_xor_b32 {v(vT)}, {s(sTAG)}, {v(tagregs[0])}\nv_xor_b32 {v(vT+1)}, {s(sTAG)}, {v(tagregs[1])}')
            for k, r in enumerate(tagregs[2:]):
                P(f'v_bitop3_b32 {v(vT + (k & 1))}, {v(r)}, {s(sTAG)}, {v(vT + (k & 1))} bitop3:{TAGX}')
            P(f'v_or_b32 {v(vT)}, {v(vT)}, {v(vT+1)}\nv_cmp_ne_u32 vcc, 0, {v(vT)}')
        if sleep:
            dn = lab(name + 'd')
            P(f's_cbranch_vccz {dn}\ns_sleep {sleep}\ns_branch {top}\n{dn}:')
        else: P(f's_cbranch_vccnz {top}')
    def poll(name, issue, nl, base, stride, tagoff, done, issued=False):
        NS = cfg.pipe.get(name, 1)
        top, join = lab(name), lab(name + 'j')
        ex = [lab(name + 'x') for _ in range(NS)]
        P(f's_mov_b32 {s(sSPIN)}, 0')
        for i in range(NS - 1): issue(base + i*stride)
        if issued:
            assert NS == 1
            sk = lab(name + 's'); P(f's_branch {sk}')
        P(f'{top}:')
        for i in range(NS):
            issue(base + ((i + NS - 1) % NS)*stride)
            if issued: P(f'{sk}:')
            if i == 0: P(f's_add_u32 {s(sSPIN)}, {s(sSPIN)}, 1\ns_cmp_gt_u32 {s(sSPIN)}, {cfg.spin}\ns_cbranch_scc1 L_END')
            P(f's_waitcnt vmcnt({(NS-1)*nl})')
            tr = [base + i*stride + t for t in tagoff]
            if len(tr) == 1:
                P(f'v_cmp_ne_u32 vcc, {s(sTAG)}, {v(tr[0])}')
            else:
                P(f'v_xor_b32 {v(vT)}, {s(sTAG)}, {v(tr[0])}\nv_xor_b32 {v(vT+1)}, {s(sTAG)}, {v(tr[1])}')
                for k, r in enumerate(tr[2:]):
                    P(f'v_bitop3_b32 {v(vT + (k & 1))}, {v(r)}, {s(sTAG)}, {v(vT + (k & 1))} bitop3:{TAGX}')
                P(f'v_or_b32 {v(vT)}, {v(vT)}, {v(vT+1)}\nv_cmp_ne_u32 vcc, 0, {v(vT)}')
            ps = cfg.psleep.get(name, 0)
            if ps:
                P(f's_cbranch_vccz {ex[i]}\ns_sleep {ps}')
                if i + 1 == NS: P(f's_branch {top}')
            else: P(f's_cbranch_vccz {ex[i]}' if i + 1 < NS else f's_cbranch_vccnz {top}')
        for i in reversed(range(NS)):
            P(f'{ex[i]}:')
            done(base + i*stride)
            if i > 0: P(f's_branch {join}')
        P(f'{join}:')
    def poll_groups(name, groups):
        top = lab(name)
        P(f's_mov_b32 {s(sSPIN)}, 0\ns_mov_b32 {s(sT0)}, {(1 << len(groups)) - 1}')
        P(f'{top}:')
        for g, (issue, tr) in enumerate(groups):
            sk = lab(name + 'i')
            P(f's_bitcmp1_b32 {s(sT0)}, {g}\ns_cbranch_scc0 {sk}')
            issue()
            P(f'{sk}:')
        P(f's_add_u32 {s(sSPIN)}, {s(sSPIN)}, 1\ns_cmp_gt_u32 {s(sSPIN)}, {cfg.spin}\ns_cbranch_scc1 L_END')
        P('s_waitcnt vmcnt(0)')
        for g, (issue, tr) in enumerate(groups):
            P(f'v_xor_b32 {v(vT + (g & 1))}, {s(sTAG)}, {v(tr[0])}')
            for r in tr[1:]: P(f'v_bitop3_b32 {v(vT + (g & 1))}, {v(r)}, {s(sTAG)}, {v(vT + (g & 1))} bitop3:{TAGX}')
            P(f'v_cmp_ne_u32 {s(sG+4+2*(g & 1),2)}, 0, {v(vT + (g & 1))}')
            P(f's_cmp_lg_u64 {s(sG+4+2*(g & 1),2)}, 0\ns_cselect_b32 {s(sT1)}, {1 << g}, 0')
            P(f's_or_b32 {s(sT0)}, {s(sT1)}, {s(sT0) if g else s(sT1)}')
        P(f's_cbranch_scc1 {top}')
    def publish_loc(d, vaddr, soff, mask=None, flag=sLOC):
        if not cfg.local: return publish(d, vaddr, soff, mask)
        far, j2 = lab('far'), lab('pb')
        if mask: setexec(mask)
        P(f's_cmp_eq_u32 {s(flag)}, 1\ns_cbranch_scc0 {far}')
        P(f'buffer_store_dwordx4 {v(d,4)}, {v(vaddr)}, {S(SRD_WS)}, {s(soff)} offen')
        P(f's_branch {j2}\n{far}:')
        publish(d, vaddr, soff)
        P(f'{j2}:')
        if mask: setexec(ALL)
    def afrag(dst, src, dpp=''):
        for w in range(4):
            if dpp: P(f'v_and_b32_dpp {v(dst+w)}, {v(src)}, {v(vM+w)} {dpp} row_mask:0xf bank_mask:0xf')
            else: P(f'v_and_b32 {v(dst+w)}, {v(src)}, {v(vM+w)}')
    def mfma(d, a, b, first=False):
        P(f'v_mfma_f32_16x16x32_bf16 {v(d,4)}, {v(a,4)}, {v(b,4)}, {"0" if first else v(d,4)}')
    vF, vHM, vPP = 244, 248, 250
    def afrag_pk(dst, src, dpp, k):
        pp = vPP + 2*(k & 1)
        if dpp: P(f'v_and_b32_dpp {v(pp)}, {v(src)}, {v(vHM)} {dpp} row_mask:0xf bank_mask:0xf')
        else: P(f'v_and_b32 {v(pp)}, {v(src)}, {v(vHM)}')
        return [f'v_pk_mul_f32 {v(dst+2*w,2)}, {v(pp,2)}, {v(vF+2*w,2)} op_sel_hi:[0,1]' for w in range(2)]
    def chain(d, n, bregs, srcs, areg):
        if cfg.pkand:
            pend = afrag_pk(areg, *srcs[0], 0)
            for x in pend: P(x)
            if n > 1: pend = afrag_pk(areg + 4, *srcs[1], 1)
            for i in range(n):
                if i + 1 < n:
                    for x in pend: P(x)
                if i + 2 < n: pend = afrag_pk(areg + 4*(i & 1) + 8*(1 - 2*0)*0 if False else areg + 4*(i & 1), *srcs[i+2], i) if False else None
                mfma(d, areg + 4*(i & 1), bregs[i], first=(i == 0))
                if i + 2 < n: pend = afrag_pk(areg + 4*(i & 1), *srcs[i+2], i)
            return
        if cfg.nodpp and srcs[0][1]:
            bc = 224
            for i in range(n): P(f'v_mov_b32_dpp {v(bc+i)}, {v(srcs[i][0])} {srcs[i][1]} row_mask:0xf bank_mask:0xf')
            srcs = [(bc+i, '') for i in range(n)]
        afrag(areg, *srcs[0])
        d2 = 32
        for i in range(n):
            if i + 1 < n: afrag(areg + 4*((i+1) & 1), *srcs[i+1])
            if cfg.acc2 and n >= 8: mfma(d2 if i & 1 else d, areg + 4*(i & 1), bregs[i], first=(i < 2))
            else: mfma(d, areg + 4*(i & 1), bregs[i], first=(i == 0))
        if cfg.acc2 and n >= 8:
            for r in range(0, 4, 2): P(f'v_pk_add_f32 {v(d+r,2)}, {v(d+r,2)}, {v(d2+r,2)}')
    def finish2(d):
        P(f'v_permlane32_swap_b32 {v(d)}, {v(d+2)}\nv_permlane32_swap_b32 {v(d+1)}, {v(d+3)}')
        P(f'v_add_f32_dpp {v(d)}, {v(d+2)}, {v(d)} row_ror:8 row_mask:0xf bank_mask:0xf')
        P(f'v_add_f32_dpp {v(d+1)}, {v(d+3)}, {v(d+1)} row_ror:8 row_mask:0xf bank_mask:0xf')
        P(f'v_mov_b32 {v(d+2)}, {s(sTAG)}')
    def finish1(d):
        P(f'v_permlane32_swap_b32 {v(d)}, {v(d+2)}\nv_permlane32_swap_b32 {v(d+1)}, {v(d+3)}')
        P(f'v_mov_b32 {v(d+2)}, {s(sTAG)}')
    def publish(d, vaddr, soff, mask=None):
        if mask: setexec(mask)
        P(f'buffer_store_dwordx4 {v(d,4)}, {v(vaddr)}, {S(SRD_WS)}, {s(soff)} offen sc1')
        if mask: setexec(ALL)
    M2SET = 0x00ff00ff00ff00ff
    def lohi(r):
        P(f'v_mov_b32 {v(r+2)}, {v(r)}\nv_mov_b32 {v(r+3)}, {v(r+1)}')
        for e in range(2): P(f'v_mov_b32_dpp {v(r+2+e)}, {v(r+e)} row_shl:4 row_mask:0xf bank_mask:0x5')
        for e in range(2): P(f'v_mov_b32_dpp {v(r+e)}, {v(r+e)} row_shr:4 row_mask:0xf bank_mask:0xa')
    def lohi_srcs(r):
        out = []
        for i in range(16):
            u = i >> 1; a = u & 3
            out.append((r + (2 if u >= 4 else 0) + (i & 1), f'quad_perm:[{a},{a},{a},{a}]'))
        return out
    def lds_wait(name, vaddr, n, dst, chk, sleep=0):
        top = lab(name)
        op = {1: 'ds_read_b32', 2: 'ds_read_b64', 4: 'ds_read_b128'}[n]
        P(f's_mov_b32 {s(sSPIN)}, 0')
        P(f'{top}:')
        P(f'{op} {v(dst,n)}, {v(vaddr)}')
        P(f's_add_u32 {s(sSPIN)}, {s(sSPIN)}, 1\ns_cmp_gt_u32 {s(sSPIN)}, {cfg.spin*8}\ns_cbranch_scc1 L_END')
        P('s_waitcnt lgkmcnt(0)')
        if len(chk) == 2:
            P(f'v_and_b32 {v(vT)}, {v(chk[0])}, {v(chk[1])}\nv_cmp_eq_u32 vcc, 0, {v(vT)}')
        else: P(f'v_cmp_eq_u32 vcc, 0, {v(chk[0])}')
        if sleep:
            done = lab(name + 'd')
            P(f's_cbranch_vccz {done}\ns_sleep {sleep}\ns_branch {top}\n{done}:')
        else: P(f's_cbranch_vccnz {top}')
    def hint_wait(name, soff):
        top = lab(name)
        P(f's_add_u32 {s(sMASK)}, {s(sWSP)}, {s(soff)}\ns_addc_u32 {s(sMASK+1)}, {s(sWSP+1)}, 0\ns_mov_b32 {s(sSPIN)}, 0')
        P(f'{top}:')
        P(f's_load_dwordx8 {s(sG,8)}, {s(sMASK,2)}, 0 glc')
        P(f's_add_u32 {s(sSPIN)}, {s(sSPIN)}, 1\ns_cmp_gt_u32 {s(sSPIN)}, {cfg.spin}\ns_cbranch_scc1 L_END')
        P('s_waitcnt lgkmcnt(0)')
        P(f's_xor_b32 {s(sG)}, {s(sG)}, {s(sTAG)}')
        for k in range(1, 8): P(f's_xor_b32 {s(sG+k)}, {s(sG+k)}, {s(sTAG)}\ns_or_b32 {s(sG)}, {s(sG)}, {s(sG+k)}')
        done = lab(name + 'd')
        P(f's_cbranch_scc0 {done}')
        if cfg.hsleep: P(f's_sleep {cfg.hsleep}')
        P(f's_branch {top}\n{done}:')
    def wave_reduce(op, regs):
        for mod in ('quad_perm:[1,0,3,2] row_mask:0xf', 'quad_perm:[2,3,0,1] row_mask:0xf', 'row_ror:4 row_mask:0xf', 'row_ror:8 row_mask:0xf',
                    'row_bcast:15 row_mask:0xa', 'row_bcast:31 row_mask:0xc'):
            for r in regs: P(f'{op}_dpp {v(r)}, {v(r)}, {v(r)} {mod} bank_mask:0xf')
    def unpack(lo, hi, src):
        if lo == src: P(f'v_and_b32 {v(hi)}, 0xffff0000, {v(src)}\nv_lshlrev_b32 {v(lo)}, 16, {v(src)}')
        else: P(f'v_lshlrev_b32 {v(lo)}, 16, {v(src)}\nv_and_b32 {v(hi)}, 0xffff0000, {v(src)}')
    def silu_multi(rs, ts):
        for r, t in zip(rs, ts): P(f'v_mul_f32 {v(t)}, {NLOG2E}, {v(r)}')
        for r, t in zip(rs, ts): P(f'v_exp_f32 {v(t)}, {v(t)}')
        for r, t in zip(rs, ts): P(f'v_add_f32 {v(t)}, 1.0, {v(t)}')
        for r, t in zip(rs, ts): P(f'v_rcp_f32 {v(t)}, {v(t)}')
        for r, t in zip(rs, ts): P(f'v_mul_f32 {v(r)}, {v(r)}, {v(t)}')
    def rnd(r): P(f'v_cvt_pk_bf16_f32 {v(r)}, {v(r)}, {v(r)}\nv_and_b32 {v(r)}, 0xffff0000, {v(r)}')

    vMA, vMB, vMC, vPUB = 16, 17, 18, 19
    vMT, vD0, vAA, vS4 = 64, 36, 52, 40
    def modtile_issue(sRB, sCOL):
        srd(SRD_A, pC, 1024); srd(SRD_B, pWM, 512*6144)
        P(f's_lshl_b32 {s(sO1)}, {s(sRB)}, 8')
        P(f'buffer_load_dword {v(vMC)}, {v(vMA)}, {S(SRD_A)}, {s(sO1)} offen')
        P(f's_mul_i32 {s(sO1)}, {s(sRB)}, {128*6144}\ns_add_u32 {s(sO1)}, {s(sO1)}, {s(sCOL)}')
        for i in range(16):
            P(f'buffer_load_dwordx4 {v(vMT+4*i,4)}, {v(vMB)}, {S(SRD_B)}, {s(sO1)} offen {cfg.wpol}')
            if i < 15: P(f's_add_u32 {s(sO1)}, {s(sO1)}, 6144')
    def modtile_compute(nafter, soff):
        P(f's_waitcnt vmcnt({16+nafter})')
        unpack(vS4, vS4+1, vMC)
        silu_multi([vS4, vS4+1], [vS4+2, vS4+3])
        for e in range(2): P(f'v_cvt_pk_bf16_f32 {v(vS4+e)}, {v(vS4+e)}, {v(vS4+e)}')
        lohi(vS4)
        P(f's_waitcnt vmcnt({nafter})')
        chain(vD0, 16, [vMT+4*i for i in range(16)], lohi_srcs(vS4), vAA)
        finish2(vD0)
        publish(vD0, vPUB, soff, M2SET)

    P(f's_cmp_ge_u32 {s(sB)}, 256\ns_cbranch_scc1 L_END')
    if cfg.diag:
        for i in range(9): P(f's_mov_b32 {s(sDIAG+2*i)}, 0')
    stamp('start')
    P(f's_load_dwordx4 {s(sKP,4)}, s[0:1], 8')
    P(f's_load_dwordx16 {s(pWQ,16)}, s[0:1], 24')
    P(f's_load_dwordx2 {s(sWSP,2)}, s[0:1], 104')
    P(f's_load_dwordx2 {s(pX,2)}, s[0:1], 0')
    P(f's_load_dwordx2 {s(pOUT,2)}, s[0:1], 88')
    P(f'v_lshrrev_b32 {v(vT)}, 6, v0\nv_and_b32 {v(vL)}, 63, v0')
    P(f'v_readfirstlane_b32 {s(sW)}, {v(vT)}')
    P(f'v_lshlrev_b32 {v(vT)}, 2, {v(vL)}\nv_add_u32 {v(vT)}, {hex(L_FLAG)}, {v(vT)}\nv_mov_b32 {v(vT+1)}, 0')
    P(f'ds_write_b32 {v(vT)}, {v(vT+1)}')
    P(f's_and_b32 {s(sH)}, {s(sB)}, 31\ns_lshr_b32 {s(sJ)}, {s(sB)}, 5\ns_and_b32 {s(sX)}, {s(sB)}, 7\ns_lshr_b32 {s(sKK)}, {s(sB)}, 3')
    vKA, vVA = 8, 12
    P(f'v_lshrrev_b32 {v(vT)}, 4, {v(vL)}\nv_and_b32 {v(vT+1)}, 15, {v(vL)}')
    P(f'v_lshlrev_b32 {v(vVA)}, 10, {v(vT)}\nv_lshl_add_u32 {v(vVA)}, {v(vT+1)}, 4, {v(vVA)}')
    if cfg.ksplit:
        P(f'v_lshlrev_b32 {v(vT+2)}, 2, {v(vT)}\nv_xor_b32 {v(vT+1)}, {v(vT+1)}, {v(vT+2)}\nv_lshlrev_b32 {v(vT+1)}, 4, {v(vT+1)}\nv_lshl_add_u32 {v(vKA)}, {v(vT)}, 10, {v(vT+1)}')
        for i in range(1, 4): P(f'v_xor_b32 {v(vKA+i)}, {16*i}, {v(vKA)}')
    else:
        P(f'v_xor_b32 {v(vT+1)}, {v(vT+1)}, {v(vT)}\nv_lshlrev_b32 {v(vT+1)}, 4, {v(vT+1)}\nv_lshl_add_u32 {v(vKA)}, {v(vT)}, 8, {v(vT+1)}')
        for i in range(1, 4): P(f'v_xor_b32 {v(vKA+i)}, {64*i}, {v(vKA)}')
    P(f's_lshl_b32 {s(sO0)}, {s(sH)}, 20\ns_lshl_b32 {s(sO3)}, {s(sJ)}, 2\ns_add_u32 {s(sO3)}, {s(sO3)}, {s(sW)}\ns_lshl_b32 {s(sO3)}, {s(sO3)}, 12')
    P(f'v_lshlrev_b32 {v(vMA)}, 2, {v(vL)}\nv_lshrrev_b32 {v(vT)}, 3, {v(vL)}\nv_mul_u32_u24 {v(vMB)}, {16*6144}, {v(vT)}\nv_and_b32 {v(vT+1)}, 7, {v(vL)}\nv_lshl_add_u32 {v(vMB)}, {v(vT+1)}, 4, {v(vMB)}')
    P(f'v_lshrrev_b32 {v(vT)}, 4, {v(vL)}\nv_lshlrev_b32 {v(vT)}, 7, {v(vT)}\nv_lshl_add_u32 {v(vPUB)}, {v(vT+1)}, 4, {v(vT)}')
    vXF, vXS, vL16, vWA, vXA = 28, 32, 60, 62, 33
    P(f'v_lshlrev_b32 {v(vL16)}, 4, {v(vL)}')
    P(f'v_bfe_u32 {v(vT)}, {v(vL)}, 4, 1\nv_lshrrev_b32 {v(vT+2)}, 5, {v(vL)}\nv_lshl_add_u32 {v(vT)}, {v(vT)}, 1, {v(vT+2)}')
    P(f'v_lshl_add_u32 {v(vXA)}, {v(vT+1)}, 2, {v(vT)}\nv_lshlrev_b32 {v(vXA)}, 2, {v(vXA)}\nv_lshlrev_b32 {v(vWA)}, 14, {v(vT)}')
    P(f'v_and_b32 {v(vT+1)}, 15, {v(vL)}\nv_lshl_add_u32 {v(vWA)}, {v(vT+1)}, 4, {v(vWA)}')
    if cfg.tearly == 1:
        P(f's_sub_u32 {s(sT2)}, {s(sKK)}, 16\ns_lshl_b32 {s(sT2)}, {s(sT2)}, 2\ns_add_u32 {s(sT2)}, {s(sT2)}, {s(sX)}\ns_lshr_b32 {s(sT1B)}, {s(sT2)}, 3\ns_and_b32 {s(sT2)}, {s(sT2)}, 7')
        P(f's_cmp_lt_u32 {s(sX)}, 4\ns_cselect_b32 {s(sT2)}, {s(sT2)}, 99\ns_cmp_ge_u32 {s(sKK)}, 16\ns_cselect_b32 {s(sT2)}, {s(sT2)}, 99')
    else:
        P(f's_sub_u32 {s(sT2)}, {s(sKK)}, 16\ns_mov_b32 {s(sT1B)}, {s(sX)}')
    P(f's_and_b32 {s(sT0)}, {s(sT2)}, 1\ns_lshl_b32 {s(sT0)}, {s(sT0)}, 10\ns_lshl_b32 {s(sT1)}, {s(sT1B)}, 7\ns_add_u32 {s(sT1)}, {s(sT1)}, {s(sT0)}\ns_lshr_b32 {s(sT0)}, {s(sT2)}, 1\ns_lshl_b32 {s(sO2)}, {s(sJ)}, 7')
    P('s_waitcnt lgkmcnt(0)')
    P(f's_cmp_eq_u32 {s(sW)}, 4\ns_cbranch_scc0 L_B0')
    if cfg.b0late: P('s_setprio 3')
    P(f's_cmp_lt_u32 {s(sT2)}, 8\ns_cbranch_scc0 L_XLD')
    modtile_issue(sT0, sT1)
    P('L_XLD:')
    srd(SRD_C, pX, 1024)
    P(f'buffer_load_dwordx4 {v(vXF,4)}, {v(vL16)}, {S(SRD_C)}, 0 offen')
    P(f'buffer_load_dword {v(vXS)}, {v(vXA)}, {S(SRD_C)}, {s(sO2)} offen')
    vWQ = 128
    def wq_issue():
        srd(SRD_C, pWQ, 4 << 20)
        P(f's_lshl_b32 {s(sO2)}, {s(sJ)}, 19\ns_lshl_b32 {s(sT0)}, {s(sH)}, 8\ns_add_u32 {s(sO2)}, {s(sO2)}, {s(sT0)}')
        for i in range(16):
            P(f'buffer_load_dwordx4 {v(vWQ+4*i,4)}, {v(vWA)}, {S(SRD_C)}, {s(sO2)} offen {cfg.wpol}')
            if i < 15: P(f's_add_u32 {s(sO2)}, {s(sO2)}, {8192 if (i & 1) == 0 else 8192*7}')
    if cfg.wq0: wq_issue()
    P('L_B0:')
    if not cfg.b0late: P('s_barrier')
    P(f's_cmp_ge_u32 {s(sW)}, 4\ns_cbranch_scc1 L_CW')

    srd(SRD_K, sKP, 32 << 20)
    sTL, sRS, sTL0 = sG, sG+1, sG+2
    P(f's_mul_i32 {s(sTL0)}, {s(sH)}, {cfg.th}\ns_and_b32 {s(sTL0)}, {s(sTL0)}, 7\ns_lshl_b32 {s(sTL0)}, {s(sTL0)}, 17')
    def firsttile():
        P(f's_mov_b32 {s(sTL)}, {s(sTL0)}\ns_mov_b32 {s(sRS)}, {s(sO3)}\ns_add_u32 {s(sO1)}, {s(sO0)}, {s(sTL)}\ns_add_u32 {s(sO1)}, {s(sO1)}, {s(sRS)}')
    def nexttile():
        P(f's_add_u32 {s(sTL)}, {s(sTL)}, 0x20000\ns_and_b32 {s(sTL)}, {s(sTL)}, 0xe0000\ns_add_u32 {s(sRS)}, {s(sRS)}, {cfg.rot << 12}\ns_and_b32 {s(sRS)}, {s(sRS)}, 0x1f000\ns_add_u32 {s(sO1)}, {s(sO0)}, {s(sTL)}\ns_add_u32 {s(sO1)}, {s(sO1)}, {s(sRS)}')
    firsttile()
    P(f's_lshl_b32 {s(sT0)}, {s(sW)}, 15\ns_mov_b32 m0, {s(sT0)}\ns_mov_b32 {s(sT1)}, 0')
    stamp('L_k0')
    vV = 128
    def stream(ds, sfx):
        DK = ds[0]
        def DV(idx): return ds[0] if idx < ds[1] else ds[2]
        P(f'L_KLOOP{sfx}:')
        for i in range(4):
            if cfg.ksplit and i: P(f's_add_u32 m0, {s(sT0)}, {768*i}')
            P(f's_waitcnt vmcnt({DK-1})')
            P(f'buffer_load_dwordx4 {v(vKA+i)}, {S(SRD_K)}, {s(sO1)} offen offset:{(256 if cfg.ksplit else 1024)*i} {cfg.kpol} lds')
        if cfg.b0late: P(f's_cmp_eq_u32 {s(sT1)}, 0\ns_cbranch_scc0 L_KL2{sfx}\ns_barrier\nL_KL2{sfx}:')
        nexttile()
        P(f's_add_u32 {s(sT0)}, {s(sT0)}, 4096\ns_mov_b32 m0, {s(sT0)}\ns_add_u32 {s(sT1)}, {s(sT1)}, 1\ns_cmp_lt_u32 {s(sT1)}, 8\ns_cbranch_scc1 L_KLOOP{sfx}')
        stamp('L_kissued')
        srd(SRD_V, sVP, 32 << 20)
        firsttile()
        P(f's_lshl_b32 {s(sT0)}, {s(sW)}, 3\ns_add_u32 {s(sT0)}, {s(sT0)}, {hex(L_FLAG)}\nv_mov_b32 {v(vT)}, {s(sT0)}\nv_mov_b32 {v(vT+1)}, 1')
        for idx in range(32):
            t, i = idx >> 2, idx & 3
            P(f's_waitcnt vmcnt({DV(idx)-1})')
            if idx == DK - 1:
                P(f'ds_write_b32 {v(vT)}, {v(vT+1)}')
                stamp('L_klanded')
            P(f'buffer_load_dwordx4 {v(vV+4*idx,4)}, {v(vVA)}, {S(SRD_V)}, {s(sO1)} offen offset:{256*i} {cfg.vpol}')
            if i == 3 and t < 7: nexttile()
    if cfg.dvar:
        P(f's_getreg_b32 {s(sT2)}, hwreg(HW_REG_XCC_ID, 0, 3)')
        P(f's_bitcmp1_b32 {s(sT2)}, 2\ns_cbranch_scc1 L_STH')
        P(f's_bitcmp1_b32 {s(sT2)}, 0\ns_cbranch_scc1 L_ST1')
        stream(cfg.dvar[0], 'a'); P('s_branch L_STD\nL_ST1:')
        stream(cfg.dvar[1], 'b'); P('s_branch L_STD\nL_STH:')
        P(f's_bitcmp1_b32 {s(sT2)}, 0\ns_cbranch_scc1 L_ST3')
        stream(cfg.dvar[2], 'c'); P('s_branch L_STD\nL_ST3:')
        stream(cfg.dvar[3], 'd')
        P('L_STD:')
    elif cfg.dodd:
        P(f's_getreg_b32 {s(sT2)}, hwreg(HW_REG_XCC_ID, 0, 1)\ns_cmp_eq_u32 {s(sT2)}, 1\ns_cbranch_scc1 L_STO')
        stream(cfg.dsched, 'a'); P('s_branch L_STD\nL_STO:')
        stream(cfg.dodd, 'b')
        P('L_STD:')
    else: stream(cfg.dsched, '')
    stamp('L_vissued')
    def masks(pk=False):
        P(f'v_and_b32 {v(vT)}, 1, {v(vL)}\nv_lshlrev_b32 {v(vT)}, 4, {v(vT)}\nv_mov_b32 {v(vT+1)}, 0xffff\nv_lshlrev_b32 {v(vT+1)}, {v(vT)}, {v(vT+1)}')
        P(f'v_bfe_u32 {v(vT)}, {v(vL)}, 1, 2')
        for w in range(4):
            P(f'v_cmp_eq_u32 vcc, {w}, {v(vT)}\nv_cndmask_b32 {v(vM+w)}, 0, {v(vT+1)}, vcc')
            if pk and cfg.pkand: P(f'v_cndmask_b32 {v(vF+w)}, 0, 1.0, vcc')
        if pk and cfg.pkand: P(f'v_mov_b32 {v(vHM)}, {v(vT+1)}')
    def common_setup():
        P(f's_load_dword {s(sTAG)}, {s(sWSP,2)}, 0')
        srd(SRD_WS, sWSP, WS_BYTES)
        masks(True)
    masks()
    vPA, vOA, vP, vA, vD = 13, 14, 16, 48, 56
    P(f'v_lshrrev_b32 {v(vT)}, 4, {v(vL)}\nv_lshlrev_b32 {v(vT)}, 4, {v(vT)}\ns_lshl_b32 {s(sT0)}, {s(sW)}, 9\ns_add_u32 {s(sT0)}, {s(sT0)}, {hex(L_P)}\nv_add_u32 {v(vPA)}, {s(sT0)}, {v(vT)}')
    P(f's_add_u32 {s(sT0)}, {s(sT0)}, {hex(L_OP - L_P)}\nv_lshlrev_b32 {v(vT)}, 3, {v(vL)}\nv_add_u32 {v(vOA)}, {s(sT0)}, {v(vT)}')
    P('s_waitcnt lgkmcnt(0)')
    P('s_barrier')
    stamp('L_b1')
    for t in range(8): P(f'ds_read_b128 {v(vP+4*t,4)}, {v(vPA)} offset:{64*t}')
    P('s_waitcnt lgkmcnt(7)')
    afrag(vA, vP)
    for idx in range(32):
        if idx + 1 < 32:
            if (idx + 1) % 4 == 0: P(f's_waitcnt lgkmcnt({7 - (idx+1)//4})')
            afrag(vA + 4*((idx+1) & 1), vP + idx + 1)
        P(f's_waitcnt vmcnt({31-idx})')
        mfma(vD, vA + 4*(idx & 1), vV + 4*idx, first=(idx == 0))
    stamp('L_pv')
    P(f'v_permlane32_swap_b32 {v(vD)}, {v(vD+2)}\nv_permlane32_swap_b32 {v(vD+1)}, {v(vD+3)}')
    P(f'ds_write_b64 {v(vOA)}, {v(vD,2)}')
    P('s_waitcnt lgkmcnt(0)')
    P('s_barrier')
    P('s_endpgm' if not cfg.diag else 's_branch L_END')

    P('L_CW:')
    if cfg.gprobe and cfg.gprobe[0] in 'MR':
        P(f's_waitcnt lgkmcnt(0)\ns_mov_b32 s96, {s(sWSP)}\ns_mov_b32 s97, {s(sWSP+1)}\ns_mov_b32 s98, {hex(WS_BYTES)}\ns_mov_b32 s99, 0x20000')
        P(f's_lshl_b32 s100, {s(sB)}, 2\ns_and_b32 s101, {s(sW)}, 3\ns_add_u32 s100, s100, s101\ns_lshl_b32 s100, s100, 3\ns_add_u32 s100, s100, {hex(DIAG)}')
        P(f's_mov_b64 exec, 1\nv_mov_b32 v254, {s(sDIAG)}\nv_mov_b32 v255, {s(sDIAG)}\nv_mov_b32 v253, 0\nbuffer_store_dwordx2 v[254:255], v253, s[96:99], s100 offen sc1\ns_mov_b64 exec, -1\ns_waitcnt vmcnt(0)')
    if cfg.b0late: P('s_barrier')
    if cfg.prio: P(f's_setprio {cfg.prio}')
    P(f's_cmp_eq_u32 {s(sW)}, 4\ns_cbranch_scc0 L_C123')
    vGA = 192
    common_setup()
    P('s_waitcnt lgkmcnt(0)')
    P(f's_add_u32 {s(sTAG)}, {s(sTAG)}, 1')
    if cfg.local:
        P(f's_getreg_b32 {s(sLOC)}, hwreg(HW_REG_XCC_ID, 0, 3)\ns_lshl_b32 {s(sT0)}, {s(sTAG)}, 3\ns_or_b32 {s(sLOC)}, {s(sLOC)}, {s(sT0)}')
        P(f's_lshl_b32 {s(sO3)}, {s(sH)}, 7\ns_add_u32 {s(sO3)}, {s(sO3)}, {hex(X0)}\ns_lshl_b32 {s(sT0)}, {s(sJ)}, 2\ns_add_u32 {s(sT0)}, {s(sT0)}, {s(sO3)}\nv_mov_b32 {v(vT)}, {s(sT0)}\nv_mov_b32 {v(vT+1)}, {s(sLOC)}')
        P(f's_lshl_b32 {s(sR)}, {s(sX)}, 3\ns_lshr_b32 {s(sT0)}, {s(sKK)}, 2\ns_add_u32 {s(sR)}, {s(sR)}, {s(sT0)}\ns_lshl_b32 {s(sR)}, {s(sR)}, 7\ns_add_u32 {s(sR)}, {s(sR)}, {hex(X0B)}')
        P(f's_and_b32 {s(sT0)}, {s(sKK)}, 3\ns_lshl_b32 {s(sT0)}, {s(sT0)}, 2\ns_add_u32 {s(sT0)}, {s(sT0)}, {s(sR)}\nv_writelane_b32 {v(vT)}, {s(sT0)}, 1')
        P(f's_lshl_b32 {s(sT0)}, {s(sX)}, 7\ns_lshl_b32 {s(sO2)}, {s(sKK)}, 2\ns_add_u32 {s(sT0)}, {s(sT0)}, {s(sO2)}\ns_add_u32 {s(sT0)}, {s(sT0)}, {hex(X0C)}\nv_writelane_b32 {v(vT)}, {s(sT0)}, 2')
        if cfg.mlat:
            P(f's_lshl_b32 {s(sT0)}, {s(sH)}, 7\ns_lshl_b32 {s(sO2)}, {s(sJ)}, 3\ns_add_u32 {s(sT0)}, {s(sT0)}, {s(sO2)}\ns_add_u32 {s(sT0)}, {s(sT0)}, {hex(X3)}\nv_writelane_b32 {v(vT)}, {s(sT0)}, 3')
            P(f's_add_u32 {s(sT0)}, {s(sT0)}, 4\nv_writelane_b32 {v(vT)}, {s(sT0)}, 4\nv_writelane_b32 {v(vT+1)}, 0, 3\nv_writelane_b32 {v(vT+1)}, 0, 4')
        setexec(31 if cfg.mlat else 7)
        P(f'buffer_store_dword {v(vT+1)}, {v(vT)}, {S(SRD_WS)}, 0 offen sc1')
        setexec(ALL)
    P(f's_cmp_lt_u32 {s(sT2)}, 8\ns_cbranch_scc0 L_NOT1')
    P(f's_lshl_b32 {s(sO2)}, {s(sT1B)}, 3\ns_add_u32 {s(sO2)}, {s(sO2)}, {s(sT2)}\ns_lshl_b32 {s(sO2)}, {s(sO2)}, 9\ns_add_u32 {s(sO2)}, {s(sO2)}, {hex(X1)}')
    modtile_compute((18 if cfg.wq0 else 2) + cfg.local, sO2)
    if cfg.hint:
        P(f's_lshl_b32 {s(sO2)}, {s(sT1B)}, 9\ns_lshl_b32 {s(sT0)}, {s(sT2)}, 2\ns_add_u32 {s(sO2)}, {s(sO2)}, {s(sT0)}\ns_add_u32 {s(sO2)}, {s(sO2)}, {hex(X1F)}\nv_lshlrev_b32 {v(vT)}, 7, {v(vL)}')
        setexec(0xf)
        P(f'buffer_store_dword {v(vD0+2)}, {v(vT)}, {S(SRD_WS)}, {s(sO2)} offen sc1')
        setexec(ALL)
    stamp('C0_x1pub')
    if not cfg.wq0: wq_issue()
    P('s_branch L_T1D')
    P('L_NOT1:')
    if not cfg.wq0: wq_issue()
    P('L_T1D:')
    vx = 64
    P(f's_waitcnt vmcnt({16 + (cfg.local if cfg.wq0 else 0)})')
    for k in range(4): unpack(vx+2*k, vx+2*k+1, vXF+k)
    P(f'v_add_f32 {v(20)}, {v(vx)}, {v(vx+1)}\nv_add_f32 {v(21)}, {v(vx+2)}, {v(vx+3)}\nv_add_f32 {v(22)}, {v(vx+4)}, {v(vx+5)}\nv_add_f32 {v(23)}, {v(vx+6)}, {v(vx+7)}')
    P(f'v_add_f32 {v(20)}, {v(20)}, {v(21)}\nv_add_f32 {v(22)}, {v(22)}, {v(23)}\nv_add_f32 {v(20)}, {v(20)}, {v(22)}')
    wave_reduce('v_add_f32', [20])
    P(f'v_mul_f32 {v(20)}, {R512}, {v(20)}\nv_readlane_b32 {s(sT0)}, {v(20)}, 63')
    for k in range(8): P(f'v_subrev_f32 {v(vx+k)}, {s(sT0)}, {v(vx+k)}')
    P(f'v_mul_f32 {v(21)}, {v(vx)}, {v(vx)}')
    for k in range(1, 8): P(f'v_fmac_f32 {v(21)}, {v(vx+k)}, {v(vx+k)}')
    wave_reduce('v_add_f32', [21])
    P(f'v_mul_f32 {v(21)}, {R512}, {v(21)}')
    P(f'v_cvt_pk_bf16_f32 {v(22)}, {v(20)}, {v(21)}')
    P(f'v_and_b32 {v(21)}, 0xffff0000, {v(22)}\nv_lshlrev_b32 {v(20)}, 16, {v(22)}\nv_add_f32 {v(21)}, {EPS}, {v(21)}')
    rnd(21); P(f'v_sqrt_f32 {v(21)}, {v(21)}'); rnd(21); P(f'v_rcp_f32 {v(22)}, {v(21)}')
    P(f'v_readlane_b32 {s(sT0)}, {v(20)}, 63\nv_readlane_b32 {s(sT1)}, {v(21)}, 63\nv_readlane_b32 {s(sT2)}, {v(22)}, 63')
    vLN = 24
    unpack(vLN, vLN+1, vXS)
    for e in range(2): P(f'v_subrev_f32 {v(vLN+e)}, {s(sT0)}, {v(vLN+e)}')
    P(f'v_cvt_pk_bf16_f32 {v(20)}, {v(vLN)}, {v(vLN+1)}'); unpack(vLN, vLN+1, 20)
    for e in range(2): P(f'v_mul_f32 {v(20+e)}, {s(sT2)}, {v(vLN+e)}')
    for e in range(2): P(f'v_fma_f32 {v(vLN+e)}, -{v(20+e)}, {s(sT1)}, {v(vLN+e)}')
    for e in range(2): P(f'v_fma_f32 {v(vLN+e)}, {v(vLN+e)}, {s(sT2)}, {v(20+e)}')
    P(f'v_cvt_pk_bf16_f32 {v(20)}, {v(vLN)}, {v(vLN+1)}'); unpack(vLN, vLN+1, 20)
    P(f'v_bfe_u32 {v(vT)}, {v(vL)}, 3, 1\nv_lshlrev_b32 {v(vT)}, 9, {v(vT)}\nv_add_u32 {v(26)}, {v(vPUB)}, {v(vT)}')
    P(f's_lshl_b32 {s(sO0)}, {s(sJ)}, 12\ns_add_u32 {s(sO0)}, {s(sO0)}, {hex(X1)}')
    if cfg.hint:
        P(f's_lshl_b32 {s(sT0)}, {s(sJ)}, 2\ns_and_b32 {s(sT1)}, {s(sH)}, 3\ns_add_u32 {s(sT0)}, {s(sT0)}, {s(sT1)}\ns_lshl_b32 {s(sT0)}, {s(sT0)}, 7\ns_add_u32 {s(sT0)}, {s(sT0)}, {hex(X1F)}')
        hint_wait('h1h', sT0)
    else: P('s_waitcnt vmcnt(0)')
    if cfg.local:
        P(f's_add_u32 {s(sMASK)}, {s(sWSP)}, {s(sO3)}\ns_addc_u32 {s(sMASK+1)}, {s(sWSP+1)}, 0')
        P(f's_load_dwordx8 {s(sG,8)}, {s(sMASK,2)}, 0 glc')
        P(f's_load_dwordx4 s[8:11], {s(sWSP,2)}, {s(sR)} glc')
    stamp('C0_wq')
    if cfg.sleep1: P(f's_sleep {cfg.sleep1}')
    def issue():
        for k in range(4): P(f'buffer_load_dwordx4 {v(vGA+4*k,4)}, {v(26)}, {S(SRD_WS)}, {s(sO0)} offen offset:{1024*k} sc1')
    tagcheck_loop(issue, [vGA+4*k+2 for k in range(4)], 'h1')
    stamp('C0_h1')
    if cfg.local:
        P('s_waitcnt lgkmcnt(0)')
        P(f's_xor_b32 {s(sG)}, {s(sG)}, {s(sLOC)}')
        for k in range(1, 8): P(f's_xor_b32 {s(sG+k)}, {s(sG+k)}, {s(sLOC)}\ns_or_b32 {s(sG)}, {s(sG)}, {s(sG+k)}')
        P(f's_cselect_b32 {s(sT0)}, 0, 1')
        P(f's_xor_b32 s8, s8, {s(sLOC)}')
        for k in range(1, 4): P(f's_xor_b32 {s(8+k)}, {s(8+k)}, {s(sLOC)}\ns_or_b32 s8, s8, {s(8+k)}')
        P(f's_cselect_b32 {s(sR)}, 0, 1\ns_mov_b32 {s(sLOC)}, {s(sT0)}')
    b = vGA
    for e in range(2): P(f'v_add_f32 {v(b+e)}, {v(b+e)}, {v(b+4+e)}\nv_add_f32 {v(b+8+e)}, {v(b+8+e)}, {v(b+12+e)}')
    for e in range(2): P(f'v_add_f32 {v(b+e)}, {v(b+e)}, {v(b+8+e)}')
    P(f'v_cvt_pk_bf16_f32 {v(b+4)}, {v(b)}, {v(b+1)}\nv_mov_b32 {v(b+5)}, {v(b+4)}')
    P(f'v_mov_b32_dpp {v(b+4)}, {v(b+5)} row_ror:8 row_mask:0xf bank_mask:0xc')
    P(f'v_mov_b32_dpp {v(b+5)}, {v(b+5)} row_ror:8 row_mask:0xf bank_mask:0x3')
    unpack(b+8, b+9, b+4); unpack(b+6, b+7, b+5)
    P(f'v_add_f32 {v(b+6)}, 1.0, {v(b+6)}\nv_add_f32 {v(b+7)}, 1.0, {v(b+7)}\nv_cvt_pk_bf16_f32 {v(b+5)}, {v(b+6)}, {v(b+7)}')
    unpack(b+6, b+7, b+5)
    P(f'v_mul_f32 {v(b+6)}, {v(b+6)}, {v(vLN)}\nv_mul_f32 {v(b+7)}, {v(b+7)}, {v(vLN+1)}\nv_cvt_pk_bf16_f32 {v(b+5)}, {v(b+6)}, {v(b+7)}')
    unpack(b+6, b+7, b+5)
    P(f'v_add_f32 {v(b+6)}, {v(b+6)}, {v(b+8)}\nv_add_f32 {v(b+7)}, {v(b+7)}, {v(b+9)}')
    vH = 20
    P(f'v_cvt_pk_bf16_f32 {v(vH)}, {v(b+6)}, {v(b+6)}\nv_cvt_pk_bf16_f32 {v(vH+1)}, {v(b+7)}, {v(b+7)}')
    P(f's_lshl_b32 {s(sO1)}, {s(sH)}, 13\ns_add_u32 {s(sO1)}, {s(sO1)}, {hex(X2)}\ns_lshl_b32 {s(sO0)}, {s(sJ)}, 10\ns_add_u32 {s(sO0)}, {s(sO0)}, {s(sO1)}\ns_add_u32 {s(sO2)}, {s(sO1)}, 4096')
    chain(vD0, 16, [vWQ+4*i for i in range(16)], [(vH + (i & 1), f'row_newbcast:{i >> 1}') for i in range(16)], vAA)
    finish1(vD0)
    publish_loc(vD0, vL16, sO0)
    if cfg.hint:
        P(f's_lshl_b32 {s(sO3)}, {s(sH)}, 7\ns_add_u32 {s(sO3)}, {s(sO3)}, {hex(X2F)}\nv_mov_b32 {v(vT)}, 0\ns_lshl_b32 {s(sT0)}, {s(sJ)}, 2\ns_add_u32 {s(sT0)}, {s(sT0)}, {s(sO3)}')
        setexec(1)
        P(f'buffer_store_dword {v(vD0+2)}, {v(vT)}, {S(SRD_WS)}, {s(sT0)} offen sc1')
        setexec(ALL)
    stamp('C0_x2pub')
    P(f'v_bfe_u32 {v(vT)}, {v(vL)}, 4, 1\nv_lshrrev_b32 {v(vT+1)}, 5, {v(vL)}\nv_lshl_add_u32 {v(vT)}, {v(vT)}, 1, {v(vT+1)}\nv_and_b32 {v(vT+1)}, 15, {v(vL)}\nv_lshl_add_u32 {v(vT)}, {v(vT+1)}, 2, {v(vT)}')
    P(f'v_lshlrev_b32 {v(vT)}, 2, {v(vT)}\nv_add_u32 {v(26)}, {hex(L_Q)}, {v(vT)}')
    P(f'v_and_b32 {v(27)}, 3, {v(vL)}\nv_lshlrev_b32 {v(27)}, 3, {v(27)}\nv_add_u32 {v(27)}, {hex(L_FLAG + 4)}, {v(27)}\nv_mov_b32 {v(25)}, 1')
    if cfg.hint: hint_wait('qh', sO3)
    stamp('C0_qh')
    if cfg.sleep2: P(f's_sleep {cfg.sleep2}')
    def gather8(base_lo, base_hi):
        def issue():
            for k in range(8):
                P(f'buffer_load_dwordx4 {v(vGA+4*k,4)}, {v(vL16)}, {S(SRD_WS)}, {s(base_lo if k < 4 else base_hi)} offen offset:{1024*(k & 3)} sc1')
        return issue
    def sum8():
        for a, b2 in ((0, 1), (2, 3), (4, 5), (6, 7), (0, 2), (4, 6), (0, 4)):
            for e in (0, 1): P(f'v_add_f32 {v(vGA+4*a+e)}, {v(vGA+4*a+e)}, {v(vGA+4*b2+e)}')
    tagcheck_loop(gather8(sO1, sO2), [vGA+4*k+2 for k in range(8)], 'q')
    stamp('C0_q')
    sum8()
    P(f'v_cvt_pk_bf16_f32 {v(vT)}, {v(vGA)}, {v(vGA+1)}')
    P(f'ds_write_b32 {v(26)}, {v(vT)}')
    P(f'ds_write_b32 {v(27)}, {v(25)}')
    vg, vXv, vGAv, vGBv, vU16, vDA, vXC, vL16r, vBP, sJJ, sP, sB4, sD = 64, 12, 13, 14, 15, 17, 20, 16, 18, sG, 4, 12, 8
    def red_setup():
        P(f's_sub_u32 {s(sT0)}, {s(sKK)}, 8')
        P(f's_mov_b32 {s(sJJ)}, {s(sT0)}\ns_lshl_b32 {s(sR)}, {s(sX)}, 3\ns_add_u32 {s(sR)}, {s(sR)}, {s(sT0)}')
        if cfg.local:
            P(f's_lshl_b32 {s(sT1)}, {s(sX)}, 7\ns_add_u32 {s(sT1)}, {s(sT1)}, {hex(X0C)}\ns_add_u32 {s(sMASK)}, {s(sWSP)}, {s(sT1)}\ns_addc_u32 {s(sMASK+1)}, {s(sWSP+1)}, 0')
            P(f's_load_dwordx16 s[4:19], {s(sMASK,2)}, 0 glc\ns_load_dwordx16 s[20:35], {s(sMASK,2)}, 64 glc')
            P(f's_getreg_b32 {s(sLOC)}, hwreg(HW_REG_XCC_ID, 0, 3)\ns_lshl_b32 {s(sT1)}, {s(sTAG)}, 3\ns_or_b32 {s(sLOC)}, {s(sLOC)}, {s(sT1)}')
        P(f'v_lshlrev_b32 {v(vL16r)}, 4, {v(vL)}\nv_and_b32 {v(vU16)}, 3, {v(vL)}\nv_lshlrev_b32 {v(vU16)}, 4, {v(vU16)}')
        P(f'v_and_b32 {v(vT)}, 7, {v(vL)}\nv_lshlrev_b32 {v(vT)}, 4, {v(vT)}\nv_bfe_u32 {v(vT+1)}, {v(vL)}, 3, 1\nv_lshl_add_u32 {v(vT)}, {v(vT+1)}, 3, {v(vT)}\nv_bfe_u32 {v(vT+1)}, {v(vL)}, 4, 1\nv_lshl_add_u32 {v(vT)}, {v(vT+1)}, 2, {v(vT)}\nv_lshrrev_b32 {v(vT+1)}, 5, {v(vL)}\nv_lshl_add_u32 {v(vT+2)}, {v(vT+1)}, 1, {v(vT)}')
        P(f'v_bfe_u32 {v(vT)}, {v(vL)}, 4, 1\nv_lshlrev_b32 {v(vT)}, 7, {v(vT)}\nv_lshrrev_b32 {v(vT+1)}, 2, {v(vU16)}\nv_add_u32 {v(vBP)}, {v(vT)}, {v(vT+1)}\ns_lshl_b32 {s(sT1)}, {s(sX)}, 4\nv_add_u32 {v(vBP)}, {s(sT1)}, {v(vBP)}')
        P(f'v_lshrrev_b32 {v(vT)}, 2, {v(vL)}\nv_lshl_add_u32 {v(vDA)}, {v(vT)}, 12, {v(vU16)}')
        if cfg.local:
            P('s_waitcnt lgkmcnt(0)')
            P(f's_xor_b32 s4, s4, {s(sLOC)}')
            for k in range(5, 36): P(f's_xor_b32 {s(k)}, {s(k)}, {s(sLOC)}\ns_or_b32 s4, s4, {s(k)}')
            P(f's_cselect_b32 {s(sLOC)}, 0, 1')
            srd(SRD_WS, sWSP, WS_BYTES)
        srd(SRD_A, pX, 1024); srd(SRD_B, pOUT, 1024)
        P(f's_lshl_b32 {s(sT1)}, {s(sJJ)}, 7')
        P(f'buffer_load_ushort {v(vXv)}, {v(vT+2)}, {S(SRD_A)}, {s(sT1)} offen')
        P(f's_and_b32 {s(sT2)}, {s(sX)}, 1\ns_lshl_b32 {s(sT2)}, {s(sT2)}, 6\ns_add_u32 {s(sT1)}, {s(sT1)}, {s(sT2)}\ns_and_b32 {s(sT2)}, {s(sX)}, 2\ns_lshl_b32 {s(sT2)}, {s(sT2)}, 2\ns_add_u32 {s(sT1)}, {s(sT1)}, {s(sT2)}\ns_and_b32 {s(sT2)}, {s(sX)}, 4\ns_add_u32 {s(sG+2)}, {s(sT1)}, {s(sT2)}')
        for p_ in range(4): P(f's_lshl_b32 {s(sP+p_)}, {s(sJJ)}, 11\ns_add_u32 {s(sP+p_)}, {s(sP+p_)}, {hex(X4 + p_*16384)}')
        P(f's_lshl_b32 {s(sO0)}, {s(sJJ)}, 14\ns_add_u32 {s(sO0)}, {s(sO0)}, {hex(XB)}')
        if cfg.xbrep: P(f's_lshl_b32 {s(sT1)}, {s(sX)}, 17\ns_add_u32 {s(sO0)}, {s(sO0)}, {s(sT1)}')
        for k in range(4): P(f's_add_u32 {s(sB4+k)}, {s(sO0)}, {4096*k}')
        P(f's_lshl_b32 {s(sO3)}, {s(sX)}, 12\ns_lshl_b32 {s(sT1)}, {s(sJJ)}, 9\ns_add_u32 {s(sO3)}, {s(sO3)}, {s(sT1)}\ns_add_u32 {s(sO3)}, {s(sO3)}, {hex(XC)}')
        P(f's_lshr_b32 {s(sO2)}, {s(sJJ)}, 1\ns_lshl_b32 {s(sO2)}, {s(sO2)}, 10\ns_and_b32 {s(sT1)}, {s(sJJ)}, 1\ns_lshl_b32 {s(sT1)}, {s(sT1)}, 7\ns_add_u32 {s(sO2)}, {s(sO2)}, {s(sT1)}')
        P(f's_and_b32 {s(sT1)}, {s(sX)}, 1\ns_lshl_b32 {s(sT1)}, {s(sT1)}, 6\ns_add_u32 {s(sO2)}, {s(sO2)}, {s(sT1)}\ns_lshr_b32 {s(sT1)}, {s(sX)}, 1\ns_lshl_b32 {s(sT1)}, {s(sT1)}, 8\ns_add_u32 {s(sO2)}, {s(sO2)}, {s(sT1)}\ns_add_u32 {s(sO2)}, {s(sO2)}, {hex(XD)}')
        for k in range(3): P(f's_add_u32 {s(sD+k)}, {s(sO2)}, {hex(65536*k)}')
        for i in range(cfg.pipe.get('xd', 1)):
            for k in range(3): P(f'v_mov_b32 {v(192+12*i+8+k)}, {s(sTAG) if k == 2 else 0}')
    def x4_issue():
        for k in range(8): P(f'buffer_load_dwordx4 {v(vg+4*k,4)}, {v(vL16r)}, {S(SRD_WS)}, {s(sP + (k >> 1))} offen offset:{1024*(k & 1)} sc1')
    P('L_QKP:')
    vKR, vQ, vKB, vDQ, vS2, vE, vML = 8, 128, 144, 28, 208, 210, 216
    sM2 = sG
    P(f's_sub_u32 {s(sT2)}, {s(sW)}, 4\ns_lshl_b32 {s(sT0)}, {s(sT2)}, 3\ns_add_u32 {s(sT0)}, {s(sT0)}, {hex(L_FLAG)}\nv_mov_b32 {v(vT+2)}, {s(sT0)}')
    P(f'v_and_b32 {v(vT)}, 15, {v(vL)}\nv_lshrrev_b32 {v(vT+1)}, 4, {v(vL)}\nv_lshlrev_b32 {v(26)}, 4, {v(vT+1)}\nv_xor_b32 {v(vT+1)}, {v(vT+1)}, {v(vT)}\nv_lshlrev_b32 {v(vT+1)}, 4, {v(vT+1)}')
    if cfg.ksplit:
        P(f'v_and_b32 {v(vKR)}, 3, {v(vL)}\nv_lshlrev_b32 {v(vKR)}, 10, {v(vKR)}\nv_lshrrev_b32 {v(vT)}, 2, {v(vT)}\nv_lshl_add_u32 {v(vKR)}, {v(vT)}, 8, {v(vKR)}\nv_add_u32 {v(vKR)}, {v(vKR)}, {v(vT+1)}')
    else: P(f'v_lshl_add_u32 {v(vKR)}, {v(vT)}, 8, {v(vT+1)}')
    P(f's_lshl_b32 {s(sT0)}, {s(sT2)}, 15\nv_add_u32 {v(vKR)}, {s(sT0)}, {v(vKR)}')
    for q in range(1, 4): P(f'v_xor_b32 {v(vKR+q)}, {64*q}, {v(vKR)}')
    P(f'v_and_b32 {v(27)}, 7, {v(vL)}\nv_lshl_add_u32 {v(27)}, {v(27)}, 6, {v(26)}\nv_bfe_u32 {v(vT)}, {v(vL)}, 3, 1\nv_lshl_add_u32 {v(27)}, {v(vT)}, 3, {v(27)}')
    P(f's_lshl_b32 {s(sT0)}, {s(sT2)}, 9\ns_add_u32 {s(sT0)}, {s(sT0)}, {hex(L_P)}\nv_add_u32 {v(27)}, {s(sT0)}, {v(27)}\nv_add_u32 {v(26)}, {hex(L_Q)}, {v(26)}')
    P(f's_lshl_b32 {s(sT0)}, {s(sT2)}, 4\ns_add_u32 {s(sT0)}, {s(sT0)}, {hex(L_MS)}\nv_mov_b32 {v(25)}, {s(sT0)}\nv_mov_b32 {v(vML+2)}, 1\nv_mov_b32 {v(vML+3)}, 1')
    P(f's_mov_b32 {s(sMASK)}, 0x00010001\ns_mov_b32 {s(sMASK+1)}, 0x00010001\ns_mov_b32 {s(sM2)}, 0x01000100\ns_mov_b32 {s(sM2+1)}, 0x01000100')
    lds_wait('kq', vT+2, 2, 28, [28, 29], cfg.lsleep)
    stamp('C0_kready')
    for q in range(4): P(f'ds_read_b128 {v(vQ+4*q,4)}, {v(26)} offset:{64*q}')
    NB = 3; PD = NB - 1; NT = 8
    def kread(t, q): P(f'ds_read_b128 {v(vKB+16*(t % NB)+4*q,4)}, {v(vKR+q)} offset:{4096*t}')
    for t in range(PD):
        for q in range(4): kread(t, q)
    for t in range(NT + 1):
        u = t - 1
        for q in range(4):
            if t < NT:
                if q in (0, 2): P(f's_waitcnt lgkmcnt({min(4*PD - 2, 4*(NT - t) - 2 - q)})')
                mfma(vDQ + 4*(t & 1), vKB + 16*(t % NB) + 4*q, vQ + 4*q, first=(q == 0))
                if t + PD < NT: kread(t + PD, q)
            if t >= 1 and q >= 2:
                mk = sMASK if q == 2 else sM2
                for e in range(2):
                    P(f'v_cndmask_b32 {v(vS2+e)}, {v(vS2+e)}, {v(vDQ+4*(u & 1)+2*(q-2)+e)}, {s(mk,2)}')
        if t >= 1 and t < NT: P(f's_lshl_b64 {s(sMASK,2)}, {s(sMASK,2)}, 1\ns_lshl_b64 {s(sM2,2)}, {s(sM2,2)}, 1')
    stamp('C0_qk')
    P(f'v_cvt_pk_bf16_f32 {v(vE)}, {v(vS2)}, {v(vS2+1)}'); unpack(vS2, vS2+1, vE)
    for e in range(2): P(f'v_mul_f32 {v(vS2+e)}, {SCALE}, {v(vS2+e)}')
    P(f'v_cvt_pk_bf16_f32 {v(vE)}, {v(vS2)}, {v(vS2+1)}'); unpack(vS2, vS2+1, vE)
    P(f'v_max_f32 {v(vML)}, {v(vS2)}, {v(vS2+1)}')
    wave_reduce('v_max_f32', [vML])
    P(f'v_readlane_b32 {s(sT0)}, {v(vML)}, 63')
    for e in range(2): P(f'v_subrev_f32 {v(vE+e)}, {s(sT0)}, {v(vS2+e)}')
    for e in range(2): P(f'v_mul_f32 {v(vE+e)}, {LOG2E}, {v(vE+e)}')
    for e in range(2): P(f'v_exp_f32 {v(vE+e)}, {v(vE+e)}')
    P(f'v_add_f32 {v(vML+1)}, {v(vE)}, {v(vE+1)}')
    wave_reduce('v_add_f32', [vML+1])
    setexec(1 << 63)
    P(f'ds_write_b128 {v(25)}, {v(vML,4)}')
    setexec(ALL)
    P(f's_cmp_eq_u32 {s(sW)}, 4\ns_cbranch_scc1 L_C0ML')
    P(f's_cmp_eq_u32 {s(sW)}, 5\ns_cbranch_scc0 L_MLWAIT')
    if cfg.rwait == 4:
        P(f's_sub_u32 {s(sT0)}, {s(sKK)}, 8\ns_cmp_lt_u32 {s(sT0)}, 8\ns_cbranch_scc0 L_NORED')
        red_setup(); x4_issue()
        P('s_branch L_MLWAIT\nL_NORED:')
    P(f's_cmp_eq_u32 {s(sR)}, 99\ns_cbranch_scc0 L_MLWAIT')
    modtile_compute(0, sO2)
    P('L_MLWAIT:')
    P(f'v_mov_b32 {v(vT+2)}, {hex(L_ML)}')
    lds_wait('mlw', vT+2, 4, vML, [vML+2], cfg.lsleep)
    P('s_branch L_PCALC')
    P('L_C0ML:')
    P(f'v_and_b32 {v(vT+2)}, 3, {v(vL)}\nv_lshlrev_b32 {v(vT+2)}, 4, {v(vT+2)}\nv_add_u32 {v(vT+2)}, {hex(L_MS)}, {v(vT+2)}')
    P(f's_lshl_b32 {s(sO1)}, {s(sH)}, 7\ns_add_u32 {s(sO1)}, {s(sO1)}, {hex(X3)}\ns_lshl_b32 {s(sO0)}, {s(sJ)}, 4\ns_add_u32 {s(sO0)}, {s(sO0)}, {s(sO1)}')
    lds_wait('msw', vT+2, 4, 220, [222])
    P(f'v_max_f32_dpp {v(vML)}, {v(220)}, {v(220)} quad_perm:[1,0,3,2] row_mask:0xf bank_mask:0xf\nv_mov_b32 {v(vML+2)}, {s(sTAG)}\nv_mov_b32 {v(vML+3)}, {s(sTAG)}')
    P(f'v_max_f32_dpp {v(vML)}, {v(vML)}, {v(vML)} quad_perm:[2,3,0,1] row_mask:0xf bank_mask:0xf')
    P(f'v_sub_f32 {v(220)}, {v(220)}, {v(vML)}\nv_mul_f32 {v(220)}, {LOG2E}, {v(220)}\nv_exp_f32 {v(220)}, {v(220)}\nv_mov_b32 {v(vT)}, 0\nv_mul_f32 {v(vML+1)}, {v(220)}, {v(221)}')
    for mod in ('quad_perm:[1,0,3,2]', 'quad_perm:[2,3,0,1]'): P(f'v_add_f32_dpp {v(vML+1)}, {v(vML+1)}, {v(vML+1)} {mod} row_mask:0xf bank_mask:0xf')
    if cfg.mlat:
        P(f'v_readfirstlane_b32 s4, {v(vML)}\nv_readfirstlane_b32 s5, {v(vML+1)}')
        P(f's_add_u32 {s(sMASK)}, {s(sWSP)}, {s(sO1)}\ns_addc_u32 {s(sMASK+1)}, {s(sWSP+1)}, 0\ns_lshl_b32 {s(sT0)}, {s(sJ)}, 3\ns_mov_b32 {s(sSPIN)}, 0')
        P(f's_atomic_add_x2 s[4:5], {s(sMASK,2)}, {s(sT0)}')
        stamp('C0_x3pub')
        gl = [4 + 2*k for k in range(8)]
        P('s_waitcnt lgkmcnt(0)')
        P('L_MLW:')
        if cfg.sleep3: P(f's_sleep {cfg.sleep3}')
        P(f's_load_dwordx16 s[4:19], {s(sMASK,2)}, 0 glc')
        P(f's_add_u32 {s(sSPIN)}, {s(sSPIN)}, 1\ns_cmp_gt_u32 {s(sSPIN)}, {cfg.spin}\ns_cbranch_scc1 L_END')
        P('s_waitcnt lgkmcnt(0)')
        P(f's_min_u32 {s(sT0)}, s5, s7')
        for g in gl[2:]: P(f's_min_u32 {s(sT0)}, {s(sT0)}, {s(g+1)}')
        P(f's_cmp_eq_u32 {s(sT0)}, 0\ns_cbranch_scc1 L_MLW')
    else:
        publish(vML, vT, sO0, 1)
        stamp('C0_x3pub')
        P(f's_add_u32 {s(sMASK)}, {s(sWSP)}, {s(sO1)}\ns_addc_u32 {s(sMASK+1)}, {s(sWSP+1)}, 0\ns_mov_b32 {s(sSPIN)}, 0')
        gl = [4 + 4*k for k in range(8)]
        P('L_MLW:')
        if cfg.sleep3: P(f's_sleep {cfg.sleep3}')
        P(f's_load_dwordx16 s[4:19], {s(sMASK,2)}, 0 glc\ns_load_dwordx16 s[20:35], {s(sMASK,2)}, 64 glc')
        P(f's_add_u32 {s(sSPIN)}, {s(sSPIN)}, 1\ns_cmp_gt_u32 {s(sSPIN)}, {cfg.spin}\ns_cbranch_scc1 L_END')
        P('s_waitcnt lgkmcnt(0)')
        P(f's_xor_b32 {s(sT0)}, {s(gl[0]+2)}, {s(sTAG)}')
        for g in gl[1:]: P(f's_xor_b32 {s(sT1)}, {s(g+2)}, {s(sTAG)}\ns_or_b32 {s(sT0)}, {s(sT0)}, {s(sT1)}')
        P('s_cbranch_scc1 L_MLW')
    stamp('C0_ml')
    vG8 = 220
    P(f'v_mov_b32 {v(vML)}, {s(gl[0])}')
    for g in gl[1:]: P(f'v_max_f32 {v(vML)}, {s(g)}, {v(vML)}')
    for k, g in enumerate(gl): P(f'v_sub_f32 {v(vG8+k)}, {s(g)}, {v(vML)}')
    for k in range(8): P(f'v_mul_f32 {v(vG8+k)}, {LOG2E}, {v(vG8+k)}')
    for k in range(8): P(f'v_exp_f32 {v(vG8+k)}, {v(vG8+k)}')
    P(f'v_mul_f32 {v(vE)}, {s(gl[0]+1)}, {v(vG8)}')
    for k, g in enumerate(gl[1:]): P(f'v_fmac_f32 {v(vE)}, {s(g+1)}, {v(vG8+k+1)}')
    P(f'v_rcp_f32 {v(vE+1)}, {v(vE)}\nv_mov_b32 {v(vT+2)}, {hex(L_ML)}\nv_mov_b32 {v(vML+2)}, 1')
    P(f'v_fma_f32 {v(vE)}, -{v(vE)}, {v(vE+1)}, 1.0\nv_fma_f32 {v(vML+1)}, {v(vE)}, {v(vE+1)}, {v(vE+1)}')
    setexec(1)
    P(f'ds_write_b128 {v(vT+2)}, {v(vML,4)}')
    setexec(ALL)
    P('L_PCALC:')
    for e in range(2): P(f'v_sub_f32 {v(vE+e)}, {v(vS2+e)}, {v(vML)}')
    for e in range(2): P(f'v_mul_f32 {v(vE+e)}, {LOG2E}, {v(vE+e)}')
    for e in range(2): P(f'v_exp_f32 {v(vE+e)}, {v(vE+e)}')
    for e in range(2): P(f'v_mul_f32 {v(vE+e)}, {v(vE+e)}, {v(vML+1)}')
    for e in range(2): P(f'v_cvt_pk_bf16_f32 {v(vE+e)}, {v(vE+e)}, {v(vE+e)}')
    P(f'ds_write_b64 {v(27)}, {v(vE,2)}')
    srd(SRD_WS, sWSP, WS_BYTES)
    P(f's_cmp_eq_u32 {s(sW)}, 4\ns_cbranch_scc1 L_C0B1')
    P('s_waitcnt lgkmcnt(0)')
    P('s_barrier')
    P(f's_cmp_eq_u32 {s(sW)}, 5\ns_cbranch_scc1 L_C1B1')
    P('s_branch L_C23B1')
    P('L_C0B1:')
    srd(SRD_A, pWO, 4 << 20)
    P(f'v_bfe_u32 {v(vT)}, {v(vL)}, 3, 1\nv_lshlrev_b32 {v(vT)}, 16, {v(vT)}\nv_bfe_u32 {v(vT+1)}, {v(vL)}, 4, 1\nv_lshl_add_u32 {v(vT)}, {v(vT+1)}, 12, {v(vT)}\nv_lshrrev_b32 {v(vT+1)}, 5, {v(vL)}\nv_lshl_add_u32 {v(vT)}, {v(vT+1)}, 11, {v(vT)}')
    P(f'v_and_b32 {v(vT+1)}, 7, {v(vL)}\nv_lshl_add_u32 {v(vWA)}, {v(vT+1)}, 4, {v(vT)}')
    P(f's_lshl_b32 {s(sO0)}, {s(sH)}, 17\ns_lshl_b32 {s(sT0)}, {s(sJ)}, 7\ns_add_u32 {s(sO0)}, {s(sO0)}, {s(sT0)}')
    P('s_waitcnt lgkmcnt(0)')
    stamp('C0_p')
    P('s_barrier')
    vWO = 64
    def wo_issue(sreg):
        for i in range(16):
            P(f'buffer_load_dwordx4 {v(vWO+4*i,4)}, {v(vWA)}, {S(SRD_A)}, {s(sreg)} offen offset:{1024*(i & 1)} {cfg.wpol}')
            if (i & 1) == 1 and i < 15: P(f's_add_u32 {s(sreg)}, {s(sreg)}, 8192')
    if not cfg.wob2: wo_issue(sO0)
    else: P(f's_mov_b32 {s(sG)}, {s(sO0)}')
    P(f'v_lshrrev_b32 {v(vT+2)}, 1, {v(vL16)}\nv_add_u32 {v(vT+2)}, {hex(L_OP)}, {v(vT+2)}')
    P(f's_lshl_b32 {s(sO1)}, {s(sH)}, 13\ns_add_u32 {s(sO1)}, {s(sO1)}, {hex(XA)}\ns_lshl_b32 {s(sO0)}, {s(sJ)}, 10\ns_add_u32 {s(sO0)}, {s(sO0)}, {s(sO1)}\ns_add_u32 {s(sO2)}, {s(sO1)}, 4096')
    P(f's_lshl_b32 {s(sO3)}, {s(sJ)}, 5\ns_add_u32 {s(sO3)}, {s(sO3)}, {s(sH)}\ns_lshl_b32 {s(sO3)}, {s(sO3)}, 9\ns_add_u32 {s(sO3)}, {s(sO3)}, {hex(XB)}')
    P(f'v_mov_b32 {v(22)}, {s(sTAG)}')
    vAP, vDNA, vCA, vEA, vXBA = 8, 10, 11, 12, 13
    P(f'v_mov_b32 {v(14)}, {hex(L_FLAG + 160)}')
    if cfg.gwait:
        P(f'v_and_b32 {v(16)}, 31, {v(vL)}\nv_lshlrev_b32 {v(16)}, 2, {v(16)}\ns_lshl_b32 {s(sG)}, {s(sX)}, 7\ns_add_u32 {s(sG)}, {s(sG)}, {hex(XG)}')
    P(f'v_bfe_u32 {v(vT)}, {v(vL)}, 3, 1\nv_lshl_add_u32 {v(vXBA)}, {v(vT)}, 17, {v(vPUB)}')
    sQ, sW2, sDN, sEP, sEG, sDP, sC0 = 4, 6, 8, 9, 10, 11, 12
    P(f's_sub_u32 {s(sT0)}, {s(sKK)}, 8\ns_cmp_lt_u32 {s(sKK)}, 8\ns_cselect_b32 {s(sT1)}, {s(sKK)}, {s(sT0)}\ns_and_b32 {s(sQ)}, {s(sT1)}, 3\ns_lshr_b32 {s(sT1)}, {s(sT1)}, 2')
    P(f's_mul_i32 {s(sIM)}, {s(sX)}, 6\ns_add_u32 {s(sIM)}, {s(sIM)}, {s(sT1)}\ns_cmp_lt_u32 {s(sT0)}, 8\ns_cselect_b32 {s(sIM)}, 255, {s(sIM)}')
    srd(SRD_B, pW2, 1376*1024)
    P(f'v_lshrrev_b32 {v(vT)}, 3, {v(vL)}\nv_mul_u32_u24 {v(vT)}, {16*2752}, {v(vT)}\nv_and_b32 {v(vT+1)}, 3, {v(vL)}\nv_lshl_add_u32 {v(vT)}, {v(vT+1)}, 4, {v(vT)}')
    P(f's_mul_i32 {s(sT0)}, {s(sQ)}, {128*2752}\ns_min_u32 {s(sT1)}, {s(sIM)}, {NM-1}\ns_lshl_b32 {s(sT1)}, {s(sT1)}, 6\ns_add_u32 {s(sT0)}, {s(sT0)}, {s(sT1)}\nv_add_u32 {v(vT)}, {s(sT0)}, {v(vT)}')
    P(f's_mov_b32 {s(sMASK)}, 0xf0f0f0f0\ns_mov_b32 {s(sMASK+1)}, 0xf0f0f0f0\ns_mov_b32 {s(sW2)}, 2752*2\ns_mov_b32 {s(sW2+1)}, 0')
    P(f'v_mov_b32 {v(vAP)}, {s(pW1)}\nv_mov_b32 {v(vAP+1)}, {s(pW1+1)}\nv_mov_b32 {v(vT+1)}, {s(pW3)}\nv_mov_b32 {v(vCA)}, {s(pW3+1)}')
    P(f'v_cndmask_b32 {v(vAP)}, {v(vAP)}, {v(vT+1)}, {s(sMASK,2)}\nv_cndmask_b32 {v(vAP+1)}, {v(vAP+1)}, {v(vCA)}, {s(sMASK,2)}')
    P(f'v_add_co_u32 {v(vAP)}, vcc, {v(vAP)}, {v(vT)}\nv_addc_co_u32 {v(vAP+1)}, vcc, 0, {v(vAP+1)}, vcc')
    P(f'v_bfe_u32 {v(vT)}, {v(vL)}, 4, 1\nv_lshlrev_b32 {v(vDNA)}, 12, {v(vT)}\nv_lshrrev_b32 {v(vT)}, 5, {v(vL)}\nv_lshl_add_u32 {v(vDNA)}, {v(vT)}, 11, {v(vDNA)}\nv_and_b32 {v(vT)}, 15, {v(vL)}\nv_lshl_add_u32 {v(vDNA)}, {v(vT)}, 4, {v(vDNA)}')
    P(f's_lshl_b32 {s(sDN)}, {s(sIM)}, 15\ns_lshl_b32 {s(sT0)}, {s(sQ)}, 8\ns_add_u32 {s(sDN)}, {s(sDN)}, {s(sT0)}')
    P(f's_lshl_b32 {s(sEG)}, {s(sIM)}, 11\ns_add_u32 {s(sEG)}, {s(sEG)}, {hex(XE)}\ns_lshl_b32 {s(sT0)}, {s(sQ)}, 9\ns_add_u32 {s(sEP)}, {s(sEG)}, {s(sT0)}')
    P(f's_lshl_b32 {s(sDP)}, {s(sIM)}, 12\ns_lshl_b32 {s(sT0)}, {s(sQ)}, 10\ns_add_u32 {s(sDP)}, {s(sDP)}, {s(sT0)}\ns_add_u32 {s(sDP)}, {s(sDP)}, {hex(XD)}')
    P(f's_lshl_b32 {s(sT1)}, {s(sX)}, 12\ns_add_u32 {s(sT1)}, {s(sT1)}, {hex(XC)}')
    for k in range(4): P(f's_add_u32 {s(sT0)}, {s(sQ)}, {k}\ns_and_b32 {s(sT0)}, {s(sT0)}, 3\ns_lshl_b32 {s(sT0)}, {s(sT0)}, 10\ns_add_u32 {s(sC0+k)}, {s(sT0)}, {s(sT1)}')
    P(f'v_lshrrev_b32 {v(vT)}, 5, {v(vL)}\nv_lshlrev_b32 {v(vCA)}, 9, {v(vT)}\nv_bfe_u32 {v(vT)}, {v(vL)}, 1, 1\nv_lshl_add_u32 {v(vCA)}, {v(vT)}, 7, {v(vCA)}\nv_and_b32 {v(vT)}, 1, {v(vL)}\nv_lshl_add_u32 {v(vCA)}, {v(vT)}, 8, {v(vCA)}')
    P(f'v_bfe_u32 {v(vT)}, {v(vL)}, 2, 3\nv_lshl_add_u32 {v(vCA)}, {v(vT)}, 4, {v(vCA)}')
    P(f'v_bfe_u32 {v(vT)}, {v(vL)}, 3, 1\nv_lshlrev_b32 {v(vT)}, 9, {v(vT)}\nv_add_u32 {v(vEA)}, {v(vPUB)}, {v(vT)}')
    P('s_barrier')
    stamp('C0_b2')
    for w in range(4): P(f'ds_read_b64 {v(24+2*w,2)}, {v(vT+2)} offset:{512*w}')
    P('s_waitcnt lgkmcnt(2)')
    for e in range(2): P(f'v_add_f32 {v(24+e)}, {v(24+e)}, {v(26+e)}')
    P('s_waitcnt lgkmcnt(0)')
    for e in range(2): P(f'v_add_f32 {v(28+e)}, {v(28+e)}, {v(30+e)}')
    for e in range(2): P(f'v_add_f32 {v(20+e)}, {v(24+e)}, {v(28+e)}')
    publish_loc(20, vL16, sO0)
    stamp('C0_xapub')
    if cfg.wob2 == 1: wo_issue(sG)
    vOd = 40
    def issue(b):
        for k in range(0, 8, 2 if cfg.fakehalf & 2 else 1):
            P(f'buffer_load_dwordx4 {v(b+4*k,4)}, {v(vL16)}, {S(SRD_WS)}, {s(sO1 if k < 4 else sO2)} offen offset:{1024*(k & 3)} sc1')
    def done(b):
        for a, b2 in ((0, 1), (2, 3), (4, 5), (6, 7), (0, 2), (4, 6), (0, 4)):
            for e in (0, 1): P(f'v_add_f32 {v(b+4*a+e)}, {v(b+4*a+e)}, {v(b+4*b2+e)}')
        P(f'v_cvt_pk_bf16_f32 {v(vOd)}, {v(b)}, {v(b)}\nv_cvt_pk_bf16_f32 {v(vOd+1)}, {v(b+1)}, {v(b+1)}')
    poll('xa', issue, 8, 128, 32, [4*k+2 for k in range(0, 8, 2 if cfg.fakehalf & 2 else 1)], done)
    stamp('C0_xa')
    vGW, vGA2 = 15, 16
    def g_issue(): P(f'buffer_load_dword {v(vGW)}, {v(vGA2)}, {S(SRD_WS)}, {s(sG)} offen sc1')
    if cfg.gwait: g_issue()
    lohi(vOd)
    chain(vD0, 16, [vWO+4*i for i in range(16)], lohi_srcs(vOd), vAA)
    finish2(vD0)
    if cfg.xbrep:
        for e in range(2): P(f'v_mov_b32_dpp {v(vD0+e)}, {v(vD0+e)} row_ror:8 row_mask:0xf bank_mask:0xc')
        for i in range(4):
            P(f'buffer_store_dwordx4 {v(vD0,4)}, {v(vXBA)}, {S(SRD_WS)}, {s(sO3)} offen sc1')
            if i < 3: P(f's_add_u32 {s(sO3)}, {s(sO3)}, 0x40000')
    else: publish(vD0, vPUB, sO3, M2SET)
    if cfg.rwait and cfg.rwait < 4: P(f'ds_write_b32 {v(14)}, {v(14)}')
    stamp('C0_xbpub')
    if cfg.rwait == 4:
        P(f's_cmp_lt_u32 {s(sIM)}, {NM}\ns_cbranch_scc1 L_MLP')
        P('s_waitcnt vmcnt(0)')
        P(f'ds_write_b32 {v(14)}, {v(14)}')
        P('s_branch L_END\nL_MLP:')
    else: P(f's_cmp_lt_u32 {s(sIM)}, {NM}\ns_cbranch_scc0 L_END')
    vUP, vDN, vCG, vEG = 128, 192, 64, 80
    if cfg.gwait:
        P(f's_mov_b32 {s(sSPIN)}, 0\ns_waitcnt vmcnt({4 if cfg.xbrep else 1})\ns_branch L_GCHK\nL_GTOP:')
        g_issue()
        P(f's_add_u32 {s(sSPIN)}, {s(sSPIN)}, 1\ns_cmp_gt_u32 {s(sSPIN)}, {cfg.spin}\ns_cbranch_scc1 L_END\ns_waitcnt vmcnt(0)\nL_GCHK:')
        P(f'v_cmp_eq_u32 vcc, {s(sTAG)}, {v(vGW)}\ns_bcnt1_i32_b64 {s(sT0)}, vcc\ns_cmp_lt_u32 {s(sT0)}, {2*cfg.gthr}\ns_cbranch_scc1 L_GTOP')
    for i in range(16):
        P(f'global_load_dwordx4 {v(vUP+4*i,4)}, {v(vAP,2)}, off offset:{2752*(i & 1)} {cfg.uppol}')
        if i & 1 and i < 15: P(f'v_lshl_add_u64 {v(vAP,2)}, {v(vAP,2)}, 0, {s(sW2,2)}')
    def dn_issue():
        for i in range(8):
            P(f'buffer_load_dwordx4 {v(vDN+4*i,4)}, {v(vDNA)}, {S(SRD_B)}, {s(sDN)} offen offset:{1024*(i & 1)} {cfg.wpol}')
            if i & 1 and i < 7: P(f's_add_u32 {s(sDN)}, {s(sDN)}, 8192')
    if not cfg.dnlate: dn_issue()
    if cfg.diag and 'M_w' in cfg.diag:
        P('s_waitcnt vmcnt(0)'); stamp('M_w')
    vx, vcb, vsb = 88, 24, 26
    def issue(b):
        for k in range(4): P(f'buffer_load_dwordx4 {v(b+4*k,4)}, {v(vCA)}, {S(SRD_WS)}, {s(sC0+k)} offen sc1')
    def done(b):
        for k in range(4): unpack(vx+2*k, vx+2*k+1, b+4*k)
        unpack(vcb, vcb+1, b+1); unpack(vsb, vsb+1, b+2)
    poll('xc', issue, 4, 64 if cfg.pipe.get('xc', 1) == 1 else 104, 16 if cfg.pipe.get('xc', 1) != 2 else -40, [4*k+3 for k in range(4)], done)
    stamp('M_xc')
    if cfg.dnlate == 1: dn_issue()
    P(f'v_readfirstlane_b32 {s(sT0)}, {v(vx)}')
    for k in range(8): P(f'v_subrev_f32 {v(96+k)}, {s(sT0)}, {v(vx+k)}')
    P(f'v_pk_add_f32 {v(20,2)}, {v(96,2)}, {v(98,2)}\nv_pk_add_f32 {v(22,2)}, {v(100,2)}, {v(102,2)}\nv_pk_mul_f32 {v(28,2)}, {v(96,2)}, {v(96,2)}\nv_pk_mul_f32 {v(30,2)}, {v(100,2)}, {v(100,2)}')
    P(f'v_pk_add_f32 {v(20,2)}, {v(20,2)}, {v(22,2)}\nv_pk_fma_f32 {v(28,2)}, {v(98,2)}, {v(98,2)}, {v(28,2)}\nv_pk_fma_f32 {v(30,2)}, {v(102,2)}, {v(102,2)}, {v(30,2)}')
    P(f'v_add_f32 {v(22)}, {v(20)}, {v(21)}\nv_pk_add_f32 {v(28,2)}, {v(28,2)}, {v(30,2)}\nv_add_f32 {v(23)}, {v(28)}, {v(29)}')
    for mod in ('quad_perm:[1,0,3,2]', 'quad_perm:[2,3,0,1]', 'row_ror:4', 'row_ror:8'):
        for r in (22, 23): P(f'v_add_f32_dpp {v(r)}, {v(r)}, {v(r)} {mod} row_mask:0xf bank_mask:0xf')
    P(f'v_permlane16_swap_b32 {v(22)}, {v(23)}\nv_add_f32 {v(22)}, {v(22)}, {v(23)}\nv_mov_b32 {v(23)}, {v(22)}')
    P(f'v_permlane32_swap_b32 {v(22)}, {v(23)}\nv_add_f32 {v(22)}, {v(22)}, {v(23)}\nv_mul_f32 {v(22)}, {R512}, {v(22)}')
    P(f'v_readlane_b32 {s(sT1)}, {v(22)}, 0\nv_readlane_b32 {s(sT2)}, {v(22)}, 16')
    P(f'v_mov_b32 {v(22)}, {s(sT1)}\nv_mov_b32 {v(23)}, {s(sT2)}')
    P(f'v_fma_f32 {v(23)}, -{v(22)}, {v(22)}, {v(23)}\nv_add_f32 {v(22)}, {s(sT0)}, {v(22)}\nv_max_f32 {v(23)}, 0, {v(23)}')
    P(f'v_cvt_pk_bf16_f32 {v(22)}, {v(22)}, {v(23)}')
    P(f'v_and_b32 {v(23)}, 0xffff0000, {v(22)}\nv_lshlrev_b32 {v(22)}, 16, {v(22)}\nv_add_f32 {v(23)}, {EPS}, {v(23)}')
    P(f'v_sub_f32 {v(20)}, {v(vx)}, {v(22)}\nv_sub_f32 {v(21)}, {v(vx+1)}, {v(22)}')
    P(f'v_cvt_pk_bf16_f32 {v(23)}, {v(23)}, {v(23)}\nv_cvt_pk_bf16_f32 {v(20)}, {v(20)}, {v(21)}\nv_and_b32 {v(23)}, 0xffff0000, {v(23)}\nv_sqrt_f32 {v(23)}, {v(23)}')
    unpack(vx, vx+1, 20)
    P(f'v_cvt_pk_bf16_f32 {v(23)}, {v(23)}, {v(23)}\nv_and_b32 {v(23)}, 0xffff0000, {v(23)}\nv_rcp_f32 {v(22)}, {v(23)}')
    P(f'v_mul_f32 {v(20)}, {v(vx)}, {v(22)}\nv_mul_f32 {v(21)}, {v(vx+1)}, {v(22)}')
    P(f'v_fma_f32 {v(vx)}, -{v(20)}, {v(23)}, {v(vx)}\nv_fma_f32 {v(vx+1)}, -{v(21)}, {v(23)}, {v(vx+1)}')
    P(f'v_fma_f32 {v(20)}, {v(vx)}, {v(22)}, {v(20)}\nv_fma_f32 {v(21)}, {v(vx+1)}, {v(22)}, {v(21)}')
    P(f'v_cvt_pk_bf16_f32 {v(20)}, {v(20)}, {v(21)}')
    unpack(vx, vx+1, 20)
    P(f'v_mul_f32 {v(vx)}, {v(vx)}, {v(vcb)}\nv_mul_f32 {v(vx+1)}, {v(vx+1)}, {v(vcb+1)}\nv_cvt_pk_bf16_f32 {v(20)}, {v(vx)}, {v(vx+1)}')
    unpack(vx, vx+1, 20)
    P(f'v_add_f32 {v(vx)}, {v(vx)}, {v(vsb)}\nv_add_f32 {v(vx+1)}, {v(vx+1)}, {v(vsb+1)}')
    P(f'v_cvt_pk_bf16_f32 {v(vOd)}, {v(vx)}, {v(vx)}\nv_cvt_pk_bf16_f32 {v(vOd+1)}, {v(vx+1)}, {v(vx+1)}')
    lohi(vOd)
    stamp('M_h2')
    if cfg.dnlate == 2: dn_issue()
    chain(vD0, 16, [vUP+4*i for i in range(16)], lohi_srcs(vOd), vAA)
    finish2(vD0)
    publish_loc(vD0, vPUB, sEP, M2SET, sR)
    stamp('M_up')
    def issue(b):
        for k in range(2): P(f'buffer_load_dwordx4 {v(b+4*k,4)}, {v(vEA)}, {S(SRD_WS)}, {s(sEG)} offen offset:{1024*k} sc1')
    def done(b):
        for e in range(2): P(f'v_add_f32 {v(20+e)}, {v(b+e)}, {v(b+4+e)}')
    poll('xe', issue, 2, 128, 8, [2, 6], done)
    stamp('M_xe')
    for e in range(2): P(f'v_add_f32_dpp {v(20+e)}, {v(20+e)}, {v(20+e)} row_ror:8 row_mask:0xf bank_mask:0xf')
    P(f'v_cvt_pk_bf16_f32 {v(22)}, {v(20)}, {v(21)}')
    unpack(20, 21, 22)
    P(f'v_mov_b32_dpp {v(24)}, {v(22)} row_shl:4 row_mask:0xf bank_mask:0xf')
    silu_multi([20, 21], [22, 23])
    unpack(26, 27, 24)
    P(f'v_cvt_pk_bf16_f32 {v(22)}, {v(20)}, {v(21)}')
    unpack(20, 21, 22)
    P(f'v_mul_f32 {v(20)}, {v(20)}, {v(26)}\nv_mul_f32 {v(21)}, {v(21)}, {v(27)}')
    for e in range(2): P(f'v_cvt_pk_bf16_f32 {v(20+e)}, {v(20+e)}, {v(20+e)}')
    stamp('M_act')
    chain(vD0, 8, [vDN+4*i for i in range(8)], [(20 + (i & 1), f'row_newbcast:{i >> 1}') for i in range(8)], vAA)
    finish1(vD0)
    publish(vD0, vL16, sDP)
    stamp('M_end')
    P('s_branch L_END')

    P('L_C123:')
    common_setup()
    P(f's_cmp_eq_u32 {s(sW)}, 5\ns_cbranch_scc1 L_C1')
    P(f's_cmp_eq_u32 {s(sW)}, 6\ns_cbranch_scc0 L_C3')
    P(f's_getpc_b64 {s(20,2)}')
    P('L_PCREF:')
    P(f's_sub_u32 s20, s20, L_PCREF-{NAME}_kernel\ns_subb_u32 s21, s21, 0')
    P(f's_lshl_b32 {s(sT0)}, {s(sKK)}, 3\nv_and_b32 {v(vT)}, 7, {v(vL)}\nv_add_u32 {v(vT)}, {s(sT0)}, {v(vT)}\nv_lshlrev_b32 {v(vT)}, 7, {v(vT)}')
    P(f'v_min_u32 {v(vT)}, L_CODE_END-{NAME}_kernel-4, {v(vT)}')
    if cfg.cpf: P(f'global_load_dword {v(240)}, {v(vT)}, s[20:21]')
    P('L_C3:')
    if cfg.tlbw:
        P(f's_cmp_eq_u32 {s(sW)}, 7\ns_cbranch_scc0 L_NOTLB')
        P(f'v_mov_b32 {v(vT)}, 0')
        setexec(1)
        for k, (ptr, nb) in enumerate(((pWO, 4 << 20), (pW1, 512*2752), (pW3, 512*2752), (pW2, 1376*1024), (pOUT, 1024))):
            srd(SRD_A, ptr, nb)
            P(f'buffer_load_dword {v(241+k)}, {v(vT)}, {S(SRD_A)}, 0 offen')
            if nb > (2 << 20):
                P(f's_mov_b32 {s(sT0)}, {hex(nb - 128)}\nbuffer_load_dword {v(247)}, {v(vT)}, {S(SRD_A)}, {s(sT0)} offen')
        for k, off in enumerate((XA, XE, XB, XB + 0xf0000)):
            P(f's_mov_b32 {s(sT0)}, {hex(off)}\nbuffer_load_dword {v(248+k)}, {v(vT)}, {S(SRD_WS)}, {s(sT0)} offen sc1')
        setexec(ALL)
        P('L_NOTLB:')
    P('s_waitcnt lgkmcnt(0)')
    P(f's_add_u32 {s(sTAG)}, {s(sTAG)}, 1')
    P('s_branch L_QKP')
    P('L_C23B1:')
    if cfg.gwait:
        P(f'v_lshlrev_b32 {v(vT)}, 7, {v(vL)}\nv_mov_b32 {v(vT+1)}, {s(sTAG)}\ns_lshl_b32 {s(sT0)}, {s(sH)}, 2\ns_add_u32 {s(sT0)}, {s(sT0)}, {hex(XG)}')
    P('s_barrier')
    if cfg.gwait:
        P(f's_cmp_eq_u32 {s(sW)}, 6\ns_cbranch_scc0 L_END\ns_cmp_eq_u32 {s(sJ)}, 0\ns_cbranch_scc0 L_END')
        setexec(0xff)
        P(f'buffer_store_dword {v(vT+1)}, {v(vT)}, {S(SRD_WS)}, {s(sT0)} offen sc1')
    P('s_branch L_END')

    P('L_C1:')
    P('s_waitcnt lgkmcnt(0)')
    P(f's_add_u32 {s(sTAG)}, {s(sTAG)}, 1')
    if cfg.tearly == 3: P(f's_mov_b32 {s(sR)}, 0\ns_bitcmp1_b32 {s(sX)}, 0\ns_cbranch_scc1 L_QKP')
    elif cfg.tearly: P(f's_mov_b32 {s(sR)}, 0\ns_cmp_ge_u32 {s(sX)}, 4\ns_cbranch_scc1 L_QKP')
    else: P(f's_mov_b32 {s(sR)}, 0\ns_sub_u32 {s(sT0)}, {s(sKK)}, 8\ns_cmp_lt_u32 {s(sT0)}, 16\ns_cbranch_scc1 L_QKP')
    P(f'v_mov_b32 {v(vT+2)}, {hex(L_FLAG + 8)}')
    lds_wait('k1', vT+2, 1, 28, [28], 8)
    if cfg.tearly == 3:
        P(f's_lshl_b32 {s(sT0)}, {s(sKK)}, 2\ns_lshr_b32 {s(sT1)}, {s(sX)}, 1\ns_add_u32 {s(sT0)}, {s(sT0)}, {s(sT1)}\ns_and_b32 {s(sT1)}, {s(sT0)}, 31\ns_lshr_b32 {s(sT0)}, {s(sT0)}, 5')
    elif cfg.tearly:
        P(f's_lshl_b32 {s(sT0)}, {s(sKK)}, 2\ns_add_u32 {s(sT0)}, {s(sT0)}, {s(sX)}\ns_and_b32 {s(sT1)}, {s(sT0)}, 31\ns_lshr_b32 {s(sT0)}, {s(sT0)}, 5')
    else:
        P(f's_and_b32 {s(sT0)}, {s(sKK)}, 7\ns_lshr_b32 {s(sT1)}, {s(sKK)}, 4\ns_lshl_b32 {s(sT1)}, {s(sT1)}, 3\ns_add_u32 {s(sT0)}, {s(sT0)}, {s(sT1)}')
        P(f's_lshl_b32 {s(sT0)}, {s(sT0)}, 3\ns_add_u32 {s(sT0)}, {s(sT0)}, {s(sX)}\ns_and_b32 {s(sT1)}, {s(sT0)}, 31\ns_lshr_b32 {s(sT0)}, {s(sT0)}, 5')
    P(f's_lshl_b32 {s(sO2)}, {s(sT1)}, 2\ns_add_u32 {s(sO2)}, {s(sO2)}, {s(sT0)}\ns_lshl_b32 {s(sO2)}, {s(sO2)}, 9\ns_add_u32 {s(sO2)}, {s(sO2)}, {hex(X4)}')
    P(f's_lshl_b32 {s(sT1)}, {s(sT1)}, 7\ns_add_u32 {s(sT1)}, {s(sT1)}, 2048')
    modtile_issue(sT0, sT1)
    P(f's_mov_b32 {s(sR)}, 99\ns_branch L_QKP')
    P('L_C1B1:')
    P(f's_sub_u32 {s(sT0)}, {s(sKK)}, 8\ns_cmp_lt_u32 {s(sT0)}, 8\ns_cbranch_scc1 L_RED')
    P('s_barrier')
    P('s_branch L_END')
    P('L_RED:')
    if cfg.rwait != 4: red_setup()
    else:
        srd(SRD_B, pOUT, 1024)
        P(f'v_lshlrev_b32 {v(vL16r)}, 4, {v(vL)}\nv_and_b32 {v(vU16)}, 3, {v(vL)}\nv_lshlrev_b32 {v(vU16)}, 4, {v(vU16)}\nv_lshrrev_b32 {v(vT)}, 2, {v(vL)}\nv_lshl_add_u32 {v(vDA)}, {v(vT)}, 12, {v(vU16)}')
    def xb_issue(b):
        for k in range(0, 16, 2 if cfg.fakehalf & 1 else 1): P(f'buffer_load_dwordx4 {v(b+4*k,4)}, {v(vL16r)}, {S(SRD_WS)}, {s(sB4 + (k >> 2))} offen offset:{1024*(k & 3)} sc1')
    issue = x4_issue
    def rw(name):
        P(f'v_mov_b32 {v(vT+2)}, {hex(L_FLAG + 160)}')
        lds_wait(name, vT+2, 1, 28, [28], cfg.lsleep)
    if cfg.rwait >= 3:
        if cfg.rwait == 3: issue()
        P('s_barrier')
        stamp('R_b2')
        P(f's_mov_b32 {s(sT2)}, 0\ns_branch L_X4CHK\nL_X4RETRY:')
        rw('rw0')
        issue()
        P(f's_add_u32 {s(sT2)}, {s(sT2)}, 1\ns_cmp_gt_u32 {s(sT2)}, {cfg.spin}\ns_cbranch_scc1 L_END\nL_X4CHK:')
        P('s_waitcnt vmcnt(0)')
        tr = [vg+4*k+2 for k in range(8)]
        P(f'v_xor_b32 {v(vT)}, {s(sTAG)}, {v(tr[0])}\nv_xor_b32 {v(vT+1)}, {s(sTAG)}, {v(tr[1])}')
        for k, r in enumerate(tr[2:]): P(f'v_bitop3_b32 {v(vT + (k & 1))}, {v(r)}, {s(sTAG)}, {v(vT + (k & 1))} bitop3:{TAGX}')
        P(f'v_or_b32 {v(vT)}, {v(vT)}, {v(vT+1)}\nv_cmp_ne_u32 vcc, 0, {v(vT)}\ns_cbranch_vccnz L_X4RETRY')
    else:
        P('s_barrier')
        stamp('R_b2')
        if cfg.rwait: rw('rw')
        tagcheck_loop(issue, [vg+4*k+2 for k in range(8)], 'x4', after=(lambda: xb_issue(128)) if cfg.rwait == 2 else None, nafter=16)
    for p_ in range(4):
        for e in range(2): P(f'v_add_f32 {v(vg+8*p_+e)}, {v(vg+8*p_+e)}, {v(vg+8*p_+4+e)}')
    for p_ in range(4): P(f'v_permlane32_swap_b32 {v(vg+8*p_)}, {v(vg+8*p_+1)}')
    for p_ in range(4): P(f'v_add_f32 {v(vg+8*p_)}, {v(vg+8*p_)}, {v(vg+8*p_+1)}')
    for p_ in range(4): rnd(vg+8*p_)
    P(f'v_mov_b32 {v(vGAv)}, {v(vg)}\nv_add_f32 {v(vg+16)}, 1.0, {v(vg+16)}\nv_mov_b32 {v(vg+9)}, {v(vg+8)}\nv_mov_b32 {v(vg+17)}, {v(vg+16)}')
    P(f'ds_bpermute_b32 {v(vGBv)}, {v(vBP)}, {v(vg+24)}')
    P(f'v_permlane32_swap_b32 {v(vg+8)}, {v(vg+9)}\nv_permlane32_swap_b32 {v(vg+16)}, {v(vg+17)}')
    P(f'v_cvt_pk_bf16_f32 {v(vXC+2)}, {v(vg+8)}, {v(vg+9)}\nv_cvt_pk_bf16_f32 {v(vXC+1)}, {v(vg+16)}, {v(vg+17)}\nv_mov_b32 {v(vXC+3)}, {s(sTAG)}\nv_lshlrev_b32 {v(vXv)}, 16, {v(vXv)}')
    stamp('R_x4')
    if cfg.rwait >= 3: rw('rw1')
    def done(b):
        st = 1
        while st < 16:
            for a in range(0, 16, 2*st):
                for e in range(2): P(f'v_add_f32 {v(b+4*a+e)}, {v(b+4*a+e)}, {v(b+4*(a+st)+e)}')
            st *= 2
    if cfg.rsleep: P(f's_sleep {cfg.rsleep}')
    if cfg.xbgrp:
        n = 16 // cfg.xbgrp
        def mk(g):
            def issue():
                for k in range(g*n, g*n + n): P(f'buffer_load_dwordx4 {v(128+4*k,4)}, {v(vL16r)}, {S(SRD_WS)}, {s(sB4 + (k >> 2))} offen offset:{1024*(k & 3)} sc1')
            return (issue, [128+4*k+2 for k in range(g*n, g*n + n)])
        poll_groups('xb', [mk(g) for g in range(cfg.xbgrp)])
        done(128)
    else: poll('xb', xb_issue, 16, 128, 64, [4*k+2 for k in range(0, 16, 2 if cfg.fakehalf & 1 else 1)], done, issued=(cfg.rwait == 2))
    stamp('R_xb')
    P(f'v_permlane32_swap_b32 {v(128)}, {v(129)}\nv_add_f32 {v(vg)}, {v(128)}, {v(129)}')
    rnd(vg)
    P(f'v_mul_f32 {v(vg)}, {v(vg)}, {v(vGAv)}'); rnd(vg)
    P(f'v_add_f32 {v(vg)}, {v(vg)}, {v(vXv)}\nv_mov_b32 {v(vg+1)}, {v(vg)}')
    P(f'v_permlane32_swap_b32 {v(vg)}, {v(vg+1)}')
    P(f'v_cvt_pk_bf16_f32 {v(vXC)}, {v(vg)}, {v(vg+1)}')
    publish_loc(vXC, vL16r, sO3, 0xffffffff)
    stamp('R_xcpub')
    if cfg.epearly:
        P(f's_cmp_eq_u32 {s(sR)}, 0\ns_cbranch_scc0 L_NOEP')
        setexec(1)
        P(f'v_mov_b32 {v(vT)}, 0\nv_mov_b32 {v(vT+1)}, {s(sTAG)}')
        P(f'buffer_store_dword {v(vT+1)}, {v(vT)}, {S(SRD_WS)}, 0 offen sc1')
        setexec(ALL)
        P('L_NOEP:')
    P(f'v_lshrrev_b32 {v(vT+2)}, 1, {v(vL)}\nv_and_b32 {v(vT+2)}, 16, {v(vT+2)}\nv_lshrrev_b32 {v(vXv)}, {v(vT+2)}, {v(vXC)}\nv_lshlrev_b32 {v(vXv)}, 16, {v(vXv)}')
    P(f'ds_bpermute_b32 {v(vXv)}, {v(vBP)}, {v(vXv)}')
    def colsum():
        P(f'v_permlane16_swap_b32 {v(vg)}, {v(vg+1)}')
        P(f'v_add_f32 {v(vg)}, {v(vg)}, {v(vg+1)}')
        P(f'v_add_f32_dpp {v(vg)}, {v(vg)}, {v(vg)} row_ror:4 row_mask:0xf bank_mask:0xf')
        P(f'v_add_f32_dpp {v(vg)}, {v(vg)}, {v(vg)} row_ror:8 row_mask:0xf bank_mask:0xf')
        P(f'v_mov_b32 {v(vg+1)}, {v(vg)}')
        P(f'v_permlane32_swap_b32 {v(vg)}, {v(vg+1)}')
        P(f'v_add_f32 {v(vg)}, {v(vg)}, {v(vg+1)}')
    P('s_waitcnt lgkmcnt(0)')
    def issue(b):
        for k in range(2): P(f'buffer_load_dwordx4 {v(b+4*k,4)}, {v(vDA)}, {S(SRD_WS)}, {s(sD+k)} offen sc1')
        setexec((1 << 44) - 1)
        P(f'buffer_load_dwordx4 {v(b+8,4)}, {v(vDA)}, {S(SRD_WS)}, {s(sD+2)} offen sc1')
        setexec(ALL)
    def done(b):
        for e in range(2): P(f'v_add_f32 {v(b+e)}, {v(b+e)}, {v(b+4+e)}')
        for e in range(2): P(f'v_add_f32 {v(vg+e)}, {v(b+e)}, {v(b+8+e)}')
    if cfg.dsleep: P(f's_sleep {cfg.dsleep}')
    poll('xd', issue, 3, 192, 12, [2, 6, 10], done)
    stamp('R_xd')
    colsum()
    rnd(vg)
    P(f'v_mul_f32 {v(vg)}, {v(vg)}, {v(vGBv)}'); rnd(vg)
    P(f'v_add_f32 {v(vg)}, {v(vg)}, {v(vXv)}\nv_mov_b32 {v(vg+1)}, {v(vg)}')
    P(f'v_permlane16_swap_b32 {v(vg)}, {v(vg+1)}')
    P(f'v_cvt_pk_bf16_f32 {v(vg)}, {v(vg)}, {v(vg+1)}')
    setexec(0xf)
    P(f'buffer_store_dword {v(vg)}, {v(vU16)}, {S(SRD_B)}, {s(sG+2)} offen {cfg.outpol}')
    stamp('R_end')
    def epoch(skip):
        P(f's_cmp_eq_u32 {s(sR)}, 0\ns_cbranch_scc0 {skip}')
        setexec(1)
        P(f'v_mov_b32 {v(vT)}, 0\nv_mov_b32 {v(vT+1)}, {s(sTAG)}')
        P(f'buffer_store_dword {v(vT+1)}, {v(vT)}, {S(SRD_WS)}, 0 offen sc1')
    if not cfg.epearly: epoch('L_END')
    if cfg.xdelay:
        P(f's_cmp_eq_u32 {s(sR)}, 0\ns_cbranch_scc0 L_END\ns_memrealtime s[76:77]\ns_waitcnt lgkmcnt(0)\ns_add_u32 {s(sT0)}, s76, {cfg.xdelay}')
        P(f'L_XDL:\ns_memrealtime s[76:77]\ns_waitcnt lgkmcnt(0)\ns_sub_u32 {s(sT1)}, s76, {s(sT0)}\ns_cmp_lt_i32 {s(sT1)}, 0\ns_cbranch_scc1 L_XDL')
    if cfg.gprobe:
        P(f's_cmp_eq_u32 {s(sR)}, 0\ns_cbranch_scc0 L_END\ns_mov_b64 exec, -1\ns_mov_b32 {s(sT0)}, {hex(DIAG)}')
        nw = 4 if cfg.gprobe.startswith('L') else 1
        P(f'v_lshlrev_b32 v1, 5, v0')
        if cfg.gprobe[0] == 'R': P('v_add_u32 v1, 8, v1')
        if cfg.gprobe[0] in 'MR': P('s_sleep 40')
        regs = []
        for q in range(4):
            for w in range(nw):
                r = 128 + 2*(q*4 + w); regs.append(r)
                P(f'buffer_load_dwordx2 v[{r}:{r+1}], v1, {S(SRD_WS)}, {s(sT0)} offen offset:{8*w} sc1')
            P(f's_add_u32 {s(sT0)}, {s(sT0)}, 2048')
        P('s_waitcnt vmcnt(0)')
        P(f'v_subrev_u32 v2, {s(sDIAG)}, v{regs[0]}\nv_subrev_u32 v3, {s(sDIAG)}, v{regs[0]+1}')
        for r in regs[1:]:
            P(f'v_subrev_u32 v4, {s(sDIAG)}, v{r}\nv_min_i32 v2, v2, v4\nv_subrev_u32 v4, {s(sDIAG)}, v{r+1}\nv_max_i32 v3, v3, v4')
        wave_reduce('v_min_i32', [2]); wave_reduce('v_max_i32', [3])
        P(f'v_sub_u32 v2, v3, v2\nv_readlane_b32 {s(sT0)}, v2, 63\ns_nop 1\ns_min_u32 {s(sT0)}, {s(sT0)}, 5000\ns_memrealtime s[76:77]\ns_waitcnt lgkmcnt(0)\ns_add_u32 {s(sT0)}, {s(sT0)}, s76')
        P(f'L_GPR:\ns_memrealtime s[76:77]\ns_waitcnt lgkmcnt(0)\ns_sub_u32 {s(sT1)}, s76, {s(sT0)}\ns_cmp_lt_i32 {s(sT1)}, 0\ns_cbranch_scc1 L_GPR')
    if cfg.probe:
        P(f's_cmp_eq_u32 {s(sR)}, 0\ns_cbranch_scc0 L_END')
        i = stamps[cfg.probe]
        P(f's_waitcnt lgkmcnt(0)\ns_sub_u32 {s(sT0)}, {s(sDIAG+2*i)}, {s(sDIAG)}\ns_min_u32 {s(sT0)}, {s(sT0)}, 5000\ns_memrealtime s[76:77]\ns_waitcnt lgkmcnt(0)\ns_add_u32 {s(sT0)}, {s(sT0)}, s76')
        P(f'L_PROBE:\ns_memrealtime s[76:77]\ns_waitcnt lgkmcnt(0)\ns_sub_u32 {s(sT1)}, s76, {s(sT0)}\ns_cmp_lt_i32 {s(sT1)}, 0\ns_cbranch_scc1 L_PROBE')
    P('s_branch L_END')

    P('L_END:')
    if cfg.diag and not cfg.probe and not cfg.gprobe:
        P('s_waitcnt lgkmcnt(0)')
        P(f's_cmp_ge_u32 {s(sB)}, 256\ns_cbranch_scc1 L_END2')
        srd(SRD_WS, sWSP, WS_BYTES)
        P(f's_lshl_b32 {s(sT0)}, {s(sB)}, 3\ns_add_u32 {s(sT0)}, {s(sT0)}, {s(sW)}\ns_lshl_b32 {s(sT0)}, {s(sT0)}, 7\ns_add_u32 {s(sT0)}, {s(sT0)}, {hex(DIAG)}')
        P('s_mov_b64 exec, 1\nv_mov_b32 v1, 0')
        for i in range(9): P(f'v_mov_b32 v2, {s(sDIAG+2*i)}\nbuffer_store_dword v2, v1, {S(SRD_WS)}, {s(sT0)} offen offset:{4*i}')
        P('L_END2:')
    P('s_endpgm')
    P('L_CODE_END:')
    probs = P.fix()
    for p in probs: print('HAZARD across branch:', p, file=sys.stderr)
    head = open(f'cdna_kernels/{NAME}.s.ref').read().split('; Override launch')[0]
    txt = head
    txt += f'; Single persistent launch: 256 workgroups (one per CU) x 8 waves. Generated by gen/gen_kernel.py (hand-written generator).\n'
    txt += f'; @launch grid=(256,1,1) block=(512,1,1) lds={LDS_BYTES}\n'
    txt += f'.amdgcn_target "amdgcn-amd-amdhsa--gfx950"\n.text\n.globl {NAME}_kernel\n.p2align 8\n.type {NAME}_kernel,@function\n{NAME}_kernel:\n'
    txt += P.text() + '\n'
    txt += f'''.section .rodata,"a"
.p2align 6
.amdhsa_kernel {NAME}_kernel
  .amdhsa_next_free_vgpr 256
  .amdhsa_next_free_sgpr 102
  .amdhsa_accum_offset 256
  .amdhsa_group_segment_fixed_size 0
  .amdhsa_kernarg_size 112
  .amdhsa_user_sgpr_count 2
  .amdhsa_user_sgpr_kernarg_segment_ptr 1
  .amdhsa_system_sgpr_workgroup_id_x 1
  .amdhsa_float_denorm_mode_32 3
.end_amdhsa_kernel
'''
    return txt, stamps

if __name__ == '__main__':
    out = sys.argv[1] if len(sys.argv) > 1 else f'cdna_kernels/{NAME}.s'
    class C(Cfg): pass
    for a in sys.argv[2:]:
        k, val = a.split('=', 1)
        setattr(C, k, eval(val))
    txt, stamps = gen(C)
    open(out, 'w').write(txt)
    print('written', out, len(txt), 'bytes', stamps)
```

```python
import sys, struct
from asmdsl import Prog

NAME = 'adaLN_cond__mha_block_cached__glu_gated_swiglu__decode'

def f2u(x): return struct.unpack('<I', struct.pack('<f', x))[0]
LOG2E = hex(f2u(1.4426950408889634))
NLOG2E = hex(f2u(-1.4426950408889634))
SCALE = hex(f2u(128 ** -0.5))
EPS = hex(f2u(1e-5))
R512 = hex(f2u(1/512))
ALL = (1 << 64) - 1

X1 = 0x1000
X4 = 0x9000
X3 = 0x19000
X1F = 0x1b000
X0 = 0x1d000
X0B = 0x1e000
X2F = 0x1c000
XC = 0x120000
X2 = 0x20000
XA = 0x60000
XB = 0x200000
XD = 0xc0000
XE = 0x100000
XG = 0x130000
X0C = 0x1a000
DIAG = 0x180000
WS_BYTES = 0x300000
L_P, L_OP, L_Q, L_FLAG = 0x20000, 0x20800, 0x21000, 0x21100
L_ST, L_U = 0x0, 0x1000
L_MS, L_ML = L_FLAG + 64, L_FLAG + 128
LDS_BYTES = 0x21200
NM = 43
TAGX = hex(sum(1 << (a*4+b*2+c) for a in (0,1) for b in (0,1) for c in (0,1) if (a ^ b) | c))

DOC = """;
;                  all QK^T of one L wave's tiles, true max and sum exchanged inside the head, normalised p
"""

class Cfg:
    depth = 8
    diag = False
    probe = None
    kpol = 'nt'
    vpol = 'nt'
    wpol = 'nt'
    ppol = ''
    sleep1 = 0
    sleep2 = 0
    sleep3 = 4
    sleep4 = 40
    prio = 3
    hint = 1
    hsleep = 3
    lsleep = 1
    pf = 'post'
    wq0 = 1
    dsched = (6, 12, 9)
    rot = 5
    npf = 8
    local = 1
    pipe = dict()
    psleep = dict()
    xcrep = 1
    xcline = 0
    nodpp = 0
    b0late = 1
    xcsleep = 0
    dnlate = 0
    xbrep = 0
    rwait = 1
    xbgrp = 0
    rsleep = 0
    dsleep = 0
    wob2 = 0
    epearly = 1
    ksplit = 0
    th = 0
    cpf = 1
    fakehalf = 0
    xdelay = 0
    gwait = 0
    tearly = 0
    pkand = 0
    acc2 = 0
    mlat = 0
    rearly = 1
    tlbw = 0
    gthr = 32
    gprobe = None
    dodd = None
    dvar = None
    outpol = ''
    uppol = 'nt'
    spin = 1 << 18

def v(a, n=1): return f'v{a}' if n == 1 else f'v[{a}:{a+n-1}]'
def s(a, n=1): return f's{a}' if n == 1 else f's[{a}:{a+n-1}]'

sB, sW = 2, 3
sKP, sVP = 4, 6
SRD_K, SRD_V, SRD_WS, SRD_A, SRD_B, SRD_C = 8, 12, 16, 20, 24, 28
sH, sJ, sX, sKK = 36, 37, 38, 39
sWSP = 40
sTAG, sIM, sR = 42, 43, 44
sT0, sT1, sT2 = 45, 46, 47
pWQ, pWO, pW1, pW3, pW2, pC, pWM, pX, pOUT = 48, 50, 54, 56, 58, 60, 62, 64, 66
sSPIN = 68
sO0, sO1, sO2, sO3 = 69, 70, 71, 72
sMASK = 74
sT1B = 35
sLOC = 73
sG = 76
sDIAG = 84
vL = 0
vT = 1
vM = 4

def gen(cfg=Cfg):
    P = Prog()
    D = cfg.depth
    stamps = {}
    def stamp(name):
        if cfg.diag and name in cfg.diag:
            grp = name.split('_')[0]
            same = [n for n in cfg.diag if n.split('_')[0] == grp]
            if name == 'start': i = 0
            elif cfg.gprobe: i = 1
            elif grp == 'M': i = 8 - same.index(name)
            else: i = 1 + same.index(name)
            assert 0 <= i <= 8
            stamps[name] = i
            P(f's_memrealtime {s(sDIAG + 2*i, 2)}')
            if cfg.gprobe == name:
                assert i < 5
                P(f's_waitcnt lgkmcnt(0)\ns_mov_b32 s96, {s(sWSP)}\ns_mov_b32 s97, {s(sWSP+1)}\ns_mov_b32 s98, {hex(WS_BYTES)}\ns_mov_b32 s99, 0x20000')
                P(f's_lshl_b32 s100, {s(sB)}, 2\ns_and_b32 s101, {s(sW)}, 3\ns_add_u32 s100, s100, s101\ns_lshl_b32 s100, s100, 3\ns_add_u32 s100, s100, {hex(DIAG)}')
                P(f's_mov_b64 s[94:95], exec\ns_mov_b64 exec, 1\nv_mov_b32 v254, {s(sDIAG)}\nv_mov_b32 v255, {s(sDIAG+2*i)}\nv_mov_b32 v253, 0\nbuffer_store_dwordx2 v[254:255], v253, s[96:99], s100 offen sc1\ns_mov_b64 exec, s[94:95]')
    def srd(r, ptr, nbytes):
        P(f's_mov_b32 {s(r)}, {s(ptr)}\ns_mov_b32 {s(r+1)}, {s(ptr+1)}\ns_mov_b32 {s(r+2)}, {hex(nbytes)}\ns_mov_b32 {s(r+3)}, 0x20000')
    def S(r): return s(r, 4)
    def setexec(mask):
        lo, hi = mask & 0xffffffff, mask >> 32
        if mask == ALL: P('s_mov_b64 exec, -1')
        elif mask <= 64: P(f's_mov_b64 exec, {mask}')
        else: P(f's_mov_b32 exec_lo, {hex(lo)}\ns_mov_b32 exec_hi, {hex(hi)}')
    uid = [0]
    def lab(p):
        uid[0] += 1; return f'L_{p}{uid[0]}'
    def tagcheck_loop(issue, tagregs, name, sleep=0, after=None, nafter=0):
        top = lab(name)
        P(f's_mov_b32 {s(sSPIN)}, 0')
        P(f'{top}:')
        issue()
        if after: after()
        P(f's_add_u32 {s(sSPIN)}, {s(sSPIN)}, 1\ns_cmp_gt_u32 {s(sSPIN)}, {cfg.spin}\ns_cbranch_scc1 L_END')
        P(f's_waitcnt vmcnt({nafter if after else 0})')
        if len(tagregs) == 1:
            P(f'v_cmp_ne_u32 vcc, {s(sTAG)}, {v(tagregs[0])}')
        else:
            P(f'v_xor_b32 {v(vT)}, {s(sTAG)}, {v(tagregs[0])}\nv_xor_b32 {v(vT+1)}, {s(sTAG)}, {v(tagregs[1])}')
            for k, r in enumerate(tagregs[2:]):
                P(f'v_bitop3_b32 {v(vT + (k & 1))}, {v(r)}, {s(sTAG)}, {v(vT + (k & 1))} bitop3:{TAGX}')
            P(f'v_or_b32 {v(vT)}, {v(vT)}, {v(vT+1)}\nv_cmp_ne_u32 vcc, 0, {v(vT)}')
        if sleep:
            dn = lab(name + 'd')
            P(f's_cbranch_vccz {dn}\ns_sleep {sleep}\ns_branch {top}\n{dn}:')
        else: P(f's_cbranch_vccnz {top}')
    def poll(name, issue, nl, base, stride, tagoff, done, issued=False):
        NS = cfg.pipe.get(name, 1)
        top, join = lab(name), lab(name + 'j')
        ex = [lab(name + 'x') for _ in range(NS)]
        P(f's_mov_b32 {s(sSPIN)}, 0')
        for i in range(NS - 1): issue(base + i*stride)
        if issued:
            assert NS == 1
            sk = lab(name + 's'); P(f's_branch {sk}')
        P(f'{top}:')
        for i in range(NS):
            issue(base + ((i + NS - 1) % NS)*stride)
            if issued: P(f'{sk}:')
            if i == 0: P(f's_add_u32 {s(sSPIN)}, {s(sSPIN)}, 1\ns_cmp_gt_u32 {s(sSPIN)}, {cfg.spin}\ns_cbranch_scc1 L_END')
            P(f's_waitcnt vmcnt({(NS-1)*nl})')
            tr = [base + i*stride + t for t in tagoff]
            if len(tr) == 1:
                P(f'v_cmp_ne_u32 vcc, {s(sTAG)}, {v(tr[0])}')
            else:
                P(f'v_xor_b32 {v(vT)}, {s(sTAG)}, {v(tr[0])}\nv_xor_b32 {v(vT+1)}, {s(sTAG)}, {v(tr[1])}')
                for k, r in enumerate(tr[2:]):
                    P(f'v_bitop3_b32 {v(vT + (k & 1))}, {v(r)}, {s(sTAG)}, {v(vT + (k & 1))} bitop3:{TAGX}')
                P(f'v_or_b32 {v(vT)}, {v(vT)}, {v(vT+1)}\nv_cmp_ne_u32 vcc, 0, {v(vT)}')
            ps = cfg.psleep.get(name, 0)
            if ps:
                P(f's_cbranch_vccz {ex[i]}\ns_sleep {ps}')
                if i + 1 == NS: P(f's_branch {top}')
            else: P(f's_cbranch_vccz {ex[i]}' if i + 1 < NS else f's_cbranch_vccnz {top}')
        for i in reversed(range(NS)):
            P(f'{ex[i]}:')
            done(base + i*stride)
            if i > 0: P(f's_branch {join}')
        P(f'{join}:')
    def poll_groups(name, groups):
        top = lab(name)
        P(f's_mov_b32 {s(sSPIN)}, 0\ns_mov_b32 {s(sT0)}, {(1 << len(groups)) - 1}')
        P(f'{top}:')
        for g, (issue, tr) in enumerate(groups):
            sk = lab(name + 'i')
            P(f's_bitcmp1_b32 {s(sT0)}, {g}\ns_cbranch_scc0 {sk}')
            issue()
            P(f'{sk}:')
        P(f's_add_u32 {s(sSPIN)}, {s(sSPIN)}, 1\ns_cmp_gt_u32 {s(sSPIN)}, {cfg.spin}\ns_cbranch_scc1 L_END')
        P('s_waitcnt vmcnt(0)')
        for g, (issue, tr) in enumerate(groups):
            P(f'v_xor_b32 {v(vT + (g & 1))}, {s(sTAG)}, {v(tr[0])}')
            for r in tr[1:]: P(f'v_bitop3_b32 {v(vT + (g & 1))}, {v(r)}, {s(sTAG)}, {v(vT + (g & 1))} bitop3:{TAGX}')
            P(f'v_cmp_ne_u32 {s(sG+4+2*(g & 1),2)}, 0, {v(vT + (g & 1))}')
            P(f's_cmp_lg_u64 {s(sG+4+2*(g & 1),2)}, 0\ns_cselect_b32 {s(sT1)}, {1 << g}, 0')
            P(f's_or_b32 {s(sT0)}, {s(sT1)}, {s(sT0) if g else s(sT1)}')
        P(f's_cbranch_scc1 {top}')
    def publish_loc(d, vaddr, soff, mask=None, flag=sLOC):
        if not cfg.local: return publish(d, vaddr, soff, mask)
        far, j2 = lab('far'), lab('pb')
        if mask: setexec(mask)
        P(f's_cmp_eq_u32 {s(flag)}, 1\ns_cbranch_scc0 {far}')
        P(f'buffer_store_dwordx4 {v(d,4)}, {v(vaddr)}, {S(SRD_WS)}, {s(soff)} offen')
        P(f's_branch {j2}\n{far}:')
        publish(d, vaddr, soff)
        P(f'{j2}:')
        if mask: setexec(ALL)
    def afrag(dst, src, dpp=''):
        for w in range(4):
            if dpp: P(f'v_and_b32_dpp {v(dst+w)}, {v(src)}, {v(vM+w)} {dpp} row_mask:0xf bank_mask:0xf')
            else: P(f'v_and_b32 {v(dst+w)}, {v(src)}, {v(vM+w)}')
    def mfma(d, a, b, first=False):
        P(f'v_mfma_f32_16x16x32_bf16 {v(d,4)}, {v(a,4)}, {v(b,4)}, {"0" if first else v(d,4)}')
    vF, vHM, vPP = 244, 248, 250
    def afrag_pk(dst, src, dpp, k):
        pp = vPP + 2*(k & 1)
        if dpp: P(f'v_and_b32_dpp {v(pp)}, {v(src)}, {v(vHM)} {dpp} row_mask:0xf bank_mask:0xf')
        else: P(f'v_and_b32 {v(pp)}, {v(src)}, {v(vHM)}')
        return [f'v_pk_mul_f32 {v(dst+2*w,2)}, {v(pp,2)}, {v(vF+2*w,2)} op_sel_hi:[0,1]' for w in range(2)]
    def chain(d, n, bregs, srcs, areg):
        if cfg.pkand:
            pend = afrag_pk(areg, *srcs[0], 0)
            for x in pend: P(x)
            if n > 1: pend = afrag_pk(areg + 4, *srcs[1], 1)
            for i in range(n):
                if i + 1 < n:
                    for x in pend: P(x)
                if i + 2 < n: pend = afrag_pk(areg + 4*(i & 1) + 8*(1 - 2*0)*0 if False else areg + 4*(i & 1), *srcs[i+2], i) if False else None
                mfma(d, areg + 4*(i & 1), bregs[i], first=(i == 0))
                if i + 2 < n: pend = afrag_pk(areg + 4*(i & 1), *srcs[i+2], i)
            return
        if cfg.nodpp and srcs[0][1]:
            bc = 224
            for i in range(n): P(f'v_mov_b32_dpp {v(bc+i)}, {v(srcs[i][0])} {srcs[i][1]} row_mask:0xf bank_mask:0xf')
            srcs = [(bc+i, '') for i in range(n)]
        afrag(areg, *srcs[0])
        d2 = 32
        for i in range(n):
            if i + 1 < n: afrag(areg + 4*((i+1) & 1), *srcs[i+1])
            if cfg.acc2 and n >= 8: mfma(d2 if i & 1 else d, areg + 4*(i & 1), bregs[i], first=(i < 2))
            else: mfma(d, areg + 4*(i & 1), bregs[i], first=(i == 0))
        if cfg.acc2 and n >= 8:
            for r in range(0, 4, 2): P(f'v_pk_add_f32 {v(d+r,2)}, {v(d+r,2)}, {v(d2+r,2)}')
    def finish2(d):
        P(f'v_permlane32_swap_b32 {v(d)}, {v(d+2)}\nv_permlane32_swap_b32 {v(d+1)}, {v(d+3)}')
        P(f'v_add_f32_dpp {v(d)}, {v(d+2)}, {v(d)} row_ror:8 row_mask:0xf bank_mask:0xf')
        P(f'v_add_f32_dpp {v(d+1)}, {v(d+3)}, {v(d+1)} row_ror:8 row_mask:0xf bank_mask:0xf')
        P(f'v_mov_b32 {v(d+2)}, {s(sTAG)}')
    def finish1(d):
        P(f'v_permlane32_swap_b32 {v(d)}, {v(d+2)}\nv_permlane32_swap_b32 {v(d+1)}, {v(d+3)}')
        P(f'v_mov_b32 {v(d+2)}, {s(sTAG)}')
    def publish(d, vaddr, soff, mask=None):
        if mask: setexec(mask)
        P(f'buffer_store_dwordx4 {v(d,4)}, {v(vaddr)}, {S(SRD_WS)}, {s(soff)} offen sc1')
        if mask: setexec(ALL)
    M2SET = 0x00ff00ff00ff00ff
    def lohi(r):
        P(f'v_mov_b32 {v(r+2)}, {v(r)}\nv_mov_b32 {v(r+3)}, {v(r+1)}')
        for e in range(2): P(f'v_mov_b32_dpp {v(r+2+e)}, {v(r+e)} row_shl:4 row_mask:0xf bank_mask:0x5')
        for e in range(2): P(f'v_mov_b32_dpp {v(r+e)}, {v(r+e)} row_shr:4 row_mask:0xf bank_mask:0xa')
    def lohi_srcs(r):
        out = []
        for i in range(16):
            u = i >> 1; a = u & 3
            out.append((r + (2 if u >= 4 else 0) + (i & 1), f'quad_perm:[{a},{a},{a},{a}]'))
        return out
    def lds_wait(name, vaddr, n, dst, chk, sleep=0):
        top = lab(name)
        op = {1: 'ds_read_b32', 2: 'ds_read_b64', 4: 'ds_read_b128'}[n]
        P(f's_mov_b32 {s(sSPIN)}, 0')
        P(f'{top}:')
        P(f'{op} {v(dst,n)}, {v(vaddr)}')
        P(f's_add_u32 {s(sSPIN)}, {s(sSPIN)}, 1\ns_cmp_gt_u32 {s(sSPIN)}, {cfg.spin*8}\ns_cbranch_scc1 L_END')
        P('s_waitcnt lgkmcnt(0)')
        if len(chk) == 2:
            P(f'v_and_b32 {v(vT)}, {v(chk[0])}, {v(chk[1])}\nv_cmp_eq_u32 vcc, 0, {v(vT)}')
        else: P(f'v_cmp_eq_u32 vcc, 0, {v(chk[0])}')
        if sleep:
            done = lab(name + 'd')
            P(f's_cbranch_vccz {done}\ns_sleep {sleep}\ns_branch {top}\n{done}:')
        else: P(f's_cbranch_vccnz {top}')
    def hint_wait(name, soff):
        top = lab(name)
        P(f's_add_u32 {s(sMASK)}, {s(sWSP)}, {s(soff)}\ns_addc_u32 {s(sMASK+1)}, {s(sWSP+1)}, 0\ns_mov_b32 {s(sSPIN)}, 0')
        P(f'{top}:')
        P(f's_load_dwordx8 {s(sG,8)}, {s(sMASK,2)}, 0 glc')
        P(f's_add_u32 {s(sSPIN)}, {s(sSPIN)}, 1\ns_cmp_gt_u32 {s(sSPIN)}, {cfg.spin}\ns_cbranch_scc1 L_END')
        P('s_waitcnt lgkmcnt(0)')
        P(f's_xor_b32 {s(sG)}, {s(sG)}, {s(sTAG)}')
        for k in range(1, 8): P(f's_xor_b32 {s(sG+k)}, {s(sG+k)}, {s(sTAG)}\ns_or_b32 {s(sG)}, {s(sG)}, {s(sG+k)}')
        done = lab(name + 'd')
        P(f's_cbranch_scc0 {done}')
        if cfg.hsleep: P(f's_sleep {cfg.hsleep}')
        P(f's_branch {top}\n{done}:')
    def wave_reduce(op, regs):
        for mod in ('quad_perm:[1,0,3,2] row_mask:0xf', 'quad_perm:[2,3,0,1] row_mask:0xf', 'row_ror:4 row_mask:0xf', 'row_ror:8 row_mask:0xf',
                    'row_bcast:15 row_mask:0xa', 'row_bcast:31 row_mask:0xc'):
            for r in regs: P(f'{op}_dpp {v(r)}, {v(r)}, {v(r)} {mod} bank_mask:0xf')
    def unpack(lo, hi, src):
        if lo == src: P(f'v_and_b32 {v(hi)}, 0xffff0000, {v(src)}\nv_lshlrev_b32 {v(lo)}, 16, {v(src)}')
        else: P(f'v_lshlrev_b32 {v(lo)}, 16, {v(src)}\nv_and_b32 {v(hi)}, 0xffff0000, {v(src)}')
    def silu_multi(rs, ts):
        for r, t in zip(rs, ts): P(f'v_mul_f32 {v(t)}, {NLOG2E}, {v(r)}')
        for r, t in zip(rs, ts): P(f'v_exp_f32 {v(t)}, {v(t)}')
        for r, t in zip(rs, ts): P(f'v_add_f32 {v(t)}, 1.0, {v(t)}')
        for r, t in zip(rs, ts): P(f'v_rcp_f32 {v(t)}, {v(t)}')
        for r, t in zip(rs, ts): P(f'v_mul_f32 {v(r)}, {v(r)}, {v(t)}')
    def rnd(r): P(f'v_cvt_pk_bf16_f32 {v(r)}, {v(r)}, {v(r)}\nv_and_b32 {v(r)}, 0xffff0000, {v(r)}')

    vMA, vMB, vMC, vPUB = 16, 17, 18, 19
    vMT, vD0, vAA, vS4 = 64, 36, 52, 40
    def modtile_issue(sRB, sCOL):
        srd(SRD_A, pC, 1024); srd(SRD_B, pWM, 512*6144)
        P(f's_lshl_b32 {s(sO1)}, {s(sRB)}, 8')
        P(f'buffer_load_dword {v(vMC)}, {v(vMA)}, {S(SRD_A)}, {s(sO1)} offen')
        P(f's_mul_i32 {s(sO1)}, {s(sRB)}, {128*6144}\ns_add_u32 {s(sO1)}, {s(sO1)}, {s(sCOL)}')
        for i in range(16):
            P(f'buffer_load_dwordx4 {v(vMT+4*i,4)}, {v(vMB)}, {S(SRD_B)}, {s(sO1)} offen {cfg.wpol}')
            if i < 15: P(f's_add_u32 {s(sO1)}, {s(sO1)}, 6144')
    def modtile_compute(nafter, soff):
        P(f's_waitcnt vmcnt({16+nafter})')
        unpack(vS4, vS4+1, vMC)
        silu_multi([vS4, vS4+1], [vS4+2, vS4+3])
        for e in range(2): P(f'v_cvt_pk_bf16_f32 {v(vS4+e)}, {v(vS4+e)}, {v(vS4+e)}')
        lohi(vS4)
        P(f's_waitcnt vmcnt({nafter})')
        chain(vD0, 16, [vMT+4*i for i in range(16)], lohi_srcs(vS4), vAA)
        finish2(vD0)
        publish(vD0, vPUB, soff, M2SET)

    P(f's_cmp_ge_u32 {s(sB)}, 256\ns_cbranch_scc1 L_END')
    if cfg.diag:
        for i in range(9): P(f's_mov_b32 {s(sDIAG+2*i)}, 0')
    stamp('start')
    P(f's_load_dwordx4 {s(sKP,4)}, s[0:1], 8')
    P(f's_load_dwordx16 {s(pWQ,16)}, s[0:1], 24')
    P(f's_load_dwordx2 {s(sWSP,2)}, s[0:1], 104')
    P(f's_load_dwordx2 {s(pX,2)}, s[0:1], 0')
    P(f's_load_dwordx2 {s(pOUT,2)}, s[0:1], 88')
    P(f'v_lshrrev_b32 {v(vT)}, 6, v0\nv_and_b32 {v(vL)}, 63, v0')
    P(f'v_readfirstlane_b32 {s(sW)}, {v(vT)}')
    P(f'v_lshlrev_b32 {v(vT)}, 2, {v(vL)}\nv_add_u32 {v(vT)}, {hex(L_FLAG)}, {v(vT)}\nv_mov_b32 {v(vT+1)}, 0')
    P(f'ds_write_b32 {v(vT)}, {v(vT+1)}')
    P(f's_and_b32 {s(sH)}, {s(sB)}, 31\ns_lshr_b32 {s(sJ)}, {s(sB)}, 5\ns_and_b32 {s(sX)}, {s(sB)}, 7\ns_lshr_b32 {s(sKK)}, {s(sB)}, 3')
    vKA, vVA = 8, 12
    P(f'v_lshrrev_b32 {v(vT)}, 4, {v(vL)}\nv_and_b32 {v(vT+1)}, 15, {v(vL)}')
    P(f'v_lshlrev_b32 {v(vVA)}, 10, {v(vT)}\nv_lshl_add_u32 {v(vVA)}, {v(vT+1)}, 4, {v(vVA)}')
    if cfg.ksplit:
        P(f'v_lshlrev_b32 {v(vT+2)}, 2, {v(vT)}\nv_xor_b32 {v(vT+1)}, {v(vT+1)}, {v(vT+2)}\nv_lshlrev_b32 {v(vT+1)}, 4, {v(vT+1)}\nv_lshl_add_u32 {v(vKA)}, {v(vT)}, 10, {v(vT+1)}')
        for i in range(1, 4): P(f'v_xor_b32 {v(vKA+i)}, {16*i}, {v(vKA)}')
    else:
        P(f'v_xor_b32 {v(vT+1)}, {v(vT+1)}, {v(vT)}\nv_lshlrev_b32 {v(vT+1)}, 4, {v(vT+1)}\nv_lshl_add_u32 {v(vKA)}, {v(vT)}, 8, {v(vT+1)}')
        for i in range(1, 4): P(f'v_xor_b32 {v(vKA+i)}, {64*i}, {v(vKA)}')
    P(f's_lshl_b32 {s(sO0)}, {s(sH)}, 20\ns_lshl_b32 {s(sO3)}, {s(sJ)}, 2\ns_add_u32 {s(sO3)}, {s(sO3)}, {s(sW)}\ns_lshl_b32 {s(sO3)}, {s(sO3)}, 12')
    P(f'v_lshlrev_b32 {v(vMA)}, 2, {v(vL)}\nv_lshrrev_b32 {v(vT)}, 3, {v(vL)}\nv_mul_u32_u24 {v(vMB)}, {16*6144}, {v(vT)}\nv_and_b32 {v(vT+1)}, 7, {v(vL)}\nv_lshl_add_u32 {v(vMB)}, {v(vT+1)}, 4, {v(vMB)}')
    P(f'v_lshrrev_b32 {v(vT)}, 4, {v(vL)}\nv_lshlrev_b32 {v(vT)}, 7, {v(vT)}\nv_lshl_add_u32 {v(vPUB)}, {v(vT+1)}, 4, {v(vT)}')
    vXF, vXS, vL16, vWA, vXA = 28, 32, 60, 62, 33
    P(f'v_lshlrev_b32 {v(vL16)}, 4, {v(vL)}')
    P(f'v_bfe_u32 {v(vT)}, {v(vL)}, 4, 1\nv_lshrrev_b32 {v(vT+2)}, 5, {v(vL)}\nv_lshl_add_u32 {v(vT)}, {v(vT)}, 1, {v(vT+2)}')
    P(f'v_lshl_add_u32 {v(vXA)}, {v(vT+1)}, 2, {v(vT)}\nv_lshlrev_b32 {v(vXA)}, 2, {v(vXA)}\nv_lshlrev_b32 {v(vWA)}, 14, {v(vT)}')
    P(f'v_and_b32 {v(vT+1)}, 15, {v(vL)}\nv_lshl_add_u32 {v(vWA)}, {v(vT+1)}, 4, {v(vWA)}')
    if cfg.tearly == 1:
        P(f's_sub_u32 {s(sT2)}, {s(sKK)}, 16\ns_lshl_b32 {s(sT2)}, {s(sT2)}, 2\ns_add_u32 {s(sT2)}, {s(sT2)}, {s(sX)}\ns_lshr_b32 {s(sT1B)}, {s(sT2)}, 3\ns_and_b32 {s(sT2)}, {s(sT2)}, 7')
        P(f's_cmp_lt_u32 {s(sX)}, 4\ns_cselect_b32 {s(sT2)}, {s(sT2)}, 99\ns_cmp_ge_u32 {s(sKK)}, 16\ns_cselect_b32 {s(sT2)}, {s(sT2)}, 99')
    else:
        P(f's_sub_u32 {s(sT2)}, {s(sKK)}, 16\ns_mov_b32 {s(sT1B)}, {s(sX)}')
    P(f's_and_b32 {s(sT0)}, {s(sT2)}, 1\ns_lshl_b32 {s(sT0)}, {s(sT0)}, 10\ns_lshl_b32 {s(sT1)}, {s(sT1B)}, 7\ns_add_u32 {s(sT1)}, {s(sT1)}, {s(sT0)}\ns_lshr_b32 {s(sT0)}, {s(sT2)}, 1\ns_lshl_b32 {s(sO2)}, {s(sJ)}, 7')
    P('s_waitcnt lgkmcnt(0)')
    P(f's_cmp_eq_u32 {s(sW)}, 4\ns_cbranch_scc0 L_B0')
    if cfg.b0late: P('s_setprio 3')
    P(f's_cmp_lt_u32 {s(sT2)}, 8\ns_cbranch_scc0 L_XLD')
    modtile_issue(sT0, sT1)
    P('L_XLD:')
    srd(SRD_C, pX, 1024)
    P(f'buffer_load_dwordx4 {v(vXF,4)}, {v(vL16)}, {S(SRD_C)}, 0 offen')
    P(f'buffer_load_dword {v(vXS)}, {v(vXA)}, {S(SRD_C)}, {s(sO2)} offen')
    vWQ = 128
    def wq_issue():
        srd(SRD_C, pWQ, 4 << 20)
        P(f's_lshl_b32 {s(sO2)}, {s(sJ)}, 19\ns_lshl_b32 {s(sT0)}, {s(sH)}, 8\ns_add_u32 {s(sO2)}, {s(sO2)}, {s(sT0)}')
        for i in range(16):
            P(f'buffer_load_dwordx4 {v(vWQ+4*i,4)}, {v(vWA)}, {S(SRD_C)}, {s(sO2)} offen {cfg.wpol}')
            if i < 15: P(f's_add_u32 {s(sO2)}, {s(sO2)}, {8192 if (i & 1) == 0 else 8192*7}')
    if cfg.wq0: wq_issue()
    P('L_B0:')
    if not cfg.b0late: P('s_barrier')
    P(f's_cmp_ge_u32 {s(sW)}, 4\ns_cbranch_scc1 L_CW')

    srd(SRD_K, sKP, 32 << 20)
    sTL, sRS, sTL0 = sG, sG+1, sG+2
    P(f's_mul_i32 {s(sTL0)}, {s(sH)}, {cfg.th}\ns_and_b32 {s(sTL0)}, {s(sTL0)}, 7\ns_lshl_b32 {s(sTL0)}, {s(sTL0)}, 17')
    def firsttile():
        P(f's_mov_b32 {s(sTL)}, {s(sTL0)}\ns_mov_b32 {s(sRS)}, {s(sO3)}\ns_add_u32 {s(sO1)}, {s(sO0)}, {s(sTL)}\ns_add_u32 {s(sO1)}, {s(sO1)}, {s(sRS)}')
    def nexttile():
        P(f's_add_u32 {s(sTL)}, {s(sTL)}, 0x20000\ns_and_b32 {s(sTL)}, {s(sTL)}, 0xe0000\ns_add_u32 {s(sRS)}, {s(sRS)}, {cfg.rot << 12}\ns_and_b32 {s(sRS)}, {s(sRS)}, 0x1f000\ns_add_u32 {s(sO1)}, {s(sO0)}, {s(sTL)}\ns_add_u32 {s(sO1)}, {s(sO1)}, {s(sRS)}')
    firsttile()
    P(f's_lshl_b32 {s(sT0)}, {s(sW)}, 15\ns_mov_b32 m0, {s(sT0)}\ns_mov_b32 {s(sT1)}, 0')
    stamp('L_k0')
    vV = 128
    def stream(ds, sfx):
        DK = ds[0]
        def DV(idx): return ds[0] if idx < ds[1] else ds[2]
        P(f'L_KLOOP{sfx}:')
        for i in range(4):
            if cfg.ksplit and i: P(f's_add_u32 m0, {s(sT0)}, {768*i}')
            P(f's_waitcnt vmcnt({DK-1})')
            P(f'buffer_load_dwordx4 {v(vKA+i)}, {S(SRD_K)}, {s(sO1)} offen offset:{(256 if cfg.ksplit else 1024)*i} {cfg.kpol} lds')
        if cfg.b0late: P(f's_cmp_eq_u32 {s(sT1)}, 0\ns_cbranch_scc0 L_KL2{sfx}\ns_barrier\nL_KL2{sfx}:')
        nexttile()
        P(f's_add_u32 {s(sT0)}, {s(sT0)}, 4096\ns_mov_b32 m0, {s(sT0)}\ns_add_u32 {s(sT1)}, {s(sT1)}, 1\ns_cmp_lt_u32 {s(sT1)}, 8\ns_cbranch_scc1 L_KLOOP{sfx}')
        stamp('L_kissued')
        srd(SRD_V, sVP, 32 << 20)
        firsttile()
        P(f's_lshl_b32 {s(sT0)}, {s(sW)}, 3\ns_add_u32 {s(sT0)}, {s(sT0)}, {hex(L_FLAG)}\nv_mov_b32 {v(vT)}, {s(sT0)}\nv_mov_b32 {v(vT+1)}, 1')
        for idx in range(32):
            t, i = idx >> 2, idx & 3
            P(f's_waitcnt vmcnt({DV(idx)-1})')
            if idx == DK - 1:
                P(f'ds_write_b32 {v(vT)}, {v(vT+1)}')
                stamp('L_klanded')
            P(f'buffer_load_dwordx4 {v(vV+4*idx,4)}, {v(vVA)}, {S(SRD_V)}, {s(sO1)} offen offset:{256*i} {cfg.vpol}')
            if i == 3 and t < 7: nexttile()
    if cfg.dvar:
        P(f's_getreg_b32 {s(sT2)}, hwreg(HW_REG_XCC_ID, 0, 3)')
        P(f's_bitcmp1_b32 {s(sT2)}, 2\ns_cbranch_scc1 L_STH')
        P(f's_bitcmp1_b32 {s(sT2)}, 0\ns_cbranch_scc1 L_ST1')
        stream(cfg.dvar[0], 'a'); P('s_branch L_STD\nL_ST1:')
        stream(cfg.dvar[1], 'b'); P('s_branch L_STD\nL_STH:')
        P(f's_bitcmp1_b32 {s(sT2)}, 0\ns_cbranch_scc1 L_ST3')
        stream(cfg.dvar[2], 'c'); P('s_branch L_STD\nL_ST3:')
        stream(cfg.dvar[3], 'd')
        P('L_STD:')
    elif cfg.dodd:
        P(f's_getreg_b32 {s(sT2)}, hwreg(HW_REG_XCC_ID, 0, 1)\ns_cmp_eq_u32 {s(sT2)}, 1\ns_cbranch_scc1 L_STO')
        stream(cfg.dsched, 'a'); P('s_branch L_STD\nL_STO:')
        stream(cfg.dodd, 'b')
        P('L_STD:')
    else: stream(cfg.dsched, '')
    stamp('L_vissued')
    def masks(pk=False):
        P(f'v_and_b32 {v(vT)}, 1, {v(vL)}\nv_lshlrev_b32 {v(vT)}, 4, {v(vT)}\nv_mov_b32 {v(vT+1)}, 0xffff\nv_lshlrev_b32 {v(vT+1)}, {v(vT)}, {v(vT+1)}')
        P(f'v_bfe_u32 {v(vT)}, {v(vL)}, 1, 2')
        for w in range(4):
            P(f'v_cmp_eq_u32 vcc, {w}, {v(vT)}\nv_cndmask_b32 {v(vM+w)}, 0, {v(vT+1)}, vcc')
            if pk and cfg.pkand: P(f'v_cndmask_b32 {v(vF+w)}, 0, 1.0, vcc')
        if pk and cfg.pkand: P(f'v_mov_b32 {v(vHM)}, {v(vT+1)}')
    def common_setup():
        P(f's_load_dword {s(sTAG)}, {s(sWSP,2)}, 0')
        srd(SRD_WS, sWSP, WS_BYTES)
        masks(True)
    masks()
    vPA, vOA, vP, vA, vD = 13, 14, 16, 48, 56
    P(f'v_lshrrev_b32 {v(vT)}, 4, {v(vL)}\nv_lshlrev_b32 {v(vT)}, 4, {v(vT)}\ns_lshl_b32 {s(sT0)}, {s(sW)}, 9\ns_add_u32 {s(sT0)}, {s(sT0)}, {hex(L_P)}\nv_add_u32 {v(vPA)}, {s(sT0)}, {v(vT)}')
    P(f's_add_u32 {s(sT0)}, {s(sT0)}, {hex(L_OP - L_P)}\nv_lshlrev_b32 {v(vT)}, 3, {v(vL)}\nv_add_u32 {v(vOA)}, {s(sT0)}, {v(vT)}')
    P('s_waitcnt lgkmcnt(0)')
    P('s_barrier')
    stamp('L_b1')
    for t in range(8): P(f'ds_read_b128 {v(vP+4*t,4)}, {v(vPA)} offset:{64*t}')
    P('s_waitcnt lgkmcnt(7)')
    afrag(vA, vP)
    for idx in range(32):
        if idx + 1 < 32:
            if (idx + 1) % 4 == 0: P(f's_waitcnt lgkmcnt({7 - (idx+1)//4})')
            afrag(vA + 4*((idx+1) & 1), vP + idx + 1)
        P(f's_waitcnt vmcnt({31-idx})')
        mfma(vD, vA + 4*(idx & 1), vV + 4*idx, first=(idx == 0))
    stamp('L_pv')
    P(f'v_permlane32_swap_b32 {v(vD)}, {v(vD+2)}\nv_permlane32_swap_b32 {v(vD+1)}, {v(vD+3)}')
    P(f'ds_write_b64 {v(vOA)}, {v(vD,2)}')
    P('s_waitcnt lgkmcnt(0)')
    P('s_barrier')
    P('s_endpgm' if not cfg.diag else 's_branch L_END')

    P('L_CW:')
    if cfg.gprobe and cfg.gprobe[0] in 'MR':
        P(f's_waitcnt lgkmcnt(0)\ns_mov_b32 s96, {s(sWSP)}\ns_mov_b32 s97, {s(sWSP+1)}\ns_mov_b32 s98, {hex(WS_BYTES)}\ns_mov_b32 s99, 0x20000')
        P(f's_lshl_b32 s100, {s(sB)}, 2\ns_and_b32 s101, {s(sW)}, 3\ns_add_u32 s100, s100, s101\ns_lshl_b32 s100, s100, 3\ns_add_u32 s100, s100, {hex(DIAG)}')
        P(f's_mov_b64 exec, 1\nv_mov_b32 v254, {s(sDIAG)}\nv_mov_b32 v255, {s(sDIAG)}\nv_mov_b32 v253, 0\nbuffer_store_dwordx2 v[254:255], v253, s[96:99], s100 offen sc1\ns_mov_b64 exec, -1\ns_waitcnt vmcnt(0)')
    if cfg.b0late: P('s_barrier')
    if cfg.prio: P(f's_setprio {cfg.prio}')
    P(f's_cmp_eq_u32 {s(sW)}, 4\ns_cbranch_scc0 L_C123')
    vGA = 192
    common_setup()
    P('s_waitcnt lgkmcnt(0)')
    P(f's_add_u32 {s(sTAG)}, {s(sTAG)}, 1')
    if cfg.local:
        P(f's_getreg_b32 {s(sLOC)}, hwreg(HW_REG_XCC_ID, 0, 3)\ns_lshl_b32 {s(sT0)}, {s(sTAG)}, 3\ns_or_b32 {s(sLOC)}, {s(sLOC)}, {s(sT0)}')
        P(f's_lshl_b32 {s(sO3)}, {s(sH)}, 7\ns_add_u32 {s(sO3)}, {s(sO3)}, {hex(X0)}\ns_lshl_b32 {s(sT0)}, {s(sJ)}, 2\ns_add_u32 {s(sT0)}, {s(sT0)}, {s(sO3)}\nv_mov_b32 {v(vT)}, {s(sT0)}\nv_mov_b32 {v(vT+1)}, {s(sLOC)}')
        P(f's_lshl_b32 {s(sR)}, {s(sX)}, 3\ns_lshr_b32 {s(sT0)}, {s(sKK)}, 2\ns_add_u32 {s(sR)}, {s(sR)}, {s(sT0)}\ns_lshl_b32 {s(sR)}, {s(sR)}, 7\ns_add_u32 {s(sR)}, {s(sR)}, {hex(X0B)}')
        P(f's_and_b32 {s(sT0)}, {s(sKK)}, 3\ns_lshl_b32 {s(sT0)}, {s(sT0)}, 2\ns_add_u32 {s(sT0)}, {s(sT0)}, {s(sR)}\nv_writelane_b32 {v(vT)}, {s(sT0)}, 1')
        P(f's_lshl_b32 {s(sT0)}, {s(sX)}, 7\ns_lshl_b32 {s(sO2)}, {s(sKK)}, 2\ns_add_u32 {s(sT0)}, {s(sT0)}, {s(sO2)}\ns_add_u32 {s(sT0)}, {s(sT0)}, {hex(X0C)}\nv_writelane_b32 {v(vT)}, {s(sT0)}, 2')
        if cfg.mlat:
            P(f's_lshl_b32 {s(sT0)}, {s(sH)}, 7\ns_lshl_b32 {s(sO2)}, {s(sJ)}, 3\ns_add_u32 {s(sT0)}, {s(sT0)}, {s(sO2)}\ns_add_u32 {s(sT0)}, {s(sT0)}, {hex(X3)}\nv_writelane_b32 {v(vT)}, {s(sT0)}, 3')
            P(f's_add_u32 {s(sT0)}, {s(sT0)}, 4\nv_writelane_b32 {v(vT)}, {s(sT0)}, 4\nv_writelane_b32 {v(vT+1)}, 0, 3\nv_writelane_b32 {v(vT+1)}, 0, 4')
        setexec(31 if cfg.mlat else 7)
        P(f'buffer_store_dword {v(vT+1)}, {v(vT)}, {S(SRD_WS)}, 0 offen sc1')
        setexec(ALL)
    P(f's_cmp_lt_u32 {s(sT2)}, 8\ns_cbranch_scc0 L_NOT1')
    P(f's_lshl_b32 {s(sO2)}, {s(sT1B)}, 3\ns_add_u32 {s(sO2)}, {s(sO2)}, {s(sT2)}\ns_lshl_b32 {s(sO2)}, {s(sO2)}, 9\ns_add_u32 {s(sO2)}, {s(sO2)}, {hex(X1)}')
    modtile_compute((18 if cfg.wq0 else 2) + cfg.local, sO2)
    if cfg.hint:
        P(f's_lshl_b32 {s(sO2)}, {s(sT1B)}, 9\ns_lshl_b32 {s(sT0)}, {s(sT2)}, 2\ns_add_u32 {s(sO2)}, {s(sO2)}, {s(sT0)}\ns_add_u32 {s(sO2)}, {s(sO2)}, {hex(X1F)}\nv_lshlrev_b32 {v(vT)}, 7, {v(vL)}')
        setexec(0xf)
        P(f'buffer_store_dword {v(vD0+2)}, {v(vT)}, {S(SRD_WS)}, {s(sO2)} offen sc1')
        setexec(ALL)
    stamp('C0_x1pub')
    if not cfg.wq0: wq_issue()
    P('s_branch L_T1D')
    P('L_NOT1:')
    if not cfg.wq0: wq_issue()
    P('L_T1D:')
    vx = 64
    P(f's_waitcnt vmcnt({16 + (cfg.local if cfg.wq0 else 0)})')
    for k in range(4): unpack(vx+2*k, vx+2*k+1, vXF+k)
    P(f'v_add_f32 {v(20)}, {v(vx)}, {v(vx+1)}\nv_add_f32 {v(21)}, {v(vx+2)}, {v(vx+3)}\nv_add_f32 {v(22)}, {v(vx+4)}, {v(vx+5)}\nv_add_f32 {v(23)}, {v(vx+6)}, {v(vx+7)}')
    P(f'v_add_f32 {v(20)}, {v(20)}, {v(21)}\nv_add_f32 {v(22)}, {v(22)}, {v(23)}\nv_add_f32 {v(20)}, {v(20)}, {v(22)}')
    wave_reduce('v_add_f32', [20])
    P(f'v_mul_f32 {v(20)}, {R512}, {v(20)}\nv_readlane_b32 {s(sT0)}, {v(20)}, 63')
    for k in range(8): P(f'v_subrev_f32 {v(vx+k)}, {s(sT0)}, {v(vx+k)}')
    P(f'v_mul_f32 {v(21)}, {v(vx)}, {v(vx)}')
    for k in range(1, 8): P(f'v_fmac_f32 {v(21)}, {v(vx+k)}, {v(vx+k)}')
    wave_reduce('v_add_f32', [21])
    P(f'v_mul_f32 {v(21)}, {R512}, {v(21)}')
    P(f'v_cvt_pk_bf16_f32 {v(22)}, {v(20)}, {v(21)}')
    P(f'v_and_b32 {v(21)}, 0xffff0000, {v(22)}\nv_lshlrev_b32 {v(20)}, 16, {v(22)}\nv_add_f32 {v(21)}, {EPS}, {v(21)}')
    rnd(21); P(f'v_sqrt_f32 {v(21)}, {v(21)}'); rnd(21); P(f'v_rcp_f32 {v(22)}, {v(21)}')
    P(f'v_readlane_b32 {s(sT0)}, {v(20)}, 63\nv_readlane_b32 {s(sT1)}, {v(21)}, 63\nv_readlane_b32 {s(sT2)}, {v(22)}, 63')
    vLN = 24
    unpack(vLN, vLN+1, vXS)
    for e in range(2): P(f'v_subrev_f32 {v(vLN+e)}, {s(sT0)}, {v(vLN+e)}')
    P(f'v_cvt_pk_bf16_f32 {v(20)}, {v(vLN)}, {v(vLN+1)}'); unpack(vLN, vLN+1, 20)
    for e in range(2): P(f'v_mul_f32 {v(20+e)}, {s(sT2)}, {v(vLN+e)}')
    for e in range(2): P(f'v_fma_f32 {v(vLN+e)}, -{v(20+e)}, {s(sT1)}, {v(vLN+e)}')
    for e in range(2): P(f'v_fma_f32 {v(vLN+e)}, {v(vLN+e)}, {s(sT2)}, {v(20+e)}')
    P(f'v_cvt_pk_bf16_f32 {v(20)}, {v(vLN)}, {v(vLN+1)}'); unpack(vLN, vLN+1, 20)
    P(f'v_bfe_u32 {v(vT)}, {v(vL)}, 3, 1\nv_lshlrev_b32 {v(vT)}, 9, {v(vT)}\nv_add_u32 {v(26)}, {v(vPUB)}, {v(vT)}')
    P(f's_lshl_b32 {s(sO0)}, {s(sJ)}, 12\ns_add_u32 {s(sO0)}, {s(sO0)}, {hex(X1)}')
    if cfg.hint:
        P(f's_lshl_b32 {s(sT0)}, {s(sJ)}, 2\ns_and_b32 {s(sT1)}, {s(sH)}, 3\ns_add_u32 {s(sT0)}, {s(sT0)}, {s(sT1)}\ns_lshl_b32 {s(sT0)}, {s(sT0)}, 7\ns_add_u32 {s(sT0)}, {s(sT0)}, {hex(X1F)}')
        hint_wait('h1h', sT0)
    else: P('s_waitcnt vmcnt(0)')
    if cfg.local:
        P(f's_add_u32 {s(sMASK)}, {s(sWSP)}, {s(sO3)}\ns_addc_u32 {s(sMASK+1)}, {s(sWSP+1)}, 0')
        P(f's_load_dwordx8 {s(sG,8)}, {s(sMASK,2)}, 0 glc')
        P(f's_load_dwordx4 s[8:11], {s(sWSP,2)}, {s(sR)} glc')
    stamp('C0_wq')
    if cfg.sleep1: P(f's_sleep {cfg.sleep1}')
    def issue():
        for k in range(4): P(f'buffer_load_dwordx4 {v(vGA+4*k,4)}, {v(26)}, {S(SRD_WS)}, {s(sO0)} offen offset:{1024*k} sc1')
    tagcheck_loop(issue, [vGA+4*k+2 for k in range(4)], 'h1')
    stamp('C0_h1')
    if cfg.local:
        P('s_waitcnt lgkmcnt(0)')
        P(f's_xor_b32 {s(sG)}, {s(sG)}, {s(sLOC)}')
        for k in range(1, 8): P(f's_xor_b32 {s(sG+k)}, {s(sG+k)}, {s(sLOC)}\ns_or_b32 {s(sG)}, {s(sG)}, {s(sG+k)}')
        P(f's_cselect_b32 {s(sT0)}, 0, 1')
        P(f's_xor_b32 s8, s8, {s(sLOC)}')
        for k in range(1, 4): P(f's_xor_b32 {s(8+k)}, {s(8+k)}, {s(sLOC)}\ns_or_b32 s8, s8, {s(8+k)}')
        P(f's_cselect_b32 {s(sR)}, 0, 1\ns_mov_b32 {s(sLOC)}, {s(sT0)}')
    b = vGA
    for e in range(2): P(f'v_add_f32 {v(b+e)}, {v(b+e)}, {v(b+4+e)}\nv_add_f32 {v(b+8+e)}, {v(b+8+e)}, {v(b+12+e)}')
    for e in range(2): P(f'v_add_f32 {v(b+e)}, {v(b+e)}, {v(b+8+e)}')
    P(f'v_cvt_pk_bf16_f32 {v(b+4)}, {v(b)}, {v(b+1)}\nv_mov_b32 {v(b+5)}, {v(b+4)}')
    P(f'v_mov_b32_dpp {v(b+4)}, {v(b+5)} row_ror:8 row_mask:0xf bank_mask:0xc')
    P(f'v_mov_b32_dpp {v(b+5)}, {v(b+5)} row_ror:8 row_mask:0xf bank_mask:0x3')
    unpack(b+8, b+9, b+4); unpack(b+6, b+7, b+5)
    P(f'v_add_f32 {v(b+6)}, 1.0, {v(b+6)}\nv_add_f32 {v(b+7)}, 1.0, {v(b+7)}\nv_cvt_pk_bf16_f32 {v(b+5)}, {v(b+6)}, {v(b+7)}')
    unpack(b+6, b+7, b+5)
    P(f'v_mul_f32 {v(b+6)}, {v(b+6)}, {v(vLN)}\nv_mul_f32 {v(b+7)}, {v(b+7)}, {v(vLN+1)}\nv_cvt_pk_bf16_f32 {v(b+5)}, {v(b+6)}, {v(b+7)}')
    unpack(b+6, b+7, b+5)
    P(f'v_add_f32 {v(b+6)}, {v(b+6)}, {v(b+8)}\nv_add_f32 {v(b+7)}, {v(b+7)}, {v(b+9)}')
    vH = 20
    P(f'v_cvt_pk_bf16_f32 {v(vH)}, {v(b+6)}, {v(b+6)}\nv_cvt_pk_bf16_f32 {v(vH+1)}, {v(b+7)}, {v(b+7)}')
    P(f's_lshl_b32 {s(sO1)}, {s(sH)}, 13\ns_add_u32 {s(sO1)}, {s(sO1)}, {hex(X2)}\ns_lshl_b32 {s(sO0)}, {s(sJ)}, 10\ns_add_u32 {s(sO0)}, {s(sO0)}, {s(sO1)}\ns_add_u32 {s(sO2)}, {s(sO1)}, 4096')
    chain(vD0, 16, [vWQ+4*i for i in range(16)], [(vH + (i & 1), f'row_newbcast:{i >> 1}') for i in range(16)], vAA)
    finish1(vD0)
    publish_loc(vD0, vL16, sO0)
    if cfg.hint:
        P(f's_lshl_b32 {s(sO3)}, {s(sH)}, 7\ns_add_u32 {s(sO3)}, {s(sO3)}, {hex(X2F)}\nv_mov_b32 {v(vT)}, 0\ns_lshl_b32 {s(sT0)}, {s(sJ)}, 2\ns_add_u32 {s(sT0)}, {s(sT0)}, {s(sO3)}')
        setexec(1)
        P(f'buffer_store_dword {v(vD0+2)}, {v(vT)}, {S(SRD_WS)}, {s(sT0)} offen sc1')
        setexec(ALL)
    stamp('C0_x2pub')
    P(f'v_bfe_u32 {v(vT)}, {v(vL)}, 4, 1\nv_lshrrev_b32 {v(vT+1)}, 5, {v(vL)}\nv_lshl_add_u32 {v(vT)}, {v(vT)}, 1, {v(vT+1)}\nv_and_b32 {v(vT+1)}, 15, {v(vL)}\nv_lshl_add_u32 {v(vT)}, {v(vT+1)}, 2, {v(vT)}')
    P(f'v_lshlrev_b32 {v(vT)}, 2, {v(vT)}\nv_add_u32 {v(26)}, {hex(L_Q)}, {v(vT)}')
    P(f'v_and_b32 {v(27)}, 3, {v(vL)}\nv_lshlrev_b32 {v(27)}, 3, {v(27)}\nv_add_u32 {v(27)}, {hex(L_FLAG + 4)}, {v(27)}\nv_mov_b32 {v(25)}, 1')
    if cfg.hint: hint_wait('qh', sO3)
    stamp('C0_qh')
    if cfg.sleep2: P(f's_sleep {cfg.sleep2}')
    def gather8(base_lo, base_hi):
        def issue():
            for k in range(8):
                P(f'buffer_load_dwordx4 {v(vGA+4*k,4)}, {v(vL16)}, {S(SRD_WS)}, {s(base_lo if k < 4 else base_hi)} offen offset:{1024*(k & 3)} sc1')
        return issue
    def sum8():
        for a, b2 in ((0, 1), (2, 3), (4, 5), (6, 7), (0, 2), (4, 6), (0, 4)):
            for e in (0, 1): P(f'v_add_f32 {v(vGA+4*a+e)}, {v(vGA+4*a+e)}, {v(vGA+4*b2+e)}')
    tagcheck_loop(gather8(sO1, sO2), [vGA+4*k+2 for k in range(8)], 'q')
    stamp('C0_q')
    sum8()
    P(f'v_cvt_pk_bf16_f32 {v(vT)}, {v(vGA)}, {v(vGA+1)}')
    P(f'ds_write_b32 {v(26)}, {v(vT)}')
    P(f'ds_write_b32 {v(27)}, {v(25)}')
    vg, vXv, vGAv, vGBv, vU16, vDA, vXC, vL16r, vBP, sJJ, sP, sB4, sD = 64, 12, 13, 14, 15, 17, 20, 16, 18, sG, 4, 12, 8
    def red_setup():
        P(f's_sub_u32 {s(sT0)}, {s(sKK)}, 8')
        P(f's_mov_b32 {s(sJJ)}, {s(sT0)}\ns_lshl_b32 {s(sR)}, {s(sX)}, 3\ns_add_u32 {s(sR)}, {s(sR)}, {s(sT0)}')
        if cfg.local:
            P(f's_lshl_b32 {s(sT1)}, {s(sX)}, 7\ns_add_u32 {s(sT1)}, {s(sT1)}, {hex(X0C)}\ns_add_u32 {s(sMASK)}, {s(sWSP)}, {s(sT1)}\ns_addc_u32 {s(sMASK+1)}, {s(sWSP+1)}, 0')
            P(f's_load_dwordx16 s[4:19], {s(sMASK,2)}, 0 glc\ns_load_dwordx16 s[20:35], {s(sMASK,2)}, 64 glc')
            P(f's_getreg_b32 {s(sLOC)}, hwreg(HW_REG_XCC_ID, 0, 3)\ns_lshl_b32 {s(sT1)}, {s(sTAG)}, 3\ns_or_b32 {s(sLOC)}, {s(sLOC)}, {s(sT1)}')
        P(f'v_lshlrev_b32 {v(vL16r)}, 4, {v(vL)}\nv_and_b32 {v(vU16)}, 3, {v(vL)}\nv_lshlrev_b32 {v(vU16)}, 4, {v(vU16)}')
        P(f'v_and_b32 {v(vT)}, 7, {v(vL)}\nv_lshlrev_b32 {v(vT)}, 4, {v(vT)}\nv_bfe_u32 {v(vT+1)}, {v(vL)}, 3, 1\nv_lshl_add_u32 {v(vT)}, {v(vT+1)}, 3, {v(vT)}\nv_bfe_u32 {v(vT+1)}, {v(vL)}, 4, 1\nv_lshl_add_u32 {v(vT)}, {v(vT+1)}, 2, {v(vT)}\nv_lshrrev_b32 {v(vT+1)}, 5, {v(vL)}\nv_lshl_add_u32 {v(vT+2)}, {v(vT+1)}, 1, {v(vT)}')
        P(f'v_bfe_u32 {v(vT)}, {v(vL)}, 4, 1\nv_lshlrev_b32 {v(vT)}, 7, {v(vT)}\nv_lshrrev_b32 {v(vT+1)}, 2, {v(vU16)}\nv_add_u32 {v(vBP)}, {v(vT)}, {v(vT+1)}\ns_lshl_b32 {s(sT1)}, {s(sX)}, 4\nv_add_u32 {v(vBP)}, {s(sT1)}, {v(vBP)}')
        P(f'v_lshrrev_b32 {v(vT)}, 2, {v(vL)}\nv_lshl_add_u32 {v(vDA)}, {v(vT)}, 12, {v(vU16)}')
        if cfg.local:
            P('s_waitcnt lgkmcnt(0)')
            P(f's_xor_b32 s4, s4, {s(sLOC)}')
            for k in range(5, 36): P(f's_xor_b32 {s(k)}, {s(k)}, {s(sLOC)}\ns_or_b32 s4, s4, {s(k)}')
            P(f's_cselect_b32 {s(sLOC)}, 0, 1')
            srd(SRD_WS, sWSP, WS_BYTES)
        srd(SRD_A, pX, 1024); srd(SRD_B, pOUT, 1024)
        P(f's_lshl_b32 {s(sT1)}, {s(sJJ)}, 7')
        P(f'buffer_load_ushort {v(vXv)}, {v(vT+2)}, {S(SRD_A)}, {s(sT1)} offen')
        P(f's_and_b32 {s(sT2)}, {s(sX)}, 1\ns_lshl_b32 {s(sT2)}, {s(sT2)}, 6\ns_add_u32 {s(sT1)}, {s(sT1)}, {s(sT2)}\ns_and_b32 {s(sT2)}, {s(sX)}, 2\ns_lshl_b32 {s(sT2)}, {s(sT2)}, 2\ns_add_u32 {s(sT1)}, {s(sT1)}, {s(sT2)}\ns_and_b32 {s(sT2)}, {s(sX)}, 4\ns_add_u32 {s(sG+2)}, {s(sT1)}, {s(sT2)}')
        for p_ in range(4): P(f's_lshl_b32 {s(sP+p_)}, {s(sJJ)}, 11\ns_add_u32 {s(sP+p_)}, {s(sP+p_)}, {hex(X4 + p_*16384)}')
        P(f's_lshl_b32 {s(sO0)}, {s(sJJ)}, 14\ns_add_u32 {s(sO0)}, {s(sO0)}, {hex(XB)}')
        if cfg.xbrep: P(f's_lshl_b32 {s(sT1)}, {s(sX)}, 17\ns_add_u32 {s(sO0)}, {s(sO0)}, {s(sT1)}')
        for k in range(4): P(f's_add_u32 {s(sB4+k)}, {s(sO0)}, {4096*k}')
        P(f's_lshl_b32 {s(sO3)}, {s(sX)}, 12\ns_lshl_b32 {s(sT1)}, {s(sJJ)}, 9\ns_add_u32 {s(sO3)}, {s(sO3)}, {s(sT1)}\ns_add_u32 {s(sO3)}, {s(sO3)}, {hex(XC)}')
        P(f's_lshr_b32 {s(sO2)}, {s(sJJ)}, 1\ns_lshl_b32 {s(sO2)}, {s(sO2)}, 10\ns_and_b32 {s(sT1)}, {s(sJJ)}, 1\ns_lshl_b32 {s(sT1)}, {s(sT1)}, 7\ns_add_u32 {s(sO2)}, {s(sO2)}, {s(sT1)}')
        P(f's_and_b32 {s(sT1)}, {s(sX)}, 1\ns_lshl_b32 {s(sT1)}, {s(sT1)}, 6\ns_add_u32 {s(sO2)}, {s(sO2)}, {s(sT1)}\ns_lshr_b32 {s(sT1)}, {s(sX)}, 1\ns_lshl_b32 {s(sT1)}, {s(sT1)}, 8\ns_add_u32 {s(sO2)}, {s(sO2)}, {s(sT1)}\ns_add_u32 {s(sO2)}, {s(sO2)}, {hex(XD)}')
        for k in range(3): P(f's_add_u32 {s(sD+k)}, {s(sO2)}, {hex(65536*k)}')
        for i in range(cfg.pipe.get('xd', 1)):
            for k in range(3): P(f'v_mov_b32 {v(192+12*i+8+k)}, {s(sTAG) if k == 2 else 0}')
    def x4_issue():
        for k in range(8): P(f'buffer_load_dwordx4 {v(vg+4*k,4)}, {v(vL16r)}, {S(SRD_WS)}, {s(sP + (k >> 1))} offen offset:{1024*(k & 1)} sc1')
    P('L_QKP:')
    vKR, vQ, vKB, vDQ, vS2, vE, vML = 8, 128, 144, 28, 208, 210, 216
    sM2 = sG
    P(f's_sub_u32 {s(sT2)}, {s(sW)}, 4\ns_lshl_b32 {s(sT0)}, {s(sT2)}, 3\ns_add_u32 {s(sT0)}, {s(sT0)}, {hex(L_FLAG)}\nv_mov_b32 {v(vT+2)}, {s(sT0)}')
    P(f'v_and_b32 {v(vT)}, 15, {v(vL)}\nv_lshrrev_b32 {v(vT+1)}, 4, {v(vL)}\nv_lshlrev_b32 {v(26)}, 4, {v(vT+1)}\nv_xor_b32 {v(vT+1)}, {v(vT+1)}, {v(vT)}\nv_lshlrev_b32 {v(vT+1)}, 4, {v(vT+1)}')
    if cfg.ksplit:
        P(f'v_and_b32 {v(vKR)}, 3, {v(vL)}\nv_lshlrev_b32 {v(vKR)}, 10, {v(vKR)}\nv_lshrrev_b32 {v(vT)}, 2, {v(vT)}\nv_lshl_add_u32 {v(vKR)}, {v(vT)}, 8, {v(vKR)}\nv_add_u32 {v(vKR)}, {v(vKR)}, {v(vT+1)}')
    else: P(f'v_lshl_add_u32 {v(vKR)}, {v(vT)}, 8, {v(vT+1)}')
    P(f's_lshl_b32 {s(sT0)}, {s(sT2)}, 15\nv_add_u32 {v(vKR)}, {s(sT0)}, {v(vKR)}')
    for q in range(1, 4): P(f'v_xor_b32 {v(vKR+q)}, {64*q}, {v(vKR)}')
    P(f'v_and_b32 {v(27)}, 7, {v(vL)}\nv_lshl_add_u32 {v(27)}, {v(27)}, 6, {v(26)}\nv_bfe_u32 {v(vT)}, {v(vL)}, 3, 1\nv_lshl_add_u32 {v(27)}, {v(vT)}, 3, {v(27)}')
    P(f's_lshl_b32 {s(sT0)}, {s(sT2)}, 9\ns_add_u32 {s(sT0)}, {s(sT0)}, {hex(L_P)}\nv_add_u32 {v(27)}, {s(sT0)}, {v(27)}\nv_add_u32 {v(26)}, {hex(L_Q)}, {v(26)}')
    P(f's_lshl_b32 {s(sT0)}, {s(sT2)}, 4\ns_add_u32 {s(sT0)}, {s(sT0)}, {hex(L_MS)}\nv_mov_b32 {v(25)}, {s(sT0)}\nv_mov_b32 {v(vML+2)}, 1\nv_mov_b32 {v(vML+3)}, 1')
    P(f's_mov_b32 {s(sMASK)}, 0x00010001\ns_mov_b32 {s(sMASK+1)}, 0x00010001\ns_mov_b32 {s(sM2)}, 0x01000100\ns_mov_b32 {s(sM2+1)}, 0x01000100')
    lds_wait('kq', vT+2, 2, 28, [28, 29], cfg.lsleep)
    stamp('C0_kready')
    for q in range(4): P(f'ds_read_b128 {v(vQ+4*q,4)}, {v(26)} offset:{64*q}')
    NB = 3; PD = NB - 1; NT = 8
    def kread(t, q): P(f'ds_read_b128 {v(vKB+16*(t % NB)+4*q,4)}, {v(vKR+q)} offset:{4096*t}')
    for t in range(PD):
        for q in range(4): kread(t, q)
    for t in range(NT + 1):
        u = t - 1
        for q in range(4):
            if t < NT:
                if q in (0, 2): P(f's_waitcnt lgkmcnt({min(4*PD - 2, 4*(NT - t) - 2 - q)})')
                mfma(vDQ + 4*(t & 1), vKB + 16*(t % NB) + 4*q, vQ + 4*q, first=(q == 0))
                if t + PD < NT: kread(t + PD, q)
            if t >= 1 and q >= 2:
                mk = sMASK if q == 2 else sM2
                for e in range(2):
                    P(f'v_cndmask_b32 {v(vS2+e)}, {v(vS2+e)}, {v(vDQ+4*(u & 1)+2*(q-2)+e)}, {s(mk,2)}')
        if t >= 1 and t < NT: P(f's_lshl_b64 {s(sMASK,2)}, {s(sMASK,2)}, 1\ns_lshl_b64 {s(sM2,2)}, {s(sM2,2)}, 1')
    stamp('C0_qk')
    P(f'v_cvt_pk_bf16_f32 {v(vE)}, {v(vS2)}, {v(vS2+1)}'); unpack(vS2, vS2+1, vE)
    for e in range(2): P(f'v_mul_f32 {v(vS2+e)}, {SCALE}, {v(vS2+e)}')
    P(f'v_cvt_pk_bf16_f32 {v(vE)}, {v(vS2)}, {v(vS2+1)}'); unpack(vS2, vS2+1, vE)
    P(f'v_max_f32 {v(vML)}, {v(vS2)}, {v(vS2+1)}')
    wave_reduce('v_max_f32', [vML])
    P(f'v_readlane_b32 {s(sT0)}, {v(vML)}, 63')
    for e in range(2): P(f'v_subrev_f32 {v(vE+e)}, {s(sT0)}, {v(vS2+e)}')
    for e in range(2): P(f'v_mul_f32 {v(vE+e)}, {LOG2E}, {v(vE+e)}')
    for e in range(2): P(f'v_exp_f32 {v(vE+e)}, {v(vE+e)}')
    P(f'v_add_f32 {v(vML+1)}, {v(vE)}, {v(vE+1)}')
    wave_reduce('v_add_f32', [vML+1])
    setexec(1 << 63)
    P(f'ds_write_b128 {v(25)}, {v(vML,4)}')
    setexec(ALL)
    P(f's_cmp_eq_u32 {s(sW)}, 4\ns_cbranch_scc1 L_C0ML')
    P(f's_cmp_eq_u32 {s(sW)}, 5\ns_cbranch_scc0 L_MLWAIT')
    if cfg.rwait == 4 or cfg.rearly:
        P(f's_sub_u32 {s(sT0)}, {s(sKK)}, 8\ns_cmp_lt_u32 {s(sT0)}, 8\ns_cbranch_scc0 L_NORED')
        red_setup()
        if cfg.rwait == 4: x4_issue()
        P('s_branch L_MLWAIT\nL_NORED:')
    P(f's_cmp_eq_u32 {s(sR)}, 99\ns_cbranch_scc0 L_MLWAIT')
    modtile_compute(0, sO2)
    P('L_MLWAIT:')
    P(f'v_mov_b32 {v(vT+2)}, {hex(L_ML)}')
    lds_wait('mlw', vT+2, 4, vML, [vML+2], cfg.lsleep)
    P('s_branch L_PCALC')
    P('L_C0ML:')
    P(f'v_and_b32 {v(vT+2)}, 3, {v(vL)}\nv_lshlrev_b32 {v(vT+2)}, 4, {v(vT+2)}\nv_add_u32 {v(vT+2)}, {hex(L_MS)}, {v(vT+2)}')
    P(f's_lshl_b32 {s(sO1)}, {s(sH)}, 7\ns_add_u32 {s(sO1)}, {s(sO1)}, {hex(X3)}\ns_lshl_b32 {s(sO0)}, {s(sJ)}, 4\ns_add_u32 {s(sO0)}, {s(sO0)}, {s(sO1)}')
    lds_wait('msw', vT+2, 4, 220, [222])
    P(f'v_max_f32_dpp {v(vML)}, {v(220)}, {v(220)} quad_perm:[1,0,3,2] row_mask:0xf bank_mask:0xf\nv_mov_b32 {v(vML+2)}, {s(sTAG)}\nv_mov_b32 {v(vML+3)}, {s(sTAG)}')
    P(f'v_max_f32_dpp {v(vML)}, {v(vML)}, {v(vML)} quad_perm:[2,3,0,1] row_mask:0xf bank_mask:0xf')
    P(f'v_sub_f32 {v(220)}, {v(220)}, {v(vML)}\nv_mul_f32 {v(220)}, {LOG2E}, {v(220)}\nv_exp_f32 {v(220)}, {v(220)}\nv_mov_b32 {v(vT)}, 0\nv_mul_f32 {v(vML+1)}, {v(220)}, {v(221)}')
    for mod in ('quad_perm:[1,0,3,2]', 'quad_perm:[2,3,0,1]'): P(f'v_add_f32_dpp {v(vML+1)}, {v(vML+1)}, {v(vML+1)} {mod} row_mask:0xf bank_mask:0xf')
    if cfg.mlat:
        P(f'v_readfirstlane_b32 s4, {v(vML)}\nv_readfirstlane_b32 s5, {v(vML+1)}')
        P(f's_add_u32 {s(sMASK)}, {s(sWSP)}, {s(sO1)}\ns_addc_u32 {s(sMASK+1)}, {s(sWSP+1)}, 0\ns_lshl_b32 {s(sT0)}, {s(sJ)}, 3\ns_mov_b32 {s(sSPIN)}, 0')
        P(f's_atomic_add_x2 s[4:5], {s(sMASK,2)}, {s(sT0)}')
        stamp('C0_x3pub')
        gl = [4 + 2*k for k in range(8)]
        P('s_waitcnt lgkmcnt(0)')
        P('L_MLW:')
        if cfg.sleep3: P(f's_sleep {cfg.sleep3}')
        P(f's_load_dwordx16 s[4:19], {s(sMASK,2)}, 0 glc')
        P(f's_add_u32 {s(sSPIN)}, {s(sSPIN)}, 1\ns_cmp_gt_u32 {s(sSPIN)}, {cfg.spin}\ns_cbranch_scc1 L_END')
        P('s_waitcnt lgkmcnt(0)')
        P(f's_min_u32 {s(sT0)}, s5, s7')
        for g in gl[2:]: P(f's_min_u32 {s(sT0)}, {s(sT0)}, {s(g+1)}')
        P(f's_cmp_eq_u32 {s(sT0)}, 0\ns_cbranch_scc1 L_MLW')
    else:
        publish(vML, vT, sO0, 1)
        stamp('C0_x3pub')
        P(f's_add_u32 {s(sMASK)}, {s(sWSP)}, {s(sO1)}\ns_addc_u32 {s(sMASK+1)}, {s(sWSP+1)}, 0\ns_mov_b32 {s(sSPIN)}, 0')
        gl = [4 + 4*k for k in range(8)]
        P('L_MLW:')
        if cfg.sleep3: P(f's_sleep {cfg.sleep3}')
        P(f's_load_dwordx16 s[4:19], {s(sMASK,2)}, 0 glc\ns_load_dwordx16 s[20:35], {s(sMASK,2)}, 64 glc')
        P(f's_add_u32 {s(sSPIN)}, {s(sSPIN)}, 1\ns_cmp_gt_u32 {s(sSPIN)}, {cfg.spin}\ns_cbranch_scc1 L_END')
        P('s_waitcnt lgkmcnt(0)')
        P(f's_xor_b32 {s(sT0)}, {s(gl[0]+2)}, {s(sTAG)}')
        for g in gl[1:]: P(f's_xor_b32 {s(sT1)}, {s(g+2)}, {s(sTAG)}\ns_or_b32 {s(sT0)}, {s(sT0)}, {s(sT1)}')
        P('s_cbranch_scc1 L_MLW')
    stamp('C0_ml')
    vG8 = 220
    P(f'v_mov_b32 {v(vML)}, {s(gl[0])}')
    for g in gl[1:]: P(f'v_max_f32 {v(vML)}, {s(g)}, {v(vML)}')
    for k, g in enumerate(gl): P(f'v_sub_f32 {v(vG8+k)}, {s(g)}, {v(vML)}')
    for k in range(8): P(f'v_mul_f32 {v(vG8+k)}, {LOG2E}, {v(vG8+k)}')
    for k in range(8): P(f'v_exp_f32 {v(vG8+k)}, {v(vG8+k)}')
    P(f'v_mul_f32 {v(vE)}, {s(gl[0]+1)}, {v(vG8)}')
    for k, g in enumerate(gl[1:]): P(f'v_fmac_f32 {v(vE)}, {s(g+1)}, {v(vG8+k+1)}')
    P(f'v_rcp_f32 {v(vE+1)}, {v(vE)}\nv_mov_b32 {v(vT+2)}, {hex(L_ML)}\nv_mov_b32 {v(vML+2)}, 1')
    P(f'v_fma_f32 {v(vE)}, -{v(vE)}, {v(vE+1)}, 1.0\nv_fma_f32 {v(vML+1)}, {v(vE)}, {v(vE+1)}, {v(vE+1)}')
    setexec(1)
    P(f'ds_write_b128 {v(vT+2)}, {v(vML,4)}')
    setexec(ALL)
    P('L_PCALC:')
    for e in range(2): P(f'v_sub_f32 {v(vE+e)}, {v(vS2+e)}, {v(vML)}')
    for e in range(2): P(f'v_mul_f32 {v(vE+e)}, {LOG2E}, {v(vE+e)}')
    for e in range(2): P(f'v_exp_f32 {v(vE+e)}, {v(vE+e)}')
    for e in range(2): P(f'v_mul_f32 {v(vE+e)}, {v(vE+e)}, {v(vML+1)}')
    for e in range(2): P(f'v_cvt_pk_bf16_f32 {v(vE+e)}, {v(vE+e)}, {v(vE+e)}')
    P(f'ds_write_b64 {v(27)}, {v(vE,2)}')
    srd(SRD_WS, sWSP, WS_BYTES)
    P(f's_cmp_eq_u32 {s(sW)}, 4\ns_cbranch_scc1 L_C0B1')
    P('s_waitcnt lgkmcnt(0)')
    P('s_barrier')
    P(f's_cmp_eq_u32 {s(sW)}, 5\ns_cbranch_scc1 L_C1B1')
    P('s_branch L_C23B1')
    P('L_C0B1:')
    srd(SRD_A, pWO, 4 << 20)
    P(f'v_bfe_u32 {v(vT)}, {v(vL)}, 3, 1\nv_lshlrev_b32 {v(vT)}, 16, {v(vT)}\nv_bfe_u32 {v(vT+1)}, {v(vL)}, 4, 1\nv_lshl_add_u32 {v(vT)}, {v(vT+1)}, 12, {v(vT)}\nv_lshrrev_b32 {v(vT+1)}, 5, {v(vL)}\nv_lshl_add_u32 {v(vT)}, {v(vT+1)}, 11, {v(vT)}')
    P(f'v_and_b32 {v(vT+1)}, 7, {v(vL)}\nv_lshl_add_u32 {v(vWA)}, {v(vT+1)}, 4, {v(vT)}')
    P(f's_lshl_b32 {s(sO0)}, {s(sH)}, 17\ns_lshl_b32 {s(sT0)}, {s(sJ)}, 7\ns_add_u32 {s(sO0)}, {s(sO0)}, {s(sT0)}')
    P('s_waitcnt lgkmcnt(0)')
    stamp('C0_p')
    P('s_barrier')
    vWO = 64
    def wo_issue(sreg):
        for i in range(16):
            P(f'buffer_load_dwordx4 {v(vWO+4*i,4)}, {v(vWA)}, {S(SRD_A)}, {s(sreg)} offen offset:{1024*(i & 1)} {cfg.wpol}')
            if (i & 1) == 1 and i < 15: P(f's_add_u32 {s(sreg)}, {s(sreg)}, 8192')
    if not cfg.wob2: wo_issue(sO0)
    else: P(f's_mov_b32 {s(sG)}, {s(sO0)}')
    P(f'v_lshrrev_b32 {v(vT+2)}, 1, {v(vL16)}\nv_add_u32 {v(vT+2)}, {hex(L_OP)}, {v(vT+2)}')
    P(f's_lshl_b32 {s(sO1)}, {s(sH)}, 13\ns_add_u32 {s(sO1)}, {s(sO1)}, {hex(XA)}\ns_lshl_b32 {s(sO0)}, {s(sJ)}, 10\ns_add_u32 {s(sO0)}, {s(sO0)}, {s(sO1)}\ns_add_u32 {s(sO2)}, {s(sO1)}, 4096')
    P(f's_lshl_b32 {s(sO3)}, {s(sJ)}, 5\ns_add_u32 {s(sO3)}, {s(sO3)}, {s(sH)}\ns_lshl_b32 {s(sO3)}, {s(sO3)}, 9\ns_add_u32 {s(sO3)}, {s(sO3)}, {hex(XB)}')
    P(f'v_mov_b32 {v(22)}, {s(sTAG)}')
    vAP, vDNA, vCA, vEA, vXBA = 8, 10, 11, 12, 13
    P(f'v_mov_b32 {v(14)}, {hex(L_FLAG + 160)}')
    if cfg.gwait:
        P(f'v_and_b32 {v(16)}, 31, {v(vL)}\nv_lshlrev_b32 {v(16)}, 2, {v(16)}\ns_lshl_b32 {s(sG)}, {s(sX)}, 7\ns_add_u32 {s(sG)}, {s(sG)}, {hex(XG)}')
    P(f'v_bfe_u32 {v(vT)}, {v(vL)}, 3, 1\nv_lshl_add_u32 {v(vXBA)}, {v(vT)}, 17, {v(vPUB)}')
    sQ, sW2, sDN, sEP, sEG, sDP, sC0 = 4, 6, 8, 9, 10, 11, 12
    P(f's_sub_u32 {s(sT0)}, {s(sKK)}, 8\ns_cmp_lt_u32 {s(sKK)}, 8\ns_cselect_b32 {s(sT1)}, {s(sKK)}, {s(sT0)}\ns_and_b32 {s(sQ)}, {s(sT1)}, 3\ns_lshr_b32 {s(sT1)}, {s(sT1)}, 2')
    P(f's_mul_i32 {s(sIM)}, {s(sX)}, 6\ns_add_u32 {s(sIM)}, {s(sIM)}, {s(sT1)}\ns_cmp_lt_u32 {s(sT0)}, 8\ns_cselect_b32 {s(sIM)}, 255, {s(sIM)}')
    srd(SRD_B, pW2, 1376*1024)
    P(f'v_lshrrev_b32 {v(vT)}, 3, {v(vL)}\nv_mul_u32_u24 {v(vT)}, {16*2752}, {v(vT)}\nv_and_b32 {v(vT+1)}, 3, {v(vL)}\nv_lshl_add_u32 {v(vT)}, {v(vT+1)}, 4, {v(vT)}')
    P(f's_mul_i32 {s(sT0)}, {s(sQ)}, {128*2752}\ns_min_u32 {s(sT1)}, {s(sIM)}, {NM-1}\ns_lshl_b32 {s(sT1)}, {s(sT1)}, 6\ns_add_u32 {s(sT0)}, {s(sT0)}, {s(sT1)}\nv_add_u32 {v(vT)}, {s(sT0)}, {v(vT)}')
    P(f's_mov_b32 {s(sMASK)}, 0xf0f0f0f0\ns_mov_b32 {s(sMASK+1)}, 0xf0f0f0f0\ns_mov_b32 {s(sW2)}, 2752*2\ns_mov_b32 {s(sW2+1)}, 0')
    P(f'v_mov_b32 {v(vAP)}, {s(pW1)}\nv_mov_b32 {v(vAP+1)}, {s(pW1+1)}\nv_mov_b32 {v(vT+1)}, {s(pW3)}\nv_mov_b32 {v(vCA)}, {s(pW3+1)}')
    P(f'v_cndmask_b32 {v(vAP)}, {v(vAP)}, {v(vT+1)}, {s(sMASK,2)}\nv_cndmask_b32 {v(vAP+1)}, {v(vAP+1)}, {v(vCA)}, {s(sMASK,2)}')
    P(f'v_add_co_u32 {v(vAP)}, vcc, {v(vAP)}, {v(vT)}\nv_addc_co_u32 {v(vAP+1)}, vcc, 0, {v(vAP+1)}, vcc')
    P(f'v_bfe_u32 {v(vT)}, {v(vL)}, 4, 1\nv_lshlrev_b32 {v(vDNA)}, 12, {v(vT)}\nv_lshrrev_b32 {v(vT)}, 5, {v(vL)}\nv_lshl_add_u32 {v(vDNA)}, {v(vT)}, 11, {v(vDNA)}\nv_and_b32 {v(vT)}, 15, {v(vL)}\nv_lshl_add_u32 {v(vDNA)}, {v(vT)}, 4, {v(vDNA)}')
    P(f's_lshl_b32 {s(sDN)}, {s(sIM)}, 15\ns_lshl_b32 {s(sT0)}, {s(sQ)}, 8\ns_add_u32 {s(sDN)}, {s(sDN)}, {s(sT0)}')
    P(f's_lshl_b32 {s(sEG)}, {s(sIM)}, 11\ns_add_u32 {s(sEG)}, {s(sEG)}, {hex(XE)}\ns_lshl_b32 {s(sT0)}, {s(sQ)}, 9\ns_add_u32 {s(sEP)}, {s(sEG)}, {s(sT0)}')
    P(f's_lshl_b32 {s(sDP)}, {s(sIM)}, 12\ns_lshl_b32 {s(sT0)}, {s(sQ)}, 10\ns_add_u32 {s(sDP)}, {s(sDP)}, {s(sT0)}\ns_add_u32 {s(sDP)}, {s(sDP)}, {hex(XD)}')
    P(f's_lshl_b32 {s(sT1)}, {s(sX)}, 12\ns_add_u32 {s(sT1)}, {s(sT1)}, {hex(XC)}')
    for k in range(4): P(f's_add_u32 {s(sT0)}, {s(sQ)}, {k}\ns_and_b32 {s(sT0)}, {s(sT0)}, 3\ns_lshl_b32 {s(sT0)}, {s(sT0)}, 10\ns_add_u32 {s(sC0+k)}, {s(sT0)}, {s(sT1)}')
    P(f'v_lshrrev_b32 {v(vT)}, 5, {v(vL)}\nv_lshlrev_b32 {v(vCA)}, 9, {v(vT)}\nv_bfe_u32 {v(vT)}, {v(vL)}, 1, 1\nv_lshl_add_u32 {v(vCA)}, {v(vT)}, 7, {v(vCA)}\nv_and_b32 {v(vT)}, 1, {v(vL)}\nv_lshl_add_u32 {v(vCA)}, {v(vT)}, 8, {v(vCA)}')
    P(f'v_bfe_u32 {v(vT)}, {v(vL)}, 2, 3\nv_lshl_add_u32 {v(vCA)}, {v(vT)}, 4, {v(vCA)}')
    P(f'v_bfe_u32 {v(vT)}, {v(vL)}, 3, 1\nv_lshlrev_b32 {v(vT)}, 9, {v(vT)}\nv_add_u32 {v(vEA)}, {v(vPUB)}, {v(vT)}')
    P('s_barrier')
    stamp('C0_b2')
    for w in range(4): P(f'ds_read_b64 {v(24+2*w,2)}, {v(vT+2)} offset:{512*w}')
    P('s_waitcnt lgkmcnt(2)')
    for e in range(2): P(f'v_add_f32 {v(24+e)}, {v(24+e)}, {v(26+e)}')
    P('s_waitcnt lgkmcnt(0)')
    for e in range(2): P(f'v_add_f32 {v(28+e)}, {v(28+e)}, {v(30+e)}')
    for e in range(2): P(f'v_add_f32 {v(20+e)}, {v(24+e)}, {v(28+e)}')
    publish_loc(20, vL16, sO0)
    stamp('C0_xapub')
    if cfg.wob2 == 1: wo_issue(sG)
    vOd = 40
    def issue(b):
        for k in range(0, 8, 2 if cfg.fakehalf & 2 else 1):
            P(f'buffer_load_dwordx4 {v(b+4*k,4)}, {v(vL16)}, {S(SRD_WS)}, {s(sO1 if k < 4 else sO2)} offen offset:{1024*(k & 3)} sc1')
    def done(b):
        for a, b2 in ((0, 1), (2, 3), (4, 5), (6, 7), (0, 2), (4, 6), (0, 4)):
            for e in (0, 1): P(f'v_add_f32 {v(b+4*a+e)}, {v(b+4*a+e)}, {v(b+4*b2+e)}')
        P(f'v_cvt_pk_bf16_f32 {v(vOd)}, {v(b)}, {v(b)}\nv_cvt_pk_bf16_f32 {v(vOd+1)}, {v(b+1)}, {v(b+1)}')
    poll('xa', issue, 8, 128, 32, [4*k+2 for k in range(0, 8, 2 if cfg.fakehalf & 2 else 1)], done)
    stamp('C0_xa')
    vGW, vGA2 = 15, 16
    def g_issue(): P(f'buffer_load_dword {v(vGW)}, {v(vGA2)}, {S(SRD_WS)}, {s(sG)} offen sc1')
    if cfg.gwait: g_issue()
    lohi(vOd)
    chain(vD0, 16, [vWO+4*i for i in range(16)], lohi_srcs(vOd), vAA)
    finish2(vD0)
    if cfg.xbrep:
        for e in range(2): P(f'v_mov_b32_dpp {v(vD0+e)}, {v(vD0+e)} row_ror:8 row_mask:0xf bank_mask:0xc')
        for i in range(4):
            P(f'buffer_store_dwordx4 {v(vD0,4)}, {v(vXBA)}, {S(SRD_WS)}, {s(sO3)} offen sc1')
            if i < 3: P(f's_add_u32 {s(sO3)}, {s(sO3)}, 0x40000')
    else: publish(vD0, vPUB, sO3, M2SET)
    if cfg.rwait and cfg.rwait < 4: P(f'ds_write_b32 {v(14)}, {v(14)}')
    stamp('C0_xbpub')
    if cfg.rwait == 4:
        P(f's_cmp_lt_u32 {s(sIM)}, {NM}\ns_cbranch_scc1 L_MLP')
        P('s_waitcnt vmcnt(0)')
        P(f'ds_write_b32 {v(14)}, {v(14)}')
        P('s_branch L_END\nL_MLP:')
    else: P(f's_cmp_lt_u32 {s(sIM)}, {NM}\ns_cbranch_scc0 L_END')
    vUP, vDN, vCG, vEG = 128, 192, 64, 80
    if cfg.gwait:
        P(f's_mov_b32 {s(sSPIN)}, 0\ns_waitcnt vmcnt({4 if cfg.xbrep else 1})\ns_branch L_GCHK\nL_GTOP:')
        g_issue()
        P(f's_add_u32 {s(sSPIN)}, {s(sSPIN)}, 1\ns_cmp_gt_u32 {s(sSPIN)}, {cfg.spin}\ns_cbranch_scc1 L_END\ns_waitcnt vmcnt(0)\nL_GCHK:')
        P(f'v_cmp_eq_u32 vcc, {s(sTAG)}, {v(vGW)}\ns_bcnt1_i32_b64 {s(sT0)}, vcc\ns_cmp_lt_u32 {s(sT0)}, {2*cfg.gthr}\ns_cbranch_scc1 L_GTOP')
    for i in range(16):
        P(f'global_load_dwordx4 {v(vUP+4*i,4)}, {v(vAP,2)}, off offset:{2752*(i & 1)} {cfg.uppol}')
        if i & 1 and i < 15: P(f'v_lshl_add_u64 {v(vAP,2)}, {v(vAP,2)}, 0, {s(sW2,2)}')
    def dn_issue():
        for i in range(8):
            P(f'buffer_load_dwordx4 {v(vDN+4*i,4)}, {v(vDNA)}, {S(SRD_B)}, {s(sDN)} offen offset:{1024*(i & 1)} {cfg.wpol}')
            if i & 1 and i < 7: P(f's_add_u32 {s(sDN)}, {s(sDN)}, 8192')
    if not cfg.dnlate: dn_issue()
    if cfg.diag and 'M_w' in cfg.diag:
        P('s_waitcnt vmcnt(0)'); stamp('M_w')
    vx, vcb, vsb = 88, 24, 26
    def issue(b):
        for k in range(4): P(f'buffer_load_dwordx4 {v(b+4*k,4)}, {v(vCA)}, {S(SRD_WS)}, {s(sC0+k)} offen sc1')
    def done(b):
        for k in range(4): unpack(vx+2*k, vx+2*k+1, b+4*k)
        unpack(vcb, vcb+1, b+1); unpack(vsb, vsb+1, b+2)
    poll('xc', issue, 4, 64 if cfg.pipe.get('xc', 1) == 1 else 104, 16 if cfg.pipe.get('xc', 1) != 2 else -40, [4*k+3 for k in range(4)], done)
    stamp('M_xc')
    if cfg.dnlate == 1: dn_issue()
    P(f'v_readfirstlane_b32 {s(sT0)}, {v(vx)}')
    for k in range(8): P(f'v_subrev_f32 {v(96+k)}, {s(sT0)}, {v(vx+k)}')
    P(f'v_pk_add_f32 {v(20,2)}, {v(96,2)}, {v(98,2)}\nv_pk_add_f32 {v(22,2)}, {v(100,2)}, {v(102,2)}\nv_pk_mul_f32 {v(28,2)}, {v(96,2)}, {v(96,2)}\nv_pk_mul_f32 {v(30,2)}, {v(100,2)}, {v(100,2)}')
    P(f'v_pk_add_f32 {v(20,2)}, {v(20,2)}, {v(22,2)}\nv_pk_fma_f32 {v(28,2)}, {v(98,2)}, {v(98,2)}, {v(28,2)}\nv_pk_fma_f32 {v(30,2)}, {v(102,2)}, {v(102,2)}, {v(30,2)}')
    P(f'v_add_f32 {v(22)}, {v(20)}, {v(21)}\nv_pk_add_f32 {v(28,2)}, {v(28,2)}, {v(30,2)}\nv_add_f32 {v(23)}, {v(28)}, {v(29)}')
    for mod in ('quad_perm:[1,0,3,2]', 'quad_perm:[2,3,0,1]', 'row_ror:4', 'row_ror:8'):
        for r in (22, 23): P(f'v_add_f32_dpp {v(r)}, {v(r)}, {v(r)} {mod} row_mask:0xf bank_mask:0xf')
    P(f'v_permlane16_swap_b32 {v(22)}, {v(23)}\nv_add_f32 {v(22)}, {v(22)}, {v(23)}\nv_mov_b32 {v(23)}, {v(22)}')
    P(f'v_permlane32_swap_b32 {v(22)}, {v(23)}\nv_add_f32 {v(22)}, {v(22)}, {v(23)}\nv_mul_f32 {v(22)}, {R512}, {v(22)}')
    P(f'v_readlane_b32 {s(sT1)}, {v(22)}, 0\nv_readlane_b32 {s(sT2)}, {v(22)}, 16')
    P(f'v_mov_b32 {v(22)}, {s(sT1)}\nv_mov_b32 {v(23)}, {s(sT2)}')
    P(f'v_fma_f32 {v(23)}, -{v(22)}, {v(22)}, {v(23)}\nv_add_f32 {v(22)}, {s(sT0)}, {v(22)}\nv_max_f32 {v(23)}, 0, {v(23)}')
    P(f'v_cvt_pk_bf16_f32 {v(22)}, {v(22)}, {v(23)}')
    P(f'v_and_b32 {v(23)}, 0xffff0000, {v(22)}\nv_lshlrev_b32 {v(22)}, 16, {v(22)}\nv_add_f32 {v(23)}, {EPS}, {v(23)}')
    P(f'v_sub_f32 {v(20)}, {v(vx)}, {v(22)}\nv_sub_f32 {v(21)}, {v(vx+1)}, {v(22)}')
    P(f'v_cvt_pk_bf16_f32 {v(23)}, {v(23)}, {v(23)}\nv_cvt_pk_bf16_f32 {v(20)}, {v(20)}, {v(21)}\nv_and_b32 {v(23)}, 0xffff0000, {v(23)}\nv_sqrt_f32 {v(23)}, {v(23)}')
    unpack(vx, vx+1, 20)
    P(f'v_cvt_pk_bf16_f32 {v(23)}, {v(23)}, {v(23)}\nv_and_b32 {v(23)}, 0xffff0000, {v(23)}\nv_rcp_f32 {v(22)}, {v(23)}')
    P(f'v_mul_f32 {v(20)}, {v(vx)}, {v(22)}\nv_mul_f32 {v(21)}, {v(vx+1)}, {v(22)}')
    P(f'v_fma_f32 {v(vx)}, -{v(20)}, {v(23)}, {v(vx)}\nv_fma_f32 {v(vx+1)}, -{v(21)}, {v(23)}, {v(vx+1)}')
    P(f'v_fma_f32 {v(20)}, {v(vx)}, {v(22)}, {v(20)}\nv_fma_f32 {v(21)}, {v(vx+1)}, {v(22)}, {v(21)}')
    P(f'v_cvt_pk_bf16_f32 {v(20)}, {v(20)}, {v(21)}')
    unpack(vx, vx+1, 20)
    P(f'v_mul_f32 {v(vx)}, {v(vx)}, {v(vcb)}\nv_mul_f32 {v(vx+1)}, {v(vx+1)}, {v(vcb+1)}\nv_cvt_pk_bf16_f32 {v(20)}, {v(vx)}, {v(vx+1)}')
    unpack(vx, vx+1, 20)
    P(f'v_add_f32 {v(vx)}, {v(vx)}, {v(vsb)}\nv_add_f32 {v(vx+1)}, {v(vx+1)}, {v(vsb+1)}')
    P(f'v_cvt_pk_bf16_f32 {v(vOd)}, {v(vx)}, {v(vx)}\nv_cvt_pk_bf16_f32 {v(vOd+1)}, {v(vx+1)}, {v(vx+1)}')
    lohi(vOd)
    stamp('M_h2')
    if cfg.dnlate == 2: dn_issue()
    chain(vD0, 16, [vUP+4*i for i in range(16)], lohi_srcs(vOd), vAA)
    finish2(vD0)
    publish_loc(vD0, vPUB, sEP, M2SET, sR)
    stamp('M_up')
    def issue(b):
        for k in range(2): P(f'buffer_load_dwordx4 {v(b+4*k,4)}, {v(vEA)}, {S(SRD_WS)}, {s(sEG)} offen offset:{1024*k} sc1')
    def done(b):
        for e in range(2): P(f'v_add_f32 {v(20+e)}, {v(b+e)}, {v(b+4+e)}')
    poll('xe', issue, 2, 128, 8, [2, 6], done)
    stamp('M_xe')
    for e in range(2): P(f'v_add_f32_dpp {v(20+e)}, {v(20+e)}, {v(20+e)} row_ror:8 row_mask:0xf bank_mask:0xf')
    P(f'v_cvt_pk_bf16_f32 {v(22)}, {v(20)}, {v(21)}')
    unpack(20, 21, 22)
    P(f'v_mov_b32_dpp {v(24)}, {v(22)} row_shl:4 row_mask:0xf bank_mask:0xf')
    silu_multi([20, 21], [22, 23])
    unpack(26, 27, 24)
    P(f'v_cvt_pk_bf16_f32 {v(22)}, {v(20)}, {v(21)}')
    unpack(20, 21, 22)
    P(f'v_mul_f32 {v(20)}, {v(20)}, {v(26)}\nv_mul_f32 {v(21)}, {v(21)}, {v(27)}')
    for e in range(2): P(f'v_cvt_pk_bf16_f32 {v(20+e)}, {v(20+e)}, {v(20+e)}')
    stamp('M_act')
    chain(vD0, 8, [vDN+4*i for i in range(8)], [(20 + (i & 1), f'row_newbcast:{i >> 1}') for i in range(8)], vAA)
    finish1(vD0)
    publish(vD0, vL16, sDP)
    stamp('M_end')
    P('s_branch L_END')

    P('L_C123:')
    common_setup()
    P(f's_cmp_eq_u32 {s(sW)}, 5\ns_cbranch_scc1 L_C1')
    P(f's_cmp_eq_u32 {s(sW)}, 6\ns_cbranch_scc0 L_C3')
    P(f's_getpc_b64 {s(20,2)}')
    P('L_PCREF:')
    P(f's_sub_u32 s20, s20, L_PCREF-{NAME}_kernel\ns_subb_u32 s21, s21, 0')
    P(f's_lshl_b32 {s(sT0)}, {s(sKK)}, 3\nv_and_b32 {v(vT)}, 7, {v(vL)}\nv_add_u32 {v(vT)}, {s(sT0)}, {v(vT)}\nv_lshlrev_b32 {v(vT)}, 7, {v(vT)}')
    P(f'v_min_u32 {v(vT)}, L_CODE_END-{NAME}_kernel-4, {v(vT)}')
    if cfg.cpf: P(f'global_load_dword {v(240)}, {v(vT)}, s[20:21]')
    P('L_C3:')
    if cfg.tlbw:
        P(f's_cmp_eq_u32 {s(sW)}, 7\ns_cbranch_scc0 L_NOTLB')
        P(f'v_mov_b32 {v(vT)}, 0')
        setexec(1)
        for k, (ptr, nb) in enumerate(((pWO, 4 << 20), (pW1, 512*2752), (pW3, 512*2752), (pW2, 1376*1024), (pOUT, 1024))):
            srd(SRD_A, ptr, nb)
            P(f'buffer_load_dword {v(241+k)}, {v(vT)}, {S(SRD_A)}, 0 offen')
            if nb > (2 << 20):
                P(f's_mov_b32 {s(sT0)}, {hex(nb - 128)}\nbuffer_load_dword {v(247)}, {v(vT)}, {S(SRD_A)}, {s(sT0)} offen')
        for k, off in enumerate((XA, XE, XB, XB + 0xf0000)):
            P(f's_mov_b32 {s(sT0)}, {hex(off)}\nbuffer_load_dword {v(248+k)}, {v(vT)}, {S(SRD_WS)}, {s(sT0)} offen sc1')
        setexec(ALL)
        P('L_NOTLB:')
    P('s_waitcnt lgkmcnt(0)')
    P(f's_add_u32 {s(sTAG)}, {s(sTAG)}, 1')
    P('s_branch L_QKP')
    P('L_C23B1:')
    if cfg.gwait:
        P(f'v_lshlrev_b32 {v(vT)}, 7, {v(vL)}\nv_mov_b32 {v(vT+1)}, {s(sTAG)}\ns_lshl_b32 {s(sT0)}, {s(sH)}, 2\ns_add_u32 {s(sT0)}, {s(sT0)}, {hex(XG)}')
    P('s_barrier')
    if cfg.gwait:
        P(f's_cmp_eq_u32 {s(sW)}, 6\ns_cbranch_scc0 L_END\ns_cmp_eq_u32 {s(sJ)}, 0\ns_cbranch_scc0 L_END')
        setexec(0xff)
        P(f'buffer_store_dword {v(vT+1)}, {v(vT)}, {S(SRD_WS)}, {s(sT0)} offen sc1')
    P('s_branch L_END')

    P('L_C1:')
    P('s_waitcnt lgkmcnt(0)')
    P(f's_add_u32 {s(sTAG)}, {s(sTAG)}, 1')
    if cfg.tearly == 3: P(f's_mov_b32 {s(sR)}, 0\ns_bitcmp1_b32 {s(sX)}, 0\ns_cbranch_scc1 L_QKP')
    elif cfg.tearly: P(f's_mov_b32 {s(sR)}, 0\ns_cmp_ge_u32 {s(sX)}, 4\ns_cbranch_scc1 L_QKP')
    else: P(f's_mov_b32 {s(sR)}, 0\ns_sub_u32 {s(sT0)}, {s(sKK)}, 8\ns_cmp_lt_u32 {s(sT0)}, 16\ns_cbranch_scc1 L_QKP')
    P(f'v_mov_b32 {v(vT+2)}, {hex(L_FLAG + 8)}')
    lds_wait('k1', vT+2, 1, 28, [28], 8)
    if cfg.tearly == 3:
        P(f's_lshl_b32 {s(sT0)}, {s(sKK)}, 2\ns_lshr_b32 {s(sT1)}, {s(sX)}, 1\ns_add_u32 {s(sT0)}, {s(sT0)}, {s(sT1)}\ns_and_b32 {s(sT1)}, {s(sT0)}, 31\ns_lshr_b32 {s(sT0)}, {s(sT0)}, 5')
    elif cfg.tearly:
        P(f's_lshl_b32 {s(sT0)}, {s(sKK)}, 2\ns_add_u32 {s(sT0)}, {s(sT0)}, {s(sX)}\ns_and_b32 {s(sT1)}, {s(sT0)}, 31\ns_lshr_b32 {s(sT0)}, {s(sT0)}, 5')
    else:
        P(f's_and_b32 {s(sT0)}, {s(sKK)}, 7\ns_lshr_b32 {s(sT1)}, {s(sKK)}, 4\ns_lshl_b32 {s(sT1)}, {s(sT1)}, 3\ns_add_u32 {s(sT0)}, {s(sT0)}, {s(sT1)}')
        P(f's_lshl_b32 {s(sT0)}, {s(sT0)}, 3\ns_add_u32 {s(sT0)}, {s(sT0)}, {s(sX)}\ns_and_b32 {s(sT1)}, {s(sT0)}, 31\ns_lshr_b32 {s(sT0)}, {s(sT0)}, 5')
    P(f's_lshl_b32 {s(sO2)}, {s(sT1)}, 2\ns_add_u32 {s(sO2)}, {s(sO2)}, {s(sT0)}\ns_lshl_b32 {s(sO2)}, {s(sO2)}, 9\ns_add_u32 {s(sO2)}, {s(sO2)}, {hex(X4)}')
    P(f's_lshl_b32 {s(sT1)}, {s(sT1)}, 7\ns_add_u32 {s(sT1)}, {s(sT1)}, 2048')
    modtile_issue(sT0, sT1)
    P(f's_mov_b32 {s(sR)}, 99\ns_branch L_QKP')
    P('L_C1B1:')
    P(f's_sub_u32 {s(sT0)}, {s(sKK)}, 8\ns_cmp_lt_u32 {s(sT0)}, 8\ns_cbranch_scc1 L_RED')
    P('s_barrier')
    P('s_branch L_END')
    P('L_RED:')
    if cfg.rwait != 4 and not cfg.rearly: red_setup()
    else:
        srd(SRD_B, pOUT, 1024)
        P(f'v_lshlrev_b32 {v(vL16r)}, 4, {v(vL)}\nv_and_b32 {v(vU16)}, 3, {v(vL)}\nv_lshlrev_b32 {v(vU16)}, 4, {v(vU16)}\nv_lshrrev_b32 {v(vT)}, 2, {v(vL)}\nv_lshl_add_u32 {v(vDA)}, {v(vT)}, 12, {v(vU16)}')
    def xb_issue(b):
        for k in range(0, 16, 2 if cfg.fakehalf & 1 else 1): P(f'buffer_load_dwordx4 {v(b+4*k,4)}, {v(vL16r)}, {S(SRD_WS)}, {s(sB4 + (k >> 2))} offen offset:{1024*(k & 3)} sc1')
    issue = x4_issue
    def rw(name):
        P(f'v_mov_b32 {v(vT+2)}, {hex(L_FLAG + 160)}')
        lds_wait(name, vT+2, 1, 28, [28], cfg.lsleep)
    if cfg.rwait >= 3:
        if cfg.rwait == 3: issue()
        P('s_barrier')
        stamp('R_b2')
        P(f's_mov_b32 {s(sT2)}, 0\ns_branch L_X4CHK\nL_X4RETRY:')
        rw('rw0')
        issue()
        P(f's_add_u32 {s(sT2)}, {s(sT2)}, 1\ns_cmp_gt_u32 {s(sT2)}, {cfg.spin}\ns_cbranch_scc1 L_END\nL_X4CHK:')
        P('s_waitcnt vmcnt(0)')
        tr = [vg+4*k+2 for k in range(8)]
        P(f'v_xor_b32 {v(vT)}, {s(sTAG)}, {v(tr[0])}\nv_xor_b32 {v(vT+1)}, {s(sTAG)}, {v(tr[1])}')
        for k, r in enumerate(tr[2:]): P(f'v_bitop3_b32 {v(vT + (k & 1))}, {v(r)}, {s(sTAG)}, {v(vT + (k & 1))} bitop3:{TAGX}')
        P(f'v_or_b32 {v(vT)}, {v(vT)}, {v(vT+1)}\nv_cmp_ne_u32 vcc, 0, {v(vT)}\ns_cbranch_vccnz L_X4RETRY')
    else:
        P('s_barrier')
        stamp('R_b2')
        if cfg.rwait: rw('rw')
        tagcheck_loop(issue, [vg+4*k+2 for k in range(8)], 'x4', after=(lambda: xb_issue(128)) if cfg.rwait == 2 else None, nafter=16)
    for p_ in range(4):
        for e in range(2): P(f'v_add_f32 {v(vg+8*p_+e)}, {v(vg+8*p_+e)}, {v(vg+8*p_+4+e)}')
    for p_ in range(4): P(f'v_permlane32_swap_b32 {v(vg+8*p_)}, {v(vg+8*p_+1)}')
    for p_ in range(4): P(f'v_add_f32 {v(vg+8*p_)}, {v(vg+8*p_)}, {v(vg+8*p_+1)}')
    for p_ in range(4): rnd(vg+8*p_)
    P(f'v_mov_b32 {v(vGAv)}, {v(vg)}\nv_add_f32 {v(vg+16)}, 1.0, {v(vg+16)}\nv_mov_b32 {v(vg+9)}, {v(vg+8)}\nv_mov_b32 {v(vg+17)}, {v(vg+16)}')
    P(f'ds_bpermute_b32 {v(vGBv)}, {v(vBP)}, {v(vg+24)}')
    P(f'v_permlane32_swap_b32 {v(vg+8)}, {v(vg+9)}\nv_permlane32_swap_b32 {v(vg+16)}, {v(vg+17)}')
    P(f'v_cvt_pk_bf16_f32 {v(vXC+2)}, {v(vg+8)}, {v(vg+9)}\nv_cvt_pk_bf16_f32 {v(vXC+1)}, {v(vg+16)}, {v(vg+17)}\nv_mov_b32 {v(vXC+3)}, {s(sTAG)}\nv_lshlrev_b32 {v(vXv)}, 16, {v(vXv)}')
    stamp('R_x4')
    if cfg.rwait >= 3: rw('rw1')
    def done(b):
        st = 1
        while st < 16:
            for a in range(0, 16, 2*st):
                for e in range(2): P(f'v_add_f32 {v(b+4*a+e)}, {v(b+4*a+e)}, {v(b+4*(a+st)+e)}')
            st *= 2
    if cfg.rsleep: P(f's_sleep {cfg.rsleep}')
    if cfg.xbgrp:
        n = 16 // cfg.xbgrp
        def mk(g):
            def issue():
                for k in range(g*n, g*n + n): P(f'buffer_load_dwordx4 {v(128+4*k,4)}, {v(vL16r)}, {S(SRD_WS)}, {s(sB4 + (k >> 2))} offen offset:{1024*(k & 3)} sc1')
            return (issue, [128+4*k+2 for k in range(g*n, g*n + n)])
        poll_groups('xb', [mk(g) for g in range(cfg.xbgrp)])
        done(128)
    else: poll('xb', xb_issue, 16, 128, 64, [4*k+2 for k in range(0, 16, 2 if cfg.fakehalf & 1 else 1)], done, issued=(cfg.rwait == 2))
    stamp('R_xb')
    P(f'v_permlane32_swap_b32 {v(128)}, {v(129)}\nv_add_f32 {v(vg)}, {v(128)}, {v(129)}')
    rnd(vg)
    P(f'v_mul_f32 {v(vg)}, {v(vg)}, {v(vGAv)}'); rnd(vg)
    P(f'v_add_f32 {v(vg)}, {v(vg)}, {v(vXv)}\nv_mov_b32 {v(vg+1)}, {v(vg)}')
    P(f'v_permlane32_swap_b32 {v(vg)}, {v(vg+1)}')
    P(f'v_cvt_pk_bf16_f32 {v(vXC)}, {v(vg)}, {v(vg+1)}')
    publish_loc(vXC, vL16r, sO3, 0xffffffff)
    stamp('R_xcpub')
    if cfg.epearly:
        P(f's_cmp_eq_u32 {s(sR)}, 0\ns_cbranch_scc0 L_NOEP')
        setexec(1)
        P(f'v_mov_b32 {v(vT)}, 0\nv_mov_b32 {v(vT+1)}, {s(sTAG)}')
        P(f'buffer_store_dword {v(vT+1)}, {v(vT)}, {S(SRD_WS)}, 0 offen sc1')
        setexec(ALL)
        P('L_NOEP:')
    P(f'v_lshrrev_b32 {v(vT+2)}, 1, {v(vL)}\nv_and_b32 {v(vT+2)}, 16, {v(vT+2)}\nv_lshrrev_b32 {v(vXv)}, {v(vT+2)}, {v(vXC)}\nv_lshlrev_b32 {v(vXv)}, 16, {v(vXv)}')
    P(f'ds_bpermute_b32 {v(vXv)}, {v(vBP)}, {v(vXv)}')
    def colsum():
        P(f'v_permlane16_swap_b32 {v(vg)}, {v(vg+1)}')
        P(f'v_add_f32 {v(vg)}, {v(vg)}, {v(vg+1)}')
        P(f'v_add_f32_dpp {v(vg)}, {v(vg)}, {v(vg)} row_ror:4 row_mask:0xf bank_mask:0xf')
        P(f'v_add_f32_dpp {v(vg)}, {v(vg)}, {v(vg)} row_ror:8 row_mask:0xf bank_mask:0xf')
        P(f'v_mov_b32 {v(vg+1)}, {v(vg)}')
        P(f'v_permlane32_swap_b32 {v(vg)}, {v(vg+1)}')
        P(f'v_add_f32 {v(vg)}, {v(vg)}, {v(vg+1)}')
    P('s_waitcnt lgkmcnt(0)')
    def issue(b):
        for k in range(2): P(f'buffer_load_dwordx4 {v(b+4*k,4)}, {v(vDA)}, {S(SRD_WS)}, {s(sD+k)} offen sc1')
        setexec((1 << 44) - 1)
        P(f'buffer_load_dwordx4 {v(b+8,4)}, {v(vDA)}, {S(SRD_WS)}, {s(sD+2)} offen sc1')
        setexec(ALL)
    def done(b):
        for e in range(2): P(f'v_add_f32 {v(b+e)}, {v(b+e)}, {v(b+4+e)}')
        for e in range(2): P(f'v_add_f32 {v(vg+e)}, {v(b+e)}, {v(b+8+e)}')
    if cfg.dsleep: P(f's_sleep {cfg.dsleep}')
    poll('xd', issue, 3, 192, 12, [2, 6, 10], done)
    stamp('R_xd')
    colsum()
    rnd(vg)
    P(f'v_mul_f32 {v(vg)}, {v(vg)}, {v(vGBv)}'); rnd(vg)
    P(f'v_add_f32 {v(vg)}, {v(vg)}, {v(vXv)}\nv_mov_b32 {v(vg+1)}, {v(vg)}')
    P(f'v_permlane16_swap_b32 {v(vg)}, {v(vg+1)}')
    P(f'v_cvt_pk_bf16_f32 {v(vg)}, {v(vg)}, {v(vg+1)}')
    setexec(0xf)
    P(f'buffer_store_dword {v(vg)}, {v(vU16)}, {S(SRD_B)}, {s(sG+2)} offen {cfg.outpol}')
    stamp('R_end')
    def epoch(skip):
        P(f's_cmp_eq_u32 {s(sR)}, 0\ns_cbranch_scc0 {skip}')
        setexec(1)
        P(f'v_mov_b32 {v(vT)}, 0\nv_mov_b32 {v(vT+1)}, {s(sTAG)}')
        P(f'buffer_store_dword {v(vT+1)}, {v(vT)}, {S(SRD_WS)}, 0 offen sc1')
    if not cfg.epearly: epoch('L_END')
    if cfg.xdelay:
        P(f's_cmp_eq_u32 {s(sR)}, 0\ns_cbranch_scc0 L_END\ns_memrealtime s[76:77]\ns_waitcnt lgkmcnt(0)\ns_add_u32 {s(sT0)}, s76, {cfg.xdelay}')
        P(f'L_XDL:\ns_memrealtime s[76:77]\ns_waitcnt lgkmcnt(0)\ns_sub_u32 {s(sT1)}, s76, {s(sT0)}\ns_cmp_lt_i32 {s(sT1)}, 0\ns_cbranch_scc1 L_XDL')
    if cfg.gprobe:
        P(f's_cmp_eq_u32 {s(sR)}, 0\ns_cbranch_scc0 L_END\ns_mov_b64 exec, -1\ns_mov_b32 {s(sT0)}, {hex(DIAG)}')
        nw = 4 if cfg.gprobe.startswith('L') else 1
        P(f'v_lshlrev_b32 v1, 5, v0')
        if cfg.gprobe[0] == 'R': P('v_add_u32 v1, 8, v1')
        if cfg.gprobe[0] in 'MR': P('s_sleep 40')
        regs = []
        for q in range(4):
            for w in range(nw):
                r = 128 + 2*(q*4 + w); regs.append(r)
                P(f'buffer_load_dwordx2 v[{r}:{r+1}], v1, {S(SRD_WS)}, {s(sT0)} offen offset:{8*w} sc1')
            P(f's_add_u32 {s(sT0)}, {s(sT0)}, 2048')
        P('s_waitcnt vmcnt(0)')
        P(f'v_subrev_u32 v2, {s(sDIAG)}, v{regs[0]}\nv_subrev_u32 v3, {s(sDIAG)}, v{regs[0]+1}')
        for r in regs[1:]:
            P(f'v_subrev_u32 v4, {s(sDIAG)}, v{r}\nv_min_i32 v2, v2, v4\nv_subrev_u32 v4, {s(sDIAG)}, v{r+1}\nv_max_i32 v3, v3, v4')
        wave_reduce('v_min_i32', [2]); wave_reduce('v_max_i32', [3])
        P(f'v_sub_u32 v2, v3, v2\nv_readlane_b32 {s(sT0)}, v2, 63\ns_nop 1\ns_min_u32 {s(sT0)}, {s(sT0)}, 5000\ns_memrealtime s[76:77]\ns_waitcnt lgkmcnt(0)\ns_add_u32 {s(sT0)}, {s(sT0)}, s76')
        P(f'L_GPR:\ns_memrealtime s[76:77]\ns_waitcnt lgkmcnt(0)\ns_sub_u32 {s(sT1)}, s76, {s(sT0)}\ns_cmp_lt_i32 {s(sT1)}, 0\ns_cbranch_scc1 L_GPR')
    if cfg.probe:
        P(f's_cmp_eq_u32 {s(sR)}, 0\ns_cbranch_scc0 L_END')
        i = stamps[cfg.probe]
        P(f's_waitcnt lgkmcnt(0)\ns_sub_u32 {s(sT0)}, {s(sDIAG+2*i)}, {s(sDIAG)}\ns_min_u32 {s(sT0)}, {s(sT0)}, 5000\ns_memrealtime s[76:77]\ns_waitcnt lgkmcnt(0)\ns_add_u32 {s(sT0)}, {s(sT0)}, s76')
        P(f'L_PROBE:\ns_memrealtime s[76:77]\ns_waitcnt lgkmcnt(0)\ns_sub_u32 {s(sT1)}, s76, {s(sT0)}\ns_cmp_lt_i32 {s(sT1)}, 0\ns_cbranch_scc1 L_PROBE')
    P('s_branch L_END')

    P('L_END:')
    if cfg.diag and not cfg.probe and not cfg.gprobe:
        P('s_waitcnt lgkmcnt(0)')
        P(f's_cmp_ge_u32 {s(sB)}, 256\ns_cbranch_scc1 L_END2')
        srd(SRD_WS, sWSP, WS_BYTES)
        P(f's_lshl_b32 {s(sT0)}, {s(sB)}, 3\ns_add_u32 {s(sT0)}, {s(sT0)}, {s(sW)}\ns_lshl_b32 {s(sT0)}, {s(sT0)}, 7\ns_add_u32 {s(sT0)}, {s(sT0)}, {hex(DIAG)}')
        P('s_mov_b64 exec, 1\nv_mov_b32 v1, 0')
        for i in range(9): P(f'v_mov_b32 v2, {s(sDIAG+2*i)}\nbuffer_store_dword v2, v1, {S(SRD_WS)}, {s(sT0)} offen offset:{4*i}')
        P('L_END2:')
    P('s_endpgm')
    P('L_CODE_END:')
    probs = P.fix()
    for p in probs: print('HAZARD across branch:', p, file=sys.stderr)
    head = open(f'cdna_kernels/{NAME}.s.ref').read().split('; Override launch')[0]
    txt = head
    txt += DOC
    txt += f'; @launch grid=(256,1,1) block=(512,1,1) lds={LDS_BYTES}\n'
    txt += f'.amdgcn_target "amdgcn-amd-amdhsa--gfx950"\n.text\n.globl {NAME}_kernel\n.p2align 8\n.type {NAME}_kernel,@function\n{NAME}_kernel:\n'
    txt += P.text() + '\n'
    txt += f'''.section .rodata,"a"
.p2align 6
.amdhsa_kernel {NAME}_kernel
  .amdhsa_next_free_vgpr 256
  .amdhsa_next_free_sgpr 102
  .amdhsa_accum_offset 256
  .amdhsa_group_segment_fixed_size 0
  .amdhsa_kernarg_size 112
  .amdhsa_user_sgpr_count 2
  .amdhsa_user_sgpr_kernarg_segment_ptr 1
  .amdhsa_system_sgpr_workgroup_id_x 1
  .amdhsa_float_denorm_mode_32 3
.end_amdhsa_kernel
'''
    return txt, stamps

if __name__ == '__main__':
    out = sys.argv[1] if len(sys.argv) > 1 else f'cdna_kernels/{NAME}.s'
    class C(Cfg): pass
    for a in sys.argv[2:]:
        k, val = a.split('=', 1)
        setattr(C, k, eval(val))
    txt, stamps = gen(C)
    open(out, 'w').write(txt)
    print('written', out, len(txt), 'bytes', stamps)
```

```python
import sys, struct
from asmdsl import Prog

NAME = 'adaLN_cond__mha_block_cached__glu_gated_swiglu__decode'

def f2u(x): return struct.unpack('<I', struct.pack('<f', x))[0]
LOG2E = hex(f2u(1.4426950408889634))
NLOG2E = hex(f2u(-1.4426950408889634))
SCALE = hex(f2u(128 ** -0.5))
EPS = hex(f2u(1e-5))
R512 = hex(f2u(1/512))
ALL = (1 << 64) - 1

X1 = 0x1000
X4 = 0x9000
X3 = 0x19000
X1F = 0x1b000
X0 = 0x1d000
X0B = 0x194000
X2F = 0x1c000
XC = 0x180000
X4N = 0x1e0000
XPR = 0x190000
XP = 0x1f000
X2 = 0x20000
XA = 0x60000
XB = 0x200000
XD = 0xe0000
XE = 0x110000
XG = 0x197000
XB2 = 0x140000
X0C = 0x1a000
DIAG = 0x1a0000
WS_BYTES = 0x300000
L_P, L_OP, L_Q, L_FLAG = 0x20000, 0x20800, 0x21000, 0x21100
L_ST, L_U = 0x0, 0x1000
L_MS, L_ML, L_PAR = L_FLAG + 64, L_FLAG + 128, L_FLAG + 176
LDS_BYTES = 0x21200
NM = 43
TAGX = hex(sum(1 << (a*4+b*2+c) for a in (0,1) for b in (0,1) for c in (0,1) if (a ^ b) | c))

DOC = """;
;                  all QK^T of one L wave's tiles, true max and sum exchanged inside the head, normalised p
"""

class Cfg:
    depth = 8
    diag = False
    probe = None
    kpol = 'nt'
    vpol = 'nt'
    wpol = 'nt'
    ppol = ''
    sleep1 = 0
    sleep2 = 0
    sleep3 = 4
    sleep4 = 40
    prio = 3
    hint = 1
    hsleep = 3
    lsleep = 1
    pf = 'post'
    wq0 = 1
    dsched = (6, 12, 9)
    rot = 5
    npf = 8
    local = 1
    pipe = dict()
    psleep = dict()
    xcrep = 1
    xcline = 0
    nodpp = 0
    b0late = 1
    xcsleep = 0
    dnlate = 0
    xbrep = 0
    rwait = 1
    xbgrp = 0
    rsleep = 0
    dsleep = 0
    wob2 = 0
    epearly = 1
    ksplit = 0
    th = 0
    cpf = 1
    fakehalf = 0
    xdelay = 0
    gwait = 0
    tearly = 0
    pkand = 0
    acc2 = 0
    mlat = 0
    t2early = 0
    par = 'dyn'
    nsamp = 4
    nearloc = 1
    x4near = 0
    ackw = 1
    rearly = 1
    tlbw = 0
    gthr = 32
    gprobe = None
    dodd = None
    dvar = None
    outpol = ''
    uppol = 'nt'
    spin = 1 << 18

def v(a, n=1): return f'v{a}' if n == 1 else f'v[{a}:{a+n-1}]'
def s(a, n=1): return f's{a}' if n == 1 else f's[{a}:{a+n-1}]'

sB, sW = 2, 3
sKP, sVP = 4, 6
SRD_K, SRD_V, SRD_WS, SRD_A, SRD_B, SRD_C = 8, 12, 16, 20, 24, 28
sH, sJ, sX, sKK = 36, 37, 38, 39
sWSP = 40
sTAG, sIM, sR = 42, 43, 44
sT0, sT1, sT2 = 45, 46, 47
pWQ, pWO, pW1, pW3, pW2, pC, pWM, pX, pOUT = 48, 50, 54, 56, 58, 60, 62, 64, 66
sSPIN = 68
sO0, sO1, sO2, sO3 = 69, 70, 71, 72
sMASK = 74
sPAR, sNEAR = 52, 53
sT1B = 35
sLOC = 73
sG = 76
sDIAG = 84
vL = 0
vT = 1
vM = 4

def gen(cfg=Cfg):
    P = Prog()
    X4NEAR = bool(cfg.x4near and cfg.par is not None and not cfg.t2early)
    D = cfg.depth
    stamps = {}
    def stamp(name):
        if cfg.diag and name in cfg.diag:
            grp = name.split('_')[0]
            same = [n for n in cfg.diag if n.split('_')[0] == grp]
            if name == 'start': i = 0
            elif cfg.gprobe: i = 1
            elif grp == 'M': i = 8 - same.index(name)
            else: i = 1 + same.index(name)
            assert 0 <= i <= 8
            stamps[name] = i
            P(f's_memrealtime {s(sDIAG + 2*i, 2)}')
            if cfg.gprobe == name:
                assert i < 5
                P(f's_waitcnt lgkmcnt(0)\ns_mov_b32 s96, {s(sWSP)}\ns_mov_b32 s97, {s(sWSP+1)}\ns_mov_b32 s98, {hex(WS_BYTES)}\ns_mov_b32 s99, 0x20000')
                P(f's_lshl_b32 s100, {s(sB)}, 2\ns_and_b32 s101, {s(sW)}, 3\ns_add_u32 s100, s100, s101\ns_lshl_b32 s100, s100, 3\ns_add_u32 s100, s100, {hex(DIAG)}')
                P(f's_mov_b64 s[94:95], exec\ns_mov_b64 exec, 1\nv_mov_b32 v254, {s(sDIAG)}\nv_mov_b32 v255, {s(sDIAG+2*i)}\nv_mov_b32 v253, 0\nbuffer_store_dwordx2 v[254:255], v253, s[96:99], s100 offen sc1\ns_mov_b64 exec, s[94:95]')
    def srd(r, ptr, nbytes):
        P(f's_mov_b32 {s(r)}, {s(ptr)}\ns_mov_b32 {s(r+1)}, {s(ptr+1)}\ns_mov_b32 {s(r+2)}, {hex(nbytes)}\ns_mov_b32 {s(r+3)}, 0x20000')
    def S(r): return s(r, 4)
    def setexec(mask):
        lo, hi = mask & 0xffffffff, mask >> 32
        if mask == ALL: P('s_mov_b64 exec, -1')
        elif mask <= 64: P(f's_mov_b64 exec, {mask}')
        else: P(f's_mov_b32 exec_lo, {hex(lo)}\ns_mov_b32 exec_hi, {hex(hi)}')
    uid = [0]
    def lab(p):
        uid[0] += 1; return f'L_{p}{uid[0]}'
    def tagcheck_loop(issue, tagregs, name, sleep=0, after=None, nafter=0):
        top = lab(name)
        P(f's_mov_b32 {s(sSPIN)}, 0')
        P(f'{top}:')
        issue()
        if after: after()
        P(f's_add_u32 {s(sSPIN)}, {s(sSPIN)}, 1\ns_cmp_gt_u32 {s(sSPIN)}, {cfg.spin}\ns_cbranch_scc1 L_END')
        P(f's_waitcnt vmcnt({nafter if after else 0})')
        if len(tagregs) == 1:
            P(f'v_cmp_ne_u32 vcc, {s(sTAG)}, {v(tagregs[0])}')
        else:
            P(f'v_xor_b32 {v(vT)}, {s(sTAG)}, {v(tagregs[0])}\nv_xor_b32 {v(vT+1)}, {s(sTAG)}, {v(tagregs[1])}')
            for k, r in enumerate(tagregs[2:]):
                P(f'v_bitop3_b32 {v(vT + (k & 1))}, {v(r)}, {s(sTAG)}, {v(vT + (k & 1))} bitop3:{TAGX}')
            P(f'v_or_b32 {v(vT)}, {v(vT)}, {v(vT+1)}\nv_cmp_ne_u32 vcc, 0, {v(vT)}')
        if sleep:
            dn = lab(name + 'd')
            P(f's_cbranch_vccz {dn}\ns_sleep {sleep}\ns_branch {top}\n{dn}:')
        else: P(f's_cbranch_vccnz {top}')
    def poll(name, issue, nl, base, stride, tagoff, done, issued=False):
        NS = cfg.pipe.get(name, 1)
        top, join = lab(name), lab(name + 'j')
        ex = [lab(name + 'x') for _ in range(NS)]
        P(f's_mov_b32 {s(sSPIN)}, 0')
        for i in range(NS - 1): issue(base + i*stride)
        if issued:
            assert NS == 1
            sk = lab(name + 's'); P(f's_branch {sk}')
        P(f'{top}:')
        for i in range(NS):
            issue(base + ((i + NS - 1) % NS)*stride)
            if issued: P(f'{sk}:')
            if i == 0: P(f's_add_u32 {s(sSPIN)}, {s(sSPIN)}, 1\ns_cmp_gt_u32 {s(sSPIN)}, {cfg.spin}\ns_cbranch_scc1 L_END')
            P(f's_waitcnt vmcnt({(NS-1)*nl})')
            tr = [base + i*stride + t for t in tagoff]
            if len(tr) == 1:
                P(f'v_cmp_ne_u32 vcc, {s(sTAG)}, {v(tr[0])}')
            else:
                P(f'v_xor_b32 {v(vT)}, {s(sTAG)}, {v(tr[0])}\nv_xor_b32 {v(vT+1)}, {s(sTAG)}, {v(tr[1])}')
                for k, r in enumerate(tr[2:]):
                    P(f'v_bitop3_b32 {v(vT + (k & 1))}, {v(r)}, {s(sTAG)}, {v(vT + (k & 1))} bitop3:{TAGX}')
                P(f'v_or_b32 {v(vT)}, {v(vT)}, {v(vT+1)}\nv_cmp_ne_u32 vcc, 0, {v(vT)}')
            ps = cfg.psleep.get(name, 0)
            if ps:
                P(f's_cbranch_vccz {ex[i]}\ns_sleep {ps}')
                if i + 1 == NS: P(f's_branch {top}')
            else: P(f's_cbranch_vccz {ex[i]}' if i + 1 < NS else f's_cbranch_vccnz {top}')
        for i in reversed(range(NS)):
            P(f'{ex[i]}:')
            done(base + i*stride)
            if i > 0: P(f's_branch {join}')
        P(f'{join}:')
    def poll_groups(name, groups):
        top = lab(name)
        P(f's_mov_b32 {s(sSPIN)}, 0\ns_mov_b32 {s(sT0)}, {(1 << len(groups)) - 1}')
        P(f'{top}:')
        for g, (issue, tr) in enumerate(groups):
            sk = lab(name + 'i')
            P(f's_bitcmp1_b32 {s(sT0)}, {g}\ns_cbranch_scc0 {sk}')
            issue()
            P(f'{sk}:')
        P(f's_add_u32 {s(sSPIN)}, {s(sSPIN)}, 1\ns_cmp_gt_u32 {s(sSPIN)}, {cfg.spin}\ns_cbranch_scc1 L_END')
        P('s_waitcnt vmcnt(0)')
        for g, (issue, tr) in enumerate(groups):
            P(f'v_xor_b32 {v(vT + (g & 1))}, {s(sTAG)}, {v(tr[0])}')
            for r in tr[1:]: P(f'v_bitop3_b32 {v(vT + (g & 1))}, {v(r)}, {s(sTAG)}, {v(vT + (g & 1))} bitop3:{TAGX}')
            P(f'v_cmp_ne_u32 {s(sG+4+2*(g & 1),2)}, 0, {v(vT + (g & 1))}')
            P(f's_cmp_lg_u64 {s(sG+4+2*(g & 1),2)}, 0\ns_cselect_b32 {s(sT1)}, {1 << g}, 0')
            P(f's_or_b32 {s(sT0)}, {s(sT1)}, {s(sT0) if g else s(sT1)}')
        P(f's_cbranch_scc1 {top}')
    def publish_loc(d, vaddr, soff, mask=None, flag=sLOC):
        if not cfg.local: return publish(d, vaddr, soff, mask)
        far, j2 = lab('far'), lab('pb')
        if mask: setexec(mask)
        P(f's_cmp_eq_u32 {s(flag)}, 1\ns_cbranch_scc0 {far}')
        P(f'buffer_store_dwordx4 {v(d,4)}, {v(vaddr)}, {S(SRD_WS)}, {s(soff)} offen')
        P(f's_branch {j2}\n{far}:')
        publish(d, vaddr, soff)
        P(f'{j2}:')
        if mask: setexec(ALL)
    def afrag(dst, src, dpp=''):
        for w in range(4):
            if dpp: P(f'v_and_b32_dpp {v(dst+w)}, {v(src)}, {v(vM+w)} {dpp} row_mask:0xf bank_mask:0xf')
            else: P(f'v_and_b32 {v(dst+w)}, {v(src)}, {v(vM+w)}')
    def mfma(d, a, b, first=False):
        P(f'v_mfma_f32_16x16x32_bf16 {v(d,4)}, {v(a,4)}, {v(b,4)}, {"0" if first else v(d,4)}')
    vF, vHM, vPP = 244, 248, 250
    def afrag_pk(dst, src, dpp, k):
        pp = vPP + 2*(k & 1)
        if dpp: P(f'v_and_b32_dpp {v(pp)}, {v(src)}, {v(vHM)} {dpp} row_mask:0xf bank_mask:0xf')
        else: P(f'v_and_b32 {v(pp)}, {v(src)}, {v(vHM)}')
        return [f'v_pk_mul_f32 {v(dst+2*w,2)}, {v(pp,2)}, {v(vF+2*w,2)} op_sel_hi:[0,1]' for w in range(2)]
    def chain(d, n, bregs, srcs, areg):
        if cfg.pkand:
            pend = afrag_pk(areg, *srcs[0], 0)
            for x in pend: P(x)
            if n > 1: pend = afrag_pk(areg + 4, *srcs[1], 1)
            for i in range(n):
                if i + 1 < n:
                    for x in pend: P(x)
                if i + 2 < n: pend = afrag_pk(areg + 4*(i & 1) + 8*(1 - 2*0)*0 if False else areg + 4*(i & 1), *srcs[i+2], i) if False else None
                mfma(d, areg + 4*(i & 1), bregs[i], first=(i == 0))
                if i + 2 < n: pend = afrag_pk(areg + 4*(i & 1), *srcs[i+2], i)
            return
        if cfg.nodpp and srcs[0][1]:
            bc = 224
            for i in range(n): P(f'v_mov_b32_dpp {v(bc+i)}, {v(srcs[i][0])} {srcs[i][1]} row_mask:0xf bank_mask:0xf')
            srcs = [(bc+i, '') for i in range(n)]
        afrag(areg, *srcs[0])
        d2 = 32
        for i in range(n):
            if i + 1 < n: afrag(areg + 4*((i+1) & 1), *srcs[i+1])
            if cfg.acc2 and n >= 8: mfma(d2 if i & 1 else d, areg + 4*(i & 1), bregs[i], first=(i < 2))
            else: mfma(d, areg + 4*(i & 1), bregs[i], first=(i == 0))
        if cfg.acc2 and n >= 8:
            for r in range(0, 4, 2): P(f'v_pk_add_f32 {v(d+r,2)}, {v(d+r,2)}, {v(d2+r,2)}')
    def finish2(d):
        P(f'v_permlane32_swap_b32 {v(d)}, {v(d+2)}\nv_permlane32_swap_b32 {v(d+1)}, {v(d+3)}')
        P(f'v_add_f32_dpp {v(d)}, {v(d+2)}, {v(d)} row_ror:8 row_mask:0xf bank_mask:0xf')
        P(f'v_add_f32_dpp {v(d+1)}, {v(d+3)}, {v(d+1)} row_ror:8 row_mask:0xf bank_mask:0xf')
        P(f'v_mov_b32 {v(d+2)}, {s(sTAG)}')
    def finish1(d):
        P(f'v_permlane32_swap_b32 {v(d)}, {v(d+2)}\nv_permlane32_swap_b32 {v(d+1)}, {v(d+3)}')
        P(f'v_mov_b32 {v(d+2)}, {s(sTAG)}')
    def publish(d, vaddr, soff, mask=None):
        if mask: setexec(mask)
        P(f'buffer_store_dwordx4 {v(d,4)}, {v(vaddr)}, {S(SRD_WS)}, {s(soff)} offen sc1')
        if mask: setexec(ALL)
    M2SET = 0x00ff00ff00ff00ff
    def lohi(r):
        P(f'v_mov_b32 {v(r+2)}, {v(r)}\nv_mov_b32 {v(r+3)}, {v(r+1)}')
        for e in range(2): P(f'v_mov_b32_dpp {v(r+2+e)}, {v(r+e)} row_shl:4 row_mask:0xf bank_mask:0x5')
        for e in range(2): P(f'v_mov_b32_dpp {v(r+e)}, {v(r+e)} row_shr:4 row_mask:0xf bank_mask:0xa')
    def lohi_srcs(r):
        out = []
        for i in range(16):
            u = i >> 1; a = u & 3
            out.append((r + (2 if u >= 4 else 0) + (i & 1), f'quad_perm:[{a},{a},{a},{a}]'))
        return out
    def lds_wait(name, vaddr, n, dst, chk, sleep=0):
        top = lab(name)
        op = {1: 'ds_read_b32', 2: 'ds_read_b64', 4: 'ds_read_b128'}[n]
        P(f's_mov_b32 {s(sSPIN)}, 0')
        P(f'{top}:')
        P(f'{op} {v(dst,n)}, {v(vaddr)}')
        P(f's_add_u32 {s(sSPIN)}, {s(sSPIN)}, 1\ns_cmp_gt_u32 {s(sSPIN)}, {cfg.spin*8}\ns_cbranch_scc1 L_END')
        P('s_waitcnt lgkmcnt(0)')
        if len(chk) == 2:
            P(f'v_and_b32 {v(vT)}, {v(chk[0])}, {v(chk[1])}\nv_cmp_eq_u32 vcc, 0, {v(vT)}')
        else: P(f'v_cmp_eq_u32 vcc, 0, {v(chk[0])}')
        if sleep:
            done = lab(name + 'd')
            P(f's_cbranch_vccz {done}\ns_sleep {sleep}\ns_branch {top}\n{done}:')
        else: P(f's_cbranch_vccnz {top}')
    def hint_wait(name, soff):
        top = lab(name)
        P(f's_add_u32 {s(sMASK)}, {s(sWSP)}, {s(soff)}\ns_addc_u32 {s(sMASK+1)}, {s(sWSP+1)}, 0\ns_mov_b32 {s(sSPIN)}, 0')
        P(f'{top}:')
        P(f's_load_dwordx8 {s(sG,8)}, {s(sMASK,2)}, 0 glc')
        P(f's_add_u32 {s(sSPIN)}, {s(sSPIN)}, 1\ns_cmp_gt_u32 {s(sSPIN)}, {cfg.spin}\ns_cbranch_scc1 L_END')
        P('s_waitcnt lgkmcnt(0)')
        P(f's_xor_b32 {s(sG)}, {s(sG)}, {s(sTAG)}')
        for k in range(1, 8): P(f's_xor_b32 {s(sG+k)}, {s(sG+k)}, {s(sTAG)}\ns_or_b32 {s(sG)}, {s(sG)}, {s(sG+k)}')
        done = lab(name + 'd')
        P(f's_cbranch_scc0 {done}')
        if cfg.hsleep: P(f's_sleep {cfg.hsleep}')
        P(f's_branch {top}\n{done}:')
    def par_read(r):
        if cfg.par == 'dyn': P(f'v_mov_b32 {v(r)}, {hex(L_PAR)}\nds_read_b32 {v(r)}, {v(r)}')
    def par_use(r):
        if cfg.par == 'dyn': P(f's_waitcnt lgkmcnt(0)\nv_readfirstlane_b32 {s(sPAR)}, {v(r)}\ns_and_b32 {s(sPAR)}, {s(sPAR)}, 1')
        else: P(f's_mov_b32 {s(sPAR)}, {cfg.par or 0}')
        P(f's_lshr_b32 {s(sNEAR)}, {s(sX)}, 2\ns_xor_b32 {s(sNEAR)}, {s(sNEAR)}, {s(sPAR)}\ns_lshl_b32 {s(sNEAR)}, {s(sNEAR)}, 13')
    def wave_reduce(op, regs):
        for mod in ('quad_perm:[1,0,3,2] row_mask:0xf', 'quad_perm:[2,3,0,1] row_mask:0xf', 'row_ror:4 row_mask:0xf', 'row_ror:8 row_mask:0xf',
                    'row_bcast:15 row_mask:0xa', 'row_bcast:31 row_mask:0xc'):
            for r in regs: P(f'{op}_dpp {v(r)}, {v(r)}, {v(r)} {mod} bank_mask:0xf')
    def unpack(lo, hi, src):
        if lo == src: P(f'v_and_b32 {v(hi)}, 0xffff0000, {v(src)}\nv_lshlrev_b32 {v(lo)}, 16, {v(src)}')
        else: P(f'v_lshlrev_b32 {v(lo)}, 16, {v(src)}\nv_and_b32 {v(hi)}, 0xffff0000, {v(src)}')
    def silu_multi(rs, ts):
        for r, t in zip(rs, ts): P(f'v_mul_f32 {v(t)}, {NLOG2E}, {v(r)}')
        for r, t in zip(rs, ts): P(f'v_exp_f32 {v(t)}, {v(t)}')
        for r, t in zip(rs, ts): P(f'v_add_f32 {v(t)}, 1.0, {v(t)}')
        for r, t in zip(rs, ts): P(f'v_rcp_f32 {v(t)}, {v(t)}')
        for r, t in zip(rs, ts): P(f'v_mul_f32 {v(r)}, {v(r)}, {v(t)}')
    def rnd(r): P(f'v_cvt_pk_bf16_f32 {v(r)}, {v(r)}, {v(r)}\nv_and_b32 {v(r)}, 0xffff0000, {v(r)}')

    vMA, vMB, vMC, vPUB = 16, 17, 18, 19
    vMT, vD0, vAA, vS4 = 64, 36, 52, 40
    def modtile_issue(sRB, sCOL):
        srd(SRD_A, pC, 1024); srd(SRD_B, pWM, 512*6144)
        P(f's_lshl_b32 {s(sO1)}, {s(sRB)}, 8')
        P(f'buffer_load_dword {v(vMC)}, {v(vMA)}, {S(SRD_A)}, {s(sO1)} offen')
        P(f's_mul_i32 {s(sO1)}, {s(sRB)}, {128*6144}\ns_add_u32 {s(sO1)}, {s(sO1)}, {s(sCOL)}')
        for i in range(16):
            P(f'buffer_load_dwordx4 {v(vMT+4*i,4)}, {v(vMB)}, {S(SRD_B)}, {s(sO1)} offen {cfg.wpol}')
            if i < 15: P(f's_add_u32 {s(sO1)}, {s(sO1)}, 6144')
    def modtile_compute(nafter, soff, both=False):
        P(f's_waitcnt vmcnt({16+nafter})')
        unpack(vS4, vS4+1, vMC)
        silu_multi([vS4, vS4+1], [vS4+2, vS4+3])
        for e in range(2): P(f'v_cvt_pk_bf16_f32 {v(vS4+e)}, {v(vS4+e)}, {v(vS4+e)}')
        lohi(vS4)
        P(f's_waitcnt vmcnt({nafter})')
        chain(vD0, 16, [vMT+4*i for i in range(16)], lohi_srcs(vS4), vAA)
        finish2(vD0)
        if both:
            for e in range(2): P(f'v_mov_b32_dpp {v(vD0+e)}, {v(vD0+e)} row_ror:8 row_mask:0xf bank_mask:0xc')
            if cfg.par == 'dyn':
                P(f'v_mov_b32 {v(vT+2)}, {hex(L_PAR)}')
                lds_wait('pw', vT+2, 1, 28, [28])
                P(f'v_lshrrev_b32 {v(vT)}, 3, {v(vL)}\nv_xor_b32 {v(vT)}, {v(28)}, {v(vT)}')
            else: P(f'v_lshrrev_b32 {v(vT)}, 3, {v(vL)}\nv_xor_b32 {v(vT)}, {cfg.par}, {v(vT)}')
            P(f'v_and_b32 {v(vT)}, 1, {v(vT)}\nv_lshl_add_u32 {v(vT)}, {v(vT)}, 13, {v(vPUB)}')
            publish(vD0, vT, soff)
        else: publish(vD0, vPUB, soff, M2SET)

    P(f's_cmp_ge_u32 {s(sB)}, 256\ns_cbranch_scc1 L_END')
    if cfg.diag:
        for i in range(9): P(f's_mov_b32 {s(sDIAG+2*i)}, 0')
    stamp('start')
    P(f's_load_dwordx4 {s(sKP,4)}, s[0:1], 8')
    P(f's_load_dwordx16 {s(pWQ,16)}, s[0:1], 24')
    P(f's_load_dwordx2 {s(sWSP,2)}, s[0:1], 104')
    P(f's_load_dwordx2 {s(pX,2)}, s[0:1], 0')
    P(f's_load_dwordx2 {s(pOUT,2)}, s[0:1], 88')
    P(f'v_lshrrev_b32 {v(vT)}, 6, v0\nv_and_b32 {v(vL)}, 63, v0')
    P(f'v_readfirstlane_b32 {s(sW)}, {v(vT)}')
    P(f'v_lshlrev_b32 {v(vT)}, 2, {v(vL)}\nv_add_u32 {v(vT)}, {hex(L_FLAG)}, {v(vT)}\nv_mov_b32 {v(vT+1)}, 0')
    P(f'ds_write_b32 {v(vT)}, {v(vT+1)}')
    P(f's_and_b32 {s(sH)}, {s(sB)}, 31\ns_lshr_b32 {s(sJ)}, {s(sB)}, 5\ns_and_b32 {s(sX)}, {s(sB)}, 7\ns_lshr_b32 {s(sKK)}, {s(sB)}, 3')
    vKA, vVA = 8, 12
    P(f'v_lshrrev_b32 {v(vT)}, 4, {v(vL)}\nv_and_b32 {v(vT+1)}, 15, {v(vL)}')
    P(f'v_lshlrev_b32 {v(vVA)}, 10, {v(vT)}\nv_lshl_add_u32 {v(vVA)}, {v(vT+1)}, 4, {v(vVA)}')
    if cfg.ksplit:
        P(f'v_lshlrev_b32 {v(vT+2)}, 2, {v(vT)}\nv_xor_b32 {v(vT+1)}, {v(vT+1)}, {v(vT+2)}\nv_lshlrev_b32 {v(vT+1)}, 4, {v(vT+1)}\nv_lshl_add_u32 {v(vKA)}, {v(vT)}, 10, {v(vT+1)}')
        for i in range(1, 4): P(f'v_xor_b32 {v(vKA+i)}, {16*i}, {v(vKA)}')
    else:
        P(f'v_xor_b32 {v(vT+1)}, {v(vT+1)}, {v(vT)}\nv_lshlrev_b32 {v(vT+1)}, 4, {v(vT+1)}\nv_lshl_add_u32 {v(vKA)}, {v(vT)}, 8, {v(vT+1)}')
        for i in range(1, 4): P(f'v_xor_b32 {v(vKA+i)}, {64*i}, {v(vKA)}')
    P(f's_lshl_b32 {s(sO0)}, {s(sH)}, 20\ns_lshl_b32 {s(sO3)}, {s(sJ)}, 2\ns_add_u32 {s(sO3)}, {s(sO3)}, {s(sW)}\ns_lshl_b32 {s(sO3)}, {s(sO3)}, 12')
    P(f'v_lshlrev_b32 {v(vMA)}, 2, {v(vL)}\nv_lshrrev_b32 {v(vT)}, 3, {v(vL)}\nv_mul_u32_u24 {v(vMB)}, {16*6144}, {v(vT)}\nv_and_b32 {v(vT+1)}, 7, {v(vL)}\nv_lshl_add_u32 {v(vMB)}, {v(vT+1)}, 4, {v(vMB)}')
    P(f'v_lshrrev_b32 {v(vT)}, 4, {v(vL)}\nv_lshlrev_b32 {v(vT)}, 7, {v(vT)}\nv_lshl_add_u32 {v(vPUB)}, {v(vT+1)}, 4, {v(vT)}')
    vXF, vXS, vL16, vWA, vXA = 28, 32, 60, 62, 33
    P(f'v_lshlrev_b32 {v(vL16)}, 4, {v(vL)}')
    P(f'v_bfe_u32 {v(vT)}, {v(vL)}, 4, 1\nv_lshrrev_b32 {v(vT+2)}, 5, {v(vL)}\nv_lshl_add_u32 {v(vT)}, {v(vT)}, 1, {v(vT+2)}')
    P(f'v_lshl_add_u32 {v(vXA)}, {v(vT+1)}, 2, {v(vT)}\nv_lshlrev_b32 {v(vXA)}, 2, {v(vXA)}\nv_lshlrev_b32 {v(vWA)}, 14, {v(vT)}')
    P(f'v_and_b32 {v(vT+1)}, 15, {v(vL)}\nv_lshl_add_u32 {v(vWA)}, {v(vT+1)}, 4, {v(vWA)}')
    if cfg.tearly == 1:
        P(f's_sub_u32 {s(sT2)}, {s(sKK)}, 16\ns_lshl_b32 {s(sT2)}, {s(sT2)}, 2\ns_add_u32 {s(sT2)}, {s(sT2)}, {s(sX)}\ns_lshr_b32 {s(sT1B)}, {s(sT2)}, 3\ns_and_b32 {s(sT2)}, {s(sT2)}, 7')
        P(f's_cmp_lt_u32 {s(sX)}, 4\ns_cselect_b32 {s(sT2)}, {s(sT2)}, 99\ns_cmp_ge_u32 {s(sKK)}, 16\ns_cselect_b32 {s(sT2)}, {s(sT2)}, 99')
    else:
        P(f's_sub_u32 {s(sT2)}, {s(sKK)}, 16\ns_mov_b32 {s(sT1B)}, {s(sX)}')
    P(f's_and_b32 {s(sT0)}, {s(sT2)}, 1\ns_lshl_b32 {s(sT0)}, {s(sT0)}, 10\ns_lshl_b32 {s(sT1)}, {s(sT1B)}, 7\ns_add_u32 {s(sT1)}, {s(sT1)}, {s(sT0)}\ns_lshr_b32 {s(sT0)}, {s(sT2)}, 1\ns_lshl_b32 {s(sO2)}, {s(sJ)}, 7')
    P('s_waitcnt lgkmcnt(0)')
    P(f's_cmp_eq_u32 {s(sW)}, 4\ns_cbranch_scc0 L_B0')
    if cfg.b0late: P('s_setprio 3')
    P(f's_cmp_lt_u32 {s(sT2)}, 8\ns_cbranch_scc0 L_XLD')
    modtile_issue(sT0, sT1)
    P('L_XLD:')
    srd(SRD_C, pX, 1024)
    P(f'buffer_load_dwordx4 {v(vXF,4)}, {v(vL16)}, {S(SRD_C)}, 0 offen')
    P(f'buffer_load_dword {v(vXS)}, {v(vXA)}, {S(SRD_C)}, {s(sO2)} offen')
    vWQ = 128
    def wq_issue():
        srd(SRD_C, pWQ, 4 << 20)
        P(f's_lshl_b32 {s(sO2)}, {s(sJ)}, 19\ns_lshl_b32 {s(sT0)}, {s(sH)}, 8\ns_add_u32 {s(sO2)}, {s(sO2)}, {s(sT0)}')
        for i in range(16):
            P(f'buffer_load_dwordx4 {v(vWQ+4*i,4)}, {v(vWA)}, {S(SRD_C)}, {s(sO2)} offen {cfg.wpol}')
            if i < 15: P(f's_add_u32 {s(sO2)}, {s(sO2)}, {8192 if (i & 1) == 0 else 8192*7}')
    if cfg.wq0: wq_issue()
    P('L_B0:')
    if not cfg.b0late: P('s_barrier')
    P(f's_cmp_ge_u32 {s(sW)}, 4\ns_cbranch_scc1 L_CW')

    srd(SRD_K, sKP, 32 << 20)
    sTL, sRS, sTL0 = sG, sG+1, sG+2
    P(f's_mul_i32 {s(sTL0)}, {s(sH)}, {cfg.th}\ns_and_b32 {s(sTL0)}, {s(sTL0)}, 7\ns_lshl_b32 {s(sTL0)}, {s(sTL0)}, 17')
    def firsttile():
        P(f's_mov_b32 {s(sTL)}, {s(sTL0)}\ns_mov_b32 {s(sRS)}, {s(sO3)}\ns_add_u32 {s(sO1)}, {s(sO0)}, {s(sTL)}\ns_add_u32 {s(sO1)}, {s(sO1)}, {s(sRS)}')
    def nexttile():
        P(f's_add_u32 {s(sTL)}, {s(sTL)}, 0x20000\ns_and_b32 {s(sTL)}, {s(sTL)}, 0xe0000\ns_add_u32 {s(sRS)}, {s(sRS)}, {cfg.rot << 12}\ns_and_b32 {s(sRS)}, {s(sRS)}, 0x1f000\ns_add_u32 {s(sO1)}, {s(sO0)}, {s(sTL)}\ns_add_u32 {s(sO1)}, {s(sO1)}, {s(sRS)}')
    firsttile()
    P(f's_lshl_b32 {s(sT0)}, {s(sW)}, 15\ns_mov_b32 m0, {s(sT0)}\ns_mov_b32 {s(sT1)}, 0')
    stamp('L_k0')
    vV = 128
    def stream(ds, sfx):
        DK = ds[0]
        def DV(idx): return ds[0] if idx < ds[1] else ds[2]
        P(f'L_KLOOP{sfx}:')
        for i in range(4):
            if cfg.ksplit and i: P(f's_add_u32 m0, {s(sT0)}, {768*i}')
            P(f's_waitcnt vmcnt({DK-1})')
            P(f'buffer_load_dwordx4 {v(vKA+i)}, {S(SRD_K)}, {s(sO1)} offen offset:{(256 if cfg.ksplit else 1024)*i} {cfg.kpol} lds')
        if cfg.b0late: P(f's_cmp_eq_u32 {s(sT1)}, 0\ns_cbranch_scc0 L_KL2{sfx}\ns_barrier\nL_KL2{sfx}:')
        nexttile()
        P(f's_add_u32 {s(sT0)}, {s(sT0)}, 4096\ns_mov_b32 m0, {s(sT0)}\ns_add_u32 {s(sT1)}, {s(sT1)}, 1\ns_cmp_lt_u32 {s(sT1)}, 8\ns_cbranch_scc1 L_KLOOP{sfx}')
        stamp('L_kissued')
        srd(SRD_V, sVP, 32 << 20)
        firsttile()
        P(f's_lshl_b32 {s(sT0)}, {s(sW)}, 3\ns_add_u32 {s(sT0)}, {s(sT0)}, {hex(L_FLAG)}\nv_mov_b32 {v(vT)}, {s(sT0)}\nv_mov_b32 {v(vT+1)}, 1')
        for idx in range(32):
            t, i = idx >> 2, idx & 3
            P(f's_waitcnt vmcnt({DV(idx)-1})')
            if idx == DK - 1:
                P(f'ds_write_b32 {v(vT)}, {v(vT+1)}')
                stamp('L_klanded')
            P(f'buffer_load_dwordx4 {v(vV+4*idx,4)}, {v(vVA)}, {S(SRD_V)}, {s(sO1)} offen offset:{256*i} {cfg.vpol}')
            if i == 3 and t < 7: nexttile()
    if cfg.dvar:
        P(f's_getreg_b32 {s(sT2)}, hwreg(HW_REG_XCC_ID, 0, 3)')
        P(f's_bitcmp1_b32 {s(sT2)}, 2\ns_cbranch_scc1 L_STH')
        P(f's_bitcmp1_b32 {s(sT2)}, 0\ns_cbranch_scc1 L_ST1')
        stream(cfg.dvar[0], 'a'); P('s_branch L_STD\nL_ST1:')
        stream(cfg.dvar[1], 'b'); P('s_branch L_STD\nL_STH:')
        P(f's_bitcmp1_b32 {s(sT2)}, 0\ns_cbranch_scc1 L_ST3')
        stream(cfg.dvar[2], 'c'); P('s_branch L_STD\nL_ST3:')
        stream(cfg.dvar[3], 'd')
        P('L_STD:')
    elif cfg.dodd:
        P(f's_getreg_b32 {s(sT2)}, hwreg(HW_REG_XCC_ID, 0, 1)\ns_cmp_eq_u32 {s(sT2)}, 1\ns_cbranch_scc1 L_STO')
        stream(cfg.dsched, 'a'); P('s_branch L_STD\nL_STO:')
        stream(cfg.dodd, 'b')
        P('L_STD:')
    else: stream(cfg.dsched, '')
    stamp('L_vissued')
    def masks(pk=False):
        P(f'v_and_b32 {v(vT)}, 1, {v(vL)}\nv_lshlrev_b32 {v(vT)}, 4, {v(vT)}\nv_mov_b32 {v(vT+1)}, 0xffff\nv_lshlrev_b32 {v(vT+1)}, {v(vT)}, {v(vT+1)}')
        P(f'v_bfe_u32 {v(vT)}, {v(vL)}, 1, 2')
        for w in range(4):
            P(f'v_cmp_eq_u32 vcc, {w}, {v(vT)}\nv_cndmask_b32 {v(vM+w)}, 0, {v(vT+1)}, vcc')
            if pk and cfg.pkand: P(f'v_cndmask_b32 {v(vF+w)}, 0, 1.0, vcc')
        if pk and cfg.pkand: P(f'v_mov_b32 {v(vHM)}, {v(vT+1)}')
    def common_setup():
        P(f's_load_dword {s(sTAG)}, {s(sWSP,2)}, 0')
        srd(SRD_WS, sWSP, WS_BYTES)
        masks(True)
    masks()
    vPA, vOA, vP, vA, vD = 13, 14, 16, 48, 56
    P(f'v_lshrrev_b32 {v(vT)}, 4, {v(vL)}\nv_lshlrev_b32 {v(vT)}, 4, {v(vT)}\ns_lshl_b32 {s(sT0)}, {s(sW)}, 9\ns_add_u32 {s(sT0)}, {s(sT0)}, {hex(L_P)}\nv_add_u32 {v(vPA)}, {s(sT0)}, {v(vT)}')
    P(f's_add_u32 {s(sT0)}, {s(sT0)}, {hex(L_OP - L_P)}\nv_lshlrev_b32 {v(vT)}, 3, {v(vL)}\nv_add_u32 {v(vOA)}, {s(sT0)}, {v(vT)}')
    P('s_waitcnt lgkmcnt(0)')
    P('s_barrier')
    stamp('L_b1')
    for t in range(8): P(f'ds_read_b128 {v(vP+4*t,4)}, {v(vPA)} offset:{64*t}')
    P('s_waitcnt lgkmcnt(7)')
    afrag(vA, vP)
    for idx in range(32):
        if idx + 1 < 32:
            if (idx + 1) % 4 == 0: P(f's_waitcnt lgkmcnt({7 - (idx+1)//4})')
            afrag(vA + 4*((idx+1) & 1), vP + idx + 1)
        P(f's_waitcnt vmcnt({31-idx})')
        mfma(vD, vA + 4*(idx & 1), vV + 4*idx, first=(idx == 0))
    stamp('L_pv')
    P(f'v_permlane32_swap_b32 {v(vD)}, {v(vD+2)}\nv_permlane32_swap_b32 {v(vD+1)}, {v(vD+3)}')
    P(f'ds_write_b64 {v(vOA)}, {v(vD,2)}')
    P('s_waitcnt lgkmcnt(0)')
    P('s_barrier')
    P('s_endpgm' if not cfg.diag else 's_branch L_END')

    P('L_CW:')
    if cfg.gprobe and cfg.gprobe[0] in 'MR':
        P(f's_waitcnt lgkmcnt(0)\ns_mov_b32 s96, {s(sWSP)}\ns_mov_b32 s97, {s(sWSP+1)}\ns_mov_b32 s98, {hex(WS_BYTES)}\ns_mov_b32 s99, 0x20000')
        P(f's_lshl_b32 s100, {s(sB)}, 2\ns_and_b32 s101, {s(sW)}, 3\ns_add_u32 s100, s100, s101\ns_lshl_b32 s100, s100, 3\ns_add_u32 s100, s100, {hex(DIAG)}')
        P(f's_mov_b64 exec, 1\nv_mov_b32 v254, {s(sDIAG)}\nv_mov_b32 v255, {s(sDIAG)}\nv_mov_b32 v253, 0\nbuffer_store_dwordx2 v[254:255], v253, s[96:99], s100 offen sc1\ns_mov_b64 exec, -1\ns_waitcnt vmcnt(0)')
    if cfg.b0late: P('s_barrier')
    if cfg.prio: P(f's_setprio {cfg.prio}')
    P(f's_cmp_eq_u32 {s(sW)}, 4\ns_cbranch_scc0 L_C123')
    vGA = 192
    common_setup()
    P('s_waitcnt lgkmcnt(0)')
    P(f's_add_u32 {s(sTAG)}, {s(sTAG)}, 1')
    if cfg.local:
        P(f's_getreg_b32 {s(sLOC)}, hwreg(HW_REG_XCC_ID, 0, 3)\ns_lshl_b32 {s(sT0)}, {s(sTAG)}, 3\ns_or_b32 {s(sLOC)}, {s(sLOC)}, {s(sT0)}')
        P(f's_lshl_b32 {s(sO3)}, {s(sH)}, 7\ns_add_u32 {s(sO3)}, {s(sO3)}, {hex(X0)}\ns_lshl_b32 {s(sT0)}, {s(sJ)}, 2\ns_add_u32 {s(sT0)}, {s(sT0)}, {s(sO3)}\nv_mov_b32 {v(vT)}, {s(sT0)}\nv_mov_b32 {v(vT+1)}, {s(sLOC)}')
        P(f's_lshl_b32 {s(sR)}, {s(sX)}, 3\ns_lshr_b32 {s(sT0)}, {s(sKK)}, 2\ns_add_u32 {s(sR)}, {s(sR)}, {s(sT0)}\ns_lshl_b32 {s(sR)}, {s(sR)}, 7\ns_add_u32 {s(sR)}, {s(sR)}, {hex(X0B)}')
        P(f's_and_b32 {s(sT0)}, {s(sKK)}, 3\ns_lshl_b32 {s(sT0)}, {s(sT0)}, 2\ns_add_u32 {s(sT0)}, {s(sT0)}, {s(sR)}\nv_writelane_b32 {v(vT)}, {s(sT0)}, 1')
        P(f's_lshl_b32 {s(sT0)}, {s(sX)}, 7\ns_lshl_b32 {s(sO2)}, {s(sKK)}, 2\ns_add_u32 {s(sT0)}, {s(sT0)}, {s(sO2)}\ns_add_u32 {s(sT0)}, {s(sT0)}, {hex(X0C)}\nv_writelane_b32 {v(vT)}, {s(sT0)}, 2')
        if cfg.mlat:
            P(f's_lshl_b32 {s(sT0)}, {s(sH)}, 7\ns_lshl_b32 {s(sO2)}, {s(sJ)}, 3\ns_add_u32 {s(sT0)}, {s(sT0)}, {s(sO2)}\ns_add_u32 {s(sT0)}, {s(sT0)}, {hex(X3)}\nv_writelane_b32 {v(vT)}, {s(sT0)}, 3')
            P(f's_add_u32 {s(sT0)}, {s(sT0)}, 4\nv_writelane_b32 {v(vT)}, {s(sT0)}, 4\nv_writelane_b32 {v(vT+1)}, 0, 3\nv_writelane_b32 {v(vT+1)}, 0, 4')
        setexec(31 if cfg.mlat else 7)
        P(f'buffer_store_dword {v(vT+1)}, {v(vT)}, {S(SRD_WS)}, 0 offen sc1')
        setexec(ALL)
    P(f's_cmp_lt_u32 {s(sT2)}, 8\ns_cbranch_scc0 L_NOT1')
    P(f's_lshl_b32 {s(sO2)}, {s(sT1B)}, 3\ns_add_u32 {s(sO2)}, {s(sO2)}, {s(sT2)}\ns_lshl_b32 {s(sO2)}, {s(sO2)}, 9\ns_add_u32 {s(sO2)}, {s(sO2)}, {hex(X1)}')
    modtile_compute((18 if cfg.wq0 else 2) + cfg.local, sO2)
    if cfg.hint:
        P(f's_lshl_b32 {s(sO2)}, {s(sT1B)}, 9\ns_lshl_b32 {s(sT0)}, {s(sT2)}, 2\ns_add_u32 {s(sO2)}, {s(sO2)}, {s(sT0)}\ns_add_u32 {s(sO2)}, {s(sO2)}, {hex(X1F)}\nv_lshlrev_b32 {v(vT)}, 7, {v(vL)}')
        setexec(0xf)
        P(f'buffer_store_dword {v(vD0+2)}, {v(vT)}, {S(SRD_WS)}, {s(sO2)} offen sc1')
        setexec(ALL)
    stamp('C0_x1pub')
    if not cfg.wq0: wq_issue()
    P('s_branch L_T1D')
    P('L_NOT1:')
    if not cfg.wq0: wq_issue()
    P('L_T1D:')
    vx = 64
    P(f's_waitcnt vmcnt({16 + (cfg.local if cfg.wq0 else 0)})')
    for k in range(4): unpack(vx+2*k, vx+2*k+1, vXF+k)
    P(f'v_add_f32 {v(20)}, {v(vx)}, {v(vx+1)}\nv_add_f32 {v(21)}, {v(vx+2)}, {v(vx+3)}\nv_add_f32 {v(22)}, {v(vx+4)}, {v(vx+5)}\nv_add_f32 {v(23)}, {v(vx+6)}, {v(vx+7)}')
    P(f'v_add_f32 {v(20)}, {v(20)}, {v(21)}\nv_add_f32 {v(22)}, {v(22)}, {v(23)}\nv_add_f32 {v(20)}, {v(20)}, {v(22)}')
    wave_reduce('v_add_f32', [20])
    P(f'v_mul_f32 {v(20)}, {R512}, {v(20)}\nv_readlane_b32 {s(sT0)}, {v(20)}, 63')
    for k in range(8): P(f'v_subrev_f32 {v(vx+k)}, {s(sT0)}, {v(vx+k)}')
    P(f'v_mul_f32 {v(21)}, {v(vx)}, {v(vx)}')
    for k in range(1, 8): P(f'v_fmac_f32 {v(21)}, {v(vx+k)}, {v(vx+k)}')
    wave_reduce('v_add_f32', [21])
    P(f'v_mul_f32 {v(21)}, {R512}, {v(21)}')
    P(f'v_cvt_pk_bf16_f32 {v(22)}, {v(20)}, {v(21)}')
    P(f'v_and_b32 {v(21)}, 0xffff0000, {v(22)}\nv_lshlrev_b32 {v(20)}, 16, {v(22)}\nv_add_f32 {v(21)}, {EPS}, {v(21)}')
    rnd(21); P(f'v_sqrt_f32 {v(21)}, {v(21)}'); rnd(21); P(f'v_rcp_f32 {v(22)}, {v(21)}')
    P(f'v_readlane_b32 {s(sT0)}, {v(20)}, 63\nv_readlane_b32 {s(sT1)}, {v(21)}, 63\nv_readlane_b32 {s(sT2)}, {v(22)}, 63')
    vLN = 24
    unpack(vLN, vLN+1, vXS)
    for e in range(2): P(f'v_subrev_f32 {v(vLN+e)}, {s(sT0)}, {v(vLN+e)}')
    P(f'v_cvt_pk_bf16_f32 {v(20)}, {v(vLN)}, {v(vLN+1)}'); unpack(vLN, vLN+1, 20)
    for e in range(2): P(f'v_mul_f32 {v(20+e)}, {s(sT2)}, {v(vLN+e)}')
    for e in range(2): P(f'v_fma_f32 {v(vLN+e)}, -{v(20+e)}, {s(sT1)}, {v(vLN+e)}')
    for e in range(2): P(f'v_fma_f32 {v(vLN+e)}, {v(vLN+e)}, {s(sT2)}, {v(20+e)}')
    P(f'v_cvt_pk_bf16_f32 {v(20)}, {v(vLN)}, {v(vLN+1)}'); unpack(vLN, vLN+1, 20)
    P(f'v_bfe_u32 {v(vT)}, {v(vL)}, 3, 1\nv_lshlrev_b32 {v(vT)}, 9, {v(vT)}\nv_add_u32 {v(26)}, {v(vPUB)}, {v(vT)}')
    P(f's_lshl_b32 {s(sO0)}, {s(sJ)}, 12\ns_add_u32 {s(sO0)}, {s(sO0)}, {hex(X1)}')
    if cfg.hint:
        P(f's_lshl_b32 {s(sT0)}, {s(sJ)}, 2\ns_and_b32 {s(sT1)}, {s(sH)}, 3\ns_add_u32 {s(sT0)}, {s(sT0)}, {s(sT1)}\ns_lshl_b32 {s(sT0)}, {s(sT0)}, 7\ns_add_u32 {s(sT0)}, {s(sT0)}, {hex(X1F)}')
        hint_wait('h1h', sT0)
    else: P('s_waitcnt vmcnt(0)')
    if cfg.local:
        P(f's_add_u32 {s(sMASK)}, {s(sWSP)}, {s(sO3)}\ns_addc_u32 {s(sMASK+1)}, {s(sWSP+1)}, 0')
        P(f's_load_dwordx8 {s(sG,8)}, {s(sMASK,2)}, 0 glc')
        P(f's_load_dwordx4 s[8:11], {s(sWSP,2)}, {s(sR)} glc')
    stamp('C0_wq')
    if cfg.sleep1: P(f's_sleep {cfg.sleep1}')
    def issue():
        for k in range(4): P(f'buffer_load_dwordx4 {v(vGA+4*k,4)}, {v(26)}, {S(SRD_WS)}, {s(sO0)} offen offset:{1024*k} sc1')
    tagcheck_loop(issue, [vGA+4*k+2 for k in range(4)], 'h1')
    stamp('C0_h1')
    if cfg.local:
        P('s_waitcnt lgkmcnt(0)')
        P(f's_xor_b32 {s(sG)}, {s(sG)}, {s(sLOC)}')
        for k in range(1, 8): P(f's_xor_b32 {s(sG+k)}, {s(sG+k)}, {s(sLOC)}\ns_or_b32 {s(sG)}, {s(sG)}, {s(sG+k)}')
        P(f's_cselect_b32 {s(sT0)}, 0, 1')
        P(f's_xor_b32 s8, s8, {s(sLOC)}')
        for k in range(1, 4): P(f's_xor_b32 {s(8+k)}, {s(8+k)}, {s(sLOC)}\ns_or_b32 s8, s8, {s(8+k)}')
        P(f's_cselect_b32 {s(sR)}, 0, 1\ns_mov_b32 {s(sLOC)}, {s(sT0)}')
    b = vGA
    for e in range(2): P(f'v_add_f32 {v(b+e)}, {v(b+e)}, {v(b+4+e)}\nv_add_f32 {v(b+8+e)}, {v(b+8+e)}, {v(b+12+e)}')
    for e in range(2): P(f'v_add_f32 {v(b+e)}, {v(b+e)}, {v(b+8+e)}')
    P(f'v_cvt_pk_bf16_f32 {v(b+4)}, {v(b)}, {v(b+1)}\nv_mov_b32 {v(b+5)}, {v(b+4)}')
    P(f'v_mov_b32_dpp {v(b+4)}, {v(b+5)} row_ror:8 row_mask:0xf bank_mask:0xc')
    P(f'v_mov_b32_dpp {v(b+5)}, {v(b+5)} row_ror:8 row_mask:0xf bank_mask:0x3')
    unpack(b+8, b+9, b+4); unpack(b+6, b+7, b+5)
    P(f'v_add_f32 {v(b+6)}, 1.0, {v(b+6)}\nv_add_f32 {v(b+7)}, 1.0, {v(b+7)}\nv_cvt_pk_bf16_f32 {v(b+5)}, {v(b+6)}, {v(b+7)}')
    unpack(b+6, b+7, b+5)
    P(f'v_mul_f32 {v(b+6)}, {v(b+6)}, {v(vLN)}\nv_mul_f32 {v(b+7)}, {v(b+7)}, {v(vLN+1)}\nv_cvt_pk_bf16_f32 {v(b+5)}, {v(b+6)}, {v(b+7)}')
    unpack(b+6, b+7, b+5)
    P(f'v_add_f32 {v(b+6)}, {v(b+6)}, {v(b+8)}\nv_add_f32 {v(b+7)}, {v(b+7)}, {v(b+9)}')
    vH = 20
    P(f'v_cvt_pk_bf16_f32 {v(vH)}, {v(b+6)}, {v(b+6)}\nv_cvt_pk_bf16_f32 {v(vH+1)}, {v(b+7)}, {v(b+7)}')
    P(f's_lshl_b32 {s(sO1)}, {s(sH)}, 13\ns_add_u32 {s(sO1)}, {s(sO1)}, {hex(X2)}\ns_lshl_b32 {s(sO0)}, {s(sJ)}, 10\ns_add_u32 {s(sO0)}, {s(sO0)}, {s(sO1)}\ns_add_u32 {s(sO2)}, {s(sO1)}, 4096')
    chain(vD0, 16, [vWQ+4*i for i in range(16)], [(vH + (i & 1), f'row_newbcast:{i >> 1}') for i in range(16)], vAA)
    finish1(vD0)
    publish_loc(vD0, vL16, sO0)
    if cfg.hint:
        P(f's_lshl_b32 {s(sO3)}, {s(sH)}, 7\ns_add_u32 {s(sO3)}, {s(sO3)}, {hex(X2F)}\nv_mov_b32 {v(vT)}, 0\ns_lshl_b32 {s(sT0)}, {s(sJ)}, 2\ns_add_u32 {s(sT0)}, {s(sT0)}, {s(sO3)}')
        setexec(1)
        P(f'buffer_store_dword {v(vD0+2)}, {v(vT)}, {S(SRD_WS)}, {s(sT0)} offen sc1')
        setexec(ALL)
    stamp('C0_x2pub')
    P(f'v_bfe_u32 {v(vT)}, {v(vL)}, 4, 1\nv_lshrrev_b32 {v(vT+1)}, 5, {v(vL)}\nv_lshl_add_u32 {v(vT)}, {v(vT)}, 1, {v(vT+1)}\nv_and_b32 {v(vT+1)}, 15, {v(vL)}\nv_lshl_add_u32 {v(vT)}, {v(vT+1)}, 2, {v(vT)}')
    P(f'v_lshlrev_b32 {v(vT)}, 2, {v(vT)}\nv_add_u32 {v(26)}, {hex(L_Q)}, {v(vT)}')
    P(f'v_and_b32 {v(27)}, 3, {v(vL)}\nv_lshlrev_b32 {v(27)}, 3, {v(27)}\nv_add_u32 {v(27)}, {hex(L_FLAG + 4)}, {v(27)}\nv_mov_b32 {v(25)}, 1')
    if cfg.hint: hint_wait('qh', sO3)
    stamp('C0_qh')
    if cfg.sleep2: P(f's_sleep {cfg.sleep2}')
    def gather8(base_lo, base_hi):
        def issue():
            for k in range(8):
                P(f'buffer_load_dwordx4 {v(vGA+4*k,4)}, {v(vL16)}, {S(SRD_WS)}, {s(base_lo if k < 4 else base_hi)} offen offset:{1024*(k & 3)} sc1')
        return issue
    def sum8():
        for a, b2 in ((0, 1), (2, 3), (4, 5), (6, 7), (0, 2), (4, 6), (0, 4)):
            for e in (0, 1): P(f'v_add_f32 {v(vGA+4*a+e)}, {v(vGA+4*a+e)}, {v(vGA+4*b2+e)}')
    tagcheck_loop(gather8(sO1, sO2), [vGA+4*k+2 for k in range(8)], 'q')
    stamp('C0_q')
    sum8()
    P(f'v_cvt_pk_bf16_f32 {v(vT)}, {v(vGA)}, {v(vGA+1)}')
    P(f'ds_write_b32 {v(26)}, {v(vT)}')
    P(f'ds_write_b32 {v(27)}, {v(25)}')
    vg, vXv, vGAv, vGBv, vU16, vDA, vXC, vL16r, vBP, sJJ, sP, sB4, sD = 64, 12, 13, 14, 15, 17, 20, 16, 18, sG, 4, 12, 8
    def vda():
        if cfg.par is None: P(f'v_lshrrev_b32 {v(vT)}, 2, {v(vL)}\nv_lshl_add_u32 {v(vDA)}, {v(vT)}, 12, {v(vU16)}')
        else: P(f'v_lshrrev_b32 {v(vT)}, 4, {v(vL)}\nv_lshl_add_u32 {v(vDA)}, {v(vT)}, 14, {v(vU16)}\nv_bfe_u32 {v(vT)}, {v(vL)}, 2, 2\nv_lshl_add_u32 {v(vDA)}, {v(vT)}, 11, {v(vDA)}')
    def red_addr():
        par_read(19)
        par_use(19)
        if X4NEAR:
            P(f's_lshr_b32 {s(sT0)}, {s(sJJ)}, 2\ns_lshl_b32 {s(sT0)}, {s(sT0)}, 14\ns_and_b32 {s(sT1)}, {s(sJJ)}, 3\ns_lshl_b32 {s(sT1)}, {s(sT1)}, 11\ns_add_u32 {s(sT0)}, {s(sT0)}, {s(sT1)}\ns_add_u32 {s(sT0)}, {s(sT0)}, {s(sNEAR)}')
            for p_ in range(4): P(f's_add_u32 {s(sP+p_)}, {s(sT0)}, {hex(X4N + p_*32768)}')
        if cfg.par is None:
            P(f's_lshl_b32 {s(sO0)}, {s(sJJ)}, 14\ns_add_u32 {s(sO0)}, {s(sO0)}, {hex(XB)}')
            if cfg.xbrep: P(f's_lshl_b32 {s(sT1)}, {s(sX)}, 17\ns_add_u32 {s(sO0)}, {s(sO0)}, {s(sT1)}')
            for k in range(4): P(f's_add_u32 {s(sB4+k)}, {s(sO0)}, {4096*k}')
        else:
            P(f's_lshl_b32 {s(sO0)}, {s(sJJ)}, 15\ns_add_u32 {s(sO0)}, {s(sO0)}, {s(sNEAR)}\ns_add_u32 {s(sO0)}, {s(sO0)}, {hex(XB2)}')
            for k, o in enumerate((0, 4096, 16384, 20480)): P(f's_add_u32 {s(sB4+k)}, {s(sO0)}, {o}')
        P(f's_lshr_b32 {s(sO3)}, {s(sX)}, 1\ns_lshl_b32 {s(sO3)}, {s(sO3)}, 14\ns_and_b32 {s(sT0)}, {s(sX)}, 1\ns_lshl_b32 {s(sT0)}, {s(sT0)}, 12\ns_add_u32 {s(sO3)}, {s(sO3)}, {s(sT0)}\ns_add_u32 {s(sO3)}, {s(sO3)}, {hex(XC)}')
        P(f's_lshl_b32 {s(sT1)}, {s(sJJ)}, 9\ns_add_u32 {s(sO3)}, {s(sO3)}, {s(sT1)}')
        if cfg.nearloc: P(f's_add_u32 {s(sO3)}, {s(sO3)}, {s(sNEAR)}')
        if cfg.par is not None:
            P(f's_lshr_b32 {s(sO2)}, {s(sJJ)}, 1\ns_lshl_b32 {s(sO2)}, {s(sO2)}, 9\ns_and_b32 {s(sT1)}, {s(sJJ)}, 1\ns_lshl_b32 {s(sT1)}, {s(sT1)}, 7\ns_add_u32 {s(sO2)}, {s(sO2)}, {s(sT1)}')
            P(f's_and_b32 {s(sT1)}, {s(sX)}, 1\ns_lshl_b32 {s(sT1)}, {s(sT1)}, 6\ns_add_u32 {s(sO2)}, {s(sO2)}, {s(sT1)}\ns_and_b32 {s(sT1)}, {s(sX)}, 2\ns_lshl_b32 {s(sT1)}, {s(sT1)}, 7\ns_add_u32 {s(sO2)}, {s(sO2)}, {s(sT1)}\ns_add_u32 {s(sO2)}, {s(sO2)}, {s(sNEAR)}\ns_add_u32 {s(sO2)}, {s(sO2)}, {hex(XD)}')
        if cfg.par is None:
            P(f's_lshr_b32 {s(sO2)}, {s(sJJ)}, 1\ns_lshl_b32 {s(sO2)}, {s(sO2)}, 10\ns_and_b32 {s(sT1)}, {s(sJJ)}, 1\ns_lshl_b32 {s(sT1)}, {s(sT1)}, 7\ns_add_u32 {s(sO2)}, {s(sO2)}, {s(sT1)}')
            P(f's_and_b32 {s(sT1)}, {s(sX)}, 1\ns_lshl_b32 {s(sT1)}, {s(sT1)}, 6\ns_add_u32 {s(sO2)}, {s(sO2)}, {s(sT1)}\ns_lshr_b32 {s(sT1)}, {s(sX)}, 1\ns_lshl_b32 {s(sT1)}, {s(sT1)}, 8\ns_add_u32 {s(sO2)}, {s(sO2)}, {s(sT1)}\ns_add_u32 {s(sO2)}, {s(sO2)}, {hex(XD)}')
        for k in range(3): P(f's_add_u32 {s(sD+k)}, {s(sO2)}, {hex(65536*k)}')
    def red_setup():
        P(f's_sub_u32 {s(sT0)}, {s(sKK)}, 8')
        P(f's_mov_b32 {s(sJJ)}, {s(sT0)}\ns_lshl_b32 {s(sR)}, {s(sX)}, 3\ns_add_u32 {s(sR)}, {s(sR)}, {s(sT0)}')
        if cfg.local:
            P(f's_lshl_b32 {s(sT1)}, {s(sX)}, 7\ns_add_u32 {s(sT1)}, {s(sT1)}, {hex(X0C)}\ns_add_u32 {s(sMASK)}, {s(sWSP)}, {s(sT1)}\ns_addc_u32 {s(sMASK+1)}, {s(sWSP+1)}, 0')
            P(f's_load_dwordx16 s[4:19], {s(sMASK,2)}, 0 glc\ns_load_dwordx16 s[20:35], {s(sMASK,2)}, 64 glc')
            P(f's_getreg_b32 {s(sLOC)}, hwreg(HW_REG_XCC_ID, 0, 3)\ns_lshl_b32 {s(sT1)}, {s(sTAG)}, 3\ns_or_b32 {s(sLOC)}, {s(sLOC)}, {s(sT1)}')
        P(f'v_lshlrev_b32 {v(vL16r)}, 4, {v(vL)}\nv_and_b32 {v(vU16)}, 3, {v(vL)}\nv_lshlrev_b32 {v(vU16)}, 4, {v(vU16)}')
        P(f'v_and_b32 {v(vT)}, 7, {v(vL)}\nv_lshlrev_b32 {v(vT)}, 4, {v(vT)}\nv_bfe_u32 {v(vT+1)}, {v(vL)}, 3, 1\nv_lshl_add_u32 {v(vT)}, {v(vT+1)}, 3, {v(vT)}\nv_bfe_u32 {v(vT+1)}, {v(vL)}, 4, 1\nv_lshl_add_u32 {v(vT)}, {v(vT+1)}, 2, {v(vT)}\nv_lshrrev_b32 {v(vT+1)}, 5, {v(vL)}\nv_lshl_add_u32 {v(vT+2)}, {v(vT+1)}, 1, {v(vT)}')
        P(f'v_bfe_u32 {v(vT)}, {v(vL)}, 4, 1\nv_lshlrev_b32 {v(vT)}, 7, {v(vT)}\nv_lshrrev_b32 {v(vT+1)}, 2, {v(vU16)}\nv_add_u32 {v(vBP)}, {v(vT)}, {v(vT+1)}\ns_lshl_b32 {s(sT1)}, {s(sX)}, 4\nv_add_u32 {v(vBP)}, {s(sT1)}, {v(vBP)}')
        vda()
        if cfg.local:
            P('s_waitcnt lgkmcnt(0)')
            P(f's_xor_b32 s4, s4, {s(sLOC)}')
            for k in range(5, 36): P(f's_xor_b32 {s(k)}, {s(k)}, {s(sLOC)}\ns_or_b32 s4, s4, {s(k)}')
            P(f's_cselect_b32 {s(sLOC)}, 0, 1')
            srd(SRD_WS, sWSP, WS_BYTES)
        srd(SRD_A, pX, 1024); srd(SRD_B, pOUT, 1024)
        P(f's_lshl_b32 {s(sT1)}, {s(sJJ)}, 7')
        P(f'buffer_load_ushort {v(vXv)}, {v(vT+2)}, {S(SRD_A)}, {s(sT1)} offen')
        P(f's_and_b32 {s(sT2)}, {s(sX)}, 1\ns_lshl_b32 {s(sT2)}, {s(sT2)}, 6\ns_add_u32 {s(sT1)}, {s(sT1)}, {s(sT2)}\ns_and_b32 {s(sT2)}, {s(sX)}, 2\ns_lshl_b32 {s(sT2)}, {s(sT2)}, 2\ns_add_u32 {s(sT1)}, {s(sT1)}, {s(sT2)}\ns_and_b32 {s(sT2)}, {s(sX)}, 4\ns_add_u32 {s(sG+2)}, {s(sT1)}, {s(sT2)}')
        if not X4NEAR:
            for p_ in range(4): P(f's_lshl_b32 {s(sP+p_)}, {s(sJJ)}, 11\ns_add_u32 {s(sP+p_)}, {s(sP+p_)}, {hex(X4 + p_*16384)}')
        for i in range(cfg.pipe.get('xd', 1)):
            for k in range(3): P(f'v_mov_b32 {v(192+12*i+8+k)}, {s(sTAG) if k == 2 else 0}')
    def x4_issue():
        for k in range(8): P(f'buffer_load_dwordx4 {v(vg+4*k,4)}, {v(vL16r)}, {S(SRD_WS)}, {s(sP + (k >> 1))} offen offset:{1024*(k & 1)} sc1')
    P('L_QKP:')
    vKR, vQ, vKB, vDQ, vS2, vE, vML = 8, 128, 144, 28, 208, 210, 216
    sM2 = sG
    P(f's_sub_u32 {s(sT2)}, {s(sW)}, 4\ns_lshl_b32 {s(sT0)}, {s(sT2)}, 3\ns_add_u32 {s(sT0)}, {s(sT0)}, {hex(L_FLAG)}\nv_mov_b32 {v(vT+2)}, {s(sT0)}')
    P(f'v_and_b32 {v(vT)}, 15, {v(vL)}\nv_lshrrev_b32 {v(vT+1)}, 4, {v(vL)}\nv_lshlrev_b32 {v(26)}, 4, {v(vT+1)}\nv_xor_b32 {v(vT+1)}, {v(vT+1)}, {v(vT)}\nv_lshlrev_b32 {v(vT+1)}, 4, {v(vT+1)}')
    if cfg.ksplit:
        P(f'v_and_b32 {v(vKR)}, 3, {v(vL)}\nv_lshlrev_b32 {v(vKR)}, 10, {v(vKR)}\nv_lshrrev_b32 {v(vT)}, 2, {v(vT)}\nv_lshl_add_u32 {v(vKR)}, {v(vT)}, 8, {v(vKR)}\nv_add_u32 {v(vKR)}, {v(vKR)}, {v(vT+1)}')
    else: P(f'v_lshl_add_u32 {v(vKR)}, {v(vT)}, 8, {v(vT+1)}')
    P(f's_lshl_b32 {s(sT0)}, {s(sT2)}, 15\nv_add_u32 {v(vKR)}, {s(sT0)}, {v(vKR)}')
    for q in range(1, 4): P(f'v_xor_b32 {v(vKR+q)}, {64*q}, {v(vKR)}')
    P(f'v_and_b32 {v(27)}, 7, {v(vL)}\nv_lshl_add_u32 {v(27)}, {v(27)}, 6, {v(26)}\nv_bfe_u32 {v(vT)}, {v(vL)}, 3, 1\nv_lshl_add_u32 {v(27)}, {v(vT)}, 3, {v(27)}')
    P(f's_lshl_b32 {s(sT0)}, {s(sT2)}, 9\ns_add_u32 {s(sT0)}, {s(sT0)}, {hex(L_P)}\nv_add_u32 {v(27)}, {s(sT0)}, {v(27)}\nv_add_u32 {v(26)}, {hex(L_Q)}, {v(26)}')
    P(f's_lshl_b32 {s(sT0)}, {s(sT2)}, 4\ns_add_u32 {s(sT0)}, {s(sT0)}, {hex(L_MS)}\nv_mov_b32 {v(25)}, {s(sT0)}\nv_mov_b32 {v(vML+2)}, 1\nv_mov_b32 {v(vML+3)}, 1')
    P(f's_mov_b32 {s(sMASK)}, 0x00010001\ns_mov_b32 {s(sMASK+1)}, 0x00010001\ns_mov_b32 {s(sM2)}, 0x01000100\ns_mov_b32 {s(sM2+1)}, 0x01000100')
    lds_wait('kq', vT+2, 2, 28, [28, 29], cfg.lsleep)
    stamp('C0_kready')
    for q in range(4): P(f'ds_read_b128 {v(vQ+4*q,4)}, {v(26)} offset:{64*q}')
    NB = 3; PD = NB - 1; NT = 8
    def kread(t, q): P(f'ds_read_b128 {v(vKB+16*(t % NB)+4*q,4)}, {v(vKR+q)} offset:{4096*t}')
    for t in range(PD):
        for q in range(4): kread(t, q)
    for t in range(NT + 1):
        u = t - 1
        for q in range(4):
            if t < NT:
                if q in (0, 2): P(f's_waitcnt lgkmcnt({min(4*PD - 2, 4*(NT - t) - 2 - q)})')
                mfma(vDQ + 4*(t & 1), vKB + 16*(t % NB) + 4*q, vQ + 4*q, first=(q == 0))
                if t + PD < NT: kread(t + PD, q)
            if t >= 1 and q >= 2:
                mk = sMASK if q == 2 else sM2
                for e in range(2):
                    P(f'v_cndmask_b32 {v(vS2+e)}, {v(vS2+e)}, {v(vDQ+4*(u & 1)+2*(q-2)+e)}, {s(mk,2)}')
        if t >= 1 and t < NT: P(f's_lshl_b64 {s(sMASK,2)}, {s(sMASK,2)}, 1\ns_lshl_b64 {s(sM2,2)}, {s(sM2,2)}, 1')
    stamp('C0_qk')
    P(f'v_cvt_pk_bf16_f32 {v(vE)}, {v(vS2)}, {v(vS2+1)}'); unpack(vS2, vS2+1, vE)
    for e in range(2): P(f'v_mul_f32 {v(vS2+e)}, {SCALE}, {v(vS2+e)}')
    P(f'v_cvt_pk_bf16_f32 {v(vE)}, {v(vS2)}, {v(vS2+1)}'); unpack(vS2, vS2+1, vE)
    P(f'v_max_f32 {v(vML)}, {v(vS2)}, {v(vS2+1)}')
    wave_reduce('v_max_f32', [vML])
    P(f'v_readlane_b32 {s(sT0)}, {v(vML)}, 63')
    for e in range(2): P(f'v_subrev_f32 {v(vE+e)}, {s(sT0)}, {v(vS2+e)}')
    for e in range(2): P(f'v_mul_f32 {v(vE+e)}, {LOG2E}, {v(vE+e)}')
    for e in range(2): P(f'v_exp_f32 {v(vE+e)}, {v(vE+e)}')
    P(f'v_add_f32 {v(vML+1)}, {v(vE)}, {v(vE+1)}')
    wave_reduce('v_add_f32', [vML+1])
    setexec(1 << 63)
    P(f'ds_write_b128 {v(25)}, {v(vML,4)}')
    setexec(ALL)
    P(f's_cmp_eq_u32 {s(sW)}, 4\ns_cbranch_scc1 L_C0ML')
    P(f's_cmp_eq_u32 {s(sW)}, 5\ns_cbranch_scc0 L_MLWAIT')
    if cfg.rwait == 4 or cfg.rearly:
        P(f's_sub_u32 {s(sT0)}, {s(sKK)}, 8\ns_cmp_lt_u32 {s(sT0)}, 8\ns_cbranch_scc0 L_NORED')
        red_setup()
        if cfg.rwait == 4: x4_issue()
        P('s_branch L_MLWAIT\nL_NORED:')
    P(f's_cmp_eq_u32 {s(sR)}, 99\ns_cbranch_scc0 L_MLWAIT')
    modtile_compute(0, sO2, X4NEAR)
    P('L_MLWAIT:')
    if cfg.par == 'dyn':
        P(f's_cmp_eq_u32 {s(sW)}, 7\ns_cbranch_scc0 L_NOPF')
        P(f's_lshl_b32 {s(sT0)}, {s(sX)}, 7\ns_add_u32 {s(sT0)}, {s(sT0)}, {hex(XP)}\ns_lshl_b32 {s(sT1)}, {s(sTAG)}, 1\ns_mov_b32 {s(sSPIN)}, 0')
        P(f'L_PFT:\ns_load_dword s8, {s(sWSP,2)}, {s(sT0)} glc\ns_add_u32 {s(sSPIN)}, {s(sSPIN)}, 1\ns_cmp_gt_u32 {s(sSPIN)}, {cfg.spin}\ns_cbranch_scc1 L_END\ns_waitcnt lgkmcnt(0)')
        P(f's_xor_b32 s9, s8, {s(sT1)}\ns_cmp_lt_u32 s9, 2\ns_cbranch_scc1 L_PFD\ns_sleep 8\ns_branch L_PFT\nL_PFD:')
        P(f's_or_b32 s9, s9, 2\nv_mov_b32 {v(vT)}, {hex(L_PAR)}\nv_mov_b32 {v(vT+1)}, s9\nds_write_b32 {v(vT)}, {v(vT+1)}')
        P('L_NOPF:')
    P(f'v_mov_b32 {v(vT+2)}, {hex(L_ML)}')
    lds_wait('mlw', vT+2, 4, vML, [vML+2], cfg.lsleep)
    P('s_branch L_PCALC')
    P('L_C0ML:')
    P(f'v_and_b32 {v(vT+2)}, 3, {v(vL)}\nv_lshlrev_b32 {v(vT+2)}, 4, {v(vT+2)}\nv_add_u32 {v(vT+2)}, {hex(L_MS)}, {v(vT+2)}')
    P(f's_lshl_b32 {s(sO1)}, {s(sH)}, 7\ns_add_u32 {s(sO1)}, {s(sO1)}, {hex(X3)}\ns_lshl_b32 {s(sO0)}, {s(sJ)}, 4\ns_add_u32 {s(sO0)}, {s(sO0)}, {s(sO1)}')
    lds_wait('msw', vT+2, 4, 220, [222])
    P(f'v_max_f32_dpp {v(vML)}, {v(220)}, {v(220)} quad_perm:[1,0,3,2] row_mask:0xf bank_mask:0xf\nv_mov_b32 {v(vML+2)}, {s(sTAG)}\nv_mov_b32 {v(vML+3)}, {s(sTAG)}')
    P(f'v_max_f32_dpp {v(vML)}, {v(vML)}, {v(vML)} quad_perm:[2,3,0,1] row_mask:0xf bank_mask:0xf')
    P(f'v_sub_f32 {v(220)}, {v(220)}, {v(vML)}\nv_mul_f32 {v(220)}, {LOG2E}, {v(220)}\nv_exp_f32 {v(220)}, {v(220)}\nv_mov_b32 {v(vT)}, 0\nv_mul_f32 {v(vML+1)}, {v(220)}, {v(221)}')
    for mod in ('quad_perm:[1,0,3,2]', 'quad_perm:[2,3,0,1]'): P(f'v_add_f32_dpp {v(vML+1)}, {v(vML+1)}, {v(vML+1)} {mod} row_mask:0xf bank_mask:0xf')
    if cfg.mlat:
        P(f'v_readfirstlane_b32 s4, {v(vML)}\nv_readfirstlane_b32 s5, {v(vML+1)}')
        P(f's_add_u32 {s(sMASK)}, {s(sWSP)}, {s(sO1)}\ns_addc_u32 {s(sMASK+1)}, {s(sWSP+1)}, 0\ns_lshl_b32 {s(sT0)}, {s(sJ)}, 3\ns_mov_b32 {s(sSPIN)}, 0')
        P(f's_atomic_add_x2 s[4:5], {s(sMASK,2)}, {s(sT0)}')
        stamp('C0_x3pub')
        gl = [4 + 2*k for k in range(8)]
        P('s_waitcnt lgkmcnt(0)')
        P('L_MLW:')
        if cfg.sleep3: P(f's_sleep {cfg.sleep3}')
        P(f's_load_dwordx16 s[4:19], {s(sMASK,2)}, 0 glc')
        P(f's_add_u32 {s(sSPIN)}, {s(sSPIN)}, 1\ns_cmp_gt_u32 {s(sSPIN)}, {cfg.spin}\ns_cbranch_scc1 L_END')
        P('s_waitcnt lgkmcnt(0)')
        P(f's_min_u32 {s(sT0)}, s5, s7')
        for g in gl[2:]: P(f's_min_u32 {s(sT0)}, {s(sT0)}, {s(g+1)}')
        P(f's_cmp_eq_u32 {s(sT0)}, 0\ns_cbranch_scc1 L_MLW')
    else:
        publish(vML, vT, sO0, 1)
        stamp('C0_x3pub')
        P(f's_add_u32 {s(sMASK)}, {s(sWSP)}, {s(sO1)}\ns_addc_u32 {s(sMASK+1)}, {s(sWSP+1)}, 0\ns_mov_b32 {s(sSPIN)}, 0')
        gl = [4 + 4*k for k in range(8)]
        P('L_MLW:')
        if cfg.sleep3: P(f's_sleep {cfg.sleep3}')
        P(f's_load_dwordx16 s[4:19], {s(sMASK,2)}, 0 glc\ns_load_dwordx16 s[20:35], {s(sMASK,2)}, 64 glc')
        P(f's_add_u32 {s(sSPIN)}, {s(sSPIN)}, 1\ns_cmp_gt_u32 {s(sSPIN)}, {cfg.spin}\ns_cbranch_scc1 L_END')
        P('s_waitcnt lgkmcnt(0)')
        P(f's_xor_b32 {s(sT0)}, {s(gl[0]+2)}, {s(sTAG)}')
        for g in gl[1:]: P(f's_xor_b32 {s(sT1)}, {s(g+2)}, {s(sTAG)}\ns_or_b32 {s(sT0)}, {s(sT0)}, {s(sT1)}')
        P('s_cbranch_scc1 L_MLW')
    stamp('C0_ml')
    vG8 = 220
    P(f'v_mov_b32 {v(vML)}, {s(gl[0])}')
    for g in gl[1:]: P(f'v_max_f32 {v(vML)}, {s(g)}, {v(vML)}')
    for k, g in enumerate(gl): P(f'v_sub_f32 {v(vG8+k)}, {s(g)}, {v(vML)}')
    for k in range(8): P(f'v_mul_f32 {v(vG8+k)}, {LOG2E}, {v(vG8+k)}')
    for k in range(8): P(f'v_exp_f32 {v(vG8+k)}, {v(vG8+k)}')
    P(f'v_mul_f32 {v(vE)}, {s(gl[0]+1)}, {v(vG8)}')
    for k, g in enumerate(gl[1:]): P(f'v_fmac_f32 {v(vE)}, {s(g+1)}, {v(vG8+k+1)}')
    P(f'v_rcp_f32 {v(vE+1)}, {v(vE)}\nv_mov_b32 {v(vT+2)}, {hex(L_ML)}\nv_mov_b32 {v(vML+2)}, 1')
    P(f'v_fma_f32 {v(vE)}, -{v(vE)}, {v(vE+1)}, 1.0\nv_fma_f32 {v(vML+1)}, {v(vE)}, {v(vE+1)}, {v(vE+1)}')
    setexec(1)
    P(f'ds_write_b128 {v(vT+2)}, {v(vML,4)}')
    setexec(ALL)
    P('L_PCALC:')
    for e in range(2): P(f'v_sub_f32 {v(vE+e)}, {v(vS2+e)}, {v(vML)}')
    for e in range(2): P(f'v_mul_f32 {v(vE+e)}, {LOG2E}, {v(vE+e)}')
    for e in range(2): P(f'v_exp_f32 {v(vE+e)}, {v(vE+e)}')
    for e in range(2): P(f'v_mul_f32 {v(vE+e)}, {v(vE+e)}, {v(vML+1)}')
    for e in range(2): P(f'v_cvt_pk_bf16_f32 {v(vE+e)}, {v(vE+e)}, {v(vE+e)}')
    P(f'ds_write_b64 {v(27)}, {v(vE,2)}')
    srd(SRD_WS, sWSP, WS_BYTES)
    P(f's_cmp_eq_u32 {s(sW)}, 4\ns_cbranch_scc1 L_C0B1')
    P('s_waitcnt lgkmcnt(0)')
    P('s_barrier')
    P(f's_cmp_eq_u32 {s(sW)}, 5\ns_cbranch_scc1 L_C1B1')
    P('s_branch L_C23B1')
    P('L_C0B1:')
    srd(SRD_A, pWO, 4 << 20)
    P(f'v_bfe_u32 {v(vT)}, {v(vL)}, 3, 1\nv_lshlrev_b32 {v(vT)}, 16, {v(vT)}\nv_bfe_u32 {v(vT+1)}, {v(vL)}, 4, 1\nv_lshl_add_u32 {v(vT)}, {v(vT+1)}, 12, {v(vT)}\nv_lshrrev_b32 {v(vT+1)}, 5, {v(vL)}\nv_lshl_add_u32 {v(vT)}, {v(vT+1)}, 11, {v(vT)}')
    P(f'v_and_b32 {v(vT+1)}, 7, {v(vL)}\nv_lshl_add_u32 {v(vWA)}, {v(vT+1)}, 4, {v(vT)}')
    P(f's_lshl_b32 {s(sO0)}, {s(sH)}, 17\ns_lshl_b32 {s(sT0)}, {s(sJ)}, 7\ns_add_u32 {s(sO0)}, {s(sO0)}, {s(sT0)}')
    P('s_waitcnt lgkmcnt(0)')
    stamp('C0_p')
    P('s_barrier')
    vWO = 64
    par_read(15)
    def wo_issue(sreg):
        for i in range(16):
            P(f'buffer_load_dwordx4 {v(vWO+4*i,4)}, {v(vWA)}, {S(SRD_A)}, {s(sreg)} offen offset:{1024*(i & 1)} {cfg.wpol}')
            if (i & 1) == 1 and i < 15: P(f's_add_u32 {s(sreg)}, {s(sreg)}, 8192')
    if not cfg.wob2: wo_issue(sO0)
    else: P(f's_mov_b32 {s(sG)}, {s(sO0)}')
    P(f'v_lshrrev_b32 {v(vT+2)}, 1, {v(vL16)}\nv_add_u32 {v(vT+2)}, {hex(L_OP)}, {v(vT+2)}')
    par_use(15)
    P(f's_lshl_b32 {s(sO1)}, {s(sH)}, 14\ns_add_u32 {s(sO1)}, {s(sO1)}, {hex(XA)}')
    if cfg.nearloc: P(f's_add_u32 {s(sO1)}, {s(sO1)}, {s(sNEAR)}')
    P(f's_lshl_b32 {s(sO0)}, {s(sJ)}, 10\ns_add_u32 {s(sO0)}, {s(sO0)}, {s(sO1)}\ns_add_u32 {s(sO2)}, {s(sO1)}, 4096')
    P(f's_lshl_b32 {s(sO3)}, {s(sJ)}, 5\ns_add_u32 {s(sO3)}, {s(sO3)}, {s(sH)}\ns_lshl_b32 {s(sO3)}, {s(sO3)}, 9\ns_add_u32 {s(sO3)}, {s(sO3)}, {hex(XB)}')
    P(f'v_mov_b32 {v(22)}, {s(sTAG)}')
    vAP, vDNA, vCA, vEA, vXBA = 8, 10, 11, 12, 13
    P(f'v_mov_b32 {v(14)}, {hex(L_FLAG + 160)}')
    if cfg.gwait:
        P(f'v_and_b32 {v(16)}, 31, {v(vL)}\nv_lshlrev_b32 {v(16)}, 2, {v(16)}\ns_lshl_b32 {s(sG)}, {s(sX)}, 7\ns_add_u32 {s(sG)}, {s(sG)}, {hex(XG)}')
    if cfg.par is None: P(f'v_bfe_u32 {v(vT)}, {v(vL)}, 3, 1\nv_lshl_add_u32 {v(vXBA)}, {v(vT)}, 17, {v(vPUB)}')
    else:
        P(f'v_bfe_u32 {v(vT)}, {v(vL)}, 3, 1\nv_xor_b32 {v(vT)}, {s(sPAR)}, {v(vT)}\nv_lshl_add_u32 {v(vXBA)}, {v(vT)}, 13, {v(vPUB)}')
        P(f's_lshl_b32 {s(sO3)}, {s(sJ)}, 1\ns_lshr_b32 {s(sT0)}, {s(sH)}, 4\ns_add_u32 {s(sO3)}, {s(sO3)}, {s(sT0)}\ns_lshl_b32 {s(sO3)}, {s(sO3)}, 14\ns_and_b32 {s(sT0)}, {s(sH)}, 15\ns_lshl_b32 {s(sT0)}, {s(sT0)}, 9\ns_add_u32 {s(sO3)}, {s(sO3)}, {s(sT0)}\ns_add_u32 {s(sO3)}, {s(sO3)}, {hex(XB2)}')
    sQ, sW2, sDN, sEP, sEG, sDP, sC0 = 4, 6, 8, 9, 10, 11, 12
    P(f's_sub_u32 {s(sT0)}, {s(sKK)}, 8\ns_cmp_lt_u32 {s(sKK)}, 8\ns_cselect_b32 {s(sT1)}, {s(sKK)}, {s(sT0)}\ns_and_b32 {s(sQ)}, {s(sT1)}, 3\ns_lshr_b32 {s(sT1)}, {s(sT1)}, 2')
    P(f's_mul_i32 {s(sIM)}, {s(sX)}, 6\ns_add_u32 {s(sIM)}, {s(sIM)}, {s(sT1)}\ns_cmp_lt_u32 {s(sT0)}, 8\ns_cselect_b32 {s(sIM)}, 255, {s(sIM)}')
    srd(SRD_B, pW2, 1376*1024)
    P(f'v_lshrrev_b32 {v(vT)}, 3, {v(vL)}\nv_mul_u32_u24 {v(vT)}, {16*2752}, {v(vT)}\nv_and_b32 {v(vT+1)}, 3, {v(vL)}\nv_lshl_add_u32 {v(vT)}, {v(vT+1)}, 4, {v(vT)}')
    P(f's_mul_i32 {s(sT0)}, {s(sQ)}, {128*2752}\ns_min_u32 {s(sT1)}, {s(sIM)}, {NM-1}\ns_lshl_b32 {s(sT1)}, {s(sT1)}, 6\ns_add_u32 {s(sT0)}, {s(sT0)}, {s(sT1)}\nv_add_u32 {v(vT)}, {s(sT0)}, {v(vT)}')
    P(f's_mov_b32 {s(sMASK)}, 0xf0f0f0f0\ns_mov_b32 {s(sMASK+1)}, 0xf0f0f0f0\ns_mov_b32 {s(sW2)}, 2752*2\ns_mov_b32 {s(sW2+1)}, 0')
    P(f'v_mov_b32 {v(vAP)}, {s(pW1)}\nv_mov_b32 {v(vAP+1)}, {s(pW1+1)}\nv_mov_b32 {v(vT+1)}, {s(pW3)}\nv_mov_b32 {v(vCA)}, {s(pW3+1)}')
    P(f'v_cndmask_b32 {v(vAP)}, {v(vAP)}, {v(vT+1)}, {s(sMASK,2)}\nv_cndmask_b32 {v(vAP+1)}, {v(vAP+1)}, {v(vCA)}, {s(sMASK,2)}')
    P(f'v_add_co_u32 {v(vAP)}, vcc, {v(vAP)}, {v(vT)}\nv_addc_co_u32 {v(vAP+1)}, vcc, 0, {v(vAP+1)}, vcc')
    P(f'v_bfe_u32 {v(vT)}, {v(vL)}, 4, 1\nv_lshlrev_b32 {v(vDNA)}, 12, {v(vT)}\nv_lshrrev_b32 {v(vT)}, 5, {v(vL)}\nv_lshl_add_u32 {v(vDNA)}, {v(vT)}, 11, {v(vDNA)}\nv_and_b32 {v(vT)}, 15, {v(vL)}\nv_lshl_add_u32 {v(vDNA)}, {v(vT)}, 4, {v(vDNA)}')
    P(f's_lshl_b32 {s(sDN)}, {s(sIM)}, 15\ns_lshl_b32 {s(sT0)}, {s(sQ)}, 8\ns_add_u32 {s(sDN)}, {s(sDN)}, {s(sT0)}')
    P(f's_lshr_b32 {s(sEG)}, {s(sIM)}, 2\ns_lshl_b32 {s(sEG)}, {s(sEG)}, 14\ns_and_b32 {s(sT0)}, {s(sIM)}, 3\ns_lshl_b32 {s(sT0)}, {s(sT0)}, 11\ns_add_u32 {s(sEG)}, {s(sEG)}, {s(sT0)}\ns_add_u32 {s(sEG)}, {s(sEG)}, {hex(XE)}')
    if cfg.nearloc: P(f's_add_u32 {s(sEG)}, {s(sEG)}, {s(sNEAR)}')
    P(f's_lshl_b32 {s(sT0)}, {s(sQ)}, 9\ns_add_u32 {s(sEP)}, {s(sEG)}, {s(sT0)}')
    vDPA = 17
    if cfg.par is None: P(f's_lshl_b32 {s(sDP)}, {s(sIM)}, 12\ns_lshl_b32 {s(sT0)}, {s(sQ)}, 10\ns_add_u32 {s(sDP)}, {s(sDP)}, {s(sT0)}\ns_add_u32 {s(sDP)}, {s(sDP)}, {hex(XD)}')
    else:
        P(f's_lshr_b32 {s(sDP)}, {s(sIM)}, 2\ns_lshl_b32 {s(sDP)}, {s(sDP)}, 14\ns_and_b32 {s(sT0)}, {s(sIM)}, 3\ns_lshl_b32 {s(sT0)}, {s(sT0)}, 11\ns_add_u32 {s(sDP)}, {s(sDP)}, {s(sT0)}\ns_lshl_b32 {s(sT0)}, {s(sQ)}, 9\ns_add_u32 {s(sDP)}, {s(sDP)}, {s(sT0)}\ns_add_u32 {s(sDP)}, {s(sDP)}, {hex(XD)}')
        P(f'v_and_b32 {v(vDPA)}, 31, {v(vL)}\nv_lshlrev_b32 {v(vDPA)}, 4, {v(vDPA)}\nv_lshrrev_b32 {v(vT)}, 5, {v(vL)}\nv_xor_b32 {v(vT)}, {s(sPAR)}, {v(vT)}\nv_lshl_add_u32 {v(vDPA)}, {v(vT)}, 13, {v(vDPA)}')
    P(f's_lshr_b32 {s(sT1)}, {s(sX)}, 1\ns_lshl_b32 {s(sT1)}, {s(sT1)}, 14\ns_and_b32 {s(sT0)}, {s(sX)}, 1\ns_lshl_b32 {s(sT0)}, {s(sT0)}, 12\ns_add_u32 {s(sT1)}, {s(sT1)}, {s(sT0)}\ns_add_u32 {s(sT1)}, {s(sT1)}, {hex(XC)}')
    if cfg.nearloc: P(f's_add_u32 {s(sT1)}, {s(sT1)}, {s(sNEAR)}')
    for k in range(4): P(f's_add_u32 {s(sT0)}, {s(sQ)}, {k}\ns_and_b32 {s(sT0)}, {s(sT0)}, 3\ns_lshl_b32 {s(sT0)}, {s(sT0)}, 10\ns_add_u32 {s(sC0+k)}, {s(sT0)}, {s(sT1)}')
    P(f'v_lshrrev_b32 {v(vT)}, 5, {v(vL)}\nv_lshlrev_b32 {v(vCA)}, 9, {v(vT)}\nv_bfe_u32 {v(vT)}, {v(vL)}, 1, 1\nv_lshl_add_u32 {v(vCA)}, {v(vT)}, 7, {v(vCA)}\nv_and_b32 {v(vT)}, 1, {v(vL)}\nv_lshl_add_u32 {v(vCA)}, {v(vT)}, 8, {v(vCA)}')
    P(f'v_bfe_u32 {v(vT)}, {v(vL)}, 2, 3\nv_lshl_add_u32 {v(vCA)}, {v(vT)}, 4, {v(vCA)}')
    P(f'v_bfe_u32 {v(vT)}, {v(vL)}, 3, 1\nv_lshlrev_b32 {v(vT)}, 9, {v(vT)}\nv_add_u32 {v(vEA)}, {v(vPUB)}, {v(vT)}')
    P('s_barrier')
    stamp('C0_b2')
    for w in range(4): P(f'ds_read_b64 {v(24+2*w,2)}, {v(vT+2)} offset:{512*w}')
    P('s_waitcnt lgkmcnt(2)')
    for e in range(2): P(f'v_add_f32 {v(24+e)}, {v(24+e)}, {v(26+e)}')
    P('s_waitcnt lgkmcnt(0)')
    for e in range(2): P(f'v_add_f32 {v(28+e)}, {v(28+e)}, {v(30+e)}')
    for e in range(2): P(f'v_add_f32 {v(20+e)}, {v(24+e)}, {v(28+e)}')
    publish_loc(20, vL16, sO0)
    stamp('C0_xapub')
    if cfg.wob2 == 1: wo_issue(sG)
    vOd = 40
    def issue(b):
        for k in range(0, 8, 2 if cfg.fakehalf & 2 else 1):
            P(f'buffer_load_dwordx4 {v(b+4*k,4)}, {v(vL16)}, {S(SRD_WS)}, {s(sO1 if k < 4 else sO2)} offen offset:{1024*(k & 3)} sc1')
    def done(b):
        for a, b2 in ((0, 1), (2, 3), (4, 5), (6, 7), (0, 2), (4, 6), (0, 4)):
            for e in (0, 1): P(f'v_add_f32 {v(b+4*a+e)}, {v(b+4*a+e)}, {v(b+4*b2+e)}')
        P(f'v_cvt_pk_bf16_f32 {v(vOd)}, {v(b)}, {v(b)}\nv_cvt_pk_bf16_f32 {v(vOd+1)}, {v(b+1)}, {v(b+1)}')
    poll('xa', issue, 8, 128, 32, [4*k+2 for k in range(0, 8, 2 if cfg.fakehalf & 2 else 1)], done)
    stamp('C0_xa')
    vGW, vGA2 = 15, 16
    def g_issue(): P(f'buffer_load_dword {v(vGW)}, {v(vGA2)}, {S(SRD_WS)}, {s(sG)} offen sc1')
    if cfg.gwait: g_issue()
    lohi(vOd)
    chain(vD0, 16, [vWO+4*i for i in range(16)], lohi_srcs(vOd), vAA)
    finish2(vD0)
    if cfg.par is not None:
        for e in range(2): P(f'v_mov_b32_dpp {v(vD0+e)}, {v(vD0+e)} row_ror:8 row_mask:0xf bank_mask:0xc')
        publish(vD0, vXBA, sO3)
    elif cfg.xbrep:
        for e in range(2): P(f'v_mov_b32_dpp {v(vD0+e)}, {v(vD0+e)} row_ror:8 row_mask:0xf bank_mask:0xc')
        for i in range(4):
            P(f'buffer_store_dwordx4 {v(vD0,4)}, {v(vXBA)}, {S(SRD_WS)}, {s(sO3)} offen sc1')
            if i < 3: P(f's_add_u32 {s(sO3)}, {s(sO3)}, 0x40000')
    else: publish(vD0, vPUB, sO3, M2SET)
    if cfg.rwait and cfg.rwait < 4: P(f'ds_write_b32 {v(14)}, {v(14)}')
    stamp('C0_xbpub')
    if cfg.rwait == 4:
        P(f's_cmp_lt_u32 {s(sIM)}, {NM}\ns_cbranch_scc1 L_MLP')
        if cfg.ackw: P('s_waitcnt vmcnt(0)')
        P(f'ds_write_b32 {v(14)}, {v(14)}')
        P('s_branch L_END\nL_MLP:')
    else: P(f's_cmp_lt_u32 {s(sIM)}, {NM}\ns_cbranch_scc0 L_END')
    vUP, vDN, vCG, vEG = 128, 192, 64, 80
    if cfg.gwait:
        P(f's_mov_b32 {s(sSPIN)}, 0\ns_waitcnt vmcnt({4 if cfg.xbrep else 1})\ns_branch L_GCHK\nL_GTOP:')
        g_issue()
        P(f's_add_u32 {s(sSPIN)}, {s(sSPIN)}, 1\ns_cmp_gt_u32 {s(sSPIN)}, {cfg.spin}\ns_cbranch_scc1 L_END\ns_waitcnt vmcnt(0)\nL_GCHK:')
        P(f'v_cmp_eq_u32 vcc, {s(sTAG)}, {v(vGW)}\ns_bcnt1_i32_b64 {s(sT0)}, vcc\ns_cmp_lt_u32 {s(sT0)}, {2*cfg.gthr}\ns_cbranch_scc1 L_GTOP')
    for i in range(16):
        P(f'global_load_dwordx4 {v(vUP+4*i,4)}, {v(vAP,2)}, off offset:{2752*(i & 1)} {cfg.uppol}')
        if i & 1 and i < 15: P(f'v_lshl_add_u64 {v(vAP,2)}, {v(vAP,2)}, 0, {s(sW2,2)}')
    def dn_issue():
        for i in range(8):
            P(f'buffer_load_dwordx4 {v(vDN+4*i,4)}, {v(vDNA)}, {S(SRD_B)}, {s(sDN)} offen offset:{1024*(i & 1)} {cfg.wpol}')
            if i & 1 and i < 7: P(f's_add_u32 {s(sDN)}, {s(sDN)}, 8192')
    if not cfg.dnlate: dn_issue()
    if cfg.diag and 'M_w' in cfg.diag:
        P('s_waitcnt vmcnt(0)'); stamp('M_w')
    vx, vcb, vsb = 88, 24, 26
    def issue(b):
        for k in range(4): P(f'buffer_load_dwordx4 {v(b+4*k,4)}, {v(vCA)}, {S(SRD_WS)}, {s(sC0+k)} offen sc1')
    def done(b):
        for k in range(4): unpack(vx+2*k, vx+2*k+1, b+4*k)
        unpack(vcb, vcb+1, b+1); unpack(vsb, vsb+1, b+2)
    poll('xc', issue, 4, 64 if cfg.pipe.get('xc', 1) == 1 else 104, 16 if cfg.pipe.get('xc', 1) != 2 else -40, [4*k+3 for k in range(4)], done)
    stamp('M_xc')
    if cfg.dnlate == 1: dn_issue()
    P(f'v_readfirstlane_b32 {s(sT0)}, {v(vx)}')
    for k in range(8): P(f'v_subrev_f32 {v(96+k)}, {s(sT0)}, {v(vx+k)}')
    P(f'v_pk_add_f32 {v(20,2)}, {v(96,2)}, {v(98,2)}\nv_pk_add_f32 {v(22,2)}, {v(100,2)}, {v(102,2)}\nv_pk_mul_f32 {v(28,2)}, {v(96,2)}, {v(96,2)}\nv_pk_mul_f32 {v(30,2)}, {v(100,2)}, {v(100,2)}')
    P(f'v_pk_add_f32 {v(20,2)}, {v(20,2)}, {v(22,2)}\nv_pk_fma_f32 {v(28,2)}, {v(98,2)}, {v(98,2)}, {v(28,2)}\nv_pk_fma_f32 {v(30,2)}, {v(102,2)}, {v(102,2)}, {v(30,2)}')
    P(f'v_add_f32 {v(22)}, {v(20)}, {v(21)}\nv_pk_add_f32 {v(28,2)}, {v(28,2)}, {v(30,2)}\nv_add_f32 {v(23)}, {v(28)}, {v(29)}')
    for mod in ('quad_perm:[1,0,3,2]', 'quad_perm:[2,3,0,1]', 'row_ror:4', 'row_ror:8'):
        for r in (22, 23): P(f'v_add_f32_dpp {v(r)}, {v(r)}, {v(r)} {mod} row_mask:0xf bank_mask:0xf')
    P(f'v_permlane16_swap_b32 {v(22)}, {v(23)}\nv_add_f32 {v(22)}, {v(22)}, {v(23)}\nv_mov_b32 {v(23)}, {v(22)}')
    P(f'v_permlane32_swap_b32 {v(22)}, {v(23)}\nv_add_f32 {v(22)}, {v(22)}, {v(23)}\nv_mul_f32 {v(22)}, {R512}, {v(22)}')
    P(f'v_readlane_b32 {s(sT1)}, {v(22)}, 0\nv_readlane_b32 {s(sT2)}, {v(22)}, 16')
    P(f'v_mov_b32 {v(22)}, {s(sT1)}\nv_mov_b32 {v(23)}, {s(sT2)}')
    P(f'v_fma_f32 {v(23)}, -{v(22)}, {v(22)}, {v(23)}\nv_add_f32 {v(22)}, {s(sT0)}, {v(22)}\nv_max_f32 {v(23)}, 0, {v(23)}')
    P(f'v_cvt_pk_bf16_f32 {v(22)}, {v(22)}, {v(23)}')
    P(f'v_and_b32 {v(23)}, 0xffff0000, {v(22)}\nv_lshlrev_b32 {v(22)}, 16, {v(22)}\nv_add_f32 {v(23)}, {EPS}, {v(23)}')
    P(f'v_sub_f32 {v(20)}, {v(vx)}, {v(22)}\nv_sub_f32 {v(21)}, {v(vx+1)}, {v(22)}')
    P(f'v_cvt_pk_bf16_f32 {v(23)}, {v(23)}, {v(23)}\nv_cvt_pk_bf16_f32 {v(20)}, {v(20)}, {v(21)}\nv_and_b32 {v(23)}, 0xffff0000, {v(23)}\nv_sqrt_f32 {v(23)}, {v(23)}')
    unpack(vx, vx+1, 20)
    P(f'v_cvt_pk_bf16_f32 {v(23)}, {v(23)}, {v(23)}\nv_and_b32 {v(23)}, 0xffff0000, {v(23)}\nv_rcp_f32 {v(22)}, {v(23)}')
    P(f'v_mul_f32 {v(20)}, {v(vx)}, {v(22)}\nv_mul_f32 {v(21)}, {v(vx+1)}, {v(22)}')
    P(f'v_fma_f32 {v(vx)}, -{v(20)}, {v(23)}, {v(vx)}\nv_fma_f32 {v(vx+1)}, -{v(21)}, {v(23)}, {v(vx+1)}')
    P(f'v_fma_f32 {v(20)}, {v(vx)}, {v(22)}, {v(20)}\nv_fma_f32 {v(21)}, {v(vx+1)}, {v(22)}, {v(21)}')
    P(f'v_cvt_pk_bf16_f32 {v(20)}, {v(20)}, {v(21)}')
    unpack(vx, vx+1, 20)
    P(f'v_mul_f32 {v(vx)}, {v(vx)}, {v(vcb)}\nv_mul_f32 {v(vx+1)}, {v(vx+1)}, {v(vcb+1)}\nv_cvt_pk_bf16_f32 {v(20)}, {v(vx)}, {v(vx+1)}')
    unpack(vx, vx+1, 20)
    P(f'v_add_f32 {v(vx)}, {v(vx)}, {v(vsb)}\nv_add_f32 {v(vx+1)}, {v(vx+1)}, {v(vsb+1)}')
    P(f'v_cvt_pk_bf16_f32 {v(vOd)}, {v(vx)}, {v(vx)}\nv_cvt_pk_bf16_f32 {v(vOd+1)}, {v(vx+1)}, {v(vx+1)}')
    lohi(vOd)
    stamp('M_h2')
    if cfg.dnlate == 2: dn_issue()
    chain(vD0, 16, [vUP+4*i for i in range(16)], lohi_srcs(vOd), vAA)
    finish2(vD0)
    publish_loc(vD0, vPUB, sEP, M2SET, sR)
    stamp('M_up')
    def issue(b):
        for k in range(2): P(f'buffer_load_dwordx4 {v(b+4*k,4)}, {v(vEA)}, {S(SRD_WS)}, {s(sEG)} offen offset:{1024*k} sc1')
    def done(b):
        for e in range(2): P(f'v_add_f32 {v(20+e)}, {v(b+e)}, {v(b+4+e)}')
    poll('xe', issue, 2, 128, 8, [2, 6], done)
    stamp('M_xe')
    for e in range(2): P(f'v_add_f32_dpp {v(20+e)}, {v(20+e)}, {v(20+e)} row_ror:8 row_mask:0xf bank_mask:0xf')
    P(f'v_cvt_pk_bf16_f32 {v(22)}, {v(20)}, {v(21)}')
    unpack(20, 21, 22)
    P(f'v_mov_b32_dpp {v(24)}, {v(22)} row_shl:4 row_mask:0xf bank_mask:0xf')
    silu_multi([20, 21], [22, 23])
    unpack(26, 27, 24)
    P(f'v_cvt_pk_bf16_f32 {v(22)}, {v(20)}, {v(21)}')
    unpack(20, 21, 22)
    P(f'v_mul_f32 {v(20)}, {v(20)}, {v(26)}\nv_mul_f32 {v(21)}, {v(21)}, {v(27)}')
    for e in range(2): P(f'v_cvt_pk_bf16_f32 {v(20+e)}, {v(20+e)}, {v(20+e)}')
    stamp('M_act')
    chain(vD0, 8, [vDN+4*i for i in range(8)], [(20 + (i & 1), f'row_newbcast:{i >> 1}') for i in range(8)], vAA)
    finish1(vD0)
    publish(vD0, vL16 if cfg.par is None else vDPA, sDP)
    stamp('M_end')
    P('s_branch L_END')

    P('L_C123:')
    common_setup()
    P(f's_cmp_eq_u32 {s(sW)}, 5\ns_cbranch_scc1 L_C1')
    P(f's_cmp_eq_u32 {s(sW)}, 6\ns_cbranch_scc0 L_C3')
    P(f's_getpc_b64 {s(20,2)}')
    P('L_PCREF:')
    P(f's_sub_u32 s20, s20, L_PCREF-{NAME}_kernel\ns_subb_u32 s21, s21, 0')
    P(f's_lshl_b32 {s(sT0)}, {s(sKK)}, 3\nv_and_b32 {v(vT)}, 7, {v(vL)}\nv_add_u32 {v(vT)}, {s(sT0)}, {v(vT)}\nv_lshlrev_b32 {v(vT)}, 7, {v(vT)}')
    P(f'v_min_u32 {v(vT)}, L_CODE_END-{NAME}_kernel-4, {v(vT)}')
    if cfg.cpf: P(f'global_load_dword {v(240)}, {v(vT)}, s[20:21]')
    P('L_C3:')
    if cfg.par == 'dyn':
        P(f's_cmp_eq_u32 {s(sW)}, 7\ns_cbranch_scc0 L_NOPM\ns_cmp_eq_u32 {s(sB)}, 0\ns_cbranch_scc0 L_NOPM')
        P(f's_waitcnt lgkmcnt(0)\ns_mov_b32 s8, -1\ns_mov_b32 s9, -1')
        for i in range(2*cfg.nsamp):
            P(f's_mov_b32 s15, {hex(XPR + 8192*(i & 1) + 128*(i >> 1))}\ns_memtime s[10:11]\ns_waitcnt lgkmcnt(0)\ns_load_dword s14, {s(sWSP,2)}, s15 glc\ns_waitcnt lgkmcnt(0)\ns_memtime s[12:13]\ns_waitcnt lgkmcnt(0)')
            P(f's_sub_u32 s12, s12, s10\ns_min_u32 {s(8 + (i & 1))}, {s(8 + (i & 1))}, s12')
        P(f's_cmp_lt_u32 s9, s8\ns_cselect_b32 s8, 1, 0\ns_getreg_b32 s9, hwreg(HW_REG_XCC_ID, 2, 1)\ns_xor_b32 s8, s8, s9')
        P(f's_add_u32 s9, {s(sTAG)}, 1\ns_lshl_b32 s9, s9, 1\ns_or_b32 s8, s8, s9\nv_mov_b32 {v(vT+1)}, s8\nv_lshlrev_b32 {v(vT)}, 7, {v(vL)}\ns_mov_b32 s8, {hex(XP)}')
        setexec(0xff)
        P(f'buffer_store_dword {v(vT+1)}, {v(vT)}, {S(SRD_WS)}, s8 offen sc1')
        setexec(ALL)
        P('L_NOPM:')
    if cfg.tlbw:
        P(f's_cmp_eq_u32 {s(sW)}, 7\ns_cbranch_scc0 L_NOTLB')
        P(f'v_mov_b32 {v(vT)}, 0')
        setexec(1)
        for k, (ptr, nb) in enumerate(((pWO, 4 << 20), (pW1, 512*2752), (pW3, 512*2752), (pW2, 1376*1024), (pOUT, 1024))):
            srd(SRD_A, ptr, nb)
            P(f'buffer_load_dword {v(241+k)}, {v(vT)}, {S(SRD_A)}, 0 offen')
            if nb > (2 << 20):
                P(f's_mov_b32 {s(sT0)}, {hex(nb - 128)}\nbuffer_load_dword {v(247)}, {v(vT)}, {S(SRD_A)}, {s(sT0)} offen')
        for k, off in enumerate((XA, XE, XB, XB + 0xf0000)):
            P(f's_mov_b32 {s(sT0)}, {hex(off)}\nbuffer_load_dword {v(248+k)}, {v(vT)}, {S(SRD_WS)}, {s(sT0)} offen sc1')
        setexec(ALL)
        P('L_NOTLB:')
    P('s_waitcnt lgkmcnt(0)')
    P(f's_add_u32 {s(sTAG)}, {s(sTAG)}, 1')
    P('s_branch L_QKP')
    P('L_C23B1:')
    if cfg.gwait:
        P(f'v_lshlrev_b32 {v(vT)}, 7, {v(vL)}\nv_mov_b32 {v(vT+1)}, {s(sTAG)}\ns_lshl_b32 {s(sT0)}, {s(sH)}, 2\ns_add_u32 {s(sT0)}, {s(sT0)}, {hex(XG)}')
    P('s_barrier')
    if cfg.gwait:
        P(f's_cmp_eq_u32 {s(sW)}, 6\ns_cbranch_scc0 L_END\ns_cmp_eq_u32 {s(sJ)}, 0\ns_cbranch_scc0 L_END')
        setexec(0xff)
        P(f'buffer_store_dword {v(vT+1)}, {v(vT)}, {S(SRD_WS)}, {s(sT0)} offen sc1')
    P('s_branch L_END')

    P('L_C1:')
    P('s_waitcnt lgkmcnt(0)')
    P(f's_add_u32 {s(sTAG)}, {s(sTAG)}, 1')
    if cfg.tearly == 3: P(f's_mov_b32 {s(sR)}, 0\ns_bitcmp1_b32 {s(sX)}, 0\ns_cbranch_scc1 L_QKP')
    elif cfg.tearly: P(f's_mov_b32 {s(sR)}, 0\ns_cmp_ge_u32 {s(sX)}, 4\ns_cbranch_scc1 L_QKP')
    else: P(f's_mov_b32 {s(sR)}, 0\ns_sub_u32 {s(sT0)}, {s(sKK)}, 8\ns_cmp_lt_u32 {s(sT0)}, 16\ns_cbranch_scc1 L_QKP')
    if not cfg.t2early:
        P(f'v_mov_b32 {v(vT+2)}, {hex(L_FLAG + 8)}')
        lds_wait('k1', vT+2, 1, 28, [28], 8)
    elif cfg.t2early > 1: P(f's_sleep {cfg.t2early}')
    if cfg.tearly == 3:
        P(f's_lshl_b32 {s(sT0)}, {s(sKK)}, 2\ns_lshr_b32 {s(sT1)}, {s(sX)}, 1\ns_add_u32 {s(sT0)}, {s(sT0)}, {s(sT1)}\ns_and_b32 {s(sT1)}, {s(sT0)}, 31\ns_lshr_b32 {s(sT0)}, {s(sT0)}, 5')
    elif cfg.tearly:
        P(f's_lshl_b32 {s(sT0)}, {s(sKK)}, 2\ns_add_u32 {s(sT0)}, {s(sT0)}, {s(sX)}\ns_and_b32 {s(sT1)}, {s(sT0)}, 31\ns_lshr_b32 {s(sT0)}, {s(sT0)}, 5')
    else:
        P(f's_and_b32 {s(sT0)}, {s(sKK)}, 7\ns_lshr_b32 {s(sT1)}, {s(sKK)}, 4\ns_lshl_b32 {s(sT1)}, {s(sT1)}, 3\ns_add_u32 {s(sT0)}, {s(sT0)}, {s(sT1)}')
        P(f's_lshl_b32 {s(sT0)}, {s(sT0)}, 3\ns_add_u32 {s(sT0)}, {s(sT0)}, {s(sX)}\ns_and_b32 {s(sT1)}, {s(sT0)}, 31\ns_lshr_b32 {s(sT0)}, {s(sT0)}, 5')
    if X4NEAR:
        P(f's_and_b32 {s(sO2)}, {s(sT1)}, 3\ns_lshl_b32 {s(sO2)}, {s(sO2)}, 2\ns_add_u32 {s(sO2)}, {s(sO2)}, {s(sT0)}\ns_lshl_b32 {s(sO2)}, {s(sO2)}, 9\ns_lshr_b32 {s(sT2)}, {s(sT1)}, 2\ns_lshl_b32 {s(sT2)}, {s(sT2)}, 14\ns_add_u32 {s(sO2)}, {s(sO2)}, {s(sT2)}\ns_add_u32 {s(sO2)}, {s(sO2)}, {hex(X4N)}')
    else:
        P(f's_lshl_b32 {s(sO2)}, {s(sT1)}, 2\ns_add_u32 {s(sO2)}, {s(sO2)}, {s(sT0)}\ns_lshl_b32 {s(sO2)}, {s(sO2)}, 9\ns_add_u32 {s(sO2)}, {s(sO2)}, {hex(X4)}')
    P(f's_lshl_b32 {s(sT1)}, {s(sT1)}, 7\ns_add_u32 {s(sT1)}, {s(sT1)}, 2048')
    modtile_issue(sT0, sT1)
    if cfg.t2early:
        modtile_compute(0, sO2)
        P('s_branch L_QKP')
    else: P(f's_mov_b32 {s(sR)}, 99\ns_branch L_QKP')
    P('L_C1B1:')
    P(f's_sub_u32 {s(sT0)}, {s(sKK)}, 8\ns_cmp_lt_u32 {s(sT0)}, 8\ns_cbranch_scc1 L_RED')
    P('s_barrier')
    P('s_branch L_END')
    P('L_RED:')
    if cfg.rwait != 4 and not cfg.rearly: red_setup()
    else:
        srd(SRD_B, pOUT, 1024)
        P(f'v_lshlrev_b32 {v(vL16r)}, 4, {v(vL)}\nv_and_b32 {v(vU16)}, 3, {v(vL)}\nv_lshlrev_b32 {v(vU16)}, 4, {v(vU16)}')
        vda()
    red_addr()
    def xb_issue(b):
        for k in range(0, 16, 2 if cfg.fakehalf & 1 else 1): P(f'buffer_load_dwordx4 {v(b+4*k,4)}, {v(vL16r)}, {S(SRD_WS)}, {s(sB4 + (k >> 2))} offen offset:{1024*(k & 3)} sc1')
    issue = x4_issue
    def rw(name):
        P(f'v_mov_b32 {v(vT+2)}, {hex(L_FLAG + 160)}')
        lds_wait(name, vT+2, 1, 28, [28], cfg.lsleep)
    if cfg.rwait >= 3:
        if cfg.rwait == 3: issue()
        P('s_barrier')
        stamp('R_b2')
        P(f's_mov_b32 {s(sT2)}, 0\ns_branch L_X4CHK\nL_X4RETRY:')
        rw('rw0')
        issue()
        P(f's_add_u32 {s(sT2)}, {s(sT2)}, 1\ns_cmp_gt_u32 {s(sT2)}, {cfg.spin}\ns_cbranch_scc1 L_END\nL_X4CHK:')
        P('s_waitcnt vmcnt(0)')
        tr = [vg+4*k+2 for k in range(8)]
        P(f'v_xor_b32 {v(vT)}, {s(sTAG)}, {v(tr[0])}\nv_xor_b32 {v(vT+1)}, {s(sTAG)}, {v(tr[1])}')
        for k, r in enumerate(tr[2:]): P(f'v_bitop3_b32 {v(vT + (k & 1))}, {v(r)}, {s(sTAG)}, {v(vT + (k & 1))} bitop3:{TAGX}')
        P(f'v_or_b32 {v(vT)}, {v(vT)}, {v(vT+1)}\nv_cmp_ne_u32 vcc, 0, {v(vT)}\ns_cbranch_vccnz L_X4RETRY')
    else:
        P('s_barrier')
        stamp('R_b2')
        if cfg.rwait: rw('rw')
        tagcheck_loop(issue, [vg+4*k+2 for k in range(8)], 'x4', after=(lambda: xb_issue(128)) if cfg.rwait == 2 else None, nafter=16)
    for p_ in range(4):
        for e in range(2): P(f'v_add_f32 {v(vg+8*p_+e)}, {v(vg+8*p_+e)}, {v(vg+8*p_+4+e)}')
    for p_ in range(4): P(f'v_permlane32_swap_b32 {v(vg+8*p_)}, {v(vg+8*p_+1)}')
    for p_ in range(4): P(f'v_add_f32 {v(vg+8*p_)}, {v(vg+8*p_)}, {v(vg+8*p_+1)}')
    for p_ in range(4): rnd(vg+8*p_)
    P(f'v_mov_b32 {v(vGAv)}, {v(vg)}\nv_add_f32 {v(vg+16)}, 1.0, {v(vg+16)}\nv_mov_b32 {v(vg+9)}, {v(vg+8)}\nv_mov_b32 {v(vg+17)}, {v(vg+16)}')
    P(f'ds_bpermute_b32 {v(vGBv)}, {v(vBP)}, {v(vg+24)}')
    P(f'v_permlane32_swap_b32 {v(vg+8)}, {v(vg+9)}\nv_permlane32_swap_b32 {v(vg+16)}, {v(vg+17)}')
    P(f'v_cvt_pk_bf16_f32 {v(vXC+2)}, {v(vg+8)}, {v(vg+9)}\nv_cvt_pk_bf16_f32 {v(vXC+1)}, {v(vg+16)}, {v(vg+17)}\nv_mov_b32 {v(vXC+3)}, {s(sTAG)}\nv_lshlrev_b32 {v(vXv)}, 16, {v(vXv)}')
    stamp('R_x4')
    if cfg.rwait >= 3: rw('rw1')
    def done(b):
        st = 1
        while st < 16:
            for a in range(0, 16, 2*st):
                for e in range(2): P(f'v_add_f32 {v(b+4*a+e)}, {v(b+4*a+e)}, {v(b+4*(a+st)+e)}')
            st *= 2
    if cfg.rsleep: P(f's_sleep {cfg.rsleep}')
    if cfg.xbgrp:
        n = 16 // cfg.xbgrp
        def mk(g):
            def issue():
                for k in range(g*n, g*n + n): P(f'buffer_load_dwordx4 {v(128+4*k,4)}, {v(vL16r)}, {S(SRD_WS)}, {s(sB4 + (k >> 2))} offen offset:{1024*(k & 3)} sc1')
            return (issue, [128+4*k+2 for k in range(g*n, g*n + n)])
        poll_groups('xb', [mk(g) for g in range(cfg.xbgrp)])
        done(128)
    else: poll('xb', xb_issue, 16, 128, 64, [4*k+2 for k in range(0, 16, 2 if cfg.fakehalf & 1 else 1)], done, issued=(cfg.rwait == 2))
    stamp('R_xb')
    P(f'v_permlane32_swap_b32 {v(128)}, {v(129)}\nv_add_f32 {v(vg)}, {v(128)}, {v(129)}')
    rnd(vg)
    P(f'v_mul_f32 {v(vg)}, {v(vg)}, {v(vGAv)}'); rnd(vg)
    P(f'v_add_f32 {v(vg)}, {v(vg)}, {v(vXv)}\nv_mov_b32 {v(vg+1)}, {v(vg)}')
    P(f'v_permlane32_swap_b32 {v(vg)}, {v(vg+1)}')
    P(f'v_cvt_pk_bf16_f32 {v(vXC)}, {v(vg)}, {v(vg+1)}')
    publish_loc(vXC, vL16r, sO3, 0xffffffff)
    stamp('R_xcpub')
    if cfg.epearly:
        P(f's_cmp_eq_u32 {s(sR)}, 0\ns_cbranch_scc0 L_NOEP')
        setexec(1)
        P(f'v_mov_b32 {v(vT)}, 0\nv_mov_b32 {v(vT+1)}, {s(sTAG)}')
        P(f'buffer_store_dword {v(vT+1)}, {v(vT)}, {S(SRD_WS)}, 0 offen sc1')
        setexec(ALL)
        P('L_NOEP:')
    P(f'v_lshrrev_b32 {v(vT+2)}, 1, {v(vL)}\nv_and_b32 {v(vT+2)}, 16, {v(vT+2)}\nv_lshrrev_b32 {v(vXv)}, {v(vT+2)}, {v(vXC)}\nv_lshlrev_b32 {v(vXv)}, 16, {v(vXv)}')
    P(f'ds_bpermute_b32 {v(vXv)}, {v(vBP)}, {v(vXv)}')
    def colsum():
        P(f'v_permlane16_swap_b32 {v(vg)}, {v(vg+1)}')
        P(f'v_add_f32 {v(vg)}, {v(vg)}, {v(vg+1)}')
        P(f'v_add_f32_dpp {v(vg)}, {v(vg)}, {v(vg)} row_ror:4 row_mask:0xf bank_mask:0xf')
        P(f'v_add_f32_dpp {v(vg)}, {v(vg)}, {v(vg)} row_ror:8 row_mask:0xf bank_mask:0xf')
        P(f'v_mov_b32 {v(vg+1)}, {v(vg)}')
        P(f'v_permlane32_swap_b32 {v(vg)}, {v(vg+1)}')
        P(f'v_add_f32 {v(vg)}, {v(vg)}, {v(vg+1)}')
    P('s_waitcnt lgkmcnt(0)')
    def issue(b):
        for k in range(2): P(f'buffer_load_dwordx4 {v(b+4*k,4)}, {v(vDA)}, {S(SRD_WS)}, {s(sD+k)} offen sc1')
        setexec((1 << 44) - 1)
        P(f'buffer_load_dwordx4 {v(b+8,4)}, {v(vDA)}, {S(SRD_WS)}, {s(sD+2)} offen sc1')
        setexec(ALL)
    def done(b):
        for e in range(2): P(f'v_add_f32 {v(b+e)}, {v(b+e)}, {v(b+4+e)}')
        for e in range(2): P(f'v_add_f32 {v(vg+e)}, {v(b+e)}, {v(b+8+e)}')
    if cfg.dsleep: P(f's_sleep {cfg.dsleep}')
    poll('xd', issue, 3, 192, 12, [2, 6, 10], done)
    stamp('R_xd')
    colsum()
    rnd(vg)
    P(f'v_mul_f32 {v(vg)}, {v(vg)}, {v(vGBv)}'); rnd(vg)
    P(f'v_add_f32 {v(vg)}, {v(vg)}, {v(vXv)}\nv_mov_b32 {v(vg+1)}, {v(vg)}')
    P(f'v_permlane16_swap_b32 {v(vg)}, {v(vg+1)}')
    P(f'v_cvt_pk_bf16_f32 {v(vg)}, {v(vg)}, {v(vg+1)}')
    setexec(0xf)
    P(f'buffer_store_dword {v(vg)}, {v(vU16)}, {S(SRD_B)}, {s(sG+2)} offen {cfg.outpol}')
    stamp('R_end')
    def epoch(skip):
        P(f's_cmp_eq_u32 {s(sR)}, 0\ns_cbranch_scc0 {skip}')
        setexec(1)
        P(f'v_mov_b32 {v(vT)}, 0\nv_mov_b32 {v(vT+1)}, {s(sTAG)}')
        P(f'buffer_store_dword {v(vT+1)}, {v(vT)}, {S(SRD_WS)}, 0 offen sc1')
    if not cfg.epearly: epoch('L_END')
    if cfg.xdelay:
        P(f's_cmp_eq_u32 {s(sR)}, 0\ns_cbranch_scc0 L_END\ns_memrealtime s[76:77]\ns_waitcnt lgkmcnt(0)\ns_add_u32 {s(sT0)}, s76, {cfg.xdelay}')
        P(f'L_XDL:\ns_memrealtime s[76:77]\ns_waitcnt lgkmcnt(0)\ns_sub_u32 {s(sT1)}, s76, {s(sT0)}\ns_cmp_lt_i32 {s(sT1)}, 0\ns_cbranch_scc1 L_XDL')
    if cfg.gprobe:
        P(f's_cmp_eq_u32 {s(sR)}, 0\ns_cbranch_scc0 L_END\ns_mov_b64 exec, -1\ns_mov_b32 {s(sT0)}, {hex(DIAG)}')
        nw = 4 if cfg.gprobe.startswith('L') else 1
        P(f'v_lshlrev_b32 v1, 5, v0')
        if cfg.gprobe[0] == 'R': P('v_add_u32 v1, 8, v1')
        if cfg.gprobe[0] in 'MR': P('s_sleep 40')
        regs = []
        for q in range(4):
            for w in range(nw):
                r = 128 + 2*(q*4 + w); regs.append(r)
                P(f'buffer_load_dwordx2 v[{r}:{r+1}], v1, {S(SRD_WS)}, {s(sT0)} offen offset:{8*w} sc1')
            P(f's_add_u32 {s(sT0)}, {s(sT0)}, 2048')
        P('s_waitcnt vmcnt(0)')
        P(f'v_subrev_u32 v2, {s(sDIAG)}, v{regs[0]}\nv_subrev_u32 v3, {s(sDIAG)}, v{regs[0]+1}')
        for r in regs[1:]:
            P(f'v_subrev_u32 v4, {s(sDIAG)}, v{r}\nv_min_i32 v2, v2, v4\nv_subrev_u32 v4, {s(sDIAG)}, v{r+1}\nv_max_i32 v3, v3, v4')
        wave_reduce('v_min_i32', [2]); wave_reduce('v_max_i32', [3])
        P(f'v_sub_u32 v2, v3, v2\nv_readlane_b32 {s(sT0)}, v2, 63\ns_nop 1\ns_min_u32 {s(sT0)}, {s(sT0)}, 5000\ns_memrealtime s[76:77]\ns_waitcnt lgkmcnt(0)\ns_add_u32 {s(sT0)}, {s(sT0)}, s76')
        P(f'L_GPR:\ns_memrealtime s[76:77]\ns_waitcnt lgkmcnt(0)\ns_sub_u32 {s(sT1)}, s76, {s(sT0)}\ns_cmp_lt_i32 {s(sT1)}, 0\ns_cbranch_scc1 L_GPR')
    if cfg.probe:
        P(f's_cmp_eq_u32 {s(sR)}, 0\ns_cbranch_scc0 L_END')
        i = stamps[cfg.probe]
        P(f's_waitcnt lgkmcnt(0)\ns_sub_u32 {s(sT0)}, {s(sDIAG+2*i)}, {s(sDIAG)}\ns_min_u32 {s(sT0)}, {s(sT0)}, 5000\ns_memrealtime s[76:77]\ns_waitcnt lgkmcnt(0)\ns_add_u32 {s(sT0)}, {s(sT0)}, s76')
        P(f'L_PROBE:\ns_memrealtime s[76:77]\ns_waitcnt lgkmcnt(0)\ns_sub_u32 {s(sT1)}, s76, {s(sT0)}\ns_cmp_lt_i32 {s(sT1)}, 0\ns_cbranch_scc1 L_PROBE')
    P('s_branch L_END')

    P('L_END:')
    if cfg.diag and not cfg.probe and not cfg.gprobe:
        P('s_waitcnt lgkmcnt(0)')
        P(f's_cmp_ge_u32 {s(sB)}, 256\ns_cbranch_scc1 L_END2')
        srd(SRD_WS, sWSP, WS_BYTES)
        P(f's_lshl_b32 {s(sT0)}, {s(sB)}, 3\ns_add_u32 {s(sT0)}, {s(sT0)}, {s(sW)}\ns_lshl_b32 {s(sT0)}, {s(sT0)}, 7\ns_add_u32 {s(sT0)}, {s(sT0)}, {hex(DIAG)}')
        P('s_mov_b64 exec, 1\nv_mov_b32 v1, 0')
        for i in range(9): P(f'v_mov_b32 v2, {s(sDIAG+2*i)}\nbuffer_store_dword v2, v1, {S(SRD_WS)}, {s(sT0)} offen offset:{4*i}')
        P('L_END2:')
    P('s_endpgm')
    P('L_CODE_END:')
    probs = P.fix()
    for p in probs: print('HAZARD across branch:', p, file=sys.stderr)
    head = open(f'cdna_kernels/{NAME}.s.ref').read().split('; Override launch')[0]
    txt = head
    txt += DOC
    txt += f'; @launch grid=(256,1,1) block=(512,1,1) lds={LDS_BYTES}\n'
    txt += f'.amdgcn_target "amdgcn-amd-amdhsa--gfx950"\n.text\n.globl {NAME}_kernel\n.p2align 8\n.type {NAME}_kernel,@function\n{NAME}_kernel:\n'
    txt += P.text() + '\n'
    txt += f'''.section .rodata,"a"
.p2align 6
.amdhsa_kernel {NAME}_kernel
  .amdhsa_next_free_vgpr 256
  .amdhsa_next_free_sgpr 102
  .amdhsa_accum_offset 256
  .amdhsa_group_segment_fixed_size 0
  .amdhsa_kernarg_size 112
  .amdhsa_user_sgpr_count 2
  .amdhsa_user_sgpr_kernarg_segment_ptr 1
  .amdhsa_system_sgpr_workgroup_id_x 1
  .amdhsa_float_denorm_mode_32 3
.end_amdhsa_kernel
'''
    return txt, stamps

if __name__ == '__main__':
    out = sys.argv[1] if len(sys.argv) > 1 else f'cdna_kernels/{NAME}.s'
    class C(Cfg): pass
    for a in sys.argv[2:]:
        k, val = a.split('=', 1)
        setattr(C, k, eval(val))
    txt, stamps = gen(C)
    open(out, 'w').write(txt)
    print('written', out, len(txt), 'bytes', stamps)
```

```python
import sys, struct
from asmdsl import Prog

NAME = 'adaLN_cond__mha_block_cached__glu_gated_swiglu__decode'

def f2u(x): return struct.unpack('<I', struct.pack('<f', x))[0]
LOG2E = hex(f2u(1.4426950408889634))
NLOG2E = hex(f2u(-1.4426950408889634))
SCALE = hex(f2u(128 ** -0.5))
EPS = hex(f2u(1e-5))
R512 = hex(f2u(1/512))
ALL = (1 << 64) - 1

X1 = 0x1000
X4 = 0x9000
X3 = 0x19000
X1F = 0x1b000
X0 = 0x1d000
X0B = 0x194000
X2F = 0x1c000
XC = 0x180000
X4N = 0x1e0000
XPR = 0x190000
XP = 0x1f000
X2 = 0x20000
XA = 0x60000
XB = 0x200000
XD = 0xe0000
XE = 0x110000
XG = 0x197000
XB2 = 0x140000
X0C = 0x1a000
DIAG = 0x1a0000
WS_BYTES = 0x300000
L_P, L_OP, L_Q, L_FLAG = 0x20000, 0x20800, 0x21000, 0x21100
L_ST, L_U = 0x0, 0x1000
L_MS, L_ML, L_PAR = L_FLAG + 64, L_FLAG + 128, L_FLAG + 176
LDS_BYTES = 0x21200
NM = 43
TAGX = hex(sum(1 << (a*4+b*2+c) for a in (0,1) for b in (0,1) for c in (0,1) if (a ^ b) | c))

DOC = """;
;                  all QK^T of one L wave's tiles, true max and sum exchanged inside the head, normalised p
"""

class Cfg:
    depth = 8
    diag = False
    probe = None
    kpol = 'nt'
    vpol = 'nt'
    wpol = 'nt'
    ppol = ''
    sleep1 = 0
    sleep2 = 0
    sleep3 = 4
    sleep4 = 40
    prio = 3
    hint = 1
    hsleep = 3
    lsleep = 1
    pf = 'post'
    wq0 = 1
    dsched = (6, 12, 9)
    rot = 5
    npf = 8
    local = 1
    pipe = dict()
    psleep = dict()
    xcrep = 1
    xcline = 0
    nodpp = 0
    b0late = 1
    xcsleep = 0
    dnlate = 0
    xbrep = 0
    rwait = 1
    xbgrp = 0
    rsleep = 0
    dsleep = 0
    wob2 = 0
    epearly = 1
    ksplit = 0
    th = 0
    cpf = 1
    fakehalf = 0
    xdelay = 0
    gwait = 0
    tearly = 0
    pkand = 0
    acc2 = 0
    mlat = 0
    t2early = 0
    par = 'dyn'
    nsamp = 4
    nearloc = 1
    x4near = 0
    mlpw = 0
    xcmode = 0
    wfirst = 1
    wofirst = 0
    ackw = 1
    rearly = 1
    tlbw = 0
    gthr = 32
    gprobe = None
    dodd = None
    dvar = None
    outpol = ''
    uppol = 'nt'
    spin = 1 << 18

def v(a, n=1): return f'v{a}' if n == 1 else f'v[{a}:{a+n-1}]'
def s(a, n=1): return f's{a}' if n == 1 else f's[{a}:{a+n-1}]'

sB, sW = 2, 3
sKP, sVP = 4, 6
SRD_K, SRD_V, SRD_WS, SRD_A, SRD_B, SRD_C = 8, 12, 16, 20, 24, 28
sH, sJ, sX, sKK = 36, 37, 38, 39
sWSP = 40
sTAG, sIM, sR = 42, 43, 44
sT0, sT1, sT2 = 45, 46, 47
pWQ, pWO, pW1, pW3, pW2, pC, pWM, pX, pOUT = 48, 50, 54, 56, 58, 60, 62, 64, 66
sSPIN = 68
sO0, sO1, sO2, sO3 = 69, 70, 71, 72
sMASK = 74
sPAR, sNEAR = 52, 53
sT1B = 35
sLOC = 73
sG = 76
sDIAG = 84
vL = 0
vT = 1
vM = 4

def gen(cfg=Cfg):
    P = Prog()
    X4NEAR = bool(cfg.x4near and cfg.par is not None and not cfg.t2early)
    D = cfg.depth
    stamps = {}
    def stamp(name):
        if cfg.diag and name in cfg.diag:
            grp = name.split('_')[0]
            same = [n for n in cfg.diag if n.split('_')[0] == grp]
            if name == 'start': i = 0
            elif cfg.gprobe: i = 1
            elif grp == 'M': i = 8 - same.index(name)
            else: i = 1 + same.index(name)
            assert 0 <= i <= 8
            stamps[name] = i
            P(f's_memrealtime {s(sDIAG + 2*i, 2)}')
            if cfg.gprobe == name:
                assert i < 5
                P(f's_waitcnt lgkmcnt(0)\ns_mov_b32 s96, {s(sWSP)}\ns_mov_b32 s97, {s(sWSP+1)}\ns_mov_b32 s98, {hex(WS_BYTES)}\ns_mov_b32 s99, 0x20000')
                P(f's_lshl_b32 s100, {s(sB)}, 2\ns_and_b32 s101, {s(sW)}, 3\ns_add_u32 s100, s100, s101\ns_lshl_b32 s100, s100, 3\ns_add_u32 s100, s100, {hex(DIAG)}')
                P(f's_mov_b64 s[94:95], exec\ns_mov_b64 exec, 1\nv_mov_b32 v254, {s(sDIAG)}\nv_mov_b32 v255, {s(sDIAG+2*i)}\nv_mov_b32 v253, 0\nbuffer_store_dwordx2 v[254:255], v253, s[96:99], s100 offen sc1\ns_mov_b64 exec, s[94:95]')
    def srd(r, ptr, nbytes):
        P(f's_mov_b32 {s(r)}, {s(ptr)}\ns_mov_b32 {s(r+1)}, {s(ptr+1)}\ns_mov_b32 {s(r+2)}, {hex(nbytes)}\ns_mov_b32 {s(r+3)}, 0x20000')
    def S(r): return s(r, 4)
    def setexec(mask):
        lo, hi = mask & 0xffffffff, mask >> 32
        if mask == ALL: P('s_mov_b64 exec, -1')
        elif mask <= 64: P(f's_mov_b64 exec, {mask}')
        else: P(f's_mov_b32 exec_lo, {hex(lo)}\ns_mov_b32 exec_hi, {hex(hi)}')
    uid = [0]
    def lab(p):
        uid[0] += 1; return f'L_{p}{uid[0]}'
    def tagcheck_loop(issue, tagregs, name, sleep=0, after=None, nafter=0):
        top = lab(name)
        P(f's_mov_b32 {s(sSPIN)}, 0')
        P(f'{top}:')
        issue()
        if after: after()
        P(f's_add_u32 {s(sSPIN)}, {s(sSPIN)}, 1\ns_cmp_gt_u32 {s(sSPIN)}, {cfg.spin}\ns_cbranch_scc1 L_END')
        P(f's_waitcnt vmcnt({nafter if after else 0})')
        if len(tagregs) == 1:
            P(f'v_cmp_ne_u32 vcc, {s(sTAG)}, {v(tagregs[0])}')
        else:
            P(f'v_xor_b32 {v(vT)}, {s(sTAG)}, {v(tagregs[0])}\nv_xor_b32 {v(vT+1)}, {s(sTAG)}, {v(tagregs[1])}')
            for k, r in enumerate(tagregs[2:]):
                P(f'v_bitop3_b32 {v(vT + (k & 1))}, {v(r)}, {s(sTAG)}, {v(vT + (k & 1))} bitop3:{TAGX}')
            P(f'v_or_b32 {v(vT)}, {v(vT)}, {v(vT+1)}\nv_cmp_ne_u32 vcc, 0, {v(vT)}')
        if sleep:
            dn = lab(name + 'd')
            P(f's_cbranch_vccz {dn}\ns_sleep {sleep}\ns_branch {top}\n{dn}:')
        else: P(f's_cbranch_vccnz {top}')
    def poll(name, issue, nl, base, stride, tagoff, done, issued=False):
        NS = cfg.pipe.get(name, 1)
        top, join = lab(name), lab(name + 'j')
        ex = [lab(name + 'x') for _ in range(NS)]
        P(f's_mov_b32 {s(sSPIN)}, 0')
        for i in range(NS - 1): issue(base + i*stride)
        if issued:
            assert NS == 1
            sk = lab(name + 's'); P(f's_branch {sk}')
        P(f'{top}:')
        for i in range(NS):
            issue(base + ((i + NS - 1) % NS)*stride)
            if issued: P(f'{sk}:')
            if i == 0: P(f's_add_u32 {s(sSPIN)}, {s(sSPIN)}, 1\ns_cmp_gt_u32 {s(sSPIN)}, {cfg.spin}\ns_cbranch_scc1 L_END')
            P(f's_waitcnt vmcnt({(NS-1)*nl})')
            tr = [base + i*stride + t for t in tagoff]
            if len(tr) == 1:
                P(f'v_cmp_ne_u32 vcc, {s(sTAG)}, {v(tr[0])}')
            else:
                P(f'v_xor_b32 {v(vT)}, {s(sTAG)}, {v(tr[0])}\nv_xor_b32 {v(vT+1)}, {s(sTAG)}, {v(tr[1])}')
                for k, r in enumerate(tr[2:]):
                    P(f'v_bitop3_b32 {v(vT + (k & 1))}, {v(r)}, {s(sTAG)}, {v(vT + (k & 1))} bitop3:{TAGX}')
                P(f'v_or_b32 {v(vT)}, {v(vT)}, {v(vT+1)}\nv_cmp_ne_u32 vcc, 0, {v(vT)}')
            ps = cfg.psleep.get(name, 0)
            if ps:
                P(f's_cbranch_vccz {ex[i]}\ns_sleep {ps}')
                if i + 1 == NS: P(f's_branch {top}')
            else: P(f's_cbranch_vccz {ex[i]}' if i + 1 < NS else f's_cbranch_vccnz {top}')
        for i in reversed(range(NS)):
            P(f'{ex[i]}:')
            done(base + i*stride)
            if i > 0: P(f's_branch {join}')
        P(f'{join}:')
    def poll_groups(name, groups):
        top = lab(name)
        P(f's_mov_b32 {s(sSPIN)}, 0\ns_mov_b32 {s(sT0)}, {(1 << len(groups)) - 1}')
        P(f'{top}:')
        for g, (issue, tr) in enumerate(groups):
            sk = lab(name + 'i')
            P(f's_bitcmp1_b32 {s(sT0)}, {g}\ns_cbranch_scc0 {sk}')
            issue()
            P(f'{sk}:')
        P(f's_add_u32 {s(sSPIN)}, {s(sSPIN)}, 1\ns_cmp_gt_u32 {s(sSPIN)}, {cfg.spin}\ns_cbranch_scc1 L_END')
        P('s_waitcnt vmcnt(0)')
        for g, (issue, tr) in enumerate(groups):
            P(f'v_xor_b32 {v(vT + (g & 1))}, {s(sTAG)}, {v(tr[0])}')
            for r in tr[1:]: P(f'v_bitop3_b32 {v(vT + (g & 1))}, {v(r)}, {s(sTAG)}, {v(vT + (g & 1))} bitop3:{TAGX}')
            P(f'v_cmp_ne_u32 {s(sG+4+2*(g & 1),2)}, 0, {v(vT + (g & 1))}')
            P(f's_cmp_lg_u64 {s(sG+4+2*(g & 1),2)}, 0\ns_cselect_b32 {s(sT1)}, {1 << g}, 0')
            P(f's_or_b32 {s(sT0)}, {s(sT1)}, {s(sT0) if g else s(sT1)}')
        P(f's_cbranch_scc1 {top}')
    def publish_loc(d, vaddr, soff, mask=None, flag=sLOC):
        if not cfg.local: return publish(d, vaddr, soff, mask)
        far, j2 = lab('far'), lab('pb')
        if mask: setexec(mask)
        P(f's_cmp_eq_u32 {s(flag)}, 1\ns_cbranch_scc0 {far}')
        P(f'buffer_store_dwordx4 {v(d,4)}, {v(vaddr)}, {S(SRD_WS)}, {s(soff)} offen')
        P(f's_branch {j2}\n{far}:')
        publish(d, vaddr, soff)
        P(f'{j2}:')
        if mask: setexec(ALL)
    def afrag(dst, src, dpp=''):
        for w in range(4):
            if dpp: P(f'v_and_b32_dpp {v(dst+w)}, {v(src)}, {v(vM+w)} {dpp} row_mask:0xf bank_mask:0xf')
            else: P(f'v_and_b32 {v(dst+w)}, {v(src)}, {v(vM+w)}')
    def mfma(d, a, b, first=False):
        P(f'v_mfma_f32_16x16x32_bf16 {v(d,4)}, {v(a,4)}, {v(b,4)}, {"0" if first else v(d,4)}')
    vF, vHM, vPP = 244, 248, 250
    def afrag_pk(dst, src, dpp, k):
        pp = vPP + 2*(k & 1)
        if dpp: P(f'v_and_b32_dpp {v(pp)}, {v(src)}, {v(vHM)} {dpp} row_mask:0xf bank_mask:0xf')
        else: P(f'v_and_b32 {v(pp)}, {v(src)}, {v(vHM)}')
        return [f'v_pk_mul_f32 {v(dst+2*w,2)}, {v(pp,2)}, {v(vF+2*w,2)} op_sel_hi:[0,1]' for w in range(2)]
    def chain(d, n, bregs, srcs, areg):
        if cfg.pkand:
            pend = afrag_pk(areg, *srcs[0], 0)
            for x in pend: P(x)
            if n > 1: pend = afrag_pk(areg + 4, *srcs[1], 1)
            for i in range(n):
                if i + 1 < n:
                    for x in pend: P(x)
                if i + 2 < n: pend = afrag_pk(areg + 4*(i & 1) + 8*(1 - 2*0)*0 if False else areg + 4*(i & 1), *srcs[i+2], i) if False else None
                mfma(d, areg + 4*(i & 1), bregs[i], first=(i == 0))
                if i + 2 < n: pend = afrag_pk(areg + 4*(i & 1), *srcs[i+2], i)
            return
        if cfg.nodpp and srcs[0][1]:
            bc = 224
            for i in range(n): P(f'v_mov_b32_dpp {v(bc+i)}, {v(srcs[i][0])} {srcs[i][1]} row_mask:0xf bank_mask:0xf')
            srcs = [(bc+i, '') for i in range(n)]
        afrag(areg, *srcs[0])
        d2 = 32
        for i in range(n):
            if i + 1 < n: afrag(areg + 4*((i+1) & 1), *srcs[i+1])
            if cfg.acc2 and n >= 8: mfma(d2 if i & 1 else d, areg + 4*(i & 1), bregs[i], first=(i < 2))
            else: mfma(d, areg + 4*(i & 1), bregs[i], first=(i == 0))
        if cfg.acc2 and n >= 8:
            for r in range(0, 4, 2): P(f'v_pk_add_f32 {v(d+r,2)}, {v(d+r,2)}, {v(d2+r,2)}')
    def finish2(d):
        P(f'v_permlane32_swap_b32 {v(d)}, {v(d+2)}\nv_permlane32_swap_b32 {v(d+1)}, {v(d+3)}')
        P(f'v_add_f32_dpp {v(d)}, {v(d+2)}, {v(d)} row_ror:8 row_mask:0xf bank_mask:0xf')
        P(f'v_add_f32_dpp {v(d+1)}, {v(d+3)}, {v(d+1)} row_ror:8 row_mask:0xf bank_mask:0xf')
        P(f'v_mov_b32 {v(d+2)}, {s(sTAG)}')
    def finish1(d):
        P(f'v_permlane32_swap_b32 {v(d)}, {v(d+2)}\nv_permlane32_swap_b32 {v(d+1)}, {v(d+3)}')
        P(f'v_mov_b32 {v(d+2)}, {s(sTAG)}')
    def publish(d, vaddr, soff, mask=None):
        if mask: setexec(mask)
        P(f'buffer_store_dwordx4 {v(d,4)}, {v(vaddr)}, {S(SRD_WS)}, {s(soff)} offen sc1')
        if mask: setexec(ALL)
    M2SET = 0x00ff00ff00ff00ff
    def lohi(r):
        P(f'v_mov_b32 {v(r+2)}, {v(r)}\nv_mov_b32 {v(r+3)}, {v(r+1)}')
        for e in range(2): P(f'v_mov_b32_dpp {v(r+2+e)}, {v(r+e)} row_shl:4 row_mask:0xf bank_mask:0x5')
        for e in range(2): P(f'v_mov_b32_dpp {v(r+e)}, {v(r+e)} row_shr:4 row_mask:0xf bank_mask:0xa')
    def lohi_srcs(r):
        out = []
        for i in range(16):
            u = i >> 1; a = u & 3
            out.append((r + (2 if u >= 4 else 0) + (i & 1), f'quad_perm:[{a},{a},{a},{a}]'))
        return out
    def lds_wait(name, vaddr, n, dst, chk, sleep=0):
        top = lab(name)
        op = {1: 'ds_read_b32', 2: 'ds_read_b64', 4: 'ds_read_b128'}[n]
        P(f's_mov_b32 {s(sSPIN)}, 0')
        P(f'{top}:')
        P(f'{op} {v(dst,n)}, {v(vaddr)}')
        P(f's_add_u32 {s(sSPIN)}, {s(sSPIN)}, 1\ns_cmp_gt_u32 {s(sSPIN)}, {cfg.spin*8}\ns_cbranch_scc1 L_END')
        P('s_waitcnt lgkmcnt(0)')
        if len(chk) == 2:
            P(f'v_and_b32 {v(vT)}, {v(chk[0])}, {v(chk[1])}\nv_cmp_eq_u32 vcc, 0, {v(vT)}')
        else: P(f'v_cmp_eq_u32 vcc, 0, {v(chk[0])}')
        if sleep:
            done = lab(name + 'd')
            P(f's_cbranch_vccz {done}\ns_sleep {sleep}\ns_branch {top}\n{done}:')
        else: P(f's_cbranch_vccnz {top}')
    def hint_wait(name, soff):
        top = lab(name)
        P(f's_add_u32 {s(sMASK)}, {s(sWSP)}, {s(soff)}\ns_addc_u32 {s(sMASK+1)}, {s(sWSP+1)}, 0\ns_mov_b32 {s(sSPIN)}, 0')
        P(f'{top}:')
        P(f's_load_dwordx8 {s(sG,8)}, {s(sMASK,2)}, 0 glc')
        P(f's_add_u32 {s(sSPIN)}, {s(sSPIN)}, 1\ns_cmp_gt_u32 {s(sSPIN)}, {cfg.spin}\ns_cbranch_scc1 L_END')
        P('s_waitcnt lgkmcnt(0)')
        P(f's_xor_b32 {s(sG)}, {s(sG)}, {s(sTAG)}')
        for k in range(1, 8): P(f's_xor_b32 {s(sG+k)}, {s(sG+k)}, {s(sTAG)}\ns_or_b32 {s(sG)}, {s(sG)}, {s(sG+k)}')
        done = lab(name + 'd')
        P(f's_cbranch_scc0 {done}')
        if cfg.hsleep: P(f's_sleep {cfg.hsleep}')
        P(f's_branch {top}\n{done}:')
    def par_read(r):
        if cfg.par == 'dyn': P(f'v_mov_b32 {v(r)}, {hex(L_PAR)}\nds_read_b32 {v(r)}, {v(r)}')
    def par_use(r):
        if cfg.par == 'dyn': P(f's_waitcnt lgkmcnt(0)\nv_readfirstlane_b32 {s(sPAR)}, {v(r)}\ns_and_b32 {s(sPAR)}, {s(sPAR)}, 1')
        else: P(f's_mov_b32 {s(sPAR)}, {cfg.par or 0}')
        P(f's_lshr_b32 {s(sNEAR)}, {s(sX)}, 2\ns_xor_b32 {s(sNEAR)}, {s(sNEAR)}, {s(sPAR)}\ns_lshl_b32 {s(sNEAR)}, {s(sNEAR)}, 13')
    def wave_reduce(op, regs):
        for mod in ('quad_perm:[1,0,3,2] row_mask:0xf', 'quad_perm:[2,3,0,1] row_mask:0xf', 'row_ror:4 row_mask:0xf', 'row_ror:8 row_mask:0xf',
                    'row_bcast:15 row_mask:0xa', 'row_bcast:31 row_mask:0xc'):
            for r in regs: P(f'{op}_dpp {v(r)}, {v(r)}, {v(r)} {mod} bank_mask:0xf')
    def unpack(lo, hi, src):
        if lo == src: P(f'v_and_b32 {v(hi)}, 0xffff0000, {v(src)}\nv_lshlrev_b32 {v(lo)}, 16, {v(src)}')
        else: P(f'v_lshlrev_b32 {v(lo)}, 16, {v(src)}\nv_and_b32 {v(hi)}, 0xffff0000, {v(src)}')
    def silu_multi(rs, ts):
        for r, t in zip(rs, ts): P(f'v_mul_f32 {v(t)}, {NLOG2E}, {v(r)}')
        for r, t in zip(rs, ts): P(f'v_exp_f32 {v(t)}, {v(t)}')
        for r, t in zip(rs, ts): P(f'v_add_f32 {v(t)}, 1.0, {v(t)}')
        for r, t in zip(rs, ts): P(f'v_rcp_f32 {v(t)}, {v(t)}')
        for r, t in zip(rs, ts): P(f'v_mul_f32 {v(r)}, {v(r)}, {v(t)}')
    def rnd(r): P(f'v_cvt_pk_bf16_f32 {v(r)}, {v(r)}, {v(r)}\nv_and_b32 {v(r)}, 0xffff0000, {v(r)}')

    vMA, vMB, vMC, vPUB = 16, 17, 18, 19
    vMT, vD0, vAA, vS4 = 64, 36, 52, 40
    def modtile_issue(sRB, sCOL):
        srd(SRD_A, pC, 1024); srd(SRD_B, pWM, 512*6144)
        P(f's_lshl_b32 {s(sO1)}, {s(sRB)}, 8')
        P(f'buffer_load_dword {v(vMC)}, {v(vMA)}, {S(SRD_A)}, {s(sO1)} offen')
        P(f's_mul_i32 {s(sO1)}, {s(sRB)}, {128*6144}\ns_add_u32 {s(sO1)}, {s(sO1)}, {s(sCOL)}')
        for i in range(16):
            P(f'buffer_load_dwordx4 {v(vMT+4*i,4)}, {v(vMB)}, {S(SRD_B)}, {s(sO1)} offen {cfg.wpol}')
            if i < 15: P(f's_add_u32 {s(sO1)}, {s(sO1)}, 6144')
    def modtile_compute(nafter, soff, both=False):
        P(f's_waitcnt vmcnt({16+nafter})')
        unpack(vS4, vS4+1, vMC)
        silu_multi([vS4, vS4+1], [vS4+2, vS4+3])
        for e in range(2): P(f'v_cvt_pk_bf16_f32 {v(vS4+e)}, {v(vS4+e)}, {v(vS4+e)}')
        lohi(vS4)
        P(f's_waitcnt vmcnt({nafter})')
        chain(vD0, 16, [vMT+4*i for i in range(16)], lohi_srcs(vS4), vAA)
        finish2(vD0)
        if both:
            for e in range(2): P(f'v_mov_b32_dpp {v(vD0+e)}, {v(vD0+e)} row_ror:8 row_mask:0xf bank_mask:0xc')
            if cfg.par == 'dyn':
                P(f'v_mov_b32 {v(vT+2)}, {hex(L_PAR)}')
                lds_wait('pw', vT+2, 1, 28, [28])
                P(f'v_lshrrev_b32 {v(vT)}, 3, {v(vL)}\nv_xor_b32 {v(vT)}, {v(28)}, {v(vT)}')
            else: P(f'v_lshrrev_b32 {v(vT)}, 3, {v(vL)}\nv_xor_b32 {v(vT)}, {cfg.par}, {v(vT)}')
            P(f'v_and_b32 {v(vT)}, 1, {v(vT)}\nv_lshl_add_u32 {v(vT)}, {v(vT)}, 13, {v(vPUB)}')
            publish(vD0, vT, soff)
        else: publish(vD0, vPUB, soff, M2SET)

    P(f's_cmp_ge_u32 {s(sB)}, 256\ns_cbranch_scc1 L_END')
    if cfg.diag:
        for i in range(9): P(f's_mov_b32 {s(sDIAG+2*i)}, 0')
    stamp('start')
    P(f's_load_dwordx4 {s(sKP,4)}, s[0:1], 8')
    P(f's_load_dwordx16 {s(pWQ,16)}, s[0:1], 24')
    P(f's_load_dwordx2 {s(sWSP,2)}, s[0:1], 104')
    P(f's_load_dwordx2 {s(pX,2)}, s[0:1], 0')
    P(f's_load_dwordx2 {s(pOUT,2)}, s[0:1], 88')
    P(f'v_lshrrev_b32 {v(vT)}, 6, v0\nv_and_b32 {v(vL)}, 63, v0')
    P(f'v_readfirstlane_b32 {s(sW)}, {v(vT)}')
    P(f'v_lshlrev_b32 {v(vT)}, 2, {v(vL)}\nv_add_u32 {v(vT)}, {hex(L_FLAG)}, {v(vT)}\nv_mov_b32 {v(vT+1)}, 0')
    P(f'ds_write_b32 {v(vT)}, {v(vT+1)}')
    P(f's_and_b32 {s(sH)}, {s(sB)}, 31\ns_lshr_b32 {s(sJ)}, {s(sB)}, 5\ns_and_b32 {s(sX)}, {s(sB)}, 7\ns_lshr_b32 {s(sKK)}, {s(sB)}, 3')
    vKA, vVA = 8, 12
    P(f'v_lshrrev_b32 {v(vT)}, 4, {v(vL)}\nv_and_b32 {v(vT+1)}, 15, {v(vL)}')
    P(f'v_lshlrev_b32 {v(vVA)}, 10, {v(vT)}\nv_lshl_add_u32 {v(vVA)}, {v(vT+1)}, 4, {v(vVA)}')
    if cfg.ksplit:
        P(f'v_lshlrev_b32 {v(vT+2)}, 2, {v(vT)}\nv_xor_b32 {v(vT+1)}, {v(vT+1)}, {v(vT+2)}\nv_lshlrev_b32 {v(vT+1)}, 4, {v(vT+1)}\nv_lshl_add_u32 {v(vKA)}, {v(vT)}, 10, {v(vT+1)}')
        for i in range(1, 4): P(f'v_xor_b32 {v(vKA+i)}, {16*i}, {v(vKA)}')
    else:
        P(f'v_xor_b32 {v(vT+1)}, {v(vT+1)}, {v(vT)}\nv_lshlrev_b32 {v(vT+1)}, 4, {v(vT+1)}\nv_lshl_add_u32 {v(vKA)}, {v(vT)}, 8, {v(vT+1)}')
        for i in range(1, 4): P(f'v_xor_b32 {v(vKA+i)}, {64*i}, {v(vKA)}')
    P(f's_lshl_b32 {s(sO0)}, {s(sH)}, 20\ns_lshl_b32 {s(sO3)}, {s(sJ)}, 2\ns_add_u32 {s(sO3)}, {s(sO3)}, {s(sW)}\ns_lshl_b32 {s(sO3)}, {s(sO3)}, 12')
    P(f'v_lshlrev_b32 {v(vMA)}, 2, {v(vL)}\nv_lshrrev_b32 {v(vT)}, 3, {v(vL)}\nv_mul_u32_u24 {v(vMB)}, {16*6144}, {v(vT)}\nv_and_b32 {v(vT+1)}, 7, {v(vL)}\nv_lshl_add_u32 {v(vMB)}, {v(vT+1)}, 4, {v(vMB)}')
    P(f'v_lshrrev_b32 {v(vT)}, 4, {v(vL)}\nv_lshlrev_b32 {v(vT)}, 7, {v(vT)}\nv_lshl_add_u32 {v(vPUB)}, {v(vT+1)}, 4, {v(vT)}')
    vXF, vXS, vL16, vWA, vXA = 28, 32, 60, 62, 33
    P(f'v_lshlrev_b32 {v(vL16)}, 4, {v(vL)}')
    P(f'v_bfe_u32 {v(vT)}, {v(vL)}, 4, 1\nv_lshrrev_b32 {v(vT+2)}, 5, {v(vL)}\nv_lshl_add_u32 {v(vT)}, {v(vT)}, 1, {v(vT+2)}')
    P(f'v_lshl_add_u32 {v(vXA)}, {v(vT+1)}, 2, {v(vT)}\nv_lshlrev_b32 {v(vXA)}, 2, {v(vXA)}\nv_lshlrev_b32 {v(vWA)}, 14, {v(vT)}')
    P(f'v_and_b32 {v(vT+1)}, 15, {v(vL)}\nv_lshl_add_u32 {v(vWA)}, {v(vT+1)}, 4, {v(vWA)}')
    if cfg.tearly == 1:
        P(f's_sub_u32 {s(sT2)}, {s(sKK)}, 16\ns_lshl_b32 {s(sT2)}, {s(sT2)}, 2\ns_add_u32 {s(sT2)}, {s(sT2)}, {s(sX)}\ns_lshr_b32 {s(sT1B)}, {s(sT2)}, 3\ns_and_b32 {s(sT2)}, {s(sT2)}, 7')
        P(f's_cmp_lt_u32 {s(sX)}, 4\ns_cselect_b32 {s(sT2)}, {s(sT2)}, 99\ns_cmp_ge_u32 {s(sKK)}, 16\ns_cselect_b32 {s(sT2)}, {s(sT2)}, 99')
    else:
        P(f's_sub_u32 {s(sT2)}, {s(sKK)}, 16\ns_mov_b32 {s(sT1B)}, {s(sX)}')
    P(f's_and_b32 {s(sT0)}, {s(sT2)}, 1\ns_lshl_b32 {s(sT0)}, {s(sT0)}, 10\ns_lshl_b32 {s(sT1)}, {s(sT1B)}, 7\ns_add_u32 {s(sT1)}, {s(sT1)}, {s(sT0)}\ns_lshr_b32 {s(sT0)}, {s(sT2)}, 1\ns_lshl_b32 {s(sO2)}, {s(sJ)}, 7')
    P('s_waitcnt lgkmcnt(0)')
    P(f's_cmp_eq_u32 {s(sW)}, 4\ns_cbranch_scc0 L_B0')
    if cfg.b0late: P('s_setprio 3')
    P(f's_cmp_lt_u32 {s(sT2)}, 8\ns_cbranch_scc0 L_XLD')
    modtile_issue(sT0, sT1)
    P('L_XLD:')
    srd(SRD_C, pX, 1024)
    P(f'buffer_load_dwordx4 {v(vXF,4)}, {v(vL16)}, {S(SRD_C)}, 0 offen')
    P(f'buffer_load_dword {v(vXS)}, {v(vXA)}, {S(SRD_C)}, {s(sO2)} offen')
    vWQ = 128
    def wq_issue():
        srd(SRD_C, pWQ, 4 << 20)
        P(f's_lshl_b32 {s(sO2)}, {s(sJ)}, 19\ns_lshl_b32 {s(sT0)}, {s(sH)}, 8\ns_add_u32 {s(sO2)}, {s(sO2)}, {s(sT0)}')
        for i in range(16):
            P(f'buffer_load_dwordx4 {v(vWQ+4*i,4)}, {v(vWA)}, {S(SRD_C)}, {s(sO2)} offen {cfg.wpol}')
            if i < 15: P(f's_add_u32 {s(sO2)}, {s(sO2)}, {8192 if (i & 1) == 0 else 8192*7}')
    if cfg.wq0: wq_issue()
    P('L_B0:')
    if not cfg.b0late: P('s_barrier')
    P(f's_cmp_ge_u32 {s(sW)}, 4\ns_cbranch_scc1 L_CW')

    srd(SRD_K, sKP, 32 << 20)
    sTL, sRS, sTL0 = sG, sG+1, sG+2
    P(f's_mul_i32 {s(sTL0)}, {s(sH)}, {cfg.th}\ns_and_b32 {s(sTL0)}, {s(sTL0)}, 7\ns_lshl_b32 {s(sTL0)}, {s(sTL0)}, 17')
    def firsttile():
        P(f's_mov_b32 {s(sTL)}, {s(sTL0)}\ns_mov_b32 {s(sRS)}, {s(sO3)}\ns_add_u32 {s(sO1)}, {s(sO0)}, {s(sTL)}\ns_add_u32 {s(sO1)}, {s(sO1)}, {s(sRS)}')
    def nexttile():
        P(f's_add_u32 {s(sTL)}, {s(sTL)}, 0x20000\ns_and_b32 {s(sTL)}, {s(sTL)}, 0xe0000\ns_add_u32 {s(sRS)}, {s(sRS)}, {cfg.rot << 12}\ns_and_b32 {s(sRS)}, {s(sRS)}, 0x1f000\ns_add_u32 {s(sO1)}, {s(sO0)}, {s(sTL)}\ns_add_u32 {s(sO1)}, {s(sO1)}, {s(sRS)}')
    firsttile()
    P(f's_lshl_b32 {s(sT0)}, {s(sW)}, 15\ns_mov_b32 m0, {s(sT0)}\ns_mov_b32 {s(sT1)}, 0')
    stamp('L_k0')
    vV = 128
    def stream(ds, sfx):
        DK = ds[0]
        def DV(idx): return ds[0] if idx < ds[1] else ds[2]
        P(f'L_KLOOP{sfx}:')
        for i in range(4):
            if cfg.ksplit and i: P(f's_add_u32 m0, {s(sT0)}, {768*i}')
            P(f's_waitcnt vmcnt({DK-1})')
            P(f'buffer_load_dwordx4 {v(vKA+i)}, {S(SRD_K)}, {s(sO1)} offen offset:{(256 if cfg.ksplit else 1024)*i} {cfg.kpol} lds')
        if cfg.b0late: P(f's_cmp_eq_u32 {s(sT1)}, 0\ns_cbranch_scc0 L_KL2{sfx}\ns_barrier\nL_KL2{sfx}:')
        nexttile()
        P(f's_add_u32 {s(sT0)}, {s(sT0)}, 4096\ns_mov_b32 m0, {s(sT0)}\ns_add_u32 {s(sT1)}, {s(sT1)}, 1\ns_cmp_lt_u32 {s(sT1)}, 8\ns_cbranch_scc1 L_KLOOP{sfx}')
        stamp('L_kissued')
        srd(SRD_V, sVP, 32 << 20)
        firsttile()
        P(f's_lshl_b32 {s(sT0)}, {s(sW)}, 3\ns_add_u32 {s(sT0)}, {s(sT0)}, {hex(L_FLAG)}\nv_mov_b32 {v(vT)}, {s(sT0)}\nv_mov_b32 {v(vT+1)}, 1')
        for idx in range(32):
            t, i = idx >> 2, idx & 3
            P(f's_waitcnt vmcnt({DV(idx)-1})')
            if idx == DK - 1:
                P(f'ds_write_b32 {v(vT)}, {v(vT+1)}')
                stamp('L_klanded')
            P(f'buffer_load_dwordx4 {v(vV+4*idx,4)}, {v(vVA)}, {S(SRD_V)}, {s(sO1)} offen offset:{256*i} {cfg.vpol}')
            if i == 3 and t < 7: nexttile()
    if cfg.dvar:
        P(f's_getreg_b32 {s(sT2)}, hwreg(HW_REG_XCC_ID, 0, 3)')
        P(f's_bitcmp1_b32 {s(sT2)}, 2\ns_cbranch_scc1 L_STH')
        P(f's_bitcmp1_b32 {s(sT2)}, 0\ns_cbranch_scc1 L_ST1')
        stream(cfg.dvar[0], 'a'); P('s_branch L_STD\nL_ST1:')
        stream(cfg.dvar[1], 'b'); P('s_branch L_STD\nL_STH:')
        P(f's_bitcmp1_b32 {s(sT2)}, 0\ns_cbranch_scc1 L_ST3')
        stream(cfg.dvar[2], 'c'); P('s_branch L_STD\nL_ST3:')
        stream(cfg.dvar[3], 'd')
        P('L_STD:')
    elif cfg.dodd:
        P(f's_getreg_b32 {s(sT2)}, hwreg(HW_REG_XCC_ID, 0, 1)\ns_cmp_eq_u32 {s(sT2)}, 1\ns_cbranch_scc1 L_STO')
        stream(cfg.dsched, 'a'); P('s_branch L_STD\nL_STO:')
        stream(cfg.dodd, 'b')
        P('L_STD:')
    else: stream(cfg.dsched, '')
    stamp('L_vissued')
    def masks(pk=False):
        P(f'v_and_b32 {v(vT)}, 1, {v(vL)}\nv_lshlrev_b32 {v(vT)}, 4, {v(vT)}\nv_mov_b32 {v(vT+1)}, 0xffff\nv_lshlrev_b32 {v(vT+1)}, {v(vT)}, {v(vT+1)}')
        P(f'v_bfe_u32 {v(vT)}, {v(vL)}, 1, 2')
        for w in range(4):
            P(f'v_cmp_eq_u32 vcc, {w}, {v(vT)}\nv_cndmask_b32 {v(vM+w)}, 0, {v(vT+1)}, vcc')
            if pk and cfg.pkand: P(f'v_cndmask_b32 {v(vF+w)}, 0, 1.0, vcc')
        if pk and cfg.pkand: P(f'v_mov_b32 {v(vHM)}, {v(vT+1)}')
    def common_setup():
        P(f's_load_dword {s(sTAG)}, {s(sWSP,2)}, 0')
        srd(SRD_WS, sWSP, WS_BYTES)
        masks(True)
    masks()
    vPA, vOA, vP, vA, vD = 13, 14, 16, 48, 56
    P(f'v_lshrrev_b32 {v(vT)}, 4, {v(vL)}\nv_lshlrev_b32 {v(vT)}, 4, {v(vT)}\ns_lshl_b32 {s(sT0)}, {s(sW)}, 9\ns_add_u32 {s(sT0)}, {s(sT0)}, {hex(L_P)}\nv_add_u32 {v(vPA)}, {s(sT0)}, {v(vT)}')
    P(f's_add_u32 {s(sT0)}, {s(sT0)}, {hex(L_OP - L_P)}\nv_lshlrev_b32 {v(vT)}, 3, {v(vL)}\nv_add_u32 {v(vOA)}, {s(sT0)}, {v(vT)}')
    P('s_waitcnt lgkmcnt(0)')
    P('s_barrier')
    stamp('L_b1')
    for t in range(8): P(f'ds_read_b128 {v(vP+4*t,4)}, {v(vPA)} offset:{64*t}')
    P('s_waitcnt lgkmcnt(7)')
    afrag(vA, vP)
    for idx in range(32):
        if idx + 1 < 32:
            if (idx + 1) % 4 == 0: P(f's_waitcnt lgkmcnt({7 - (idx+1)//4})')
            afrag(vA + 4*((idx+1) & 1), vP + idx + 1)
        P(f's_waitcnt vmcnt({31-idx})')
        mfma(vD, vA + 4*(idx & 1), vV + 4*idx, first=(idx == 0))
    stamp('L_pv')
    P(f'v_permlane32_swap_b32 {v(vD)}, {v(vD+2)}\nv_permlane32_swap_b32 {v(vD+1)}, {v(vD+3)}')
    P(f'ds_write_b64 {v(vOA)}, {v(vD,2)}')
    P('s_waitcnt lgkmcnt(0)')
    P('s_barrier')
    P('s_endpgm' if not cfg.diag else 's_branch L_END')

    P('L_CW:')
    if cfg.gprobe and cfg.gprobe[0] in 'MR':
        P(f's_waitcnt lgkmcnt(0)\ns_mov_b32 s96, {s(sWSP)}\ns_mov_b32 s97, {s(sWSP+1)}\ns_mov_b32 s98, {hex(WS_BYTES)}\ns_mov_b32 s99, 0x20000')
        P(f's_lshl_b32 s100, {s(sB)}, 2\ns_and_b32 s101, {s(sW)}, 3\ns_add_u32 s100, s100, s101\ns_lshl_b32 s100, s100, 3\ns_add_u32 s100, s100, {hex(DIAG)}')
        P(f's_mov_b64 exec, 1\nv_mov_b32 v254, {s(sDIAG)}\nv_mov_b32 v255, {s(sDIAG)}\nv_mov_b32 v253, 0\nbuffer_store_dwordx2 v[254:255], v253, s[96:99], s100 offen sc1\ns_mov_b64 exec, -1\ns_waitcnt vmcnt(0)')
    if cfg.b0late: P('s_barrier')
    if cfg.prio: P(f's_setprio {cfg.prio}')
    P(f's_cmp_eq_u32 {s(sW)}, 4\ns_cbranch_scc0 L_C123')
    vGA = 192
    common_setup()
    P('s_waitcnt lgkmcnt(0)')
    P(f's_add_u32 {s(sTAG)}, {s(sTAG)}, 1')
    if cfg.local:
        P(f's_getreg_b32 {s(sLOC)}, hwreg(HW_REG_XCC_ID, 0, 3)\ns_lshl_b32 {s(sT0)}, {s(sTAG)}, 3\ns_or_b32 {s(sLOC)}, {s(sLOC)}, {s(sT0)}')
        P(f's_lshl_b32 {s(sO3)}, {s(sH)}, 7\ns_add_u32 {s(sO3)}, {s(sO3)}, {hex(X0)}\ns_lshl_b32 {s(sT0)}, {s(sJ)}, 2\ns_add_u32 {s(sT0)}, {s(sT0)}, {s(sO3)}\nv_mov_b32 {v(vT)}, {s(sT0)}\nv_mov_b32 {v(vT+1)}, {s(sLOC)}')
        P(f's_lshl_b32 {s(sR)}, {s(sX)}, 3\ns_lshr_b32 {s(sT0)}, {s(sKK)}, 2\ns_add_u32 {s(sR)}, {s(sR)}, {s(sT0)}\ns_lshl_b32 {s(sR)}, {s(sR)}, 7\ns_add_u32 {s(sR)}, {s(sR)}, {hex(X0B)}')
        P(f's_and_b32 {s(sT0)}, {s(sKK)}, 3\ns_lshl_b32 {s(sT0)}, {s(sT0)}, 2\ns_add_u32 {s(sT0)}, {s(sT0)}, {s(sR)}\nv_writelane_b32 {v(vT)}, {s(sT0)}, 1')
        P(f's_lshl_b32 {s(sT0)}, {s(sX)}, 7\ns_lshl_b32 {s(sO2)}, {s(sKK)}, 2\ns_add_u32 {s(sT0)}, {s(sT0)}, {s(sO2)}\ns_add_u32 {s(sT0)}, {s(sT0)}, {hex(X0C)}\nv_writelane_b32 {v(vT)}, {s(sT0)}, 2')
        if cfg.mlat:
            P(f's_lshl_b32 {s(sT0)}, {s(sH)}, 7\ns_lshl_b32 {s(sO2)}, {s(sJ)}, 3\ns_add_u32 {s(sT0)}, {s(sT0)}, {s(sO2)}\ns_add_u32 {s(sT0)}, {s(sT0)}, {hex(X3)}\nv_writelane_b32 {v(vT)}, {s(sT0)}, 3')
            P(f's_add_u32 {s(sT0)}, {s(sT0)}, 4\nv_writelane_b32 {v(vT)}, {s(sT0)}, 4\nv_writelane_b32 {v(vT+1)}, 0, 3\nv_writelane_b32 {v(vT+1)}, 0, 4')
        setexec(31 if cfg.mlat else 7)
        P(f'buffer_store_dword {v(vT+1)}, {v(vT)}, {S(SRD_WS)}, 0 offen sc1')
        setexec(ALL)
    P(f's_cmp_lt_u32 {s(sT2)}, 8\ns_cbranch_scc0 L_NOT1')
    P(f's_lshl_b32 {s(sO2)}, {s(sT1B)}, 3\ns_add_u32 {s(sO2)}, {s(sO2)}, {s(sT2)}\ns_lshl_b32 {s(sO2)}, {s(sO2)}, 9\ns_add_u32 {s(sO2)}, {s(sO2)}, {hex(X1)}')
    modtile_compute((18 if cfg.wq0 else 2) + cfg.local, sO2)
    if cfg.hint:
        P(f's_lshl_b32 {s(sO2)}, {s(sT1B)}, 9\ns_lshl_b32 {s(sT0)}, {s(sT2)}, 2\ns_add_u32 {s(sO2)}, {s(sO2)}, {s(sT0)}\ns_add_u32 {s(sO2)}, {s(sO2)}, {hex(X1F)}\nv_lshlrev_b32 {v(vT)}, 7, {v(vL)}')
        setexec(0xf)
        P(f'buffer_store_dword {v(vD0+2)}, {v(vT)}, {S(SRD_WS)}, {s(sO2)} offen sc1')
        setexec(ALL)
    stamp('C0_x1pub')
    if not cfg.wq0: wq_issue()
    P('s_branch L_T1D')
    P('L_NOT1:')
    if not cfg.wq0: wq_issue()
    P('L_T1D:')
    vx = 64
    P(f's_waitcnt vmcnt({16 + (cfg.local if cfg.wq0 else 0)})')
    for k in range(4): unpack(vx+2*k, vx+2*k+1, vXF+k)
    P(f'v_add_f32 {v(20)}, {v(vx)}, {v(vx+1)}\nv_add_f32 {v(21)}, {v(vx+2)}, {v(vx+3)}\nv_add_f32 {v(22)}, {v(vx+4)}, {v(vx+5)}\nv_add_f32 {v(23)}, {v(vx+6)}, {v(vx+7)}')
    P(f'v_add_f32 {v(20)}, {v(20)}, {v(21)}\nv_add_f32 {v(22)}, {v(22)}, {v(23)}\nv_add_f32 {v(20)}, {v(20)}, {v(22)}')
    wave_reduce('v_add_f32', [20])
    P(f'v_mul_f32 {v(20)}, {R512}, {v(20)}\nv_readlane_b32 {s(sT0)}, {v(20)}, 63')
    for k in range(8): P(f'v_subrev_f32 {v(vx+k)}, {s(sT0)}, {v(vx+k)}')
    P(f'v_mul_f32 {v(21)}, {v(vx)}, {v(vx)}')
    for k in range(1, 8): P(f'v_fmac_f32 {v(21)}, {v(vx+k)}, {v(vx+k)}')
    wave_reduce('v_add_f32', [21])
    P(f'v_mul_f32 {v(21)}, {R512}, {v(21)}')
    P(f'v_cvt_pk_bf16_f32 {v(22)}, {v(20)}, {v(21)}')
    P(f'v_and_b32 {v(21)}, 0xffff0000, {v(22)}\nv_lshlrev_b32 {v(20)}, 16, {v(22)}\nv_add_f32 {v(21)}, {EPS}, {v(21)}')
    rnd(21); P(f'v_sqrt_f32 {v(21)}, {v(21)}'); rnd(21); P(f'v_rcp_f32 {v(22)}, {v(21)}')
    P(f'v_readlane_b32 {s(sT0)}, {v(20)}, 63\nv_readlane_b32 {s(sT1)}, {v(21)}, 63\nv_readlane_b32 {s(sT2)}, {v(22)}, 63')
    vLN = 24
    unpack(vLN, vLN+1, vXS)
    for e in range(2): P(f'v_subrev_f32 {v(vLN+e)}, {s(sT0)}, {v(vLN+e)}')
    P(f'v_cvt_pk_bf16_f32 {v(20)}, {v(vLN)}, {v(vLN+1)}'); unpack(vLN, vLN+1, 20)
    for e in range(2): P(f'v_mul_f32 {v(20+e)}, {s(sT2)}, {v(vLN+e)}')
    for e in range(2): P(f'v_fma_f32 {v(vLN+e)}, -{v(20+e)}, {s(sT1)}, {v(vLN+e)}')
    for e in range(2): P(f'v_fma_f32 {v(vLN+e)}, {v(vLN+e)}, {s(sT2)}, {v(20+e)}')
    P(f'v_cvt_pk_bf16_f32 {v(20)}, {v(vLN)}, {v(vLN+1)}'); unpack(vLN, vLN+1, 20)
    P(f'v_bfe_u32 {v(vT)}, {v(vL)}, 3, 1\nv_lshlrev_b32 {v(vT)}, 9, {v(vT)}\nv_add_u32 {v(26)}, {v(vPUB)}, {v(vT)}')
    P(f's_lshl_b32 {s(sO0)}, {s(sJ)}, 12\ns_add_u32 {s(sO0)}, {s(sO0)}, {hex(X1)}')
    if cfg.hint:
        P(f's_lshl_b32 {s(sT0)}, {s(sJ)}, 2\ns_and_b32 {s(sT1)}, {s(sH)}, 3\ns_add_u32 {s(sT0)}, {s(sT0)}, {s(sT1)}\ns_lshl_b32 {s(sT0)}, {s(sT0)}, 7\ns_add_u32 {s(sT0)}, {s(sT0)}, {hex(X1F)}')
        hint_wait('h1h', sT0)
    else: P('s_waitcnt vmcnt(0)')
    if cfg.local:
        P(f's_add_u32 {s(sMASK)}, {s(sWSP)}, {s(sO3)}\ns_addc_u32 {s(sMASK+1)}, {s(sWSP+1)}, 0')
        P(f's_load_dwordx8 {s(sG,8)}, {s(sMASK,2)}, 0 glc')
        P(f's_load_dwordx4 s[8:11], {s(sWSP,2)}, {s(sR)} glc')
    stamp('C0_wq')
    if cfg.sleep1: P(f's_sleep {cfg.sleep1}')
    def issue():
        for k in range(4): P(f'buffer_load_dwordx4 {v(vGA+4*k,4)}, {v(26)}, {S(SRD_WS)}, {s(sO0)} offen offset:{1024*k} sc1')
    tagcheck_loop(issue, [vGA+4*k+2 for k in range(4)], 'h1')
    stamp('C0_h1')
    if cfg.local:
        P('s_waitcnt lgkmcnt(0)')
        P(f's_xor_b32 {s(sG)}, {s(sG)}, {s(sLOC)}')
        for k in range(1, 8): P(f's_xor_b32 {s(sG+k)}, {s(sG+k)}, {s(sLOC)}\ns_or_b32 {s(sG)}, {s(sG)}, {s(sG+k)}')
        P(f's_cselect_b32 {s(sT0)}, 0, 1')
        P(f's_xor_b32 s8, s8, {s(sLOC)}')
        for k in range(1, 4): P(f's_xor_b32 {s(8+k)}, {s(8+k)}, {s(sLOC)}\ns_or_b32 s8, s8, {s(8+k)}')
        P(f's_cselect_b32 {s(sR)}, 0, 1\ns_mov_b32 {s(sLOC)}, {s(sT0)}')
    b = vGA
    for e in range(2): P(f'v_add_f32 {v(b+e)}, {v(b+e)}, {v(b+4+e)}\nv_add_f32 {v(b+8+e)}, {v(b+8+e)}, {v(b+12+e)}')
    for e in range(2): P(f'v_add_f32 {v(b+e)}, {v(b+e)}, {v(b+8+e)}')
    P(f'v_cvt_pk_bf16_f32 {v(b+4)}, {v(b)}, {v(b+1)}\nv_mov_b32 {v(b+5)}, {v(b+4)}')
    P(f'v_mov_b32_dpp {v(b+4)}, {v(b+5)} row_ror:8 row_mask:0xf bank_mask:0xc')
    P(f'v_mov_b32_dpp {v(b+5)}, {v(b+5)} row_ror:8 row_mask:0xf bank_mask:0x3')
    unpack(b+8, b+9, b+4); unpack(b+6, b+7, b+5)
    P(f'v_add_f32 {v(b+6)}, 1.0, {v(b+6)}\nv_add_f32 {v(b+7)}, 1.0, {v(b+7)}\nv_cvt_pk_bf16_f32 {v(b+5)}, {v(b+6)}, {v(b+7)}')
    unpack(b+6, b+7, b+5)
    P(f'v_mul_f32 {v(b+6)}, {v(b+6)}, {v(vLN)}\nv_mul_f32 {v(b+7)}, {v(b+7)}, {v(vLN+1)}\nv_cvt_pk_bf16_f32 {v(b+5)}, {v(b+6)}, {v(b+7)}')
    unpack(b+6, b+7, b+5)
    P(f'v_add_f32 {v(b+6)}, {v(b+6)}, {v(b+8)}\nv_add_f32 {v(b+7)}, {v(b+7)}, {v(b+9)}')
    vH = 20
    P(f'v_cvt_pk_bf16_f32 {v(vH)}, {v(b+6)}, {v(b+6)}\nv_cvt_pk_bf16_f32 {v(vH+1)}, {v(b+7)}, {v(b+7)}')
    P(f's_lshl_b32 {s(sO1)}, {s(sH)}, 13\ns_add_u32 {s(sO1)}, {s(sO1)}, {hex(X2)}\ns_lshl_b32 {s(sO0)}, {s(sJ)}, 10\ns_add_u32 {s(sO0)}, {s(sO0)}, {s(sO1)}\ns_add_u32 {s(sO2)}, {s(sO1)}, 4096')
    chain(vD0, 16, [vWQ+4*i for i in range(16)], [(vH + (i & 1), f'row_newbcast:{i >> 1}') for i in range(16)], vAA)
    finish1(vD0)
    publish_loc(vD0, vL16, sO0)
    if cfg.hint:
        P(f's_lshl_b32 {s(sO3)}, {s(sH)}, 7\ns_add_u32 {s(sO3)}, {s(sO3)}, {hex(X2F)}\nv_mov_b32 {v(vT)}, 0\ns_lshl_b32 {s(sT0)}, {s(sJ)}, 2\ns_add_u32 {s(sT0)}, {s(sT0)}, {s(sO3)}')
        setexec(1)
        P(f'buffer_store_dword {v(vD0+2)}, {v(vT)}, {S(SRD_WS)}, {s(sT0)} offen sc1')
        setexec(ALL)
    stamp('C0_x2pub')
    P(f'v_bfe_u32 {v(vT)}, {v(vL)}, 4, 1\nv_lshrrev_b32 {v(vT+1)}, 5, {v(vL)}\nv_lshl_add_u32 {v(vT)}, {v(vT)}, 1, {v(vT+1)}\nv_and_b32 {v(vT+1)}, 15, {v(vL)}\nv_lshl_add_u32 {v(vT)}, {v(vT+1)}, 2, {v(vT)}')
    P(f'v_lshlrev_b32 {v(vT)}, 2, {v(vT)}\nv_add_u32 {v(26)}, {hex(L_Q)}, {v(vT)}')
    P(f'v_and_b32 {v(27)}, 3, {v(vL)}\nv_lshlrev_b32 {v(27)}, 3, {v(27)}\nv_add_u32 {v(27)}, {hex(L_FLAG + 4)}, {v(27)}\nv_mov_b32 {v(25)}, 1')
    if cfg.hint: hint_wait('qh', sO3)
    stamp('C0_qh')
    if cfg.sleep2: P(f's_sleep {cfg.sleep2}')
    def gather8(base_lo, base_hi):
        def issue():
            for k in range(8):
                P(f'buffer_load_dwordx4 {v(vGA+4*k,4)}, {v(vL16)}, {S(SRD_WS)}, {s(base_lo if k < 4 else base_hi)} offen offset:{1024*(k & 3)} sc1')
        return issue
    def sum8():
        for a, b2 in ((0, 1), (2, 3), (4, 5), (6, 7), (0, 2), (4, 6), (0, 4)):
            for e in (0, 1): P(f'v_add_f32 {v(vGA+4*a+e)}, {v(vGA+4*a+e)}, {v(vGA+4*b2+e)}')
    tagcheck_loop(gather8(sO1, sO2), [vGA+4*k+2 for k in range(8)], 'q')
    stamp('C0_q')
    sum8()
    P(f'v_cvt_pk_bf16_f32 {v(vT)}, {v(vGA)}, {v(vGA+1)}')
    P(f'ds_write_b32 {v(26)}, {v(vT)}')
    P(f'ds_write_b32 {v(27)}, {v(25)}')
    vg, vXv, vGAv, vGBv, vU16, vDA, vXC, vL16r, vBP, sJJ, sP, sB4, sD = 64, 12, 13, 14, 15, 17, 20, 16, 18, sG, 4, 12, 8
    def vda():
        if cfg.par is None: P(f'v_lshrrev_b32 {v(vT)}, 2, {v(vL)}\nv_lshl_add_u32 {v(vDA)}, {v(vT)}, 12, {v(vU16)}')
        else: P(f'v_lshrrev_b32 {v(vT)}, 4, {v(vL)}\nv_lshl_add_u32 {v(vDA)}, {v(vT)}, 14, {v(vU16)}\nv_bfe_u32 {v(vT)}, {v(vL)}, 2, 2\nv_lshl_add_u32 {v(vDA)}, {v(vT)}, 11, {v(vDA)}')
    def red_addr():
        par_read(19)
        par_use(19)
        if X4NEAR:
            P(f's_lshr_b32 {s(sT0)}, {s(sJJ)}, 2\ns_lshl_b32 {s(sT0)}, {s(sT0)}, 14\ns_and_b32 {s(sT1)}, {s(sJJ)}, 3\ns_lshl_b32 {s(sT1)}, {s(sT1)}, 11\ns_add_u32 {s(sT0)}, {s(sT0)}, {s(sT1)}\ns_add_u32 {s(sT0)}, {s(sT0)}, {s(sNEAR)}')
            for p_ in range(4): P(f's_add_u32 {s(sP+p_)}, {s(sT0)}, {hex(X4N + p_*32768)}')
        if cfg.par is None:
            P(f's_lshl_b32 {s(sO0)}, {s(sJJ)}, 14\ns_add_u32 {s(sO0)}, {s(sO0)}, {hex(XB)}')
            if cfg.xbrep: P(f's_lshl_b32 {s(sT1)}, {s(sX)}, 17\ns_add_u32 {s(sO0)}, {s(sO0)}, {s(sT1)}')
            for k in range(4): P(f's_add_u32 {s(sB4+k)}, {s(sO0)}, {4096*k}')
        else:
            P(f's_lshl_b32 {s(sO0)}, {s(sJJ)}, 15\ns_add_u32 {s(sO0)}, {s(sO0)}, {s(sNEAR)}\ns_add_u32 {s(sO0)}, {s(sO0)}, {hex(XB2)}')
            for k, o in enumerate((0, 4096, 16384, 20480)): P(f's_add_u32 {s(sB4+k)}, {s(sO0)}, {o}')
        P(f's_lshr_b32 {s(sO3)}, {s(sX)}, 1\ns_lshl_b32 {s(sO3)}, {s(sO3)}, 14\ns_and_b32 {s(sT0)}, {s(sX)}, 1\ns_lshl_b32 {s(sT0)}, {s(sT0)}, 12\ns_add_u32 {s(sO3)}, {s(sO3)}, {s(sT0)}\ns_add_u32 {s(sO3)}, {s(sO3)}, {hex(XC)}')
        P(f's_lshl_b32 {s(sT1)}, {s(sJJ)}, 9\ns_add_u32 {s(sO3)}, {s(sO3)}, {s(sT1)}')
        if cfg.nearloc: P(f's_add_u32 {s(sO3)}, {s(sO3)}, {s(sNEAR)}')
        if cfg.par is not None:
            P(f's_lshr_b32 {s(sO2)}, {s(sJJ)}, 1\ns_lshl_b32 {s(sO2)}, {s(sO2)}, 9\ns_and_b32 {s(sT1)}, {s(sJJ)}, 1\ns_lshl_b32 {s(sT1)}, {s(sT1)}, 7\ns_add_u32 {s(sO2)}, {s(sO2)}, {s(sT1)}')
            P(f's_and_b32 {s(sT1)}, {s(sX)}, 1\ns_lshl_b32 {s(sT1)}, {s(sT1)}, 6\ns_add_u32 {s(sO2)}, {s(sO2)}, {s(sT1)}\ns_and_b32 {s(sT1)}, {s(sX)}, 2\ns_lshl_b32 {s(sT1)}, {s(sT1)}, 7\ns_add_u32 {s(sO2)}, {s(sO2)}, {s(sT1)}\ns_add_u32 {s(sO2)}, {s(sO2)}, {s(sNEAR)}\ns_add_u32 {s(sO2)}, {s(sO2)}, {hex(XD)}')
        if cfg.par is None:
            P(f's_lshr_b32 {s(sO2)}, {s(sJJ)}, 1\ns_lshl_b32 {s(sO2)}, {s(sO2)}, 10\ns_and_b32 {s(sT1)}, {s(sJJ)}, 1\ns_lshl_b32 {s(sT1)}, {s(sT1)}, 7\ns_add_u32 {s(sO2)}, {s(sO2)}, {s(sT1)}')
            P(f's_and_b32 {s(sT1)}, {s(sX)}, 1\ns_lshl_b32 {s(sT1)}, {s(sT1)}, 6\ns_add_u32 {s(sO2)}, {s(sO2)}, {s(sT1)}\ns_lshr_b32 {s(sT1)}, {s(sX)}, 1\ns_lshl_b32 {s(sT1)}, {s(sT1)}, 8\ns_add_u32 {s(sO2)}, {s(sO2)}, {s(sT1)}\ns_add_u32 {s(sO2)}, {s(sO2)}, {hex(XD)}')
        for k in range(3): P(f's_add_u32 {s(sD+k)}, {s(sO2)}, {hex(65536*k)}')
    def red_setup():
        P(f's_sub_u32 {s(sT0)}, {s(sKK)}, 8')
        P(f's_mov_b32 {s(sJJ)}, {s(sT0)}\ns_lshl_b32 {s(sR)}, {s(sX)}, 3\ns_add_u32 {s(sR)}, {s(sR)}, {s(sT0)}')
        if cfg.local:
            P(f's_lshl_b32 {s(sT1)}, {s(sX)}, 7\ns_add_u32 {s(sT1)}, {s(sT1)}, {hex(X0C)}\ns_add_u32 {s(sMASK)}, {s(sWSP)}, {s(sT1)}\ns_addc_u32 {s(sMASK+1)}, {s(sWSP+1)}, 0')
            P(f's_load_dwordx16 s[4:19], {s(sMASK,2)}, 0 glc\ns_load_dwordx16 s[20:35], {s(sMASK,2)}, 64 glc')
            P(f's_getreg_b32 {s(sLOC)}, hwreg(HW_REG_XCC_ID, 0, 3)\ns_lshl_b32 {s(sT1)}, {s(sTAG)}, 3\ns_or_b32 {s(sLOC)}, {s(sLOC)}, {s(sT1)}')
        P(f'v_lshlrev_b32 {v(vL16r)}, 4, {v(vL)}\nv_and_b32 {v(vU16)}, 3, {v(vL)}\nv_lshlrev_b32 {v(vU16)}, 4, {v(vU16)}')
        P(f'v_and_b32 {v(vT)}, 7, {v(vL)}\nv_lshlrev_b32 {v(vT)}, 4, {v(vT)}\nv_bfe_u32 {v(vT+1)}, {v(vL)}, 3, 1\nv_lshl_add_u32 {v(vT)}, {v(vT+1)}, 3, {v(vT)}\nv_bfe_u32 {v(vT+1)}, {v(vL)}, 4, 1\nv_lshl_add_u32 {v(vT)}, {v(vT+1)}, 2, {v(vT)}\nv_lshrrev_b32 {v(vT+1)}, 5, {v(vL)}\nv_lshl_add_u32 {v(vT+2)}, {v(vT+1)}, 1, {v(vT)}')
        P(f'v_bfe_u32 {v(vT)}, {v(vL)}, 4, 1\nv_lshlrev_b32 {v(vT)}, 7, {v(vT)}\nv_lshrrev_b32 {v(vT+1)}, 2, {v(vU16)}\nv_add_u32 {v(vBP)}, {v(vT)}, {v(vT+1)}\ns_lshl_b32 {s(sT1)}, {s(sX)}, 4\nv_add_u32 {v(vBP)}, {s(sT1)}, {v(vBP)}')
        vda()
        if cfg.local:
            P('s_waitcnt lgkmcnt(0)')
            P(f's_xor_b32 s4, s4, {s(sLOC)}')
            for k in range(5, 36): P(f's_xor_b32 {s(k)}, {s(k)}, {s(sLOC)}\ns_or_b32 s4, s4, {s(k)}')
            P(f's_cselect_b32 {s(sLOC)}, 0, 1')
            srd(SRD_WS, sWSP, WS_BYTES)
        srd(SRD_A, pX, 1024); srd(SRD_B, pOUT, 1024)
        P(f's_lshl_b32 {s(sT1)}, {s(sJJ)}, 7')
        P(f'buffer_load_ushort {v(vXv)}, {v(vT+2)}, {S(SRD_A)}, {s(sT1)} offen')
        P(f's_and_b32 {s(sT2)}, {s(sX)}, 1\ns_lshl_b32 {s(sT2)}, {s(sT2)}, 6\ns_add_u32 {s(sT1)}, {s(sT1)}, {s(sT2)}\ns_and_b32 {s(sT2)}, {s(sX)}, 2\ns_lshl_b32 {s(sT2)}, {s(sT2)}, 2\ns_add_u32 {s(sT1)}, {s(sT1)}, {s(sT2)}\ns_and_b32 {s(sT2)}, {s(sX)}, 4\ns_add_u32 {s(sG+2)}, {s(sT1)}, {s(sT2)}')
        if not X4NEAR:
            for p_ in range(4): P(f's_lshl_b32 {s(sP+p_)}, {s(sJJ)}, 11\ns_add_u32 {s(sP+p_)}, {s(sP+p_)}, {hex(X4 + p_*16384)}')
        for i in range(cfg.pipe.get('xd', 1)):
            for k in range(3): P(f'v_mov_b32 {v(192+12*i+8+k)}, {s(sTAG) if k == 2 else 0}')
    def x4_issue():
        for k in range(8): P(f'buffer_load_dwordx4 {v(vg+4*k,4)}, {v(vL16r)}, {S(SRD_WS)}, {s(sP + (k >> 1))} offen offset:{1024*(k & 1)} sc1')
    P('L_QKP:')
    vKR, vQ, vKB, vDQ, vS2, vE, vML = 8, 128, 144, 28, 208, 210, 216
    sM2 = sG
    P(f's_sub_u32 {s(sT2)}, {s(sW)}, 4\ns_lshl_b32 {s(sT0)}, {s(sT2)}, 3\ns_add_u32 {s(sT0)}, {s(sT0)}, {hex(L_FLAG)}\nv_mov_b32 {v(vT+2)}, {s(sT0)}')
    P(f'v_and_b32 {v(vT)}, 15, {v(vL)}\nv_lshrrev_b32 {v(vT+1)}, 4, {v(vL)}\nv_lshlrev_b32 {v(26)}, 4, {v(vT+1)}\nv_xor_b32 {v(vT+1)}, {v(vT+1)}, {v(vT)}\nv_lshlrev_b32 {v(vT+1)}, 4, {v(vT+1)}')
    if cfg.ksplit:
        P(f'v_and_b32 {v(vKR)}, 3, {v(vL)}\nv_lshlrev_b32 {v(vKR)}, 10, {v(vKR)}\nv_lshrrev_b32 {v(vT)}, 2, {v(vT)}\nv_lshl_add_u32 {v(vKR)}, {v(vT)}, 8, {v(vKR)}\nv_add_u32 {v(vKR)}, {v(vKR)}, {v(vT+1)}')
    else: P(f'v_lshl_add_u32 {v(vKR)}, {v(vT)}, 8, {v(vT+1)}')
    P(f's_lshl_b32 {s(sT0)}, {s(sT2)}, 15\nv_add_u32 {v(vKR)}, {s(sT0)}, {v(vKR)}')
    for q in range(1, 4): P(f'v_xor_b32 {v(vKR+q)}, {64*q}, {v(vKR)}')
    P(f'v_and_b32 {v(27)}, 7, {v(vL)}\nv_lshl_add_u32 {v(27)}, {v(27)}, 6, {v(26)}\nv_bfe_u32 {v(vT)}, {v(vL)}, 3, 1\nv_lshl_add_u32 {v(27)}, {v(vT)}, 3, {v(27)}')
    P(f's_lshl_b32 {s(sT0)}, {s(sT2)}, 9\ns_add_u32 {s(sT0)}, {s(sT0)}, {hex(L_P)}\nv_add_u32 {v(27)}, {s(sT0)}, {v(27)}\nv_add_u32 {v(26)}, {hex(L_Q)}, {v(26)}')
    P(f's_lshl_b32 {s(sT0)}, {s(sT2)}, 4\ns_add_u32 {s(sT0)}, {s(sT0)}, {hex(L_MS)}\nv_mov_b32 {v(25)}, {s(sT0)}\nv_mov_b32 {v(vML+2)}, 1\nv_mov_b32 {v(vML+3)}, 1')
    P(f's_mov_b32 {s(sMASK)}, 0x00010001\ns_mov_b32 {s(sMASK+1)}, 0x00010001\ns_mov_b32 {s(sM2)}, 0x01000100\ns_mov_b32 {s(sM2+1)}, 0x01000100')
    lds_wait('kq', vT+2, 2, 28, [28, 29], cfg.lsleep)
    stamp('C0_kready')
    for q in range(4): P(f'ds_read_b128 {v(vQ+4*q,4)}, {v(26)} offset:{64*q}')
    NB = 3; PD = NB - 1; NT = 8
    def kread(t, q): P(f'ds_read_b128 {v(vKB+16*(t % NB)+4*q,4)}, {v(vKR+q)} offset:{4096*t}')
    for t in range(PD):
        for q in range(4): kread(t, q)
    for t in range(NT + 1):
        u = t - 1
        for q in range(4):
            if t < NT:
                if q in (0, 2): P(f's_waitcnt lgkmcnt({min(4*PD - 2, 4*(NT - t) - 2 - q)})')
                mfma(vDQ + 4*(t & 1), vKB + 16*(t % NB) + 4*q, vQ + 4*q, first=(q == 0))
                if t + PD < NT: kread(t + PD, q)
            if t >= 1 and q >= 2:
                mk = sMASK if q == 2 else sM2
                for e in range(2):
                    P(f'v_cndmask_b32 {v(vS2+e)}, {v(vS2+e)}, {v(vDQ+4*(u & 1)+2*(q-2)+e)}, {s(mk,2)}')
        if t >= 1 and t < NT: P(f's_lshl_b64 {s(sMASK,2)}, {s(sMASK,2)}, 1\ns_lshl_b64 {s(sM2,2)}, {s(sM2,2)}, 1')
    stamp('C0_qk')
    P(f'v_cvt_pk_bf16_f32 {v(vE)}, {v(vS2)}, {v(vS2+1)}'); unpack(vS2, vS2+1, vE)
    for e in range(2): P(f'v_mul_f32 {v(vS2+e)}, {SCALE}, {v(vS2+e)}')
    P(f'v_cvt_pk_bf16_f32 {v(vE)}, {v(vS2)}, {v(vS2+1)}'); unpack(vS2, vS2+1, vE)
    P(f'v_max_f32 {v(vML)}, {v(vS2)}, {v(vS2+1)}')
    wave_reduce('v_max_f32', [vML])
    P(f'v_readlane_b32 {s(sT0)}, {v(vML)}, 63')
    for e in range(2): P(f'v_subrev_f32 {v(vE+e)}, {s(sT0)}, {v(vS2+e)}')
    for e in range(2): P(f'v_mul_f32 {v(vE+e)}, {LOG2E}, {v(vE+e)}')
    for e in range(2): P(f'v_exp_f32 {v(vE+e)}, {v(vE+e)}')
    P(f'v_add_f32 {v(vML+1)}, {v(vE)}, {v(vE+1)}')
    wave_reduce('v_add_f32', [vML+1])
    setexec(1 << 63)
    P(f'ds_write_b128 {v(25)}, {v(vML,4)}')
    setexec(ALL)
    P(f's_cmp_eq_u32 {s(sW)}, 4\ns_cbranch_scc1 L_C0ML')
    P(f's_cmp_eq_u32 {s(sW)}, 5\ns_cbranch_scc0 L_MLWAIT')
    if cfg.rwait == 4 or cfg.rearly:
        P(f's_sub_u32 {s(sT0)}, {s(sKK)}, 8\ns_cmp_lt_u32 {s(sT0)}, 8\ns_cbranch_scc0 L_NORED')
        red_setup()
        if cfg.rwait == 4: x4_issue()
        P('s_branch L_MLWAIT\nL_NORED:')
    P(f's_cmp_eq_u32 {s(sR)}, 99\ns_cbranch_scc0 L_MLWAIT')
    modtile_compute(0, sO2, X4NEAR)
    P('L_MLWAIT:')
    if cfg.mlpw:
        P(f's_cmp_eq_u32 {s(sW)}, 6\ns_cbranch_scc0 L_NOGL')
        P(f's_mov_b32 {s(sR)}, 0')
        if cfg.local:
            P(f's_lshl_b32 {s(sT0)}, {s(sX)}, 3\ns_lshr_b32 {s(sT1)}, {s(sKK)}, 2\ns_add_u32 {s(sT0)}, {s(sT0)}, {s(sT1)}\ns_lshl_b32 {s(sT0)}, {s(sT0)}, 7\ns_add_u32 {s(sT0)}, {s(sT0)}, {hex(X0B)}')
            P(f's_load_dwordx4 s[8:11], {s(sWSP,2)}, {s(sT0)} glc\ns_getreg_b32 {s(sT1)}, hwreg(HW_REG_XCC_ID, 0, 3)\ns_lshl_b32 {s(sT0)}, {s(sTAG)}, 3\ns_or_b32 {s(sT1)}, {s(sT1)}, {s(sT0)}\ns_waitcnt lgkmcnt(0)')
            P(f's_xor_b32 s8, s8, {s(sT1)}')
            for k in range(1, 4): P(f's_xor_b32 {s(8+k)}, {s(8+k)}, {s(sT1)}\ns_or_b32 s8, s8, {s(8+k)}')
            P(f's_cselect_b32 {s(sR)}, 0, 1')
        P('L_NOGL:')
    if cfg.par == 'dyn':
        P(f's_cmp_eq_u32 {s(sW)}, 7\ns_cbranch_scc0 L_NOPF')
        P(f's_lshl_b32 {s(sT0)}, {s(sX)}, 7\ns_add_u32 {s(sT0)}, {s(sT0)}, {hex(XP)}\ns_lshl_b32 {s(sT1)}, {s(sTAG)}, 1\ns_mov_b32 {s(sSPIN)}, 0')
        P(f'L_PFT:\ns_load_dword s8, {s(sWSP,2)}, {s(sT0)} glc\ns_add_u32 {s(sSPIN)}, {s(sSPIN)}, 1\ns_cmp_gt_u32 {s(sSPIN)}, {cfg.spin}\ns_cbranch_scc1 L_END\ns_waitcnt lgkmcnt(0)')
        P(f's_xor_b32 s9, s8, {s(sT1)}\ns_cmp_lt_u32 s9, 2\ns_cbranch_scc1 L_PFD\ns_sleep 8\ns_branch L_PFT\nL_PFD:')
        P(f's_or_b32 s9, s9, 2\nv_mov_b32 {v(vT)}, {hex(L_PAR)}\nv_mov_b32 {v(vT+1)}, s9\nds_write_b32 {v(vT)}, {v(vT+1)}')
        P('L_NOPF:')
    P(f'v_mov_b32 {v(vT+2)}, {hex(L_ML)}')
    lds_wait('mlw', vT+2, 4, vML, [vML+2], cfg.lsleep)
    P('s_branch L_PCALC')
    P('L_C0ML:')
    P(f'v_and_b32 {v(vT+2)}, 3, {v(vL)}\nv_lshlrev_b32 {v(vT+2)}, 4, {v(vT+2)}\nv_add_u32 {v(vT+2)}, {hex(L_MS)}, {v(vT+2)}')
    P(f's_lshl_b32 {s(sO1)}, {s(sH)}, 7\ns_add_u32 {s(sO1)}, {s(sO1)}, {hex(X3)}\ns_lshl_b32 {s(sO0)}, {s(sJ)}, 4\ns_add_u32 {s(sO0)}, {s(sO0)}, {s(sO1)}')
    lds_wait('msw', vT+2, 4, 220, [222])
    P(f'v_max_f32_dpp {v(vML)}, {v(220)}, {v(220)} quad_perm:[1,0,3,2] row_mask:0xf bank_mask:0xf\nv_mov_b32 {v(vML+2)}, {s(sTAG)}\nv_mov_b32 {v(vML+3)}, {s(sTAG)}')
    P(f'v_max_f32_dpp {v(vML)}, {v(vML)}, {v(vML)} quad_perm:[2,3,0,1] row_mask:0xf bank_mask:0xf')
    P(f'v_sub_f32 {v(220)}, {v(220)}, {v(vML)}\nv_mul_f32 {v(220)}, {LOG2E}, {v(220)}\nv_exp_f32 {v(220)}, {v(220)}\nv_mov_b32 {v(vT)}, 0\nv_mul_f32 {v(vML+1)}, {v(220)}, {v(221)}')
    for mod in ('quad_perm:[1,0,3,2]', 'quad_perm:[2,3,0,1]'): P(f'v_add_f32_dpp {v(vML+1)}, {v(vML+1)}, {v(vML+1)} {mod} row_mask:0xf bank_mask:0xf')
    if cfg.mlat:
        P(f'v_readfirstlane_b32 s4, {v(vML)}\nv_readfirstlane_b32 s5, {v(vML+1)}')
        P(f's_add_u32 {s(sMASK)}, {s(sWSP)}, {s(sO1)}\ns_addc_u32 {s(sMASK+1)}, {s(sWSP+1)}, 0\ns_lshl_b32 {s(sT0)}, {s(sJ)}, 3\ns_mov_b32 {s(sSPIN)}, 0')
        P(f's_atomic_add_x2 s[4:5], {s(sMASK,2)}, {s(sT0)}')
        stamp('C0_x3pub')
        gl = [4 + 2*k for k in range(8)]
        P('s_waitcnt lgkmcnt(0)')
        P('L_MLW:')
        if cfg.sleep3: P(f's_sleep {cfg.sleep3}')
        P(f's_load_dwordx16 s[4:19], {s(sMASK,2)}, 0 glc')
        P(f's_add_u32 {s(sSPIN)}, {s(sSPIN)}, 1\ns_cmp_gt_u32 {s(sSPIN)}, {cfg.spin}\ns_cbranch_scc1 L_END')
        P('s_waitcnt lgkmcnt(0)')
        P(f's_min_u32 {s(sT0)}, s5, s7')
        for g in gl[2:]: P(f's_min_u32 {s(sT0)}, {s(sT0)}, {s(g+1)}')
        P(f's_cmp_eq_u32 {s(sT0)}, 0\ns_cbranch_scc1 L_MLW')
    else:
        publish(vML, vT, sO0, 1)
        stamp('C0_x3pub')
        P(f's_add_u32 {s(sMASK)}, {s(sWSP)}, {s(sO1)}\ns_addc_u32 {s(sMASK+1)}, {s(sWSP+1)}, 0\ns_mov_b32 {s(sSPIN)}, 0')
        gl = [4 + 4*k for k in range(8)]
        P('L_MLW:')
        if cfg.sleep3: P(f's_sleep {cfg.sleep3}')
        P(f's_load_dwordx16 s[4:19], {s(sMASK,2)}, 0 glc\ns_load_dwordx16 s[20:35], {s(sMASK,2)}, 64 glc')
        P(f's_add_u32 {s(sSPIN)}, {s(sSPIN)}, 1\ns_cmp_gt_u32 {s(sSPIN)}, {cfg.spin}\ns_cbranch_scc1 L_END')
        P('s_waitcnt lgkmcnt(0)')
        P(f's_xor_b32 {s(sT0)}, {s(gl[0]+2)}, {s(sTAG)}')
        for g in gl[1:]: P(f's_xor_b32 {s(sT1)}, {s(g+2)}, {s(sTAG)}\ns_or_b32 {s(sT0)}, {s(sT0)}, {s(sT1)}')
        P('s_cbranch_scc1 L_MLW')
    stamp('C0_ml')
    vG8 = 220
    P(f'v_mov_b32 {v(vML)}, {s(gl[0])}')
    for g in gl[1:]: P(f'v_max_f32 {v(vML)}, {s(g)}, {v(vML)}')
    for k, g in enumerate(gl): P(f'v_sub_f32 {v(vG8+k)}, {s(g)}, {v(vML)}')
    for k in range(8): P(f'v_mul_f32 {v(vG8+k)}, {LOG2E}, {v(vG8+k)}')
    for k in range(8): P(f'v_exp_f32 {v(vG8+k)}, {v(vG8+k)}')
    P(f'v_mul_f32 {v(vE)}, {s(gl[0]+1)}, {v(vG8)}')
    for k, g in enumerate(gl[1:]): P(f'v_fmac_f32 {v(vE)}, {s(g+1)}, {v(vG8+k+1)}')
    P(f'v_rcp_f32 {v(vE+1)}, {v(vE)}\nv_mov_b32 {v(vT+2)}, {hex(L_ML)}\nv_mov_b32 {v(vML+2)}, 1')
    P(f'v_fma_f32 {v(vE)}, -{v(vE)}, {v(vE+1)}, 1.0\nv_fma_f32 {v(vML+1)}, {v(vE)}, {v(vE+1)}, {v(vE+1)}')
    setexec(1)
    P(f'ds_write_b128 {v(vT+2)}, {v(vML,4)}')
    setexec(ALL)
    P('L_PCALC:')
    for e in range(2): P(f'v_sub_f32 {v(vE+e)}, {v(vS2+e)}, {v(vML)}')
    for e in range(2): P(f'v_mul_f32 {v(vE+e)}, {LOG2E}, {v(vE+e)}')
    for e in range(2): P(f'v_exp_f32 {v(vE+e)}, {v(vE+e)}')
    for e in range(2): P(f'v_mul_f32 {v(vE+e)}, {v(vE+e)}, {v(vML+1)}')
    for e in range(2): P(f'v_cvt_pk_bf16_f32 {v(vE+e)}, {v(vE+e)}, {v(vE+e)}')
    P(f'ds_write_b64 {v(27)}, {v(vE,2)}')
    srd(SRD_WS, sWSP, WS_BYTES)
    P(f's_cmp_eq_u32 {s(sW)}, 4\ns_cbranch_scc1 L_C0B1')
    P('s_waitcnt lgkmcnt(0)')
    P('s_barrier')
    P(f's_cmp_eq_u32 {s(sW)}, 5\ns_cbranch_scc1 L_C1B1')
    P('s_branch L_C23B1')
    P('L_C0B1:')
    srd(SRD_A, pWO, 4 << 20)
    P(f'v_bfe_u32 {v(vT)}, {v(vL)}, 3, 1\nv_lshlrev_b32 {v(vT)}, 16, {v(vT)}\nv_bfe_u32 {v(vT+1)}, {v(vL)}, 4, 1\nv_lshl_add_u32 {v(vT)}, {v(vT+1)}, 12, {v(vT)}\nv_lshrrev_b32 {v(vT+1)}, 5, {v(vL)}\nv_lshl_add_u32 {v(vT)}, {v(vT+1)}, 11, {v(vT)}')
    P(f'v_and_b32 {v(vT+1)}, 7, {v(vL)}\nv_lshl_add_u32 {v(vWA)}, {v(vT+1)}, 4, {v(vT)}')
    P(f's_lshl_b32 {s(sO0)}, {s(sH)}, 17\ns_lshl_b32 {s(sT0)}, {s(sJ)}, 7\ns_add_u32 {s(sO0)}, {s(sO0)}, {s(sT0)}')
    P('s_waitcnt lgkmcnt(0)')
    stamp('C0_p')
    P('s_barrier')
    vWO = 64
    par_read(15)
    def wo_issue(sreg):
        for i in range(16):
            P(f'buffer_load_dwordx4 {v(vWO+4*i,4)}, {v(vWA)}, {S(SRD_A)}, {s(sreg)} offen offset:{1024*(i & 1)} {cfg.wpol}')
            if (i & 1) == 1 and i < 15: P(f's_add_u32 {s(sreg)}, {s(sreg)}, 8192')
    if not cfg.wob2: wo_issue(sO0)
    else: P(f's_mov_b32 {s(sG)}, {s(sO0)}')
    P(f'v_lshrrev_b32 {v(vT+2)}, 1, {v(vL16)}\nv_add_u32 {v(vT+2)}, {hex(L_OP)}, {v(vT+2)}')
    par_use(15)
    P(f's_lshl_b32 {s(sO1)}, {s(sH)}, 14\ns_add_u32 {s(sO1)}, {s(sO1)}, {hex(XA)}')
    if cfg.nearloc: P(f's_add_u32 {s(sO1)}, {s(sO1)}, {s(sNEAR)}')
    P(f's_lshl_b32 {s(sO0)}, {s(sJ)}, 10\ns_add_u32 {s(sO0)}, {s(sO0)}, {s(sO1)}\ns_add_u32 {s(sO2)}, {s(sO1)}, 4096')
    P(f's_lshl_b32 {s(sO3)}, {s(sJ)}, 5\ns_add_u32 {s(sO3)}, {s(sO3)}, {s(sH)}\ns_lshl_b32 {s(sO3)}, {s(sO3)}, 9\ns_add_u32 {s(sO3)}, {s(sO3)}, {hex(XB)}')
    P(f'v_mov_b32 {v(22)}, {s(sTAG)}')
    vAP, vDNA, vCA, vEA, vXBA = 8, 10, 11, 12, 13
    P(f'v_mov_b32 {v(14)}, {hex(L_FLAG + 160)}')
    if cfg.gwait:
        P(f'v_and_b32 {v(16)}, 31, {v(vL)}\nv_lshlrev_b32 {v(16)}, 2, {v(16)}\ns_lshl_b32 {s(sG)}, {s(sX)}, 7\ns_add_u32 {s(sG)}, {s(sG)}, {hex(XG)}')
    if cfg.par is None: P(f'v_bfe_u32 {v(vT)}, {v(vL)}, 3, 1\nv_lshl_add_u32 {v(vXBA)}, {v(vT)}, 17, {v(vPUB)}')
    else:
        P(f'v_bfe_u32 {v(vT)}, {v(vL)}, 3, 1\nv_xor_b32 {v(vT)}, {s(sPAR)}, {v(vT)}\nv_lshl_add_u32 {v(vXBA)}, {v(vT)}, 13, {v(vPUB)}')
        P(f's_lshl_b32 {s(sO3)}, {s(sJ)}, 1\ns_lshr_b32 {s(sT0)}, {s(sH)}, 4\ns_add_u32 {s(sO3)}, {s(sO3)}, {s(sT0)}\ns_lshl_b32 {s(sO3)}, {s(sO3)}, 14\ns_and_b32 {s(sT0)}, {s(sH)}, 15\ns_lshl_b32 {s(sT0)}, {s(sT0)}, 9\ns_add_u32 {s(sO3)}, {s(sO3)}, {s(sT0)}\ns_add_u32 {s(sO3)}, {s(sO3)}, {hex(XB2)}')
    sQ, sW2, sDN, sEP, sEG, sDP, sC0 = 4, 6, 8, 9, 10, 11, 12
    vDPA = 17
    def mlp_setup():
        P(f's_sub_u32 {s(sT0)}, {s(sKK)}, 8\ns_cmp_lt_u32 {s(sKK)}, 8\ns_cselect_b32 {s(sT1)}, {s(sKK)}, {s(sT0)}\ns_and_b32 {s(sQ)}, {s(sT1)}, 3\ns_lshr_b32 {s(sT1)}, {s(sT1)}, 2')
        P(f's_mul_i32 {s(sIM)}, {s(sX)}, 6\ns_add_u32 {s(sIM)}, {s(sIM)}, {s(sT1)}\ns_cmp_lt_u32 {s(sT0)}, 8\ns_cselect_b32 {s(sIM)}, 255, {s(sIM)}')
        srd(SRD_B, pW2, 1376*1024)
        P(f'v_lshrrev_b32 {v(vT)}, 3, {v(vL)}\nv_mul_u32_u24 {v(vT)}, {16*2752}, {v(vT)}\nv_and_b32 {v(vT+1)}, 3, {v(vL)}\nv_lshl_add_u32 {v(vT)}, {v(vT+1)}, 4, {v(vT)}')
        P(f's_mul_i32 {s(sT0)}, {s(sQ)}, {128*2752}\ns_min_u32 {s(sT1)}, {s(sIM)}, {NM-1}\ns_lshl_b32 {s(sT1)}, {s(sT1)}, 6\ns_add_u32 {s(sT0)}, {s(sT0)}, {s(sT1)}\nv_add_u32 {v(vT)}, {s(sT0)}, {v(vT)}')
        P(f's_mov_b32 {s(sMASK)}, 0xf0f0f0f0\ns_mov_b32 {s(sMASK+1)}, 0xf0f0f0f0\ns_mov_b32 {s(sW2)}, 2752*2\ns_mov_b32 {s(sW2+1)}, 0')
        P(f'v_mov_b32 {v(vAP)}, {s(pW1)}\nv_mov_b32 {v(vAP+1)}, {s(pW1+1)}\nv_mov_b32 {v(vT+1)}, {s(pW3)}\nv_mov_b32 {v(vCA)}, {s(pW3+1)}')
        P(f'v_cndmask_b32 {v(vAP)}, {v(vAP)}, {v(vT+1)}, {s(sMASK,2)}\nv_cndmask_b32 {v(vAP+1)}, {v(vAP+1)}, {v(vCA)}, {s(sMASK,2)}')
        P(f'v_add_co_u32 {v(vAP)}, vcc, {v(vAP)}, {v(vT)}\nv_addc_co_u32 {v(vAP+1)}, vcc, 0, {v(vAP+1)}, vcc')
        P(f'v_bfe_u32 {v(vT)}, {v(vL)}, 4, 1\nv_lshlrev_b32 {v(vDNA)}, 12, {v(vT)}\nv_lshrrev_b32 {v(vT)}, 5, {v(vL)}\nv_lshl_add_u32 {v(vDNA)}, {v(vT)}, 11, {v(vDNA)}\nv_and_b32 {v(vT)}, 15, {v(vL)}\nv_lshl_add_u32 {v(vDNA)}, {v(vT)}, 4, {v(vDNA)}')
        P(f's_lshl_b32 {s(sDN)}, {s(sIM)}, 15\ns_lshl_b32 {s(sT0)}, {s(sQ)}, 8\ns_add_u32 {s(sDN)}, {s(sDN)}, {s(sT0)}')
        P(f's_lshr_b32 {s(sEG)}, {s(sIM)}, 2\ns_lshl_b32 {s(sEG)}, {s(sEG)}, 14\ns_and_b32 {s(sT0)}, {s(sIM)}, 3\ns_lshl_b32 {s(sT0)}, {s(sT0)}, 11\ns_add_u32 {s(sEG)}, {s(sEG)}, {s(sT0)}\ns_add_u32 {s(sEG)}, {s(sEG)}, {hex(XE)}')
        if cfg.nearloc: P(f's_add_u32 {s(sEG)}, {s(sEG)}, {s(sNEAR)}')
        P(f's_lshl_b32 {s(sT0)}, {s(sQ)}, 9\ns_add_u32 {s(sEP)}, {s(sEG)}, {s(sT0)}')
        if cfg.par is None: P(f's_lshl_b32 {s(sDP)}, {s(sIM)}, 12\ns_lshl_b32 {s(sT0)}, {s(sQ)}, 10\ns_add_u32 {s(sDP)}, {s(sDP)}, {s(sT0)}\ns_add_u32 {s(sDP)}, {s(sDP)}, {hex(XD)}')
        else:
            P(f's_lshr_b32 {s(sDP)}, {s(sIM)}, 2\ns_lshl_b32 {s(sDP)}, {s(sDP)}, 14\ns_and_b32 {s(sT0)}, {s(sIM)}, 3\ns_lshl_b32 {s(sT0)}, {s(sT0)}, 11\ns_add_u32 {s(sDP)}, {s(sDP)}, {s(sT0)}\ns_lshl_b32 {s(sT0)}, {s(sQ)}, 9\ns_add_u32 {s(sDP)}, {s(sDP)}, {s(sT0)}\ns_add_u32 {s(sDP)}, {s(sDP)}, {hex(XD)}')
            P(f'v_and_b32 {v(vDPA)}, 31, {v(vL)}\nv_lshlrev_b32 {v(vDPA)}, 4, {v(vDPA)}\nv_lshrrev_b32 {v(vT)}, 5, {v(vL)}\nv_xor_b32 {v(vT)}, {s(sPAR)}, {v(vT)}\nv_lshl_add_u32 {v(vDPA)}, {v(vT)}, 13, {v(vDPA)}')
        P(f's_lshr_b32 {s(sT1)}, {s(sX)}, 1\ns_lshl_b32 {s(sT1)}, {s(sT1)}, 14\ns_and_b32 {s(sT0)}, {s(sX)}, 1\ns_lshl_b32 {s(sT0)}, {s(sT0)}, 12\ns_add_u32 {s(sT1)}, {s(sT1)}, {s(sT0)}\ns_add_u32 {s(sT1)}, {s(sT1)}, {hex(XC)}')
        if cfg.nearloc: P(f's_add_u32 {s(sT1)}, {s(sT1)}, {s(sNEAR)}')
        for k in range(4): P(f's_add_u32 {s(sT0)}, {s(sQ)}, {k}\ns_and_b32 {s(sT0)}, {s(sT0)}, 3\ns_lshl_b32 {s(sT0)}, {s(sT0)}, 10\ns_add_u32 {s(sC0+k)}, {s(sT0)}, {s(sT1)}')
        P(f'v_lshrrev_b32 {v(vT)}, 5, {v(vL)}\nv_lshlrev_b32 {v(vCA)}, 9, {v(vT)}\nv_bfe_u32 {v(vT)}, {v(vL)}, 1, 1\nv_lshl_add_u32 {v(vCA)}, {v(vT)}, 7, {v(vCA)}\nv_and_b32 {v(vT)}, 1, {v(vL)}\nv_lshl_add_u32 {v(vCA)}, {v(vT)}, 8, {v(vCA)}')
        P(f'v_bfe_u32 {v(vT)}, {v(vL)}, 2, 3\nv_lshl_add_u32 {v(vCA)}, {v(vT)}, 4, {v(vCA)}')
        P(f'v_bfe_u32 {v(vT)}, {v(vL)}, 3, 1\nv_lshlrev_b32 {v(vT)}, 9, {v(vT)}\nv_add_u32 {v(vEA)}, {v(vPUB)}, {v(vT)}')
    if not cfg.mlpw: mlp_setup()
    else: P(f'v_mov_b32 {v(16)}, {hex(L_FLAG + 168)}')
    P('s_barrier')
    stamp('C0_b2')
    for w in range(4): P(f'ds_read_b64 {v(24+2*w,2)}, {v(vT+2)} offset:{512*w}')
    P('s_waitcnt lgkmcnt(2)')
    for e in range(2): P(f'v_add_f32 {v(24+e)}, {v(24+e)}, {v(26+e)}')
    P('s_waitcnt lgkmcnt(0)')
    for e in range(2): P(f'v_add_f32 {v(28+e)}, {v(28+e)}, {v(30+e)}')
    for e in range(2): P(f'v_add_f32 {v(20+e)}, {v(24+e)}, {v(28+e)}')
    publish_loc(20, vL16, sO0)
    stamp('C0_xapub')
    if cfg.wob2 == 1: wo_issue(sG)
    if cfg.wofirst: P(f's_waitcnt vmcnt({cfg.wofirst - 1})')
    vOd = 40
    def issue(b):
        for k in range(0, 8, 2 if cfg.fakehalf & 2 else 1):
            P(f'buffer_load_dwordx4 {v(b+4*k,4)}, {v(vL16)}, {S(SRD_WS)}, {s(sO1 if k < 4 else sO2)} offen offset:{1024*(k & 3)} sc1')
    def done(b):
        for a, b2 in ((0, 1), (2, 3), (4, 5), (6, 7), (0, 2), (4, 6), (0, 4)):
            for e in (0, 1): P(f'v_add_f32 {v(b+4*a+e)}, {v(b+4*a+e)}, {v(b+4*b2+e)}')
        P(f'v_cvt_pk_bf16_f32 {v(vOd)}, {v(b)}, {v(b)}\nv_cvt_pk_bf16_f32 {v(vOd+1)}, {v(b+1)}, {v(b+1)}')
    poll('xa', issue, 8, 128, 32, [4*k+2 for k in range(0, 8, 2 if cfg.fakehalf & 2 else 1)], done)
    if cfg.mlpw: P(f'ds_write_b32 {v(16)}, {v(16)}')
    stamp('C0_xa')
    vGW, vGA2 = 15, 16
    def g_issue(): P(f'buffer_load_dword {v(vGW)}, {v(vGA2)}, {S(SRD_WS)}, {s(sG)} offen sc1')
    if cfg.gwait: g_issue()
    lohi(vOd)
    chain(vD0, 16, [vWO+4*i for i in range(16)], lohi_srcs(vOd), vAA)
    finish2(vD0)
    if cfg.par is not None:
        for e in range(2): P(f'v_mov_b32_dpp {v(vD0+e)}, {v(vD0+e)} row_ror:8 row_mask:0xf bank_mask:0xc')
        publish(vD0, vXBA, sO3)
    elif cfg.xbrep:
        for e in range(2): P(f'v_mov_b32_dpp {v(vD0+e)}, {v(vD0+e)} row_ror:8 row_mask:0xf bank_mask:0xc')
        for i in range(4):
            P(f'buffer_store_dwordx4 {v(vD0,4)}, {v(vXBA)}, {S(SRD_WS)}, {s(sO3)} offen sc1')
            if i < 3: P(f's_add_u32 {s(sO3)}, {s(sO3)}, 0x40000')
    else: publish(vD0, vPUB, sO3, M2SET)
    if cfg.rwait and cfg.rwait < 4: P(f'ds_write_b32 {v(14)}, {v(14)}')
    stamp('C0_xbpub')
    def mlp_body():
        vUP, vDN, vCG, vEG = 128, 192, 64, 80
        if cfg.gwait:
            P(f's_mov_b32 {s(sSPIN)}, 0\ns_waitcnt vmcnt({4 if cfg.xbrep else 1})\ns_branch L_GCHK\nL_GTOP:')
            g_issue()
            P(f's_add_u32 {s(sSPIN)}, {s(sSPIN)}, 1\ns_cmp_gt_u32 {s(sSPIN)}, {cfg.spin}\ns_cbranch_scc1 L_END\ns_waitcnt vmcnt(0)\nL_GCHK:')
            P(f'v_cmp_eq_u32 vcc, {s(sTAG)}, {v(vGW)}\ns_bcnt1_i32_b64 {s(sT0)}, vcc\ns_cmp_lt_u32 {s(sT0)}, {2*cfg.gthr}\ns_cbranch_scc1 L_GTOP')
        for i in range(16):
            P(f'global_load_dwordx4 {v(vUP+4*i,4)}, {v(vAP,2)}, off offset:{2752*(i & 1)} {cfg.uppol}')
            if i & 1 and i < 15: P(f'v_lshl_add_u64 {v(vAP,2)}, {v(vAP,2)}, 0, {s(sW2,2)}')
        def dn_issue():
            for i in range(8):
                P(f'buffer_load_dwordx4 {v(vDN+4*i,4)}, {v(vDNA)}, {S(SRD_B)}, {s(sDN)} offen offset:{1024*(i & 1)} {cfg.wpol}')
                if i & 1 and i < 7: P(f's_add_u32 {s(sDN)}, {s(sDN)}, 8192')
        if cfg.mlpw:
            P(f'v_mov_b32 {v(vT+2)}, {hex(L_FLAG + 160)}')
            lds_wait('fb', vT+2, 1, 28, [28])
        if not cfg.dnlate: dn_issue()
        if cfg.wfirst: P('s_waitcnt vmcnt(0)')
        if cfg.diag and 'M_w' in cfg.diag:
            P('s_waitcnt vmcnt(0)'); stamp('M_w')
        vx, vcb, vsb = 88, 24, 26
        def issue(b):
            for k in range(4): P(f'buffer_load_dwordx4 {v(b+4*k,4)}, {v(vCA)}, {S(SRD_WS)}, {s(sC0+k)} offen sc1')
        def done(b):
            for k in range(4): unpack(vx+2*k, vx+2*k+1, b+4*k)
            unpack(vcb, vcb+1, b+1); unpack(vsb, vsb+1, b+2)
        if cfg.dnlate == 3:
            issue(64); dn_issue()
            P('s_waitcnt vmcnt(8)')
            tr = [64+4*k+3 for k in range(4)]
            P(f'v_xor_b32 {v(vT)}, {s(sTAG)}, {v(tr[0])}\nv_xor_b32 {v(vT+1)}, {s(sTAG)}, {v(tr[1])}')
            for k, r in enumerate(tr[2:]): P(f'v_bitop3_b32 {v(vT + k)}, {v(r)}, {s(sTAG)}, {v(vT + k)} bitop3:{TAGX}')
            P(f'v_or_b32 {v(vT)}, {v(vT)}, {v(vT+1)}\nv_cmp_ne_u32 vcc, 0, {v(vT)}\ns_cbranch_vccz L_XCOK')
            poll('xc', issue, 4, 64, 16, tr and [4*k+3 for k in range(4)], lambda b: None)
            P('L_XCOK:')
            done(64)
        else:
            poll('xc', issue, 4, 64 if cfg.pipe.get('xc', 1) == 1 else 104, 16 if cfg.pipe.get('xc', 1) != 2 else -40, [4*k+3 for k in range(4)], done)
        stamp('M_xc')
        if cfg.dnlate == 1: dn_issue()
        P(f'v_readfirstlane_b32 {s(sT0)}, {v(vx)}')
        for k in range(8): P(f'v_subrev_f32 {v(96+k)}, {s(sT0)}, {v(vx+k)}')
        P(f'v_pk_add_f32 {v(20,2)}, {v(96,2)}, {v(98,2)}\nv_pk_add_f32 {v(22,2)}, {v(100,2)}, {v(102,2)}\nv_pk_mul_f32 {v(28,2)}, {v(96,2)}, {v(96,2)}\nv_pk_mul_f32 {v(30,2)}, {v(100,2)}, {v(100,2)}')
        P(f'v_pk_add_f32 {v(20,2)}, {v(20,2)}, {v(22,2)}\nv_pk_fma_f32 {v(28,2)}, {v(98,2)}, {v(98,2)}, {v(28,2)}\nv_pk_fma_f32 {v(30,2)}, {v(102,2)}, {v(102,2)}, {v(30,2)}')
        P(f'v_add_f32 {v(22)}, {v(20)}, {v(21)}\nv_pk_add_f32 {v(28,2)}, {v(28,2)}, {v(30,2)}\nv_add_f32 {v(23)}, {v(28)}, {v(29)}')
        for mod in ('quad_perm:[1,0,3,2]', 'quad_perm:[2,3,0,1]', 'row_ror:4', 'row_ror:8'):
            for r in (22, 23): P(f'v_add_f32_dpp {v(r)}, {v(r)}, {v(r)} {mod} row_mask:0xf bank_mask:0xf')
        P(f'v_permlane16_swap_b32 {v(22)}, {v(23)}\nv_add_f32 {v(22)}, {v(22)}, {v(23)}\nv_mov_b32 {v(23)}, {v(22)}')
        P(f'v_permlane32_swap_b32 {v(22)}, {v(23)}\nv_add_f32 {v(22)}, {v(22)}, {v(23)}\nv_mul_f32 {v(22)}, {R512}, {v(22)}')
        P(f'v_readlane_b32 {s(sT1)}, {v(22)}, 0\nv_readlane_b32 {s(sT2)}, {v(22)}, 16')
        P(f'v_mov_b32 {v(22)}, {s(sT1)}\nv_mov_b32 {v(23)}, {s(sT2)}')
        P(f'v_fma_f32 {v(23)}, -{v(22)}, {v(22)}, {v(23)}\nv_add_f32 {v(22)}, {s(sT0)}, {v(22)}\nv_max_f32 {v(23)}, 0, {v(23)}')
        P(f'v_cvt_pk_bf16_f32 {v(22)}, {v(22)}, {v(23)}')
        P(f'v_and_b32 {v(23)}, 0xffff0000, {v(22)}\nv_lshlrev_b32 {v(22)}, 16, {v(22)}\nv_add_f32 {v(23)}, {EPS}, {v(23)}')
        P(f'v_sub_f32 {v(20)}, {v(vx)}, {v(22)}\nv_sub_f32 {v(21)}, {v(vx+1)}, {v(22)}')
        P(f'v_cvt_pk_bf16_f32 {v(23)}, {v(23)}, {v(23)}\nv_cvt_pk_bf16_f32 {v(20)}, {v(20)}, {v(21)}\nv_and_b32 {v(23)}, 0xffff0000, {v(23)}\nv_sqrt_f32 {v(23)}, {v(23)}')
        unpack(vx, vx+1, 20)
        P(f'v_cvt_pk_bf16_f32 {v(23)}, {v(23)}, {v(23)}\nv_and_b32 {v(23)}, 0xffff0000, {v(23)}\nv_rcp_f32 {v(22)}, {v(23)}')
        P(f'v_mul_f32 {v(20)}, {v(vx)}, {v(22)}\nv_mul_f32 {v(21)}, {v(vx+1)}, {v(22)}')
        P(f'v_fma_f32 {v(vx)}, -{v(20)}, {v(23)}, {v(vx)}\nv_fma_f32 {v(vx+1)}, -{v(21)}, {v(23)}, {v(vx+1)}')
        P(f'v_fma_f32 {v(20)}, {v(vx)}, {v(22)}, {v(20)}\nv_fma_f32 {v(21)}, {v(vx+1)}, {v(22)}, {v(21)}')
        P(f'v_cvt_pk_bf16_f32 {v(20)}, {v(20)}, {v(21)}')
        unpack(vx, vx+1, 20)
        P(f'v_mul_f32 {v(vx)}, {v(vx)}, {v(vcb)}\nv_mul_f32 {v(vx+1)}, {v(vx+1)}, {v(vcb+1)}\nv_cvt_pk_bf16_f32 {v(20)}, {v(vx)}, {v(vx+1)}')
        unpack(vx, vx+1, 20)
        P(f'v_add_f32 {v(vx)}, {v(vx)}, {v(vsb)}\nv_add_f32 {v(vx+1)}, {v(vx+1)}, {v(vsb+1)}')
        P(f'v_cvt_pk_bf16_f32 {v(vOd)}, {v(vx)}, {v(vx)}\nv_cvt_pk_bf16_f32 {v(vOd+1)}, {v(vx+1)}, {v(vx+1)}')
        lohi(vOd)
        stamp('M_h2')
        if cfg.dnlate == 2: dn_issue()
        chain(vD0, 16, [vUP+4*i for i in range(16)], lohi_srcs(vOd), vAA)
        finish2(vD0)
        publish_loc(vD0, vPUB, sEP, M2SET, sR)
        stamp('M_up')
        def issue(b):
            for k in range(2): P(f'buffer_load_dwordx4 {v(b+4*k,4)}, {v(vEA)}, {S(SRD_WS)}, {s(sEG)} offen offset:{1024*k} sc1')
        def done(b):
            for e in range(2): P(f'v_add_f32 {v(20+e)}, {v(b+e)}, {v(b+4+e)}')
        poll('xe', issue, 2, 128, 8, [2, 6], done)
        stamp('M_xe')
        for e in range(2): P(f'v_add_f32_dpp {v(20+e)}, {v(20+e)}, {v(20+e)} row_ror:8 row_mask:0xf bank_mask:0xf')
        P(f'v_cvt_pk_bf16_f32 {v(22)}, {v(20)}, {v(21)}')
        unpack(20, 21, 22)
        P(f'v_mov_b32_dpp {v(24)}, {v(22)} row_shl:4 row_mask:0xf bank_mask:0xf')
        silu_multi([20, 21], [22, 23])
        unpack(26, 27, 24)
        P(f'v_cvt_pk_bf16_f32 {v(22)}, {v(20)}, {v(21)}')
        unpack(20, 21, 22)
        P(f'v_mul_f32 {v(20)}, {v(20)}, {v(26)}\nv_mul_f32 {v(21)}, {v(21)}, {v(27)}')
        for e in range(2): P(f'v_cvt_pk_bf16_f32 {v(20+e)}, {v(20+e)}, {v(20+e)}')
        stamp('M_act')
        chain(vD0, 8, [vDN+4*i for i in range(8)], [(20 + (i & 1), f'row_newbcast:{i >> 1}') for i in range(8)], vAA)
        finish1(vD0)
        publish(vD0, vL16 if cfg.par is None else vDPA, sDP)
        stamp('M_end')
        P('s_branch L_END')
    if cfg.mlpw:
        assert cfg.rwait == 1
        P('s_branch L_END')
    else:
        if cfg.rwait == 4:
            P(f's_cmp_lt_u32 {s(sIM)}, {NM}\ns_cbranch_scc1 L_MLP')
            if cfg.ackw: P('s_waitcnt vmcnt(0)')
            P(f'ds_write_b32 {v(14)}, {v(14)}')
            P('s_branch L_END\nL_MLP:')
        else: P(f's_cmp_lt_u32 {s(sIM)}, {NM}\ns_cbranch_scc0 L_END')
        mlp_body()

    P('L_C123:')
    common_setup()
    P(f's_cmp_eq_u32 {s(sW)}, 5\ns_cbranch_scc1 L_C1')
    P(f's_cmp_eq_u32 {s(sW)}, 6\ns_cbranch_scc0 L_C3')
    P(f's_getpc_b64 {s(20,2)}')
    P('L_PCREF:')
    P(f's_sub_u32 s20, s20, L_PCREF-{NAME}_kernel\ns_subb_u32 s21, s21, 0')
    P(f's_lshl_b32 {s(sT0)}, {s(sKK)}, 3\nv_and_b32 {v(vT)}, 7, {v(vL)}\nv_add_u32 {v(vT)}, {s(sT0)}, {v(vT)}\nv_lshlrev_b32 {v(vT)}, 7, {v(vT)}')
    P(f'v_min_u32 {v(vT)}, L_CODE_END-{NAME}_kernel-4, {v(vT)}')
    if cfg.cpf: P(f'global_load_dword {v(240)}, {v(vT)}, s[20:21]')
    P('L_C3:')
    if cfg.par == 'dyn':
        P(f's_cmp_eq_u32 {s(sW)}, 7\ns_cbranch_scc0 L_NOPM\ns_cmp_eq_u32 {s(sB)}, 0\ns_cbranch_scc0 L_NOPM')
        P(f's_waitcnt lgkmcnt(0)\ns_mov_b32 s8, -1\ns_mov_b32 s9, -1')
        for i in range(2*cfg.nsamp):
            P(f's_mov_b32 s15, {hex(XPR + 8192*(i & 1) + 128*(i >> 1))}\ns_memtime s[10:11]\ns_waitcnt lgkmcnt(0)\ns_load_dword s14, {s(sWSP,2)}, s15 glc\ns_waitcnt lgkmcnt(0)\ns_memtime s[12:13]\ns_waitcnt lgkmcnt(0)')
            P(f's_sub_u32 s12, s12, s10\ns_min_u32 {s(8 + (i & 1))}, {s(8 + (i & 1))}, s12')
        P(f's_cmp_lt_u32 s9, s8\ns_cselect_b32 s8, 1, 0\ns_getreg_b32 s9, hwreg(HW_REG_XCC_ID, 2, 1)\ns_xor_b32 s8, s8, s9')
        P(f's_add_u32 s9, {s(sTAG)}, 1\ns_lshl_b32 s9, s9, 1\ns_or_b32 s8, s8, s9\nv_mov_b32 {v(vT+1)}, s8\nv_lshlrev_b32 {v(vT)}, 7, {v(vL)}\ns_mov_b32 s8, {hex(XP)}')
        setexec(0xff)
        P(f'buffer_store_dword {v(vT+1)}, {v(vT)}, {S(SRD_WS)}, s8 offen sc1')
        setexec(ALL)
        P('L_NOPM:')
    if cfg.tlbw:
        P(f's_cmp_eq_u32 {s(sW)}, 7\ns_cbranch_scc0 L_NOTLB')
        P(f'v_mov_b32 {v(vT)}, 0')
        setexec(1)
        for k, (ptr, nb) in enumerate(((pWO, 4 << 20), (pW1, 512*2752), (pW3, 512*2752), (pW2, 1376*1024), (pOUT, 1024))):
            srd(SRD_A, ptr, nb)
            P(f'buffer_load_dword {v(241+k)}, {v(vT)}, {S(SRD_A)}, 0 offen')
            if nb > (2 << 20):
                P(f's_mov_b32 {s(sT0)}, {hex(nb - 128)}\nbuffer_load_dword {v(247)}, {v(vT)}, {S(SRD_A)}, {s(sT0)} offen')
        for k, off in enumerate((XA, XE, XB, XB + 0xf0000)):
            P(f's_mov_b32 {s(sT0)}, {hex(off)}\nbuffer_load_dword {v(248+k)}, {v(vT)}, {S(SRD_WS)}, {s(sT0)} offen sc1')
        setexec(ALL)
        P('L_NOTLB:')
    P('s_waitcnt lgkmcnt(0)')
    P(f's_add_u32 {s(sTAG)}, {s(sTAG)}, 1')
    P('s_branch L_QKP')
    P('L_C23B1:')
    if cfg.mlpw:
        P(f's_cmp_eq_u32 {s(sW)}, 6\ns_cbranch_scc0 L_C3B2')
        par_read(15); par_use(15)
        mlp_setup()
        P('s_barrier')
        P(f's_cmp_lt_u32 {s(sIM)}, {NM}\ns_cbranch_scc0 L_END')
        P(f'v_mov_b32 {v(vT+2)}, {hex(L_FLAG + 168)}')
        lds_wait('fa', vT+2, 1, 28, [28])
        mlp_body()
        P('L_C3B2:')
    if cfg.gwait:
        P(f'v_lshlrev_b32 {v(vT)}, 7, {v(vL)}\nv_mov_b32 {v(vT+1)}, {s(sTAG)}\ns_lshl_b32 {s(sT0)}, {s(sH)}, 2\ns_add_u32 {s(sT0)}, {s(sT0)}, {hex(XG)}')
    P('s_barrier')
    if cfg.gwait:
        P(f's_cmp_eq_u32 {s(sW)}, 6\ns_cbranch_scc0 L_END\ns_cmp_eq_u32 {s(sJ)}, 0\ns_cbranch_scc0 L_END')
        setexec(0xff)
        P(f'buffer_store_dword {v(vT+1)}, {v(vT)}, {S(SRD_WS)}, {s(sT0)} offen sc1')
    P('s_branch L_END')

    P('L_C1:')
    P('s_waitcnt lgkmcnt(0)')
    P(f's_add_u32 {s(sTAG)}, {s(sTAG)}, 1')
    if cfg.tearly == 3: P(f's_mov_b32 {s(sR)}, 0\ns_bitcmp1_b32 {s(sX)}, 0\ns_cbranch_scc1 L_QKP')
    elif cfg.tearly: P(f's_mov_b32 {s(sR)}, 0\ns_cmp_ge_u32 {s(sX)}, 4\ns_cbranch_scc1 L_QKP')
    else: P(f's_mov_b32 {s(sR)}, 0\ns_sub_u32 {s(sT0)}, {s(sKK)}, 8\ns_cmp_lt_u32 {s(sT0)}, 16\ns_cbranch_scc1 L_QKP')
    if not cfg.t2early:
        P(f'v_mov_b32 {v(vT+2)}, {hex(L_FLAG + 8)}')
        lds_wait('k1', vT+2, 1, 28, [28], 8)
    elif cfg.t2early > 1: P(f's_sleep {cfg.t2early}')
    if cfg.tearly == 3:
        P(f's_lshl_b32 {s(sT0)}, {s(sKK)}, 2\ns_lshr_b32 {s(sT1)}, {s(sX)}, 1\ns_add_u32 {s(sT0)}, {s(sT0)}, {s(sT1)}\ns_and_b32 {s(sT1)}, {s(sT0)}, 31\ns_lshr_b32 {s(sT0)}, {s(sT0)}, 5')
    elif cfg.tearly:
        P(f's_lshl_b32 {s(sT0)}, {s(sKK)}, 2\ns_add_u32 {s(sT0)}, {s(sT0)}, {s(sX)}\ns_and_b32 {s(sT1)}, {s(sT0)}, 31\ns_lshr_b32 {s(sT0)}, {s(sT0)}, 5')
    else:
        P(f's_and_b32 {s(sT0)}, {s(sKK)}, 7\ns_lshr_b32 {s(sT1)}, {s(sKK)}, 4\ns_lshl_b32 {s(sT1)}, {s(sT1)}, 3\ns_add_u32 {s(sT0)}, {s(sT0)}, {s(sT1)}')
        P(f's_lshl_b32 {s(sT0)}, {s(sT0)}, 3\ns_add_u32 {s(sT0)}, {s(sT0)}, {s(sX)}\ns_and_b32 {s(sT1)}, {s(sT0)}, 31\ns_lshr_b32 {s(sT0)}, {s(sT0)}, 5')
    if X4NEAR:
        P(f's_and_b32 {s(sO2)}, {s(sT1)}, 3\ns_lshl_b32 {s(sO2)}, {s(sO2)}, 2\ns_add_u32 {s(sO2)}, {s(sO2)}, {s(sT0)}\ns_lshl_b32 {s(sO2)}, {s(sO2)}, 9\ns_lshr_b32 {s(sT2)}, {s(sT1)}, 2\ns_lshl_b32 {s(sT2)}, {s(sT2)}, 14\ns_add_u32 {s(sO2)}, {s(sO2)}, {s(sT2)}\ns_add_u32 {s(sO2)}, {s(sO2)}, {hex(X4N)}')
    else:
        P(f's_lshl_b32 {s(sO2)}, {s(sT1)}, 2\ns_add_u32 {s(sO2)}, {s(sO2)}, {s(sT0)}\ns_lshl_b32 {s(sO2)}, {s(sO2)}, 9\ns_add_u32 {s(sO2)}, {s(sO2)}, {hex(X4)}')
    P(f's_lshl_b32 {s(sT1)}, {s(sT1)}, 7\ns_add_u32 {s(sT1)}, {s(sT1)}, 2048')
    modtile_issue(sT0, sT1)
    if cfg.t2early:
        modtile_compute(0, sO2)
        P('s_branch L_QKP')
    else: P(f's_mov_b32 {s(sR)}, 99\ns_branch L_QKP')
    P('L_C1B1:')
    P(f's_sub_u32 {s(sT0)}, {s(sKK)}, 8\ns_cmp_lt_u32 {s(sT0)}, 8\ns_cbranch_scc1 L_RED')
    P('s_barrier')
    P('s_branch L_END')
    P('L_RED:')
    if cfg.rwait != 4 and not cfg.rearly: red_setup()
    else:
        srd(SRD_B, pOUT, 1024)
        P(f'v_lshlrev_b32 {v(vL16r)}, 4, {v(vL)}\nv_and_b32 {v(vU16)}, 3, {v(vL)}\nv_lshlrev_b32 {v(vU16)}, 4, {v(vU16)}')
        vda()
    red_addr()
    def xb_issue(b):
        for k in range(0, 16, 2 if cfg.fakehalf & 1 else 1): P(f'buffer_load_dwordx4 {v(b+4*k,4)}, {v(vL16r)}, {S(SRD_WS)}, {s(sB4 + (k >> 2))} offen offset:{1024*(k & 3)} sc1')
    issue = x4_issue
    def rw(name):
        P(f'v_mov_b32 {v(vT+2)}, {hex(L_FLAG + 160)}')
        lds_wait(name, vT+2, 1, 28, [28], cfg.lsleep)
    if cfg.rwait >= 3:
        if cfg.rwait == 3: issue()
        P('s_barrier')
        stamp('R_b2')
        P(f's_mov_b32 {s(sT2)}, 0\ns_branch L_X4CHK\nL_X4RETRY:')
        rw('rw0')
        issue()
        P(f's_add_u32 {s(sT2)}, {s(sT2)}, 1\ns_cmp_gt_u32 {s(sT2)}, {cfg.spin}\ns_cbranch_scc1 L_END\nL_X4CHK:')
        P('s_waitcnt vmcnt(0)')
        tr = [vg+4*k+2 for k in range(8)]
        P(f'v_xor_b32 {v(vT)}, {s(sTAG)}, {v(tr[0])}\nv_xor_b32 {v(vT+1)}, {s(sTAG)}, {v(tr[1])}')
        for k, r in enumerate(tr[2:]): P(f'v_bitop3_b32 {v(vT + (k & 1))}, {v(r)}, {s(sTAG)}, {v(vT + (k & 1))} bitop3:{TAGX}')
        P(f'v_or_b32 {v(vT)}, {v(vT)}, {v(vT+1)}\nv_cmp_ne_u32 vcc, 0, {v(vT)}\ns_cbranch_vccnz L_X4RETRY')
    else:
        P('s_barrier')
        stamp('R_b2')
        if cfg.rwait: rw('rw')
        tagcheck_loop(issue, [vg+4*k+2 for k in range(8)], 'x4', after=(lambda: xb_issue(128)) if cfg.rwait == 2 else None, nafter=16)
    for p_ in range(4):
        for e in range(2): P(f'v_add_f32 {v(vg+8*p_+e)}, {v(vg+8*p_+e)}, {v(vg+8*p_+4+e)}')
    for p_ in range(4): P(f'v_permlane32_swap_b32 {v(vg+8*p_)}, {v(vg+8*p_+1)}')
    for p_ in range(4): P(f'v_add_f32 {v(vg+8*p_)}, {v(vg+8*p_)}, {v(vg+8*p_+1)}')
    for p_ in range(4): rnd(vg+8*p_)
    P(f'v_mov_b32 {v(vGAv)}, {v(vg)}\nv_add_f32 {v(vg+16)}, 1.0, {v(vg+16)}\nv_mov_b32 {v(vg+9)}, {v(vg+8)}\nv_mov_b32 {v(vg+17)}, {v(vg+16)}')
    P(f'ds_bpermute_b32 {v(vGBv)}, {v(vBP)}, {v(vg+24)}')
    P(f'v_permlane32_swap_b32 {v(vg+8)}, {v(vg+9)}\nv_permlane32_swap_b32 {v(vg+16)}, {v(vg+17)}')
    P(f'v_cvt_pk_bf16_f32 {v(vXC+2)}, {v(vg+8)}, {v(vg+9)}\nv_cvt_pk_bf16_f32 {v(vXC+1)}, {v(vg+16)}, {v(vg+17)}\nv_mov_b32 {v(vXC+3)}, {s(sTAG)}\nv_lshlrev_b32 {v(vXv)}, 16, {v(vXv)}')
    stamp('R_x4')
    if cfg.rwait >= 3: rw('rw1')
    def done(b):
        st = 1
        while st < 16:
            for a in range(0, 16, 2*st):
                for e in range(2): P(f'v_add_f32 {v(b+4*a+e)}, {v(b+4*a+e)}, {v(b+4*(a+st)+e)}')
            st *= 2
    if cfg.rsleep: P(f's_sleep {cfg.rsleep}')
    if cfg.xbgrp:
        n = 16 // cfg.xbgrp
        def mk(g):
            def issue():
                for k in range(g*n, g*n + n): P(f'buffer_load_dwordx4 {v(128+4*k,4)}, {v(vL16r)}, {S(SRD_WS)}, {s(sB4 + (k >> 2))} offen offset:{1024*(k & 3)} sc1')
            return (issue, [128+4*k+2 for k in range(g*n, g*n + n)])
        poll_groups('xb', [mk(g) for g in range(cfg.xbgrp)])
        done(128)
    else: poll('xb', xb_issue, 16, 128, 64, [4*k+2 for k in range(0, 16, 2 if cfg.fakehalf & 1 else 1)], done, issued=(cfg.rwait == 2))
    stamp('R_xb')
    P(f'v_permlane32_swap_b32 {v(128)}, {v(129)}\nv_add_f32 {v(vg)}, {v(128)}, {v(129)}')
    rnd(vg)
    P(f'v_mul_f32 {v(vg)}, {v(vg)}, {v(vGAv)}'); rnd(vg)
    P(f'v_add_f32 {v(vg)}, {v(vg)}, {v(vXv)}\nv_mov_b32 {v(vg+1)}, {v(vg)}')
    P(f'v_permlane32_swap_b32 {v(vg)}, {v(vg+1)}')
    P(f'v_cvt_pk_bf16_f32 {v(vXC)}, {v(vg)}, {v(vg+1)}')
    if cfg.xcmode == 1: publish(vXC, vL16r, sO3, 0xffffffff)
    elif cfg.xcmode == 2:
        setexec(0xffffffff); P(f'buffer_store_dwordx4 {v(vXC,4)}, {v(vL16r)}, {S(SRD_WS)}, {s(sO3)} offen'); setexec(ALL)
    else: publish_loc(vXC, vL16r, sO3, 0xffffffff)
    stamp('R_xcpub')
    if cfg.epearly:
        P(f's_cmp_eq_u32 {s(sR)}, 0\ns_cbranch_scc0 L_NOEP')
        setexec(1)
        P(f'v_mov_b32 {v(vT)}, 0\nv_mov_b32 {v(vT+1)}, {s(sTAG)}')
        P(f'buffer_store_dword {v(vT+1)}, {v(vT)}, {S(SRD_WS)}, 0 offen sc1')
        setexec(ALL)
        P('L_NOEP:')
    P(f'v_lshrrev_b32 {v(vT+2)}, 1, {v(vL)}\nv_and_b32 {v(vT+2)}, 16, {v(vT+2)}\nv_lshrrev_b32 {v(vXv)}, {v(vT+2)}, {v(vXC)}\nv_lshlrev_b32 {v(vXv)}, 16, {v(vXv)}')
    P(f'ds_bpermute_b32 {v(vXv)}, {v(vBP)}, {v(vXv)}')
    def colsum():
        P(f'v_permlane16_swap_b32 {v(vg)}, {v(vg+1)}')
        P(f'v_add_f32 {v(vg)}, {v(vg)}, {v(vg+1)}')
        P(f'v_add_f32_dpp {v(vg)}, {v(vg)}, {v(vg)} row_ror:4 row_mask:0xf bank_mask:0xf')
        P(f'v_add_f32_dpp {v(vg)}, {v(vg)}, {v(vg)} row_ror:8 row_mask:0xf bank_mask:0xf')
        P(f'v_mov_b32 {v(vg+1)}, {v(vg)}')
        P(f'v_permlane32_swap_b32 {v(vg)}, {v(vg+1)}')
        P(f'v_add_f32 {v(vg)}, {v(vg)}, {v(vg+1)}')
    P('s_waitcnt lgkmcnt(0)')
    def issue(b):
        for k in range(2): P(f'buffer_load_dwordx4 {v(b+4*k,4)}, {v(vDA)}, {S(SRD_WS)}, {s(sD+k)} offen sc1')
        setexec((1 << 44) - 1)
        P(f'buffer_load_dwordx4 {v(b+8,4)}, {v(vDA)}, {S(SRD_WS)}, {s(sD+2)} offen sc1')
        setexec(ALL)
    def done(b):
        for e in range(2): P(f'v_add_f32 {v(b+e)}, {v(b+e)}, {v(b+4+e)}')
        for e in range(2): P(f'v_add_f32 {v(vg+e)}, {v(b+e)}, {v(b+8+e)}')
    if cfg.dsleep: P(f's_sleep {cfg.dsleep}')
    poll('xd', issue, 3, 192, 12, [2, 6, 10], done)
    stamp('R_xd')
    colsum()
    rnd(vg)
    P(f'v_mul_f32 {v(vg)}, {v(vg)}, {v(vGBv)}'); rnd(vg)
    P(f'v_add_f32 {v(vg)}, {v(vg)}, {v(vXv)}\nv_mov_b32 {v(vg+1)}, {v(vg)}')
    P(f'v_permlane16_swap_b32 {v(vg)}, {v(vg+1)}')
    P(f'v_cvt_pk_bf16_f32 {v(vg)}, {v(vg)}, {v(vg+1)}')
    setexec(0xf)
    P(f'buffer_store_dword {v(vg)}, {v(vU16)}, {S(SRD_B)}, {s(sG+2)} offen {cfg.outpol}')
    stamp('R_end')
    def epoch(skip):
        P(f's_cmp_eq_u32 {s(sR)}, 0\ns_cbranch_scc0 {skip}')
        setexec(1)
        P(f'v_mov_b32 {v(vT)}, 0\nv_mov_b32 {v(vT+1)}, {s(sTAG)}')
        P(f'buffer_store_dword {v(vT+1)}, {v(vT)}, {S(SRD_WS)}, 0 offen sc1')
    if not cfg.epearly: epoch('L_END')
    if cfg.xdelay:
        P(f's_cmp_eq_u32 {s(sR)}, 0\ns_cbranch_scc0 L_END\ns_memrealtime s[76:77]\ns_waitcnt lgkmcnt(0)\ns_add_u32 {s(sT0)}, s76, {cfg.xdelay}')
        P(f'L_XDL:\ns_memrealtime s[76:77]\ns_waitcnt lgkmcnt(0)\ns_sub_u32 {s(sT1)}, s76, {s(sT0)}\ns_cmp_lt_i32 {s(sT1)}, 0\ns_cbranch_scc1 L_XDL')
    if cfg.gprobe:
        P(f's_cmp_eq_u32 {s(sR)}, 0\ns_cbranch_scc0 L_END\ns_mov_b64 exec, -1\ns_mov_b32 {s(sT0)}, {hex(DIAG)}')
        nw = 4 if cfg.gprobe.startswith('L') else 1
        P(f'v_lshlrev_b32 v1, 5, v0')
        if cfg.gprobe[0] == 'R': P('v_add_u32 v1, 8, v1')
        if cfg.gprobe[0] in 'MR': P('s_sleep 40')
        regs = []
        for q in range(4):
            for w in range(nw):
                r = 128 + 2*(q*4 + w); regs.append(r)
                P(f'buffer_load_dwordx2 v[{r}:{r+1}], v1, {S(SRD_WS)}, {s(sT0)} offen offset:{8*w} sc1')
            P(f's_add_u32 {s(sT0)}, {s(sT0)}, 2048')
        P('s_waitcnt vmcnt(0)')
        P(f'v_subrev_u32 v2, {s(sDIAG)}, v{regs[0]}\nv_subrev_u32 v3, {s(sDIAG)}, v{regs[0]+1}')
        for r in regs[1:]:
            P(f'v_subrev_u32 v4, {s(sDIAG)}, v{r}\nv_min_i32 v2, v2, v4\nv_subrev_u32 v4, {s(sDIAG)}, v{r+1}\nv_max_i32 v3, v3, v4')
        wave_reduce('v_min_i32', [2]); wave_reduce('v_max_i32', [3])
        P(f'v_sub_u32 v2, v3, v2\nv_readlane_b32 {s(sT0)}, v2, 63\ns_nop 1\ns_min_u32 {s(sT0)}, {s(sT0)}, 5000\ns_memrealtime s[76:77]\ns_waitcnt lgkmcnt(0)\ns_add_u32 {s(sT0)}, {s(sT0)}, s76')
        P(f'L_GPR:\ns_memrealtime s[76:77]\ns_waitcnt lgkmcnt(0)\ns_sub_u32 {s(sT1)}, s76, {s(sT0)}\ns_cmp_lt_i32 {s(sT1)}, 0\ns_cbranch_scc1 L_GPR')
    if cfg.probe:
        P(f's_cmp_eq_u32 {s(sR)}, 0\ns_cbranch_scc0 L_END')
        i = stamps[cfg.probe]
        P(f's_waitcnt lgkmcnt(0)\ns_sub_u32 {s(sT0)}, {s(sDIAG+2*i)}, {s(sDIAG)}\ns_min_u32 {s(sT0)}, {s(sT0)}, 5000\ns_memrealtime s[76:77]\ns_waitcnt lgkmcnt(0)\ns_add_u32 {s(sT0)}, {s(sT0)}, s76')
        P(f'L_PROBE:\ns_memrealtime s[76:77]\ns_waitcnt lgkmcnt(0)\ns_sub_u32 {s(sT1)}, s76, {s(sT0)}\ns_cmp_lt_i32 {s(sT1)}, 0\ns_cbranch_scc1 L_PROBE')
    P('s_branch L_END')

    P('L_END:')
    if cfg.diag and not cfg.probe and not cfg.gprobe:
        P('s_waitcnt lgkmcnt(0)')
        P(f's_cmp_ge_u32 {s(sB)}, 256\ns_cbranch_scc1 L_END2')
        srd(SRD_WS, sWSP, WS_BYTES)
        P(f's_lshl_b32 {s(sT0)}, {s(sB)}, 3\ns_add_u32 {s(sT0)}, {s(sT0)}, {s(sW)}\ns_lshl_b32 {s(sT0)}, {s(sT0)}, 7\ns_add_u32 {s(sT0)}, {s(sT0)}, {hex(DIAG)}')
        P('s_mov_b64 exec, 1\nv_mov_b32 v1, 0')
        for i in range(9): P(f'v_mov_b32 v2, {s(sDIAG+2*i)}\nbuffer_store_dword v2, v1, {S(SRD_WS)}, {s(sT0)} offen offset:{4*i}')
        P('L_END2:')
    P('s_endpgm')
    P('L_CODE_END:')
    probs = P.fix()
    for p in probs: print('HAZARD across branch:', p, file=sys.stderr)
    head = open(f'cdna_kernels/{NAME}.s.ref').read().split('; Override launch')[0]
    txt = head
    txt += DOC
    txt += f'; @launch grid=(256,1,1) block=(512,1,1) lds={LDS_BYTES}\n'
    txt += f'.amdgcn_target "amdgcn-amd-amdhsa--gfx950"\n.text\n.globl {NAME}_kernel\n.p2align 8\n.type {NAME}_kernel,@function\n{NAME}_kernel:\n'
    txt += P.text() + '\n'
    txt += f'''.section .rodata,"a"
.p2align 6
.amdhsa_kernel {NAME}_kernel
  .amdhsa_next_free_vgpr 256
  .amdhsa_next_free_sgpr 102
  .amdhsa_accum_offset 256
  .amdhsa_group_segment_fixed_size 0
  .amdhsa_kernarg_size 112
  .amdhsa_user_sgpr_count 2
  .amdhsa_user_sgpr_kernarg_segment_ptr 1
  .amdhsa_system_sgpr_workgroup_id_x 1
  .amdhsa_float_denorm_mode_32 3
.end_amdhsa_kernel
'''
    return txt, stamps

if __name__ == '__main__':
    out = sys.argv[1] if len(sys.argv) > 1 else f'cdna_kernels/{NAME}.s'
    class C(Cfg): pass
    for a in sys.argv[2:]:
        k, val = a.split('=', 1)
        setattr(C, k, eval(val))
    txt, stamps = gen(C)
    open(out, 'w').write(txt)
    print('written', out, len(txt), 'bytes', stamps)
```

```python
import sys, struct
from asmdsl import Prog

NAME = 'adaLN_cond__mha_block_cached__glu_gated_swiglu__decode'

def f2u(x): return struct.unpack('<I', struct.pack('<f', x))[0]
LOG2E = hex(f2u(1.4426950408889634))
NLOG2E = hex(f2u(-1.4426950408889634))
SCALE = hex(f2u(128 ** -0.5))
EPS = hex(f2u(1e-5))
R512 = hex(f2u(1/512))
ALL = (1 << 64) - 1

X1 = 0x1000
X4 = 0x9000
X3 = 0x19000
X1F = 0x1b000
X0 = 0x1d000
X0B = 0x194000
X2F = 0x1c000
XC = 0x180000
X4N = 0x1e0000
XPR = 0x190000
XP = 0x1f000
X2 = 0x20000
XA = 0x60000
XB = 0x200000
XD = 0xe0000
XE = 0x110000
XG = 0x197000
XB2 = 0x140000
X0C = 0x1a000
DIAG = 0x1a0000
WS_BYTES = 0x300000
L_P, L_OP, L_Q, L_FLAG = 0x20000, 0x20800, 0x21000, 0x21100
L_ST, L_U = 0x0, 0x1000
L_MS, L_ML, L_PAR = L_FLAG + 64, L_FLAG + 128, L_FLAG + 176
LDS_BYTES = 0x21200
NM = 43
TAGX = hex(sum(1 << (a*4+b*2+c) for a in (0,1) for b in (0,1) for c in (0,1) if (a ^ b) | c))

DOC = """;
;                  all QK^T of one L wave's tiles, true max and sum exchanged inside the head, normalised p
"""

class Cfg:
    depth = 8
    diag = False
    probe = None
    kpol = 'nt'
    vpol = 'nt'
    wpol = 'nt'
    ppol = ''
    sleep1 = 0
    sleep2 = 0
    sleep3 = 4
    sleep4 = 40
    prio = 3
    hint = 1
    hsleep = 3
    lsleep = 1
    pf = 'post'
    wq0 = 1
    dsched = (6, 12, 9)
    rot = 5
    npf = 8
    local = 1
    pipe = dict()
    psleep = dict()
    xcrep = 1
    xcline = 0
    nodpp = 0
    b0late = 1
    xcsleep = 0
    dnlate = 0
    xbrep = 0
    rwait = 1
    xbgrp = 0
    rsleep = 0
    dsleep = 0
    wob2 = 0
    epearly = 1
    ksplit = 0
    th = 0
    cpf = 1
    fakehalf = 0
    xdelay = 0
    gwait = 0
    tearly = 0
    pkand = 0
    acc2 = 0
    mlat = 0
    t2early = 0
    par = 'dyn'
    nsamp = 4
    nearloc = 1
    x4near = 0
    mlpw = 0
    xcmode = 0
    wfirst = 1
    wofirst = 0
    pkadd = 1
    lnopt = 1
    ackw = 1
    rearly = 1
    tlbw = 0
    gthr = 32
    gprobe = None
    dodd = None
    dvar = None
    outpol = ''
    uppol = 'nt'
    spin = 1 << 18

def v(a, n=1): return f'v{a}' if n == 1 else f'v[{a}:{a+n-1}]'
def s(a, n=1): return f's{a}' if n == 1 else f's[{a}:{a+n-1}]'

sB, sW = 2, 3
sKP, sVP = 4, 6
SRD_K, SRD_V, SRD_WS, SRD_A, SRD_B, SRD_C = 8, 12, 16, 20, 24, 28
sH, sJ, sX, sKK = 36, 37, 38, 39
sWSP = 40
sTAG, sIM, sR = 42, 43, 44
sT0, sT1, sT2 = 45, 46, 47
pWQ, pWO, pW1, pW3, pW2, pC, pWM, pX, pOUT = 48, 50, 54, 56, 58, 60, 62, 64, 66
sSPIN = 68
sO0, sO1, sO2, sO3 = 69, 70, 71, 72
sMASK = 74
sPAR, sNEAR = 52, 53
sT1B = 35
sLOC = 73
sG = 76
sDIAG = 84
vL = 0
vT = 1
vM = 4

def gen(cfg=Cfg):
    P = Prog()
    X4NEAR = bool(cfg.x4near and cfg.par is not None and not cfg.t2early)
    D = cfg.depth
    stamps = {}
    def stamp(name):
        if cfg.diag and name in cfg.diag:
            grp = name.split('_')[0]
            same = [n for n in cfg.diag if n.split('_')[0] == grp]
            if name == 'start': i = 0
            elif cfg.gprobe: i = 1
            elif grp == 'M': i = 8 - same.index(name)
            else: i = 1 + same.index(name)
            assert 0 <= i <= 8
            stamps[name] = i
            P(f's_memrealtime {s(sDIAG + 2*i, 2)}')
            if cfg.gprobe == name:
                assert i < 5
                P(f's_waitcnt lgkmcnt(0)\ns_mov_b32 s96, {s(sWSP)}\ns_mov_b32 s97, {s(sWSP+1)}\ns_mov_b32 s98, {hex(WS_BYTES)}\ns_mov_b32 s99, 0x20000')
                P(f's_lshl_b32 s100, {s(sB)}, 2\ns_and_b32 s101, {s(sW)}, 3\ns_add_u32 s100, s100, s101\ns_lshl_b32 s100, s100, 3\ns_add_u32 s100, s100, {hex(DIAG)}')
                P(f's_mov_b64 s[94:95], exec\ns_mov_b64 exec, 1\nv_mov_b32 v254, {s(sDIAG)}\nv_mov_b32 v255, {s(sDIAG+2*i)}\nv_mov_b32 v253, 0\nbuffer_store_dwordx2 v[254:255], v253, s[96:99], s100 offen sc1\ns_mov_b64 exec, s[94:95]')
    def srd(r, ptr, nbytes):
        P(f's_mov_b32 {s(r)}, {s(ptr)}\ns_mov_b32 {s(r+1)}, {s(ptr+1)}\ns_mov_b32 {s(r+2)}, {hex(nbytes)}\ns_mov_b32 {s(r+3)}, 0x20000')
    def S(r): return s(r, 4)
    def setexec(mask):
        lo, hi = mask & 0xffffffff, mask >> 32
        if mask == ALL: P('s_mov_b64 exec, -1')
        elif mask <= 64: P(f's_mov_b64 exec, {mask}')
        else: P(f's_mov_b32 exec_lo, {hex(lo)}\ns_mov_b32 exec_hi, {hex(hi)}')
    uid = [0]
    def lab(p):
        uid[0] += 1; return f'L_{p}{uid[0]}'
    def tagcheck_loop(issue, tagregs, name, sleep=0, after=None, nafter=0):
        top = lab(name)
        P(f's_mov_b32 {s(sSPIN)}, 0')
        P(f'{top}:')
        issue()
        if after: after()
        P(f's_add_u32 {s(sSPIN)}, {s(sSPIN)}, 1\ns_cmp_gt_u32 {s(sSPIN)}, {cfg.spin}\ns_cbranch_scc1 L_END')
        P(f's_waitcnt vmcnt({nafter if after else 0})')
        if len(tagregs) == 1:
            P(f'v_cmp_ne_u32 vcc, {s(sTAG)}, {v(tagregs[0])}')
        else:
            P(f'v_xor_b32 {v(vT)}, {s(sTAG)}, {v(tagregs[0])}\nv_xor_b32 {v(vT+1)}, {s(sTAG)}, {v(tagregs[1])}')
            for k, r in enumerate(tagregs[2:]):
                P(f'v_bitop3_b32 {v(vT + (k & 1))}, {v(r)}, {s(sTAG)}, {v(vT + (k & 1))} bitop3:{TAGX}')
            P(f'v_or_b32 {v(vT)}, {v(vT)}, {v(vT+1)}\nv_cmp_ne_u32 vcc, 0, {v(vT)}')
        if sleep:
            dn = lab(name + 'd')
            P(f's_cbranch_vccz {dn}\ns_sleep {sleep}\ns_branch {top}\n{dn}:')
        else: P(f's_cbranch_vccnz {top}')
    def poll(name, issue, nl, base, stride, tagoff, done, issued=False):
        NS = cfg.pipe.get(name, 1)
        top, join = lab(name), lab(name + 'j')
        ex = [lab(name + 'x') for _ in range(NS)]
        P(f's_mov_b32 {s(sSPIN)}, 0')
        for i in range(NS - 1): issue(base + i*stride)
        if issued:
            assert NS == 1
            sk = lab(name + 's'); P(f's_branch {sk}')
        P(f'{top}:')
        for i in range(NS):
            issue(base + ((i + NS - 1) % NS)*stride)
            if issued: P(f'{sk}:')
            if i == 0: P(f's_add_u32 {s(sSPIN)}, {s(sSPIN)}, 1\ns_cmp_gt_u32 {s(sSPIN)}, {cfg.spin}\ns_cbranch_scc1 L_END')
            P(f's_waitcnt vmcnt({(NS-1)*nl})')
            tr = [base + i*stride + t for t in tagoff]
            if len(tr) == 1:
                P(f'v_cmp_ne_u32 vcc, {s(sTAG)}, {v(tr[0])}')
            else:
                P(f'v_xor_b32 {v(vT)}, {s(sTAG)}, {v(tr[0])}\nv_xor_b32 {v(vT+1)}, {s(sTAG)}, {v(tr[1])}')
                for k, r in enumerate(tr[2:]):
                    P(f'v_bitop3_b32 {v(vT + (k & 1))}, {v(r)}, {s(sTAG)}, {v(vT + (k & 1))} bitop3:{TAGX}')
                P(f'v_or_b32 {v(vT)}, {v(vT)}, {v(vT+1)}\nv_cmp_ne_u32 vcc, 0, {v(vT)}')
            ps = cfg.psleep.get(name, 0)
            if ps:
                P(f's_cbranch_vccz {ex[i]}\ns_sleep {ps}')
                if i + 1 == NS: P(f's_branch {top}')
            else: P(f's_cbranch_vccz {ex[i]}' if i + 1 < NS else f's_cbranch_vccnz {top}')
        for i in reversed(range(NS)):
            P(f'{ex[i]}:')
            done(base + i*stride)
            if i > 0: P(f's_branch {join}')
        P(f'{join}:')
    def poll_groups(name, groups):
        top = lab(name)
        P(f's_mov_b32 {s(sSPIN)}, 0\ns_mov_b32 {s(sT0)}, {(1 << len(groups)) - 1}')
        P(f'{top}:')
        for g, (issue, tr) in enumerate(groups):
            sk = lab(name + 'i')
            P(f's_bitcmp1_b32 {s(sT0)}, {g}\ns_cbranch_scc0 {sk}')
            issue()
            P(f'{sk}:')
        P(f's_add_u32 {s(sSPIN)}, {s(sSPIN)}, 1\ns_cmp_gt_u32 {s(sSPIN)}, {cfg.spin}\ns_cbranch_scc1 L_END')
        P('s_waitcnt vmcnt(0)')
        for g, (issue, tr) in enumerate(groups):
            P(f'v_xor_b32 {v(vT + (g & 1))}, {s(sTAG)}, {v(tr[0])}')
            for r in tr[1:]: P(f'v_bitop3_b32 {v(vT + (g & 1))}, {v(r)}, {s(sTAG)}, {v(vT + (g & 1))} bitop3:{TAGX}')
            P(f'v_cmp_ne_u32 {s(sG+4+2*(g & 1),2)}, 0, {v(vT + (g & 1))}')
            P(f's_cmp_lg_u64 {s(sG+4+2*(g & 1),2)}, 0\ns_cselect_b32 {s(sT1)}, {1 << g}, 0')
            P(f's_or_b32 {s(sT0)}, {s(sT1)}, {s(sT0) if g else s(sT1)}')
        P(f's_cbranch_scc1 {top}')
    def publish_loc(d, vaddr, soff, mask=None, flag=sLOC):
        if not cfg.local: return publish(d, vaddr, soff, mask)
        far, j2 = lab('far'), lab('pb')
        if mask: setexec(mask)
        P(f's_cmp_eq_u32 {s(flag)}, 1\ns_cbranch_scc0 {far}')
        P(f'buffer_store_dwordx4 {v(d,4)}, {v(vaddr)}, {S(SRD_WS)}, {s(soff)} offen')
        P(f's_branch {j2}\n{far}:')
        publish(d, vaddr, soff)
        P(f'{j2}:')
        if mask: setexec(ALL)
    def afrag(dst, src, dpp=''):
        for w in range(4):
            if dpp: P(f'v_and_b32_dpp {v(dst+w)}, {v(src)}, {v(vM+w)} {dpp} row_mask:0xf bank_mask:0xf')
            else: P(f'v_and_b32 {v(dst+w)}, {v(src)}, {v(vM+w)}')
    def mfma(d, a, b, first=False):
        P(f'v_mfma_f32_16x16x32_bf16 {v(d,4)}, {v(a,4)}, {v(b,4)}, {"0" if first else v(d,4)}')
    vF, vHM, vPP = 244, 248, 250
    def afrag_pk(dst, src, dpp, k):
        pp = vPP + 2*(k & 1)
        if dpp: P(f'v_and_b32_dpp {v(pp)}, {v(src)}, {v(vHM)} {dpp} row_mask:0xf bank_mask:0xf')
        else: P(f'v_and_b32 {v(pp)}, {v(src)}, {v(vHM)}')
        return [f'v_pk_mul_f32 {v(dst+2*w,2)}, {v(pp,2)}, {v(vF+2*w,2)} op_sel_hi:[0,1]' for w in range(2)]
    def chain(d, n, bregs, srcs, areg):
        if cfg.pkand:
            pend = afrag_pk(areg, *srcs[0], 0)
            for x in pend: P(x)
            if n > 1: pend = afrag_pk(areg + 4, *srcs[1], 1)
            for i in range(n):
                if i + 1 < n:
                    for x in pend: P(x)
                if i + 2 < n: pend = afrag_pk(areg + 4*(i & 1) + 8*(1 - 2*0)*0 if False else areg + 4*(i & 1), *srcs[i+2], i) if False else None
                mfma(d, areg + 4*(i & 1), bregs[i], first=(i == 0))
                if i + 2 < n: pend = afrag_pk(areg + 4*(i & 1), *srcs[i+2], i)
            return
        if cfg.nodpp and srcs[0][1]:
            bc = 224
            for i in range(n): P(f'v_mov_b32_dpp {v(bc+i)}, {v(srcs[i][0])} {srcs[i][1]} row_mask:0xf bank_mask:0xf')
            srcs = [(bc+i, '') for i in range(n)]
        afrag(areg, *srcs[0])
        d2 = 32
        for i in range(n):
            if i + 1 < n: afrag(areg + 4*((i+1) & 1), *srcs[i+1])
            if cfg.acc2 and n >= 8: mfma(d2 if i & 1 else d, areg + 4*(i & 1), bregs[i], first=(i < 2))
            else: mfma(d, areg + 4*(i & 1), bregs[i], first=(i == 0))
        if cfg.acc2 and n >= 8:
            for r in range(0, 4, 2): P(f'v_pk_add_f32 {v(d+r,2)}, {v(d+r,2)}, {v(d2+r,2)}')
    def finish2(d):
        P(f'v_permlane32_swap_b32 {v(d)}, {v(d+2)}\nv_permlane32_swap_b32 {v(d+1)}, {v(d+3)}')
        P(f'v_add_f32_dpp {v(d)}, {v(d+2)}, {v(d)} row_ror:8 row_mask:0xf bank_mask:0xf')
        P(f'v_add_f32_dpp {v(d+1)}, {v(d+3)}, {v(d+1)} row_ror:8 row_mask:0xf bank_mask:0xf')
        P(f'v_mov_b32 {v(d+2)}, {s(sTAG)}')
    def finish1(d):
        P(f'v_permlane32_swap_b32 {v(d)}, {v(d+2)}\nv_permlane32_swap_b32 {v(d+1)}, {v(d+3)}')
        P(f'v_mov_b32 {v(d+2)}, {s(sTAG)}')
    def publish(d, vaddr, soff, mask=None):
        if mask: setexec(mask)
        P(f'buffer_store_dwordx4 {v(d,4)}, {v(vaddr)}, {S(SRD_WS)}, {s(soff)} offen sc1')
        if mask: setexec(ALL)
    M2SET = 0x00ff00ff00ff00ff
    def lohi(r):
        P(f'v_mov_b32 {v(r+2)}, {v(r)}\nv_mov_b32 {v(r+3)}, {v(r+1)}')
        for e in range(2): P(f'v_mov_b32_dpp {v(r+2+e)}, {v(r+e)} row_shl:4 row_mask:0xf bank_mask:0x5')
        for e in range(2): P(f'v_mov_b32_dpp {v(r+e)}, {v(r+e)} row_shr:4 row_mask:0xf bank_mask:0xa')
    def lohi_srcs(r):
        out = []
        for i in range(16):
            u = i >> 1; a = u & 3
            out.append((r + (2 if u >= 4 else 0) + (i & 1), f'quad_perm:[{a},{a},{a},{a}]'))
        return out
    def lds_wait(name, vaddr, n, dst, chk, sleep=0):
        top = lab(name)
        op = {1: 'ds_read_b32', 2: 'ds_read_b64', 4: 'ds_read_b128'}[n]
        P(f's_mov_b32 {s(sSPIN)}, 0')
        P(f'{top}:')
        P(f'{op} {v(dst,n)}, {v(vaddr)}')
        P(f's_add_u32 {s(sSPIN)}, {s(sSPIN)}, 1\ns_cmp_gt_u32 {s(sSPIN)}, {cfg.spin*8}\ns_cbranch_scc1 L_END')
        P('s_waitcnt lgkmcnt(0)')
        if len(chk) == 2:
            P(f'v_and_b32 {v(vT)}, {v(chk[0])}, {v(chk[1])}\nv_cmp_eq_u32 vcc, 0, {v(vT)}')
        else: P(f'v_cmp_eq_u32 vcc, 0, {v(chk[0])}')
        if sleep:
            done = lab(name + 'd')
            P(f's_cbranch_vccz {done}\ns_sleep {sleep}\ns_branch {top}\n{done}:')
        else: P(f's_cbranch_vccnz {top}')
    def hint_wait(name, soff):
        top = lab(name)
        P(f's_add_u32 {s(sMASK)}, {s(sWSP)}, {s(soff)}\ns_addc_u32 {s(sMASK+1)}, {s(sWSP+1)}, 0\ns_mov_b32 {s(sSPIN)}, 0')
        P(f'{top}:')
        P(f's_load_dwordx8 {s(sG,8)}, {s(sMASK,2)}, 0 glc')
        P(f's_add_u32 {s(sSPIN)}, {s(sSPIN)}, 1\ns_cmp_gt_u32 {s(sSPIN)}, {cfg.spin}\ns_cbranch_scc1 L_END')
        P('s_waitcnt lgkmcnt(0)')
        P(f's_xor_b32 {s(sG)}, {s(sG)}, {s(sTAG)}')
        for k in range(1, 8): P(f's_xor_b32 {s(sG+k)}, {s(sG+k)}, {s(sTAG)}\ns_or_b32 {s(sG)}, {s(sG)}, {s(sG+k)}')
        done = lab(name + 'd')
        P(f's_cbranch_scc0 {done}')
        if cfg.hsleep: P(f's_sleep {cfg.hsleep}')
        P(f's_branch {top}\n{done}:')
    def par_read(r):
        if cfg.par == 'dyn': P(f'v_mov_b32 {v(r)}, {hex(L_PAR)}\nds_read_b32 {v(r)}, {v(r)}')
    def par_use(r):
        if cfg.par == 'dyn': P(f's_waitcnt lgkmcnt(0)\nv_readfirstlane_b32 {s(sPAR)}, {v(r)}\ns_and_b32 {s(sPAR)}, {s(sPAR)}, 1')
        else: P(f's_mov_b32 {s(sPAR)}, {cfg.par or 0}')
        P(f's_lshr_b32 {s(sNEAR)}, {s(sX)}, 2\ns_xor_b32 {s(sNEAR)}, {s(sNEAR)}, {s(sPAR)}\ns_lshl_b32 {s(sNEAR)}, {s(sNEAR)}, 13')
    def wave_reduce(op, regs):
        for mod in ('quad_perm:[1,0,3,2] row_mask:0xf', 'quad_perm:[2,3,0,1] row_mask:0xf', 'row_ror:4 row_mask:0xf', 'row_ror:8 row_mask:0xf',
                    'row_bcast:15 row_mask:0xa', 'row_bcast:31 row_mask:0xc'):
            for r in regs: P(f'{op}_dpp {v(r)}, {v(r)}, {v(r)} {mod} bank_mask:0xf')
    def unpack(lo, hi, src):
        if lo == src: P(f'v_and_b32 {v(hi)}, 0xffff0000, {v(src)}\nv_lshlrev_b32 {v(lo)}, 16, {v(src)}')
        else: P(f'v_lshlrev_b32 {v(lo)}, 16, {v(src)}\nv_and_b32 {v(hi)}, 0xffff0000, {v(src)}')
    def silu_multi(rs, ts):
        for r, t in zip(rs, ts): P(f'v_mul_f32 {v(t)}, {NLOG2E}, {v(r)}')
        for r, t in zip(rs, ts): P(f'v_exp_f32 {v(t)}, {v(t)}')
        for r, t in zip(rs, ts): P(f'v_add_f32 {v(t)}, 1.0, {v(t)}')
        for r, t in zip(rs, ts): P(f'v_rcp_f32 {v(t)}, {v(t)}')
        for r, t in zip(rs, ts): P(f'v_mul_f32 {v(r)}, {v(r)}, {v(t)}')
    def add2(d, a, b):
        if cfg.pkadd: P(f'v_pk_add_f32 {v(d,2)}, {v(a,2)}, {v(b,2)}')
        else:
            for e in range(2): P(f'v_add_f32 {v(d+e)}, {v(a+e)}, {v(b+e)}')
    def rnd(r): P(f'v_cvt_pk_bf16_f32 {v(r)}, {v(r)}, {v(r)}\nv_and_b32 {v(r)}, 0xffff0000, {v(r)}')

    vMA, vMB, vMC, vPUB = 16, 17, 18, 19
    vMT, vD0, vAA, vS4 = 64, 36, 52, 40
    def modtile_issue(sRB, sCOL):
        srd(SRD_A, pC, 1024); srd(SRD_B, pWM, 512*6144)
        P(f's_lshl_b32 {s(sO1)}, {s(sRB)}, 8')
        P(f'buffer_load_dword {v(vMC)}, {v(vMA)}, {S(SRD_A)}, {s(sO1)} offen')
        P(f's_mul_i32 {s(sO1)}, {s(sRB)}, {128*6144}\ns_add_u32 {s(sO1)}, {s(sO1)}, {s(sCOL)}')
        for i in range(16):
            P(f'buffer_load_dwordx4 {v(vMT+4*i,4)}, {v(vMB)}, {S(SRD_B)}, {s(sO1)} offen {cfg.wpol}')
            if i < 15: P(f's_add_u32 {s(sO1)}, {s(sO1)}, 6144')
    def modtile_compute(nafter, soff, both=False):
        P(f's_waitcnt vmcnt({16+nafter})')
        unpack(vS4, vS4+1, vMC)
        silu_multi([vS4, vS4+1], [vS4+2, vS4+3])
        for e in range(2): P(f'v_cvt_pk_bf16_f32 {v(vS4+e)}, {v(vS4+e)}, {v(vS4+e)}')
        lohi(vS4)
        P(f's_waitcnt vmcnt({nafter})')
        chain(vD0, 16, [vMT+4*i for i in range(16)], lohi_srcs(vS4), vAA)
        finish2(vD0)
        if both:
            for e in range(2): P(f'v_mov_b32_dpp {v(vD0+e)}, {v(vD0+e)} row_ror:8 row_mask:0xf bank_mask:0xc')
            if cfg.par == 'dyn':
                P(f'v_mov_b32 {v(vT+2)}, {hex(L_PAR)}')
                lds_wait('pw', vT+2, 1, 28, [28])
                P(f'v_lshrrev_b32 {v(vT)}, 3, {v(vL)}\nv_xor_b32 {v(vT)}, {v(28)}, {v(vT)}')
            else: P(f'v_lshrrev_b32 {v(vT)}, 3, {v(vL)}\nv_xor_b32 {v(vT)}, {cfg.par}, {v(vT)}')
            P(f'v_and_b32 {v(vT)}, 1, {v(vT)}\nv_lshl_add_u32 {v(vT)}, {v(vT)}, 13, {v(vPUB)}')
            publish(vD0, vT, soff)
        else: publish(vD0, vPUB, soff, M2SET)

    P(f's_cmp_ge_u32 {s(sB)}, 256\ns_cbranch_scc1 L_END')
    if cfg.diag:
        for i in range(9): P(f's_mov_b32 {s(sDIAG+2*i)}, 0')
    stamp('start')
    P(f's_load_dwordx4 {s(sKP,4)}, s[0:1], 8')
    P(f's_load_dwordx16 {s(pWQ,16)}, s[0:1], 24')
    P(f's_load_dwordx2 {s(sWSP,2)}, s[0:1], 104')
    P(f's_load_dwordx2 {s(pX,2)}, s[0:1], 0')
    P(f's_load_dwordx2 {s(pOUT,2)}, s[0:1], 88')
    P(f'v_lshrrev_b32 {v(vT)}, 6, v0\nv_and_b32 {v(vL)}, 63, v0')
    P(f'v_readfirstlane_b32 {s(sW)}, {v(vT)}')
    P(f'v_lshlrev_b32 {v(vT)}, 2, {v(vL)}\nv_add_u32 {v(vT)}, {hex(L_FLAG)}, {v(vT)}\nv_mov_b32 {v(vT+1)}, 0')
    P(f'ds_write_b32 {v(vT)}, {v(vT+1)}')
    P(f's_and_b32 {s(sH)}, {s(sB)}, 31\ns_lshr_b32 {s(sJ)}, {s(sB)}, 5\ns_and_b32 {s(sX)}, {s(sB)}, 7\ns_lshr_b32 {s(sKK)}, {s(sB)}, 3')
    vKA, vVA = 8, 12
    P(f'v_lshrrev_b32 {v(vT)}, 4, {v(vL)}\nv_and_b32 {v(vT+1)}, 15, {v(vL)}')
    P(f'v_lshlrev_b32 {v(vVA)}, 10, {v(vT)}\nv_lshl_add_u32 {v(vVA)}, {v(vT+1)}, 4, {v(vVA)}')
    if cfg.ksplit:
        P(f'v_lshlrev_b32 {v(vT+2)}, 2, {v(vT)}\nv_xor_b32 {v(vT+1)}, {v(vT+1)}, {v(vT+2)}\nv_lshlrev_b32 {v(vT+1)}, 4, {v(vT+1)}\nv_lshl_add_u32 {v(vKA)}, {v(vT)}, 10, {v(vT+1)}')
        for i in range(1, 4): P(f'v_xor_b32 {v(vKA+i)}, {16*i}, {v(vKA)}')
    else:
        P(f'v_xor_b32 {v(vT+1)}, {v(vT+1)}, {v(vT)}\nv_lshlrev_b32 {v(vT+1)}, 4, {v(vT+1)}\nv_lshl_add_u32 {v(vKA)}, {v(vT)}, 8, {v(vT+1)}')
        for i in range(1, 4): P(f'v_xor_b32 {v(vKA+i)}, {64*i}, {v(vKA)}')
    P(f's_lshl_b32 {s(sO0)}, {s(sH)}, 20\ns_lshl_b32 {s(sO3)}, {s(sJ)}, 2\ns_add_u32 {s(sO3)}, {s(sO3)}, {s(sW)}\ns_lshl_b32 {s(sO3)}, {s(sO3)}, 12')
    P(f'v_lshlrev_b32 {v(vMA)}, 2, {v(vL)}\nv_lshrrev_b32 {v(vT)}, 3, {v(vL)}\nv_mul_u32_u24 {v(vMB)}, {16*6144}, {v(vT)}\nv_and_b32 {v(vT+1)}, 7, {v(vL)}\nv_lshl_add_u32 {v(vMB)}, {v(vT+1)}, 4, {v(vMB)}')
    P(f'v_lshrrev_b32 {v(vT)}, 4, {v(vL)}\nv_lshlrev_b32 {v(vT)}, 7, {v(vT)}\nv_lshl_add_u32 {v(vPUB)}, {v(vT+1)}, 4, {v(vT)}')
    vXF, vXS, vL16, vWA, vXA = 28, 32, 60, 62, 33
    P(f'v_lshlrev_b32 {v(vL16)}, 4, {v(vL)}')
    P(f'v_bfe_u32 {v(vT)}, {v(vL)}, 4, 1\nv_lshrrev_b32 {v(vT+2)}, 5, {v(vL)}\nv_lshl_add_u32 {v(vT)}, {v(vT)}, 1, {v(vT+2)}')
    P(f'v_lshl_add_u32 {v(vXA)}, {v(vT+1)}, 2, {v(vT)}\nv_lshlrev_b32 {v(vXA)}, 2, {v(vXA)}\nv_lshlrev_b32 {v(vWA)}, 14, {v(vT)}')
    P(f'v_and_b32 {v(vT+1)}, 15, {v(vL)}\nv_lshl_add_u32 {v(vWA)}, {v(vT+1)}, 4, {v(vWA)}')
    if cfg.tearly == 1:
        P(f's_sub_u32 {s(sT2)}, {s(sKK)}, 16\ns_lshl_b32 {s(sT2)}, {s(sT2)}, 2\ns_add_u32 {s(sT2)}, {s(sT2)}, {s(sX)}\ns_lshr_b32 {s(sT1B)}, {s(sT2)}, 3\ns_and_b32 {s(sT2)}, {s(sT2)}, 7')
        P(f's_cmp_lt_u32 {s(sX)}, 4\ns_cselect_b32 {s(sT2)}, {s(sT2)}, 99\ns_cmp_ge_u32 {s(sKK)}, 16\ns_cselect_b32 {s(sT2)}, {s(sT2)}, 99')
    else:
        P(f's_sub_u32 {s(sT2)}, {s(sKK)}, 16\ns_mov_b32 {s(sT1B)}, {s(sX)}')
    P(f's_and_b32 {s(sT0)}, {s(sT2)}, 1\ns_lshl_b32 {s(sT0)}, {s(sT0)}, 10\ns_lshl_b32 {s(sT1)}, {s(sT1B)}, 7\ns_add_u32 {s(sT1)}, {s(sT1)}, {s(sT0)}\ns_lshr_b32 {s(sT0)}, {s(sT2)}, 1\ns_lshl_b32 {s(sO2)}, {s(sJ)}, 7')
    P('s_waitcnt lgkmcnt(0)')
    P(f's_cmp_eq_u32 {s(sW)}, 4\ns_cbranch_scc0 L_B0')
    if cfg.b0late: P('s_setprio 3')
    P(f's_cmp_lt_u32 {s(sT2)}, 8\ns_cbranch_scc0 L_XLD')
    modtile_issue(sT0, sT1)
    P('L_XLD:')
    srd(SRD_C, pX, 1024)
    P(f'buffer_load_dwordx4 {v(vXF,4)}, {v(vL16)}, {S(SRD_C)}, 0 offen')
    P(f'buffer_load_dword {v(vXS)}, {v(vXA)}, {S(SRD_C)}, {s(sO2)} offen')
    vWQ = 128
    def wq_issue():
        srd(SRD_C, pWQ, 4 << 20)
        P(f's_lshl_b32 {s(sO2)}, {s(sJ)}, 19\ns_lshl_b32 {s(sT0)}, {s(sH)}, 8\ns_add_u32 {s(sO2)}, {s(sO2)}, {s(sT0)}')
        for i in range(16):
            P(f'buffer_load_dwordx4 {v(vWQ+4*i,4)}, {v(vWA)}, {S(SRD_C)}, {s(sO2)} offen {cfg.wpol}')
            if i < 15: P(f's_add_u32 {s(sO2)}, {s(sO2)}, {8192 if (i & 1) == 0 else 8192*7}')
    if cfg.wq0: wq_issue()
    P('L_B0:')
    if not cfg.b0late: P('s_barrier')
    P(f's_cmp_ge_u32 {s(sW)}, 4\ns_cbranch_scc1 L_CW')

    srd(SRD_K, sKP, 32 << 20)
    sTL, sRS, sTL0 = sG, sG+1, sG+2
    P(f's_mul_i32 {s(sTL0)}, {s(sH)}, {cfg.th}\ns_and_b32 {s(sTL0)}, {s(sTL0)}, 7\ns_lshl_b32 {s(sTL0)}, {s(sTL0)}, 17')
    def firsttile():
        P(f's_mov_b32 {s(sTL)}, {s(sTL0)}\ns_mov_b32 {s(sRS)}, {s(sO3)}\ns_add_u32 {s(sO1)}, {s(sO0)}, {s(sTL)}\ns_add_u32 {s(sO1)}, {s(sO1)}, {s(sRS)}')
    def nexttile():
        P(f's_add_u32 {s(sTL)}, {s(sTL)}, 0x20000\ns_and_b32 {s(sTL)}, {s(sTL)}, 0xe0000\ns_add_u32 {s(sRS)}, {s(sRS)}, {cfg.rot << 12}\ns_and_b32 {s(sRS)}, {s(sRS)}, 0x1f000\ns_add_u32 {s(sO1)}, {s(sO0)}, {s(sTL)}\ns_add_u32 {s(sO1)}, {s(sO1)}, {s(sRS)}')
    firsttile()
    P(f's_lshl_b32 {s(sT0)}, {s(sW)}, 15\ns_mov_b32 m0, {s(sT0)}\ns_mov_b32 {s(sT1)}, 0')
    stamp('L_k0')
    vV = 128
    def stream(ds, sfx):
        DK = ds[0]
        def DV(idx): return ds[0] if idx < ds[1] else ds[2]
        P(f'L_KLOOP{sfx}:')
        for i in range(4):
            if cfg.ksplit and i: P(f's_add_u32 m0, {s(sT0)}, {768*i}')
            P(f's_waitcnt vmcnt({DK-1})')
            P(f'buffer_load_dwordx4 {v(vKA+i)}, {S(SRD_K)}, {s(sO1)} offen offset:{(256 if cfg.ksplit else 1024)*i} {cfg.kpol} lds')
        if cfg.b0late: P(f's_cmp_eq_u32 {s(sT1)}, 0\ns_cbranch_scc0 L_KL2{sfx}\ns_barrier\nL_KL2{sfx}:')
        nexttile()
        P(f's_add_u32 {s(sT0)}, {s(sT0)}, 4096\ns_mov_b32 m0, {s(sT0)}\ns_add_u32 {s(sT1)}, {s(sT1)}, 1\ns_cmp_lt_u32 {s(sT1)}, 8\ns_cbranch_scc1 L_KLOOP{sfx}')
        stamp('L_kissued')
        srd(SRD_V, sVP, 32 << 20)
        firsttile()
        P(f's_lshl_b32 {s(sT0)}, {s(sW)}, 3\ns_add_u32 {s(sT0)}, {s(sT0)}, {hex(L_FLAG)}\nv_mov_b32 {v(vT)}, {s(sT0)}\nv_mov_b32 {v(vT+1)}, 1')
        for idx in range(32):
            t, i = idx >> 2, idx & 3
            P(f's_waitcnt vmcnt({DV(idx)-1})')
            if idx == DK - 1:
                P(f'ds_write_b32 {v(vT)}, {v(vT+1)}')
                stamp('L_klanded')
            P(f'buffer_load_dwordx4 {v(vV+4*idx,4)}, {v(vVA)}, {S(SRD_V)}, {s(sO1)} offen offset:{256*i} {cfg.vpol}')
            if i == 3 and t < 7: nexttile()
    if cfg.dvar:
        P(f's_getreg_b32 {s(sT2)}, hwreg(HW_REG_XCC_ID, 0, 3)')
        P(f's_bitcmp1_b32 {s(sT2)}, 2\ns_cbranch_scc1 L_STH')
        P(f's_bitcmp1_b32 {s(sT2)}, 0\ns_cbranch_scc1 L_ST1')
        stream(cfg.dvar[0], 'a'); P('s_branch L_STD\nL_ST1:')
        stream(cfg.dvar[1], 'b'); P('s_branch L_STD\nL_STH:')
        P(f's_bitcmp1_b32 {s(sT2)}, 0\ns_cbranch_scc1 L_ST3')
        stream(cfg.dvar[2], 'c'); P('s_branch L_STD\nL_ST3:')
        stream(cfg.dvar[3], 'd')
        P('L_STD:')
    elif cfg.dodd:
        P(f's_getreg_b32 {s(sT2)}, hwreg(HW_REG_XCC_ID, 0, 1)\ns_cmp_eq_u32 {s(sT2)}, 1\ns_cbranch_scc1 L_STO')
        stream(cfg.dsched, 'a'); P('s_branch L_STD\nL_STO:')
        stream(cfg.dodd, 'b')
        P('L_STD:')
    else: stream(cfg.dsched, '')
    stamp('L_vissued')
    def masks(pk=False):
        P(f'v_and_b32 {v(vT)}, 1, {v(vL)}\nv_lshlrev_b32 {v(vT)}, 4, {v(vT)}\nv_mov_b32 {v(vT+1)}, 0xffff\nv_lshlrev_b32 {v(vT+1)}, {v(vT)}, {v(vT+1)}')
        P(f'v_bfe_u32 {v(vT)}, {v(vL)}, 1, 2')
        for w in range(4):
            P(f'v_cmp_eq_u32 vcc, {w}, {v(vT)}\nv_cndmask_b32 {v(vM+w)}, 0, {v(vT+1)}, vcc')
            if pk and cfg.pkand: P(f'v_cndmask_b32 {v(vF+w)}, 0, 1.0, vcc')
        if pk and cfg.pkand: P(f'v_mov_b32 {v(vHM)}, {v(vT+1)}')
    def common_setup():
        P(f's_load_dword {s(sTAG)}, {s(sWSP,2)}, 0')
        srd(SRD_WS, sWSP, WS_BYTES)
        masks(True)
    masks()
    vPA, vOA, vP, vA, vD = 13, 14, 16, 48, 56
    P(f'v_lshrrev_b32 {v(vT)}, 4, {v(vL)}\nv_lshlrev_b32 {v(vT)}, 4, {v(vT)}\ns_lshl_b32 {s(sT0)}, {s(sW)}, 9\ns_add_u32 {s(sT0)}, {s(sT0)}, {hex(L_P)}\nv_add_u32 {v(vPA)}, {s(sT0)}, {v(vT)}')
    P(f's_add_u32 {s(sT0)}, {s(sT0)}, {hex(L_OP - L_P)}\nv_lshlrev_b32 {v(vT)}, 3, {v(vL)}\nv_add_u32 {v(vOA)}, {s(sT0)}, {v(vT)}')
    P('s_waitcnt lgkmcnt(0)')
    P('s_barrier')
    stamp('L_b1')
    for t in range(8): P(f'ds_read_b128 {v(vP+4*t,4)}, {v(vPA)} offset:{64*t}')
    P('s_waitcnt lgkmcnt(7)')
    afrag(vA, vP)
    for idx in range(32):
        if idx + 1 < 32:
            if (idx + 1) % 4 == 0: P(f's_waitcnt lgkmcnt({7 - (idx+1)//4})')
            afrag(vA + 4*((idx+1) & 1), vP + idx + 1)
        P(f's_waitcnt vmcnt({31-idx})')
        mfma(vD, vA + 4*(idx & 1), vV + 4*idx, first=(idx == 0))
    stamp('L_pv')
    P(f'v_permlane32_swap_b32 {v(vD)}, {v(vD+2)}\nv_permlane32_swap_b32 {v(vD+1)}, {v(vD+3)}')
    P(f'ds_write_b64 {v(vOA)}, {v(vD,2)}')
    P('s_waitcnt lgkmcnt(0)')
    P('s_barrier')
    P('s_endpgm' if not cfg.diag else 's_branch L_END')

    P('L_CW:')
    if cfg.gprobe and cfg.gprobe[0] in 'MR':
        P(f's_waitcnt lgkmcnt(0)\ns_mov_b32 s96, {s(sWSP)}\ns_mov_b32 s97, {s(sWSP+1)}\ns_mov_b32 s98, {hex(WS_BYTES)}\ns_mov_b32 s99, 0x20000')
        P(f's_lshl_b32 s100, {s(sB)}, 2\ns_and_b32 s101, {s(sW)}, 3\ns_add_u32 s100, s100, s101\ns_lshl_b32 s100, s100, 3\ns_add_u32 s100, s100, {hex(DIAG)}')
        P(f's_mov_b64 exec, 1\nv_mov_b32 v254, {s(sDIAG)}\nv_mov_b32 v255, {s(sDIAG)}\nv_mov_b32 v253, 0\nbuffer_store_dwordx2 v[254:255], v253, s[96:99], s100 offen sc1\ns_mov_b64 exec, -1\ns_waitcnt vmcnt(0)')
    if cfg.b0late: P('s_barrier')
    if cfg.prio: P(f's_setprio {cfg.prio}')
    P(f's_cmp_eq_u32 {s(sW)}, 4\ns_cbranch_scc0 L_C123')
    vGA = 192
    common_setup()
    P('s_waitcnt lgkmcnt(0)')
    P(f's_add_u32 {s(sTAG)}, {s(sTAG)}, 1')
    if cfg.local:
        P(f's_getreg_b32 {s(sLOC)}, hwreg(HW_REG_XCC_ID, 0, 3)\ns_lshl_b32 {s(sT0)}, {s(sTAG)}, 3\ns_or_b32 {s(sLOC)}, {s(sLOC)}, {s(sT0)}')
        P(f's_lshl_b32 {s(sO3)}, {s(sH)}, 7\ns_add_u32 {s(sO3)}, {s(sO3)}, {hex(X0)}\ns_lshl_b32 {s(sT0)}, {s(sJ)}, 2\ns_add_u32 {s(sT0)}, {s(sT0)}, {s(sO3)}\nv_mov_b32 {v(vT)}, {s(sT0)}\nv_mov_b32 {v(vT+1)}, {s(sLOC)}')
        P(f's_lshl_b32 {s(sR)}, {s(sX)}, 3\ns_lshr_b32 {s(sT0)}, {s(sKK)}, 2\ns_add_u32 {s(sR)}, {s(sR)}, {s(sT0)}\ns_lshl_b32 {s(sR)}, {s(sR)}, 7\ns_add_u32 {s(sR)}, {s(sR)}, {hex(X0B)}')
        P(f's_and_b32 {s(sT0)}, {s(sKK)}, 3\ns_lshl_b32 {s(sT0)}, {s(sT0)}, 2\ns_add_u32 {s(sT0)}, {s(sT0)}, {s(sR)}\nv_writelane_b32 {v(vT)}, {s(sT0)}, 1')
        P(f's_lshl_b32 {s(sT0)}, {s(sX)}, 7\ns_lshl_b32 {s(sO2)}, {s(sKK)}, 2\ns_add_u32 {s(sT0)}, {s(sT0)}, {s(sO2)}\ns_add_u32 {s(sT0)}, {s(sT0)}, {hex(X0C)}\nv_writelane_b32 {v(vT)}, {s(sT0)}, 2')
        if cfg.mlat:
            P(f's_lshl_b32 {s(sT0)}, {s(sH)}, 7\ns_lshl_b32 {s(sO2)}, {s(sJ)}, 3\ns_add_u32 {s(sT0)}, {s(sT0)}, {s(sO2)}\ns_add_u32 {s(sT0)}, {s(sT0)}, {hex(X3)}\nv_writelane_b32 {v(vT)}, {s(sT0)}, 3')
            P(f's_add_u32 {s(sT0)}, {s(sT0)}, 4\nv_writelane_b32 {v(vT)}, {s(sT0)}, 4\nv_writelane_b32 {v(vT+1)}, 0, 3\nv_writelane_b32 {v(vT+1)}, 0, 4')
        setexec(31 if cfg.mlat else 7)
        P(f'buffer_store_dword {v(vT+1)}, {v(vT)}, {S(SRD_WS)}, 0 offen sc1')
        setexec(ALL)
    P(f's_cmp_lt_u32 {s(sT2)}, 8\ns_cbranch_scc0 L_NOT1')
    P(f's_lshl_b32 {s(sO2)}, {s(sT1B)}, 3\ns_add_u32 {s(sO2)}, {s(sO2)}, {s(sT2)}\ns_lshl_b32 {s(sO2)}, {s(sO2)}, 9\ns_add_u32 {s(sO2)}, {s(sO2)}, {hex(X1)}')
    modtile_compute((18 if cfg.wq0 else 2) + cfg.local, sO2)
    if cfg.hint:
        P(f's_lshl_b32 {s(sO2)}, {s(sT1B)}, 9\ns_lshl_b32 {s(sT0)}, {s(sT2)}, 2\ns_add_u32 {s(sO2)}, {s(sO2)}, {s(sT0)}\ns_add_u32 {s(sO2)}, {s(sO2)}, {hex(X1F)}\nv_lshlrev_b32 {v(vT)}, 7, {v(vL)}')
        setexec(0xf)
        P(f'buffer_store_dword {v(vD0+2)}, {v(vT)}, {S(SRD_WS)}, {s(sO2)} offen sc1')
        setexec(ALL)
    stamp('C0_x1pub')
    if not cfg.wq0: wq_issue()
    P('s_branch L_T1D')
    P('L_NOT1:')
    if not cfg.wq0: wq_issue()
    P('L_T1D:')
    vx = 64
    P(f's_waitcnt vmcnt({16 + (cfg.local if cfg.wq0 else 0)})')
    for k in range(4): unpack(vx+2*k, vx+2*k+1, vXF+k)
    P(f'v_add_f32 {v(20)}, {v(vx)}, {v(vx+1)}\nv_add_f32 {v(21)}, {v(vx+2)}, {v(vx+3)}\nv_add_f32 {v(22)}, {v(vx+4)}, {v(vx+5)}\nv_add_f32 {v(23)}, {v(vx+6)}, {v(vx+7)}')
    P(f'v_add_f32 {v(20)}, {v(20)}, {v(21)}\nv_add_f32 {v(22)}, {v(22)}, {v(23)}\nv_add_f32 {v(20)}, {v(20)}, {v(22)}')
    wave_reduce('v_add_f32', [20])
    P(f'v_mul_f32 {v(20)}, {R512}, {v(20)}\nv_readlane_b32 {s(sT0)}, {v(20)}, 63')
    for k in range(8): P(f'v_subrev_f32 {v(vx+k)}, {s(sT0)}, {v(vx+k)}')
    P(f'v_mul_f32 {v(21)}, {v(vx)}, {v(vx)}')
    for k in range(1, 8): P(f'v_fmac_f32 {v(21)}, {v(vx+k)}, {v(vx+k)}')
    wave_reduce('v_add_f32', [21])
    P(f'v_mul_f32 {v(21)}, {R512}, {v(21)}')
    P(f'v_cvt_pk_bf16_f32 {v(22)}, {v(20)}, {v(21)}')
    P(f'v_and_b32 {v(21)}, 0xffff0000, {v(22)}\nv_lshlrev_b32 {v(20)}, 16, {v(22)}\nv_add_f32 {v(21)}, {EPS}, {v(21)}')
    rnd(21); P(f'v_sqrt_f32 {v(21)}, {v(21)}'); rnd(21); P(f'v_rcp_f32 {v(22)}, {v(21)}')
    P(f'v_readlane_b32 {s(sT0)}, {v(20)}, 63\nv_readlane_b32 {s(sT1)}, {v(21)}, 63\nv_readlane_b32 {s(sT2)}, {v(22)}, 63')
    vLN = 24
    unpack(vLN, vLN+1, vXS)
    for e in range(2): P(f'v_subrev_f32 {v(vLN+e)}, {s(sT0)}, {v(vLN+e)}')
    P(f'v_cvt_pk_bf16_f32 {v(20)}, {v(vLN)}, {v(vLN+1)}'); unpack(vLN, vLN+1, 20)
    for e in range(2): P(f'v_mul_f32 {v(20+e)}, {s(sT2)}, {v(vLN+e)}')
    for e in range(2): P(f'v_fma_f32 {v(vLN+e)}, -{v(20+e)}, {s(sT1)}, {v(vLN+e)}')
    for e in range(2): P(f'v_fma_f32 {v(vLN+e)}, {v(vLN+e)}, {s(sT2)}, {v(20+e)}')
    P(f'v_cvt_pk_bf16_f32 {v(20)}, {v(vLN)}, {v(vLN+1)}'); unpack(vLN, vLN+1, 20)
    P(f'v_bfe_u32 {v(vT)}, {v(vL)}, 3, 1\nv_lshlrev_b32 {v(vT)}, 9, {v(vT)}\nv_add_u32 {v(26)}, {v(vPUB)}, {v(vT)}')
    P(f's_lshl_b32 {s(sO0)}, {s(sJ)}, 12\ns_add_u32 {s(sO0)}, {s(sO0)}, {hex(X1)}')
    if cfg.hint:
        P(f's_lshl_b32 {s(sT0)}, {s(sJ)}, 2\ns_and_b32 {s(sT1)}, {s(sH)}, 3\ns_add_u32 {s(sT0)}, {s(sT0)}, {s(sT1)}\ns_lshl_b32 {s(sT0)}, {s(sT0)}, 7\ns_add_u32 {s(sT0)}, {s(sT0)}, {hex(X1F)}')
        hint_wait('h1h', sT0)
    else: P('s_waitcnt vmcnt(0)')
    if cfg.local:
        P(f's_add_u32 {s(sMASK)}, {s(sWSP)}, {s(sO3)}\ns_addc_u32 {s(sMASK+1)}, {s(sWSP+1)}, 0')
        P(f's_load_dwordx8 {s(sG,8)}, {s(sMASK,2)}, 0 glc')
        P(f's_load_dwordx4 s[8:11], {s(sWSP,2)}, {s(sR)} glc')
    stamp('C0_wq')
    if cfg.sleep1: P(f's_sleep {cfg.sleep1}')
    def issue():
        for k in range(4): P(f'buffer_load_dwordx4 {v(vGA+4*k,4)}, {v(26)}, {S(SRD_WS)}, {s(sO0)} offen offset:{1024*k} sc1')
    tagcheck_loop(issue, [vGA+4*k+2 for k in range(4)], 'h1')
    stamp('C0_h1')
    if cfg.local:
        P('s_waitcnt lgkmcnt(0)')
        P(f's_xor_b32 {s(sG)}, {s(sG)}, {s(sLOC)}')
        for k in range(1, 8): P(f's_xor_b32 {s(sG+k)}, {s(sG+k)}, {s(sLOC)}\ns_or_b32 {s(sG)}, {s(sG)}, {s(sG+k)}')
        P(f's_cselect_b32 {s(sT0)}, 0, 1')
        P(f's_xor_b32 s8, s8, {s(sLOC)}')
        for k in range(1, 4): P(f's_xor_b32 {s(8+k)}, {s(8+k)}, {s(sLOC)}\ns_or_b32 s8, s8, {s(8+k)}')
        P(f's_cselect_b32 {s(sR)}, 0, 1\ns_mov_b32 {s(sLOC)}, {s(sT0)}')
    b = vGA
    for e in range(2): P(f'v_add_f32 {v(b+e)}, {v(b+e)}, {v(b+4+e)}\nv_add_f32 {v(b+8+e)}, {v(b+8+e)}, {v(b+12+e)}')
    for e in range(2): P(f'v_add_f32 {v(b+e)}, {v(b+e)}, {v(b+8+e)}')
    P(f'v_cvt_pk_bf16_f32 {v(b+4)}, {v(b)}, {v(b+1)}\nv_mov_b32 {v(b+5)}, {v(b+4)}')
    P(f'v_mov_b32_dpp {v(b+4)}, {v(b+5)} row_ror:8 row_mask:0xf bank_mask:0xc')
    P(f'v_mov_b32_dpp {v(b+5)}, {v(b+5)} row_ror:8 row_mask:0xf bank_mask:0x3')
    unpack(b+8, b+9, b+4); unpack(b+6, b+7, b+5)
    P(f'v_add_f32 {v(b+6)}, 1.0, {v(b+6)}\nv_add_f32 {v(b+7)}, 1.0, {v(b+7)}\nv_cvt_pk_bf16_f32 {v(b+5)}, {v(b+6)}, {v(b+7)}')
    unpack(b+6, b+7, b+5)
    P(f'v_mul_f32 {v(b+6)}, {v(b+6)}, {v(vLN)}\nv_mul_f32 {v(b+7)}, {v(b+7)}, {v(vLN+1)}\nv_cvt_pk_bf16_f32 {v(b+5)}, {v(b+6)}, {v(b+7)}')
    unpack(b+6, b+7, b+5)
    P(f'v_add_f32 {v(b+6)}, {v(b+6)}, {v(b+8)}\nv_add_f32 {v(b+7)}, {v(b+7)}, {v(b+9)}')
    vH = 20
    P(f'v_cvt_pk_bf16_f32 {v(vH)}, {v(b+6)}, {v(b+6)}\nv_cvt_pk_bf16_f32 {v(vH+1)}, {v(b+7)}, {v(b+7)}')
    P(f's_lshl_b32 {s(sO1)}, {s(sH)}, 13\ns_add_u32 {s(sO1)}, {s(sO1)}, {hex(X2)}\ns_lshl_b32 {s(sO0)}, {s(sJ)}, 10\ns_add_u32 {s(sO0)}, {s(sO0)}, {s(sO1)}\ns_add_u32 {s(sO2)}, {s(sO1)}, 4096')
    chain(vD0, 16, [vWQ+4*i for i in range(16)], [(vH + (i & 1), f'row_newbcast:{i >> 1}') for i in range(16)], vAA)
    finish1(vD0)
    publish_loc(vD0, vL16, sO0)
    if cfg.hint:
        P(f's_lshl_b32 {s(sO3)}, {s(sH)}, 7\ns_add_u32 {s(sO3)}, {s(sO3)}, {hex(X2F)}\nv_mov_b32 {v(vT)}, 0\ns_lshl_b32 {s(sT0)}, {s(sJ)}, 2\ns_add_u32 {s(sT0)}, {s(sT0)}, {s(sO3)}')
        setexec(1)
        P(f'buffer_store_dword {v(vD0+2)}, {v(vT)}, {S(SRD_WS)}, {s(sT0)} offen sc1')
        setexec(ALL)
    stamp('C0_x2pub')
    P(f'v_bfe_u32 {v(vT)}, {v(vL)}, 4, 1\nv_lshrrev_b32 {v(vT+1)}, 5, {v(vL)}\nv_lshl_add_u32 {v(vT)}, {v(vT)}, 1, {v(vT+1)}\nv_and_b32 {v(vT+1)}, 15, {v(vL)}\nv_lshl_add_u32 {v(vT)}, {v(vT+1)}, 2, {v(vT)}')
    P(f'v_lshlrev_b32 {v(vT)}, 2, {v(vT)}\nv_add_u32 {v(26)}, {hex(L_Q)}, {v(vT)}')
    P(f'v_and_b32 {v(27)}, 3, {v(vL)}\nv_lshlrev_b32 {v(27)}, 3, {v(27)}\nv_add_u32 {v(27)}, {hex(L_FLAG + 4)}, {v(27)}\nv_mov_b32 {v(25)}, 1')
    if cfg.hint: hint_wait('qh', sO3)
    stamp('C0_qh')
    if cfg.sleep2: P(f's_sleep {cfg.sleep2}')
    def gather8(base_lo, base_hi):
        def issue():
            for k in range(8):
                P(f'buffer_load_dwordx4 {v(vGA+4*k,4)}, {v(vL16)}, {S(SRD_WS)}, {s(base_lo if k < 4 else base_hi)} offen offset:{1024*(k & 3)} sc1')
        return issue
    def sum8():
        for a, b2 in ((0, 1), (2, 3), (4, 5), (6, 7), (0, 2), (4, 6), (0, 4)):
            for e in (0, 1): P(f'v_add_f32 {v(vGA+4*a+e)}, {v(vGA+4*a+e)}, {v(vGA+4*b2+e)}')
    tagcheck_loop(gather8(sO1, sO2), [vGA+4*k+2 for k in range(8)], 'q')
    stamp('C0_q')
    sum8()
    P(f'v_cvt_pk_bf16_f32 {v(vT)}, {v(vGA)}, {v(vGA+1)}')
    P(f'ds_write_b32 {v(26)}, {v(vT)}')
    P(f'ds_write_b32 {v(27)}, {v(25)}')
    vg, vXv, vGAv, vGBv, vU16, vDA, vXC, vL16r, vBP, sJJ, sP, sB4, sD = 64, 12, 13, 14, 15, 17, 20, 16, 18, sG, 4, 12, 8
    def vda():
        if cfg.par is None: P(f'v_lshrrev_b32 {v(vT)}, 2, {v(vL)}\nv_lshl_add_u32 {v(vDA)}, {v(vT)}, 12, {v(vU16)}')
        else: P(f'v_lshrrev_b32 {v(vT)}, 4, {v(vL)}\nv_lshl_add_u32 {v(vDA)}, {v(vT)}, 14, {v(vU16)}\nv_bfe_u32 {v(vT)}, {v(vL)}, 2, 2\nv_lshl_add_u32 {v(vDA)}, {v(vT)}, 11, {v(vDA)}')
    def red_addr():
        par_read(19)
        par_use(19)
        if X4NEAR:
            P(f's_lshr_b32 {s(sT0)}, {s(sJJ)}, 2\ns_lshl_b32 {s(sT0)}, {s(sT0)}, 14\ns_and_b32 {s(sT1)}, {s(sJJ)}, 3\ns_lshl_b32 {s(sT1)}, {s(sT1)}, 11\ns_add_u32 {s(sT0)}, {s(sT0)}, {s(sT1)}\ns_add_u32 {s(sT0)}, {s(sT0)}, {s(sNEAR)}')
            for p_ in range(4): P(f's_add_u32 {s(sP+p_)}, {s(sT0)}, {hex(X4N + p_*32768)}')
        if cfg.par is None:
            P(f's_lshl_b32 {s(sO0)}, {s(sJJ)}, 14\ns_add_u32 {s(sO0)}, {s(sO0)}, {hex(XB)}')
            if cfg.xbrep: P(f's_lshl_b32 {s(sT1)}, {s(sX)}, 17\ns_add_u32 {s(sO0)}, {s(sO0)}, {s(sT1)}')
            for k in range(4): P(f's_add_u32 {s(sB4+k)}, {s(sO0)}, {4096*k}')
        else:
            P(f's_lshl_b32 {s(sO0)}, {s(sJJ)}, 15\ns_add_u32 {s(sO0)}, {s(sO0)}, {s(sNEAR)}\ns_add_u32 {s(sO0)}, {s(sO0)}, {hex(XB2)}')
            for k, o in enumerate((0, 4096, 16384, 20480)): P(f's_add_u32 {s(sB4+k)}, {s(sO0)}, {o}')
        P(f's_lshr_b32 {s(sO3)}, {s(sX)}, 1\ns_lshl_b32 {s(sO3)}, {s(sO3)}, 14\ns_and_b32 {s(sT0)}, {s(sX)}, 1\ns_lshl_b32 {s(sT0)}, {s(sT0)}, 12\ns_add_u32 {s(sO3)}, {s(sO3)}, {s(sT0)}\ns_add_u32 {s(sO3)}, {s(sO3)}, {hex(XC)}')
        P(f's_lshl_b32 {s(sT1)}, {s(sJJ)}, 9\ns_add_u32 {s(sO3)}, {s(sO3)}, {s(sT1)}')
        if cfg.nearloc: P(f's_add_u32 {s(sO3)}, {s(sO3)}, {s(sNEAR)}')
        if cfg.par is not None:
            P(f's_lshr_b32 {s(sO2)}, {s(sJJ)}, 1\ns_lshl_b32 {s(sO2)}, {s(sO2)}, 9\ns_and_b32 {s(sT1)}, {s(sJJ)}, 1\ns_lshl_b32 {s(sT1)}, {s(sT1)}, 7\ns_add_u32 {s(sO2)}, {s(sO2)}, {s(sT1)}')
            P(f's_and_b32 {s(sT1)}, {s(sX)}, 1\ns_lshl_b32 {s(sT1)}, {s(sT1)}, 6\ns_add_u32 {s(sO2)}, {s(sO2)}, {s(sT1)}\ns_and_b32 {s(sT1)}, {s(sX)}, 2\ns_lshl_b32 {s(sT1)}, {s(sT1)}, 7\ns_add_u32 {s(sO2)}, {s(sO2)}, {s(sT1)}\ns_add_u32 {s(sO2)}, {s(sO2)}, {s(sNEAR)}\ns_add_u32 {s(sO2)}, {s(sO2)}, {hex(XD)}')
        if cfg.par is None:
            P(f's_lshr_b32 {s(sO2)}, {s(sJJ)}, 1\ns_lshl_b32 {s(sO2)}, {s(sO2)}, 10\ns_and_b32 {s(sT1)}, {s(sJJ)}, 1\ns_lshl_b32 {s(sT1)}, {s(sT1)}, 7\ns_add_u32 {s(sO2)}, {s(sO2)}, {s(sT1)}')
            P(f's_and_b32 {s(sT1)}, {s(sX)}, 1\ns_lshl_b32 {s(sT1)}, {s(sT1)}, 6\ns_add_u32 {s(sO2)}, {s(sO2)}, {s(sT1)}\ns_lshr_b32 {s(sT1)}, {s(sX)}, 1\ns_lshl_b32 {s(sT1)}, {s(sT1)}, 8\ns_add_u32 {s(sO2)}, {s(sO2)}, {s(sT1)}\ns_add_u32 {s(sO2)}, {s(sO2)}, {hex(XD)}')
        for k in range(3): P(f's_add_u32 {s(sD+k)}, {s(sO2)}, {hex(65536*k)}')
    def red_setup():
        P(f's_sub_u32 {s(sT0)}, {s(sKK)}, 8')
        P(f's_mov_b32 {s(sJJ)}, {s(sT0)}\ns_lshl_b32 {s(sR)}, {s(sX)}, 3\ns_add_u32 {s(sR)}, {s(sR)}, {s(sT0)}')
        if cfg.local:
            P(f's_lshl_b32 {s(sT1)}, {s(sX)}, 7\ns_add_u32 {s(sT1)}, {s(sT1)}, {hex(X0C)}\ns_add_u32 {s(sMASK)}, {s(sWSP)}, {s(sT1)}\ns_addc_u32 {s(sMASK+1)}, {s(sWSP+1)}, 0')
            P(f's_load_dwordx16 s[4:19], {s(sMASK,2)}, 0 glc\ns_load_dwordx16 s[20:35], {s(sMASK,2)}, 64 glc')
            P(f's_getreg_b32 {s(sLOC)}, hwreg(HW_REG_XCC_ID, 0, 3)\ns_lshl_b32 {s(sT1)}, {s(sTAG)}, 3\ns_or_b32 {s(sLOC)}, {s(sLOC)}, {s(sT1)}')
        P(f'v_lshlrev_b32 {v(vL16r)}, 4, {v(vL)}\nv_and_b32 {v(vU16)}, 3, {v(vL)}\nv_lshlrev_b32 {v(vU16)}, 4, {v(vU16)}')
        P(f'v_and_b32 {v(vT)}, 7, {v(vL)}\nv_lshlrev_b32 {v(vT)}, 4, {v(vT)}\nv_bfe_u32 {v(vT+1)}, {v(vL)}, 3, 1\nv_lshl_add_u32 {v(vT)}, {v(vT+1)}, 3, {v(vT)}\nv_bfe_u32 {v(vT+1)}, {v(vL)}, 4, 1\nv_lshl_add_u32 {v(vT)}, {v(vT+1)}, 2, {v(vT)}\nv_lshrrev_b32 {v(vT+1)}, 5, {v(vL)}\nv_lshl_add_u32 {v(vT+2)}, {v(vT+1)}, 1, {v(vT)}')
        P(f'v_bfe_u32 {v(vT)}, {v(vL)}, 4, 1\nv_lshlrev_b32 {v(vT)}, 7, {v(vT)}\nv_lshrrev_b32 {v(vT+1)}, 2, {v(vU16)}\nv_add_u32 {v(vBP)}, {v(vT)}, {v(vT+1)}\ns_lshl_b32 {s(sT1)}, {s(sX)}, 4\nv_add_u32 {v(vBP)}, {s(sT1)}, {v(vBP)}')
        vda()
        if cfg.local:
            P('s_waitcnt lgkmcnt(0)')
            P(f's_xor_b32 s4, s4, {s(sLOC)}')
            for k in range(5, 36): P(f's_xor_b32 {s(k)}, {s(k)}, {s(sLOC)}\ns_or_b32 s4, s4, {s(k)}')
            P(f's_cselect_b32 {s(sLOC)}, 0, 1')
            srd(SRD_WS, sWSP, WS_BYTES)
        srd(SRD_A, pX, 1024); srd(SRD_B, pOUT, 1024)
        P(f's_lshl_b32 {s(sT1)}, {s(sJJ)}, 7')
        P(f'buffer_load_ushort {v(vXv)}, {v(vT+2)}, {S(SRD_A)}, {s(sT1)} offen')
        P(f's_and_b32 {s(sT2)}, {s(sX)}, 1\ns_lshl_b32 {s(sT2)}, {s(sT2)}, 6\ns_add_u32 {s(sT1)}, {s(sT1)}, {s(sT2)}\ns_and_b32 {s(sT2)}, {s(sX)}, 2\ns_lshl_b32 {s(sT2)}, {s(sT2)}, 2\ns_add_u32 {s(sT1)}, {s(sT1)}, {s(sT2)}\ns_and_b32 {s(sT2)}, {s(sX)}, 4\ns_add_u32 {s(sG+2)}, {s(sT1)}, {s(sT2)}')
        if not X4NEAR:
            for p_ in range(4): P(f's_lshl_b32 {s(sP+p_)}, {s(sJJ)}, 11\ns_add_u32 {s(sP+p_)}, {s(sP+p_)}, {hex(X4 + p_*16384)}')
        for i in range(cfg.pipe.get('xd', 1)):
            for k in range(3): P(f'v_mov_b32 {v(192+12*i+8+k)}, {s(sTAG) if k == 2 else 0}')
    def x4_issue():
        for k in range(8): P(f'buffer_load_dwordx4 {v(vg+4*k,4)}, {v(vL16r)}, {S(SRD_WS)}, {s(sP + (k >> 1))} offen offset:{1024*(k & 1)} sc1')
    P('L_QKP:')
    vKR, vQ, vKB, vDQ, vS2, vE, vML = 8, 128, 144, 28, 208, 210, 216
    sM2 = sG
    P(f's_sub_u32 {s(sT2)}, {s(sW)}, 4\ns_lshl_b32 {s(sT0)}, {s(sT2)}, 3\ns_add_u32 {s(sT0)}, {s(sT0)}, {hex(L_FLAG)}\nv_mov_b32 {v(vT+2)}, {s(sT0)}')
    P(f'v_and_b32 {v(vT)}, 15, {v(vL)}\nv_lshrrev_b32 {v(vT+1)}, 4, {v(vL)}\nv_lshlrev_b32 {v(26)}, 4, {v(vT+1)}\nv_xor_b32 {v(vT+1)}, {v(vT+1)}, {v(vT)}\nv_lshlrev_b32 {v(vT+1)}, 4, {v(vT+1)}')
    if cfg.ksplit:
        P(f'v_and_b32 {v(vKR)}, 3, {v(vL)}\nv_lshlrev_b32 {v(vKR)}, 10, {v(vKR)}\nv_lshrrev_b32 {v(vT)}, 2, {v(vT)}\nv_lshl_add_u32 {v(vKR)}, {v(vT)}, 8, {v(vKR)}\nv_add_u32 {v(vKR)}, {v(vKR)}, {v(vT+1)}')
    else: P(f'v_lshl_add_u32 {v(vKR)}, {v(vT)}, 8, {v(vT+1)}')
    P(f's_lshl_b32 {s(sT0)}, {s(sT2)}, 15\nv_add_u32 {v(vKR)}, {s(sT0)}, {v(vKR)}')
    for q in range(1, 4): P(f'v_xor_b32 {v(vKR+q)}, {64*q}, {v(vKR)}')
    P(f'v_and_b32 {v(27)}, 7, {v(vL)}\nv_lshl_add_u32 {v(27)}, {v(27)}, 6, {v(26)}\nv_bfe_u32 {v(vT)}, {v(vL)}, 3, 1\nv_lshl_add_u32 {v(27)}, {v(vT)}, 3, {v(27)}')
    P(f's_lshl_b32 {s(sT0)}, {s(sT2)}, 9\ns_add_u32 {s(sT0)}, {s(sT0)}, {hex(L_P)}\nv_add_u32 {v(27)}, {s(sT0)}, {v(27)}\nv_add_u32 {v(26)}, {hex(L_Q)}, {v(26)}')
    P(f's_lshl_b32 {s(sT0)}, {s(sT2)}, 4\ns_add_u32 {s(sT0)}, {s(sT0)}, {hex(L_MS)}\nv_mov_b32 {v(25)}, {s(sT0)}\nv_mov_b32 {v(vML+2)}, 1\nv_mov_b32 {v(vML+3)}, 1')
    P(f's_mov_b32 {s(sMASK)}, 0x00010001\ns_mov_b32 {s(sMASK+1)}, 0x00010001\ns_mov_b32 {s(sM2)}, 0x01000100\ns_mov_b32 {s(sM2+1)}, 0x01000100')
    lds_wait('kq', vT+2, 2, 28, [28, 29], cfg.lsleep)
    stamp('C0_kready')
    for q in range(4): P(f'ds_read_b128 {v(vQ+4*q,4)}, {v(26)} offset:{64*q}')
    NB = 3; PD = NB - 1; NT = 8
    def kread(t, q): P(f'ds_read_b128 {v(vKB+16*(t % NB)+4*q,4)}, {v(vKR+q)} offset:{4096*t}')
    for t in range(PD):
        for q in range(4): kread(t, q)
    for t in range(NT + 1):
        u = t - 1
        for q in range(4):
            if t < NT:
                if q in (0, 2): P(f's_waitcnt lgkmcnt({min(4*PD - 2, 4*(NT - t) - 2 - q)})')
                mfma(vDQ + 4*(t & 1), vKB + 16*(t % NB) + 4*q, vQ + 4*q, first=(q == 0))
                if t + PD < NT: kread(t + PD, q)
            if t >= 1 and q >= 2:
                mk = sMASK if q == 2 else sM2
                for e in range(2):
                    P(f'v_cndmask_b32 {v(vS2+e)}, {v(vS2+e)}, {v(vDQ+4*(u & 1)+2*(q-2)+e)}, {s(mk,2)}')
        if t >= 1 and t < NT: P(f's_lshl_b64 {s(sMASK,2)}, {s(sMASK,2)}, 1\ns_lshl_b64 {s(sM2,2)}, {s(sM2,2)}, 1')
    stamp('C0_qk')
    P(f'v_cvt_pk_bf16_f32 {v(vE)}, {v(vS2)}, {v(vS2+1)}'); unpack(vS2, vS2+1, vE)
    for e in range(2): P(f'v_mul_f32 {v(vS2+e)}, {SCALE}, {v(vS2+e)}')
    P(f'v_cvt_pk_bf16_f32 {v(vE)}, {v(vS2)}, {v(vS2+1)}'); unpack(vS2, vS2+1, vE)
    P(f'v_max_f32 {v(vML)}, {v(vS2)}, {v(vS2+1)}')
    wave_reduce('v_max_f32', [vML])
    P(f'v_readlane_b32 {s(sT0)}, {v(vML)}, 63')
    for e in range(2): P(f'v_subrev_f32 {v(vE+e)}, {s(sT0)}, {v(vS2+e)}')
    for e in range(2): P(f'v_mul_f32 {v(vE+e)}, {LOG2E}, {v(vE+e)}')
    for e in range(2): P(f'v_exp_f32 {v(vE+e)}, {v(vE+e)}')
    P(f'v_add_f32 {v(vML+1)}, {v(vE)}, {v(vE+1)}')
    wave_reduce('v_add_f32', [vML+1])
    setexec(1 << 63)
    P(f'ds_write_b128 {v(25)}, {v(vML,4)}')
    setexec(ALL)
    P(f's_cmp_eq_u32 {s(sW)}, 4\ns_cbranch_scc1 L_C0ML')
    P(f's_cmp_eq_u32 {s(sW)}, 5\ns_cbranch_scc0 L_MLWAIT')
    if cfg.rwait == 4 or cfg.rearly:
        P(f's_sub_u32 {s(sT0)}, {s(sKK)}, 8\ns_cmp_lt_u32 {s(sT0)}, 8\ns_cbranch_scc0 L_NORED')
        red_setup()
        if cfg.rwait == 4: x4_issue()
        P('s_branch L_MLWAIT\nL_NORED:')
    P(f's_cmp_eq_u32 {s(sR)}, 99\ns_cbranch_scc0 L_MLWAIT')
    modtile_compute(0, sO2, X4NEAR)
    P('L_MLWAIT:')
    if cfg.mlpw:
        P(f's_cmp_eq_u32 {s(sW)}, 6\ns_cbranch_scc0 L_NOGL')
        P(f's_mov_b32 {s(sR)}, 0')
        if cfg.local:
            P(f's_lshl_b32 {s(sT0)}, {s(sX)}, 3\ns_lshr_b32 {s(sT1)}, {s(sKK)}, 2\ns_add_u32 {s(sT0)}, {s(sT0)}, {s(sT1)}\ns_lshl_b32 {s(sT0)}, {s(sT0)}, 7\ns_add_u32 {s(sT0)}, {s(sT0)}, {hex(X0B)}')
            P(f's_load_dwordx4 s[8:11], {s(sWSP,2)}, {s(sT0)} glc\ns_getreg_b32 {s(sT1)}, hwreg(HW_REG_XCC_ID, 0, 3)\ns_lshl_b32 {s(sT0)}, {s(sTAG)}, 3\ns_or_b32 {s(sT1)}, {s(sT1)}, {s(sT0)}\ns_waitcnt lgkmcnt(0)')
            P(f's_xor_b32 s8, s8, {s(sT1)}')
            for k in range(1, 4): P(f's_xor_b32 {s(8+k)}, {s(8+k)}, {s(sT1)}\ns_or_b32 s8, s8, {s(8+k)}')
            P(f's_cselect_b32 {s(sR)}, 0, 1')
        P('L_NOGL:')
    if cfg.par == 'dyn':
        P(f's_cmp_eq_u32 {s(sW)}, 7\ns_cbranch_scc0 L_NOPF')
        P(f's_lshl_b32 {s(sT0)}, {s(sX)}, 7\ns_add_u32 {s(sT0)}, {s(sT0)}, {hex(XP)}\ns_lshl_b32 {s(sT1)}, {s(sTAG)}, 1\ns_mov_b32 {s(sSPIN)}, 0')
        P(f'L_PFT:\ns_load_dword s8, {s(sWSP,2)}, {s(sT0)} glc\ns_add_u32 {s(sSPIN)}, {s(sSPIN)}, 1\ns_cmp_gt_u32 {s(sSPIN)}, {cfg.spin}\ns_cbranch_scc1 L_END\ns_waitcnt lgkmcnt(0)')
        P(f's_xor_b32 s9, s8, {s(sT1)}\ns_cmp_lt_u32 s9, 2\ns_cbranch_scc1 L_PFD\ns_sleep 8\ns_branch L_PFT\nL_PFD:')
        P(f's_or_b32 s9, s9, 2\nv_mov_b32 {v(vT)}, {hex(L_PAR)}\nv_mov_b32 {v(vT+1)}, s9\nds_write_b32 {v(vT)}, {v(vT+1)}')
        P('L_NOPF:')
    P(f'v_mov_b32 {v(vT+2)}, {hex(L_ML)}')
    lds_wait('mlw', vT+2, 4, vML, [vML+2], cfg.lsleep)
    P('s_branch L_PCALC')
    P('L_C0ML:')
    P(f'v_and_b32 {v(vT+2)}, 3, {v(vL)}\nv_lshlrev_b32 {v(vT+2)}, 4, {v(vT+2)}\nv_add_u32 {v(vT+2)}, {hex(L_MS)}, {v(vT+2)}')
    P(f's_lshl_b32 {s(sO1)}, {s(sH)}, 7\ns_add_u32 {s(sO1)}, {s(sO1)}, {hex(X3)}\ns_lshl_b32 {s(sO0)}, {s(sJ)}, 4\ns_add_u32 {s(sO0)}, {s(sO0)}, {s(sO1)}')
    lds_wait('msw', vT+2, 4, 220, [222])
    P(f'v_max_f32_dpp {v(vML)}, {v(220)}, {v(220)} quad_perm:[1,0,3,2] row_mask:0xf bank_mask:0xf\nv_mov_b32 {v(vML+2)}, {s(sTAG)}\nv_mov_b32 {v(vML+3)}, {s(sTAG)}')
    P(f'v_max_f32_dpp {v(vML)}, {v(vML)}, {v(vML)} quad_perm:[2,3,0,1] row_mask:0xf bank_mask:0xf')
    P(f'v_sub_f32 {v(220)}, {v(220)}, {v(vML)}\nv_mul_f32 {v(220)}, {LOG2E}, {v(220)}\nv_exp_f32 {v(220)}, {v(220)}\nv_mov_b32 {v(vT)}, 0\nv_mul_f32 {v(vML+1)}, {v(220)}, {v(221)}')
    for mod in ('quad_perm:[1,0,3,2]', 'quad_perm:[2,3,0,1]'): P(f'v_add_f32_dpp {v(vML+1)}, {v(vML+1)}, {v(vML+1)} {mod} row_mask:0xf bank_mask:0xf')
    if cfg.mlat:
        P(f'v_readfirstlane_b32 s4, {v(vML)}\nv_readfirstlane_b32 s5, {v(vML+1)}')
        P(f's_add_u32 {s(sMASK)}, {s(sWSP)}, {s(sO1)}\ns_addc_u32 {s(sMASK+1)}, {s(sWSP+1)}, 0\ns_lshl_b32 {s(sT0)}, {s(sJ)}, 3\ns_mov_b32 {s(sSPIN)}, 0')
        P(f's_atomic_add_x2 s[4:5], {s(sMASK,2)}, {s(sT0)}')
        stamp('C0_x3pub')
        gl = [4 + 2*k for k in range(8)]
        P('s_waitcnt lgkmcnt(0)')
        P('L_MLW:')
        if cfg.sleep3: P(f's_sleep {cfg.sleep3}')
        P(f's_load_dwordx16 s[4:19], {s(sMASK,2)}, 0 glc')
        P(f's_add_u32 {s(sSPIN)}, {s(sSPIN)}, 1\ns_cmp_gt_u32 {s(sSPIN)}, {cfg.spin}\ns_cbranch_scc1 L_END')
        P('s_waitcnt lgkmcnt(0)')
        P(f's_min_u32 {s(sT0)}, s5, s7')
        for g in gl[2:]: P(f's_min_u32 {s(sT0)}, {s(sT0)}, {s(g+1)}')
        P(f's_cmp_eq_u32 {s(sT0)}, 0\ns_cbranch_scc1 L_MLW')
    else:
        publish(vML, vT, sO0, 1)
        stamp('C0_x3pub')
        P(f's_add_u32 {s(sMASK)}, {s(sWSP)}, {s(sO1)}\ns_addc_u32 {s(sMASK+1)}, {s(sWSP+1)}, 0\ns_mov_b32 {s(sSPIN)}, 0')
        gl = [4 + 4*k for k in range(8)]
        P('L_MLW:')
        if cfg.sleep3: P(f's_sleep {cfg.sleep3}')
        P(f's_load_dwordx16 s[4:19], {s(sMASK,2)}, 0 glc\ns_load_dwordx16 s[20:35], {s(sMASK,2)}, 64 glc')
        P(f's_add_u32 {s(sSPIN)}, {s(sSPIN)}, 1\ns_cmp_gt_u32 {s(sSPIN)}, {cfg.spin}\ns_cbranch_scc1 L_END')
        P('s_waitcnt lgkmcnt(0)')
        P(f's_xor_b32 {s(sT0)}, {s(gl[0]+2)}, {s(sTAG)}')
        for g in gl[1:]: P(f's_xor_b32 {s(sT1)}, {s(g+2)}, {s(sTAG)}\ns_or_b32 {s(sT0)}, {s(sT0)}, {s(sT1)}')
        P('s_cbranch_scc1 L_MLW')
    stamp('C0_ml')
    vG8 = 220
    P(f'v_mov_b32 {v(vML)}, {s(gl[0])}')
    for g in gl[1:]: P(f'v_max_f32 {v(vML)}, {s(g)}, {v(vML)}')
    for k, g in enumerate(gl): P(f'v_sub_f32 {v(vG8+k)}, {s(g)}, {v(vML)}')
    for k in range(8): P(f'v_mul_f32 {v(vG8+k)}, {LOG2E}, {v(vG8+k)}')
    for k in range(8): P(f'v_exp_f32 {v(vG8+k)}, {v(vG8+k)}')
    P(f'v_mul_f32 {v(vE)}, {s(gl[0]+1)}, {v(vG8)}')
    for k, g in enumerate(gl[1:]): P(f'v_fmac_f32 {v(vE)}, {s(g+1)}, {v(vG8+k+1)}')
    P(f'v_rcp_f32 {v(vE+1)}, {v(vE)}\nv_mov_b32 {v(vT+2)}, {hex(L_ML)}\nv_mov_b32 {v(vML+2)}, 1')
    P(f'v_fma_f32 {v(vE)}, -{v(vE)}, {v(vE+1)}, 1.0\nv_fma_f32 {v(vML+1)}, {v(vE)}, {v(vE+1)}, {v(vE+1)}')
    setexec(1)
    P(f'ds_write_b128 {v(vT+2)}, {v(vML,4)}')
    setexec(ALL)
    P('L_PCALC:')
    for e in range(2): P(f'v_sub_f32 {v(vE+e)}, {v(vS2+e)}, {v(vML)}')
    for e in range(2): P(f'v_mul_f32 {v(vE+e)}, {LOG2E}, {v(vE+e)}')
    for e in range(2): P(f'v_exp_f32 {v(vE+e)}, {v(vE+e)}')
    for e in range(2): P(f'v_mul_f32 {v(vE+e)}, {v(vE+e)}, {v(vML+1)}')
    for e in range(2): P(f'v_cvt_pk_bf16_f32 {v(vE+e)}, {v(vE+e)}, {v(vE+e)}')
    P(f'ds_write_b64 {v(27)}, {v(vE,2)}')
    srd(SRD_WS, sWSP, WS_BYTES)
    P(f's_cmp_eq_u32 {s(sW)}, 4\ns_cbranch_scc1 L_C0B1')
    P('s_waitcnt lgkmcnt(0)')
    P('s_barrier')
    P(f's_cmp_eq_u32 {s(sW)}, 5\ns_cbranch_scc1 L_C1B1')
    P('s_branch L_C23B1')
    P('L_C0B1:')
    srd(SRD_A, pWO, 4 << 20)
    P(f'v_bfe_u32 {v(vT)}, {v(vL)}, 3, 1\nv_lshlrev_b32 {v(vT)}, 16, {v(vT)}\nv_bfe_u32 {v(vT+1)}, {v(vL)}, 4, 1\nv_lshl_add_u32 {v(vT)}, {v(vT+1)}, 12, {v(vT)}\nv_lshrrev_b32 {v(vT+1)}, 5, {v(vL)}\nv_lshl_add_u32 {v(vT)}, {v(vT+1)}, 11, {v(vT)}')
    P(f'v_and_b32 {v(vT+1)}, 7, {v(vL)}\nv_lshl_add_u32 {v(vWA)}, {v(vT+1)}, 4, {v(vT)}')
    P(f's_lshl_b32 {s(sO0)}, {s(sH)}, 17\ns_lshl_b32 {s(sT0)}, {s(sJ)}, 7\ns_add_u32 {s(sO0)}, {s(sO0)}, {s(sT0)}')
    P('s_waitcnt lgkmcnt(0)')
    stamp('C0_p')
    P('s_barrier')
    vWO = 64
    par_read(15)
    def wo_issue(sreg):
        for i in range(16):
            P(f'buffer_load_dwordx4 {v(vWO+4*i,4)}, {v(vWA)}, {S(SRD_A)}, {s(sreg)} offen offset:{1024*(i & 1)} {cfg.wpol}')
            if (i & 1) == 1 and i < 15: P(f's_add_u32 {s(sreg)}, {s(sreg)}, 8192')
    if not cfg.wob2: wo_issue(sO0)
    else: P(f's_mov_b32 {s(sG)}, {s(sO0)}')
    P(f'v_lshrrev_b32 {v(vT+2)}, 1, {v(vL16)}\nv_add_u32 {v(vT+2)}, {hex(L_OP)}, {v(vT+2)}')
    par_use(15)
    P(f's_lshl_b32 {s(sO1)}, {s(sH)}, 14\ns_add_u32 {s(sO1)}, {s(sO1)}, {hex(XA)}')
    if cfg.nearloc: P(f's_add_u32 {s(sO1)}, {s(sO1)}, {s(sNEAR)}')
    P(f's_lshl_b32 {s(sO0)}, {s(sJ)}, 10\ns_add_u32 {s(sO0)}, {s(sO0)}, {s(sO1)}\ns_add_u32 {s(sO2)}, {s(sO1)}, 4096')
    P(f's_lshl_b32 {s(sO3)}, {s(sJ)}, 5\ns_add_u32 {s(sO3)}, {s(sO3)}, {s(sH)}\ns_lshl_b32 {s(sO3)}, {s(sO3)}, 9\ns_add_u32 {s(sO3)}, {s(sO3)}, {hex(XB)}')
    P(f'v_mov_b32 {v(22)}, {s(sTAG)}')
    vAP, vDNA, vCA, vEA, vXBA = 8, 10, 11, 12, 13
    P(f'v_mov_b32 {v(14)}, {hex(L_FLAG + 160)}')
    if cfg.gwait:
        P(f'v_and_b32 {v(16)}, 31, {v(vL)}\nv_lshlrev_b32 {v(16)}, 2, {v(16)}\ns_lshl_b32 {s(sG)}, {s(sX)}, 7\ns_add_u32 {s(sG)}, {s(sG)}, {hex(XG)}')
    if cfg.par is None: P(f'v_bfe_u32 {v(vT)}, {v(vL)}, 3, 1\nv_lshl_add_u32 {v(vXBA)}, {v(vT)}, 17, {v(vPUB)}')
    else:
        P(f'v_bfe_u32 {v(vT)}, {v(vL)}, 3, 1\nv_xor_b32 {v(vT)}, {s(sPAR)}, {v(vT)}\nv_lshl_add_u32 {v(vXBA)}, {v(vT)}, 13, {v(vPUB)}')
        P(f's_lshl_b32 {s(sO3)}, {s(sJ)}, 1\ns_lshr_b32 {s(sT0)}, {s(sH)}, 4\ns_add_u32 {s(sO3)}, {s(sO3)}, {s(sT0)}\ns_lshl_b32 {s(sO3)}, {s(sO3)}, 14\ns_and_b32 {s(sT0)}, {s(sH)}, 15\ns_lshl_b32 {s(sT0)}, {s(sT0)}, 9\ns_add_u32 {s(sO3)}, {s(sO3)}, {s(sT0)}\ns_add_u32 {s(sO3)}, {s(sO3)}, {hex(XB2)}')
    sQ, sW2, sDN, sEP, sEG, sDP, sC0 = 4, 6, 8, 9, 10, 11, 12
    vDPA = 17
    def mlp_setup():
        P(f's_sub_u32 {s(sT0)}, {s(sKK)}, 8\ns_cmp_lt_u32 {s(sKK)}, 8\ns_cselect_b32 {s(sT1)}, {s(sKK)}, {s(sT0)}\ns_and_b32 {s(sQ)}, {s(sT1)}, 3\ns_lshr_b32 {s(sT1)}, {s(sT1)}, 2')
        P(f's_mul_i32 {s(sIM)}, {s(sX)}, 6\ns_add_u32 {s(sIM)}, {s(sIM)}, {s(sT1)}\ns_cmp_lt_u32 {s(sT0)}, 8\ns_cselect_b32 {s(sIM)}, 255, {s(sIM)}')
        srd(SRD_B, pW2, 1376*1024)
        P(f'v_lshrrev_b32 {v(vT)}, 3, {v(vL)}\nv_mul_u32_u24 {v(vT)}, {16*2752}, {v(vT)}\nv_and_b32 {v(vT+1)}, 3, {v(vL)}\nv_lshl_add_u32 {v(vT)}, {v(vT+1)}, 4, {v(vT)}')
        P(f's_mul_i32 {s(sT0)}, {s(sQ)}, {128*2752}\ns_min_u32 {s(sT1)}, {s(sIM)}, {NM-1}\ns_lshl_b32 {s(sT1)}, {s(sT1)}, 6\ns_add_u32 {s(sT0)}, {s(sT0)}, {s(sT1)}\nv_add_u32 {v(vT)}, {s(sT0)}, {v(vT)}')
        P(f's_mov_b32 {s(sMASK)}, 0xf0f0f0f0\ns_mov_b32 {s(sMASK+1)}, 0xf0f0f0f0\ns_mov_b32 {s(sW2)}, 2752*2\ns_mov_b32 {s(sW2+1)}, 0')
        P(f'v_mov_b32 {v(vAP)}, {s(pW1)}\nv_mov_b32 {v(vAP+1)}, {s(pW1+1)}\nv_mov_b32 {v(vT+1)}, {s(pW3)}\nv_mov_b32 {v(vCA)}, {s(pW3+1)}')
        P(f'v_cndmask_b32 {v(vAP)}, {v(vAP)}, {v(vT+1)}, {s(sMASK,2)}\nv_cndmask_b32 {v(vAP+1)}, {v(vAP+1)}, {v(vCA)}, {s(sMASK,2)}')
        P(f'v_add_co_u32 {v(vAP)}, vcc, {v(vAP)}, {v(vT)}\nv_addc_co_u32 {v(vAP+1)}, vcc, 0, {v(vAP+1)}, vcc')
        P(f'v_bfe_u32 {v(vT)}, {v(vL)}, 4, 1\nv_lshlrev_b32 {v(vDNA)}, 12, {v(vT)}\nv_lshrrev_b32 {v(vT)}, 5, {v(vL)}\nv_lshl_add_u32 {v(vDNA)}, {v(vT)}, 11, {v(vDNA)}\nv_and_b32 {v(vT)}, 15, {v(vL)}\nv_lshl_add_u32 {v(vDNA)}, {v(vT)}, 4, {v(vDNA)}')
        P(f's_lshl_b32 {s(sDN)}, {s(sIM)}, 15\ns_lshl_b32 {s(sT0)}, {s(sQ)}, 8\ns_add_u32 {s(sDN)}, {s(sDN)}, {s(sT0)}')
        P(f's_lshr_b32 {s(sEG)}, {s(sIM)}, 2\ns_lshl_b32 {s(sEG)}, {s(sEG)}, 14\ns_and_b32 {s(sT0)}, {s(sIM)}, 3\ns_lshl_b32 {s(sT0)}, {s(sT0)}, 11\ns_add_u32 {s(sEG)}, {s(sEG)}, {s(sT0)}\ns_add_u32 {s(sEG)}, {s(sEG)}, {hex(XE)}')
        if cfg.nearloc: P(f's_add_u32 {s(sEG)}, {s(sEG)}, {s(sNEAR)}')
        P(f's_lshl_b32 {s(sT0)}, {s(sQ)}, 9\ns_add_u32 {s(sEP)}, {s(sEG)}, {s(sT0)}')
        if cfg.par is None: P(f's_lshl_b32 {s(sDP)}, {s(sIM)}, 12\ns_lshl_b32 {s(sT0)}, {s(sQ)}, 10\ns_add_u32 {s(sDP)}, {s(sDP)}, {s(sT0)}\ns_add_u32 {s(sDP)}, {s(sDP)}, {hex(XD)}')
        else:
            P(f's_lshr_b32 {s(sDP)}, {s(sIM)}, 2\ns_lshl_b32 {s(sDP)}, {s(sDP)}, 14\ns_and_b32 {s(sT0)}, {s(sIM)}, 3\ns_lshl_b32 {s(sT0)}, {s(sT0)}, 11\ns_add_u32 {s(sDP)}, {s(sDP)}, {s(sT0)}\ns_lshl_b32 {s(sT0)}, {s(sQ)}, 9\ns_add_u32 {s(sDP)}, {s(sDP)}, {s(sT0)}\ns_add_u32 {s(sDP)}, {s(sDP)}, {hex(XD)}')
            P(f'v_and_b32 {v(vDPA)}, 31, {v(vL)}\nv_lshlrev_b32 {v(vDPA)}, 4, {v(vDPA)}\nv_lshrrev_b32 {v(vT)}, 5, {v(vL)}\nv_xor_b32 {v(vT)}, {s(sPAR)}, {v(vT)}\nv_lshl_add_u32 {v(vDPA)}, {v(vT)}, 13, {v(vDPA)}')
        P(f's_lshr_b32 {s(sT1)}, {s(sX)}, 1\ns_lshl_b32 {s(sT1)}, {s(sT1)}, 14\ns_and_b32 {s(sT0)}, {s(sX)}, 1\ns_lshl_b32 {s(sT0)}, {s(sT0)}, 12\ns_add_u32 {s(sT1)}, {s(sT1)}, {s(sT0)}\ns_add_u32 {s(sT1)}, {s(sT1)}, {hex(XC)}')
        if cfg.nearloc: P(f's_add_u32 {s(sT1)}, {s(sT1)}, {s(sNEAR)}')
        for k in range(4): P(f's_add_u32 {s(sT0)}, {s(sQ)}, {k}\ns_and_b32 {s(sT0)}, {s(sT0)}, 3\ns_lshl_b32 {s(sT0)}, {s(sT0)}, 10\ns_add_u32 {s(sC0+k)}, {s(sT0)}, {s(sT1)}')
        P(f'v_lshrrev_b32 {v(vT)}, 5, {v(vL)}\nv_lshlrev_b32 {v(vCA)}, 9, {v(vT)}\nv_bfe_u32 {v(vT)}, {v(vL)}, 1, 1\nv_lshl_add_u32 {v(vCA)}, {v(vT)}, 7, {v(vCA)}\nv_and_b32 {v(vT)}, 1, {v(vL)}\nv_lshl_add_u32 {v(vCA)}, {v(vT)}, 8, {v(vCA)}')
        P(f'v_bfe_u32 {v(vT)}, {v(vL)}, 2, 3\nv_lshl_add_u32 {v(vCA)}, {v(vT)}, 4, {v(vCA)}')
        P(f'v_bfe_u32 {v(vT)}, {v(vL)}, 3, 1\nv_lshlrev_b32 {v(vT)}, 9, {v(vT)}\nv_add_u32 {v(vEA)}, {v(vPUB)}, {v(vT)}')
    if not cfg.mlpw: mlp_setup()
    else: P(f'v_mov_b32 {v(16)}, {hex(L_FLAG + 168)}')
    P('s_barrier')
    stamp('C0_b2')
    for w in range(4): P(f'ds_read_b64 {v(24+2*w,2)}, {v(vT+2)} offset:{512*w}')
    P('s_waitcnt lgkmcnt(2)')
    add2(24, 24, 26)
    P('s_waitcnt lgkmcnt(0)')
    add2(28, 28, 30)
    add2(20, 24, 28)
    publish_loc(20, vL16, sO0)
    stamp('C0_xapub')
    if cfg.wob2 == 1: wo_issue(sG)
    if cfg.wofirst: P(f's_waitcnt vmcnt({cfg.wofirst - 1})')
    vOd = 40
    def issue(b):
        for k in range(0, 8, 2 if cfg.fakehalf & 2 else 1):
            P(f'buffer_load_dwordx4 {v(b+4*k,4)}, {v(vL16)}, {S(SRD_WS)}, {s(sO1 if k < 4 else sO2)} offen offset:{1024*(k & 3)} sc1')
    def done(b):
        for a, b2 in ((0, 1), (2, 3), (4, 5), (6, 7), (0, 2), (4, 6), (0, 4)): add2(b+4*a, b+4*a, b+4*b2)
        P(f'v_cvt_pk_bf16_f32 {v(vOd)}, {v(b)}, {v(b)}\nv_cvt_pk_bf16_f32 {v(vOd+1)}, {v(b+1)}, {v(b+1)}')
    poll('xa', issue, 8, 128, 32, [4*k+2 for k in range(0, 8, 2 if cfg.fakehalf & 2 else 1)], done)
    if cfg.mlpw: P(f'ds_write_b32 {v(16)}, {v(16)}')
    stamp('C0_xa')
    vGW, vGA2 = 15, 16
    def g_issue(): P(f'buffer_load_dword {v(vGW)}, {v(vGA2)}, {S(SRD_WS)}, {s(sG)} offen sc1')
    if cfg.gwait: g_issue()
    lohi(vOd)
    chain(vD0, 16, [vWO+4*i for i in range(16)], lohi_srcs(vOd), vAA)
    finish2(vD0)
    if cfg.par is not None:
        for e in range(2): P(f'v_mov_b32_dpp {v(vD0+e)}, {v(vD0+e)} row_ror:8 row_mask:0xf bank_mask:0xc')
        publish(vD0, vXBA, sO3)
    elif cfg.xbrep:
        for e in range(2): P(f'v_mov_b32_dpp {v(vD0+e)}, {v(vD0+e)} row_ror:8 row_mask:0xf bank_mask:0xc')
        for i in range(4):
            P(f'buffer_store_dwordx4 {v(vD0,4)}, {v(vXBA)}, {S(SRD_WS)}, {s(sO3)} offen sc1')
            if i < 3: P(f's_add_u32 {s(sO3)}, {s(sO3)}, 0x40000')
    else: publish(vD0, vPUB, sO3, M2SET)
    if cfg.rwait and cfg.rwait < 4: P(f'ds_write_b32 {v(14)}, {v(14)}')
    stamp('C0_xbpub')
    def mlp_body():
        vUP, vDN, vCG, vEG = 128, 192, 64, 80
        if cfg.gwait:
            P(f's_mov_b32 {s(sSPIN)}, 0\ns_waitcnt vmcnt({4 if cfg.xbrep else 1})\ns_branch L_GCHK\nL_GTOP:')
            g_issue()
            P(f's_add_u32 {s(sSPIN)}, {s(sSPIN)}, 1\ns_cmp_gt_u32 {s(sSPIN)}, {cfg.spin}\ns_cbranch_scc1 L_END\ns_waitcnt vmcnt(0)\nL_GCHK:')
            P(f'v_cmp_eq_u32 vcc, {s(sTAG)}, {v(vGW)}\ns_bcnt1_i32_b64 {s(sT0)}, vcc\ns_cmp_lt_u32 {s(sT0)}, {2*cfg.gthr}\ns_cbranch_scc1 L_GTOP')
        for i in range(16):
            if not (cfg.fakehalf & 4 and i % 4 == 3): P(f'global_load_dwordx4 {v(vUP+4*i,4)}, {v(vAP,2)}, off offset:{2752*(i & 1)} {cfg.uppol}')
            if i & 1 and i < 15: P(f'v_lshl_add_u64 {v(vAP,2)}, {v(vAP,2)}, 0, {s(sW2,2)}')
        def dn_issue():
            for i in range(8):
                P(f'buffer_load_dwordx4 {v(vDN+4*i,4)}, {v(vDNA)}, {S(SRD_B)}, {s(sDN)} offen offset:{1024*(i & 1)} {cfg.wpol}')
                if i & 1 and i < 7: P(f's_add_u32 {s(sDN)}, {s(sDN)}, 8192')
        if cfg.mlpw:
            P(f'v_mov_b32 {v(vT+2)}, {hex(L_FLAG + 160)}')
            lds_wait('fb', vT+2, 1, 28, [28])
        if not cfg.dnlate: dn_issue()
        if cfg.wfirst: P('s_waitcnt vmcnt(0)')
        if cfg.diag and 'M_w' in cfg.diag:
            P('s_waitcnt vmcnt(0)'); stamp('M_w')
        vx, vcb, vsb = 88, 24, 26
        def issue(b):
            for k in range(4): P(f'buffer_load_dwordx4 {v(b+4*k,4)}, {v(vCA)}, {S(SRD_WS)}, {s(sC0+k)} offen sc1')
        def done(b):
            for k in range(4): unpack(vx+2*k, vx+2*k+1, b+4*k)
            if not cfg.lnopt: unpack(vcb, vcb+1, b+1); unpack(vsb, vsb+1, b+2)
        if cfg.dnlate == 3:
            issue(64); dn_issue()
            P('s_waitcnt vmcnt(8)')
            tr = [64+4*k+3 for k in range(4)]
            P(f'v_xor_b32 {v(vT)}, {s(sTAG)}, {v(tr[0])}\nv_xor_b32 {v(vT+1)}, {s(sTAG)}, {v(tr[1])}')
            for k, r in enumerate(tr[2:]): P(f'v_bitop3_b32 {v(vT + k)}, {v(r)}, {s(sTAG)}, {v(vT + k)} bitop3:{TAGX}')
            P(f'v_or_b32 {v(vT)}, {v(vT)}, {v(vT+1)}\nv_cmp_ne_u32 vcc, 0, {v(vT)}\ns_cbranch_vccz L_XCOK')
            poll('xc', issue, 4, 64, 16, tr and [4*k+3 for k in range(4)], lambda b: None)
            P('L_XCOK:')
            done(64)
        else:
            poll('xc', issue, 4, 64 if cfg.pipe.get('xc', 1) == 1 else 104, 16 if cfg.pipe.get('xc', 1) != 2 else -40, [4*k+3 for k in range(4)], done)
        stamp('M_xc')
        if cfg.dnlate == 1: dn_issue()
        P(f'v_readfirstlane_b32 {s(sT0)}, {v(vx)}')
        for k in range(8): P(f'v_subrev_f32 {v(96+k)}, {s(sT0)}, {v(vx+k)}')
        P(f'v_pk_add_f32 {v(20,2)}, {v(96,2)}, {v(98,2)}\nv_pk_add_f32 {v(22,2)}, {v(100,2)}, {v(102,2)}\nv_pk_mul_f32 {v(28,2)}, {v(96,2)}, {v(96,2)}\nv_pk_mul_f32 {v(30,2)}, {v(100,2)}, {v(100,2)}')
        P(f'v_pk_add_f32 {v(20,2)}, {v(20,2)}, {v(22,2)}\nv_pk_fma_f32 {v(28,2)}, {v(98,2)}, {v(98,2)}, {v(28,2)}\nv_pk_fma_f32 {v(30,2)}, {v(102,2)}, {v(102,2)}, {v(30,2)}')
        P(f'v_add_f32 {v(22)}, {v(20)}, {v(21)}\nv_pk_add_f32 {v(28,2)}, {v(28,2)}, {v(30,2)}\nv_add_f32 {v(23)}, {v(28)}, {v(29)}')
        fill = [f'v_lshlrev_b32 {v(vcb)}, 16, {v(65)}', f'v_and_b32 {v(vcb+1)}, 0xffff0000, {v(65)}', f'v_lshlrev_b32 {v(vsb)}, 16, {v(66)}', f'v_and_b32 {v(vsb+1)}, 0xffff0000, {v(66)}']
        for q_, mod in enumerate(('quad_perm:[1,0,3,2]', 'quad_perm:[2,3,0,1]', 'row_ror:4', 'row_ror:8')):
            P(f'v_add_f32_dpp {v(22)}, {v(22)}, {v(22)} {mod} row_mask:0xf bank_mask:0xf')
            if cfg.lnopt: assert cfg.pipe.get('xc', 1) == 1; P(fill[q_])
            P(f'v_add_f32_dpp {v(23)}, {v(23)}, {v(23)} {mod} row_mask:0xf bank_mask:0xf')
        P(f'v_permlane16_swap_b32 {v(22)}, {v(23)}\nv_add_f32 {v(22)}, {v(22)}, {v(23)}\nv_mov_b32 {v(23)}, {v(22)}')
        P(f'v_permlane32_swap_b32 {v(22)}, {v(23)}\nv_add_f32 {v(22)}, {v(22)}, {v(23)}\nv_mul_f32 {v(22)}, {R512}, {v(22)}')
        if cfg.lnopt: P(f'v_mov_b32 {v(23)}, {v(22)}\nv_permlane16_swap_b32 {v(22)}, {v(23)}')
        else:
            P(f'v_readlane_b32 {s(sT1)}, {v(22)}, 0\nv_readlane_b32 {s(sT2)}, {v(22)}, 16')
            P(f'v_mov_b32 {v(22)}, {s(sT1)}\nv_mov_b32 {v(23)}, {s(sT2)}')
        P(f'v_fma_f32 {v(23)}, -{v(22)}, {v(22)}, {v(23)}\nv_add_f32 {v(22)}, {s(sT0)}, {v(22)}\nv_max_f32 {v(23)}, 0, {v(23)}')
        P(f'v_cvt_pk_bf16_f32 {v(22)}, {v(22)}, {v(23)}')
        P(f'v_and_b32 {v(23)}, 0xffff0000, {v(22)}\nv_lshlrev_b32 {v(22)}, 16, {v(22)}\nv_add_f32 {v(23)}, {EPS}, {v(23)}')
        P(f'v_sub_f32 {v(20)}, {v(vx)}, {v(22)}\nv_sub_f32 {v(21)}, {v(vx+1)}, {v(22)}')
        P(f'v_cvt_pk_bf16_f32 {v(23)}, {v(23)}, {v(23)}\nv_cvt_pk_bf16_f32 {v(20)}, {v(20)}, {v(21)}\nv_and_b32 {v(23)}, 0xffff0000, {v(23)}\nv_sqrt_f32 {v(23)}, {v(23)}')
        unpack(vx, vx+1, 20)
        P(f'v_cvt_pk_bf16_f32 {v(23)}, {v(23)}, {v(23)}\nv_and_b32 {v(23)}, 0xffff0000, {v(23)}\nv_rcp_f32 {v(22)}, {v(23)}')
        P(f'v_mul_f32 {v(20)}, {v(vx)}, {v(22)}\nv_mul_f32 {v(21)}, {v(vx+1)}, {v(22)}')
        P(f'v_fma_f32 {v(vx)}, -{v(20)}, {v(23)}, {v(vx)}\nv_fma_f32 {v(vx+1)}, -{v(21)}, {v(23)}, {v(vx+1)}')
        P(f'v_fma_f32 {v(20)}, {v(vx)}, {v(22)}, {v(20)}\nv_fma_f32 {v(21)}, {v(vx+1)}, {v(22)}, {v(21)}')
        P(f'v_cvt_pk_bf16_f32 {v(20)}, {v(20)}, {v(21)}')
        unpack(vx, vx+1, 20)
        P(f'v_mul_f32 {v(vx)}, {v(vx)}, {v(vcb)}\nv_mul_f32 {v(vx+1)}, {v(vx+1)}, {v(vcb+1)}\nv_cvt_pk_bf16_f32 {v(20)}, {v(vx)}, {v(vx+1)}')
        unpack(vx, vx+1, 20)
        P(f'v_add_f32 {v(vx)}, {v(vx)}, {v(vsb)}\nv_add_f32 {v(vx+1)}, {v(vx+1)}, {v(vsb+1)}')
        P(f'v_cvt_pk_bf16_f32 {v(vOd)}, {v(vx)}, {v(vx)}\nv_cvt_pk_bf16_f32 {v(vOd+1)}, {v(vx+1)}, {v(vx+1)}')
        lohi(vOd)
        stamp('M_h2')
        if cfg.dnlate == 2: dn_issue()
        chain(vD0, 16, [vUP+4*i for i in range(16)], lohi_srcs(vOd), vAA)
        finish2(vD0)
        publish_loc(vD0, vPUB, sEP, M2SET, sR)
        stamp('M_up')
        def issue(b):
            for k in range(2): P(f'buffer_load_dwordx4 {v(b+4*k,4)}, {v(vEA)}, {S(SRD_WS)}, {s(sEG)} offen offset:{1024*k} sc1')
        def done(b):
            add2(20, b, b+4)
        poll('xe', issue, 2, 128, 8, [2, 6], done)
        stamp('M_xe')
        for e in range(2): P(f'v_add_f32_dpp {v(20+e)}, {v(20+e)}, {v(20+e)} row_ror:8 row_mask:0xf bank_mask:0xf')
        P(f'v_cvt_pk_bf16_f32 {v(22)}, {v(20)}, {v(21)}')
        unpack(20, 21, 22)
        P(f'v_mov_b32_dpp {v(24)}, {v(22)} row_shl:4 row_mask:0xf bank_mask:0xf')
        silu_multi([20, 21], [22, 23])
        unpack(26, 27, 24)
        P(f'v_cvt_pk_bf16_f32 {v(22)}, {v(20)}, {v(21)}')
        unpack(20, 21, 22)
        P(f'v_mul_f32 {v(20)}, {v(20)}, {v(26)}\nv_mul_f32 {v(21)}, {v(21)}, {v(27)}')
        for e in range(2): P(f'v_cvt_pk_bf16_f32 {v(20+e)}, {v(20+e)}, {v(20+e)}')
        stamp('M_act')
        chain(vD0, 8, [vDN+4*i for i in range(8)], [(20 + (i & 1), f'row_newbcast:{i >> 1}') for i in range(8)], vAA)
        finish1(vD0)
        publish(vD0, vL16 if cfg.par is None else vDPA, sDP)
        stamp('M_end')
        P('s_branch L_END')
    if cfg.mlpw:
        assert cfg.rwait == 1
        P('s_branch L_END')
    else:
        if cfg.rwait == 4:
            P(f's_cmp_lt_u32 {s(sIM)}, {NM}\ns_cbranch_scc1 L_MLP')
            if cfg.ackw: P('s_waitcnt vmcnt(0)')
            P(f'ds_write_b32 {v(14)}, {v(14)}')
            P('s_branch L_END\nL_MLP:')
        else: P(f's_cmp_lt_u32 {s(sIM)}, {NM}\ns_cbranch_scc0 L_END')
        mlp_body()

    P('L_C123:')
    common_setup()
    P(f's_cmp_eq_u32 {s(sW)}, 5\ns_cbranch_scc1 L_C1')
    P(f's_cmp_eq_u32 {s(sW)}, 6\ns_cbranch_scc0 L_C3')
    P(f's_getpc_b64 {s(20,2)}')
    P('L_PCREF:')
    P(f's_sub_u32 s20, s20, L_PCREF-{NAME}_kernel\ns_subb_u32 s21, s21, 0')
    P(f's_lshl_b32 {s(sT0)}, {s(sKK)}, 3\nv_and_b32 {v(vT)}, 7, {v(vL)}\nv_add_u32 {v(vT)}, {s(sT0)}, {v(vT)}\nv_lshlrev_b32 {v(vT)}, 7, {v(vT)}')
    P(f'v_min_u32 {v(vT)}, L_CODE_END-{NAME}_kernel-4, {v(vT)}')
    if cfg.cpf: P(f'global_load_dword {v(240)}, {v(vT)}, s[20:21]')
    P('L_C3:')
    if cfg.par == 'dyn':
        P(f's_cmp_eq_u32 {s(sW)}, 7\ns_cbranch_scc0 L_NOPM\ns_cmp_eq_u32 {s(sB)}, 0\ns_cbranch_scc0 L_NOPM')
        P(f's_waitcnt lgkmcnt(0)\ns_mov_b32 s8, -1\ns_mov_b32 s9, -1')
        for i in range(2*cfg.nsamp):
            P(f's_mov_b32 s15, {hex(XPR + 8192*(i & 1) + 128*(i >> 1))}\ns_memtime s[10:11]\ns_waitcnt lgkmcnt(0)\ns_load_dword s14, {s(sWSP,2)}, s15 glc\ns_waitcnt lgkmcnt(0)\ns_memtime s[12:13]\ns_waitcnt lgkmcnt(0)')
            P(f's_sub_u32 s12, s12, s10\ns_min_u32 {s(8 + (i & 1))}, {s(8 + (i & 1))}, s12')
        P(f's_cmp_lt_u32 s9, s8\ns_cselect_b32 s8, 1, 0\ns_getreg_b32 s9, hwreg(HW_REG_XCC_ID, 2, 1)\ns_xor_b32 s8, s8, s9')
        P(f's_add_u32 s9, {s(sTAG)}, 1\ns_lshl_b32 s9, s9, 1\ns_or_b32 s8, s8, s9\nv_mov_b32 {v(vT+1)}, s8\nv_lshlrev_b32 {v(vT)}, 7, {v(vL)}\ns_mov_b32 s8, {hex(XP)}')
        setexec(0xff)
        P(f'buffer_store_dword {v(vT+1)}, {v(vT)}, {S(SRD_WS)}, s8 offen sc1')
        setexec(ALL)
        P('L_NOPM:')
    if cfg.tlbw:
        P(f's_cmp_eq_u32 {s(sW)}, 7\ns_cbranch_scc0 L_NOTLB')
        P(f'v_mov_b32 {v(vT)}, 0')
        setexec(1)
        for k, (ptr, nb) in enumerate(((pWO, 4 << 20), (pW1, 512*2752), (pW3, 512*2752), (pW2, 1376*1024), (pOUT, 1024))):
            srd(SRD_A, ptr, nb)
            P(f'buffer_load_dword {v(241+k)}, {v(vT)}, {S(SRD_A)}, 0 offen')
            if nb > (2 << 20):
                P(f's_mov_b32 {s(sT0)}, {hex(nb - 128)}\nbuffer_load_dword {v(247)}, {v(vT)}, {S(SRD_A)}, {s(sT0)} offen')
        for k, off in enumerate((XA, XE, XB, XB + 0xf0000)):
            P(f's_mov_b32 {s(sT0)}, {hex(off)}\nbuffer_load_dword {v(248+k)}, {v(vT)}, {S(SRD_WS)}, {s(sT0)} offen sc1')
        setexec(ALL)
        P('L_NOTLB:')
    P('s_waitcnt lgkmcnt(0)')
    P(f's_add_u32 {s(sTAG)}, {s(sTAG)}, 1')
    P('s_branch L_QKP')
    P('L_C23B1:')
    if cfg.mlpw:
        P(f's_cmp_eq_u32 {s(sW)}, 6\ns_cbranch_scc0 L_C3B2')
        par_read(15); par_use(15)
        mlp_setup()
        P('s_barrier')
        P(f's_cmp_lt_u32 {s(sIM)}, {NM}\ns_cbranch_scc0 L_END')
        P(f'v_mov_b32 {v(vT+2)}, {hex(L_FLAG + 168)}')
        lds_wait('fa', vT+2, 1, 28, [28])
        mlp_body()
        P('L_C3B2:')
    if cfg.gwait:
        P(f'v_lshlrev_b32 {v(vT)}, 7, {v(vL)}\nv_mov_b32 {v(vT+1)}, {s(sTAG)}\ns_lshl_b32 {s(sT0)}, {s(sH)}, 2\ns_add_u32 {s(sT0)}, {s(sT0)}, {hex(XG)}')
    P('s_barrier')
    if cfg.gwait:
        P(f's_cmp_eq_u32 {s(sW)}, 6\ns_cbranch_scc0 L_END\ns_cmp_eq_u32 {s(sJ)}, 0\ns_cbranch_scc0 L_END')
        setexec(0xff)
        P(f'buffer_store_dword {v(vT+1)}, {v(vT)}, {S(SRD_WS)}, {s(sT0)} offen sc1')
    P('s_branch L_END')

    P('L_C1:')
    P('s_waitcnt lgkmcnt(0)')
    P(f's_add_u32 {s(sTAG)}, {s(sTAG)}, 1')
    if cfg.tearly == 3: P(f's_mov_b32 {s(sR)}, 0\ns_bitcmp1_b32 {s(sX)}, 0\ns_cbranch_scc1 L_QKP')
    elif cfg.tearly: P(f's_mov_b32 {s(sR)}, 0\ns_cmp_ge_u32 {s(sX)}, 4\ns_cbranch_scc1 L_QKP')
    else: P(f's_mov_b32 {s(sR)}, 0\ns_sub_u32 {s(sT0)}, {s(sKK)}, 8\ns_cmp_lt_u32 {s(sT0)}, 16\ns_cbranch_scc1 L_QKP')
    if not cfg.t2early:
        P(f'v_mov_b32 {v(vT+2)}, {hex(L_FLAG + 8)}')
        lds_wait('k1', vT+2, 1, 28, [28], 8)
    elif cfg.t2early > 1: P(f's_sleep {cfg.t2early}')
    if cfg.tearly == 3:
        P(f's_lshl_b32 {s(sT0)}, {s(sKK)}, 2\ns_lshr_b32 {s(sT1)}, {s(sX)}, 1\ns_add_u32 {s(sT0)}, {s(sT0)}, {s(sT1)}\ns_and_b32 {s(sT1)}, {s(sT0)}, 31\ns_lshr_b32 {s(sT0)}, {s(sT0)}, 5')
    elif cfg.tearly:
        P(f's_lshl_b32 {s(sT0)}, {s(sKK)}, 2\ns_add_u32 {s(sT0)}, {s(sT0)}, {s(sX)}\ns_and_b32 {s(sT1)}, {s(sT0)}, 31\ns_lshr_b32 {s(sT0)}, {s(sT0)}, 5')
    else:
        P(f's_and_b32 {s(sT0)}, {s(sKK)}, 7\ns_lshr_b32 {s(sT1)}, {s(sKK)}, 4\ns_lshl_b32 {s(sT1)}, {s(sT1)}, 3\ns_add_u32 {s(sT0)}, {s(sT0)}, {s(sT1)}')
        P(f's_lshl_b32 {s(sT0)}, {s(sT0)}, 3\ns_add_u32 {s(sT0)}, {s(sT0)}, {s(sX)}\ns_and_b32 {s(sT1)}, {s(sT0)}, 31\ns_lshr_b32 {s(sT0)}, {s(sT0)}, 5')
    if X4NEAR:
        P(f's_and_b32 {s(sO2)}, {s(sT1)}, 3\ns_lshl_b32 {s(sO2)}, {s(sO2)}, 2\ns_add_u32 {s(sO2)}, {s(sO2)}, {s(sT0)}\ns_lshl_b32 {s(sO2)}, {s(sO2)}, 9\ns_lshr_b32 {s(sT2)}, {s(sT1)}, 2\ns_lshl_b32 {s(sT2)}, {s(sT2)}, 14\ns_add_u32 {s(sO2)}, {s(sO2)}, {s(sT2)}\ns_add_u32 {s(sO2)}, {s(sO2)}, {hex(X4N)}')
    else:
        P(f's_lshl_b32 {s(sO2)}, {s(sT1)}, 2\ns_add_u32 {s(sO2)}, {s(sO2)}, {s(sT0)}\ns_lshl_b32 {s(sO2)}, {s(sO2)}, 9\ns_add_u32 {s(sO2)}, {s(sO2)}, {hex(X4)}')
    P(f's_lshl_b32 {s(sT1)}, {s(sT1)}, 7\ns_add_u32 {s(sT1)}, {s(sT1)}, 2048')
    modtile_issue(sT0, sT1)
    if cfg.t2early:
        modtile_compute(0, sO2)
        P('s_branch L_QKP')
    else: P(f's_mov_b32 {s(sR)}, 99\ns_branch L_QKP')
    P('L_C1B1:')
    P(f's_sub_u32 {s(sT0)}, {s(sKK)}, 8\ns_cmp_lt_u32 {s(sT0)}, 8\ns_cbranch_scc1 L_RED')
    P('s_barrier')
    P('s_branch L_END')
    P('L_RED:')
    if cfg.rwait != 4 and not cfg.rearly: red_setup()
    else:
        srd(SRD_B, pOUT, 1024)
        P(f'v_lshlrev_b32 {v(vL16r)}, 4, {v(vL)}\nv_and_b32 {v(vU16)}, 3, {v(vL)}\nv_lshlrev_b32 {v(vU16)}, 4, {v(vU16)}')
        vda()
    red_addr()
    def xb_issue(b):
        for k in range(0, 16, 2 if cfg.fakehalf & 1 else 1): P(f'buffer_load_dwordx4 {v(b+4*k,4)}, {v(vL16r)}, {S(SRD_WS)}, {s(sB4 + (k >> 2))} offen offset:{1024*(k & 3)} sc1')
    issue = x4_issue
    def rw(name):
        P(f'v_mov_b32 {v(vT+2)}, {hex(L_FLAG + 160)}')
        lds_wait(name, vT+2, 1, 28, [28], cfg.lsleep)
    if cfg.rwait >= 3:
        if cfg.rwait == 3: issue()
        P('s_barrier')
        stamp('R_b2')
        P(f's_mov_b32 {s(sT2)}, 0\ns_branch L_X4CHK\nL_X4RETRY:')
        rw('rw0')
        issue()
        P(f's_add_u32 {s(sT2)}, {s(sT2)}, 1\ns_cmp_gt_u32 {s(sT2)}, {cfg.spin}\ns_cbranch_scc1 L_END\nL_X4CHK:')
        P('s_waitcnt vmcnt(0)')
        tr = [vg+4*k+2 for k in range(8)]
        P(f'v_xor_b32 {v(vT)}, {s(sTAG)}, {v(tr[0])}\nv_xor_b32 {v(vT+1)}, {s(sTAG)}, {v(tr[1])}')
        for k, r in enumerate(tr[2:]): P(f'v_bitop3_b32 {v(vT + (k & 1))}, {v(r)}, {s(sTAG)}, {v(vT + (k & 1))} bitop3:{TAGX}')
        P(f'v_or_b32 {v(vT)}, {v(vT)}, {v(vT+1)}\nv_cmp_ne_u32 vcc, 0, {v(vT)}\ns_cbranch_vccnz L_X4RETRY')
    else:
        P('s_barrier')
        stamp('R_b2')
        if cfg.rwait: rw('rw')
        tagcheck_loop(issue, [vg+4*k+2 for k in range(8)], 'x4', after=(lambda: xb_issue(128)) if cfg.rwait == 2 else None, nafter=16)
    for p_ in range(4):
        for e in range(2): P(f'v_add_f32 {v(vg+8*p_+e)}, {v(vg+8*p_+e)}, {v(vg+8*p_+4+e)}')
    for p_ in range(4): P(f'v_permlane32_swap_b32 {v(vg+8*p_)}, {v(vg+8*p_+1)}')
    for p_ in range(4): P(f'v_add_f32 {v(vg+8*p_)}, {v(vg+8*p_)}, {v(vg+8*p_+1)}')
    for p_ in range(4): rnd(vg+8*p_)
    P(f'v_mov_b32 {v(vGAv)}, {v(vg)}\nv_add_f32 {v(vg+16)}, 1.0, {v(vg+16)}\nv_mov_b32 {v(vg+9)}, {v(vg+8)}\nv_mov_b32 {v(vg+17)}, {v(vg+16)}')
    P(f'ds_bpermute_b32 {v(vGBv)}, {v(vBP)}, {v(vg+24)}')
    P(f'v_permlane32_swap_b32 {v(vg+8)}, {v(vg+9)}\nv_permlane32_swap_b32 {v(vg+16)}, {v(vg+17)}')
    P(f'v_cvt_pk_bf16_f32 {v(vXC+2)}, {v(vg+8)}, {v(vg+9)}\nv_cvt_pk_bf16_f32 {v(vXC+1)}, {v(vg+16)}, {v(vg+17)}\nv_mov_b32 {v(vXC+3)}, {s(sTAG)}\nv_lshlrev_b32 {v(vXv)}, 16, {v(vXv)}')
    stamp('R_x4')
    if cfg.rwait >= 3: rw('rw1')
    def done(b):
        st = 1
        while st < 16:
            for a in range(0, 16, 2*st): add2(b+4*a, b+4*a, b+4*(a+st))
            st *= 2
    if cfg.rsleep: P(f's_sleep {cfg.rsleep}')
    if cfg.xbgrp:
        n = 16 // cfg.xbgrp
        def mk(g):
            def issue():
                for k in range(g*n, g*n + n): P(f'buffer_load_dwordx4 {v(128+4*k,4)}, {v(vL16r)}, {S(SRD_WS)}, {s(sB4 + (k >> 2))} offen offset:{1024*(k & 3)} sc1')
            return (issue, [128+4*k+2 for k in range(g*n, g*n + n)])
        poll_groups('xb', [mk(g) for g in range(cfg.xbgrp)])
        done(128)
    else: poll('xb', xb_issue, 16, 128, 64, [4*k+2 for k in range(0, 16, 2 if cfg.fakehalf & 1 else 1)], done, issued=(cfg.rwait == 2))
    stamp('R_xb')
    P(f'v_permlane32_swap_b32 {v(128)}, {v(129)}\nv_add_f32 {v(vg)}, {v(128)}, {v(129)}')
    rnd(vg)
    P(f'v_mul_f32 {v(vg)}, {v(vg)}, {v(vGAv)}'); rnd(vg)
    P(f'v_add_f32 {v(vg)}, {v(vg)}, {v(vXv)}\nv_mov_b32 {v(vg+1)}, {v(vg)}')
    P(f'v_permlane32_swap_b32 {v(vg)}, {v(vg+1)}')
    P(f'v_cvt_pk_bf16_f32 {v(vXC)}, {v(vg)}, {v(vg+1)}')
    if cfg.xcmode == 1: publish(vXC, vL16r, sO3, 0xffffffff)
    elif cfg.xcmode == 2:
        setexec(0xffffffff); P(f'buffer_store_dwordx4 {v(vXC,4)}, {v(vL16r)}, {S(SRD_WS)}, {s(sO3)} offen'); setexec(ALL)
    else: publish_loc(vXC, vL16r, sO3, 0xffffffff)
    stamp('R_xcpub')
    if cfg.epearly:
        P(f's_cmp_eq_u32 {s(sR)}, 0\ns_cbranch_scc0 L_NOEP')
        setexec(1)
        P(f'v_mov_b32 {v(vT)}, 0\nv_mov_b32 {v(vT+1)}, {s(sTAG)}')
        P(f'buffer_store_dword {v(vT+1)}, {v(vT)}, {S(SRD_WS)}, 0 offen sc1')
        setexec(ALL)
        P('L_NOEP:')
    P(f'v_lshrrev_b32 {v(vT+2)}, 1, {v(vL)}\nv_and_b32 {v(vT+2)}, 16, {v(vT+2)}\nv_lshrrev_b32 {v(vXv)}, {v(vT+2)}, {v(vXC)}\nv_lshlrev_b32 {v(vXv)}, 16, {v(vXv)}')
    P(f'ds_bpermute_b32 {v(vXv)}, {v(vBP)}, {v(vXv)}')
    def colsum():
        P(f'v_permlane16_swap_b32 {v(vg)}, {v(vg+1)}')
        P(f'v_add_f32 {v(vg)}, {v(vg)}, {v(vg+1)}')
        P(f'v_add_f32_dpp {v(vg)}, {v(vg)}, {v(vg)} row_ror:4 row_mask:0xf bank_mask:0xf')
        P(f'v_add_f32_dpp {v(vg)}, {v(vg)}, {v(vg)} row_ror:8 row_mask:0xf bank_mask:0xf')
        P(f'v_mov_b32 {v(vg+1)}, {v(vg)}')
        P(f'v_permlane32_swap_b32 {v(vg)}, {v(vg+1)}')
        P(f'v_add_f32 {v(vg)}, {v(vg)}, {v(vg+1)}')
    P('s_waitcnt lgkmcnt(0)')
    def issue(b):
        for k in range(2): P(f'buffer_load_dwordx4 {v(b+4*k,4)}, {v(vDA)}, {S(SRD_WS)}, {s(sD+k)} offen sc1')
        setexec((1 << 44) - 1)
        P(f'buffer_load_dwordx4 {v(b+8,4)}, {v(vDA)}, {S(SRD_WS)}, {s(sD+2)} offen sc1')
        setexec(ALL)
    def done(b):
        add2(b, b, b+4); add2(vg, b, b+8)
    if cfg.dsleep: P(f's_sleep {cfg.dsleep}')
    poll('xd', issue, 3, 192, 12, [2, 6, 10], done)
    stamp('R_xd')
    colsum()
    rnd(vg)
    P(f'v_mul_f32 {v(vg)}, {v(vg)}, {v(vGBv)}'); rnd(vg)
    P(f'v_add_f32 {v(vg)}, {v(vg)}, {v(vXv)}\nv_mov_b32 {v(vg+1)}, {v(vg)}')
    P(f'v_permlane16_swap_b32 {v(vg)}, {v(vg+1)}')
    P(f'v_cvt_pk_bf16_f32 {v(vg)}, {v(vg)}, {v(vg+1)}')
    setexec(0xf)
    P(f'buffer_store_dword {v(vg)}, {v(vU16)}, {S(SRD_B)}, {s(sG+2)} offen {cfg.outpol}')
    stamp('R_end')
    def epoch(skip):
        P(f's_cmp_eq_u32 {s(sR)}, 0\ns_cbranch_scc0 {skip}')
        setexec(1)
        P(f'v_mov_b32 {v(vT)}, 0\nv_mov_b32 {v(vT+1)}, {s(sTAG)}')
        P(f'buffer_store_dword {v(vT+1)}, {v(vT)}, {S(SRD_WS)}, 0 offen sc1')
    if not cfg.epearly: epoch('L_END')
    if cfg.xdelay:
        P(f's_cmp_eq_u32 {s(sR)}, 0\ns_cbranch_scc0 L_END\ns_memrealtime s[76:77]\ns_waitcnt lgkmcnt(0)\ns_add_u32 {s(sT0)}, s76, {cfg.xdelay}')
        P(f'L_XDL:\ns_memrealtime s[76:77]\ns_waitcnt lgkmcnt(0)\ns_sub_u32 {s(sT1)}, s76, {s(sT0)}\ns_cmp_lt_i32 {s(sT1)}, 0\ns_cbranch_scc1 L_XDL')
    if cfg.gprobe:
        P(f's_cmp_eq_u32 {s(sR)}, 0\ns_cbranch_scc0 L_END\ns_mov_b64 exec, -1\ns_mov_b32 {s(sT0)}, {hex(DIAG)}')
        nw = 4 if cfg.gprobe.startswith('L') else 1
        P(f'v_lshlrev_b32 v1, 5, v0')
        if cfg.gprobe[0] == 'R': P('v_add_u32 v1, 8, v1')
        if cfg.gprobe[0] in 'MR': P('s_sleep 40')
        regs = []
        for q in range(4):
            for w in range(nw):
                r = 128 + 2*(q*4 + w); regs.append(r)
                P(f'buffer_load_dwordx2 v[{r}:{r+1}], v1, {S(SRD_WS)}, {s(sT0)} offen offset:{8*w} sc1')
            P(f's_add_u32 {s(sT0)}, {s(sT0)}, 2048')
        P('s_waitcnt vmcnt(0)')
        P(f'v_subrev_u32 v2, {s(sDIAG)}, v{regs[0]}\nv_subrev_u32 v3, {s(sDIAG)}, v{regs[0]+1}')
        for r in regs[1:]:
            P(f'v_subrev_u32 v4, {s(sDIAG)}, v{r}\nv_min_i32 v2, v2, v4\nv_subrev_u32 v4, {s(sDIAG)}, v{r+1}\nv_max_i32 v3, v3, v4')
        wave_reduce('v_min_i32', [2]); wave_reduce('v_max_i32', [3])
        P(f'v_sub_u32 v2, v3, v2\nv_readlane_b32 {s(sT0)}, v2, 63\ns_nop 1\ns_min_u32 {s(sT0)}, {s(sT0)}, 5000\ns_memrealtime s[76:77]\ns_waitcnt lgkmcnt(0)\ns_add_u32 {s(sT0)}, {s(sT0)}, s76')
        P(f'L_GPR:\ns_memrealtime s[76:77]\ns_waitcnt lgkmcnt(0)\ns_sub_u32 {s(sT1)}, s76, {s(sT0)}\ns_cmp_lt_i32 {s(sT1)}, 0\ns_cbranch_scc1 L_GPR')
    if cfg.probe:
        P(f's_cmp_eq_u32 {s(sR)}, 0\ns_cbranch_scc0 L_END')
        i = stamps[cfg.probe]
        P(f's_waitcnt lgkmcnt(0)\ns_sub_u32 {s(sT0)}, {s(sDIAG+2*i)}, {s(sDIAG)}\ns_min_u32 {s(sT0)}, {s(sT0)}, 5000\ns_memrealtime s[76:77]\ns_waitcnt lgkmcnt(0)\ns_add_u32 {s(sT0)}, {s(sT0)}, s76')
        P(f'L_PROBE:\ns_memrealtime s[76:77]\ns_waitcnt lgkmcnt(0)\ns_sub_u32 {s(sT1)}, s76, {s(sT0)}\ns_cmp_lt_i32 {s(sT1)}, 0\ns_cbranch_scc1 L_PROBE')
    P('s_branch L_END')

    P('L_END:')
    if cfg.diag and not cfg.probe and not cfg.gprobe:
        P('s_waitcnt lgkmcnt(0)')
        P(f's_cmp_ge_u32 {s(sB)}, 256\ns_cbranch_scc1 L_END2')
        srd(SRD_WS, sWSP, WS_BYTES)
        P(f's_lshl_b32 {s(sT0)}, {s(sB)}, 3\ns_add_u32 {s(sT0)}, {s(sT0)}, {s(sW)}\ns_lshl_b32 {s(sT0)}, {s(sT0)}, 7\ns_add_u32 {s(sT0)}, {s(sT0)}, {hex(DIAG)}')
        P('s_mov_b64 exec, 1\nv_mov_b32 v1, 0')
        for i in range(9): P(f'v_mov_b32 v2, {s(sDIAG+2*i)}\nbuffer_store_dword v2, v1, {S(SRD_WS)}, {s(sT0)} offen offset:{4*i}')
        P('L_END2:')
    P('s_endpgm')
    P('L_CODE_END:')
    probs = P.fix()
    for p in probs: print('HAZARD across branch:', p, file=sys.stderr)
    head = open(f'cdna_kernels/{NAME}.s.ref').read().split('; Override launch')[0]
    txt = head
    txt += DOC
    txt += f'; @launch grid=(256,1,1) block=(512,1,1) lds={LDS_BYTES}\n'
    txt += f'.amdgcn_target "amdgcn-amd-amdhsa--gfx950"\n.text\n.globl {NAME}_kernel\n.p2align 8\n.type {NAME}_kernel,@function\n{NAME}_kernel:\n'
    txt += P.text() + '\n'
    txt += f'''.section .rodata,"a"
.p2align 6
.amdhsa_kernel {NAME}_kernel
  .amdhsa_next_free_vgpr 256
  .amdhsa_next_free_sgpr 102
  .amdhsa_accum_offset 256
  .amdhsa_group_segment_fixed_size 0
  .amdhsa_kernarg_size 112
  .amdhsa_user_sgpr_count 2
  .amdhsa_user_sgpr_kernarg_segment_ptr 1
  .amdhsa_system_sgpr_workgroup_id_x 1
  .amdhsa_float_denorm_mode_32 3
.end_amdhsa_kernel
'''
    return txt, stamps

if __name__ == '__main__':
    out = sys.argv[1] if len(sys.argv) > 1 else f'cdna_kernels/{NAME}.s'
    class C(Cfg): pass
    for a in sys.argv[2:]:
        k, val = a.split('=', 1)
        setattr(C, k, eval(val))
    txt, stamps = gen(C)
    open(out, 'w').write(txt)
    print('written', out, len(txt), 'bytes', stamps)
```

```python
import sys, struct
from asmdsl import Prog

NAME = 'adaLN_cond__mha_block_cached__glu_gated_swiglu__decode'

def f2u(x): return struct.unpack('<I', struct.pack('<f', x))[0]
LOG2E = hex(f2u(1.4426950408889634))
NLOG2E = hex(f2u(-1.4426950408889634))
SCALE = hex(f2u(128 ** -0.5))
EPS = hex(f2u(1e-5))
R512 = hex(f2u(1/512))
ALL = (1 << 64) - 1

X1 = 0x1000
X4 = 0x9000
X3 = 0x19000
X1F = 0x1b000
X0 = 0x1d000
X0B = 0x194000
X2F = 0x1c000
XC = 0x180000
X4N = 0x1e0000
XPR = 0x190000
XP = 0x1f000
X2 = 0x20000
XA = 0x60000
XB = 0x200000
XD = 0xe0000
XE = 0x110000
XG = 0x197000
XB2 = 0x140000
X0C = 0x1a000
DIAG = 0x1a0000
WS_BYTES = 0x300000
L_P, L_OP, L_Q, L_FLAG = 0x20000, 0x20800, 0x21000, 0x21100
L_ST, L_U = 0x0, 0x1000
L_MS, L_ML, L_PAR = L_FLAG + 64, L_FLAG + 128, L_FLAG + 176
LDS_BYTES = 0x21200
NM = 43
TAGX = hex(sum(1 << (a*4+b*2+c) for a in (0,1) for b in (0,1) for c in (0,1) if (a ^ b) | c))

DOC = """;
;                  all QK^T of one L wave's tiles, true max and sum exchanged inside the head, normalised p
"""

class Cfg:
    depth = 8
    diag = False
    probe = None
    kpol = 'nt'
    vpol = 'nt'
    wpol = 'nt'
    ppol = ''
    sleep1 = 0
    sleep2 = 0
    sleep3 = 4
    sleep4 = 40
    prio = 3
    hint = 1
    hsleep = 3
    lsleep = 1
    pf = 'post'
    wq0 = 1
    dsched = (6, 12, 9)
    rot = 5
    npf = 8
    local = 1
    pipe = dict()
    psleep = dict()
    xcrep = 1
    xcline = 0
    nodpp = 0
    b0late = 1
    xcsleep = 0
    dnlate = 0
    xbrep = 0
    rwait = 1
    xbgrp = 0
    rsleep = 0
    dsleep = 0
    wob2 = 0
    epearly = 1
    ksplit = 0
    th = 0
    cpf = 1
    fakehalf = 0
    xdelay = 0
    gwait = 0
    tearly = 0
    pkand = 0
    acc2 = 0
    mlat = 0
    t2early = 0
    par = 'dyn'
    nsamp = 4
    nearloc = 1
    x4near = 0
    mlpw = 0
    xcmode = 0
    wfirst = 1
    wofirst = 0
    pkadd = 1
    split0 = 1
    lay2 = 1
    pgal = 1
    t1first = 0
    cpf0 = 1
    lnopt = 1
    ackw = 1
    rearly = 1
    tlbw = 0
    gthr = 32
    gprobe = None
    dodd = None
    dvar = None
    outpol = ''
    uppol = 'nt'
    spin = 1 << 18

def v(a, n=1): return f'v{a}' if n == 1 else f'v[{a}:{a+n-1}]'
def s(a, n=1): return f's{a}' if n == 1 else f's[{a}:{a+n-1}]'

sB, sW = 2, 3
sKP, sVP = 4, 6
SRD_K, SRD_V, SRD_WS, SRD_A, SRD_B, SRD_C = 8, 12, 16, 20, 24, 28
sH, sJ, sX, sKK = 36, 37, 38, 39
sWSP = 40
sTAG, sIM, sR = 42, 43, 44
sT0, sT1, sT2 = 45, 46, 47
pWQ, pWO, pW1, pW3, pW2, pC, pWM, pX, pOUT = 48, 50, 54, 56, 58, 60, 62, 64, 66
sSPIN = 68
sO0, sO1, sO2, sO3 = 69, 70, 71, 72
sMASK = 74
sPAR, sNEAR = 52, 53
sT1B = 35
sLOC = 73
sG = 76
sDIAG = 84
vL = 0
vT = 1
vM = 4

def gen(cfg=Cfg):
    P = Prog()
    X4NEAR = bool(cfg.x4near and cfg.par is not None and not cfg.t2early)
    D = cfg.depth
    stamps = {}
    def stamp(name):
        if cfg.diag and name in cfg.diag:
            grp = name.split('_')[0]
            same = [n for n in cfg.diag if n.split('_')[0] == grp]
            if name == 'start': i = 0
            elif cfg.gprobe: i = 1
            elif grp == 'M': i = 8 - same.index(name)
            else: i = 1 + same.index(name)
            assert 0 <= i <= 8
            stamps[name] = i
            P(f's_memrealtime {s(sDIAG + 2*i, 2)}')
            if cfg.gprobe == name:
                assert i < 5
                P(f's_waitcnt lgkmcnt(0)\ns_mov_b32 s96, {s(sWSP)}\ns_mov_b32 s97, {s(sWSP+1)}\ns_mov_b32 s98, {hex(WS_BYTES)}\ns_mov_b32 s99, 0x20000')
                P(f's_lshl_b32 s100, {s(sB)}, 2\ns_and_b32 s101, {s(sW)}, 3\ns_add_u32 s100, s100, s101\ns_lshl_b32 s100, s100, 3\ns_add_u32 s100, s100, {hex(DIAG)}')
                P(f's_mov_b64 s[94:95], exec\ns_mov_b64 exec, 1\nv_mov_b32 v254, {s(sDIAG)}\nv_mov_b32 v255, {s(sDIAG+2*i)}\nv_mov_b32 v253, 0\nbuffer_store_dwordx2 v[254:255], v253, s[96:99], s100 offen sc1\ns_mov_b64 exec, s[94:95]')
    def srd(r, ptr, nbytes):
        P(f's_mov_b32 {s(r)}, {s(ptr)}\ns_mov_b32 {s(r+1)}, {s(ptr+1)}\ns_mov_b32 {s(r+2)}, {hex(nbytes)}\ns_mov_b32 {s(r+3)}, 0x20000')
    def S(r): return s(r, 4)
    def setexec(mask):
        lo, hi = mask & 0xffffffff, mask >> 32
        if mask == ALL: P('s_mov_b64 exec, -1')
        elif mask <= 64: P(f's_mov_b64 exec, {mask}')
        else: P(f's_mov_b32 exec_lo, {hex(lo)}\ns_mov_b32 exec_hi, {hex(hi)}')
    uid = [0]
    def lab(p):
        uid[0] += 1; return f'L_{p}{uid[0]}'
    def tagcheck_loop(issue, tagregs, name, sleep=0, after=None, nafter=0):
        top = lab(name)
        P(f's_mov_b32 {s(sSPIN)}, 0')
        P(f'{top}:')
        issue()
        if after: after()
        P(f's_add_u32 {s(sSPIN)}, {s(sSPIN)}, 1\ns_cmp_gt_u32 {s(sSPIN)}, {cfg.spin}\ns_cbranch_scc1 L_END')
        P(f's_waitcnt vmcnt({nafter if after else 0})')
        if len(tagregs) == 1:
            P(f'v_cmp_ne_u32 vcc, {s(sTAG)}, {v(tagregs[0])}')
        else:
            P(f'v_xor_b32 {v(vT)}, {s(sTAG)}, {v(tagregs[0])}\nv_xor_b32 {v(vT+1)}, {s(sTAG)}, {v(tagregs[1])}')
            for k, r in enumerate(tagregs[2:]):
                P(f'v_bitop3_b32 {v(vT + (k & 1))}, {v(r)}, {s(sTAG)}, {v(vT + (k & 1))} bitop3:{TAGX}')
            P(f'v_or_b32 {v(vT)}, {v(vT)}, {v(vT+1)}\nv_cmp_ne_u32 vcc, 0, {v(vT)}')
        if sleep:
            dn = lab(name + 'd')
            P(f's_cbranch_vccz {dn}\ns_sleep {sleep}\ns_branch {top}\n{dn}:')
        else: P(f's_cbranch_vccnz {top}')
    def poll(name, issue, nl, base, stride, tagoff, done, issued=False):
        NS = cfg.pipe.get(name, 1)
        top, join = lab(name), lab(name + 'j')
        ex = [lab(name + 'x') for _ in range(NS)]
        P(f's_mov_b32 {s(sSPIN)}, 0')
        for i in range(NS - 1): issue(base + i*stride)
        if issued:
            assert NS == 1
            sk = lab(name + 's'); P(f's_branch {sk}')
        P(f'{top}:')
        for i in range(NS):
            issue(base + ((i + NS - 1) % NS)*stride)
            if issued: P(f'{sk}:')
            if i == 0: P(f's_add_u32 {s(sSPIN)}, {s(sSPIN)}, 1\ns_cmp_gt_u32 {s(sSPIN)}, {cfg.spin}\ns_cbranch_scc1 L_END')
            P(f's_waitcnt vmcnt({(NS-1)*nl})')
            tr = [base + i*stride + t for t in tagoff]
            if len(tr) == 1:
                P(f'v_cmp_ne_u32 vcc, {s(sTAG)}, {v(tr[0])}')
            else:
                P(f'v_xor_b32 {v(vT)}, {s(sTAG)}, {v(tr[0])}\nv_xor_b32 {v(vT+1)}, {s(sTAG)}, {v(tr[1])}')
                for k, r in enumerate(tr[2:]):
                    P(f'v_bitop3_b32 {v(vT + (k & 1))}, {v(r)}, {s(sTAG)}, {v(vT + (k & 1))} bitop3:{TAGX}')
                P(f'v_or_b32 {v(vT)}, {v(vT)}, {v(vT+1)}\nv_cmp_ne_u32 vcc, 0, {v(vT)}')
            ps = cfg.psleep.get(name, 0)
            if ps:
                P(f's_cbranch_vccz {ex[i]}\ns_sleep {ps}')
                if i + 1 == NS: P(f's_branch {top}')
            else: P(f's_cbranch_vccz {ex[i]}' if i + 1 < NS else f's_cbranch_vccnz {top}')
        for i in reversed(range(NS)):
            P(f'{ex[i]}:')
            done(base + i*stride)
            if i > 0: P(f's_branch {join}')
        P(f'{join}:')
    def poll_groups(name, groups):
        top = lab(name)
        P(f's_mov_b32 {s(sSPIN)}, 0\ns_mov_b32 {s(sT0)}, {(1 << len(groups)) - 1}')
        P(f'{top}:')
        for g, (issue, tr) in enumerate(groups):
            sk = lab(name + 'i')
            P(f's_bitcmp1_b32 {s(sT0)}, {g}\ns_cbranch_scc0 {sk}')
            issue()
            P(f'{sk}:')
        P(f's_add_u32 {s(sSPIN)}, {s(sSPIN)}, 1\ns_cmp_gt_u32 {s(sSPIN)}, {cfg.spin}\ns_cbranch_scc1 L_END')
        P('s_waitcnt vmcnt(0)')
        for g, (issue, tr) in enumerate(groups):
            P(f'v_xor_b32 {v(vT + (g & 1))}, {s(sTAG)}, {v(tr[0])}')
            for r in tr[1:]: P(f'v_bitop3_b32 {v(vT + (g & 1))}, {v(r)}, {s(sTAG)}, {v(vT + (g & 1))} bitop3:{TAGX}')
            P(f'v_cmp_ne_u32 {s(sG+4+2*(g & 1),2)}, 0, {v(vT + (g & 1))}')
            P(f's_cmp_lg_u64 {s(sG+4+2*(g & 1),2)}, 0\ns_cselect_b32 {s(sT1)}, {1 << g}, 0')
            P(f's_or_b32 {s(sT0)}, {s(sT1)}, {s(sT0) if g else s(sT1)}')
        P(f's_cbranch_scc1 {top}')
    def publish_loc(d, vaddr, soff, mask=None, flag=sLOC):
        if not cfg.local: return publish(d, vaddr, soff, mask)
        far, j2 = lab('far'), lab('pb')
        if mask: setexec(mask)
        P(f's_cmp_eq_u32 {s(flag)}, 1\ns_cbranch_scc0 {far}')
        P(f'buffer_store_dwordx4 {v(d,4)}, {v(vaddr)}, {S(SRD_WS)}, {s(soff)} offen')
        P(f's_branch {j2}\n{far}:')
        publish(d, vaddr, soff)
        P(f'{j2}:')
        if mask: setexec(ALL)
    def afrag(dst, src, dpp=''):
        for w in range(4):
            if dpp: P(f'v_and_b32_dpp {v(dst+w)}, {v(src)}, {v(vM+w)} {dpp} row_mask:0xf bank_mask:0xf')
            else: P(f'v_and_b32 {v(dst+w)}, {v(src)}, {v(vM+w)}')
    def mfma(d, a, b, first=False):
        P(f'v_mfma_f32_16x16x32_bf16 {v(d,4)}, {v(a,4)}, {v(b,4)}, {"0" if first else v(d,4)}')
    vF, vHM, vPP = 244, 248, 250
    def afrag_pk(dst, src, dpp, k):
        pp = vPP + 2*(k & 1)
        if dpp: P(f'v_and_b32_dpp {v(pp)}, {v(src)}, {v(vHM)} {dpp} row_mask:0xf bank_mask:0xf')
        else: P(f'v_and_b32 {v(pp)}, {v(src)}, {v(vHM)}')
        return [f'v_pk_mul_f32 {v(dst+2*w,2)}, {v(pp,2)}, {v(vF+2*w,2)} op_sel_hi:[0,1]' for w in range(2)]
    def chain(d, n, bregs, srcs, areg):
        if cfg.pkand:
            pend = afrag_pk(areg, *srcs[0], 0)
            for x in pend: P(x)
            if n > 1: pend = afrag_pk(areg + 4, *srcs[1], 1)
            for i in range(n):
                if i + 1 < n:
                    for x in pend: P(x)
                if i + 2 < n: pend = afrag_pk(areg + 4*(i & 1) + 8*(1 - 2*0)*0 if False else areg + 4*(i & 1), *srcs[i+2], i) if False else None
                mfma(d, areg + 4*(i & 1), bregs[i], first=(i == 0))
                if i + 2 < n: pend = afrag_pk(areg + 4*(i & 1), *srcs[i+2], i)
            return
        if cfg.nodpp and srcs[0][1]:
            bc = 224
            for i in range(n): P(f'v_mov_b32_dpp {v(bc+i)}, {v(srcs[i][0])} {srcs[i][1]} row_mask:0xf bank_mask:0xf')
            srcs = [(bc+i, '') for i in range(n)]
        afrag(areg, *srcs[0])
        d2 = 32
        for i in range(n):
            if i + 1 < n: afrag(areg + 4*((i+1) & 1), *srcs[i+1])
            if cfg.acc2 and n >= 8: mfma(d2 if i & 1 else d, areg + 4*(i & 1), bregs[i], first=(i < 2))
            else: mfma(d, areg + 4*(i & 1), bregs[i], first=(i == 0))
        if cfg.acc2 and n >= 8:
            for r in range(0, 4, 2): P(f'v_pk_add_f32 {v(d+r,2)}, {v(d+r,2)}, {v(d2+r,2)}')
    def finish2(d):
        P(f'v_permlane32_swap_b32 {v(d)}, {v(d+2)}\nv_permlane32_swap_b32 {v(d+1)}, {v(d+3)}')
        P(f'v_add_f32_dpp {v(d)}, {v(d+2)}, {v(d)} row_ror:8 row_mask:0xf bank_mask:0xf')
        P(f'v_add_f32_dpp {v(d+1)}, {v(d+3)}, {v(d+1)} row_ror:8 row_mask:0xf bank_mask:0xf')
        P(f'v_mov_b32 {v(d+2)}, {s(sTAG)}')
    def finish1(d):
        P(f'v_permlane32_swap_b32 {v(d)}, {v(d+2)}\nv_permlane32_swap_b32 {v(d+1)}, {v(d+3)}')
        P(f'v_mov_b32 {v(d+2)}, {s(sTAG)}')
    def publish(d, vaddr, soff, mask=None):
        if mask: setexec(mask)
        P(f'buffer_store_dwordx4 {v(d,4)}, {v(vaddr)}, {S(SRD_WS)}, {s(soff)} offen sc1')
        if mask: setexec(ALL)
    M2SET = 0x00ff00ff00ff00ff
    def lohi(r):
        P(f'v_mov_b32 {v(r+2)}, {v(r)}\nv_mov_b32 {v(r+3)}, {v(r+1)}')
        for e in range(2): P(f'v_mov_b32_dpp {v(r+2+e)}, {v(r+e)} row_shl:4 row_mask:0xf bank_mask:0x5')
        for e in range(2): P(f'v_mov_b32_dpp {v(r+e)}, {v(r+e)} row_shr:4 row_mask:0xf bank_mask:0xa')
    def lohi_srcs(r):
        out = []
        for i in range(16):
            u = i >> 1; a = u & 3
            out.append((r + (2 if u >= 4 else 0) + (i & 1), f'quad_perm:[{a},{a},{a},{a}]'))
        return out
    def lds_wait(name, vaddr, n, dst, chk, sleep=0):
        top = lab(name)
        op = {1: 'ds_read_b32', 2: 'ds_read_b64', 4: 'ds_read_b128'}[n]
        P(f's_mov_b32 {s(sSPIN)}, 0')
        P(f'{top}:')
        P(f'{op} {v(dst,n)}, {v(vaddr)}')
        P(f's_add_u32 {s(sSPIN)}, {s(sSPIN)}, 1\ns_cmp_gt_u32 {s(sSPIN)}, {cfg.spin*8}\ns_cbranch_scc1 L_END')
        P('s_waitcnt lgkmcnt(0)')
        if len(chk) == 2:
            P(f'v_and_b32 {v(vT)}, {v(chk[0])}, {v(chk[1])}\nv_cmp_eq_u32 vcc, 0, {v(vT)}')
        else: P(f'v_cmp_eq_u32 vcc, 0, {v(chk[0])}')
        if sleep:
            done = lab(name + 'd')
            P(f's_cbranch_vccz {done}\ns_sleep {sleep}\ns_branch {top}\n{done}:')
        else: P(f's_cbranch_vccnz {top}')
    def hint_wait(name, soff):
        top = lab(name)
        P(f's_add_u32 {s(sMASK)}, {s(sWSP)}, {s(soff)}\ns_addc_u32 {s(sMASK+1)}, {s(sWSP+1)}, 0\ns_mov_b32 {s(sSPIN)}, 0')
        P(f'{top}:')
        P(f's_load_dwordx8 {s(sG,8)}, {s(sMASK,2)}, 0 glc')
        P(f's_add_u32 {s(sSPIN)}, {s(sSPIN)}, 1\ns_cmp_gt_u32 {s(sSPIN)}, {cfg.spin}\ns_cbranch_scc1 L_END')
        P('s_waitcnt lgkmcnt(0)')
        P(f's_xor_b32 {s(sG)}, {s(sG)}, {s(sTAG)}')
        for k in range(1, 8): P(f's_xor_b32 {s(sG+k)}, {s(sG+k)}, {s(sTAG)}\ns_or_b32 {s(sG)}, {s(sG)}, {s(sG+k)}')
        done = lab(name + 'd')
        P(f's_cbranch_scc0 {done}')
        if cfg.hsleep: P(f's_sleep {cfg.hsleep}')
        P(f's_branch {top}\n{done}:')
    def par_read(r):
        if cfg.par == 'dyn': P(f'v_mov_b32 {v(r)}, {hex(L_PAR)}\nds_read_b32 {v(r)}, {v(r)}')
    def par_use(r):
        if cfg.par == 'dyn': P(f's_waitcnt lgkmcnt(0)\nv_readfirstlane_b32 {s(sPAR)}, {v(r)}\ns_and_b32 {s(sPAR)}, {s(sPAR)}, 1')
        else: P(f's_mov_b32 {s(sPAR)}, {cfg.par or 0}')
        P(f's_lshr_b32 {s(sNEAR)}, {s(sX)}, 2\ns_xor_b32 {s(sNEAR)}, {s(sNEAR)}, {s(sPAR)}\ns_lshl_b32 {s(sNEAR)}, {s(sNEAR)}, 13')
    def wave_reduce(op, regs):
        for mod in ('quad_perm:[1,0,3,2] row_mask:0xf', 'quad_perm:[2,3,0,1] row_mask:0xf', 'row_ror:4 row_mask:0xf', 'row_ror:8 row_mask:0xf',
                    'row_bcast:15 row_mask:0xa', 'row_bcast:31 row_mask:0xc'):
            for r in regs: P(f'{op}_dpp {v(r)}, {v(r)}, {v(r)} {mod} bank_mask:0xf')
    def unpack(lo, hi, src):
        if lo == src: P(f'v_and_b32 {v(hi)}, 0xffff0000, {v(src)}\nv_lshlrev_b32 {v(lo)}, 16, {v(src)}')
        else: P(f'v_lshlrev_b32 {v(lo)}, 16, {v(src)}\nv_and_b32 {v(hi)}, 0xffff0000, {v(src)}')
    def silu_multi(rs, ts):
        for r, t in zip(rs, ts): P(f'v_mul_f32 {v(t)}, {NLOG2E}, {v(r)}')
        for r, t in zip(rs, ts): P(f'v_exp_f32 {v(t)}, {v(t)}')
        for r, t in zip(rs, ts): P(f'v_add_f32 {v(t)}, 1.0, {v(t)}')
        for r, t in zip(rs, ts): P(f'v_rcp_f32 {v(t)}, {v(t)}')
        for r, t in zip(rs, ts): P(f'v_mul_f32 {v(r)}, {v(r)}, {v(t)}')
    def add2(d, a, b):
        if cfg.pkadd: P(f'v_pk_add_f32 {v(d,2)}, {v(a,2)}, {v(b,2)}')
        else:
            for e in range(2): P(f'v_add_f32 {v(d+e)}, {v(a+e)}, {v(b+e)}')
    def rnd(r): P(f'v_cvt_pk_bf16_f32 {v(r)}, {v(r)}, {v(r)}\nv_and_b32 {v(r)}, 0xffff0000, {v(r)}')

    vMA, vMB, vMC, vPUB = 16, 17, 18, 19
    vMT, vD0, vAA, vS4 = 64, 36, 52, 40
    def modtile_issue(sRB, sCOL):
        srd(SRD_A, pC, 1024); srd(SRD_B, pWM, 512*6144)
        P(f's_lshl_b32 {s(sO1)}, {s(sRB)}, 8')
        P(f'buffer_load_dword {v(vMC)}, {v(vMA)}, {S(SRD_A)}, {s(sO1)} offen')
        P(f's_mul_i32 {s(sO1)}, {s(sRB)}, {128*6144}\ns_add_u32 {s(sO1)}, {s(sO1)}, {s(sCOL)}')
        for i in range(16):
            P(f'buffer_load_dwordx4 {v(vMT+4*i,4)}, {v(vMB)}, {S(SRD_B)}, {s(sO1)} offen {cfg.wpol}')
            if i < 15: P(f's_add_u32 {s(sO1)}, {s(sO1)}, 6144')
    def modtile_compute(nafter, soff, both=False):
        P(f's_waitcnt vmcnt({16+nafter})')
        unpack(vS4, vS4+1, vMC)
        silu_multi([vS4, vS4+1], [vS4+2, vS4+3])
        for e in range(2): P(f'v_cvt_pk_bf16_f32 {v(vS4+e)}, {v(vS4+e)}, {v(vS4+e)}')
        lohi(vS4)
        P(f's_waitcnt vmcnt({nafter})')
        chain(vD0, 16, [vMT+4*i for i in range(16)], lohi_srcs(vS4), vAA)
        finish2(vD0)
        if both:
            for e in range(2): P(f'v_mov_b32_dpp {v(vD0+e)}, {v(vD0+e)} row_ror:8 row_mask:0xf bank_mask:0xc')
            if cfg.par == 'dyn':
                P(f'v_mov_b32 {v(vT+2)}, {hex(L_PAR)}')
                lds_wait('pw', vT+2, 1, 28, [28])
                P(f'v_lshrrev_b32 {v(vT)}, 3, {v(vL)}\nv_xor_b32 {v(vT)}, {v(28)}, {v(vT)}')
            else: P(f'v_lshrrev_b32 {v(vT)}, 3, {v(vL)}\nv_xor_b32 {v(vT)}, {cfg.par}, {v(vT)}')
            P(f'v_and_b32 {v(vT)}, 1, {v(vT)}\nv_lshl_add_u32 {v(vT)}, {v(vT)}, 13, {v(vPUB)}')
            publish(vD0, vT, soff)
        else: publish(vD0, vPUB, soff, M2SET)

    P(f's_cmp_ge_u32 {s(sB)}, 256\ns_cbranch_scc1 L_END')
    if cfg.diag:
        for i in range(9): P(f's_mov_b32 {s(sDIAG+2*i)}, 0')
    stamp('start')
    P(f's_load_dwordx4 {s(sKP,4)}, s[0:1], 8')
    P(f's_load_dwordx16 {s(pWQ,16)}, s[0:1], 24')
    P(f's_load_dwordx2 {s(sWSP,2)}, s[0:1], 104')
    P(f's_load_dwordx2 {s(pX,2)}, s[0:1], 0')
    P(f's_load_dwordx2 {s(pOUT,2)}, s[0:1], 88')
    P(f'v_lshrrev_b32 {v(vT)}, 6, v0\nv_and_b32 {v(vL)}, 63, v0')
    P(f'v_readfirstlane_b32 {s(sW)}, {v(vT)}')
    P(f'v_lshlrev_b32 {v(vT)}, 2, {v(vL)}\nv_add_u32 {v(vT)}, {hex(L_FLAG)}, {v(vT)}\nv_mov_b32 {v(vT+1)}, 0')
    P(f'ds_write_b32 {v(vT)}, {v(vT+1)}')
    P(f's_and_b32 {s(sH)}, {s(sB)}, 31\ns_lshr_b32 {s(sJ)}, {s(sB)}, 5\ns_and_b32 {s(sX)}, {s(sB)}, 7\ns_lshr_b32 {s(sKK)}, {s(sB)}, 3')
    if cfg.split0: P(f's_cmp_ge_u32 {s(sW)}, 4\ns_cbranch_scc1 L_CPRE')
    vKA, vVA = 8, 12
    P(f'v_lshrrev_b32 {v(vT)}, 4, {v(vL)}\nv_and_b32 {v(vT+1)}, 15, {v(vL)}')
    P(f'v_lshlrev_b32 {v(vVA)}, 10, {v(vT)}\nv_lshl_add_u32 {v(vVA)}, {v(vT+1)}, 4, {v(vVA)}')
    if cfg.ksplit:
        P(f'v_lshlrev_b32 {v(vT+2)}, 2, {v(vT)}\nv_xor_b32 {v(vT+1)}, {v(vT+1)}, {v(vT+2)}\nv_lshlrev_b32 {v(vT+1)}, 4, {v(vT+1)}\nv_lshl_add_u32 {v(vKA)}, {v(vT)}, 10, {v(vT+1)}')
        for i in range(1, 4): P(f'v_xor_b32 {v(vKA+i)}, {16*i}, {v(vKA)}')
    else:
        P(f'v_xor_b32 {v(vT+1)}, {v(vT+1)}, {v(vT)}\nv_lshlrev_b32 {v(vT+1)}, 4, {v(vT+1)}\nv_lshl_add_u32 {v(vKA)}, {v(vT)}, 8, {v(vT+1)}')
        for i in range(1, 4): P(f'v_xor_b32 {v(vKA+i)}, {64*i}, {v(vKA)}')
    P(f's_lshl_b32 {s(sO0)}, {s(sH)}, 20\ns_lshl_b32 {s(sO3)}, {s(sJ)}, 2\ns_add_u32 {s(sO3)}, {s(sO3)}, {s(sW)}\ns_lshl_b32 {s(sO3)}, {s(sO3)}, 12')
    vXF, vXS, vL16, vWA, vXA = 28, 32, 60, 62, 33
    vWQ = 128
    def wq_issue():
        srd(SRD_C, pWQ, 4 << 20)
        P(f's_lshl_b32 {s(sO2)}, {s(sJ)}, 19\ns_lshl_b32 {s(sT0)}, {s(sH)}, 8\ns_add_u32 {s(sO2)}, {s(sO2)}, {s(sT0)}')
        for i in range(16):
            P(f'buffer_load_dwordx4 {v(vWQ+4*i,4)}, {v(vWA)}, {S(SRD_C)}, {s(sO2)} offen {cfg.wpol}')
            if i < 15: P(f's_add_u32 {s(sO2)}, {s(sO2)}, {8192 if (i & 1) == 0 else 8192*7}')
    def code_prefetch(w, late=False):
        if not cfg.cpf or (bool(cfg.cpf0 and cfg.split0) == late): return
        P(f's_cmp_eq_u32 {s(sW)}, {w}\ns_cbranch_scc0 L_NOCP')
        P(f's_getpc_b64 {s(20,2)}')
        P('L_PCREF:')
        P(f's_sub_u32 s20, s20, L_PCREF-{NAME}_kernel\ns_subb_u32 s21, s21, 0')
        P(f's_lshl_b32 {s(sT0)}, {s(sKK)}, 3\nv_and_b32 {v(vT)}, 7, {v(vL)}\nv_add_u32 {v(vT)}, {s(sT0)}, {v(vT)}\nv_lshlrev_b32 {v(vT)}, 7, {v(vT)}')
        P(f'v_min_u32 {v(vT)}, L_CODE_END-{NAME}_kernel-4, {v(vT)}')
        P(f'global_load_dword {v(240)}, {v(vT)}, s[20:21]')
        P('L_NOCP:')
    def cpre():
        P(f'v_lshlrev_b32 {v(vMA)}, 2, {v(vL)}\nv_lshrrev_b32 {v(vT)}, 3, {v(vL)}\nv_mul_u32_u24 {v(vMB)}, {16*6144}, {v(vT)}\nv_and_b32 {v(vT+1)}, 7, {v(vL)}\nv_lshl_add_u32 {v(vMB)}, {v(vT+1)}, 4, {v(vMB)}')
        P(f'v_lshrrev_b32 {v(vT)}, 4, {v(vL)}\nv_lshlrev_b32 {v(vT)}, 7, {v(vT)}\nv_lshl_add_u32 {v(vPUB)}, {v(vT+1)}, 4, {v(vT)}')
        P(f'v_lshlrev_b32 {v(vL16)}, 4, {v(vL)}')
        P(f'v_bfe_u32 {v(vT)}, {v(vL)}, 4, 1\nv_lshrrev_b32 {v(vT+2)}, 5, {v(vL)}\nv_lshl_add_u32 {v(vT)}, {v(vT)}, 1, {v(vT+2)}')
        P(f'v_lshl_add_u32 {v(vXA)}, {v(vT+1)}, 2, {v(vT)}\nv_lshlrev_b32 {v(vXA)}, 2, {v(vXA)}\nv_lshlrev_b32 {v(vWA)}, 14, {v(vT)}')
        P(f'v_and_b32 {v(vT+1)}, 15, {v(vL)}\nv_lshl_add_u32 {v(vWA)}, {v(vT+1)}, 4, {v(vWA)}')
        if cfg.tearly == 1:
            P(f's_sub_u32 {s(sT2)}, {s(sKK)}, 16\ns_lshl_b32 {s(sT2)}, {s(sT2)}, 2\ns_add_u32 {s(sT2)}, {s(sT2)}, {s(sX)}\ns_lshr_b32 {s(sT1B)}, {s(sT2)}, 3\ns_and_b32 {s(sT2)}, {s(sT2)}, 7')
            P(f's_cmp_lt_u32 {s(sX)}, 4\ns_cselect_b32 {s(sT2)}, {s(sT2)}, 99\ns_cmp_ge_u32 {s(sKK)}, 16\ns_cselect_b32 {s(sT2)}, {s(sT2)}, 99')
        else:
            P(f's_sub_u32 {s(sT2)}, {s(sKK)}, 16\ns_mov_b32 {s(sT1B)}, {s(sX)}')
        P(f's_and_b32 {s(sT0)}, {s(sT2)}, 1\ns_lshl_b32 {s(sT0)}, {s(sT0)}, 10\ns_lshl_b32 {s(sT1)}, {s(sT1B)}, 7\ns_add_u32 {s(sT1)}, {s(sT1)}, {s(sT0)}\ns_lshr_b32 {s(sT0)}, {s(sT2)}, 1\ns_lshl_b32 {s(sO2)}, {s(sJ)}, 7')
        P('s_waitcnt lgkmcnt(0)')
        if cfg.t1first:
            assert not cfg.tearly
            P(f's_cmp_eq_u32 {s(sW)}, 4\ns_cbranch_scc1 L_ISW4\ns_cmp_lt_u32 {s(sT2)}, 8\ns_cbranch_scc0 L_B0\ns_barrier\ns_branch L_B0\nL_ISW4:')
        else: P(f's_cmp_eq_u32 {s(sW)}, 4\ns_cbranch_scc0 L_B0')
        if cfg.b0late: P('s_setprio 3')
        P(f's_cmp_lt_u32 {s(sT2)}, 8\ns_cbranch_scc0 L_XLD')
        modtile_issue(sT0, sT1)
        if cfg.t1first: P('s_barrier')
        P('L_XLD:')
        srd(SRD_C, pX, 1024)
        P(f'buffer_load_dwordx4 {v(vXF,4)}, {v(vL16)}, {S(SRD_C)}, 0 offen')
        P(f'buffer_load_dword {v(vXS)}, {v(vXA)}, {S(SRD_C)}, {s(sO2)} offen')
        if cfg.wq0 == 2:
            P(f's_cmp_lt_u32 {s(sT2)}, 8\ns_cbranch_scc1 L_NOWQ0')
            wq_issue()
            P('L_NOWQ0:')
        elif cfg.wq0: wq_issue()
    if not cfg.split0: cpre()
    else: assert cfg.b0late
    if not cfg.split0:
        P('L_B0:')
        if not cfg.b0late: P('s_barrier')
        P(f's_cmp_ge_u32 {s(sW)}, 4\ns_cbranch_scc1 L_CW')

    if not cfg.split0: srd(SRD_K, sKP, 32 << 20)
    sTL, sRS, sTL0 = sG, sG+1, sG+2
    P(f's_mul_i32 {s(sTL0)}, {s(sH)}, {cfg.th}\ns_and_b32 {s(sTL0)}, {s(sTL0)}, 7\ns_lshl_b32 {s(sTL0)}, {s(sTL0)}, 17')
    def firsttile():
        P(f's_mov_b32 {s(sTL)}, {s(sTL0)}\ns_mov_b32 {s(sRS)}, {s(sO3)}\ns_add_u32 {s(sO1)}, {s(sO0)}, {s(sTL)}\ns_add_u32 {s(sO1)}, {s(sO1)}, {s(sRS)}')
    def nexttile():
        P(f's_add_u32 {s(sTL)}, {s(sTL)}, 0x20000\ns_and_b32 {s(sTL)}, {s(sTL)}, 0xe0000\ns_add_u32 {s(sRS)}, {s(sRS)}, {cfg.rot << 12}\ns_and_b32 {s(sRS)}, {s(sRS)}, 0x1f000\ns_add_u32 {s(sO1)}, {s(sO0)}, {s(sTL)}\ns_add_u32 {s(sO1)}, {s(sO1)}, {s(sRS)}')
    firsttile()
    P(f's_lshl_b32 {s(sT0)}, {s(sW)}, 15\ns_mov_b32 m0, {s(sT0)}\ns_mov_b32 {s(sT1)}, 0')
    if cfg.split0:
        P('s_waitcnt lgkmcnt(0)')
        srd(SRD_K, sKP, 32 << 20)
        if cfg.t1first: P(f's_sub_u32 {s(sT2)}, {s(sKK)}, 16\ns_cmp_lt_u32 {s(sT2)}, 8\ns_cbranch_scc0 L_NOT1B\ns_barrier\nL_NOT1B:')
    stamp('L_k0')
    vV = 128
    def streamK(ds, sfx):
        DK = ds[0]
        P(f'L_KLOOP{sfx}:')
        for i in range(4):
            if cfg.ksplit and i: P(f's_add_u32 m0, {s(sT0)}, {768*i}')
            P(f's_waitcnt vmcnt({DK-1})')
            P(f'buffer_load_dwordx4 {v(vKA+i)}, {S(SRD_K)}, {s(sO1)} offen offset:{(256 if cfg.ksplit else 1024)*i} {cfg.kpol} lds')
        if cfg.b0late: P(f's_cmp_eq_u32 {s(sT1)}, 0\ns_cbranch_scc0 L_KL2{sfx}\ns_barrier\nL_KL2{sfx}:')
        nexttile()
        P(f's_add_u32 {s(sT0)}, {s(sT0)}, 4096\ns_mov_b32 m0, {s(sT0)}\ns_add_u32 {s(sT1)}, {s(sT1)}, 1\ns_cmp_lt_u32 {s(sT1)}, 8\ns_cbranch_scc1 L_KLOOP{sfx}')
    def streamV(ds, sfx):
        DK = ds[0]
        def DV(idx): return ds[0] if idx < ds[1] else ds[2]
        stamp('L_kissued')
        srd(SRD_V, sVP, 32 << 20)
        firsttile()
        P(f's_lshl_b32 {s(sT0)}, {s(sW)}, 3\ns_add_u32 {s(sT0)}, {s(sT0)}, {hex(L_FLAG)}\nv_mov_b32 {v(vT)}, {s(sT0)}\nv_mov_b32 {v(vT+1)}, 1')
        for idx in range(32):
            t, i = idx >> 2, idx & 3
            P(f's_waitcnt vmcnt({DV(idx)-1})')
            if idx == DK - 1:
                P(f'ds_write_b32 {v(vT)}, {v(vT+1)}')
                stamp('L_klanded')
            P(f'buffer_load_dwordx4 {v(vV+4*idx,4)}, {v(vVA)}, {S(SRD_V)}, {s(sO1)} offen offset:{256*i} {cfg.vpol}')
            if i == 3 and t < 7: nexttile()
    def stream(ds, sfx):
        streamK(ds, sfx); streamV(ds, sfx)
    if cfg.dvar:
        P(f's_getreg_b32 {s(sT2)}, hwreg(HW_REG_XCC_ID, 0, 3)')
        P(f's_bitcmp1_b32 {s(sT2)}, 2\ns_cbranch_scc1 L_STH')
        P(f's_bitcmp1_b32 {s(sT2)}, 0\ns_cbranch_scc1 L_ST1')
        stream(cfg.dvar[0], 'a'); P('s_branch L_STD\nL_ST1:')
        stream(cfg.dvar[1], 'b'); P('s_branch L_STD\nL_STH:')
        P(f's_bitcmp1_b32 {s(sT2)}, 0\ns_cbranch_scc1 L_ST3')
        stream(cfg.dvar[2], 'c'); P('s_branch L_STD\nL_ST3:')
        stream(cfg.dvar[3], 'd')
        P('L_STD:')
    elif cfg.dodd:
        P(f's_getreg_b32 {s(sT2)}, hwreg(HW_REG_XCC_ID, 0, 1)\ns_cmp_eq_u32 {s(sT2)}, 1\ns_cbranch_scc1 L_STO')
        stream(cfg.dsched, 'a'); P('s_branch L_STD\nL_STO:')
        stream(cfg.dodd, 'b')
        P('L_STD:')
    elif cfg.lay2:
        streamK(cfg.dsched, '')
        P('s_branch L_VPART')
        P('L_CPRE:')
        code_prefetch(7)
        cpre()
        P('L_B0:\ns_branch L_CW\nL_VPART:')
        streamV(cfg.dsched, '')
    else: stream(cfg.dsched, '')
    stamp('L_vissued')
    def masks(pk=False):
        P(f'v_and_b32 {v(vT)}, 1, {v(vL)}\nv_lshlrev_b32 {v(vT)}, 4, {v(vT)}\nv_mov_b32 {v(vT+1)}, 0xffff\nv_lshlrev_b32 {v(vT+1)}, {v(vT)}, {v(vT+1)}')
        P(f'v_bfe_u32 {v(vT)}, {v(vL)}, 1, 2')
        for w in range(4):
            P(f'v_cmp_eq_u32 vcc, {w}, {v(vT)}\nv_cndmask_b32 {v(vM+w)}, 0, {v(vT+1)}, vcc')
            if pk and cfg.pkand: P(f'v_cndmask_b32 {v(vF+w)}, 0, 1.0, vcc')
        if pk and cfg.pkand: P(f'v_mov_b32 {v(vHM)}, {v(vT+1)}')
    def common_setup():
        P(f's_load_dword {s(sTAG)}, {s(sWSP,2)}, 0')
        srd(SRD_WS, sWSP, WS_BYTES)
        masks(True)
    masks()
    vPA, vOA, vP, vA, vD = 13, 14, 16, 48, 56
    P(f'v_lshrrev_b32 {v(vT)}, 4, {v(vL)}\nv_lshlrev_b32 {v(vT)}, 4, {v(vT)}\ns_lshl_b32 {s(sT0)}, {s(sW)}, 9\ns_add_u32 {s(sT0)}, {s(sT0)}, {hex(L_P)}\nv_add_u32 {v(vPA)}, {s(sT0)}, {v(vT)}')
    P(f's_add_u32 {s(sT0)}, {s(sT0)}, {hex(L_OP - L_P)}\nv_lshlrev_b32 {v(vT)}, 3, {v(vL)}\nv_add_u32 {v(vOA)}, {s(sT0)}, {v(vT)}')
    P('s_waitcnt lgkmcnt(0)')
    P('s_barrier')
    stamp('L_b1')
    for t in range(8): P(f'ds_read_b128 {v(vP+4*t,4)}, {v(vPA)} offset:{64*t}')
    P('s_waitcnt lgkmcnt(7)')
    afrag(vA, vP)
    for idx in range(32):
        if idx + 1 < 32:
            if (idx + 1) % 4 == 0: P(f's_waitcnt lgkmcnt({7 - (idx+1)//4})')
            afrag(vA + 4*((idx+1) & 1), vP + idx + 1)
        P(f's_waitcnt vmcnt({31-idx})')
        mfma(vD, vA + 4*(idx & 1), vV + 4*idx, first=(idx == 0))
    stamp('L_pv')
    P(f'v_permlane32_swap_b32 {v(vD)}, {v(vD+2)}\nv_permlane32_swap_b32 {v(vD+1)}, {v(vD+3)}')
    P(f'ds_write_b64 {v(vOA)}, {v(vD,2)}')
    P('s_waitcnt lgkmcnt(0)')
    P('s_barrier')
    P('s_endpgm' if not cfg.diag else 's_branch L_END')

    if cfg.split0 and not cfg.lay2:
        P('L_CPRE:')
        code_prefetch(7)
        cpre()
        P('L_B0:')
    P('L_CW:')
    if cfg.gprobe and cfg.gprobe[0] in 'MR':
        P(f's_waitcnt lgkmcnt(0)\ns_mov_b32 s96, {s(sWSP)}\ns_mov_b32 s97, {s(sWSP+1)}\ns_mov_b32 s98, {hex(WS_BYTES)}\ns_mov_b32 s99, 0x20000')
        P(f's_lshl_b32 s100, {s(sB)}, 2\ns_and_b32 s101, {s(sW)}, 3\ns_add_u32 s100, s100, s101\ns_lshl_b32 s100, s100, 3\ns_add_u32 s100, s100, {hex(DIAG)}')
        P(f's_mov_b64 exec, 1\nv_mov_b32 v254, {s(sDIAG)}\nv_mov_b32 v255, {s(sDIAG)}\nv_mov_b32 v253, 0\nbuffer_store_dwordx2 v[254:255], v253, s[96:99], s100 offen sc1\ns_mov_b64 exec, -1\ns_waitcnt vmcnt(0)')
    if cfg.b0late: P('s_barrier')
    if cfg.prio: P(f's_setprio {cfg.prio}')
    P(f's_cmp_eq_u32 {s(sW)}, 4\ns_cbranch_scc0 L_C123')
    vGA = 192
    common_setup()
    P('s_waitcnt lgkmcnt(0)')
    P(f's_add_u32 {s(sTAG)}, {s(sTAG)}, 1')
    if cfg.local:
        P(f's_getreg_b32 {s(sLOC)}, hwreg(HW_REG_XCC_ID, 0, 3)\ns_lshl_b32 {s(sT0)}, {s(sTAG)}, 3\ns_or_b32 {s(sLOC)}, {s(sLOC)}, {s(sT0)}')
        P(f's_lshl_b32 {s(sO3)}, {s(sH)}, 7\ns_add_u32 {s(sO3)}, {s(sO3)}, {hex(X0)}\ns_lshl_b32 {s(sT0)}, {s(sJ)}, 2\ns_add_u32 {s(sT0)}, {s(sT0)}, {s(sO3)}\nv_mov_b32 {v(vT)}, {s(sT0)}\nv_mov_b32 {v(vT+1)}, {s(sLOC)}')
        P(f's_lshl_b32 {s(sR)}, {s(sX)}, 3\ns_lshr_b32 {s(sT0)}, {s(sKK)}, 2\ns_add_u32 {s(sR)}, {s(sR)}, {s(sT0)}\ns_lshl_b32 {s(sR)}, {s(sR)}, 7\ns_add_u32 {s(sR)}, {s(sR)}, {hex(X0B)}')
        P(f's_and_b32 {s(sT0)}, {s(sKK)}, 3\ns_lshl_b32 {s(sT0)}, {s(sT0)}, 2\ns_add_u32 {s(sT0)}, {s(sT0)}, {s(sR)}\nv_writelane_b32 {v(vT)}, {s(sT0)}, 1')
        P(f's_lshl_b32 {s(sT0)}, {s(sX)}, 7\ns_lshl_b32 {s(sO2)}, {s(sKK)}, 2\ns_add_u32 {s(sT0)}, {s(sT0)}, {s(sO2)}\ns_add_u32 {s(sT0)}, {s(sT0)}, {hex(X0C)}\nv_writelane_b32 {v(vT)}, {s(sT0)}, 2')
        if cfg.mlat:
            P(f's_lshl_b32 {s(sT0)}, {s(sH)}, 7\ns_lshl_b32 {s(sO2)}, {s(sJ)}, 3\ns_add_u32 {s(sT0)}, {s(sT0)}, {s(sO2)}\ns_add_u32 {s(sT0)}, {s(sT0)}, {hex(X3)}\nv_writelane_b32 {v(vT)}, {s(sT0)}, 3')
            P(f's_add_u32 {s(sT0)}, {s(sT0)}, 4\nv_writelane_b32 {v(vT)}, {s(sT0)}, 4\nv_writelane_b32 {v(vT+1)}, 0, 3\nv_writelane_b32 {v(vT+1)}, 0, 4')
        setexec(31 if cfg.mlat else 7)
        P(f'buffer_store_dword {v(vT+1)}, {v(vT)}, {S(SRD_WS)}, 0 offen sc1')
        setexec(ALL)
    P(f's_cmp_lt_u32 {s(sT2)}, 8\ns_cbranch_scc0 L_NOT1')
    P(f's_lshl_b32 {s(sO2)}, {s(sT1B)}, 3\ns_add_u32 {s(sO2)}, {s(sO2)}, {s(sT2)}\ns_lshl_b32 {s(sO2)}, {s(sO2)}, 9\ns_add_u32 {s(sO2)}, {s(sO2)}, {hex(X1)}')
    modtile_compute((18 if cfg.wq0 == 1 else 2) + cfg.local, sO2)
    if cfg.hint:
        P(f's_lshl_b32 {s(sO2)}, {s(sT1B)}, 9\ns_lshl_b32 {s(sT0)}, {s(sT2)}, 2\ns_add_u32 {s(sO2)}, {s(sO2)}, {s(sT0)}\ns_add_u32 {s(sO2)}, {s(sO2)}, {hex(X1F)}\nv_lshlrev_b32 {v(vT)}, 7, {v(vL)}')
        setexec(0xf)
        P(f'buffer_store_dword {v(vD0+2)}, {v(vT)}, {S(SRD_WS)}, {s(sO2)} offen sc1')
        setexec(ALL)
    stamp('C0_x1pub')
    if cfg.wq0 != 1: wq_issue()
    P('s_branch L_T1D')
    P('L_NOT1:')
    if not cfg.wq0: wq_issue()
    P('L_T1D:')
    vx = 64
    P(f's_waitcnt vmcnt({16 + (cfg.local if cfg.wq0 == 1 else 0)})')
    for k in range(4): unpack(vx+2*k, vx+2*k+1, vXF+k)
    P(f'v_add_f32 {v(20)}, {v(vx)}, {v(vx+1)}\nv_add_f32 {v(21)}, {v(vx+2)}, {v(vx+3)}\nv_add_f32 {v(22)}, {v(vx+4)}, {v(vx+5)}\nv_add_f32 {v(23)}, {v(vx+6)}, {v(vx+7)}')
    P(f'v_add_f32 {v(20)}, {v(20)}, {v(21)}\nv_add_f32 {v(22)}, {v(22)}, {v(23)}\nv_add_f32 {v(20)}, {v(20)}, {v(22)}')
    wave_reduce('v_add_f32', [20])
    P(f'v_mul_f32 {v(20)}, {R512}, {v(20)}\nv_readlane_b32 {s(sT0)}, {v(20)}, 63')
    for k in range(8): P(f'v_subrev_f32 {v(vx+k)}, {s(sT0)}, {v(vx+k)}')
    P(f'v_mul_f32 {v(21)}, {v(vx)}, {v(vx)}')
    for k in range(1, 8): P(f'v_fmac_f32 {v(21)}, {v(vx+k)}, {v(vx+k)}')
    wave_reduce('v_add_f32', [21])
    P(f'v_mul_f32 {v(21)}, {R512}, {v(21)}')
    P(f'v_cvt_pk_bf16_f32 {v(22)}, {v(20)}, {v(21)}')
    P(f'v_and_b32 {v(21)}, 0xffff0000, {v(22)}\nv_lshlrev_b32 {v(20)}, 16, {v(22)}\nv_add_f32 {v(21)}, {EPS}, {v(21)}')
    rnd(21); P(f'v_sqrt_f32 {v(21)}, {v(21)}'); rnd(21); P(f'v_rcp_f32 {v(22)}, {v(21)}')
    P(f'v_readlane_b32 {s(sT0)}, {v(20)}, 63\nv_readlane_b32 {s(sT1)}, {v(21)}, 63\nv_readlane_b32 {s(sT2)}, {v(22)}, 63')
    vLN = 24
    unpack(vLN, vLN+1, vXS)
    for e in range(2): P(f'v_subrev_f32 {v(vLN+e)}, {s(sT0)}, {v(vLN+e)}')
    P(f'v_cvt_pk_bf16_f32 {v(20)}, {v(vLN)}, {v(vLN+1)}'); unpack(vLN, vLN+1, 20)
    for e in range(2): P(f'v_mul_f32 {v(20+e)}, {s(sT2)}, {v(vLN+e)}')
    for e in range(2): P(f'v_fma_f32 {v(vLN+e)}, -{v(20+e)}, {s(sT1)}, {v(vLN+e)}')
    for e in range(2): P(f'v_fma_f32 {v(vLN+e)}, {v(vLN+e)}, {s(sT2)}, {v(20+e)}')
    P(f'v_cvt_pk_bf16_f32 {v(20)}, {v(vLN)}, {v(vLN+1)}'); unpack(vLN, vLN+1, 20)
    P(f'v_bfe_u32 {v(vT)}, {v(vL)}, 3, 1\nv_lshlrev_b32 {v(vT)}, 9, {v(vT)}\nv_add_u32 {v(26)}, {v(vPUB)}, {v(vT)}')
    P(f's_lshl_b32 {s(sO0)}, {s(sJ)}, 12\ns_add_u32 {s(sO0)}, {s(sO0)}, {hex(X1)}')
    if cfg.hint:
        P(f's_lshl_b32 {s(sT0)}, {s(sJ)}, 2\ns_and_b32 {s(sT1)}, {s(sH)}, 3\ns_add_u32 {s(sT0)}, {s(sT0)}, {s(sT1)}\ns_lshl_b32 {s(sT0)}, {s(sT0)}, 7\ns_add_u32 {s(sT0)}, {s(sT0)}, {hex(X1F)}')
        hint_wait('h1h', sT0)
    else: P('s_waitcnt vmcnt(0)')
    if cfg.local:
        P(f's_add_u32 {s(sMASK)}, {s(sWSP)}, {s(sO3)}\ns_addc_u32 {s(sMASK+1)}, {s(sWSP+1)}, 0')
        P(f's_load_dwordx8 {s(sG,8)}, {s(sMASK,2)}, 0 glc')
        P(f's_load_dwordx4 s[8:11], {s(sWSP,2)}, {s(sR)} glc')
    stamp('C0_wq')
    if cfg.sleep1: P(f's_sleep {cfg.sleep1}')
    def issue():
        for k in range(4): P(f'buffer_load_dwordx4 {v(vGA+4*k,4)}, {v(26)}, {S(SRD_WS)}, {s(sO0)} offen offset:{1024*k} sc1')
    tagcheck_loop(issue, [vGA+4*k+2 for k in range(4)], 'h1')
    stamp('C0_h1')
    if cfg.local:
        P('s_waitcnt lgkmcnt(0)')
        P(f's_xor_b32 {s(sG)}, {s(sG)}, {s(sLOC)}')
        for k in range(1, 8): P(f's_xor_b32 {s(sG+k)}, {s(sG+k)}, {s(sLOC)}\ns_or_b32 {s(sG)}, {s(sG)}, {s(sG+k)}')
        P(f's_cselect_b32 {s(sT0)}, 0, 1')
        P(f's_xor_b32 s8, s8, {s(sLOC)}')
        for k in range(1, 4): P(f's_xor_b32 {s(8+k)}, {s(8+k)}, {s(sLOC)}\ns_or_b32 s8, s8, {s(8+k)}')
        P(f's_cselect_b32 {s(sR)}, 0, 1\ns_mov_b32 {s(sLOC)}, {s(sT0)}')
    b = vGA
    for e in range(2): P(f'v_add_f32 {v(b+e)}, {v(b+e)}, {v(b+4+e)}\nv_add_f32 {v(b+8+e)}, {v(b+8+e)}, {v(b+12+e)}')
    for e in range(2): P(f'v_add_f32 {v(b+e)}, {v(b+e)}, {v(b+8+e)}')
    P(f'v_cvt_pk_bf16_f32 {v(b+4)}, {v(b)}, {v(b+1)}\nv_mov_b32 {v(b+5)}, {v(b+4)}')
    P(f'v_mov_b32_dpp {v(b+4)}, {v(b+5)} row_ror:8 row_mask:0xf bank_mask:0xc')
    P(f'v_mov_b32_dpp {v(b+5)}, {v(b+5)} row_ror:8 row_mask:0xf bank_mask:0x3')
    unpack(b+8, b+9, b+4); unpack(b+6, b+7, b+5)
    P(f'v_add_f32 {v(b+6)}, 1.0, {v(b+6)}\nv_add_f32 {v(b+7)}, 1.0, {v(b+7)}\nv_cvt_pk_bf16_f32 {v(b+5)}, {v(b+6)}, {v(b+7)}')
    unpack(b+6, b+7, b+5)
    P(f'v_mul_f32 {v(b+6)}, {v(b+6)}, {v(vLN)}\nv_mul_f32 {v(b+7)}, {v(b+7)}, {v(vLN+1)}\nv_cvt_pk_bf16_f32 {v(b+5)}, {v(b+6)}, {v(b+7)}')
    unpack(b+6, b+7, b+5)
    P(f'v_add_f32 {v(b+6)}, {v(b+6)}, {v(b+8)}\nv_add_f32 {v(b+7)}, {v(b+7)}, {v(b+9)}')
    vH = 20
    P(f'v_cvt_pk_bf16_f32 {v(vH)}, {v(b+6)}, {v(b+6)}\nv_cvt_pk_bf16_f32 {v(vH+1)}, {v(b+7)}, {v(b+7)}')
    P(f's_lshl_b32 {s(sO1)}, {s(sH)}, 13\ns_add_u32 {s(sO1)}, {s(sO1)}, {hex(X2)}\ns_lshl_b32 {s(sO0)}, {s(sJ)}, 10\ns_add_u32 {s(sO0)}, {s(sO0)}, {s(sO1)}\ns_add_u32 {s(sO2)}, {s(sO1)}, 4096')
    chain(vD0, 16, [vWQ+4*i for i in range(16)], [(vH + (i & 1), f'row_newbcast:{i >> 1}') for i in range(16)], vAA)
    finish1(vD0)
    publish_loc(vD0, vL16, sO0)
    if cfg.hint:
        P(f's_lshl_b32 {s(sO3)}, {s(sH)}, 7\ns_add_u32 {s(sO3)}, {s(sO3)}, {hex(X2F)}\nv_mov_b32 {v(vT)}, 0\ns_lshl_b32 {s(sT0)}, {s(sJ)}, 2\ns_add_u32 {s(sT0)}, {s(sT0)}, {s(sO3)}')
        setexec(1)
        P(f'buffer_store_dword {v(vD0+2)}, {v(vT)}, {S(SRD_WS)}, {s(sT0)} offen sc1')
        setexec(ALL)
    stamp('C0_x2pub')
    P(f'v_bfe_u32 {v(vT)}, {v(vL)}, 4, 1\nv_lshrrev_b32 {v(vT+1)}, 5, {v(vL)}\nv_lshl_add_u32 {v(vT)}, {v(vT)}, 1, {v(vT+1)}\nv_and_b32 {v(vT+1)}, 15, {v(vL)}\nv_lshl_add_u32 {v(vT)}, {v(vT+1)}, 2, {v(vT)}')
    P(f'v_lshlrev_b32 {v(vT)}, 2, {v(vT)}\nv_add_u32 {v(26)}, {hex(L_Q)}, {v(vT)}')
    P(f'v_and_b32 {v(27)}, 3, {v(vL)}\nv_lshlrev_b32 {v(27)}, 3, {v(27)}\nv_add_u32 {v(27)}, {hex(L_FLAG + 4)}, {v(27)}\nv_mov_b32 {v(25)}, 1')
    if cfg.hint: hint_wait('qh', sO3)
    stamp('C0_qh')
    if cfg.sleep2: P(f's_sleep {cfg.sleep2}')
    def gather8(base_lo, base_hi):
        def issue():
            for k in range(8):
                P(f'buffer_load_dwordx4 {v(vGA+4*k,4)}, {v(vL16)}, {S(SRD_WS)}, {s(base_lo if k < 4 else base_hi)} offen offset:{1024*(k & 3)} sc1')
        return issue
    def sum8():
        for a, b2 in ((0, 1), (2, 3), (4, 5), (6, 7), (0, 2), (4, 6), (0, 4)):
            for e in (0, 1): P(f'v_add_f32 {v(vGA+4*a+e)}, {v(vGA+4*a+e)}, {v(vGA+4*b2+e)}')
    tagcheck_loop(gather8(sO1, sO2), [vGA+4*k+2 for k in range(8)], 'q')
    stamp('C0_q')
    sum8()
    P(f'v_cvt_pk_bf16_f32 {v(vT)}, {v(vGA)}, {v(vGA+1)}')
    P(f'ds_write_b32 {v(26)}, {v(vT)}')
    P(f'ds_write_b32 {v(27)}, {v(25)}')
    vg, vXv, vGAv, vGBv, vU16, vDA, vXC, vL16r, vBP, sJJ, sP, sB4, sD = 64, 12, 13, 14, 15, 17, 20, 16, 18, sG, 4, 12, 8
    def vda():
        if cfg.par is None: P(f'v_lshrrev_b32 {v(vT)}, 2, {v(vL)}\nv_lshl_add_u32 {v(vDA)}, {v(vT)}, 12, {v(vU16)}')
        else: P(f'v_lshrrev_b32 {v(vT)}, 4, {v(vL)}\nv_lshl_add_u32 {v(vDA)}, {v(vT)}, 14, {v(vU16)}\nv_bfe_u32 {v(vT)}, {v(vL)}, 2, 2\nv_lshl_add_u32 {v(vDA)}, {v(vT)}, 11, {v(vDA)}')
    def red_addr():
        par_read(19)
        par_use(19)
        if X4NEAR:
            P(f's_lshr_b32 {s(sT0)}, {s(sJJ)}, 2\ns_lshl_b32 {s(sT0)}, {s(sT0)}, 14\ns_and_b32 {s(sT1)}, {s(sJJ)}, 3\ns_lshl_b32 {s(sT1)}, {s(sT1)}, 11\ns_add_u32 {s(sT0)}, {s(sT0)}, {s(sT1)}\ns_add_u32 {s(sT0)}, {s(sT0)}, {s(sNEAR)}')
            for p_ in range(4): P(f's_add_u32 {s(sP+p_)}, {s(sT0)}, {hex(X4N + p_*32768)}')
        if cfg.par is None:
            P(f's_lshl_b32 {s(sO0)}, {s(sJJ)}, 14\ns_add_u32 {s(sO0)}, {s(sO0)}, {hex(XB)}')
            if cfg.xbrep: P(f's_lshl_b32 {s(sT1)}, {s(sX)}, 17\ns_add_u32 {s(sO0)}, {s(sO0)}, {s(sT1)}')
            for k in range(4): P(f's_add_u32 {s(sB4+k)}, {s(sO0)}, {4096*k}')
        else:
            P(f's_lshl_b32 {s(sO0)}, {s(sJJ)}, 15\ns_add_u32 {s(sO0)}, {s(sO0)}, {s(sNEAR)}\ns_add_u32 {s(sO0)}, {s(sO0)}, {hex(XB2)}')
            for k, o in enumerate((0, 4096, 16384, 20480)): P(f's_add_u32 {s(sB4+k)}, {s(sO0)}, {o}')
        P(f's_lshr_b32 {s(sO3)}, {s(sX)}, 1\ns_lshl_b32 {s(sO3)}, {s(sO3)}, 14\ns_and_b32 {s(sT0)}, {s(sX)}, 1\ns_lshl_b32 {s(sT0)}, {s(sT0)}, 12\ns_add_u32 {s(sO3)}, {s(sO3)}, {s(sT0)}\ns_add_u32 {s(sO3)}, {s(sO3)}, {hex(XC)}')
        P(f's_lshl_b32 {s(sT1)}, {s(sJJ)}, 9\ns_add_u32 {s(sO3)}, {s(sO3)}, {s(sT1)}')
        if cfg.nearloc: P(f's_add_u32 {s(sO3)}, {s(sO3)}, {s(sNEAR)}')
        if cfg.par is not None:
            P(f's_lshr_b32 {s(sO2)}, {s(sJJ)}, 1\ns_lshl_b32 {s(sO2)}, {s(sO2)}, 9\ns_and_b32 {s(sT1)}, {s(sJJ)}, 1\ns_lshl_b32 {s(sT1)}, {s(sT1)}, 7\ns_add_u32 {s(sO2)}, {s(sO2)}, {s(sT1)}')
            P(f's_and_b32 {s(sT1)}, {s(sX)}, 1\ns_lshl_b32 {s(sT1)}, {s(sT1)}, 6\ns_add_u32 {s(sO2)}, {s(sO2)}, {s(sT1)}\ns_and_b32 {s(sT1)}, {s(sX)}, 2\ns_lshl_b32 {s(sT1)}, {s(sT1)}, 7\ns_add_u32 {s(sO2)}, {s(sO2)}, {s(sT1)}\ns_add_u32 {s(sO2)}, {s(sO2)}, {s(sNEAR)}\ns_add_u32 {s(sO2)}, {s(sO2)}, {hex(XD)}')
        if cfg.par is None:
            P(f's_lshr_b32 {s(sO2)}, {s(sJJ)}, 1\ns_lshl_b32 {s(sO2)}, {s(sO2)}, 10\ns_and_b32 {s(sT1)}, {s(sJJ)}, 1\ns_lshl_b32 {s(sT1)}, {s(sT1)}, 7\ns_add_u32 {s(sO2)}, {s(sO2)}, {s(sT1)}')
            P(f's_and_b32 {s(sT1)}, {s(sX)}, 1\ns_lshl_b32 {s(sT1)}, {s(sT1)}, 6\ns_add_u32 {s(sO2)}, {s(sO2)}, {s(sT1)}\ns_lshr_b32 {s(sT1)}, {s(sX)}, 1\ns_lshl_b32 {s(sT1)}, {s(sT1)}, 8\ns_add_u32 {s(sO2)}, {s(sO2)}, {s(sT1)}\ns_add_u32 {s(sO2)}, {s(sO2)}, {hex(XD)}')
        for k in range(3): P(f's_add_u32 {s(sD+k)}, {s(sO2)}, {hex(65536*k)}')
    def red_setup():
        P(f's_sub_u32 {s(sT0)}, {s(sKK)}, 8')
        P(f's_mov_b32 {s(sJJ)}, {s(sT0)}\ns_lshl_b32 {s(sR)}, {s(sX)}, 3\ns_add_u32 {s(sR)}, {s(sR)}, {s(sT0)}')
        if cfg.local:
            P(f's_lshl_b32 {s(sT1)}, {s(sX)}, 7\ns_add_u32 {s(sT1)}, {s(sT1)}, {hex(X0C)}\ns_add_u32 {s(sMASK)}, {s(sWSP)}, {s(sT1)}\ns_addc_u32 {s(sMASK+1)}, {s(sWSP+1)}, 0')
            P(f's_load_dwordx16 s[4:19], {s(sMASK,2)}, 0 glc\ns_load_dwordx16 s[20:35], {s(sMASK,2)}, 64 glc')
            P(f's_getreg_b32 {s(sLOC)}, hwreg(HW_REG_XCC_ID, 0, 3)\ns_lshl_b32 {s(sT1)}, {s(sTAG)}, 3\ns_or_b32 {s(sLOC)}, {s(sLOC)}, {s(sT1)}')
        P(f'v_lshlrev_b32 {v(vL16r)}, 4, {v(vL)}\nv_and_b32 {v(vU16)}, 3, {v(vL)}\nv_lshlrev_b32 {v(vU16)}, 4, {v(vU16)}')
        P(f'v_and_b32 {v(vT)}, 7, {v(vL)}\nv_lshlrev_b32 {v(vT)}, 4, {v(vT)}\nv_bfe_u32 {v(vT+1)}, {v(vL)}, 3, 1\nv_lshl_add_u32 {v(vT)}, {v(vT+1)}, 3, {v(vT)}\nv_bfe_u32 {v(vT+1)}, {v(vL)}, 4, 1\nv_lshl_add_u32 {v(vT)}, {v(vT+1)}, 2, {v(vT)}\nv_lshrrev_b32 {v(vT+1)}, 5, {v(vL)}\nv_lshl_add_u32 {v(vT+2)}, {v(vT+1)}, 1, {v(vT)}')
        P(f'v_bfe_u32 {v(vT)}, {v(vL)}, 4, 1\nv_lshlrev_b32 {v(vT)}, 7, {v(vT)}\nv_lshrrev_b32 {v(vT+1)}, 2, {v(vU16)}\nv_add_u32 {v(vBP)}, {v(vT)}, {v(vT+1)}\ns_lshl_b32 {s(sT1)}, {s(sX)}, 4\nv_add_u32 {v(vBP)}, {s(sT1)}, {v(vBP)}')
        vda()
        if cfg.local:
            P('s_waitcnt lgkmcnt(0)')
            P(f's_xor_b32 s4, s4, {s(sLOC)}')
            for k in range(5, 36): P(f's_xor_b32 {s(k)}, {s(k)}, {s(sLOC)}\ns_or_b32 s4, s4, {s(k)}')
            P(f's_cselect_b32 {s(sLOC)}, 0, 1')
            srd(SRD_WS, sWSP, WS_BYTES)
        srd(SRD_A, pX, 1024); srd(SRD_B, pOUT, 1024)
        P(f's_lshl_b32 {s(sT1)}, {s(sJJ)}, 7')
        P(f'buffer_load_ushort {v(vXv)}, {v(vT+2)}, {S(SRD_A)}, {s(sT1)} offen')
        P(f's_and_b32 {s(sT2)}, {s(sX)}, 1\ns_lshl_b32 {s(sT2)}, {s(sT2)}, 6\ns_add_u32 {s(sT1)}, {s(sT1)}, {s(sT2)}\ns_and_b32 {s(sT2)}, {s(sX)}, 2\ns_lshl_b32 {s(sT2)}, {s(sT2)}, 2\ns_add_u32 {s(sT1)}, {s(sT1)}, {s(sT2)}\ns_and_b32 {s(sT2)}, {s(sX)}, 4\ns_add_u32 {s(sG+2)}, {s(sT1)}, {s(sT2)}')
        if not X4NEAR:
            for p_ in range(4): P(f's_lshl_b32 {s(sP+p_)}, {s(sJJ)}, 11\ns_add_u32 {s(sP+p_)}, {s(sP+p_)}, {hex(X4 + p_*16384)}')
        for i in range(cfg.pipe.get('xd', 1)):
            for k in range(3): P(f'v_mov_b32 {v(192+12*i+8+k)}, {s(sTAG) if k == 2 else 0}')
    def x4_issue():
        for k in range(8): P(f'buffer_load_dwordx4 {v(vg+4*k,4)}, {v(vL16r)}, {S(SRD_WS)}, {s(sP + (k >> 1))} offen offset:{1024*(k & 1)} sc1')
    P('L_QKP:')
    vKR, vQ, vKB, vDQ, vS2, vE, vML = 8, 128, 144, 28, 208, 210, 216
    sM2 = sG
    P(f's_sub_u32 {s(sT2)}, {s(sW)}, 4\ns_lshl_b32 {s(sT0)}, {s(sT2)}, 3\ns_add_u32 {s(sT0)}, {s(sT0)}, {hex(L_FLAG)}\nv_mov_b32 {v(vT+2)}, {s(sT0)}')
    P(f'v_and_b32 {v(vT)}, 15, {v(vL)}\nv_lshrrev_b32 {v(vT+1)}, 4, {v(vL)}\nv_lshlrev_b32 {v(26)}, 4, {v(vT+1)}\nv_xor_b32 {v(vT+1)}, {v(vT+1)}, {v(vT)}\nv_lshlrev_b32 {v(vT+1)}, 4, {v(vT+1)}')
    if cfg.ksplit:
        P(f'v_and_b32 {v(vKR)}, 3, {v(vL)}\nv_lshlrev_b32 {v(vKR)}, 10, {v(vKR)}\nv_lshrrev_b32 {v(vT)}, 2, {v(vT)}\nv_lshl_add_u32 {v(vKR)}, {v(vT)}, 8, {v(vKR)}\nv_add_u32 {v(vKR)}, {v(vKR)}, {v(vT+1)}')
    else: P(f'v_lshl_add_u32 {v(vKR)}, {v(vT)}, 8, {v(vT+1)}')
    P(f's_lshl_b32 {s(sT0)}, {s(sT2)}, 15\nv_add_u32 {v(vKR)}, {s(sT0)}, {v(vKR)}')
    for q in range(1, 4): P(f'v_xor_b32 {v(vKR+q)}, {64*q}, {v(vKR)}')
    P(f'v_and_b32 {v(27)}, 7, {v(vL)}\nv_lshl_add_u32 {v(27)}, {v(27)}, 6, {v(26)}\nv_bfe_u32 {v(vT)}, {v(vL)}, 3, 1\nv_lshl_add_u32 {v(27)}, {v(vT)}, 3, {v(27)}')
    P(f's_lshl_b32 {s(sT0)}, {s(sT2)}, 9\ns_add_u32 {s(sT0)}, {s(sT0)}, {hex(L_P)}\nv_add_u32 {v(27)}, {s(sT0)}, {v(27)}\nv_add_u32 {v(26)}, {hex(L_Q)}, {v(26)}')
    P(f's_lshl_b32 {s(sT0)}, {s(sT2)}, 4\ns_add_u32 {s(sT0)}, {s(sT0)}, {hex(L_MS)}\nv_mov_b32 {v(25)}, {s(sT0)}\nv_mov_b32 {v(vML+2)}, 1\nv_mov_b32 {v(vML+3)}, 1')
    P(f's_mov_b32 {s(sMASK)}, 0x00010001\ns_mov_b32 {s(sMASK+1)}, 0x00010001\ns_mov_b32 {s(sM2)}, 0x01000100\ns_mov_b32 {s(sM2+1)}, 0x01000100')
    lds_wait('kq', vT+2, 2, 28, [28, 29], cfg.lsleep)
    stamp('C0_kready')
    for q in range(4): P(f'ds_read_b128 {v(vQ+4*q,4)}, {v(26)} offset:{64*q}')
    NB = 3; PD = NB - 1; NT = 8
    def kread(t, q): P(f'ds_read_b128 {v(vKB+16*(t % NB)+4*q,4)}, {v(vKR+q)} offset:{4096*t}')
    for t in range(PD):
        for q in range(4): kread(t, q)
    for t in range(NT + 1):
        u = t - 1
        for q in range(4):
            if t < NT:
                if q in (0, 2): P(f's_waitcnt lgkmcnt({min(4*PD - 2, 4*(NT - t) - 2 - q)})')
                mfma(vDQ + 4*(t & 1), vKB + 16*(t % NB) + 4*q, vQ + 4*q, first=(q == 0))
                if t + PD < NT: kread(t + PD, q)
            if t >= 1 and q >= 2:
                mk = sMASK if q == 2 else sM2
                for e in range(2):
                    P(f'v_cndmask_b32 {v(vS2+e)}, {v(vS2+e)}, {v(vDQ+4*(u & 1)+2*(q-2)+e)}, {s(mk,2)}')
        if t >= 1 and t < NT: P(f's_lshl_b64 {s(sMASK,2)}, {s(sMASK,2)}, 1\ns_lshl_b64 {s(sM2,2)}, {s(sM2,2)}, 1')
    stamp('C0_qk')
    P(f'v_cvt_pk_bf16_f32 {v(vE)}, {v(vS2)}, {v(vS2+1)}'); unpack(vS2, vS2+1, vE)
    for e in range(2): P(f'v_mul_f32 {v(vS2+e)}, {SCALE}, {v(vS2+e)}')
    P(f'v_cvt_pk_bf16_f32 {v(vE)}, {v(vS2)}, {v(vS2+1)}'); unpack(vS2, vS2+1, vE)
    P(f'v_max_f32 {v(vML)}, {v(vS2)}, {v(vS2+1)}')
    wave_reduce('v_max_f32', [vML])
    P(f'v_readlane_b32 {s(sT0)}, {v(vML)}, 63')
    for e in range(2): P(f'v_subrev_f32 {v(vE+e)}, {s(sT0)}, {v(vS2+e)}')
    for e in range(2): P(f'v_mul_f32 {v(vE+e)}, {LOG2E}, {v(vE+e)}')
    for e in range(2): P(f'v_exp_f32 {v(vE+e)}, {v(vE+e)}')
    P(f'v_add_f32 {v(vML+1)}, {v(vE)}, {v(vE+1)}')
    wave_reduce('v_add_f32', [vML+1])
    setexec(1 << 63)
    P(f'ds_write_b128 {v(25)}, {v(vML,4)}')
    setexec(ALL)
    P(f's_cmp_eq_u32 {s(sW)}, 4\ns_cbranch_scc1 L_C0ML')
    P(f's_cmp_eq_u32 {s(sW)}, 5\ns_cbranch_scc0 L_MLWAIT')
    if cfg.rwait == 4 or cfg.rearly:
        P(f's_sub_u32 {s(sT0)}, {s(sKK)}, 8\ns_cmp_lt_u32 {s(sT0)}, 8\ns_cbranch_scc0 L_NORED')
        red_setup()
        if cfg.rwait == 4: x4_issue()
        P('s_branch L_MLWAIT\nL_NORED:')
    P(f's_cmp_eq_u32 {s(sR)}, 99\ns_cbranch_scc0 L_MLWAIT')
    modtile_compute(0, sO2, X4NEAR)
    P('L_MLWAIT:')
    if cfg.mlpw:
        P(f's_cmp_eq_u32 {s(sW)}, 6\ns_cbranch_scc0 L_NOGL')
        P(f's_mov_b32 {s(sR)}, 0')
        if cfg.local:
            P(f's_lshl_b32 {s(sT0)}, {s(sX)}, 3\ns_lshr_b32 {s(sT1)}, {s(sKK)}, 2\ns_add_u32 {s(sT0)}, {s(sT0)}, {s(sT1)}\ns_lshl_b32 {s(sT0)}, {s(sT0)}, 7\ns_add_u32 {s(sT0)}, {s(sT0)}, {hex(X0B)}')
            P(f's_load_dwordx4 s[8:11], {s(sWSP,2)}, {s(sT0)} glc\ns_getreg_b32 {s(sT1)}, hwreg(HW_REG_XCC_ID, 0, 3)\ns_lshl_b32 {s(sT0)}, {s(sTAG)}, 3\ns_or_b32 {s(sT1)}, {s(sT1)}, {s(sT0)}\ns_waitcnt lgkmcnt(0)')
            P(f's_xor_b32 s8, s8, {s(sT1)}')
            for k in range(1, 4): P(f's_xor_b32 {s(8+k)}, {s(8+k)}, {s(sT1)}\ns_or_b32 s8, s8, {s(8+k)}')
            P(f's_cselect_b32 {s(sR)}, 0, 1')
        P('L_NOGL:')
    if cfg.par == 'dyn':
        P(f's_cmp_eq_u32 {s(sW)}, 7\ns_cbranch_scc0 L_NOPF')
        P(f's_lshl_b32 {s(sT0)}, {s(sX)}, 7\ns_add_u32 {s(sT0)}, {s(sT0)}, {hex(XP)}\ns_lshl_b32 {s(sT1)}, {s(sTAG)}, 1\ns_mov_b32 {s(sSPIN)}, 0')
        P(f'L_PFT:\ns_load_dword s8, {s(sWSP,2)}, {s(sT0)} glc\ns_add_u32 {s(sSPIN)}, {s(sSPIN)}, 1\ns_cmp_gt_u32 {s(sSPIN)}, {cfg.spin}\ns_cbranch_scc1 L_END\ns_waitcnt lgkmcnt(0)')
        P(f's_xor_b32 s9, s8, {s(sT1)}\ns_cmp_lt_u32 s9, 2\ns_cbranch_scc1 L_PFD\ns_sleep 8\ns_branch L_PFT\nL_PFD:')
        P(f's_or_b32 s9, s9, 2\nv_mov_b32 {v(vT)}, {hex(L_PAR)}\nv_mov_b32 {v(vT+1)}, s9\nds_write_b32 {v(vT)}, {v(vT+1)}')
        P('L_NOPF:')
    P(f'v_mov_b32 {v(vT+2)}, {hex(L_ML)}')
    lds_wait('mlw', vT+2, 4, vML, [vML+2], cfg.lsleep)
    P('s_branch L_PCALC')
    P('L_C0ML:')
    P(f'v_and_b32 {v(vT+2)}, 3, {v(vL)}\nv_lshlrev_b32 {v(vT+2)}, 4, {v(vT+2)}\nv_add_u32 {v(vT+2)}, {hex(L_MS)}, {v(vT+2)}')
    P(f's_lshl_b32 {s(sO1)}, {s(sH)}, 7\ns_add_u32 {s(sO1)}, {s(sO1)}, {hex(X3)}\ns_lshl_b32 {s(sO0)}, {s(sJ)}, 4\ns_add_u32 {s(sO0)}, {s(sO0)}, {s(sO1)}')
    lds_wait('msw', vT+2, 4, 220, [222])
    P(f'v_max_f32_dpp {v(vML)}, {v(220)}, {v(220)} quad_perm:[1,0,3,2] row_mask:0xf bank_mask:0xf\nv_mov_b32 {v(vML+2)}, {s(sTAG)}\nv_mov_b32 {v(vML+3)}, {s(sTAG)}')
    P(f'v_max_f32_dpp {v(vML)}, {v(vML)}, {v(vML)} quad_perm:[2,3,0,1] row_mask:0xf bank_mask:0xf')
    P(f'v_sub_f32 {v(220)}, {v(220)}, {v(vML)}\nv_mul_f32 {v(220)}, {LOG2E}, {v(220)}\nv_exp_f32 {v(220)}, {v(220)}\nv_mov_b32 {v(vT)}, 0\nv_mul_f32 {v(vML+1)}, {v(220)}, {v(221)}')
    for mod in ('quad_perm:[1,0,3,2]', 'quad_perm:[2,3,0,1]'): P(f'v_add_f32_dpp {v(vML+1)}, {v(vML+1)}, {v(vML+1)} {mod} row_mask:0xf bank_mask:0xf')
    if cfg.mlat:
        P(f'v_readfirstlane_b32 s4, {v(vML)}\nv_readfirstlane_b32 s5, {v(vML+1)}')
        P(f's_add_u32 {s(sMASK)}, {s(sWSP)}, {s(sO1)}\ns_addc_u32 {s(sMASK+1)}, {s(sWSP+1)}, 0\ns_lshl_b32 {s(sT0)}, {s(sJ)}, 3\ns_mov_b32 {s(sSPIN)}, 0')
        P(f's_atomic_add_x2 s[4:5], {s(sMASK,2)}, {s(sT0)}')
        stamp('C0_x3pub')
        gl = [4 + 2*k for k in range(8)]
        P('s_waitcnt lgkmcnt(0)')
        P('L_MLW:')
        if cfg.sleep3: P(f's_sleep {cfg.sleep3}')
        P(f's_load_dwordx16 s[4:19], {s(sMASK,2)}, 0 glc')
        P(f's_add_u32 {s(sSPIN)}, {s(sSPIN)}, 1\ns_cmp_gt_u32 {s(sSPIN)}, {cfg.spin}\ns_cbranch_scc1 L_END')
        P('s_waitcnt lgkmcnt(0)')
        P(f's_min_u32 {s(sT0)}, s5, s7')
        for g in gl[2:]: P(f's_min_u32 {s(sT0)}, {s(sT0)}, {s(g+1)}')
        P(f's_cmp_eq_u32 {s(sT0)}, 0\ns_cbranch_scc1 L_MLW')
    else:
        publish(vML, vT, sO0, 1)
        stamp('C0_x3pub')
        P(f's_add_u32 {s(sMASK)}, {s(sWSP)}, {s(sO1)}\ns_addc_u32 {s(sMASK+1)}, {s(sWSP+1)}, 0\ns_mov_b32 {s(sSPIN)}, 0')
        gl = [4 + 4*k for k in range(8)]
        P('L_MLW:')
        if cfg.sleep3: P(f's_sleep {cfg.sleep3}')
        P(f's_load_dwordx16 s[4:19], {s(sMASK,2)}, 0 glc\ns_load_dwordx16 s[20:35], {s(sMASK,2)}, 64 glc')
        P(f's_add_u32 {s(sSPIN)}, {s(sSPIN)}, 1\ns_cmp_gt_u32 {s(sSPIN)}, {cfg.spin}\ns_cbranch_scc1 L_END')
        P('s_waitcnt lgkmcnt(0)')
        P(f's_xor_b32 {s(sT0)}, {s(gl[0]+2)}, {s(sTAG)}')
        for g in gl[1:]: P(f's_xor_b32 {s(sT1)}, {s(g+2)}, {s(sTAG)}\ns_or_b32 {s(sT0)}, {s(sT0)}, {s(sT1)}')
        P('s_cbranch_scc1 L_MLW')
    stamp('C0_ml')
    vG8 = 220
    P(f'v_mov_b32 {v(vML)}, {s(gl[0])}')
    for g in gl[1:]: P(f'v_max_f32 {v(vML)}, {s(g)}, {v(vML)}')
    for k, g in enumerate(gl): P(f'v_sub_f32 {v(vG8+k)}, {s(g)}, {v(vML)}')
    for k in range(8): P(f'v_mul_f32 {v(vG8+k)}, {LOG2E}, {v(vG8+k)}')
    for k in range(8): P(f'v_exp_f32 {v(vG8+k)}, {v(vG8+k)}')
    P(f'v_mul_f32 {v(vE)}, {s(gl[0]+1)}, {v(vG8)}')
    for k, g in enumerate(gl[1:]): P(f'v_fmac_f32 {v(vE)}, {s(g+1)}, {v(vG8+k+1)}')
    P(f'v_rcp_f32 {v(vE+1)}, {v(vE)}\nv_mov_b32 {v(vT+2)}, {hex(L_ML)}\nv_mov_b32 {v(vML+2)}, 1')
    P(f'v_fma_f32 {v(vE)}, -{v(vE)}, {v(vE+1)}, 1.0\nv_fma_f32 {v(vML+1)}, {v(vE)}, {v(vE+1)}, {v(vE+1)}')
    setexec(1)
    P(f'ds_write_b128 {v(vT+2)}, {v(vML,4)}')
    setexec(ALL)
    P('L_PCALC:')
    for e in range(2): P(f'v_sub_f32 {v(vE+e)}, {v(vS2+e)}, {v(vML)}')
    for e in range(2): P(f'v_mul_f32 {v(vE+e)}, {LOG2E}, {v(vE+e)}')
    for e in range(2): P(f'v_exp_f32 {v(vE+e)}, {v(vE+e)}')
    for e in range(2): P(f'v_mul_f32 {v(vE+e)}, {v(vE+e)}, {v(vML+1)}')
    for e in range(2): P(f'v_cvt_pk_bf16_f32 {v(vE+e)}, {v(vE+e)}, {v(vE+e)}')
    P(f'ds_write_b64 {v(27)}, {v(vE,2)}')
    srd(SRD_WS, sWSP, WS_BYTES)
    P(f's_cmp_eq_u32 {s(sW)}, 4\ns_cbranch_scc1 L_C0B1')
    P('s_waitcnt lgkmcnt(0)')
    P('s_barrier')
    P(f's_cmp_eq_u32 {s(sW)}, 5\ns_cbranch_scc1 L_C1B1')
    P('s_branch L_C23B1')
    P('L_C0B1:')
    srd(SRD_A, pWO, 4 << 20)
    P(f'v_bfe_u32 {v(vT)}, {v(vL)}, 3, 1\nv_lshlrev_b32 {v(vT)}, 16, {v(vT)}\nv_bfe_u32 {v(vT+1)}, {v(vL)}, 4, 1\nv_lshl_add_u32 {v(vT)}, {v(vT+1)}, 12, {v(vT)}\nv_lshrrev_b32 {v(vT+1)}, 5, {v(vL)}\nv_lshl_add_u32 {v(vT)}, {v(vT+1)}, 11, {v(vT)}')
    P(f'v_and_b32 {v(vT+1)}, 7, {v(vL)}\nv_lshl_add_u32 {v(vWA)}, {v(vT+1)}, 4, {v(vT)}')
    P(f's_lshl_b32 {s(sO0)}, {s(sH)}, 17\ns_lshl_b32 {s(sT0)}, {s(sJ)}, 7\ns_add_u32 {s(sO0)}, {s(sO0)}, {s(sT0)}')
    P('s_waitcnt lgkmcnt(0)')
    stamp('C0_p')
    P('s_barrier')
    vWO = 64
    par_read(15)
    def wo_issue(sreg):
        for i in range(16):
            P(f'buffer_load_dwordx4 {v(vWO+4*i,4)}, {v(vWA)}, {S(SRD_A)}, {s(sreg)} offen offset:{1024*(i & 1)} {cfg.wpol}')
            if (i & 1) == 1 and i < 15: P(f's_add_u32 {s(sreg)}, {s(sreg)}, 8192')
    if not cfg.wob2: wo_issue(sO0)
    else: P(f's_mov_b32 {s(sG)}, {s(sO0)}')
    P(f'v_lshrrev_b32 {v(vT+2)}, 1, {v(vL16)}\nv_add_u32 {v(vT+2)}, {hex(L_OP)}, {v(vT+2)}')
    par_use(15)
    P(f's_lshl_b32 {s(sO1)}, {s(sH)}, 14\ns_add_u32 {s(sO1)}, {s(sO1)}, {hex(XA)}')
    if cfg.nearloc: P(f's_add_u32 {s(sO1)}, {s(sO1)}, {s(sNEAR)}')
    P(f's_lshl_b32 {s(sO0)}, {s(sJ)}, 10\ns_add_u32 {s(sO0)}, {s(sO0)}, {s(sO1)}\ns_add_u32 {s(sO2)}, {s(sO1)}, 4096')
    P(f's_lshl_b32 {s(sO3)}, {s(sJ)}, 5\ns_add_u32 {s(sO3)}, {s(sO3)}, {s(sH)}\ns_lshl_b32 {s(sO3)}, {s(sO3)}, 9\ns_add_u32 {s(sO3)}, {s(sO3)}, {hex(XB)}')
    P(f'v_mov_b32 {v(22)}, {s(sTAG)}')
    vAP, vDNA, vCA, vEA, vXBA = 8, 10, 11, 12, 13
    P(f'v_mov_b32 {v(14)}, {hex(L_FLAG + 160)}')
    if cfg.gwait:
        P(f'v_and_b32 {v(16)}, 31, {v(vL)}\nv_lshlrev_b32 {v(16)}, 2, {v(16)}\ns_lshl_b32 {s(sG)}, {s(sX)}, 7\ns_add_u32 {s(sG)}, {s(sG)}, {hex(XG)}')
    if cfg.par is None: P(f'v_bfe_u32 {v(vT)}, {v(vL)}, 3, 1\nv_lshl_add_u32 {v(vXBA)}, {v(vT)}, 17, {v(vPUB)}')
    else:
        P(f'v_bfe_u32 {v(vT)}, {v(vL)}, 3, 1\nv_xor_b32 {v(vT)}, {s(sPAR)}, {v(vT)}\nv_lshl_add_u32 {v(vXBA)}, {v(vT)}, 13, {v(vPUB)}')
        P(f's_lshl_b32 {s(sO3)}, {s(sJ)}, 1\ns_lshr_b32 {s(sT0)}, {s(sH)}, 4\ns_add_u32 {s(sO3)}, {s(sO3)}, {s(sT0)}\ns_lshl_b32 {s(sO3)}, {s(sO3)}, 14\ns_and_b32 {s(sT0)}, {s(sH)}, 15\ns_lshl_b32 {s(sT0)}, {s(sT0)}, 9\ns_add_u32 {s(sO3)}, {s(sO3)}, {s(sT0)}\ns_add_u32 {s(sO3)}, {s(sO3)}, {hex(XB2)}')
    sQ, sW2, sDN, sEP, sEG, sDP, sC0 = 4, 6, 8, 9, 10, 11, 12
    vDPA = 17
    def mlp_setup():
        P(f's_sub_u32 {s(sT0)}, {s(sKK)}, 8\ns_cmp_lt_u32 {s(sKK)}, 8\ns_cselect_b32 {s(sT1)}, {s(sKK)}, {s(sT0)}\ns_and_b32 {s(sQ)}, {s(sT1)}, 3\ns_lshr_b32 {s(sT1)}, {s(sT1)}, 2')
        P(f's_mul_i32 {s(sIM)}, {s(sX)}, 6\ns_add_u32 {s(sIM)}, {s(sIM)}, {s(sT1)}\ns_cmp_lt_u32 {s(sT0)}, 8\ns_cselect_b32 {s(sIM)}, 255, {s(sIM)}')
        srd(SRD_B, pW2, 1376*1024)
        P(f'v_lshrrev_b32 {v(vT)}, 3, {v(vL)}\nv_mul_u32_u24 {v(vT)}, {16*2752}, {v(vT)}\nv_and_b32 {v(vT+1)}, 3, {v(vL)}\nv_lshl_add_u32 {v(vT)}, {v(vT+1)}, 4, {v(vT)}')
        P(f's_mul_i32 {s(sT0)}, {s(sQ)}, {128*2752}\ns_min_u32 {s(sT1)}, {s(sIM)}, {NM-1}\ns_lshl_b32 {s(sT1)}, {s(sT1)}, 6\ns_add_u32 {s(sT0)}, {s(sT0)}, {s(sT1)}\nv_add_u32 {v(vT)}, {s(sT0)}, {v(vT)}')
        P(f's_mov_b32 {s(sMASK)}, 0xf0f0f0f0\ns_mov_b32 {s(sMASK+1)}, 0xf0f0f0f0\ns_mov_b32 {s(sW2)}, 2752*2\ns_mov_b32 {s(sW2+1)}, 0')
        P(f'v_mov_b32 {v(vAP)}, {s(pW1)}\nv_mov_b32 {v(vAP+1)}, {s(pW1+1)}\nv_mov_b32 {v(vT+1)}, {s(pW3)}\nv_mov_b32 {v(vCA)}, {s(pW3+1)}')
        P(f'v_cndmask_b32 {v(vAP)}, {v(vAP)}, {v(vT+1)}, {s(sMASK,2)}\nv_cndmask_b32 {v(vAP+1)}, {v(vAP+1)}, {v(vCA)}, {s(sMASK,2)}')
        P(f'v_add_co_u32 {v(vAP)}, vcc, {v(vAP)}, {v(vT)}\nv_addc_co_u32 {v(vAP+1)}, vcc, 0, {v(vAP+1)}, vcc')
        P(f'v_bfe_u32 {v(vT)}, {v(vL)}, 4, 1\nv_lshlrev_b32 {v(vDNA)}, 12, {v(vT)}\nv_lshrrev_b32 {v(vT)}, 5, {v(vL)}\nv_lshl_add_u32 {v(vDNA)}, {v(vT)}, 11, {v(vDNA)}\nv_and_b32 {v(vT)}, 15, {v(vL)}\nv_lshl_add_u32 {v(vDNA)}, {v(vT)}, 4, {v(vDNA)}')
        P(f's_lshl_b32 {s(sDN)}, {s(sIM)}, 15\ns_lshl_b32 {s(sT0)}, {s(sQ)}, 8\ns_add_u32 {s(sDN)}, {s(sDN)}, {s(sT0)}')
        P(f's_lshr_b32 {s(sEG)}, {s(sIM)}, 2\ns_lshl_b32 {s(sEG)}, {s(sEG)}, 14\ns_and_b32 {s(sT0)}, {s(sIM)}, 3\ns_lshl_b32 {s(sT0)}, {s(sT0)}, 11\ns_add_u32 {s(sEG)}, {s(sEG)}, {s(sT0)}\ns_add_u32 {s(sEG)}, {s(sEG)}, {hex(XE)}')
        if cfg.nearloc: P(f's_add_u32 {s(sEG)}, {s(sEG)}, {s(sNEAR)}')
        P(f's_lshl_b32 {s(sT0)}, {s(sQ)}, 9\ns_add_u32 {s(sEP)}, {s(sEG)}, {s(sT0)}')
        if cfg.par is None: P(f's_lshl_b32 {s(sDP)}, {s(sIM)}, 12\ns_lshl_b32 {s(sT0)}, {s(sQ)}, 10\ns_add_u32 {s(sDP)}, {s(sDP)}, {s(sT0)}\ns_add_u32 {s(sDP)}, {s(sDP)}, {hex(XD)}')
        else:
            P(f's_lshr_b32 {s(sDP)}, {s(sIM)}, 2\ns_lshl_b32 {s(sDP)}, {s(sDP)}, 14\ns_and_b32 {s(sT0)}, {s(sIM)}, 3\ns_lshl_b32 {s(sT0)}, {s(sT0)}, 11\ns_add_u32 {s(sDP)}, {s(sDP)}, {s(sT0)}\ns_lshl_b32 {s(sT0)}, {s(sQ)}, 9\ns_add_u32 {s(sDP)}, {s(sDP)}, {s(sT0)}\ns_add_u32 {s(sDP)}, {s(sDP)}, {hex(XD)}')
            P(f'v_and_b32 {v(vDPA)}, 31, {v(vL)}\nv_lshlrev_b32 {v(vDPA)}, 4, {v(vDPA)}\nv_lshrrev_b32 {v(vT)}, 5, {v(vL)}\nv_xor_b32 {v(vT)}, {s(sPAR)}, {v(vT)}\nv_lshl_add_u32 {v(vDPA)}, {v(vT)}, 13, {v(vDPA)}')
        P(f's_lshr_b32 {s(sT1)}, {s(sX)}, 1\ns_lshl_b32 {s(sT1)}, {s(sT1)}, 14\ns_and_b32 {s(sT0)}, {s(sX)}, 1\ns_lshl_b32 {s(sT0)}, {s(sT0)}, 12\ns_add_u32 {s(sT1)}, {s(sT1)}, {s(sT0)}\ns_add_u32 {s(sT1)}, {s(sT1)}, {hex(XC)}')
        if cfg.nearloc: P(f's_add_u32 {s(sT1)}, {s(sT1)}, {s(sNEAR)}')
        for k in range(4): P(f's_add_u32 {s(sT0)}, {s(sQ)}, {k}\ns_and_b32 {s(sT0)}, {s(sT0)}, 3\ns_lshl_b32 {s(sT0)}, {s(sT0)}, 10\ns_add_u32 {s(sC0+k)}, {s(sT0)}, {s(sT1)}')
        P(f'v_lshrrev_b32 {v(vT)}, 5, {v(vL)}\nv_lshlrev_b32 {v(vCA)}, 9, {v(vT)}\nv_bfe_u32 {v(vT)}, {v(vL)}, 1, 1\nv_lshl_add_u32 {v(vCA)}, {v(vT)}, 7, {v(vCA)}\nv_and_b32 {v(vT)}, 1, {v(vL)}\nv_lshl_add_u32 {v(vCA)}, {v(vT)}, 8, {v(vCA)}')
        P(f'v_bfe_u32 {v(vT)}, {v(vL)}, 2, 3\nv_lshl_add_u32 {v(vCA)}, {v(vT)}, 4, {v(vCA)}')
        P(f'v_bfe_u32 {v(vT)}, {v(vL)}, 3, 1\nv_lshlrev_b32 {v(vT)}, 9, {v(vT)}\nv_add_u32 {v(vEA)}, {v(vPUB)}, {v(vT)}')
    if not cfg.mlpw: mlp_setup()
    else: P(f'v_mov_b32 {v(16)}, {hex(L_FLAG + 168)}')
    if cfg.pgal: P('s_branch L_TAIL0\n.p2align 12\nL_TAIL0:')
    P('s_barrier')
    stamp('C0_b2')
    for w in range(4): P(f'ds_read_b64 {v(24+2*w,2)}, {v(vT+2)} offset:{512*w}')
    P('s_waitcnt lgkmcnt(2)')
    add2(24, 24, 26)
    P('s_waitcnt lgkmcnt(0)')
    add2(28, 28, 30)
    add2(20, 24, 28)
    publish_loc(20, vL16, sO0)
    stamp('C0_xapub')
    if cfg.wob2 == 1: wo_issue(sG)
    if cfg.wofirst: P(f's_waitcnt vmcnt({cfg.wofirst - 1})')
    vOd = 40
    def issue(b):
        for k in range(0, 8, 2 if cfg.fakehalf & 2 else 1):
            P(f'buffer_load_dwordx4 {v(b+4*k,4)}, {v(vL16)}, {S(SRD_WS)}, {s(sO1 if k < 4 else sO2)} offen offset:{1024*(k & 3)} sc1')
    def done(b):
        for a, b2 in ((0, 1), (2, 3), (4, 5), (6, 7), (0, 2), (4, 6), (0, 4)): add2(b+4*a, b+4*a, b+4*b2)
        P(f'v_cvt_pk_bf16_f32 {v(vOd)}, {v(b)}, {v(b)}\nv_cvt_pk_bf16_f32 {v(vOd+1)}, {v(b+1)}, {v(b+1)}')
    poll('xa', issue, 8, 128, 32, [4*k+2 for k in range(0, 8, 2 if cfg.fakehalf & 2 else 1)], done)
    if cfg.mlpw: P(f'ds_write_b32 {v(16)}, {v(16)}')
    stamp('C0_xa')
    vGW, vGA2 = 15, 16
    def g_issue(): P(f'buffer_load_dword {v(vGW)}, {v(vGA2)}, {S(SRD_WS)}, {s(sG)} offen sc1')
    if cfg.gwait: g_issue()
    lohi(vOd)
    chain(vD0, 16, [vWO+4*i for i in range(16)], lohi_srcs(vOd), vAA)
    finish2(vD0)
    if cfg.par is not None:
        for e in range(2): P(f'v_mov_b32_dpp {v(vD0+e)}, {v(vD0+e)} row_ror:8 row_mask:0xf bank_mask:0xc')
        publish(vD0, vXBA, sO3)
    elif cfg.xbrep:
        for e in range(2): P(f'v_mov_b32_dpp {v(vD0+e)}, {v(vD0+e)} row_ror:8 row_mask:0xf bank_mask:0xc')
        for i in range(4):
            P(f'buffer_store_dwordx4 {v(vD0,4)}, {v(vXBA)}, {S(SRD_WS)}, {s(sO3)} offen sc1')
            if i < 3: P(f's_add_u32 {s(sO3)}, {s(sO3)}, 0x40000')
    else: publish(vD0, vPUB, sO3, M2SET)
    if cfg.rwait and cfg.rwait < 4: P(f'ds_write_b32 {v(14)}, {v(14)}')
    stamp('C0_xbpub')
    def mlp_body():
        vUP, vDN, vCG, vEG = 128, 192, 64, 80
        if cfg.gwait:
            P(f's_mov_b32 {s(sSPIN)}, 0\ns_waitcnt vmcnt({4 if cfg.xbrep else 1})\ns_branch L_GCHK\nL_GTOP:')
            g_issue()
            P(f's_add_u32 {s(sSPIN)}, {s(sSPIN)}, 1\ns_cmp_gt_u32 {s(sSPIN)}, {cfg.spin}\ns_cbranch_scc1 L_END\ns_waitcnt vmcnt(0)\nL_GCHK:')
            P(f'v_cmp_eq_u32 vcc, {s(sTAG)}, {v(vGW)}\ns_bcnt1_i32_b64 {s(sT0)}, vcc\ns_cmp_lt_u32 {s(sT0)}, {2*cfg.gthr}\ns_cbranch_scc1 L_GTOP')
        for i in range(16):
            if not (cfg.fakehalf & 4 and i % 4 == 3): P(f'global_load_dwordx4 {v(vUP+4*i,4)}, {v(vAP,2)}, off offset:{2752*(i & 1)} {cfg.uppol}')
            if i & 1 and i < 15: P(f'v_lshl_add_u64 {v(vAP,2)}, {v(vAP,2)}, 0, {s(sW2,2)}')
        def dn_issue():
            for i in range(8):
                P(f'buffer_load_dwordx4 {v(vDN+4*i,4)}, {v(vDNA)}, {S(SRD_B)}, {s(sDN)} offen offset:{1024*(i & 1)} {cfg.wpol}')
                if i & 1 and i < 7: P(f's_add_u32 {s(sDN)}, {s(sDN)}, 8192')
        if cfg.mlpw:
            P(f'v_mov_b32 {v(vT+2)}, {hex(L_FLAG + 160)}')
            lds_wait('fb', vT+2, 1, 28, [28])
        if not cfg.dnlate: dn_issue()
        if cfg.wfirst: P('s_waitcnt vmcnt(0)')
        if cfg.diag and 'M_w' in cfg.diag:
            P('s_waitcnt vmcnt(0)'); stamp('M_w')
        vx, vcb, vsb = 88, 24, 26
        def issue(b):
            for k in range(4): P(f'buffer_load_dwordx4 {v(b+4*k,4)}, {v(vCA)}, {S(SRD_WS)}, {s(sC0+k)} offen sc1')
        def done(b):
            for k in range(4): unpack(vx+2*k, vx+2*k+1, b+4*k)
            if not cfg.lnopt: unpack(vcb, vcb+1, b+1); unpack(vsb, vsb+1, b+2)
        if cfg.dnlate == 3:
            issue(64); dn_issue()
            P('s_waitcnt vmcnt(8)')
            tr = [64+4*k+3 for k in range(4)]
            P(f'v_xor_b32 {v(vT)}, {s(sTAG)}, {v(tr[0])}\nv_xor_b32 {v(vT+1)}, {s(sTAG)}, {v(tr[1])}')
            for k, r in enumerate(tr[2:]): P(f'v_bitop3_b32 {v(vT + k)}, {v(r)}, {s(sTAG)}, {v(vT + k)} bitop3:{TAGX}')
            P(f'v_or_b32 {v(vT)}, {v(vT)}, {v(vT+1)}\nv_cmp_ne_u32 vcc, 0, {v(vT)}\ns_cbranch_vccz L_XCOK')
            poll('xc', issue, 4, 64, 16, tr and [4*k+3 for k in range(4)], lambda b: None)
            P('L_XCOK:')
            done(64)
        else:
            poll('xc', issue, 4, 64 if cfg.pipe.get('xc', 1) == 1 else 104, 16 if cfg.pipe.get('xc', 1) != 2 else -40, [4*k+3 for k in range(4)], done)
        stamp('M_xc')
        if cfg.dnlate == 1: dn_issue()
        P(f'v_readfirstlane_b32 {s(sT0)}, {v(vx)}')
        for k in range(8): P(f'v_subrev_f32 {v(96+k)}, {s(sT0)}, {v(vx+k)}')
        P(f'v_pk_add_f32 {v(20,2)}, {v(96,2)}, {v(98,2)}\nv_pk_add_f32 {v(22,2)}, {v(100,2)}, {v(102,2)}\nv_pk_mul_f32 {v(28,2)}, {v(96,2)}, {v(96,2)}\nv_pk_mul_f32 {v(30,2)}, {v(100,2)}, {v(100,2)}')
        P(f'v_pk_add_f32 {v(20,2)}, {v(20,2)}, {v(22,2)}\nv_pk_fma_f32 {v(28,2)}, {v(98,2)}, {v(98,2)}, {v(28,2)}\nv_pk_fma_f32 {v(30,2)}, {v(102,2)}, {v(102,2)}, {v(30,2)}')
        P(f'v_add_f32 {v(22)}, {v(20)}, {v(21)}\nv_pk_add_f32 {v(28,2)}, {v(28,2)}, {v(30,2)}\nv_add_f32 {v(23)}, {v(28)}, {v(29)}')
        fill = [f'v_lshlrev_b32 {v(vcb)}, 16, {v(65)}', f'v_and_b32 {v(vcb+1)}, 0xffff0000, {v(65)}', f'v_lshlrev_b32 {v(vsb)}, 16, {v(66)}', f'v_and_b32 {v(vsb+1)}, 0xffff0000, {v(66)}']
        for q_, mod in enumerate(('quad_perm:[1,0,3,2]', 'quad_perm:[2,3,0,1]', 'row_ror:4', 'row_ror:8')):
            P(f'v_add_f32_dpp {v(22)}, {v(22)}, {v(22)} {mod} row_mask:0xf bank_mask:0xf')
            if cfg.lnopt: assert cfg.pipe.get('xc', 1) == 1; P(fill[q_])
            P(f'v_add_f32_dpp {v(23)}, {v(23)}, {v(23)} {mod} row_mask:0xf bank_mask:0xf')
        P(f'v_permlane16_swap_b32 {v(22)}, {v(23)}\nv_add_f32 {v(22)}, {v(22)}, {v(23)}\nv_mov_b32 {v(23)}, {v(22)}')
        P(f'v_permlane32_swap_b32 {v(22)}, {v(23)}\nv_add_f32 {v(22)}, {v(22)}, {v(23)}\nv_mul_f32 {v(22)}, {R512}, {v(22)}')
        if cfg.lnopt: P(f'v_mov_b32 {v(23)}, {v(22)}\nv_permlane16_swap_b32 {v(22)}, {v(23)}')
        else:
            P(f'v_readlane_b32 {s(sT1)}, {v(22)}, 0\nv_readlane_b32 {s(sT2)}, {v(22)}, 16')
            P(f'v_mov_b32 {v(22)}, {s(sT1)}\nv_mov_b32 {v(23)}, {s(sT2)}')
        P(f'v_fma_f32 {v(23)}, -{v(22)}, {v(22)}, {v(23)}\nv_add_f32 {v(22)}, {s(sT0)}, {v(22)}\nv_max_f32 {v(23)}, 0, {v(23)}')
        P(f'v_cvt_pk_bf16_f32 {v(22)}, {v(22)}, {v(23)}')
        P(f'v_and_b32 {v(23)}, 0xffff0000, {v(22)}\nv_lshlrev_b32 {v(22)}, 16, {v(22)}\nv_add_f32 {v(23)}, {EPS}, {v(23)}')
        P(f'v_sub_f32 {v(20)}, {v(vx)}, {v(22)}\nv_sub_f32 {v(21)}, {v(vx+1)}, {v(22)}')
        P(f'v_cvt_pk_bf16_f32 {v(23)}, {v(23)}, {v(23)}\nv_cvt_pk_bf16_f32 {v(20)}, {v(20)}, {v(21)}\nv_and_b32 {v(23)}, 0xffff0000, {v(23)}\nv_sqrt_f32 {v(23)}, {v(23)}')
        unpack(vx, vx+1, 20)
        P(f'v_cvt_pk_bf16_f32 {v(23)}, {v(23)}, {v(23)}\nv_and_b32 {v(23)}, 0xffff0000, {v(23)}\nv_rcp_f32 {v(22)}, {v(23)}')
        P(f'v_mul_f32 {v(20)}, {v(vx)}, {v(22)}\nv_mul_f32 {v(21)}, {v(vx+1)}, {v(22)}')
        P(f'v_fma_f32 {v(vx)}, -{v(20)}, {v(23)}, {v(vx)}\nv_fma_f32 {v(vx+1)}, -{v(21)}, {v(23)}, {v(vx+1)}')
        P(f'v_fma_f32 {v(20)}, {v(vx)}, {v(22)}, {v(20)}\nv_fma_f32 {v(21)}, {v(vx+1)}, {v(22)}, {v(21)}')
        P(f'v_cvt_pk_bf16_f32 {v(20)}, {v(20)}, {v(21)}')
        unpack(vx, vx+1, 20)
        P(f'v_mul_f32 {v(vx)}, {v(vx)}, {v(vcb)}\nv_mul_f32 {v(vx+1)}, {v(vx+1)}, {v(vcb+1)}\nv_cvt_pk_bf16_f32 {v(20)}, {v(vx)}, {v(vx+1)}')
        unpack(vx, vx+1, 20)
        P(f'v_add_f32 {v(vx)}, {v(vx)}, {v(vsb)}\nv_add_f32 {v(vx+1)}, {v(vx+1)}, {v(vsb+1)}')
        P(f'v_cvt_pk_bf16_f32 {v(vOd)}, {v(vx)}, {v(vx)}\nv_cvt_pk_bf16_f32 {v(vOd+1)}, {v(vx+1)}, {v(vx+1)}')
        lohi(vOd)
        stamp('M_h2')
        if cfg.dnlate == 2: dn_issue()
        chain(vD0, 16, [vUP+4*i for i in range(16)], lohi_srcs(vOd), vAA)
        finish2(vD0)
        publish_loc(vD0, vPUB, sEP, M2SET, sR)
        stamp('M_up')
        def issue(b):
            for k in range(2): P(f'buffer_load_dwordx4 {v(b+4*k,4)}, {v(vEA)}, {S(SRD_WS)}, {s(sEG)} offen offset:{1024*k} sc1')
        def done(b):
            add2(20, b, b+4)
        poll('xe', issue, 2, 128, 8, [2, 6], done)
        stamp('M_xe')
        for e in range(2): P(f'v_add_f32_dpp {v(20+e)}, {v(20+e)}, {v(20+e)} row_ror:8 row_mask:0xf bank_mask:0xf')
        P(f'v_cvt_pk_bf16_f32 {v(22)}, {v(20)}, {v(21)}')
        unpack(20, 21, 22)
        P(f'v_mov_b32_dpp {v(24)}, {v(22)} row_shl:4 row_mask:0xf bank_mask:0xf')
        silu_multi([20, 21], [22, 23])
        unpack(26, 27, 24)
        P(f'v_cvt_pk_bf16_f32 {v(22)}, {v(20)}, {v(21)}')
        unpack(20, 21, 22)
        P(f'v_mul_f32 {v(20)}, {v(20)}, {v(26)}\nv_mul_f32 {v(21)}, {v(21)}, {v(27)}')
        for e in range(2): P(f'v_cvt_pk_bf16_f32 {v(20+e)}, {v(20+e)}, {v(20+e)}')
        stamp('M_act')
        chain(vD0, 8, [vDN+4*i for i in range(8)], [(20 + (i & 1), f'row_newbcast:{i >> 1}') for i in range(8)], vAA)
        finish1(vD0)
        publish(vD0, vL16 if cfg.par is None else vDPA, sDP)
        stamp('M_end')
        P('s_branch L_END')
    if cfg.mlpw:
        assert cfg.rwait == 1
        P('s_branch L_END')
    else:
        if cfg.rwait == 4:
            P(f's_cmp_lt_u32 {s(sIM)}, {NM}\ns_cbranch_scc1 L_MLP')
            if cfg.ackw: P('s_waitcnt vmcnt(0)')
            P(f'ds_write_b32 {v(14)}, {v(14)}')
            P('s_branch L_END\nL_MLP:')
        else: P(f's_cmp_lt_u32 {s(sIM)}, {NM}\ns_cbranch_scc0 L_END')
        mlp_body()

    P('L_C123:')
    common_setup()
    P(f's_cmp_eq_u32 {s(sW)}, 5\ns_cbranch_scc1 L_C1')
    if not (cfg.cpf0 and cfg.split0): code_prefetch(6, True)
    P('L_C3:')
    if cfg.par == 'dyn':
        P(f's_cmp_eq_u32 {s(sW)}, 7\ns_cbranch_scc0 L_NOPM\ns_cmp_eq_u32 {s(sB)}, 0\ns_cbranch_scc0 L_NOPM')
        P(f's_waitcnt lgkmcnt(0)\ns_mov_b32 s8, -1\ns_mov_b32 s9, -1')
        for i in range(2*cfg.nsamp):
            P(f's_mov_b32 s15, {hex(XPR + 8192*(i & 1) + 128*(i >> 1))}\ns_memtime s[10:11]\ns_waitcnt lgkmcnt(0)\ns_load_dword s14, {s(sWSP,2)}, s15 glc\ns_waitcnt lgkmcnt(0)\ns_memtime s[12:13]\ns_waitcnt lgkmcnt(0)')
            P(f's_sub_u32 s12, s12, s10\ns_min_u32 {s(8 + (i & 1))}, {s(8 + (i & 1))}, s12')
        P(f's_cmp_lt_u32 s9, s8\ns_cselect_b32 s8, 1, 0\ns_getreg_b32 s9, hwreg(HW_REG_XCC_ID, 2, 1)\ns_xor_b32 s8, s8, s9')
        P(f's_add_u32 s9, {s(sTAG)}, 1\ns_lshl_b32 s9, s9, 1\ns_or_b32 s8, s8, s9\nv_mov_b32 {v(vT+1)}, s8\nv_lshlrev_b32 {v(vT)}, 7, {v(vL)}\ns_mov_b32 s8, {hex(XP)}')
        setexec(0xff)
        P(f'buffer_store_dword {v(vT+1)}, {v(vT)}, {S(SRD_WS)}, s8 offen sc1')
        setexec(ALL)
        P('L_NOPM:')
    if cfg.tlbw:
        P(f's_cmp_eq_u32 {s(sW)}, 7\ns_cbranch_scc0 L_NOTLB')
        P(f'v_mov_b32 {v(vT)}, 0')
        setexec(1)
        for k, (ptr, nb) in enumerate(((pWO, 4 << 20), (pW1, 512*2752), (pW3, 512*2752), (pW2, 1376*1024), (pOUT, 1024))):
            srd(SRD_A, ptr, nb)
            P(f'buffer_load_dword {v(241+k)}, {v(vT)}, {S(SRD_A)}, 0 offen')
            if nb > (2 << 20):
                P(f's_mov_b32 {s(sT0)}, {hex(nb - 128)}\nbuffer_load_dword {v(247)}, {v(vT)}, {S(SRD_A)}, {s(sT0)} offen')
        for k, off in enumerate((XA, XE, XB, XB + 0xf0000)):
            P(f's_mov_b32 {s(sT0)}, {hex(off)}\nbuffer_load_dword {v(248+k)}, {v(vT)}, {S(SRD_WS)}, {s(sT0)} offen sc1')
        setexec(ALL)
        P('L_NOTLB:')
    P('s_waitcnt lgkmcnt(0)')
    P(f's_add_u32 {s(sTAG)}, {s(sTAG)}, 1')
    P('s_branch L_QKP')
    P('L_C23B1:')
    if cfg.mlpw:
        P(f's_cmp_eq_u32 {s(sW)}, 6\ns_cbranch_scc0 L_C3B2')
        par_read(15); par_use(15)
        mlp_setup()
        P('s_barrier')
        P(f's_cmp_lt_u32 {s(sIM)}, {NM}\ns_cbranch_scc0 L_END')
        P(f'v_mov_b32 {v(vT+2)}, {hex(L_FLAG + 168)}')
        lds_wait('fa', vT+2, 1, 28, [28])
        mlp_body()
        P('L_C3B2:')
    if cfg.gwait:
        P(f'v_lshlrev_b32 {v(vT)}, 7, {v(vL)}\nv_mov_b32 {v(vT+1)}, {s(sTAG)}\ns_lshl_b32 {s(sT0)}, {s(sH)}, 2\ns_add_u32 {s(sT0)}, {s(sT0)}, {hex(XG)}')
    P('s_barrier')
    if cfg.gwait:
        P(f's_cmp_eq_u32 {s(sW)}, 6\ns_cbranch_scc0 L_END\ns_cmp_eq_u32 {s(sJ)}, 0\ns_cbranch_scc0 L_END')
        setexec(0xff)
        P(f'buffer_store_dword {v(vT+1)}, {v(vT)}, {S(SRD_WS)}, {s(sT0)} offen sc1')
    P('s_branch L_END')

    P('L_C1:')
    P('s_waitcnt lgkmcnt(0)')
    P(f's_add_u32 {s(sTAG)}, {s(sTAG)}, 1')
    if cfg.tearly == 3: P(f's_mov_b32 {s(sR)}, 0\ns_bitcmp1_b32 {s(sX)}, 0\ns_cbranch_scc1 L_QKP')
    elif cfg.tearly: P(f's_mov_b32 {s(sR)}, 0\ns_cmp_ge_u32 {s(sX)}, 4\ns_cbranch_scc1 L_QKP')
    else: P(f's_mov_b32 {s(sR)}, 0\ns_sub_u32 {s(sT0)}, {s(sKK)}, 8\ns_cmp_lt_u32 {s(sT0)}, 16\ns_cbranch_scc1 L_QKP')
    if not cfg.t2early:
        P(f'v_mov_b32 {v(vT+2)}, {hex(L_FLAG + 8)}')
        lds_wait('k1', vT+2, 1, 28, [28], 8)
    elif cfg.t2early > 1: P(f's_sleep {cfg.t2early}')
    if cfg.tearly == 3:
        P(f's_lshl_b32 {s(sT0)}, {s(sKK)}, 2\ns_lshr_b32 {s(sT1)}, {s(sX)}, 1\ns_add_u32 {s(sT0)}, {s(sT0)}, {s(sT1)}\ns_and_b32 {s(sT1)}, {s(sT0)}, 31\ns_lshr_b32 {s(sT0)}, {s(sT0)}, 5')
    elif cfg.tearly:
        P(f's_lshl_b32 {s(sT0)}, {s(sKK)}, 2\ns_add_u32 {s(sT0)}, {s(sT0)}, {s(sX)}\ns_and_b32 {s(sT1)}, {s(sT0)}, 31\ns_lshr_b32 {s(sT0)}, {s(sT0)}, 5')
    else:
        P(f's_and_b32 {s(sT0)}, {s(sKK)}, 7\ns_lshr_b32 {s(sT1)}, {s(sKK)}, 4\ns_lshl_b32 {s(sT1)}, {s(sT1)}, 3\ns_add_u32 {s(sT0)}, {s(sT0)}, {s(sT1)}')
        P(f's_lshl_b32 {s(sT0)}, {s(sT0)}, 3\ns_add_u32 {s(sT0)}, {s(sT0)}, {s(sX)}\ns_and_b32 {s(sT1)}, {s(sT0)}, 31\ns_lshr_b32 {s(sT0)}, {s(sT0)}, 5')
    if X4NEAR:
        P(f's_and_b32 {s(sO2)}, {s(sT1)}, 3\ns_lshl_b32 {s(sO2)}, {s(sO2)}, 2\ns_add_u32 {s(sO2)}, {s(sO2)}, {s(sT0)}\ns_lshl_b32 {s(sO2)}, {s(sO2)}, 9\ns_lshr_b32 {s(sT2)}, {s(sT1)}, 2\ns_lshl_b32 {s(sT2)}, {s(sT2)}, 14\ns_add_u32 {s(sO2)}, {s(sO2)}, {s(sT2)}\ns_add_u32 {s(sO2)}, {s(sO2)}, {hex(X4N)}')
    else:
        P(f's_lshl_b32 {s(sO2)}, {s(sT1)}, 2\ns_add_u32 {s(sO2)}, {s(sO2)}, {s(sT0)}\ns_lshl_b32 {s(sO2)}, {s(sO2)}, 9\ns_add_u32 {s(sO2)}, {s(sO2)}, {hex(X4)}')
    P(f's_lshl_b32 {s(sT1)}, {s(sT1)}, 7\ns_add_u32 {s(sT1)}, {s(sT1)}, 2048')
    modtile_issue(sT0, sT1)
    if cfg.t2early:
        modtile_compute(0, sO2)
        P('s_branch L_QKP')
    else: P(f's_mov_b32 {s(sR)}, 99\ns_branch L_QKP')
    P('L_C1B1:')
    P(f's_sub_u32 {s(sT0)}, {s(sKK)}, 8\ns_cmp_lt_u32 {s(sT0)}, 8\ns_cbranch_scc1 L_RED')
    P('s_barrier')
    P('s_branch L_END')
    P('L_RED:')
    if cfg.rwait != 4 and not cfg.rearly: red_setup()
    else:
        srd(SRD_B, pOUT, 1024)
        P(f'v_lshlrev_b32 {v(vL16r)}, 4, {v(vL)}\nv_and_b32 {v(vU16)}, 3, {v(vL)}\nv_lshlrev_b32 {v(vU16)}, 4, {v(vU16)}')
        vda()
    red_addr()
    def xb_issue(b):
        for k in range(0, 16, 2 if cfg.fakehalf & 1 else 1): P(f'buffer_load_dwordx4 {v(b+4*k,4)}, {v(vL16r)}, {S(SRD_WS)}, {s(sB4 + (k >> 2))} offen offset:{1024*(k & 3)} sc1')
    issue = x4_issue
    def rw(name):
        P(f'v_mov_b32 {v(vT+2)}, {hex(L_FLAG + 160)}')
        lds_wait(name, vT+2, 1, 28, [28], cfg.lsleep)
    if cfg.rwait >= 3:
        if cfg.rwait == 3: issue()
        P('s_barrier')
        stamp('R_b2')
        P(f's_mov_b32 {s(sT2)}, 0\ns_branch L_X4CHK\nL_X4RETRY:')
        rw('rw0')
        issue()
        P(f's_add_u32 {s(sT2)}, {s(sT2)}, 1\ns_cmp_gt_u32 {s(sT2)}, {cfg.spin}\ns_cbranch_scc1 L_END\nL_X4CHK:')
        P('s_waitcnt vmcnt(0)')
        tr = [vg+4*k+2 for k in range(8)]
        P(f'v_xor_b32 {v(vT)}, {s(sTAG)}, {v(tr[0])}\nv_xor_b32 {v(vT+1)}, {s(sTAG)}, {v(tr[1])}')
        for k, r in enumerate(tr[2:]): P(f'v_bitop3_b32 {v(vT + (k & 1))}, {v(r)}, {s(sTAG)}, {v(vT + (k & 1))} bitop3:{TAGX}')
        P(f'v_or_b32 {v(vT)}, {v(vT)}, {v(vT+1)}\nv_cmp_ne_u32 vcc, 0, {v(vT)}\ns_cbranch_vccnz L_X4RETRY')
    else:
        P('s_barrier')
        stamp('R_b2')
        if cfg.rwait: rw('rw')
        tagcheck_loop(issue, [vg+4*k+2 for k in range(8)], 'x4', after=(lambda: xb_issue(128)) if cfg.rwait == 2 else None, nafter=16)
    for p_ in range(4):
        for e in range(2): P(f'v_add_f32 {v(vg+8*p_+e)}, {v(vg+8*p_+e)}, {v(vg+8*p_+4+e)}')
    for p_ in range(4): P(f'v_permlane32_swap_b32 {v(vg+8*p_)}, {v(vg+8*p_+1)}')
    for p_ in range(4): P(f'v_add_f32 {v(vg+8*p_)}, {v(vg+8*p_)}, {v(vg+8*p_+1)}')
    for p_ in range(4): rnd(vg+8*p_)
    P(f'v_mov_b32 {v(vGAv)}, {v(vg)}\nv_add_f32 {v(vg+16)}, 1.0, {v(vg+16)}\nv_mov_b32 {v(vg+9)}, {v(vg+8)}\nv_mov_b32 {v(vg+17)}, {v(vg+16)}')
    P(f'ds_bpermute_b32 {v(vGBv)}, {v(vBP)}, {v(vg+24)}')
    P(f'v_permlane32_swap_b32 {v(vg+8)}, {v(vg+9)}\nv_permlane32_swap_b32 {v(vg+16)}, {v(vg+17)}')
    P(f'v_cvt_pk_bf16_f32 {v(vXC+2)}, {v(vg+8)}, {v(vg+9)}\nv_cvt_pk_bf16_f32 {v(vXC+1)}, {v(vg+16)}, {v(vg+17)}\nv_mov_b32 {v(vXC+3)}, {s(sTAG)}\nv_lshlrev_b32 {v(vXv)}, 16, {v(vXv)}')
    stamp('R_x4')
    if cfg.rwait >= 3: rw('rw1')
    def done(b):
        st = 1
        while st < 16:
            for a in range(0, 16, 2*st): add2(b+4*a, b+4*a, b+4*(a+st))
            st *= 2
    if cfg.rsleep: P(f's_sleep {cfg.rsleep}')
    if cfg.xbgrp:
        n = 16 // cfg.xbgrp
        def mk(g):
            def issue():
                for k in range(g*n, g*n + n): P(f'buffer_load_dwordx4 {v(128+4*k,4)}, {v(vL16r)}, {S(SRD_WS)}, {s(sB4 + (k >> 2))} offen offset:{1024*(k & 3)} sc1')
            return (issue, [128+4*k+2 for k in range(g*n, g*n + n)])
        poll_groups('xb', [mk(g) for g in range(cfg.xbgrp)])
        done(128)
    else: poll('xb', xb_issue, 16, 128, 64, [4*k+2 for k in range(0, 16, 2 if cfg.fakehalf & 1 else 1)], done, issued=(cfg.rwait == 2))
    stamp('R_xb')
    P(f'v_permlane32_swap_b32 {v(128)}, {v(129)}\nv_add_f32 {v(vg)}, {v(128)}, {v(129)}')
    rnd(vg)
    P(f'v_mul_f32 {v(vg)}, {v(vg)}, {v(vGAv)}'); rnd(vg)
    P(f'v_add_f32 {v(vg)}, {v(vg)}, {v(vXv)}\nv_mov_b32 {v(vg+1)}, {v(vg)}')
    P(f'v_permlane32_swap_b32 {v(vg)}, {v(vg+1)}')
    P(f'v_cvt_pk_bf16_f32 {v(vXC)}, {v(vg)}, {v(vg+1)}')
    if cfg.xcmode == 1: publish(vXC, vL16r, sO3, 0xffffffff)
    elif cfg.xcmode == 2:
        setexec(0xffffffff); P(f'buffer_store_dwordx4 {v(vXC,4)}, {v(vL16r)}, {S(SRD_WS)}, {s(sO3)} offen'); setexec(ALL)
    else: publish_loc(vXC, vL16r, sO3, 0xffffffff)
    stamp('R_xcpub')
    if cfg.epearly:
        P(f's_cmp_eq_u32 {s(sR)}, 0\ns_cbranch_scc0 L_NOEP')
        setexec(1)
        P(f'v_mov_b32 {v(vT)}, 0\nv_mov_b32 {v(vT+1)}, {s(sTAG)}')
        P(f'buffer_store_dword {v(vT+1)}, {v(vT)}, {S(SRD_WS)}, 0 offen sc1')
        setexec(ALL)
        P('L_NOEP:')
    P(f'v_lshrrev_b32 {v(vT+2)}, 1, {v(vL)}\nv_and_b32 {v(vT+2)}, 16, {v(vT+2)}\nv_lshrrev_b32 {v(vXv)}, {v(vT+2)}, {v(vXC)}\nv_lshlrev_b32 {v(vXv)}, 16, {v(vXv)}')
    P(f'ds_bpermute_b32 {v(vXv)}, {v(vBP)}, {v(vXv)}')
    def colsum():
        P(f'v_permlane16_swap_b32 {v(vg)}, {v(vg+1)}')
        P(f'v_add_f32 {v(vg)}, {v(vg)}, {v(vg+1)}')
        P(f'v_add_f32_dpp {v(vg)}, {v(vg)}, {v(vg)} row_ror:4 row_mask:0xf bank_mask:0xf')
        P(f'v_add_f32_dpp {v(vg)}, {v(vg)}, {v(vg)} row_ror:8 row_mask:0xf bank_mask:0xf')
        P(f'v_mov_b32 {v(vg+1)}, {v(vg)}')
        P(f'v_permlane32_swap_b32 {v(vg)}, {v(vg+1)}')
        P(f'v_add_f32 {v(vg)}, {v(vg)}, {v(vg+1)}')
    P('s_waitcnt lgkmcnt(0)')
    def issue(b):
        for k in range(2): P(f'buffer_load_dwordx4 {v(b+4*k,4)}, {v(vDA)}, {S(SRD_WS)}, {s(sD+k)} offen sc1')
        setexec((1 << 44) - 1)
        P(f'buffer_load_dwordx4 {v(b+8,4)}, {v(vDA)}, {S(SRD_WS)}, {s(sD+2)} offen sc1')
        setexec(ALL)
    def done(b):
        add2(b, b, b+4); add2(vg, b, b+8)
    if cfg.dsleep: P(f's_sleep {cfg.dsleep}')
    poll('xd', issue, 3, 192, 12, [2, 6, 10], done)
    stamp('R_xd')
    colsum()
    rnd(vg)
    P(f'v_mul_f32 {v(vg)}, {v(vg)}, {v(vGBv)}'); rnd(vg)
    P(f'v_add_f32 {v(vg)}, {v(vg)}, {v(vXv)}\nv_mov_b32 {v(vg+1)}, {v(vg)}')
    P(f'v_permlane16_swap_b32 {v(vg)}, {v(vg+1)}')
    P(f'v_cvt_pk_bf16_f32 {v(vg)}, {v(vg)}, {v(vg+1)}')
    setexec(0xf)
    P(f'buffer_store_dword {v(vg)}, {v(vU16)}, {S(SRD_B)}, {s(sG+2)} offen {cfg.outpol}')
    stamp('R_end')
    def epoch(skip):
        P(f's_cmp_eq_u32 {s(sR)}, 0\ns_cbranch_scc0 {skip}')
        setexec(1)
        P(f'v_mov_b32 {v(vT)}, 0\nv_mov_b32 {v(vT+1)}, {s(sTAG)}')
        P(f'buffer_store_dword {v(vT+1)}, {v(vT)}, {S(SRD_WS)}, 0 offen sc1')
    if not cfg.epearly: epoch('L_END')
    if cfg.xdelay:
        P(f's_cmp_eq_u32 {s(sR)}, 0\ns_cbranch_scc0 L_END\ns_memrealtime s[76:77]\ns_waitcnt lgkmcnt(0)\ns_add_u32 {s(sT0)}, s76, {cfg.xdelay}')
        P(f'L_XDL:\ns_memrealtime s[76:77]\ns_waitcnt lgkmcnt(0)\ns_sub_u32 {s(sT1)}, s76, {s(sT0)}\ns_cmp_lt_i32 {s(sT1)}, 0\ns_cbranch_scc1 L_XDL')
    if cfg.gprobe:
        P(f's_cmp_eq_u32 {s(sR)}, 0\ns_cbranch_scc0 L_END\ns_mov_b64 exec, -1\ns_mov_b32 {s(sT0)}, {hex(DIAG)}')
        nw = 4 if cfg.gprobe.startswith('L') else 1
        P(f'v_lshlrev_b32 v1, 5, v0')
        if cfg.gprobe[0] == 'R': P('v_add_u32 v1, 8, v1')
        if cfg.gprobe[0] in 'MR': P('s_sleep 40')
        regs = []
        for q in range(4):
            for w in range(nw):
                r = 128 + 2*(q*4 + w); regs.append(r)
                P(f'buffer_load_dwordx2 v[{r}:{r+1}], v1, {S(SRD_WS)}, {s(sT0)} offen offset:{8*w} sc1')
            P(f's_add_u32 {s(sT0)}, {s(sT0)}, 2048')
        P('s_waitcnt vmcnt(0)')
        P(f'v_subrev_u32 v2, {s(sDIAG)}, v{regs[0]}\nv_subrev_u32 v3, {s(sDIAG)}, v{regs[0]+1}')
        for r in regs[1:]:
            P(f'v_subrev_u32 v4, {s(sDIAG)}, v{r}\nv_min_i32 v2, v2, v4\nv_subrev_u32 v4, {s(sDIAG)}, v{r+1}\nv_max_i32 v3, v3, v4')
        wave_reduce('v_min_i32', [2]); wave_reduce('v_max_i32', [3])
        P(f'v_sub_u32 v2, v3, v2\nv_readlane_b32 {s(sT0)}, v2, 63\ns_nop 1\ns_min_u32 {s(sT0)}, {s(sT0)}, 5000\ns_memrealtime s[76:77]\ns_waitcnt lgkmcnt(0)\ns_add_u32 {s(sT0)}, {s(sT0)}, s76')
        P(f'L_GPR:\ns_memrealtime s[76:77]\ns_waitcnt lgkmcnt(0)\ns_sub_u32 {s(sT1)}, s76, {s(sT0)}\ns_cmp_lt_i32 {s(sT1)}, 0\ns_cbranch_scc1 L_GPR')
    if cfg.probe:
        P(f's_cmp_eq_u32 {s(sR)}, 0\ns_cbranch_scc0 L_END')
        i = stamps[cfg.probe]
        P(f's_waitcnt lgkmcnt(0)\ns_sub_u32 {s(sT0)}, {s(sDIAG+2*i)}, {s(sDIAG)}\ns_min_u32 {s(sT0)}, {s(sT0)}, 5000\ns_memrealtime s[76:77]\ns_waitcnt lgkmcnt(0)\ns_add_u32 {s(sT0)}, {s(sT0)}, s76')
        P(f'L_PROBE:\ns_memrealtime s[76:77]\ns_waitcnt lgkmcnt(0)\ns_sub_u32 {s(sT1)}, s76, {s(sT0)}\ns_cmp_lt_i32 {s(sT1)}, 0\ns_cbranch_scc1 L_PROBE')
    P('s_branch L_END')

    P('L_END:')
    if cfg.diag and not cfg.probe and not cfg.gprobe:
        P('s_waitcnt lgkmcnt(0)')
        P(f's_cmp_ge_u32 {s(sB)}, 256\ns_cbranch_scc1 L_END2')
        srd(SRD_WS, sWSP, WS_BYTES)
        P(f's_lshl_b32 {s(sT0)}, {s(sB)}, 3\ns_add_u32 {s(sT0)}, {s(sT0)}, {s(sW)}\ns_lshl_b32 {s(sT0)}, {s(sT0)}, 7\ns_add_u32 {s(sT0)}, {s(sT0)}, {hex(DIAG)}')
        P('s_mov_b64 exec, 1\nv_mov_b32 v1, 0')
        for i in range(9): P(f'v_mov_b32 v2, {s(sDIAG+2*i)}\nbuffer_store_dword v2, v1, {S(SRD_WS)}, {s(sT0)} offen offset:{4*i}')
        P('L_END2:')
    P('s_endpgm')
    P('L_CODE_END:')
    probs = P.fix()
    for p in probs: print('HAZARD across branch:', p, file=sys.stderr)
    head = open(f'cdna_kernels/{NAME}.s.ref').read().split('; Override launch')[0]
    txt = head
    txt += DOC
    txt += f'; @launch grid=(256,1,1) block=(512,1,1) lds={LDS_BYTES}\n'
    txt += f'.amdgcn_target "amdgcn-amd-amdhsa--gfx950"\n.text\n.globl {NAME}_kernel\n' + ('.p2align 12\n' if cfg.pgal else '') + f'.p2align 8\n.type {NAME}_kernel,@function\n{NAME}_kernel:\n'
    txt += P.text() + '\n'
    txt += f'''.section .rodata,"a"
.p2align 6
.amdhsa_kernel {NAME}_kernel
  .amdhsa_next_free_vgpr 256
  .amdhsa_next_free_sgpr 102
  .amdhsa_accum_offset 256
  .amdhsa_group_segment_fixed_size 0
  .amdhsa_kernarg_size 112
  .amdhsa_user_sgpr_count 2
  .amdhsa_user_sgpr_kernarg_segment_ptr 1
  .amdhsa_system_sgpr_workgroup_id_x 1
  .amdhsa_float_denorm_mode_32 3
.end_amdhsa_kernel
'''
    return txt, stamps

if __name__ == '__main__':
    out = sys.argv[1] if len(sys.argv) > 1 else f'cdna_kernels/{NAME}.s'
    class C(Cfg): pass
    for a in sys.argv[2:]:
        k, val = a.split('=', 1)
        setattr(C, k, eval(val))
    txt, stamps = gen(C)
    open(out, 'w').write(txt)
    print('written', out, len(txt), 'bytes', stamps)
```

```python
import sys, struct
from asmdsl import Prog

NAME = 'adaLN_cond__mha_block_cached__glu_gated_swiglu__decode'

def f2u(x): return struct.unpack('<I', struct.pack('<f', x))[0]
LOG2E = hex(f2u(1.4426950408889634))
NLOG2E = hex(f2u(-1.4426950408889634))
SCALE = hex(f2u(128 ** -0.5))
EPS = hex(f2u(1e-5))
R512 = hex(f2u(1/512))
ALL = (1 << 64) - 1

X1 = 0x1000
X4 = 0x9000
X3 = 0x19000
X1F = 0x1b000
X0 = 0x1d000
X0B = 0x194000
X2F = 0x1c000
XC = 0x180000
X4N = 0x1e0000
XPR = 0x190000
XP = 0x1f000
X2 = 0x20000
XA = 0x60000
XB = 0x200000
XD = 0xe0000
XE = 0x110000
XG = 0x197000
XB2 = 0x140000
X0C = 0x1a000
DIAG = 0x1a0000
WS_BYTES = 0x300000
L_P, L_OP, L_Q, L_FLAG = 0x20000, 0x20800, 0x21000, 0x21100
L_ST, L_U = 0x0, 0x1000
L_MS, L_ML, L_PAR = L_FLAG + 64, L_FLAG + 128, L_FLAG + 176
LDS_BYTES = 0x21200
NM = 43
TAGX = hex(sum(1 << (a*4+b*2+c) for a in (0,1) for b in (0,1) for c in (0,1) if (a ^ b) | c))

DOC = """;
;                  all QK^T of one L wave's tiles, true max and sum exchanged inside the head, normalised p
"""

class Cfg:
    depth = 8
    diag = False
    probe = None
    kpol = 'nt'
    vpol = 'nt'
    wpol = 'nt'
    ppol = ''
    sleep1 = 0
    sleep2 = 0
    sleep3 = 4
    sleep4 = 40
    prio = 3
    hint = 1
    hsleep = 3
    lsleep = 1
    pf = 'post'
    wq0 = 1
    dsched = (6, 12, 9)
    rot = 5
    npf = 8
    local = 1
    pipe = dict()
    psleep = dict()
    xcrep = 1
    xcline = 0
    nodpp = 0
    b0late = 1
    xcsleep = 0
    dnlate = 0
    xbrep = 0
    rwait = 1
    xbgrp = 0
    rsleep = 0
    dsleep = 0
    wob2 = 0
    epearly = 1
    ksplit = 0
    th = 0
    cpf = 1
    fakehalf = 0
    xdelay = 0
    gwait = 0
    tearly = 0
    pkand = 0
    acc2 = 0
    mlat = 0
    t2early = 0
    par = 'dyn'
    nsamp = 4
    nearloc = 1
    x4near = 0
    mlpw = 0
    xcmode = 0
    wfirst = 1
    wofirst = 0
    pkadd = 1
    split0 = 1
    lay2 = 1
    pgal = 1
    t1first = 0
    evenmlp = 1
    cpf0 = 1
    lnopt = 1
    ackw = 1
    rearly = 1
    tlbw = 0
    gthr = 32
    gprobe = None
    dodd = None
    dvar = None
    outpol = ''
    uppol = 'nt'
    spin = 1 << 18

def v(a, n=1): return f'v{a}' if n == 1 else f'v[{a}:{a+n-1}]'
def s(a, n=1): return f's{a}' if n == 1 else f's[{a}:{a+n-1}]'

sB, sW = 2, 3
sKP, sVP = 4, 6
SRD_K, SRD_V, SRD_WS, SRD_A, SRD_B, SRD_C = 8, 12, 16, 20, 24, 28
sH, sJ, sX, sKK = 36, 37, 38, 39
sWSP = 40
sTAG, sIM, sR = 42, 43, 44
sT0, sT1, sT2 = 45, 46, 47
pWQ, pWO, pW1, pW3, pW2, pC, pWM, pX, pOUT = 48, 50, 54, 56, 58, 60, 62, 64, 66
sSPIN = 68
sO0, sO1, sO2, sO3 = 69, 70, 71, 72
sMASK = 74
sPAR, sNEAR = 52, 53
sT1B = 35
sLOC = 73
sG = 76
sDIAG = 84
vL = 0
vT = 1
vM = 4

def gen(cfg=Cfg):
    P = Prog()
    X4NEAR = bool(cfg.x4near and cfg.par is not None and not cfg.t2early)
    D = cfg.depth
    stamps = {}
    def stamp(name):
        if cfg.diag and name in cfg.diag:
            grp = name.split('_')[0]
            same = [n for n in cfg.diag if n.split('_')[0] == grp]
            if name == 'start': i = 0
            elif cfg.gprobe: i = 1
            elif grp == 'M': i = 8 - same.index(name)
            else: i = 1 + same.index(name)
            assert 0 <= i <= 8
            stamps[name] = i
            P(f's_memrealtime {s(sDIAG + 2*i, 2)}')
            if cfg.gprobe == name:
                assert i < 5
                P(f's_waitcnt lgkmcnt(0)\ns_mov_b32 s96, {s(sWSP)}\ns_mov_b32 s97, {s(sWSP+1)}\ns_mov_b32 s98, {hex(WS_BYTES)}\ns_mov_b32 s99, 0x20000')
                P(f's_lshl_b32 s100, {s(sB)}, 2\ns_and_b32 s101, {s(sW)}, 3\ns_add_u32 s100, s100, s101\ns_lshl_b32 s100, s100, 3\ns_add_u32 s100, s100, {hex(DIAG)}')
                P(f's_mov_b64 s[94:95], exec\ns_mov_b64 exec, 1\nv_mov_b32 v254, {s(sDIAG)}\nv_mov_b32 v255, {s(sDIAG+2*i)}\nv_mov_b32 v253, 0\nbuffer_store_dwordx2 v[254:255], v253, s[96:99], s100 offen sc1\ns_mov_b64 exec, s[94:95]')
    def srd(r, ptr, nbytes):
        P(f's_mov_b32 {s(r)}, {s(ptr)}\ns_mov_b32 {s(r+1)}, {s(ptr+1)}\ns_mov_b32 {s(r+2)}, {hex(nbytes)}\ns_mov_b32 {s(r+3)}, 0x20000')
    def S(r): return s(r, 4)
    def setexec(mask):
        lo, hi = mask & 0xffffffff, mask >> 32
        if mask == ALL: P('s_mov_b64 exec, -1')
        elif mask <= 64: P(f's_mov_b64 exec, {mask}')
        else: P(f's_mov_b32 exec_lo, {hex(lo)}\ns_mov_b32 exec_hi, {hex(hi)}')
    uid = [0]
    def lab(p):
        uid[0] += 1; return f'L_{p}{uid[0]}'
    def tagcheck_loop(issue, tagregs, name, sleep=0, after=None, nafter=0):
        top = lab(name)
        P(f's_mov_b32 {s(sSPIN)}, 0')
        P(f'{top}:')
        issue()
        if after: after()
        P(f's_add_u32 {s(sSPIN)}, {s(sSPIN)}, 1\ns_cmp_gt_u32 {s(sSPIN)}, {cfg.spin}\ns_cbranch_scc1 L_END')
        P(f's_waitcnt vmcnt({nafter if after else 0})')
        if len(tagregs) == 1:
            P(f'v_cmp_ne_u32 vcc, {s(sTAG)}, {v(tagregs[0])}')
        else:
            P(f'v_xor_b32 {v(vT)}, {s(sTAG)}, {v(tagregs[0])}\nv_xor_b32 {v(vT+1)}, {s(sTAG)}, {v(tagregs[1])}')
            for k, r in enumerate(tagregs[2:]):
                P(f'v_bitop3_b32 {v(vT + (k & 1))}, {v(r)}, {s(sTAG)}, {v(vT + (k & 1))} bitop3:{TAGX}')
            P(f'v_or_b32 {v(vT)}, {v(vT)}, {v(vT+1)}\nv_cmp_ne_u32 vcc, 0, {v(vT)}')
        if sleep:
            dn = lab(name + 'd')
            P(f's_cbranch_vccz {dn}\ns_sleep {sleep}\ns_branch {top}\n{dn}:')
        else: P(f's_cbranch_vccnz {top}')
    def poll(name, issue, nl, base, stride, tagoff, done, issued=False):
        NS = cfg.pipe.get(name, 1)
        top, join = lab(name), lab(name + 'j')
        ex = [lab(name + 'x') for _ in range(NS)]
        P(f's_mov_b32 {s(sSPIN)}, 0')
        for i in range(NS - 1): issue(base + i*stride)
        if issued:
            assert NS == 1
            sk = lab(name + 's'); P(f's_branch {sk}')
        P(f'{top}:')
        for i in range(NS):
            issue(base + ((i + NS - 1) % NS)*stride)
            if issued: P(f'{sk}:')
            if i == 0: P(f's_add_u32 {s(sSPIN)}, {s(sSPIN)}, 1\ns_cmp_gt_u32 {s(sSPIN)}, {cfg.spin}\ns_cbranch_scc1 L_END')
            P(f's_waitcnt vmcnt({(NS-1)*nl})')
            tr = [base + i*stride + t for t in tagoff]
            if len(tr) == 1:
                P(f'v_cmp_ne_u32 vcc, {s(sTAG)}, {v(tr[0])}')
            else:
                P(f'v_xor_b32 {v(vT)}, {s(sTAG)}, {v(tr[0])}\nv_xor_b32 {v(vT+1)}, {s(sTAG)}, {v(tr[1])}')
                for k, r in enumerate(tr[2:]):
                    P(f'v_bitop3_b32 {v(vT + (k & 1))}, {v(r)}, {s(sTAG)}, {v(vT + (k & 1))} bitop3:{TAGX}')
                P(f'v_or_b32 {v(vT)}, {v(vT)}, {v(vT+1)}\nv_cmp_ne_u32 vcc, 0, {v(vT)}')
            ps = cfg.psleep.get(name, 0)
            if ps:
                P(f's_cbranch_vccz {ex[i]}\ns_sleep {ps}')
                if i + 1 == NS: P(f's_branch {top}')
            else: P(f's_cbranch_vccz {ex[i]}' if i + 1 < NS else f's_cbranch_vccnz {top}')
        for i in reversed(range(NS)):
            P(f'{ex[i]}:')
            done(base + i*stride)
            if i > 0: P(f's_branch {join}')
        P(f'{join}:')
    def poll_groups(name, groups):
        top = lab(name)
        P(f's_mov_b32 {s(sSPIN)}, 0\ns_mov_b32 {s(sT0)}, {(1 << len(groups)) - 1}')
        P(f'{top}:')
        for g, (issue, tr) in enumerate(groups):
            sk = lab(name + 'i')
            P(f's_bitcmp1_b32 {s(sT0)}, {g}\ns_cbranch_scc0 {sk}')
            issue()
            P(f'{sk}:')
        P(f's_add_u32 {s(sSPIN)}, {s(sSPIN)}, 1\ns_cmp_gt_u32 {s(sSPIN)}, {cfg.spin}\ns_cbranch_scc1 L_END')
        P('s_waitcnt vmcnt(0)')
        for g, (issue, tr) in enumerate(groups):
            P(f'v_xor_b32 {v(vT + (g & 1))}, {s(sTAG)}, {v(tr[0])}')
            for r in tr[1:]: P(f'v_bitop3_b32 {v(vT + (g & 1))}, {v(r)}, {s(sTAG)}, {v(vT + (g & 1))} bitop3:{TAGX}')
            P(f'v_cmp_ne_u32 {s(sG+4+2*(g & 1),2)}, 0, {v(vT + (g & 1))}')
            P(f's_cmp_lg_u64 {s(sG+4+2*(g & 1),2)}, 0\ns_cselect_b32 {s(sT1)}, {1 << g}, 0')
            P(f's_or_b32 {s(sT0)}, {s(sT1)}, {s(sT0) if g else s(sT1)}')
        P(f's_cbranch_scc1 {top}')
    def publish_loc(d, vaddr, soff, mask=None, flag=sLOC):
        if not cfg.local: return publish(d, vaddr, soff, mask)
        far, j2 = lab('far'), lab('pb')
        if mask: setexec(mask)
        P(f's_cmp_eq_u32 {s(flag)}, 1\ns_cbranch_scc0 {far}')
        P(f'buffer_store_dwordx4 {v(d,4)}, {v(vaddr)}, {S(SRD_WS)}, {s(soff)} offen')
        P(f's_branch {j2}\n{far}:')
        publish(d, vaddr, soff)
        P(f'{j2}:')
        if mask: setexec(ALL)
    def afrag(dst, src, dpp=''):
        for w in range(4):
            if dpp: P(f'v_and_b32_dpp {v(dst+w)}, {v(src)}, {v(vM+w)} {dpp} row_mask:0xf bank_mask:0xf')
            else: P(f'v_and_b32 {v(dst+w)}, {v(src)}, {v(vM+w)}')
    def mfma(d, a, b, first=False):
        P(f'v_mfma_f32_16x16x32_bf16 {v(d,4)}, {v(a,4)}, {v(b,4)}, {"0" if first else v(d,4)}')
    vF, vHM, vPP = 244, 248, 250
    def afrag_pk(dst, src, dpp, k):
        pp = vPP + 2*(k & 1)
        if dpp: P(f'v_and_b32_dpp {v(pp)}, {v(src)}, {v(vHM)} {dpp} row_mask:0xf bank_mask:0xf')
        else: P(f'v_and_b32 {v(pp)}, {v(src)}, {v(vHM)}')
        return [f'v_pk_mul_f32 {v(dst+2*w,2)}, {v(pp,2)}, {v(vF+2*w,2)} op_sel_hi:[0,1]' for w in range(2)]
    def chain(d, n, bregs, srcs, areg):
        if cfg.pkand:
            pend = afrag_pk(areg, *srcs[0], 0)
            for x in pend: P(x)
            if n > 1: pend = afrag_pk(areg + 4, *srcs[1], 1)
            for i in range(n):
                if i + 1 < n:
                    for x in pend: P(x)
                if i + 2 < n: pend = afrag_pk(areg + 4*(i & 1) + 8*(1 - 2*0)*0 if False else areg + 4*(i & 1), *srcs[i+2], i) if False else None
                mfma(d, areg + 4*(i & 1), bregs[i], first=(i == 0))
                if i + 2 < n: pend = afrag_pk(areg + 4*(i & 1), *srcs[i+2], i)
            return
        if cfg.nodpp and srcs[0][1]:
            bc = 224
            for i in range(n): P(f'v_mov_b32_dpp {v(bc+i)}, {v(srcs[i][0])} {srcs[i][1]} row_mask:0xf bank_mask:0xf')
            srcs = [(bc+i, '') for i in range(n)]
        afrag(areg, *srcs[0])
        d2 = 32
        for i in range(n):
            if i + 1 < n: afrag(areg + 4*((i+1) & 1), *srcs[i+1])
            if cfg.acc2 and n >= 8: mfma(d2 if i & 1 else d, areg + 4*(i & 1), bregs[i], first=(i < 2))
            else: mfma(d, areg + 4*(i & 1), bregs[i], first=(i == 0))
        if cfg.acc2 and n >= 8:
            for r in range(0, 4, 2): P(f'v_pk_add_f32 {v(d+r,2)}, {v(d+r,2)}, {v(d2+r,2)}')
    def finish2(d):
        P(f'v_permlane32_swap_b32 {v(d)}, {v(d+2)}\nv_permlane32_swap_b32 {v(d+1)}, {v(d+3)}')
        P(f'v_add_f32_dpp {v(d)}, {v(d+2)}, {v(d)} row_ror:8 row_mask:0xf bank_mask:0xf')
        P(f'v_add_f32_dpp {v(d+1)}, {v(d+3)}, {v(d+1)} row_ror:8 row_mask:0xf bank_mask:0xf')
        P(f'v_mov_b32 {v(d+2)}, {s(sTAG)}')
    def finish1(d):
        P(f'v_permlane32_swap_b32 {v(d)}, {v(d+2)}\nv_permlane32_swap_b32 {v(d+1)}, {v(d+3)}')
        P(f'v_mov_b32 {v(d+2)}, {s(sTAG)}')
    def publish(d, vaddr, soff, mask=None):
        if mask: setexec(mask)
        P(f'buffer_store_dwordx4 {v(d,4)}, {v(vaddr)}, {S(SRD_WS)}, {s(soff)} offen sc1')
        if mask: setexec(ALL)
    M2SET = 0x00ff00ff00ff00ff
    def lohi(r):
        P(f'v_mov_b32 {v(r+2)}, {v(r)}\nv_mov_b32 {v(r+3)}, {v(r+1)}')
        for e in range(2): P(f'v_mov_b32_dpp {v(r+2+e)}, {v(r+e)} row_shl:4 row_mask:0xf bank_mask:0x5')
        for e in range(2): P(f'v_mov_b32_dpp {v(r+e)}, {v(r+e)} row_shr:4 row_mask:0xf bank_mask:0xa')
    def lohi_srcs(r):
        out = []
        for i in range(16):
            u = i >> 1; a = u & 3
            out.append((r + (2 if u >= 4 else 0) + (i & 1), f'quad_perm:[{a},{a},{a},{a}]'))
        return out
    def lds_wait(name, vaddr, n, dst, chk, sleep=0):
        top = lab(name)
        op = {1: 'ds_read_b32', 2: 'ds_read_b64', 4: 'ds_read_b128'}[n]
        P(f's_mov_b32 {s(sSPIN)}, 0')
        P(f'{top}:')
        P(f'{op} {v(dst,n)}, {v(vaddr)}')
        P(f's_add_u32 {s(sSPIN)}, {s(sSPIN)}, 1\ns_cmp_gt_u32 {s(sSPIN)}, {cfg.spin*8}\ns_cbranch_scc1 L_END')
        P('s_waitcnt lgkmcnt(0)')
        if len(chk) == 2:
            P(f'v_and_b32 {v(vT)}, {v(chk[0])}, {v(chk[1])}\nv_cmp_eq_u32 vcc, 0, {v(vT)}')
        else: P(f'v_cmp_eq_u32 vcc, 0, {v(chk[0])}')
        if sleep:
            done = lab(name + 'd')
            P(f's_cbranch_vccz {done}\ns_sleep {sleep}\ns_branch {top}\n{done}:')
        else: P(f's_cbranch_vccnz {top}')
    def hint_wait(name, soff):
        top = lab(name)
        P(f's_add_u32 {s(sMASK)}, {s(sWSP)}, {s(soff)}\ns_addc_u32 {s(sMASK+1)}, {s(sWSP+1)}, 0\ns_mov_b32 {s(sSPIN)}, 0')
        P(f'{top}:')
        P(f's_load_dwordx8 {s(sG,8)}, {s(sMASK,2)}, 0 glc')
        P(f's_add_u32 {s(sSPIN)}, {s(sSPIN)}, 1\ns_cmp_gt_u32 {s(sSPIN)}, {cfg.spin}\ns_cbranch_scc1 L_END')
        P('s_waitcnt lgkmcnt(0)')
        P(f's_xor_b32 {s(sG)}, {s(sG)}, {s(sTAG)}')
        for k in range(1, 8): P(f's_xor_b32 {s(sG+k)}, {s(sG+k)}, {s(sTAG)}\ns_or_b32 {s(sG)}, {s(sG)}, {s(sG+k)}')
        done = lab(name + 'd')
        P(f's_cbranch_scc0 {done}')
        if cfg.hsleep: P(f's_sleep {cfg.hsleep}')
        P(f's_branch {top}\n{done}:')
    def par_read(r):
        if cfg.par == 'dyn': P(f'v_mov_b32 {v(r)}, {hex(L_PAR)}\nds_read_b32 {v(r)}, {v(r)}')
    def par_use(r):
        if cfg.par == 'dyn': P(f's_waitcnt lgkmcnt(0)\nv_readfirstlane_b32 {s(sPAR)}, {v(r)}\ns_and_b32 {s(sPAR)}, {s(sPAR)}, 1')
        else: P(f's_mov_b32 {s(sPAR)}, {cfg.par or 0}')
        P(f's_lshr_b32 {s(sNEAR)}, {s(sX)}, 2\ns_xor_b32 {s(sNEAR)}, {s(sNEAR)}, {s(sPAR)}\ns_lshl_b32 {s(sNEAR)}, {s(sNEAR)}, 13')
    def wave_reduce(op, regs):
        for mod in ('quad_perm:[1,0,3,2] row_mask:0xf', 'quad_perm:[2,3,0,1] row_mask:0xf', 'row_ror:4 row_mask:0xf', 'row_ror:8 row_mask:0xf',
                    'row_bcast:15 row_mask:0xa', 'row_bcast:31 row_mask:0xc'):
            for r in regs: P(f'{op}_dpp {v(r)}, {v(r)}, {v(r)} {mod} bank_mask:0xf')
    def unpack(lo, hi, src):
        if lo == src: P(f'v_and_b32 {v(hi)}, 0xffff0000, {v(src)}\nv_lshlrev_b32 {v(lo)}, 16, {v(src)}')
        else: P(f'v_lshlrev_b32 {v(lo)}, 16, {v(src)}\nv_and_b32 {v(hi)}, 0xffff0000, {v(src)}')
    def silu_multi(rs, ts):
        for r, t in zip(rs, ts): P(f'v_mul_f32 {v(t)}, {NLOG2E}, {v(r)}')
        for r, t in zip(rs, ts): P(f'v_exp_f32 {v(t)}, {v(t)}')
        for r, t in zip(rs, ts): P(f'v_add_f32 {v(t)}, 1.0, {v(t)}')
        for r, t in zip(rs, ts): P(f'v_rcp_f32 {v(t)}, {v(t)}')
        for r, t in zip(rs, ts): P(f'v_mul_f32 {v(r)}, {v(r)}, {v(t)}')
    def add2(d, a, b):
        if cfg.pkadd: P(f'v_pk_add_f32 {v(d,2)}, {v(a,2)}, {v(b,2)}')
        else:
            for e in range(2): P(f'v_add_f32 {v(d+e)}, {v(a+e)}, {v(b+e)}')
    def rnd(r): P(f'v_cvt_pk_bf16_f32 {v(r)}, {v(r)}, {v(r)}\nv_and_b32 {v(r)}, 0xffff0000, {v(r)}')

    vMA, vMB, vMC, vPUB = 16, 17, 18, 19
    vMT, vD0, vAA, vS4 = 64, 36, 52, 40
    def modtile_issue(sRB, sCOL):
        srd(SRD_A, pC, 1024); srd(SRD_B, pWM, 512*6144)
        P(f's_lshl_b32 {s(sO1)}, {s(sRB)}, 8')
        P(f'buffer_load_dword {v(vMC)}, {v(vMA)}, {S(SRD_A)}, {s(sO1)} offen')
        P(f's_mul_i32 {s(sO1)}, {s(sRB)}, {128*6144}\ns_add_u32 {s(sO1)}, {s(sO1)}, {s(sCOL)}')
        for i in range(16):
            P(f'buffer_load_dwordx4 {v(vMT+4*i,4)}, {v(vMB)}, {S(SRD_B)}, {s(sO1)} offen {cfg.wpol}')
            if i < 15: P(f's_add_u32 {s(sO1)}, {s(sO1)}, 6144')
    def modtile_compute(nafter, soff, both=False):
        if nafter: stamp('C0_cw')
        P(f's_waitcnt vmcnt({16+nafter})')
        if nafter: stamp('C0_c')
        unpack(vS4, vS4+1, vMC)
        silu_multi([vS4, vS4+1], [vS4+2, vS4+3])
        for e in range(2): P(f'v_cvt_pk_bf16_f32 {v(vS4+e)}, {v(vS4+e)}, {v(vS4+e)}')
        lohi(vS4)
        P(f's_waitcnt vmcnt({nafter})')
        if nafter: stamp('C0_t1')
        chain(vD0, 16, [vMT+4*i for i in range(16)], lohi_srcs(vS4), vAA)
        finish2(vD0)
        if both:
            for e in range(2): P(f'v_mov_b32_dpp {v(vD0+e)}, {v(vD0+e)} row_ror:8 row_mask:0xf bank_mask:0xc')
            if cfg.par == 'dyn':
                P(f'v_mov_b32 {v(vT+2)}, {hex(L_PAR)}')
                lds_wait('pw', vT+2, 1, 28, [28])
                P(f'v_lshrrev_b32 {v(vT)}, 3, {v(vL)}\nv_xor_b32 {v(vT)}, {v(28)}, {v(vT)}')
            else: P(f'v_lshrrev_b32 {v(vT)}, 3, {v(vL)}\nv_xor_b32 {v(vT)}, {cfg.par}, {v(vT)}')
            P(f'v_and_b32 {v(vT)}, 1, {v(vT)}\nv_lshl_add_u32 {v(vT)}, {v(vT)}, 13, {v(vPUB)}')
            publish(vD0, vT, soff)
        else: publish(vD0, vPUB, soff, M2SET)

    P(f's_cmp_ge_u32 {s(sB)}, 256\ns_cbranch_scc1 L_END')
    if cfg.diag:
        for i in range(9): P(f's_mov_b32 {s(sDIAG+2*i)}, 0')
    stamp('start')
    P(f's_load_dwordx4 {s(sKP,4)}, s[0:1], 8')
    P(f's_load_dwordx16 {s(pWQ,16)}, s[0:1], 24')
    P(f's_load_dwordx2 {s(sWSP,2)}, s[0:1], 104')
    P(f's_load_dwordx2 {s(pX,2)}, s[0:1], 0')
    P(f's_load_dwordx2 {s(pOUT,2)}, s[0:1], 88')
    P(f'v_lshrrev_b32 {v(vT)}, 6, v0\nv_and_b32 {v(vL)}, 63, v0')
    P(f'v_readfirstlane_b32 {s(sW)}, {v(vT)}')
    P(f'v_lshlrev_b32 {v(vT)}, 2, {v(vL)}\nv_add_u32 {v(vT)}, {hex(L_FLAG)}, {v(vT)}\nv_mov_b32 {v(vT+1)}, 0')
    P(f'ds_write_b32 {v(vT)}, {v(vT+1)}')
    P(f's_and_b32 {s(sH)}, {s(sB)}, 31\ns_lshr_b32 {s(sJ)}, {s(sB)}, 5\ns_and_b32 {s(sX)}, {s(sB)}, 7\ns_lshr_b32 {s(sKK)}, {s(sB)}, 3')
    if cfg.split0: P(f's_cmp_ge_u32 {s(sW)}, 4\ns_cbranch_scc1 L_CPRE')
    vKA, vVA = 8, 12
    P(f'v_lshrrev_b32 {v(vT)}, 4, {v(vL)}\nv_and_b32 {v(vT+1)}, 15, {v(vL)}')
    P(f'v_lshlrev_b32 {v(vVA)}, 10, {v(vT)}\nv_lshl_add_u32 {v(vVA)}, {v(vT+1)}, 4, {v(vVA)}')
    if cfg.ksplit:
        P(f'v_lshlrev_b32 {v(vT+2)}, 2, {v(vT)}\nv_xor_b32 {v(vT+1)}, {v(vT+1)}, {v(vT+2)}\nv_lshlrev_b32 {v(vT+1)}, 4, {v(vT+1)}\nv_lshl_add_u32 {v(vKA)}, {v(vT)}, 10, {v(vT+1)}')
        for i in range(1, 4): P(f'v_xor_b32 {v(vKA+i)}, {16*i}, {v(vKA)}')
    else:
        P(f'v_xor_b32 {v(vT+1)}, {v(vT+1)}, {v(vT)}\nv_lshlrev_b32 {v(vT+1)}, 4, {v(vT+1)}\nv_lshl_add_u32 {v(vKA)}, {v(vT)}, 8, {v(vT+1)}')
        for i in range(1, 4): P(f'v_xor_b32 {v(vKA+i)}, {64*i}, {v(vKA)}')
    P(f's_lshl_b32 {s(sO0)}, {s(sH)}, 20\ns_lshl_b32 {s(sO3)}, {s(sJ)}, 2\ns_add_u32 {s(sO3)}, {s(sO3)}, {s(sW)}\ns_lshl_b32 {s(sO3)}, {s(sO3)}, 12')
    vXF, vXS, vL16, vWA, vXA = 28, 32, 60, 62, 33
    vWQ = 128
    def wq_issue():
        srd(SRD_C, pWQ, 4 << 20)
        P(f's_lshl_b32 {s(sO2)}, {s(sJ)}, 19\ns_lshl_b32 {s(sT0)}, {s(sH)}, 8\ns_add_u32 {s(sO2)}, {s(sO2)}, {s(sT0)}')
        for i in range(16):
            P(f'buffer_load_dwordx4 {v(vWQ+4*i,4)}, {v(vWA)}, {S(SRD_C)}, {s(sO2)} offen {cfg.wpol}')
            if i < 15: P(f's_add_u32 {s(sO2)}, {s(sO2)}, {8192 if (i & 1) == 0 else 8192*7}')
    def code_prefetch(w, late=False):
        if not cfg.cpf or (bool(cfg.cpf0 and cfg.split0) == late): return
        P(f's_cmp_eq_u32 {s(sW)}, {w}\ns_cbranch_scc0 L_NOCP')
        P(f's_getpc_b64 {s(20,2)}')
        P('L_PCREF:')
        P(f's_sub_u32 s20, s20, L_PCREF-{NAME}_kernel\ns_subb_u32 s21, s21, 0')
        P(f's_lshl_b32 {s(sT0)}, {s(sKK)}, 3\nv_and_b32 {v(vT)}, 7, {v(vL)}\nv_add_u32 {v(vT)}, {s(sT0)}, {v(vT)}\nv_lshlrev_b32 {v(vT)}, 7, {v(vT)}')
        P(f'v_min_u32 {v(vT)}, L_CODE_END-{NAME}_kernel-4, {v(vT)}')
        P(f'global_load_dword {v(240)}, {v(vT)}, s[20:21]')
        P('L_NOCP:')
    def cpre():
        P(f'v_lshlrev_b32 {v(vMA)}, 2, {v(vL)}\nv_lshrrev_b32 {v(vT)}, 3, {v(vL)}\nv_mul_u32_u24 {v(vMB)}, {16*6144}, {v(vT)}\nv_and_b32 {v(vT+1)}, 7, {v(vL)}\nv_lshl_add_u32 {v(vMB)}, {v(vT+1)}, 4, {v(vMB)}')
        P(f'v_lshrrev_b32 {v(vT)}, 4, {v(vL)}\nv_lshlrev_b32 {v(vT)}, 7, {v(vT)}\nv_lshl_add_u32 {v(vPUB)}, {v(vT+1)}, 4, {v(vT)}')
        P(f'v_lshlrev_b32 {v(vL16)}, 4, {v(vL)}')
        P(f'v_bfe_u32 {v(vT)}, {v(vL)}, 4, 1\nv_lshrrev_b32 {v(vT+2)}, 5, {v(vL)}\nv_lshl_add_u32 {v(vT)}, {v(vT)}, 1, {v(vT+2)}')
        P(f'v_lshl_add_u32 {v(vXA)}, {v(vT+1)}, 2, {v(vT)}\nv_lshlrev_b32 {v(vXA)}, 2, {v(vXA)}\nv_lshlrev_b32 {v(vWA)}, 14, {v(vT)}')
        P(f'v_and_b32 {v(vT+1)}, 15, {v(vL)}\nv_lshl_add_u32 {v(vWA)}, {v(vT+1)}, 4, {v(vWA)}')
        if cfg.tearly == 1:
            P(f's_sub_u32 {s(sT2)}, {s(sKK)}, 16\ns_lshl_b32 {s(sT2)}, {s(sT2)}, 2\ns_add_u32 {s(sT2)}, {s(sT2)}, {s(sX)}\ns_lshr_b32 {s(sT1B)}, {s(sT2)}, 3\ns_and_b32 {s(sT2)}, {s(sT2)}, 7')
            P(f's_cmp_lt_u32 {s(sX)}, 4\ns_cselect_b32 {s(sT2)}, {s(sT2)}, 99\ns_cmp_ge_u32 {s(sKK)}, 16\ns_cselect_b32 {s(sT2)}, {s(sT2)}, 99')
        else:
            P(f's_sub_u32 {s(sT2)}, {s(sKK)}, 16\ns_mov_b32 {s(sT1B)}, {s(sX)}')
        P(f's_and_b32 {s(sT0)}, {s(sT2)}, 1\ns_lshl_b32 {s(sT0)}, {s(sT0)}, 10\ns_lshl_b32 {s(sT1)}, {s(sT1B)}, 7\ns_add_u32 {s(sT1)}, {s(sT1)}, {s(sT0)}\ns_lshr_b32 {s(sT0)}, {s(sT2)}, 1\ns_lshl_b32 {s(sO2)}, {s(sJ)}, 7')
        P('s_waitcnt lgkmcnt(0)')
        if cfg.t1first:
            assert not cfg.tearly
            P(f's_cmp_eq_u32 {s(sW)}, 4\ns_cbranch_scc1 L_ISW4\ns_cmp_lt_u32 {s(sT2)}, 8\ns_cbranch_scc0 L_B0\ns_barrier\ns_branch L_B0\nL_ISW4:')
        else: P(f's_cmp_eq_u32 {s(sW)}, 4\ns_cbranch_scc0 L_B0')
        if cfg.b0late: P('s_setprio 3')
        P(f's_cmp_lt_u32 {s(sT2)}, 8\ns_cbranch_scc0 L_XLD')
        stamp('C0_pre')
        modtile_issue(sT0, sT1)
        stamp('C0_t1i')
        if cfg.t1first: P('s_barrier')
        P('L_XLD:')
        srd(SRD_C, pX, 1024)
        P(f'buffer_load_dwordx4 {v(vXF,4)}, {v(vL16)}, {S(SRD_C)}, 0 offen')
        P(f'buffer_load_dword {v(vXS)}, {v(vXA)}, {S(SRD_C)}, {s(sO2)} offen')
        if cfg.wq0 == 2:
            P(f's_cmp_lt_u32 {s(sT2)}, 8\ns_cbranch_scc1 L_NOWQ0')
            wq_issue()
            P('L_NOWQ0:')
        elif cfg.wq0: wq_issue()
    if not cfg.split0: cpre()
    else: assert cfg.b0late
    if not cfg.split0:
        P('L_B0:')
        if not cfg.b0late: P('s_barrier')
        P(f's_cmp_ge_u32 {s(sW)}, 4\ns_cbranch_scc1 L_CW')

    if not cfg.split0: srd(SRD_K, sKP, 32 << 20)
    sTL, sRS, sTL0 = sG, sG+1, sG+2
    P(f's_mul_i32 {s(sTL0)}, {s(sH)}, {cfg.th}\ns_and_b32 {s(sTL0)}, {s(sTL0)}, 7\ns_lshl_b32 {s(sTL0)}, {s(sTL0)}, 17')
    def firsttile():
        P(f's_mov_b32 {s(sTL)}, {s(sTL0)}\ns_mov_b32 {s(sRS)}, {s(sO3)}\ns_add_u32 {s(sO1)}, {s(sO0)}, {s(sTL)}\ns_add_u32 {s(sO1)}, {s(sO1)}, {s(sRS)}')
    def nexttile():
        P(f's_add_u32 {s(sTL)}, {s(sTL)}, 0x20000\ns_and_b32 {s(sTL)}, {s(sTL)}, 0xe0000\ns_add_u32 {s(sRS)}, {s(sRS)}, {cfg.rot << 12}\ns_and_b32 {s(sRS)}, {s(sRS)}, 0x1f000\ns_add_u32 {s(sO1)}, {s(sO0)}, {s(sTL)}\ns_add_u32 {s(sO1)}, {s(sO1)}, {s(sRS)}')
    firsttile()
    P(f's_lshl_b32 {s(sT0)}, {s(sW)}, 15\ns_mov_b32 m0, {s(sT0)}\ns_mov_b32 {s(sT1)}, 0')
    if cfg.split0:
        P('s_waitcnt lgkmcnt(0)')
        srd(SRD_K, sKP, 32 << 20)
        if cfg.t1first: P(f's_sub_u32 {s(sT2)}, {s(sKK)}, 16\ns_cmp_lt_u32 {s(sT2)}, 8\ns_cbranch_scc0 L_NOT1B\ns_barrier\nL_NOT1B:')
    stamp('L_k0')
    vV = 128
    def streamK(ds, sfx):
        DK = ds[0]
        P(f'L_KLOOP{sfx}:')
        for i in range(4):
            if cfg.ksplit and i: P(f's_add_u32 m0, {s(sT0)}, {768*i}')
            P(f's_waitcnt vmcnt({DK-1})')
            P(f'buffer_load_dwordx4 {v(vKA+i)}, {S(SRD_K)}, {s(sO1)} offen offset:{(256 if cfg.ksplit else 1024)*i} {cfg.kpol} lds')
        if cfg.b0late: P(f's_cmp_eq_u32 {s(sT1)}, 0\ns_cbranch_scc0 L_KL2{sfx}\ns_barrier\nL_KL2{sfx}:')
        nexttile()
        P(f's_add_u32 {s(sT0)}, {s(sT0)}, 4096\ns_mov_b32 m0, {s(sT0)}\ns_add_u32 {s(sT1)}, {s(sT1)}, 1\ns_cmp_lt_u32 {s(sT1)}, 8\ns_cbranch_scc1 L_KLOOP{sfx}')
    def streamV(ds, sfx):
        DK = ds[0]
        def DV(idx): return ds[0] if idx < ds[1] else ds[2]
        stamp('L_kissued')
        srd(SRD_V, sVP, 32 << 20)
        firsttile()
        P(f's_lshl_b32 {s(sT0)}, {s(sW)}, 3\ns_add_u32 {s(sT0)}, {s(sT0)}, {hex(L_FLAG)}\nv_mov_b32 {v(vT)}, {s(sT0)}\nv_mov_b32 {v(vT+1)}, 1')
        for idx in range(32):
            t, i = idx >> 2, idx & 3
            P(f's_waitcnt vmcnt({DV(idx)-1})')
            if idx == DK - 1:
                P(f'ds_write_b32 {v(vT)}, {v(vT+1)}')
                stamp('L_klanded')
            P(f'buffer_load_dwordx4 {v(vV+4*idx,4)}, {v(vVA)}, {S(SRD_V)}, {s(sO1)} offen offset:{256*i} {cfg.vpol}')
            if i == 3 and t < 7: nexttile()
    def stream(ds, sfx):
        streamK(ds, sfx); streamV(ds, sfx)
    if cfg.dvar:
        P(f's_getreg_b32 {s(sT2)}, hwreg(HW_REG_XCC_ID, 0, 3)')
        P(f's_bitcmp1_b32 {s(sT2)}, 2\ns_cbranch_scc1 L_STH')
        P(f's_bitcmp1_b32 {s(sT2)}, 0\ns_cbranch_scc1 L_ST1')
        stream(cfg.dvar[0], 'a'); P('s_branch L_STD\nL_ST1:')
        stream(cfg.dvar[1], 'b'); P('s_branch L_STD\nL_STH:')
        P(f's_bitcmp1_b32 {s(sT2)}, 0\ns_cbranch_scc1 L_ST3')
        stream(cfg.dvar[2], 'c'); P('s_branch L_STD\nL_ST3:')
        stream(cfg.dvar[3], 'd')
        P('L_STD:')
    elif cfg.dodd:
        P(f's_getreg_b32 {s(sT2)}, hwreg(HW_REG_XCC_ID, 0, 1)\ns_cmp_eq_u32 {s(sT2)}, 1\ns_cbranch_scc1 L_STO')
        stream(cfg.dsched, 'a'); P('s_branch L_STD\nL_STO:')
        stream(cfg.dodd, 'b')
        P('L_STD:')
    elif cfg.lay2:
        streamK(cfg.dsched, '')
        P('s_branch L_VPART')
        P('L_CPRE:')
        code_prefetch(7)
        cpre()
        P('L_B0:\ns_branch L_CW\nL_VPART:')
        streamV(cfg.dsched, '')
    else: stream(cfg.dsched, '')
    stamp('L_vissued')
    def masks(pk=False):
        P(f'v_and_b32 {v(vT)}, 1, {v(vL)}\nv_lshlrev_b32 {v(vT)}, 4, {v(vT)}\nv_mov_b32 {v(vT+1)}, 0xffff\nv_lshlrev_b32 {v(vT+1)}, {v(vT)}, {v(vT+1)}')
        P(f'v_bfe_u32 {v(vT)}, {v(vL)}, 1, 2')
        for w in range(4):
            P(f'v_cmp_eq_u32 vcc, {w}, {v(vT)}\nv_cndmask_b32 {v(vM+w)}, 0, {v(vT+1)}, vcc')
            if pk and cfg.pkand: P(f'v_cndmask_b32 {v(vF+w)}, 0, 1.0, vcc')
        if pk and cfg.pkand: P(f'v_mov_b32 {v(vHM)}, {v(vT+1)}')
    def common_setup():
        P(f's_load_dword {s(sTAG)}, {s(sWSP,2)}, 0')
        srd(SRD_WS, sWSP, WS_BYTES)
        masks(True)
    masks()
    vPA, vOA, vP, vA, vD = 13, 14, 16, 48, 56
    P(f'v_lshrrev_b32 {v(vT)}, 4, {v(vL)}\nv_lshlrev_b32 {v(vT)}, 4, {v(vT)}\ns_lshl_b32 {s(sT0)}, {s(sW)}, 9\ns_add_u32 {s(sT0)}, {s(sT0)}, {hex(L_P)}\nv_add_u32 {v(vPA)}, {s(sT0)}, {v(vT)}')
    P(f's_add_u32 {s(sT0)}, {s(sT0)}, {hex(L_OP - L_P)}\nv_lshlrev_b32 {v(vT)}, 3, {v(vL)}\nv_add_u32 {v(vOA)}, {s(sT0)}, {v(vT)}')
    P('s_waitcnt lgkmcnt(0)')
    P('s_barrier')
    stamp('L_b1')
    for t in range(8): P(f'ds_read_b128 {v(vP+4*t,4)}, {v(vPA)} offset:{64*t}')
    P('s_waitcnt lgkmcnt(7)')
    afrag(vA, vP)
    for idx in range(32):
        if idx + 1 < 32:
            if (idx + 1) % 4 == 0: P(f's_waitcnt lgkmcnt({7 - (idx+1)//4})')
            afrag(vA + 4*((idx+1) & 1), vP + idx + 1)
        P(f's_waitcnt vmcnt({31-idx})')
        mfma(vD, vA + 4*(idx & 1), vV + 4*idx, first=(idx == 0))
    stamp('L_pv')
    P(f'v_permlane32_swap_b32 {v(vD)}, {v(vD+2)}\nv_permlane32_swap_b32 {v(vD+1)}, {v(vD+3)}')
    P(f'ds_write_b64 {v(vOA)}, {v(vD,2)}')
    P('s_waitcnt lgkmcnt(0)')
    P('s_barrier')
    P('s_endpgm' if not cfg.diag else 's_branch L_END')

    if cfg.split0 and not cfg.lay2:
        P('L_CPRE:')
        code_prefetch(7)
        cpre()
        P('L_B0:')
    P('L_CW:')
    if cfg.gprobe and cfg.gprobe[0] in 'MR':
        P(f's_waitcnt lgkmcnt(0)\ns_mov_b32 s96, {s(sWSP)}\ns_mov_b32 s97, {s(sWSP+1)}\ns_mov_b32 s98, {hex(WS_BYTES)}\ns_mov_b32 s99, 0x20000')
        P(f's_lshl_b32 s100, {s(sB)}, 2\ns_and_b32 s101, {s(sW)}, 3\ns_add_u32 s100, s100, s101\ns_lshl_b32 s100, s100, 3\ns_add_u32 s100, s100, {hex(DIAG)}')
        P(f's_mov_b64 exec, 1\nv_mov_b32 v254, {s(sDIAG)}\nv_mov_b32 v255, {s(sDIAG)}\nv_mov_b32 v253, 0\nbuffer_store_dwordx2 v[254:255], v253, s[96:99], s100 offen sc1\ns_mov_b64 exec, -1\ns_waitcnt vmcnt(0)')
    if cfg.b0late: P('s_barrier')
    if cfg.prio: P(f's_setprio {cfg.prio}')
    P(f's_cmp_eq_u32 {s(sW)}, 4\ns_cbranch_scc0 L_C123')
    vGA = 192
    common_setup()
    P('s_waitcnt lgkmcnt(0)')
    P(f's_add_u32 {s(sTAG)}, {s(sTAG)}, 1')
    if cfg.local:
        P(f's_getreg_b32 {s(sLOC)}, hwreg(HW_REG_XCC_ID, 0, 3)\ns_lshl_b32 {s(sT0)}, {s(sTAG)}, 3\ns_or_b32 {s(sLOC)}, {s(sLOC)}, {s(sT0)}')
        P(f's_lshl_b32 {s(sO3)}, {s(sH)}, 7\ns_add_u32 {s(sO3)}, {s(sO3)}, {hex(X0)}\ns_lshl_b32 {s(sT0)}, {s(sJ)}, 2\ns_add_u32 {s(sT0)}, {s(sT0)}, {s(sO3)}\nv_mov_b32 {v(vT)}, {s(sT0)}\nv_mov_b32 {v(vT+1)}, {s(sLOC)}')
        P(f's_lshl_b32 {s(sR)}, {s(sX)}, 3\ns_lshr_b32 {s(sT0)}, {s(sKK)}, 2\ns_add_u32 {s(sR)}, {s(sR)}, {s(sT0)}\ns_lshl_b32 {s(sR)}, {s(sR)}, 7\ns_add_u32 {s(sR)}, {s(sR)}, {hex(X0B)}')
        P(f's_and_b32 {s(sT0)}, {s(sKK)}, 3\ns_lshl_b32 {s(sT0)}, {s(sT0)}, 2\ns_add_u32 {s(sT0)}, {s(sT0)}, {s(sR)}\nv_writelane_b32 {v(vT)}, {s(sT0)}, 1')
        P(f's_lshl_b32 {s(sT0)}, {s(sX)}, 7\ns_lshl_b32 {s(sO2)}, {s(sKK)}, 2\ns_add_u32 {s(sT0)}, {s(sT0)}, {s(sO2)}\ns_add_u32 {s(sT0)}, {s(sT0)}, {hex(X0C)}\nv_writelane_b32 {v(vT)}, {s(sT0)}, 2')
        if cfg.mlat:
            P(f's_lshl_b32 {s(sT0)}, {s(sH)}, 7\ns_lshl_b32 {s(sO2)}, {s(sJ)}, 3\ns_add_u32 {s(sT0)}, {s(sT0)}, {s(sO2)}\ns_add_u32 {s(sT0)}, {s(sT0)}, {hex(X3)}\nv_writelane_b32 {v(vT)}, {s(sT0)}, 3')
            P(f's_add_u32 {s(sT0)}, {s(sT0)}, 4\nv_writelane_b32 {v(vT)}, {s(sT0)}, 4\nv_writelane_b32 {v(vT+1)}, 0, 3\nv_writelane_b32 {v(vT+1)}, 0, 4')
        setexec(31 if cfg.mlat else 7)
        P(f'buffer_store_dword {v(vT+1)}, {v(vT)}, {S(SRD_WS)}, 0 offen sc1')
        setexec(ALL)
    P(f's_cmp_lt_u32 {s(sT2)}, 8\ns_cbranch_scc0 L_NOT1')
    P(f's_lshl_b32 {s(sO2)}, {s(sT1B)}, 3\ns_add_u32 {s(sO2)}, {s(sO2)}, {s(sT2)}\ns_lshl_b32 {s(sO2)}, {s(sO2)}, 9\ns_add_u32 {s(sO2)}, {s(sO2)}, {hex(X1)}')
    modtile_compute((18 if cfg.wq0 == 1 else 2) + cfg.local, sO2)
    if cfg.hint:
        P(f's_lshl_b32 {s(sO2)}, {s(sT1B)}, 9\ns_lshl_b32 {s(sT0)}, {s(sT2)}, 2\ns_add_u32 {s(sO2)}, {s(sO2)}, {s(sT0)}\ns_add_u32 {s(sO2)}, {s(sO2)}, {hex(X1F)}\nv_lshlrev_b32 {v(vT)}, 7, {v(vL)}')
        setexec(0xf)
        P(f'buffer_store_dword {v(vD0+2)}, {v(vT)}, {S(SRD_WS)}, {s(sO2)} offen sc1')
        setexec(ALL)
    stamp('C0_x1pub')
    if cfg.wq0 != 1: wq_issue()
    P('s_branch L_T1D')
    P('L_NOT1:')
    if not cfg.wq0: wq_issue()
    P('L_T1D:')
    vx = 64
    P(f's_waitcnt vmcnt({16 + (cfg.local if cfg.wq0 == 1 else 0)})')
    for k in range(4): unpack(vx+2*k, vx+2*k+1, vXF+k)
    P(f'v_add_f32 {v(20)}, {v(vx)}, {v(vx+1)}\nv_add_f32 {v(21)}, {v(vx+2)}, {v(vx+3)}\nv_add_f32 {v(22)}, {v(vx+4)}, {v(vx+5)}\nv_add_f32 {v(23)}, {v(vx+6)}, {v(vx+7)}')
    P(f'v_add_f32 {v(20)}, {v(20)}, {v(21)}\nv_add_f32 {v(22)}, {v(22)}, {v(23)}\nv_add_f32 {v(20)}, {v(20)}, {v(22)}')
    wave_reduce('v_add_f32', [20])
    P(f'v_mul_f32 {v(20)}, {R512}, {v(20)}\nv_readlane_b32 {s(sT0)}, {v(20)}, 63')
    for k in range(8): P(f'v_subrev_f32 {v(vx+k)}, {s(sT0)}, {v(vx+k)}')
    P(f'v_mul_f32 {v(21)}, {v(vx)}, {v(vx)}')
    for k in range(1, 8): P(f'v_fmac_f32 {v(21)}, {v(vx+k)}, {v(vx+k)}')
    wave_reduce('v_add_f32', [21])
    P(f'v_mul_f32 {v(21)}, {R512}, {v(21)}')
    P(f'v_cvt_pk_bf16_f32 {v(22)}, {v(20)}, {v(21)}')
    P(f'v_and_b32 {v(21)}, 0xffff0000, {v(22)}\nv_lshlrev_b32 {v(20)}, 16, {v(22)}\nv_add_f32 {v(21)}, {EPS}, {v(21)}')
    rnd(21); P(f'v_sqrt_f32 {v(21)}, {v(21)}'); rnd(21); P(f'v_rcp_f32 {v(22)}, {v(21)}')
    P(f'v_readlane_b32 {s(sT0)}, {v(20)}, 63\nv_readlane_b32 {s(sT1)}, {v(21)}, 63\nv_readlane_b32 {s(sT2)}, {v(22)}, 63')
    vLN = 24
    unpack(vLN, vLN+1, vXS)
    for e in range(2): P(f'v_subrev_f32 {v(vLN+e)}, {s(sT0)}, {v(vLN+e)}')
    P(f'v_cvt_pk_bf16_f32 {v(20)}, {v(vLN)}, {v(vLN+1)}'); unpack(vLN, vLN+1, 20)
    for e in range(2): P(f'v_mul_f32 {v(20+e)}, {s(sT2)}, {v(vLN+e)}')
    for e in range(2): P(f'v_fma_f32 {v(vLN+e)}, -{v(20+e)}, {s(sT1)}, {v(vLN+e)}')
    for e in range(2): P(f'v_fma_f32 {v(vLN+e)}, {v(vLN+e)}, {s(sT2)}, {v(20+e)}')
    P(f'v_cvt_pk_bf16_f32 {v(20)}, {v(vLN)}, {v(vLN+1)}'); unpack(vLN, vLN+1, 20)
    P(f'v_bfe_u32 {v(vT)}, {v(vL)}, 3, 1\nv_lshlrev_b32 {v(vT)}, 9, {v(vT)}\nv_add_u32 {v(26)}, {v(vPUB)}, {v(vT)}')
    P(f's_lshl_b32 {s(sO0)}, {s(sJ)}, 12\ns_add_u32 {s(sO0)}, {s(sO0)}, {hex(X1)}')
    if cfg.hint:
        P(f's_lshl_b32 {s(sT0)}, {s(sJ)}, 2\ns_and_b32 {s(sT1)}, {s(sH)}, 3\ns_add_u32 {s(sT0)}, {s(sT0)}, {s(sT1)}\ns_lshl_b32 {s(sT0)}, {s(sT0)}, 7\ns_add_u32 {s(sT0)}, {s(sT0)}, {hex(X1F)}')
        hint_wait('h1h', sT0)
    else: P('s_waitcnt vmcnt(0)')
    if cfg.local:
        P(f's_add_u32 {s(sMASK)}, {s(sWSP)}, {s(sO3)}\ns_addc_u32 {s(sMASK+1)}, {s(sWSP+1)}, 0')
        P(f's_load_dwordx8 {s(sG,8)}, {s(sMASK,2)}, 0 glc')
        P(f's_load_dwordx4 s[8:11], {s(sWSP,2)}, {s(sR)} glc')
    stamp('C0_wq')
    if cfg.sleep1: P(f's_sleep {cfg.sleep1}')
    def issue():
        for k in range(4): P(f'buffer_load_dwordx4 {v(vGA+4*k,4)}, {v(26)}, {S(SRD_WS)}, {s(sO0)} offen offset:{1024*k} sc1')
    tagcheck_loop(issue, [vGA+4*k+2 for k in range(4)], 'h1')
    stamp('C0_h1')
    if cfg.local:
        P('s_waitcnt lgkmcnt(0)')
        P(f's_xor_b32 {s(sG)}, {s(sG)}, {s(sLOC)}')
        for k in range(1, 8): P(f's_xor_b32 {s(sG+k)}, {s(sG+k)}, {s(sLOC)}\ns_or_b32 {s(sG)}, {s(sG)}, {s(sG+k)}')
        P(f's_cselect_b32 {s(sT0)}, 0, 1')
        P(f's_xor_b32 s8, s8, {s(sLOC)}')
        for k in range(1, 4): P(f's_xor_b32 {s(8+k)}, {s(8+k)}, {s(sLOC)}\ns_or_b32 s8, s8, {s(8+k)}')
        P(f's_cselect_b32 {s(sR)}, 0, 1\ns_mov_b32 {s(sLOC)}, {s(sT0)}')
    b = vGA
    for e in range(2): P(f'v_add_f32 {v(b+e)}, {v(b+e)}, {v(b+4+e)}\nv_add_f32 {v(b+8+e)}, {v(b+8+e)}, {v(b+12+e)}')
    for e in range(2): P(f'v_add_f32 {v(b+e)}, {v(b+e)}, {v(b+8+e)}')
    P(f'v_cvt_pk_bf16_f32 {v(b+4)}, {v(b)}, {v(b+1)}\nv_mov_b32 {v(b+5)}, {v(b+4)}')
    P(f'v_mov_b32_dpp {v(b+4)}, {v(b+5)} row_ror:8 row_mask:0xf bank_mask:0xc')
    P(f'v_mov_b32_dpp {v(b+5)}, {v(b+5)} row_ror:8 row_mask:0xf bank_mask:0x3')
    unpack(b+8, b+9, b+4); unpack(b+6, b+7, b+5)
    P(f'v_add_f32 {v(b+6)}, 1.0, {v(b+6)}\nv_add_f32 {v(b+7)}, 1.0, {v(b+7)}\nv_cvt_pk_bf16_f32 {v(b+5)}, {v(b+6)}, {v(b+7)}')
    unpack(b+6, b+7, b+5)
    P(f'v_mul_f32 {v(b+6)}, {v(b+6)}, {v(vLN)}\nv_mul_f32 {v(b+7)}, {v(b+7)}, {v(vLN+1)}\nv_cvt_pk_bf16_f32 {v(b+5)}, {v(b+6)}, {v(b+7)}')
    unpack(b+6, b+7, b+5)
    P(f'v_add_f32 {v(b+6)}, {v(b+6)}, {v(b+8)}\nv_add_f32 {v(b+7)}, {v(b+7)}, {v(b+9)}')
    vH = 20
    P(f'v_cvt_pk_bf16_f32 {v(vH)}, {v(b+6)}, {v(b+6)}\nv_cvt_pk_bf16_f32 {v(vH+1)}, {v(b+7)}, {v(b+7)}')
    P(f's_lshl_b32 {s(sO1)}, {s(sH)}, 13\ns_add_u32 {s(sO1)}, {s(sO1)}, {hex(X2)}\ns_lshl_b32 {s(sO0)}, {s(sJ)}, 10\ns_add_u32 {s(sO0)}, {s(sO0)}, {s(sO1)}\ns_add_u32 {s(sO2)}, {s(sO1)}, 4096')
    chain(vD0, 16, [vWQ+4*i for i in range(16)], [(vH + (i & 1), f'row_newbcast:{i >> 1}') for i in range(16)], vAA)
    finish1(vD0)
    publish_loc(vD0, vL16, sO0)
    if cfg.hint:
        P(f's_lshl_b32 {s(sO3)}, {s(sH)}, 7\ns_add_u32 {s(sO3)}, {s(sO3)}, {hex(X2F)}\nv_mov_b32 {v(vT)}, 0\ns_lshl_b32 {s(sT0)}, {s(sJ)}, 2\ns_add_u32 {s(sT0)}, {s(sT0)}, {s(sO3)}')
        setexec(1)
        P(f'buffer_store_dword {v(vD0+2)}, {v(vT)}, {S(SRD_WS)}, {s(sT0)} offen sc1')
        setexec(ALL)
    stamp('C0_x2pub')
    P(f'v_bfe_u32 {v(vT)}, {v(vL)}, 4, 1\nv_lshrrev_b32 {v(vT+1)}, 5, {v(vL)}\nv_lshl_add_u32 {v(vT)}, {v(vT)}, 1, {v(vT+1)}\nv_and_b32 {v(vT+1)}, 15, {v(vL)}\nv_lshl_add_u32 {v(vT)}, {v(vT+1)}, 2, {v(vT)}')
    P(f'v_lshlrev_b32 {v(vT)}, 2, {v(vT)}\nv_add_u32 {v(26)}, {hex(L_Q)}, {v(vT)}')
    P(f'v_and_b32 {v(27)}, 3, {v(vL)}\nv_lshlrev_b32 {v(27)}, 3, {v(27)}\nv_add_u32 {v(27)}, {hex(L_FLAG + 4)}, {v(27)}\nv_mov_b32 {v(25)}, 1')
    if cfg.hint: hint_wait('qh', sO3)
    stamp('C0_qh')
    if cfg.sleep2: P(f's_sleep {cfg.sleep2}')
    def gather8(base_lo, base_hi):
        def issue():
            for k in range(8):
                P(f'buffer_load_dwordx4 {v(vGA+4*k,4)}, {v(vL16)}, {S(SRD_WS)}, {s(base_lo if k < 4 else base_hi)} offen offset:{1024*(k & 3)} sc1')
        return issue
    def sum8():
        for a, b2 in ((0, 1), (2, 3), (4, 5), (6, 7), (0, 2), (4, 6), (0, 4)):
            for e in (0, 1): P(f'v_add_f32 {v(vGA+4*a+e)}, {v(vGA+4*a+e)}, {v(vGA+4*b2+e)}')
    tagcheck_loop(gather8(sO1, sO2), [vGA+4*k+2 for k in range(8)], 'q')
    stamp('C0_q')
    sum8()
    P(f'v_cvt_pk_bf16_f32 {v(vT)}, {v(vGA)}, {v(vGA+1)}')
    P(f'ds_write_b32 {v(26)}, {v(vT)}')
    P(f'ds_write_b32 {v(27)}, {v(25)}')
    vg, vXv, vGAv, vGBv, vU16, vDA, vXC, vL16r, vBP, sJJ, sP, sB4, sD = 64, 12, 13, 14, 15, 17, 20, 16, 18, sG, 4, 12, 8
    def vda():
        if cfg.par is None: P(f'v_lshrrev_b32 {v(vT)}, 2, {v(vL)}\nv_lshl_add_u32 {v(vDA)}, {v(vT)}, 12, {v(vU16)}')
        else: P(f'v_lshrrev_b32 {v(vT)}, 4, {v(vL)}\nv_lshl_add_u32 {v(vDA)}, {v(vT)}, 14, {v(vU16)}\nv_bfe_u32 {v(vT)}, {v(vL)}, 2, 2\nv_lshl_add_u32 {v(vDA)}, {v(vT)}, 11, {v(vDA)}')
    def red_addr():
        par_read(19)
        par_use(19)
        if X4NEAR:
            P(f's_lshr_b32 {s(sT0)}, {s(sJJ)}, 2\ns_lshl_b32 {s(sT0)}, {s(sT0)}, 14\ns_and_b32 {s(sT1)}, {s(sJJ)}, 3\ns_lshl_b32 {s(sT1)}, {s(sT1)}, 11\ns_add_u32 {s(sT0)}, {s(sT0)}, {s(sT1)}\ns_add_u32 {s(sT0)}, {s(sT0)}, {s(sNEAR)}')
            for p_ in range(4): P(f's_add_u32 {s(sP+p_)}, {s(sT0)}, {hex(X4N + p_*32768)}')
        if cfg.par is None:
            P(f's_lshl_b32 {s(sO0)}, {s(sJJ)}, 14\ns_add_u32 {s(sO0)}, {s(sO0)}, {hex(XB)}')
            if cfg.xbrep: P(f's_lshl_b32 {s(sT1)}, {s(sX)}, 17\ns_add_u32 {s(sO0)}, {s(sO0)}, {s(sT1)}')
            for k in range(4): P(f's_add_u32 {s(sB4+k)}, {s(sO0)}, {4096*k}')
        else:
            P(f's_lshl_b32 {s(sO0)}, {s(sJJ)}, 15\ns_add_u32 {s(sO0)}, {s(sO0)}, {s(sNEAR)}\ns_add_u32 {s(sO0)}, {s(sO0)}, {hex(XB2)}')
            for k, o in enumerate((0, 4096, 16384, 20480)): P(f's_add_u32 {s(sB4+k)}, {s(sO0)}, {o}')
        P(f's_lshr_b32 {s(sO3)}, {s(sX)}, 1\ns_lshl_b32 {s(sO3)}, {s(sO3)}, 14\ns_and_b32 {s(sT0)}, {s(sX)}, 1\ns_lshl_b32 {s(sT0)}, {s(sT0)}, 12\ns_add_u32 {s(sO3)}, {s(sO3)}, {s(sT0)}\ns_add_u32 {s(sO3)}, {s(sO3)}, {hex(XC)}')
        P(f's_lshl_b32 {s(sT1)}, {s(sJJ)}, 9\ns_add_u32 {s(sO3)}, {s(sO3)}, {s(sT1)}')
        if cfg.nearloc: P(f's_add_u32 {s(sO3)}, {s(sO3)}, {s(sNEAR)}')
        if cfg.par is not None:
            P(f's_lshr_b32 {s(sO2)}, {s(sJJ)}, 1\ns_lshl_b32 {s(sO2)}, {s(sO2)}, 9\ns_and_b32 {s(sT1)}, {s(sJJ)}, 1\ns_lshl_b32 {s(sT1)}, {s(sT1)}, 7\ns_add_u32 {s(sO2)}, {s(sO2)}, {s(sT1)}')
            P(f's_and_b32 {s(sT1)}, {s(sX)}, 1\ns_lshl_b32 {s(sT1)}, {s(sT1)}, 6\ns_add_u32 {s(sO2)}, {s(sO2)}, {s(sT1)}\ns_and_b32 {s(sT1)}, {s(sX)}, 2\ns_lshl_b32 {s(sT1)}, {s(sT1)}, 7\ns_add_u32 {s(sO2)}, {s(sO2)}, {s(sT1)}\ns_add_u32 {s(sO2)}, {s(sO2)}, {s(sNEAR)}\ns_add_u32 {s(sO2)}, {s(sO2)}, {hex(XD)}')
        if cfg.par is None:
            P(f's_lshr_b32 {s(sO2)}, {s(sJJ)}, 1\ns_lshl_b32 {s(sO2)}, {s(sO2)}, 10\ns_and_b32 {s(sT1)}, {s(sJJ)}, 1\ns_lshl_b32 {s(sT1)}, {s(sT1)}, 7\ns_add_u32 {s(sO2)}, {s(sO2)}, {s(sT1)}')
            P(f's_and_b32 {s(sT1)}, {s(sX)}, 1\ns_lshl_b32 {s(sT1)}, {s(sT1)}, 6\ns_add_u32 {s(sO2)}, {s(sO2)}, {s(sT1)}\ns_lshr_b32 {s(sT1)}, {s(sX)}, 1\ns_lshl_b32 {s(sT1)}, {s(sT1)}, 8\ns_add_u32 {s(sO2)}, {s(sO2)}, {s(sT1)}\ns_add_u32 {s(sO2)}, {s(sO2)}, {hex(XD)}')
        for k in range(3): P(f's_add_u32 {s(sD+k)}, {s(sO2)}, {hex(65536*k)}')
    def red_setup():
        P(f's_sub_u32 {s(sT0)}, {s(sKK)}, 8')
        P(f's_mov_b32 {s(sJJ)}, {s(sT0)}\ns_lshl_b32 {s(sR)}, {s(sX)}, 3\ns_add_u32 {s(sR)}, {s(sR)}, {s(sT0)}')
        if cfg.local:
            P(f's_lshl_b32 {s(sT1)}, {s(sX)}, 7\ns_add_u32 {s(sT1)}, {s(sT1)}, {hex(X0C)}\ns_add_u32 {s(sMASK)}, {s(sWSP)}, {s(sT1)}\ns_addc_u32 {s(sMASK+1)}, {s(sWSP+1)}, 0')
            P(f's_load_dwordx16 s[4:19], {s(sMASK,2)}, 0 glc\ns_load_dwordx16 s[20:35], {s(sMASK,2)}, 64 glc')
            P(f's_getreg_b32 {s(sLOC)}, hwreg(HW_REG_XCC_ID, 0, 3)\ns_lshl_b32 {s(sT1)}, {s(sTAG)}, 3\ns_or_b32 {s(sLOC)}, {s(sLOC)}, {s(sT1)}')
        P(f'v_lshlrev_b32 {v(vL16r)}, 4, {v(vL)}\nv_and_b32 {v(vU16)}, 3, {v(vL)}\nv_lshlrev_b32 {v(vU16)}, 4, {v(vU16)}')
        P(f'v_and_b32 {v(vT)}, 7, {v(vL)}\nv_lshlrev_b32 {v(vT)}, 4, {v(vT)}\nv_bfe_u32 {v(vT+1)}, {v(vL)}, 3, 1\nv_lshl_add_u32 {v(vT)}, {v(vT+1)}, 3, {v(vT)}\nv_bfe_u32 {v(vT+1)}, {v(vL)}, 4, 1\nv_lshl_add_u32 {v(vT)}, {v(vT+1)}, 2, {v(vT)}\nv_lshrrev_b32 {v(vT+1)}, 5, {v(vL)}\nv_lshl_add_u32 {v(vT+2)}, {v(vT+1)}, 1, {v(vT)}')
        P(f'v_bfe_u32 {v(vT)}, {v(vL)}, 4, 1\nv_lshlrev_b32 {v(vT)}, 7, {v(vT)}\nv_lshrrev_b32 {v(vT+1)}, 2, {v(vU16)}\nv_add_u32 {v(vBP)}, {v(vT)}, {v(vT+1)}\ns_lshl_b32 {s(sT1)}, {s(sX)}, 4\nv_add_u32 {v(vBP)}, {s(sT1)}, {v(vBP)}')
        vda()
        if cfg.local:
            P('s_waitcnt lgkmcnt(0)')
            P(f's_xor_b32 s4, s4, {s(sLOC)}')
            for k in range(5, 36): P(f's_xor_b32 {s(k)}, {s(k)}, {s(sLOC)}\ns_or_b32 s4, s4, {s(k)}')
            P(f's_cselect_b32 {s(sLOC)}, 0, 1')
            srd(SRD_WS, sWSP, WS_BYTES)
        srd(SRD_A, pX, 1024); srd(SRD_B, pOUT, 1024)
        P(f's_lshl_b32 {s(sT1)}, {s(sJJ)}, 7')
        P(f'buffer_load_ushort {v(vXv)}, {v(vT+2)}, {S(SRD_A)}, {s(sT1)} offen')
        P(f's_and_b32 {s(sT2)}, {s(sX)}, 1\ns_lshl_b32 {s(sT2)}, {s(sT2)}, 6\ns_add_u32 {s(sT1)}, {s(sT1)}, {s(sT2)}\ns_and_b32 {s(sT2)}, {s(sX)}, 2\ns_lshl_b32 {s(sT2)}, {s(sT2)}, 2\ns_add_u32 {s(sT1)}, {s(sT1)}, {s(sT2)}\ns_and_b32 {s(sT2)}, {s(sX)}, 4\ns_add_u32 {s(sG+2)}, {s(sT1)}, {s(sT2)}')
        if not X4NEAR:
            for p_ in range(4): P(f's_lshl_b32 {s(sP+p_)}, {s(sJJ)}, 11\ns_add_u32 {s(sP+p_)}, {s(sP+p_)}, {hex(X4 + p_*16384)}')
        for i in range(cfg.pipe.get('xd', 1)):
            for k in range(3): P(f'v_mov_b32 {v(192+12*i+8+k)}, {s(sTAG) if k == 2 else 0}')
    def x4_issue():
        for k in range(8): P(f'buffer_load_dwordx4 {v(vg+4*k,4)}, {v(vL16r)}, {S(SRD_WS)}, {s(sP + (k >> 1))} offen offset:{1024*(k & 1)} sc1')
    P('L_QKP:')
    vKR, vQ, vKB, vDQ, vS2, vE, vML = 8, 128, 144, 28, 208, 210, 216
    sM2 = sG
    P(f's_sub_u32 {s(sT2)}, {s(sW)}, 4\ns_lshl_b32 {s(sT0)}, {s(sT2)}, 3\ns_add_u32 {s(sT0)}, {s(sT0)}, {hex(L_FLAG)}\nv_mov_b32 {v(vT+2)}, {s(sT0)}')
    P(f'v_and_b32 {v(vT)}, 15, {v(vL)}\nv_lshrrev_b32 {v(vT+1)}, 4, {v(vL)}\nv_lshlrev_b32 {v(26)}, 4, {v(vT+1)}\nv_xor_b32 {v(vT+1)}, {v(vT+1)}, {v(vT)}\nv_lshlrev_b32 {v(vT+1)}, 4, {v(vT+1)}')
    if cfg.ksplit:
        P(f'v_and_b32 {v(vKR)}, 3, {v(vL)}\nv_lshlrev_b32 {v(vKR)}, 10, {v(vKR)}\nv_lshrrev_b32 {v(vT)}, 2, {v(vT)}\nv_lshl_add_u32 {v(vKR)}, {v(vT)}, 8, {v(vKR)}\nv_add_u32 {v(vKR)}, {v(vKR)}, {v(vT+1)}')
    else: P(f'v_lshl_add_u32 {v(vKR)}, {v(vT)}, 8, {v(vT+1)}')
    P(f's_lshl_b32 {s(sT0)}, {s(sT2)}, 15\nv_add_u32 {v(vKR)}, {s(sT0)}, {v(vKR)}')
    for q in range(1, 4): P(f'v_xor_b32 {v(vKR+q)}, {64*q}, {v(vKR)}')
    P(f'v_and_b32 {v(27)}, 7, {v(vL)}\nv_lshl_add_u32 {v(27)}, {v(27)}, 6, {v(26)}\nv_bfe_u32 {v(vT)}, {v(vL)}, 3, 1\nv_lshl_add_u32 {v(27)}, {v(vT)}, 3, {v(27)}')
    P(f's_lshl_b32 {s(sT0)}, {s(sT2)}, 9\ns_add_u32 {s(sT0)}, {s(sT0)}, {hex(L_P)}\nv_add_u32 {v(27)}, {s(sT0)}, {v(27)}\nv_add_u32 {v(26)}, {hex(L_Q)}, {v(26)}')
    P(f's_lshl_b32 {s(sT0)}, {s(sT2)}, 4\ns_add_u32 {s(sT0)}, {s(sT0)}, {hex(L_MS)}\nv_mov_b32 {v(25)}, {s(sT0)}\nv_mov_b32 {v(vML+2)}, 1\nv_mov_b32 {v(vML+3)}, 1')
    P(f's_mov_b32 {s(sMASK)}, 0x00010001\ns_mov_b32 {s(sMASK+1)}, 0x00010001\ns_mov_b32 {s(sM2)}, 0x01000100\ns_mov_b32 {s(sM2+1)}, 0x01000100')
    lds_wait('kq', vT+2, 2, 28, [28, 29], cfg.lsleep)
    stamp('C0_kready')
    for q in range(4): P(f'ds_read_b128 {v(vQ+4*q,4)}, {v(26)} offset:{64*q}')
    NB = 3; PD = NB - 1; NT = 8
    def kread(t, q): P(f'ds_read_b128 {v(vKB+16*(t % NB)+4*q,4)}, {v(vKR+q)} offset:{4096*t}')
    for t in range(PD):
        for q in range(4): kread(t, q)
    for t in range(NT + 1):
        u = t - 1
        for q in range(4):
            if t < NT:
                if q in (0, 2): P(f's_waitcnt lgkmcnt({min(4*PD - 2, 4*(NT - t) - 2 - q)})')
                mfma(vDQ + 4*(t & 1), vKB + 16*(t % NB) + 4*q, vQ + 4*q, first=(q == 0))
                if t + PD < NT: kread(t + PD, q)
            if t >= 1 and q >= 2:
                mk = sMASK if q == 2 else sM2
                for e in range(2):
                    P(f'v_cndmask_b32 {v(vS2+e)}, {v(vS2+e)}, {v(vDQ+4*(u & 1)+2*(q-2)+e)}, {s(mk,2)}')
        if t >= 1 and t < NT: P(f's_lshl_b64 {s(sMASK,2)}, {s(sMASK,2)}, 1\ns_lshl_b64 {s(sM2,2)}, {s(sM2,2)}, 1')
    stamp('C0_qk')
    P(f'v_cvt_pk_bf16_f32 {v(vE)}, {v(vS2)}, {v(vS2+1)}'); unpack(vS2, vS2+1, vE)
    for e in range(2): P(f'v_mul_f32 {v(vS2+e)}, {SCALE}, {v(vS2+e)}')
    P(f'v_cvt_pk_bf16_f32 {v(vE)}, {v(vS2)}, {v(vS2+1)}'); unpack(vS2, vS2+1, vE)
    P(f'v_max_f32 {v(vML)}, {v(vS2)}, {v(vS2+1)}')
    wave_reduce('v_max_f32', [vML])
    P(f'v_readlane_b32 {s(sT0)}, {v(vML)}, 63')
    for e in range(2): P(f'v_subrev_f32 {v(vE+e)}, {s(sT0)}, {v(vS2+e)}')
    for e in range(2): P(f'v_mul_f32 {v(vE+e)}, {LOG2E}, {v(vE+e)}')
    for e in range(2): P(f'v_exp_f32 {v(vE+e)}, {v(vE+e)}')
    P(f'v_add_f32 {v(vML+1)}, {v(vE)}, {v(vE+1)}')
    wave_reduce('v_add_f32', [vML+1])
    setexec(1 << 63)
    P(f'ds_write_b128 {v(25)}, {v(vML,4)}')
    setexec(ALL)
    P(f's_cmp_eq_u32 {s(sW)}, 4\ns_cbranch_scc1 L_C0ML')
    P(f's_cmp_eq_u32 {s(sW)}, 5\ns_cbranch_scc0 L_MLWAIT')
    if cfg.rwait == 4 or cfg.rearly:
        P(f's_sub_u32 {s(sT0)}, {s(sKK)}, 8\ns_cmp_lt_u32 {s(sT0)}, 8\ns_cbranch_scc0 L_NORED')
        red_setup()
        if cfg.rwait == 4: x4_issue()
        P('s_branch L_MLWAIT\nL_NORED:')
    P(f's_cmp_eq_u32 {s(sR)}, 99\ns_cbranch_scc0 L_MLWAIT')
    modtile_compute(0, sO2, X4NEAR)
    P('L_MLWAIT:')
    if cfg.mlpw:
        P(f's_cmp_eq_u32 {s(sW)}, 6\ns_cbranch_scc0 L_NOGL')
        P(f's_mov_b32 {s(sR)}, 0')
        if cfg.local:
            P(f's_lshl_b32 {s(sT0)}, {s(sX)}, 3\ns_lshr_b32 {s(sT1)}, {s(sKK)}, 2\ns_add_u32 {s(sT0)}, {s(sT0)}, {s(sT1)}\ns_lshl_b32 {s(sT0)}, {s(sT0)}, 7\ns_add_u32 {s(sT0)}, {s(sT0)}, {hex(X0B)}')
            P(f's_load_dwordx4 s[8:11], {s(sWSP,2)}, {s(sT0)} glc\ns_getreg_b32 {s(sT1)}, hwreg(HW_REG_XCC_ID, 0, 3)\ns_lshl_b32 {s(sT0)}, {s(sTAG)}, 3\ns_or_b32 {s(sT1)}, {s(sT1)}, {s(sT0)}\ns_waitcnt lgkmcnt(0)')
            P(f's_xor_b32 s8, s8, {s(sT1)}')
            for k in range(1, 4): P(f's_xor_b32 {s(8+k)}, {s(8+k)}, {s(sT1)}\ns_or_b32 s8, s8, {s(8+k)}')
            P(f's_cselect_b32 {s(sR)}, 0, 1')
        P('L_NOGL:')
    if cfg.par == 'dyn':
        P(f's_cmp_eq_u32 {s(sW)}, 7\ns_cbranch_scc0 L_NOPF')
        P(f's_lshl_b32 {s(sT0)}, {s(sX)}, 7\ns_add_u32 {s(sT0)}, {s(sT0)}, {hex(XP)}\ns_lshl_b32 {s(sT1)}, {s(sTAG)}, 1\ns_mov_b32 {s(sSPIN)}, 0')
        P(f'L_PFT:\ns_load_dword s8, {s(sWSP,2)}, {s(sT0)} glc\ns_add_u32 {s(sSPIN)}, {s(sSPIN)}, 1\ns_cmp_gt_u32 {s(sSPIN)}, {cfg.spin}\ns_cbranch_scc1 L_END\ns_waitcnt lgkmcnt(0)')
        P(f's_xor_b32 s9, s8, {s(sT1)}\ns_cmp_lt_u32 s9, 2\ns_cbranch_scc1 L_PFD\ns_sleep 8\ns_branch L_PFT\nL_PFD:')
        P(f's_or_b32 s9, s9, 2\nv_mov_b32 {v(vT)}, {hex(L_PAR)}\nv_mov_b32 {v(vT+1)}, s9\nds_write_b32 {v(vT)}, {v(vT+1)}')
        P('L_NOPF:')
    P(f'v_mov_b32 {v(vT+2)}, {hex(L_ML)}')
    lds_wait('mlw', vT+2, 4, vML, [vML+2], cfg.lsleep)
    P('s_branch L_PCALC')
    P('L_C0ML:')
    P(f'v_and_b32 {v(vT+2)}, 3, {v(vL)}\nv_lshlrev_b32 {v(vT+2)}, 4, {v(vT+2)}\nv_add_u32 {v(vT+2)}, {hex(L_MS)}, {v(vT+2)}')
    P(f's_lshl_b32 {s(sO1)}, {s(sH)}, 7\ns_add_u32 {s(sO1)}, {s(sO1)}, {hex(X3)}\ns_lshl_b32 {s(sO0)}, {s(sJ)}, 4\ns_add_u32 {s(sO0)}, {s(sO0)}, {s(sO1)}')
    lds_wait('msw', vT+2, 4, 220, [222])
    P(f'v_max_f32_dpp {v(vML)}, {v(220)}, {v(220)} quad_perm:[1,0,3,2] row_mask:0xf bank_mask:0xf\nv_mov_b32 {v(vML+2)}, {s(sTAG)}\nv_mov_b32 {v(vML+3)}, {s(sTAG)}')
    P(f'v_max_f32_dpp {v(vML)}, {v(vML)}, {v(vML)} quad_perm:[2,3,0,1] row_mask:0xf bank_mask:0xf')
    P(f'v_sub_f32 {v(220)}, {v(220)}, {v(vML)}\nv_mul_f32 {v(220)}, {LOG2E}, {v(220)}\nv_exp_f32 {v(220)}, {v(220)}\nv_mov_b32 {v(vT)}, 0\nv_mul_f32 {v(vML+1)}, {v(220)}, {v(221)}')
    for mod in ('quad_perm:[1,0,3,2]', 'quad_perm:[2,3,0,1]'): P(f'v_add_f32_dpp {v(vML+1)}, {v(vML+1)}, {v(vML+1)} {mod} row_mask:0xf bank_mask:0xf')
    if cfg.mlat:
        P(f'v_readfirstlane_b32 s4, {v(vML)}\nv_readfirstlane_b32 s5, {v(vML+1)}')
        P(f's_add_u32 {s(sMASK)}, {s(sWSP)}, {s(sO1)}\ns_addc_u32 {s(sMASK+1)}, {s(sWSP+1)}, 0\ns_lshl_b32 {s(sT0)}, {s(sJ)}, 3\ns_mov_b32 {s(sSPIN)}, 0')
        P(f's_atomic_add_x2 s[4:5], {s(sMASK,2)}, {s(sT0)}')
        stamp('C0_x3pub')
        gl = [4 + 2*k for k in range(8)]
        P('s_waitcnt lgkmcnt(0)')
        P('L_MLW:')
        if cfg.sleep3: P(f's_sleep {cfg.sleep3}')
        P(f's_load_dwordx16 s[4:19], {s(sMASK,2)}, 0 glc')
        P(f's_add_u32 {s(sSPIN)}, {s(sSPIN)}, 1\ns_cmp_gt_u32 {s(sSPIN)}, {cfg.spin}\ns_cbranch_scc1 L_END')
        P('s_waitcnt lgkmcnt(0)')
        P(f's_min_u32 {s(sT0)}, s5, s7')
        for g in gl[2:]: P(f's_min_u32 {s(sT0)}, {s(sT0)}, {s(g+1)}')
        P(f's_cmp_eq_u32 {s(sT0)}, 0\ns_cbranch_scc1 L_MLW')
    else:
        publish(vML, vT, sO0, 1)
        stamp('C0_x3pub')
        P(f's_add_u32 {s(sMASK)}, {s(sWSP)}, {s(sO1)}\ns_addc_u32 {s(sMASK+1)}, {s(sWSP+1)}, 0\ns_mov_b32 {s(sSPIN)}, 0')
        gl = [4 + 4*k for k in range(8)]
        P('L_MLW:')
        if cfg.sleep3: P(f's_sleep {cfg.sleep3}')
        P(f's_load_dwordx16 s[4:19], {s(sMASK,2)}, 0 glc\ns_load_dwordx16 s[20:35], {s(sMASK,2)}, 64 glc')
        P(f's_add_u32 {s(sSPIN)}, {s(sSPIN)}, 1\ns_cmp_gt_u32 {s(sSPIN)}, {cfg.spin}\ns_cbranch_scc1 L_END')
        P('s_waitcnt lgkmcnt(0)')
        P(f's_xor_b32 {s(sT0)}, {s(gl[0]+2)}, {s(sTAG)}')
        for g in gl[1:]: P(f's_xor_b32 {s(sT1)}, {s(g+2)}, {s(sTAG)}\ns_or_b32 {s(sT0)}, {s(sT0)}, {s(sT1)}')
        P('s_cbranch_scc1 L_MLW')
    stamp('C0_ml')
    vG8 = 220
    P(f'v_mov_b32 {v(vML)}, {s(gl[0])}')
    for g in gl[1:]: P(f'v_max_f32 {v(vML)}, {s(g)}, {v(vML)}')
    for k, g in enumerate(gl): P(f'v_sub_f32 {v(vG8+k)}, {s(g)}, {v(vML)}')
    for k in range(8): P(f'v_mul_f32 {v(vG8+k)}, {LOG2E}, {v(vG8+k)}')
    for k in range(8): P(f'v_exp_f32 {v(vG8+k)}, {v(vG8+k)}')
    P(f'v_mul_f32 {v(vE)}, {s(gl[0]+1)}, {v(vG8)}')
    for k, g in enumerate(gl[1:]): P(f'v_fmac_f32 {v(vE)}, {s(g+1)}, {v(vG8+k+1)}')
    P(f'v_rcp_f32 {v(vE+1)}, {v(vE)}\nv_mov_b32 {v(vT+2)}, {hex(L_ML)}\nv_mov_b32 {v(vML+2)}, 1')
    P(f'v_fma_f32 {v(vE)}, -{v(vE)}, {v(vE+1)}, 1.0\nv_fma_f32 {v(vML+1)}, {v(vE)}, {v(vE+1)}, {v(vE+1)}')
    setexec(1)
    P(f'ds_write_b128 {v(vT+2)}, {v(vML,4)}')
    setexec(ALL)
    P('L_PCALC:')
    for e in range(2): P(f'v_sub_f32 {v(vE+e)}, {v(vS2+e)}, {v(vML)}')
    for e in range(2): P(f'v_mul_f32 {v(vE+e)}, {LOG2E}, {v(vE+e)}')
    for e in range(2): P(f'v_exp_f32 {v(vE+e)}, {v(vE+e)}')
    for e in range(2): P(f'v_mul_f32 {v(vE+e)}, {v(vE+e)}, {v(vML+1)}')
    for e in range(2): P(f'v_cvt_pk_bf16_f32 {v(vE+e)}, {v(vE+e)}, {v(vE+e)}')
    P(f'ds_write_b64 {v(27)}, {v(vE,2)}')
    srd(SRD_WS, sWSP, WS_BYTES)
    P(f's_cmp_eq_u32 {s(sW)}, 4\ns_cbranch_scc1 L_C0B1')
    P('s_waitcnt lgkmcnt(0)')
    P('s_barrier')
    P(f's_cmp_eq_u32 {s(sW)}, 5\ns_cbranch_scc1 L_C1B1')
    P('s_branch L_C23B1')
    P('L_C0B1:')
    srd(SRD_A, pWO, 4 << 20)
    P(f'v_bfe_u32 {v(vT)}, {v(vL)}, 3, 1\nv_lshlrev_b32 {v(vT)}, 16, {v(vT)}\nv_bfe_u32 {v(vT+1)}, {v(vL)}, 4, 1\nv_lshl_add_u32 {v(vT)}, {v(vT+1)}, 12, {v(vT)}\nv_lshrrev_b32 {v(vT+1)}, 5, {v(vL)}\nv_lshl_add_u32 {v(vT)}, {v(vT+1)}, 11, {v(vT)}')
    P(f'v_and_b32 {v(vT+1)}, 7, {v(vL)}\nv_lshl_add_u32 {v(vWA)}, {v(vT+1)}, 4, {v(vT)}')
    P(f's_lshl_b32 {s(sO0)}, {s(sH)}, 17\ns_lshl_b32 {s(sT0)}, {s(sJ)}, 7\ns_add_u32 {s(sO0)}, {s(sO0)}, {s(sT0)}')
    P('s_waitcnt lgkmcnt(0)')
    stamp('C0_p')
    P('s_barrier')
    vWO = 64
    par_read(15)
    def wo_issue(sreg):
        for i in range(16):
            P(f'buffer_load_dwordx4 {v(vWO+4*i,4)}, {v(vWA)}, {S(SRD_A)}, {s(sreg)} offen offset:{1024*(i & 1)} {cfg.wpol}')
            if (i & 1) == 1 and i < 15: P(f's_add_u32 {s(sreg)}, {s(sreg)}, 8192')
    if not cfg.wob2: wo_issue(sO0)
    else: P(f's_mov_b32 {s(sG)}, {s(sO0)}')
    P(f'v_lshrrev_b32 {v(vT+2)}, 1, {v(vL16)}\nv_add_u32 {v(vT+2)}, {hex(L_OP)}, {v(vT+2)}')
    par_use(15)
    P(f's_lshl_b32 {s(sO1)}, {s(sH)}, 14\ns_add_u32 {s(sO1)}, {s(sO1)}, {hex(XA)}')
    if cfg.nearloc: P(f's_add_u32 {s(sO1)}, {s(sO1)}, {s(sNEAR)}')
    P(f's_lshl_b32 {s(sO0)}, {s(sJ)}, 10\ns_add_u32 {s(sO0)}, {s(sO0)}, {s(sO1)}\ns_add_u32 {s(sO2)}, {s(sO1)}, 4096')
    P(f's_lshl_b32 {s(sO3)}, {s(sJ)}, 5\ns_add_u32 {s(sO3)}, {s(sO3)}, {s(sH)}\ns_lshl_b32 {s(sO3)}, {s(sO3)}, 9\ns_add_u32 {s(sO3)}, {s(sO3)}, {hex(XB)}')
    P(f'v_mov_b32 {v(22)}, {s(sTAG)}')
    vAP, vDNA, vCA, vEA, vXBA = 8, 10, 11, 12, 13
    P(f'v_mov_b32 {v(14)}, {hex(L_FLAG + 160)}')
    if cfg.gwait:
        P(f'v_and_b32 {v(16)}, 31, {v(vL)}\nv_lshlrev_b32 {v(16)}, 2, {v(16)}\ns_lshl_b32 {s(sG)}, {s(sX)}, 7\ns_add_u32 {s(sG)}, {s(sG)}, {hex(XG)}')
    if cfg.par is None: P(f'v_bfe_u32 {v(vT)}, {v(vL)}, 3, 1\nv_lshl_add_u32 {v(vXBA)}, {v(vT)}, 17, {v(vPUB)}')
    else:
        P(f'v_bfe_u32 {v(vT)}, {v(vL)}, 3, 1\nv_xor_b32 {v(vT)}, {s(sPAR)}, {v(vT)}\nv_lshl_add_u32 {v(vXBA)}, {v(vT)}, 13, {v(vPUB)}')
        P(f's_lshl_b32 {s(sO3)}, {s(sJ)}, 1\ns_lshr_b32 {s(sT0)}, {s(sH)}, 4\ns_add_u32 {s(sO3)}, {s(sO3)}, {s(sT0)}\ns_lshl_b32 {s(sO3)}, {s(sO3)}, 14\ns_and_b32 {s(sT0)}, {s(sH)}, 15\ns_lshl_b32 {s(sT0)}, {s(sT0)}, 9\ns_add_u32 {s(sO3)}, {s(sO3)}, {s(sT0)}\ns_add_u32 {s(sO3)}, {s(sO3)}, {hex(XB2)}')
    sQ, sW2, sDN, sEP, sEG, sDP, sC0 = 4, 6, 8, 9, 10, 11, 12
    vDPA = 17
    def mlp_setup():
        P(f's_sub_u32 {s(sT0)}, {s(sKK)}, 8\ns_cmp_lt_u32 {s(sKK)}, 8\ns_cselect_b32 {s(sT1)}, {s(sKK)}, {s(sT0)}\ns_and_b32 {s(sQ)}, {s(sT1)}, 3\ns_lshr_b32 {s(sT1)}, {s(sT1)}, 2')
        if cfg.evenmlp:
            P(f's_mul_i32 {s(sIM)}, {s(sX)}, 11\ns_add_u32 {s(sIM)}, {s(sIM)}, 1\ns_lshr_b32 {s(sIM)}, {s(sIM)}, 1\ns_min_u32 {s(sIM)}, {s(sIM)}, 38\ns_add_u32 {s(sIM)}, {s(sIM)}, {s(sT1)}')
            P(f's_cmp_lt_u32 {s(sT0)}, 8\ns_cselect_b32 {s(sIM)}, 255, {s(sIM)}\ns_mov_b32 {s(sT0)}, 0x15\ns_bitcmp1_b32 {s(sT0)}, {s(sX)}\ns_cselect_b32 {s(sT0)}, 6, 5\ns_cmp_lt_u32 {s(sT1)}, {s(sT0)}\ns_cselect_b32 {s(sIM)}, {s(sIM)}, 255')
        else:
            P(f's_mul_i32 {s(sIM)}, {s(sX)}, 6\ns_add_u32 {s(sIM)}, {s(sIM)}, {s(sT1)}\ns_cmp_lt_u32 {s(sT0)}, 8\ns_cselect_b32 {s(sIM)}, 255, {s(sIM)}')
        srd(SRD_B, pW2, 1376*1024)
        P(f'v_lshrrev_b32 {v(vT)}, 3, {v(vL)}\nv_mul_u32_u24 {v(vT)}, {16*2752}, {v(vT)}\nv_and_b32 {v(vT+1)}, 3, {v(vL)}\nv_lshl_add_u32 {v(vT)}, {v(vT+1)}, 4, {v(vT)}')
        P(f's_mul_i32 {s(sT0)}, {s(sQ)}, {128*2752}\ns_min_u32 {s(sT1)}, {s(sIM)}, {NM-1}\ns_lshl_b32 {s(sT1)}, {s(sT1)}, 6\ns_add_u32 {s(sT0)}, {s(sT0)}, {s(sT1)}\nv_add_u32 {v(vT)}, {s(sT0)}, {v(vT)}')
        P(f's_mov_b32 {s(sMASK)}, 0xf0f0f0f0\ns_mov_b32 {s(sMASK+1)}, 0xf0f0f0f0\ns_mov_b32 {s(sW2)}, 2752*2\ns_mov_b32 {s(sW2+1)}, 0')
        P(f'v_mov_b32 {v(vAP)}, {s(pW1)}\nv_mov_b32 {v(vAP+1)}, {s(pW1+1)}\nv_mov_b32 {v(vT+1)}, {s(pW3)}\nv_mov_b32 {v(vCA)}, {s(pW3+1)}')
        P(f'v_cndmask_b32 {v(vAP)}, {v(vAP)}, {v(vT+1)}, {s(sMASK,2)}\nv_cndmask_b32 {v(vAP+1)}, {v(vAP+1)}, {v(vCA)}, {s(sMASK,2)}')
        P(f'v_add_co_u32 {v(vAP)}, vcc, {v(vAP)}, {v(vT)}\nv_addc_co_u32 {v(vAP+1)}, vcc, 0, {v(vAP+1)}, vcc')
        P(f'v_bfe_u32 {v(vT)}, {v(vL)}, 4, 1\nv_lshlrev_b32 {v(vDNA)}, 12, {v(vT)}\nv_lshrrev_b32 {v(vT)}, 5, {v(vL)}\nv_lshl_add_u32 {v(vDNA)}, {v(vT)}, 11, {v(vDNA)}\nv_and_b32 {v(vT)}, 15, {v(vL)}\nv_lshl_add_u32 {v(vDNA)}, {v(vT)}, 4, {v(vDNA)}')
        P(f's_lshl_b32 {s(sDN)}, {s(sIM)}, 15\ns_lshl_b32 {s(sT0)}, {s(sQ)}, 8\ns_add_u32 {s(sDN)}, {s(sDN)}, {s(sT0)}')
        P(f's_lshr_b32 {s(sEG)}, {s(sIM)}, 2\ns_lshl_b32 {s(sEG)}, {s(sEG)}, 14\ns_and_b32 {s(sT0)}, {s(sIM)}, 3\ns_lshl_b32 {s(sT0)}, {s(sT0)}, 11\ns_add_u32 {s(sEG)}, {s(sEG)}, {s(sT0)}\ns_add_u32 {s(sEG)}, {s(sEG)}, {hex(XE)}')
        if cfg.nearloc: P(f's_add_u32 {s(sEG)}, {s(sEG)}, {s(sNEAR)}')
        P(f's_lshl_b32 {s(sT0)}, {s(sQ)}, 9\ns_add_u32 {s(sEP)}, {s(sEG)}, {s(sT0)}')
        if cfg.par is None: P(f's_lshl_b32 {s(sDP)}, {s(sIM)}, 12\ns_lshl_b32 {s(sT0)}, {s(sQ)}, 10\ns_add_u32 {s(sDP)}, {s(sDP)}, {s(sT0)}\ns_add_u32 {s(sDP)}, {s(sDP)}, {hex(XD)}')
        else:
            P(f's_lshr_b32 {s(sDP)}, {s(sIM)}, 2\ns_lshl_b32 {s(sDP)}, {s(sDP)}, 14\ns_and_b32 {s(sT0)}, {s(sIM)}, 3\ns_lshl_b32 {s(sT0)}, {s(sT0)}, 11\ns_add_u32 {s(sDP)}, {s(sDP)}, {s(sT0)}\ns_lshl_b32 {s(sT0)}, {s(sQ)}, 9\ns_add_u32 {s(sDP)}, {s(sDP)}, {s(sT0)}\ns_add_u32 {s(sDP)}, {s(sDP)}, {hex(XD)}')
            P(f'v_and_b32 {v(vDPA)}, 31, {v(vL)}\nv_lshlrev_b32 {v(vDPA)}, 4, {v(vDPA)}\nv_lshrrev_b32 {v(vT)}, 5, {v(vL)}\nv_xor_b32 {v(vT)}, {s(sPAR)}, {v(vT)}\nv_lshl_add_u32 {v(vDPA)}, {v(vT)}, 13, {v(vDPA)}')
        P(f's_lshr_b32 {s(sT1)}, {s(sX)}, 1\ns_lshl_b32 {s(sT1)}, {s(sT1)}, 14\ns_and_b32 {s(sT0)}, {s(sX)}, 1\ns_lshl_b32 {s(sT0)}, {s(sT0)}, 12\ns_add_u32 {s(sT1)}, {s(sT1)}, {s(sT0)}\ns_add_u32 {s(sT1)}, {s(sT1)}, {hex(XC)}')
        if cfg.nearloc: P(f's_add_u32 {s(sT1)}, {s(sT1)}, {s(sNEAR)}')
        for k in range(4): P(f's_add_u32 {s(sT0)}, {s(sQ)}, {k}\ns_and_b32 {s(sT0)}, {s(sT0)}, 3\ns_lshl_b32 {s(sT0)}, {s(sT0)}, 10\ns_add_u32 {s(sC0+k)}, {s(sT0)}, {s(sT1)}')
        P(f'v_lshrrev_b32 {v(vT)}, 5, {v(vL)}\nv_lshlrev_b32 {v(vCA)}, 9, {v(vT)}\nv_bfe_u32 {v(vT)}, {v(vL)}, 1, 1\nv_lshl_add_u32 {v(vCA)}, {v(vT)}, 7, {v(vCA)}\nv_and_b32 {v(vT)}, 1, {v(vL)}\nv_lshl_add_u32 {v(vCA)}, {v(vT)}, 8, {v(vCA)}')
        P(f'v_bfe_u32 {v(vT)}, {v(vL)}, 2, 3\nv_lshl_add_u32 {v(vCA)}, {v(vT)}, 4, {v(vCA)}')
        P(f'v_bfe_u32 {v(vT)}, {v(vL)}, 3, 1\nv_lshlrev_b32 {v(vT)}, 9, {v(vT)}\nv_add_u32 {v(vEA)}, {v(vPUB)}, {v(vT)}')
    if not cfg.mlpw: mlp_setup()
    else: P(f'v_mov_b32 {v(16)}, {hex(L_FLAG + 168)}')
    if cfg.pgal: P('s_branch L_TAIL0\n.p2align 12\nL_TAIL0:')
    P('s_barrier')
    stamp('C0_b2')
    for w in range(4): P(f'ds_read_b64 {v(24+2*w,2)}, {v(vT+2)} offset:{512*w}')
    P('s_waitcnt lgkmcnt(2)')
    add2(24, 24, 26)
    P('s_waitcnt lgkmcnt(0)')
    add2(28, 28, 30)
    add2(20, 24, 28)
    publish_loc(20, vL16, sO0)
    stamp('C0_xapub')
    if cfg.wob2 == 1: wo_issue(sG)
    if cfg.wofirst: P(f's_waitcnt vmcnt({cfg.wofirst - 1})')
    vOd = 40
    def issue(b):
        for k in range(0, 8, 2 if cfg.fakehalf & 2 else 1):
            P(f'buffer_load_dwordx4 {v(b+4*k,4)}, {v(vL16)}, {S(SRD_WS)}, {s(sO1 if k < 4 else sO2)} offen offset:{1024*(k & 3)} sc1')
    def done(b):
        for a, b2 in ((0, 1), (2, 3), (4, 5), (6, 7), (0, 2), (4, 6), (0, 4)): add2(b+4*a, b+4*a, b+4*b2)
        P(f'v_cvt_pk_bf16_f32 {v(vOd)}, {v(b)}, {v(b)}\nv_cvt_pk_bf16_f32 {v(vOd+1)}, {v(b+1)}, {v(b+1)}')
    poll('xa', issue, 8, 128, 32, [4*k+2 for k in range(0, 8, 2 if cfg.fakehalf & 2 else 1)], done)
    if cfg.mlpw: P(f'ds_write_b32 {v(16)}, {v(16)}')
    stamp('C0_xa')
    vGW, vGA2 = 15, 16
    def g_issue(): P(f'buffer_load_dword {v(vGW)}, {v(vGA2)}, {S(SRD_WS)}, {s(sG)} offen sc1')
    if cfg.gwait: g_issue()
    lohi(vOd)
    chain(vD0, 16, [vWO+4*i for i in range(16)], lohi_srcs(vOd), vAA)
    finish2(vD0)
    if cfg.par is not None:
        for e in range(2): P(f'v_mov_b32_dpp {v(vD0+e)}, {v(vD0+e)} row_ror:8 row_mask:0xf bank_mask:0xc')
        publish(vD0, vXBA, sO3)
    elif cfg.xbrep:
        for e in range(2): P(f'v_mov_b32_dpp {v(vD0+e)}, {v(vD0+e)} row_ror:8 row_mask:0xf bank_mask:0xc')
        for i in range(4):
            P(f'buffer_store_dwordx4 {v(vD0,4)}, {v(vXBA)}, {S(SRD_WS)}, {s(sO3)} offen sc1')
            if i < 3: P(f's_add_u32 {s(sO3)}, {s(sO3)}, 0x40000')
    else: publish(vD0, vPUB, sO3, M2SET)
    if cfg.rwait and cfg.rwait < 4: P(f'ds_write_b32 {v(14)}, {v(14)}')
    stamp('C0_xbpub')
    def mlp_body():
        vUP, vDN, vCG, vEG = 128, 192, 64, 80
        if cfg.gwait:
            P(f's_mov_b32 {s(sSPIN)}, 0\ns_waitcnt vmcnt({4 if cfg.xbrep else 1})\ns_branch L_GCHK\nL_GTOP:')
            g_issue()
            P(f's_add_u32 {s(sSPIN)}, {s(sSPIN)}, 1\ns_cmp_gt_u32 {s(sSPIN)}, {cfg.spin}\ns_cbranch_scc1 L_END\ns_waitcnt vmcnt(0)\nL_GCHK:')
            P(f'v_cmp_eq_u32 vcc, {s(sTAG)}, {v(vGW)}\ns_bcnt1_i32_b64 {s(sT0)}, vcc\ns_cmp_lt_u32 {s(sT0)}, {2*cfg.gthr}\ns_cbranch_scc1 L_GTOP')
        for i in range(16):
            if not (cfg.fakehalf & 4 and i % 4 == 3): P(f'global_load_dwordx4 {v(vUP+4*i,4)}, {v(vAP,2)}, off offset:{2752*(i & 1)} {cfg.uppol}')
            if i & 1 and i < 15: P(f'v_lshl_add_u64 {v(vAP,2)}, {v(vAP,2)}, 0, {s(sW2,2)}')
        def dn_issue():
            for i in range(8):
                P(f'buffer_load_dwordx4 {v(vDN+4*i,4)}, {v(vDNA)}, {S(SRD_B)}, {s(sDN)} offen offset:{1024*(i & 1)} {cfg.wpol}')
                if i & 1 and i < 7: P(f's_add_u32 {s(sDN)}, {s(sDN)}, 8192')
        if cfg.mlpw:
            P(f'v_mov_b32 {v(vT+2)}, {hex(L_FLAG + 160)}')
            lds_wait('fb', vT+2, 1, 28, [28])
        if not cfg.dnlate: dn_issue()
        if cfg.wfirst: P('s_waitcnt vmcnt(0)')
        if cfg.diag and 'M_w' in cfg.diag:
            P('s_waitcnt vmcnt(0)'); stamp('M_w')
        vx, vcb, vsb = 88, 24, 26
        def issue(b):
            for k in range(4): P(f'buffer_load_dwordx4 {v(b+4*k,4)}, {v(vCA)}, {S(SRD_WS)}, {s(sC0+k)} offen sc1')
        def done(b):
            for k in range(4): unpack(vx+2*k, vx+2*k+1, b+4*k)
            if not cfg.lnopt: unpack(vcb, vcb+1, b+1); unpack(vsb, vsb+1, b+2)
        if cfg.dnlate == 3:
            issue(64); dn_issue()
            P('s_waitcnt vmcnt(8)')
            tr = [64+4*k+3 for k in range(4)]
            P(f'v_xor_b32 {v(vT)}, {s(sTAG)}, {v(tr[0])}\nv_xor_b32 {v(vT+1)}, {s(sTAG)}, {v(tr[1])}')
            for k, r in enumerate(tr[2:]): P(f'v_bitop3_b32 {v(vT + k)}, {v(r)}, {s(sTAG)}, {v(vT + k)} bitop3:{TAGX}')
            P(f'v_or_b32 {v(vT)}, {v(vT)}, {v(vT+1)}\nv_cmp_ne_u32 vcc, 0, {v(vT)}\ns_cbranch_vccz L_XCOK')
            poll('xc', issue, 4, 64, 16, tr and [4*k+3 for k in range(4)], lambda b: None)
            P('L_XCOK:')
            done(64)
        else:
            poll('xc', issue, 4, 64 if cfg.pipe.get('xc', 1) == 1 else 104, 16 if cfg.pipe.get('xc', 1) != 2 else -40, [4*k+3 for k in range(4)], done)
        stamp('M_xc')
        if cfg.dnlate == 1: dn_issue()
        P(f'v_readfirstlane_b32 {s(sT0)}, {v(vx)}')
        for k in range(8): P(f'v_subrev_f32 {v(96+k)}, {s(sT0)}, {v(vx+k)}')
        P(f'v_pk_add_f32 {v(20,2)}, {v(96,2)}, {v(98,2)}\nv_pk_add_f32 {v(22,2)}, {v(100,2)}, {v(102,2)}\nv_pk_mul_f32 {v(28,2)}, {v(96,2)}, {v(96,2)}\nv_pk_mul_f32 {v(30,2)}, {v(100,2)}, {v(100,2)}')
        P(f'v_pk_add_f32 {v(20,2)}, {v(20,2)}, {v(22,2)}\nv_pk_fma_f32 {v(28,2)}, {v(98,2)}, {v(98,2)}, {v(28,2)}\nv_pk_fma_f32 {v(30,2)}, {v(102,2)}, {v(102,2)}, {v(30,2)}')
        P(f'v_add_f32 {v(22)}, {v(20)}, {v(21)}\nv_pk_add_f32 {v(28,2)}, {v(28,2)}, {v(30,2)}\nv_add_f32 {v(23)}, {v(28)}, {v(29)}')
        fill = [f'v_lshlrev_b32 {v(vcb)}, 16, {v(65)}', f'v_and_b32 {v(vcb+1)}, 0xffff0000, {v(65)}', f'v_lshlrev_b32 {v(vsb)}, 16, {v(66)}', f'v_and_b32 {v(vsb+1)}, 0xffff0000, {v(66)}']
        for q_, mod in enumerate(('quad_perm:[1,0,3,2]', 'quad_perm:[2,3,0,1]', 'row_ror:4', 'row_ror:8')):
            P(f'v_add_f32_dpp {v(22)}, {v(22)}, {v(22)} {mod} row_mask:0xf bank_mask:0xf')
            if cfg.lnopt: assert cfg.pipe.get('xc', 1) == 1; P(fill[q_])
            P(f'v_add_f32_dpp {v(23)}, {v(23)}, {v(23)} {mod} row_mask:0xf bank_mask:0xf')
        P(f'v_permlane16_swap_b32 {v(22)}, {v(23)}\nv_add_f32 {v(22)}, {v(22)}, {v(23)}\nv_mov_b32 {v(23)}, {v(22)}')
        P(f'v_permlane32_swap_b32 {v(22)}, {v(23)}\nv_add_f32 {v(22)}, {v(22)}, {v(23)}\nv_mul_f32 {v(22)}, {R512}, {v(22)}')
        if cfg.lnopt: P(f'v_mov_b32 {v(23)}, {v(22)}\nv_permlane16_swap_b32 {v(22)}, {v(23)}')
        else:
            P(f'v_readlane_b32 {s(sT1)}, {v(22)}, 0\nv_readlane_b32 {s(sT2)}, {v(22)}, 16')
            P(f'v_mov_b32 {v(22)}, {s(sT1)}\nv_mov_b32 {v(23)}, {s(sT2)}')
        P(f'v_fma_f32 {v(23)}, -{v(22)}, {v(22)}, {v(23)}\nv_add_f32 {v(22)}, {s(sT0)}, {v(22)}\nv_max_f32 {v(23)}, 0, {v(23)}')
        P(f'v_cvt_pk_bf16_f32 {v(22)}, {v(22)}, {v(23)}')
        P(f'v_and_b32 {v(23)}, 0xffff0000, {v(22)}\nv_lshlrev_b32 {v(22)}, 16, {v(22)}\nv_add_f32 {v(23)}, {EPS}, {v(23)}')
        P(f'v_sub_f32 {v(20)}, {v(vx)}, {v(22)}\nv_sub_f32 {v(21)}, {v(vx+1)}, {v(22)}')
        P(f'v_cvt_pk_bf16_f32 {v(23)}, {v(23)}, {v(23)}\nv_cvt_pk_bf16_f32 {v(20)}, {v(20)}, {v(21)}\nv_and_b32 {v(23)}, 0xffff0000, {v(23)}\nv_sqrt_f32 {v(23)}, {v(23)}')
        unpack(vx, vx+1, 20)
        P(f'v_cvt_pk_bf16_f32 {v(23)}, {v(23)}, {v(23)}\nv_and_b32 {v(23)}, 0xffff0000, {v(23)}\nv_rcp_f32 {v(22)}, {v(23)}')
        P(f'v_mul_f32 {v(20)}, {v(vx)}, {v(22)}\nv_mul_f32 {v(21)}, {v(vx+1)}, {v(22)}')
        P(f'v_fma_f32 {v(vx)}, -{v(20)}, {v(23)}, {v(vx)}\nv_fma_f32 {v(vx+1)}, -{v(21)}, {v(23)}, {v(vx+1)}')
        P(f'v_fma_f32 {v(20)}, {v(vx)}, {v(22)}, {v(20)}\nv_fma_f32 {v(21)}, {v(vx+1)}, {v(22)}, {v(21)}')
        P(f'v_cvt_pk_bf16_f32 {v(20)}, {v(20)}, {v(21)}')
        unpack(vx, vx+1, 20)
        P(f'v_mul_f32 {v(vx)}, {v(vx)}, {v(vcb)}\nv_mul_f32 {v(vx+1)}, {v(vx+1)}, {v(vcb+1)}\nv_cvt_pk_bf16_f32 {v(20)}, {v(vx)}, {v(vx+1)}')
        unpack(vx, vx+1, 20)
        P(f'v_add_f32 {v(vx)}, {v(vx)}, {v(vsb)}\nv_add_f32 {v(vx+1)}, {v(vx+1)}, {v(vsb+1)}')
        P(f'v_cvt_pk_bf16_f32 {v(vOd)}, {v(vx)}, {v(vx)}\nv_cvt_pk_bf16_f32 {v(vOd+1)}, {v(vx+1)}, {v(vx+1)}')
        lohi(vOd)
        stamp('M_h2')
        if cfg.dnlate == 2: dn_issue()
        chain(vD0, 16, [vUP+4*i for i in range(16)], lohi_srcs(vOd), vAA)
        finish2(vD0)
        publish_loc(vD0, vPUB, sEP, M2SET, sR)
        stamp('M_up')
        def issue(b):
            for k in range(2): P(f'buffer_load_dwordx4 {v(b+4*k,4)}, {v(vEA)}, {S(SRD_WS)}, {s(sEG)} offen offset:{1024*k} sc1')
        def done(b):
            add2(20, b, b+4)
        poll('xe', issue, 2, 128, 8, [2, 6], done)
        stamp('M_xe')
        for e in range(2): P(f'v_add_f32_dpp {v(20+e)}, {v(20+e)}, {v(20+e)} row_ror:8 row_mask:0xf bank_mask:0xf')
        P(f'v_cvt_pk_bf16_f32 {v(22)}, {v(20)}, {v(21)}')
        unpack(20, 21, 22)
        P(f'v_mov_b32_dpp {v(24)}, {v(22)} row_shl:4 row_mask:0xf bank_mask:0xf')
        silu_multi([20, 21], [22, 23])
        unpack(26, 27, 24)
        P(f'v_cvt_pk_bf16_f32 {v(22)}, {v(20)}, {v(21)}')
        unpack(20, 21, 22)
        P(f'v_mul_f32 {v(20)}, {v(20)}, {v(26)}\nv_mul_f32 {v(21)}, {v(21)}, {v(27)}')
        for e in range(2): P(f'v_cvt_pk_bf16_f32 {v(20+e)}, {v(20+e)}, {v(20+e)}')
        stamp('M_act')
        chain(vD0, 8, [vDN+4*i for i in range(8)], [(20 + (i & 1), f'row_newbcast:{i >> 1}') for i in range(8)], vAA)
        finish1(vD0)
        publish(vD0, vL16 if cfg.par is None else vDPA, sDP)
        stamp('M_end')
        P('s_branch L_END')
    if cfg.mlpw:
        assert cfg.rwait == 1
        P('s_branch L_END')
    else:
        if cfg.rwait == 4:
            P(f's_cmp_lt_u32 {s(sIM)}, {NM}\ns_cbranch_scc1 L_MLP')
            if cfg.ackw: P('s_waitcnt vmcnt(0)')
            P(f'ds_write_b32 {v(14)}, {v(14)}')
            P('s_branch L_END\nL_MLP:')
        else: P(f's_cmp_lt_u32 {s(sIM)}, {NM}\ns_cbranch_scc0 L_END')
        mlp_body()

    P('L_C123:')
    common_setup()
    P(f's_cmp_eq_u32 {s(sW)}, 5\ns_cbranch_scc1 L_C1')
    if not (cfg.cpf0 and cfg.split0): code_prefetch(6, True)
    P('L_C3:')
    if cfg.par == 'dyn':
        P(f's_cmp_eq_u32 {s(sW)}, 7\ns_cbranch_scc0 L_NOPM\ns_cmp_eq_u32 {s(sB)}, 0\ns_cbranch_scc0 L_NOPM')
        P(f's_waitcnt lgkmcnt(0)\ns_mov_b32 s8, -1\ns_mov_b32 s9, -1')
        for i in range(2*cfg.nsamp):
            P(f's_mov_b32 s15, {hex(XPR + 8192*(i & 1) + 128*(i >> 1))}\ns_memtime s[10:11]\ns_waitcnt lgkmcnt(0)\ns_load_dword s14, {s(sWSP,2)}, s15 glc\ns_waitcnt lgkmcnt(0)\ns_memtime s[12:13]\ns_waitcnt lgkmcnt(0)')
            P(f's_sub_u32 s12, s12, s10\ns_min_u32 {s(8 + (i & 1))}, {s(8 + (i & 1))}, s12')
        P(f's_cmp_lt_u32 s9, s8\ns_cselect_b32 s8, 1, 0\ns_getreg_b32 s9, hwreg(HW_REG_XCC_ID, 2, 1)\ns_xor_b32 s8, s8, s9')
        P(f's_add_u32 s9, {s(sTAG)}, 1\ns_lshl_b32 s9, s9, 1\ns_or_b32 s8, s8, s9\nv_mov_b32 {v(vT+1)}, s8\nv_lshlrev_b32 {v(vT)}, 7, {v(vL)}\ns_mov_b32 s8, {hex(XP)}')
        setexec(0xff)
        P(f'buffer_store_dword {v(vT+1)}, {v(vT)}, {S(SRD_WS)}, s8 offen sc1')
        setexec(ALL)
        P('L_NOPM:')
    if cfg.tlbw:
        P(f's_cmp_eq_u32 {s(sW)}, 7\ns_cbranch_scc0 L_NOTLB')
        P(f'v_mov_b32 {v(vT)}, 0')
        setexec(1)
        for k, (ptr, nb) in enumerate(((pWO, 4 << 20), (pW1, 512*2752), (pW3, 512*2752), (pW2, 1376*1024), (pOUT, 1024))):
            srd(SRD_A, ptr, nb)
            P(f'buffer_load_dword {v(241+k)}, {v(vT)}, {S(SRD_A)}, 0 offen')
            if nb > (2 << 20):
                P(f's_mov_b32 {s(sT0)}, {hex(nb - 128)}\nbuffer_load_dword {v(247)}, {v(vT)}, {S(SRD_A)}, {s(sT0)} offen')
        for k, off in enumerate((XA, XE, XB, XB + 0xf0000)):
            P(f's_mov_b32 {s(sT0)}, {hex(off)}\nbuffer_load_dword {v(248+k)}, {v(vT)}, {S(SRD_WS)}, {s(sT0)} offen sc1')
        setexec(ALL)
        P('L_NOTLB:')
    P('s_waitcnt lgkmcnt(0)')
    P(f's_add_u32 {s(sTAG)}, {s(sTAG)}, 1')
    P('s_branch L_QKP')
    P('L_C23B1:')
    if cfg.mlpw:
        P(f's_cmp_eq_u32 {s(sW)}, 6\ns_cbranch_scc0 L_C3B2')
        par_read(15); par_use(15)
        mlp_setup()
        P('s_barrier')
        P(f's_cmp_lt_u32 {s(sIM)}, {NM}\ns_cbranch_scc0 L_END')
        P(f'v_mov_b32 {v(vT+2)}, {hex(L_FLAG + 168)}')
        lds_wait('fa', vT+2, 1, 28, [28])
        mlp_body()
        P('L_C3B2:')
    if cfg.gwait:
        P(f'v_lshlrev_b32 {v(vT)}, 7, {v(vL)}\nv_mov_b32 {v(vT+1)}, {s(sTAG)}\ns_lshl_b32 {s(sT0)}, {s(sH)}, 2\ns_add_u32 {s(sT0)}, {s(sT0)}, {hex(XG)}')
    P('s_barrier')
    if cfg.gwait:
        P(f's_cmp_eq_u32 {s(sW)}, 6\ns_cbranch_scc0 L_END\ns_cmp_eq_u32 {s(sJ)}, 0\ns_cbranch_scc0 L_END')
        setexec(0xff)
        P(f'buffer_store_dword {v(vT+1)}, {v(vT)}, {S(SRD_WS)}, {s(sT0)} offen sc1')
    P('s_branch L_END')

    P('L_C1:')
    P('s_waitcnt lgkmcnt(0)')
    P(f's_add_u32 {s(sTAG)}, {s(sTAG)}, 1')
    if cfg.tearly == 3: P(f's_mov_b32 {s(sR)}, 0\ns_bitcmp1_b32 {s(sX)}, 0\ns_cbranch_scc1 L_QKP')
    elif cfg.tearly: P(f's_mov_b32 {s(sR)}, 0\ns_cmp_ge_u32 {s(sX)}, 4\ns_cbranch_scc1 L_QKP')
    else: P(f's_mov_b32 {s(sR)}, 0\ns_sub_u32 {s(sT0)}, {s(sKK)}, 8\ns_cmp_lt_u32 {s(sT0)}, 16\ns_cbranch_scc1 L_QKP')
    if not cfg.t2early:
        P(f'v_mov_b32 {v(vT+2)}, {hex(L_FLAG + 8)}')
        lds_wait('k1', vT+2, 1, 28, [28], 8)
    elif cfg.t2early > 1: P(f's_sleep {cfg.t2early}')
    if cfg.tearly == 3:
        P(f's_lshl_b32 {s(sT0)}, {s(sKK)}, 2\ns_lshr_b32 {s(sT1)}, {s(sX)}, 1\ns_add_u32 {s(sT0)}, {s(sT0)}, {s(sT1)}\ns_and_b32 {s(sT1)}, {s(sT0)}, 31\ns_lshr_b32 {s(sT0)}, {s(sT0)}, 5')
    elif cfg.tearly:
        P(f's_lshl_b32 {s(sT0)}, {s(sKK)}, 2\ns_add_u32 {s(sT0)}, {s(sT0)}, {s(sX)}\ns_and_b32 {s(sT1)}, {s(sT0)}, 31\ns_lshr_b32 {s(sT0)}, {s(sT0)}, 5')
    else:
        P(f's_and_b32 {s(sT0)}, {s(sKK)}, 7\ns_lshr_b32 {s(sT1)}, {s(sKK)}, 4\ns_lshl_b32 {s(sT1)}, {s(sT1)}, 3\ns_add_u32 {s(sT0)}, {s(sT0)}, {s(sT1)}')
        P(f's_lshl_b32 {s(sT0)}, {s(sT0)}, 3\ns_add_u32 {s(sT0)}, {s(sT0)}, {s(sX)}\ns_and_b32 {s(sT1)}, {s(sT0)}, 31\ns_lshr_b32 {s(sT0)}, {s(sT0)}, 5')
    if X4NEAR:
        P(f's_and_b32 {s(sO2)}, {s(sT1)}, 3\ns_lshl_b32 {s(sO2)}, {s(sO2)}, 2\ns_add_u32 {s(sO2)}, {s(sO2)}, {s(sT0)}\ns_lshl_b32 {s(sO2)}, {s(sO2)}, 9\ns_lshr_b32 {s(sT2)}, {s(sT1)}, 2\ns_lshl_b32 {s(sT2)}, {s(sT2)}, 14\ns_add_u32 {s(sO2)}, {s(sO2)}, {s(sT2)}\ns_add_u32 {s(sO2)}, {s(sO2)}, {hex(X4N)}')
    else:
        P(f's_lshl_b32 {s(sO2)}, {s(sT1)}, 2\ns_add_u32 {s(sO2)}, {s(sO2)}, {s(sT0)}\ns_lshl_b32 {s(sO2)}, {s(sO2)}, 9\ns_add_u32 {s(sO2)}, {s(sO2)}, {hex(X4)}')
    P(f's_lshl_b32 {s(sT1)}, {s(sT1)}, 7\ns_add_u32 {s(sT1)}, {s(sT1)}, 2048')
    modtile_issue(sT0, sT1)
    if cfg.t2early:
        modtile_compute(0, sO2)
        P('s_branch L_QKP')
    else: P(f's_mov_b32 {s(sR)}, 99\ns_branch L_QKP')
    P('L_C1B1:')
    P(f's_sub_u32 {s(sT0)}, {s(sKK)}, 8\ns_cmp_lt_u32 {s(sT0)}, 8\ns_cbranch_scc1 L_RED')
    P('s_barrier')
    P('s_branch L_END')
    P('L_RED:')
    if cfg.rwait != 4 and not cfg.rearly: red_setup()
    else:
        srd(SRD_B, pOUT, 1024)
        P(f'v_lshlrev_b32 {v(vL16r)}, 4, {v(vL)}\nv_and_b32 {v(vU16)}, 3, {v(vL)}\nv_lshlrev_b32 {v(vU16)}, 4, {v(vU16)}')
        vda()
    red_addr()
    def xb_issue(b):
        for k in range(0, 16, 2 if cfg.fakehalf & 1 else 1): P(f'buffer_load_dwordx4 {v(b+4*k,4)}, {v(vL16r)}, {S(SRD_WS)}, {s(sB4 + (k >> 2))} offen offset:{1024*(k & 3)} sc1')
    issue = x4_issue
    def rw(name):
        P(f'v_mov_b32 {v(vT+2)}, {hex(L_FLAG + 160)}')
        lds_wait(name, vT+2, 1, 28, [28], cfg.lsleep)
    if cfg.rwait >= 3:
        if cfg.rwait == 3: issue()
        P('s_barrier')
        stamp('R_b2')
        P(f's_mov_b32 {s(sT2)}, 0\ns_branch L_X4CHK\nL_X4RETRY:')
        rw('rw0')
        issue()
        P(f's_add_u32 {s(sT2)}, {s(sT2)}, 1\ns_cmp_gt_u32 {s(sT2)}, {cfg.spin}\ns_cbranch_scc1 L_END\nL_X4CHK:')
        P('s_waitcnt vmcnt(0)')
        tr = [vg+4*k+2 for k in range(8)]
        P(f'v_xor_b32 {v(vT)}, {s(sTAG)}, {v(tr[0])}\nv_xor_b32 {v(vT+1)}, {s(sTAG)}, {v(tr[1])}')
        for k, r in enumerate(tr[2:]): P(f'v_bitop3_b32 {v(vT + (k & 1))}, {v(r)}, {s(sTAG)}, {v(vT + (k & 1))} bitop3:{TAGX}')
        P(f'v_or_b32 {v(vT)}, {v(vT)}, {v(vT+1)}\nv_cmp_ne_u32 vcc, 0, {v(vT)}\ns_cbranch_vccnz L_X4RETRY')
    else:
        P('s_barrier')
        stamp('R_b2')
        if cfg.rwait: rw('rw')
        tagcheck_loop(issue, [vg+4*k+2 for k in range(8)], 'x4', after=(lambda: xb_issue(128)) if cfg.rwait == 2 else None, nafter=16)
    for p_ in range(4):
        for e in range(2): P(f'v_add_f32 {v(vg+8*p_+e)}, {v(vg+8*p_+e)}, {v(vg+8*p_+4+e)}')
    for p_ in range(4): P(f'v_permlane32_swap_b32 {v(vg+8*p_)}, {v(vg+8*p_+1)}')
    for p_ in range(4): P(f'v_add_f32 {v(vg+8*p_)}, {v(vg+8*p_)}, {v(vg+8*p_+1)}')
    for p_ in range(4): rnd(vg+8*p_)
    P(f'v_mov_b32 {v(vGAv)}, {v(vg)}\nv_add_f32 {v(vg+16)}, 1.0, {v(vg+16)}\nv_mov_b32 {v(vg+9)}, {v(vg+8)}\nv_mov_b32 {v(vg+17)}, {v(vg+16)}')
    P(f'ds_bpermute_b32 {v(vGBv)}, {v(vBP)}, {v(vg+24)}')
    P(f'v_permlane32_swap_b32 {v(vg+8)}, {v(vg+9)}\nv_permlane32_swap_b32 {v(vg+16)}, {v(vg+17)}')
    P(f'v_cvt_pk_bf16_f32 {v(vXC+2)}, {v(vg+8)}, {v(vg+9)}\nv_cvt_pk_bf16_f32 {v(vXC+1)}, {v(vg+16)}, {v(vg+17)}\nv_mov_b32 {v(vXC+3)}, {s(sTAG)}\nv_lshlrev_b32 {v(vXv)}, 16, {v(vXv)}')
    stamp('R_x4')
    if cfg.rwait >= 3: rw('rw1')
    def done(b):
        st = 1
        while st < 16:
            for a in range(0, 16, 2*st): add2(b+4*a, b+4*a, b+4*(a+st))
            st *= 2
    if cfg.rsleep: P(f's_sleep {cfg.rsleep}')
    if cfg.xbgrp:
        n = 16 // cfg.xbgrp
        def mk(g):
            def issue():
                for k in range(g*n, g*n + n): P(f'buffer_load_dwordx4 {v(128+4*k,4)}, {v(vL16r)}, {S(SRD_WS)}, {s(sB4 + (k >> 2))} offen offset:{1024*(k & 3)} sc1')
            return (issue, [128+4*k+2 for k in range(g*n, g*n + n)])
        poll_groups('xb', [mk(g) for g in range(cfg.xbgrp)])
        done(128)
    else: poll('xb', xb_issue, 16, 128, 64, [4*k+2 for k in range(0, 16, 2 if cfg.fakehalf & 1 else 1)], done, issued=(cfg.rwait == 2))
    stamp('R_xb')
    P(f'v_permlane32_swap_b32 {v(128)}, {v(129)}\nv_add_f32 {v(vg)}, {v(128)}, {v(129)}')
    rnd(vg)
    P(f'v_mul_f32 {v(vg)}, {v(vg)}, {v(vGAv)}'); rnd(vg)
    P(f'v_add_f32 {v(vg)}, {v(vg)}, {v(vXv)}\nv_mov_b32 {v(vg+1)}, {v(vg)}')
    P(f'v_permlane32_swap_b32 {v(vg)}, {v(vg+1)}')
    P(f'v_cvt_pk_bf16_f32 {v(vXC)}, {v(vg)}, {v(vg+1)}')
    if cfg.xcmode == 1: publish(vXC, vL16r, sO3, 0xffffffff)
    elif cfg.xcmode == 2:
        setexec(0xffffffff); P(f'buffer_store_dwordx4 {v(vXC,4)}, {v(vL16r)}, {S(SRD_WS)}, {s(sO3)} offen'); setexec(ALL)
    else: publish_loc(vXC, vL16r, sO3, 0xffffffff)
    stamp('R_xcpub')
    if cfg.epearly:
        P(f's_cmp_eq_u32 {s(sR)}, 0\ns_cbranch_scc0 L_NOEP')
        setexec(1)
        P(f'v_mov_b32 {v(vT)}, 0\nv_mov_b32 {v(vT+1)}, {s(sTAG)}')
        P(f'buffer_store_dword {v(vT+1)}, {v(vT)}, {S(SRD_WS)}, 0 offen sc1')
        setexec(ALL)
        P('L_NOEP:')
    P(f'v_lshrrev_b32 {v(vT+2)}, 1, {v(vL)}\nv_and_b32 {v(vT+2)}, 16, {v(vT+2)}\nv_lshrrev_b32 {v(vXv)}, {v(vT+2)}, {v(vXC)}\nv_lshlrev_b32 {v(vXv)}, 16, {v(vXv)}')
    P(f'ds_bpermute_b32 {v(vXv)}, {v(vBP)}, {v(vXv)}')
    def colsum():
        P(f'v_permlane16_swap_b32 {v(vg)}, {v(vg+1)}')
        P(f'v_add_f32 {v(vg)}, {v(vg)}, {v(vg+1)}')
        P(f'v_add_f32_dpp {v(vg)}, {v(vg)}, {v(vg)} row_ror:4 row_mask:0xf bank_mask:0xf')
        P(f'v_add_f32_dpp {v(vg)}, {v(vg)}, {v(vg)} row_ror:8 row_mask:0xf bank_mask:0xf')
        P(f'v_mov_b32 {v(vg+1)}, {v(vg)}')
        P(f'v_permlane32_swap_b32 {v(vg)}, {v(vg+1)}')
        P(f'v_add_f32 {v(vg)}, {v(vg)}, {v(vg+1)}')
    P('s_waitcnt lgkmcnt(0)')
    def issue(b):
        for k in range(2): P(f'buffer_load_dwordx4 {v(b+4*k,4)}, {v(vDA)}, {S(SRD_WS)}, {s(sD+k)} offen sc1')
        setexec((1 << 44) - 1)
        P(f'buffer_load_dwordx4 {v(b+8,4)}, {v(vDA)}, {S(SRD_WS)}, {s(sD+2)} offen sc1')
        setexec(ALL)
    def done(b):
        add2(b, b, b+4); add2(vg, b, b+8)
    if cfg.dsleep: P(f's_sleep {cfg.dsleep}')
    poll('xd', issue, 3, 192, 12, [2, 6, 10], done)
    stamp('R_xd')
    colsum()
    rnd(vg)
    P(f'v_mul_f32 {v(vg)}, {v(vg)}, {v(vGBv)}'); rnd(vg)
    P(f'v_add_f32 {v(vg)}, {v(vg)}, {v(vXv)}\nv_mov_b32 {v(vg+1)}, {v(vg)}')
    P(f'v_permlane16_swap_b32 {v(vg)}, {v(vg+1)}')
    P(f'v_cvt_pk_bf16_f32 {v(vg)}, {v(vg)}, {v(vg+1)}')
    setexec(0xf)
    P(f'buffer_store_dword {v(vg)}, {v(vU16)}, {S(SRD_B)}, {s(sG+2)} offen {cfg.outpol}')
    stamp('R_end')
    def epoch(skip):
        P(f's_cmp_eq_u32 {s(sR)}, 0\ns_cbranch_scc0 {skip}')
        setexec(1)
        P(f'v_mov_b32 {v(vT)}, 0\nv_mov_b32 {v(vT+1)}, {s(sTAG)}')
        P(f'buffer_store_dword {v(vT+1)}, {v(vT)}, {S(SRD_WS)}, 0 offen sc1')
    if not cfg.epearly: epoch('L_END')
    if cfg.xdelay:
        P(f's_cmp_eq_u32 {s(sR)}, 0\ns_cbranch_scc0 L_END\ns_memrealtime s[76:77]\ns_waitcnt lgkmcnt(0)\ns_add_u32 {s(sT0)}, s76, {cfg.xdelay}')
        P(f'L_XDL:\ns_memrealtime s[76:77]\ns_waitcnt lgkmcnt(0)\ns_sub_u32 {s(sT1)}, s76, {s(sT0)}\ns_cmp_lt_i32 {s(sT1)}, 0\ns_cbranch_scc1 L_XDL')
    if cfg.gprobe:
        P(f's_cmp_eq_u32 {s(sR)}, 0\ns_cbranch_scc0 L_END\ns_mov_b64 exec, -1\ns_mov_b32 {s(sT0)}, {hex(DIAG)}')
        nw = 4 if cfg.gprobe.startswith('L') else 1
        P(f'v_lshlrev_b32 v1, 5, v0')
        if cfg.gprobe[0] == 'R': P('v_add_u32 v1, 8, v1')
        if cfg.gprobe[0] in 'MR': P('s_sleep 40')
        regs = []
        for q in range(4):
            for w in range(nw):
                r = 128 + 2*(q*4 + w); regs.append(r)
                P(f'buffer_load_dwordx2 v[{r}:{r+1}], v1, {S(SRD_WS)}, {s(sT0)} offen offset:{8*w} sc1')
            P(f's_add_u32 {s(sT0)}, {s(sT0)}, 2048')
        P('s_waitcnt vmcnt(0)')
        P(f'v_subrev_u32 v2, {s(sDIAG)}, v{regs[0]}\nv_subrev_u32 v3, {s(sDIAG)}, v{regs[0]+1}')
        for r in regs[1:]:
            P(f'v_subrev_u32 v4, {s(sDIAG)}, v{r}\nv_min_i32 v2, v2, v4\nv_subrev_u32 v4, {s(sDIAG)}, v{r+1}\nv_max_i32 v3, v3, v4')
        wave_reduce('v_min_i32', [2]); wave_reduce('v_max_i32', [3])
        P(f'v_sub_u32 v2, v3, v2\nv_readlane_b32 {s(sT0)}, v2, 63\ns_nop 1\ns_min_u32 {s(sT0)}, {s(sT0)}, 5000\ns_memrealtime s[76:77]\ns_waitcnt lgkmcnt(0)\ns_add_u32 {s(sT0)}, {s(sT0)}, s76')
        P(f'L_GPR:\ns_memrealtime s[76:77]\ns_waitcnt lgkmcnt(0)\ns_sub_u32 {s(sT1)}, s76, {s(sT0)}\ns_cmp_lt_i32 {s(sT1)}, 0\ns_cbranch_scc1 L_GPR')
    if cfg.probe:
        P(f's_cmp_eq_u32 {s(sR)}, 0\ns_cbranch_scc0 L_END')
        i = stamps[cfg.probe]
        P(f's_waitcnt lgkmcnt(0)\ns_sub_u32 {s(sT0)}, {s(sDIAG+2*i)}, {s(sDIAG)}\ns_min_u32 {s(sT0)}, {s(sT0)}, 5000\ns_memrealtime s[76:77]\ns_waitcnt lgkmcnt(0)\ns_add_u32 {s(sT0)}, {s(sT0)}, s76')
        P(f'L_PROBE:\ns_memrealtime s[76:77]\ns_waitcnt lgkmcnt(0)\ns_sub_u32 {s(sT1)}, s76, {s(sT0)}\ns_cmp_lt_i32 {s(sT1)}, 0\ns_cbranch_scc1 L_PROBE')
    P('s_branch L_END')

    P('L_END:')
    if cfg.diag and not cfg.probe and not cfg.gprobe:
        P('s_waitcnt lgkmcnt(0)')
        P(f's_cmp_ge_u32 {s(sB)}, 256\ns_cbranch_scc1 L_END2')
        srd(SRD_WS, sWSP, WS_BYTES)
        P(f's_lshl_b32 {s(sT0)}, {s(sB)}, 3\ns_add_u32 {s(sT0)}, {s(sT0)}, {s(sW)}\ns_lshl_b32 {s(sT0)}, {s(sT0)}, 7\ns_add_u32 {s(sT0)}, {s(sT0)}, {hex(DIAG)}')
        P('s_mov_b64 exec, 1\nv_mov_b32 v1, 0')
        for i in range(9): P(f'v_mov_b32 v2, {s(sDIAG+2*i)}\nbuffer_store_dword v2, v1, {S(SRD_WS)}, {s(sT0)} offen offset:{4*i}')
        P('L_END2:')
    P('s_endpgm')
    P('L_CODE_END:')
    probs = P.fix()
    for p in probs: print('HAZARD across branch:', p, file=sys.stderr)
    head = open(f'cdna_kernels/{NAME}.s.ref').read().split('; Override launch')[0]
    txt = head
    txt += DOC
    txt += f'; @launch grid=(256,1,1) block=(512,1,1) lds={LDS_BYTES}\n'
    txt += f'.amdgcn_target "amdgcn-amd-amdhsa--gfx950"\n.text\n.globl {NAME}_kernel\n' + ('.p2align 12\n' if cfg.pgal else '') + f'.p2align 8\n.type {NAME}_kernel,@function\n{NAME}_kernel:\n'
    txt += P.text() + '\n'
    txt += f'''.section .rodata,"a"
.p2align 6
.amdhsa_kernel {NAME}_kernel
  .amdhsa_next_free_vgpr 256
  .amdhsa_next_free_sgpr 102
  .amdhsa_accum_offset 256
  .amdhsa_group_segment_fixed_size 0
  .amdhsa_kernarg_size 112
  .amdhsa_user_sgpr_count 2
  .amdhsa_user_sgpr_kernarg_segment_ptr 1
  .amdhsa_system_sgpr_workgroup_id_x 1
  .amdhsa_float_denorm_mode_32 3
.end_amdhsa_kernel
'''
    return txt, stamps

if __name__ == '__main__':
    out = sys.argv[1] if len(sys.argv) > 1 else f'cdna_kernels/{NAME}.s'
    class C(Cfg): pass
    for a in sys.argv[2:]:
        k, val = a.split('=', 1)
        setattr(C, k, eval(val))
    txt, stamps = gen(C)
    open(out, 'w').write(txt)
    print('written', out, len(txt), 'bytes', stamps)
```

```python
import sys, struct
from asmdsl import Prog

NAME = 'adaLN_cond__mha_block_cached__glu_gated_swiglu__decode'

def f2u(x): return struct.unpack('<I', struct.pack('<f', x))[0]
LOG2E = hex(f2u(1.4426950408889634))
NLOG2E = hex(f2u(-1.4426950408889634))
SCALE = hex(f2u(128 ** -0.5))
EPS = hex(f2u(1e-5))
R512 = hex(f2u(1/512))
ALL = (1 << 64) - 1

X1 = 0x1000
X4 = 0x9000
X3 = 0x19000
X1F = 0x1b000
X0 = 0x1d000
X0B = 0x194000
X2F = 0x1c000
XC = 0x180000
X4N = 0x1e0000
XPR = 0x190000
XP = 0x1f000
X2 = 0x20000
XA = 0x60000
XB = 0x200000
XD = 0xe0000
XE = 0x110000
XG = 0x197000
XB2 = 0x140000
X0C = 0x1a000
DIAG = 0x1a0000
WS_BYTES = 0x300000
L_P, L_OP, L_Q, L_FLAG = 0x20000, 0x20800, 0x21000, 0x21100
L_ST, L_U = 0x0, 0x1000
L_MS, L_ML, L_PAR = L_FLAG + 64, L_FLAG + 128, L_FLAG + 176
LDS_BYTES = 0x21200
NM = 43
TAGX = hex(sum(1 << (a*4+b*2+c) for a in (0,1) for b in (0,1) for c in (0,1) if (a ^ b) | c))

DOC = """;
;                  all QK^T of one L wave's tiles, true max and sum exchanged inside the head, normalised p
"""

class Cfg:
    depth = 8
    diag = False
    probe = None
    kpol = 'nt'
    vpol = 'nt'
    wpol = 'nt'
    ppol = ''
    sleep1 = 0
    sleep2 = 0
    sleep3 = 4
    sleep4 = 40
    prio = 3
    hint = 1
    hsleep = 3
    lsleep = 1
    pf = 'post'
    wq0 = 1
    dsched = (6, 12, 9)
    rot = 5
    npf = 8
    local = 1
    pipe = dict()
    psleep = dict()
    xcrep = 1
    xcline = 0
    nodpp = 0
    b0late = 1
    xcsleep = 0
    dnlate = 0
    xbrep = 0
    rwait = 1
    xbgrp = 0
    rsleep = 0
    dsleep = 0
    wob2 = 0
    epearly = 1
    ksplit = 0
    th = 0
    cpf = 1
    fakehalf = 0
    xdelay = 0
    gwait = 0
    tearly = 0
    pkand = 0
    acc2 = 0
    mlat = 0
    t2early = 0
    par = 'dyn'
    nsamp = 4
    nearloc = 1
    x4near = 0
    mlpw = 0
    xcmode = 0
    wfirst = 1
    wofirst = 0
    pkadd = 1
    split0 = 1
    lay2 = 1
    pgal = 1
    t1first = 0
    evenmlp = 1
    b0pre = 1
    cpf0 = 1
    lnopt = 1
    ackw = 1
    rearly = 1
    tlbw = 0
    gthr = 32
    gprobe = None
    dodd = None
    dvar = None
    outpol = ''
    uppol = 'nt'
    spin = 1 << 18

def v(a, n=1): return f'v{a}' if n == 1 else f'v[{a}:{a+n-1}]'
def s(a, n=1): return f's{a}' if n == 1 else f's[{a}:{a+n-1}]'

sB, sW = 2, 3
sKP, sVP = 4, 6
SRD_K, SRD_V, SRD_WS, SRD_A, SRD_B, SRD_C = 8, 12, 16, 20, 24, 28
sH, sJ, sX, sKK = 36, 37, 38, 39
sWSP = 40
sTAG, sIM, sR = 42, 43, 44
sT0, sT1, sT2 = 45, 46, 47
pWQ, pWO, pW1, pW3, pW2, pC, pWM, pX, pOUT = 48, 50, 54, 56, 58, 60, 62, 64, 66
sSPIN = 68
sO0, sO1, sO2, sO3 = 69, 70, 71, 72
sMASK = 74
sPAR, sNEAR = 52, 53
sT1B = 35
sLOC = 73
sG = 76
sDIAG = 84
vL = 0
vT = 1
vM = 4

def gen(cfg=Cfg):
    P = Prog()
    X4NEAR = bool(cfg.x4near and cfg.par is not None and not cfg.t2early)
    D = cfg.depth
    stamps = {}
    def stamp(name):
        if cfg.diag and name in cfg.diag:
            grp = name.split('_')[0]
            same = [n for n in cfg.diag if n.split('_')[0] == grp]
            if name == 'start': i = 0
            elif cfg.gprobe: i = 1
            elif grp == 'M': i = 8 - same.index(name)
            else: i = 1 + same.index(name)
            assert 0 <= i <= 8
            stamps[name] = i
            P(f's_memrealtime {s(sDIAG + 2*i, 2)}')
            if cfg.gprobe == name:
                assert i < 5
                P(f's_waitcnt lgkmcnt(0)\ns_mov_b32 s96, {s(sWSP)}\ns_mov_b32 s97, {s(sWSP+1)}\ns_mov_b32 s98, {hex(WS_BYTES)}\ns_mov_b32 s99, 0x20000')
                P(f's_lshl_b32 s100, {s(sB)}, 2\ns_and_b32 s101, {s(sW)}, 3\ns_add_u32 s100, s100, s101\ns_lshl_b32 s100, s100, 3\ns_add_u32 s100, s100, {hex(DIAG)}')
                P(f's_mov_b64 s[94:95], exec\ns_mov_b64 exec, 1\nv_mov_b32 v254, {s(sDIAG)}\nv_mov_b32 v255, {s(sDIAG+2*i)}\nv_mov_b32 v253, 0\nbuffer_store_dwordx2 v[254:255], v253, s[96:99], s100 offen sc1\ns_mov_b64 exec, s[94:95]')
    def srd(r, ptr, nbytes):
        P(f's_mov_b32 {s(r)}, {s(ptr)}\ns_mov_b32 {s(r+1)}, {s(ptr+1)}\ns_mov_b32 {s(r+2)}, {hex(nbytes)}\ns_mov_b32 {s(r+3)}, 0x20000')
    def S(r): return s(r, 4)
    def setexec(mask):
        lo, hi = mask & 0xffffffff, mask >> 32
        if mask == ALL: P('s_mov_b64 exec, -1')
        elif mask <= 64: P(f's_mov_b64 exec, {mask}')
        else: P(f's_mov_b32 exec_lo, {hex(lo)}\ns_mov_b32 exec_hi, {hex(hi)}')
    uid = [0]
    def lab(p):
        uid[0] += 1; return f'L_{p}{uid[0]}'
    def tagcheck_loop(issue, tagregs, name, sleep=0, after=None, nafter=0):
        top = lab(name)
        P(f's_mov_b32 {s(sSPIN)}, 0')
        P(f'{top}:')
        issue()
        if after: after()
        P(f's_add_u32 {s(sSPIN)}, {s(sSPIN)}, 1\ns_cmp_gt_u32 {s(sSPIN)}, {cfg.spin}\ns_cbranch_scc1 L_END')
        P(f's_waitcnt vmcnt({nafter if after else 0})')
        if len(tagregs) == 1:
            P(f'v_cmp_ne_u32 vcc, {s(sTAG)}, {v(tagregs[0])}')
        else:
            P(f'v_xor_b32 {v(vT)}, {s(sTAG)}, {v(tagregs[0])}\nv_xor_b32 {v(vT+1)}, {s(sTAG)}, {v(tagregs[1])}')
            for k, r in enumerate(tagregs[2:]):
                P(f'v_bitop3_b32 {v(vT + (k & 1))}, {v(r)}, {s(sTAG)}, {v(vT + (k & 1))} bitop3:{TAGX}')
            P(f'v_or_b32 {v(vT)}, {v(vT)}, {v(vT+1)}\nv_cmp_ne_u32 vcc, 0, {v(vT)}')
        if sleep:
            dn = lab(name + 'd')
            P(f's_cbranch_vccz {dn}\ns_sleep {sleep}\ns_branch {top}\n{dn}:')
        else: P(f's_cbranch_vccnz {top}')
    def poll(name, issue, nl, base, stride, tagoff, done, issued=False):
        NS = cfg.pipe.get(name, 1)
        top, join = lab(name), lab(name + 'j')
        ex = [lab(name + 'x') for _ in range(NS)]
        P(f's_mov_b32 {s(sSPIN)}, 0')
        for i in range(NS - 1): issue(base + i*stride)
        if issued:
            assert NS == 1
            sk = lab(name + 's'); P(f's_branch {sk}')
        P(f'{top}:')
        for i in range(NS):
            issue(base + ((i + NS - 1) % NS)*stride)
            if issued: P(f'{sk}:')
            if i == 0: P(f's_add_u32 {s(sSPIN)}, {s(sSPIN)}, 1\ns_cmp_gt_u32 {s(sSPIN)}, {cfg.spin}\ns_cbranch_scc1 L_END')
            P(f's_waitcnt vmcnt({(NS-1)*nl})')
            tr = [base + i*stride + t for t in tagoff]
            if len(tr) == 1:
                P(f'v_cmp_ne_u32 vcc, {s(sTAG)}, {v(tr[0])}')
            else:
                P(f'v_xor_b32 {v(vT)}, {s(sTAG)}, {v(tr[0])}\nv_xor_b32 {v(vT+1)}, {s(sTAG)}, {v(tr[1])}')
                for k, r in enumerate(tr[2:]):
                    P(f'v_bitop3_b32 {v(vT + (k & 1))}, {v(r)}, {s(sTAG)}, {v(vT + (k & 1))} bitop3:{TAGX}')
                P(f'v_or_b32 {v(vT)}, {v(vT)}, {v(vT+1)}\nv_cmp_ne_u32 vcc, 0, {v(vT)}')
            ps = cfg.psleep.get(name, 0)
            if ps:
                P(f's_cbranch_vccz {ex[i]}\ns_sleep {ps}')
                if i + 1 == NS: P(f's_branch {top}')
            else: P(f's_cbranch_vccz {ex[i]}' if i + 1 < NS else f's_cbranch_vccnz {top}')
        for i in reversed(range(NS)):
            P(f'{ex[i]}:')
            done(base + i*stride)
            if i > 0: P(f's_branch {join}')
        P(f'{join}:')
    def poll_groups(name, groups):
        top = lab(name)
        P(f's_mov_b32 {s(sSPIN)}, 0\ns_mov_b32 {s(sT0)}, {(1 << len(groups)) - 1}')
        P(f'{top}:')
        for g, (issue, tr) in enumerate(groups):
            sk = lab(name + 'i')
            P(f's_bitcmp1_b32 {s(sT0)}, {g}\ns_cbranch_scc0 {sk}')
            issue()
            P(f'{sk}:')
        P(f's_add_u32 {s(sSPIN)}, {s(sSPIN)}, 1\ns_cmp_gt_u32 {s(sSPIN)}, {cfg.spin}\ns_cbranch_scc1 L_END')
        P('s_waitcnt vmcnt(0)')
        for g, (issue, tr) in enumerate(groups):
            P(f'v_xor_b32 {v(vT + (g & 1))}, {s(sTAG)}, {v(tr[0])}')
            for r in tr[1:]: P(f'v_bitop3_b32 {v(vT + (g & 1))}, {v(r)}, {s(sTAG)}, {v(vT + (g & 1))} bitop3:{TAGX}')
            P(f'v_cmp_ne_u32 {s(sG+4+2*(g & 1),2)}, 0, {v(vT + (g & 1))}')
            P(f's_cmp_lg_u64 {s(sG+4+2*(g & 1),2)}, 0\ns_cselect_b32 {s(sT1)}, {1 << g}, 0')
            P(f's_or_b32 {s(sT0)}, {s(sT1)}, {s(sT0) if g else s(sT1)}')
        P(f's_cbranch_scc1 {top}')
    def publish_loc(d, vaddr, soff, mask=None, flag=sLOC):
        if not cfg.local: return publish(d, vaddr, soff, mask)
        far, j2 = lab('far'), lab('pb')
        if mask: setexec(mask)
        P(f's_cmp_eq_u32 {s(flag)}, 1\ns_cbranch_scc0 {far}')
        P(f'buffer_store_dwordx4 {v(d,4)}, {v(vaddr)}, {S(SRD_WS)}, {s(soff)} offen')
        P(f's_branch {j2}\n{far}:')
        publish(d, vaddr, soff)
        P(f'{j2}:')
        if mask: setexec(ALL)
    def afrag(dst, src, dpp=''):
        for w in range(4):
            if dpp: P(f'v_and_b32_dpp {v(dst+w)}, {v(src)}, {v(vM+w)} {dpp} row_mask:0xf bank_mask:0xf')
            else: P(f'v_and_b32 {v(dst+w)}, {v(src)}, {v(vM+w)}')
    def mfma(d, a, b, first=False):
        P(f'v_mfma_f32_16x16x32_bf16 {v(d,4)}, {v(a,4)}, {v(b,4)}, {"0" if first else v(d,4)}')
    vF, vHM, vPP = 244, 248, 250
    def afrag_pk(dst, src, dpp, k):
        pp = vPP + 2*(k & 1)
        if dpp: P(f'v_and_b32_dpp {v(pp)}, {v(src)}, {v(vHM)} {dpp} row_mask:0xf bank_mask:0xf')
        else: P(f'v_and_b32 {v(pp)}, {v(src)}, {v(vHM)}')
        return [f'v_pk_mul_f32 {v(dst+2*w,2)}, {v(pp,2)}, {v(vF+2*w,2)} op_sel_hi:[0,1]' for w in range(2)]
    def chain(d, n, bregs, srcs, areg):
        if cfg.pkand:
            pend = afrag_pk(areg, *srcs[0], 0)
            for x in pend: P(x)
            if n > 1: pend = afrag_pk(areg + 4, *srcs[1], 1)
            for i in range(n):
                if i + 1 < n:
                    for x in pend: P(x)
                if i + 2 < n: pend = afrag_pk(areg + 4*(i & 1) + 8*(1 - 2*0)*0 if False else areg + 4*(i & 1), *srcs[i+2], i) if False else None
                mfma(d, areg + 4*(i & 1), bregs[i], first=(i == 0))
                if i + 2 < n: pend = afrag_pk(areg + 4*(i & 1), *srcs[i+2], i)
            return
        if cfg.nodpp and srcs[0][1]:
            bc = 224
            for i in range(n): P(f'v_mov_b32_dpp {v(bc+i)}, {v(srcs[i][0])} {srcs[i][1]} row_mask:0xf bank_mask:0xf')
            srcs = [(bc+i, '') for i in range(n)]
        afrag(areg, *srcs[0])
        d2 = 32
        for i in range(n):
            if i + 1 < n: afrag(areg + 4*((i+1) & 1), *srcs[i+1])
            if cfg.acc2 and n >= 8: mfma(d2 if i & 1 else d, areg + 4*(i & 1), bregs[i], first=(i < 2))
            else: mfma(d, areg + 4*(i & 1), bregs[i], first=(i == 0))
        if cfg.acc2 and n >= 8:
            for r in range(0, 4, 2): P(f'v_pk_add_f32 {v(d+r,2)}, {v(d+r,2)}, {v(d2+r,2)}')
    def finish2(d):
        P(f'v_permlane32_swap_b32 {v(d)}, {v(d+2)}\nv_permlane32_swap_b32 {v(d+1)}, {v(d+3)}')
        P(f'v_add_f32_dpp {v(d)}, {v(d+2)}, {v(d)} row_ror:8 row_mask:0xf bank_mask:0xf')
        P(f'v_add_f32_dpp {v(d+1)}, {v(d+3)}, {v(d+1)} row_ror:8 row_mask:0xf bank_mask:0xf')
        P(f'v_mov_b32 {v(d+2)}, {s(sTAG)}')
    def finish1(d):
        P(f'v_permlane32_swap_b32 {v(d)}, {v(d+2)}\nv_permlane32_swap_b32 {v(d+1)}, {v(d+3)}')
        P(f'v_mov_b32 {v(d+2)}, {s(sTAG)}')
    def publish(d, vaddr, soff, mask=None):
        if mask: setexec(mask)
        P(f'buffer_store_dwordx4 {v(d,4)}, {v(vaddr)}, {S(SRD_WS)}, {s(soff)} offen sc1')
        if mask: setexec(ALL)
    M2SET = 0x00ff00ff00ff00ff
    def lohi(r):
        P(f'v_mov_b32 {v(r+2)}, {v(r)}\nv_mov_b32 {v(r+3)}, {v(r+1)}')
        for e in range(2): P(f'v_mov_b32_dpp {v(r+2+e)}, {v(r+e)} row_shl:4 row_mask:0xf bank_mask:0x5')
        for e in range(2): P(f'v_mov_b32_dpp {v(r+e)}, {v(r+e)} row_shr:4 row_mask:0xf bank_mask:0xa')
    def lohi_srcs(r):
        out = []
        for i in range(16):
            u = i >> 1; a = u & 3
            out.append((r + (2 if u >= 4 else 0) + (i & 1), f'quad_perm:[{a},{a},{a},{a}]'))
        return out
    def lds_wait(name, vaddr, n, dst, chk, sleep=0):
        top = lab(name)
        op = {1: 'ds_read_b32', 2: 'ds_read_b64', 4: 'ds_read_b128'}[n]
        P(f's_mov_b32 {s(sSPIN)}, 0')
        P(f'{top}:')
        P(f'{op} {v(dst,n)}, {v(vaddr)}')
        P(f's_add_u32 {s(sSPIN)}, {s(sSPIN)}, 1\ns_cmp_gt_u32 {s(sSPIN)}, {cfg.spin*8}\ns_cbranch_scc1 L_END')
        P('s_waitcnt lgkmcnt(0)')
        if len(chk) == 2:
            P(f'v_and_b32 {v(vT)}, {v(chk[0])}, {v(chk[1])}\nv_cmp_eq_u32 vcc, 0, {v(vT)}')
        else: P(f'v_cmp_eq_u32 vcc, 0, {v(chk[0])}')
        if sleep:
            done = lab(name + 'd')
            P(f's_cbranch_vccz {done}\ns_sleep {sleep}\ns_branch {top}\n{done}:')
        else: P(f's_cbranch_vccnz {top}')
    def hint_wait(name, soff):
        top = lab(name)
        P(f's_add_u32 {s(sMASK)}, {s(sWSP)}, {s(soff)}\ns_addc_u32 {s(sMASK+1)}, {s(sWSP+1)}, 0\ns_mov_b32 {s(sSPIN)}, 0')
        P(f'{top}:')
        P(f's_load_dwordx8 {s(sG,8)}, {s(sMASK,2)}, 0 glc')
        P(f's_add_u32 {s(sSPIN)}, {s(sSPIN)}, 1\ns_cmp_gt_u32 {s(sSPIN)}, {cfg.spin}\ns_cbranch_scc1 L_END')
        P('s_waitcnt lgkmcnt(0)')
        P(f's_xor_b32 {s(sG)}, {s(sG)}, {s(sTAG)}')
        for k in range(1, 8): P(f's_xor_b32 {s(sG+k)}, {s(sG+k)}, {s(sTAG)}\ns_or_b32 {s(sG)}, {s(sG)}, {s(sG+k)}')
        done = lab(name + 'd')
        P(f's_cbranch_scc0 {done}')
        if cfg.hsleep: P(f's_sleep {cfg.hsleep}')
        P(f's_branch {top}\n{done}:')
    def par_read(r):
        if cfg.par == 'dyn': P(f'v_mov_b32 {v(r)}, {hex(L_PAR)}\nds_read_b32 {v(r)}, {v(r)}')
    def par_use(r):
        if cfg.par == 'dyn': P(f's_waitcnt lgkmcnt(0)\nv_readfirstlane_b32 {s(sPAR)}, {v(r)}\ns_and_b32 {s(sPAR)}, {s(sPAR)}, 1')
        else: P(f's_mov_b32 {s(sPAR)}, {cfg.par or 0}')
        P(f's_lshr_b32 {s(sNEAR)}, {s(sX)}, 2\ns_xor_b32 {s(sNEAR)}, {s(sNEAR)}, {s(sPAR)}\ns_lshl_b32 {s(sNEAR)}, {s(sNEAR)}, 13')
    def wave_reduce(op, regs):
        for mod in ('quad_perm:[1,0,3,2] row_mask:0xf', 'quad_perm:[2,3,0,1] row_mask:0xf', 'row_ror:4 row_mask:0xf', 'row_ror:8 row_mask:0xf',
                    'row_bcast:15 row_mask:0xa', 'row_bcast:31 row_mask:0xc'):
            for r in regs: P(f'{op}_dpp {v(r)}, {v(r)}, {v(r)} {mod} bank_mask:0xf')
    def unpack(lo, hi, src):
        if lo == src: P(f'v_and_b32 {v(hi)}, 0xffff0000, {v(src)}\nv_lshlrev_b32 {v(lo)}, 16, {v(src)}')
        else: P(f'v_lshlrev_b32 {v(lo)}, 16, {v(src)}\nv_and_b32 {v(hi)}, 0xffff0000, {v(src)}')
    def silu_multi(rs, ts):
        for r, t in zip(rs, ts): P(f'v_mul_f32 {v(t)}, {NLOG2E}, {v(r)}')
        for r, t in zip(rs, ts): P(f'v_exp_f32 {v(t)}, {v(t)}')
        for r, t in zip(rs, ts): P(f'v_add_f32 {v(t)}, 1.0, {v(t)}')
        for r, t in zip(rs, ts): P(f'v_rcp_f32 {v(t)}, {v(t)}')
        for r, t in zip(rs, ts): P(f'v_mul_f32 {v(r)}, {v(r)}, {v(t)}')
    def add2(d, a, b):
        if cfg.pkadd: P(f'v_pk_add_f32 {v(d,2)}, {v(a,2)}, {v(b,2)}')
        else:
            for e in range(2): P(f'v_add_f32 {v(d+e)}, {v(a+e)}, {v(b+e)}')
    def rnd(r): P(f'v_cvt_pk_bf16_f32 {v(r)}, {v(r)}, {v(r)}\nv_and_b32 {v(r)}, 0xffff0000, {v(r)}')

    vMA, vMB, vMC, vPUB = 16, 17, 18, 19
    vMT, vD0, vAA, vS4 = 64, 36, 52, 40
    def modtile_issue(sRB, sCOL):
        srd(SRD_A, pC, 1024); srd(SRD_B, pWM, 512*6144)
        P(f's_lshl_b32 {s(sO1)}, {s(sRB)}, 8')
        P(f'buffer_load_dword {v(vMC)}, {v(vMA)}, {S(SRD_A)}, {s(sO1)} offen')
        P(f's_mul_i32 {s(sO1)}, {s(sRB)}, {128*6144}\ns_add_u32 {s(sO1)}, {s(sO1)}, {s(sCOL)}')
        for i in range(16):
            P(f'buffer_load_dwordx4 {v(vMT+4*i,4)}, {v(vMB)}, {S(SRD_B)}, {s(sO1)} offen {cfg.wpol}')
            if i < 15: P(f's_add_u32 {s(sO1)}, {s(sO1)}, 6144')
    def modtile_compute(nafter, soff, both=False):
        if nafter: stamp('C0_cw')
        P(f's_waitcnt vmcnt({16+nafter})')
        if nafter: stamp('C0_c')
        unpack(vS4, vS4+1, vMC)
        silu_multi([vS4, vS4+1], [vS4+2, vS4+3])
        for e in range(2): P(f'v_cvt_pk_bf16_f32 {v(vS4+e)}, {v(vS4+e)}, {v(vS4+e)}')
        lohi(vS4)
        P(f's_waitcnt vmcnt({nafter})')
        if nafter: stamp('C0_t1')
        chain(vD0, 16, [vMT+4*i for i in range(16)], lohi_srcs(vS4), vAA)
        finish2(vD0)
        if both:
            for e in range(2): P(f'v_mov_b32_dpp {v(vD0+e)}, {v(vD0+e)} row_ror:8 row_mask:0xf bank_mask:0xc')
            if cfg.par == 'dyn':
                P(f'v_mov_b32 {v(vT+2)}, {hex(L_PAR)}')
                lds_wait('pw', vT+2, 1, 28, [28])
                P(f'v_lshrrev_b32 {v(vT)}, 3, {v(vL)}\nv_xor_b32 {v(vT)}, {v(28)}, {v(vT)}')
            else: P(f'v_lshrrev_b32 {v(vT)}, 3, {v(vL)}\nv_xor_b32 {v(vT)}, {cfg.par}, {v(vT)}')
            P(f'v_and_b32 {v(vT)}, 1, {v(vT)}\nv_lshl_add_u32 {v(vT)}, {v(vT)}, 13, {v(vPUB)}')
            publish(vD0, vT, soff)
        else: publish(vD0, vPUB, soff, M2SET)

    P(f's_cmp_ge_u32 {s(sB)}, 256\ns_cbranch_scc1 L_END')
    if cfg.diag:
        for i in range(9): P(f's_mov_b32 {s(sDIAG+2*i)}, 0')
    stamp('start')
    P(f's_load_dwordx4 {s(sKP,4)}, s[0:1], 8')
    P(f's_load_dwordx16 {s(pWQ,16)}, s[0:1], 24')
    P(f's_load_dwordx2 {s(sWSP,2)}, s[0:1], 104')
    P(f's_load_dwordx2 {s(pX,2)}, s[0:1], 0')
    P(f's_load_dwordx2 {s(pOUT,2)}, s[0:1], 88')
    P(f'v_lshrrev_b32 {v(vT)}, 6, v0\nv_and_b32 {v(vL)}, 63, v0')
    P(f'v_readfirstlane_b32 {s(sW)}, {v(vT)}')
    P(f'v_lshlrev_b32 {v(vT)}, 2, {v(vL)}\nv_add_u32 {v(vT)}, {hex(L_FLAG)}, {v(vT)}\nv_mov_b32 {v(vT+1)}, 0')
    P(f'ds_write_b32 {v(vT)}, {v(vT+1)}')
    P(f's_and_b32 {s(sH)}, {s(sB)}, 31\ns_lshr_b32 {s(sJ)}, {s(sB)}, 5\ns_and_b32 {s(sX)}, {s(sB)}, 7\ns_lshr_b32 {s(sKK)}, {s(sB)}, 3')
    if cfg.split0: P(f's_cmp_ge_u32 {s(sW)}, 4\ns_cbranch_scc1 L_CPRE')
    vKA, vVA = 8, 12
    P(f'v_lshrrev_b32 {v(vT)}, 4, {v(vL)}\nv_and_b32 {v(vT+1)}, 15, {v(vL)}')
    P(f'v_lshlrev_b32 {v(vVA)}, 10, {v(vT)}\nv_lshl_add_u32 {v(vVA)}, {v(vT+1)}, 4, {v(vVA)}')
    if cfg.ksplit:
        P(f'v_lshlrev_b32 {v(vT+2)}, 2, {v(vT)}\nv_xor_b32 {v(vT+1)}, {v(vT+1)}, {v(vT+2)}\nv_lshlrev_b32 {v(vT+1)}, 4, {v(vT+1)}\nv_lshl_add_u32 {v(vKA)}, {v(vT)}, 10, {v(vT+1)}')
        for i in range(1, 4): P(f'v_xor_b32 {v(vKA+i)}, {16*i}, {v(vKA)}')
    else:
        P(f'v_xor_b32 {v(vT+1)}, {v(vT+1)}, {v(vT)}\nv_lshlrev_b32 {v(vT+1)}, 4, {v(vT+1)}\nv_lshl_add_u32 {v(vKA)}, {v(vT)}, 8, {v(vT+1)}')
        for i in range(1, 4): P(f'v_xor_b32 {v(vKA+i)}, {64*i}, {v(vKA)}')
    P(f's_lshl_b32 {s(sO0)}, {s(sH)}, 20\ns_lshl_b32 {s(sO3)}, {s(sJ)}, 2\ns_add_u32 {s(sO3)}, {s(sO3)}, {s(sW)}\ns_lshl_b32 {s(sO3)}, {s(sO3)}, 12')
    vXF, vXS, vL16, vWA, vXA = 28, 32, 60, 62, 33
    vWQ = 128
    def wq_issue():
        srd(SRD_C, pWQ, 4 << 20)
        P(f's_lshl_b32 {s(sO2)}, {s(sJ)}, 19\ns_lshl_b32 {s(sT0)}, {s(sH)}, 8\ns_add_u32 {s(sO2)}, {s(sO2)}, {s(sT0)}')
        for i in range(16):
            P(f'buffer_load_dwordx4 {v(vWQ+4*i,4)}, {v(vWA)}, {S(SRD_C)}, {s(sO2)} offen {cfg.wpol}')
            if i < 15: P(f's_add_u32 {s(sO2)}, {s(sO2)}, {8192 if (i & 1) == 0 else 8192*7}')
    def code_prefetch(w, late=False):
        if not cfg.cpf or (bool(cfg.cpf0 and cfg.split0) == late): return
        P(f's_cmp_eq_u32 {s(sW)}, {w}\ns_cbranch_scc0 L_NOCP')
        P(f's_getpc_b64 {s(20,2)}')
        P('L_PCREF:')
        P(f's_sub_u32 s20, s20, L_PCREF-{NAME}_kernel\ns_subb_u32 s21, s21, 0')
        P(f's_lshl_b32 {s(sT0)}, {s(sKK)}, 3\nv_and_b32 {v(vT)}, 7, {v(vL)}\nv_add_u32 {v(vT)}, {s(sT0)}, {v(vT)}\nv_lshlrev_b32 {v(vT)}, 7, {v(vT)}')
        P(f'v_min_u32 {v(vT)}, L_CODE_END-{NAME}_kernel-4, {v(vT)}')
        P(f'global_load_dword {v(240)}, {v(vT)}, s[20:21]')
        P('L_NOCP:')
    def cpre():
        P(f'v_lshlrev_b32 {v(vMA)}, 2, {v(vL)}\nv_lshrrev_b32 {v(vT)}, 3, {v(vL)}\nv_mul_u32_u24 {v(vMB)}, {16*6144}, {v(vT)}\nv_and_b32 {v(vT+1)}, 7, {v(vL)}\nv_lshl_add_u32 {v(vMB)}, {v(vT+1)}, 4, {v(vMB)}')
        P(f'v_lshrrev_b32 {v(vT)}, 4, {v(vL)}\nv_lshlrev_b32 {v(vT)}, 7, {v(vT)}\nv_lshl_add_u32 {v(vPUB)}, {v(vT+1)}, 4, {v(vT)}')
        P(f'v_lshlrev_b32 {v(vL16)}, 4, {v(vL)}')
        P(f'v_bfe_u32 {v(vT)}, {v(vL)}, 4, 1\nv_lshrrev_b32 {v(vT+2)}, 5, {v(vL)}\nv_lshl_add_u32 {v(vT)}, {v(vT)}, 1, {v(vT+2)}')
        P(f'v_lshl_add_u32 {v(vXA)}, {v(vT+1)}, 2, {v(vT)}\nv_lshlrev_b32 {v(vXA)}, 2, {v(vXA)}\nv_lshlrev_b32 {v(vWA)}, 14, {v(vT)}')
        P(f'v_and_b32 {v(vT+1)}, 15, {v(vL)}\nv_lshl_add_u32 {v(vWA)}, {v(vT+1)}, 4, {v(vWA)}')
        if cfg.tearly == 1:
            P(f's_sub_u32 {s(sT2)}, {s(sKK)}, 16\ns_lshl_b32 {s(sT2)}, {s(sT2)}, 2\ns_add_u32 {s(sT2)}, {s(sT2)}, {s(sX)}\ns_lshr_b32 {s(sT1B)}, {s(sT2)}, 3\ns_and_b32 {s(sT2)}, {s(sT2)}, 7')
            P(f's_cmp_lt_u32 {s(sX)}, 4\ns_cselect_b32 {s(sT2)}, {s(sT2)}, 99\ns_cmp_ge_u32 {s(sKK)}, 16\ns_cselect_b32 {s(sT2)}, {s(sT2)}, 99')
        else:
            P(f's_sub_u32 {s(sT2)}, {s(sKK)}, 16\ns_mov_b32 {s(sT1B)}, {s(sX)}')
        P(f's_and_b32 {s(sT0)}, {s(sT2)}, 1\ns_lshl_b32 {s(sT0)}, {s(sT0)}, 10\ns_lshl_b32 {s(sT1)}, {s(sT1B)}, 7\ns_add_u32 {s(sT1)}, {s(sT1)}, {s(sT0)}\ns_lshr_b32 {s(sT0)}, {s(sT2)}, 1\ns_lshl_b32 {s(sO2)}, {s(sJ)}, 7')
        P('s_waitcnt lgkmcnt(0)')
        if cfg.t1first:
            assert not cfg.tearly
            P(f's_cmp_eq_u32 {s(sW)}, 4\ns_cbranch_scc1 L_ISW4\ns_cmp_lt_u32 {s(sT2)}, 8\ns_cbranch_scc0 L_B0\ns_barrier\ns_branch L_B0\nL_ISW4:')
        else: P(f's_cmp_eq_u32 {s(sW)}, 4\ns_cbranch_scc0 L_B0')
        if cfg.b0late: P('s_setprio 3')
        P(f's_cmp_lt_u32 {s(sT2)}, 8\ns_cbranch_scc0 L_XLD')
        stamp('C0_pre')
        modtile_issue(sT0, sT1)
        stamp('C0_t1i')
        if cfg.t1first: P('s_barrier')
        P('L_XLD:')
        srd(SRD_C, pX, 1024)
        P(f'buffer_load_dwordx4 {v(vXF,4)}, {v(vL16)}, {S(SRD_C)}, 0 offen')
        P(f'buffer_load_dword {v(vXS)}, {v(vXA)}, {S(SRD_C)}, {s(sO2)} offen')
        if cfg.wq0 == 2:
            P(f's_cmp_lt_u32 {s(sT2)}, 8\ns_cbranch_scc1 L_NOWQ0')
            wq_issue()
            P('L_NOWQ0:')
        elif cfg.wq0: wq_issue()
    if not cfg.split0: cpre()
    else: assert cfg.b0late
    if not cfg.split0:
        P('L_B0:')
        if not cfg.b0late: P('s_barrier')
        P(f's_cmp_ge_u32 {s(sW)}, 4\ns_cbranch_scc1 L_CW')

    if not cfg.split0: srd(SRD_K, sKP, 32 << 20)
    sTL, sRS, sTL0 = sG, sG+1, sG+2
    P(f's_mul_i32 {s(sTL0)}, {s(sH)}, {cfg.th}\ns_and_b32 {s(sTL0)}, {s(sTL0)}, 7\ns_lshl_b32 {s(sTL0)}, {s(sTL0)}, 17')
    def firsttile():
        P(f's_mov_b32 {s(sTL)}, {s(sTL0)}\ns_mov_b32 {s(sRS)}, {s(sO3)}\ns_add_u32 {s(sO1)}, {s(sO0)}, {s(sTL)}\ns_add_u32 {s(sO1)}, {s(sO1)}, {s(sRS)}')
    def nexttile():
        P(f's_add_u32 {s(sTL)}, {s(sTL)}, 0x20000\ns_and_b32 {s(sTL)}, {s(sTL)}, 0xe0000\ns_add_u32 {s(sRS)}, {s(sRS)}, {cfg.rot << 12}\ns_and_b32 {s(sRS)}, {s(sRS)}, 0x1f000\ns_add_u32 {s(sO1)}, {s(sO0)}, {s(sTL)}\ns_add_u32 {s(sO1)}, {s(sO1)}, {s(sRS)}')
    firsttile()
    P(f's_lshl_b32 {s(sT0)}, {s(sW)}, 15\ns_mov_b32 m0, {s(sT0)}\ns_mov_b32 {s(sT1)}, 0')
    if cfg.split0:
        P('s_waitcnt lgkmcnt(0)')
        srd(SRD_K, sKP, 32 << 20)
        if cfg.t1first: P(f's_sub_u32 {s(sT2)}, {s(sKK)}, 16\ns_cmp_lt_u32 {s(sT2)}, 8\ns_cbranch_scc0 L_NOT1B\ns_barrier\nL_NOT1B:')
    stamp('L_k0')
    vV = 128
    def streamK(ds, sfx):
        DK = ds[0]
        P(f'L_KLOOP{sfx}:')
        for i in range(4):
            if cfg.ksplit and i: P(f's_add_u32 m0, {s(sT0)}, {768*i}')
            P(f's_waitcnt vmcnt({DK-1})')
            P(f'buffer_load_dwordx4 {v(vKA+i)}, {S(SRD_K)}, {s(sO1)} offen offset:{(256 if cfg.ksplit else 1024)*i} {cfg.kpol} lds')
        if cfg.b0late: P(f's_cmp_eq_u32 {s(sT1)}, 0\ns_cbranch_scc0 L_KL2{sfx}\ns_barrier\nL_KL2{sfx}:')
        nexttile()
        P(f's_add_u32 {s(sT0)}, {s(sT0)}, 4096\ns_mov_b32 m0, {s(sT0)}\ns_add_u32 {s(sT1)}, {s(sT1)}, 1\ns_cmp_lt_u32 {s(sT1)}, 8\ns_cbranch_scc1 L_KLOOP{sfx}')
    def streamV(ds, sfx):
        DK = ds[0]
        def DV(idx): return ds[0] if idx < ds[1] else ds[2]
        stamp('L_kissued')
        srd(SRD_V, sVP, 32 << 20)
        firsttile()
        P(f's_lshl_b32 {s(sT0)}, {s(sW)}, 3\ns_add_u32 {s(sT0)}, {s(sT0)}, {hex(L_FLAG)}\nv_mov_b32 {v(vT)}, {s(sT0)}\nv_mov_b32 {v(vT+1)}, 1')
        for idx in range(32):
            t, i = idx >> 2, idx & 3
            P(f's_waitcnt vmcnt({DV(idx)-1})')
            if idx == DK - 1:
                P(f'ds_write_b32 {v(vT)}, {v(vT+1)}')
                stamp('L_klanded')
            P(f'buffer_load_dwordx4 {v(vV+4*idx,4)}, {v(vVA)}, {S(SRD_V)}, {s(sO1)} offen offset:{256*i} {cfg.vpol}')
            if i == 3 and t < 7: nexttile()
    def stream(ds, sfx):
        streamK(ds, sfx); streamV(ds, sfx)
    if cfg.dvar:
        P(f's_getreg_b32 {s(sT2)}, hwreg(HW_REG_XCC_ID, 0, 3)')
        P(f's_bitcmp1_b32 {s(sT2)}, 2\ns_cbranch_scc1 L_STH')
        P(f's_bitcmp1_b32 {s(sT2)}, 0\ns_cbranch_scc1 L_ST1')
        stream(cfg.dvar[0], 'a'); P('s_branch L_STD\nL_ST1:')
        stream(cfg.dvar[1], 'b'); P('s_branch L_STD\nL_STH:')
        P(f's_bitcmp1_b32 {s(sT2)}, 0\ns_cbranch_scc1 L_ST3')
        stream(cfg.dvar[2], 'c'); P('s_branch L_STD\nL_ST3:')
        stream(cfg.dvar[3], 'd')
        P('L_STD:')
    elif cfg.dodd:
        P(f's_getreg_b32 {s(sT2)}, hwreg(HW_REG_XCC_ID, 0, 1)\ns_cmp_eq_u32 {s(sT2)}, 1\ns_cbranch_scc1 L_STO')
        stream(cfg.dsched, 'a'); P('s_branch L_STD\nL_STO:')
        stream(cfg.dodd, 'b')
        P('L_STD:')
    elif cfg.lay2:
        streamK(cfg.dsched, '')
        P('s_branch L_VPART')
        P('L_CPRE:')
        code_prefetch(7)
        cpre()
        P('L_B0:')
        if cfg.b0pre: P('s_barrier')
        P('s_branch L_CW\nL_VPART:')
        streamV(cfg.dsched, '')
    else: stream(cfg.dsched, '')
    stamp('L_vissued')
    def masks(pk=False):
        P(f'v_and_b32 {v(vT)}, 1, {v(vL)}\nv_lshlrev_b32 {v(vT)}, 4, {v(vT)}\nv_mov_b32 {v(vT+1)}, 0xffff\nv_lshlrev_b32 {v(vT+1)}, {v(vT)}, {v(vT+1)}')
        P(f'v_bfe_u32 {v(vT)}, {v(vL)}, 1, 2')
        for w in range(4):
            P(f'v_cmp_eq_u32 vcc, {w}, {v(vT)}\nv_cndmask_b32 {v(vM+w)}, 0, {v(vT+1)}, vcc')
            if pk and cfg.pkand: P(f'v_cndmask_b32 {v(vF+w)}, 0, 1.0, vcc')
        if pk and cfg.pkand: P(f'v_mov_b32 {v(vHM)}, {v(vT+1)}')
    def common_setup():
        P(f's_load_dword {s(sTAG)}, {s(sWSP,2)}, 0')
        srd(SRD_WS, sWSP, WS_BYTES)
        masks(True)
    masks()
    vPA, vOA, vP, vA, vD = 13, 14, 16, 48, 56
    P(f'v_lshrrev_b32 {v(vT)}, 4, {v(vL)}\nv_lshlrev_b32 {v(vT)}, 4, {v(vT)}\ns_lshl_b32 {s(sT0)}, {s(sW)}, 9\ns_add_u32 {s(sT0)}, {s(sT0)}, {hex(L_P)}\nv_add_u32 {v(vPA)}, {s(sT0)}, {v(vT)}')
    P(f's_add_u32 {s(sT0)}, {s(sT0)}, {hex(L_OP - L_P)}\nv_lshlrev_b32 {v(vT)}, 3, {v(vL)}\nv_add_u32 {v(vOA)}, {s(sT0)}, {v(vT)}')
    P('s_waitcnt lgkmcnt(0)')
    P('s_barrier')
    stamp('L_b1')
    for t in range(8): P(f'ds_read_b128 {v(vP+4*t,4)}, {v(vPA)} offset:{64*t}')
    P('s_waitcnt lgkmcnt(7)')
    afrag(vA, vP)
    for idx in range(32):
        if idx + 1 < 32:
            if (idx + 1) % 4 == 0: P(f's_waitcnt lgkmcnt({7 - (idx+1)//4})')
            afrag(vA + 4*((idx+1) & 1), vP + idx + 1)
        P(f's_waitcnt vmcnt({31-idx})')
        mfma(vD, vA + 4*(idx & 1), vV + 4*idx, first=(idx == 0))
    stamp('L_pv')
    P(f'v_permlane32_swap_b32 {v(vD)}, {v(vD+2)}\nv_permlane32_swap_b32 {v(vD+1)}, {v(vD+3)}')
    P(f'ds_write_b64 {v(vOA)}, {v(vD,2)}')
    P('s_waitcnt lgkmcnt(0)')
    P('s_barrier')
    P('s_endpgm' if not cfg.diag else 's_branch L_END')

    if cfg.split0 and not cfg.lay2:
        P('L_CPRE:')
        code_prefetch(7)
        cpre()
        P('L_B0:')
    P('L_CW:')
    if cfg.gprobe and cfg.gprobe[0] in 'MR':
        P(f's_waitcnt lgkmcnt(0)\ns_mov_b32 s96, {s(sWSP)}\ns_mov_b32 s97, {s(sWSP+1)}\ns_mov_b32 s98, {hex(WS_BYTES)}\ns_mov_b32 s99, 0x20000')
        P(f's_lshl_b32 s100, {s(sB)}, 2\ns_and_b32 s101, {s(sW)}, 3\ns_add_u32 s100, s100, s101\ns_lshl_b32 s100, s100, 3\ns_add_u32 s100, s100, {hex(DIAG)}')
        P(f's_mov_b64 exec, 1\nv_mov_b32 v254, {s(sDIAG)}\nv_mov_b32 v255, {s(sDIAG)}\nv_mov_b32 v253, 0\nbuffer_store_dwordx2 v[254:255], v253, s[96:99], s100 offen sc1\ns_mov_b64 exec, -1\ns_waitcnt vmcnt(0)')
    if cfg.b0late and not (cfg.b0pre and cfg.lay2 and cfg.split0 and not (cfg.dvar or cfg.dodd)): P('s_barrier')
    if cfg.prio: P(f's_setprio {cfg.prio}')
    P(f's_cmp_eq_u32 {s(sW)}, 4\ns_cbranch_scc0 L_C123')
    vGA = 192
    common_setup()
    P('s_waitcnt lgkmcnt(0)')
    P(f's_add_u32 {s(sTAG)}, {s(sTAG)}, 1')
    if cfg.local:
        P(f's_getreg_b32 {s(sLOC)}, hwreg(HW_REG_XCC_ID, 0, 3)\ns_lshl_b32 {s(sT0)}, {s(sTAG)}, 3\ns_or_b32 {s(sLOC)}, {s(sLOC)}, {s(sT0)}')
        P(f's_lshl_b32 {s(sO3)}, {s(sH)}, 7\ns_add_u32 {s(sO3)}, {s(sO3)}, {hex(X0)}\ns_lshl_b32 {s(sT0)}, {s(sJ)}, 2\ns_add_u32 {s(sT0)}, {s(sT0)}, {s(sO3)}\nv_mov_b32 {v(vT)}, {s(sT0)}\nv_mov_b32 {v(vT+1)}, {s(sLOC)}')
        P(f's_lshl_b32 {s(sR)}, {s(sX)}, 3\ns_lshr_b32 {s(sT0)}, {s(sKK)}, 2\ns_add_u32 {s(sR)}, {s(sR)}, {s(sT0)}\ns_lshl_b32 {s(sR)}, {s(sR)}, 7\ns_add_u32 {s(sR)}, {s(sR)}, {hex(X0B)}')
        P(f's_and_b32 {s(sT0)}, {s(sKK)}, 3\ns_lshl_b32 {s(sT0)}, {s(sT0)}, 2\ns_add_u32 {s(sT0)}, {s(sT0)}, {s(sR)}\nv_writelane_b32 {v(vT)}, {s(sT0)}, 1')
        P(f's_lshl_b32 {s(sT0)}, {s(sX)}, 7\ns_lshl_b32 {s(sO2)}, {s(sKK)}, 2\ns_add_u32 {s(sT0)}, {s(sT0)}, {s(sO2)}\ns_add_u32 {s(sT0)}, {s(sT0)}, {hex(X0C)}\nv_writelane_b32 {v(vT)}, {s(sT0)}, 2')
        if cfg.mlat:
            P(f's_lshl_b32 {s(sT0)}, {s(sH)}, 7\ns_lshl_b32 {s(sO2)}, {s(sJ)}, 3\ns_add_u32 {s(sT0)}, {s(sT0)}, {s(sO2)}\ns_add_u32 {s(sT0)}, {s(sT0)}, {hex(X3)}\nv_writelane_b32 {v(vT)}, {s(sT0)}, 3')
            P(f's_add_u32 {s(sT0)}, {s(sT0)}, 4\nv_writelane_b32 {v(vT)}, {s(sT0)}, 4\nv_writelane_b32 {v(vT+1)}, 0, 3\nv_writelane_b32 {v(vT+1)}, 0, 4')
        setexec(31 if cfg.mlat else 7)
        P(f'buffer_store_dword {v(vT+1)}, {v(vT)}, {S(SRD_WS)}, 0 offen sc1')
        setexec(ALL)
    P(f's_cmp_lt_u32 {s(sT2)}, 8\ns_cbranch_scc0 L_NOT1')
    P(f's_lshl_b32 {s(sO2)}, {s(sT1B)}, 3\ns_add_u32 {s(sO2)}, {s(sO2)}, {s(sT2)}\ns_lshl_b32 {s(sO2)}, {s(sO2)}, 9\ns_add_u32 {s(sO2)}, {s(sO2)}, {hex(X1)}')
    modtile_compute((18 if cfg.wq0 == 1 else 2) + cfg.local, sO2)
    if cfg.hint:
        P(f's_lshl_b32 {s(sO2)}, {s(sT1B)}, 9\ns_lshl_b32 {s(sT0)}, {s(sT2)}, 2\ns_add_u32 {s(sO2)}, {s(sO2)}, {s(sT0)}\ns_add_u32 {s(sO2)}, {s(sO2)}, {hex(X1F)}\nv_lshlrev_b32 {v(vT)}, 7, {v(vL)}')
        setexec(0xf)
        P(f'buffer_store_dword {v(vD0+2)}, {v(vT)}, {S(SRD_WS)}, {s(sO2)} offen sc1')
        setexec(ALL)
    stamp('C0_x1pub')
    if cfg.wq0 != 1: wq_issue()
    P('s_branch L_T1D')
    P('L_NOT1:')
    if not cfg.wq0: wq_issue()
    P('L_T1D:')
    vx = 64
    P(f's_waitcnt vmcnt({16 + (cfg.local if cfg.wq0 == 1 else 0)})')
    for k in range(4): unpack(vx+2*k, vx+2*k+1, vXF+k)
    P(f'v_add_f32 {v(20)}, {v(vx)}, {v(vx+1)}\nv_add_f32 {v(21)}, {v(vx+2)}, {v(vx+3)}\nv_add_f32 {v(22)}, {v(vx+4)}, {v(vx+5)}\nv_add_f32 {v(23)}, {v(vx+6)}, {v(vx+7)}')
    P(f'v_add_f32 {v(20)}, {v(20)}, {v(21)}\nv_add_f32 {v(22)}, {v(22)}, {v(23)}\nv_add_f32 {v(20)}, {v(20)}, {v(22)}')
    wave_reduce('v_add_f32', [20])
    P(f'v_mul_f32 {v(20)}, {R512}, {v(20)}\nv_readlane_b32 {s(sT0)}, {v(20)}, 63')
    for k in range(8): P(f'v_subrev_f32 {v(vx+k)}, {s(sT0)}, {v(vx+k)}')
    P(f'v_mul_f32 {v(21)}, {v(vx)}, {v(vx)}')
    for k in range(1, 8): P(f'v_fmac_f32 {v(21)}, {v(vx+k)}, {v(vx+k)}')
    wave_reduce('v_add_f32', [21])
    P(f'v_mul_f32 {v(21)}, {R512}, {v(21)}')
    P(f'v_cvt_pk_bf16_f32 {v(22)}, {v(20)}, {v(21)}')
    P(f'v_and_b32 {v(21)}, 0xffff0000, {v(22)}\nv_lshlrev_b32 {v(20)}, 16, {v(22)}\nv_add_f32 {v(21)}, {EPS}, {v(21)}')
    rnd(21); P(f'v_sqrt_f32 {v(21)}, {v(21)}'); rnd(21); P(f'v_rcp_f32 {v(22)}, {v(21)}')
    P(f'v_readlane_b32 {s(sT0)}, {v(20)}, 63\nv_readlane_b32 {s(sT1)}, {v(21)}, 63\nv_readlane_b32 {s(sT2)}, {v(22)}, 63')
    vLN = 24
    unpack(vLN, vLN+1, vXS)
    for e in range(2): P(f'v_subrev_f32 {v(vLN+e)}, {s(sT0)}, {v(vLN+e)}')
    P(f'v_cvt_pk_bf16_f32 {v(20)}, {v(vLN)}, {v(vLN+1)}'); unpack(vLN, vLN+1, 20)
    for e in range(2): P(f'v_mul_f32 {v(20+e)}, {s(sT2)}, {v(vLN+e)}')
    for e in range(2): P(f'v_fma_f32 {v(vLN+e)}, -{v(20+e)}, {s(sT1)}, {v(vLN+e)}')
    for e in range(2): P(f'v_fma_f32 {v(vLN+e)}, {v(vLN+e)}, {s(sT2)}, {v(20+e)}')
    P(f'v_cvt_pk_bf16_f32 {v(20)}, {v(vLN)}, {v(vLN+1)}'); unpack(vLN, vLN+1, 20)
    P(f'v_bfe_u32 {v(vT)}, {v(vL)}, 3, 1\nv_lshlrev_b32 {v(vT)}, 9, {v(vT)}\nv_add_u32 {v(26)}, {v(vPUB)}, {v(vT)}')
    P(f's_lshl_b32 {s(sO0)}, {s(sJ)}, 12\ns_add_u32 {s(sO0)}, {s(sO0)}, {hex(X1)}')
    if cfg.hint:
        P(f's_lshl_b32 {s(sT0)}, {s(sJ)}, 2\ns_and_b32 {s(sT1)}, {s(sH)}, 3\ns_add_u32 {s(sT0)}, {s(sT0)}, {s(sT1)}\ns_lshl_b32 {s(sT0)}, {s(sT0)}, 7\ns_add_u32 {s(sT0)}, {s(sT0)}, {hex(X1F)}')
        hint_wait('h1h', sT0)
    else: P('s_waitcnt vmcnt(0)')
    if cfg.local:
        P(f's_add_u32 {s(sMASK)}, {s(sWSP)}, {s(sO3)}\ns_addc_u32 {s(sMASK+1)}, {s(sWSP+1)}, 0')
        P(f's_load_dwordx8 {s(sG,8)}, {s(sMASK,2)}, 0 glc')
        P(f's_load_dwordx4 s[8:11], {s(sWSP,2)}, {s(sR)} glc')
    stamp('C0_wq')
    if cfg.sleep1: P(f's_sleep {cfg.sleep1}')
    def issue():
        for k in range(4): P(f'buffer_load_dwordx4 {v(vGA+4*k,4)}, {v(26)}, {S(SRD_WS)}, {s(sO0)} offen offset:{1024*k} sc1')
    tagcheck_loop(issue, [vGA+4*k+2 for k in range(4)], 'h1')
    stamp('C0_h1')
    if cfg.local:
        P('s_waitcnt lgkmcnt(0)')
        P(f's_xor_b32 {s(sG)}, {s(sG)}, {s(sLOC)}')
        for k in range(1, 8): P(f's_xor_b32 {s(sG+k)}, {s(sG+k)}, {s(sLOC)}\ns_or_b32 {s(sG)}, {s(sG)}, {s(sG+k)}')
        P(f's_cselect_b32 {s(sT0)}, 0, 1')
        P(f's_xor_b32 s8, s8, {s(sLOC)}')
        for k in range(1, 4): P(f's_xor_b32 {s(8+k)}, {s(8+k)}, {s(sLOC)}\ns_or_b32 s8, s8, {s(8+k)}')
        P(f's_cselect_b32 {s(sR)}, 0, 1\ns_mov_b32 {s(sLOC)}, {s(sT0)}')
    b = vGA
    for e in range(2): P(f'v_add_f32 {v(b+e)}, {v(b+e)}, {v(b+4+e)}\nv_add_f32 {v(b+8+e)}, {v(b+8+e)}, {v(b+12+e)}')
    for e in range(2): P(f'v_add_f32 {v(b+e)}, {v(b+e)}, {v(b+8+e)}')
    P(f'v_cvt_pk_bf16_f32 {v(b+4)}, {v(b)}, {v(b+1)}\nv_mov_b32 {v(b+5)}, {v(b+4)}')
    P(f'v_mov_b32_dpp {v(b+4)}, {v(b+5)} row_ror:8 row_mask:0xf bank_mask:0xc')
    P(f'v_mov_b32_dpp {v(b+5)}, {v(b+5)} row_ror:8 row_mask:0xf bank_mask:0x3')
    unpack(b+8, b+9, b+4); unpack(b+6, b+7, b+5)
    P(f'v_add_f32 {v(b+6)}, 1.0, {v(b+6)}\nv_add_f32 {v(b+7)}, 1.0, {v(b+7)}\nv_cvt_pk_bf16_f32 {v(b+5)}, {v(b+6)}, {v(b+7)}')
    unpack(b+6, b+7, b+5)
    P(f'v_mul_f32 {v(b+6)}, {v(b+6)}, {v(vLN)}\nv_mul_f32 {v(b+7)}, {v(b+7)}, {v(vLN+1)}\nv_cvt_pk_bf16_f32 {v(b+5)}, {v(b+6)}, {v(b+7)}')
    unpack(b+6, b+7, b+5)
    P(f'v_add_f32 {v(b+6)}, {v(b+6)}, {v(b+8)}\nv_add_f32 {v(b+7)}, {v(b+7)}, {v(b+9)}')
    vH = 20
    P(f'v_cvt_pk_bf16_f32 {v(vH)}, {v(b+6)}, {v(b+6)}\nv_cvt_pk_bf16_f32 {v(vH+1)}, {v(b+7)}, {v(b+7)}')
    P(f's_lshl_b32 {s(sO1)}, {s(sH)}, 13\ns_add_u32 {s(sO1)}, {s(sO1)}, {hex(X2)}\ns_lshl_b32 {s(sO0)}, {s(sJ)}, 10\ns_add_u32 {s(sO0)}, {s(sO0)}, {s(sO1)}\ns_add_u32 {s(sO2)}, {s(sO1)}, 4096')
    chain(vD0, 16, [vWQ+4*i for i in range(16)], [(vH + (i & 1), f'row_newbcast:{i >> 1}') for i in range(16)], vAA)
    finish1(vD0)
    publish_loc(vD0, vL16, sO0)
    if cfg.hint:
        P(f's_lshl_b32 {s(sO3)}, {s(sH)}, 7\ns_add_u32 {s(sO3)}, {s(sO3)}, {hex(X2F)}\nv_mov_b32 {v(vT)}, 0\ns_lshl_b32 {s(sT0)}, {s(sJ)}, 2\ns_add_u32 {s(sT0)}, {s(sT0)}, {s(sO3)}')
        setexec(1)
        P(f'buffer_store_dword {v(vD0+2)}, {v(vT)}, {S(SRD_WS)}, {s(sT0)} offen sc1')
        setexec(ALL)
    stamp('C0_x2pub')
    P(f'v_bfe_u32 {v(vT)}, {v(vL)}, 4, 1\nv_lshrrev_b32 {v(vT+1)}, 5, {v(vL)}\nv_lshl_add_u32 {v(vT)}, {v(vT)}, 1, {v(vT+1)}\nv_and_b32 {v(vT+1)}, 15, {v(vL)}\nv_lshl_add_u32 {v(vT)}, {v(vT+1)}, 2, {v(vT)}')
    P(f'v_lshlrev_b32 {v(vT)}, 2, {v(vT)}\nv_add_u32 {v(26)}, {hex(L_Q)}, {v(vT)}')
    P(f'v_and_b32 {v(27)}, 3, {v(vL)}\nv_lshlrev_b32 {v(27)}, 3, {v(27)}\nv_add_u32 {v(27)}, {hex(L_FLAG + 4)}, {v(27)}\nv_mov_b32 {v(25)}, 1')
    if cfg.hint: hint_wait('qh', sO3)
    stamp('C0_qh')
    if cfg.sleep2: P(f's_sleep {cfg.sleep2}')
    def gather8(base_lo, base_hi):
        def issue():
            for k in range(8):
                P(f'buffer_load_dwordx4 {v(vGA+4*k,4)}, {v(vL16)}, {S(SRD_WS)}, {s(base_lo if k < 4 else base_hi)} offen offset:{1024*(k & 3)} sc1')
        return issue
    def sum8():
        for a, b2 in ((0, 1), (2, 3), (4, 5), (6, 7), (0, 2), (4, 6), (0, 4)):
            for e in (0, 1): P(f'v_add_f32 {v(vGA+4*a+e)}, {v(vGA+4*a+e)}, {v(vGA+4*b2+e)}')
    tagcheck_loop(gather8(sO1, sO2), [vGA+4*k+2 for k in range(8)], 'q')
    stamp('C0_q')
    sum8()
    P(f'v_cvt_pk_bf16_f32 {v(vT)}, {v(vGA)}, {v(vGA+1)}')
    P(f'ds_write_b32 {v(26)}, {v(vT)}')
    P(f'ds_write_b32 {v(27)}, {v(25)}')
    vg, vXv, vGAv, vGBv, vU16, vDA, vXC, vL16r, vBP, sJJ, sP, sB4, sD = 64, 12, 13, 14, 15, 17, 20, 16, 18, sG, 4, 12, 8
    def vda():
        if cfg.par is None: P(f'v_lshrrev_b32 {v(vT)}, 2, {v(vL)}\nv_lshl_add_u32 {v(vDA)}, {v(vT)}, 12, {v(vU16)}')
        else: P(f'v_lshrrev_b32 {v(vT)}, 4, {v(vL)}\nv_lshl_add_u32 {v(vDA)}, {v(vT)}, 14, {v(vU16)}\nv_bfe_u32 {v(vT)}, {v(vL)}, 2, 2\nv_lshl_add_u32 {v(vDA)}, {v(vT)}, 11, {v(vDA)}')
    def red_addr():
        par_read(19)
        par_use(19)
        if X4NEAR:
            P(f's_lshr_b32 {s(sT0)}, {s(sJJ)}, 2\ns_lshl_b32 {s(sT0)}, {s(sT0)}, 14\ns_and_b32 {s(sT1)}, {s(sJJ)}, 3\ns_lshl_b32 {s(sT1)}, {s(sT1)}, 11\ns_add_u32 {s(sT0)}, {s(sT0)}, {s(sT1)}\ns_add_u32 {s(sT0)}, {s(sT0)}, {s(sNEAR)}')
            for p_ in range(4): P(f's_add_u32 {s(sP+p_)}, {s(sT0)}, {hex(X4N + p_*32768)}')
        if cfg.par is None:
            P(f's_lshl_b32 {s(sO0)}, {s(sJJ)}, 14\ns_add_u32 {s(sO0)}, {s(sO0)}, {hex(XB)}')
            if cfg.xbrep: P(f's_lshl_b32 {s(sT1)}, {s(sX)}, 17\ns_add_u32 {s(sO0)}, {s(sO0)}, {s(sT1)}')
            for k in range(4): P(f's_add_u32 {s(sB4+k)}, {s(sO0)}, {4096*k}')
        else:
            P(f's_lshl_b32 {s(sO0)}, {s(sJJ)}, 15\ns_add_u32 {s(sO0)}, {s(sO0)}, {s(sNEAR)}\ns_add_u32 {s(sO0)}, {s(sO0)}, {hex(XB2)}')
            for k, o in enumerate((0, 4096, 16384, 20480)): P(f's_add_u32 {s(sB4+k)}, {s(sO0)}, {o}')
        P(f's_lshr_b32 {s(sO3)}, {s(sX)}, 1\ns_lshl_b32 {s(sO3)}, {s(sO3)}, 14\ns_and_b32 {s(sT0)}, {s(sX)}, 1\ns_lshl_b32 {s(sT0)}, {s(sT0)}, 12\ns_add_u32 {s(sO3)}, {s(sO3)}, {s(sT0)}\ns_add_u32 {s(sO3)}, {s(sO3)}, {hex(XC)}')
        P(f's_lshl_b32 {s(sT1)}, {s(sJJ)}, 9\ns_add_u32 {s(sO3)}, {s(sO3)}, {s(sT1)}')
        if cfg.nearloc: P(f's_add_u32 {s(sO3)}, {s(sO3)}, {s(sNEAR)}')
        if cfg.par is not None:
            P(f's_lshr_b32 {s(sO2)}, {s(sJJ)}, 1\ns_lshl_b32 {s(sO2)}, {s(sO2)}, 9\ns_and_b32 {s(sT1)}, {s(sJJ)}, 1\ns_lshl_b32 {s(sT1)}, {s(sT1)}, 7\ns_add_u32 {s(sO2)}, {s(sO2)}, {s(sT1)}')
            P(f's_and_b32 {s(sT1)}, {s(sX)}, 1\ns_lshl_b32 {s(sT1)}, {s(sT1)}, 6\ns_add_u32 {s(sO2)}, {s(sO2)}, {s(sT1)}\ns_and_b32 {s(sT1)}, {s(sX)}, 2\ns_lshl_b32 {s(sT1)}, {s(sT1)}, 7\ns_add_u32 {s(sO2)}, {s(sO2)}, {s(sT1)}\ns_add_u32 {s(sO2)}, {s(sO2)}, {s(sNEAR)}\ns_add_u32 {s(sO2)}, {s(sO2)}, {hex(XD)}')
        if cfg.par is None:
            P(f's_lshr_b32 {s(sO2)}, {s(sJJ)}, 1\ns_lshl_b32 {s(sO2)}, {s(sO2)}, 10\ns_and_b32 {s(sT1)}, {s(sJJ)}, 1\ns_lshl_b32 {s(sT1)}, {s(sT1)}, 7\ns_add_u32 {s(sO2)}, {s(sO2)}, {s(sT1)}')
            P(f's_and_b32 {s(sT1)}, {s(sX)}, 1\ns_lshl_b32 {s(sT1)}, {s(sT1)}, 6\ns_add_u32 {s(sO2)}, {s(sO2)}, {s(sT1)}\ns_lshr_b32 {s(sT1)}, {s(sX)}, 1\ns_lshl_b32 {s(sT1)}, {s(sT1)}, 8\ns_add_u32 {s(sO2)}, {s(sO2)}, {s(sT1)}\ns_add_u32 {s(sO2)}, {s(sO2)}, {hex(XD)}')
        for k in range(3): P(f's_add_u32 {s(sD+k)}, {s(sO2)}, {hex(65536*k)}')
    def red_setup():
        P(f's_sub_u32 {s(sT0)}, {s(sKK)}, 8')
        P(f's_mov_b32 {s(sJJ)}, {s(sT0)}\ns_lshl_b32 {s(sR)}, {s(sX)}, 3\ns_add_u32 {s(sR)}, {s(sR)}, {s(sT0)}')
        if cfg.local:
            P(f's_lshl_b32 {s(sT1)}, {s(sX)}, 7\ns_add_u32 {s(sT1)}, {s(sT1)}, {hex(X0C)}\ns_add_u32 {s(sMASK)}, {s(sWSP)}, {s(sT1)}\ns_addc_u32 {s(sMASK+1)}, {s(sWSP+1)}, 0')
            P(f's_load_dwordx16 s[4:19], {s(sMASK,2)}, 0 glc\ns_load_dwordx16 s[20:35], {s(sMASK,2)}, 64 glc')
            P(f's_getreg_b32 {s(sLOC)}, hwreg(HW_REG_XCC_ID, 0, 3)\ns_lshl_b32 {s(sT1)}, {s(sTAG)}, 3\ns_or_b32 {s(sLOC)}, {s(sLOC)}, {s(sT1)}')
        P(f'v_lshlrev_b32 {v(vL16r)}, 4, {v(vL)}\nv_and_b32 {v(vU16)}, 3, {v(vL)}\nv_lshlrev_b32 {v(vU16)}, 4, {v(vU16)}')
        P(f'v_and_b32 {v(vT)}, 7, {v(vL)}\nv_lshlrev_b32 {v(vT)}, 4, {v(vT)}\nv_bfe_u32 {v(vT+1)}, {v(vL)}, 3, 1\nv_lshl_add_u32 {v(vT)}, {v(vT+1)}, 3, {v(vT)}\nv_bfe_u32 {v(vT+1)}, {v(vL)}, 4, 1\nv_lshl_add_u32 {v(vT)}, {v(vT+1)}, 2, {v(vT)}\nv_lshrrev_b32 {v(vT+1)}, 5, {v(vL)}\nv_lshl_add_u32 {v(vT+2)}, {v(vT+1)}, 1, {v(vT)}')
        P(f'v_bfe_u32 {v(vT)}, {v(vL)}, 4, 1\nv_lshlrev_b32 {v(vT)}, 7, {v(vT)}\nv_lshrrev_b32 {v(vT+1)}, 2, {v(vU16)}\nv_add_u32 {v(vBP)}, {v(vT)}, {v(vT+1)}\ns_lshl_b32 {s(sT1)}, {s(sX)}, 4\nv_add_u32 {v(vBP)}, {s(sT1)}, {v(vBP)}')
        vda()
        if cfg.local:
            P('s_waitcnt lgkmcnt(0)')
            P(f's_xor_b32 s4, s4, {s(sLOC)}')
            for k in range(5, 36): P(f's_xor_b32 {s(k)}, {s(k)}, {s(sLOC)}\ns_or_b32 s4, s4, {s(k)}')
            P(f's_cselect_b32 {s(sLOC)}, 0, 1')
            srd(SRD_WS, sWSP, WS_BYTES)
        srd(SRD_A, pX, 1024); srd(SRD_B, pOUT, 1024)
        P(f's_lshl_b32 {s(sT1)}, {s(sJJ)}, 7')
        P(f'buffer_load_ushort {v(vXv)}, {v(vT+2)}, {S(SRD_A)}, {s(sT1)} offen')
        P(f's_and_b32 {s(sT2)}, {s(sX)}, 1\ns_lshl_b32 {s(sT2)}, {s(sT2)}, 6\ns_add_u32 {s(sT1)}, {s(sT1)}, {s(sT2)}\ns_and_b32 {s(sT2)}, {s(sX)}, 2\ns_lshl_b32 {s(sT2)}, {s(sT2)}, 2\ns_add_u32 {s(sT1)}, {s(sT1)}, {s(sT2)}\ns_and_b32 {s(sT2)}, {s(sX)}, 4\ns_add_u32 {s(sG+2)}, {s(sT1)}, {s(sT2)}')
        if not X4NEAR:
            for p_ in range(4): P(f's_lshl_b32 {s(sP+p_)}, {s(sJJ)}, 11\ns_add_u32 {s(sP+p_)}, {s(sP+p_)}, {hex(X4 + p_*16384)}')
        for i in range(cfg.pipe.get('xd', 1)):
            for k in range(3): P(f'v_mov_b32 {v(192+12*i+8+k)}, {s(sTAG) if k == 2 else 0}')
    def x4_issue():
        for k in range(8): P(f'buffer_load_dwordx4 {v(vg+4*k,4)}, {v(vL16r)}, {S(SRD_WS)}, {s(sP + (k >> 1))} offen offset:{1024*(k & 1)} sc1')
    P('L_QKP:')
    vKR, vQ, vKB, vDQ, vS2, vE, vML = 8, 128, 144, 28, 208, 210, 216
    sM2 = sG
    P(f's_sub_u32 {s(sT2)}, {s(sW)}, 4\ns_lshl_b32 {s(sT0)}, {s(sT2)}, 3\ns_add_u32 {s(sT0)}, {s(sT0)}, {hex(L_FLAG)}\nv_mov_b32 {v(vT+2)}, {s(sT0)}')
    P(f'v_and_b32 {v(vT)}, 15, {v(vL)}\nv_lshrrev_b32 {v(vT+1)}, 4, {v(vL)}\nv_lshlrev_b32 {v(26)}, 4, {v(vT+1)}\nv_xor_b32 {v(vT+1)}, {v(vT+1)}, {v(vT)}\nv_lshlrev_b32 {v(vT+1)}, 4, {v(vT+1)}')
    if cfg.ksplit:
        P(f'v_and_b32 {v(vKR)}, 3, {v(vL)}\nv_lshlrev_b32 {v(vKR)}, 10, {v(vKR)}\nv_lshrrev_b32 {v(vT)}, 2, {v(vT)}\nv_lshl_add_u32 {v(vKR)}, {v(vT)}, 8, {v(vKR)}\nv_add_u32 {v(vKR)}, {v(vKR)}, {v(vT+1)}')
    else: P(f'v_lshl_add_u32 {v(vKR)}, {v(vT)}, 8, {v(vT+1)}')
    P(f's_lshl_b32 {s(sT0)}, {s(sT2)}, 15\nv_add_u32 {v(vKR)}, {s(sT0)}, {v(vKR)}')
    for q in range(1, 4): P(f'v_xor_b32 {v(vKR+q)}, {64*q}, {v(vKR)}')
    P(f'v_and_b32 {v(27)}, 7, {v(vL)}\nv_lshl_add_u32 {v(27)}, {v(27)}, 6, {v(26)}\nv_bfe_u32 {v(vT)}, {v(vL)}, 3, 1\nv_lshl_add_u32 {v(27)}, {v(vT)}, 3, {v(27)}')
    P(f's_lshl_b32 {s(sT0)}, {s(sT2)}, 9\ns_add_u32 {s(sT0)}, {s(sT0)}, {hex(L_P)}\nv_add_u32 {v(27)}, {s(sT0)}, {v(27)}\nv_add_u32 {v(26)}, {hex(L_Q)}, {v(26)}')
    P(f's_lshl_b32 {s(sT0)}, {s(sT2)}, 4\ns_add_u32 {s(sT0)}, {s(sT0)}, {hex(L_MS)}\nv_mov_b32 {v(25)}, {s(sT0)}\nv_mov_b32 {v(vML+2)}, 1\nv_mov_b32 {v(vML+3)}, 1')
    P(f's_mov_b32 {s(sMASK)}, 0x00010001\ns_mov_b32 {s(sMASK+1)}, 0x00010001\ns_mov_b32 {s(sM2)}, 0x01000100\ns_mov_b32 {s(sM2+1)}, 0x01000100')
    lds_wait('kq', vT+2, 2, 28, [28, 29], cfg.lsleep)
    stamp('C0_kready')
    for q in range(4): P(f'ds_read_b128 {v(vQ+4*q,4)}, {v(26)} offset:{64*q}')
    NB = 3; PD = NB - 1; NT = 8
    def kread(t, q): P(f'ds_read_b128 {v(vKB+16*(t % NB)+4*q,4)}, {v(vKR+q)} offset:{4096*t}')
    for t in range(PD):
        for q in range(4): kread(t, q)
    for t in range(NT + 1):
        u = t - 1
        for q in range(4):
            if t < NT:
                if q in (0, 2): P(f's_waitcnt lgkmcnt({min(4*PD - 2, 4*(NT - t) - 2 - q)})')
                mfma(vDQ + 4*(t & 1), vKB + 16*(t % NB) + 4*q, vQ + 4*q, first=(q == 0))
                if t + PD < NT: kread(t + PD, q)
            if t >= 1 and q >= 2:
                mk = sMASK if q == 2 else sM2
                for e in range(2):
                    P(f'v_cndmask_b32 {v(vS2+e)}, {v(vS2+e)}, {v(vDQ+4*(u & 1)+2*(q-2)+e)}, {s(mk,2)}')
        if t >= 1 and t < NT: P(f's_lshl_b64 {s(sMASK,2)}, {s(sMASK,2)}, 1\ns_lshl_b64 {s(sM2,2)}, {s(sM2,2)}, 1')
    stamp('C0_qk')
    P(f'v_cvt_pk_bf16_f32 {v(vE)}, {v(vS2)}, {v(vS2+1)}'); unpack(vS2, vS2+1, vE)
    for e in range(2): P(f'v_mul_f32 {v(vS2+e)}, {SCALE}, {v(vS2+e)}')
    P(f'v_cvt_pk_bf16_f32 {v(vE)}, {v(vS2)}, {v(vS2+1)}'); unpack(vS2, vS2+1, vE)
    P(f'v_max_f32 {v(vML)}, {v(vS2)}, {v(vS2+1)}')
    wave_reduce('v_max_f32', [vML])
    P(f'v_readlane_b32 {s(sT0)}, {v(vML)}, 63')
    for e in range(2): P(f'v_subrev_f32 {v(vE+e)}, {s(sT0)}, {v(vS2+e)}')
    for e in range(2): P(f'v_mul_f32 {v(vE+e)}, {LOG2E}, {v(vE+e)}')
    for e in range(2): P(f'v_exp_f32 {v(vE+e)}, {v(vE+e)}')
    P(f'v_add_f32 {v(vML+1)}, {v(vE)}, {v(vE+1)}')
    wave_reduce('v_add_f32', [vML+1])
    setexec(1 << 63)
    P(f'ds_write_b128 {v(25)}, {v(vML,4)}')
    setexec(ALL)
    P(f's_cmp_eq_u32 {s(sW)}, 4\ns_cbranch_scc1 L_C0ML')
    P(f's_cmp_eq_u32 {s(sW)}, 5\ns_cbranch_scc0 L_MLWAIT')
    if cfg.rwait == 4 or cfg.rearly:
        P(f's_sub_u32 {s(sT0)}, {s(sKK)}, 8\ns_cmp_lt_u32 {s(sT0)}, 8\ns_cbranch_scc0 L_NORED')
        red_setup()
        if cfg.rwait == 4: x4_issue()
        P('s_branch L_MLWAIT\nL_NORED:')
    P(f's_cmp_eq_u32 {s(sR)}, 99\ns_cbranch_scc0 L_MLWAIT')
    modtile_compute(0, sO2, X4NEAR)
    P('L_MLWAIT:')
    if cfg.mlpw:
        P(f's_cmp_eq_u32 {s(sW)}, 6\ns_cbranch_scc0 L_NOGL')
        P(f's_mov_b32 {s(sR)}, 0')
        if cfg.local:
            P(f's_lshl_b32 {s(sT0)}, {s(sX)}, 3\ns_lshr_b32 {s(sT1)}, {s(sKK)}, 2\ns_add_u32 {s(sT0)}, {s(sT0)}, {s(sT1)}\ns_lshl_b32 {s(sT0)}, {s(sT0)}, 7\ns_add_u32 {s(sT0)}, {s(sT0)}, {hex(X0B)}')
            P(f's_load_dwordx4 s[8:11], {s(sWSP,2)}, {s(sT0)} glc\ns_getreg_b32 {s(sT1)}, hwreg(HW_REG_XCC_ID, 0, 3)\ns_lshl_b32 {s(sT0)}, {s(sTAG)}, 3\ns_or_b32 {s(sT1)}, {s(sT1)}, {s(sT0)}\ns_waitcnt lgkmcnt(0)')
            P(f's_xor_b32 s8, s8, {s(sT1)}')
            for k in range(1, 4): P(f's_xor_b32 {s(8+k)}, {s(8+k)}, {s(sT1)}\ns_or_b32 s8, s8, {s(8+k)}')
            P(f's_cselect_b32 {s(sR)}, 0, 1')
        P('L_NOGL:')
    if cfg.par == 'dyn':
        P(f's_cmp_eq_u32 {s(sW)}, 7\ns_cbranch_scc0 L_NOPF')
        P(f's_lshl_b32 {s(sT0)}, {s(sX)}, 7\ns_add_u32 {s(sT0)}, {s(sT0)}, {hex(XP)}\ns_lshl_b32 {s(sT1)}, {s(sTAG)}, 1\ns_mov_b32 {s(sSPIN)}, 0')
        P(f'L_PFT:\ns_load_dword s8, {s(sWSP,2)}, {s(sT0)} glc\ns_add_u32 {s(sSPIN)}, {s(sSPIN)}, 1\ns_cmp_gt_u32 {s(sSPIN)}, {cfg.spin}\ns_cbranch_scc1 L_END\ns_waitcnt lgkmcnt(0)')
        P(f's_xor_b32 s9, s8, {s(sT1)}\ns_cmp_lt_u32 s9, 2\ns_cbranch_scc1 L_PFD\ns_sleep 8\ns_branch L_PFT\nL_PFD:')
        P(f's_or_b32 s9, s9, 2\nv_mov_b32 {v(vT)}, {hex(L_PAR)}\nv_mov_b32 {v(vT+1)}, s9\nds_write_b32 {v(vT)}, {v(vT+1)}')
        P('L_NOPF:')
    P(f'v_mov_b32 {v(vT+2)}, {hex(L_ML)}')
    lds_wait('mlw', vT+2, 4, vML, [vML+2], cfg.lsleep)
    P('s_branch L_PCALC')
    P('L_C0ML:')
    P(f'v_and_b32 {v(vT+2)}, 3, {v(vL)}\nv_lshlrev_b32 {v(vT+2)}, 4, {v(vT+2)}\nv_add_u32 {v(vT+2)}, {hex(L_MS)}, {v(vT+2)}')
    P(f's_lshl_b32 {s(sO1)}, {s(sH)}, 7\ns_add_u32 {s(sO1)}, {s(sO1)}, {hex(X3)}\ns_lshl_b32 {s(sO0)}, {s(sJ)}, 4\ns_add_u32 {s(sO0)}, {s(sO0)}, {s(sO1)}')
    lds_wait('msw', vT+2, 4, 220, [222])
    P(f'v_max_f32_dpp {v(vML)}, {v(220)}, {v(220)} quad_perm:[1,0,3,2] row_mask:0xf bank_mask:0xf\nv_mov_b32 {v(vML+2)}, {s(sTAG)}\nv_mov_b32 {v(vML+3)}, {s(sTAG)}')
    P(f'v_max_f32_dpp {v(vML)}, {v(vML)}, {v(vML)} quad_perm:[2,3,0,1] row_mask:0xf bank_mask:0xf')
    P(f'v_sub_f32 {v(220)}, {v(220)}, {v(vML)}\nv_mul_f32 {v(220)}, {LOG2E}, {v(220)}\nv_exp_f32 {v(220)}, {v(220)}\nv_mov_b32 {v(vT)}, 0\nv_mul_f32 {v(vML+1)}, {v(220)}, {v(221)}')
    for mod in ('quad_perm:[1,0,3,2]', 'quad_perm:[2,3,0,1]'): P(f'v_add_f32_dpp {v(vML+1)}, {v(vML+1)}, {v(vML+1)} {mod} row_mask:0xf bank_mask:0xf')
    if cfg.mlat:
        P(f'v_readfirstlane_b32 s4, {v(vML)}\nv_readfirstlane_b32 s5, {v(vML+1)}')
        P(f's_add_u32 {s(sMASK)}, {s(sWSP)}, {s(sO1)}\ns_addc_u32 {s(sMASK+1)}, {s(sWSP+1)}, 0\ns_lshl_b32 {s(sT0)}, {s(sJ)}, 3\ns_mov_b32 {s(sSPIN)}, 0')
        P(f's_atomic_add_x2 s[4:5], {s(sMASK,2)}, {s(sT0)}')
        stamp('C0_x3pub')
        gl = [4 + 2*k for k in range(8)]
        P('s_waitcnt lgkmcnt(0)')
        P('L_MLW:')
        if cfg.sleep3: P(f's_sleep {cfg.sleep3}')
        P(f's_load_dwordx16 s[4:19], {s(sMASK,2)}, 0 glc')
        P(f's_add_u32 {s(sSPIN)}, {s(sSPIN)}, 1\ns_cmp_gt_u32 {s(sSPIN)}, {cfg.spin}\ns_cbranch_scc1 L_END')
        P('s_waitcnt lgkmcnt(0)')
        P(f's_min_u32 {s(sT0)}, s5, s7')
        for g in gl[2:]: P(f's_min_u32 {s(sT0)}, {s(sT0)}, {s(g+1)}')
        P(f's_cmp_eq_u32 {s(sT0)}, 0\ns_cbranch_scc1 L_MLW')
    else:
        publish(vML, vT, sO0, 1)
        stamp('C0_x3pub')
        P(f's_add_u32 {s(sMASK)}, {s(sWSP)}, {s(sO1)}\ns_addc_u32 {s(sMASK+1)}, {s(sWSP+1)}, 0\ns_mov_b32 {s(sSPIN)}, 0')
        gl = [4 + 4*k for k in range(8)]
        P('L_MLW:')
        if cfg.sleep3: P(f's_sleep {cfg.sleep3}')
        P(f's_load_dwordx16 s[4:19], {s(sMASK,2)}, 0 glc\ns_load_dwordx16 s[20:35], {s(sMASK,2)}, 64 glc')
        P(f's_add_u32 {s(sSPIN)}, {s(sSPIN)}, 1\ns_cmp_gt_u32 {s(sSPIN)}, {cfg.spin}\ns_cbranch_scc1 L_END')
        P('s_waitcnt lgkmcnt(0)')
        P(f's_xor_b32 {s(sT0)}, {s(gl[0]+2)}, {s(sTAG)}')
        for g in gl[1:]: P(f's_xor_b32 {s(sT1)}, {s(g+2)}, {s(sTAG)}\ns_or_b32 {s(sT0)}, {s(sT0)}, {s(sT1)}')
        P('s_cbranch_scc1 L_MLW')
    stamp('C0_ml')
    vG8 = 220
    P(f'v_mov_b32 {v(vML)}, {s(gl[0])}')
    for g in gl[1:]: P(f'v_max_f32 {v(vML)}, {s(g)}, {v(vML)}')
    for k, g in enumerate(gl): P(f'v_sub_f32 {v(vG8+k)}, {s(g)}, {v(vML)}')
    for k in range(8): P(f'v_mul_f32 {v(vG8+k)}, {LOG2E}, {v(vG8+k)}')
    for k in range(8): P(f'v_exp_f32 {v(vG8+k)}, {v(vG8+k)}')
    P(f'v_mul_f32 {v(vE)}, {s(gl[0]+1)}, {v(vG8)}')
    for k, g in enumerate(gl[1:]): P(f'v_fmac_f32 {v(vE)}, {s(g+1)}, {v(vG8+k+1)}')
    P(f'v_rcp_f32 {v(vE+1)}, {v(vE)}\nv_mov_b32 {v(vT+2)}, {hex(L_ML)}\nv_mov_b32 {v(vML+2)}, 1')
    P(f'v_fma_f32 {v(vE)}, -{v(vE)}, {v(vE+1)}, 1.0\nv_fma_f32 {v(vML+1)}, {v(vE)}, {v(vE+1)}, {v(vE+1)}')
    setexec(1)
    P(f'ds_write_b128 {v(vT+2)}, {v(vML,4)}')
    setexec(ALL)
    P('L_PCALC:')
    for e in range(2): P(f'v_sub_f32 {v(vE+e)}, {v(vS2+e)}, {v(vML)}')
    for e in range(2): P(f'v_mul_f32 {v(vE+e)}, {LOG2E}, {v(vE+e)}')
    for e in range(2): P(f'v_exp_f32 {v(vE+e)}, {v(vE+e)}')
    for e in range(2): P(f'v_mul_f32 {v(vE+e)}, {v(vE+e)}, {v(vML+1)}')
    for e in range(2): P(f'v_cvt_pk_bf16_f32 {v(vE+e)}, {v(vE+e)}, {v(vE+e)}')
    P(f'ds_write_b64 {v(27)}, {v(vE,2)}')
    srd(SRD_WS, sWSP, WS_BYTES)
    P(f's_cmp_eq_u32 {s(sW)}, 4\ns_cbranch_scc1 L_C0B1')
    P('s_waitcnt lgkmcnt(0)')
    P('s_barrier')
    P(f's_cmp_eq_u32 {s(sW)}, 5\ns_cbranch_scc1 L_C1B1')
    P('s_branch L_C23B1')
    P('L_C0B1:')
    srd(SRD_A, pWO, 4 << 20)
    P(f'v_bfe_u32 {v(vT)}, {v(vL)}, 3, 1\nv_lshlrev_b32 {v(vT)}, 16, {v(vT)}\nv_bfe_u32 {v(vT+1)}, {v(vL)}, 4, 1\nv_lshl_add_u32 {v(vT)}, {v(vT+1)}, 12, {v(vT)}\nv_lshrrev_b32 {v(vT+1)}, 5, {v(vL)}\nv_lshl_add_u32 {v(vT)}, {v(vT+1)}, 11, {v(vT)}')
    P(f'v_and_b32 {v(vT+1)}, 7, {v(vL)}\nv_lshl_add_u32 {v(vWA)}, {v(vT+1)}, 4, {v(vT)}')
    P(f's_lshl_b32 {s(sO0)}, {s(sH)}, 17\ns_lshl_b32 {s(sT0)}, {s(sJ)}, 7\ns_add_u32 {s(sO0)}, {s(sO0)}, {s(sT0)}')
    P('s_waitcnt lgkmcnt(0)')
    stamp('C0_p')
    P('s_barrier')
    vWO = 64
    par_read(15)
    def wo_issue(sreg):
        for i in range(16):
            P(f'buffer_load_dwordx4 {v(vWO+4*i,4)}, {v(vWA)}, {S(SRD_A)}, {s(sreg)} offen offset:{1024*(i & 1)} {cfg.wpol}')
            if (i & 1) == 1 and i < 15: P(f's_add_u32 {s(sreg)}, {s(sreg)}, 8192')
    if not cfg.wob2: wo_issue(sO0)
    else: P(f's_mov_b32 {s(sG)}, {s(sO0)}')
    P(f'v_lshrrev_b32 {v(vT+2)}, 1, {v(vL16)}\nv_add_u32 {v(vT+2)}, {hex(L_OP)}, {v(vT+2)}')
    par_use(15)
    P(f's_lshl_b32 {s(sO1)}, {s(sH)}, 14\ns_add_u32 {s(sO1)}, {s(sO1)}, {hex(XA)}')
    if cfg.nearloc: P(f's_add_u32 {s(sO1)}, {s(sO1)}, {s(sNEAR)}')
    P(f's_lshl_b32 {s(sO0)}, {s(sJ)}, 10\ns_add_u32 {s(sO0)}, {s(sO0)}, {s(sO1)}\ns_add_u32 {s(sO2)}, {s(sO1)}, 4096')
    P(f's_lshl_b32 {s(sO3)}, {s(sJ)}, 5\ns_add_u32 {s(sO3)}, {s(sO3)}, {s(sH)}\ns_lshl_b32 {s(sO3)}, {s(sO3)}, 9\ns_add_u32 {s(sO3)}, {s(sO3)}, {hex(XB)}')
    P(f'v_mov_b32 {v(22)}, {s(sTAG)}')
    vAP, vDNA, vCA, vEA, vXBA = 8, 10, 11, 12, 13
    P(f'v_mov_b32 {v(14)}, {hex(L_FLAG + 160)}')
    if cfg.gwait:
        P(f'v_and_b32 {v(16)}, 31, {v(vL)}\nv_lshlrev_b32 {v(16)}, 2, {v(16)}\ns_lshl_b32 {s(sG)}, {s(sX)}, 7\ns_add_u32 {s(sG)}, {s(sG)}, {hex(XG)}')
    if cfg.par is None: P(f'v_bfe_u32 {v(vT)}, {v(vL)}, 3, 1\nv_lshl_add_u32 {v(vXBA)}, {v(vT)}, 17, {v(vPUB)}')
    else:
        P(f'v_bfe_u32 {v(vT)}, {v(vL)}, 3, 1\nv_xor_b32 {v(vT)}, {s(sPAR)}, {v(vT)}\nv_lshl_add_u32 {v(vXBA)}, {v(vT)}, 13, {v(vPUB)}')
        P(f's_lshl_b32 {s(sO3)}, {s(sJ)}, 1\ns_lshr_b32 {s(sT0)}, {s(sH)}, 4\ns_add_u32 {s(sO3)}, {s(sO3)}, {s(sT0)}\ns_lshl_b32 {s(sO3)}, {s(sO3)}, 14\ns_and_b32 {s(sT0)}, {s(sH)}, 15\ns_lshl_b32 {s(sT0)}, {s(sT0)}, 9\ns_add_u32 {s(sO3)}, {s(sO3)}, {s(sT0)}\ns_add_u32 {s(sO3)}, {s(sO3)}, {hex(XB2)}')
    sQ, sW2, sDN, sEP, sEG, sDP, sC0 = 4, 6, 8, 9, 10, 11, 12
    vDPA = 17
    def mlp_setup():
        P(f's_sub_u32 {s(sT0)}, {s(sKK)}, 8\ns_cmp_lt_u32 {s(sKK)}, 8\ns_cselect_b32 {s(sT1)}, {s(sKK)}, {s(sT0)}\ns_and_b32 {s(sQ)}, {s(sT1)}, 3\ns_lshr_b32 {s(sT1)}, {s(sT1)}, 2')
        if cfg.evenmlp:
            P(f's_mul_i32 {s(sIM)}, {s(sX)}, 11\ns_add_u32 {s(sIM)}, {s(sIM)}, 1\ns_lshr_b32 {s(sIM)}, {s(sIM)}, 1\ns_min_u32 {s(sIM)}, {s(sIM)}, 38\ns_add_u32 {s(sIM)}, {s(sIM)}, {s(sT1)}')
            P(f's_cmp_lt_u32 {s(sT0)}, 8\ns_cselect_b32 {s(sIM)}, 255, {s(sIM)}\ns_mov_b32 {s(sT0)}, 0x15\ns_bitcmp1_b32 {s(sT0)}, {s(sX)}\ns_cselect_b32 {s(sT0)}, 6, 5\ns_cmp_lt_u32 {s(sT1)}, {s(sT0)}\ns_cselect_b32 {s(sIM)}, {s(sIM)}, 255')
        else:
            P(f's_mul_i32 {s(sIM)}, {s(sX)}, 6\ns_add_u32 {s(sIM)}, {s(sIM)}, {s(sT1)}\ns_cmp_lt_u32 {s(sT0)}, 8\ns_cselect_b32 {s(sIM)}, 255, {s(sIM)}')
        srd(SRD_B, pW2, 1376*1024)
        P(f'v_lshrrev_b32 {v(vT)}, 3, {v(vL)}\nv_mul_u32_u24 {v(vT)}, {16*2752}, {v(vT)}\nv_and_b32 {v(vT+1)}, 3, {v(vL)}\nv_lshl_add_u32 {v(vT)}, {v(vT+1)}, 4, {v(vT)}')
        P(f's_mul_i32 {s(sT0)}, {s(sQ)}, {128*2752}\ns_min_u32 {s(sT1)}, {s(sIM)}, {NM-1}\ns_lshl_b32 {s(sT1)}, {s(sT1)}, 6\ns_add_u32 {s(sT0)}, {s(sT0)}, {s(sT1)}\nv_add_u32 {v(vT)}, {s(sT0)}, {v(vT)}')
        P(f's_mov_b32 {s(sMASK)}, 0xf0f0f0f0\ns_mov_b32 {s(sMASK+1)}, 0xf0f0f0f0\ns_mov_b32 {s(sW2)}, 2752*2\ns_mov_b32 {s(sW2+1)}, 0')
        P(f'v_mov_b32 {v(vAP)}, {s(pW1)}\nv_mov_b32 {v(vAP+1)}, {s(pW1+1)}\nv_mov_b32 {v(vT+1)}, {s(pW3)}\nv_mov_b32 {v(vCA)}, {s(pW3+1)}')
        P(f'v_cndmask_b32 {v(vAP)}, {v(vAP)}, {v(vT+1)}, {s(sMASK,2)}\nv_cndmask_b32 {v(vAP+1)}, {v(vAP+1)}, {v(vCA)}, {s(sMASK,2)}')
        P(f'v_add_co_u32 {v(vAP)}, vcc, {v(vAP)}, {v(vT)}\nv_addc_co_u32 {v(vAP+1)}, vcc, 0, {v(vAP+1)}, vcc')
        P(f'v_bfe_u32 {v(vT)}, {v(vL)}, 4, 1\nv_lshlrev_b32 {v(vDNA)}, 12, {v(vT)}\nv_lshrrev_b32 {v(vT)}, 5, {v(vL)}\nv_lshl_add_u32 {v(vDNA)}, {v(vT)}, 11, {v(vDNA)}\nv_and_b32 {v(vT)}, 15, {v(vL)}\nv_lshl_add_u32 {v(vDNA)}, {v(vT)}, 4, {v(vDNA)}')
        P(f's_lshl_b32 {s(sDN)}, {s(sIM)}, 15\ns_lshl_b32 {s(sT0)}, {s(sQ)}, 8\ns_add_u32 {s(sDN)}, {s(sDN)}, {s(sT0)}')
        P(f's_lshr_b32 {s(sEG)}, {s(sIM)}, 2\ns_lshl_b32 {s(sEG)}, {s(sEG)}, 14\ns_and_b32 {s(sT0)}, {s(sIM)}, 3\ns_lshl_b32 {s(sT0)}, {s(sT0)}, 11\ns_add_u32 {s(sEG)}, {s(sEG)}, {s(sT0)}\ns_add_u32 {s(sEG)}, {s(sEG)}, {hex(XE)}')
        if cfg.nearloc: P(f's_add_u32 {s(sEG)}, {s(sEG)}, {s(sNEAR)}')
        P(f's_lshl_b32 {s(sT0)}, {s(sQ)}, 9\ns_add_u32 {s(sEP)}, {s(sEG)}, {s(sT0)}')
        if cfg.par is None: P(f's_lshl_b32 {s(sDP)}, {s(sIM)}, 12\ns_lshl_b32 {s(sT0)}, {s(sQ)}, 10\ns_add_u32 {s(sDP)}, {s(sDP)}, {s(sT0)}\ns_add_u32 {s(sDP)}, {s(sDP)}, {hex(XD)}')
        else:
            P(f's_lshr_b32 {s(sDP)}, {s(sIM)}, 2\ns_lshl_b32 {s(sDP)}, {s(sDP)}, 14\ns_and_b32 {s(sT0)}, {s(sIM)}, 3\ns_lshl_b32 {s(sT0)}, {s(sT0)}, 11\ns_add_u32 {s(sDP)}, {s(sDP)}, {s(sT0)}\ns_lshl_b32 {s(sT0)}, {s(sQ)}, 9\ns_add_u32 {s(sDP)}, {s(sDP)}, {s(sT0)}\ns_add_u32 {s(sDP)}, {s(sDP)}, {hex(XD)}')
            P(f'v_and_b32 {v(vDPA)}, 31, {v(vL)}\nv_lshlrev_b32 {v(vDPA)}, 4, {v(vDPA)}\nv_lshrrev_b32 {v(vT)}, 5, {v(vL)}\nv_xor_b32 {v(vT)}, {s(sPAR)}, {v(vT)}\nv_lshl_add_u32 {v(vDPA)}, {v(vT)}, 13, {v(vDPA)}')
        P(f's_lshr_b32 {s(sT1)}, {s(sX)}, 1\ns_lshl_b32 {s(sT1)}, {s(sT1)}, 14\ns_and_b32 {s(sT0)}, {s(sX)}, 1\ns_lshl_b32 {s(sT0)}, {s(sT0)}, 12\ns_add_u32 {s(sT1)}, {s(sT1)}, {s(sT0)}\ns_add_u32 {s(sT1)}, {s(sT1)}, {hex(XC)}')
        if cfg.nearloc: P(f's_add_u32 {s(sT1)}, {s(sT1)}, {s(sNEAR)}')
        for k in range(4): P(f's_add_u32 {s(sT0)}, {s(sQ)}, {k}\ns_and_b32 {s(sT0)}, {s(sT0)}, 3\ns_lshl_b32 {s(sT0)}, {s(sT0)}, 10\ns_add_u32 {s(sC0+k)}, {s(sT0)}, {s(sT1)}')
        P(f'v_lshrrev_b32 {v(vT)}, 5, {v(vL)}\nv_lshlrev_b32 {v(vCA)}, 9, {v(vT)}\nv_bfe_u32 {v(vT)}, {v(vL)}, 1, 1\nv_lshl_add_u32 {v(vCA)}, {v(vT)}, 7, {v(vCA)}\nv_and_b32 {v(vT)}, 1, {v(vL)}\nv_lshl_add_u32 {v(vCA)}, {v(vT)}, 8, {v(vCA)}')
        P(f'v_bfe_u32 {v(vT)}, {v(vL)}, 2, 3\nv_lshl_add_u32 {v(vCA)}, {v(vT)}, 4, {v(vCA)}')
        P(f'v_bfe_u32 {v(vT)}, {v(vL)}, 3, 1\nv_lshlrev_b32 {v(vT)}, 9, {v(vT)}\nv_add_u32 {v(vEA)}, {v(vPUB)}, {v(vT)}')
    if not cfg.mlpw: mlp_setup()
    else: P(f'v_mov_b32 {v(16)}, {hex(L_FLAG + 168)}')
    if cfg.pgal: P('s_branch L_TAIL0\n.p2align 12\nL_TAIL0:')
    P('s_barrier')
    stamp('C0_b2')
    for w in range(4): P(f'ds_read_b64 {v(24+2*w,2)}, {v(vT+2)} offset:{512*w}')
    P('s_waitcnt lgkmcnt(2)')
    add2(24, 24, 26)
    P('s_waitcnt lgkmcnt(0)')
    add2(28, 28, 30)
    add2(20, 24, 28)
    publish_loc(20, vL16, sO0)
    stamp('C0_xapub')
    if cfg.wob2 == 1: wo_issue(sG)
    if cfg.wofirst: P(f's_waitcnt vmcnt({cfg.wofirst - 1})')
    vOd = 40
    def issue(b):
        for k in range(0, 8, 2 if cfg.fakehalf & 2 else 1):
            P(f'buffer_load_dwordx4 {v(b+4*k,4)}, {v(vL16)}, {S(SRD_WS)}, {s(sO1 if k < 4 else sO2)} offen offset:{1024*(k & 3)} sc1')
    def done(b):
        for a, b2 in ((0, 1), (2, 3), (4, 5), (6, 7), (0, 2), (4, 6), (0, 4)): add2(b+4*a, b+4*a, b+4*b2)
        P(f'v_cvt_pk_bf16_f32 {v(vOd)}, {v(b)}, {v(b)}\nv_cvt_pk_bf16_f32 {v(vOd+1)}, {v(b+1)}, {v(b+1)}')
    poll('xa', issue, 8, 128, 32, [4*k+2 for k in range(0, 8, 2 if cfg.fakehalf & 2 else 1)], done)
    if cfg.mlpw: P(f'ds_write_b32 {v(16)}, {v(16)}')
    stamp('C0_xa')
    vGW, vGA2 = 15, 16
    def g_issue(): P(f'buffer_load_dword {v(vGW)}, {v(vGA2)}, {S(SRD_WS)}, {s(sG)} offen sc1')
    if cfg.gwait: g_issue()
    lohi(vOd)
    chain(vD0, 16, [vWO+4*i for i in range(16)], lohi_srcs(vOd), vAA)
    finish2(vD0)
    if cfg.par is not None:
        for e in range(2): P(f'v_mov_b32_dpp {v(vD0+e)}, {v(vD0+e)} row_ror:8 row_mask:0xf bank_mask:0xc')
        publish(vD0, vXBA, sO3)
    elif cfg.xbrep:
        for e in range(2): P(f'v_mov_b32_dpp {v(vD0+e)}, {v(vD0+e)} row_ror:8 row_mask:0xf bank_mask:0xc')
        for i in range(4):
            P(f'buffer_store_dwordx4 {v(vD0,4)}, {v(vXBA)}, {S(SRD_WS)}, {s(sO3)} offen sc1')
            if i < 3: P(f's_add_u32 {s(sO3)}, {s(sO3)}, 0x40000')
    else: publish(vD0, vPUB, sO3, M2SET)
    if cfg.rwait and cfg.rwait < 4: P(f'ds_write_b32 {v(14)}, {v(14)}')
    stamp('C0_xbpub')
    def mlp_body():
        vUP, vDN, vCG, vEG = 128, 192, 64, 80
        if cfg.gwait:
            P(f's_mov_b32 {s(sSPIN)}, 0\ns_waitcnt vmcnt({4 if cfg.xbrep else 1})\ns_branch L_GCHK\nL_GTOP:')
            g_issue()
            P(f's_add_u32 {s(sSPIN)}, {s(sSPIN)}, 1\ns_cmp_gt_u32 {s(sSPIN)}, {cfg.spin}\ns_cbranch_scc1 L_END\ns_waitcnt vmcnt(0)\nL_GCHK:')
            P(f'v_cmp_eq_u32 vcc, {s(sTAG)}, {v(vGW)}\ns_bcnt1_i32_b64 {s(sT0)}, vcc\ns_cmp_lt_u32 {s(sT0)}, {2*cfg.gthr}\ns_cbranch_scc1 L_GTOP')
        for i in range(16):
            if not (cfg.fakehalf & 4 and i % 4 == 3): P(f'global_load_dwordx4 {v(vUP+4*i,4)}, {v(vAP,2)}, off offset:{2752*(i & 1)} {cfg.uppol}')
            if i & 1 and i < 15: P(f'v_lshl_add_u64 {v(vAP,2)}, {v(vAP,2)}, 0, {s(sW2,2)}')
        def dn_issue():
            for i in range(8):
                P(f'buffer_load_dwordx4 {v(vDN+4*i,4)}, {v(vDNA)}, {S(SRD_B)}, {s(sDN)} offen offset:{1024*(i & 1)} {cfg.wpol}')
                if i & 1 and i < 7: P(f's_add_u32 {s(sDN)}, {s(sDN)}, 8192')
        if cfg.mlpw:
            P(f'v_mov_b32 {v(vT+2)}, {hex(L_FLAG + 160)}')
            lds_wait('fb', vT+2, 1, 28, [28])
        if not cfg.dnlate: dn_issue()
        if cfg.wfirst: P('s_waitcnt vmcnt(0)')
        if cfg.diag and 'M_w' in cfg.diag:
            P('s_waitcnt vmcnt(0)'); stamp('M_w')
        vx, vcb, vsb = 88, 24, 26
        def issue(b):
            for k in range(4): P(f'buffer_load_dwordx4 {v(b+4*k,4)}, {v(vCA)}, {S(SRD_WS)}, {s(sC0+k)} offen sc1')
        def done(b):
            for k in range(4): unpack(vx+2*k, vx+2*k+1, b+4*k)
            if not cfg.lnopt: unpack(vcb, vcb+1, b+1); unpack(vsb, vsb+1, b+2)
        if cfg.dnlate == 3:
            issue(64); dn_issue()
            P('s_waitcnt vmcnt(8)')
            tr = [64+4*k+3 for k in range(4)]
            P(f'v_xor_b32 {v(vT)}, {s(sTAG)}, {v(tr[0])}\nv_xor_b32 {v(vT+1)}, {s(sTAG)}, {v(tr[1])}')
            for k, r in enumerate(tr[2:]): P(f'v_bitop3_b32 {v(vT + k)}, {v(r)}, {s(sTAG)}, {v(vT + k)} bitop3:{TAGX}')
            P(f'v_or_b32 {v(vT)}, {v(vT)}, {v(vT+1)}\nv_cmp_ne_u32 vcc, 0, {v(vT)}\ns_cbranch_vccz L_XCOK')
            poll('xc', issue, 4, 64, 16, tr and [4*k+3 for k in range(4)], lambda b: None)
            P('L_XCOK:')
            done(64)
        else:
            poll('xc', issue, 4, 64 if cfg.pipe.get('xc', 1) == 1 else 104, 16 if cfg.pipe.get('xc', 1) != 2 else -40, [4*k+3 for k in range(4)], done)
        stamp('M_xc')
        if cfg.dnlate == 1: dn_issue()
        P(f'v_readfirstlane_b32 {s(sT0)}, {v(vx)}')
        for k in range(8): P(f'v_subrev_f32 {v(96+k)}, {s(sT0)}, {v(vx+k)}')
        P(f'v_pk_add_f32 {v(20,2)}, {v(96,2)}, {v(98,2)}\nv_pk_add_f32 {v(22,2)}, {v(100,2)}, {v(102,2)}\nv_pk_mul_f32 {v(28,2)}, {v(96,2)}, {v(96,2)}\nv_pk_mul_f32 {v(30,2)}, {v(100,2)}, {v(100,2)}')
        P(f'v_pk_add_f32 {v(20,2)}, {v(20,2)}, {v(22,2)}\nv_pk_fma_f32 {v(28,2)}, {v(98,2)}, {v(98,2)}, {v(28,2)}\nv_pk_fma_f32 {v(30,2)}, {v(102,2)}, {v(102,2)}, {v(30,2)}')
        P(f'v_add_f32 {v(22)}, {v(20)}, {v(21)}\nv_pk_add_f32 {v(28,2)}, {v(28,2)}, {v(30,2)}\nv_add_f32 {v(23)}, {v(28)}, {v(29)}')
        fill = [f'v_lshlrev_b32 {v(vcb)}, 16, {v(65)}', f'v_and_b32 {v(vcb+1)}, 0xffff0000, {v(65)}', f'v_lshlrev_b32 {v(vsb)}, 16, {v(66)}', f'v_and_b32 {v(vsb+1)}, 0xffff0000, {v(66)}']
        for q_, mod in enumerate(('quad_perm:[1,0,3,2]', 'quad_perm:[2,3,0,1]', 'row_ror:4', 'row_ror:8')):
            P(f'v_add_f32_dpp {v(22)}, {v(22)}, {v(22)} {mod} row_mask:0xf bank_mask:0xf')
            if cfg.lnopt: assert cfg.pipe.get('xc', 1) == 1; P(fill[q_])
            P(f'v_add_f32_dpp {v(23)}, {v(23)}, {v(23)} {mod} row_mask:0xf bank_mask:0xf')
        P(f'v_permlane16_swap_b32 {v(22)}, {v(23)}\nv_add_f32 {v(22)}, {v(22)}, {v(23)}\nv_mov_b32 {v(23)}, {v(22)}')
        P(f'v_permlane32_swap_b32 {v(22)}, {v(23)}\nv_add_f32 {v(22)}, {v(22)}, {v(23)}\nv_mul_f32 {v(22)}, {R512}, {v(22)}')
        if cfg.lnopt: P(f'v_mov_b32 {v(23)}, {v(22)}\nv_permlane16_swap_b32 {v(22)}, {v(23)}')
        else:
            P(f'v_readlane_b32 {s(sT1)}, {v(22)}, 0\nv_readlane_b32 {s(sT2)}, {v(22)}, 16')
            P(f'v_mov_b32 {v(22)}, {s(sT1)}\nv_mov_b32 {v(23)}, {s(sT2)}')
        P(f'v_fma_f32 {v(23)}, -{v(22)}, {v(22)}, {v(23)}\nv_add_f32 {v(22)}, {s(sT0)}, {v(22)}\nv_max_f32 {v(23)}, 0, {v(23)}')
        P(f'v_cvt_pk_bf16_f32 {v(22)}, {v(22)}, {v(23)}')
        P(f'v_and_b32 {v(23)}, 0xffff0000, {v(22)}\nv_lshlrev_b32 {v(22)}, 16, {v(22)}\nv_add_f32 {v(23)}, {EPS}, {v(23)}')
        P(f'v_sub_f32 {v(20)}, {v(vx)}, {v(22)}\nv_sub_f32 {v(21)}, {v(vx+1)}, {v(22)}')
        P(f'v_cvt_pk_bf16_f32 {v(23)}, {v(23)}, {v(23)}\nv_cvt_pk_bf16_f32 {v(20)}, {v(20)}, {v(21)}\nv_and_b32 {v(23)}, 0xffff0000, {v(23)}\nv_sqrt_f32 {v(23)}, {v(23)}')
        unpack(vx, vx+1, 20)
        P(f'v_cvt_pk_bf16_f32 {v(23)}, {v(23)}, {v(23)}\nv_and_b32 {v(23)}, 0xffff0000, {v(23)}\nv_rcp_f32 {v(22)}, {v(23)}')
        P(f'v_mul_f32 {v(20)}, {v(vx)}, {v(22)}\nv_mul_f32 {v(21)}, {v(vx+1)}, {v(22)}')
        P(f'v_fma_f32 {v(vx)}, -{v(20)}, {v(23)}, {v(vx)}\nv_fma_f32 {v(vx+1)}, -{v(21)}, {v(23)}, {v(vx+1)}')
        P(f'v_fma_f32 {v(20)}, {v(vx)}, {v(22)}, {v(20)}\nv_fma_f32 {v(21)}, {v(vx+1)}, {v(22)}, {v(21)}')
        P(f'v_cvt_pk_bf16_f32 {v(20)}, {v(20)}, {v(21)}')
        unpack(vx, vx+1, 20)
        P(f'v_mul_f32 {v(vx)}, {v(vx)}, {v(vcb)}\nv_mul_f32 {v(vx+1)}, {v(vx+1)}, {v(vcb+1)}\nv_cvt_pk_bf16_f32 {v(20)}, {v(vx)}, {v(vx+1)}')
        unpack(vx, vx+1, 20)
        P(f'v_add_f32 {v(vx)}, {v(vx)}, {v(vsb)}\nv_add_f32 {v(vx+1)}, {v(vx+1)}, {v(vsb+1)}')
        P(f'v_cvt_pk_bf16_f32 {v(vOd)}, {v(vx)}, {v(vx)}\nv_cvt_pk_bf16_f32 {v(vOd+1)}, {v(vx+1)}, {v(vx+1)}')
        lohi(vOd)
        stamp('M_h2')
        if cfg.dnlate == 2: dn_issue()
        chain(vD0, 16, [vUP+4*i for i in range(16)], lohi_srcs(vOd), vAA)
        finish2(vD0)
        publish_loc(vD0, vPUB, sEP, M2SET, sR)
        stamp('M_up')
        def issue(b):
            for k in range(2): P(f'buffer_load_dwordx4 {v(b+4*k,4)}, {v(vEA)}, {S(SRD_WS)}, {s(sEG)} offen offset:{1024*k} sc1')
        def done(b):
            add2(20, b, b+4)
        poll('xe', issue, 2, 128, 8, [2, 6], done)
        stamp('M_xe')
        for e in range(2): P(f'v_add_f32_dpp {v(20+e)}, {v(20+e)}, {v(20+e)} row_ror:8 row_mask:0xf bank_mask:0xf')
        P(f'v_cvt_pk_bf16_f32 {v(22)}, {v(20)}, {v(21)}')
        unpack(20, 21, 22)
        P(f'v_mov_b32_dpp {v(24)}, {v(22)} row_shl:4 row_mask:0xf bank_mask:0xf')
        silu_multi([20, 21], [22, 23])
        unpack(26, 27, 24)
        P(f'v_cvt_pk_bf16_f32 {v(22)}, {v(20)}, {v(21)}')
        unpack(20, 21, 22)
        P(f'v_mul_f32 {v(20)}, {v(20)}, {v(26)}\nv_mul_f32 {v(21)}, {v(21)}, {v(27)}')
        for e in range(2): P(f'v_cvt_pk_bf16_f32 {v(20+e)}, {v(20+e)}, {v(20+e)}')
        stamp('M_act')
        chain(vD0, 8, [vDN+4*i for i in range(8)], [(20 + (i & 1), f'row_newbcast:{i >> 1}') for i in range(8)], vAA)
        finish1(vD0)
        publish(vD0, vL16 if cfg.par is None else vDPA, sDP)
        stamp('M_end')
        P('s_branch L_END')
    if cfg.mlpw:
        assert cfg.rwait == 1
        P('s_branch L_END')
    else:
        if cfg.rwait == 4:
            P(f's_cmp_lt_u32 {s(sIM)}, {NM}\ns_cbranch_scc1 L_MLP')
            if cfg.ackw: P('s_waitcnt vmcnt(0)')
            P(f'ds_write_b32 {v(14)}, {v(14)}')
            P('s_branch L_END\nL_MLP:')
        else: P(f's_cmp_lt_u32 {s(sIM)}, {NM}\ns_cbranch_scc0 L_END')
        mlp_body()

    P('L_C123:')
    common_setup()
    P(f's_cmp_eq_u32 {s(sW)}, 5\ns_cbranch_scc1 L_C1')
    if not (cfg.cpf0 and cfg.split0): code_prefetch(6, True)
    P('L_C3:')
    if cfg.par == 'dyn':
        P(f's_cmp_eq_u32 {s(sW)}, 7\ns_cbranch_scc0 L_NOPM\ns_cmp_eq_u32 {s(sB)}, 0\ns_cbranch_scc0 L_NOPM')
        P(f's_waitcnt lgkmcnt(0)\ns_mov_b32 s8, -1\ns_mov_b32 s9, -1')
        for i in range(2*cfg.nsamp):
            P(f's_mov_b32 s15, {hex(XPR + 8192*(i & 1) + 128*(i >> 1))}\ns_memtime s[10:11]\ns_waitcnt lgkmcnt(0)\ns_load_dword s14, {s(sWSP,2)}, s15 glc\ns_waitcnt lgkmcnt(0)\ns_memtime s[12:13]\ns_waitcnt lgkmcnt(0)')
            P(f's_sub_u32 s12, s12, s10\ns_min_u32 {s(8 + (i & 1))}, {s(8 + (i & 1))}, s12')
        P(f's_cmp_lt_u32 s9, s8\ns_cselect_b32 s8, 1, 0\ns_getreg_b32 s9, hwreg(HW_REG_XCC_ID, 2, 1)\ns_xor_b32 s8, s8, s9')
        P(f's_add_u32 s9, {s(sTAG)}, 1\ns_lshl_b32 s9, s9, 1\ns_or_b32 s8, s8, s9\nv_mov_b32 {v(vT+1)}, s8\nv_lshlrev_b32 {v(vT)}, 7, {v(vL)}\ns_mov_b32 s8, {hex(XP)}')
        setexec(0xff)
        P(f'buffer_store_dword {v(vT+1)}, {v(vT)}, {S(SRD_WS)}, s8 offen sc1')
        setexec(ALL)
        P('L_NOPM:')
    if cfg.tlbw:
        P(f's_cmp_eq_u32 {s(sW)}, 7\ns_cbranch_scc0 L_NOTLB')
        P(f'v_mov_b32 {v(vT)}, 0')
        setexec(1)
        for k, (ptr, nb) in enumerate(((pWO, 4 << 20), (pW1, 512*2752), (pW3, 512*2752), (pW2, 1376*1024), (pOUT, 1024))):
            srd(SRD_A, ptr, nb)
            P(f'buffer_load_dword {v(241+k)}, {v(vT)}, {S(SRD_A)}, 0 offen')
            if nb > (2 << 20):
                P(f's_mov_b32 {s(sT0)}, {hex(nb - 128)}\nbuffer_load_dword {v(247)}, {v(vT)}, {S(SRD_A)}, {s(sT0)} offen')
        for k, off in enumerate((XA, XE, XB, XB + 0xf0000)):
            P(f's_mov_b32 {s(sT0)}, {hex(off)}\nbuffer_load_dword {v(248+k)}, {v(vT)}, {S(SRD_WS)}, {s(sT0)} offen sc1')
        setexec(ALL)
        P('L_NOTLB:')
    P('s_waitcnt lgkmcnt(0)')
    P(f's_add_u32 {s(sTAG)}, {s(sTAG)}, 1')
    P('s_branch L_QKP')
    P('L_C23B1:')
    if cfg.mlpw:
        P(f's_cmp_eq_u32 {s(sW)}, 6\ns_cbranch_scc0 L_C3B2')
        par_read(15); par_use(15)
        mlp_setup()
        P('s_barrier')
        P(f's_cmp_lt_u32 {s(sIM)}, {NM}\ns_cbranch_scc0 L_END')
        P(f'v_mov_b32 {v(vT+2)}, {hex(L_FLAG + 168)}')
        lds_wait('fa', vT+2, 1, 28, [28])
        mlp_body()
        P('L_C3B2:')
    if cfg.gwait:
        P(f'v_lshlrev_b32 {v(vT)}, 7, {v(vL)}\nv_mov_b32 {v(vT+1)}, {s(sTAG)}\ns_lshl_b32 {s(sT0)}, {s(sH)}, 2\ns_add_u32 {s(sT0)}, {s(sT0)}, {hex(XG)}')
    P('s_barrier')
    if cfg.gwait:
        P(f's_cmp_eq_u32 {s(sW)}, 6\ns_cbranch_scc0 L_END\ns_cmp_eq_u32 {s(sJ)}, 0\ns_cbranch_scc0 L_END')
        setexec(0xff)
        P(f'buffer_store_dword {v(vT+1)}, {v(vT)}, {S(SRD_WS)}, {s(sT0)} offen sc1')
    P('s_branch L_END')

    P('L_C1:')
    P('s_waitcnt lgkmcnt(0)')
    P(f's_add_u32 {s(sTAG)}, {s(sTAG)}, 1')
    if cfg.tearly == 3: P(f's_mov_b32 {s(sR)}, 0\ns_bitcmp1_b32 {s(sX)}, 0\ns_cbranch_scc1 L_QKP')
    elif cfg.tearly: P(f's_mov_b32 {s(sR)}, 0\ns_cmp_ge_u32 {s(sX)}, 4\ns_cbranch_scc1 L_QKP')
    else: P(f's_mov_b32 {s(sR)}, 0\ns_sub_u32 {s(sT0)}, {s(sKK)}, 8\ns_cmp_lt_u32 {s(sT0)}, 16\ns_cbranch_scc1 L_QKP')
    if not cfg.t2early:
        P(f'v_mov_b32 {v(vT+2)}, {hex(L_FLAG + 8)}')
        lds_wait('k1', vT+2, 1, 28, [28], 8)
    elif cfg.t2early > 1: P(f's_sleep {cfg.t2early}')
    if cfg.tearly == 3:
        P(f's_lshl_b32 {s(sT0)}, {s(sKK)}, 2\ns_lshr_b32 {s(sT1)}, {s(sX)}, 1\ns_add_u32 {s(sT0)}, {s(sT0)}, {s(sT1)}\ns_and_b32 {s(sT1)}, {s(sT0)}, 31\ns_lshr_b32 {s(sT0)}, {s(sT0)}, 5')
    elif cfg.tearly:
        P(f's_lshl_b32 {s(sT0)}, {s(sKK)}, 2\ns_add_u32 {s(sT0)}, {s(sT0)}, {s(sX)}\ns_and_b32 {s(sT1)}, {s(sT0)}, 31\ns_lshr_b32 {s(sT0)}, {s(sT0)}, 5')
    else:
        P(f's_and_b32 {s(sT0)}, {s(sKK)}, 7\ns_lshr_b32 {s(sT1)}, {s(sKK)}, 4\ns_lshl_b32 {s(sT1)}, {s(sT1)}, 3\ns_add_u32 {s(sT0)}, {s(sT0)}, {s(sT1)}')
        P(f's_lshl_b32 {s(sT0)}, {s(sT0)}, 3\ns_add_u32 {s(sT0)}, {s(sT0)}, {s(sX)}\ns_and_b32 {s(sT1)}, {s(sT0)}, 31\ns_lshr_b32 {s(sT0)}, {s(sT0)}, 5')
    if X4NEAR:
        P(f's_and_b32 {s(sO2)}, {s(sT1)}, 3\ns_lshl_b32 {s(sO2)}, {s(sO2)}, 2\ns_add_u32 {s(sO2)}, {s(sO2)}, {s(sT0)}\ns_lshl_b32 {s(sO2)}, {s(sO2)}, 9\ns_lshr_b32 {s(sT2)}, {s(sT1)}, 2\ns_lshl_b32 {s(sT2)}, {s(sT2)}, 14\ns_add_u32 {s(sO2)}, {s(sO2)}, {s(sT2)}\ns_add_u32 {s(sO2)}, {s(sO2)}, {hex(X4N)}')
    else:
        P(f's_lshl_b32 {s(sO2)}, {s(sT1)}, 2\ns_add_u32 {s(sO2)}, {s(sO2)}, {s(sT0)}\ns_lshl_b32 {s(sO2)}, {s(sO2)}, 9\ns_add_u32 {s(sO2)}, {s(sO2)}, {hex(X4)}')
    P(f's_lshl_b32 {s(sT1)}, {s(sT1)}, 7\ns_add_u32 {s(sT1)}, {s(sT1)}, 2048')
    modtile_issue(sT0, sT1)
    if cfg.t2early:
        modtile_compute(0, sO2)
        P('s_branch L_QKP')
    else: P(f's_mov_b32 {s(sR)}, 99\ns_branch L_QKP')
    P('L_C1B1:')
    P(f's_sub_u32 {s(sT0)}, {s(sKK)}, 8\ns_cmp_lt_u32 {s(sT0)}, 8\ns_cbranch_scc1 L_RED')
    P('s_barrier')
    P('s_branch L_END')
    P('L_RED:')
    if cfg.rwait != 4 and not cfg.rearly: red_setup()
    else:
        srd(SRD_B, pOUT, 1024)
        P(f'v_lshlrev_b32 {v(vL16r)}, 4, {v(vL)}\nv_and_b32 {v(vU16)}, 3, {v(vL)}\nv_lshlrev_b32 {v(vU16)}, 4, {v(vU16)}')
        vda()
    red_addr()
    def xb_issue(b):
        for k in range(0, 16, 2 if cfg.fakehalf & 1 else 1): P(f'buffer_load_dwordx4 {v(b+4*k,4)}, {v(vL16r)}, {S(SRD_WS)}, {s(sB4 + (k >> 2))} offen offset:{1024*(k & 3)} sc1')
    issue = x4_issue
    def rw(name):
        P(f'v_mov_b32 {v(vT+2)}, {hex(L_FLAG + 160)}')
        lds_wait(name, vT+2, 1, 28, [28], cfg.lsleep)
    if cfg.rwait >= 3:
        if cfg.rwait == 3: issue()
        P('s_barrier')
        stamp('R_b2')
        P(f's_mov_b32 {s(sT2)}, 0\ns_branch L_X4CHK\nL_X4RETRY:')
        rw('rw0')
        issue()
        P(f's_add_u32 {s(sT2)}, {s(sT2)}, 1\ns_cmp_gt_u32 {s(sT2)}, {cfg.spin}\ns_cbranch_scc1 L_END\nL_X4CHK:')
        P('s_waitcnt vmcnt(0)')
        tr = [vg+4*k+2 for k in range(8)]
        P(f'v_xor_b32 {v(vT)}, {s(sTAG)}, {v(tr[0])}\nv_xor_b32 {v(vT+1)}, {s(sTAG)}, {v(tr[1])}')
        for k, r in enumerate(tr[2:]): P(f'v_bitop3_b32 {v(vT + (k & 1))}, {v(r)}, {s(sTAG)}, {v(vT + (k & 1))} bitop3:{TAGX}')
        P(f'v_or_b32 {v(vT)}, {v(vT)}, {v(vT+1)}\nv_cmp_ne_u32 vcc, 0, {v(vT)}\ns_cbranch_vccnz L_X4RETRY')
    else:
        P('s_barrier')
        stamp('R_b2')
        if cfg.rwait: rw('rw')
        tagcheck_loop(issue, [vg+4*k+2 for k in range(8)], 'x4', after=(lambda: xb_issue(128)) if cfg.rwait == 2 else None, nafter=16)
    for p_ in range(4):
        for e in range(2): P(f'v_add_f32 {v(vg+8*p_+e)}, {v(vg+8*p_+e)}, {v(vg+8*p_+4+e)}')
    for p_ in range(4): P(f'v_permlane32_swap_b32 {v(vg+8*p_)}, {v(vg+8*p_+1)}')
    for p_ in range(4): P(f'v_add_f32 {v(vg+8*p_)}, {v(vg+8*p_)}, {v(vg+8*p_+1)}')
    for p_ in range(4): rnd(vg+8*p_)
    P(f'v_mov_b32 {v(vGAv)}, {v(vg)}\nv_add_f32 {v(vg+16)}, 1.0, {v(vg+16)}\nv_mov_b32 {v(vg+9)}, {v(vg+8)}\nv_mov_b32 {v(vg+17)}, {v(vg+16)}')
    P(f'ds_bpermute_b32 {v(vGBv)}, {v(vBP)}, {v(vg+24)}')
    P(f'v_permlane32_swap_b32 {v(vg+8)}, {v(vg+9)}\nv_permlane32_swap_b32 {v(vg+16)}, {v(vg+17)}')
    P(f'v_cvt_pk_bf16_f32 {v(vXC+2)}, {v(vg+8)}, {v(vg+9)}\nv_cvt_pk_bf16_f32 {v(vXC+1)}, {v(vg+16)}, {v(vg+17)}\nv_mov_b32 {v(vXC+3)}, {s(sTAG)}\nv_lshlrev_b32 {v(vXv)}, 16, {v(vXv)}')
    stamp('R_x4')
    if cfg.rwait >= 3: rw('rw1')
    def done(b):
        st = 1
        while st < 16:
            for a in range(0, 16, 2*st): add2(b+4*a, b+4*a, b+4*(a+st))
            st *= 2
    if cfg.rsleep: P(f's_sleep {cfg.rsleep}')
    if cfg.xbgrp:
        n = 16 // cfg.xbgrp
        def mk(g):
            def issue():
                for k in range(g*n, g*n + n): P(f'buffer_load_dwordx4 {v(128+4*k,4)}, {v(vL16r)}, {S(SRD_WS)}, {s(sB4 + (k >> 2))} offen offset:{1024*(k & 3)} sc1')
            return (issue, [128+4*k+2 for k in range(g*n, g*n + n)])
        poll_groups('xb', [mk(g) for g in range(cfg.xbgrp)])
        done(128)
    else: poll('xb', xb_issue, 16, 128, 64, [4*k+2 for k in range(0, 16, 2 if cfg.fakehalf & 1 else 1)], done, issued=(cfg.rwait == 2))
    stamp('R_xb')
    P(f'v_permlane32_swap_b32 {v(128)}, {v(129)}\nv_add_f32 {v(vg)}, {v(128)}, {v(129)}')
    rnd(vg)
    P(f'v_mul_f32 {v(vg)}, {v(vg)}, {v(vGAv)}'); rnd(vg)
    P(f'v_add_f32 {v(vg)}, {v(vg)}, {v(vXv)}\nv_mov_b32 {v(vg+1)}, {v(vg)}')
    P(f'v_permlane32_swap_b32 {v(vg)}, {v(vg+1)}')
    P(f'v_cvt_pk_bf16_f32 {v(vXC)}, {v(vg)}, {v(vg+1)}')
    if cfg.xcmode == 1: publish(vXC, vL16r, sO3, 0xffffffff)
    elif cfg.xcmode == 2:
        setexec(0xffffffff); P(f'buffer_store_dwordx4 {v(vXC,4)}, {v(vL16r)}, {S(SRD_WS)}, {s(sO3)} offen'); setexec(ALL)
    else: publish_loc(vXC, vL16r, sO3, 0xffffffff)
    stamp('R_xcpub')
    if cfg.epearly:
        P(f's_cmp_eq_u32 {s(sR)}, 0\ns_cbranch_scc0 L_NOEP')
        setexec(1)
        P(f'v_mov_b32 {v(vT)}, 0\nv_mov_b32 {v(vT+1)}, {s(sTAG)}')
        P(f'buffer_store_dword {v(vT+1)}, {v(vT)}, {S(SRD_WS)}, 0 offen sc1')
        setexec(ALL)
        P('L_NOEP:')
    P(f'v_lshrrev_b32 {v(vT+2)}, 1, {v(vL)}\nv_and_b32 {v(vT+2)}, 16, {v(vT+2)}\nv_lshrrev_b32 {v(vXv)}, {v(vT+2)}, {v(vXC)}\nv_lshlrev_b32 {v(vXv)}, 16, {v(vXv)}')
    P(f'ds_bpermute_b32 {v(vXv)}, {v(vBP)}, {v(vXv)}')
    def colsum():
        P(f'v_permlane16_swap_b32 {v(vg)}, {v(vg+1)}')
        P(f'v_add_f32 {v(vg)}, {v(vg)}, {v(vg+1)}')
        P(f'v_add_f32_dpp {v(vg)}, {v(vg)}, {v(vg)} row_ror:4 row_mask:0xf bank_mask:0xf')
        P(f'v_add_f32_dpp {v(vg)}, {v(vg)}, {v(vg)} row_ror:8 row_mask:0xf bank_mask:0xf')
        P(f'v_mov_b32 {v(vg+1)}, {v(vg)}')
        P(f'v_permlane32_swap_b32 {v(vg)}, {v(vg+1)}')
        P(f'v_add_f32 {v(vg)}, {v(vg)}, {v(vg+1)}')
    P('s_waitcnt lgkmcnt(0)')
    def issue(b):
        for k in range(2): P(f'buffer_load_dwordx4 {v(b+4*k,4)}, {v(vDA)}, {S(SRD_WS)}, {s(sD+k)} offen sc1')
        setexec((1 << 44) - 1)
        P(f'buffer_load_dwordx4 {v(b+8,4)}, {v(vDA)}, {S(SRD_WS)}, {s(sD+2)} offen sc1')
        setexec(ALL)
    def done(b):
        add2(b, b, b+4); add2(vg, b, b+8)
    if cfg.dsleep: P(f's_sleep {cfg.dsleep}')
    poll('xd', issue, 3, 192, 12, [2, 6, 10], done)
    stamp('R_xd')
    colsum()
    rnd(vg)
    P(f'v_mul_f32 {v(vg)}, {v(vg)}, {v(vGBv)}'); rnd(vg)
    P(f'v_add_f32 {v(vg)}, {v(vg)}, {v(vXv)}\nv_mov_b32 {v(vg+1)}, {v(vg)}')
    P(f'v_permlane16_swap_b32 {v(vg)}, {v(vg+1)}')
    P(f'v_cvt_pk_bf16_f32 {v(vg)}, {v(vg)}, {v(vg+1)}')
    setexec(0xf)
    P(f'buffer_store_dword {v(vg)}, {v(vU16)}, {S(SRD_B)}, {s(sG+2)} offen {cfg.outpol}')
    stamp('R_end')
    def epoch(skip):
        P(f's_cmp_eq_u32 {s(sR)}, 0\ns_cbranch_scc0 {skip}')
        setexec(1)
        P(f'v_mov_b32 {v(vT)}, 0\nv_mov_b32 {v(vT+1)}, {s(sTAG)}')
        P(f'buffer_store_dword {v(vT+1)}, {v(vT)}, {S(SRD_WS)}, 0 offen sc1')
    if not cfg.epearly: epoch('L_END')
    if cfg.xdelay:
        P(f's_cmp_eq_u32 {s(sR)}, 0\ns_cbranch_scc0 L_END\ns_memrealtime s[76:77]\ns_waitcnt lgkmcnt(0)\ns_add_u32 {s(sT0)}, s76, {cfg.xdelay}')
        P(f'L_XDL:\ns_memrealtime s[76:77]\ns_waitcnt lgkmcnt(0)\ns_sub_u32 {s(sT1)}, s76, {s(sT0)}\ns_cmp_lt_i32 {s(sT1)}, 0\ns_cbranch_scc1 L_XDL')
    if cfg.gprobe:
        P(f's_cmp_eq_u32 {s(sR)}, 0\ns_cbranch_scc0 L_END\ns_mov_b64 exec, -1\ns_mov_b32 {s(sT0)}, {hex(DIAG)}')
        nw = 4 if cfg.gprobe.startswith('L') else 1
        P(f'v_lshlrev_b32 v1, 5, v0')
        if cfg.gprobe[0] == 'R': P('v_add_u32 v1, 8, v1')
        if cfg.gprobe[0] in 'MR': P('s_sleep 40')
        regs = []
        for q in range(4):
            for w in range(nw):
                r = 128 + 2*(q*4 + w); regs.append(r)
                P(f'buffer_load_dwordx2 v[{r}:{r+1}], v1, {S(SRD_WS)}, {s(sT0)} offen offset:{8*w} sc1')
            P(f's_add_u32 {s(sT0)}, {s(sT0)}, 2048')
        P('s_waitcnt vmcnt(0)')
        P(f'v_subrev_u32 v2, {s(sDIAG)}, v{regs[0]}\nv_subrev_u32 v3, {s(sDIAG)}, v{regs[0]+1}')
        for r in regs[1:]:
            P(f'v_subrev_u32 v4, {s(sDIAG)}, v{r}\nv_min_i32 v2, v2, v4\nv_subrev_u32 v4, {s(sDIAG)}, v{r+1}\nv_max_i32 v3, v3, v4')
        wave_reduce('v_min_i32', [2]); wave_reduce('v_max_i32', [3])
        P(f'v_sub_u32 v2, v3, v2\nv_readlane_b32 {s(sT0)}, v2, 63\ns_nop 1\ns_min_u32 {s(sT0)}, {s(sT0)}, 5000\ns_memrealtime s[76:77]\ns_waitcnt lgkmcnt(0)\ns_add_u32 {s(sT0)}, {s(sT0)}, s76')
        P(f'L_GPR:\ns_memrealtime s[76:77]\ns_waitcnt lgkmcnt(0)\ns_sub_u32 {s(sT1)}, s76, {s(sT0)}\ns_cmp_lt_i32 {s(sT1)}, 0\ns_cbranch_scc1 L_GPR')
    if cfg.probe:
        P(f's_cmp_eq_u32 {s(sR)}, 0\ns_cbranch_scc0 L_END')
        i = stamps[cfg.probe]
        P(f's_waitcnt lgkmcnt(0)\ns_sub_u32 {s(sT0)}, {s(sDIAG+2*i)}, {s(sDIAG)}\ns_min_u32 {s(sT0)}, {s(sT0)}, 5000\ns_memrealtime s[76:77]\ns_waitcnt lgkmcnt(0)\ns_add_u32 {s(sT0)}, {s(sT0)}, s76')
        P(f'L_PROBE:\ns_memrealtime s[76:77]\ns_waitcnt lgkmcnt(0)\ns_sub_u32 {s(sT1)}, s76, {s(sT0)}\ns_cmp_lt_i32 {s(sT1)}, 0\ns_cbranch_scc1 L_PROBE')
    P('s_branch L_END')

    P('L_END:')
    if cfg.diag and not cfg.probe and not cfg.gprobe:
        P('s_waitcnt lgkmcnt(0)')
        P(f's_cmp_ge_u32 {s(sB)}, 256\ns_cbranch_scc1 L_END2')
        srd(SRD_WS, sWSP, WS_BYTES)
        P(f's_lshl_b32 {s(sT0)}, {s(sB)}, 3\ns_add_u32 {s(sT0)}, {s(sT0)}, {s(sW)}\ns_lshl_b32 {s(sT0)}, {s(sT0)}, 7\ns_add_u32 {s(sT0)}, {s(sT0)}, {hex(DIAG)}')
        P('s_mov_b64 exec, 1\nv_mov_b32 v1, 0')
        for i in range(9): P(f'v_mov_b32 v2, {s(sDIAG+2*i)}\nbuffer_store_dword v2, v1, {S(SRD_WS)}, {s(sT0)} offen offset:{4*i}')
        P('L_END2:')
    P('s_endpgm')
    P('L_CODE_END:')
    probs = P.fix()
    for p in probs: print('HAZARD across branch:', p, file=sys.stderr)
    head = open(f'cdna_kernels/{NAME}.s.ref').read().split('; Override launch')[0]
    txt = head
    txt += DOC
    txt += f'; @launch grid=(256,1,1) block=(512,1,1) lds={LDS_BYTES}\n'
    txt += f'.amdgcn_target "amdgcn-amd-amdhsa--gfx950"\n.text\n.globl {NAME}_kernel\n' + ('.p2align 12\n' if cfg.pgal else '') + f'.p2align 8\n.type {NAME}_kernel,@function\n{NAME}_kernel:\n'
    txt += P.text() + '\n'
    txt += f'''.section .rodata,"a"
.p2align 6
.amdhsa_kernel {NAME}_kernel
  .amdhsa_next_free_vgpr 256
  .amdhsa_next_free_sgpr 102
  .amdhsa_accum_offset 256
  .amdhsa_group_segment_fixed_size 0
  .amdhsa_kernarg_size 112
  .amdhsa_user_sgpr_count 2
  .amdhsa_user_sgpr_kernarg_segment_ptr 1
  .amdhsa_system_sgpr_workgroup_id_x 1
  .amdhsa_float_denorm_mode_32 3
.end_amdhsa_kernel
'''
    return txt, stamps

if __name__ == '__main__':
    out = sys.argv[1] if len(sys.argv) > 1 else f'cdna_kernels/{NAME}.s'
    class C(Cfg): pass
    for a in sys.argv[2:]:
        k, val = a.split('=', 1)
        setattr(C, k, eval(val))
    txt, stamps = gen(C)
    open(out, 'w').write(txt)
    print('written', out, len(txt), 'bytes', stamps)
```

```python
import sys, struct
from asmdsl import Prog

NAME = 'adaLN_cond__mha_block_cached__glu_gated_swiglu__decode'

def f2u(x): return struct.unpack('<I', struct.pack('<f', x))[0]
LOG2E = hex(f2u(1.4426950408889634))
NLOG2E = hex(f2u(-1.4426950408889634))
SCALE = hex(f2u(128 ** -0.5))
EPS = hex(f2u(1e-5))
R512 = hex(f2u(1/512))
ALL = (1 << 64) - 1

X1 = 0x1000
X4 = 0x9000
X3 = 0x19000
X1F = 0x1b000
X0 = 0x1d000
X0B = 0x194000
X2F = 0x1c000
XC = 0x180000
X4N = 0x1e0000
XPR = 0x190000
XP = 0x1f000
X2 = 0x20000
XA = 0x60000
XB = 0x200000
XD = 0xe0000
XE = 0x110000
XG = 0x197000
XB2 = 0x140000
X0C = 0x1a000
DIAG = 0x1a0000
WS_BYTES = 0x300000
L_P, L_OP, L_Q, L_FLAG = 0x20000, 0x20800, 0x21000, 0x21100
L_ST, L_U = 0x0, 0x1000
L_MS, L_ML, L_PAR = L_FLAG + 64, L_FLAG + 128, L_FLAG + 176
LDS_BYTES = 0x21200
NM = 43
TAGX = hex(sum(1 << (a*4+b*2+c) for a in (0,1) for b in (0,1) for c in (0,1) if (a ^ b) | c))

DOC = """;
;                  all QK^T of one L wave's tiles, true max and sum exchanged inside the head, normalised p
"""

class Cfg:
    depth = 8
    diag = False
    probe = None
    kpol = 'nt'
    vpol = 'nt'
    wpol = 'nt'
    ppol = ''
    sleep1 = 0
    sleep2 = 0
    sleep3 = 4
    sleep4 = 40
    prio = 3
    hint = 1
    hsleep = 3
    lsleep = 1
    pf = 'post'
    wq0 = 1
    dsched = (6, 12, 9)
    rot = 8
    npf = 8
    local = 1
    pipe = dict()
    psleep = dict()
    xcrep = 1
    xcline = 0
    nodpp = 0
    b0late = 1
    xcsleep = 0
    dnlate = 0
    xbrep = 0
    rwait = 1
    xbgrp = 0
    rsleep = 0
    dsleep = 0
    wob2 = 0
    epearly = 1
    ksplit = 0
    th = 0
    cpf = 1
    fakehalf = 0
    xdelay = 0
    gwait = 0
    tearly = 0
    pkand = 0
    acc2 = 0
    mlat = 0
    t2early = 0
    par = 'dyn'
    nsamp = 4
    nearloc = 1
    x4near = 0
    mlpw = 0
    xcmode = 0
    wfirst = 1
    wofirst = 0
    pkadd = 1
    split0 = 1
    lay2 = 1
    pgal = 1
    t1first = 0
    evenmlp = 1
    b0pre = 0
    pretouch = 0
    fakenear = None
    ks = 256
    hr = 8
    slotp = 0
    cpf0 = 1
    lnopt = 1
    ackw = 1
    rearly = 1
    tlbw = 0
    gthr = 32
    gprobe = None
    dodd = None
    dvar = None
    outpol = ''
    uppol = 'nt'
    spin = 1 << 18

def v(a, n=1): return f'v{a}' if n == 1 else f'v[{a}:{a+n-1}]'
def s(a, n=1): return f's{a}' if n == 1 else f's[{a}:{a+n-1}]'

sB, sW = 2, 3
sKP, sVP = 4, 6
SRD_K, SRD_V, SRD_WS, SRD_A, SRD_B, SRD_C = 8, 12, 16, 20, 24, 28
sH, sJ, sX, sKK = 36, 37, 38, 39
sWSP = 40
sTAG, sIM, sR = 42, 43, 44
sT0, sT1, sT2 = 45, 46, 47
pWQ, pWO, pW1, pW3, pW2, pC, pWM, pX, pOUT = 48, 50, 54, 56, 58, 60, 62, 64, 66
sSPIN = 68
sO0, sO1, sO2, sO3 = 69, 70, 71, 72
sMASK = 74
sPAR, sNEAR = 52, 53
sT1B = 35
sLOC = 73
sG = 76
sDIAG = 84
vL = 0
vT = 1
vM = 4

def gen(cfg=Cfg):
    P = Prog()
    X4NEAR = bool(cfg.x4near and cfg.par is not None and not cfg.t2early)
    D = cfg.depth
    stamps = {}
    def stamp(name):
        if cfg.diag and name in cfg.diag:
            grp = name.split('_')[0]
            same = [n for n in cfg.diag if n.split('_')[0] == grp]
            if name == 'start': i = 0
            elif cfg.gprobe: i = 1
            elif grp == 'M': i = 8 - same.index(name)
            else: i = 1 + same.index(name)
            assert 0 <= i <= 8
            stamps[name] = i
            P(f's_memrealtime {s(sDIAG + 2*i, 2)}')
            if cfg.gprobe == name:
                assert i < 5
                P(f's_waitcnt lgkmcnt(0)\ns_mov_b32 s96, {s(sWSP)}\ns_mov_b32 s97, {s(sWSP+1)}\ns_mov_b32 s98, {hex(WS_BYTES)}\ns_mov_b32 s99, 0x20000')
                P(f's_lshl_b32 s100, {s(sB)}, 2\ns_and_b32 s101, {s(sW)}, 3\ns_add_u32 s100, s100, s101\ns_lshl_b32 s100, s100, 3\ns_add_u32 s100, s100, {hex(DIAG)}')
                P(f's_mov_b64 s[94:95], exec\ns_mov_b64 exec, 1\nv_mov_b32 v254, {s(sDIAG)}\nv_mov_b32 v255, {s(sDIAG+2*i)}\nv_mov_b32 v253, 0\nbuffer_store_dwordx2 v[254:255], v253, s[96:99], s100 offen sc1\ns_mov_b64 exec, s[94:95]')
    def srd(r, ptr, nbytes):
        P(f's_mov_b32 {s(r)}, {s(ptr)}\ns_mov_b32 {s(r+1)}, {s(ptr+1)}\ns_mov_b32 {s(r+2)}, {hex(nbytes)}\ns_mov_b32 {s(r+3)}, 0x20000')
    def S(r): return s(r, 4)
    def setexec(mask):
        lo, hi = mask & 0xffffffff, mask >> 32
        if mask == ALL: P('s_mov_b64 exec, -1')
        elif mask <= 64: P(f's_mov_b64 exec, {mask}')
        else: P(f's_mov_b32 exec_lo, {hex(lo)}\ns_mov_b32 exec_hi, {hex(hi)}')
    uid = [0]
    def lab(p):
        uid[0] += 1; return f'L_{p}{uid[0]}'
    def tagcheck_loop(issue, tagregs, name, sleep=0, after=None, nafter=0):
        top = lab(name)
        P(f's_mov_b32 {s(sSPIN)}, 0')
        P(f'{top}:')
        issue()
        if after: after()
        P(f's_add_u32 {s(sSPIN)}, {s(sSPIN)}, 1\ns_cmp_gt_u32 {s(sSPIN)}, {cfg.spin}\ns_cbranch_scc1 L_END')
        P(f's_waitcnt vmcnt({nafter if after else 0})')
        if len(tagregs) == 1:
            P(f'v_cmp_ne_u32 vcc, {s(sTAG)}, {v(tagregs[0])}')
        else:
            P(f'v_xor_b32 {v(vT)}, {s(sTAG)}, {v(tagregs[0])}\nv_xor_b32 {v(vT+1)}, {s(sTAG)}, {v(tagregs[1])}')
            for k, r in enumerate(tagregs[2:]):
                P(f'v_bitop3_b32 {v(vT + (k & 1))}, {v(r)}, {s(sTAG)}, {v(vT + (k & 1))} bitop3:{TAGX}')
            P(f'v_or_b32 {v(vT)}, {v(vT)}, {v(vT+1)}\nv_cmp_ne_u32 vcc, 0, {v(vT)}')
        if sleep:
            dn = lab(name + 'd')
            P(f's_cbranch_vccz {dn}\ns_sleep {sleep}\ns_branch {top}\n{dn}:')
        else: P(f's_cbranch_vccnz {top}')
    def poll(name, issue, nl, base, stride, tagoff, done, issued=False):
        NS = cfg.pipe.get(name, 1)
        top, join = lab(name), lab(name + 'j')
        ex = [lab(name + 'x') for _ in range(NS)]
        P(f's_mov_b32 {s(sSPIN)}, 0')
        for i in range(NS - 1): issue(base + i*stride)
        if issued:
            assert NS == 1
            sk = lab(name + 's'); P(f's_branch {sk}')
        P(f'{top}:')
        for i in range(NS):
            issue(base + ((i + NS - 1) % NS)*stride)
            if issued: P(f'{sk}:')
            if i == 0: P(f's_add_u32 {s(sSPIN)}, {s(sSPIN)}, 1\ns_cmp_gt_u32 {s(sSPIN)}, {cfg.spin}\ns_cbranch_scc1 L_END')
            P(f's_waitcnt vmcnt({(NS-1)*nl})')
            tr = [base + i*stride + t for t in tagoff]
            if len(tr) == 1:
                P(f'v_cmp_ne_u32 vcc, {s(sTAG)}, {v(tr[0])}')
            else:
                P(f'v_xor_b32 {v(vT)}, {s(sTAG)}, {v(tr[0])}\nv_xor_b32 {v(vT+1)}, {s(sTAG)}, {v(tr[1])}')
                for k, r in enumerate(tr[2:]):
                    P(f'v_bitop3_b32 {v(vT + (k & 1))}, {v(r)}, {s(sTAG)}, {v(vT + (k & 1))} bitop3:{TAGX}')
                P(f'v_or_b32 {v(vT)}, {v(vT)}, {v(vT+1)}\nv_cmp_ne_u32 vcc, 0, {v(vT)}')
            ps = cfg.psleep.get(name, 0)
            if ps:
                P(f's_cbranch_vccz {ex[i]}\ns_sleep {ps}')
                if i + 1 == NS: P(f's_branch {top}')
            else: P(f's_cbranch_vccz {ex[i]}' if i + 1 < NS else f's_cbranch_vccnz {top}')
        for i in reversed(range(NS)):
            P(f'{ex[i]}:')
            done(base + i*stride)
            if i > 0: P(f's_branch {join}')
        P(f'{join}:')
    def poll_groups(name, groups):
        top = lab(name)
        P(f's_mov_b32 {s(sSPIN)}, 0\ns_mov_b32 {s(sT0)}, {(1 << len(groups)) - 1}')
        P(f'{top}:')
        for g, (issue, tr) in enumerate(groups):
            sk = lab(name + 'i')
            P(f's_bitcmp1_b32 {s(sT0)}, {g}\ns_cbranch_scc0 {sk}')
            issue()
            P(f'{sk}:')
        P(f's_add_u32 {s(sSPIN)}, {s(sSPIN)}, 1\ns_cmp_gt_u32 {s(sSPIN)}, {cfg.spin}\ns_cbranch_scc1 L_END')
        P('s_waitcnt vmcnt(0)')
        for g, (issue, tr) in enumerate(groups):
            P(f'v_xor_b32 {v(vT + (g & 1))}, {s(sTAG)}, {v(tr[0])}')
            for r in tr[1:]: P(f'v_bitop3_b32 {v(vT + (g & 1))}, {v(r)}, {s(sTAG)}, {v(vT + (g & 1))} bitop3:{TAGX}')
            P(f'v_cmp_ne_u32 {s(sG+4+2*(g & 1),2)}, 0, {v(vT + (g & 1))}')
            P(f's_cmp_lg_u64 {s(sG+4+2*(g & 1),2)}, 0\ns_cselect_b32 {s(sT1)}, {1 << g}, 0')
            P(f's_or_b32 {s(sT0)}, {s(sT1)}, {s(sT0) if g else s(sT1)}')
        P(f's_cbranch_scc1 {top}')
    def publish_loc(d, vaddr, soff, mask=None, flag=sLOC):
        if not cfg.local: return publish(d, vaddr, soff, mask)
        far, j2 = lab('far'), lab('pb')
        if mask: setexec(mask)
        P(f's_cmp_eq_u32 {s(flag)}, 1\ns_cbranch_scc0 {far}')
        P(f'buffer_store_dwordx4 {v(d,4)}, {v(vaddr)}, {S(SRD_WS)}, {s(soff)} offen')
        P(f's_branch {j2}\n{far}:')
        publish(d, vaddr, soff)
        P(f'{j2}:')
        if mask: setexec(ALL)
    def afrag(dst, src, dpp=''):
        for w in range(4):
            if dpp: P(f'v_and_b32_dpp {v(dst+w)}, {v(src)}, {v(vM+w)} {dpp} row_mask:0xf bank_mask:0xf')
            else: P(f'v_and_b32 {v(dst+w)}, {v(src)}, {v(vM+w)}')
    def mfma(d, a, b, first=False):
        P(f'v_mfma_f32_16x16x32_bf16 {v(d,4)}, {v(a,4)}, {v(b,4)}, {"0" if first else v(d,4)}')
    vF, vHM, vPP = 244, 248, 250
    def afrag_pk(dst, src, dpp, k):
        pp = vPP + 2*(k & 1)
        if dpp: P(f'v_and_b32_dpp {v(pp)}, {v(src)}, {v(vHM)} {dpp} row_mask:0xf bank_mask:0xf')
        else: P(f'v_and_b32 {v(pp)}, {v(src)}, {v(vHM)}')
        return [f'v_pk_mul_f32 {v(dst+2*w,2)}, {v(pp,2)}, {v(vF+2*w,2)} op_sel_hi:[0,1]' for w in range(2)]
    def chain(d, n, bregs, srcs, areg):
        if cfg.pkand:
            pend = afrag_pk(areg, *srcs[0], 0)
            for x in pend: P(x)
            if n > 1: pend = afrag_pk(areg + 4, *srcs[1], 1)
            for i in range(n):
                if i + 1 < n:
                    for x in pend: P(x)
                if i + 2 < n: pend = afrag_pk(areg + 4*(i & 1) + 8*(1 - 2*0)*0 if False else areg + 4*(i & 1), *srcs[i+2], i) if False else None
                mfma(d, areg + 4*(i & 1), bregs[i], first=(i == 0))
                if i + 2 < n: pend = afrag_pk(areg + 4*(i & 1), *srcs[i+2], i)
            return
        if cfg.nodpp and srcs[0][1]:
            bc = 224
            for i in range(n): P(f'v_mov_b32_dpp {v(bc+i)}, {v(srcs[i][0])} {srcs[i][1]} row_mask:0xf bank_mask:0xf')
            srcs = [(bc+i, '') for i in range(n)]
        afrag(areg, *srcs[0])
        d2 = 32
        for i in range(n):
            if i + 1 < n: afrag(areg + 4*((i+1) & 1), *srcs[i+1])
            if cfg.acc2 and n >= 8: mfma(d2 if i & 1 else d, areg + 4*(i & 1), bregs[i], first=(i < 2))
            else: mfma(d, areg + 4*(i & 1), bregs[i], first=(i == 0))
        if cfg.acc2 and n >= 8:
            for r in range(0, 4, 2): P(f'v_pk_add_f32 {v(d+r,2)}, {v(d+r,2)}, {v(d2+r,2)}')
    def finish2(d):
        P(f'v_permlane32_swap_b32 {v(d)}, {v(d+2)}\nv_permlane32_swap_b32 {v(d+1)}, {v(d+3)}')
        P(f'v_add_f32_dpp {v(d)}, {v(d+2)}, {v(d)} row_ror:8 row_mask:0xf bank_mask:0xf')
        P(f'v_add_f32_dpp {v(d+1)}, {v(d+3)}, {v(d+1)} row_ror:8 row_mask:0xf bank_mask:0xf')
        P(f'v_mov_b32 {v(d+2)}, {s(sTAG)}')
    def finish1(d):
        P(f'v_permlane32_swap_b32 {v(d)}, {v(d+2)}\nv_permlane32_swap_b32 {v(d+1)}, {v(d+3)}')
        P(f'v_mov_b32 {v(d+2)}, {s(sTAG)}')
    def publish(d, vaddr, soff, mask=None):
        if mask: setexec(mask)
        P(f'buffer_store_dwordx4 {v(d,4)}, {v(vaddr)}, {S(SRD_WS)}, {s(soff)} offen sc1')
        if mask: setexec(ALL)
    M2SET = 0x00ff00ff00ff00ff
    def lohi(r):
        P(f'v_mov_b32 {v(r+2)}, {v(r)}\nv_mov_b32 {v(r+3)}, {v(r+1)}')
        for e in range(2): P(f'v_mov_b32_dpp {v(r+2+e)}, {v(r+e)} row_shl:4 row_mask:0xf bank_mask:0x5')
        for e in range(2): P(f'v_mov_b32_dpp {v(r+e)}, {v(r+e)} row_shr:4 row_mask:0xf bank_mask:0xa')
    def lohi_srcs(r):
        out = []
        for i in range(16):
            u = i >> 1; a = u & 3
            out.append((r + (2 if u >= 4 else 0) + (i & 1), f'quad_perm:[{a},{a},{a},{a}]'))
        return out
    def lds_wait(name, vaddr, n, dst, chk, sleep=0):
        top = lab(name)
        op = {1: 'ds_read_b32', 2: 'ds_read_b64', 4: 'ds_read_b128'}[n]
        P(f's_mov_b32 {s(sSPIN)}, 0')
        P(f'{top}:')
        P(f'{op} {v(dst,n)}, {v(vaddr)}')
        P(f's_add_u32 {s(sSPIN)}, {s(sSPIN)}, 1\ns_cmp_gt_u32 {s(sSPIN)}, {cfg.spin*8}\ns_cbranch_scc1 L_END')
        P('s_waitcnt lgkmcnt(0)')
        if len(chk) == 2:
            P(f'v_and_b32 {v(vT)}, {v(chk[0])}, {v(chk[1])}\nv_cmp_eq_u32 vcc, 0, {v(vT)}')
        else: P(f'v_cmp_eq_u32 vcc, 0, {v(chk[0])}')
        if sleep:
            done = lab(name + 'd')
            P(f's_cbranch_vccz {done}\ns_sleep {sleep}\ns_branch {top}\n{done}:')
        else: P(f's_cbranch_vccnz {top}')
    def hint_wait(name, soff):
        top = lab(name)
        P(f's_add_u32 {s(sMASK)}, {s(sWSP)}, {s(soff)}\ns_addc_u32 {s(sMASK+1)}, {s(sWSP+1)}, 0\ns_mov_b32 {s(sSPIN)}, 0')
        P(f'{top}:')
        P(f's_load_dwordx8 {s(sG,8)}, {s(sMASK,2)}, 0 glc')
        P(f's_add_u32 {s(sSPIN)}, {s(sSPIN)}, 1\ns_cmp_gt_u32 {s(sSPIN)}, {cfg.spin}\ns_cbranch_scc1 L_END')
        P('s_waitcnt lgkmcnt(0)')
        P(f's_xor_b32 {s(sG)}, {s(sG)}, {s(sTAG)}')
        for k in range(1, 8): P(f's_xor_b32 {s(sG+k)}, {s(sG+k)}, {s(sTAG)}\ns_or_b32 {s(sG)}, {s(sG)}, {s(sG+k)}')
        done = lab(name + 'd')
        P(f's_cbranch_scc0 {done}')
        if cfg.hsleep: P(f's_sleep {cfg.hsleep}')
        P(f's_branch {top}\n{done}:')
    def par_read(r):
        if cfg.par == 'dyn': P(f'v_mov_b32 {v(r)}, {hex(L_PAR)}\nds_read_b32 {v(r)}, {v(r)}')
    def par_use(r):
        if cfg.par == 'dyn': P(f's_waitcnt lgkmcnt(0)\nv_readfirstlane_b32 {s(sPAR)}, {v(r)}\ns_and_b32 {s(sPAR)}, {s(sPAR)}, 1')
        else: P(f's_mov_b32 {s(sPAR)}, {cfg.par or 0}')
        P(f's_lshr_b32 {s(sNEAR)}, {s(sX)}, 2\ns_xor_b32 {s(sNEAR)}, {s(sNEAR)}, {s(sPAR)}\ns_lshl_b32 {s(sNEAR)}, {s(sNEAR)}, 13')
    def wave_reduce(op, regs):
        for mod in ('quad_perm:[1,0,3,2] row_mask:0xf', 'quad_perm:[2,3,0,1] row_mask:0xf', 'row_ror:4 row_mask:0xf', 'row_ror:8 row_mask:0xf',
                    'row_bcast:15 row_mask:0xa', 'row_bcast:31 row_mask:0xc'):
            for r in regs: P(f'{op}_dpp {v(r)}, {v(r)}, {v(r)} {mod} bank_mask:0xf')
    def unpack(lo, hi, src):
        if lo == src: P(f'v_and_b32 {v(hi)}, 0xffff0000, {v(src)}\nv_lshlrev_b32 {v(lo)}, 16, {v(src)}')
        else: P(f'v_lshlrev_b32 {v(lo)}, 16, {v(src)}\nv_and_b32 {v(hi)}, 0xffff0000, {v(src)}')
    def silu_multi(rs, ts):
        for r, t in zip(rs, ts): P(f'v_mul_f32 {v(t)}, {NLOG2E}, {v(r)}')
        for r, t in zip(rs, ts): P(f'v_exp_f32 {v(t)}, {v(t)}')
        for r, t in zip(rs, ts): P(f'v_add_f32 {v(t)}, 1.0, {v(t)}')
        for r, t in zip(rs, ts): P(f'v_rcp_f32 {v(t)}, {v(t)}')
        for r, t in zip(rs, ts): P(f'v_mul_f32 {v(r)}, {v(r)}, {v(t)}')
    def add2(d, a, b):
        if cfg.pkadd: P(f'v_pk_add_f32 {v(d,2)}, {v(a,2)}, {v(b,2)}')
        else:
            for e in range(2): P(f'v_add_f32 {v(d+e)}, {v(a+e)}, {v(b+e)}')
    def rnd(r): P(f'v_cvt_pk_bf16_f32 {v(r)}, {v(r)}, {v(r)}\nv_and_b32 {v(r)}, 0xffff0000, {v(r)}')

    vMA, vMB, vMC, vPUB = 16, 17, 18, 19
    vMT, vD0, vAA, vS4 = 64, 36, 52, 40
    def modtile_issue(sRB, sCOL):
        srd(SRD_A, pC, 1024); srd(SRD_B, pWM, 512*6144)
        P(f's_lshl_b32 {s(sO1)}, {s(sRB)}, 8')
        P(f'buffer_load_dword {v(vMC)}, {v(vMA)}, {S(SRD_A)}, {s(sO1)} offen')
        P(f's_mul_i32 {s(sO1)}, {s(sRB)}, {128*6144}\ns_add_u32 {s(sO1)}, {s(sO1)}, {s(sCOL)}')
        for i in range(16):
            P(f'buffer_load_dwordx4 {v(vMT+4*i,4)}, {v(vMB)}, {S(SRD_B)}, {s(sO1)} offen {cfg.wpol}')
            if i < 15: P(f's_add_u32 {s(sO1)}, {s(sO1)}, 6144')
    def modtile_compute(nafter, soff, both=False):
        if nafter: stamp('C0_cw')
        P(f's_waitcnt vmcnt({16+nafter})')
        if nafter: stamp('C0_c')
        unpack(vS4, vS4+1, vMC)
        silu_multi([vS4, vS4+1], [vS4+2, vS4+3])
        for e in range(2): P(f'v_cvt_pk_bf16_f32 {v(vS4+e)}, {v(vS4+e)}, {v(vS4+e)}')
        lohi(vS4)
        P(f's_waitcnt vmcnt({nafter})')
        if nafter: stamp('C0_t1')
        chain(vD0, 16, [vMT+4*i for i in range(16)], lohi_srcs(vS4), vAA)
        finish2(vD0)
        if both:
            for e in range(2): P(f'v_mov_b32_dpp {v(vD0+e)}, {v(vD0+e)} row_ror:8 row_mask:0xf bank_mask:0xc')
            if cfg.par == 'dyn':
                P(f'v_mov_b32 {v(vT+2)}, {hex(L_PAR)}')
                lds_wait('pw', vT+2, 1, 28, [28])
                P(f'v_lshrrev_b32 {v(vT)}, 3, {v(vL)}\nv_xor_b32 {v(vT)}, {v(28)}, {v(vT)}')
            else: P(f'v_lshrrev_b32 {v(vT)}, 3, {v(vL)}\nv_xor_b32 {v(vT)}, {cfg.par}, {v(vT)}')
            P(f'v_and_b32 {v(vT)}, 1, {v(vT)}\nv_lshl_add_u32 {v(vT)}, {v(vT)}, 13, {v(vPUB)}')
            publish(vD0, vT, soff)
        else: publish(vD0, vPUB, soff, M2SET)

    P(f's_cmp_ge_u32 {s(sB)}, 256\ns_cbranch_scc1 L_END')
    if cfg.diag:
        for i in range(9): P(f's_mov_b32 {s(sDIAG+2*i)}, 0')
    stamp('start')
    P(f's_load_dwordx4 {s(sKP,4)}, s[0:1], 8')
    P(f's_load_dwordx16 {s(pWQ,16)}, s[0:1], 24')
    P(f's_load_dwordx2 {s(sWSP,2)}, s[0:1], 104')
    P(f's_load_dwordx2 {s(pX,2)}, s[0:1], 0')
    P(f's_load_dwordx2 {s(pOUT,2)}, s[0:1], 88')
    P(f'v_lshrrev_b32 {v(vT)}, 6, v0\nv_and_b32 {v(vL)}, 63, v0')
    P(f'v_readfirstlane_b32 {s(sW)}, {v(vT)}')
    P(f'v_lshlrev_b32 {v(vT)}, 2, {v(vL)}\nv_add_u32 {v(vT)}, {hex(L_FLAG)}, {v(vT)}\nv_mov_b32 {v(vT+1)}, 0')
    P(f'ds_write_b32 {v(vT)}, {v(vT+1)}')
    P(f's_and_b32 {s(sH)}, {s(sB)}, 31\ns_lshr_b32 {s(sJ)}, {s(sB)}, 5\ns_and_b32 {s(sX)}, {s(sB)}, 7\ns_lshr_b32 {s(sKK)}, {s(sB)}, 3')
    if cfg.split0: P(f's_cmp_ge_u32 {s(sW)}, 4\ns_cbranch_scc1 L_CPRE')
    vKA, vVA = 8, 12
    P(f'v_lshrrev_b32 {v(vT)}, 4, {v(vL)}\nv_and_b32 {v(vT+1)}, 15, {v(vL)}')
    if not cfg.ks: P(f'v_lshlrev_b32 {v(vVA)}, 10, {v(vT)}\nv_lshl_add_u32 {v(vVA)}, {v(vT+1)}, 4, {v(vVA)}')
    if cfg.ks:
        P(f'v_lshlrev_b32 {v(vVA)}, 4, {v(vL)}')
        P(f'v_lshlrev_b32 {v(vT+2)}, 2, {v(vT)}\nv_xor_b32 {v(vT+1)}, {v(vT+1)}, {v(vT+2)}\nv_lshlrev_b32 {v(vT+1)}, 4, {v(vT+1)}\nv_lshl_add_u32 {v(vKA)}, {v(vT)}, 8, {v(vT+1)}')
        for i in range(1, 4): P(f'v_xor_b32 {v(vKA+i)}, {16*i}, {v(vKA)}')
    elif cfg.ksplit:
        P(f'v_lshlrev_b32 {v(vT+2)}, 2, {v(vT)}\nv_xor_b32 {v(vT+1)}, {v(vT+1)}, {v(vT+2)}\nv_lshlrev_b32 {v(vT+1)}, 4, {v(vT+1)}\nv_lshl_add_u32 {v(vKA)}, {v(vT)}, 10, {v(vT+1)}')
        for i in range(1, 4): P(f'v_xor_b32 {v(vKA+i)}, {16*i}, {v(vKA)}')
    else:
        P(f'v_xor_b32 {v(vT+1)}, {v(vT+1)}, {v(vT)}\nv_lshlrev_b32 {v(vT+1)}, 4, {v(vT+1)}\nv_lshl_add_u32 {v(vKA)}, {v(vT)}, 8, {v(vT+1)}')
        for i in range(1, 4): P(f'v_xor_b32 {v(vKA+i)}, {64*i}, {v(vKA)}')
    if cfg.slotp == 1:
        P(f's_lshl_b32 {s(sO0)}, {s(sH)}, 20\ns_and_b32 {s(sO3)}, {s(sJ)}, 3\ns_lshl_b32 {s(sO3)}, {s(sO3)}, 1\ns_and_b32 {s(sT0)}, {s(sW)}, 1\ns_add_u32 {s(sO3)}, {s(sO3)}, {s(sT0)}\ns_lshr_b32 {s(sT0)}, {s(sW)}, 1\ns_lshl_b32 {s(sT0)}, {s(sT0)}, 3\ns_add_u32 {s(sO3)}, {s(sO3)}, {s(sT0)}\ns_lshr_b32 {s(sT0)}, {s(sJ)}, 2\ns_lshl_b32 {s(sT0)}, {s(sT0)}, 4\ns_add_u32 {s(sO3)}, {s(sO3)}, {s(sT0)}\ns_lshl_b32 {s(sO3)}, {s(sO3)}, 12')
    elif cfg.slotp == 2:
        P(f's_lshl_b32 {s(sO0)}, {s(sH)}, 20\ns_lshl_b32 {s(sO3)}, {s(sW)}, 3\ns_add_u32 {s(sO3)}, {s(sO3)}, {s(sJ)}\ns_lshl_b32 {s(sO3)}, {s(sO3)}, 12')
    else:
        P(f's_lshl_b32 {s(sO0)}, {s(sH)}, 20\ns_lshl_b32 {s(sO3)}, {s(sJ)}, 2\ns_add_u32 {s(sO3)}, {s(sO3)}, {s(sW)}\ns_lshl_b32 {s(sO3)}, {s(sO3)}, 12')
    vXF, vXS, vL16, vWA, vXA = 28, 32, 60, 62, 33
    vWQ = 128
    def wq_issue():
        srd(SRD_C, pWQ, 4 << 20)
        P(f's_lshl_b32 {s(sO2)}, {s(sJ)}, 19\ns_lshl_b32 {s(sT0)}, {s(sH)}, 8\ns_add_u32 {s(sO2)}, {s(sO2)}, {s(sT0)}')
        for i in range(16):
            P(f'buffer_load_dwordx4 {v(vWQ+4*i,4)}, {v(vWA)}, {S(SRD_C)}, {s(sO2)} offen {cfg.wpol}')
            if i < 15: P(f's_add_u32 {s(sO2)}, {s(sO2)}, {8192 if (i & 1) == 0 else 8192*7}')
    def code_prefetch(w, late=False):
        if not cfg.cpf or (bool(cfg.cpf0 and cfg.split0) == late): return
        P(f's_cmp_eq_u32 {s(sW)}, {w}\ns_cbranch_scc0 L_NOCP')
        P(f's_getpc_b64 {s(20,2)}')
        P('L_PCREF:')
        P(f's_sub_u32 s20, s20, L_PCREF-{NAME}_kernel\ns_subb_u32 s21, s21, 0')
        P(f's_lshl_b32 {s(sT0)}, {s(sKK)}, 3\nv_and_b32 {v(vT)}, 7, {v(vL)}\nv_add_u32 {v(vT)}, {s(sT0)}, {v(vT)}\nv_lshlrev_b32 {v(vT)}, 7, {v(vT)}')
        P(f'v_min_u32 {v(vT)}, L_CODE_END-{NAME}_kernel-4, {v(vT)}')
        P(f'global_load_dword {v(240)}, {v(vT)}, s[20:21]')
        P('L_NOCP:')
    def cpre():
        P(f'v_lshlrev_b32 {v(vMA)}, 2, {v(vL)}\nv_lshrrev_b32 {v(vT)}, 3, {v(vL)}\nv_mul_u32_u24 {v(vMB)}, {16*6144}, {v(vT)}\nv_and_b32 {v(vT+1)}, 7, {v(vL)}\nv_lshl_add_u32 {v(vMB)}, {v(vT+1)}, 4, {v(vMB)}')
        P(f'v_lshrrev_b32 {v(vT)}, 4, {v(vL)}\nv_lshlrev_b32 {v(vT)}, 7, {v(vT)}\nv_lshl_add_u32 {v(vPUB)}, {v(vT+1)}, 4, {v(vT)}')
        P(f'v_lshlrev_b32 {v(vL16)}, 4, {v(vL)}')
        P(f'v_bfe_u32 {v(vT)}, {v(vL)}, 4, 1\nv_lshrrev_b32 {v(vT+2)}, 5, {v(vL)}\nv_lshl_add_u32 {v(vT)}, {v(vT)}, 1, {v(vT+2)}')
        P(f'v_lshl_add_u32 {v(vXA)}, {v(vT+1)}, 2, {v(vT)}\nv_lshlrev_b32 {v(vXA)}, 2, {v(vXA)}\nv_lshlrev_b32 {v(vWA)}, 14, {v(vT)}')
        P(f'v_and_b32 {v(vT+1)}, 15, {v(vL)}\nv_lshl_add_u32 {v(vWA)}, {v(vT+1)}, 4, {v(vWA)}')
        if cfg.tearly == 1:
            P(f's_sub_u32 {s(sT2)}, {s(sKK)}, 16\ns_lshl_b32 {s(sT2)}, {s(sT2)}, 2\ns_add_u32 {s(sT2)}, {s(sT2)}, {s(sX)}\ns_lshr_b32 {s(sT1B)}, {s(sT2)}, 3\ns_and_b32 {s(sT2)}, {s(sT2)}, 7')
            P(f's_cmp_lt_u32 {s(sX)}, 4\ns_cselect_b32 {s(sT2)}, {s(sT2)}, 99\ns_cmp_ge_u32 {s(sKK)}, 16\ns_cselect_b32 {s(sT2)}, {s(sT2)}, 99')
        else:
            P(f's_sub_u32 {s(sT2)}, {s(sKK)}, 16\ns_mov_b32 {s(sT1B)}, {s(sX)}')
        P(f's_and_b32 {s(sT0)}, {s(sT2)}, 1\ns_lshl_b32 {s(sT0)}, {s(sT0)}, 10\ns_lshl_b32 {s(sT1)}, {s(sT1B)}, 7\ns_add_u32 {s(sT1)}, {s(sT1)}, {s(sT0)}\ns_lshr_b32 {s(sT0)}, {s(sT2)}, 1\ns_lshl_b32 {s(sO2)}, {s(sJ)}, 7')
        P('s_waitcnt lgkmcnt(0)')
        if cfg.t1first:
            assert not cfg.tearly
            P(f's_cmp_eq_u32 {s(sW)}, 4\ns_cbranch_scc1 L_ISW4\ns_cmp_lt_u32 {s(sT2)}, 8\ns_cbranch_scc0 L_B0\ns_barrier\ns_branch L_B0\nL_ISW4:')
        else: P(f's_cmp_eq_u32 {s(sW)}, 4\ns_cbranch_scc0 L_B0')
        if cfg.b0late: P('s_setprio 3')
        P(f's_cmp_lt_u32 {s(sT2)}, 8\ns_cbranch_scc0 L_XLD')
        stamp('C0_pre')
        modtile_issue(sT0, sT1)
        stamp('C0_t1i')
        if cfg.t1first: P('s_barrier')
        P('L_XLD:')
        srd(SRD_C, pX, 1024)
        P(f'buffer_load_dwordx4 {v(vXF,4)}, {v(vL16)}, {S(SRD_C)}, 0 offen')
        P(f'buffer_load_dword {v(vXS)}, {v(vXA)}, {S(SRD_C)}, {s(sO2)} offen')
        if cfg.wq0 == 2:
            P(f's_cmp_lt_u32 {s(sT2)}, 8\ns_cbranch_scc1 L_NOWQ0')
            wq_issue()
            P('L_NOWQ0:')
        elif cfg.wq0: wq_issue()
    if not cfg.split0: cpre()
    else: assert cfg.b0late
    if not cfg.split0:
        P('L_B0:')
        if not cfg.b0late: P('s_barrier')
        P(f's_cmp_ge_u32 {s(sW)}, 4\ns_cbranch_scc1 L_CW')

    if not cfg.split0: srd(SRD_K, sKP, 32 << 20)
    sTL, sRS, sTL0 = sG, sG+1, sG+2
    if cfg.hr: P(f's_mul_i32 {s(sT0)}, {s(sH)}, {cfg.hr << 12}\ns_add_u32 {s(sO3)}, {s(sO3)}, {s(sT0)}\ns_and_b32 {s(sO3)}, {s(sO3)}, 0x1f000')
    P(f's_mul_i32 {s(sTL0)}, {s(sH)}, {cfg.th}\ns_and_b32 {s(sTL0)}, {s(sTL0)}, 7\ns_lshl_b32 {s(sTL0)}, {s(sTL0)}, 17')
    sPB = sG + 3
    if cfg.fakenear:
        P(f's_lshr_b32 {s(sT0)}, {s(sO3)}, 16\ns_lshl_b32 {s(sT0)}, {s(sT0)}, 2\ns_xor_b32 {s(sT0)}, {s(sT0)}, {s(sH)}\ns_lshl_b32 {s(sO0)}, {s(sT0)}, 20')
        P(f's_lshr_b32 {s(sT0)}, {s(sT0)}, 1\ns_getreg_b32 {s(sPB)}, hwreg(HW_REG_XCC_ID, 2, 1)\ns_xor_b32 {s(sPB)}, {s(sPB)}, {s(sT0)}\ns_and_b32 {s(sPB)}, {s(sPB)}, 1\ns_and_b32 {s(sO3)}, {s(sO3)}, 0xf000')
    phase = [0]
    def fn_addr():
        p_ = cfg.fakenear[phase[0]]
        P(f's_lshr_b32 {s(sT2)}, {s(sRS)}, 13\ns_lshl_b32 {s(sT2)}, {s(sT2)}, 14\ns_and_b32 {s(sO1)}, {s(sRS)}, 0x1000\ns_add_u32 {s(sO1)}, {s(sO1)}, {s(sT2)}\ns_xor_b32 {s(sT2)}, {s(sPB)}, {p_}\ns_lshl_b32 {s(sT2)}, {s(sT2)}, 13\ns_add_u32 {s(sO1)}, {s(sO1)}, {s(sT2)}\ns_add_u32 {s(sO1)}, {s(sO1)}, {s(sO0)}\ns_add_u32 {s(sO1)}, {s(sO1)}, {s(sTL)}')
    def ks_addr():
        if cfg.ks == 256: P(f's_add_u32 {s(sO1)}, {s(sTL)}, {s(sRS)}\ns_lshr_b32 {s(sO1)}, {s(sO1)}, 2\ns_add_u32 {s(sO1)}, {s(sO1)}, {s(sO0)}')
        else:
            ls = cfg.ks.bit_length() - 1
            P(f's_add_u32 {s(sO1)}, {s(sTL)}, {s(sRS)}\ns_and_b32 {s(sT2)}, {s(sO1)}, {hex(((cfg.ks - 1) << 12) & 0xfffff)}\ns_sub_u32 {s(sO1)}, {s(sO1)}, {s(sT2)}\ns_lshr_b32 {s(sT2)}, {s(sT2)}, 2\ns_add_u32 {s(sO1)}, {s(sO1)}, {s(sT2)}\ns_add_u32 {s(sO1)}, {s(sO1)}, {s(sO0)}')
    def firsttile():
        P(f's_mov_b32 {s(sTL)}, {s(sTL0)}\ns_mov_b32 {s(sRS)}, {s(sO3)}')
        if cfg.fakenear: fn_addr()
        elif cfg.ks: ks_addr()
        else: P(f's_add_u32 {s(sO1)}, {s(sO0)}, {s(sTL)}\ns_add_u32 {s(sO1)}, {s(sO1)}, {s(sRS)}')
    def nexttile():
        P(f's_add_u32 {s(sTL)}, {s(sTL)}, 0x20000\ns_and_b32 {s(sTL)}, {s(sTL)}, 0xe0000\ns_add_u32 {s(sRS)}, {s(sRS)}, {cfg.rot << 12}\ns_and_b32 {s(sRS)}, {s(sRS)}, {0xf000 if cfg.fakenear else 0x1f000}')
        if cfg.fakenear: fn_addr()
        elif cfg.ks: ks_addr()
        else: P(f's_add_u32 {s(sO1)}, {s(sO0)}, {s(sTL)}\ns_add_u32 {s(sO1)}, {s(sO1)}, {s(sRS)}')
    firsttile()
    P(f's_lshl_b32 {s(sT0)}, {s(sW)}, 15\ns_mov_b32 m0, {s(sT0)}\ns_mov_b32 {s(sT1)}, 0')
    if cfg.split0:
        P('s_waitcnt lgkmcnt(0)')
        srd(SRD_K, sKP, 32 << 20)
        if cfg.t1first: P(f's_sub_u32 {s(sT2)}, {s(sKK)}, 16\ns_cmp_lt_u32 {s(sT2)}, 8\ns_cbranch_scc0 L_NOT1B\ns_barrier\nL_NOT1B:')
    stamp('L_k0')
    vV = 128
    def streamK(ds, sfx):
        DK = ds[0]
        P(f'L_KLOOP{sfx}:')
        for i in range(4):
            if cfg.ks and i: P(f's_add_u32 {s(sO1)}, {s(sO1)}, {cfg.ks*1024 - 1024}')
            if cfg.ksplit and i: P(f's_add_u32 m0, {s(sT0)}, {768*i}')
            P(f's_waitcnt vmcnt({DK-1})')
            P(f'buffer_load_dwordx4 {v(vKA+i)}, {S(SRD_K)}, {s(sO1)} offen offset:{(256 if cfg.ksplit else 1024)*i} {cfg.kpol} lds')
        if cfg.b0late: P(f's_cmp_eq_u32 {s(sT1)}, 0\ns_cbranch_scc0 L_KL2{sfx}\ns_barrier\nL_KL2{sfx}:')
        nexttile()
        P(f's_add_u32 {s(sT0)}, {s(sT0)}, 4096\ns_mov_b32 m0, {s(sT0)}\ns_add_u32 {s(sT1)}, {s(sT1)}, 1\ns_cmp_lt_u32 {s(sT1)}, 8\ns_cbranch_scc1 L_KLOOP{sfx}')
    def streamV(ds, sfx):
        DK = ds[0]
        def DV(idx): return ds[0] if idx < ds[1] else ds[2]
        stamp('L_kissued')
        srd(SRD_V, sVP, 32 << 20)
        phase[0] = 1
        firsttile()
        P(f's_lshl_b32 {s(sT0)}, {s(sW)}, 3\ns_add_u32 {s(sT0)}, {s(sT0)}, {hex(L_FLAG)}\nv_mov_b32 {v(vT)}, {s(sT0)}\nv_mov_b32 {v(vT+1)}, 1')
        for idx in range(32):
            t, i = idx >> 2, idx & 3
            P(f's_waitcnt vmcnt({DV(idx)-1})')
            if idx == DK - 1:
                P(f'ds_write_b32 {v(vT)}, {v(vT+1)}')
                stamp('L_klanded')
            if cfg.ks:
                if i: P(f's_add_u32 {s(sO1)}, {s(sO1)}, {cfg.ks*1024}')
                P(f'buffer_load_dwordx4 {v(vV+4*idx,4)}, {v(vVA)}, {S(SRD_V)}, {s(sO1)} offen {cfg.vpol}')
            else: P(f'buffer_load_dwordx4 {v(vV+4*idx,4)}, {v(vVA)}, {S(SRD_V)}, {s(sO1)} offen offset:{256*i} {cfg.vpol}')
            if i == 3 and t < 7: nexttile()
    def stream(ds, sfx):
        streamK(ds, sfx); streamV(ds, sfx)
    if cfg.dvar:
        P(f's_getreg_b32 {s(sT2)}, hwreg(HW_REG_XCC_ID, 0, 3)')
        P(f's_bitcmp1_b32 {s(sT2)}, 2\ns_cbranch_scc1 L_STH')
        P(f's_bitcmp1_b32 {s(sT2)}, 0\ns_cbranch_scc1 L_ST1')
        stream(cfg.dvar[0], 'a'); P('s_branch L_STD\nL_ST1:')
        stream(cfg.dvar[1], 'b'); P('s_branch L_STD\nL_STH:')
        P(f's_bitcmp1_b32 {s(sT2)}, 0\ns_cbranch_scc1 L_ST3')
        stream(cfg.dvar[2], 'c'); P('s_branch L_STD\nL_ST3:')
        stream(cfg.dvar[3], 'd')
        P('L_STD:')
    elif cfg.dodd:
        P(f's_getreg_b32 {s(sT2)}, hwreg(HW_REG_XCC_ID, 0, 1)\ns_cmp_eq_u32 {s(sT2)}, 1\ns_cbranch_scc1 L_STO')
        stream(cfg.dsched, 'a'); P('s_branch L_STD\nL_STO:')
        stream(cfg.dodd, 'b')
        P('L_STD:')
    elif cfg.lay2:
        streamK(cfg.dsched, '')
        P('s_branch L_VPART')
        P('L_CPRE:')
        code_prefetch(7)
        cpre()
        P('L_B0:')
        if cfg.b0pre: P('s_barrier')
        P('s_branch L_CW\nL_VPART:')
        streamV(cfg.dsched, '')
    else: stream(cfg.dsched, '')
    stamp('L_vissued')
    def masks(pk=False):
        P(f'v_and_b32 {v(vT)}, 1, {v(vL)}\nv_lshlrev_b32 {v(vT)}, 4, {v(vT)}\nv_mov_b32 {v(vT+1)}, 0xffff\nv_lshlrev_b32 {v(vT+1)}, {v(vT)}, {v(vT+1)}')
        P(f'v_bfe_u32 {v(vT)}, {v(vL)}, 1, 2')
        for w in range(4):
            P(f'v_cmp_eq_u32 vcc, {w}, {v(vT)}\nv_cndmask_b32 {v(vM+w)}, 0, {v(vT+1)}, vcc')
            if pk and cfg.pkand: P(f'v_cndmask_b32 {v(vF+w)}, 0, 1.0, vcc')
        if pk and cfg.pkand: P(f'v_mov_b32 {v(vHM)}, {v(vT+1)}')
    def common_setup():
        P(f's_load_dword {s(sTAG)}, {s(sWSP,2)}, 0')
        srd(SRD_WS, sWSP, WS_BYTES)
        masks(True)
    masks()
    vPA, vOA, vP, vA, vD = 13, 14, 16, 48, 56
    P(f'v_lshrrev_b32 {v(vT)}, 4, {v(vL)}\nv_lshlrev_b32 {v(vT)}, 4, {v(vT)}\ns_lshl_b32 {s(sT0)}, {s(sW)}, 9\ns_add_u32 {s(sT0)}, {s(sT0)}, {hex(L_P)}\nv_add_u32 {v(vPA)}, {s(sT0)}, {v(vT)}')
    P(f's_add_u32 {s(sT0)}, {s(sT0)}, {hex(L_OP - L_P)}\nv_lshlrev_b32 {v(vT)}, 3, {v(vL)}\nv_add_u32 {v(vOA)}, {s(sT0)}, {v(vT)}')
    P('s_waitcnt lgkmcnt(0)')
    P('s_barrier')
    stamp('L_b1')
    for t in range(8): P(f'ds_read_b128 {v(vP+4*t,4)}, {v(vPA)} offset:{64*t}')
    P('s_waitcnt lgkmcnt(7)')
    afrag(vA, vP)
    for idx in range(32):
        if idx + 1 < 32:
            if (idx + 1) % 4 == 0: P(f's_waitcnt lgkmcnt({7 - (idx+1)//4})')
            afrag(vA + 4*((idx+1) & 1), vP + idx + 1)
        P(f's_waitcnt vmcnt({31-idx})')
        mfma(vD, vA + 4*(idx & 1), vV + 4*idx, first=(idx == 0))
    stamp('L_pv')
    P(f'v_permlane32_swap_b32 {v(vD)}, {v(vD+2)}\nv_permlane32_swap_b32 {v(vD+1)}, {v(vD+3)}')
    P(f'ds_write_b64 {v(vOA)}, {v(vD,2)}')
    P('s_waitcnt lgkmcnt(0)')
    P('s_barrier')
    P('s_endpgm' if not cfg.diag else 's_branch L_END')

    if cfg.split0 and not cfg.lay2:
        P('L_CPRE:')
        code_prefetch(7)
        cpre()
        P('L_B0:')
    P('L_CW:')
    if cfg.gprobe and cfg.gprobe[0] in 'MR':
        P(f's_waitcnt lgkmcnt(0)\ns_mov_b32 s96, {s(sWSP)}\ns_mov_b32 s97, {s(sWSP+1)}\ns_mov_b32 s98, {hex(WS_BYTES)}\ns_mov_b32 s99, 0x20000')
        P(f's_lshl_b32 s100, {s(sB)}, 2\ns_and_b32 s101, {s(sW)}, 3\ns_add_u32 s100, s100, s101\ns_lshl_b32 s100, s100, 3\ns_add_u32 s100, s100, {hex(DIAG)}')
        P(f's_mov_b64 exec, 1\nv_mov_b32 v254, {s(sDIAG)}\nv_mov_b32 v255, {s(sDIAG)}\nv_mov_b32 v253, 0\nbuffer_store_dwordx2 v[254:255], v253, s[96:99], s100 offen sc1\ns_mov_b64 exec, -1\ns_waitcnt vmcnt(0)')
    if cfg.b0late and not (cfg.b0pre and cfg.lay2 and cfg.split0 and not (cfg.dvar or cfg.dodd)): P('s_barrier')
    if cfg.prio: P(f's_setprio {cfg.prio}')
    P(f's_cmp_eq_u32 {s(sW)}, 4\ns_cbranch_scc0 L_C123')
    vGA = 192
    common_setup()
    P('s_waitcnt lgkmcnt(0)')
    P(f's_add_u32 {s(sTAG)}, {s(sTAG)}, 1')
    if cfg.local:
        P(f's_getreg_b32 {s(sLOC)}, hwreg(HW_REG_XCC_ID, 0, 3)\ns_lshl_b32 {s(sT0)}, {s(sTAG)}, 3\ns_or_b32 {s(sLOC)}, {s(sLOC)}, {s(sT0)}')
        P(f's_lshl_b32 {s(sO3)}, {s(sH)}, 7\ns_add_u32 {s(sO3)}, {s(sO3)}, {hex(X0)}\ns_lshl_b32 {s(sT0)}, {s(sJ)}, 2\ns_add_u32 {s(sT0)}, {s(sT0)}, {s(sO3)}\nv_mov_b32 {v(vT)}, {s(sT0)}\nv_mov_b32 {v(vT+1)}, {s(sLOC)}')
        P(f's_lshl_b32 {s(sR)}, {s(sX)}, 3\ns_lshr_b32 {s(sT0)}, {s(sKK)}, 2\ns_add_u32 {s(sR)}, {s(sR)}, {s(sT0)}\ns_lshl_b32 {s(sR)}, {s(sR)}, 7\ns_add_u32 {s(sR)}, {s(sR)}, {hex(X0B)}')
        P(f's_and_b32 {s(sT0)}, {s(sKK)}, 3\ns_lshl_b32 {s(sT0)}, {s(sT0)}, 2\ns_add_u32 {s(sT0)}, {s(sT0)}, {s(sR)}\nv_writelane_b32 {v(vT)}, {s(sT0)}, 1')
        P(f's_lshl_b32 {s(sT0)}, {s(sX)}, 7\ns_lshl_b32 {s(sO2)}, {s(sKK)}, 2\ns_add_u32 {s(sT0)}, {s(sT0)}, {s(sO2)}\ns_add_u32 {s(sT0)}, {s(sT0)}, {hex(X0C)}\nv_writelane_b32 {v(vT)}, {s(sT0)}, 2')
        if cfg.mlat:
            P(f's_lshl_b32 {s(sT0)}, {s(sH)}, 7\ns_lshl_b32 {s(sO2)}, {s(sJ)}, 3\ns_add_u32 {s(sT0)}, {s(sT0)}, {s(sO2)}\ns_add_u32 {s(sT0)}, {s(sT0)}, {hex(X3)}\nv_writelane_b32 {v(vT)}, {s(sT0)}, 3')
            P(f's_add_u32 {s(sT0)}, {s(sT0)}, 4\nv_writelane_b32 {v(vT)}, {s(sT0)}, 4\nv_writelane_b32 {v(vT+1)}, 0, 3\nv_writelane_b32 {v(vT+1)}, 0, 4')
        setexec(31 if cfg.mlat else 7)
        P(f'buffer_store_dword {v(vT+1)}, {v(vT)}, {S(SRD_WS)}, 0 offen sc1')
        setexec(ALL)
    P(f's_cmp_lt_u32 {s(sT2)}, 8\ns_cbranch_scc0 L_NOT1')
    P(f's_lshl_b32 {s(sO2)}, {s(sT1B)}, 3\ns_add_u32 {s(sO2)}, {s(sO2)}, {s(sT2)}\ns_lshl_b32 {s(sO2)}, {s(sO2)}, 9\ns_add_u32 {s(sO2)}, {s(sO2)}, {hex(X1)}')
    modtile_compute((18 if cfg.wq0 == 1 else 2) + cfg.local, sO2)
    if cfg.hint:
        P(f's_lshl_b32 {s(sO2)}, {s(sT1B)}, 9\ns_lshl_b32 {s(sT0)}, {s(sT2)}, 2\ns_add_u32 {s(sO2)}, {s(sO2)}, {s(sT0)}\ns_add_u32 {s(sO2)}, {s(sO2)}, {hex(X1F)}\nv_lshlrev_b32 {v(vT)}, 7, {v(vL)}')
        setexec(0xf)
        P(f'buffer_store_dword {v(vD0+2)}, {v(vT)}, {S(SRD_WS)}, {s(sO2)} offen sc1')
        setexec(ALL)
    stamp('C0_x1pub')
    if cfg.wq0 != 1: wq_issue()
    P('s_branch L_T1D')
    P('L_NOT1:')
    if not cfg.wq0: wq_issue()
    P('L_T1D:')
    vx = 64
    P(f's_waitcnt vmcnt({16 + (cfg.local if cfg.wq0 == 1 else 0)})')
    for k in range(4): unpack(vx+2*k, vx+2*k+1, vXF+k)
    P(f'v_add_f32 {v(20)}, {v(vx)}, {v(vx+1)}\nv_add_f32 {v(21)}, {v(vx+2)}, {v(vx+3)}\nv_add_f32 {v(22)}, {v(vx+4)}, {v(vx+5)}\nv_add_f32 {v(23)}, {v(vx+6)}, {v(vx+7)}')
    P(f'v_add_f32 {v(20)}, {v(20)}, {v(21)}\nv_add_f32 {v(22)}, {v(22)}, {v(23)}\nv_add_f32 {v(20)}, {v(20)}, {v(22)}')
    wave_reduce('v_add_f32', [20])
    P(f'v_mul_f32 {v(20)}, {R512}, {v(20)}\nv_readlane_b32 {s(sT0)}, {v(20)}, 63')
    for k in range(8): P(f'v_subrev_f32 {v(vx+k)}, {s(sT0)}, {v(vx+k)}')
    P(f'v_mul_f32 {v(21)}, {v(vx)}, {v(vx)}')
    for k in range(1, 8): P(f'v_fmac_f32 {v(21)}, {v(vx+k)}, {v(vx+k)}')
    wave_reduce('v_add_f32', [21])
    P(f'v_mul_f32 {v(21)}, {R512}, {v(21)}')
    P(f'v_cvt_pk_bf16_f32 {v(22)}, {v(20)}, {v(21)}')
    P(f'v_and_b32 {v(21)}, 0xffff0000, {v(22)}\nv_lshlrev_b32 {v(20)}, 16, {v(22)}\nv_add_f32 {v(21)}, {EPS}, {v(21)}')
    rnd(21); P(f'v_sqrt_f32 {v(21)}, {v(21)}'); rnd(21); P(f'v_rcp_f32 {v(22)}, {v(21)}')
    P(f'v_readlane_b32 {s(sT0)}, {v(20)}, 63\nv_readlane_b32 {s(sT1)}, {v(21)}, 63\nv_readlane_b32 {s(sT2)}, {v(22)}, 63')
    vLN = 24
    unpack(vLN, vLN+1, vXS)
    for e in range(2): P(f'v_subrev_f32 {v(vLN+e)}, {s(sT0)}, {v(vLN+e)}')
    P(f'v_cvt_pk_bf16_f32 {v(20)}, {v(vLN)}, {v(vLN+1)}'); unpack(vLN, vLN+1, 20)
    for e in range(2): P(f'v_mul_f32 {v(20+e)}, {s(sT2)}, {v(vLN+e)}')
    for e in range(2): P(f'v_fma_f32 {v(vLN+e)}, -{v(20+e)}, {s(sT1)}, {v(vLN+e)}')
    for e in range(2): P(f'v_fma_f32 {v(vLN+e)}, {v(vLN+e)}, {s(sT2)}, {v(20+e)}')
    P(f'v_cvt_pk_bf16_f32 {v(20)}, {v(vLN)}, {v(vLN+1)}'); unpack(vLN, vLN+1, 20)
    P(f'v_bfe_u32 {v(vT)}, {v(vL)}, 3, 1\nv_lshlrev_b32 {v(vT)}, 9, {v(vT)}\nv_add_u32 {v(26)}, {v(vPUB)}, {v(vT)}')
    P(f's_lshl_b32 {s(sO0)}, {s(sJ)}, 12\ns_add_u32 {s(sO0)}, {s(sO0)}, {hex(X1)}')
    if cfg.hint:
        P(f's_lshl_b32 {s(sT0)}, {s(sJ)}, 2\ns_and_b32 {s(sT1)}, {s(sH)}, 3\ns_add_u32 {s(sT0)}, {s(sT0)}, {s(sT1)}\ns_lshl_b32 {s(sT0)}, {s(sT0)}, 7\ns_add_u32 {s(sT0)}, {s(sT0)}, {hex(X1F)}')
        hint_wait('h1h', sT0)
    else: P('s_waitcnt vmcnt(0)')
    if cfg.local:
        P(f's_add_u32 {s(sMASK)}, {s(sWSP)}, {s(sO3)}\ns_addc_u32 {s(sMASK+1)}, {s(sWSP+1)}, 0')
        P(f's_load_dwordx8 {s(sG,8)}, {s(sMASK,2)}, 0 glc')
        P(f's_load_dwordx4 s[8:11], {s(sWSP,2)}, {s(sR)} glc')
    stamp('C0_wq')
    if cfg.sleep1: P(f's_sleep {cfg.sleep1}')
    def issue():
        for k in range(4): P(f'buffer_load_dwordx4 {v(vGA+4*k,4)}, {v(26)}, {S(SRD_WS)}, {s(sO0)} offen offset:{1024*k} sc1')
    tagcheck_loop(issue, [vGA+4*k+2 for k in range(4)], 'h1')
    stamp('C0_h1')
    if cfg.local:
        P('s_waitcnt lgkmcnt(0)')
        P(f's_xor_b32 {s(sG)}, {s(sG)}, {s(sLOC)}')
        for k in range(1, 8): P(f's_xor_b32 {s(sG+k)}, {s(sG+k)}, {s(sLOC)}\ns_or_b32 {s(sG)}, {s(sG)}, {s(sG+k)}')
        P(f's_cselect_b32 {s(sT0)}, 0, 1')
        P(f's_xor_b32 s8, s8, {s(sLOC)}')
        for k in range(1, 4): P(f's_xor_b32 {s(8+k)}, {s(8+k)}, {s(sLOC)}\ns_or_b32 s8, s8, {s(8+k)}')
        P(f's_cselect_b32 {s(sR)}, 0, 1\ns_mov_b32 {s(sLOC)}, {s(sT0)}')
    b = vGA
    for e in range(2): P(f'v_add_f32 {v(b+e)}, {v(b+e)}, {v(b+4+e)}\nv_add_f32 {v(b+8+e)}, {v(b+8+e)}, {v(b+12+e)}')
    for e in range(2): P(f'v_add_f32 {v(b+e)}, {v(b+e)}, {v(b+8+e)}')
    P(f'v_cvt_pk_bf16_f32 {v(b+4)}, {v(b)}, {v(b+1)}\nv_mov_b32 {v(b+5)}, {v(b+4)}')
    P(f'v_mov_b32_dpp {v(b+4)}, {v(b+5)} row_ror:8 row_mask:0xf bank_mask:0xc')
    P(f'v_mov_b32_dpp {v(b+5)}, {v(b+5)} row_ror:8 row_mask:0xf bank_mask:0x3')
    unpack(b+8, b+9, b+4); unpack(b+6, b+7, b+5)
    P(f'v_add_f32 {v(b+6)}, 1.0, {v(b+6)}\nv_add_f32 {v(b+7)}, 1.0, {v(b+7)}\nv_cvt_pk_bf16_f32 {v(b+5)}, {v(b+6)}, {v(b+7)}')
    unpack(b+6, b+7, b+5)
    P(f'v_mul_f32 {v(b+6)}, {v(b+6)}, {v(vLN)}\nv_mul_f32 {v(b+7)}, {v(b+7)}, {v(vLN+1)}\nv_cvt_pk_bf16_f32 {v(b+5)}, {v(b+6)}, {v(b+7)}')
    unpack(b+6, b+7, b+5)
    P(f'v_add_f32 {v(b+6)}, {v(b+6)}, {v(b+8)}\nv_add_f32 {v(b+7)}, {v(b+7)}, {v(b+9)}')
    vH = 20
    P(f'v_cvt_pk_bf16_f32 {v(vH)}, {v(b+6)}, {v(b+6)}\nv_cvt_pk_bf16_f32 {v(vH+1)}, {v(b+7)}, {v(b+7)}')
    P(f's_lshl_b32 {s(sO1)}, {s(sH)}, 13\ns_add_u32 {s(sO1)}, {s(sO1)}, {hex(X2)}\ns_lshl_b32 {s(sO0)}, {s(sJ)}, 10\ns_add_u32 {s(sO0)}, {s(sO0)}, {s(sO1)}\ns_add_u32 {s(sO2)}, {s(sO1)}, 4096')
    chain(vD0, 16, [vWQ+4*i for i in range(16)], [(vH + (i & 1), f'row_newbcast:{i >> 1}') for i in range(16)], vAA)
    finish1(vD0)
    publish_loc(vD0, vL16, sO0)
    if cfg.hint:
        P(f's_lshl_b32 {s(sO3)}, {s(sH)}, 7\ns_add_u32 {s(sO3)}, {s(sO3)}, {hex(X2F)}\nv_mov_b32 {v(vT)}, 0\ns_lshl_b32 {s(sT0)}, {s(sJ)}, 2\ns_add_u32 {s(sT0)}, {s(sT0)}, {s(sO3)}')
        setexec(1)
        P(f'buffer_store_dword {v(vD0+2)}, {v(vT)}, {S(SRD_WS)}, {s(sT0)} offen sc1')
        setexec(ALL)
    stamp('C0_x2pub')
    P(f'v_bfe_u32 {v(vT)}, {v(vL)}, 4, 1\nv_lshrrev_b32 {v(vT+1)}, 5, {v(vL)}\nv_lshl_add_u32 {v(vT)}, {v(vT)}, 1, {v(vT+1)}\nv_and_b32 {v(vT+1)}, 15, {v(vL)}\nv_lshl_add_u32 {v(vT)}, {v(vT+1)}, 2, {v(vT)}')
    P(f'v_lshlrev_b32 {v(vT)}, 2, {v(vT)}\nv_add_u32 {v(26)}, {hex(L_Q)}, {v(vT)}')
    P(f'v_and_b32 {v(27)}, 3, {v(vL)}\nv_lshlrev_b32 {v(27)}, 3, {v(27)}\nv_add_u32 {v(27)}, {hex(L_FLAG + 4)}, {v(27)}\nv_mov_b32 {v(25)}, 1')
    if cfg.hint: hint_wait('qh', sO3)
    stamp('C0_qh')
    if cfg.sleep2: P(f's_sleep {cfg.sleep2}')
    def gather8(base_lo, base_hi):
        def issue():
            for k in range(8):
                P(f'buffer_load_dwordx4 {v(vGA+4*k,4)}, {v(vL16)}, {S(SRD_WS)}, {s(base_lo if k < 4 else base_hi)} offen offset:{1024*(k & 3)} sc1')
        return issue
    def sum8():
        for a, b2 in ((0, 1), (2, 3), (4, 5), (6, 7), (0, 2), (4, 6), (0, 4)):
            for e in (0, 1): P(f'v_add_f32 {v(vGA+4*a+e)}, {v(vGA+4*a+e)}, {v(vGA+4*b2+e)}')
    tagcheck_loop(gather8(sO1, sO2), [vGA+4*k+2 for k in range(8)], 'q')
    stamp('C0_q')
    sum8()
    P(f'v_cvt_pk_bf16_f32 {v(vT)}, {v(vGA)}, {v(vGA+1)}')
    P(f'ds_write_b32 {v(26)}, {v(vT)}')
    P(f'ds_write_b32 {v(27)}, {v(25)}')
    vg, vXv, vGAv, vGBv, vU16, vDA, vXC, vL16r, vBP, sJJ, sP, sB4, sD = 64, 12, 13, 14, 15, 17, 20, 16, 18, sG, 4, 12, 8
    def vda():
        if cfg.par is None: P(f'v_lshrrev_b32 {v(vT)}, 2, {v(vL)}\nv_lshl_add_u32 {v(vDA)}, {v(vT)}, 12, {v(vU16)}')
        else: P(f'v_lshrrev_b32 {v(vT)}, 4, {v(vL)}\nv_lshl_add_u32 {v(vDA)}, {v(vT)}, 14, {v(vU16)}\nv_bfe_u32 {v(vT)}, {v(vL)}, 2, 2\nv_lshl_add_u32 {v(vDA)}, {v(vT)}, 11, {v(vDA)}')
    def red_addr():
        par_read(19)
        par_use(19)
        if X4NEAR:
            P(f's_lshr_b32 {s(sT0)}, {s(sJJ)}, 2\ns_lshl_b32 {s(sT0)}, {s(sT0)}, 14\ns_and_b32 {s(sT1)}, {s(sJJ)}, 3\ns_lshl_b32 {s(sT1)}, {s(sT1)}, 11\ns_add_u32 {s(sT0)}, {s(sT0)}, {s(sT1)}\ns_add_u32 {s(sT0)}, {s(sT0)}, {s(sNEAR)}')
            for p_ in range(4): P(f's_add_u32 {s(sP+p_)}, {s(sT0)}, {hex(X4N + p_*32768)}')
        if cfg.par is None:
            P(f's_lshl_b32 {s(sO0)}, {s(sJJ)}, 14\ns_add_u32 {s(sO0)}, {s(sO0)}, {hex(XB)}')
            if cfg.xbrep: P(f's_lshl_b32 {s(sT1)}, {s(sX)}, 17\ns_add_u32 {s(sO0)}, {s(sO0)}, {s(sT1)}')
            for k in range(4): P(f's_add_u32 {s(sB4+k)}, {s(sO0)}, {4096*k}')
        else:
            P(f's_lshl_b32 {s(sO0)}, {s(sJJ)}, 15\ns_add_u32 {s(sO0)}, {s(sO0)}, {s(sNEAR)}\ns_add_u32 {s(sO0)}, {s(sO0)}, {hex(XB2)}')
            for k, o in enumerate((0, 4096, 16384, 20480)): P(f's_add_u32 {s(sB4+k)}, {s(sO0)}, {o}')
        P(f's_lshr_b32 {s(sO3)}, {s(sX)}, 1\ns_lshl_b32 {s(sO3)}, {s(sO3)}, 14\ns_and_b32 {s(sT0)}, {s(sX)}, 1\ns_lshl_b32 {s(sT0)}, {s(sT0)}, 12\ns_add_u32 {s(sO3)}, {s(sO3)}, {s(sT0)}\ns_add_u32 {s(sO3)}, {s(sO3)}, {hex(XC)}')
        P(f's_lshl_b32 {s(sT1)}, {s(sJJ)}, 9\ns_add_u32 {s(sO3)}, {s(sO3)}, {s(sT1)}')
        if cfg.nearloc: P(f's_add_u32 {s(sO3)}, {s(sO3)}, {s(sNEAR)}')
        if cfg.par is not None:
            P(f's_lshr_b32 {s(sO2)}, {s(sJJ)}, 1\ns_lshl_b32 {s(sO2)}, {s(sO2)}, 9\ns_and_b32 {s(sT1)}, {s(sJJ)}, 1\ns_lshl_b32 {s(sT1)}, {s(sT1)}, 7\ns_add_u32 {s(sO2)}, {s(sO2)}, {s(sT1)}')
            P(f's_and_b32 {s(sT1)}, {s(sX)}, 1\ns_lshl_b32 {s(sT1)}, {s(sT1)}, 6\ns_add_u32 {s(sO2)}, {s(sO2)}, {s(sT1)}\ns_and_b32 {s(sT1)}, {s(sX)}, 2\ns_lshl_b32 {s(sT1)}, {s(sT1)}, 7\ns_add_u32 {s(sO2)}, {s(sO2)}, {s(sT1)}\ns_add_u32 {s(sO2)}, {s(sO2)}, {s(sNEAR)}\ns_add_u32 {s(sO2)}, {s(sO2)}, {hex(XD)}')
        if cfg.par is None:
            P(f's_lshr_b32 {s(sO2)}, {s(sJJ)}, 1\ns_lshl_b32 {s(sO2)}, {s(sO2)}, 10\ns_and_b32 {s(sT1)}, {s(sJJ)}, 1\ns_lshl_b32 {s(sT1)}, {s(sT1)}, 7\ns_add_u32 {s(sO2)}, {s(sO2)}, {s(sT1)}')
            P(f's_and_b32 {s(sT1)}, {s(sX)}, 1\ns_lshl_b32 {s(sT1)}, {s(sT1)}, 6\ns_add_u32 {s(sO2)}, {s(sO2)}, {s(sT1)}\ns_lshr_b32 {s(sT1)}, {s(sX)}, 1\ns_lshl_b32 {s(sT1)}, {s(sT1)}, 8\ns_add_u32 {s(sO2)}, {s(sO2)}, {s(sT1)}\ns_add_u32 {s(sO2)}, {s(sO2)}, {hex(XD)}')
        for k in range(3): P(f's_add_u32 {s(sD+k)}, {s(sO2)}, {hex(65536*k)}')
    def red_setup():
        P(f's_sub_u32 {s(sT0)}, {s(sKK)}, 8')
        P(f's_mov_b32 {s(sJJ)}, {s(sT0)}\ns_lshl_b32 {s(sR)}, {s(sX)}, 3\ns_add_u32 {s(sR)}, {s(sR)}, {s(sT0)}')
        if cfg.local:
            P(f's_lshl_b32 {s(sT1)}, {s(sX)}, 7\ns_add_u32 {s(sT1)}, {s(sT1)}, {hex(X0C)}\ns_add_u32 {s(sMASK)}, {s(sWSP)}, {s(sT1)}\ns_addc_u32 {s(sMASK+1)}, {s(sWSP+1)}, 0')
            P(f's_load_dwordx16 s[4:19], {s(sMASK,2)}, 0 glc\ns_load_dwordx16 s[20:35], {s(sMASK,2)}, 64 glc')
            P(f's_getreg_b32 {s(sLOC)}, hwreg(HW_REG_XCC_ID, 0, 3)\ns_lshl_b32 {s(sT1)}, {s(sTAG)}, 3\ns_or_b32 {s(sLOC)}, {s(sLOC)}, {s(sT1)}')
        P(f'v_lshlrev_b32 {v(vL16r)}, 4, {v(vL)}\nv_and_b32 {v(vU16)}, 3, {v(vL)}\nv_lshlrev_b32 {v(vU16)}, 4, {v(vU16)}')
        P(f'v_and_b32 {v(vT)}, 7, {v(vL)}\nv_lshlrev_b32 {v(vT)}, 4, {v(vT)}\nv_bfe_u32 {v(vT+1)}, {v(vL)}, 3, 1\nv_lshl_add_u32 {v(vT)}, {v(vT+1)}, 3, {v(vT)}\nv_bfe_u32 {v(vT+1)}, {v(vL)}, 4, 1\nv_lshl_add_u32 {v(vT)}, {v(vT+1)}, 2, {v(vT)}\nv_lshrrev_b32 {v(vT+1)}, 5, {v(vL)}\nv_lshl_add_u32 {v(vT+2)}, {v(vT+1)}, 1, {v(vT)}')
        P(f'v_bfe_u32 {v(vT)}, {v(vL)}, 4, 1\nv_lshlrev_b32 {v(vT)}, 7, {v(vT)}\nv_lshrrev_b32 {v(vT+1)}, 2, {v(vU16)}\nv_add_u32 {v(vBP)}, {v(vT)}, {v(vT+1)}\ns_lshl_b32 {s(sT1)}, {s(sX)}, 4\nv_add_u32 {v(vBP)}, {s(sT1)}, {v(vBP)}')
        vda()
        if cfg.local:
            P('s_waitcnt lgkmcnt(0)')
            P(f's_xor_b32 s4, s4, {s(sLOC)}')
            for k in range(5, 36): P(f's_xor_b32 {s(k)}, {s(k)}, {s(sLOC)}\ns_or_b32 s4, s4, {s(k)}')
            P(f's_cselect_b32 {s(sLOC)}, 0, 1')
            srd(SRD_WS, sWSP, WS_BYTES)
        srd(SRD_A, pX, 1024); srd(SRD_B, pOUT, 1024)
        P(f's_lshl_b32 {s(sT1)}, {s(sJJ)}, 7')
        P(f'buffer_load_ushort {v(vXv)}, {v(vT+2)}, {S(SRD_A)}, {s(sT1)} offen')
        P(f's_and_b32 {s(sT2)}, {s(sX)}, 1\ns_lshl_b32 {s(sT2)}, {s(sT2)}, 6\ns_add_u32 {s(sT1)}, {s(sT1)}, {s(sT2)}\ns_and_b32 {s(sT2)}, {s(sX)}, 2\ns_lshl_b32 {s(sT2)}, {s(sT2)}, 2\ns_add_u32 {s(sT1)}, {s(sT1)}, {s(sT2)}\ns_and_b32 {s(sT2)}, {s(sX)}, 4\ns_add_u32 {s(sG+2)}, {s(sT1)}, {s(sT2)}')
        if not X4NEAR:
            for p_ in range(4): P(f's_lshl_b32 {s(sP+p_)}, {s(sJJ)}, 11\ns_add_u32 {s(sP+p_)}, {s(sP+p_)}, {hex(X4 + p_*16384)}')
        for i in range(cfg.pipe.get('xd', 1)):
            for k in range(3): P(f'v_mov_b32 {v(192+12*i+8+k)}, {s(sTAG) if k == 2 else 0}')
    def x4_issue():
        for k in range(8): P(f'buffer_load_dwordx4 {v(vg+4*k,4)}, {v(vL16r)}, {S(SRD_WS)}, {s(sP + (k >> 1))} offen offset:{1024*(k & 1)} sc1')
    P('L_QKP:')
    vKR, vQ, vKB, vDQ, vS2, vE, vML = 8, 128, 144, 28, 208, 210, 216
    sM2 = sG
    P(f's_sub_u32 {s(sT2)}, {s(sW)}, 4\ns_lshl_b32 {s(sT0)}, {s(sT2)}, 3\ns_add_u32 {s(sT0)}, {s(sT0)}, {hex(L_FLAG)}\nv_mov_b32 {v(vT+2)}, {s(sT0)}')
    P(f'v_and_b32 {v(vT)}, 15, {v(vL)}\nv_lshrrev_b32 {v(vT+1)}, 4, {v(vL)}\nv_lshlrev_b32 {v(26)}, 4, {v(vT+1)}\nv_xor_b32 {v(vT+1)}, {v(vT+1)}, {v(vT)}\nv_lshlrev_b32 {v(vT+1)}, 4, {v(vT+1)}')
    if cfg.ksplit or cfg.ks:
        P(f'v_and_b32 {v(vKR)}, 3, {v(vL)}\nv_lshlrev_b32 {v(vKR)}, 10, {v(vKR)}\nv_lshrrev_b32 {v(vT)}, 2, {v(vT)}\nv_lshl_add_u32 {v(vKR)}, {v(vT)}, 8, {v(vKR)}\nv_add_u32 {v(vKR)}, {v(vKR)}, {v(vT+1)}')
    else: P(f'v_lshl_add_u32 {v(vKR)}, {v(vT)}, 8, {v(vT+1)}')
    P(f's_lshl_b32 {s(sT0)}, {s(sT2)}, 15\nv_add_u32 {v(vKR)}, {s(sT0)}, {v(vKR)}')
    for q in range(1, 4): P(f'v_xor_b32 {v(vKR+q)}, {64*q}, {v(vKR)}')
    P(f'v_and_b32 {v(27)}, 7, {v(vL)}\nv_lshl_add_u32 {v(27)}, {v(27)}, 6, {v(26)}\nv_bfe_u32 {v(vT)}, {v(vL)}, 3, 1\nv_lshl_add_u32 {v(27)}, {v(vT)}, 3, {v(27)}')
    P(f's_lshl_b32 {s(sT0)}, {s(sT2)}, 9\ns_add_u32 {s(sT0)}, {s(sT0)}, {hex(L_P)}\nv_add_u32 {v(27)}, {s(sT0)}, {v(27)}\nv_add_u32 {v(26)}, {hex(L_Q)}, {v(26)}')
    P(f's_lshl_b32 {s(sT0)}, {s(sT2)}, 4\ns_add_u32 {s(sT0)}, {s(sT0)}, {hex(L_MS)}\nv_mov_b32 {v(25)}, {s(sT0)}\nv_mov_b32 {v(vML+2)}, 1\nv_mov_b32 {v(vML+3)}, 1')
    P(f's_mov_b32 {s(sMASK)}, 0x00010001\ns_mov_b32 {s(sMASK+1)}, 0x00010001\ns_mov_b32 {s(sM2)}, 0x01000100\ns_mov_b32 {s(sM2+1)}, 0x01000100')
    lds_wait('kq', vT+2, 2, 28, [28, 29], cfg.lsleep)
    stamp('C0_kready')
    for q in range(4): P(f'ds_read_b128 {v(vQ+4*q,4)}, {v(26)} offset:{64*q}')
    NB = 3; PD = NB - 1; NT = 8
    def kread(t, q): P(f'ds_read_b128 {v(vKB+16*(t % NB)+4*q,4)}, {v(vKR+q)} offset:{4096*t}')
    for t in range(PD):
        for q in range(4): kread(t, q)
    for t in range(NT + 1):
        u = t - 1
        for q in range(4):
            if t < NT:
                if q in (0, 2): P(f's_waitcnt lgkmcnt({min(4*PD - 2, 4*(NT - t) - 2 - q)})')
                mfma(vDQ + 4*(t & 1), vKB + 16*(t % NB) + 4*q, vQ + 4*q, first=(q == 0))
                if t + PD < NT: kread(t + PD, q)
            if t >= 1 and q >= 2:
                mk = sMASK if q == 2 else sM2
                for e in range(2):
                    P(f'v_cndmask_b32 {v(vS2+e)}, {v(vS2+e)}, {v(vDQ+4*(u & 1)+2*(q-2)+e)}, {s(mk,2)}')
        if t >= 1 and t < NT: P(f's_lshl_b64 {s(sMASK,2)}, {s(sMASK,2)}, 1\ns_lshl_b64 {s(sM2,2)}, {s(sM2,2)}, 1')
    stamp('C0_qk')
    P(f'v_cvt_pk_bf16_f32 {v(vE)}, {v(vS2)}, {v(vS2+1)}'); unpack(vS2, vS2+1, vE)
    for e in range(2): P(f'v_mul_f32 {v(vS2+e)}, {SCALE}, {v(vS2+e)}')
    P(f'v_cvt_pk_bf16_f32 {v(vE)}, {v(vS2)}, {v(vS2+1)}'); unpack(vS2, vS2+1, vE)
    P(f'v_max_f32 {v(vML)}, {v(vS2)}, {v(vS2+1)}')
    wave_reduce('v_max_f32', [vML])
    P(f'v_readlane_b32 {s(sT0)}, {v(vML)}, 63')
    for e in range(2): P(f'v_subrev_f32 {v(vE+e)}, {s(sT0)}, {v(vS2+e)}')
    for e in range(2): P(f'v_mul_f32 {v(vE+e)}, {LOG2E}, {v(vE+e)}')
    for e in range(2): P(f'v_exp_f32 {v(vE+e)}, {v(vE+e)}')
    P(f'v_add_f32 {v(vML+1)}, {v(vE)}, {v(vE+1)}')
    wave_reduce('v_add_f32', [vML+1])
    setexec(1 << 63)
    P(f'ds_write_b128 {v(25)}, {v(vML,4)}')
    setexec(ALL)
    P(f's_cmp_eq_u32 {s(sW)}, 4\ns_cbranch_scc1 L_C0ML')
    P(f's_cmp_eq_u32 {s(sW)}, 5\ns_cbranch_scc0 L_MLWAIT')
    if cfg.rwait == 4 or cfg.rearly:
        P(f's_sub_u32 {s(sT0)}, {s(sKK)}, 8\ns_cmp_lt_u32 {s(sT0)}, 8\ns_cbranch_scc0 L_NORED')
        red_setup()
        if cfg.rwait == 4: x4_issue()
        P('s_branch L_MLWAIT\nL_NORED:')
    P(f's_cmp_eq_u32 {s(sR)}, 99\ns_cbranch_scc0 L_MLWAIT')
    modtile_compute(0, sO2, X4NEAR)
    P('L_MLWAIT:')
    if cfg.mlpw:
        P(f's_cmp_eq_u32 {s(sW)}, 6\ns_cbranch_scc0 L_NOGL')
        P(f's_mov_b32 {s(sR)}, 0')
        if cfg.local:
            P(f's_lshl_b32 {s(sT0)}, {s(sX)}, 3\ns_lshr_b32 {s(sT1)}, {s(sKK)}, 2\ns_add_u32 {s(sT0)}, {s(sT0)}, {s(sT1)}\ns_lshl_b32 {s(sT0)}, {s(sT0)}, 7\ns_add_u32 {s(sT0)}, {s(sT0)}, {hex(X0B)}')
            P(f's_load_dwordx4 s[8:11], {s(sWSP,2)}, {s(sT0)} glc\ns_getreg_b32 {s(sT1)}, hwreg(HW_REG_XCC_ID, 0, 3)\ns_lshl_b32 {s(sT0)}, {s(sTAG)}, 3\ns_or_b32 {s(sT1)}, {s(sT1)}, {s(sT0)}\ns_waitcnt lgkmcnt(0)')
            P(f's_xor_b32 s8, s8, {s(sT1)}')
            for k in range(1, 4): P(f's_xor_b32 {s(8+k)}, {s(8+k)}, {s(sT1)}\ns_or_b32 s8, s8, {s(8+k)}')
            P(f's_cselect_b32 {s(sR)}, 0, 1')
        P('L_NOGL:')
    if cfg.par == 'dyn':
        P(f's_cmp_eq_u32 {s(sW)}, 7\ns_cbranch_scc0 L_NOPF')
        P(f's_lshl_b32 {s(sT0)}, {s(sX)}, 7\ns_add_u32 {s(sT0)}, {s(sT0)}, {hex(XP)}\ns_lshl_b32 {s(sT1)}, {s(sTAG)}, 1\ns_mov_b32 {s(sSPIN)}, 0')
        P(f'L_PFT:\ns_load_dword s8, {s(sWSP,2)}, {s(sT0)} glc\ns_add_u32 {s(sSPIN)}, {s(sSPIN)}, 1\ns_cmp_gt_u32 {s(sSPIN)}, {cfg.spin}\ns_cbranch_scc1 L_END\ns_waitcnt lgkmcnt(0)')
        P(f's_xor_b32 s9, s8, {s(sT1)}\ns_cmp_lt_u32 s9, 2\ns_cbranch_scc1 L_PFD\ns_sleep 8\ns_branch L_PFT\nL_PFD:')
        P(f's_or_b32 s9, s9, 2\nv_mov_b32 {v(vT)}, {hex(L_PAR)}\nv_mov_b32 {v(vT+1)}, s9\nds_write_b32 {v(vT)}, {v(vT+1)}')
        if cfg.pretouch:
            P(f's_lshr_b32 {s(sNEAR)}, {s(sX)}, 2\ns_xor_b32 {s(sNEAR)}, {s(sNEAR)}, s9\ns_and_b32 {s(sNEAR)}, {s(sNEAR)}, 1\ns_lshl_b32 {s(sNEAR)}, {s(sNEAR)}, 13\nv_lshlrev_b32 {v(vT)}, 7, {v(vL)}')
            if cfg.pretouch & 1:
                P(f's_cmp_eq_u32 {s(sJ)}, 0\ns_cbranch_scc0 L_PT1\ns_lshl_b32 {s(sT0)}, {s(sH)}, 14\ns_add_u32 {s(sT0)}, {s(sT0)}, {s(sNEAR)}\ns_add_u32 {s(sT0)}, {s(sT0)}, {hex(XA)}')
                P(f'buffer_load_dword {v(241)}, {v(vT)}, {S(SRD_WS)}, {s(sT0)} offen sc1\nL_PT1:')
            if cfg.pretouch & 4:
                P(f's_cmp_eq_u32 {s(sKK)}, 8\ns_cbranch_scc0 L_PT4')
                P(f's_lshr_b32 {s(sT1)}, {s(sX)}, 1\ns_lshl_b32 {s(sT1)}, {s(sT1)}, 14\ns_and_b32 {s(sT0)}, {s(sX)}, 1\ns_lshl_b32 {s(sT0)}, {s(sT0)}, 12\ns_add_u32 {s(sT1)}, {s(sT1)}, {s(sT0)}\ns_add_u32 {s(sT1)}, {s(sT1)}, {s(sNEAR)}\ns_add_u32 {s(sT1)}, {s(sT1)}, {hex(XC)}')
                setexec(0xffffffff)
                P(f'buffer_load_dword {v(242)}, {v(vT)}, {S(SRD_WS)}, {s(sT1)} offen sc1')
                setexec(ALL)
                P('L_PT4:')
            if cfg.pretouch & 2:
                assert cfg.evenmlp
                P(f's_and_b32 {s(sT0)}, {s(sKK)}, 3\ns_cmp_eq_u32 {s(sT0)}, 0\ns_cbranch_scc0 L_PT2\ns_sub_u32 {s(sT0)}, {s(sKK)}, 8\ns_cmp_lt_u32 {s(sT0)}, 8\ns_cbranch_scc1 L_PT2')
                P(f's_cmp_lt_u32 {s(sKK)}, 8\ns_cselect_b32 {s(sT1)}, {s(sKK)}, {s(sT0)}\ns_lshr_b32 {s(sT1)}, {s(sT1)}, 2')
                P(f's_mul_i32 {s(sT0)}, {s(sX)}, 11\ns_add_u32 {s(sT0)}, {s(sT0)}, 1\ns_lshr_b32 {s(sT0)}, {s(sT0)}, 1\ns_min_u32 {s(sT0)}, {s(sT0)}, 38\ns_add_u32 {s(sT0)}, {s(sT0)}, {s(sT1)}')
                P(f's_lshr_b32 {s(sT1)}, {s(sT0)}, 2\ns_lshl_b32 {s(sT1)}, {s(sT1)}, 14\ns_and_b32 {s(sT0)}, {s(sT0)}, 3\ns_lshl_b32 {s(sT0)}, {s(sT0)}, 11\ns_add_u32 {s(sT1)}, {s(sT1)}, {s(sT0)}\ns_add_u32 {s(sT1)}, {s(sT1)}, {s(sNEAR)}\ns_add_u32 {s(sT1)}, {s(sT1)}, {hex(XE)}')
                setexec(0xffff)
                P(f'buffer_load_dword {v(243)}, {v(vT)}, {S(SRD_WS)}, {s(sT1)} offen sc1')
                setexec(ALL)
                P('L_PT2:')
        P('L_NOPF:')
    P(f'v_mov_b32 {v(vT+2)}, {hex(L_ML)}')
    lds_wait('mlw', vT+2, 4, vML, [vML+2], cfg.lsleep)
    P('s_branch L_PCALC')
    P('L_C0ML:')
    P(f'v_and_b32 {v(vT+2)}, 3, {v(vL)}\nv_lshlrev_b32 {v(vT+2)}, 4, {v(vT+2)}\nv_add_u32 {v(vT+2)}, {hex(L_MS)}, {v(vT+2)}')
    P(f's_lshl_b32 {s(sO1)}, {s(sH)}, 7\ns_add_u32 {s(sO1)}, {s(sO1)}, {hex(X3)}\ns_lshl_b32 {s(sO0)}, {s(sJ)}, 4\ns_add_u32 {s(sO0)}, {s(sO0)}, {s(sO1)}')
    lds_wait('msw', vT+2, 4, 220, [222])
    P(f'v_max_f32_dpp {v(vML)}, {v(220)}, {v(220)} quad_perm:[1,0,3,2] row_mask:0xf bank_mask:0xf\nv_mov_b32 {v(vML+2)}, {s(sTAG)}\nv_mov_b32 {v(vML+3)}, {s(sTAG)}')
    P(f'v_max_f32_dpp {v(vML)}, {v(vML)}, {v(vML)} quad_perm:[2,3,0,1] row_mask:0xf bank_mask:0xf')
    P(f'v_sub_f32 {v(220)}, {v(220)}, {v(vML)}\nv_mul_f32 {v(220)}, {LOG2E}, {v(220)}\nv_exp_f32 {v(220)}, {v(220)}\nv_mov_b32 {v(vT)}, 0\nv_mul_f32 {v(vML+1)}, {v(220)}, {v(221)}')
    for mod in ('quad_perm:[1,0,3,2]', 'quad_perm:[2,3,0,1]'): P(f'v_add_f32_dpp {v(vML+1)}, {v(vML+1)}, {v(vML+1)} {mod} row_mask:0xf bank_mask:0xf')
    if cfg.mlat:
        P(f'v_readfirstlane_b32 s4, {v(vML)}\nv_readfirstlane_b32 s5, {v(vML+1)}')
        P(f's_add_u32 {s(sMASK)}, {s(sWSP)}, {s(sO1)}\ns_addc_u32 {s(sMASK+1)}, {s(sWSP+1)}, 0\ns_lshl_b32 {s(sT0)}, {s(sJ)}, 3\ns_mov_b32 {s(sSPIN)}, 0')
        P(f's_atomic_add_x2 s[4:5], {s(sMASK,2)}, {s(sT0)}')
        stamp('C0_x3pub')
        gl = [4 + 2*k for k in range(8)]
        P('s_waitcnt lgkmcnt(0)')
        P('L_MLW:')
        if cfg.sleep3: P(f's_sleep {cfg.sleep3}')
        P(f's_load_dwordx16 s[4:19], {s(sMASK,2)}, 0 glc')
        P(f's_add_u32 {s(sSPIN)}, {s(sSPIN)}, 1\ns_cmp_gt_u32 {s(sSPIN)}, {cfg.spin}\ns_cbranch_scc1 L_END')
        P('s_waitcnt lgkmcnt(0)')
        P(f's_min_u32 {s(sT0)}, s5, s7')
        for g in gl[2:]: P(f's_min_u32 {s(sT0)}, {s(sT0)}, {s(g+1)}')
        P(f's_cmp_eq_u32 {s(sT0)}, 0\ns_cbranch_scc1 L_MLW')
    else:
        publish(vML, vT, sO0, 1)
        stamp('C0_x3pub')
        P(f's_add_u32 {s(sMASK)}, {s(sWSP)}, {s(sO1)}\ns_addc_u32 {s(sMASK+1)}, {s(sWSP+1)}, 0\ns_mov_b32 {s(sSPIN)}, 0')
        gl = [4 + 4*k for k in range(8)]
        P('L_MLW:')
        if cfg.sleep3: P(f's_sleep {cfg.sleep3}')
        P(f's_load_dwordx16 s[4:19], {s(sMASK,2)}, 0 glc\ns_load_dwordx16 s[20:35], {s(sMASK,2)}, 64 glc')
        P(f's_add_u32 {s(sSPIN)}, {s(sSPIN)}, 1\ns_cmp_gt_u32 {s(sSPIN)}, {cfg.spin}\ns_cbranch_scc1 L_END')
        P('s_waitcnt lgkmcnt(0)')
        P(f's_xor_b32 {s(sT0)}, {s(gl[0]+2)}, {s(sTAG)}')
        for g in gl[1:]: P(f's_xor_b32 {s(sT1)}, {s(g+2)}, {s(sTAG)}\ns_or_b32 {s(sT0)}, {s(sT0)}, {s(sT1)}')
        P('s_cbranch_scc1 L_MLW')
    stamp('C0_ml')
    vG8 = 220
    P(f'v_mov_b32 {v(vML)}, {s(gl[0])}')
    for g in gl[1:]: P(f'v_max_f32 {v(vML)}, {s(g)}, {v(vML)}')
    for k, g in enumerate(gl): P(f'v_sub_f32 {v(vG8+k)}, {s(g)}, {v(vML)}')
    for k in range(8): P(f'v_mul_f32 {v(vG8+k)}, {LOG2E}, {v(vG8+k)}')
    for k in range(8): P(f'v_exp_f32 {v(vG8+k)}, {v(vG8+k)}')
    P(f'v_mul_f32 {v(vE)}, {s(gl[0]+1)}, {v(vG8)}')
    for k, g in enumerate(gl[1:]): P(f'v_fmac_f32 {v(vE)}, {s(g+1)}, {v(vG8+k+1)}')
    P(f'v_rcp_f32 {v(vE+1)}, {v(vE)}\nv_mov_b32 {v(vT+2)}, {hex(L_ML)}\nv_mov_b32 {v(vML+2)}, 1')
    P(f'v_fma_f32 {v(vE)}, -{v(vE)}, {v(vE+1)}, 1.0\nv_fma_f32 {v(vML+1)}, {v(vE)}, {v(vE+1)}, {v(vE+1)}')
    setexec(1)
    P(f'ds_write_b128 {v(vT+2)}, {v(vML,4)}')
    setexec(ALL)
    P('L_PCALC:')
    for e in range(2): P(f'v_sub_f32 {v(vE+e)}, {v(vS2+e)}, {v(vML)}')
    for e in range(2): P(f'v_mul_f32 {v(vE+e)}, {LOG2E}, {v(vE+e)}')
    for e in range(2): P(f'v_exp_f32 {v(vE+e)}, {v(vE+e)}')
    for e in range(2): P(f'v_mul_f32 {v(vE+e)}, {v(vE+e)}, {v(vML+1)}')
    for e in range(2): P(f'v_cvt_pk_bf16_f32 {v(vE+e)}, {v(vE+e)}, {v(vE+e)}')
    P(f'ds_write_b64 {v(27)}, {v(vE,2)}')
    srd(SRD_WS, sWSP, WS_BYTES)
    P(f's_cmp_eq_u32 {s(sW)}, 4\ns_cbranch_scc1 L_C0B1')
    P('s_waitcnt lgkmcnt(0)')
    P('s_barrier')
    P(f's_cmp_eq_u32 {s(sW)}, 5\ns_cbranch_scc1 L_C1B1')
    P('s_branch L_C23B1')
    P('L_C0B1:')
    srd(SRD_A, pWO, 4 << 20)
    P(f'v_bfe_u32 {v(vT)}, {v(vL)}, 3, 1\nv_lshlrev_b32 {v(vT)}, 16, {v(vT)}\nv_bfe_u32 {v(vT+1)}, {v(vL)}, 4, 1\nv_lshl_add_u32 {v(vT)}, {v(vT+1)}, 12, {v(vT)}\nv_lshrrev_b32 {v(vT+1)}, 5, {v(vL)}\nv_lshl_add_u32 {v(vT)}, {v(vT+1)}, 11, {v(vT)}')
    P(f'v_and_b32 {v(vT+1)}, 7, {v(vL)}\nv_lshl_add_u32 {v(vWA)}, {v(vT+1)}, 4, {v(vT)}')
    P(f's_lshl_b32 {s(sO0)}, {s(sH)}, 17\ns_lshl_b32 {s(sT0)}, {s(sJ)}, 7\ns_add_u32 {s(sO0)}, {s(sO0)}, {s(sT0)}')
    P('s_waitcnt lgkmcnt(0)')
    stamp('C0_p')
    P('s_barrier')
    vWO = 64
    par_read(15)
    def wo_issue(sreg):
        for i in range(16):
            P(f'buffer_load_dwordx4 {v(vWO+4*i,4)}, {v(vWA)}, {S(SRD_A)}, {s(sreg)} offen offset:{1024*(i & 1)} {cfg.wpol}')
            if (i & 1) == 1 and i < 15: P(f's_add_u32 {s(sreg)}, {s(sreg)}, 8192')
    if not cfg.wob2: wo_issue(sO0)
    else: P(f's_mov_b32 {s(sG)}, {s(sO0)}')
    P(f'v_lshrrev_b32 {v(vT+2)}, 1, {v(vL16)}\nv_add_u32 {v(vT+2)}, {hex(L_OP)}, {v(vT+2)}')
    par_use(15)
    P(f's_lshl_b32 {s(sO1)}, {s(sH)}, 14\ns_add_u32 {s(sO1)}, {s(sO1)}, {hex(XA)}')
    if cfg.nearloc: P(f's_add_u32 {s(sO1)}, {s(sO1)}, {s(sNEAR)}')
    P(f's_lshl_b32 {s(sO0)}, {s(sJ)}, 10\ns_add_u32 {s(sO0)}, {s(sO0)}, {s(sO1)}\ns_add_u32 {s(sO2)}, {s(sO1)}, 4096')
    P(f's_lshl_b32 {s(sO3)}, {s(sJ)}, 5\ns_add_u32 {s(sO3)}, {s(sO3)}, {s(sH)}\ns_lshl_b32 {s(sO3)}, {s(sO3)}, 9\ns_add_u32 {s(sO3)}, {s(sO3)}, {hex(XB)}')
    P(f'v_mov_b32 {v(22)}, {s(sTAG)}')
    vAP, vDNA, vCA, vEA, vXBA = 8, 10, 11, 12, 13
    P(f'v_mov_b32 {v(14)}, {hex(L_FLAG + 160)}')
    if cfg.gwait:
        P(f'v_and_b32 {v(16)}, 31, {v(vL)}\nv_lshlrev_b32 {v(16)}, 2, {v(16)}\ns_lshl_b32 {s(sG)}, {s(sX)}, 7\ns_add_u32 {s(sG)}, {s(sG)}, {hex(XG)}')
    if cfg.par is None: P(f'v_bfe_u32 {v(vT)}, {v(vL)}, 3, 1\nv_lshl_add_u32 {v(vXBA)}, {v(vT)}, 17, {v(vPUB)}')
    else:
        P(f'v_bfe_u32 {v(vT)}, {v(vL)}, 3, 1\nv_xor_b32 {v(vT)}, {s(sPAR)}, {v(vT)}\nv_lshl_add_u32 {v(vXBA)}, {v(vT)}, 13, {v(vPUB)}')
        P(f's_lshl_b32 {s(sO3)}, {s(sJ)}, 1\ns_lshr_b32 {s(sT0)}, {s(sH)}, 4\ns_add_u32 {s(sO3)}, {s(sO3)}, {s(sT0)}\ns_lshl_b32 {s(sO3)}, {s(sO3)}, 14\ns_and_b32 {s(sT0)}, {s(sH)}, 15\ns_lshl_b32 {s(sT0)}, {s(sT0)}, 9\ns_add_u32 {s(sO3)}, {s(sO3)}, {s(sT0)}\ns_add_u32 {s(sO3)}, {s(sO3)}, {hex(XB2)}')
    sQ, sW2, sDN, sEP, sEG, sDP, sC0 = 4, 6, 8, 9, 10, 11, 12
    vDPA = 17
    def mlp_setup():
        P(f's_sub_u32 {s(sT0)}, {s(sKK)}, 8\ns_cmp_lt_u32 {s(sKK)}, 8\ns_cselect_b32 {s(sT1)}, {s(sKK)}, {s(sT0)}\ns_and_b32 {s(sQ)}, {s(sT1)}, 3\ns_lshr_b32 {s(sT1)}, {s(sT1)}, 2')
        if cfg.evenmlp:
            P(f's_mul_i32 {s(sIM)}, {s(sX)}, 11\ns_add_u32 {s(sIM)}, {s(sIM)}, 1\ns_lshr_b32 {s(sIM)}, {s(sIM)}, 1\ns_min_u32 {s(sIM)}, {s(sIM)}, 38\ns_add_u32 {s(sIM)}, {s(sIM)}, {s(sT1)}')
            P(f's_cmp_lt_u32 {s(sT0)}, 8\ns_cselect_b32 {s(sIM)}, 255, {s(sIM)}\ns_mov_b32 {s(sT0)}, 0x15\ns_bitcmp1_b32 {s(sT0)}, {s(sX)}\ns_cselect_b32 {s(sT0)}, 6, 5\ns_cmp_lt_u32 {s(sT1)}, {s(sT0)}\ns_cselect_b32 {s(sIM)}, {s(sIM)}, 255')
        else:
            P(f's_mul_i32 {s(sIM)}, {s(sX)}, 6\ns_add_u32 {s(sIM)}, {s(sIM)}, {s(sT1)}\ns_cmp_lt_u32 {s(sT0)}, 8\ns_cselect_b32 {s(sIM)}, 255, {s(sIM)}')
        srd(SRD_B, pW2, 1376*1024)
        P(f'v_lshrrev_b32 {v(vT)}, 3, {v(vL)}\nv_mul_u32_u24 {v(vT)}, {16*2752}, {v(vT)}\nv_and_b32 {v(vT+1)}, 3, {v(vL)}\nv_lshl_add_u32 {v(vT)}, {v(vT+1)}, 4, {v(vT)}')
        P(f's_mul_i32 {s(sT0)}, {s(sQ)}, {128*2752}\ns_min_u32 {s(sT1)}, {s(sIM)}, {NM-1}\ns_lshl_b32 {s(sT1)}, {s(sT1)}, 6\ns_add_u32 {s(sT0)}, {s(sT0)}, {s(sT1)}\nv_add_u32 {v(vT)}, {s(sT0)}, {v(vT)}')
        P(f's_mov_b32 {s(sMASK)}, 0xf0f0f0f0\ns_mov_b32 {s(sMASK+1)}, 0xf0f0f0f0\ns_mov_b32 {s(sW2)}, 2752*2\ns_mov_b32 {s(sW2+1)}, 0')
        P(f'v_mov_b32 {v(vAP)}, {s(pW1)}\nv_mov_b32 {v(vAP+1)}, {s(pW1+1)}\nv_mov_b32 {v(vT+1)}, {s(pW3)}\nv_mov_b32 {v(vCA)}, {s(pW3+1)}')
        P(f'v_cndmask_b32 {v(vAP)}, {v(vAP)}, {v(vT+1)}, {s(sMASK,2)}\nv_cndmask_b32 {v(vAP+1)}, {v(vAP+1)}, {v(vCA)}, {s(sMASK,2)}')
        P(f'v_add_co_u32 {v(vAP)}, vcc, {v(vAP)}, {v(vT)}\nv_addc_co_u32 {v(vAP+1)}, vcc, 0, {v(vAP+1)}, vcc')
        P(f'v_bfe_u32 {v(vT)}, {v(vL)}, 4, 1\nv_lshlrev_b32 {v(vDNA)}, 12, {v(vT)}\nv_lshrrev_b32 {v(vT)}, 5, {v(vL)}\nv_lshl_add_u32 {v(vDNA)}, {v(vT)}, 11, {v(vDNA)}\nv_and_b32 {v(vT)}, 15, {v(vL)}\nv_lshl_add_u32 {v(vDNA)}, {v(vT)}, 4, {v(vDNA)}')
        P(f's_lshl_b32 {s(sDN)}, {s(sIM)}, 15\ns_lshl_b32 {s(sT0)}, {s(sQ)}, 8\ns_add_u32 {s(sDN)}, {s(sDN)}, {s(sT0)}')
        P(f's_lshr_b32 {s(sEG)}, {s(sIM)}, 2\ns_lshl_b32 {s(sEG)}, {s(sEG)}, 14\ns_and_b32 {s(sT0)}, {s(sIM)}, 3\ns_lshl_b32 {s(sT0)}, {s(sT0)}, 11\ns_add_u32 {s(sEG)}, {s(sEG)}, {s(sT0)}\ns_add_u32 {s(sEG)}, {s(sEG)}, {hex(XE)}')
        if cfg.nearloc: P(f's_add_u32 {s(sEG)}, {s(sEG)}, {s(sNEAR)}')
        P(f's_lshl_b32 {s(sT0)}, {s(sQ)}, 9\ns_add_u32 {s(sEP)}, {s(sEG)}, {s(sT0)}')
        if cfg.par is None: P(f's_lshl_b32 {s(sDP)}, {s(sIM)}, 12\ns_lshl_b32 {s(sT0)}, {s(sQ)}, 10\ns_add_u32 {s(sDP)}, {s(sDP)}, {s(sT0)}\ns_add_u32 {s(sDP)}, {s(sDP)}, {hex(XD)}')
        else:
            P(f's_lshr_b32 {s(sDP)}, {s(sIM)}, 2\ns_lshl_b32 {s(sDP)}, {s(sDP)}, 14\ns_and_b32 {s(sT0)}, {s(sIM)}, 3\ns_lshl_b32 {s(sT0)}, {s(sT0)}, 11\ns_add_u32 {s(sDP)}, {s(sDP)}, {s(sT0)}\ns_lshl_b32 {s(sT0)}, {s(sQ)}, 9\ns_add_u32 {s(sDP)}, {s(sDP)}, {s(sT0)}\ns_add_u32 {s(sDP)}, {s(sDP)}, {hex(XD)}')
            P(f'v_and_b32 {v(vDPA)}, 31, {v(vL)}\nv_lshlrev_b32 {v(vDPA)}, 4, {v(vDPA)}\nv_lshrrev_b32 {v(vT)}, 5, {v(vL)}\nv_xor_b32 {v(vT)}, {s(sPAR)}, {v(vT)}\nv_lshl_add_u32 {v(vDPA)}, {v(vT)}, 13, {v(vDPA)}')
        P(f's_lshr_b32 {s(sT1)}, {s(sX)}, 1\ns_lshl_b32 {s(sT1)}, {s(sT1)}, 14\ns_and_b32 {s(sT0)}, {s(sX)}, 1\ns_lshl_b32 {s(sT0)}, {s(sT0)}, 12\ns_add_u32 {s(sT1)}, {s(sT1)}, {s(sT0)}\ns_add_u32 {s(sT1)}, {s(sT1)}, {hex(XC)}')
        if cfg.nearloc: P(f's_add_u32 {s(sT1)}, {s(sT1)}, {s(sNEAR)}')
        for k in range(4): P(f's_add_u32 {s(sT0)}, {s(sQ)}, {k}\ns_and_b32 {s(sT0)}, {s(sT0)}, 3\ns_lshl_b32 {s(sT0)}, {s(sT0)}, 10\ns_add_u32 {s(sC0+k)}, {s(sT0)}, {s(sT1)}')
        P(f'v_lshrrev_b32 {v(vT)}, 5, {v(vL)}\nv_lshlrev_b32 {v(vCA)}, 9, {v(vT)}\nv_bfe_u32 {v(vT)}, {v(vL)}, 1, 1\nv_lshl_add_u32 {v(vCA)}, {v(vT)}, 7, {v(vCA)}\nv_and_b32 {v(vT)}, 1, {v(vL)}\nv_lshl_add_u32 {v(vCA)}, {v(vT)}, 8, {v(vCA)}')
        P(f'v_bfe_u32 {v(vT)}, {v(vL)}, 2, 3\nv_lshl_add_u32 {v(vCA)}, {v(vT)}, 4, {v(vCA)}')
        P(f'v_bfe_u32 {v(vT)}, {v(vL)}, 3, 1\nv_lshlrev_b32 {v(vT)}, 9, {v(vT)}\nv_add_u32 {v(vEA)}, {v(vPUB)}, {v(vT)}')
    if not cfg.mlpw: mlp_setup()
    else: P(f'v_mov_b32 {v(16)}, {hex(L_FLAG + 168)}')
    if cfg.pgal: P('s_branch L_TAIL0\n.p2align 12\nL_TAIL0:')
    P('s_barrier')
    stamp('C0_b2')
    for w in range(4): P(f'ds_read_b64 {v(24+2*w,2)}, {v(vT+2)} offset:{512*w}')
    P('s_waitcnt lgkmcnt(2)')
    add2(24, 24, 26)
    P('s_waitcnt lgkmcnt(0)')
    add2(28, 28, 30)
    add2(20, 24, 28)
    publish_loc(20, vL16, sO0)
    stamp('C0_xapub')
    if cfg.wob2 == 1: wo_issue(sG)
    if cfg.wofirst: P(f's_waitcnt vmcnt({cfg.wofirst - 1})')
    vOd = 40
    def issue(b):
        for k in range(0, 8, 2 if cfg.fakehalf & 2 else 1):
            P(f'buffer_load_dwordx4 {v(b+4*k,4)}, {v(vL16)}, {S(SRD_WS)}, {s(sO1 if k < 4 else sO2)} offen offset:{1024*(k & 3)} sc1')
    def done(b):
        for a, b2 in ((0, 1), (2, 3), (4, 5), (6, 7), (0, 2), (4, 6), (0, 4)): add2(b+4*a, b+4*a, b+4*b2)
        P(f'v_cvt_pk_bf16_f32 {v(vOd)}, {v(b)}, {v(b)}\nv_cvt_pk_bf16_f32 {v(vOd+1)}, {v(b+1)}, {v(b+1)}')
    poll('xa', issue, 8, 128, 32, [4*k+2 for k in range(0, 8, 2 if cfg.fakehalf & 2 else 1)], done)
    if cfg.mlpw: P(f'ds_write_b32 {v(16)}, {v(16)}')
    stamp('C0_xa')
    vGW, vGA2 = 15, 16
    def g_issue(): P(f'buffer_load_dword {v(vGW)}, {v(vGA2)}, {S(SRD_WS)}, {s(sG)} offen sc1')
    if cfg.gwait: g_issue()
    lohi(vOd)
    chain(vD0, 16, [vWO+4*i for i in range(16)], lohi_srcs(vOd), vAA)
    finish2(vD0)
    if cfg.par is not None:
        for e in range(2): P(f'v_mov_b32_dpp {v(vD0+e)}, {v(vD0+e)} row_ror:8 row_mask:0xf bank_mask:0xc')
        publish(vD0, vXBA, sO3)
    elif cfg.xbrep:
        for e in range(2): P(f'v_mov_b32_dpp {v(vD0+e)}, {v(vD0+e)} row_ror:8 row_mask:0xf bank_mask:0xc')
        for i in range(4):
            P(f'buffer_store_dwordx4 {v(vD0,4)}, {v(vXBA)}, {S(SRD_WS)}, {s(sO3)} offen sc1')
            if i < 3: P(f's_add_u32 {s(sO3)}, {s(sO3)}, 0x40000')
    else: publish(vD0, vPUB, sO3, M2SET)
    if cfg.rwait and cfg.rwait < 4: P(f'ds_write_b32 {v(14)}, {v(14)}')
    stamp('C0_xbpub')
    def mlp_body():
        vUP, vDN, vCG, vEG = 128, 192, 64, 80
        if cfg.gwait:
            P(f's_mov_b32 {s(sSPIN)}, 0\ns_waitcnt vmcnt({4 if cfg.xbrep else 1})\ns_branch L_GCHK\nL_GTOP:')
            g_issue()
            P(f's_add_u32 {s(sSPIN)}, {s(sSPIN)}, 1\ns_cmp_gt_u32 {s(sSPIN)}, {cfg.spin}\ns_cbranch_scc1 L_END\ns_waitcnt vmcnt(0)\nL_GCHK:')
            P(f'v_cmp_eq_u32 vcc, {s(sTAG)}, {v(vGW)}\ns_bcnt1_i32_b64 {s(sT0)}, vcc\ns_cmp_lt_u32 {s(sT0)}, {2*cfg.gthr}\ns_cbranch_scc1 L_GTOP')
        for i in range(16):
            if not (cfg.fakehalf & 4 and i % 4 == 3): P(f'global_load_dwordx4 {v(vUP+4*i,4)}, {v(vAP,2)}, off offset:{2752*(i & 1)} {cfg.uppol}')
            if i & 1 and i < 15: P(f'v_lshl_add_u64 {v(vAP,2)}, {v(vAP,2)}, 0, {s(sW2,2)}')
        def dn_issue():
            for i in range(8):
                P(f'buffer_load_dwordx4 {v(vDN+4*i,4)}, {v(vDNA)}, {S(SRD_B)}, {s(sDN)} offen offset:{1024*(i & 1)} {cfg.wpol}')
                if i & 1 and i < 7: P(f's_add_u32 {s(sDN)}, {s(sDN)}, 8192')
        if cfg.mlpw:
            P(f'v_mov_b32 {v(vT+2)}, {hex(L_FLAG + 160)}')
            lds_wait('fb', vT+2, 1, 28, [28])
        if not cfg.dnlate: dn_issue()
        if cfg.wfirst: P('s_waitcnt vmcnt(0)')
        if cfg.diag and 'M_w' in cfg.diag:
            P('s_waitcnt vmcnt(0)'); stamp('M_w')
        vx, vcb, vsb = 88, 24, 26
        def issue(b):
            for k in range(4): P(f'buffer_load_dwordx4 {v(b+4*k,4)}, {v(vCA)}, {S(SRD_WS)}, {s(sC0+k)} offen sc1')
        def done(b):
            for k in range(4): unpack(vx+2*k, vx+2*k+1, b+4*k)
            if not cfg.lnopt: unpack(vcb, vcb+1, b+1); unpack(vsb, vsb+1, b+2)
        if cfg.dnlate == 3:
            issue(64); dn_issue()
            P('s_waitcnt vmcnt(8)')
            tr = [64+4*k+3 for k in range(4)]
            P(f'v_xor_b32 {v(vT)}, {s(sTAG)}, {v(tr[0])}\nv_xor_b32 {v(vT+1)}, {s(sTAG)}, {v(tr[1])}')
            for k, r in enumerate(tr[2:]): P(f'v_bitop3_b32 {v(vT + k)}, {v(r)}, {s(sTAG)}, {v(vT + k)} bitop3:{TAGX}')
            P(f'v_or_b32 {v(vT)}, {v(vT)}, {v(vT+1)}\nv_cmp_ne_u32 vcc, 0, {v(vT)}\ns_cbranch_vccz L_XCOK')
            poll('xc', issue, 4, 64, 16, tr and [4*k+3 for k in range(4)], lambda b: None)
            P('L_XCOK:')
            done(64)
        else:
            poll('xc', issue, 4, 64 if cfg.pipe.get('xc', 1) == 1 else 104, 16 if cfg.pipe.get('xc', 1) != 2 else -40, [4*k+3 for k in range(4)], done)
        stamp('M_xc')
        if cfg.dnlate == 1: dn_issue()
        P(f'v_readfirstlane_b32 {s(sT0)}, {v(vx)}')
        for k in range(8): P(f'v_subrev_f32 {v(96+k)}, {s(sT0)}, {v(vx+k)}')
        P(f'v_pk_add_f32 {v(20,2)}, {v(96,2)}, {v(98,2)}\nv_pk_add_f32 {v(22,2)}, {v(100,2)}, {v(102,2)}\nv_pk_mul_f32 {v(28,2)}, {v(96,2)}, {v(96,2)}\nv_pk_mul_f32 {v(30,2)}, {v(100,2)}, {v(100,2)}')
        P(f'v_pk_add_f32 {v(20,2)}, {v(20,2)}, {v(22,2)}\nv_pk_fma_f32 {v(28,2)}, {v(98,2)}, {v(98,2)}, {v(28,2)}\nv_pk_fma_f32 {v(30,2)}, {v(102,2)}, {v(102,2)}, {v(30,2)}')
        P(f'v_add_f32 {v(22)}, {v(20)}, {v(21)}\nv_pk_add_f32 {v(28,2)}, {v(28,2)}, {v(30,2)}\nv_add_f32 {v(23)}, {v(28)}, {v(29)}')
        fill = [f'v_lshlrev_b32 {v(vcb)}, 16, {v(65)}', f'v_and_b32 {v(vcb+1)}, 0xffff0000, {v(65)}', f'v_lshlrev_b32 {v(vsb)}, 16, {v(66)}', f'v_and_b32 {v(vsb+1)}, 0xffff0000, {v(66)}']
        for q_, mod in enumerate(('quad_perm:[1,0,3,2]', 'quad_perm:[2,3,0,1]', 'row_ror:4', 'row_ror:8')):
            P(f'v_add_f32_dpp {v(22)}, {v(22)}, {v(22)} {mod} row_mask:0xf bank_mask:0xf')
            if cfg.lnopt: assert cfg.pipe.get('xc', 1) == 1; P(fill[q_])
            P(f'v_add_f32_dpp {v(23)}, {v(23)}, {v(23)} {mod} row_mask:0xf bank_mask:0xf')
        P(f'v_permlane16_swap_b32 {v(22)}, {v(23)}\nv_add_f32 {v(22)}, {v(22)}, {v(23)}\nv_mov_b32 {v(23)}, {v(22)}')
        P(f'v_permlane32_swap_b32 {v(22)}, {v(23)}\nv_add_f32 {v(22)}, {v(22)}, {v(23)}\nv_mul_f32 {v(22)}, {R512}, {v(22)}')
        if cfg.lnopt: P(f'v_mov_b32 {v(23)}, {v(22)}\nv_permlane16_swap_b32 {v(22)}, {v(23)}')
        else:
            P(f'v_readlane_b32 {s(sT1)}, {v(22)}, 0\nv_readlane_b32 {s(sT2)}, {v(22)}, 16')
            P(f'v_mov_b32 {v(22)}, {s(sT1)}\nv_mov_b32 {v(23)}, {s(sT2)}')
        P(f'v_fma_f32 {v(23)}, -{v(22)}, {v(22)}, {v(23)}\nv_add_f32 {v(22)}, {s(sT0)}, {v(22)}\nv_max_f32 {v(23)}, 0, {v(23)}')
        P(f'v_cvt_pk_bf16_f32 {v(22)}, {v(22)}, {v(23)}')
        P(f'v_and_b32 {v(23)}, 0xffff0000, {v(22)}\nv_lshlrev_b32 {v(22)}, 16, {v(22)}\nv_add_f32 {v(23)}, {EPS}, {v(23)}')
        P(f'v_sub_f32 {v(20)}, {v(vx)}, {v(22)}\nv_sub_f32 {v(21)}, {v(vx+1)}, {v(22)}')
        P(f'v_cvt_pk_bf16_f32 {v(23)}, {v(23)}, {v(23)}\nv_cvt_pk_bf16_f32 {v(20)}, {v(20)}, {v(21)}\nv_and_b32 {v(23)}, 0xffff0000, {v(23)}\nv_sqrt_f32 {v(23)}, {v(23)}')
        unpack(vx, vx+1, 20)
        P(f'v_cvt_pk_bf16_f32 {v(23)}, {v(23)}, {v(23)}\nv_and_b32 {v(23)}, 0xffff0000, {v(23)}\nv_rcp_f32 {v(22)}, {v(23)}')
        P(f'v_mul_f32 {v(20)}, {v(vx)}, {v(22)}\nv_mul_f32 {v(21)}, {v(vx+1)}, {v(22)}')
        P(f'v_fma_f32 {v(vx)}, -{v(20)}, {v(23)}, {v(vx)}\nv_fma_f32 {v(vx+1)}, -{v(21)}, {v(23)}, {v(vx+1)}')
        P(f'v_fma_f32 {v(20)}, {v(vx)}, {v(22)}, {v(20)}\nv_fma_f32 {v(21)}, {v(vx+1)}, {v(22)}, {v(21)}')
        P(f'v_cvt_pk_bf16_f32 {v(20)}, {v(20)}, {v(21)}')
        unpack(vx, vx+1, 20)
        P(f'v_mul_f32 {v(vx)}, {v(vx)}, {v(vcb)}\nv_mul_f32 {v(vx+1)}, {v(vx+1)}, {v(vcb+1)}\nv_cvt_pk_bf16_f32 {v(20)}, {v(vx)}, {v(vx+1)}')
        unpack(vx, vx+1, 20)
        P(f'v_add_f32 {v(vx)}, {v(vx)}, {v(vsb)}\nv_add_f32 {v(vx+1)}, {v(vx+1)}, {v(vsb+1)}')
        P(f'v_cvt_pk_bf16_f32 {v(vOd)}, {v(vx)}, {v(vx)}\nv_cvt_pk_bf16_f32 {v(vOd+1)}, {v(vx+1)}, {v(vx+1)}')
        lohi(vOd)
        stamp('M_h2')
        if cfg.dnlate == 2: dn_issue()
        chain(vD0, 16, [vUP+4*i for i in range(16)], lohi_srcs(vOd), vAA)
        finish2(vD0)
        publish_loc(vD0, vPUB, sEP, M2SET, sR)
        stamp('M_up')
        def issue(b):
            for k in range(2): P(f'buffer_load_dwordx4 {v(b+4*k,4)}, {v(vEA)}, {S(SRD_WS)}, {s(sEG)} offen offset:{1024*k} sc1')
        def done(b):
            add2(20, b, b+4)
        poll('xe', issue, 2, 128, 8, [2, 6], done)
        stamp('M_xe')
        for e in range(2): P(f'v_add_f32_dpp {v(20+e)}, {v(20+e)}, {v(20+e)} row_ror:8 row_mask:0xf bank_mask:0xf')
        P(f'v_cvt_pk_bf16_f32 {v(22)}, {v(20)}, {v(21)}')
        unpack(20, 21, 22)
        P(f'v_mov_b32_dpp {v(24)}, {v(22)} row_shl:4 row_mask:0xf bank_mask:0xf')
        silu_multi([20, 21], [22, 23])
        unpack(26, 27, 24)
        P(f'v_cvt_pk_bf16_f32 {v(22)}, {v(20)}, {v(21)}')
        unpack(20, 21, 22)
        P(f'v_mul_f32 {v(20)}, {v(20)}, {v(26)}\nv_mul_f32 {v(21)}, {v(21)}, {v(27)}')
        for e in range(2): P(f'v_cvt_pk_bf16_f32 {v(20+e)}, {v(20+e)}, {v(20+e)}')
        stamp('M_act')
        chain(vD0, 8, [vDN+4*i for i in range(8)], [(20 + (i & 1), f'row_newbcast:{i >> 1}') for i in range(8)], vAA)
        finish1(vD0)
        publish(vD0, vL16 if cfg.par is None else vDPA, sDP)
        stamp('M_end')
        P('s_branch L_END')
    if cfg.mlpw:
        assert cfg.rwait == 1
        P('s_branch L_END')
    else:
        if cfg.rwait == 4:
            P(f's_cmp_lt_u32 {s(sIM)}, {NM}\ns_cbranch_scc1 L_MLP')
            if cfg.ackw: P('s_waitcnt vmcnt(0)')
            P(f'ds_write_b32 {v(14)}, {v(14)}')
            P('s_branch L_END\nL_MLP:')
        else: P(f's_cmp_lt_u32 {s(sIM)}, {NM}\ns_cbranch_scc0 L_END')
        mlp_body()

    P('L_C123:')
    common_setup()
    P(f's_cmp_eq_u32 {s(sW)}, 5\ns_cbranch_scc1 L_C1')
    if not (cfg.cpf0 and cfg.split0): code_prefetch(6, True)
    P('L_C3:')
    if cfg.par == 'dyn':
        P(f's_cmp_eq_u32 {s(sW)}, 7\ns_cbranch_scc0 L_NOPM\ns_cmp_eq_u32 {s(sB)}, 0\ns_cbranch_scc0 L_NOPM')
        P(f's_waitcnt lgkmcnt(0)\ns_mov_b32 s8, -1\ns_mov_b32 s9, -1')
        for i in range(2*cfg.nsamp):
            P(f's_mov_b32 s15, {hex(XPR + 8192*(i & 1) + 128*(i >> 1))}\ns_memtime s[10:11]\ns_waitcnt lgkmcnt(0)\ns_load_dword s14, {s(sWSP,2)}, s15 glc\ns_waitcnt lgkmcnt(0)\ns_memtime s[12:13]\ns_waitcnt lgkmcnt(0)')
            P(f's_sub_u32 s12, s12, s10\ns_min_u32 {s(8 + (i & 1))}, {s(8 + (i & 1))}, s12')
        P(f's_cmp_lt_u32 s9, s8\ns_cselect_b32 s8, 1, 0\ns_getreg_b32 s9, hwreg(HW_REG_XCC_ID, 2, 1)\ns_xor_b32 s8, s8, s9')
        P(f's_add_u32 s9, {s(sTAG)}, 1\ns_lshl_b32 s9, s9, 1\ns_or_b32 s8, s8, s9\nv_mov_b32 {v(vT+1)}, s8\nv_lshlrev_b32 {v(vT)}, 7, {v(vL)}\ns_mov_b32 s8, {hex(XP)}')
        setexec(0xff)
        P(f'buffer_store_dword {v(vT+1)}, {v(vT)}, {S(SRD_WS)}, s8 offen sc1')
        setexec(ALL)
        P('L_NOPM:')
    if cfg.tlbw:
        P(f's_cmp_eq_u32 {s(sW)}, 7\ns_cbranch_scc0 L_NOTLB')
        P(f'v_mov_b32 {v(vT)}, 0')
        setexec(1)
        for k, (ptr, nb) in enumerate(((pWO, 4 << 20), (pW1, 512*2752), (pW3, 512*2752), (pW2, 1376*1024), (pOUT, 1024))):
            srd(SRD_A, ptr, nb)
            P(f'buffer_load_dword {v(241+k)}, {v(vT)}, {S(SRD_A)}, 0 offen')
            if nb > (2 << 20):
                P(f's_mov_b32 {s(sT0)}, {hex(nb - 128)}\nbuffer_load_dword {v(247)}, {v(vT)}, {S(SRD_A)}, {s(sT0)} offen')
        for k, off in enumerate((XA, XE, XB, XB + 0xf0000)):
            P(f's_mov_b32 {s(sT0)}, {hex(off)}\nbuffer_load_dword {v(248+k)}, {v(vT)}, {S(SRD_WS)}, {s(sT0)} offen sc1')
        setexec(ALL)
        P('L_NOTLB:')
    P('s_waitcnt lgkmcnt(0)')
    P(f's_add_u32 {s(sTAG)}, {s(sTAG)}, 1')
    P('s_branch L_QKP')
    P('L_C23B1:')
    if cfg.mlpw:
        P(f's_cmp_eq_u32 {s(sW)}, 6\ns_cbranch_scc0 L_C3B2')
        par_read(15); par_use(15)
        mlp_setup()
        P('s_barrier')
        P(f's_cmp_lt_u32 {s(sIM)}, {NM}\ns_cbranch_scc0 L_END')
        P(f'v_mov_b32 {v(vT+2)}, {hex(L_FLAG + 168)}')
        lds_wait('fa', vT+2, 1, 28, [28])
        mlp_body()
        P('L_C3B2:')
    if cfg.gwait:
        P(f'v_lshlrev_b32 {v(vT)}, 7, {v(vL)}\nv_mov_b32 {v(vT+1)}, {s(sTAG)}\ns_lshl_b32 {s(sT0)}, {s(sH)}, 2\ns_add_u32 {s(sT0)}, {s(sT0)}, {hex(XG)}')
    P('s_barrier')
    if cfg.gwait:
        P(f's_cmp_eq_u32 {s(sW)}, 6\ns_cbranch_scc0 L_END\ns_cmp_eq_u32 {s(sJ)}, 0\ns_cbranch_scc0 L_END')
        setexec(0xff)
        P(f'buffer_store_dword {v(vT+1)}, {v(vT)}, {S(SRD_WS)}, {s(sT0)} offen sc1')
    P('s_branch L_END')

    P('L_C1:')
    P('s_waitcnt lgkmcnt(0)')
    P(f's_add_u32 {s(sTAG)}, {s(sTAG)}, 1')
    if cfg.tearly == 3: P(f's_mov_b32 {s(sR)}, 0\ns_bitcmp1_b32 {s(sX)}, 0\ns_cbranch_scc1 L_QKP')
    elif cfg.tearly: P(f's_mov_b32 {s(sR)}, 0\ns_cmp_ge_u32 {s(sX)}, 4\ns_cbranch_scc1 L_QKP')
    else: P(f's_mov_b32 {s(sR)}, 0\ns_sub_u32 {s(sT0)}, {s(sKK)}, 8\ns_cmp_lt_u32 {s(sT0)}, 16\ns_cbranch_scc1 L_QKP')
    if not cfg.t2early:
        P(f'v_mov_b32 {v(vT+2)}, {hex(L_FLAG + 8)}')
        lds_wait('k1', vT+2, 1, 28, [28], 8)
    elif cfg.t2early > 1: P(f's_sleep {cfg.t2early}')
    if cfg.tearly == 3:
        P(f's_lshl_b32 {s(sT0)}, {s(sKK)}, 2\ns_lshr_b32 {s(sT1)}, {s(sX)}, 1\ns_add_u32 {s(sT0)}, {s(sT0)}, {s(sT1)}\ns_and_b32 {s(sT1)}, {s(sT0)}, 31\ns_lshr_b32 {s(sT0)}, {s(sT0)}, 5')
    elif cfg.tearly:
        P(f's_lshl_b32 {s(sT0)}, {s(sKK)}, 2\ns_add_u32 {s(sT0)}, {s(sT0)}, {s(sX)}\ns_and_b32 {s(sT1)}, {s(sT0)}, 31\ns_lshr_b32 {s(sT0)}, {s(sT0)}, 5')
    else:
        P(f's_and_b32 {s(sT0)}, {s(sKK)}, 7\ns_lshr_b32 {s(sT1)}, {s(sKK)}, 4\ns_lshl_b32 {s(sT1)}, {s(sT1)}, 3\ns_add_u32 {s(sT0)}, {s(sT0)}, {s(sT1)}')
        P(f's_lshl_b32 {s(sT0)}, {s(sT0)}, 3\ns_add_u32 {s(sT0)}, {s(sT0)}, {s(sX)}\ns_and_b32 {s(sT1)}, {s(sT0)}, 31\ns_lshr_b32 {s(sT0)}, {s(sT0)}, 5')
    if X4NEAR:
        P(f's_and_b32 {s(sO2)}, {s(sT1)}, 3\ns_lshl_b32 {s(sO2)}, {s(sO2)}, 2\ns_add_u32 {s(sO2)}, {s(sO2)}, {s(sT0)}\ns_lshl_b32 {s(sO2)}, {s(sO2)}, 9\ns_lshr_b32 {s(sT2)}, {s(sT1)}, 2\ns_lshl_b32 {s(sT2)}, {s(sT2)}, 14\ns_add_u32 {s(sO2)}, {s(sO2)}, {s(sT2)}\ns_add_u32 {s(sO2)}, {s(sO2)}, {hex(X4N)}')
    else:
        P(f's_lshl_b32 {s(sO2)}, {s(sT1)}, 2\ns_add_u32 {s(sO2)}, {s(sO2)}, {s(sT0)}\ns_lshl_b32 {s(sO2)}, {s(sO2)}, 9\ns_add_u32 {s(sO2)}, {s(sO2)}, {hex(X4)}')
    P(f's_lshl_b32 {s(sT1)}, {s(sT1)}, 7\ns_add_u32 {s(sT1)}, {s(sT1)}, 2048')
    modtile_issue(sT0, sT1)
    if cfg.t2early:
        modtile_compute(0, sO2)
        P('s_branch L_QKP')
    else: P(f's_mov_b32 {s(sR)}, 99\ns_branch L_QKP')
    P('L_C1B1:')
    P(f's_sub_u32 {s(sT0)}, {s(sKK)}, 8\ns_cmp_lt_u32 {s(sT0)}, 8\ns_cbranch_scc1 L_RED')
    P('s_barrier')
    P('s_branch L_END')
    P('L_RED:')
    if cfg.rwait != 4 and not cfg.rearly: red_setup()
    else:
        srd(SRD_B, pOUT, 1024)
        P(f'v_lshlrev_b32 {v(vL16r)}, 4, {v(vL)}\nv_and_b32 {v(vU16)}, 3, {v(vL)}\nv_lshlrev_b32 {v(vU16)}, 4, {v(vU16)}')
        vda()
    red_addr()
    def xb_issue(b):
        for k in range(0, 16, 2 if cfg.fakehalf & 1 else 1): P(f'buffer_load_dwordx4 {v(b+4*k,4)}, {v(vL16r)}, {S(SRD_WS)}, {s(sB4 + (k >> 2))} offen offset:{1024*(k & 3)} sc1')
    issue = x4_issue
    def rw(name):
        P(f'v_mov_b32 {v(vT+2)}, {hex(L_FLAG + 160)}')
        lds_wait(name, vT+2, 1, 28, [28], cfg.lsleep)
    if cfg.rwait >= 3:
        if cfg.rwait == 3: issue()
        P('s_barrier')
        stamp('R_b2')
        P(f's_mov_b32 {s(sT2)}, 0\ns_branch L_X4CHK\nL_X4RETRY:')
        rw('rw0')
        issue()
        P(f's_add_u32 {s(sT2)}, {s(sT2)}, 1\ns_cmp_gt_u32 {s(sT2)}, {cfg.spin}\ns_cbranch_scc1 L_END\nL_X4CHK:')
        P('s_waitcnt vmcnt(0)')
        tr = [vg+4*k+2 for k in range(8)]
        P(f'v_xor_b32 {v(vT)}, {s(sTAG)}, {v(tr[0])}\nv_xor_b32 {v(vT+1)}, {s(sTAG)}, {v(tr[1])}')
        for k, r in enumerate(tr[2:]): P(f'v_bitop3_b32 {v(vT + (k & 1))}, {v(r)}, {s(sTAG)}, {v(vT + (k & 1))} bitop3:{TAGX}')
        P(f'v_or_b32 {v(vT)}, {v(vT)}, {v(vT+1)}\nv_cmp_ne_u32 vcc, 0, {v(vT)}\ns_cbranch_vccnz L_X4RETRY')
    else:
        P('s_barrier')
        stamp('R_b2')
        if cfg.rwait: rw('rw')
        tagcheck_loop(issue, [vg+4*k+2 for k in range(8)], 'x4', after=(lambda: xb_issue(128)) if cfg.rwait == 2 else None, nafter=16)
    for p_ in range(4):
        for e in range(2): P(f'v_add_f32 {v(vg+8*p_+e)}, {v(vg+8*p_+e)}, {v(vg+8*p_+4+e)}')
    for p_ in range(4): P(f'v_permlane32_swap_b32 {v(vg+8*p_)}, {v(vg+8*p_+1)}')
    for p_ in range(4): P(f'v_add_f32 {v(vg+8*p_)}, {v(vg+8*p_)}, {v(vg+8*p_+1)}')
    for p_ in range(4): rnd(vg+8*p_)
    P(f'v_mov_b32 {v(vGAv)}, {v(vg)}\nv_add_f32 {v(vg+16)}, 1.0, {v(vg+16)}\nv_mov_b32 {v(vg+9)}, {v(vg+8)}\nv_mov_b32 {v(vg+17)}, {v(vg+16)}')
    P(f'ds_bpermute_b32 {v(vGBv)}, {v(vBP)}, {v(vg+24)}')
    P(f'v_permlane32_swap_b32 {v(vg+8)}, {v(vg+9)}\nv_permlane32_swap_b32 {v(vg+16)}, {v(vg+17)}')
    P(f'v_cvt_pk_bf16_f32 {v(vXC+2)}, {v(vg+8)}, {v(vg+9)}\nv_cvt_pk_bf16_f32 {v(vXC+1)}, {v(vg+16)}, {v(vg+17)}\nv_mov_b32 {v(vXC+3)}, {s(sTAG)}\nv_lshlrev_b32 {v(vXv)}, 16, {v(vXv)}')
    stamp('R_x4')
    if cfg.rwait >= 3: rw('rw1')
    def done(b):
        st = 1
        while st < 16:
            for a in range(0, 16, 2*st): add2(b+4*a, b+4*a, b+4*(a+st))
            st *= 2
    if cfg.rsleep: P(f's_sleep {cfg.rsleep}')
    if cfg.xbgrp:
        n = 16 // cfg.xbgrp
        def mk(g):
            def issue():
                for k in range(g*n, g*n + n): P(f'buffer_load_dwordx4 {v(128+4*k,4)}, {v(vL16r)}, {S(SRD_WS)}, {s(sB4 + (k >> 2))} offen offset:{1024*(k & 3)} sc1')
            return (issue, [128+4*k+2 for k in range(g*n, g*n + n)])
        poll_groups('xb', [mk(g) for g in range(cfg.xbgrp)])
        done(128)
    else: poll('xb', xb_issue, 16, 128, 64, [4*k+2 for k in range(0, 16, 2 if cfg.fakehalf & 1 else 1)], done, issued=(cfg.rwait == 2))
    stamp('R_xb')
    P(f'v_permlane32_swap_b32 {v(128)}, {v(129)}\nv_add_f32 {v(vg)}, {v(128)}, {v(129)}')
    rnd(vg)
    P(f'v_mul_f32 {v(vg)}, {v(vg)}, {v(vGAv)}'); rnd(vg)
    P(f'v_add_f32 {v(vg)}, {v(vg)}, {v(vXv)}\nv_mov_b32 {v(vg+1)}, {v(vg)}')
    P(f'v_permlane32_swap_b32 {v(vg)}, {v(vg+1)}')
    P(f'v_cvt_pk_bf16_f32 {v(vXC)}, {v(vg)}, {v(vg+1)}')
    if cfg.xcmode == 1: publish(vXC, vL16r, sO3, 0xffffffff)
    elif cfg.xcmode == 2:
        setexec(0xffffffff); P(f'buffer_store_dwordx4 {v(vXC,4)}, {v(vL16r)}, {S(SRD_WS)}, {s(sO3)} offen'); setexec(ALL)
    else: publish_loc(vXC, vL16r, sO3, 0xffffffff)
    stamp('R_xcpub')
    if cfg.epearly:
        P(f's_cmp_eq_u32 {s(sR)}, 0\ns_cbranch_scc0 L_NOEP')
        setexec(1)
        P(f'v_mov_b32 {v(vT)}, 0\nv_mov_b32 {v(vT+1)}, {s(sTAG)}')
        P(f'buffer_store_dword {v(vT+1)}, {v(vT)}, {S(SRD_WS)}, 0 offen sc1')
        setexec(ALL)
        P('L_NOEP:')
    P(f'v_lshrrev_b32 {v(vT+2)}, 1, {v(vL)}\nv_and_b32 {v(vT+2)}, 16, {v(vT+2)}\nv_lshrrev_b32 {v(vXv)}, {v(vT+2)}, {v(vXC)}\nv_lshlrev_b32 {v(vXv)}, 16, {v(vXv)}')
    P(f'ds_bpermute_b32 {v(vXv)}, {v(vBP)}, {v(vXv)}')
    def colsum():
        P(f'v_permlane16_swap_b32 {v(vg)}, {v(vg+1)}')
        P(f'v_add_f32 {v(vg)}, {v(vg)}, {v(vg+1)}')
        P(f'v_add_f32_dpp {v(vg)}, {v(vg)}, {v(vg)} row_ror:4 row_mask:0xf bank_mask:0xf')
        P(f'v_add_f32_dpp {v(vg)}, {v(vg)}, {v(vg)} row_ror:8 row_mask:0xf bank_mask:0xf')
        P(f'v_mov_b32 {v(vg+1)}, {v(vg)}')
        P(f'v_permlane32_swap_b32 {v(vg)}, {v(vg+1)}')
        P(f'v_add_f32 {v(vg)}, {v(vg)}, {v(vg+1)}')
    P('s_waitcnt lgkmcnt(0)')
    def issue(b):
        for k in range(2): P(f'buffer_load_dwordx4 {v(b+4*k,4)}, {v(vDA)}, {S(SRD_WS)}, {s(sD+k)} offen sc1')
        setexec((1 << 44) - 1)
        P(f'buffer_load_dwordx4 {v(b+8,4)}, {v(vDA)}, {S(SRD_WS)}, {s(sD+2)} offen sc1')
        setexec(ALL)
    def done(b):
        add2(b, b, b+4); add2(vg, b, b+8)
    if cfg.dsleep: P(f's_sleep {cfg.dsleep}')
    poll('xd', issue, 3, 192, 12, [2, 6, 10], done)
    stamp('R_xd')
    colsum()
    rnd(vg)
    P(f'v_mul_f32 {v(vg)}, {v(vg)}, {v(vGBv)}'); rnd(vg)
    P(f'v_add_f32 {v(vg)}, {v(vg)}, {v(vXv)}\nv_mov_b32 {v(vg+1)}, {v(vg)}')
    P(f'v_permlane16_swap_b32 {v(vg)}, {v(vg+1)}')
    P(f'v_cvt_pk_bf16_f32 {v(vg)}, {v(vg)}, {v(vg+1)}')
    setexec(0xf)
    P(f'buffer_store_dword {v(vg)}, {v(vU16)}, {S(SRD_B)}, {s(sG+2)} offen {cfg.outpol}')
    stamp('R_end')
    def epoch(skip):
        P(f's_cmp_eq_u32 {s(sR)}, 0\ns_cbranch_scc0 {skip}')
        setexec(1)
        P(f'v_mov_b32 {v(vT)}, 0\nv_mov_b32 {v(vT+1)}, {s(sTAG)}')
        P(f'buffer_store_dword {v(vT+1)}, {v(vT)}, {S(SRD_WS)}, 0 offen sc1')
    if not cfg.epearly: epoch('L_END')
    if cfg.xdelay:
        P(f's_cmp_eq_u32 {s(sR)}, 0\ns_cbranch_scc0 L_END\ns_memrealtime s[76:77]\ns_waitcnt lgkmcnt(0)\ns_add_u32 {s(sT0)}, s76, {cfg.xdelay}')
        P(f'L_XDL:\ns_memrealtime s[76:77]\ns_waitcnt lgkmcnt(0)\ns_sub_u32 {s(sT1)}, s76, {s(sT0)}\ns_cmp_lt_i32 {s(sT1)}, 0\ns_cbranch_scc1 L_XDL')
    if cfg.gprobe:
        P(f's_cmp_eq_u32 {s(sR)}, 0\ns_cbranch_scc0 L_END\ns_mov_b64 exec, -1\ns_mov_b32 {s(sT0)}, {hex(DIAG)}')
        nw = 4 if cfg.gprobe.startswith('L') else 1
        P(f'v_lshlrev_b32 v1, 5, v0')
        if cfg.gprobe[0] == 'R': P('v_add_u32 v1, 8, v1')
        if cfg.gprobe[0] in 'MR': P('s_sleep 40')
        regs = []
        for q in range(4):
            for w in range(nw):
                r = 128 + 2*(q*4 + w); regs.append(r)
                P(f'buffer_load_dwordx2 v[{r}:{r+1}], v1, {S(SRD_WS)}, {s(sT0)} offen offset:{8*w} sc1')
            P(f's_add_u32 {s(sT0)}, {s(sT0)}, 2048')
        P('s_waitcnt vmcnt(0)')
        P(f'v_subrev_u32 v2, {s(sDIAG)}, v{regs[0]}\nv_subrev_u32 v3, {s(sDIAG)}, v{regs[0]+1}')
        for r in regs[1:]:
            P(f'v_subrev_u32 v4, {s(sDIAG)}, v{r}\nv_min_i32 v2, v2, v4\nv_subrev_u32 v4, {s(sDIAG)}, v{r+1}\nv_max_i32 v3, v3, v4')
        wave_reduce('v_min_i32', [2]); wave_reduce('v_max_i32', [3])
        P(f'v_sub_u32 v2, v3, v2\nv_readlane_b32 {s(sT0)}, v2, 63\ns_nop 1\ns_min_u32 {s(sT0)}, {s(sT0)}, 5000\ns_memrealtime s[76:77]\ns_waitcnt lgkmcnt(0)\ns_add_u32 {s(sT0)}, {s(sT0)}, s76')
        P(f'L_GPR:\ns_memrealtime s[76:77]\ns_waitcnt lgkmcnt(0)\ns_sub_u32 {s(sT1)}, s76, {s(sT0)}\ns_cmp_lt_i32 {s(sT1)}, 0\ns_cbranch_scc1 L_GPR')
    if cfg.probe:
        P(f's_cmp_eq_u32 {s(sR)}, 0\ns_cbranch_scc0 L_END')
        i = stamps[cfg.probe]
        P(f's_waitcnt lgkmcnt(0)\ns_sub_u32 {s(sT0)}, {s(sDIAG+2*i)}, {s(sDIAG)}\ns_min_u32 {s(sT0)}, {s(sT0)}, 5000\ns_memrealtime s[76:77]\ns_waitcnt lgkmcnt(0)\ns_add_u32 {s(sT0)}, {s(sT0)}, s76')
        P(f'L_PROBE:\ns_memrealtime s[76:77]\ns_waitcnt lgkmcnt(0)\ns_sub_u32 {s(sT1)}, s76, {s(sT0)}\ns_cmp_lt_i32 {s(sT1)}, 0\ns_cbranch_scc1 L_PROBE')
    P('s_branch L_END')

    P('L_END:')
    if cfg.diag and not cfg.probe and not cfg.gprobe:
        P('s_waitcnt lgkmcnt(0)')
        P(f's_cmp_ge_u32 {s(sB)}, 256\ns_cbranch_scc1 L_END2')
        srd(SRD_WS, sWSP, WS_BYTES)
        P(f's_lshl_b32 {s(sT0)}, {s(sB)}, 3\ns_add_u32 {s(sT0)}, {s(sT0)}, {s(sW)}\ns_lshl_b32 {s(sT0)}, {s(sT0)}, 7\ns_add_u32 {s(sT0)}, {s(sT0)}, {hex(DIAG)}')
        P('s_mov_b64 exec, 1\nv_mov_b32 v1, 0')
        for i in range(9): P(f'v_mov_b32 v2, {s(sDIAG+2*i)}\nbuffer_store_dword v2, v1, {S(SRD_WS)}, {s(sT0)} offen offset:{4*i}')
        P('L_END2:')
    P('s_endpgm')
    P('L_CODE_END:')
    probs = P.fix()
    for p in probs: print('HAZARD across branch:', p, file=sys.stderr)
    head = open(f'cdna_kernels/{NAME}.s.ref').read().split('; Override launch')[0]
    txt = head
    txt += DOC
    txt += f'; @launch grid=(256,1,1) block=(512,1,1) lds={LDS_BYTES}\n'
    txt += f'.amdgcn_target "amdgcn-amd-amdhsa--gfx950"\n.text\n.globl {NAME}_kernel\n' + ('.p2align 12\n' if cfg.pgal else '') + f'.p2align 8\n.type {NAME}_kernel,@function\n{NAME}_kernel:\n'
    txt += P.text() + '\n'
    txt += f'''.section .rodata,"a"
.p2align 6
.amdhsa_kernel {NAME}_kernel
  .amdhsa_next_free_vgpr 256
  .amdhsa_next_free_sgpr 102
  .amdhsa_accum_offset 256
  .amdhsa_group_segment_fixed_size 0
  .amdhsa_kernarg_size 112
  .amdhsa_user_sgpr_count 2
  .amdhsa_user_sgpr_kernarg_segment_ptr 1
  .amdhsa_system_sgpr_workgroup_id_x 1
  .amdhsa_float_denorm_mode_32 3
.end_amdhsa_kernel
'''
    return txt, stamps

if __name__ == '__main__':
    out = sys.argv[1] if len(sys.argv) > 1 else f'cdna_kernels/{NAME}.s'
    class C(Cfg): pass
    for a in sys.argv[2:]:
        k, val = a.split('=', 1)
        setattr(C, k, eval(val))
    txt, stamps = gen(C)
    open(out, 'w').write(txt)
    print('written', out, len(txt), 'bytes', stamps)
```
